```python
import torch

def _softmax(x, axis=-1):
    return torch.softmax(x, dim=axis)
def _gelu(x):
    return torch.nn.functional.gelu(x, approximate="tanh")
def _silu(x):
    return torch.nn.functional.silu(x)
def _sigmoid(x):
    return torch.sigmoid(x)
def _layernorm(x, axis=-1, eps=1e-5):
    m = x.mean(dim=axis, keepdim=True)
    v = x.var(dim=axis, keepdim=True, unbiased=False)
    return (x - m) / torch.sqrt(v + eps)
def _scatter_add(tgt, idx, src, axis=0):
    return tgt.clone().index_add_(axis, idx, src)
def _segment_sum(src, seg, n):
    out = torch.zeros((n,) + src.shape[1:], dtype=src.dtype)
    return out.index_add_(0, seg, src)
def _pad(x, pw):
    flat = tuple(v for pair in reversed(pw) for v in pair)
    return torch.nn.functional.pad(x, flat)

kernel_name = 'concat_heads__linear_kernel_hedgehog__linear_attn_block__prompt'

def setup_inputs():

    _w = (lambda a: (lambda t: t.to(torch.bfloat16) if t.is_floating_point() else t)(torch.as_tensor(a)))
    def _A_setup():
        B, S, D, H = 1, 2048, 640, 32
        Dh = D // H
        return {
            "x": _w((lambda *s: torch.randn(*s, dtype=torch.bfloat16) * 0.4)(B, S, D)),
            "wqkv": _w((lambda *s: torch.randn(*s, dtype=torch.bfloat16) * 0.4)(D, 3 * D)),
            "w_phi": _w((lambda *s: torch.randn(*s, dtype=torch.bfloat16) * 0.4)(H, Dh, Dh) * (Dh ** -0.5)),
            "wo": _w((lambda *s: torch.randn(*s, dtype=torch.bfloat16) * 0.05)(D, D)),
        }
    _A_in = _A_setup()

    def _B_setup():
        B, S, D = 1, 2048, 640
        return {
            "x": _w((lambda *s: torch.randn(*s, dtype=torch.bfloat16) * 0.05)(B, S, D)),
            "wqkv": _w((lambda *s: torch.randn(*s, dtype=torch.bfloat16) * 0.8)(D, 3 * D)),
            "wo": _w((lambda *s: torch.randn(*s, dtype=torch.bfloat16) * 0.4)(D, D)),
        }
    _B_in = _B_setup()

    return {
        "A_x": _A_in["x"],
        "A_wqkv": _A_in["wqkv"],
        "A_w_phi": _A_in["w_phi"],
        "A_wo": _A_in["wo"],
        "B_x": _B_in["x"],
        "B_wqkv": _B_in["wqkv"],
        "B_wo": _B_in["wo"],
    }

def reference(A_x, A_wqkv, A_w_phi, A_wo, B_x, B_wqkv, B_wo):
    def _A_ref(x, wqkv, w_phi, wo):
        B, S, D = x.shape
        H = 32; Dh = D // H
        qkv = (lambda x, *d: x.permute(*d))((x @ wqkv).reshape(B, S, 3, H, Dh), 2, 0, 3, 1, 4)
        q, k, v = qkv[0], qkv[1], qkv[2]
        pq = torch.einsum("bhsd,hdf->bhsf", q, w_phi)
        pk = torch.einsum("bhsd,hdf->bhsf", k, w_phi)
        phi_q = torch.concatenate([_softmax(pq, axis=-1), _softmax(-pq, axis=-1)], axis=-1)
        phi_k = torch.concatenate([_softmax(pk, axis=-1), _softmax(-pk, axis=-1)], axis=-1)
        kv = torch.einsum("bhsf,bhsd->bhfd", phi_k, v)
        z  = torch.einsum("bhsf->bhf", phi_k)
        num = torch.einsum("bhqf,bhfd->bhqd", phi_q, kv)
        den = torch.einsum("bhqf,bhf->bhq", phi_q, z)[..., None] + 1e-6
        o = num / den
        return (lambda x, *d: x.permute(*d))(o, 0, 2, 1, 3).reshape(B, S, D) @ wo

    def _B_ref(x, wqkv, wo):
        B, S, D = x.shape
        H = 32; Dh = D // H
        qkv = (lambda x, *d: x.permute(*d))((x @ wqkv).reshape(B, S, 3, H, Dh), 2, 0, 3, 1, 4)
        q, k, v = qkv[0], qkv[1], qkv[2]
        phi = lambda t: torch.where(t > 0, t + 1, torch.exp(t)) + 1e-6
        pq, pk = phi(q), phi(k)
        kv = torch.einsum("bhsd,bhse->bhde", pk, v)
        z = torch.einsum("bhsd->bhd", pk)
        num = torch.einsum("bhqd,bhde->bhqe", pq, kv)
        den = torch.einsum("bhqd,bhd->bhq", pq, z)[..., None] + 1e-6
        o = num / den
        return (lambda x, *d: x.permute(*d))(o, 0, 2, 1, 3).reshape(B, S, D) @ wo

    a = _A_ref(A_x, A_wqkv, A_w_phi, A_wo)
    b = _B_ref(B_x, B_wqkv, B_wo)
    return torch.concatenate([a, b], axis=-1)
```

```python
import re

REG = re.compile(r'^(-|\|)?([vas])(?:(\d+)|\[(\d+):(\d+)\])\|?$')
def regs(tok):
    tok = tok.strip()
    tok = re.sub(r'^(neg|abs)\((.*)\)$', r'\2', tok)
    if tok in ('vcc',): return {('s', 106), ('s', 107)}
    if tok == 'vcc_lo': return {('s', 106)}
    if tok == 'vcc_hi': return {('s', 107)}
    if tok == 'exec': return {('s', 126), ('s', 127)}
    if tok == 'm0': return {('s', 124)}
    m = REG.match(tok)
    if not m: return set()
    f = m.group(2)
    if m.group(3) is not None: return {(f, int(m.group(3)))}
    return {(f, i) for i in range(int(m.group(4)), int(m.group(5)) + 1)}

TRANS = ('v_exp_f32', 'v_log_f32', 'v_rcp_f32', 'v_rsq_f32', 'v_sqrt_f32')
class Ins:
    def __init__(self, text, tag=None):
        self.text = text; self.tag = tag
        t = text.split(';')[0].strip()
        self.label = t.endswith(':') or t.startswith('.')
        parts = t.split(None, 1)
        self.op = parts[0] if parts else ''
        ops = []
        if len(parts) > 1:
            ops = [x.strip() for x in re.split(r',(?![^\[]*\])', parts[1])]
            if ops:
                last = ops[-1].split()
                self.mods = last[1:]
                ops[-1] = last[0]
        self.ops = ops
        op = self.op
        self.kind = 'other'
        self.w = set(); self.r = set(); self.srcc = set(); self.data = set()
        R = lambda i: regs(ops[i]) if i < len(ops) else set()
        allr = lambda a: set().union(*[regs(x) for x in ops[a:]]) if len(ops) > a else set()
        if self.label: self.kind = 'label'
        elif op.startswith('v_mfma'):
            self.kind = 'mfma'; self.w = R(0); self.r = R(1) | R(2) | R(3); self.srcc = R(3); self.ab = R(1) | R(2)
            self.passes = 8 if '32x32' in op else 4
        elif op.startswith('v_'):
            self.kind = 'valu'
            if op.startswith('v_swap') or '_swap_' in op:
                self.w = R(0) | R(1); self.r = R(0) | R(1)
            elif op.startswith('v_cmp'):
                self.w = R(0); self.r = allr(1)
            elif '_co_' in op:
                self.w = R(0) | R(1); self.r = allr(2)
            elif op == 'v_nop': pass
            else:
                self.w = R(0); self.r = allr(1)
                if op.startswith('v_fmac') or op.startswith('v_writelane') or 'dpp' in text or 'row_' in text: self.r |= R(0)
            self.trans = any(op.startswith(x) for x in TRANS)
        elif op.startswith('ds_'):
            self.kind = 'ds'
            if op.startswith('ds_read') : self.w = R(0); self.r = allr(1)
            else: self.r = allr(0); self.data = allr(1)
        elif op.startswith('buffer_') or op.startswith('global_'):
            self.kind = 'vmem'
            lds = 'lds' in getattr(self, 'mods', [])
            if op in ('buffer_wbl2', 'buffer_inv'): pass
            elif lds: self.r = allr(0) | {('s', 124)}; self.dma = True
            elif '_load_' in op: self.w = R(0); self.r = allr(1)
            elif op.startswith('buffer_'): self.r = allr(0); self.data = R(0)
            else: self.r = allr(0); self.data = R(1)
            self.wide = ('store' in op) and (op.endswith('x4') or op.endswith('x3'))
        elif op.startswith('s_load') or op.startswith('s_memtime') or op.startswith('s_memrealtime') or op.startswith('s_buffer_load'):
            self.kind = 'smem'; self.w = R(0); self.r = allr(1)
        elif op.startswith('s_'):
            self.kind = 'salu'
            if op.startswith('s_cmp') or op.startswith('s_bitcmp'): self.r = allr(0)
            elif op in ('s_waitcnt', 's_nop', 's_barrier', 's_endpgm', 's_sleep', 's_setprio') or op.startswith('s_cbranch') or op == 's_branch': pass
            else: self.w = R(0); self.r = allr(1)
            if 'saveexec' in op: self.w |= regs('exec')
    def states(self):
        if self.kind == 'label': return 0
        if self.op == 's_nop': return int(self.ops[0]) + 1
        return 1

def vr(s): return {x for x in s if x[0] in 'va'}
def sr(s): return {x for x in s if x[0] == 's'}
def need(p, c):
    n = 0
    if p.kind == 'valu':
        if c.kind == 'mfma' and vr(p.w) & c.r: n = max(n, 2)
        if c.kind == 'valu':
            if p.trans and not c.trans and vr(p.w) & c.r: n = max(n, 1)
            if c.op.startswith('v_permlane') and vr(p.w) & c.r: n = max(n, 2)
            if ('dpp' in c.text or 'row_' in c.text) and vr(p.w) & c.r: n = max(n, 2)
            if (c.op.startswith('v_readfirstlane') or c.op.startswith('v_readlane')) and vr(p.w) & c.r: n = max(n, 1)
            if sr(p.w) & c.r: n = max(n, 4 if c.op.startswith(('v_readlane', 'v_writelane')) else 2)
            if 'op_sel' in p.text and not p.op.startswith('v_pk_') and vr(p.w) & (c.r | c.w): n = max(n, 1)
        if p.trans and c.kind in ('ds', 'vmem') and vr(p.w) & c.r: n = max(n, 1)
        if c.kind == 'vmem' and sr(p.w) & c.r: n = max(n, 5)
        if c.kind in ('salu', 'smem') and (sr(p.w) & c.r or (c.op.startswith('s_cbranch_vcc') and ('s', 106) in p.w)): n = max(n, 4)
    if p.kind == 'mfma':
        t = {4: (6, 8, 3), 8: (10, 12, 7)}[p.passes]
        if c.kind == 'mfma':
            if p.w & c.ab: n = max(n, t[1])
            if p.w & c.srcc and not (p.w == c.srcc and p.passes == c.passes): n = max(n, t[0])
            if p.w & c.w and not p.w & c.srcc: n = max(n, t[0])
        elif c.kind in ('valu', 'ds', 'vmem'):
            if p.w & (c.r | c.w): n = max(n, t[1])
            if c.kind == 'valu' and p.srcc & c.w: n = max(n, t[2])
    if p.kind == 'vmem' and getattr(p, 'wide', False) and p.data & c.w: n = max(n, 2)
    if p.kind == 'salu' and ('s', 124) in p.w and getattr(c, 'dma', False): n = max(n, 1)
    return n

class Prog:
    def __init__(self):
        self.ins = []
        self.vmq = []
        self.lgq = []
        self.smem_out = False
    def raw(self, text):
        for line in text.split('\n'):
            line = line.strip()
            if line: self(line)
    def __call__(self, text, tag=None):
        i = Ins(text, tag)
        if i.kind == 'ds' and len(self.lgq) >= 15:
            self.autow = getattr(self, 'autow', 0) + 1
            self("s_waitcnt lgkmcnt(14)")
        if i.kind == 'vmem' : self.vmq.append(tag); self.nvm = getattr(self, 'nvm', 0) + 1
        if i.kind == 'ds': self.lgq.append(tag)
        if i.kind == 'smem': self.smem_out = True
        if i.op == 's_waitcnt':
            m = re.search(r'vmcnt\((\d+)\)', text)
            if m: n = int(m.group(1)); self.vmq = self.vmq[len(self.vmq)-n:] if n else []
            m = re.search(r'lgkmcnt\((\d+)\)', text)
            if m:
                n = int(m.group(1)); self.lgq = self.lgq[max(0, len(self.lgq)-n):] if n else []
                if n == 0: self.smem_out = False
                else: assert not self.smem_out, "counted lgkm wait with smem outstanding"
        assert len(self.vmq) <= 63, "vmcnt overflow"
        self.ins.append(i)
        return i
    def untracked(self, lines):
        for l in lines: self.ins.append(Ins(l))
    def _cnt(self, q, tags):
        if not isinstance(tags, (list, set)): tags = [tags]
        idx = [k for k, t in enumerate(q) if t in tags]
        if not idx: return None
        return len(q) - 1 - max(idx)
    def wait(self, vm=None, lg=None):
        parts = []
        if vm is not None:
            n = 0 if vm == '*' and self.vmq else self._cnt(self.vmq, vm)
            if n is not None: parts.append(f"vmcnt({n})")
        if lg is not None:
            n = 0 if lg == '*' and (self.lgq or self.smem_out) else self._cnt(self.lgq, lg)
            if n is not None:
                if self.smem_out: n = 0
                parts.append(f"lgkmcnt({min(n, 15)})") if n <= 15 else parts.append("lgkmcnt(15)")
        if parts: self("s_waitcnt " + " ".join(parts))
    def finalize(self):
        out = []
        nn = 0
        for c in self.ins:
            if c.kind != 'label':
                dist = 0; req = 0
                for p in reversed(out):
                    if dist >= 14: break
                    k = need(p, c)
                    if k > dist: req = max(req, k - dist)
                    dist += p.states()
                if req:
                    out.append(Ins(f"s_nop {req-1}")); nn += req
            out.append(c)
        self.nops = nn
        return "\n".join(("" if i.kind == 'label' else "    ") + i.text for i in out) + "\n"
```

```python
import sys
from emit import Prog
NAME = "concat_heads__linear_kernel_hedgehog__linear_attn_block__prompt"

S_RB, S_HG, S_W = 4, 5, 7
SX, SW, SWO, SWS, SOUT, SPHI = 8, 12, 16, 20, 24, 28
S_NONCE = 32
S_WROW = 33
S_XBASE, S_XU = 38, 39
S_LW, S_LR = 40, 41
T0, T1, T2, T3 = 42, 43, 44, 45
S_WOROW = 46
S_HEAD = 51
S_SPIN = 52
S_L2E, S_NL2E = 54, 55
S_OB = 56
S_PP0 = 57
S_FLAG = 58
S_ST = 64
def srd(b): return f"s[{b}:{b+3}]"
V_LANE = 1
V_WO = 2; V_OF = 7; V_OL = 12; V_XO = 17; V_XR = 21; V_WT = 23; V_LIN = 25
V_PW, V_VW, V_KB, V_KA0, V_KA1, V_FR = 26, 27, 28, 29, 30, 31
ACC_K, ACC_V, ACC_Q = 32, 72, 112
TMP = 152
RING = 0; SLOT = 20480; RBASE = 102400; RW = 15360
WS_FLAG, WS_P2, WS_P1, WS_O, WS_ST = 4096, 65536, 1 << 20, 8 << 20, 16 << 20
WS_SIZE = 32 << 20
D = 6
A_RING = 220
A_PHI = 160
SPIN_MAX = 20000

def vq(b, n=4): return f"v[{b}:{b+n-1}]"
def aq(b, n=4): return f"a[{b}:{b+n-1}]"
def acc(base, t, rt): return base + (rt * 5 + t) * 4

class Gen:
    def __init__(self, isA, opt):
        self.A = isA; self.o = opt
        self.p = Prog(); self.sfx = 'A' if isA else 'B'
        self.F = 40 if isA else 20
        self.nst = 0
    def stamp(self):
        if not self.o.get('stamps'): return
        p = self.p
        p(f"s_memtime s[{S_ST+2*self.nst}:{S_ST+2*self.nst+1}]")
        p("s_waitcnt lgkmcnt(0)")
        self.nst += 1
    def dma_w(self, G):
        L = []
        g = G % 5
        if G < 15:
            col = {0: 1280, 1: 2560, 2: 0}[G // 5]
            L.append(f"s_add_u32 s{T0}, s{S_WROW+g}, {col}"); so = f"s{T0}"; sd = SW; vo = V_WO
            fl = self.o.get('wflag', '')
        else:
            so = f"s{S_WOROW+g}"; sd = SWO; vo = V_OF if g < 4 else V_OL
            fl = self.o.get('wflag', '')
        L.append(f"s_add_u32 m0, s{S_LW}, {RING + g*SLOT}")
        for j in range(5):
            if j == 4: L.append(f"s_add_u32 m0, s{S_LW}, {RING + g*SLOT + 4096}")
            off = f"offset:{j*1024} " if 0 < j < 4 else ""
            L.append((f"buffer_load_dwordx4 v{vo+j}, {srd(sd)}, {so} offen {off}{fl} lds", ('W', G)))
        return L
    def dma_x(self, pu):
        L = []
        L.append(f"s_lshl_b32 s{T1}, s{S_XU}, 7")
        L.append(f"s_add_u32 s{T1}, s{T1}, s{S_XBASE}")
        L.append(f"s_add_u32 m0, s{S_LR}, {(pu % 3) * 4096}")
        L.append(f"s_add_u32 s{S_XU}, s{S_XU}, 1")
        for j in range(4):
            off = f"offset:{j*1024} " if j else ""
            L.append((f"buffer_load_dwordx4 v{V_XO+j}, {srd(SX)}, s{T1} offen {off}{self.o.get('xflag','')} lds", ('X', pu)))
        L.append(f"s_cmp_eq_u32 s{S_XU}, 10")
        L.append(f"s_cselect_b32 s{S_XU}, 0, s{S_XU}")
        return L
    def put(self, L):
        for x in L:
            if isinstance(x, tuple): self.p(x[0], x[1])
            elif callable(x): x()
            else: self.p(x)
    def wread(self, N, hf):
        G = N // 20; ks = (N % 20) // 5; t = N % 5
        off = RING + (G % 5) * SLOT + ks * 5120 + hf * 2560 + 8 * t
        hi = off >= 51200
        s = A_RING + (N % D) * 4 + 2 * hf
        self.p(f"ds_read_b64_tr_b16 a[{s}:{s+1}], v{V_WT + hi} offset:{off - 51200*hi}", ('F', N))
    def group_sync(self, G):
        self.p.wait(vm=[('W', G)])
        self.p("s_barrier")
    def xreads(self, pu):
        p = self.p
        p.wait(vm=[('X', pu)])
        for ksub in range(2):
            for rt in range(2):
                a = ((2 * pu + ksub) * 2 + rt) * 4
                p(f"ds_read_b128 {aq(a)}, v{V_XR+ksub} offset:{(pu % 3)*4096 + rt*2048}", ('XR', pu))
    def gemm_pass(self, ps, accb, bop, fill=None, hooks=None, first=False, last=False, pre=None):
        p = self.p
        fill = list(fill or []); hooks = hooks or {}
        N0 = ps * 100
        if first:
            self.group_sync(ps * 5)
            if pre: pre()
            for n in range(D - 1):
                self.wread(N0 + n, 0); self.wread(N0 + n, 1)
        p.wait(lg=[('F', N0), ('XR', 0)])
        per = (sum(c for c, _ in fill) + 199) // 200 if fill else 0
        budget = 0
        def fillup(k):
            nonlocal budget
            budget += k
            while fill and fill[0][0] <= budget:
                c, x = fill.pop(0); budget -= c
                self.put([x])
        for n in range(100):
            ks, t = divmod(n, 5)
            s = A_RING + ((N0 + n) % D) * 4
            M = n + D - 1
            look = M < 100 or not last
            for rt in range(2):
                a = acc(accb, t, rt)
                c = "0" if ks == 0 else vq(a)
                p(f"v_mfma_f32_16x16x32_bf16 {vq(a)}, {aq(s)}, {bop(ks, rt)}, {c}")
                if rt == 0:
                    if look and M % 20 == 0: self.group_sync((N0 + M) // 20)
                    if n in hooks: self.put(hooks[n])
                else:
                    if n < 99:
                        tg = [('F', N0 + n + 1)]
                        if ps == 0 and (n + 1) % 10 == 0: tg.append(('XR', (n + 1) // 10))
                        p.wait(lg=tg)
                    if ('b', n) in hooks: self.put(hooks[('b', n)])
                if look: self.wread(N0 + M, rt)
                fillup(per)
        while fill:
            self.put([fill.pop(0)[1]])
    def cvt20(self, src, dst):
        return [(1, f"v_cvt_pk_bf16_f32 v{dst+i}, v{src+2*i}, v{src+2*i+1}") for i in range(10)]
    def phiA(self, src, out, tmp, packed):
        kb = tmp; pp = tmp + 12; e = tmp + 32; m = tmp + 72
        L = self.cvt20(src, kb)
        L += [(1, f"v_mov_b32 v{kb+10}, 0"), (1, f"v_mov_b32 v{kb+11}, 0")]
        for u in range(3):
            for t in range(5):
                c = "0" if u == 0 else vq(pp + 4*t)
                L.append((2, f"v_mfma_f32_16x16x32_bf16 {vq(pp+4*t)}, {aq(A_PHI + (t*3+u)*4)}, {vq(kb+4*u)}, {c}"))
        L.append((1, f"v_max3_f32 v{m}, v{pp}, v{pp+1}, v{pp+2}"))
        L.append((1, f"v_min3_f32 v{m+1}, v{pp}, v{pp+1}, v{pp+2}"))
        for i in range(3, 19, 2):
            L.append((1, f"v_max3_f32 v{m}, v{m}, v{pp+i}, v{pp+i+1}"))
            L.append((1, f"v_min3_f32 v{m+1}, v{m+1}, v{pp+i}, v{pp+i+1}"))
        L.append((1, f"v_max_f32 v{m}, v{m}, v{pp+19}"))
        L.append((1, f"v_min_f32 v{m+1}, v{m+1}, v{pp+19}"))
        L.append((1, f"v_mul_f32 v{m}, s{S_NL2E}, v{m}"))
        L.append((1, f"v_mul_f32 v{m+1}, s{S_L2E}, v{m+1}"))
        for i in range(20):
            if packed:
                b = pp + (i & ~1); o = i & 1
                L.append((1, f"v_pk_fma_f32 v[{e+2*i}:{e+2*i+1}], v[{b}:{b+1}], s[{S_L2E}:{S_NL2E}], v[{m}:{m+1}] op_sel:[{o},0,0] op_sel_hi:[{o},1,1]"))
            else:
                L.append((1, f"v_fma_f32 v{e+2*i}, v{pp+i}, s{S_L2E}, v{m}"))
                L.append((1, f"v_fma_f32 v{e+2*i+1}, v{pp+i}, s{S_NL2E}, v{m+1}"))
        for i in range(40):
            L.append((2, f"v_exp_f32 v{e+i}, v{e+i}"))
        s = m + 2
        if packed:
            L.append((1, f"v_pk_add_f32 v[{s}:{s+1}], v[{e}:{e+1}], v[{e+2}:{e+3}]"))
            L.append((1, f"v_pk_add_f32 v[{s+2}:{s+3}], v[{e+4}:{e+5}], v[{e+6}:{e+7}]"))
            for i in range(4, 20):
                d = s + 2 * (i & 1)
                L.append((1, f"v_pk_add_f32 v[{d}:{d+1}], v[{d}:{d+1}], v[{e+2*i}:{e+2*i+1}]"))
            L.append((1, f"v_pk_add_f32 v[{s}:{s+1}], v[{s}:{s+1}], v[{s+2}:{s+3}]"))
        else:
            L.append((1, f"v_add_f32 v{s}, v{e}, v{e+2}"))
            L.append((1, f"v_add_f32 v{s+1}, v{e+1}, v{e+3}"))
            for i in range(2, 20):
                L.append((1, f"v_add_f32 v{s}, v{s}, v{e+2*i}"))
                L.append((1, f"v_add_f32 v{s+1}, v{s+1}, v{e+2*i+1}"))
        L.append((2, f"v_rcp_f32 v{s}, v{s}"))
        L.append((2, f"v_rcp_f32 v{s+1}, v{s+1}"))
        for i in range(20):
            if packed:
                L.append((1, f"v_pk_mul_f32 v[{e+2*i}:{e+2*i+1}], v[{e+2*i}:{e+2*i+1}], v[{s}:{s+1}]"))
            else:
                L.append((1, f"v_mul_f32 v{e+2*i}, v{e+2*i}, v{s}"))
                L.append((1, f"v_mul_f32 v{e+2*i+1}, v{e+2*i+1}, v{s+1}"))
        for i in range(20):
            L.append((1, f"v_cvt_pk_bf16_f32 v{out+i}, v{e+2*i}, v{e+2*i+1}"))
        return L
    def phiB(self, src, out, tmp):
        L = []
        e = tmp
        for i in range(20): L.append((1, f"v_mul_f32 v{e+i}, s{S_L2E}, v{src+i}"))
        for i in range(20): L.append((2, f"v_exp_f32 v{e+i}, v{e+i} clamp"))
        for i in range(20): L.append((1, f"v_max_f32 v{src+i}, 0x358637bd, v{src+i}"))
        for i in range(20): L.append((1, f"v_add_f32 v{e+i}, v{e+i}, v{src+i}"))
        L += self.cvt20(e, out)
        return L
    def spin_head(self, name):
        self.p(f"s_mov_b32 s{S_SPIN}, 0")
        self.p(f"{name}{self.sfx}:")
    def spin_tail(self, name):
        p = self.p
        p(f"s_cbranch_vccz {name}{self.sfx}_ok")
        p(f"s_add_u32 s{S_SPIN}, s{S_SPIN}, 1")
        p(f"s_cmp_lt_u32 s{S_SPIN}, {SPIN_MAX}")
        p(f"s_cbranch_scc1 {name}{self.sfx}")
        p(f"{name}{self.sfx}_ok:")
    def body(self):
        p = self.p; A = self.A; F = self.F; br = 0 if A else 1; o = self.o
        p(f"L_body{self.sfx}:")
        if A:
            p("s_load_dwordx8 s[64:71], s[0:1], 0")
            kx, kw, kphi, kwo = 64, 66, 68, 70
        else:
            p("s_load_dwordx4 s[64:67], s[0:1], 32")
            p("s_load_dwordx2 s[70:71], s[0:1], 48")
            kx, kw, kphi, kwo = 64, 66, None, 70
        p("s_load_dwordx2 s[72:73], s[0:1], 56")
        p("s_load_dwordx2 s[74:75], s[0:1], 72")
        if o.get('stamps'): p("s_memtime s[96:97]"); p("s_memrealtime s[98:99]")
        p.raw(f"""
        v_lshrrev_b32 v{TMP}, 6, v0
        v_and_b32 v{V_LANE}, 63, v0
        v_readfirstlane_b32 s{S_W}, v{TMP}
        s_lshr_b32 s3, s2, 3
        s_and_b32 s{S_RB}, s2, 3
        s_lshl_b32 s{S_RB}, s{S_RB}, 2
        s_lshr_b32 s{T0}, s3, 3
        s_add_u32 s{S_RB}, s{S_RB}, s{T0}
        s_and_b32 s{S_HG}, s3, 7
        """)
        if o.get('cpf', 1):
            p.raw(f"""
            s_getpc_b64 s[60:61]
            s_lshl_b32 s{T0}, s{S_HG}, 2
            s_add_u32 s{T0}, s{T0}, s{S_W}
            s_lshl_b32 s{T0}, s{T0}, 10
            s_add_u32 s60, s60, s{T0}
            s_addc_u32 s61, s61, 0
            v_lshlrev_b32 v{TMP+1}, 7, v{V_LANE}
            s_mov_b64 exec, 0xff
            """)
            p(f"global_load_dword v{TMP+100}, v{TMP+1}, s[60:61]", 'cpf')
            p("s_mov_b64 exec, -1")
        ra, rbm = o.get('rot', (1, 3))
        p.raw(f"""
        s_mul_i32 s{T0}, s{S_HG}, {ra}
        s_mul_i32 s{T1}, s{S_RB}, {rbm}
        s_add_u32 s{T0}, s{T0}, s{T1}
        s_mul_i32 s{T1}, s{T0}, 6554
        s_lshr_b32 s{T1}, s{T1}, 16
        s_mul_i32 s{T1}, s{T1}, 10
        s_sub_u32 s{S_XU}, s{T0}, s{T1}
        s_lshr_b32 s{T0}, s{S_W}, 1
        s_add_u32 s{T0}, s{T0}, s{S_XU}
        s_and_b32 s{T1}, s{S_W}, 1
        s_mul_i32 s{T1}, s{T1}, {32*3840}
        s_mul_i32 s{T2}, s{S_HG}, 160
        s_add_u32 s{T1}, s{T1}, s{T2}
        """)
        for g in range(5):
            p.raw(f"""
            s_cmp_ge_u32 s{T0}, 10
            s_cselect_b32 s{T2}, 10, 0
            s_sub_u32 s{T0}, s{T0}, s{T2}
            s_mul_i32 s{T2}, s{T0}, {64*3840}
            s_add_u32 s{S_WROW+g}, s{T2}, s{T1}
            s_add_u32 s{T0}, s{T0}, 2
            """)
        p.raw(f"""
        s_lshl_b32 s{T0}, s{S_RB}, 2
        s_add_u32 s{T0}, s{T0}, s{S_W}
        s_mul_i32 s{S_XBASE}, s{T0}, 40960
        s_mul_i32 s{S_LW}, s{S_W}, 5120
        s_mul_i32 s{S_LR}, s{S_W}, {RW}
        s_add_u32 s{S_LR}, s{S_LR}, {RBASE}
        """)
        t = TMP
        RH = TMP + 10
        for j in range(5):
            b = RH + 4 * j
            p.raw(f"""
            v_add_u32 v{t}, {64*j}, v{V_LANE}
            v_mul_u32_u24 v{t+1}, 6554, v{t}
            v_lshrrev_b32 v{t+1}, 16, v{t+1}
            v_mul_u32_u24 v{t+2}, 10, v{t+1}
            v_sub_u32 v{b+3}, v{t}, v{t+2}
            v_bfe_u32 v{b}, v{t+1}, 2, 2
            v_lshrrev_b32 v{b+1}, 4, v{t+1}
            v_and_b32 v{b+2}, 3, v{t+1}
            v_lshl_add_u32 v{t}, v{b}, 1, v{b+1}
            v_lshl_add_u32 v{t}, v{t}, 2, v{b+2}
            v_mul_u32_u24 v{t}, 3840, v{t}
            v_lshl_add_u32 v{V_WO+j}, v{b+3}, 4, v{t}
            """)
            if 0 < j < 4: p(f"v_subrev_u32 v{V_WO+j}, {1024*j}, v{V_WO+j}")
        p.raw(f"""
        v_lshrrev_b32 v{t}, 3, v{V_LANE}
        v_mul_u32_u24 v{t}, 1280, v{t}
        v_lshrrev_b32 v{t+1}, 4, v{V_LANE}
        v_xor_b32 v{t+1}, v{t+1}, v{V_LANE}
        v_and_b32 v{t+1}, 7, v{t+1}
        v_lshl_add_u32 v{V_XO}, v{t+1}, 4, v{t}
        v_xor_b32 v{t+2}, 64, v{V_XO}
        v_add_u32 v{V_XO+1}, {9216}, v{t+2}
        v_add_u32 v{V_XO+2}, {2*9216}, v{V_XO}
        v_add_u32 v{V_XO+3}, {3*9216}, v{t+2}
        v_lshlrev_b32 v{V_LIN}, 4, v{V_LANE}
        s_waitcnt lgkmcnt(0)
        s_mov_b32 s{SW}, s{kw}
        s_mov_b32 s{SW+1}, s{kw+1}
        s_mov_b32 s{SW+2}, 2457600
        s_mov_b32 s{SW+3}, 0x20000
        s_mov_b32 s{SX}, s{kx}
        s_mov_b32 s{SX+1}, s{kx+1}
        s_mov_b32 s{SX+2}, 2621440
        s_mov_b32 s{SX+3}, 0x20000
        """)
        self.put(self.dma_w(0)); self.put(self.dma_x(0)); self.put(self.dma_x(1))
        p(f"s_load_dword s{S_NONCE}, s[74:75], {br*128}")
        p.raw(f"""
        s_mov_b32 s{SWO}, s{kwo}
        s_mov_b32 s{SWO+1}, s{kwo+1}
        s_mov_b32 s{SWO+2}, 819200
        s_mov_b32 s{SWO+3}, 0x20000
        s_mov_b32 s{SWS}, s74
        s_mov_b32 s{SWS+1}, s75
        s_mov_b32 s{SWS+2}, {WS_SIZE}
        s_mov_b32 s{SWS+3}, 0x20000
        s_mov_b32 s{SOUT}, s72
        s_mov_b32 s{SOUT+1}, s73
        s_mov_b32 s{SOUT+2}, 5242880
        s_mov_b32 s{SOUT+3}, 0x20000
        s_lshl_b32 s{S_HEAD}, s{S_HG}, 2
        s_add_u32 s{S_HEAD}, s{S_HEAD}, s{S_W}
        """)
        if A:
            p.raw(f"""
            s_mov_b32 s{SPHI}, s{kphi}
            s_mov_b32 s{SPHI+1}, s{kphi+1}
            s_mov_b32 s{SPHI+2}, 25600
            s_mov_b32 s{SPHI+3}, 0x20000
            s_mul_i32 s{T0}, s{S_HEAD}, 800
            s_add_u32 m0, s{S_LR}, 12288
            """)
            p(f"buffer_load_dwordx4 v{V_LIN}, {srd(SPHI)}, s{T0} offen lds", ('W', 1))
        self.put(self.dma_w(1)); self.put(self.dma_x(2))
        G_, I_, R_, C_ = t, t + 1, t + 2, t + 3
        p.raw(f"""
        v_lshrrev_b32 v{G_}, 4, v{V_LANE}
        v_and_b32 v{I_}, 15, v{V_LANE}
        v_bfe_u32 v{R_}, v{V_LANE}, 2, 2
        v_and_b32 v{C_}, 3, v{V_LANE}
        v_lshrrev_b32 v{t+4}, 1, v{I_}
        v_xor_b32 v{t+4}, v{t+4}, v{G_}
        v_lshlrev_b32 v{t+5}, 7, v{I_}
        v_lshl_add_u32 v{t+4}, v{t+4}, 4, v{t+5}
        v_add_u32 v{V_XR}, s{S_LR}, v{t+4}
        v_xor_b32 v{t+4}, 64, v{t+4}
        v_add_u32 v{V_XR+1}, s{S_LR}, v{t+4}
        v_lshrrev_b32 v{t+4}, 2, v{V_LANE}
        v_mul_u32_u24 v{t+5}, 160, v{t+4}
        v_mul_u32_u24 v{t+6}, 40, v{C_}
        v_add_u32 v{V_WT}, v{t+5}, v{t+6}
        v_add_u32 v{V_WT+1}, 51200, v{V_WT}
        v_mul_u32_u24 v{t+5}, 480, v{I_}
        v_add_u32 v{t+5}, s{S_LR}, v{t+5}
        v_mul_u32_u24 v{t+6}, 80, v{G_}
        v_add_u32 v{V_PW}, v{t+5}, v{t+6}
        v_mul_u32_u24 v{t+6}, 40, v{G_}
        v_add3_u32 v{V_VW}, v{t+5}, v{t+6}, 64
        v_add_u32 v{V_VW}, 256, v{V_VW}
        v_mul_u32_u24 v{t+5}, 480, v{t+4}
        s_mul_i32 s{T0}, s{S_W}, 80
        s_add_u32 s{T0}, s{T0}, {RBASE}
        s_mul_i32 s{T1}, s{S_W}, 40
        s_add_u32 s{T1}, s{T1}, {RBASE+320}
        v_lshl_add_u32 v{t+6}, v{C_}, 3, v{t+5}
        v_add_u32 v{V_KB}, s{T0}, v{t+6}
        v_add_u32 v{V_KA0}, s{T1}, v{t+6}
        v_add_u32 v{V_KA1}, s{T1}, v{t+5}
        s_mov_b32 s{S_L2E}, 0x3fb8aa3b
        s_mov_b32 s{S_NL2E}, 0xbfb8aa3b
        """)
        for j in range(5):
            b = RH + 4 * j
            p.raw(f"""
            v_mul_u32_u24 v{t+4}, 20, v{b}
            v_add_u32 v{t+4}, v{t+4}, v{b+2}
            v_lshl_add_u32 v{t+5}, v{b+1}, 2, v{t+4}
            v_mul_u32_u24 v{t+6}, 80, v{b+1}
            v_add3_u32 v{t+6}, v{t+6}, v{t+4}, 16
            v_mul_u32_u24 v{t+5}, 1280, v{t+5}
            v_mul_u32_u24 v{t+6}, 1280, v{t+6}
            v_lshl_add_u32 v{V_OF+j}, v{b+3}, 4, v{t+5}
            v_lshl_add_u32 v{V_OL+j}, v{b+3}, 4, v{t+6}
            """)
            if 0 < j < 4:
                p(f"v_subrev_u32 v{V_OF+j}, {1024*j}, v{V_OF+j}")
                p(f"v_subrev_u32 v{V_OL+j}, {1024*j}, v{V_OL+j}")
        p.raw(f"""
        s_lshr_b32 s{S_PP0}, s{S_HG}, 1
        s_lshr_b32 s{T0}, s{S_W}, 1
        s_mul_i32 s{T0}, s{T0}, 80
        s_and_b32 s{T1}, s{S_W}, 1
        s_lshl_b32 s{T1}, s{T1}, 3
        s_add_u32 s{T0}, s{T0}, s{T1}
        s_mul_i32 s{T0}, s{T0}, 1280
        s_mul_i32 s{T2}, s{S_HG}, 160
        s_add_u32 s{T0}, s{T0}, s{T2}
        """)
        for g in range(4):
            p.raw(f"""
            s_add_u32 s{T1}, s{S_PP0}, {g}
            s_and_b32 s{T1}, s{T1}, 3
            s_mul_i32 s{T1}, s{T1}, {160*1280}
            s_add_u32 s{S_WOROW+g}, s{T1}, s{T0}
            """)
        p.raw(f"""
        s_add_u32 s{T1}, s{S_PP0}, s{S_W}
        s_and_b32 s{T1}, s{T1}, 3
        s_mul_i32 s{T1}, s{T1}, {160*1280}
        s_add_u32 s{S_WOROW+4}, s{T1}, s{T2}
        s_lshl_b32 s{T0}, s{S_RB}, 2
        s_add_u32 s{T0}, s{T0}, s{S_W}
        s_add_u32 s{T0}, s{T0}, {br*64}
        s_mul_i32 s{S_OB}, s{T0}, 40960
        s_add_u32 s{S_OB}, s{S_OB}, {WS_O}
        s_lshl_b32 s{S_FLAG}, s{T0}, 7
        s_add_u32 s{S_FLAG}, s{S_FLAG}, {WS_FLAG}
        """)
        if A:
            p.raw(f"""
            v_mov_b32 v{t+8}, 0
            v_mov_b32 v{t+9}, 0
            v_mov_b32 v{t+10}, 0
            v_mov_b32 v{t+11}, 0
            v_add_u32 v{t+4}, s{S_LR}, v{V_LIN}
            """)
            p(f"ds_write_b128 v{t+4}, {vq(t+8)} offset:13312", 'z')
            p.raw(f"""
            v_mul_u32_u24 v{t+4}, {RW}, v{G_}
            v_mul_u32_u24 v{t+5}, 40, v{R_}
            v_add_u32 v{t+4}, v{t+4}, v{t+5}
            v_add_u32 v{t+4}, {RBASE+12288}, v{t+4}
            s_add_u32 s{T0}, s{S_LR}, 13312
            v_mov_b32 v{t+5}, s{T0}
            v_cmp_eq_u32 vcc, v{C_}, v{G_}
            v_cndmask_b32 v{V_FR}, v{t+5}, v{t+4}, vcc
            """)
            for tt in range(5):
                a = A_PHI + (tt * 3 + 2) * 4
                p(f"v_accvgpr_write_b32 a{a+2}, 0"); p(f"v_accvgpr_write_b32 a{a+3}, 0")
        p("s_waitcnt lgkmcnt(0)")
        p(f"s_add_u32 s{S_NONCE}, s{S_NONCE}, 0x9e3779b1")
        self.stamp()
        xb = lambda ks, rt: aq((ks * 2 + rt) * 4)
        hooks = {}
        for pu in range(1, 10):
            hooks[10 * pu - (D - 1)] = [lambda pu=pu: self.xreads(pu)]
        for pu in range(0, 7):
            L = []
            if (pu + 3) % 2 == 0: L += self.dma_w((pu + 3) // 2)
            L += self.dma_x(pu + 3)
            hooks[10 * pu] = L
        hooks[70] = self.dma_w(5) + self.dma_w(6)
        hooks[80] = self.dma_w(7)
        hooks[96] = self.dma_w(8)
        if A:
            def phireads(tt):
                for u in range(3):
                    for hf in range(2 if u < 2 else 1):
                        a = A_PHI + (tt * 3 + u) * 4 + 2 * hf
                        p(f"ds_read_b64_tr_b16 a[{a}:{a+1}], v{V_FR} offset:{(8*u+4*hf)*40 + 8*tt}", 'phi')
            for tt in range(5):
                hooks[21 + 10 * tt] = [lambda tt=tt: phireads(tt)]
        self.gemm_pass(0, ACC_K, xb, hooks=hooks, first=True, pre=lambda: self.xreads(0))
        self.stamp()
        fill = []
        PK = TMP + 80
        for rt in range(2):
            src = acc(ACC_K, 0, rt)
            if A:
                fill += self.phiA(src, PK, TMP, packed=False)
                for j in range(5): fill.append((1, (f"ds_write_b128 v{V_PW}, {vq(PK+4*j)} offset:{rt*7680 + 16*j}", 'pw')))
            else:
                fill += self.phiB(src, PK, TMP)
                for j in range(2): fill.append((1, (f"ds_write_b128 v{V_PW}, {vq(PK+4*j)} offset:{rt*7680 + 16*j}", 'pw')))
                fill.append((1, (f"ds_write_b64 v{V_PW}, {vq(PK+8, 2)} offset:{rt*7680 + 32}", 'pw')))
        hooks = {16 + 20 * g: self.dma_w(9 + g) for g in range(5)}
        self.gemm_pass(1, ACC_V, xb, fill=fill, hooks=hooks)
        self.stamp()
        for rt in range(2):
            for c, x in self.cvt20(acc(ACC_V, 0, rt), TMP + 10 * rt): p(x)
        p.wait(lg='*')
        for rt in range(2):
            for j in range(5): p(f"ds_write_b64 v{V_VW}, {vq(TMP+10*rt+2*j, 2)} offset:{rt*7680 + 8*j}", 'vw')
        KEEP, ONE = TMP + 20, TMP + 21
        p.raw(f"""
        v_and_b32 v{TMP+22}, 15, v{V_LANE}
        v_cmp_gt_u32 vcc, 4, v{TMP+22}
        v_cndmask_b32 v{KEEP}, 0, -1, vcc
        v_mov_b32 v{TMP+23}, 0x3f803f80
        v_cmp_eq_u32 vcc, 4, v{TMP+22}
        v_cndmask_b32 v{ONE}, 0, v{TMP+23}, vcc
        """)
        p.wait(lg='*')
        p("s_barrier")
        NT = 3 if A else 2
        FB = TMP + 24
        KV = ACC_K
        def kvreads(kk):
            b = FB + (kk % 2) * 20
            for hf in range(2): p(f"ds_read_b64_tr_b16 {vq(b+4+2*hf, 2)}, v{V_KA1} offset:{(32*kk+16*hf)*480 + 32}", ('kv', kk))
            for hf in range(2): p(f"ds_read_b64_tr_b16 {vq(b+2*hf, 2)}, v{V_KA0} offset:{(32*kk+16*hf)*480}", ('kv', kk))
            for nt in range(NT):
                for hf in range(2): p(f"ds_read_b64_tr_b16 {vq(b+8+4*nt+2*hf, 2)}, v{V_KB} offset:{(32*kk+16*hf)*480 + 32*nt}", ('kv', kk))
        kvreads(0)
        for kk in range(4):
            p.wait(lg=[('kv', kk)])
            if kk < 3: kvreads(kk + 1)
            b = FB + (kk % 2) * 20
            for j in range(4): p(f"v_and_or_b32 v{b+4+j}, v{b+4+j}, v{KEEP}, v{ONE}")
            for mt in range(2):
                for nt in range(NT):
                    a = KV + (mt * 3 + nt) * 4
                    p(f"v_mfma_f32_16x16x32_bf16 {vq(a)}, {vq(b+4*mt)}, {vq(b+8+4*nt)}, {'0' if kk == 0 else vq(a)}")
        p.raw(f"""
        v_lshrrev_b32 v{TMP}, 4, v{V_LANE}
        v_mul_u32_u24 v{TMP}, {F}, v{TMP}
        v_add_u32 v{TMP}, v{TMP}, v{TMP+22}
        v_lshlrev_b32 v{TMP}, 4, v{TMP}
        v_mov_b32 v{TMP+1}, 0xff
        s_add_u32 s{T0}, s{S_HEAD}, {br*32}
        s_lshl_b32 s{T0}, s{T0}, 4
        s_add_u32 s{T0}, s{T0}, s{S_RB}
        s_lshl_b32 s{T0}, s{T0}, 12
        s_add_u32 s{T0}, s{T0}, {WS_P1}
        """)
        for mt in range(2):
            for nt in range(NT):
                a = KV + (mt * 3 + nt) * 4
                for j in range(4): p(f"v_bfi_b32 v{a+j}, v{TMP+1}, s{S_NONCE}, v{a+j}")
        lastm = 0x00ff00ff if A else 0x000f000f
        for mt in range(2):
            for nt in range(NT):
                a = KV + (mt * 3 + nt) * 4
                lo = lastm if nt == NT - 1 else 0xffffffff
                hi = lo if mt == 0 else 0
                p(f"s_mov_b32 exec_lo, {hex(lo)}"); p(f"s_mov_b32 exec_hi, {hex(hi)}")
                p(f"buffer_store_dwordx4 {vq(a)}, v{TMP}, {srd(SWS)}, s{T0} offen offset:{(4*mt*F + 16*nt)*16} sc1", 'p1')
        p("s_mov_b64 exec, -1")
        self.stamp()
        hooks = {16 + 20 * g: self.dma_w(14 + g) for g in range(4)}
        self.gemm_pass(2, ACC_Q, xb, hooks=hooks, last=True)
        p("s_barrier")
        self.stamp()
        p(f"s_cmp_eq_u32 s{S_RB}, 15")
        p(f"s_cbranch_scc1 L_nored{self.sfx}")
        X = TMP + 8
        NI = 4 if A else 2
        if A:
            p.raw(f"""
            v_lshrrev_b32 v{TMP}, 4, v{V_LANE}
            v_lshlrev_b32 v{TMP}, 12, v{TMP}
            v_and_b32 v{TMP+1}, 15, v{V_LANE}
            v_lshl_add_u32 v{TMP}, v{TMP+1}, 4, v{TMP}
            s_lshl_b32 s{T1}, s{S_RB}, 8
            """)
        else:
            p.raw(f"""
            v_lshrrev_b32 v{TMP}, 3, v{V_LANE}
            v_lshlrev_b32 v{TMP}, 12, v{TMP}
            v_and_b32 v{TMP+1}, 7, v{V_LANE}
            v_lshl_add_u32 v{TMP}, v{TMP+1}, 4, v{TMP}
            s_lshl_b32 s{T1}, s{S_RB}, 7
            """)
        p.raw(f"""
        s_add_u32 s{T0}, s{S_HEAD}, {br*32}
        s_lshl_b32 s{T2}, s{T0}, 12
        s_add_u32 s{T2}, s{T2}, s{T1}
        s_add_u32 s{T2}, s{T2}, {WS_P2}
        s_lshl_b32 s{T0}, s{T0}, 16
        s_add_u32 s{T0}, s{T0}, s{T1}
        s_add_u32 s{T0}, s{T0}, {WS_P1}
        """)
        self.spin_head("L_h1")
        for ii in range(NI):
            p(f"s_add_u32 s{T1}, s{T0}, {ii * (65536 // NI)}")
            p(f"buffer_load_dwordx4 {vq(X+4*ii)}, v{TMP}, {srd(SWS)}, s{T1} offen sc1", 'h1')
        p("s_waitcnt vmcnt(0)")
        p(f"v_xor_b32 v{TMP+2}, s{S_NONCE}, v{X}")
        for j in range(1, 4 * NI): p(f"v_bitop3_b32 v{TMP+2}, v{TMP+2}, v{X+j}, s{S_NONCE} bitop3:0xf6")
        p(f"v_and_b32 v{TMP+2}, 0xff, v{TMP+2}")
        p(f"v_cmp_ne_u32 vcc, 0, v{TMP+2}")
        self.spin_tail("L_h1")
        for ii in range(1, NI):
            for j in range(4): p(f"v_add_f32 v{X+j}, v{X+j}, v{X+4*ii+j}")
        p.raw(f"""
        v_permlane32_swap_b32 v{X}, v{X+2}
        v_permlane32_swap_b32 v{X+1}, v{X+3}
        v_add_f32 v{X}, v{X}, v{X+2}
        v_add_f32 v{X+1}, v{X+1}, v{X+3}
        v_permlane16_swap_b32 v{X}, v{X+1}
        v_add_f32 v{X}, v{X}, v{X+1}
        """)
        if not A: p(f"v_add_f32_dpp v{X}, v{X}, v{X} row_ror:8 row_mask:0xf bank_mask:0xf")
        p.raw(f"""
        v_cvt_pk_bf16_f32 v{X}, v{X}, v{X}
        v_mov_b32 v{TMP+2}, 0xffff
        v_bfi_b32 v{X}, v{TMP+2}, s{S_NONCE}, v{X}
        """)
        if A:
            p(f"v_lshlrev_b32 v{TMP}, 2, v{V_LANE}")
            p(f"buffer_store_dword v{X}, v{TMP}, {srd(SWS)}, s{T2} offen sc1", 'p2')
        else:
            p.raw(f"""
            v_lshrrev_b32 v{TMP}, 4, v{V_LANE}
            v_lshlrev_b32 v{TMP}, 5, v{TMP}
            v_lshl_add_u32 v{TMP}, v{TMP+1}, 2, v{TMP}
            s_mov_b32 exec_lo, 0x00ff00ff
            s_mov_b32 exec_hi, 0x00ff00ff
            """)
            p(f"buffer_store_dword v{X}, v{TMP}, {srd(SWS)}, s{T2} offen sc1", 'p2')
            p("s_mov_b64 exec, -1")
        p(f"L_nored{self.sfx}:")
        p("s_nop 1")
        self.put(self.dma_w(18)); self.put(self.dma_w(19))
        self.stamp()
        FQ = ACC_K
        for rt in range(2):
            src = acc(ACC_Q, 0, rt)
            if A: L = self.phiA(src, FQ + 20 * rt, TMP, packed=True)
            else: L = self.phiB(src, FQ + 20 * rt, TMP) + [(1, f"v_mov_b32 v{FQ+20*rt+10}, 0"), (1, f"v_mov_b32 v{FQ+20*rt+11}, 0")]
            for c, x in L: p(x)
        self.stamp()
        RS = 80 if A else 48
        HS = 24 * RS
        NQ = 240 if A else 120
        GA = TMP; LA = TMP + 4
        t = TMP + 24
        p(f"s_mul_i32 s{T0}, s{S_W}, {HS}")
        p(f"s_add_u32 s{T0}, s{T0}, {RBASE}")
        for ii in range(NI):
            p(f"v_add_u32 v{t}, {64*ii}, v{V_LANE}")
            if ii == NI - 1:
                p(f"v_subrev_u32 v{t+1}, 64, v{t}")
                p(f"v_cmp_gt_u32 vcc, {NQ}, v{t}")
                p(f"v_cndmask_b32 v{t}, v{t+1}, v{t}, vcc")
            p(f"v_lshlrev_b32 v{GA+ii}, 4, v{t}")
            if A:
                p.raw(f"""
                v_lshrrev_b32 v{t+1}, 4, v{t}
                v_and_b32 v{t+2}, 3, v{t}
                v_lshl_add_u32 v{t+1}, v{t+1}, 2, v{t+2}
                v_bfe_u32 v{t+2}, v{t}, 2, 2
                v_mul_u32_u24 v{t+3}, 6554, v{t+1}
                v_lshrrev_b32 v{t+3}, 16, v{t+3}
                v_mul_u32_u24 v{t+4}, 10, v{t+3}
                """)
            else:
                p.raw(f"""
                v_lshrrev_b32 v{t+1}, 3, v{t}
                v_and_b32 v{t+2}, 1, v{t}
                v_lshl_add_u32 v{t+1}, v{t+1}, 1, v{t+2}
                v_bfe_u32 v{t+2}, v{t}, 1, 2
                v_mul_u32_u24 v{t+3}, 13108, v{t+1}
                v_lshrrev_b32 v{t+3}, 16, v{t+3}
                v_mul_u32_u24 v{t+4}, 5, v{t+3}
                """)
            p.raw(f"""
            v_sub_u32 v{t+1}, v{t+1}, v{t+4}
            v_lshl_add_u32 v{t+3}, v{t+3}, 2, v{t+2}
            v_mul_u32_u24 v{t+3}, {RS}, v{t+3}
            v_lshl_add_u32 v{t+3}, v{t+1}, 3, v{t+3}
            v_add_u32 v{LA+ii}, s{T0}, v{t+3}
            """)
        p.raw(f"""
        v_mov_b32 v{t}, 0
        v_mov_b32 v{t+1}, 0
        v_lshlrev_b32 v{t+2}, 3, v0
        v_add_u32 v{t+2}, {RBASE+7680}, v{t+2}
        """)
        p(f"ds_write_b64 v{t+2}, {vq(t, 2)}", 'z')
        p.raw(f"""
        v_lshrrev_b32 v{t+2}, 4, v{V_LANE}
        v_bfe_u32 v{t+3}, v{V_LANE}, 2, 2
        v_cmp_eq_u32 vcc, v{t+2}, v{t+3}
        v_mul_u32_u24 v{t+2}, {HS}, v{t+2}
        v_and_b32 v{t+3}, 3, v{V_LANE}
        v_mul_u32_u24 v{t+3}, {RS}, v{t+3}
        v_add_u32 v{t+2}, v{t+2}, v{t+3}
        v_add_u32 v{t+2}, {RBASE}, v{t+2}
        v_mov_b32 v{t+3}, {RBASE+7680}
        v_cndmask_b32 v{V_FR}, v{t+3}, v{t+2}, vcc
        s_add_u32 s{T0}, s{S_HEAD}, {br*32}
        s_lshl_b32 s{T0}, s{T0}, 12
        s_add_u32 s{T0}, s{T0}, {WS_P2}
        s_mov_b32 s{T1}, 0x07060302
        """)
        self.spin_head("L_h2")
        for ii in range(NI):
            p(f"buffer_load_dwordx4 {vq(X+4*ii)}, v{GA+ii}, {srd(SWS)}, s{T0} offen sc1", 'h2')
        p("s_waitcnt vmcnt(0)")
        p(f"v_xor_b32 v{t}, s{S_NONCE}, v{X}")
        for j in range(1, 4 * NI): p(f"v_bitop3_b32 v{t}, v{t}, v{X+j}, s{S_NONCE} bitop3:0xf6")
        p(f"v_and_b32 v{t}, 0xffff, v{t}")
        p(f"v_cmp_ne_u32 vcc, 0, v{t}")
        self.spin_tail("L_h2")
        for ii in range(NI):
            p(f"v_perm_b32 v{X+4*ii}, v{X+4*ii+1}, v{X+4*ii}, s{T1}")
            p(f"v_perm_b32 v{X+4*ii+1}, v{X+4*ii+3}, v{X+4*ii+2}, s{T1}")
            p(f"ds_write_b64 v{LA+ii}, {vq(X+4*ii, 2)}", 'kvw')
        p.wait(lg='*')
        p("s_barrier")
        self.stamp()
        OA = ACC_V
        NU = 5 if A else 3
        OR = TMP + 32
        DD = 8
        fr = [(u, tt) for u in range(NU) for tt in range(6)]
        if not A:
            ZR = OR + 32
            for tt in range(6): p(f"v_mov_b32 v{ZR+4*tt+2}, 0"); p(f"v_mov_b32 v{ZR+4*tt+3}, 0")
        def oreg(n):
            u, tt = fr[n]
            return ZR + 4 * tt if (not A and u == 2) else OR + (n % DD) * 4
        def oread(n):
            u, tt = fr[n]
            if not A and u == 2: p(f"ds_read_b64 {vq(oreg(n), 2)}, v{V_FR} offset:{4*tt*RS + 16*u}", ('of', n))
            else: p(f"ds_read_b128 {vq(oreg(n))}, v{V_FR} offset:{4*tt*RS + 16*u}", ('of', n))
        for n in range(DD - 1): oread(n)
        p.wait(lg=[('of', 0)])
        for n, (u, tt) in enumerate(fr):
            for rt in range(2):
                a = OA + (rt * 6 + tt) * 4
                p(f"v_mfma_f32_16x16x32_bf16 {vq(a)}, {vq(oreg(n))}, {vq(FQ+20*rt+4*u)}, {'0' if u == 0 else vq(a)}")
                if rt == 0 and n + DD - 1 < len(fr): oread(n + DD - 1)
                if rt == 1 and n + 1 < len(fr): p.wait(lg=[('of', n + 1)])
        OB = TMP
        for rt in range(2):
            dn = OA + (rt * 6 + 5) * 4
            p(f"v_add_f32 v{dn}, 0x358637bd, v{dn}")
        for rt in range(2):
            dn = OA + (rt * 6 + 5) * 4
            p(f"v_rcp_f32 v{dn}, v{dn}")
        p(f"s_mul_i32 s{T0}, s{S_HG}, 5120")
        p(f"s_add_u32 s{T0}, s{T0}, s{S_OB}")
        p(f"s_add_u32 s{T1}, s{T0}, 4096")
        for rt in range(2):
            dn = OA + (rt * 6 + 5) * 4
            b = OA + rt * 24
            for i in range(10):
                p(f"v_pk_mul_f32 v[{b+2*i}:{b+2*i+1}], v[{b+2*i}:{b+2*i+1}], v[{dn}:{dn+1}] op_sel_hi:[1,0]")
            for i in range(10):
                d = OB + rt * 8 + i if i < 8 else OB + 16 + 2 * rt + (i - 8)
                p(f"v_cvt_pk_bf16_f32 v{d}, v{b+2*i}, v{b+2*i+1}")
            for u in range(2):
                p(f"buffer_store_dwordx4 {vq(OB+rt*8+4*u)}, v{V_LIN}, {srd(SWS)}, s{T0} offen offset:{(rt*2+u)*1024} sc1", 'o')
        p(f"buffer_store_dwordx4 {vq(OB+16)}, v{V_LIN}, {srd(SWS)}, s{T1} offen sc1", 'o')
        p.raw(f"""
        v_mov_b32 v{TMP+20}, s{S_NONCE}
        s_lshl_b32 s{T0}, s{S_HG}, 2
        v_mov_b32 v{TMP+21}, s{T0}
        v_and_b32 v{TMP+22}, 7, v{V_LANE}
        v_lshlrev_b32 v{TMP+22}, 2, v{TMP+22}
        s_waitcnt vmcnt(0)
        s_mov_b64 exec, 1
        """)
        p(f"buffer_store_dword v{TMP+20}, v{TMP+21}, {srd(SWS)}, s{S_FLAG} offen sc1", 'fl')
        p("s_mov_b64 exec, 0xff")
        self.stamp()
        self.spin_head("L_h3")
        p(f"buffer_load_dword v{TMP+23}, v{TMP+22}, {srd(SWS)}, s{S_FLAG} offen sc1", 'h3')
        p("s_waitcnt vmcnt(0)")
        p(f"v_cmp_ne_u32 vcc, s{S_NONCE}, v{TMP+23}")
        self.spin_tail("L_h3")
        p("s_mov_b64 exec, -1")
        self.stamp()
        LO = TMP + 24
        for pz in range(4):
            p.raw(f"""
            s_add_u32 s{T0}, s{S_PP0}, {pz}
            s_and_b32 s{T0}, s{T0}, 3
            s_mul_i32 s{T0}, s{T0}, 10240
            s_add_u32 s{60+pz}, s{T0}, s{S_OB}
            """)
        for pz in range(4):
            for h in range(2):
                if h: p(f"s_add_u32 s{T0}, s{60+pz}, 5120")
                for u in range(2):
                    for rt in range(2):
                        P = 4 * pz + 2 * h + u
                        p(f"buffer_load_dwordx4 {aq((P*2+rt)*4)}, v{V_LIN}, {srd(SWS)}, s{T0 if h else 60+pz} offen offset:{(rt*2+u)*1024} sc1", ('O', P))
        for pz in range(4):
            for h in range(2):
                p(f"s_add_u32 s{T0}, s{60+pz}, {5120*h + 4096}")
                p(f"buffer_load_dwordx4 {vq(LO+(2*pz+h)*4)}, v{V_LIN}, {srd(SWS)}, s{T0} offen sc1", ('O', 16 + pz))
        p.raw(f"""
        s_or_b32 s{T0}, s{S_RB}, s{S_HEAD}
        s_cmp_lg_u32 s{T0}, 0
        s_cselect_b32 s{T0}, {WS_SIZE}, 0
        s_add_u32 s{T0}, s{T0}, {br*128}
        v_mov_b32 v{TMP+21}, s{T0}
        s_mov_b64 exec, 1
        """)
        p(f"buffer_store_dword v{TMP+20}, v{TMP+21}, {srd(SWS)}, 0 offen sc1", 'nn')
        p("s_mov_b64 exec, -1")
        def ob(ks, rt):
            return aq((ks * 2 + rt) * 4) if ks < 16 else vq(LO + (2 * (ks - 16) + rt) * 4)
        hooks = {}
        def owait(P):
            p.wait(vm=[('O', P)])
            if P >= 16:
                a = LO + 2 * (P - 16) * 4
                p(f"v_swap_b32 v{a+2}, v{a+4}"); p(f"v_swap_b32 v{a+3}, v{a+5}")
        for P in range(1, 20): hooks[('b', 5 * P - 1)] = [lambda P=P: owait(P)]
        self.final = True
        def pre(): pass
        p("s_barrier")
        N0 = 300
        for n in range(D - 1): self.wread(N0 + n, 0); self.wread(N0 + n, 1)
        owait(0)
        gs = self.group_sync; self.group_sync = lambda G: None
        self.gemm_pass(3, ACC_K, ob, hooks=hooks, last=True)
        self.group_sync = gs
        self.stamp()
        p.raw(f"""
        v_and_b32 v{TMP+20}, 15, v{V_LANE}
        v_mul_u32_u24 v{TMP+20}, 2560, v{TMP+20}
        v_lshrrev_b32 v{TMP+21}, 4, v{V_LANE}
        v_mul_u32_u24 v{TMP+21}, 40, v{TMP+21}
        v_add_u32 v{TMP+20}, v{TMP+20}, v{TMP+21}
        s_lshl_b32 s{T0}, s{S_XBASE}, 1
        s_mul_i32 s{T1}, s{S_HG}, 160
        s_add_u32 s{T0}, s{T0}, s{T1}
        s_add_u32 s{T0}, s{T0}, {br*1280}
        s_add_u32 s{T1}, s{T0}, {16*2560}
        """)
        for rt in range(2):
            for c, x in self.cvt20(acc(ACC_K, 0, rt), TMP + 10 * rt): p(x)
            so = f"s{T1 if rt else T0}"
            b = TMP + 10 * rt
            p(f"buffer_store_dwordx4 {vq(b)}, v{TMP+20}, {srd(SOUT)}, {so} offen", 'out')
            p(f"buffer_store_dwordx4 {vq(b+4)}, v{TMP+20}, {srd(SOUT)}, {so} offen offset:16", 'out')
            p(f"buffer_store_dwordx2 {vq(b+8, 2)}, v{TMP+20}, {srd(SOUT)}, {so} offen offset:32", 'out')
        if o.get('stamps'):
            p("s_waitcnt vmcnt(0)")
            self.stamp()
            p("s_memrealtime s[100:101]")
            p("s_waitcnt lgkmcnt(0)")
            p.raw(f"""
            s_lshl_b32 s{T0}, s2, 2
            s_add_u32 s{T0}, s{T0}, s{S_W}
            s_lshl_b32 s{T0}, s{T0}, 6
            s_add_u32 s{T0}, s{T0}, {WS_ST}
            v_mov_b32 v{TMP+16}, 0
            v_mov_b32 v{TMP}, s98
            v_mov_b32 v{TMP+1}, s100
            """)
            for k in range(14):
                if k < self.nst:
                    p(f"s_sub_u32 s{T1}, s{S_ST+2*k}, s96"); p(f"v_mov_b32 v{TMP+2+k}, s{T1}")
                else: p(f"v_mov_b32 v{TMP+2+k}, 0")
            p("s_mov_b64 exec, 1")
            for k in range(4): p(f"buffer_store_dwordx4 {vq(TMP+4*k)}, v{TMP+16}, {srd(SWS)}, s{T0} offen offset:{16*k}")
        p("s_endpgm")
        return p.finalize()

def build(opt):
    ref = open(f"cdna_kernels/{NAME}.s.ref").read().split("\n")
    head = [l for l in ref if l.startswith(";") and "@launch" not in l]
    s = "\n".join(head) + "\n; @launch grid=(256,1,1) block=(256,1,1) lds=163840\n"
    s += f""".amdgcn_target "amdgcn-amd-amdhsa--gfx950"
.text
.globl {NAME}_kernel
.p2align 8
.type {NAME}_kernel,@function
{NAME}_kernel:
    s_cmp_ge_u32 s2, 256
    s_cbranch_scc1 L_exit
    s_bitcmp1_b32 s2, 2
    s_cbranch_scc1 L_bodyB
"""
    ga = Gen(True, opt); s += ga.body()
    s += "L_exit:\n    s_endpgm\n.p2align 8\n"
    gb = Gen(False, opt); s += gb.body()
    s += ".fill 8192, 4, 0xbf810000\n"
    s += f""".section .rodata,"a"
.p2align 6
.amdhsa_kernel {NAME}_kernel
  .amdhsa_next_free_vgpr 512
  .amdhsa_next_free_sgpr 102
  .amdhsa_accum_offset 256
  .amdhsa_group_segment_fixed_size 0
  .amdhsa_kernarg_size 80
  .amdhsa_user_sgpr_count 2
  .amdhsa_user_sgpr_kernarg_segment_ptr 1
  .amdhsa_system_sgpr_workgroup_id_x 1
.end_amdhsa_kernel
"""
    print("nops", ga.p.nops, gb.p.nops, "instrs", len(ga.p.ins), len(gb.p.ins), file=sys.stderr)
    return s

if __name__ == "__main__":
    import json
    opt = json.loads(sys.argv[2]) if len(sys.argv) > 2 else {}
    open(sys.argv[1], "w").write(build(opt))
```

```python
import sys
from emit import Prog
NAME = "concat_heads__linear_kernel_hedgehog__linear_attn_block__prompt"

S_RB, S_HG, S_W = 4, 5, 7
SX, SW, SWO, SWS, SOUT, SPHI = 8, 12, 16, 20, 24, 28
S_NONCE = 32
S_WROW = 33
S_XBASE, S_XU = 38, 39
S_LW, S_LR = 40, 41
T0, T1, T2, T3 = 42, 43, 44, 45
S_WOROW = 46
S_HEAD = 51
S_SPIN = 52
S_L2E, S_NL2E = 54, 55
S_OB = 56
S_PP0 = 57
S_FLAG = 58
S_ST = 64
def srd(b): return f"s[{b}:{b+3}]"
V_LANE = 1
V_WO = 2; V_OF = 7; V_OL = 12; V_XO = 17; V_XR = 21; V_WT = 23; V_LIN = 25
V_PW, V_VW, V_KB, V_KA0, V_KA1, V_FR = 26, 27, 28, 29, 30, 31
ACC_K, ACC_V, ACC_Q = 32, 72, 112
TMP = 152
RING = 0; SLOT = 20480; RBASE = 102400; RW = 15360
WS_FLAG, WS_P2, WS_P1, WS_O, WS_ST = 4096, 65536, 1 << 20, 8 << 20, 16 << 20
WS_SIZE = 32 << 20
D = 6
A_RING = 220
A_PHI = 160
SPIN_MAX = 20000

def vq(b, n=4): return f"v[{b}:{b+n-1}]"
def aq(b, n=4): return f"a[{b}:{b+n-1}]"
def acc(base, t, rt): return base + (rt * 5 + t) * 4

class Gen:
    def __init__(self, isA, opt):
        self.A = isA; self.o = opt
        self.p = Prog(); self.sfx = 'A' if isA else 'B'
        self.F = 40 if isA else 20
        self.nst = 0
    def stamp(self):
        p = self.p
        if self.o.get('amp'):
            if self.nst == self.o['amp'][0]:
                p("s_memrealtime s[100:101]"); p("s_waitcnt lgkmcnt(0)")
            self.nst += 1
            return
        if not self.o.get('stamps'): return
        p(f"s_memtime s[{S_ST+2*self.nst}:{S_ST+2*self.nst+1}]")
        p("s_waitcnt lgkmcnt(0)")
        self.nst += 1
    def dma_w(self, G):
        L = []
        g = G % 5
        if G < 15:
            col = {0: 1280, 1: 2560, 2: 0}[G // 5]
            L.append(f"s_add_u32 s{T0}, s{S_WROW+g}, {col}"); so = f"s{T0}"; sd = SW; vo = V_WO
            fl = self.o.get('wflag', '')
        else:
            so = f"s{S_WOROW+g}"; sd = SWO; vo = V_OF if g < 4 else V_OL
            fl = self.o.get('wflag', '')
        L.append(f"s_add_u32 m0, s{S_LW}, {RING + g*SLOT}")
        for j in range(5):
            if j == 4: L.append(f"s_add_u32 m0, s{S_LW}, {RING + g*SLOT + 4096}")
            off = f"offset:{j*1024} " if 0 < j < 4 else ""
            L.append((f"buffer_load_dwordx4 v{vo+j}, {srd(sd)}, {so} offen {off}{fl} lds", ('W', G)))
        return L
    def dma_x(self, pu):
        L = []
        L.append(f"s_lshl_b32 s{T1}, s{S_XU}, 7")
        L.append(f"s_add_u32 s{T1}, s{T1}, s{S_XBASE}")
        L.append(f"s_add_u32 m0, s{S_LR}, {(pu % 3) * 4096}")
        L.append(f"s_add_u32 s{S_XU}, s{S_XU}, 1")
        for j in range(4):
            off = f"offset:{j*1024} " if j else ""
            L.append((f"buffer_load_dwordx4 v{V_XO+j}, {srd(SX)}, s{T1} offen {off}{self.o.get('xflag','')} lds", ('X', pu)))
        L.append(f"s_cmp_eq_u32 s{S_XU}, 10")
        L.append(f"s_cselect_b32 s{S_XU}, 0, s{S_XU}")
        return L
    def put(self, L):
        for x in L:
            if isinstance(x, tuple): self.p(x[0], x[1])
            elif callable(x): x()
            else: self.p(x)
    def wread(self, N, hf):
        G = N // 20; ks = (N % 20) // 5; t = N % 5
        off = RING + (G % 5) * SLOT + ks * 5120 + hf * 2560 + 8 * t
        hi = off >= 51200
        s = A_RING + (N % D) * 4 + 2 * hf
        self.p(f"ds_read_b64_tr_b16 a[{s}:{s+1}], v{V_WT + hi} offset:{off - 51200*hi}", ('F', N))
    def group_sync(self, G):
        self.p.wait(vm=[('W', G)])
        self.p("s_barrier")
    def xreads(self, pu):
        p = self.p
        p.wait(vm=[('X', pu)])
        for ksub in range(2):
            for rt in range(2):
                a = ((2 * pu + ksub) * 2 + rt) * 4
                p(f"ds_read_b128 {aq(a)}, v{V_XR+ksub} offset:{(pu % 3)*4096 + rt*2048}", ('XR', pu))
    def gemm_pass(self, ps, accb, bop, fill=None, hooks=None, first=False, last=False, pre=None):
        p = self.p
        fill = list(fill or []); hooks = hooks or {}
        N0 = ps * 100
        if first:
            self.group_sync(ps * 5)
            if pre: pre()
            for n in range(D - 1):
                self.wread(N0 + n, 0); self.wread(N0 + n, 1)
        p.wait(lg=[('F', N0), ('XR', 0)])
        per = (sum(c for c, _ in fill) + 199) // 200 if fill else 0
        budget = 0
        def fillup(k):
            nonlocal budget
            budget += k
            while fill and fill[0][0] <= budget:
                c, x = fill.pop(0); budget -= c
                self.put([x])
        for n in range(100):
            ks, t = divmod(n, 5)
            s = A_RING + ((N0 + n) % D) * 4
            M = n + D - 1
            look = M < 100 or not last
            for rt in range(2):
                a = acc(accb, t, rt)
                c = "0" if ks == 0 else vq(a)
                p(f"v_mfma_f32_16x16x32_bf16 {vq(a)}, {aq(s)}, {bop(ks, rt)}, {c}")
                if rt == 0:
                    if look and M % 20 == 0: self.group_sync((N0 + M) // 20)
                    if n in hooks: self.put(hooks[n])
                else:
                    if n < 99:
                        tg = [('F', N0 + n + 1)]
                        if ps == 0 and (n + 1) % 10 == 0: tg.append(('XR', (n + 1) // 10))
                        p.wait(lg=tg)
                    if ('b', n) in hooks: self.put(hooks[('b', n)])
                if look: self.wread(N0 + M, rt)
                fillup(per)
        while fill:
            self.put([fill.pop(0)[1]])
    def cvt20(self, src, dst):
        return [(1, f"v_cvt_pk_bf16_f32 v{dst+i}, v{src+2*i}, v{src+2*i+1}") for i in range(10)]
    def phiA(self, src, out, tmp, packed):
        kb = tmp; pp = tmp + 12; e = tmp + 32; m = tmp + 72
        L = self.cvt20(src, kb)
        L += [(1, f"v_mov_b32 v{kb+10}, 0"), (1, f"v_mov_b32 v{kb+11}, 0")]
        for u in range(3):
            for t in range(5):
                c = "0" if u == 0 else vq(pp + 4*t)
                L.append((2, f"v_mfma_f32_16x16x32_bf16 {vq(pp+4*t)}, {aq(A_PHI + (t*3+u)*4)}, {vq(kb+4*u)}, {c}"))
        L.append((1, f"v_max3_f32 v{m}, v{pp}, v{pp+1}, v{pp+2}"))
        L.append((1, f"v_min3_f32 v{m+1}, v{pp}, v{pp+1}, v{pp+2}"))
        for i in range(3, 19, 2):
            L.append((1, f"v_max3_f32 v{m}, v{m}, v{pp+i}, v{pp+i+1}"))
            L.append((1, f"v_min3_f32 v{m+1}, v{m+1}, v{pp+i}, v{pp+i+1}"))
        L.append((1, f"v_max_f32 v{m}, v{m}, v{pp+19}"))
        L.append((1, f"v_min_f32 v{m+1}, v{m+1}, v{pp+19}"))
        L.append((1, f"v_mul_f32 v{m}, s{S_NL2E}, v{m}"))
        L.append((1, f"v_mul_f32 v{m+1}, s{S_L2E}, v{m+1}"))
        for i in range(20):
            if packed:
                b = pp + (i & ~1); o = i & 1
                L.append((1, f"v_pk_fma_f32 v[{e+2*i}:{e+2*i+1}], v[{b}:{b+1}], s[{S_L2E}:{S_NL2E}], v[{m}:{m+1}] op_sel:[{o},0,0] op_sel_hi:[{o},1,1]"))
            else:
                L.append((1, f"v_fma_f32 v{e+2*i}, v{pp+i}, s{S_L2E}, v{m}"))
                L.append((1, f"v_fma_f32 v{e+2*i+1}, v{pp+i}, s{S_NL2E}, v{m+1}"))
        for i in range(40):
            L.append((2, f"v_exp_f32 v{e+i}, v{e+i}"))
        s = m + 2
        if packed:
            L.append((1, f"v_pk_add_f32 v[{s}:{s+1}], v[{e}:{e+1}], v[{e+2}:{e+3}]"))
            L.append((1, f"v_pk_add_f32 v[{s+2}:{s+3}], v[{e+4}:{e+5}], v[{e+6}:{e+7}]"))
            for i in range(4, 20):
                d = s + 2 * (i & 1)
                L.append((1, f"v_pk_add_f32 v[{d}:{d+1}], v[{d}:{d+1}], v[{e+2*i}:{e+2*i+1}]"))
            L.append((1, f"v_pk_add_f32 v[{s}:{s+1}], v[{s}:{s+1}], v[{s+2}:{s+3}]"))
        else:
            L.append((1, f"v_add_f32 v{s}, v{e}, v{e+2}"))
            L.append((1, f"v_add_f32 v{s+1}, v{e+1}, v{e+3}"))
            for i in range(2, 20):
                L.append((1, f"v_add_f32 v{s}, v{s}, v{e+2*i}"))
                L.append((1, f"v_add_f32 v{s+1}, v{s+1}, v{e+2*i+1}"))
        L.append((2, f"v_rcp_f32 v{s}, v{s}"))
        L.append((2, f"v_rcp_f32 v{s+1}, v{s+1}"))
        for i in range(20):
            if packed:
                L.append((1, f"v_pk_mul_f32 v[{e+2*i}:{e+2*i+1}], v[{e+2*i}:{e+2*i+1}], v[{s}:{s+1}]"))
            else:
                L.append((1, f"v_mul_f32 v{e+2*i}, v{e+2*i}, v{s}"))
                L.append((1, f"v_mul_f32 v{e+2*i+1}, v{e+2*i+1}, v{s+1}"))
        for i in range(20):
            L.append((1, f"v_cvt_pk_bf16_f32 v{out+i}, v{e+2*i}, v{e+2*i+1}"))
        return L
    def phiB(self, src, out, tmp):
        L = []
        e = tmp
        for i in range(20): L.append((1, f"v_mul_f32 v{e+i}, s{S_L2E}, v{src+i}"))
        for i in range(20): L.append((2, f"v_exp_f32 v{e+i}, v{e+i} clamp"))
        for i in range(20): L.append((1, f"v_max_f32 v{src+i}, 0x358637bd, v{src+i}"))
        for i in range(20): L.append((1, f"v_add_f32 v{e+i}, v{e+i}, v{src+i}"))
        L += self.cvt20(e, out)
        return L
    def spin_head(self, name):
        self.p(f"s_mov_b32 s{S_SPIN}, 0")
        self.p(f"{name}{self.sfx}:")
    def spin_tail(self, name):
        p = self.p
        p(f"s_cbranch_vccz {name}{self.sfx}_ok")
        p(f"s_add_u32 s{S_SPIN}, s{S_SPIN}, 1")
        p(f"s_cmp_lt_u32 s{S_SPIN}, {SPIN_MAX}")
        p(f"s_cbranch_scc1 {name}{self.sfx}")
        p(f"{name}{self.sfx}_ok:")
    def body(self):
        p = self.p; A = self.A; F = self.F; br = 0 if A else 1; o = self.o
        p(f"L_body{self.sfx}:")
        if A:
            p("s_load_dwordx8 s[64:71], s[0:1], 0")
            kx, kw, kphi, kwo = 64, 66, 68, 70
        else:
            p("s_load_dwordx4 s[64:67], s[0:1], 32")
            p("s_load_dwordx2 s[70:71], s[0:1], 48")
            kx, kw, kphi, kwo = 64, 66, None, 70
        p("s_load_dwordx2 s[72:73], s[0:1], 56")
        p("s_load_dwordx2 s[74:75], s[0:1], 72")
        if o.get('stamps'): p("s_memtime s[96:97]")
        if o.get('stamps') or o.get('amp'): p("s_memrealtime s[98:99]")
        p.raw(f"""
        v_lshrrev_b32 v{TMP}, 6, v0
        v_and_b32 v{V_LANE}, 63, v0
        v_readfirstlane_b32 s{S_W}, v{TMP}
        s_lshr_b32 s3, s2, 3
        s_and_b32 s{S_RB}, s2, 3
        s_lshl_b32 s{S_RB}, s{S_RB}, 2
        s_lshr_b32 s{T0}, s3, 3
        s_add_u32 s{S_RB}, s{S_RB}, s{T0}
        s_and_b32 s{S_HG}, s3, 7
        """)
        if o.get('cpf', 1):
            p.raw(f"""
            s_getpc_b64 s[60:61]
            s_lshl_b32 s{T0}, s{S_HG}, 2
            s_add_u32 s{T0}, s{T0}, s{S_W}
            s_lshl_b32 s{T0}, s{T0}, 10
            s_add_u32 s60, s60, s{T0}
            s_addc_u32 s61, s61, 0
            v_lshlrev_b32 v{TMP+1}, 7, v{V_LANE}
            s_mov_b64 exec, 0xff
            """)
            p(f"global_load_dword v{TMP+100}, v{TMP+1}, s[60:61]", 'cpf')
            p("s_mov_b64 exec, -1")
        ra, rbm = o.get('rot', (1, 3))
        p.raw(f"""
        s_mul_i32 s{T0}, s{S_HG}, {ra}
        s_mul_i32 s{T1}, s{S_RB}, {rbm}
        s_add_u32 s{T0}, s{T0}, s{T1}
        s_mul_i32 s{T1}, s{T0}, 6554
        s_lshr_b32 s{T1}, s{T1}, 16
        s_mul_i32 s{T1}, s{T1}, 10
        s_sub_u32 s{S_XU}, s{T0}, s{T1}
        s_lshr_b32 s{T0}, s{S_W}, 1
        s_add_u32 s{T0}, s{T0}, s{S_XU}
        s_and_b32 s{T1}, s{S_W}, 1
        s_mul_i32 s{T1}, s{T1}, {32*3840}
        s_mul_i32 s{T2}, s{S_HG}, 160
        s_add_u32 s{T1}, s{T1}, s{T2}
        """)
        for g in range(5):
            p.raw(f"""
            s_cmp_ge_u32 s{T0}, 10
            s_cselect_b32 s{T2}, 10, 0
            s_sub_u32 s{T0}, s{T0}, s{T2}
            s_mul_i32 s{T2}, s{T0}, {64*3840}
            s_add_u32 s{S_WROW+g}, s{T2}, s{T1}
            s_add_u32 s{T0}, s{T0}, 2
            """)
        p.raw(f"""
        s_lshl_b32 s{T0}, s{S_RB}, 2
        s_add_u32 s{T0}, s{T0}, s{S_W}
        s_mul_i32 s{S_XBASE}, s{T0}, 40960
        s_mul_i32 s{S_LW}, s{S_W}, 5120
        s_mul_i32 s{S_LR}, s{S_W}, {RW}
        s_add_u32 s{S_LR}, s{S_LR}, {RBASE}
        """)
        t = TMP
        RH = TMP + 10
        for j in range(5):
            b = RH + 4 * j
            p.raw(f"""
            v_add_u32 v{t}, {64*j}, v{V_LANE}
            v_mul_u32_u24 v{t+1}, 6554, v{t}
            v_lshrrev_b32 v{t+1}, 16, v{t+1}
            v_mul_u32_u24 v{t+2}, 10, v{t+1}
            v_sub_u32 v{b+3}, v{t}, v{t+2}
            v_bfe_u32 v{b}, v{t+1}, 2, 2
            v_lshrrev_b32 v{b+1}, 4, v{t+1}
            v_and_b32 v{b+2}, 3, v{t+1}
            v_lshl_add_u32 v{t}, v{b}, 1, v{b+1}
            v_lshl_add_u32 v{t}, v{t}, 2, v{b+2}
            v_mul_u32_u24 v{t}, 3840, v{t}
            v_lshl_add_u32 v{V_WO+j}, v{b+3}, 4, v{t}
            """)
            if 0 < j < 4: p(f"v_subrev_u32 v{V_WO+j}, {1024*j}, v{V_WO+j}")
        p.raw(f"""
        v_lshrrev_b32 v{t}, 3, v{V_LANE}
        v_mul_u32_u24 v{t}, 1280, v{t}
        v_lshrrev_b32 v{t+1}, 4, v{V_LANE}
        v_xor_b32 v{t+1}, v{t+1}, v{V_LANE}
        v_and_b32 v{t+1}, 7, v{t+1}
        v_lshl_add_u32 v{V_XO}, v{t+1}, 4, v{t}
        v_xor_b32 v{t+2}, 64, v{V_XO}
        v_add_u32 v{V_XO+1}, {9216}, v{t+2}
        v_add_u32 v{V_XO+2}, {2*9216}, v{V_XO}
        v_add_u32 v{V_XO+3}, {3*9216}, v{t+2}
        v_lshlrev_b32 v{V_LIN}, 4, v{V_LANE}
        s_waitcnt lgkmcnt(0)
        s_mov_b32 s{SW}, s{kw}
        s_mov_b32 s{SW+1}, s{kw+1}
        s_mov_b32 s{SW+2}, 2457600
        s_mov_b32 s{SW+3}, 0x20000
        s_mov_b32 s{SX}, s{kx}
        s_mov_b32 s{SX+1}, s{kx+1}
        s_mov_b32 s{SX+2}, 2621440
        s_mov_b32 s{SX+3}, 0x20000
        """)
        self.put(self.dma_w(0)); self.put(self.dma_x(0)); self.put(self.dma_x(1))
        p(f"s_load_dword s{S_NONCE}, s[74:75], {br*128}")
        p.raw(f"""
        s_mov_b32 s{SWO}, s{kwo}
        s_mov_b32 s{SWO+1}, s{kwo+1}
        s_mov_b32 s{SWO+2}, 819200
        s_mov_b32 s{SWO+3}, 0x20000
        s_mov_b32 s{SWS}, s74
        s_mov_b32 s{SWS+1}, s75
        s_mov_b32 s{SWS+2}, {WS_SIZE}
        s_mov_b32 s{SWS+3}, 0x20000
        s_mov_b32 s{SOUT}, s72
        s_mov_b32 s{SOUT+1}, s73
        s_mov_b32 s{SOUT+2}, 5242880
        s_mov_b32 s{SOUT+3}, 0x20000
        s_lshl_b32 s{S_HEAD}, s{S_HG}, 2
        s_add_u32 s{S_HEAD}, s{S_HEAD}, s{S_W}
        """)
        if A:
            p.raw(f"""
            s_mov_b32 s{SPHI}, s{kphi}
            s_mov_b32 s{SPHI+1}, s{kphi+1}
            s_mov_b32 s{SPHI+2}, 25600
            s_mov_b32 s{SPHI+3}, 0x20000
            s_mul_i32 s{T0}, s{S_HEAD}, 800
            s_add_u32 m0, s{S_LR}, 12288
            """)
            p(f"buffer_load_dwordx4 v{V_LIN}, {srd(SPHI)}, s{T0} offen lds", ('W', 1))
        self.put(self.dma_w(1)); self.put(self.dma_x(2))
        G_, I_, R_, C_ = t, t + 1, t + 2, t + 3
        p.raw(f"""
        v_lshrrev_b32 v{G_}, 4, v{V_LANE}
        v_and_b32 v{I_}, 15, v{V_LANE}
        v_bfe_u32 v{R_}, v{V_LANE}, 2, 2
        v_and_b32 v{C_}, 3, v{V_LANE}
        v_lshrrev_b32 v{t+4}, 1, v{I_}
        v_xor_b32 v{t+4}, v{t+4}, v{G_}
        v_lshlrev_b32 v{t+5}, 7, v{I_}
        v_lshl_add_u32 v{t+4}, v{t+4}, 4, v{t+5}
        v_add_u32 v{V_XR}, s{S_LR}, v{t+4}
        v_xor_b32 v{t+4}, 64, v{t+4}
        v_add_u32 v{V_XR+1}, s{S_LR}, v{t+4}
        v_lshrrev_b32 v{t+4}, 2, v{V_LANE}
        v_mul_u32_u24 v{t+5}, 160, v{t+4}
        v_mul_u32_u24 v{t+6}, 40, v{C_}
        v_add_u32 v{V_WT}, v{t+5}, v{t+6}
        v_add_u32 v{V_WT+1}, 51200, v{V_WT}
        v_mul_u32_u24 v{t+5}, 480, v{I_}
        v_add_u32 v{t+5}, s{S_LR}, v{t+5}
        v_mul_u32_u24 v{t+6}, 80, v{G_}
        v_add_u32 v{V_PW}, v{t+5}, v{t+6}
        v_mul_u32_u24 v{t+6}, 40, v{G_}
        v_add3_u32 v{V_VW}, v{t+5}, v{t+6}, 64
        v_add_u32 v{V_VW}, 256, v{V_VW}
        v_mul_u32_u24 v{t+5}, 480, v{t+4}
        s_mul_i32 s{T0}, s{S_W}, 80
        s_add_u32 s{T0}, s{T0}, {RBASE}
        s_mul_i32 s{T1}, s{S_W}, 40
        s_add_u32 s{T1}, s{T1}, {RBASE+320}
        v_lshl_add_u32 v{t+6}, v{C_}, 3, v{t+5}
        v_add_u32 v{V_KB}, s{T0}, v{t+6}
        v_add_u32 v{V_KA0}, s{T1}, v{t+6}
        v_add_u32 v{V_KA1}, s{T1}, v{t+5}
        s_mov_b32 s{S_L2E}, 0x3fb8aa3b
        s_mov_b32 s{S_NL2E}, 0xbfb8aa3b
        """)
        for j in range(5):
            b = RH + 4 * j
            p.raw(f"""
            v_mul_u32_u24 v{t+4}, 20, v{b}
            v_add_u32 v{t+4}, v{t+4}, v{b+2}
            v_lshl_add_u32 v{t+5}, v{b+1}, 2, v{t+4}
            v_mul_u32_u24 v{t+6}, 80, v{b+1}
            v_add3_u32 v{t+6}, v{t+6}, v{t+4}, 16
            v_mul_u32_u24 v{t+5}, 1280, v{t+5}
            v_mul_u32_u24 v{t+6}, 1280, v{t+6}
            v_lshl_add_u32 v{V_OF+j}, v{b+3}, 4, v{t+5}
            v_lshl_add_u32 v{V_OL+j}, v{b+3}, 4, v{t+6}
            """)
            if 0 < j < 4:
                p(f"v_subrev_u32 v{V_OF+j}, {1024*j}, v{V_OF+j}")
                p(f"v_subrev_u32 v{V_OL+j}, {1024*j}, v{V_OL+j}")
        p.raw(f"""
        s_lshr_b32 s{S_PP0}, s{S_HG}, 1
        s_lshr_b32 s{T0}, s{S_W}, 1
        s_mul_i32 s{T0}, s{T0}, 80
        s_and_b32 s{T1}, s{S_W}, 1
        s_lshl_b32 s{T1}, s{T1}, 3
        s_add_u32 s{T0}, s{T0}, s{T1}
        s_mul_i32 s{T0}, s{T0}, 1280
        s_mul_i32 s{T2}, s{S_HG}, 160
        s_add_u32 s{T0}, s{T0}, s{T2}
        """)
        for g in range(4):
            p.raw(f"""
            s_add_u32 s{T1}, s{S_PP0}, {g}
            s_and_b32 s{T1}, s{T1}, 3
            s_mul_i32 s{T1}, s{T1}, {160*1280}
            s_add_u32 s{S_WOROW+g}, s{T1}, s{T0}
            """)
        p.raw(f"""
        s_add_u32 s{T1}, s{S_PP0}, s{S_W}
        s_and_b32 s{T1}, s{T1}, 3
        s_mul_i32 s{T1}, s{T1}, {160*1280}
        s_add_u32 s{S_WOROW+4}, s{T1}, s{T2}
        s_lshl_b32 s{T0}, s{S_RB}, 2
        s_add_u32 s{T0}, s{T0}, s{S_W}
        s_add_u32 s{T0}, s{T0}, {br*64}
        s_mul_i32 s{S_OB}, s{T0}, 40960
        s_add_u32 s{S_OB}, s{S_OB}, {WS_O}
        s_lshl_b32 s{S_FLAG}, s{T0}, 7
        s_add_u32 s{S_FLAG}, s{S_FLAG}, {WS_FLAG}
        """)
        if A:
            p.raw(f"""
            v_mov_b32 v{t+8}, 0
            v_mov_b32 v{t+9}, 0
            v_mov_b32 v{t+10}, 0
            v_mov_b32 v{t+11}, 0
            v_add_u32 v{t+4}, s{S_LR}, v{V_LIN}
            """)
            p(f"ds_write_b128 v{t+4}, {vq(t+8)} offset:13312", 'z')
            p.raw(f"""
            v_mul_u32_u24 v{t+4}, {RW}, v{G_}
            v_mul_u32_u24 v{t+5}, 40, v{R_}
            v_add_u32 v{t+4}, v{t+4}, v{t+5}
            v_add_u32 v{t+4}, {RBASE+12288}, v{t+4}
            s_add_u32 s{T0}, s{S_LR}, 13312
            v_mov_b32 v{t+5}, s{T0}
            v_cmp_eq_u32 vcc, v{C_}, v{G_}
            v_cndmask_b32 v{V_FR}, v{t+5}, v{t+4}, vcc
            """)
            for tt in range(5):
                a = A_PHI + (tt * 3 + 2) * 4
                p(f"v_accvgpr_write_b32 a{a+2}, 0"); p(f"v_accvgpr_write_b32 a{a+3}, 0")
        p("s_waitcnt lgkmcnt(0)")
        p(f"s_add_u32 s{S_NONCE}, s{S_NONCE}, 0x9e3779b1")
        self.stamp()
        xb = lambda ks, rt: aq((ks * 2 + rt) * 4)
        hooks = {}
        for pu in range(1, 10):
            hooks[10 * pu - (D - 1)] = [lambda pu=pu: self.xreads(pu)]
        for pu in range(0, 7):
            L = []
            if (pu + 3) % 2 == 0: L += self.dma_w((pu + 3) // 2)
            L += self.dma_x(pu + 3)
            hooks[10 * pu] = L
        hooks[70] = self.dma_w(5) + self.dma_w(6)
        hooks[80] = self.dma_w(7)
        hooks[96] = self.dma_w(8)
        if A:
            def phireads(tt):
                for u in range(3):
                    for hf in range(2 if u < 2 else 1):
                        a = A_PHI + (tt * 3 + u) * 4 + 2 * hf
                        p(f"ds_read_b64_tr_b16 a[{a}:{a+1}], v{V_FR} offset:{(8*u+4*hf)*40 + 8*tt}", 'phi')
            for tt in range(5):
                hooks[21 + 10 * tt] = [lambda tt=tt: phireads(tt)]
        self.gemm_pass(0, ACC_K, xb, hooks=hooks, first=True, pre=lambda: self.xreads(0))
        self.stamp()
        fill = []
        PK = TMP + 80
        for rt in range(2):
            src = acc(ACC_K, 0, rt)
            if A:
                fill += self.phiA(src, PK, TMP, packed=False)
                for j in range(5): fill.append((1, (f"ds_write_b128 v{V_PW}, {vq(PK+4*j)} offset:{rt*7680 + 16*j}", 'pw')))
            else:
                fill += self.phiB(src, PK, TMP)
                for j in range(2): fill.append((1, (f"ds_write_b128 v{V_PW}, {vq(PK+4*j)} offset:{rt*7680 + 16*j}", 'pw')))
                fill.append((1, (f"ds_write_b64 v{V_PW}, {vq(PK+8, 2)} offset:{rt*7680 + 32}", 'pw')))
        hooks = {16 + 20 * g: self.dma_w(9 + g) for g in range(5)}
        self.gemm_pass(1, ACC_V, xb, fill=fill, hooks=hooks)
        self.stamp()
        for rt in range(2):
            for c, x in self.cvt20(acc(ACC_V, 0, rt), TMP + 10 * rt): p(x)
        p.wait(lg='*')
        for rt in range(2):
            for j in range(5): p(f"ds_write_b64 v{V_VW}, {vq(TMP+10*rt+2*j, 2)} offset:{rt*7680 + 8*j}", 'vw')
        KEEP, ONE = TMP + 20, TMP + 21
        p.raw(f"""
        v_and_b32 v{TMP+22}, 15, v{V_LANE}
        v_cmp_gt_u32 vcc, 4, v{TMP+22}
        v_cndmask_b32 v{KEEP}, 0, -1, vcc
        v_mov_b32 v{TMP+23}, 0x3f803f80
        v_cmp_eq_u32 vcc, 4, v{TMP+22}
        v_cndmask_b32 v{ONE}, 0, v{TMP+23}, vcc
        """)
        p.wait(lg='*')
        p("s_barrier")
        NT = 3 if A else 2
        FB = TMP + 24
        KV = ACC_K
        def kvreads(kk):
            b = FB + (kk % 2) * 20
            for hf in range(2): p(f"ds_read_b64_tr_b16 {vq(b+4+2*hf, 2)}, v{V_KA1} offset:{(32*kk+16*hf)*480 + 32}", ('kv', kk))
            for hf in range(2): p(f"ds_read_b64_tr_b16 {vq(b+2*hf, 2)}, v{V_KA0} offset:{(32*kk+16*hf)*480}", ('kv', kk))
            for nt in range(NT):
                for hf in range(2): p(f"ds_read_b64_tr_b16 {vq(b+8+4*nt+2*hf, 2)}, v{V_KB} offset:{(32*kk+16*hf)*480 + 32*nt}", ('kv', kk))
        kvreads(0)
        for kk in range(4):
            p.wait(lg=[('kv', kk)])
            if kk < 3: kvreads(kk + 1)
            b = FB + (kk % 2) * 20
            for j in range(4): p(f"v_and_or_b32 v{b+4+j}, v{b+4+j}, v{KEEP}, v{ONE}")
            for mt in range(2):
                for nt in range(NT):
                    a = KV + (mt * 3 + nt) * 4
                    p(f"v_mfma_f32_16x16x32_bf16 {vq(a)}, {vq(b+4*mt)}, {vq(b+8+4*nt)}, {'0' if kk == 0 else vq(a)}")
        p.raw(f"""
        v_lshrrev_b32 v{TMP}, 4, v{V_LANE}
        v_mul_u32_u24 v{TMP}, {F}, v{TMP}
        v_add_u32 v{TMP}, v{TMP}, v{TMP+22}
        v_lshlrev_b32 v{TMP}, 4, v{TMP}
        v_mov_b32 v{TMP+1}, 0xff
        s_add_u32 s{T0}, s{S_HEAD}, {br*32}
        s_lshl_b32 s{T0}, s{T0}, 4
        s_add_u32 s{T0}, s{T0}, s{S_RB}
        s_lshl_b32 s{T0}, s{T0}, 12
        s_add_u32 s{T0}, s{T0}, {WS_P1}
        """)
        for mt in range(2):
            for nt in range(NT):
                a = KV + (mt * 3 + nt) * 4
                for j in range(4): p(f"v_bfi_b32 v{a+j}, v{TMP+1}, s{S_NONCE}, v{a+j}")
        lastm = 0x00ff00ff if A else 0x000f000f
        for mt in range(2):
            for nt in range(NT):
                a = KV + (mt * 3 + nt) * 4
                lo = lastm if nt == NT - 1 else 0xffffffff
                hi = lo if mt == 0 else 0
                p(f"s_mov_b32 exec_lo, {hex(lo)}"); p(f"s_mov_b32 exec_hi, {hex(hi)}")
                p(f"buffer_store_dwordx4 {vq(a)}, v{TMP}, {srd(SWS)}, s{T0} offen offset:{(4*mt*F + 16*nt)*16} sc1", 'p1')
        p("s_mov_b64 exec, -1")
        self.stamp()
        hooks = {16 + 20 * g: self.dma_w(14 + g) for g in range(4)}
        self.gemm_pass(2, ACC_Q, xb, hooks=hooks, last=True)
        p("s_barrier")
        self.stamp()
        p(f"s_cmp_eq_u32 s{S_RB}, 15")
        p(f"s_cbranch_scc1 L_nored{self.sfx}")
        X = TMP + 8
        NI = 4 if A else 2
        if A:
            p.raw(f"""
            v_lshrrev_b32 v{TMP}, 4, v{V_LANE}
            v_lshlrev_b32 v{TMP}, 12, v{TMP}
            v_and_b32 v{TMP+1}, 15, v{V_LANE}
            v_lshl_add_u32 v{TMP}, v{TMP+1}, 4, v{TMP}
            s_lshl_b32 s{T1}, s{S_RB}, 8
            """)
        else:
            p.raw(f"""
            v_lshrrev_b32 v{TMP}, 3, v{V_LANE}
            v_lshlrev_b32 v{TMP}, 12, v{TMP}
            v_and_b32 v{TMP+1}, 7, v{V_LANE}
            v_lshl_add_u32 v{TMP}, v{TMP+1}, 4, v{TMP}
            s_lshl_b32 s{T1}, s{S_RB}, 7
            """)
        p.raw(f"""
        s_add_u32 s{T0}, s{S_HEAD}, {br*32}
        s_lshl_b32 s{T2}, s{T0}, 12
        s_add_u32 s{T2}, s{T2}, s{T1}
        s_add_u32 s{T2}, s{T2}, {WS_P2}
        s_lshl_b32 s{T0}, s{T0}, 16
        s_add_u32 s{T0}, s{T0}, s{T1}
        s_add_u32 s{T0}, s{T0}, {WS_P1}
        """)
        self.spin_head("L_h1")
        for ii in range(NI):
            p(f"s_add_u32 s{T1}, s{T0}, {ii * (65536 // NI)}")
            p(f"buffer_load_dwordx4 {vq(X+4*ii)}, v{TMP}, {srd(SWS)}, s{T1} offen sc1", 'h1')
        p("s_waitcnt vmcnt(0)")
        p(f"v_xor_b32 v{TMP+2}, s{S_NONCE}, v{X}")
        for j in range(1, 4 * NI): p(f"v_bitop3_b32 v{TMP+2}, v{TMP+2}, v{X+j}, s{S_NONCE} bitop3:0xf6")
        p(f"v_and_b32 v{TMP+2}, 0xff, v{TMP+2}")
        p(f"v_cmp_ne_u32 vcc, 0, v{TMP+2}")
        self.spin_tail("L_h1")
        for ii in range(1, NI):
            for j in range(4): p(f"v_add_f32 v{X+j}, v{X+j}, v{X+4*ii+j}")
        p.raw(f"""
        v_permlane32_swap_b32 v{X}, v{X+2}
        v_permlane32_swap_b32 v{X+1}, v{X+3}
        v_add_f32 v{X}, v{X}, v{X+2}
        v_add_f32 v{X+1}, v{X+1}, v{X+3}
        v_permlane16_swap_b32 v{X}, v{X+1}
        v_add_f32 v{X}, v{X}, v{X+1}
        """)
        if not A: p(f"v_add_f32_dpp v{X}, v{X}, v{X} row_ror:8 row_mask:0xf bank_mask:0xf")
        p.raw(f"""
        v_cvt_pk_bf16_f32 v{X}, v{X}, v{X}
        v_mov_b32 v{TMP+2}, 0xffff
        v_bfi_b32 v{X}, v{TMP+2}, s{S_NONCE}, v{X}
        """)
        if A:
            p(f"v_lshlrev_b32 v{TMP}, 2, v{V_LANE}")
            p(f"buffer_store_dword v{X}, v{TMP}, {srd(SWS)}, s{T2} offen sc1", 'p2')
        else:
            p.raw(f"""
            v_lshrrev_b32 v{TMP}, 4, v{V_LANE}
            v_lshlrev_b32 v{TMP}, 5, v{TMP}
            v_lshl_add_u32 v{TMP}, v{TMP+1}, 2, v{TMP}
            s_mov_b32 exec_lo, 0x00ff00ff
            s_mov_b32 exec_hi, 0x00ff00ff
            """)
            p(f"buffer_store_dword v{X}, v{TMP}, {srd(SWS)}, s{T2} offen sc1", 'p2')
            p("s_mov_b64 exec, -1")
        p(f"L_nored{self.sfx}:")
        p("s_nop 1")
        self.put(self.dma_w(18)); self.put(self.dma_w(19))
        self.stamp()
        FQ = ACC_K
        for rt in range(2):
            src = acc(ACC_Q, 0, rt)
            if A: L = self.phiA(src, FQ + 20 * rt, TMP, packed=True)
            else: L = self.phiB(src, FQ + 20 * rt, TMP) + [(1, f"v_mov_b32 v{FQ+20*rt+10}, 0"), (1, f"v_mov_b32 v{FQ+20*rt+11}, 0")]
            for c, x in L: p(x)
        self.stamp()
        RS = 80 if A else 48
        HS = 24 * RS
        NQ = 240 if A else 120
        GA = TMP; LA = TMP + 4
        t = TMP + 24
        p(f"s_mul_i32 s{T0}, s{S_W}, {HS}")
        p(f"s_add_u32 s{T0}, s{T0}, {RBASE}")
        for ii in range(NI):
            p(f"v_add_u32 v{t}, {64*ii}, v{V_LANE}")
            if ii == NI - 1:
                p(f"v_subrev_u32 v{t+1}, 64, v{t}")
                p(f"v_cmp_gt_u32 vcc, {NQ}, v{t}")
                p(f"v_cndmask_b32 v{t}, v{t+1}, v{t}, vcc")
            p(f"v_lshlrev_b32 v{GA+ii}, 4, v{t}")
            if A:
                p.raw(f"""
                v_lshrrev_b32 v{t+1}, 4, v{t}
                v_and_b32 v{t+2}, 3, v{t}
                v_lshl_add_u32 v{t+1}, v{t+1}, 2, v{t+2}
                v_bfe_u32 v{t+2}, v{t}, 2, 2
                v_mul_u32_u24 v{t+3}, 6554, v{t+1}
                v_lshrrev_b32 v{t+3}, 16, v{t+3}
                v_mul_u32_u24 v{t+4}, 10, v{t+3}
                """)
            else:
                p.raw(f"""
                v_lshrrev_b32 v{t+1}, 3, v{t}
                v_and_b32 v{t+2}, 1, v{t}
                v_lshl_add_u32 v{t+1}, v{t+1}, 1, v{t+2}
                v_bfe_u32 v{t+2}, v{t}, 1, 2
                v_mul_u32_u24 v{t+3}, 13108, v{t+1}
                v_lshrrev_b32 v{t+3}, 16, v{t+3}
                v_mul_u32_u24 v{t+4}, 5, v{t+3}
                """)
            p.raw(f"""
            v_sub_u32 v{t+1}, v{t+1}, v{t+4}
            v_lshl_add_u32 v{t+3}, v{t+3}, 2, v{t+2}
            v_mul_u32_u24 v{t+3}, {RS}, v{t+3}
            v_lshl_add_u32 v{t+3}, v{t+1}, 3, v{t+3}
            v_add_u32 v{LA+ii}, s{T0}, v{t+3}
            """)
        p.raw(f"""
        v_mov_b32 v{t}, 0
        v_mov_b32 v{t+1}, 0
        v_lshlrev_b32 v{t+2}, 3, v0
        v_add_u32 v{t+2}, {RBASE+7680}, v{t+2}
        """)
        p(f"ds_write_b64 v{t+2}, {vq(t, 2)}", 'z')
        p.raw(f"""
        v_lshrrev_b32 v{t+2}, 4, v{V_LANE}
        v_bfe_u32 v{t+3}, v{V_LANE}, 2, 2
        v_cmp_eq_u32 vcc, v{t+2}, v{t+3}
        v_mul_u32_u24 v{t+2}, {HS}, v{t+2}
        v_and_b32 v{t+3}, 3, v{V_LANE}
        v_mul_u32_u24 v{t+3}, {RS}, v{t+3}
        v_add_u32 v{t+2}, v{t+2}, v{t+3}
        v_add_u32 v{t+2}, {RBASE}, v{t+2}
        v_mov_b32 v{t+3}, {RBASE+7680}
        v_cndmask_b32 v{V_FR}, v{t+3}, v{t+2}, vcc
        s_add_u32 s{T0}, s{S_HEAD}, {br*32}
        s_lshl_b32 s{T0}, s{T0}, 12
        s_add_u32 s{T0}, s{T0}, {WS_P2}
        s_mov_b32 s{T1}, 0x07060302
        """)
        self.spin_head("L_h2")
        for ii in range(NI):
            p(f"buffer_load_dwordx4 {vq(X+4*ii)}, v{GA+ii}, {srd(SWS)}, s{T0} offen sc1", 'h2')
        p("s_waitcnt vmcnt(0)")
        p(f"v_xor_b32 v{t}, s{S_NONCE}, v{X}")
        for j in range(1, 4 * NI): p(f"v_bitop3_b32 v{t}, v{t}, v{X+j}, s{S_NONCE} bitop3:0xf6")
        p(f"v_and_b32 v{t}, 0xffff, v{t}")
        p(f"v_cmp_ne_u32 vcc, 0, v{t}")
        self.spin_tail("L_h2")
        for ii in range(NI):
            p(f"v_perm_b32 v{X+4*ii}, v{X+4*ii+1}, v{X+4*ii}, s{T1}")
            p(f"v_perm_b32 v{X+4*ii+1}, v{X+4*ii+3}, v{X+4*ii+2}, s{T1}")
            p(f"ds_write_b64 v{LA+ii}, {vq(X+4*ii, 2)}", 'kvw')
        p.wait(lg='*')
        p("s_barrier")
        self.stamp()
        OA = ACC_V
        NU = 5 if A else 3
        OR = TMP + 32
        DD = 8
        fr = [(u, tt) for u in range(NU) for tt in range(6)]
        if not A:
            ZR = OR + 32
            for tt in range(6): p(f"v_mov_b32 v{ZR+4*tt+2}, 0"); p(f"v_mov_b32 v{ZR+4*tt+3}, 0")
        def oreg(n):
            u, tt = fr[n]
            return ZR + 4 * tt if (not A and u == 2) else OR + (n % DD) * 4
        def oread(n):
            u, tt = fr[n]
            if not A and u == 2: p(f"ds_read_b64 {vq(oreg(n), 2)}, v{V_FR} offset:{4*tt*RS + 16*u}", ('of', n))
            else: p(f"ds_read_b128 {vq(oreg(n))}, v{V_FR} offset:{4*tt*RS + 16*u}", ('of', n))
        for n in range(DD - 1): oread(n)
        p.wait(lg=[('of', 0)])
        for n, (u, tt) in enumerate(fr):
            for rt in range(2):
                a = OA + (rt * 6 + tt) * 4
                p(f"v_mfma_f32_16x16x32_bf16 {vq(a)}, {vq(oreg(n))}, {vq(FQ+20*rt+4*u)}, {'0' if u == 0 else vq(a)}")
                if rt == 0 and n + DD - 1 < len(fr): oread(n + DD - 1)
                if rt == 1 and n + 1 < len(fr): p.wait(lg=[('of', n + 1)])
        OB = TMP
        for rt in range(2):
            dn = OA + (rt * 6 + 5) * 4
            p(f"v_add_f32 v{dn}, 0x358637bd, v{dn}")
        for rt in range(2):
            dn = OA + (rt * 6 + 5) * 4
            p(f"v_rcp_f32 v{dn}, v{dn}")
        p(f"s_mul_i32 s{T0}, s{S_HG}, 5120")
        p(f"s_add_u32 s{T0}, s{T0}, s{S_OB}")
        p(f"s_add_u32 s{T1}, s{T0}, 4096")
        for rt in range(2):
            dn = OA + (rt * 6 + 5) * 4
            b = OA + rt * 24
            for i in range(10):
                p(f"v_pk_mul_f32 v[{b+2*i}:{b+2*i+1}], v[{b+2*i}:{b+2*i+1}], v[{dn}:{dn+1}] op_sel_hi:[1,0]")
            for i in range(10):
                d = OB + rt * 8 + i if i < 8 else OB + 16 + 2 * rt + (i - 8)
                p(f"v_cvt_pk_bf16_f32 v{d}, v{b+2*i}, v{b+2*i+1}")
            for u in range(2):
                p(f"buffer_store_dwordx4 {vq(OB+rt*8+4*u)}, v{V_LIN}, {srd(SWS)}, s{T0} offen offset:{(rt*2+u)*1024} sc1", 'o')
        p(f"buffer_store_dwordx4 {vq(OB+16)}, v{V_LIN}, {srd(SWS)}, s{T1} offen sc1", 'o')
        p.raw(f"""
        v_mov_b32 v{TMP+20}, s{S_NONCE}
        s_lshl_b32 s{T0}, s{S_HG}, 2
        v_mov_b32 v{TMP+21}, s{T0}
        v_and_b32 v{TMP+22}, 7, v{V_LANE}
        v_lshlrev_b32 v{TMP+22}, 2, v{TMP+22}
        s_waitcnt vmcnt(0)
        s_mov_b64 exec, 1
        """)
        p(f"buffer_store_dword v{TMP+20}, v{TMP+21}, {srd(SWS)}, s{S_FLAG} offen sc1", 'fl')
        p("s_mov_b64 exec, 0xff")
        self.stamp()
        self.spin_head("L_h3")
        p(f"buffer_load_dword v{TMP+23}, v{TMP+22}, {srd(SWS)}, s{S_FLAG} offen sc1", 'h3')
        p("s_waitcnt vmcnt(0)")
        p(f"v_cmp_ne_u32 vcc, s{S_NONCE}, v{TMP+23}")
        self.spin_tail("L_h3")
        p("s_mov_b64 exec, -1")
        self.stamp()
        LO = TMP + 24
        for pz in range(4):
            p.raw(f"""
            s_add_u32 s{T0}, s{S_PP0}, {pz}
            s_and_b32 s{T0}, s{T0}, 3
            s_mul_i32 s{T0}, s{T0}, 10240
            s_add_u32 s{60+pz}, s{T0}, s{S_OB}
            """)
        for pz in range(4):
            for h in range(2):
                if h: p(f"s_add_u32 s{T0}, s{60+pz}, 5120")
                for u in range(2):
                    for rt in range(2):
                        P = 4 * pz + 2 * h + u
                        p(f"buffer_load_dwordx4 {aq((P*2+rt)*4)}, v{V_LIN}, {srd(SWS)}, s{T0 if h else 60+pz} offen offset:{(rt*2+u)*1024} sc1", ('O', P))
        for pz in range(4):
            for h in range(2):
                p(f"s_add_u32 s{T0}, s{60+pz}, {5120*h + 4096}")
                p(f"buffer_load_dwordx4 {vq(LO+(2*pz+h)*4)}, v{V_LIN}, {srd(SWS)}, s{T0} offen sc1", ('O', 16 + pz))
        p.raw(f"""
        s_or_b32 s{T0}, s{S_RB}, s{S_HEAD}
        s_cmp_lg_u32 s{T0}, 0
        s_cselect_b32 s{T0}, {WS_SIZE}, 0
        s_add_u32 s{T0}, s{T0}, {br*128}
        v_mov_b32 v{TMP+21}, s{T0}
        s_mov_b64 exec, 1
        """)
        p(f"buffer_store_dword v{TMP+20}, v{TMP+21}, {srd(SWS)}, 0 offen sc1", 'nn')
        p("s_mov_b64 exec, -1")
        def ob(ks, rt):
            return aq((ks * 2 + rt) * 4) if ks < 16 else vq(LO + (2 * (ks - 16) + rt) * 4)
        hooks = {}
        def owait(P):
            p.wait(vm=[('O', P)])
            if P >= 16:
                a = LO + 2 * (P - 16) * 4
                p(f"v_swap_b32 v{a+2}, v{a+4}"); p(f"v_swap_b32 v{a+3}, v{a+5}")
        for P in range(1, 20): hooks[('b', 5 * P - 1)] = [lambda P=P: owait(P)]
        self.final = True
        def pre(): pass
        p("s_barrier")
        N0 = 300
        for n in range(D - 1): self.wread(N0 + n, 0); self.wread(N0 + n, 1)
        owait(0)
        gs = self.group_sync; self.group_sync = lambda G: None
        self.gemm_pass(3, ACC_K, ob, hooks=hooks, last=True)
        self.group_sync = gs
        self.stamp()
        p.raw(f"""
        v_and_b32 v{TMP+20}, 15, v{V_LANE}
        v_mul_u32_u24 v{TMP+20}, 2560, v{TMP+20}
        v_lshrrev_b32 v{TMP+21}, 4, v{V_LANE}
        v_mul_u32_u24 v{TMP+21}, 40, v{TMP+21}
        v_add_u32 v{TMP+20}, v{TMP+20}, v{TMP+21}
        s_lshl_b32 s{T0}, s{S_XBASE}, 1
        s_mul_i32 s{T1}, s{S_HG}, 160
        s_add_u32 s{T0}, s{T0}, s{T1}
        s_add_u32 s{T0}, s{T0}, {br*1280}
        s_add_u32 s{T1}, s{T0}, {16*2560}
        """)
        for rt in range(2):
            for c, x in self.cvt20(acc(ACC_K, 0, rt), TMP + 10 * rt): p(x)
            so = f"s{T1 if rt else T0}"
            b = TMP + 10 * rt
            p(f"buffer_store_dwordx4 {vq(b)}, v{TMP+20}, {srd(SOUT)}, {so} offen", 'out')
            p(f"buffer_store_dwordx4 {vq(b+4)}, v{TMP+20}, {srd(SOUT)}, {so} offen offset:16", 'out')
            p(f"buffer_store_dwordx2 {vq(b+8, 2)}, v{TMP+20}, {srd(SOUT)}, {so} offen offset:32", 'out')
        if o.get('stamps'):
            p("s_waitcnt vmcnt(0)")
            self.stamp()
            p("s_memrealtime s[100:101]")
            p("s_waitcnt lgkmcnt(0)")
            p.raw(f"""
            s_lshl_b32 s{T0}, s2, 2
            s_add_u32 s{T0}, s{T0}, s{S_W}
            s_lshl_b32 s{T0}, s{T0}, 6
            s_add_u32 s{T0}, s{T0}, {WS_ST}
            v_mov_b32 v{TMP+16}, 0
            v_mov_b32 v{TMP}, s98
            v_mov_b32 v{TMP+1}, s100
            """)
            for k in range(14):
                if k < self.nst:
                    p(f"s_sub_u32 s{T1}, s{S_ST+2*k}, s96"); p(f"v_mov_b32 v{TMP+2+k}, s{T1}")
                else: p(f"v_mov_b32 v{TMP+2+k}, 0")
            p("s_mov_b64 exec, 1")
            for k in range(4): p(f"buffer_store_dwordx4 {vq(TMP+4*k)}, v{TMP+16}, {srd(SWS)}, s{T0} offen offset:{16*k}")
        if o.get('amp') and self.sfx in o['amp'][2]:
            p("s_waitcnt vmcnt(0)")
            self.stamp()
            p.raw(f"""
            s_sub_u32 s{T0}, s100, s98
            s_mul_i32 s{T0}, s{T0}, {o['amp'][1]}
            s_min_u32 s{T0}, s{T0}, 100000
            L_amp{self.sfx}:
            s_sleep 2
            s_memrealtime s[62:63]
            s_waitcnt lgkmcnt(0)
            s_sub_u32 s{T1}, s62, s98
            s_cmp_lt_u32 s{T1}, s{T0}
            s_cbranch_scc1 L_amp{self.sfx}
            """)
        p("s_endpgm")
        return p.finalize()

def build(opt):
    ref = open(f"cdna_kernels/{NAME}.s.ref").read().split("\n")
    head = [l for l in ref if l.startswith(";") and "@launch" not in l]
    s = "\n".join(head) + "\n; @launch grid=(256,1,1) block=(256,1,1) lds=163840\n"
    s += f""".amdgcn_target "amdgcn-amd-amdhsa--gfx950"
.text
.globl {NAME}_kernel
.p2align 8
.type {NAME}_kernel,@function
{NAME}_kernel:
    s_cmp_ge_u32 s2, 256
    s_cbranch_scc1 L_exit
    s_bitcmp1_b32 s2, 2
    s_cbranch_scc1 L_bodyB
"""
    ga = Gen(True, opt); s += ga.body()
    s += "L_exit:\n    s_endpgm\n.p2align 8\n"
    gb = Gen(False, opt); s += gb.body()
    s += ".fill 8192, 4, 0xbf810000\n"
    s += f""".section .rodata,"a"
.p2align 6
.amdhsa_kernel {NAME}_kernel
  .amdhsa_next_free_vgpr 512
  .amdhsa_next_free_sgpr 102
  .amdhsa_accum_offset 256
  .amdhsa_group_segment_fixed_size 0
  .amdhsa_kernarg_size 80
  .amdhsa_user_sgpr_count 2
  .amdhsa_user_sgpr_kernarg_segment_ptr 1
  .amdhsa_system_sgpr_workgroup_id_x 1
.end_amdhsa_kernel
"""
    print("nops", ga.p.nops, gb.p.nops, "instrs", len(ga.p.ins), len(gb.p.ins), file=sys.stderr)
    return s

if __name__ == "__main__":
    import json
    opt = json.loads(sys.argv[2]) if len(sys.argv) > 2 else {}
    open(sys.argv[1], "w").write(build(opt))
```

```python
import sys
from collections import deque
from emit import Prog
NAME = "concat_heads__linear_kernel_hedgehog__linear_attn_block__prompt"

S_RB, S_HG, S_W = 4, 5, 7
SX, SW, SWO, SWS, SOUT, SPHI = 8, 12, 16, 20, 24, 28
S_NONCE = 32
S_WROW = 33
S_XBASE, S_XU = 38, 39
S_LW, S_LR = 40, 41
T0, T1, T2, T3 = 42, 43, 44, 45
S_WOROW = 46
S_HEAD = 51
S_SPIN = 52
S_FAST = 53
S_L2E, S_NL2E = 54, 55
S_OB = 56
S_WS, S_XS = 57, 58
S_FLAG = 59
S_OP = 60
S_P1ST, S_P1LD, S_P2ST, S_P2LD, S_OWN, S_OUT, S_XCCV, S_PERM = 68, 69, 70, 71, 72, 73, 74, 75
S_KA = 76
S_ST = 76
def srd(b): return f"s[{b}:{b+3}]"
V_LANE = 1
V_WO = 2; V_OF = 7; V_OL = 12; V_XO = 17; V_XR = 21; V_WT = 23; V_LIN = 25
V_PW, V_VW, V_KB, V_KA0, V_KA1, V_FR = 26, 27, 28, 29, 30, 31
ACC_K, ACC_V = 32, 72
TMP = 112
PV = 228
V_P1ST, V_P1LD, V_P2ST, V_GAL, V_LA, V_FR2, V_KEEP, V_ONE, V_OW, V_ORD, V_OG, V_F8, V_DUMP, V_ZA = PV, PV+1, PV+2, PV+3, PV+4, PV+8, PV+9, PV+10, PV+11, PV+12, PV+17, PV+22, PV+23, PV+24
V_L128, V_NONCE, V_FOWN = PV + 25, PV + 26, PV + 27
RING = 0; SLOT = 20480; RBASE = 102400; RW = 15360
OUTL = RBASE + 16384; OUTS = 176
WS_FLAG, WS_XCC, WS_P2, WS_P1, WS_O, WS_ST = 4096, 32768, 65536, 1 << 20, 8 << 20, 16 << 20
WS_SIZE = 32 << 20
D = 6
A_RING = 220
A_PHI = 160
SPIN_MAX = 20000
EPS = "0x358637bd"

def vq(b, n=4): return f"v[{b}:{b+n-1}]"
def aq(b, n=4): return f"a[{b}:{b+n-1}]"
def acc(base, t, rt): return base + (rt * 5 + t) * 4
MF = "v_mfma_f32_16x16x32_bf16"

class Gen:
    def __init__(self, isA, opt):
        self.A = isA; self.o = opt
        self.p = Prog(); self.sfx = 'A' if isA else 'B'
        self.F = 40 if isA else 20
        self.nst = 0
        self.dq = deque()
        self.pos = 0
        self.ool = []
    def stamp(self, name=None):
        p = self.p
        fine = self.o.get('fine')
        if fine:
            if name is None: self.cs = getattr(self, 'cs', 0) + 1; name = 's%d' % (self.cs - 1)
            if name not in fine: return
        elif name is not None: return
        if self.o.get('amp'):
            if self.nst == self.o['amp'][0]:
                p("s_memrealtime s[100:101]"); p("s_waitcnt lgkmcnt(0)")
            self.nst += 1
            return
        if not self.o.get('stamps'): return
        p(f"s_memtime s[100:101]")
        p("s_waitcnt lgkmcnt(0)")
        p(f"s_sub_u32 s{S_ST+self.nst}, s100, s96")
        self.nst += 1
    def put(self, L):
        for x in L:
            if isinstance(x, tuple): self.p(x[0], x[1])
            elif isinstance(x, list): self.put(x)
            elif callable(x): x()
            else: self.p(x)
    def dma_w(self, G):
        g = G % 5
        pre = [f"s_add_u32 m0, s{S_LW}, {RING + g*SLOT}"]
        if G < 15:
            col = {0: 1280, 1: 2560, 2: 0}[G // 5]
            pre.append(f"s_add_u32 s{S_WS}, s{S_WROW+g}, {col}"); so = f"s{S_WS}"; sd = SW; vo = V_WO
        else:
            so = f"s{S_WOROW+g}"; sd = SWO; vo = V_OF if g < 4 else V_OL
        items = []
        for j in range(5):
            off = f"offset:{j*1024} " if 0 < j < 4 else ""
            L = (pre if j == 0 else []) + [(f"buffer_load_dwordx4 v{vo+j}, {srd(sd)}, {so} offen {off}lds", ('W', G))]
            if j == 3: L.append(f"s_add_u32 m0, s{S_LW}, {RING + g*SLOT + 4096}")
            items.append(L)
        return items
    def dma_x(self, pu):
        items = []
        for j in range(4):
            off = f"offset:{j*1024} " if j else ""
            L = []
            if j == 0: L += [f"s_add_u32 m0, s{S_LR}, {(pu % 3) * 4096}", f"s_add_u32 s{S_XS}, s{S_XU}, s{S_XBASE}"]
            L.append((f"buffer_load_dwordx4 v{V_XO+j}, {srd(SX)}, s{S_XS} offen {off}lds", ('X', pu)))
            if j == 0: L += [f"s_add_u32 s{S_XU}, s{S_XU}, 128"]
            if j == 1: L += [f"s_cmp_eq_u32 s{S_XU}, 1280", f"s_cselect_b32 s{S_XU}, 0, s{S_XU}"]
            items.append(L)
        return items
    def q(self, earliest, items):
        for it in items: self.dq.append((earliest, it))
    def release(self, k):
        self.dq = deque((0 if e == 10**6 + k else e, it) for e, it in self.dq)
    def tick(self):
        if self.dq and self.dq[0][0] <= self.pos:
            self.put(self.dq.popleft()[1]); return True
        return False
    def flush_dma(self, tag):
        def has():
            return any(isinstance(x, tuple) and x[1] == tag for _, it in self.dq for x in it)
        while has():
            assert self.dq[0][0] <= self.pos, (tag, self.pos, self.dq[0])
            self.put(self.dq.popleft()[1])
    def run(self, L, every=30):
        c = 0
        for cost, x in L:
            self.put([x]); c += cost
            if c >= every: c = 0; self.tick()
    def wread(self, N, hf):
        G = N // 20; ks = (N % 20) // 5; t = N % 5
        off = RING + (G % 5) * SLOT + ks * 5120 + hf * 2560 + 8 * t
        hi = off >= 51200
        s = A_RING + (N % D) * 4 + 2 * hf
        self.p(f"ds_read_b64_tr_b16 a[{s}:{s+1}], v{V_WT + hi} offset:{off - 51200*hi}", ('F', N))
    def group_sync(self, G):
        self.flush_dma(('W', G))
        self.p.wait(vm=[('W', G)])
        self.p("s_barrier")
    def xread(self, pu, k):
        ksub, rt = divmod(k, 2)
        if k == 0:
            self.flush_dma(('X', pu)); self.p.wait(vm=[('X', pu)])
        a = ((2 * pu + ksub) * 2 + rt) * 4
        self.p(f"ds_read_b128 {aq(a)}, v{V_XR+ksub} offset:{(pu % 3)*4096 + rt*2048}", ('XR', pu))
    def prime(self, ps, sync=True):
        if sync: self.group_sync(ps * 5)
        for n in range(D - 1):
            self.wread(ps * 100 + n, 0); self.wread(ps * 100 + n, 1)
    def gemm_pass(self, ps, accb, bop, fill=None, hooks=None, last=False, pace=None, sync=True, frange=(0, 100), hooks0=None):
        p = self.p
        fill = deque(fill or []); hooks = hooks or {}; hooks0 = hooks0 or {}
        N0 = ps * 100
        p.wait(lg=[('F', N0), ('XR', 0)])
        pace = pace or (lambda n: 0)
        for n in range(100):
            self.pos = N0 + n
            ks, t = divmod(n, 5)
            s = A_RING + ((N0 + n) % D) * 4
            M = n + D - 1
            look = M < 100 or not last
            a = acc(accb, t, 0)
            p(f"{MF} {vq(a)}, {aq(s)}, {bop(ks, 0)}, {'0' if ks == 0 else vq(a)}")
            k0 = len(p.ins)
            if n < 99:
                tg = [('F', N0 + n + 1)]
                if ps == 0 and (n + 1) % 10 == 0: tg.append(('XR', (n + 1) // 10))
                p.wait(lg=tg)
            if n in hooks0: self.put(hooks0[n])
            if look:
                if M % 20 == 0 and sync: self.group_sync((N0 + M) // 20)
                if len(p.ins) == k0: p("s_nop 0")
                self.wread(N0 + M, 0); self.wread(N0 + M, 1)
            elif fill and n >= frange[0]: self.gap(fill, 2)
            a = acc(accb, t, 1)
            p(f"{MF} {vq(a)}, {aq(s)}, {bop(ks, 1)}, {'0' if ks == 0 else vq(a)}")
            self.pos = N0 + n + 1
            self.stamp('n%d' % (N0 + n))
            did = 0
            for _ in range(pace(n)): did += self.tick()
            if n in hooks: self.put(hooks[n])
            if fill and n >= frange[0]:
                left = sum(c for c, _ in fill)
                gaps = sum(1 for k in range(n, frange[1]) if not pace(k)) + (min(D - 1, 99 - n) if last and frange[1] == 100 else 0)
                bud = 0 if did else 2
                if left > 2 * gaps: bud += 2
                self.gap(fill, bud)
        while fill: self.put([fill.popleft()[1]])
        self.pos = N0 + 100
    def gap(self, fill, bud):
        first = True
        while fill:
            c, x = fill[0]
            solo = isinstance(x, tuple)
            if c > bud or (solo and not first): break
            fill.popleft(); self.put([x]); bud -= c
            if solo: break
            if c: first = False
    def cvt20(self, src, dst):
        return [(1, f"v_cvt_pk_bf16_f32 v{dst+i}, v{src+2*i}, v{src+2*i+1}") for i in range(10)]
    def phiA_parts(self, x, e, m, name, isq):
        P = {}
        kb = e + 28
        P['cvt'] = self.cvt20(x, kb) + [(1, f"v_mov_b32 v{kb+10}, 0"), (1, f"v_mov_b32 v{kb+11}, 0")]
        P['mf'] = [(2, f"{MF} {vq(x+4*t)}, {aq(A_PHI + (t*3+u)*4)}, {vq(kb+4*u)}, {'0' if u == 0 else vq(x+4*t)}") for t in range(5) for u in range(3)]
        P['exp'] = [(2, f"v_exp_f32 v{e+i}, v{x+i}") for i in range(20)] + [(2, f"v_exp_f32 v{e+20+i}, -v{x+i}") for i in range(20)]
        def sums():
            L = [f"v_pk_add_f32 v[{m+2*h}:{m+2*h+1}], v[{e+20*h}:{e+20*h+1}], v[{e+20*h+2}:{e+20*h+3}]" for h in range(2)]
            L += [f"v_pk_add_f32 v[{m+2*h}:{m+2*h+1}], v[{m+2*h}:{m+2*h+1}], v[{e+20*h+2*i}:{e+20*h+2*i+1}]" for i in range(2, 10) for h in range(2)]
            L += [f"v_add_f32 v{m+2*h}, v{m+2*h}, v{m+2*h+1}" for h in range(2)]
            return L
        nm = name + self.sfx
        L = sums() + [f"v_max_f32 v{m+1}, v{m}, v{m+2}", f"v_cmp_ngt_f32 vcc, 0x5d800000, v{m+1}"]
        if not isq: L.append(f"v_rcp_f32 v{m+4}, v{m}")
        L += [f"v_rcp_f32 v{m+2}, v{m+2}", [f"s_cbranch_vccnz {nm}_slow", f"{nm}_back:"]]
        o = Prog()
        o(f"{nm}_slow:")
        o(f"v_max3_f32 v{m}, v{x}, v{x+1}, v{x+2}"); o(f"v_min3_f32 v{m+1}, v{x}, v{x+1}, v{x+2}")
        for i in range(3, 19, 2):
            o(f"v_max3_f32 v{m}, v{m}, v{x+i}, v{x+i+1}"); o(f"v_min3_f32 v{m+1}, v{m+1}, v{x+i}, v{x+i+1}")
        o(f"v_max_f32 v{m}, v{m}, v{x+19}"); o(f"v_min_f32 v{m+1}, v{m+1}, v{x+19}")
        for i in range(20): o(f"v_sub_f32 v{e+i}, v{x+i}, v{m}"); o(f"v_sub_f32 v{e+20+i}, v{m+1}, v{x+i}")
        for i in range(40): o(f"v_exp_f32 v{e+i}, v{e+i}")
        for y in sums(): o(y)
        if not isq: o(f"v_rcp_f32 v{m+4}, v{m}")
        o(f"v_rcp_f32 v{m+2}, v{m+2}"); o("s_nop 1"); o(f"s_branch {nm}_back")
        self.ool.append(o.finalize())
        if isq: L.append(f"v_mul_f32 v{m+2}, v{m+2}, v{m}")
        else: L += [f"v_pk_mul_f32 v[{e+2*i}:{e+2*i+1}], v[{e+2*i}:{e+2*i+1}], v[{m+4}:{m+5}] op_sel_hi:[1,0]" for i in range(10)]
        L += [f"v_pk_mul_f32 v[{e+20+2*i}:{e+21+2*i}], v[{e+20+2*i}:{e+21+2*i}], v[{m+2}:{m+3}] op_sel_hi:[1,0]" for i in range(10)]
        P['norm'] = [(1, y) for y in L]
        P['out'] = [(1, f"v_cvt_pk_bf16_f32 v{x+i}, v{e+2*i}, v{e+2*i+1}") for i in range(20)]
        return P
    def weave(self, mf, va, per=2):
        va = deque(va); L = []
        for x in mf:
            L.append(x); b = per
            while va and va[0][0] <= b: b -= va[0][0]; L.append(va.popleft())
        return L + list(va)
    def phiB(self, x, e, packed):
        L = []
        if packed: L += [(1, f"v_pk_mul_f32 v[{e+2*i}:{e+2*i+1}], v[{x+2*i}:{x+2*i+1}], s[{S_L2E}:{S_NL2E}] op_sel_hi:[1,0]") for i in range(10)]
        else: L += [(1, f"v_mul_f32 v{e+i}, s{S_L2E}, v{x+i}") for i in range(20)]
        L += [(2, f"v_exp_f32 v{e+i}, v{e+i} clamp") for i in range(20)]
        L += [(1, f"v_max_f32 v{x+i}, {EPS}, v{x+i}") for i in range(20)]
        if packed: L += [(1, f"v_pk_add_f32 v[{e+2*i}:{e+2*i+1}], v[{e+2*i}:{e+2*i+1}], v[{x+2*i}:{x+2*i+1}]") for i in range(10)]
        else: L += [(1, f"v_add_f32 v{e+i}, v{e+i}, v{x+i}") for i in range(20)]
        L += self.cvt20(e, x)
        return L
    def checked(self, name, loads, check, tag):
        nm = name + self.sfx
        iss = [(x, tag) if x.startswith('buffer') else x for x in loads]
        chk = [(0, lambda: self.p.wait(vm=[tag]))] + [(1, x) for x in check] + [(1, [f"s_cbranch_vccnz {nm}_retry", f"{nm}_ok:"])]
        o = Prog()
        o(f"{nm}_retry:"); o(f"s_mov_b32 s{S_SPIN}, 0"); o(f"{nm}_loop:")
        if self.o.get('stamps'): o(f"s_add_u32 s95, s95, {dict(L_xc=1000000, L_h1=10000, L_h2=100, L_h3=1)[name]}")
        for x in loads: o(x)
        o("s_waitcnt vmcnt(0)")
        for x in check: o(x)
        o(f"s_cbranch_vccz {nm}_ok")
        o(f"s_add_u32 s{S_SPIN}, s{S_SPIN}, 1"); o(f"s_cmp_lt_u32 s{S_SPIN}, {SPIN_MAX}"); o(f"s_cbranch_scc1 {nm}_loop")
        o(f"s_branch {nm}_ok")
        self.ool.append(o.finalize())
        return iss, chk
    def body(self):
        p = self.p; A = self.A; F = self.F; br = 0 if A else 1; o = self.o
        t = TMP
        p(f"L_body{self.sfx}:")
        K = S_KA
        if A:
            p(f"s_load_dwordx8 s[{K}:{K+7}], s[0:1], 0")
        else:
            p(f"s_load_dwordx4 s[{K}:{K+3}], s[0:1], 32")
            p(f"s_load_dwordx2 s[{K+6}:{K+7}], s[0:1], 48")
        kx, kw, kphi, kwo, kout, kws = K, K + 2, K + 4, K + 6, K + 8, K + 10
        p(f"s_load_dwordx2 s[{kout}:{kout+1}], s[0:1], 56")
        p(f"s_load_dwordx2 s[{kws}:{kws+1}], s[0:1], 72")
        if o.get('stamps'): p("s_memtime s[96:97]"); p("s_mov_b32 s95, 0")
        if o.get('stamps') or o.get('amp'): p("s_memrealtime s[98:99]")
        p.raw(f"""
        s_getpc_b64 s[60:61]
        s_bfe_u32 s{S_HG}, s2, 0x30003
        v_and_b32 v{V_LANE}, 63, v0
        v_lshrrev_b32 v{t}, 6, v0
        s_lshl_b32 s{T0}, s{S_HG}, 12
        v_lshlrev_b32 v{V_L128}, 7, v{V_LANE}
        v_readfirstlane_b32 s{S_W}, v{t}
        s_add_u32 s60, s60, s{T0}
        s_addc_u32 s61, s61, 0
        v_lshl_add_u32 v{t+1}, v{t}, 10, v{V_L128}
        s_mov_b64 exec, 0xff
        """)
        p(f"global_load_dword v{V_DUMP}, v{t+1}, s[60:61]", 'cpf')
        p("s_mov_b64 exec, -1")
        ra, rbm, rdiv = o.get('rot', (10, 10, 4))
        p.raw(f"""
        s_and_b32 s{S_RB}, s2, 3
        s_lshl_b32 s{S_RB}, s{S_RB}, 2
        s_lshr_b32 s{T0}, s2, 6
        s_add_u32 s{S_RB}, s{S_RB}, s{T0}
        s_mul_i32 s{T0}, s{S_HG}, {ra}
        s_mul_i32 s{T1}, s{S_RB}, {rbm}
        s_add_u32 s{T0}, s{T0}, s{T1}
        s_lshr_b32 s{T0}, s{T0}, {rdiv.bit_length()-1}
        s_mul_i32 s{T1}, s{T0}, 6554
        s_lshr_b32 s{T1}, s{T1}, 16
        s_mul_i32 s{T1}, s{T1}, 10
        s_sub_u32 s{T3}, s{T0}, s{T1}
        s_lshl_b32 s{S_XU}, s{T3}, 7
        s_lshl_b32 s{T0}, s{S_RB}, 2
        s_add_u32 s{T0}, s{T0}, s{S_W}
        s_mul_i32 s{S_XBASE}, s{T0}, 40960
        s_mul_i32 s{S_LW}, s{S_W}, 5120
        s_mul_i32 s{S_LR}, s{S_W}, {RW}
        s_add_u32 s{S_LR}, s{S_LR}, {RBASE}
        v_lshrrev_b32 v{t}, 3, v{V_LANE}
        v_mul_u32_u24 v{t}, 1280, v{t}
        v_lshrrev_b32 v{t+1}, 4, v{V_LANE}
        v_xor_b32 v{t+1}, v{t+1}, v{V_LANE}
        v_and_b32 v{t+1}, 7, v{t+1}
        v_lshl_add_u32 v{V_XO}, v{t+1}, 4, v{t}
        v_xor_b32 v{t+2}, 64, v{V_XO}
        v_add_u32 v{V_XO+1}, {9216}, v{t+2}
        v_add_u32 v{V_XO+2}, {2*9216}, v{V_XO}
        v_add_u32 v{V_XO+3}, {3*9216}, v{t+2}
        s_lshr_b32 s{T0}, s{S_W}, 1
        s_add_u32 s{T0}, s{T0}, s{T3}
        s_and_b32 s{T1}, s{S_W}, 1
        s_mul_i32 s{T1}, s{T1}, {32*3840}
        s_mul_i32 s{T2}, s{S_HG}, 160
        s_add_u32 s{T1}, s{T1}, s{T2}
        s_mov_b32 s{SX+2}, 2621440
        s_mov_b32 s{SX+3}, 0x20000
        s_mov_b32 s{SW+2}, 2457600
        s_mov_b32 s{SW+3}, 0x20000
        """)
        def wrow(g):
            p.raw(f"""
            s_cmp_ge_u32 s{T0}, 10
            s_cselect_b32 s{T2}, 10, 0
            s_sub_u32 s{T0}, s{T0}, s{T2}
            s_mul_i32 s{T2}, s{T0}, {64*3840}
            s_add_u32 s{S_WROW+g}, s{T2}, s{T1}
            s_add_u32 s{T0}, s{T0}, 2
            """)
        wrow(0)
        RH = TMP + 10
        def woff(j):
            b = RH + 5 * j
            p.raw(f"""
            v_add_u32 v{t}, {64*j}, v{V_LANE}
            v_mul_u32_u24 v{b+4}, 6554, v{t}
            v_lshrrev_b32 v{b+4}, 16, v{b+4}
            v_mul_u32_u24 v{t+2}, 10, v{b+4}
            v_sub_u32 v{b+3}, v{t}, v{t+2}
            v_bfe_u32 v{b}, v{b+4}, 2, 2
            v_lshrrev_b32 v{b+1}, 4, v{b+4}
            v_and_b32 v{b+2}, 3, v{b+4}
            v_lshl_add_u32 v{t}, v{b}, 1, v{b+1}
            v_lshl_add_u32 v{t}, v{t}, 2, v{b+2}
            v_mul_u32_u24 v{t}, 3840, v{t}
            v_lshl_add_u32 v{V_WO+j}, v{b+3}, 4, v{t}
            """)
            if 0 < j < 4: p(f"v_subrev_u32 v{V_WO+j}, {1024*j}, v{V_WO+j}")
        woff(0); woff(1)
        p.raw(f"""
        s_waitcnt lgkmcnt(0)
        s_mov_b32 s{SX}, s{kx}
        s_mov_b32 s{SX+1}, s{kx+1}
        s_mov_b32 s{SW}, s{kw}
        s_mov_b32 s{SW+1}, s{kw+1}
        """)
        self.put(self.dma_x(0))
        p(f"s_load_dword s{S_NONCE}, s[{kws}:{kws+1}], {br*128}")
        w0 = self.dma_w(0)
        self.put(w0[0:2]); woff(2); self.put(w0[2]); woff(3); self.put(w0[3]); woff(4); self.put(w0[4])
        for g in range(1, 5): wrow(g)
        self.q(0, self.dma_x(1))
        p.raw(f"""
        s_mov_b32 s{SWO}, s{kwo}
        s_mov_b32 s{SWO+1}, s{kwo+1}
        s_mov_b32 s{SWO+2}, 819200
        s_mov_b32 s{SWO+3}, 0x20000
        s_mov_b32 s{SWS}, s{kws}
        s_mov_b32 s{SWS+1}, s{kws+1}
        s_mov_b32 s{SWS+2}, {WS_SIZE}
        s_mov_b32 s{SWS+3}, 0x20000
        s_mov_b32 s{SOUT}, s{kout}
        s_mov_b32 s{SOUT+1}, s{kout+1}
        s_mov_b32 s{SOUT+2}, 5242880
        s_mov_b32 s{SOUT+3}, 0x20000
        s_lshl_b32 s{S_HEAD}, s{S_HG}, 2
        s_add_u32 s{S_HEAD}, s{S_HEAD}, s{S_W}
        v_lshlrev_b32 v{V_LIN}, 4, v{V_LANE}
        """)
        if A:
            p.raw(f"""
            s_mov_b32 s{SPHI}, s{kphi}
            s_mov_b32 s{SPHI+1}, s{kphi+1}
            s_mov_b32 s{SPHI+2}, 25600
            s_mov_b32 s{SPHI+3}, 0x20000
            """)
            self.q(0, [[f"s_mul_i32 s{S_WS}, s{S_HEAD}, 800",
                        (f"buffer_load_dwordx4 {vq(TMP+96)}, v{V_LIN}, {srd(SPHI)}, s{S_WS} offen", 'wphi')]])
        self.q(0, self.dma_w(1)); self.q(0, self.dma_x(2))
        G_, I_, R_, C_ = t, t + 1, t + 2, t + 3
        S = []
        def raw(txt):
            for l in txt.split('\n'):
                if l.strip(): S.append((1, l.strip()))
        raw(f"""
        v_lshrrev_b32 v{G_}, 4, v{V_LANE}
        v_and_b32 v{I_}, 15, v{V_LANE}
        v_bfe_u32 v{R_}, v{V_LANE}, 2, 2
        v_and_b32 v{C_}, 3, v{V_LANE}
        v_lshrrev_b32 v{t+4}, 1, v{I_}
        v_xor_b32 v{t+4}, v{t+4}, v{G_}
        v_lshlrev_b32 v{t+5}, 7, v{I_}
        v_lshl_add_u32 v{t+4}, v{t+4}, 4, v{t+5}
        v_add_u32 v{V_XR}, s{S_LR}, v{t+4}
        v_xor_b32 v{t+4}, 64, v{t+4}
        v_add_u32 v{V_XR+1}, s{S_LR}, v{t+4}
        v_lshrrev_b32 v{t+4}, 2, v{V_LANE}
        v_mul_u32_u24 v{t+5}, 160, v{t+4}
        v_mul_u32_u24 v{t+6}, 40, v{C_}
        v_add_u32 v{V_WT}, v{t+5}, v{t+6}
        v_add_u32 v{V_WT+1}, 51200, v{V_WT}
        v_mul_u32_u24 v{t+5}, 120, v{I_}
        v_mul_u32_u24 v{t+6}, 3840, v{G_}
        v_add3_u32 v{V_PW}, v{t+5}, v{t+6}, s{S_LR}
        v_mul_u32_u24 v{t+6}, 40, v{G_}
        v_mul_u32_u24 v{t+7}, {OUTS}, v{I_}
        s_mul_i32 s{T2}, s{S_W}, {32*OUTS}
        s_add_u32 s{T2}, s{T2}, {OUTL}
        v_add3_u32 v{V_OW}, v{t+7}, v{t+6}, s{T2}
        v_and_b32 v{t+5}, 7, v{t+4}
        v_lshrrev_b32 v{t+6}, 5, v{V_LANE}
        v_lshlrev_b32 v{t+6}, 1, v{t+6}
        v_lshl_add_u32 v{t+5}, v{t+5}, 2, v{t+6}
        v_mul_u32_u24 v{t+5}, 120, v{t+5}
        s_mul_i32 s{T0}, s{S_W}, 3840
        s_add_u32 s{T0}, s{T0}, {RBASE}
        v_add_u32 v{V_KA1}, s{T0}, v{t+5}
        v_lshl_add_u32 v{V_KB}, v{C_}, 3, v{V_KA1}
        s_mov_b32 s{S_L2E}, 0x3fb8aa3b
        s_mov_b32 s{S_NL2E}, 0xbfb8aa3b
        s_mov_b32 s{S_PERM}, 0x07060302
        s_and_b32 s{T3}, s{S_HG}, 1
        """)
        for j in range(5):
            b = RH + 5 * j
            raw(f"""
            v_mul_u32_u24 v{t+4}, 20, v{b}
            v_add_u32 v{t+4}, v{t+4}, v{b+2}
            v_lshl_add_u32 v{t+5}, v{b+1}, 2, v{t+4}
            v_xor_b32 v{t+6}, s{T3}, v{b+1}
            v_mul_u32_u24 v{t+6}, 80, v{t+6}
            v_add3_u32 v{t+6}, v{t+6}, v{t+4}, 16
            v_mul_u32_u24 v{t+5}, 1280, v{t+5}
            v_mul_u32_u24 v{t+6}, 1280, v{t+6}
            v_lshl_add_u32 v{V_OF+j}, v{b+3}, 4, v{t+5}
            v_lshl_add_u32 v{V_OL+j}, v{b+3}, 4, v{t+6}
            v_mul_u32_u24 v{t+5}, {OUTS}, v{b+4}
            v_lshl_add_u32 v{t+5}, v{b+3}, 4, v{t+5}
            v_add_u32 v{V_ORD+j}, s{T2}, v{t+5}
            v_mul_u32_u24 v{t+5}, 2560, v{b+4}
            v_lshl_add_u32 v{V_OG+j}, v{b+3}, 4, v{t+5}
            """)
            if 0 < j < 4:
                raw(f"v_subrev_u32 v{V_OF+j}, {1024*j}, v{V_OF+j}\nv_subrev_u32 v{V_OL+j}, {1024*j}, v{V_OL+j}")
        raw(f"""
        s_lshr_b32 s{T0}, s{S_W}, 1
        s_xor_b32 s{T0}, s{T0}, s{T3}
        s_mul_i32 s{T0}, s{T0}, 80
        s_and_b32 s{T1}, s{S_W}, 1
        s_lshl_b32 s{T1}, s{T1}, 3
        s_add_u32 s{T0}, s{T0}, s{T1}
        s_mul_i32 s{T0}, s{T0}, 1280
        s_mul_i32 s{T2}, s{S_HG}, 160
        s_add_u32 s{T0}, s{T0}, s{T2}
        s_lshr_b32 s{S_SPIN}, s{S_HG}, 1
        s_add_u32 s{T1}, s{S_SPIN}, s{S_W}
        s_and_b32 s{T1}, s{T1}, 3
        s_mul_i32 s{T1}, s{T1}, {160*1280}
        s_add_u32 s{S_WOROW+4}, s{T1}, s{T2}
        s_lshl_b32 s{S_OUT}, s{S_XBASE}, 1
        s_add_u32 s{S_OUT}, s{S_OUT}, s{T2}
        s_add_u32 s{S_OUT}, s{S_OUT}, {br*1280}
        s_add_u32 s{S_OB}, s{S_XBASE}, {WS_O + br*64*40960}
        """)
        for g in range(4):
            raw(f"""
            s_add_u32 s{T1}, s{S_SPIN}, {g}
            s_and_b32 s{T1}, s{T1}, 3
            s_mul_i32 s{T2}, s{T1}, {160*1280}
            s_add_u32 s{S_WOROW+g}, s{T2}, s{T0}
            s_lshl_b32 s{T1}, s{T1}, 1
            s_add_u32 s{T1}, s{T1}, s{T3}
            s_mul_i32 s{T2}, s{T1}, 5120
            s_add_u32 s{S_OP+2*g}, s{T2}, s{S_OB}
            s_xor_b32 s{T1}, s{T1}, 1
            s_mul_i32 s{T2}, s{T1}, 5120
            s_add_u32 s{S_OP+2*g+1}, s{T2}, s{S_OB}
            """)
        SH = 8 if A else 7
        raw(f"""
        s_lshl_b32 s{T0}, s{S_RB}, 2
        s_add_u32 s{T0}, s{T0}, s{S_W}
        s_lshl_b32 s{S_FLAG}, s{T0}, 7
        s_add_u32 s{S_FLAG}, s{S_FLAG}, {WS_FLAG + br*64*128}
        s_lshl_b32 s{T0}, s{S_HEAD}, 16
        s_add_u32 s{T0}, s{T0}, {WS_P1 + br*32*65536}
        s_lshl_b32 s{T1}, s{S_RB}, 12
        s_add_u32 s{S_P1ST}, s{T0}, s{T1}
        s_min_u32 s{T1}, s{S_RB}, 14
        s_lshl_b32 s{T1}, s{T1}, {SH}
        s_add_u32 s{S_P1LD}, s{T0}, s{T1}
        s_lshl_b32 s{T0}, s{S_HEAD}, 12
        s_add_u32 s{S_P2LD}, s{T0}, {WS_P2 + br*32*4096}
        s_add_u32 s{S_P2ST}, s{S_P2LD}, s{T1}
        v_mul_u32_u24 v{t+4}, {F}, v{G_}
        v_add_lshl_u32 v{V_P1ST}, v{t+4}, v{I_}, 4
        v_cmp_gt_u32 vcc, 4, v{I_}
        v_cndmask_b32 v{V_KEEP}, 0, -1, vcc
        v_mov_b32 v{t+4}, 0x3f803f80
        v_cmp_eq_u32 vcc, 4, v{I_}
        v_cndmask_b32 v{V_ONE}, 0, v{t+4}, vcc
        v_and_b32 v{t+4}, 7, v{V_LANE}
        v_lshlrev_b32 v{V_F8}, 2, v{t+4}
        s_lshl_b32 s{T0}, s{S_HG}, 2
        v_mov_b32 v{V_FOWN}, s{T0}
        v_lshlrev_b32 v{V_ZA}, 3, v0
        v_add_u32 v{V_ZA}, {RBASE+7680}, v{V_ZA}
        """)
        if A:
            raw(f"""
            v_lshlrev_b32 v{t+5}, 12, v{G_}
            v_lshl_add_u32 v{V_P1LD}, v{I_}, 4, v{t+5}
            v_lshlrev_b32 v{V_P2ST}, 2, v{V_LANE}
            """)
        else:
            raw(f"""
            v_lshrrev_b32 v{t+5}, 3, v{V_LANE}
            v_lshlrev_b32 v{t+5}, 12, v{t+5}
            v_lshl_add_u32 v{V_P1LD}, v{t+4}, 4, v{t+5}
            v_lshl_add_u32 v{V_P2ST}, v{G_}, 5, v{V_F8}
            """)
        RS = 80 if A else 48
        HS = 24 * RS
        NQ = 240 if A else 120
        NI = 4 if A else 2
        raw(f"s_mul_i32 s{T0}, s{S_W}, {HS}\ns_add_u32 s{T0}, s{T0}, {RBASE}")
        u = t + 4
        for ii in range(NI):
            raw(f"v_add_u32 v{u}, {64*ii}, v{V_LANE}")
            if ii == NI - 1:
                raw(f"""v_subrev_u32 v{u+1}, 64, v{u}
                v_cmp_gt_u32 vcc, {NQ}, v{u}
                v_cndmask_b32 v{u}, v{u+1}, v{u}, vcc
                v_lshlrev_b32 v{V_GAL}, 4, v{u}""")
            if A:
                raw(f"""
                v_lshrrev_b32 v{u+1}, 4, v{u}
                v_and_b32 v{u+2}, 3, v{u}
                v_lshl_add_u32 v{u+1}, v{u+1}, 2, v{u+2}
                v_bfe_u32 v{u+2}, v{u}, 2, 2
                v_mul_u32_u24 v{u+3}, 6554, v{u+1}
                v_lshrrev_b32 v{u+3}, 16, v{u+3}
                v_mul_u32_u24 v{u+4}, 10, v{u+3}
                """)
            else:
                raw(f"""
                v_lshrrev_b32 v{u+1}, 3, v{u}
                v_and_b32 v{u+2}, 1, v{u}
                v_lshl_add_u32 v{u+1}, v{u+1}, 1, v{u+2}
                v_bfe_u32 v{u+2}, v{u}, 1, 2
                v_mul_u32_u24 v{u+3}, 13108, v{u+1}
                v_lshrrev_b32 v{u+3}, 16, v{u+3}
                v_mul_u32_u24 v{u+4}, 5, v{u+3}
                """)
            raw(f"""
            v_sub_u32 v{u+1}, v{u+1}, v{u+4}
            v_lshl_add_u32 v{u+3}, v{u+3}, 2, v{u+2}
            v_mul_u32_u24 v{u+3}, {RS}, v{u+3}
            v_lshl_add_u32 v{u+3}, v{u+1}, 3, v{u+3}
            v_add_u32 v{V_LA+ii}, s{T0}, v{u+3}
            """)
        raw(f"""
        v_cmp_eq_u32 vcc, v{G_}, v{R_}
        v_mul_u32_u24 v{u}, {HS}, v{G_}
        v_mul_u32_u24 v{u+1}, {RS}, v{C_}
        v_add_u32 v{u}, v{u}, v{u+1}
        v_add_u32 v{u}, {RBASE}, v{u}
        v_mov_b32 v{u+1}, {RBASE+7680}
        v_cndmask_b32 v{V_FR2}, v{u+1}, v{u}, vcc
        """)
        if A:
            raw(f"""
            v_mov_b32 v{t+8}, 0
            v_mov_b32 v{t+9}, 0
            v_mov_b32 v{t+10}, 0
            v_mov_b32 v{t+11}, 0
            v_add_u32 v{TMP+100}, s{S_LR}, v{V_LIN}
            ds_write_b128 v{TMP+100}, {vq(t+8)} offset:13312
            v_mul_u32_u24 v{t+4}, {RW}, v{G_}
            v_mul_u32_u24 v{t+5}, 40, v{R_}
            v_add_u32 v{t+4}, v{t+4}, v{t+5}
            v_add_u32 v{t+4}, {RBASE+12288}, v{t+4}
            s_add_u32 s{T0}, s{S_LR}, 13312
            v_mov_b32 v{t+5}, s{T0}
            v_cmp_eq_u32 vcc, v{C_}, v{G_}
            v_cndmask_b32 v{V_FR}, v{t+5}, v{t+4}, vcc
            """)
            for tt in range(5):
                a = A_PHI + (tt * 3 + 2) * 4
                raw(f"v_accvgpr_write_b32 a{a+2}, 0\nv_accvgpr_write_b32 a{a+3}, 0")
        self.run(S, every=o.get('proev', 60))
        while self.tick(): pass
        p.raw(f"""
        s_getreg_b32 s{T0}, hwreg(HW_REG_XCC_ID, 0, 4)
        s_waitcnt lgkmcnt(0)
        s_add_u32 s{S_NONCE}, s{S_NONCE}, 0x9e3779b1
        s_lshl_b32 s{T0}, s{T0}, 28
        s_xor_b32 s{S_XCCV}, s{T0}, s{S_NONCE}
        v_mov_b32 v{V_NONCE}, s{S_NONCE}
        v_mov_b32 v{t}, s{S_XCCV}
        s_add_u32 s{T0}, s{S_FLAG}, {WS_XCC - WS_FLAG}
        s_mov_b64 exec, 1
        """)
        p(f"buffer_store_dword v{t}, v{V_FOWN}, {srd(SWS)}, s{T0} offen sc1", 'xcc')
        p("s_mov_b64 exec, -1")
        self.stamp()
        xb = lambda ks, rt: aq((ks * 2 + rt) * 4)
        for pu in range(0, 7):
            if (pu + 3) % 2 == 0: self.q(0, self.dma_w((pu + 3) // 2))
            self.q(10 * pu, self.dma_x(pu + 3))
        for G in range(5, 10): self.q(10**6 + 1 if G % 5 >= 3 else 20 * (G - 3) - 4, self.dma_w(G))
        for G in range(10, 20): self.q(10**6 + G, self.dma_w(G))
        hooks = {}
        for pu in range(1, 10):
            hooks[10 * pu - 5] = [lambda pu=pu: self.xread(pu, 0), lambda pu=pu: self.xread(pu, 1)]
            hooks[10 * pu - 4] = [lambda pu=pu: self.xread(pu, 2), lambda pu=pu: self.xread(pu, 3)]
        if A:
            rd = [(tt, u_, hf) for tt in range(5) for u_ in range(3) for hf in range(2 if u_ < 2 else 1)]
            w = TMP + 96; u2 = TMP + 102
            sc = [lambda: p.wait(vm=['wphi'])]
            for j in range(4):
                sc += [f"v_lshlrev_b32 v{u2}, 16, v{w+j}", f"v_and_b32 v{u2+1}, 0xffff0000, v{w+j}", f"v_mul_f32 v{u2}, s{S_L2E}, v{u2}",
                       f"v_mul_f32 v{u2+1}, s{S_L2E}, v{u2+1}", f"v_cvt_pk_bf16_f32 v{w+j}, v{u2}, v{u2+1}"]
            hooks[8] = sc + [(f"ds_write_b128 v{TMP+100}, {vq(w)} offset:12288", 'phw')]
            hooks[14] = [lambda: p.wait(lg=['phw'])]
            slots = [n for n in range(21, 90) if n % 10 in (0, 1, 2, 3)][:25]
            for k, n in enumerate(slots):
                hooks[n] = [(f"ds_read_b64_tr_b16 a[{A_PHI + (tt*3+u_)*4 + 2*hf}:{A_PHI + (tt*3+u_)*4 + 2*hf + 1}], v{V_FR} offset:{(8*u_+4*hf)*40 + 8*tt}", 'phi')
                            for tt, u_, hf in rd[k:k+1]]
        XV = TMP + 92
        iss, chk = self.checked("L_xc", ["s_mov_b64 exec, 0xff", f"s_add_u32 s{T0}, s{S_FLAG}, {WS_XCC - WS_FLAG}",
                                         f"buffer_load_dword v{XV}, v{V_F8}, {srd(SWS)}, s{T0} offen sc1", "s_mov_b64 exec, -1"],
                                [f"v_xor_b32 v{XV+1}, s{S_NONCE}, v{XV}", f"v_lshlrev_b32 v{XV+1}, 4, v{XV+1}",
                                 "s_mov_b64 exec, 0xff", f"v_cmp_ne_u32 vcc, 0, v{XV+1}", "s_mov_b64 exec, -1"], 'xl')
        hooks[58] = iss
        hooks[88] = [x for _, x in chk] + ["s_mov_b64 exec, 0xff", f"v_cmp_ne_u32 vcc, s{S_XCCV}, v{XV}", "s_mov_b64 exec, -1",
                                                     f"s_mov_b32 s{S_FAST}, vcc_lo"]
        self.group_sync(0)
        for k in range(4): self.xread(0, k)
        self.prime(0, sync=False)
        kp = o.get('kpace', 3)
        self.gemm_pass(0, ACC_K, xb, hooks=hooks, last=True, pace=lambda n: (1 if n % 3 != 2 else 0) if n < 69 else (1 if n % kp == 0 else 0))
        p("s_barrier")
        self.stamp()
        E0, E1, M0_, M1_ = TMP, TMP + 40, TMP + 80, TMP + 86
        x0, x1 = acc(ACC_K, 0, 0), acc(ACC_K, 0, 1)
        self.release(1)
        wr = lambda rt, x, n, o8: [(2, (f"ds_write_b64 v{V_PW}, {vq(x+2*j, 2)} offset:{rt*1920 + o8 + 8*j}", 'pw')) for j in range(n)]
        def mixw(out, w): return [y for j in range(len(w)) for y in out[2*j:2*j+2] + [w[j]]]
        burst = lambda L: [(0, [x for _, x in L])]
        dm = (2, lambda: self.tick())
        if A:
            P0 = self.phiA_parts(x0, E0, M0_, "L_k0", False); P1 = self.phiA_parts(x1, E1, M1_, "L_k1", False)
            pr = [(0, lambda: self.group_sync(6))] + [(1, lambda n=n, hf=hf: self.wread(100 + n, hf)) for n in range(D - 1) for hf in range(2)]
            self.put([x for _, x in [dm] + P0['cvt'] + self.weave(P0['mf'], [dm] + P1['cvt'] + [dm] + P0['exp'][:4]) + self.weave(P1['mf'], [dm] + P0['exp'][4:12] + [dm] + pr)])
            fill = P0['exp'][12:] + burst(P0['norm']) + mixw(P0['out'], wr(0, x0, 10, 0)) + P1['exp'] + burst(P1['norm']) + mixw(P1['out'], wr(1, x1, 10, 0))
            self.stamp('head')
        else:
            fill = []
            for rt, x, e in ((0, x0, E0), (1, x1, E1)):
                L = self.phiB(x, e, False)
                fill += L[:-10] + mixw(L[-10:], wr(rt, x, 5, 0))
            self.group_sync(6); self.prime(1, sync=False)
        hooks = {}
        for g in range(4): hooks.setdefault(20 * g + 18, []).extend([lambda g=g: self.group_sync(7 + g), lambda g=g: self.release(10 + g)])
        vp = o.get('vpace', 4)
        self.gemm_pass(1, ACC_V, xb, fill=fill, hooks=hooks, last=True, sync=False, pace=lambda n: 1 if n % vp == 0 else 0)
        self.stamp()
        VB = TMP
        for rt in range(2):
            c = self.cvt20(acc(ACC_V, 0, rt), VB + 10 * rt)
            for j in range(5):
                p(c[2*j][1]); p(c[2*j+1][1])
                p(f"ds_write_b64 v{V_PW}, {vq(VB+10*rt+2*j, 2)} offset:{rt*1920 + 80 + 8*j}", 'vw')
                if j == 4 and rt == 0: self.tick()
        self.tick()
        p.wait(lg='*')
        self.stamp('kv0')
        self.flush_dma(('W', 11)); p.wait(vm=[('W', 11)])
        self.stamp('kv1')
        p("s_barrier")
        self.stamp('kv2')
        self.release(14)
        NT = 3 if A else 2
        FB = ACC_K
        KV = TMP + 64
        rds = deque()
        def rd(reg, av, off, kk, j):
            for hf in range(2): rds.append((f"ds_read_b64_tr_b16 {vq(reg+2*hf, 2)}, v{av} offset:{kk*RW + hf*120 + off}", ('kv', kk, j)))
        for kk in range(4):
            b = FB + kk * 20
            rd(b, V_KB, 80, kk, 'a')
            for nt in range(NT): rd(b + 8 + 4 * nt, V_KB, 32 * nt, kk, nt)
        for kk in range(4): rd(FB + kk * 20 + 4, V_KA1, 112, kk, 'z')
        def more(k):
            while k > 0 and rds and len(p.lgq) < 15: self.put([rds.popleft()]); k -= 1
        p(f"v_mov_b32 v{TMP+1}, 0xff")
        more(15); self.tick()
        seq = [(kk, nt) for kk in range(4) for nt in range(NT)]
        p.wait(lg=[('kv',) + seq[0]])
        for i_, (kk, nt) in enumerate(seq):
            b = FB + kk * 20
            p(f"{MF} {vq(KV + nt*4)}, {vq(b)}, {vq(b+8+4*nt)}, {'0' if kk == 0 else vq(KV + nt*4)}")
            if i_ + 1 < len(seq): p.wait(lg=[('kv',) + seq[i_ + 1]])
            more(3)
            if i_ % 6 == 5: self.tick()
        assert not rds
        lastm = 0x00ff00ff if A else 0x000f000f
        def pub(mt, nt):
            a = KV + (mt * 3 + nt) * 4
            lo = lastm if nt == NT - 1 else 0xffffffff
            hi = lo if mt == 0 else 0
            L = [(1, f"v_bfi_b32 v{a+j}, v{TMP+1}, s{S_NONCE}, v{a+j}") for j in range(4)]
            st = (f"buffer_store_dwordx4 {vq(a)}, v{V_P1ST}, {srd(SWS)}, s{S_P1ST} offen offset:{(4*mt*F + 16*nt)*16} sc1", 'p1')
            if (lo, hi) == (0xffffffff, 0xffffffff): return L + [(2, st)]
            return L + [(2, [f"s_mov_b32 exec_lo, {hex(lo)}", f"s_mov_b32 exec_hi, {hex(hi)}", st, "s_mov_b64 exec, -1"])]
        p.wait(lg='*')
        self.stamp('kv3')
        for kk in range(4):
            for j in range(4): p(f"v_and_or_b32 v{FB+kk*20+4+j}, v{FB+kk*20+4+j}, v{V_KEEP}, v{V_ONE}")
        mf = [(2, f"{MF} {vq(KV + (3+nt)*4)}, {vq(FB+kk*20+4)}, {vq(FB+kk*20+8+4*nt)}, {'0' if kk == 0 else vq(KV + (3+nt)*4)}") for nt in range(NT) for kk in range(4)]
        pr = [(1, lambda n=n, hf=hf: self.wread(200 + n, hf)) for n in range(D - 1) for hf in range(2)]
        self.put([x for _, x in self.weave(mf, [y for nt in range(NT) for y in pub(0, nt)] + pr)])
        qhead = [y for nt in range(NT) for y in pub(1, nt)]
        self.stamp()
        X = TMP + 8; CK = TMP + 2
        def tagcheck(mask):
            return [f"v_xor_b32 v{CK}, s{S_NONCE}, v{X}"] + [f"v_bitop3_b32 v{CK}, v{CK}, v{X+j}, s{S_NONCE} bitop3:0xf6" for j in range(1, 4 * NI)] + \
                   [f"v_and_b32 v{CK}, {mask}, v{CK}", f"v_cmp_ne_u32 vcc, 0, v{CK}"]
        lds_ = []
        for ii in range(NI):
            lds_ += [f"s_add_u32 s{T0}, s{S_P1LD}, {ii * (65536 // NI)}", f"buffer_load_dwordx4 {vq(X+4*ii)}, v{V_P1LD}, {srd(SWS)}, s{T0} offen sc1"]
        iss, chk = self.checked("L_h1", lds_, tagcheck("0xff"), 'h1')
        red = [f"v_add_f32 v{X+j}, v{X+j}, v{X+4*ii+j}" for ii in range(1, NI) for j in range(4)]
        red += [f"v_permlane32_swap_b32 v{X}, v{X+2}", f"v_permlane32_swap_b32 v{X+1}, v{X+3}", f"v_add_f32 v{X}, v{X}, v{X+2}", f"v_add_f32 v{X+1}, v{X+1}, v{X+3}",
                f"v_mov_b32 v{CK}, 0xffff", f"v_permlane16_swap_b32 v{X}, v{X+1}", f"v_add_f32 v{X}, v{X}, v{X+1}"]
        if not A: red.append(f"v_add_f32_dpp v{X}, v{X}, v{X} row_ror:8 row_mask:0xf bank_mask:0xf")
        red += [f"v_cvt_pk_bf16_f32 v{X}, v{X}, v{X}", f"v_bfi_b32 v{X}, v{CK}, s{S_NONCE}, v{X}"]
        st = (f"buffer_store_dword v{X}, v{V_P2ST}, {srd(SWS)}, s{S_P2ST} offen sc1", 'p2')
        red.append([st] if A else ["s_mov_b32 exec_lo, 0x00ff00ff", "s_mov_b32 exec_hi, 0x00ff00ff", st, "s_mov_b64 exec, -1"])
        n1, n2 = o.get('h1', (62, 84))
        hooks = {n1 + k: iss[2*k:2*k+2] for k in range(NI)}
        qh = deque(qhead)
        for n in range(12): hooks[n] = [lambda: self.gap(qh, 2)]
        for g in range(4): hooks.setdefault(20 * g + 18, []).extend([lambda g=g: self.group_sync(min(12 + g, 14)), lambda g=g: self.release(15 + g)])
        self.gemm_pass(2, ACC_K, xb, fill=chk + [(1, x) for x in red], hooks=hooks, last=True, sync=False, frange=(n2, 100),
                       pace=lambda n: 1 if (n >= 9 and n % (3 if n < o.get('qsw', 24) else o.get('qpace', 5)) == 0 and not n1 <= n < n1 + NI) else 0)
        assert not qh
        p("s_barrier")
        self.release(19)
        self.stamp()
        X = TMP + 96; CK = TMP + 92
        lds_ = [f"buffer_load_dwordx4 {vq(X+4*ii)}, v{V_LIN if ii < NI-1 else V_GAL}, {srd(SWS)}, s{S_P2LD} offen offset:{1024*ii if ii < NI-1 else 0} sc1" for ii in range(NI)]
        iss, chk = self.checked("L_h2", lds_, tagcheck("0xffff"), 'h2')
        pre = [(f"buffer_load_dword v{V_DUMP}, v{V_L128}, {srd(SWS)}, s{S_OP} offen sc1", 'pr'), (f"buffer_load_dword v{V_DUMP}, v{V_F8}, {srd(SWS)}, s{S_FLAG} offen sc1", 'pr')]
        pre = ["s_mov_b32 exec_hi, 0xff", pre[0], "s_mov_b64 exec, 1", pre[1], "s_mov_b64 exec, -1"]
        zw = [f"v_mov_b32 v{CK}, 0", f"v_mov_b32 v{CK+1}, 0", f"ds_write_b64 v{V_ZA}, {vq(CK, 2)}"]
        self.put(zw)
        if o.get('prepos', 0) == 1: self.put(pre)
        if not A:
            for tt in range(6): p(f"v_accvgpr_write_b32 a{40+4*(3*tt+2)+2}, 0"); p(f"v_accvgpr_write_b32 a{40+4*(3*tt+2)+3}, 0")
        if A:
            P0 = self.phiA_parts(x0, E0, M0_, "L_q0", True); P1 = self.phiA_parts(x1, E1, M1_, "L_q1", True)
            L = P0['cvt'] + self.weave(P0['mf'], P1['cvt'] + P0['exp'][:6]) + self.weave(P1['mf'], P0['exp'][6:]) + P0['norm'] + P0['out'] + P1['exp'] + P1['norm'] + P1['out']
        else:
            L = []
            for x, e in ((x0, E0), (x1, E1)):
                L += self.phiB(x, e, True) + [(1, f"v_mov_b32 v{x+10}, 0"), (1, f"v_mov_b32 v{x+11}, 0")]
        tot = sum(c for c, _ in L); cut = tot - o.get('h2lead', 180) if A else tot
        c = 0; k = 0
        while k < len(L) and c < cut: c += L[k][0]; k += 1
        self.run(L[:k], every=o.get('qev', 44))
        self.stamp('q0')
        self.flush_dma(('W', 15))
        self.stamp('q1')
        self.put(iss)
        if o.get('prepos', 0) == 0: self.put(pre)
        self.stamp('q2')
        self.run(L[k:], every=o.get('qev', 44))
        self.stamp()
        self.put([x for _, x in chk])
        for ii in range(NI):
            p(f"v_perm_b32 v{X+4*ii}, v{X+4*ii+1}, v{X+4*ii}, s{S_PERM}")
            p(f"v_perm_b32 v{X+4*ii+1}, v{X+4*ii+3}, v{X+4*ii+2}, s{S_PERM}")
            p(f"ds_write_b64 v{V_LA+ii}, {vq(X+4*ii, 2)}", 'kvw')
        p.wait(lg='*')
        p("s_barrier")
        self.stamp()
        OA = ACC_V
        NU = 5 if A else 3
        SP = TMP + 112
        if A: p(f"v_mov_b32 v{SP}, v{M0_}"); p(f"v_mov_b32 v{SP+1}, v{M1_}")
        OB = TMP + 64
        LO = TMP + 80
        fr = [(tt, u_) for tt in (5, 0, 1, 2, 3, 4) for u_ in range(NU)]
        AO = 40
        rds = deque()
        for n, (tt, u_) in enumerate(fr):
            if not A and u_ == 2: rds.append((f"ds_read_b64 {aq(AO+4*n, 2)}, v{V_FR2} offset:{4*tt*RS + 16*u_}", ('of', n)))
            else: rds.append((f"ds_read_b128 {aq(AO+4*n)}, v{V_FR2} offset:{4*tt*RS + 16*u_}", ('of', n)))
        more(12)
        p(f"s_add_u32 s{T1}, s{S_OP}, 4096")
        p(f"s_cmp_eq_u32 s{S_FAST}, 0")
        def ost(txt):
            k = len(self.ool)
            if o.get('noslow'): p(txt, 'o'); return
            if o.get('nofast'): p(txt + " sc1", 'o'); return
            p(f"s_cbranch_scc0 L_os{k}{self.sfx}"); p(txt, 'o'); p(f"L_or{k}{self.sfx}:")
            self.ool.append(f"L_os{k}{self.sfx}:\n    {txt} sc1\n    s_branch L_or{k}{self.sfx}\n")
        epi = deque()
        for rt in range(2):
            dn = OA + (rt * 6 + 5) * 4
            b = OA + rt * 24
            rdy = lambda k: rt * 6 * NU + (k + 1) * NU + 3
            epi.append((rdy(0), 1, f"v_fmac_f32 v{dn}, {EPS}, v{SP+rt}" if A else f"v_add_f32 v{dn}, {EPS}, v{dn}")); epi.append((rdy(0), 2, f"v_rcp_f32 v{dn}, v{dn}"))
            for tt in range(5):
                for r in range(4): epi.append((rdy(tt + 1), 1, f"v_mul_f32 v{b+4*tt+r}, v{b+4*tt+r}, v{dn}"))
                for h in range(2):
                    i = 2 * tt + h
                    d = OB + ((i // 4) * 2 + rt) * 4 + i % 4 if i < 8 else LO + 2 * rt + (i - 8)
                    epi.append((rdy(tt + 1), 1, f"v_cvt_pk_bf16_f32 v{d}, v{b+2*i}, v{b+2*i+1}"))
                if tt in (1, 3):
                    u_ = tt // 2
                    epi.append((0, 2, lambda u_=u_, rt=rt: ost(f"buffer_store_dwordx4 {vq(OB+(u_*2+rt)*4)}, v{V_LIN}, {srd(SWS)}, s{S_OP} offen offset:{(rt*2+u_)*1024}")))
        epi.append((0, 2, lambda: ost(f"buffer_store_dwordx4 {vq(LO)}, v{V_LIN}, {srd(SWS)}, s{T1} offen")))
        pr = deque((300 + n, hf) for n in range(D - 1) for hf in range(2))
        m = 0
        for rt in range(2):
            for n, (tt, u_) in enumerate(fr):
                a = OA + (rt * 6 + tt) * 4
                if m == 0: p.wait(lg=[('of', 0)])
                p(f"{MF} {vq(a)}, {aq(AO+4*n)}, {vq(ACC_K+20*rt+4*u_)}, {'0' if u_ == 0 else vq(a)}")
                m += 1
                if rt == 0 and n + 1 < len(fr): p.wait(lg=[('of', n + 1)])
                bud = 2 if A else 3
                if rds: more(2); bud -= 2
                elif self.dq and m % o.get('opace', 8) == 0: self.tick(); p(f"s_cmp_eq_u32 s{S_FAST}, 0"); bud -= 2
                elif pr and not (epi and epi[0][0] <= m): self.wread(*pr.popleft()); bud -= 1
                while epi and epi[0][0] <= m and epi[0][1] <= bud:
                    _, c, x = epi.popleft(); bud -= c; self.put([x])
        while pr: self.wread(*pr.popleft())
        while epi: self.put([epi.popleft()[2]])
        self.stamp()
        def ob(ks, rt):
            if ks < 2: return vq(OB + (ks * 2 + rt) * 4)
            return aq((ks * 2 + rt) * 4) if ks < 16 else vq(LO + (2 * (ks - 16) + rt) * 4)
        def oload(P):
            if P < 16:
                return [[(f"buffer_load_dwordx4 {aq((P*2+rt)*4)}, v{V_LIN}, {srd(SWS)}, s{S_OP + P//2} offen offset:{(rt*2+P%2)*1024} sc1", ('O', P))] for rt in range(2)]
            return [[f"s_add_u32 s{T0}, s{S_OP + 2*(P-16) + h}, 4096", (f"buffer_load_dwordx4 {vq(LO+(2*(P-16)+h)*4)}, v{V_LIN}, {srd(SWS)}, s{T0} offen sc1", ('O', P))]
                    for h in range(2) if (P, h) != (16, 0)]
        def handshake():
            while self.tick(): pass
            p("s_waitcnt vmcnt(0)")
            p(f"s_cmp_eq_u32 s{S_FAST}, 0")
            p("s_mov_b64 exec, 1")
            ost(f"buffer_store_dword v{V_NONCE}, v{V_FOWN}, {srd(SWS)}, s{S_FLAG} offen")
            p("s_mov_b64 exec, 0xff")
            p("s_barrier")
            iss, chk = self.checked("L_h3", [f"buffer_load_dword v{V_DUMP}, v{V_F8}, {srd(SWS)}, s{S_FLAG} offen sc1"], [f"v_cmp_ne_u32 vcc, s{S_NONCE}, v{V_DUMP}"], 'h3')
            self.put(iss); self.put([x for _, x in chk])
            p("s_mov_b64 exec, -1")
            self.stamp()
            for P in range(2, 20): self.q(0, oload(P))
            for _ in range(o.get('oprime', 8)): self.tick()
        def owait(P):
            self.flush_dma(('O', P))
            p.wait(vm=[('O', P)])
            if P >= 16:
                a = LO + 2 * (P - 16) * 4
                p(f"v_swap_b32 v{a+2}, v{a+4}"); p(f"v_swap_b32 v{a+3}, v{a+5}")
        hooks = {5 * P - 1: [lambda P=P: owait(P)] for P in range(2, 20)}
        hooks[9] = [handshake] + hooks[9]
        hooks[90] = [f"s_or_b32 s{T0}, s{S_RB}, s{S_HEAD}", f"s_cmp_lg_u32 s{T0}, 0", f"s_cselect_b32 s{T0}, {WS_SIZE}, 0", "s_mov_b64 exec, 1",
                     (f"buffer_store_dword v{V_NONCE}, v{V_LIN}, {srd(SWS)}, s{T0} offen offset:{br*128} sc1", 'nn'), "s_mov_b64 exec, -1"]
        self.gemm_pass(3, ACC_K, ob, hooks=hooks, last=True, sync=False, pace=lambda n: 1 if n % 2 == 0 and n > 9 else 0)
        self.stamp()
        for rt in range(2):
            c = self.cvt20(acc(ACC_K, 0, rt), TMP + 10 * rt)
            for j in range(5):
                p(c[2*j][1]); p(c[2*j+1][1])
                p(f"ds_write_b64 v{V_OW}, {vq(TMP+10*rt+2*j, 2)} offset:{rt*16*OUTS + 8*j}", 'ow')
        for j in range(5): p(f"ds_read_b128 {vq(TMP+24+4*j)}, v{V_ORD+j}", ('or', j))
        for j in range(5):
            p.wait(lg=[('or', j)])
            p(f"buffer_store_dwordx4 {vq(TMP+24+4*j)}, v{V_OG+j}, {srd(SOUT)}, s{S_OUT} offen {o.get('oflag', '')}", 'out')
        if o.get('stamps'):
            p("s_waitcnt vmcnt(0)")
            self.stamp()
            p("s_memrealtime s[100:101]")
            p("s_waitcnt lgkmcnt(0)")
            p.raw(f"""
            s_lshl_b32 s{T0}, s2, 2
            s_add_u32 s{T0}, s{T0}, s{S_W}
            s_lshl_b32 s{T0}, s{T0}, 6
            s_add_u32 s{T0}, s{T0}, {WS_ST}
            v_mov_b32 v{TMP+16}, 0
            v_mov_b32 v{TMP}, s98
            v_mov_b32 v{TMP+1}, s100
            """)
            for k in range(14): p(f"v_mov_b32 v{TMP+2+k}, {'s%d' % (S_ST+k) if k < self.nst else ('s95' if k == 13 else 0)}")
            p("s_mov_b64 exec, 1")
            for k in range(4): p(f"buffer_store_dwordx4 {vq(TMP+4*k)}, v{TMP+16}, {srd(SWS)}, s{T0} offen offset:{16*k}")
        if o.get('amp') and self.sfx in o['amp'][2]:
            p("s_waitcnt vmcnt(0)")
            self.stamp()
            p.raw(f"""
            s_sub_u32 s{T0}, s100, s98
            s_mul_i32 s{T0}, s{T0}, {o['amp'][1]}
            s_min_u32 s{T0}, s{T0}, 100000
            L_amp{self.sfx}:
            s_sleep 2
            s_memrealtime s[62:63]
            s_waitcnt lgkmcnt(0)
            s_sub_u32 s{T1}, s62, s98
            s_cmp_lt_u32 s{T1}, s{T0}
            s_cbranch_scc1 L_amp{self.sfx}
            """)
        p("s_endpgm")
        assert not self.dq
        return p.finalize() + "".join(self.ool)

def build(opt):
    ref = open(f"cdna_kernels/{NAME}.s.ref").read().split("\n")
    head = [l for l in ref if l.startswith(";") and "@launch" not in l]
    s = "\n".join(head) + "\n; @launch grid=(256,1,1) block=(256,1,1) lds=163840\n"
    s += f""".amdgcn_target "amdgcn-amd-amdhsa--gfx950"
.text
.globl {NAME}_kernel
.p2align 8
.type {NAME}_kernel,@function
{NAME}_kernel:
    s_cmp_ge_u32 s2, 256
    s_cbranch_scc1 L_exit
    s_bitcmp1_b32 s2, 2
    s_cbranch_scc1 L_bodyB
"""
    ga = Gen(True, opt); s += ga.body()
    s += "L_exit:\n    s_endpgm\n.p2align 8\n"
    gb = Gen(False, opt); s += gb.body()
    s += ".fill 4096, 4, 0xbf810000\n"
    s += f""".section .rodata,"a"
.p2align 6
.amdhsa_kernel {NAME}_kernel
  .amdhsa_next_free_vgpr 512
  .amdhsa_next_free_sgpr 102
  .amdhsa_accum_offset 256
  .amdhsa_group_segment_fixed_size 0
  .amdhsa_kernarg_size 80
  .amdhsa_user_sgpr_count 2
  .amdhsa_user_sgpr_kernarg_segment_ptr 1
  .amdhsa_system_sgpr_workgroup_id_x 1
.end_amdhsa_kernel
"""
    print("nops", ga.p.nops, gb.p.nops, "instrs", len(ga.p.ins), len(gb.p.ins), "autow", getattr(ga.p, 'autow', 0), file=sys.stderr)
    return s

if __name__ == "__main__":
    import json
    opt = json.loads(sys.argv[2]) if len(sys.argv) > 2 else {}
    open(sys.argv[1], "w").write(build(opt))
```

```python
import sys
from collections import deque
from emit import Prog
NAME = "concat_heads__linear_kernel_hedgehog__linear_attn_block__prompt"

S_RB, S_HG, S_W = 4, 5, 7
SX, SW, SWO, SWS, SOUT, SPHI = 8, 12, 16, 20, 24, 28
S_NONCE = 32
S_WROW = 33
S_XBASE, S_XU = 38, 39
S_LW, S_LR = 40, 41
T0, T1, T2, T3 = 42, 43, 44, 45
S_WOROW = 46
S_HEAD = 51
S_SPIN = 52
S_FAST = 53
S_L2E, S_NL2E = 54, 55
S_OB = 56
S_WS, S_XS = 57, 58
S_FLAG = 59
S_OP = 60
S_P1ST, S_P1LD, S_P2ST, S_P2LD, S_OWN, S_OUT, S_XCCV, S_PERM = 68, 69, 70, 71, 72, 73, 74, 75
S_KA = 76
S_ST = 76
def srd(b): return f"s[{b}:{b+3}]"
V_LANE = 1
V_WO = 2; V_OF = 7; V_OL = 12; V_XO = 17; V_XR = 21; V_WT = 23; V_LIN = 25
V_PW, V_VW, V_KB, V_KA0, V_KA1, V_FR = 26, 27, 28, 29, 30, 31
ACC_K, ACC_V = 32, 72
TMP = 112
PV = 228
V_P1ST, V_P1LD, V_P2ST, V_GAL, V_LA, V_FR2, V_KEEP, V_ONE, V_OW, V_ORD, V_OG, V_F8, V_DUMP, V_ZA = PV, PV+1, PV+2, PV+3, PV+4, PV+8, PV+9, PV+10, PV+11, PV+12, PV+17, PV+22, PV+23, PV+24
V_L128, V_NONCE, V_FOWN = PV + 25, PV + 26, PV + 27
RING = 0; SLOT = 20480; RBASE = 102400; RW = 15360
OUTL = RBASE + 16384; OUTS = 176
WS_FLAG, WS_XCC, WS_P2, WS_P1, WS_O, WS_ST = 4096, 32768, 65536, 1 << 20, 8 << 20, 16 << 20
WS_SIZE = 32 << 20
D = 6
A_RING = 220
A_PHI = 160
SPIN_MAX = 20000
EPS = "0x358637bd"

def vq(b, n=4): return f"v[{b}:{b+n-1}]"
def aq(b, n=4): return f"a[{b}:{b+n-1}]"
def acc(base, t, rt): return base + (rt * 5 + t) * 4
MF = "v_mfma_f32_16x16x32_bf16"

class Gen:
    def __init__(self, isA, opt):
        self.A = isA; self.o = opt
        self.p = Prog(); self.sfx = 'A' if isA else 'B'
        self.F = 40 if isA else 20
        self.nst = 0
        self.dq = deque()
        self.pos = 0
        self.ool = []
    def stamp(self, name=None):
        p = self.p
        fine = self.o.get('fine')
        if fine:
            if name is None: self.cs = getattr(self, 'cs', 0) + 1; name = 's%d' % (self.cs - 1)
            if name not in fine: return
        elif name is not None: return
        if self.o.get('amp'):
            if self.nst == self.o['amp'][0]:
                p("s_memrealtime s[100:101]"); p("s_waitcnt lgkmcnt(0)")
            self.nst += 1
            return
        if not self.o.get('stamps'): return
        p(f"s_memtime s[100:101]")
        p("s_waitcnt lgkmcnt(0)")
        p(f"s_sub_u32 s{S_ST+self.nst}, s100, s96")
        self.nst += 1
    def put(self, L):
        for x in L:
            if isinstance(x, tuple): self.p(x[0], x[1])
            elif isinstance(x, list): self.put(x)
            elif callable(x): x()
            else: self.p(x)
    def dma_w(self, G):
        g = G % 5
        pre = [f"s_add_u32 m0, s{S_LW}, {RING + g*SLOT}"]
        if G < 15:
            col = {0: 1280, 1: 2560, 2: 0}[G // 5]
            pre.append(f"s_add_u32 s{S_WS}, s{S_WROW+g}, {col}"); so = f"s{S_WS}"; sd = SW; vo = V_WO
        else:
            so = f"s{S_WOROW+g}"; sd = SWO; vo = V_OF if g < 4 else V_OL
        items = []
        for j in range(5):
            off = f"offset:{j*1024} " if 0 < j < 4 else ""
            L = (pre if j == 0 else []) + [(f"buffer_load_dwordx4 v{vo+j}, {srd(sd)}, {so} offen {off}lds", ('W', G))]
            if j == 3: L.append(f"s_add_u32 m0, s{S_LW}, {RING + g*SLOT + 4096}")
            items.append(L)
        return items
    def dma_x(self, pu):
        items = []
        for j in range(4):
            off = f"offset:{j*1024} " if j else ""
            L = []
            if j == 0: L += [f"s_add_u32 m0, s{S_LR}, {(pu % 3) * 4096}", f"s_add_u32 s{S_XS}, s{S_XU}, s{S_XBASE}"]
            L.append((f"buffer_load_dwordx4 v{V_XO+j}, {srd(SX)}, s{S_XS} offen {off}lds", ('X', pu)))
            if j == 0: L += [f"s_add_u32 s{S_XU}, s{S_XU}, 128"]
            if j == 1: L += [f"s_cmp_eq_u32 s{S_XU}, 1280", f"s_cselect_b32 s{S_XU}, 0, s{S_XU}"]
            items.append(L)
        return items
    def q(self, earliest, items):
        for it in items: self.dq.append((earliest, it))
    def release(self, k):
        self.dq = deque((0 if e == 10**6 + k else e, it) for e, it in self.dq)
    def tick(self):
        if self.dq and self.dq[0][0] <= self.pos:
            self.put(self.dq.popleft()[1]); return True
        return False
    def flush_dma(self, tag):
        def has():
            return any(isinstance(x, tuple) and x[1] == tag for _, it in self.dq for x in it)
        while has():
            assert self.dq[0][0] <= self.pos, (tag, self.pos, self.dq[0])
            self.put(self.dq.popleft()[1])
    def run(self, L, every=30):
        c = 0
        for cost, x in L:
            self.put([x]); c += cost
            if c >= every: c = 0; self.tick()
    def wread(self, N, hf):
        G = N // 20; ks = (N % 20) // 5; t = N % 5
        off = RING + (G % 5) * SLOT + ks * 5120 + hf * 2560 + 8 * t
        hi = off >= 51200
        s = A_RING + (N % D) * 4 + 2 * hf
        self.p(f"ds_read_b64_tr_b16 a[{s}:{s+1}], v{V_WT + hi} offset:{off - 51200*hi}", ('F', N))
    def group_sync(self, G):
        self.flush_dma(('W', G))
        self.p.wait(vm=[('W', G)])
        self.p("s_barrier")
    def xread(self, pu, k):
        ksub, rt = divmod(k, 2)
        if k == 0:
            self.flush_dma(('X', pu)); self.p.wait(vm=[('X', pu)])
        a = ((2 * pu + ksub) * 2 + rt) * 4
        self.p(f"ds_read_b128 {aq(a)}, v{V_XR+ksub} offset:{(pu % 3)*4096 + rt*2048}", ('XR', pu))
    def prime(self, ps, sync=True):
        if sync: self.group_sync(ps * 5)
        for n in range(D - 1):
            self.wread(ps * 100 + n, 0); self.wread(ps * 100 + n, 1)
    def gemm_pass(self, ps, accb, bop, fill=None, hooks=None, last=False, pace=None, sync=True, frange=(0, 100), hooks0=None):
        p = self.p
        fill = deque(fill or []); hooks = hooks or {}; hooks0 = hooks0 or {}
        N0 = ps * 100
        p.wait(lg=[('F', N0), ('XR', 0)])
        pace = pace or (lambda n: 0)
        for n in range(100):
            self.pos = N0 + n
            ks, t = divmod(n, 5)
            s = A_RING + ((N0 + n) % D) * 4
            M = n + D - 1
            look = M < 100 or not last
            a = acc(accb, t, 0)
            p(f"{MF} {vq(a)}, {aq(s)}, {bop(ks, 0)}, {'0' if ks == 0 else vq(a)}")
            k0 = len(p.ins)
            if n < 99:
                tg = [('F', N0 + n + 1)]
                if ps == 0 and (n + 1) % 10 == 0: tg.append(('XR', (n + 1) // 10))
                p.wait(lg=tg)
            if n in hooks0: self.put(hooks0[n])
            if look:
                if M % 20 == 0 and sync: self.group_sync((N0 + M) // 20)
                if len(p.ins) == k0: p("s_nop 0")
                self.wread(N0 + M, 0); self.wread(N0 + M, 1)
            elif fill and n >= frange[0]: self.gap(fill, 2)
            a = acc(accb, t, 1)
            p(f"{MF} {vq(a)}, {aq(s)}, {bop(ks, 1)}, {'0' if ks == 0 else vq(a)}")
            self.pos = N0 + n + 1
            self.stamp('n%d' % (N0 + n))
            did = 0
            for _ in range(pace(n)): did += self.tick()
            if n in hooks: self.put(hooks[n])
            if fill and n >= frange[0]:
                left = sum(c for c, _ in fill)
                gaps = sum(1 for k in range(n, frange[1]) if not pace(k)) + (min(D - 1, 99 - n) if last and frange[1] == 100 else 0)
                bud = 0 if did else 2
                if left > 2 * gaps: bud += 2
                self.gap(fill, bud)
        while fill: self.put([fill.popleft()[1]])
        self.pos = N0 + 100
    def gap(self, fill, bud):
        first = True
        while fill:
            c, x = fill[0]
            solo = isinstance(x, tuple)
            if c > bud or (solo and not first): break
            fill.popleft(); self.put([x]); bud -= c
            if solo: break
            if c: first = False
    def cvt20(self, src, dst):
        return [(1, f"v_cvt_pk_bf16_f32 v{dst+i}, v{src+2*i}, v{src+2*i+1}") for i in range(10)]
    def phiA_parts(self, x, e, m, name, isq):
        P = {}
        kb = e + 28
        P['cvt'] = self.cvt20(x, kb) + [(1, f"v_mov_b32 v{kb+10}, 0"), (1, f"v_mov_b32 v{kb+11}, 0")]
        P['mf'] = [(2, f"{MF} {vq(x+4*t)}, {aq(A_PHI + (t*3+u)*4)}, {vq(kb+4*u)}, {'0' if u == 0 else vq(x+4*t)}") for t in range(5) for u in range(3)]
        P['exp'] = [(2, f"v_exp_f32 v{e+i}, v{x+i}") for i in range(20)] + [(2, f"v_exp_f32 v{e+20+i}, -v{x+i}") for i in range(20)]
        def sums():
            L = [f"v_pk_add_f32 v[{m+2*h}:{m+2*h+1}], v[{e+20*h}:{e+20*h+1}], v[{e+20*h+2}:{e+20*h+3}]" for h in range(2)]
            L += [f"v_pk_add_f32 v[{m+2*h}:{m+2*h+1}], v[{m+2*h}:{m+2*h+1}], v[{e+20*h+2*i}:{e+20*h+2*i+1}]" for i in range(2, 10) for h in range(2)]
            L += [f"v_add_f32 v{m+2*h}, v{m+2*h}, v{m+2*h+1}" for h in range(2)]
            return L
        nm = name + self.sfx
        L = sums() + [f"v_max_f32 v{m+1}, v{m}, v{m+2}", f"v_cmp_ngt_f32 vcc, 0x5d800000, v{m+1}"]
        if not isq: L.append(f"v_rcp_f32 v{m+4}, v{m}")
        L += [f"v_rcp_f32 v{m+2}, v{m+2}", [f"s_cbranch_vccnz {nm}_slow", f"{nm}_back:"]]
        o = Prog()
        o(f"{nm}_slow:")
        o(f"v_max3_f32 v{m}, v{x}, v{x+1}, v{x+2}"); o(f"v_min3_f32 v{m+1}, v{x}, v{x+1}, v{x+2}")
        for i in range(3, 19, 2):
            o(f"v_max3_f32 v{m}, v{m}, v{x+i}, v{x+i+1}"); o(f"v_min3_f32 v{m+1}, v{m+1}, v{x+i}, v{x+i+1}")
        o(f"v_max_f32 v{m}, v{m}, v{x+19}"); o(f"v_min_f32 v{m+1}, v{m+1}, v{x+19}")
        for i in range(20): o(f"v_sub_f32 v{e+i}, v{x+i}, v{m}"); o(f"v_sub_f32 v{e+20+i}, v{m+1}, v{x+i}")
        for i in range(40): o(f"v_exp_f32 v{e+i}, v{e+i}")
        for y in sums(): o(y)
        if not isq: o(f"v_rcp_f32 v{m+4}, v{m}")
        o(f"v_rcp_f32 v{m+2}, v{m+2}"); o("s_nop 1"); o(f"s_branch {nm}_back")
        self.ool.append(o.finalize())
        if isq: L.append(f"v_mul_f32 v{m+2}, v{m+2}, v{m}")
        else: L += [f"v_pk_mul_f32 v[{e+2*i}:{e+2*i+1}], v[{e+2*i}:{e+2*i+1}], v[{m+4}:{m+5}] op_sel_hi:[1,0]" for i in range(10)]
        L += [f"v_pk_mul_f32 v[{e+20+2*i}:{e+21+2*i}], v[{e+20+2*i}:{e+21+2*i}], v[{m+2}:{m+3}] op_sel_hi:[1,0]" for i in range(10)]
        P['norm'] = [(1, y) for y in L]
        P['out'] = [(1, f"v_cvt_pk_bf16_f32 v{x+i}, v{e+2*i}, v{e+2*i+1}") for i in range(20)]
        return P
    def weave(self, mf, va, per=2):
        va = deque(va); L = []
        for x in mf:
            L.append(x); b = per
            while va and va[0][0] <= b: b -= va[0][0]; L.append(va.popleft())
        return L + list(va)
    def phiB(self, x, e, packed):
        L = []
        if packed: L += [(1, f"v_pk_mul_f32 v[{e+2*i}:{e+2*i+1}], v[{x+2*i}:{x+2*i+1}], s[{S_L2E}:{S_NL2E}] op_sel_hi:[1,0]") for i in range(10)]
        else: L += [(1, f"v_mul_f32 v{e+i}, s{S_L2E}, v{x+i}") for i in range(20)]
        L += [(2, f"v_exp_f32 v{e+i}, v{e+i} clamp") for i in range(20)]
        L += [(1, f"v_max_f32 v{x+i}, {EPS}, v{x+i}") for i in range(20)]
        if packed: L += [(1, f"v_pk_add_f32 v[{e+2*i}:{e+2*i+1}], v[{e+2*i}:{e+2*i+1}], v[{x+2*i}:{x+2*i+1}]") for i in range(10)]
        else: L += [(1, f"v_add_f32 v{e+i}, v{e+i}, v{x+i}") for i in range(20)]
        L += self.cvt20(e, x)
        return L
    def checked(self, name, loads, check, tag):
        nm = name + self.sfx
        iss = [(x, tag) if x.startswith('buffer') else x for x in loads]
        chk = [(0, lambda: self.p.wait(vm=[tag]))] + [(1, x) for x in check] + [(1, [f"s_cbranch_vccnz {nm}_retry", f"{nm}_ok:"])]
        o = Prog()
        o(f"{nm}_retry:"); o(f"s_mov_b32 s{S_SPIN}, 0"); o(f"{nm}_loop:")
        if self.o.get('stamps'): o(f"s_add_u32 s95, s95, {dict(L_xc=1000000, L_h1=10000, L_h2=100, L_h3=1)[name]}")
        for x in loads: o(x)
        o("s_waitcnt vmcnt(0)")
        for x in check: o(x)
        o(f"s_cbranch_vccz {nm}_ok")
        o(f"s_add_u32 s{S_SPIN}, s{S_SPIN}, 1"); o(f"s_cmp_lt_u32 s{S_SPIN}, {SPIN_MAX}"); o(f"s_cbranch_scc1 {nm}_loop")
        o(f"s_branch {nm}_ok")
        self.ool.append(o.finalize())
        return iss, chk
    def body(self):
        p = self.p; A = self.A; F = self.F; br = 0 if A else 1; o = self.o
        t = TMP
        p(f"L_body{self.sfx}:")
        K = S_KA
        if A:
            p(f"s_load_dwordx8 s[{K}:{K+7}], s[0:1], 0")
        else:
            p(f"s_load_dwordx4 s[{K}:{K+3}], s[0:1], 32")
            p(f"s_load_dwordx2 s[{K+6}:{K+7}], s[0:1], 48")
        kx, kw, kphi, kwo, kout, kws = K, K + 2, K + 4, K + 6, K + 8, K + 10
        p(f"s_load_dwordx2 s[{kout}:{kout+1}], s[0:1], 56")
        p(f"s_load_dwordx2 s[{kws}:{kws+1}], s[0:1], 72")
        if o.get('stamps'): p("s_memtime s[96:97]"); p("s_mov_b32 s95, 0")
        if o.get('stamps') or o.get('amp'): p("s_memrealtime s[98:99]")
        p.raw(f"""
        s_getpc_b64 s[60:61]
        s_bfe_u32 s{S_HG}, s2, 0x30003
        v_and_b32 v{V_LANE}, 63, v0
        v_lshrrev_b32 v{t}, 6, v0
        s_lshl_b32 s{T0}, s{S_HG}, 12
        v_lshlrev_b32 v{V_L128}, 7, v{V_LANE}
        v_readfirstlane_b32 s{S_W}, v{t}
        s_add_u32 s60, s60, s{T0}
        s_addc_u32 s61, s61, 0
        v_lshl_add_u32 v{t+1}, v{t}, 10, v{V_L128}
        s_mov_b64 exec, 0xff
        """)
        p(f"global_load_dword v{V_DUMP}, v{t+1}, s[60:61]", 'cpf')
        p("s_mov_b64 exec, -1")
        ra, rbm, rdiv = o.get('rot', (10, 10, 4))
        p.raw(f"""
        s_and_b32 s{S_RB}, s2, 3
        s_lshl_b32 s{S_RB}, s{S_RB}, 2
        s_lshr_b32 s{T0}, s2, 6
        s_add_u32 s{S_RB}, s{S_RB}, s{T0}
        s_mul_i32 s{T0}, s{S_HG}, {ra}
        s_mul_i32 s{T1}, s{S_RB}, {rbm}
        s_add_u32 s{T0}, s{T0}, s{T1}
        s_lshr_b32 s{T0}, s{T0}, {rdiv.bit_length()-1}
        s_mul_i32 s{T1}, s{T0}, 6554
        s_lshr_b32 s{T1}, s{T1}, 16
        s_mul_i32 s{T1}, s{T1}, 10
        s_sub_u32 s{T3}, s{T0}, s{T1}
        s_lshl_b32 s{S_XU}, s{T3}, 7
        s_lshl_b32 s{T0}, s{S_RB}, 2
        s_add_u32 s{T0}, s{T0}, s{S_W}
        s_mul_i32 s{S_XBASE}, s{T0}, 40960
        s_mul_i32 s{S_LW}, s{S_W}, 5120
        s_mul_i32 s{S_LR}, s{S_W}, {RW}
        s_add_u32 s{S_LR}, s{S_LR}, {RBASE}
        v_lshrrev_b32 v{t}, 3, v{V_LANE}
        v_mul_u32_u24 v{t}, 1280, v{t}
        v_lshrrev_b32 v{t+1}, 4, v{V_LANE}
        v_xor_b32 v{t+1}, v{t+1}, v{V_LANE}
        v_and_b32 v{t+1}, 7, v{t+1}
        v_lshl_add_u32 v{V_XO}, v{t+1}, 4, v{t}
        v_xor_b32 v{t+2}, 64, v{V_XO}
        v_add_u32 v{V_XO+1}, {9216}, v{t+2}
        v_add_u32 v{V_XO+2}, {2*9216}, v{V_XO}
        v_add_u32 v{V_XO+3}, {3*9216}, v{t+2}
        s_lshr_b32 s{T0}, s{S_W}, 1
        s_add_u32 s{T0}, s{T0}, s{T3}
        s_and_b32 s{T1}, s{S_W}, 1
        s_mul_i32 s{T1}, s{T1}, {32*3840}
        s_mul_i32 s{T2}, s{S_HG}, 160
        s_add_u32 s{T1}, s{T1}, s{T2}
        s_mov_b32 s{SX+2}, 2621440
        s_mov_b32 s{SX+3}, 0x20000
        s_mov_b32 s{SW+2}, 2457600
        s_mov_b32 s{SW+3}, 0x20000
        """)
        def wrow(g):
            p.raw(f"""
            s_cmp_ge_u32 s{T0}, 10
            s_cselect_b32 s{T2}, 10, 0
            s_sub_u32 s{T0}, s{T0}, s{T2}
            s_mul_i32 s{T2}, s{T0}, {64*3840}
            s_add_u32 s{S_WROW+g}, s{T2}, s{T1}
            s_add_u32 s{T0}, s{T0}, 2
            """)
        wrow(0)
        RH = TMP + 10
        def woff(j):
            b = RH + 5 * j
            p.raw(f"""
            v_add_u32 v{t}, {64*j}, v{V_LANE}
            v_mul_u32_u24 v{b+4}, 6554, v{t}
            v_lshrrev_b32 v{b+4}, 16, v{b+4}
            v_mul_u32_u24 v{t+2}, 10, v{b+4}
            v_sub_u32 v{b+3}, v{t}, v{t+2}
            v_bfe_u32 v{b}, v{b+4}, 2, 2
            v_lshrrev_b32 v{b+1}, 4, v{b+4}
            v_and_b32 v{b+2}, 3, v{b+4}
            v_lshl_add_u32 v{t}, v{b}, 1, v{b+1}
            v_lshl_add_u32 v{t}, v{t}, 2, v{b+2}
            v_mul_u32_u24 v{t}, 3840, v{t}
            v_lshl_add_u32 v{V_WO+j}, v{b+3}, 4, v{t}
            """)
            if 0 < j < 4: p(f"v_subrev_u32 v{V_WO+j}, {1024*j}, v{V_WO+j}")
        woff(0); woff(1)
        p.raw(f"""
        s_waitcnt lgkmcnt(0)
        s_mov_b32 s{SX}, s{kx}
        s_mov_b32 s{SX+1}, s{kx+1}
        s_mov_b32 s{SW}, s{kw}
        s_mov_b32 s{SW+1}, s{kw+1}
        """)
        self.put(self.dma_x(0))
        p(f"s_load_dword s{S_NONCE}, s[{kws}:{kws+1}], {br*128}")
        w0 = self.dma_w(0)
        self.put(w0[0:2]); woff(2); self.put(w0[2]); woff(3); self.put(w0[3]); woff(4); self.put(w0[4])
        for g in range(1, 5): wrow(g)
        self.q(0, self.dma_x(1))
        p.raw(f"""
        s_mov_b32 s{SWO}, s{kwo}
        s_mov_b32 s{SWO+1}, s{kwo+1}
        s_mov_b32 s{SWO+2}, 819200
        s_mov_b32 s{SWO+3}, 0x20000
        s_mov_b32 s{SWS}, s{kws}
        s_mov_b32 s{SWS+1}, s{kws+1}
        s_mov_b32 s{SWS+2}, {WS_SIZE}
        s_mov_b32 s{SWS+3}, 0x20000
        s_mov_b32 s{SOUT}, s{kout}
        s_mov_b32 s{SOUT+1}, s{kout+1}
        s_mov_b32 s{SOUT+2}, 5242880
        s_mov_b32 s{SOUT+3}, 0x20000
        s_lshl_b32 s{S_HEAD}, s{S_HG}, 2
        s_add_u32 s{S_HEAD}, s{S_HEAD}, s{S_W}
        v_lshlrev_b32 v{V_LIN}, 4, v{V_LANE}
        """)
        if A:
            p.raw(f"""
            s_mov_b32 s{SPHI}, s{kphi}
            s_mov_b32 s{SPHI+1}, s{kphi+1}
            s_mov_b32 s{SPHI+2}, 25600
            s_mov_b32 s{SPHI+3}, 0x20000
            """)
            self.q(0, [[f"s_mul_i32 s{S_WS}, s{S_HEAD}, 800",
                        (f"buffer_load_dwordx4 {vq(TMP+96)}, v{V_LIN}, {srd(SPHI)}, s{S_WS} offen", 'wphi')]])
        self.q(0, self.dma_w(1)); self.q(0, self.dma_x(2))
        G_, I_, R_, C_ = t, t + 1, t + 2, t + 3
        S = []
        def raw(txt):
            for l in txt.split('\n'):
                if l.strip(): S.append((1, l.strip()))
        raw(f"""
        v_lshrrev_b32 v{G_}, 4, v{V_LANE}
        v_and_b32 v{I_}, 15, v{V_LANE}
        v_bfe_u32 v{R_}, v{V_LANE}, 2, 2
        v_and_b32 v{C_}, 3, v{V_LANE}
        v_lshrrev_b32 v{t+4}, 1, v{I_}
        v_xor_b32 v{t+4}, v{t+4}, v{G_}
        v_lshlrev_b32 v{t+5}, 7, v{I_}
        v_lshl_add_u32 v{t+4}, v{t+4}, 4, v{t+5}
        v_add_u32 v{V_XR}, s{S_LR}, v{t+4}
        v_xor_b32 v{t+4}, 64, v{t+4}
        v_add_u32 v{V_XR+1}, s{S_LR}, v{t+4}
        v_lshrrev_b32 v{t+4}, 2, v{V_LANE}
        v_mul_u32_u24 v{t+5}, 160, v{t+4}
        v_mul_u32_u24 v{t+6}, 40, v{C_}
        v_add_u32 v{V_WT}, v{t+5}, v{t+6}
        v_add_u32 v{V_WT+1}, 51200, v{V_WT}
        v_mul_u32_u24 v{t+5}, 120, v{I_}
        v_mul_u32_u24 v{t+6}, 3840, v{G_}
        v_add3_u32 v{V_PW}, v{t+5}, v{t+6}, s{S_LR}
        v_mul_u32_u24 v{t+6}, 40, v{G_}
        v_mul_u32_u24 v{t+7}, {OUTS}, v{I_}
        s_mul_i32 s{T2}, s{S_W}, {32*OUTS}
        s_add_u32 s{T2}, s{T2}, {OUTL}
        v_add3_u32 v{V_OW}, v{t+7}, v{t+6}, s{T2}
        v_and_b32 v{t+5}, 7, v{t+4}
        v_lshrrev_b32 v{t+6}, 5, v{V_LANE}
        v_lshlrev_b32 v{t+6}, 1, v{t+6}
        v_lshl_add_u32 v{t+5}, v{t+5}, 2, v{t+6}
        v_mul_u32_u24 v{t+5}, 120, v{t+5}
        s_mul_i32 s{T0}, s{S_W}, 3840
        s_add_u32 s{T0}, s{T0}, {RBASE}
        v_add_u32 v{V_KA1}, s{T0}, v{t+5}
        v_lshl_add_u32 v{V_KB}, v{C_}, 3, v{V_KA1}
        s_mov_b32 s{S_L2E}, 0x3fb8aa3b
        s_mov_b32 s{S_NL2E}, 0xbfb8aa3b
        s_mov_b32 s{S_PERM}, 0x07060302
        s_and_b32 s{T3}, s{S_HG}, 1
        """)
        for j in range(5):
            b = RH + 5 * j
            raw(f"""
            v_mul_u32_u24 v{t+4}, 20, v{b}
            v_add_u32 v{t+4}, v{t+4}, v{b+2}
            v_lshl_add_u32 v{t+5}, v{b+1}, 2, v{t+4}
            v_xor_b32 v{t+6}, s{T3}, v{b+1}
            v_mul_u32_u24 v{t+6}, 80, v{t+6}
            v_add3_u32 v{t+6}, v{t+6}, v{t+4}, 16
            v_mul_u32_u24 v{t+5}, 1280, v{t+5}
            v_mul_u32_u24 v{t+6}, 1280, v{t+6}
            v_lshl_add_u32 v{V_OF+j}, v{b+3}, 4, v{t+5}
            v_lshl_add_u32 v{V_OL+j}, v{b+3}, 4, v{t+6}
            v_mul_u32_u24 v{t+5}, {OUTS}, v{b+4}
            v_lshl_add_u32 v{t+5}, v{b+3}, 4, v{t+5}
            v_add_u32 v{V_ORD+j}, s{T2}, v{t+5}
            v_mul_u32_u24 v{t+5}, 2560, v{b+4}
            v_lshl_add_u32 v{V_OG+j}, v{b+3}, 4, v{t+5}
            """)
            if 0 < j < 4:
                raw(f"v_subrev_u32 v{V_OF+j}, {1024*j}, v{V_OF+j}\nv_subrev_u32 v{V_OL+j}, {1024*j}, v{V_OL+j}")
        raw(f"""
        s_lshr_b32 s{T0}, s{S_W}, 1
        s_xor_b32 s{T0}, s{T0}, s{T3}
        s_mul_i32 s{T0}, s{T0}, 80
        s_and_b32 s{T1}, s{S_W}, 1
        s_lshl_b32 s{T1}, s{T1}, 3
        s_add_u32 s{T0}, s{T0}, s{T1}
        s_mul_i32 s{T0}, s{T0}, 1280
        s_mul_i32 s{T2}, s{S_HG}, 160
        s_add_u32 s{T0}, s{T0}, s{T2}
        s_lshr_b32 s{S_SPIN}, s{S_HG}, 1
        s_add_u32 s{T1}, s{S_SPIN}, s{S_W}
        s_and_b32 s{T1}, s{T1}, 3
        s_mul_i32 s{T1}, s{T1}, {160*1280}
        s_add_u32 s{S_WOROW+4}, s{T1}, s{T2}
        s_lshl_b32 s{S_OUT}, s{S_XBASE}, 1
        s_add_u32 s{S_OUT}, s{S_OUT}, s{T2}
        s_add_u32 s{S_OUT}, s{S_OUT}, {br*1280}
        s_add_u32 s{S_OB}, s{S_XBASE}, {WS_O + br*64*40960}
        """)
        for g in range(4):
            raw(f"""
            s_add_u32 s{T1}, s{S_SPIN}, {g}
            s_and_b32 s{T1}, s{T1}, 3
            s_mul_i32 s{T2}, s{T1}, {160*1280}
            s_add_u32 s{S_WOROW+g}, s{T2}, s{T0}
            s_lshl_b32 s{T1}, s{T1}, 1
            s_add_u32 s{T1}, s{T1}, s{T3}
            s_mul_i32 s{T2}, s{T1}, 5120
            s_add_u32 s{S_OP+2*g}, s{T2}, s{S_OB}
            s_xor_b32 s{T1}, s{T1}, 1
            s_mul_i32 s{T2}, s{T1}, 5120
            s_add_u32 s{S_OP+2*g+1}, s{T2}, s{S_OB}
            """)
        SH = 8 if A else 7
        raw(f"""
        s_lshl_b32 s{T0}, s{S_RB}, 2
        s_add_u32 s{T0}, s{T0}, s{S_W}
        s_lshl_b32 s{S_FLAG}, s{T0}, 7
        s_add_u32 s{S_FLAG}, s{S_FLAG}, {WS_FLAG + br*64*128}
        s_lshl_b32 s{T0}, s{S_HEAD}, 16
        s_add_u32 s{T0}, s{T0}, {WS_P1 + br*32*65536}
        s_lshl_b32 s{T1}, s{S_RB}, 12
        s_add_u32 s{S_P1ST}, s{T0}, s{T1}
        s_min_u32 s{T1}, s{S_RB}, 14
        s_lshl_b32 s{T1}, s{T1}, {SH}
        s_add_u32 s{S_P1LD}, s{T0}, s{T1}
        s_lshl_b32 s{T0}, s{S_HEAD}, 12
        s_add_u32 s{S_P2LD}, s{T0}, {WS_P2 + br*32*4096}
        s_add_u32 s{S_P2ST}, s{S_P2LD}, s{T1}
        v_mul_u32_u24 v{t+4}, {F}, v{G_}
        v_add_lshl_u32 v{V_P1ST}, v{t+4}, v{I_}, 4
        v_cmp_gt_u32 vcc, 4, v{I_}
        v_cndmask_b32 v{V_KEEP}, 0, -1, vcc
        v_mov_b32 v{t+4}, 0x3f803f80
        v_cmp_eq_u32 vcc, 4, v{I_}
        v_cndmask_b32 v{V_ONE}, 0, v{t+4}, vcc
        v_and_b32 v{t+4}, 7, v{V_LANE}
        v_lshlrev_b32 v{V_F8}, 2, v{t+4}
        s_lshl_b32 s{T0}, s{S_HG}, 2
        v_mov_b32 v{V_FOWN}, s{T0}
        v_lshlrev_b32 v{V_ZA}, 3, v0
        v_add_u32 v{V_ZA}, {RBASE+7680}, v{V_ZA}
        """)
        if A:
            raw(f"""
            v_lshlrev_b32 v{t+5}, 12, v{G_}
            v_lshl_add_u32 v{V_P1LD}, v{I_}, 4, v{t+5}
            v_lshlrev_b32 v{V_P2ST}, 2, v{V_LANE}
            """)
        else:
            raw(f"""
            v_lshrrev_b32 v{t+5}, 3, v{V_LANE}
            v_lshlrev_b32 v{t+5}, 12, v{t+5}
            v_lshl_add_u32 v{V_P1LD}, v{t+4}, 4, v{t+5}
            v_lshl_add_u32 v{V_P2ST}, v{G_}, 5, v{V_F8}
            """)
        RS = 80 if A else 48
        HS = 24 * RS
        NQ = 240 if A else 120
        NI = 4 if A else 2
        raw(f"s_mul_i32 s{T0}, s{S_W}, {HS}\ns_add_u32 s{T0}, s{T0}, {RBASE}")
        u = t + 4
        for ii in range(NI):
            raw(f"v_add_u32 v{u}, {64*ii}, v{V_LANE}")
            if ii == NI - 1:
                raw(f"""v_subrev_u32 v{u+1}, 64, v{u}
                v_cmp_gt_u32 vcc, {NQ}, v{u}
                v_cndmask_b32 v{u}, v{u+1}, v{u}, vcc
                v_lshlrev_b32 v{V_GAL}, 4, v{u}""")
            if A:
                raw(f"""
                v_lshrrev_b32 v{u+1}, 4, v{u}
                v_and_b32 v{u+2}, 3, v{u}
                v_lshl_add_u32 v{u+1}, v{u+1}, 2, v{u+2}
                v_bfe_u32 v{u+2}, v{u}, 2, 2
                v_mul_u32_u24 v{u+3}, 6554, v{u+1}
                v_lshrrev_b32 v{u+3}, 16, v{u+3}
                v_mul_u32_u24 v{u+4}, 10, v{u+3}
                """)
            else:
                raw(f"""
                v_lshrrev_b32 v{u+1}, 3, v{u}
                v_and_b32 v{u+2}, 1, v{u}
                v_lshl_add_u32 v{u+1}, v{u+1}, 1, v{u+2}
                v_bfe_u32 v{u+2}, v{u}, 1, 2
                v_mul_u32_u24 v{u+3}, 13108, v{u+1}
                v_lshrrev_b32 v{u+3}, 16, v{u+3}
                v_mul_u32_u24 v{u+4}, 5, v{u+3}
                """)
            raw(f"""
            v_sub_u32 v{u+1}, v{u+1}, v{u+4}
            v_lshl_add_u32 v{u+3}, v{u+3}, 2, v{u+2}
            v_mul_u32_u24 v{u+3}, {RS}, v{u+3}
            v_lshl_add_u32 v{u+3}, v{u+1}, 3, v{u+3}
            v_add_u32 v{V_LA+ii}, s{T0}, v{u+3}
            """)
        raw(f"""
        v_cmp_eq_u32 vcc, v{G_}, v{R_}
        v_mul_u32_u24 v{u}, {HS}, v{G_}
        v_mul_u32_u24 v{u+1}, {RS}, v{C_}
        v_add_u32 v{u}, v{u}, v{u+1}
        v_add_u32 v{u}, {RBASE}, v{u}
        v_mov_b32 v{u+1}, {RBASE+7680}
        v_cndmask_b32 v{V_FR2}, v{u+1}, v{u}, vcc
        """)
        if A:
            raw(f"""
            v_mov_b32 v{t+8}, 0
            v_mov_b32 v{t+9}, 0
            v_mov_b32 v{t+10}, 0
            v_mov_b32 v{t+11}, 0
            v_add_u32 v{TMP+100}, s{S_LR}, v{V_LIN}
            ds_write_b128 v{TMP+100}, {vq(t+8)} offset:13312
            v_mul_u32_u24 v{t+4}, {RW}, v{G_}
            v_mul_u32_u24 v{t+5}, 40, v{R_}
            v_add_u32 v{t+4}, v{t+4}, v{t+5}
            v_add_u32 v{t+4}, {RBASE+12288}, v{t+4}
            s_add_u32 s{T0}, s{S_LR}, 13312
            v_mov_b32 v{t+5}, s{T0}
            v_cmp_eq_u32 vcc, v{C_}, v{G_}
            v_cndmask_b32 v{V_FR}, v{t+5}, v{t+4}, vcc
            """)
            for tt in range(5):
                a = A_PHI + (tt * 3 + 2) * 4
                raw(f"v_accvgpr_write_b32 a{a+2}, 0\nv_accvgpr_write_b32 a{a+3}, 0")
        self.run(S, every=o.get('proev', 60))
        while self.tick(): pass
        p.raw(f"""
        s_getreg_b32 s{T0}, hwreg(HW_REG_XCC_ID, 0, 4)
        s_waitcnt lgkmcnt(0)
        s_add_u32 s{S_NONCE}, s{S_NONCE}, 0x9e3779b1
        s_lshl_b32 s{T0}, s{T0}, 28
        s_xor_b32 s{S_XCCV}, s{T0}, s{S_NONCE}
        v_mov_b32 v{V_NONCE}, s{S_NONCE}
        v_mov_b32 v{t}, s{S_XCCV}
        s_add_u32 s{T0}, s{S_FLAG}, {WS_XCC - WS_FLAG}
        s_mov_b64 exec, 1
        """)
        p(f"buffer_store_dword v{t}, v{V_FOWN}, {srd(SWS)}, s{T0} offen sc1", 'xcc')
        p("s_mov_b64 exec, -1")
        self.stamp()
        xb = lambda ks, rt: aq((ks * 2 + rt) * 4)
        for pu in range(0, 7):
            if (pu + 3) % 2 == 0: self.q(0, self.dma_w((pu + 3) // 2))
            self.q(10 * pu, self.dma_x(pu + 3))
        for G in range(5, 10): self.q(10**6 + 1 if G % 5 >= 3 else 20 * (G - 3) - 4, self.dma_w(G))
        for G in range(10, 20): self.q(10**6 + G, self.dma_w(G))
        hooks = {}
        for pu in range(1, 10):
            hooks[10 * pu - 5] = [lambda pu=pu: self.xread(pu, 0), lambda pu=pu: self.xread(pu, 1)]
            hooks[10 * pu - 4] = [lambda pu=pu: self.xread(pu, 2), lambda pu=pu: self.xread(pu, 3)]
        if A:
            rd = [(tt, u_, hf) for tt in range(5) for u_ in range(3) for hf in range(2 if u_ < 2 else 1)]
            w = TMP + 96; u2 = TMP + 102
            sc = [lambda: p.wait(vm=['wphi'])]
            for j in range(4):
                sc += [f"v_lshlrev_b32 v{u2}, 16, v{w+j}", f"v_and_b32 v{u2+1}, 0xffff0000, v{w+j}", f"v_mul_f32 v{u2}, s{S_L2E}, v{u2}",
                       f"v_mul_f32 v{u2+1}, s{S_L2E}, v{u2+1}", f"v_cvt_pk_bf16_f32 v{w+j}, v{u2}, v{u2+1}"]
            hooks[8] = sc + [(f"ds_write_b128 v{TMP+100}, {vq(w)} offset:12288", 'phw')]
            hooks[14] = [lambda: p.wait(lg=['phw'])]
            slots = [n for n in range(21, 90) if n % 10 in (0, 1, 2, 3)][:25]
            for k, n in enumerate(slots):
                hooks[n] = [(f"ds_read_b64_tr_b16 a[{A_PHI + (tt*3+u_)*4 + 2*hf}:{A_PHI + (tt*3+u_)*4 + 2*hf + 1}], v{V_FR} offset:{(8*u_+4*hf)*40 + 8*tt}", 'phi')
                            for tt, u_, hf in rd[k:k+1]]
        XV = TMP + 92
        iss, chk = self.checked("L_xc", ["s_mov_b64 exec, 0xff", f"s_add_u32 s{T0}, s{S_FLAG}, {WS_XCC - WS_FLAG}",
                                         f"buffer_load_dword v{XV}, v{V_F8}, {srd(SWS)}, s{T0} offen sc1", "s_mov_b64 exec, -1"],
                                [f"v_xor_b32 v{XV+1}, s{S_NONCE}, v{XV}", f"v_lshlrev_b32 v{XV+1}, 4, v{XV+1}",
                                 "s_mov_b64 exec, 0xff", f"v_cmp_ne_u32 vcc, 0, v{XV+1}", "s_mov_b64 exec, -1"], 'xl')
        hooks[58] = iss
        hooks[88] = [x for _, x in chk] + ["s_mov_b64 exec, 0xff", f"v_cmp_ne_u32 vcc, s{S_XCCV}, v{XV}", "s_mov_b64 exec, -1",
                                                     f"s_mov_b32 s{S_FAST}, vcc_lo"]
        self.group_sync(0)
        for k in range(4): self.xread(0, k)
        self.prime(0, sync=False)
        kp = o.get('kpace', 3)
        self.gemm_pass(0, ACC_K, xb, hooks=hooks, last=True, pace=lambda n: (1 if n % 3 != 2 else 0) if n < 69 else (1 if n % kp == 0 else 0))
        p("s_barrier")
        self.stamp()
        E0, E1, M0_, M1_ = TMP, TMP + 40, TMP + 80, TMP + 86
        x0, x1 = acc(ACC_K, 0, 0), acc(ACC_K, 0, 1)
        self.release(1)
        wr = lambda rt, x, n, o8: [(2, (f"ds_write_b64 v{V_PW}, {vq(x+2*j, 2)} offset:{rt*1920 + o8 + 8*j}", 'pw')) for j in range(n)]
        def mixw(out, w): return [y for j in range(len(w)) for y in out[2*j:2*j+2] + [w[j]]]
        burst = lambda L: [(0, [x for _, x in L])]
        dm = (2, lambda: self.tick())
        if A:
            P0 = self.phiA_parts(x0, E0, M0_, "L_k0", False); P1 = self.phiA_parts(x1, E1, M1_, "L_k1", False)
            pr = [(0, lambda: self.group_sync(6))] + [(1, lambda n=n, hf=hf: self.wread(100 + n, hf)) for n in range(D - 1) for hf in range(2)]
            self.put([x for _, x in [dm] + P0['cvt'] + self.weave(P0['mf'], [dm] + P1['cvt'] + [dm] + P0['exp'][:4]) + self.weave(P1['mf'], [dm] + P0['exp'][4:12] + [dm] + pr)])
            fill = P0['exp'][12:] + burst(P0['norm']) + mixw(P0['out'], wr(0, x0, 10, 0)) + P1['exp'] + burst(P1['norm']) + mixw(P1['out'], wr(1, x1, 10, 0))
            self.stamp('head')
        else:
            fill = []
            for rt, x, e in ((0, x0, E0), (1, x1, E1)):
                L = self.phiB(x, e, False)
                fill += L[:-10] + mixw(L[-10:], wr(rt, x, 5, 0))
            self.group_sync(6); self.prime(1, sync=False)
        hooks = {}
        for g in range(4): hooks.setdefault(20 * g + 18, []).extend([lambda g=g: self.group_sync(7 + g), lambda g=g: self.release(10 + g)])
        vp = o.get('vpace', 4)
        self.gemm_pass(1, ACC_V, xb, fill=fill, hooks=hooks, last=True, sync=False, pace=lambda n: 1 if n % vp == 0 else 0)
        self.stamp()
        VB = TMP
        for rt in range(2):
            c = self.cvt20(acc(ACC_V, 0, rt), VB + 10 * rt)
            for j in range(5):
                p(c[2*j][1]); p(c[2*j+1][1])
                p(f"ds_write_b64 v{V_PW}, {vq(VB+10*rt+2*j, 2)} offset:{rt*1920 + 80 + 8*j}", 'vw')
                if j == 4 and rt == 0: self.tick()
        self.tick()
        p.wait(lg='*')
        self.stamp('kv0')
        self.flush_dma(('W', 11)); p.wait(vm=[('W', 11)])
        self.stamp('kv1')
        p("s_barrier")
        self.stamp('kv2')
        self.release(14)
        NT = 3 if A else 2
        FB = ACC_K
        KV = TMP + 64
        rds = deque()
        def rd(reg, av, off, kk, j):
            for hf in range(2): rds.append((f"ds_read_b64_tr_b16 {vq(reg+2*hf, 2)}, v{av} offset:{kk*RW + hf*120 + off}", ('kv', kk, j)))
        for kk in range(4):
            b = FB + kk * 20
            rd(b, V_KB, 80, kk, 'a')
            for nt in range(NT): rd(b + 8 + 4 * nt, V_KB, 32 * nt, kk, nt)
        for kk in range(4): rd(FB + kk * 20 + 4, V_KA1, 112, kk, 'z')
        def more(k):
            while k > 0 and rds and len(p.lgq) < 15: self.put([rds.popleft()]); k -= 1
        p(f"v_mov_b32 v{TMP+1}, 0xff")
        more(15); self.tick()
        seq = [(kk, nt) for kk in range(4) for nt in range(NT)]
        p.wait(lg=[('kv',) + seq[0]])
        for i_, (kk, nt) in enumerate(seq):
            b = FB + kk * 20
            p(f"{MF} {vq(KV + nt*4)}, {vq(b)}, {vq(b+8+4*nt)}, {'0' if kk == 0 else vq(KV + nt*4)}")
            if i_ + 1 < len(seq): p.wait(lg=[('kv',) + seq[i_ + 1]])
            more(3)
            if i_ % 6 == 5: self.tick()
        assert not rds
        lastm = 0x00ff00ff if A else 0x000f000f
        def pub(mt, nt):
            a = KV + (mt * 3 + nt) * 4
            lo = lastm if nt == NT - 1 else 0xffffffff
            hi = lo if mt == 0 else 0
            L = [(1, f"v_bfi_b32 v{a+j}, v{TMP+1}, s{S_NONCE}, v{a+j}") for j in range(4)]
            st = (f"buffer_store_dwordx4 {vq(a)}, v{V_P1ST}, {srd(SWS)}, s{S_P1ST} offen offset:{(4*mt*F + 16*nt)*16} sc1", 'p1')
            if (lo, hi) == (0xffffffff, 0xffffffff): return L + [(2, st)]
            return L + [(2, [f"s_mov_b32 exec_lo, {hex(lo)}", f"s_mov_b32 exec_hi, {hex(hi)}", st, "s_mov_b64 exec, -1"])]
        p.wait(lg='*')
        self.stamp('kv3')
        for kk in range(4):
            for j in range(4): p(f"v_and_or_b32 v{FB+kk*20+4+j}, v{FB+kk*20+4+j}, v{V_KEEP}, v{V_ONE}")
        mf = [(2, f"{MF} {vq(KV + (3+nt)*4)}, {vq(FB+kk*20+4)}, {vq(FB+kk*20+8+4*nt)}, {'0' if kk == 0 else vq(KV + (3+nt)*4)}") for nt in range(NT) for kk in range(4)]
        pr = [(1, lambda n=n, hf=hf: self.wread(200 + n, hf)) for n in range(D - 1) for hf in range(2)]
        self.put([x for _, x in self.weave(mf, [y for nt in range(NT) for y in pub(0, nt)] + pr)])
        qhead = [y for nt in range(NT) for y in pub(1, nt)]
        self.stamp()
        X = TMP + 8; CK = TMP + 2
        def tagcheck(mask):
            return [f"v_xor_b32 v{CK}, s{S_NONCE}, v{X}"] + [f"v_bitop3_b32 v{CK}, v{CK}, v{X+j}, s{S_NONCE} bitop3:0xf6" for j in range(1, 4 * NI)] + \
                   [f"v_and_b32 v{CK}, {mask}, v{CK}", f"v_cmp_ne_u32 vcc, 0, v{CK}"]
        lds_ = []
        for ii in range(NI):
            lds_ += [f"s_add_u32 s{T0}, s{S_P1LD}, {ii * (65536 // NI)}", f"buffer_load_dwordx4 {vq(X+4*ii)}, v{V_P1LD}, {srd(SWS)}, s{T0} offen sc1"]
        iss, chk = self.checked("L_h1", lds_, tagcheck("0xff"), 'h1')
        red = [f"v_add_f32 v{X+j}, v{X+j}, v{X+4*ii+j}" for ii in range(1, NI) for j in range(4)]
        red += [f"v_permlane32_swap_b32 v{X}, v{X+2}", f"v_permlane32_swap_b32 v{X+1}, v{X+3}", f"v_add_f32 v{X}, v{X}, v{X+2}", f"v_add_f32 v{X+1}, v{X+1}, v{X+3}",
                f"v_mov_b32 v{CK}, 0xffff", f"v_permlane16_swap_b32 v{X}, v{X+1}", f"v_add_f32 v{X}, v{X}, v{X+1}"]
        if not A: red.append(f"v_add_f32_dpp v{X}, v{X}, v{X} row_ror:8 row_mask:0xf bank_mask:0xf")
        red += [f"v_cvt_pk_bf16_f32 v{X}, v{X}, v{X}", f"v_bfi_b32 v{X}, v{CK}, s{S_NONCE}, v{X}"]
        st = (f"buffer_store_dword v{X}, v{V_P2ST}, {srd(SWS)}, s{S_P2ST} offen sc1", 'p2')
        red.append([st] if A else ["s_mov_b32 exec_lo, 0x00ff00ff", "s_mov_b32 exec_hi, 0x00ff00ff", st, "s_mov_b64 exec, -1"])
        n1, n2 = o.get('h1', (62, 84))
        hooks = {n1 + k: iss[2*k:2*k+2] for k in range(NI)}
        qh = deque(qhead)
        for n in range(12): hooks[n] = [lambda: self.gap(qh, 2)]
        for g in range(4): hooks.setdefault(20 * g + 18, []).extend([lambda g=g: self.group_sync(min(12 + g, 14)), lambda g=g: self.release(15 + g)])
        self.gemm_pass(2, ACC_K, xb, fill=chk + [(1, x) for x in red], hooks=hooks, last=True, sync=False, frange=(n2, 100),
                       pace=lambda n: 1 if (n >= 9 and n % (3 if n < o.get('qsw', 24) else o.get('qpace', 5)) == 0 and not n1 <= n < n1 + NI) else 0)
        assert not qh
        p("s_barrier")
        self.release(19)
        self.stamp()
        X = TMP + 96; CK = TMP + 92
        lds_ = [f"buffer_load_dwordx4 {vq(X+4*ii)}, v{V_LIN if ii < NI-1 else V_GAL}, {srd(SWS)}, s{S_P2LD} offen offset:{1024*ii if ii < NI-1 else 0} sc1" for ii in range(NI)]
        iss, chk = self.checked("L_h2", lds_, tagcheck("0xffff"), 'h2')
        pre = [(f"buffer_load_dword v{V_DUMP}, v{V_L128}, {srd(SWS)}, s{S_OP} offen sc1", 'pr'), (f"buffer_load_dword v{V_DUMP}, v{V_F8}, {srd(SWS)}, s{S_FLAG} offen sc1", 'pr')]
        pre = ["s_mov_b32 exec_hi, 0xff", pre[0], "s_mov_b64 exec, 1", pre[1], "s_mov_b64 exec, -1"]
        zw = [f"v_mov_b32 v{CK}, 0", f"v_mov_b32 v{CK+1}, 0", f"ds_write_b64 v{V_ZA}, {vq(CK, 2)}"]
        self.put(zw)
        for k_ in range(o.get('dirty', 0)):
            p(f"s_add_u32 s{T0}, s{S_OP}, {(9 << 20) + (k_ // 5) * (6 << 20) + (k_ % 5) * 1024}")
            p(f"buffer_store_dwordx4 v[2:5], v{V_LIN}, {srd(SWS)}, s{T0} offen {o.get('dirtyf', '')}")
        if o.get('prepos', 0) == 1: self.put(pre)
        if not A:
            for tt in range(6): p(f"v_accvgpr_write_b32 a{40+4*(3*tt+2)+2}, 0"); p(f"v_accvgpr_write_b32 a{40+4*(3*tt+2)+3}, 0")
        if A:
            P0 = self.phiA_parts(x0, E0, M0_, "L_q0", True); P1 = self.phiA_parts(x1, E1, M1_, "L_q1", True)
            L = P0['cvt'] + self.weave(P0['mf'], P1['cvt'] + P0['exp'][:6]) + self.weave(P1['mf'], P0['exp'][6:]) + P0['norm'] + P0['out'] + P1['exp'] + P1['norm'] + P1['out']
        else:
            L = []
            for x, e in ((x0, E0), (x1, E1)):
                L += self.phiB(x, e, True) + [(1, f"v_mov_b32 v{x+10}, 0"), (1, f"v_mov_b32 v{x+11}, 0")]
        tot = sum(c for c, _ in L); cut = tot - o.get('h2lead', 180) if A else tot
        c = 0; k = 0
        while k < len(L) and c < cut: c += L[k][0]; k += 1
        self.run(L[:k], every=o.get('qev', 44))
        self.stamp('q0')
        self.flush_dma(('W', 15))
        self.stamp('q1')
        self.put(iss)
        if o.get('prepos', 0) == 0: self.put(pre)
        self.stamp('q2')
        self.run(L[k:], every=o.get('qev', 44))
        self.stamp()
        self.put([x for _, x in chk])
        for ii in range(NI):
            p(f"v_perm_b32 v{X+4*ii}, v{X+4*ii+1}, v{X+4*ii}, s{S_PERM}")
            p(f"v_perm_b32 v{X+4*ii+1}, v{X+4*ii+3}, v{X+4*ii+2}, s{S_PERM}")
            p(f"ds_write_b64 v{V_LA+ii}, {vq(X+4*ii, 2)}", 'kvw')
        p.wait(lg='*')
        p("s_barrier")
        self.stamp()
        OA = ACC_V
        NU = 5 if A else 3
        SP = TMP + 112
        if A: p(f"v_mov_b32 v{SP}, v{M0_}"); p(f"v_mov_b32 v{SP+1}, v{M1_}")
        OB = TMP + 64
        LO = TMP + 80
        fr = [(tt, u_) for tt in (5, 0, 1, 2, 3, 4) for u_ in range(NU)]
        AO = 40
        rds = deque()
        for n, (tt, u_) in enumerate(fr):
            if not A and u_ == 2: rds.append((f"ds_read_b64 {aq(AO+4*n, 2)}, v{V_FR2} offset:{4*tt*RS + 16*u_}", ('of', n)))
            else: rds.append((f"ds_read_b128 {aq(AO+4*n)}, v{V_FR2} offset:{4*tt*RS + 16*u_}", ('of', n)))
        more(12)
        p(f"s_add_u32 s{T1}, s{S_OP}, 4096")
        p(f"s_cmp_eq_u32 s{S_FAST}, 0")
        def ost(txt):
            k = len(self.ool)
            if o.get('noslow'): p(txt, 'o'); return
            if o.get('nofast'): p(txt + " sc1", 'o'); return
            p(f"s_cbranch_scc0 L_os{k}{self.sfx}"); p(txt + " " + o.get('fastf', ''), 'o'); p(f"L_or{k}{self.sfx}:")
            self.ool.append(f"L_os{k}{self.sfx}:\n    {txt} sc1\n    s_branch L_or{k}{self.sfx}\n")
        epi = deque()
        for rt in range(2):
            dn = OA + (rt * 6 + 5) * 4
            b = OA + rt * 24
            rdy = lambda k: rt * 6 * NU + (k + 1) * NU + 3
            epi.append((rdy(0), 1, f"v_fmac_f32 v{dn}, {EPS}, v{SP+rt}" if A else f"v_add_f32 v{dn}, {EPS}, v{dn}")); epi.append((rdy(0), 2, f"v_rcp_f32 v{dn}, v{dn}"))
            for tt in range(5):
                for r in range(4): epi.append((rdy(tt + 1), 1, f"v_mul_f32 v{b+4*tt+r}, v{b+4*tt+r}, v{dn}"))
                for h in range(2):
                    i = 2 * tt + h
                    d = OB + ((i // 4) * 2 + rt) * 4 + i % 4 if i < 8 else LO + 2 * rt + (i - 8)
                    epi.append((rdy(tt + 1), 1, f"v_cvt_pk_bf16_f32 v{d}, v{b+2*i}, v{b+2*i+1}"))
                if tt in (1, 3):
                    u_ = tt // 2
                    epi.append((0, 2, lambda u_=u_, rt=rt: ost(f"buffer_store_dwordx4 {vq(OB+(u_*2+rt)*4)}, v{V_LIN}, {srd(SWS)}, s{S_OP} offen offset:{(rt*2+u_)*1024}")))
        epi.append((0, 2, lambda: ost(f"buffer_store_dwordx4 {vq(LO)}, v{V_LIN}, {srd(SWS)}, s{T1} offen")))
        pr = deque((300 + n, hf) for n in range(D - 1) for hf in range(2))
        m = 0
        for rt in range(2):
            for n, (tt, u_) in enumerate(fr):
                a = OA + (rt * 6 + tt) * 4
                if m == 0: p.wait(lg=[('of', 0)])
                p(f"{MF} {vq(a)}, {aq(AO+4*n)}, {vq(ACC_K+20*rt+4*u_)}, {'0' if u_ == 0 else vq(a)}")
                m += 1
                if rt == 0 and n + 1 < len(fr): p.wait(lg=[('of', n + 1)])
                bud = 2 if A else 3
                if rds: more(2); bud -= 2
                elif self.dq and m % o.get('opace', 8) == 0: self.tick(); p(f"s_cmp_eq_u32 s{S_FAST}, 0"); bud -= 2
                elif pr and not (epi and epi[0][0] <= m): self.wread(*pr.popleft()); bud -= 1
                while epi and epi[0][0] <= m and epi[0][1] <= bud:
                    _, c, x = epi.popleft(); bud -= c; self.put([x])
        while pr: self.wread(*pr.popleft())
        while epi: self.put([epi.popleft()[2]])
        self.stamp()
        def ob(ks, rt):
            if ks < 2: return vq(OB + (ks * 2 + rt) * 4)
            return aq((ks * 2 + rt) * 4) if ks < 16 else vq(LO + (2 * (ks - 16) + rt) * 4)
        def oload(P):
            if P < 16:
                return [[(f"buffer_load_dwordx4 {aq((P*2+rt)*4)}, v{V_LIN}, {srd(SWS)}, s{S_OP + P//2} offen offset:{(rt*2+P%2)*1024} sc1", ('O', P))] for rt in range(2)]
            return [[f"s_add_u32 s{T0}, s{S_OP + 2*(P-16) + h}, 4096", (f"buffer_load_dwordx4 {vq(LO+(2*(P-16)+h)*4)}, v{V_LIN}, {srd(SWS)}, s{T0} offen sc1", ('O', P))]
                    for h in range(2) if (P, h) != (16, 0)]
        def handshake():
            while self.tick(): pass
            p("s_waitcnt vmcnt(0)")
            p(f"s_cmp_eq_u32 s{S_FAST}, 0")
            p("s_mov_b64 exec, 1")
            ost(f"buffer_store_dword v{V_NONCE}, v{V_FOWN}, {srd(SWS)}, s{S_FLAG} offen")
            p("s_mov_b64 exec, 0xff")
            p("s_barrier")
            iss, chk = self.checked("L_h3", [f"buffer_load_dword v{V_DUMP}, v{V_F8}, {srd(SWS)}, s{S_FLAG} offen sc1"], [f"v_cmp_ne_u32 vcc, s{S_NONCE}, v{V_DUMP}"], 'h3')
            self.put(iss); self.put([x for _, x in chk])
            p("s_mov_b64 exec, -1")
            self.stamp()
            for P in range(2, 20): self.q(0, oload(P))
            for _ in range(o.get('oprime', 8)): self.tick()
        def owait(P):
            self.flush_dma(('O', P))
            p.wait(vm=[('O', P)])
            if P >= 16:
                a = LO + 2 * (P - 16) * 4
                p(f"v_swap_b32 v{a+2}, v{a+4}"); p(f"v_swap_b32 v{a+3}, v{a+5}")
        hooks = {5 * P - 1: [lambda P=P: owait(P)] for P in range(2, 20)}
        hooks[9] = [handshake] + hooks[9]
        hooks[90] = [f"s_or_b32 s{T0}, s{S_RB}, s{S_HEAD}", f"s_cmp_lg_u32 s{T0}, 0", f"s_cselect_b32 s{T0}, {WS_SIZE}, 0", "s_mov_b64 exec, 1",
                     (f"buffer_store_dword v{V_NONCE}, v{V_LIN}, {srd(SWS)}, s{T0} offen offset:{br*128} sc1", 'nn'), "s_mov_b64 exec, -1"]
        self.gemm_pass(3, ACC_K, ob, hooks=hooks, last=True, sync=False, pace=lambda n: 1 if n % 2 == 0 and n > 9 else 0)
        self.stamp()
        for rt in range(2):
            c = self.cvt20(acc(ACC_K, 0, rt), TMP + 10 * rt)
            for j in range(5):
                p(c[2*j][1]); p(c[2*j+1][1])
                p(f"ds_write_b64 v{V_OW}, {vq(TMP+10*rt+2*j, 2)} offset:{rt*16*OUTS + 8*j}", 'ow')
        for j in range(5): p(f"ds_read_b128 {vq(TMP+24+4*j)}, v{V_ORD+j}", ('or', j))
        for j in range(5):
            p.wait(lg=[('or', j)])
            p(f"buffer_store_dwordx4 {vq(TMP+24+4*j)}, v{V_OG+j}, {srd(SOUT)}, s{S_OUT} offen {o.get('oflag', '')}", 'out')
        if o.get('stamps'):
            p("s_waitcnt vmcnt(0)")
            self.stamp()
            p("s_memrealtime s[100:101]")
            p("s_waitcnt lgkmcnt(0)")
            p.raw(f"""
            s_lshl_b32 s{T0}, s2, 2
            s_add_u32 s{T0}, s{T0}, s{S_W}
            s_lshl_b32 s{T0}, s{T0}, 6
            s_add_u32 s{T0}, s{T0}, {WS_ST}
            v_mov_b32 v{TMP+16}, 0
            v_mov_b32 v{TMP}, s98
            v_mov_b32 v{TMP+1}, s100
            """)
            for k in range(14): p(f"v_mov_b32 v{TMP+2+k}, {'s%d' % (S_ST+k) if k < self.nst else ('s95' if k == 13 else 0)}")
            p("s_mov_b64 exec, 1")
            for k in range(4): p(f"buffer_store_dwordx4 {vq(TMP+4*k)}, v{TMP+16}, {srd(SWS)}, s{T0} offen offset:{16*k}")
        if o.get('amp') and self.sfx in o['amp'][2]:
            p("s_waitcnt vmcnt(0)")
            self.stamp()
            p.raw(f"""
            s_sub_u32 s{T0}, s100, s98
            s_mul_i32 s{T0}, s{T0}, {o['amp'][1]}
            s_min_u32 s{T0}, s{T0}, 100000
            L_amp{self.sfx}:
            s_sleep 2
            s_memrealtime s[62:63]
            s_waitcnt lgkmcnt(0)
            s_sub_u32 s{T1}, s62, s98
            s_cmp_lt_u32 s{T1}, s{T0}
            s_cbranch_scc1 L_amp{self.sfx}
            """)
        p("s_endpgm")
        assert not self.dq
        return p.finalize() + "".join(self.ool)

def build(opt):
    ref = open(f"cdna_kernels/{NAME}.s.ref").read().split("\n")
    head = [l for l in ref if l.startswith(";") and "@launch" not in l]
    s = "\n".join(head) + "\n; @launch grid=(256,1,1) block=(256,1,1) lds=163840\n"
    s += f""".amdgcn_target "amdgcn-amd-amdhsa--gfx950"
.text
.globl {NAME}_kernel
.p2align 8
.type {NAME}_kernel,@function
{NAME}_kernel:
    s_cmp_ge_u32 s2, 256
    s_cbranch_scc1 L_exit
    s_bitcmp1_b32 s2, 2
    s_cbranch_scc1 L_bodyB
"""
    ga = Gen(True, opt); s += ga.body()
    s += "L_exit:\n    s_endpgm\n.p2align 8\n"
    gb = Gen(False, opt); s += gb.body()
    s += ".fill 4096, 4, 0xbf810000\n"
    s += f""".section .rodata,"a"
.p2align 6
.amdhsa_kernel {NAME}_kernel
  .amdhsa_next_free_vgpr 512
  .amdhsa_next_free_sgpr 102
  .amdhsa_accum_offset 256
  .amdhsa_group_segment_fixed_size 0
  .amdhsa_kernarg_size 80
  .amdhsa_user_sgpr_count 2
  .amdhsa_user_sgpr_kernarg_segment_ptr 1
  .amdhsa_system_sgpr_workgroup_id_x 1
.end_amdhsa_kernel
"""
    print("nops", ga.p.nops, gb.p.nops, "instrs", len(ga.p.ins), len(gb.p.ins), "autow", getattr(ga.p, 'autow', 0), file=sys.stderr)
    return s

if __name__ == "__main__":
    import json
    opt = json.loads(sys.argv[2]) if len(sys.argv) > 2 else {}
    open(sys.argv[1], "w").write(build(opt))
```

```python
import sys
from collections import deque
from emit import Prog
NAME = "concat_heads__linear_kernel_hedgehog__linear_attn_block__prompt"

S_RB, S_HG, S_W = 4, 5, 7
SX, SW, SWO, SWS, SOUT, SPHI = 8, 12, 16, 20, 24, 28
S_NONCE = 32
S_WROW = 33
S_XBASE, S_XU = 38, 39
S_LW, S_LR = 40, 41
T0, T1, T2, T3 = 42, 43, 44, 45
S_WOROW = 46
S_HEAD = 51
S_SPIN = 52
S_FAST = 53
S_L2E, S_NL2E = 54, 55
S_OB = 56
S_WS, S_XS = 57, 58
S_FLAG = 59
S_OP = 60
S_P1ST, S_P1LD, S_P2ST, S_P2LD, S_OWN, S_OUT, S_XCCV, S_PERM = 68, 69, 70, 71, 72, 73, 74, 75
S_KA = 76
S_ST = 76
def srd(b): return f"s[{b}:{b+3}]"
V_LANE = 1
V_WO = 2; V_OF = 7; V_OL = 12; V_XO = 17; V_XR = 21; V_WT = 23; V_LIN = 25
V_PW, V_VW, V_KB, V_KA0, V_KA1, V_FR = 26, 27, 28, 29, 30, 31
ACC_K, ACC_V = 32, 72
TMP = 112
PV = 228
V_P1ST, V_P1LD, V_P2ST, V_GAL, V_LA, V_FR2, V_KEEP, V_ONE, V_OW, V_ORD, V_OG, V_F8, V_DUMP, V_ZA = PV, PV+1, PV+2, PV+3, PV+4, PV+8, PV+9, PV+10, PV+11, PV+12, PV+17, PV+22, PV+23, PV+24
V_L128, V_NONCE, V_FOWN = PV + 25, PV + 26, PV + 27
RING = 0; SLOT = 20480; RBASE = 102400; RW = 15360
OUTL = RBASE + 16384; OUTS = 176
WS_FLAG, WS_XCC, WS_P2, WS_P1, WS_O, WS_ST = 4096, 32768, 65536, 1 << 20, 8 << 20, 16 << 20
WS_SIZE = 32 << 20
D = 6
A_RING = 220
A_PHI = 160
SPIN_MAX = 20000
EPS = "0x358637bd"

def vq(b, n=4): return f"v[{b}:{b+n-1}]"
def aq(b, n=4): return f"a[{b}:{b+n-1}]"
def acc(base, t, rt): return base + (rt * 5 + t) * 4
MF = "v_mfma_f32_16x16x32_bf16"

DEF = {'A': dict(h1=(45, 84)), 'B': dict(h1=(45, 84), vpace=3, qpace=4, qev=24, vsync=1)}
class Gen:
    def __init__(self, isA, opt):
        self.A = isA
        sf = 'A' if isA else 'B'
        opt = dict(DEF[sf], **opt)
        opt.update({k[:-1]: v for k, v in opt.items() if k.endswith(sf)})
        self.o = opt
        self.p = Prog(); self.sfx = 'A' if isA else 'B'
        self.F = 40 if isA else 20
        self.nst = 0
        self.dq = deque()
        self.pos = 0
        self.ool = []
    def stamp(self, name=None):
        p = self.p
        fine = self.o.get('fine')
        if fine:
            if name is None: self.cs = getattr(self, 'cs', 0) + 1; name = 's%d' % (self.cs - 1)
            if name not in fine: return
        elif name is not None: return
        if self.o.get('amp'):
            if self.nst == self.o['amp'][0]:
                p("s_memrealtime s[100:101]"); p("s_waitcnt lgkmcnt(0)")
            self.nst += 1
            return
        if not self.o.get('stamps'): return
        p(f"s_memtime s[100:101]")
        p("s_waitcnt lgkmcnt(0)")
        p(f"s_sub_u32 s{S_ST+self.nst}, s100, s96")
        self.nst += 1
    def put(self, L):
        for x in L:
            if isinstance(x, tuple): self.p(x[0], x[1])
            elif isinstance(x, list): self.put(x)
            elif callable(x): x()
            else: self.p(x)
    def dma_w(self, G):
        g = G % 5
        pre = [f"s_add_u32 m0, s{S_LW}, {RING + g*SLOT}"]
        if G < 15:
            col = {0: 1280, 1: 2560, 2: 0}[G // 5]
            pre.append(f"s_add_u32 s{S_WS}, s{S_WROW+g}, {col}"); so = f"s{S_WS}"; sd = SW; vo = V_WO
        else:
            so = f"s{S_WOROW+g}"; sd = SWO; vo = V_OF if g < 4 else V_OL
        items = []
        for j in range(5):
            off = f"offset:{j*1024} " if 0 < j < 4 else ""
            L = (pre if j == 0 else []) + [(f"buffer_load_dwordx4 v{vo+j}, {srd(sd)}, {so} offen {off}lds", ('W', G))]
            if j == 3: L.append(f"s_add_u32 m0, s{S_LW}, {RING + g*SLOT + 4096}")
            items.append(L)
        return items
    def dma_x(self, pu):
        items = []
        for j in range(4):
            off = f"offset:{j*1024} " if j else ""
            L = []
            if j == 0: L += [f"s_add_u32 m0, s{S_LR}, {(pu % 3) * 4096}", f"s_add_u32 s{S_XS}, s{S_XU}, s{S_XBASE}"]
            L.append((f"buffer_load_dwordx4 v{V_XO+j}, {srd(SX)}, s{S_XS} offen {off}lds", ('X', pu)))
            if j == 0: L += [f"s_add_u32 s{S_XU}, s{S_XU}, 128"]
            if j == 1: L += [f"s_cmp_eq_u32 s{S_XU}, 1280", f"s_cselect_b32 s{S_XU}, 0, s{S_XU}"]
            items.append(L)
        return items
    def q(self, earliest, items):
        for it in items: self.dq.append((earliest, it))
    def release(self, k):
        self.dq = deque((0 if e == 10**6 + k else e, it) for e, it in self.dq)
    def tick(self):
        if self.dq and self.dq[0][0] <= self.pos:
            self.put(self.dq.popleft()[1]); return True
        return False
    def flush_dma(self, tag):
        def has():
            return any(isinstance(x, tuple) and x[1] == tag for _, it in self.dq for x in it)
        while has():
            assert self.dq[0][0] <= self.pos, (tag, self.pos, self.dq[0])
            self.put(self.dq.popleft()[1])
    def run(self, L, every=30):
        c = 0
        for cost, x in L:
            self.put([x]); c += cost
            if c >= every: c = 0; self.tick()
    def wread(self, N, hf):
        G = N // 20; ks = (N % 20) // 5; t = N % 5
        off = RING + (G % 5) * SLOT + ks * 5120 + hf * 2560 + 8 * t
        hi = off >= 51200
        s = A_RING + (N % D) * 4 + 2 * hf
        self.p(f"ds_read_b64_tr_b16 a[{s}:{s+1}], v{V_WT + hi} offset:{off - 51200*hi}", ('F', N))
    def group_sync(self, G):
        self.flush_dma(('W', G))
        self.p.wait(vm=[('W', G)])
        self.p("s_barrier")
    def xread(self, pu, k):
        ksub, rt = divmod(k, 2)
        if k == 0:
            self.flush_dma(('X', pu)); self.p.wait(vm=[('X', pu)])
        a = ((2 * pu + ksub) * 2 + rt) * 4
        self.p(f"ds_read_b128 {aq(a)}, v{V_XR+ksub} offset:{(pu % 3)*4096 + rt*2048}", ('XR', pu))
    def prime(self, ps, sync=True):
        if sync: self.group_sync(ps * 5)
        for n in range(D - 1):
            self.wread(ps * 100 + n, 0); self.wread(ps * 100 + n, 1)
    def gemm_pass(self, ps, accb, bop, fill=None, hooks=None, last=False, pace=None, sync=True, frange=(0, 100), hooks0=None):
        p = self.p
        fill = deque(fill or []); hooks = hooks or {}; hooks0 = hooks0 or {}
        N0 = ps * 100
        p.wait(lg=[('F', N0), ('XR', 0)])
        pace = pace or (lambda n: 0)
        for n in range(100):
            self.pos = N0 + n
            ks, t = divmod(n, 5)
            s = A_RING + ((N0 + n) % D) * 4
            M = n + D - 1
            look = M < 100 or not last
            a = acc(accb, t, 0)
            p(f"{MF} {vq(a)}, {aq(s)}, {bop(ks, 0)}, {'0' if ks == 0 else vq(a)}")
            k0 = len(p.ins)
            if n < 99:
                tg = [('F', N0 + n + 1)]
                if ps == 0 and (n + 1) % 10 == 0: tg.append(('XR', (n + 1) // 10))
                p.wait(lg=tg)
            if n in hooks0: self.put(hooks0[n])
            if look:
                if M % 20 == 0 and sync: self.group_sync((N0 + M) // 20)
                if len(p.ins) == k0: p("s_nop 0")
                self.wread(N0 + M, 0); self.wread(N0 + M, 1)
            elif fill and n >= frange[0]: self.gap(fill, 2)
            a = acc(accb, t, 1)
            p(f"{MF} {vq(a)}, {aq(s)}, {bop(ks, 1)}, {'0' if ks == 0 else vq(a)}")
            self.pos = N0 + n + 1
            self.stamp('n%d' % (N0 + n))
            did = 0
            for _ in range(pace(n)): did += self.tick()
            if n in hooks: self.put(hooks[n])
            if fill and n >= frange[0]:
                left = sum(c for c, _ in fill)
                gaps = sum(1 for k in range(n, frange[1]) if not pace(k)) + (min(D - 1, 99 - n) if last and frange[1] == 100 else 0)
                bud = 0 if did else 2
                if left > 2 * gaps: bud += 2
                self.gap(fill, bud)
        while fill: self.put([fill.popleft()[1]])
        self.pos = N0 + 100
    def gap(self, fill, bud):
        first = True
        while fill:
            c, x = fill[0]
            solo = isinstance(x, tuple)
            if c > bud or (solo and not first): break
            fill.popleft(); self.put([x]); bud -= c
            if solo: break
            if c: first = False
    def cvt20(self, src, dst):
        return [(1, f"v_cvt_pk_bf16_f32 v{dst+i}, v{src+2*i}, v{src+2*i+1}") for i in range(10)]
    def phiA_parts(self, x, e, m, name, isq):
        P = {}
        kb = e + 28
        P['cvt'] = self.cvt20(x, kb) + [(1, f"v_mov_b32 v{kb+10}, 0"), (1, f"v_mov_b32 v{kb+11}, 0")]
        P['mf'] = [(2, f"{MF} {vq(x+4*t)}, {aq(A_PHI + (t*3+u)*4)}, {vq(kb+4*u)}, {'0' if u == 0 else vq(x+4*t)}") for t in range(5) for u in range(3)]
        P['exp'] = [(2, f"v_exp_f32 v{e+i}, v{x+i}") for i in range(20)] + [(2, f"v_exp_f32 v{e+20+i}, -v{x+i}") for i in range(20)]
        def sums():
            L = [f"v_pk_add_f32 v[{m+2*h}:{m+2*h+1}], v[{e+20*h}:{e+20*h+1}], v[{e+20*h+2}:{e+20*h+3}]" for h in range(2)]
            L += [f"v_pk_add_f32 v[{m+2*h}:{m+2*h+1}], v[{m+2*h}:{m+2*h+1}], v[{e+20*h+2*i}:{e+20*h+2*i+1}]" for i in range(2, 10) for h in range(2)]
            L += [f"v_add_f32 v{m+2*h}, v{m+2*h}, v{m+2*h+1}" for h in range(2)]
            return L
        nm = name + self.sfx
        L = sums() + [f"v_max_f32 v{m+1}, v{m}, v{m+2}", f"v_cmp_ngt_f32 vcc, 0x5d800000, v{m+1}"]
        if not isq: L.append(f"v_rcp_f32 v{m+4}, v{m}")
        L += [f"v_rcp_f32 v{m+2}, v{m+2}", [f"s_cbranch_vccnz {nm}_slow", f"{nm}_back:"]]
        o = Prog()
        o(f"{nm}_slow:")
        o(f"v_max3_f32 v{m}, v{x}, v{x+1}, v{x+2}"); o(f"v_min3_f32 v{m+1}, v{x}, v{x+1}, v{x+2}")
        for i in range(3, 19, 2):
            o(f"v_max3_f32 v{m}, v{m}, v{x+i}, v{x+i+1}"); o(f"v_min3_f32 v{m+1}, v{m+1}, v{x+i}, v{x+i+1}")
        o(f"v_max_f32 v{m}, v{m}, v{x+19}"); o(f"v_min_f32 v{m+1}, v{m+1}, v{x+19}")
        for i in range(20): o(f"v_sub_f32 v{e+i}, v{x+i}, v{m}"); o(f"v_sub_f32 v{e+20+i}, v{m+1}, v{x+i}")
        for i in range(40): o(f"v_exp_f32 v{e+i}, v{e+i}")
        for y in sums(): o(y)
        if not isq: o(f"v_rcp_f32 v{m+4}, v{m}")
        o(f"v_rcp_f32 v{m+2}, v{m+2}"); o("s_nop 1"); o(f"s_branch {nm}_back")
        self.ool.append(o.finalize())
        if isq: L.append(f"v_mul_f32 v{m+2}, v{m+2}, v{m}")
        else: L += [f"v_pk_mul_f32 v[{e+2*i}:{e+2*i+1}], v[{e+2*i}:{e+2*i+1}], v[{m+4}:{m+5}] op_sel_hi:[1,0]" for i in range(10)]
        L += [f"v_pk_mul_f32 v[{e+20+2*i}:{e+21+2*i}], v[{e+20+2*i}:{e+21+2*i}], v[{m+2}:{m+3}] op_sel_hi:[1,0]" for i in range(10)]
        P['norm'] = [(1, y) for y in L]
        P['out'] = [(1, f"v_cvt_pk_bf16_f32 v{x+i}, v{e+2*i}, v{e+2*i+1}") for i in range(20)]
        return P
    def weave(self, mf, va, per=2):
        va = deque(va); L = []
        for x in mf:
            L.append(x); b = per
            while va and va[0][0] <= b: b -= va[0][0]; L.append(va.popleft())
        return L + list(va)
    def phiB(self, x, e, packed):
        L = []
        if packed: L += [(1, f"v_pk_mul_f32 v[{e+2*i}:{e+2*i+1}], v[{x+2*i}:{x+2*i+1}], s[{S_L2E}:{S_NL2E}] op_sel_hi:[1,0]") for i in range(10)]
        else: L += [(1, f"v_mul_f32 v{e+i}, s{S_L2E}, v{x+i}") for i in range(20)]
        L += [(2, f"v_exp_f32 v{e+i}, v{e+i} clamp") for i in range(20)]
        L += [(1, f"v_max_f32 v{x+i}, {EPS}, v{x+i}") for i in range(20)]
        if packed: L += [(1, f"v_pk_add_f32 v[{e+2*i}:{e+2*i+1}], v[{e+2*i}:{e+2*i+1}], v[{x+2*i}:{x+2*i+1}]") for i in range(10)]
        else: L += [(1, f"v_add_f32 v{e+i}, v{e+i}, v{x+i}") for i in range(20)]
        L += self.cvt20(e, x)
        return L
    def checked(self, name, loads, check, tag):
        nm = name + self.sfx
        iss = [(x, tag) if x.startswith('buffer') else x for x in loads]
        chk = [(0, lambda: self.p.wait(vm=[tag]))] + [(1, x) for x in check] + [(1, [f"s_cbranch_vccnz {nm}_retry", f"{nm}_ok:"])]
        o = Prog()
        o(f"{nm}_retry:"); o(f"s_mov_b32 s{S_SPIN}, 0"); o(f"{nm}_loop:")
        if self.o.get('stamps'): o(f"s_add_u32 s95, s95, {dict(L_xc=1000000, L_h1=10000, L_h2=100, L_h3=1)[name]}")
        for x in loads: o(x)
        o("s_waitcnt vmcnt(0)")
        for x in check: o(x)
        o(f"s_cbranch_vccz {nm}_ok")
        o(f"s_add_u32 s{S_SPIN}, s{S_SPIN}, 1"); o(f"s_cmp_lt_u32 s{S_SPIN}, {SPIN_MAX}"); o(f"s_cbranch_scc1 {nm}_loop")
        o(f"s_branch {nm}_ok")
        self.ool.append(o.finalize())
        return iss, chk
    def body(self):
        p = self.p; A = self.A; F = self.F; br = 0 if A else 1; o = self.o
        t = TMP
        p(f"L_body{self.sfx}:")
        K = S_KA
        if A:
            p(f"s_load_dwordx8 s[{K}:{K+7}], s[0:1], 0")
        else:
            p(f"s_load_dwordx4 s[{K}:{K+3}], s[0:1], 32")
            p(f"s_load_dwordx2 s[{K+6}:{K+7}], s[0:1], 48")
        kx, kw, kphi, kwo, kout, kws = K, K + 2, K + 4, K + 6, K + 8, K + 10
        p(f"s_load_dwordx2 s[{kout}:{kout+1}], s[0:1], 56")
        p(f"s_load_dwordx2 s[{kws}:{kws+1}], s[0:1], 72")
        if o.get('stamps'): p("s_memtime s[96:97]"); p("s_mov_b32 s95, 0")
        if o.get('stamps') or o.get('amp'): p("s_memrealtime s[98:99]")
        p.raw(f"""
        s_getpc_b64 s[60:61]
        s_bfe_u32 s{S_HG}, s2, 0x30003
        v_and_b32 v{V_LANE}, 63, v0
        v_lshrrev_b32 v{t}, 6, v0
        s_lshl_b32 s{T0}, s{S_HG}, 12
        v_lshlrev_b32 v{V_L128}, 7, v{V_LANE}
        v_readfirstlane_b32 s{S_W}, v{t}
        s_add_u32 s60, s60, s{T0}
        s_addc_u32 s61, s61, 0
        v_lshl_add_u32 v{t+1}, v{t}, 10, v{V_L128}
        s_mov_b64 exec, 0xff
        """)
        p(f"global_load_dword v{V_DUMP}, v{t+1}, s[60:61]", 'cpf')
        p("s_mov_b64 exec, -1")
        ra, rbm, rdiv = o.get('rot', (10, 10, 4))
        p.raw(f"""
        s_and_b32 s{S_RB}, s2, 3
        s_lshl_b32 s{S_RB}, s{S_RB}, 2
        s_lshr_b32 s{T0}, s2, 6
        s_add_u32 s{S_RB}, s{S_RB}, s{T0}
        s_mul_i32 s{T0}, s{S_HG}, {ra}
        s_mul_i32 s{T1}, s{S_RB}, {rbm}
        s_add_u32 s{T0}, s{T0}, s{T1}
        s_lshr_b32 s{T0}, s{T0}, {rdiv.bit_length()-1}
        s_mul_i32 s{T1}, s{T0}, 6554
        s_lshr_b32 s{T1}, s{T1}, 16
        s_mul_i32 s{T1}, s{T1}, 10
        s_sub_u32 s{T3}, s{T0}, s{T1}
        s_lshl_b32 s{S_XU}, s{T3}, 7
        s_lshl_b32 s{T0}, s{S_RB}, 2
        s_add_u32 s{T0}, s{T0}, s{S_W}
        s_mul_i32 s{S_XBASE}, s{T0}, 40960
        s_mul_i32 s{S_LW}, s{S_W}, 5120
        s_mul_i32 s{S_LR}, s{S_W}, {RW}
        s_add_u32 s{S_LR}, s{S_LR}, {RBASE}
        v_lshrrev_b32 v{t}, 3, v{V_LANE}
        v_mul_u32_u24 v{t}, 1280, v{t}
        v_lshrrev_b32 v{t+1}, 4, v{V_LANE}
        v_xor_b32 v{t+1}, v{t+1}, v{V_LANE}
        v_and_b32 v{t+1}, 7, v{t+1}
        v_lshl_add_u32 v{V_XO}, v{t+1}, 4, v{t}
        v_xor_b32 v{t+2}, 64, v{V_XO}
        v_add_u32 v{V_XO+1}, {9216}, v{t+2}
        v_add_u32 v{V_XO+2}, {2*9216}, v{V_XO}
        v_add_u32 v{V_XO+3}, {3*9216}, v{t+2}
        s_lshr_b32 s{T0}, s{S_W}, 1
        s_add_u32 s{T0}, s{T0}, s{T3}
        s_and_b32 s{T1}, s{S_W}, 1
        s_mul_i32 s{T1}, s{T1}, {32*3840}
        s_mul_i32 s{T2}, s{S_HG}, 160
        s_add_u32 s{T1}, s{T1}, s{T2}
        s_mov_b32 s{SX+2}, 2621440
        s_mov_b32 s{SX+3}, 0x20000
        s_mov_b32 s{SW+2}, 2457600
        s_mov_b32 s{SW+3}, 0x20000
        """)
        def wrow(g):
            p.raw(f"""
            s_cmp_ge_u32 s{T0}, 10
            s_cselect_b32 s{T2}, 10, 0
            s_sub_u32 s{T0}, s{T0}, s{T2}
            s_mul_i32 s{T2}, s{T0}, {64*3840}
            s_add_u32 s{S_WROW+g}, s{T2}, s{T1}
            s_add_u32 s{T0}, s{T0}, 2
            """)
        wrow(0)
        RH = TMP + 10
        def woff(j):
            b = RH + 5 * j
            p.raw(f"""
            v_add_u32 v{t}, {64*j}, v{V_LANE}
            v_mul_u32_u24 v{b+4}, 6554, v{t}
            v_lshrrev_b32 v{b+4}, 16, v{b+4}
            v_mul_u32_u24 v{t+2}, 10, v{b+4}
            v_sub_u32 v{b+3}, v{t}, v{t+2}
            v_bfe_u32 v{b}, v{b+4}, 2, 2
            v_lshrrev_b32 v{b+1}, 4, v{b+4}
            v_and_b32 v{b+2}, 3, v{b+4}
            v_lshl_add_u32 v{t}, v{b}, 1, v{b+1}
            v_lshl_add_u32 v{t}, v{t}, 2, v{b+2}
            v_mul_u32_u24 v{t}, 3840, v{t}
            v_lshl_add_u32 v{V_WO+j}, v{b+3}, 4, v{t}
            """)
            if 0 < j < 4: p(f"v_subrev_u32 v{V_WO+j}, {1024*j}, v{V_WO+j}")
        woff(0); woff(1)
        p.raw(f"""
        s_waitcnt lgkmcnt(0)
        s_mov_b32 s{SX}, s{kx}
        s_mov_b32 s{SX+1}, s{kx+1}
        s_mov_b32 s{SW}, s{kw}
        s_mov_b32 s{SW+1}, s{kw+1}
        """)
        self.put(self.dma_x(0))
        p(f"s_load_dword s{S_NONCE}, s[{kws}:{kws+1}], {br*128}")
        w0 = self.dma_w(0)
        self.put(w0[0:2]); woff(2); self.put(w0[2]); woff(3); self.put(w0[3]); woff(4); self.put(w0[4])
        for g in range(1, 5): wrow(g)
        self.q(0, self.dma_x(1))
        p.raw(f"""
        s_mov_b32 s{SWO}, s{kwo}
        s_mov_b32 s{SWO+1}, s{kwo+1}
        s_mov_b32 s{SWO+2}, 819200
        s_mov_b32 s{SWO+3}, 0x20000
        s_mov_b32 s{SWS}, s{kws}
        s_mov_b32 s{SWS+1}, s{kws+1}
        s_mov_b32 s{SWS+2}, {WS_SIZE}
        s_mov_b32 s{SWS+3}, 0x20000
        s_mov_b32 s{SOUT}, s{kout}
        s_mov_b32 s{SOUT+1}, s{kout+1}
        s_mov_b32 s{SOUT+2}, 5242880
        s_mov_b32 s{SOUT+3}, 0x20000
        s_lshl_b32 s{S_HEAD}, s{S_HG}, 2
        s_add_u32 s{S_HEAD}, s{S_HEAD}, s{S_W}
        v_lshlrev_b32 v{V_LIN}, 4, v{V_LANE}
        """)
        if A:
            p.raw(f"""
            s_mov_b32 s{SPHI}, s{kphi}
            s_mov_b32 s{SPHI+1}, s{kphi+1}
            s_mov_b32 s{SPHI+2}, 25600
            s_mov_b32 s{SPHI+3}, 0x20000
            """)
            self.q(0, [[f"s_mul_i32 s{S_WS}, s{S_HEAD}, 800",
                        (f"buffer_load_dwordx4 {vq(TMP+96)}, v{V_LIN}, {srd(SPHI)}, s{S_WS} offen", 'wphi')]])
        self.q(0, self.dma_w(1)); self.q(0, self.dma_x(2))
        G_, I_, R_, C_ = t, t + 1, t + 2, t + 3
        S = []
        def raw(txt):
            for l in txt.split('\n'):
                if l.strip(): S.append((1, l.strip()))
        raw(f"""
        v_lshrrev_b32 v{G_}, 4, v{V_LANE}
        v_and_b32 v{I_}, 15, v{V_LANE}
        v_bfe_u32 v{R_}, v{V_LANE}, 2, 2
        v_and_b32 v{C_}, 3, v{V_LANE}
        v_lshrrev_b32 v{t+4}, 1, v{I_}
        v_xor_b32 v{t+4}, v{t+4}, v{G_}
        v_lshlrev_b32 v{t+5}, 7, v{I_}
        v_lshl_add_u32 v{t+4}, v{t+4}, 4, v{t+5}
        v_add_u32 v{V_XR}, s{S_LR}, v{t+4}
        v_xor_b32 v{t+4}, 64, v{t+4}
        v_add_u32 v{V_XR+1}, s{S_LR}, v{t+4}
        v_lshrrev_b32 v{t+4}, 2, v{V_LANE}
        v_mul_u32_u24 v{t+5}, 160, v{t+4}
        v_mul_u32_u24 v{t+6}, 40, v{C_}
        v_add_u32 v{V_WT}, v{t+5}, v{t+6}
        v_add_u32 v{V_WT+1}, 51200, v{V_WT}
        v_mul_u32_u24 v{t+5}, 120, v{I_}
        v_mul_u32_u24 v{t+6}, 3840, v{G_}
        v_add3_u32 v{V_PW}, v{t+5}, v{t+6}, s{S_LR}
        v_mul_u32_u24 v{t+6}, 40, v{G_}
        v_mul_u32_u24 v{t+7}, {OUTS}, v{I_}
        s_mul_i32 s{T2}, s{S_W}, {32*OUTS}
        s_add_u32 s{T2}, s{T2}, {OUTL}
        v_add3_u32 v{V_OW}, v{t+7}, v{t+6}, s{T2}
        v_and_b32 v{t+5}, 7, v{t+4}
        v_lshrrev_b32 v{t+6}, 5, v{V_LANE}
        v_lshlrev_b32 v{t+6}, 1, v{t+6}
        v_lshl_add_u32 v{t+5}, v{t+5}, 2, v{t+6}
        v_mul_u32_u24 v{t+5}, 120, v{t+5}
        s_mul_i32 s{T0}, s{S_W}, 3840
        s_add_u32 s{T0}, s{T0}, {RBASE}
        v_add_u32 v{V_KA1}, s{T0}, v{t+5}
        v_lshl_add_u32 v{V_KB}, v{C_}, 3, v{V_KA1}
        s_mov_b32 s{S_L2E}, 0x3fb8aa3b
        s_mov_b32 s{S_NL2E}, 0xbfb8aa3b
        s_mov_b32 s{S_PERM}, 0x07060302
        s_and_b32 s{T3}, s{S_HG}, 1
        """)
        for j in range(5):
            b = RH + 5 * j
            raw(f"""
            v_mul_u32_u24 v{t+4}, 20, v{b}
            v_add_u32 v{t+4}, v{t+4}, v{b+2}
            v_lshl_add_u32 v{t+5}, v{b+1}, 2, v{t+4}
            v_xor_b32 v{t+6}, s{T3}, v{b+1}
            v_mul_u32_u24 v{t+6}, 80, v{t+6}
            v_add3_u32 v{t+6}, v{t+6}, v{t+4}, 16
            v_mul_u32_u24 v{t+5}, 1280, v{t+5}
            v_mul_u32_u24 v{t+6}, 1280, v{t+6}
            v_lshl_add_u32 v{V_OF+j}, v{b+3}, 4, v{t+5}
            v_lshl_add_u32 v{V_OL+j}, v{b+3}, 4, v{t+6}
            v_mul_u32_u24 v{t+5}, {OUTS}, v{b+4}
            v_lshl_add_u32 v{t+5}, v{b+3}, 4, v{t+5}
            v_add_u32 v{V_ORD+j}, s{T2}, v{t+5}
            v_mul_u32_u24 v{t+5}, 2560, v{b+4}
            v_lshl_add_u32 v{V_OG+j}, v{b+3}, 4, v{t+5}
            """)
            if 0 < j < 4:
                raw(f"v_subrev_u32 v{V_OF+j}, {1024*j}, v{V_OF+j}\nv_subrev_u32 v{V_OL+j}, {1024*j}, v{V_OL+j}")
        raw(f"""
        s_lshr_b32 s{T0}, s{S_W}, 1
        s_xor_b32 s{T0}, s{T0}, s{T3}
        s_mul_i32 s{T0}, s{T0}, 80
        s_and_b32 s{T1}, s{S_W}, 1
        s_lshl_b32 s{T1}, s{T1}, 3
        s_add_u32 s{T0}, s{T0}, s{T1}
        s_mul_i32 s{T0}, s{T0}, 1280
        s_mul_i32 s{T2}, s{S_HG}, 160
        s_add_u32 s{T0}, s{T0}, s{T2}
        s_lshr_b32 s{S_SPIN}, s{S_HG}, 1
        s_add_u32 s{T1}, s{S_SPIN}, s{S_W}
        s_and_b32 s{T1}, s{T1}, 3
        s_mul_i32 s{T1}, s{T1}, {160*1280}
        s_add_u32 s{S_WOROW+4}, s{T1}, s{T2}
        s_lshl_b32 s{S_OUT}, s{S_XBASE}, 1
        s_add_u32 s{S_OUT}, s{S_OUT}, s{T2}
        s_add_u32 s{S_OUT}, s{S_OUT}, {br*1280}
        s_add_u32 s{S_OB}, s{S_XBASE}, {WS_O + br*64*40960}
        """)
        for g in range(4):
            raw(f"""
            s_add_u32 s{T1}, s{S_SPIN}, {g}
            s_and_b32 s{T1}, s{T1}, 3
            s_mul_i32 s{T2}, s{T1}, {160*1280}
            s_add_u32 s{S_WOROW+g}, s{T2}, s{T0}
            s_lshl_b32 s{T1}, s{T1}, 1
            s_add_u32 s{T1}, s{T1}, s{T3}
            s_mul_i32 s{T2}, s{T1}, 5120
            s_add_u32 s{S_OP+2*g}, s{T2}, s{S_OB}
            s_xor_b32 s{T1}, s{T1}, 1
            s_mul_i32 s{T2}, s{T1}, 5120
            s_add_u32 s{S_OP+2*g+1}, s{T2}, s{S_OB}
            """)
        SH = 8 if A else 7
        raw(f"""
        s_lshl_b32 s{T0}, s{S_RB}, 2
        s_add_u32 s{T0}, s{T0}, s{S_W}
        s_lshl_b32 s{S_FLAG}, s{T0}, 7
        s_add_u32 s{S_FLAG}, s{S_FLAG}, {WS_FLAG + br*64*128}
        s_lshl_b32 s{T0}, s{S_HEAD}, 16
        s_add_u32 s{T0}, s{T0}, {WS_P1 + br*32*65536}
        s_lshl_b32 s{T1}, s{S_RB}, 12
        s_add_u32 s{S_P1ST}, s{T0}, s{T1}
        s_min_u32 s{T1}, s{S_RB}, 14
        s_lshl_b32 s{T1}, s{T1}, {SH}
        s_add_u32 s{S_P1LD}, s{T0}, s{T1}
        s_lshl_b32 s{T0}, s{S_HEAD}, 12
        s_add_u32 s{S_P2LD}, s{T0}, {WS_P2 + br*32*4096}
        s_add_u32 s{S_P2ST}, s{S_P2LD}, s{T1}
        v_mul_u32_u24 v{t+4}, {F}, v{G_}
        v_add_lshl_u32 v{V_P1ST}, v{t+4}, v{I_}, 4
        v_cmp_gt_u32 vcc, 4, v{I_}
        v_cndmask_b32 v{V_KEEP}, 0, -1, vcc
        v_mov_b32 v{t+4}, 0x3f803f80
        v_cmp_eq_u32 vcc, 4, v{I_}
        v_cndmask_b32 v{V_ONE}, 0, v{t+4}, vcc
        v_and_b32 v{t+4}, 7, v{V_LANE}
        v_lshlrev_b32 v{V_F8}, 2, v{t+4}
        s_lshl_b32 s{T0}, s{S_HG}, 2
        v_mov_b32 v{V_FOWN}, s{T0}
        v_lshlrev_b32 v{V_ZA}, 3, v0
        v_add_u32 v{V_ZA}, {RBASE+7680}, v{V_ZA}
        """)
        if A:
            raw(f"""
            v_lshlrev_b32 v{t+5}, 12, v{G_}
            v_lshl_add_u32 v{V_P1LD}, v{I_}, 4, v{t+5}
            v_lshlrev_b32 v{V_P2ST}, 2, v{V_LANE}
            """)
        else:
            raw(f"""
            v_lshrrev_b32 v{t+5}, 3, v{V_LANE}
            v_lshlrev_b32 v{t+5}, 12, v{t+5}
            v_lshl_add_u32 v{V_P1LD}, v{t+4}, 4, v{t+5}
            v_lshl_add_u32 v{V_P2ST}, v{G_}, 5, v{V_F8}
            """)
        RS = 80 if A else 48
        HS = 24 * RS
        NQ = 240 if A else 120
        NI = 4 if A else 2
        raw(f"s_mul_i32 s{T0}, s{S_W}, {HS}\ns_add_u32 s{T0}, s{T0}, {RBASE}")
        u = t + 4
        for ii in range(NI):
            raw(f"v_add_u32 v{u}, {64*ii}, v{V_LANE}")
            if ii == NI - 1:
                raw(f"""v_subrev_u32 v{u+1}, 64, v{u}
                v_cmp_gt_u32 vcc, {NQ}, v{u}
                v_cndmask_b32 v{u}, v{u+1}, v{u}, vcc
                v_lshlrev_b32 v{V_GAL}, 4, v{u}""")
            if A:
                raw(f"""
                v_lshrrev_b32 v{u+1}, 4, v{u}
                v_and_b32 v{u+2}, 3, v{u}
                v_lshl_add_u32 v{u+1}, v{u+1}, 2, v{u+2}
                v_bfe_u32 v{u+2}, v{u}, 2, 2
                v_mul_u32_u24 v{u+3}, 6554, v{u+1}
                v_lshrrev_b32 v{u+3}, 16, v{u+3}
                v_mul_u32_u24 v{u+4}, 10, v{u+3}
                """)
            else:
                raw(f"""
                v_lshrrev_b32 v{u+1}, 3, v{u}
                v_and_b32 v{u+2}, 1, v{u}
                v_lshl_add_u32 v{u+1}, v{u+1}, 1, v{u+2}
                v_bfe_u32 v{u+2}, v{u}, 1, 2
                v_mul_u32_u24 v{u+3}, 13108, v{u+1}
                v_lshrrev_b32 v{u+3}, 16, v{u+3}
                v_mul_u32_u24 v{u+4}, 5, v{u+3}
                """)
            raw(f"""
            v_sub_u32 v{u+1}, v{u+1}, v{u+4}
            v_lshl_add_u32 v{u+3}, v{u+3}, 2, v{u+2}
            v_mul_u32_u24 v{u+3}, {RS}, v{u+3}
            v_lshl_add_u32 v{u+3}, v{u+1}, 3, v{u+3}
            v_add_u32 v{V_LA+ii}, s{T0}, v{u+3}
            """)
        raw(f"""
        v_cmp_eq_u32 vcc, v{G_}, v{R_}
        v_mul_u32_u24 v{u}, {HS}, v{G_}
        v_mul_u32_u24 v{u+1}, {RS}, v{C_}
        v_add_u32 v{u}, v{u}, v{u+1}
        v_add_u32 v{u}, {RBASE}, v{u}
        v_mov_b32 v{u+1}, {RBASE+7680}
        v_cndmask_b32 v{V_FR2}, v{u+1}, v{u}, vcc
        """)
        if A:
            raw(f"""
            v_mov_b32 v{t+8}, 0
            v_mov_b32 v{t+9}, 0
            v_mov_b32 v{t+10}, 0
            v_mov_b32 v{t+11}, 0
            v_add_u32 v{TMP+100}, s{S_LR}, v{V_LIN}
            ds_write_b128 v{TMP+100}, {vq(t+8)} offset:13312
            v_mul_u32_u24 v{t+4}, {RW}, v{G_}
            v_mul_u32_u24 v{t+5}, 40, v{R_}
            v_add_u32 v{t+4}, v{t+4}, v{t+5}
            v_add_u32 v{t+4}, {RBASE+12288}, v{t+4}
            s_add_u32 s{T0}, s{S_LR}, 13312
            v_mov_b32 v{t+5}, s{T0}
            v_cmp_eq_u32 vcc, v{C_}, v{G_}
            v_cndmask_b32 v{V_FR}, v{t+5}, v{t+4}, vcc
            """)
            for tt in range(5):
                a = A_PHI + (tt * 3 + 2) * 4
                raw(f"v_accvgpr_write_b32 a{a+2}, 0\nv_accvgpr_write_b32 a{a+3}, 0")
        self.run(S, every=o.get('proev', 60))
        while self.tick(): pass
        p.raw(f"""
        s_getreg_b32 s{T0}, hwreg(HW_REG_XCC_ID, 0, 4)
        s_waitcnt lgkmcnt(0)
        s_add_u32 s{S_NONCE}, s{S_NONCE}, 0x9e3779b1
        s_lshl_b32 s{T0}, s{T0}, 28
        s_xor_b32 s{S_XCCV}, s{T0}, s{S_NONCE}
        v_mov_b32 v{V_NONCE}, s{S_NONCE}
        v_mov_b32 v{t}, s{S_XCCV}
        s_add_u32 s{T0}, s{S_FLAG}, {WS_XCC - WS_FLAG}
        s_mov_b64 exec, 1
        """)
        p(f"buffer_store_dword v{t}, v{V_FOWN}, {srd(SWS)}, s{T0} offen sc1", 'xcc')
        p("s_mov_b64 exec, -1")
        self.stamp()
        xb = lambda ks, rt: aq((ks * 2 + rt) * 4)
        for pu in range(0, 7):
            if (pu + 3) % 2 == 0: self.q(0, self.dma_w((pu + 3) // 2))
            self.q(10 * pu, self.dma_x(pu + 3))
        for G in range(5, 10): self.q(10**6 + 1 if G % 5 >= 3 else 20 * (G - 3) - 4, self.dma_w(G))
        for G in range(10, 20): self.q(10**6 + G, self.dma_w(G))
        hooks = {}
        for pu in range(1, 10):
            hooks[10 * pu - 5] = [lambda pu=pu: self.xread(pu, 0), lambda pu=pu: self.xread(pu, 1)]
            hooks[10 * pu - 4] = [lambda pu=pu: self.xread(pu, 2), lambda pu=pu: self.xread(pu, 3)]
        if A:
            rd = [(tt, u_, hf) for tt in range(5) for u_ in range(3) for hf in range(2 if u_ < 2 else 1)]
            w = TMP + 96; u2 = TMP + 102
            sc = [lambda: p.wait(vm=['wphi'])]
            for j in range(4):
                sc += [f"v_lshlrev_b32 v{u2}, 16, v{w+j}", f"v_and_b32 v{u2+1}, 0xffff0000, v{w+j}", f"v_mul_f32 v{u2}, s{S_L2E}, v{u2}",
                       f"v_mul_f32 v{u2+1}, s{S_L2E}, v{u2+1}", f"v_cvt_pk_bf16_f32 v{w+j}, v{u2}, v{u2+1}"]
            hooks[8] = sc + [(f"ds_write_b128 v{TMP+100}, {vq(w)} offset:12288", 'phw')]
            hooks[14] = [lambda: p.wait(lg=['phw'])]
            slots = [n for n in range(21, 90) if n % 10 in (0, 1, 2, 3)][:25]
            for k, n in enumerate(slots):
                hooks[n] = [(f"ds_read_b64_tr_b16 a[{A_PHI + (tt*3+u_)*4 + 2*hf}:{A_PHI + (tt*3+u_)*4 + 2*hf + 1}], v{V_FR} offset:{(8*u_+4*hf)*40 + 8*tt}", 'phi')
                            for tt, u_, hf in rd[k:k+1]]
        XV = TMP + 92
        iss, chk = self.checked("L_xc", ["s_mov_b64 exec, 0xff", f"s_add_u32 s{T0}, s{S_FLAG}, {WS_XCC - WS_FLAG}",
                                         f"buffer_load_dword v{XV}, v{V_F8}, {srd(SWS)}, s{T0} offen sc1", "s_mov_b64 exec, -1"],
                                [f"v_xor_b32 v{XV+1}, s{S_NONCE}, v{XV}", f"v_lshlrev_b32 v{XV+1}, 4, v{XV+1}",
                                 "s_mov_b64 exec, 0xff", f"v_cmp_ne_u32 vcc, 0, v{XV+1}", "s_mov_b64 exec, -1"], 'xl')
        hooks[58] = iss
        hooks[88] = [x for _, x in chk] + ["s_mov_b64 exec, 0xff", f"v_cmp_ne_u32 vcc, s{S_XCCV}, v{XV}", "s_mov_b64 exec, -1",
                                                     f"s_mov_b32 s{S_FAST}, vcc_lo"]
        self.group_sync(0)
        for k in range(4): self.xread(0, k)
        self.prime(0, sync=False)
        kp = o.get('kpace', 3)
        self.gemm_pass(0, ACC_K, xb, hooks=hooks, last=True, pace=lambda n: (1 if n % 3 != 2 else 0) if n < 69 else (1 if n % kp == 0 else 0))
        p("s_barrier")
        self.stamp()
        E0, E1, M0_, M1_ = TMP, TMP + 40, TMP + 80, TMP + 86
        x0, x1 = acc(ACC_K, 0, 0), acc(ACC_K, 0, 1)
        self.release(1)
        wr = lambda rt, x, n, o8: [(2, (f"ds_write_b64 v{V_PW}, {vq(x+2*j, 2)} offset:{rt*1920 + o8 + 8*j}", 'pw')) for j in range(n)]
        def mixw(out, w): return [y for j in range(len(w)) for y in out[2*j:2*j+2] + [w[j]]]
        burst = lambda L: [(0, [x for _, x in L])]
        dm = (2, lambda: self.tick())
        if A:
            P0 = self.phiA_parts(x0, E0, M0_, "L_k0", False); P1 = self.phiA_parts(x1, E1, M1_, "L_k1", False)
            pr = [(0, lambda: self.group_sync(5 if o.get('vsync', 0) else 6))] + [(1, lambda n=n, hf=hf: self.wread(100 + n, hf)) for n in range(D - 1) for hf in range(2)]
            self.put([x for _, x in [dm] + P0['cvt'] + self.weave(P0['mf'], [dm] + P1['cvt'] + [dm] + P0['exp'][:4]) + self.weave(P1['mf'], [dm] + P0['exp'][4:12] + [dm] + pr)])
            fill = P0['exp'][12:] + burst(P0['norm']) + mixw(P0['out'], wr(0, x0, 10, 0)) + P1['exp'] + burst(P1['norm']) + mixw(P1['out'], wr(1, x1, 10, 0))
            self.stamp('head')
        else:
            fill = []
            for rt, x, e in ((0, x0, E0), (1, x1, E1)):
                L = self.phiB(x, e, False)
                fill += L[:-10] + mixw(L[-10:], wr(rt, x, 5, 0))
            self.group_sync(5 if o.get('vsync', 0) else 6); self.prime(1, sync=False)
        hooks = {}
        vs = o.get('vsync', 0)
        for g in range(4): hooks.setdefault(20 * g + 18, []).extend(["s_barrier" if vs else (lambda g=g: self.group_sync(7 + g)), lambda g=g: self.release(10 + g)])
        vp = o.get('vpace', 4)
        self.gemm_pass(1, ACC_V, xb, fill=fill, hooks=hooks, last=True, sync=bool(vs), pace=lambda n: 1 if n % vp == 0 else 0)
        self.stamp()
        VB = TMP
        for rt in range(2):
            c = self.cvt20(acc(ACC_V, 0, rt), VB + 10 * rt)
            for j in range(5):
                p(c[2*j][1]); p(c[2*j+1][1])
                p(f"ds_write_b64 v{V_PW}, {vq(VB+10*rt+2*j, 2)} offset:{rt*1920 + 80 + 8*j}", 'vw')
                if j == 4 and rt == 0: self.tick()
        self.tick()
        p.wait(lg='*')
        self.stamp('kv0')
        self.flush_dma(('W', 11)); p.wait(vm=[('W', 11)])
        self.stamp('kv1')
        p("s_barrier")
        self.stamp('kv2')
        self.release(14)
        NT = 3 if A else 2
        FB = ACC_K
        KV = TMP + 64
        rds = deque()
        def rd(reg, av, off, kk, j):
            for hf in range(2): rds.append((f"ds_read_b64_tr_b16 {vq(reg+2*hf, 2)}, v{av} offset:{kk*RW + hf*120 + off}", ('kv', kk, j)))
        for kk in range(4):
            b = FB + kk * 20
            rd(b, V_KB, 80, kk, 'a')
            for nt in range(NT): rd(b + 8 + 4 * nt, V_KB, 32 * nt, kk, nt)
        for kk in range(4): rd(FB + kk * 20 + 4, V_KA1, 112, kk, 'z')
        def more(k):
            while k > 0 and rds and len(p.lgq) < 15: self.put([rds.popleft()]); k -= 1
        p(f"v_mov_b32 v{TMP+1}, 0xff")
        more(15); self.tick()
        seq = [(kk, nt) for kk in range(4) for nt in range(NT)]
        p.wait(lg=[('kv',) + seq[0]])
        for i_, (kk, nt) in enumerate(seq):
            b = FB + kk * 20
            p(f"{MF} {vq(KV + nt*4)}, {vq(b)}, {vq(b+8+4*nt)}, {'0' if kk == 0 else vq(KV + nt*4)}")
            if i_ + 1 < len(seq): p.wait(lg=[('kv',) + seq[i_ + 1]])
            more(3)
            if i_ % 6 == 5: self.tick()
        assert not rds
        lastm = 0x00ff00ff if A else 0x000f000f
        def pub(mt, nt):
            a = KV + (mt * 3 + nt) * 4
            lo = lastm if nt == NT - 1 else 0xffffffff
            hi = lo if mt == 0 else 0
            L = [(1, f"v_bfi_b32 v{a+j}, v{TMP+1}, s{S_NONCE}, v{a+j}") for j in range(4)]
            st = (f"buffer_store_dwordx4 {vq(a)}, v{V_P1ST}, {srd(SWS)}, s{S_P1ST} offen offset:{(4*mt*F + 16*nt)*16} sc1", 'p1')
            if (lo, hi) == (0xffffffff, 0xffffffff): return L + [(2, st)]
            return L + [(2, [f"s_mov_b32 exec_lo, {hex(lo)}", f"s_mov_b32 exec_hi, {hex(hi)}", st, "s_mov_b64 exec, -1"])]
        p.wait(lg='*')
        self.stamp('kv3')
        for kk in range(4):
            for j in range(4): p(f"v_and_or_b32 v{FB+kk*20+4+j}, v{FB+kk*20+4+j}, v{V_KEEP}, v{V_ONE}")
        mf = [(2, f"{MF} {vq(KV + (3+nt)*4)}, {vq(FB+kk*20+4)}, {vq(FB+kk*20+8+4*nt)}, {'0' if kk == 0 else vq(KV + (3+nt)*4)}") for nt in range(NT) for kk in range(4)]
        pr = [(1, lambda n=n, hf=hf: self.wread(200 + n, hf)) for n in range(D - 1) for hf in range(2)]
        self.put([x for _, x in self.weave(mf, [y for nt in range(NT) for y in pub(0, nt)] + pr)])
        qhead = [y for nt in range(NT) for y in pub(1, nt)]
        self.stamp()
        X = TMP + 8; CK = TMP + 2
        def tagcheck(mask):
            return [f"v_xor_b32 v{CK}, s{S_NONCE}, v{X}"] + [f"v_bitop3_b32 v{CK}, v{CK}, v{X+j}, s{S_NONCE} bitop3:0xf6" for j in range(1, 4 * NI)] + \
                   [f"v_and_b32 v{CK}, {mask}, v{CK}", f"v_cmp_ne_u32 vcc, 0, v{CK}"]
        lds_ = []
        for ii in range(NI):
            lds_ += [f"s_add_u32 s{T0}, s{S_P1LD}, {ii * (65536 // NI)}", f"buffer_load_dwordx4 {vq(X+4*ii)}, v{V_P1LD}, {srd(SWS)}, s{T0} offen sc1"]
        iss, chk = self.checked("L_h1", lds_, tagcheck("0xff"), 'h1')
        red = [f"v_add_f32 v{X+j}, v{X+j}, v{X+4*ii+j}" for ii in range(1, NI) for j in range(4)]
        red += [f"v_permlane32_swap_b32 v{X}, v{X+2}", f"v_permlane32_swap_b32 v{X+1}, v{X+3}", f"v_add_f32 v{X}, v{X}, v{X+2}", f"v_add_f32 v{X+1}, v{X+1}, v{X+3}",
                f"v_mov_b32 v{CK}, 0xffff", f"v_permlane16_swap_b32 v{X}, v{X+1}", f"v_add_f32 v{X}, v{X}, v{X+1}"]
        if not A: red.append(f"v_add_f32_dpp v{X}, v{X}, v{X} row_ror:8 row_mask:0xf bank_mask:0xf")
        red += [f"v_cvt_pk_bf16_f32 v{X}, v{X}, v{X}", f"v_bfi_b32 v{X}, v{CK}, s{S_NONCE}, v{X}"]
        st = (f"buffer_store_dword v{X}, v{V_P2ST}, {srd(SWS)}, s{S_P2ST} offen sc1", 'p2')
        red.append([st] if A else ["s_mov_b32 exec_lo, 0x00ff00ff", "s_mov_b32 exec_hi, 0x00ff00ff", st, "s_mov_b64 exec, -1"])
        n1, n2 = o.get('h1', (62, 84))
        hooks = {n1 + k: iss[2*k:2*k+2] for k in range(NI)}
        qh = deque(qhead)
        for n in range(12): hooks[n] = [lambda: self.gap(qh, 2)]
        for g in range(4): hooks.setdefault(20 * g + 18, []).extend([lambda g=g: self.group_sync(min(12 + g, 14)), lambda g=g: self.release(15 + g)])
        self.gemm_pass(2, ACC_K, xb, fill=chk + [(1, x) for x in red], hooks=hooks, last=True, sync=False, frange=(n2, 100),
                       pace=lambda n: 1 if (n >= 9 and n % (3 if n < o.get('qsw', 24) else o.get('qpace', 5)) == 0 and not n1 <= n < n1 + NI) else 0)
        assert not qh
        p("s_barrier")
        self.release(19)
        self.stamp()
        X = TMP + 96; CK = TMP + 92
        lds_ = [f"buffer_load_dwordx4 {vq(X+4*ii)}, v{V_LIN if ii < NI-1 else V_GAL}, {srd(SWS)}, s{S_P2LD} offen offset:{1024*ii if ii < NI-1 else 0} sc1" for ii in range(NI)]
        iss, chk = self.checked("L_h2", lds_, tagcheck("0xffff"), 'h2')
        pre = [(f"buffer_load_dword v{V_DUMP}, v{V_L128}, {srd(SWS)}, s{S_OP} offen sc1", 'pr'), (f"buffer_load_dword v{V_DUMP}, v{V_F8}, {srd(SWS)}, s{S_FLAG} offen sc1", 'pr')]
        pre = ["s_mov_b32 exec_hi, 0xff", pre[0], "s_mov_b64 exec, 1", pre[1], "s_mov_b64 exec, -1"]
        zw = [f"v_mov_b32 v{CK}, 0", f"v_mov_b32 v{CK+1}, 0", f"ds_write_b64 v{V_ZA}, {vq(CK, 2)}"]
        self.put(zw)
        for k_ in range(o.get('dirty', 0)):
            p(f"s_add_u32 s{T0}, s{S_OP}, {(9 << 20) + (k_ // 5) * (6 << 20) + (k_ % 5) * 1024}")
            p(f"buffer_store_dwordx4 v[2:5], v{V_LIN}, {srd(SWS)}, s{T0} offen {o.get('dirtyf', '')}")
        if o.get('prepos', 0) == 1: self.put(pre)
        if not A:
            for tt in range(6): p(f"v_accvgpr_write_b32 a{40+4*(3*tt+2)+2}, 0"); p(f"v_accvgpr_write_b32 a{40+4*(3*tt+2)+3}, 0")
        if A:
            P0 = self.phiA_parts(x0, E0, M0_, "L_q0", True); P1 = self.phiA_parts(x1, E1, M1_, "L_q1", True)
            L = P0['cvt'] + self.weave(P0['mf'], P1['cvt'] + P0['exp'][:6]) + self.weave(P1['mf'], P0['exp'][6:]) + P0['norm'] + P0['out'] + P1['exp'] + P1['norm'] + P1['out']
        else:
            L = []
            for x, e in ((x0, E0), (x1, E1)):
                L += self.phiB(x, e, True) + [(1, f"v_mov_b32 v{x+10}, 0"), (1, f"v_mov_b32 v{x+11}, 0")]
        tot = sum(c for c, _ in L); cut = tot - o.get('h2lead', 180) if A else tot
        c = 0; k = 0
        while k < len(L) and c < cut: c += L[k][0]; k += 1
        self.run(L[:k], every=o.get('qev', 44))
        self.stamp('q0')
        self.flush_dma(('W', 15))
        self.stamp('q1')
        self.put(iss)
        if o.get('prepos', 0) == 0: self.put(pre)
        self.stamp('q2')
        self.run(L[k:], every=o.get('qev', 44))
        self.stamp()
        self.put([x for _, x in chk])
        for ii in range(NI):
            p(f"v_perm_b32 v{X+4*ii}, v{X+4*ii+1}, v{X+4*ii}, s{S_PERM}")
            p(f"v_perm_b32 v{X+4*ii+1}, v{X+4*ii+3}, v{X+4*ii+2}, s{S_PERM}")
            p(f"ds_write_b64 v{V_LA+ii}, {vq(X+4*ii, 2)}", 'kvw')
        p.wait(lg='*')
        p("s_barrier")
        self.stamp()
        OA = ACC_V
        NU = 5 if A else 3
        SP = TMP + 112
        if A: p(f"v_mov_b32 v{SP}, v{M0_}"); p(f"v_mov_b32 v{SP+1}, v{M1_}")
        OB = TMP + 64
        LO = TMP + 80
        fr = [(tt, u_) for tt in (5, 0, 1, 2, 3, 4) for u_ in range(NU)]
        AO = 40
        rds = deque()
        for n, (tt, u_) in enumerate(fr):
            if not A and u_ == 2: rds.append((f"ds_read_b64 {aq(AO+4*n, 2)}, v{V_FR2} offset:{4*tt*RS + 16*u_}", ('of', n)))
            else: rds.append((f"ds_read_b128 {aq(AO+4*n)}, v{V_FR2} offset:{4*tt*RS + 16*u_}", ('of', n)))
        more(12)
        p(f"s_add_u32 s{T1}, s{S_OP}, 4096")
        p(f"s_cmp_eq_u32 s{S_FAST}, 0")
        def ost(txt):
            k = len(self.ool)
            if o.get('noslow'): p(txt, 'o'); return
            if o.get('nofast'): p(txt + " sc1", 'o'); return
            p(f"s_cbranch_scc0 L_os{k}{self.sfx}"); p(txt + " " + o.get('fastf', ''), 'o'); p(f"L_or{k}{self.sfx}:")
            self.ool.append(f"L_os{k}{self.sfx}:\n    {txt} sc1\n    s_branch L_or{k}{self.sfx}\n")
        epi = deque()
        for rt in range(2):
            dn = OA + (rt * 6 + 5) * 4
            b = OA + rt * 24
            rdy = lambda k: rt * 6 * NU + (k + 1) * NU + 3
            epi.append((rdy(0), 1, f"v_fmac_f32 v{dn}, {EPS}, v{SP+rt}" if A else f"v_add_f32 v{dn}, {EPS}, v{dn}")); epi.append((rdy(0), 2, f"v_rcp_f32 v{dn}, v{dn}"))
            for tt in range(5):
                for r in range(4): epi.append((rdy(tt + 1), 1, f"v_mul_f32 v{b+4*tt+r}, v{b+4*tt+r}, v{dn}"))
                for h in range(2):
                    i = 2 * tt + h
                    d = OB + ((i // 4) * 2 + rt) * 4 + i % 4 if i < 8 else LO + 2 * rt + (i - 8)
                    epi.append((rdy(tt + 1), 1, f"v_cvt_pk_bf16_f32 v{d}, v{b+2*i}, v{b+2*i+1}"))
                if tt in (1, 3):
                    u_ = tt // 2
                    epi.append((0, 2, lambda u_=u_, rt=rt: ost(f"buffer_store_dwordx4 {vq(OB+(u_*2+rt)*4)}, v{V_LIN}, {srd(SWS)}, s{S_OP} offen offset:{(rt*2+u_)*1024}")))
        epi.append((0, 2, lambda: ost(f"buffer_store_dwordx4 {vq(LO)}, v{V_LIN}, {srd(SWS)}, s{T1} offen")))
        pr = deque((300 + n, hf) for n in range(D - 1) for hf in range(2))
        m = 0
        for rt in range(2):
            for n, (tt, u_) in enumerate(fr):
                a = OA + (rt * 6 + tt) * 4
                if m == 0: p.wait(lg=[('of', 0)])
                p(f"{MF} {vq(a)}, {aq(AO+4*n)}, {vq(ACC_K+20*rt+4*u_)}, {'0' if u_ == 0 else vq(a)}")
                m += 1
                if rt == 0 and n + 1 < len(fr): p.wait(lg=[('of', n + 1)])
                bud = 2 if A else 3
                if rds: more(2); bud -= 2
                elif self.dq and m % o.get('opace', 8) == 0: self.tick(); p(f"s_cmp_eq_u32 s{S_FAST}, 0"); bud -= 2
                elif pr and not (epi and epi[0][0] <= m): self.wread(*pr.popleft()); bud -= 1
                while epi and epi[0][0] <= m and epi[0][1] <= bud:
                    _, c, x = epi.popleft(); bud -= c; self.put([x])
        while pr: self.wread(*pr.popleft())
        while epi: self.put([epi.popleft()[2]])
        self.stamp()
        def ob(ks, rt):
            if ks < 2: return vq(OB + (ks * 2 + rt) * 4)
            return aq((ks * 2 + rt) * 4) if ks < 16 else vq(LO + (2 * (ks - 16) + rt) * 4)
        def oload(P):
            if P < 16:
                return [[(f"buffer_load_dwordx4 {aq((P*2+rt)*4)}, v{V_LIN}, {srd(SWS)}, s{S_OP + P//2} offen offset:{(rt*2+P%2)*1024} sc1", ('O', P))] for rt in range(2)]
            return [[f"s_add_u32 s{T0}, s{S_OP + 2*(P-16) + h}, 4096", (f"buffer_load_dwordx4 {vq(LO+(2*(P-16)+h)*4)}, v{V_LIN}, {srd(SWS)}, s{T0} offen sc1", ('O', P))]
                    for h in range(2) if (P, h) != (16, 0)]
        def handshake():
            while self.tick(): pass
            p("s_waitcnt vmcnt(0)")
            p(f"s_cmp_eq_u32 s{S_FAST}, 0")
            p("s_mov_b64 exec, 1")
            ost(f"buffer_store_dword v{V_NONCE}, v{V_FOWN}, {srd(SWS)}, s{S_FLAG} offen")
            p("s_mov_b64 exec, 0xff")
            p("s_barrier")
            iss, chk = self.checked("L_h3", [f"buffer_load_dword v{V_DUMP}, v{V_F8}, {srd(SWS)}, s{S_FLAG} offen sc1"], [f"v_cmp_ne_u32 vcc, s{S_NONCE}, v{V_DUMP}"], 'h3')
            self.put(iss); self.put([x for _, x in chk])
            p("s_mov_b64 exec, -1")
            self.stamp()
            for P in range(2, 20): self.q(0, oload(P))
            for _ in range(o.get('oprime', 8)): self.tick()
        def owait(P):
            self.flush_dma(('O', P))
            p.wait(vm=[('O', P)])
            if P >= 16:
                a = LO + 2 * (P - 16) * 4
                p(f"v_swap_b32 v{a+2}, v{a+4}"); p(f"v_swap_b32 v{a+3}, v{a+5}")
        hooks = {5 * P - 1: [lambda P=P: owait(P)] for P in range(2, 20)}
        hooks[9] = [handshake] + hooks[9]
        hooks[90] = [f"s_or_b32 s{T0}, s{S_RB}, s{S_HEAD}", f"s_cmp_lg_u32 s{T0}, 0", f"s_cselect_b32 s{T0}, {WS_SIZE}, 0", "s_mov_b64 exec, 1",
                     (f"buffer_store_dword v{V_NONCE}, v{V_LIN}, {srd(SWS)}, s{T0} offen offset:{br*128} sc1", 'nn'), "s_mov_b64 exec, -1"]
        rs = o.get('restore', 66)
        if rs:
            for k_, (u_, rt) in enumerate([(0, 0), (1, 0), (0, 1), (1, 1)]):
                hooks.setdefault(rs + 2 * k_, []).append((f"buffer_store_dwordx4 {vq(OB+(u_*2+rt)*4)}, v{V_LIN}, {srd(SWS)}, s{S_OP} offen offset:{(rt*2+u_)*1024} sc1", 'rs'))
            hooks.setdefault(92, []).append((f"buffer_store_dwordx4 {vq(TMP+8)}, v{V_LIN}, {srd(SWS)}, s{T1} offen sc1", 'rs'))
            hooks.setdefault(2, []).extend([f"v_mov_b32 v{TMP+8+j}, v{LO+j}" for j in range(2)])
            hooks.setdefault(3, []).extend([f"v_mov_b32 v{TMP+8+j}, v{LO+j}" for j in range(2, 4)])
        self.gemm_pass(3, ACC_K, ob, hooks=hooks, last=True, sync=False, pace=lambda n: 1 if n % 2 == 0 and n > 9 else 0)
        self.stamp()
        for rt in range(2):
            c = self.cvt20(acc(ACC_K, 0, rt), TMP + 10 * rt)
            for j in range(5):
                p(c[2*j][1]); p(c[2*j+1][1])
                p(f"ds_write_b64 v{V_OW}, {vq(TMP+10*rt+2*j, 2)} offset:{rt*16*OUTS + 8*j}", 'ow')
        for j in range(5): p(f"ds_read_b128 {vq(TMP+24+4*j)}, v{V_ORD+j}", ('or', j))
        for j in range(5):
            p.wait(lg=[('or', j)])
            p(f"buffer_store_dwordx4 {vq(TMP+24+4*j)}, v{V_OG+j}, {srd(SOUT)}, s{S_OUT} offen {o.get('oflag', '')}", 'out')
        if o.get('stamps'):
            p("s_waitcnt vmcnt(0)")
            self.stamp()
            p("s_memrealtime s[100:101]")
            p("s_waitcnt lgkmcnt(0)")
            p.raw(f"""
            s_lshl_b32 s{T0}, s2, 2
            s_add_u32 s{T0}, s{T0}, s{S_W}
            s_lshl_b32 s{T0}, s{T0}, 6
            s_add_u32 s{T0}, s{T0}, {WS_ST}
            v_mov_b32 v{TMP+16}, 0
            v_mov_b32 v{TMP}, s98
            v_mov_b32 v{TMP+1}, s100
            """)
            for k in range(14): p(f"v_mov_b32 v{TMP+2+k}, {'s%d' % (S_ST+k) if k < self.nst else ('s95' if k == 13 else 0)}")
            p("s_mov_b64 exec, 1")
            for k in range(4): p(f"buffer_store_dwordx4 {vq(TMP+4*k)}, v{TMP+16}, {srd(SWS)}, s{T0} offen offset:{16*k}")
        if o.get('amp') and self.sfx in o['amp'][2]:
            p("s_waitcnt vmcnt(0)")
            self.stamp()
            p.raw(f"""
            s_sub_u32 s{T0}, s100, s98
            s_mul_i32 s{T0}, s{T0}, {o['amp'][1]}
            s_min_u32 s{T0}, s{T0}, 100000
            L_amp{self.sfx}:
            s_sleep 2
            s_memrealtime s[62:63]
            s_waitcnt lgkmcnt(0)
            s_sub_u32 s{T1}, s62, s98
            s_cmp_lt_u32 s{T1}, s{T0}
            s_cbranch_scc1 L_amp{self.sfx}
            """)
        p("s_endpgm")
        assert not self.dq
        return p.finalize() + "".join(self.ool)

def build(opt):
    ref = open(f"cdna_kernels/{NAME}.s.ref").read().split("\n")
    head = [l for l in ref if l.startswith(";") and "@launch" not in l]
    s = "\n".join(head) + "\n; @launch grid=(256,1,1) block=(256,1,1) lds=163840\n"
    s += f""".amdgcn_target "amdgcn-amd-amdhsa--gfx950"
.text
.globl {NAME}_kernel
.p2align 8
.type {NAME}_kernel,@function
{NAME}_kernel:
    s_cmp_ge_u32 s2, 256
    s_cbranch_scc1 L_exit
    s_bitcmp1_b32 s2, 2
    s_cbranch_scc1 L_bodyB
"""
    ga = Gen(True, opt); s += ga.body()
    s += "L_exit:\n    s_endpgm\n.p2align 8\n"
    gb = Gen(False, opt); s += gb.body()
    s += ".fill 4096, 4, 0xbf810000\n"
    s += f""".section .rodata,"a"
.p2align 6
.amdhsa_kernel {NAME}_kernel
  .amdhsa_next_free_vgpr 512
  .amdhsa_next_free_sgpr 102
  .amdhsa_accum_offset 256
  .amdhsa_group_segment_fixed_size 0
  .amdhsa_kernarg_size 80
  .amdhsa_user_sgpr_count 2
  .amdhsa_user_sgpr_kernarg_segment_ptr 1
  .amdhsa_system_sgpr_workgroup_id_x 1
.end_amdhsa_kernel
"""
    print("nops", ga.p.nops, gb.p.nops, "instrs", len(ga.p.ins), len(gb.p.ins), "autow", getattr(ga.p, 'autow', 0), file=sys.stderr)
    return s

if __name__ == "__main__":
    import json
    opt = json.loads(sys.argv[2]) if len(sys.argv) > 2 else {}
    open(sys.argv[1], "w").write(build(opt))
```

```python
import sys
from collections import deque
from emit import Prog
NAME = "concat_heads__linear_kernel_hedgehog__linear_attn_block__prompt"

S_RB, S_HG, S_W = 4, 5, 7
SX, SW, SWO, SWS, SOUT, SPHI = 8, 12, 16, 20, 24, 28
S_NONCE = 32
S_WROW = 33
S_XBASE, S_XU = 38, 39
S_LW, S_LR = 40, 41
T0, T1, T2, T3 = 42, 43, 44, 45
S_WOROW = 46
S_HEAD = 51
S_SPIN = 52
S_FAST = 53
S_L2E, S_NL2E = 54, 55
S_OB = 56
S_WS, S_XS = 57, 58
S_FLAG = 59
S_OP = 60
S_P1ST, S_P1LD, S_P2ST, S_P2LD, S_OWN, S_OUT, S_XCCV, S_PERM = 68, 69, 70, 71, 72, 73, 74, 75
S_KA = 76
S_ST = 76
import os
if os.environ.get('PRO'): S_ST = 88
def srd(b): return f"s[{b}:{b+3}]"
V_LANE = 1
V_WO = 2; V_OF = 7; V_OL = 12; V_XO = 17; V_XR = 21; V_WT = 23; V_LIN = 25
V_PW, V_VW, V_KB, V_KA0, V_KA1, V_FR = 26, 27, 28, 29, 30, 31
ACC_K, ACC_V = 32, 72
TMP = 112
PV = 228
V_P1ST, V_P1LD, V_P2ST, V_GAL, V_LA, V_FR2, V_KEEP, V_ONE, V_OW, V_ORD, V_OG, V_F8, V_DUMP, V_ZA = PV, PV+1, PV+2, PV+3, PV+4, PV+8, PV+9, PV+10, PV+11, PV+12, PV+17, PV+22, PV+23, PV+24
V_L128, V_NONCE, V_FOWN = PV + 25, PV + 26, PV + 27
RING = 0; SLOT = 20480; RBASE = 102400; RW = 15360
OUTL = RBASE + 16384; OUTS = 176
WS_FLAG, WS_XCC, WS_P2, WS_P1, WS_O, WS_ST = 4096, 32768, 65536, 1 << 20, 8 << 20, 16 << 20
WS_SIZE = 32 << 20
D = 6
A_RING = 220
A_PHI = 160
SPIN_MAX = 20000
EPS = "0x358637bd"

def vq(b, n=4): return f"v[{b}:{b+n-1}]"
def aq(b, n=4): return f"a[{b}:{b+n-1}]"
def acc(base, t, rt): return base + (rt * 5 + t) * 4
MF = "v_mfma_f32_16x16x32_bf16"

DEF = {'A': dict(h1=(45, 84)), 'B': dict(h1=(45, 84), vpace=3, qpace=4, qev=24, vsync=1)}
class Gen:
    def __init__(self, isA, opt):
        self.A = isA
        sf = 'A' if isA else 'B'
        opt = dict(DEF[sf], **opt)
        opt.update({k[:-1]: v for k, v in opt.items() if k.endswith(sf)})
        self.o = opt
        self.p = Prog(); self.sfx = 'A' if isA else 'B'
        self.F = 40 if isA else 20
        self.nst = 0
        self.dq = deque()
        self.pos = 0
        self.ool = []
    def stamp(self, name=None):
        p = self.p
        fine = self.o.get('fine')
        if fine:
            if name is None: self.cs = getattr(self, 'cs', 0) + 1; name = 's%d' % (self.cs - 1)
            if name not in fine: return
        elif name is not None: return
        if self.o.get('amp'):
            if self.nst == self.o['amp'][0]:
                p("s_memrealtime s[100:101]"); p("s_waitcnt lgkmcnt(0)")
            self.nst += 1
            return
        if not self.o.get('stamps'): return
        p(f"s_memrealtime s[100:101]" if self.o.get('rt') else f"s_memtime s[100:101]")
        p("s_waitcnt lgkmcnt(0)")
        p(f"s_sub_u32 s{S_ST+self.nst}, s100, {'s98' if self.o.get('rt') else 's96'}")
        self.nst += 1
    def put(self, L):
        for x in L:
            if isinstance(x, tuple): self.p(x[0], x[1])
            elif isinstance(x, list): self.put(x)
            elif callable(x): x()
            else: self.p(x)
    def dma_w(self, G):
        g = G % 5
        pre = [f"s_add_u32 m0, s{S_LW}, {RING + g*SLOT}"]
        if G < 15:
            col = {0: 1280, 1: 2560, 2: 0}[G // 5]
            pre.append(f"s_add_u32 s{S_WS}, s{S_WROW+g}, {col}"); so = f"s{S_WS}"; sd = SW; vo = V_WO
        else:
            so = f"s{S_WOROW+g}"; sd = SWO; vo = V_OF if g < 4 else V_OL
        items = []
        if G // 5 in self.o.get('fake', []):
            base = (G % 5) * 4 * 5120 + (G // 5 if G < 15 else 0) * 819200
            pre = [pre[0], f"s_add_u32 s{S_WS}, s94, {base}"]
            for j in range(5):
                off = f"offset:{j*1024} " if 0 < j < 4 else ""
                L = (pre if j == 0 else []) + [(f"buffer_load_dwordx4 v{V_LIN}, {srd(sd)}, s{S_WS} offen {off}lds", ('W', G))]
                if j == 3: L += [f"s_add_u32 m0, s{S_LW}, {RING + g*SLOT + 4096}", f"s_add_u32 s{S_WS}, s{S_WS}, 4096"]
                items.append(L)
            return items
        for j in range(5):
            off = f"offset:{j*1024} " if 0 < j < 4 else ""
            L = (pre if j == 0 else []) + [(f"buffer_load_dwordx4 v{vo+j}, {srd(sd)}, {so} offen {off}lds", ('W', G))]
            if j == 3: L.append(f"s_add_u32 m0, s{S_LW}, {RING + g*SLOT + 4096}")
            items.append(L)
        return items
    def dma_x(self, pu):
        items = []
        for j in range(4):
            off = f"offset:{j*1024} " if j else ""
            L = []
            if j == 0: L += [f"s_add_u32 m0, s{S_LR}, {(pu % 3) * 4096}", f"s_add_u32 s{S_XS}, s{S_XU}, s{S_XBASE}"]
            L.append((f"buffer_load_dwordx4 v{V_XO+j}, {srd(SX)}, s{S_XS} offen {off}lds", ('X', pu)))
            if j == 0: L += [f"s_add_u32 s{S_XU}, s{S_XU}, 128"]
            if j == 1: L += [f"s_cmp_eq_u32 s{S_XU}, 1280", f"s_cselect_b32 s{S_XU}, 0, s{S_XU}"]
            items.append(L)
        return items
    def q(self, earliest, items):
        for it in items: self.dq.append((earliest, it))
    def release(self, k):
        self.dq = deque((0 if e == 10**6 + k else e, it) for e, it in self.dq)
    def tick(self):
        if self.dq and self.dq[0][0] <= self.pos:
            self.put(self.dq.popleft()[1]); return True
        return False
    def flush_dma(self, tag):
        def has():
            return any(isinstance(x, tuple) and x[1] == tag for _, it in self.dq for x in it)
        while has():
            assert self.dq[0][0] <= self.pos, (tag, self.pos, self.dq[0])
            self.put(self.dq.popleft()[1])
    def run(self, L, every=30):
        c = 0
        for cost, x in L:
            self.put([x]); c += cost
            if c >= every: c = 0; self.tick()
    def wread(self, N, hf):
        G = N // 20; ks = (N % 20) // 5; t = N % 5
        off = RING + (G % 5) * SLOT + ks * 5120 + hf * 2560 + 8 * t
        hi = off >= 51200
        s = A_RING + (N % D) * 4 + 2 * hf
        if G // 5 in self.o.get('fake', []):
            if hf == 0:
                off = RING + (G % 5) * SLOT + ks * 5120 + 1024 * t
                hi = off >= 51200
                self.p(f"ds_read_b128 a[{s}:{s+3}], v{226 + hi} offset:{off - 51200*hi}", ('F', N))
            return
        self.p(f"ds_read_b64_tr_b16 a[{s}:{s+1}], v{V_WT + hi} offset:{off - 51200*hi}", ('F', N))
    def group_sync(self, G):
        self.flush_dma(('W', G))
        self.p.wait(vm=[('W', G)])
        self.p("s_barrier")
    def xread(self, pu, k):
        ksub, rt = divmod(k, 2)
        if k == 0:
            self.flush_dma(('X', pu)); self.p.wait(vm=[('X', pu)])
        a = ((2 * pu + ksub) * 2 + rt) * 4
        self.p(f"ds_read_b128 {aq(a)}, v{V_XR+ksub} offset:{(pu % 3)*4096 + rt*2048}", ('XR', pu))
    def prime(self, ps, sync=True):
        if sync: self.group_sync(ps * 5)
        for n in range(D - 1):
            self.wread(ps * 100 + n, 0); self.wread(ps * 100 + n, 1)
    def gemm_pass(self, ps, accb, bop, fill=None, hooks=None, last=False, pace=None, sync=True, frange=(0, 100), hooks0=None):
        p = self.p
        fill = deque(fill or []); hooks = hooks or {}; hooks0 = hooks0 or {}
        N0 = ps * 100
        p.wait(lg=[('F', N0), ('XR', 0)])
        pace = pace or (lambda n: 0)
        for n in range(100):
            self.pos = N0 + n
            ks, t = divmod(n, 5)
            s = A_RING + ((N0 + n) % D) * 4
            M = n + D - 1
            look = M < 100 or not last
            a = acc(accb, t, 0)
            p(f"{MF} {vq(a)}, {aq(s)}, {bop(ks, 0)}, {'0' if ks == 0 else vq(a)}")
            k0 = len(p.ins)
            if n < 99:
                tg = [('F', N0 + n + 1)]
                if ps == 0 and (n + 1) % 10 == 0: tg.append(('XR', (n + 1) // 10))
                p.wait(lg=tg)
            if n in hooks0: self.put(hooks0[n])
            if look:
                if M % 20 == 0 and sync: self.group_sync((N0 + M) // 20)
                if len(p.ins) == k0: p("s_nop 0")
                self.wread(N0 + M, 0); self.wread(N0 + M, 1)
                if ps in self.o.get('fake', []) and fill and n >= frange[0] and not isinstance(fill[0][1], tuple): self.gap(fill, 1 if fill[0][0] < 2 or n % 2 else 2)
            elif fill and n >= frange[0]: self.gap(fill, 2)
            a = acc(accb, t, 1)
            p(f"{MF} {vq(a)}, {aq(s)}, {bop(ks, 1)}, {'0' if ks == 0 else vq(a)}")
            self.pos = N0 + n + 1
            self.stamp('n%d' % (N0 + n))
            did = 0
            for _ in range(pace(n)): did += self.tick()
            if n in hooks: self.put(hooks[n])
            if fill and n >= frange[0]:
                left = sum(c for c, _ in fill)
                gaps = sum(1 for k in range(n, frange[1]) if not pace(k)) + (min(D - 1, 99 - n) if last and frange[1] == 100 else 0)
                bud = 0 if did else 2
                if left > (3 if ps in self.o.get('fake', []) else 2) * gaps: bud += 2
                self.gap(fill, bud)
        while fill: self.put([fill.popleft()[1]])
        self.pos = N0 + 100
    def gap(self, fill, bud):
        first = True
        while fill:
            c, x = fill[0]
            solo = isinstance(x, tuple)
            if c > bud or (solo and not first): break
            fill.popleft(); self.put([x]); bud -= c
            if solo: break
            if c: first = False
    def cvt20(self, src, dst):
        return [(1, f"v_cvt_pk_bf16_f32 v{dst+i}, v{src+2*i}, v{src+2*i+1}") for i in range(10)]
    def phiA_parts(self, x, e, m, name, isq):
        P = {}
        kb = e + 28
        P['cvt'] = self.cvt20(x, kb) + [(1, f"v_mov_b32 v{kb+10}, 0"), (1, f"v_mov_b32 v{kb+11}, 0")]
        P['mf'] = [(2, f"{MF} {vq(x+4*t)}, {aq(A_PHI + (t*3+u)*4)}, {vq(kb+4*u)}, {'0' if u == 0 else vq(x+4*t)}") for t in range(5) for u in range(3)]
        P['exp'] = [(2, f"v_exp_f32 v{e+i}, v{x+i}") for i in range(20)] + [(2, f"v_exp_f32 v{e+20+i}, -v{x+i}") for i in range(20)]
        def sums():
            L = [f"v_pk_add_f32 v[{m+2*h}:{m+2*h+1}], v[{e+20*h}:{e+20*h+1}], v[{e+20*h+2}:{e+20*h+3}]" for h in range(2)]
            L += [f"v_pk_add_f32 v[{m+2*h}:{m+2*h+1}], v[{m+2*h}:{m+2*h+1}], v[{e+20*h+2*i}:{e+20*h+2*i+1}]" for i in range(2, 10) for h in range(2)]
            L += [f"v_add_f32 v{m+2*h}, v{m+2*h}, v{m+2*h+1}" for h in range(2)]
            return L
        nm = name + self.sfx
        L = sums() + [f"v_max_f32 v{m+1}, v{m}, v{m+2}", f"v_cmp_ngt_f32 vcc, 0x5d800000, v{m+1}"]
        if not isq: L.append(f"v_rcp_f32 v{m+4}, v{m}")
        L += [f"v_rcp_f32 v{m+2}, v{m+2}", [f"s_cbranch_vccnz {nm}_slow", f"{nm}_back:"]]
        o = Prog()
        o(f"{nm}_slow:")
        o(f"v_max3_f32 v{m}, v{x}, v{x+1}, v{x+2}"); o(f"v_min3_f32 v{m+1}, v{x}, v{x+1}, v{x+2}")
        for i in range(3, 19, 2):
            o(f"v_max3_f32 v{m}, v{m}, v{x+i}, v{x+i+1}"); o(f"v_min3_f32 v{m+1}, v{m+1}, v{x+i}, v{x+i+1}")
        o(f"v_max_f32 v{m}, v{m}, v{x+19}"); o(f"v_min_f32 v{m+1}, v{m+1}, v{x+19}")
        for i in range(20): o(f"v_sub_f32 v{e+i}, v{x+i}, v{m}"); o(f"v_sub_f32 v{e+20+i}, v{m+1}, v{x+i}")
        for i in range(40): o(f"v_exp_f32 v{e+i}, v{e+i}")
        for y in sums(): o(y)
        if not isq: o(f"v_rcp_f32 v{m+4}, v{m}")
        o(f"v_rcp_f32 v{m+2}, v{m+2}"); o("s_nop 1"); o(f"s_branch {nm}_back")
        self.ool.append(o.finalize())
        if isq: L.append(f"v_mul_f32 v{m+2}, v{m+2}, v{m}")
        else: L += [f"v_pk_mul_f32 v[{e+2*i}:{e+2*i+1}], v[{e+2*i}:{e+2*i+1}], v[{m+4}:{m+5}] op_sel_hi:[1,0]" for i in range(10)]
        L += [f"v_pk_mul_f32 v[{e+20+2*i}:{e+21+2*i}], v[{e+20+2*i}:{e+21+2*i}], v[{m+2}:{m+3}] op_sel_hi:[1,0]" for i in range(10)]
        P['norm'] = [(1, y) for y in L]
        P['out'] = [(1, f"v_cvt_pk_bf16_f32 v{x+i}, v{e+2*i}, v{e+2*i+1}") for i in range(20)]
        return P
    def weave(self, mf, va, per=2):
        va = deque(va); L = []
        for x in mf:
            L.append(x); b = per
            while va and va[0][0] <= b: b -= va[0][0]; L.append(va.popleft())
        return L + list(va)
    def phiB(self, x, e, packed):
        L = []
        if packed: L += [(1, f"v_pk_mul_f32 v[{e+2*i}:{e+2*i+1}], v[{x+2*i}:{x+2*i+1}], s[{S_L2E}:{S_NL2E}] op_sel_hi:[1,0]") for i in range(10)]
        else: L += [(1, f"v_mul_f32 v{e+i}, s{S_L2E}, v{x+i}") for i in range(20)]
        L += [(2, f"v_exp_f32 v{e+i}, v{e+i} clamp") for i in range(20)]
        L += [(1, f"v_max_f32 v{x+i}, {EPS}, v{x+i}") for i in range(20)]
        if packed: L += [(1, f"v_pk_add_f32 v[{e+2*i}:{e+2*i+1}], v[{e+2*i}:{e+2*i+1}], v[{x+2*i}:{x+2*i+1}]") for i in range(10)]
        else: L += [(1, f"v_add_f32 v{e+i}, v{e+i}, v{x+i}") for i in range(20)]
        L += self.cvt20(e, x)
        return L
    def checked(self, name, loads, check, tag):
        nm = name + self.sfx
        iss = [(x, tag) if x.startswith('buffer') else x for x in loads]
        chk = [(0, lambda: self.p.wait(vm=[tag]))] + [(1, x) for x in check] + [(1, [f"s_cbranch_vccnz {nm}_retry", f"{nm}_ok:"])]
        o = Prog()
        o(f"{nm}_retry:"); o(f"s_mov_b32 s{S_SPIN}, 0"); o(f"{nm}_loop:")
        if self.o.get('stamps'): o(f"s_add_u32 s95, s95, {dict(L_xc=1000000, L_h1=10000, L_h2=100, L_h3=1)[name]}")
        for x in loads: o(x)
        o("s_waitcnt vmcnt(0)")
        for x in check: o(x)
        o(f"s_cbranch_vccz {nm}_ok")
        o(f"s_add_u32 s{S_SPIN}, s{S_SPIN}, 1"); o(f"s_cmp_lt_u32 s{S_SPIN}, {SPIN_MAX}"); o(f"s_cbranch_scc1 {nm}_loop")
        o(f"s_branch {nm}_ok")
        self.ool.append(o.finalize())
        return iss, chk
    def body(self):
        p = self.p; A = self.A; F = self.F; br = 0 if A else 1; o = self.o
        t = TMP
        K = S_KA
        kx, kw, kout, kws = K, K + 2, K + 8, K + 10
        kphi, kwo = (K + 4, K + 6) if A else (None, K + 4)
        p.raw(f"""
        s_and_b32 s{T0}, s2, 4
        s_lshl_b32 s{T0}, s{T0}, 3
        s_load_dwordx8 s[{K}:{K+7}], s[0:1], s{T0}
        s_load_dwordx2 s[{kout}:{kout+1}], s[0:1], 56
        s_load_dwordx2 s[{kws}:{kws+1}], s[0:1], 72
        """)
        if o.get('stamps'): p("s_memtime s[96:97]"); p("s_mov_b32 s95, 0")
        if o.get('stamps') or o.get('amp'): p("s_memrealtime s[98:99]")
        p.raw(f"""
        s_getpc_b64 s[60:61]
        L_pc:
        s_bfe_u32 s{S_HG}, s2, 0x30003
        v_and_b32 v{V_LANE}, 63, v0
        v_lshrrev_b32 v{t}, 6, v0
        s_bitcmp1_b32 s2, 2
        s_cselect_b32 s{T1}, L_setupB-L_setupA, 0
        s_lshl_b32 s{T0}, s{S_HG}, 12
        v_lshlrev_b32 v{V_L128}, 7, v{V_LANE}
        v_readfirstlane_b32 s{S_W}, v{t}
        s_add_u32 s{T0}, s{T0}, s{T1}
        s_add_u32 s{T0}, s{T0}, L_setupA-L_pc
        s_add_u32 s60, s60, s{T0}
        s_addc_u32 s61, s61, 0
        v_lshl_add_u32 v{t+1}, v{t}, 10, v{V_L128}
        s_mov_b64 exec, 0xff
        """)
        p(f"global_load_dword v{V_DUMP}, v{t+1}, s[60:61]", 'cpf')
        p("s_mov_b64 exec, -1")
        ra, rbm, rdiv = o.get('rot', (10, 10, 4))
        p.raw(f"""
        s_and_b32 s{S_RB}, s2, 3
        s_lshl_b32 s{S_RB}, s{S_RB}, 2
        s_lshr_b32 s{T0}, s2, 6
        s_add_u32 s{S_RB}, s{S_RB}, s{T0}
        s_mul_i32 s{T0}, s{S_HG}, {ra}
        s_mul_i32 s{T1}, s{S_RB}, {rbm}
        s_add_u32 s{T0}, s{T0}, s{T1}
        s_lshr_b32 s{T0}, s{T0}, {rdiv.bit_length()-1}
        s_mul_i32 s{T1}, s{T0}, 6554
        s_lshr_b32 s{T1}, s{T1}, 16
        s_mul_i32 s{T1}, s{T1}, 10
        s_sub_u32 s{T3}, s{T0}, s{T1}
        s_lshl_b32 s{S_XU}, s{T3}, 7
        s_lshl_b32 s{T0}, s{S_RB}, 2
        s_add_u32 s{T0}, s{T0}, s{S_W}
        s_mul_i32 s{S_XBASE}, s{T0}, 40960
        s_mul_i32 s{S_LW}, s{S_W}, 5120
        s_mul_i32 s{S_LR}, s{S_W}, {RW}
        s_add_u32 s{S_LR}, s{S_LR}, {RBASE}
        v_lshrrev_b32 v{t}, 3, v{V_LANE}
        v_mul_u32_u24 v{t}, 1280, v{t}
        v_lshrrev_b32 v{t+1}, 4, v{V_LANE}
        v_xor_b32 v{t+1}, v{t+1}, v{V_LANE}
        v_and_b32 v{t+1}, 7, v{t+1}
        v_lshl_add_u32 v{V_XO}, v{t+1}, 4, v{t}
        v_xor_b32 v{t+2}, 64, v{V_XO}
        v_add_u32 v{V_XO+1}, {9216}, v{t+2}
        v_add_u32 v{V_XO+2}, {2*9216}, v{V_XO}
        v_add_u32 v{V_XO+3}, {3*9216}, v{t+2}
        s_lshr_b32 s{T0}, s{S_W}, 1
        s_add_u32 s{T0}, s{T0}, s{T3}
        s_and_b32 s{T1}, s{S_W}, 1
        s_mul_i32 s{T1}, s{T1}, {32*3840}
        s_mul_i32 s{T2}, s{S_HG}, 160
        s_add_u32 s{T1}, s{T1}, s{T2}
        s_mov_b32 s{SX+2}, 2621440
        s_mov_b32 s{SX+3}, 0x20000
        s_mov_b32 s{SW+2}, 2457600
        s_mov_b32 s{SW+3}, 0x20000
        """)
        def wrow(g):
            p.raw(f"""
            s_cmp_ge_u32 s{T0}, 10
            s_cselect_b32 s{T2}, 10, 0
            s_sub_u32 s{T0}, s{T0}, s{T2}
            s_mul_i32 s{T2}, s{T0}, {64*3840}
            s_add_u32 s{S_WROW+g}, s{T2}, s{T1}
            s_add_u32 s{T0}, s{T0}, 2
            """)
        wrow(0)
        RH = TMP + 10
        def woff(j):
            b = RH + 5 * j
            p.raw(f"""
            v_add_u32 v{t}, {64*j}, v{V_LANE}
            v_mul_u32_u24 v{b+4}, 6554, v{t}
            v_lshrrev_b32 v{b+4}, 16, v{b+4}
            v_mul_u32_u24 v{t+2}, 10, v{b+4}
            v_sub_u32 v{b+3}, v{t}, v{t+2}
            v_bfe_u32 v{b}, v{b+4}, 2, 2
            v_lshrrev_b32 v{b+1}, 4, v{b+4}
            v_and_b32 v{b+2}, 3, v{b+4}
            v_lshl_add_u32 v{t}, v{b}, 1, v{b+1}
            v_lshl_add_u32 v{t}, v{t}, 2, v{b+2}
            v_mul_u32_u24 v{t}, 3840, v{t}
            v_lshl_add_u32 v{V_WO+j}, v{b+3}, 4, v{t}
            """)
            if 0 < j < 4: p(f"v_subrev_u32 v{V_WO+j}, {1024*j}, v{V_WO+j}")
        if o.get('fake'):
            p.raw(f"""
            s_mul_i32 s94, s{S_HG}, 102400
            s_add_u32 s94, s94, s{S_LW}
            v_lshlrev_b32 v{V_LIN}, 4, v{V_LANE}
            v_mov_b32 v226, v{V_LIN}
            v_add_u32 v227, 51200, v{V_LIN}
            """)
        woff(0); woff(1)
        if o.get('pre0'): p("s_memtime s[92:93]")
        p.raw(f"""
        s_waitcnt lgkmcnt(0)
        s_mov_b32 s{SX}, s{kx}
        s_mov_b32 s{SX+1}, s{kx+1}
        s_mov_b32 s{SW}, s{kw}
        s_mov_b32 s{SW+1}, s{kw+1}
        """)
        self.stamp('p0')
        if o.get('pre0'): p(f"s_sub_u32 s{S_ST+self.nst}, s92, s96"); self.nst += 1
        self.put(self.dma_x(0))
        w0 = self.dma_w(0)
        self.put(w0[0:2]); woff(2); self.put(w0[2]); woff(3); self.put(w0[3]); woff(4); self.put(w0[4])
        self.stamp('p1')
        if o.get('prowait'):
            p.wait(vm=['cpf']); self.stamp('p2')
            p.wait(vm=[('X', 0)]); self.stamp('p3')
            p.wait(vm=[('W', 0)]); self.stamp('p4')
        p("s_bitcmp1_b32 s2, 2"); p("s_cbranch_scc1 L_setupB")
        p(".split")
        p(f"L_setup{self.sfx}:")
        p(f"s_load_dword s{S_NONCE}, s[{kws}:{kws+1}], {br*128}")
        for g in range(1, 5): wrow(g)
        self.q(0, self.dma_x(1))
        p.raw(f"""
        s_mov_b32 s{SWO}, s{kwo}
        s_mov_b32 s{SWO+1}, s{kwo+1}
        s_mov_b32 s{SWO+2}, 819200
        s_mov_b32 s{SWO+3}, 0x20000
        s_mov_b32 s{SWS}, s{kws}
        s_mov_b32 s{SWS+1}, s{kws+1}
        s_mov_b32 s{SWS+2}, {WS_SIZE}
        s_mov_b32 s{SWS+3}, 0x20000
        s_mov_b32 s{SOUT}, s{kout}
        s_mov_b32 s{SOUT+1}, s{kout+1}
        s_mov_b32 s{SOUT+2}, 5242880
        s_mov_b32 s{SOUT+3}, 0x20000
        s_lshl_b32 s{S_HEAD}, s{S_HG}, 2
        s_add_u32 s{S_HEAD}, s{S_HEAD}, s{S_W}
        v_lshlrev_b32 v{V_LIN}, 4, v{V_LANE}
        """)
        if A:
            p.raw(f"""
            s_mov_b32 s{SPHI}, s{kphi}
            s_mov_b32 s{SPHI+1}, s{kphi+1}
            s_mov_b32 s{SPHI+2}, 25600
            s_mov_b32 s{SPHI+3}, 0x20000
            """)
            self.q(0, [[f"s_mul_i32 s{S_WS}, s{S_HEAD}, 800",
                        (f"buffer_load_dwordx4 {vq(TMP+96)}, v{V_LIN}, {srd(SPHI)}, s{S_WS} offen", 'wphi')]])
        self.q(0, self.dma_w(1)); self.q(0, self.dma_x(2))
        G_, I_, R_, C_ = t, t + 1, t + 2, t + 3
        S = []
        def raw(txt):
            for l in txt.split('\n'):
                if l.strip(): S.append((1, l.strip()))
        raw(f"""
        v_lshrrev_b32 v{G_}, 4, v{V_LANE}
        v_and_b32 v{I_}, 15, v{V_LANE}
        v_bfe_u32 v{R_}, v{V_LANE}, 2, 2
        v_and_b32 v{C_}, 3, v{V_LANE}
        v_lshrrev_b32 v{t+4}, 1, v{I_}
        v_xor_b32 v{t+4}, v{t+4}, v{G_}
        v_lshlrev_b32 v{t+5}, 7, v{I_}
        v_lshl_add_u32 v{t+4}, v{t+4}, 4, v{t+5}
        v_add_u32 v{V_XR}, s{S_LR}, v{t+4}
        v_xor_b32 v{t+4}, 64, v{t+4}
        v_add_u32 v{V_XR+1}, s{S_LR}, v{t+4}
        v_lshrrev_b32 v{t+4}, 2, v{V_LANE}
        v_mul_u32_u24 v{t+5}, 160, v{t+4}
        v_mul_u32_u24 v{t+6}, 40, v{C_}
        v_add_u32 v{V_WT}, v{t+5}, v{t+6}
        v_add_u32 v{V_WT+1}, 51200, v{V_WT}
        v_mul_u32_u24 v{t+5}, 120, v{I_}
        v_mul_u32_u24 v{t+6}, 3840, v{G_}
        v_add3_u32 v{V_PW}, v{t+5}, v{t+6}, s{S_LR}
        v_mul_u32_u24 v{t+6}, 40, v{G_}
        v_mul_u32_u24 v{t+7}, {OUTS}, v{I_}
        s_mul_i32 s{T2}, s{S_W}, {32*OUTS}
        s_add_u32 s{T2}, s{T2}, {OUTL}
        v_add3_u32 v{V_OW}, v{t+7}, v{t+6}, s{T2}
        v_and_b32 v{t+5}, 7, v{t+4}
        v_lshrrev_b32 v{t+6}, 5, v{V_LANE}
        v_lshlrev_b32 v{t+6}, 1, v{t+6}
        v_lshl_add_u32 v{t+5}, v{t+5}, 2, v{t+6}
        v_mul_u32_u24 v{t+5}, 120, v{t+5}
        s_mul_i32 s{T0}, s{S_W}, 3840
        s_add_u32 s{T0}, s{T0}, {RBASE}
        v_add_u32 v{V_KA1}, s{T0}, v{t+5}
        v_lshl_add_u32 v{V_KB}, v{C_}, 3, v{V_KA1}
        s_mov_b32 s{S_L2E}, 0x3fb8aa3b
        s_mov_b32 s{S_NL2E}, 0xbfb8aa3b
        s_mov_b32 s{S_PERM}, 0x07060302
        s_and_b32 s{T3}, s{S_HG}, 1
        """)
        for j in range(5):
            b = RH + 5 * j
            raw(f"""
            v_mul_u32_u24 v{t+4}, 20, v{b}
            v_add_u32 v{t+4}, v{t+4}, v{b+2}
            v_lshl_add_u32 v{t+5}, v{b+1}, 2, v{t+4}
            v_xor_b32 v{t+6}, s{T3}, v{b+1}
            v_mul_u32_u24 v{t+6}, 80, v{t+6}
            v_add3_u32 v{t+6}, v{t+6}, v{t+4}, 16
            v_mul_u32_u24 v{t+5}, 1280, v{t+5}
            v_mul_u32_u24 v{t+6}, 1280, v{t+6}
            v_lshl_add_u32 v{V_OF+j}, v{b+3}, 4, v{t+5}
            v_lshl_add_u32 v{V_OL+j}, v{b+3}, 4, v{t+6}
            v_mul_u32_u24 v{t+5}, {OUTS}, v{b+4}
            v_lshl_add_u32 v{t+5}, v{b+3}, 4, v{t+5}
            v_add_u32 v{V_ORD+j}, s{T2}, v{t+5}
            v_mul_u32_u24 v{t+5}, 2560, v{b+4}
            v_lshl_add_u32 v{V_OG+j}, v{b+3}, 4, v{t+5}
            """)
            if 0 < j < 4:
                raw(f"v_subrev_u32 v{V_OF+j}, {1024*j}, v{V_OF+j}\nv_subrev_u32 v{V_OL+j}, {1024*j}, v{V_OL+j}")
        raw(f"""
        s_lshr_b32 s{T0}, s{S_W}, 1
        s_xor_b32 s{T0}, s{T0}, s{T3}
        s_mul_i32 s{T0}, s{T0}, 80
        s_and_b32 s{T1}, s{S_W}, 1
        s_lshl_b32 s{T1}, s{T1}, 3
        s_add_u32 s{T0}, s{T0}, s{T1}
        s_mul_i32 s{T0}, s{T0}, 1280
        s_mul_i32 s{T2}, s{S_HG}, 160
        s_add_u32 s{T0}, s{T0}, s{T2}
        s_lshr_b32 s{S_SPIN}, s{S_HG}, 1
        s_add_u32 s{T1}, s{S_SPIN}, s{S_W}
        s_and_b32 s{T1}, s{T1}, 3
        s_mul_i32 s{T1}, s{T1}, {160*1280}
        s_add_u32 s{S_WOROW+4}, s{T1}, s{T2}
        s_lshl_b32 s{S_OUT}, s{S_XBASE}, 1
        s_add_u32 s{S_OUT}, s{S_OUT}, s{T2}
        s_add_u32 s{S_OUT}, s{S_OUT}, {br*1280}
        s_add_u32 s{S_OB}, s{S_XBASE}, {WS_O + br*64*40960}
        """)
        for g in range(4):
            raw(f"""
            s_add_u32 s{T1}, s{S_SPIN}, {g}
            s_and_b32 s{T1}, s{T1}, 3
            s_mul_i32 s{T2}, s{T1}, {160*1280}
            s_add_u32 s{S_WOROW+g}, s{T2}, s{T0}
            s_lshl_b32 s{T1}, s{T1}, 1
            s_add_u32 s{T1}, s{T1}, s{T3}
            s_mul_i32 s{T2}, s{T1}, 5120
            s_add_u32 s{S_OP+2*g}, s{T2}, s{S_OB}
            s_xor_b32 s{T1}, s{T1}, 1
            s_mul_i32 s{T2}, s{T1}, 5120
            s_add_u32 s{S_OP+2*g+1}, s{T2}, s{S_OB}
            """)
        SH = 8 if A else 7
        raw(f"""
        s_lshl_b32 s{T0}, s{S_RB}, 2
        s_add_u32 s{T0}, s{T0}, s{S_W}
        s_lshl_b32 s{S_FLAG}, s{T0}, 7
        s_add_u32 s{S_FLAG}, s{S_FLAG}, {WS_FLAG + br*64*128}
        s_lshl_b32 s{T0}, s{S_HEAD}, 16
        s_add_u32 s{T0}, s{T0}, {WS_P1 + br*32*65536}
        s_lshl_b32 s{T1}, s{S_RB}, 12
        s_add_u32 s{S_P1ST}, s{T0}, s{T1}
        s_min_u32 s{T1}, s{S_RB}, 14
        s_lshl_b32 s{T1}, s{T1}, {SH}
        s_add_u32 s{S_P1LD}, s{T0}, s{T1}
        s_lshl_b32 s{T0}, s{S_HEAD}, 12
        s_add_u32 s{S_P2LD}, s{T0}, {WS_P2 + br*32*4096}
        s_add_u32 s{S_P2ST}, s{S_P2LD}, s{T1}
        v_mul_u32_u24 v{t+4}, {F}, v{G_}
        v_add_lshl_u32 v{V_P1ST}, v{t+4}, v{I_}, 4
        v_cmp_gt_u32 vcc, 4, v{I_}
        v_cndmask_b32 v{V_KEEP}, 0, -1, vcc
        v_mov_b32 v{t+4}, 0x3f803f80
        v_cmp_eq_u32 vcc, 4, v{I_}
        v_cndmask_b32 v{V_ONE}, 0, v{t+4}, vcc
        v_and_b32 v{t+4}, 7, v{V_LANE}
        v_lshlrev_b32 v{V_F8}, 2, v{t+4}
        s_lshl_b32 s{T0}, s{S_HG}, 2
        v_mov_b32 v{V_FOWN}, s{T0}
        v_lshlrev_b32 v{V_ZA}, 3, v0
        v_add_u32 v{V_ZA}, {RBASE+7680}, v{V_ZA}
        """)
        if A:
            raw(f"""
            v_lshlrev_b32 v{t+5}, 12, v{G_}
            v_lshl_add_u32 v{V_P1LD}, v{I_}, 4, v{t+5}
            v_lshlrev_b32 v{V_P2ST}, 2, v{V_LANE}
            """)
        else:
            raw(f"""
            v_lshrrev_b32 v{t+5}, 3, v{V_LANE}
            v_lshlrev_b32 v{t+5}, 12, v{t+5}
            v_lshl_add_u32 v{V_P1LD}, v{t+4}, 4, v{t+5}
            v_lshl_add_u32 v{V_P2ST}, v{G_}, 5, v{V_F8}
            """)
        RS = 80 if A else 48
        HS = 24 * RS
        NQ = 240 if A else 120
        NI = 4 if A else 2
        raw(f"s_mul_i32 s{T0}, s{S_W}, {HS}\ns_add_u32 s{T0}, s{T0}, {RBASE}")
        u = t + 4
        for ii in range(NI):
            raw(f"v_add_u32 v{u}, {64*ii}, v{V_LANE}")
            if ii == NI - 1:
                raw(f"""v_subrev_u32 v{u+1}, 64, v{u}
                v_cmp_gt_u32 vcc, {NQ}, v{u}
                v_cndmask_b32 v{u}, v{u+1}, v{u}, vcc
                v_lshlrev_b32 v{V_GAL}, 4, v{u}""")
            if A:
                raw(f"""
                v_lshrrev_b32 v{u+1}, 4, v{u}
                v_and_b32 v{u+2}, 3, v{u}
                v_lshl_add_u32 v{u+1}, v{u+1}, 2, v{u+2}
                v_bfe_u32 v{u+2}, v{u}, 2, 2
                v_mul_u32_u24 v{u+3}, 6554, v{u+1}
                v_lshrrev_b32 v{u+3}, 16, v{u+3}
                v_mul_u32_u24 v{u+4}, 10, v{u+3}
                """)
            else:
                raw(f"""
                v_lshrrev_b32 v{u+1}, 3, v{u}
                v_and_b32 v{u+2}, 1, v{u}
                v_lshl_add_u32 v{u+1}, v{u+1}, 1, v{u+2}
                v_bfe_u32 v{u+2}, v{u}, 1, 2
                v_mul_u32_u24 v{u+3}, 13108, v{u+1}
                v_lshrrev_b32 v{u+3}, 16, v{u+3}
                v_mul_u32_u24 v{u+4}, 5, v{u+3}
                """)
            raw(f"""
            v_sub_u32 v{u+1}, v{u+1}, v{u+4}
            v_lshl_add_u32 v{u+3}, v{u+3}, 2, v{u+2}
            v_mul_u32_u24 v{u+3}, {RS}, v{u+3}
            v_lshl_add_u32 v{u+3}, v{u+1}, 3, v{u+3}
            v_add_u32 v{V_LA+ii}, s{T0}, v{u+3}
            """)
        raw(f"""
        v_cmp_eq_u32 vcc, v{G_}, v{R_}
        v_mul_u32_u24 v{u}, {HS}, v{G_}
        v_mul_u32_u24 v{u+1}, {RS}, v{C_}
        v_add_u32 v{u}, v{u}, v{u+1}
        v_add_u32 v{u}, {RBASE}, v{u}
        v_mov_b32 v{u+1}, {RBASE+7680}
        v_cndmask_b32 v{V_FR2}, v{u+1}, v{u}, vcc
        """)
        if A:
            raw(f"""
            v_mov_b32 v{t+8}, 0
            v_mov_b32 v{t+9}, 0
            v_mov_b32 v{t+10}, 0
            v_mov_b32 v{t+11}, 0
            v_add_u32 v{TMP+100}, s{S_LR}, v{V_LIN}
            ds_write_b128 v{TMP+100}, {vq(t+8)} offset:13312
            v_mul_u32_u24 v{t+4}, {RW}, v{G_}
            v_mul_u32_u24 v{t+5}, 40, v{R_}
            v_add_u32 v{t+4}, v{t+4}, v{t+5}
            v_add_u32 v{t+4}, {RBASE+12288}, v{t+4}
            s_add_u32 s{T0}, s{S_LR}, 13312
            v_mov_b32 v{t+5}, s{T0}
            v_cmp_eq_u32 vcc, v{C_}, v{G_}
            v_cndmask_b32 v{V_FR}, v{t+5}, v{t+4}, vcc
            """)
            for tt in range(5):
                a = A_PHI + (tt * 3 + 2) * 4
                raw(f"v_accvgpr_write_b32 a{a+2}, 0\nv_accvgpr_write_b32 a{a+3}, 0")
        self.run(S, every=o.get('proev', 60))
        self.stamp('p5')
        if o.get('hops', 1):
            p("s_mov_b64 exec, 0")
            for w_ in range(3): p(f"s_cmp_eq_u32 s{S_W}, {w_}"); p(f"s_cbranch_scc1 L_hop{w_}{self.sfx}")
            p(f"s_branch L_hop3{self.sfx}")
            p(f"L_hopret{self.sfx}:")
            p("s_mov_b64 exec, -1")
        while self.tick(): pass
        p.raw(f"""
        s_getreg_b32 s{T0}, hwreg(HW_REG_XCC_ID, 0, 4)
        s_waitcnt lgkmcnt(0)
        s_add_u32 s{S_NONCE}, s{S_NONCE}, 0x9e3779b1
        s_lshl_b32 s{T0}, s{T0}, 28
        s_xor_b32 s{S_XCCV}, s{T0}, s{S_NONCE}
        v_mov_b32 v{V_NONCE}, s{S_NONCE}
        v_mov_b32 v{t}, s{S_XCCV}
        s_add_u32 s{T0}, s{S_FLAG}, {WS_XCC - WS_FLAG}
        s_mov_b64 exec, 1
        """)
        p(f"buffer_store_dword v{t}, v{V_FOWN}, {srd(SWS)}, s{T0} offen sc1", 'xcc')
        p("s_mov_b64 exec, -1")
        self.stamp()
        p(f"s_branch L_main{self.sfx}")
        p(".p2align 12")
        p(f"L_main{self.sfx}:")
        xb = lambda ks, rt: aq((ks * 2 + rt) * 4)
        for pu in range(0, 7):
            if (pu + 3) % 2 == 0: self.q(0, self.dma_w((pu + 3) // 2))
            self.q(10 * pu, self.dma_x(pu + 3))
        for G in range(5, 10): self.q(10**6 + 1 if G % 5 >= 3 else 20 * (G - 3) - 4, self.dma_w(G))
        for G in range(10, 20): self.q(10**6 + G, self.dma_w(G))
        hooks = {}
        for pu in range(1, 10):
            hooks[10 * pu - 5] = [lambda pu=pu: self.xread(pu, 0), lambda pu=pu: self.xread(pu, 1)]
            hooks[10 * pu - 4] = [lambda pu=pu: self.xread(pu, 2), lambda pu=pu: self.xread(pu, 3)]
        if A:
            rd = [(tt, u_, hf) for tt in range(5) for u_ in range(3) for hf in range(2 if u_ < 2 else 1)]
            w = TMP + 96; u2 = TMP + 102
            sc = [lambda: p.wait(vm=['wphi'])]
            for j in range(4):
                sc += [f"v_lshlrev_b32 v{u2}, 16, v{w+j}", f"v_and_b32 v{u2+1}, 0xffff0000, v{w+j}", f"v_mul_f32 v{u2}, s{S_L2E}, v{u2}",
                       f"v_mul_f32 v{u2+1}, s{S_L2E}, v{u2+1}", f"v_cvt_pk_bf16_f32 v{w+j}, v{u2}, v{u2+1}"]
            hooks[8] = sc + [(f"ds_write_b128 v{TMP+100}, {vq(w)} offset:12288", 'phw')]
            hooks[14] = [lambda: p.wait(lg=['phw'])]
            slots = [n for n in range(21, 90) if n % 10 in (0, 1, 2, 3)][:25]
            for k, n in enumerate(slots):
                hooks[n] = [(f"ds_read_b64_tr_b16 a[{A_PHI + (tt*3+u_)*4 + 2*hf}:{A_PHI + (tt*3+u_)*4 + 2*hf + 1}], v{V_FR} offset:{(8*u_+4*hf)*40 + 8*tt}", 'phi')
                            for tt, u_, hf in rd[k:k+1]]
        XV = TMP + 92
        iss, chk = self.checked("L_xc", ["s_mov_b64 exec, 0xff", f"s_add_u32 s{T0}, s{S_FLAG}, {WS_XCC - WS_FLAG}",
                                         f"buffer_load_dword v{XV}, v{V_F8}, {srd(SWS)}, s{T0} offen sc1", "s_mov_b64 exec, -1"],
                                [f"v_xor_b32 v{XV+1}, s{S_NONCE}, v{XV}", f"v_lshlrev_b32 v{XV+1}, 4, v{XV+1}",
                                 "s_mov_b64 exec, 0xff", f"v_cmp_ne_u32 vcc, 0, v{XV+1}", "s_mov_b64 exec, -1"], 'xl')
        hooks[58] = iss
        hooks[88] = [x for _, x in chk] + ["s_mov_b64 exec, 0xff", f"v_cmp_ne_u32 vcc, s{S_XCCV}, v{XV}", "s_mov_b64 exec, -1",
                                                     f"s_mov_b32 s{S_FAST}, vcc_lo"]
        self.group_sync(0)
        for k in range(4): self.xread(0, k)
        self.prime(0, sync=False)
        kp = o.get('kpace', 3)
        self.gemm_pass(0, ACC_K, xb, hooks=hooks, last=True, pace=lambda n: (1 if n % 3 != 2 else 0) if n < 69 else (1 if n % kp == 0 else 0))
        p("s_barrier")
        self.stamp()
        E0, E1, M0_, M1_ = TMP, TMP + 40, TMP + 80, TMP + 86
        x0, x1 = acc(ACC_K, 0, 0), acc(ACC_K, 0, 1)
        self.release(1)
        wr = lambda rt, x, n, o8: [(2, (f"ds_write_b64 v{V_PW}, {vq(x+2*j, 2)} offset:{rt*1920 + o8 + 8*j}", 'pw')) for j in range(n)]
        def mixw(out, w): return [y for j in range(len(w)) for y in out[2*j:2*j+2] + [w[j]]]
        burst = lambda L: [(0, [x for _, x in L])]
        dm = (2, lambda: self.tick())
        if A:
            P0 = self.phiA_parts(x0, E0, M0_, "L_k0", False); P1 = self.phiA_parts(x1, E1, M1_, "L_k1", False)
            pr = [(0, lambda: self.group_sync(5 if o.get('vsync', 0) else 6))] + [(1, lambda n=n, hf=hf: self.wread(100 + n, hf)) for n in range(D - 1) for hf in range(2)]
            self.put([x for _, x in [dm] + P0['cvt'] + self.weave(P0['mf'], [dm] + P1['cvt'] + [dm] + P0['exp'][:4]) + self.weave(P1['mf'], [dm] + P0['exp'][4:12] + [dm] + pr)])
            fill = P0['exp'][12:] + burst(P0['norm']) + mixw(P0['out'], wr(0, x0, 10, 0)) + P1['exp'] + burst(P1['norm']) + mixw(P1['out'], wr(1, x1, 10, 0))
            self.stamp('head')
        else:
            fill = []
            for rt, x, e in ((0, x0, E0), (1, x1, E1)):
                L = self.phiB(x, e, False)
                fill += L[:-10] + mixw(L[-10:], wr(rt, x, 5, 0))
            self.group_sync(5 if o.get('vsync', 0) else 6); self.prime(1, sync=False)
        hooks = {}
        vs = o.get('vsync', 0)
        for g in range(4): hooks.setdefault(20 * g + 18, []).extend(["s_barrier" if vs else (lambda g=g: self.group_sync(7 + g)), lambda g=g: self.release(10 + g)])
        vp = o.get('vpace', 4)
        self.gemm_pass(1, ACC_V, xb, fill=fill, hooks=hooks, last=True, sync=bool(vs), pace=lambda n: 1 if n % vp == 0 else 0)
        self.stamp()
        VB = TMP
        for rt in range(2):
            c = self.cvt20(acc(ACC_V, 0, rt), VB + 10 * rt)
            for j in range(5):
                p(c[2*j][1]); p(c[2*j+1][1])
                p(f"ds_write_b64 v{V_PW}, {vq(VB+10*rt+2*j, 2)} offset:{rt*1920 + 80 + 8*j}", 'vw')
                if j == 4 and rt == 0: self.tick()
        self.tick()
        p.wait(lg='*')
        self.stamp('kv0')
        self.flush_dma(('W', 11)); p.wait(vm=[('W', 11)])
        self.stamp('kv1')
        p("s_barrier")
        self.stamp('kv2')
        self.release(14)
        NT = 3 if A else 2
        FB = ACC_K
        KV = TMP + 64
        rds = deque()
        def rd(reg, av, off, kk, j):
            for hf in range(2): rds.append((f"ds_read_b64_tr_b16 {vq(reg+2*hf, 2)}, v{av} offset:{kk*RW + hf*120 + off}", ('kv', kk, j)))
        for kk in range(4):
            b = FB + kk * 20
            rd(b, V_KB, 80, kk, 'a')
            for nt in range(NT): rd(b + 8 + 4 * nt, V_KB, 32 * nt, kk, nt)
        for kk in range(4): rd(FB + kk * 20 + 4, V_KA1, 112, kk, 'z')
        def more(k):
            while k > 0 and rds and len(p.lgq) < 15: self.put([rds.popleft()]); k -= 1
        p(f"v_mov_b32 v{TMP+1}, 0xff")
        more(15); self.tick()
        seq = [(kk, nt) for kk in range(4) for nt in range(NT)]
        p.wait(lg=[('kv',) + seq[0]])
        for i_, (kk, nt) in enumerate(seq):
            b = FB + kk * 20
            p(f"{MF} {vq(KV + nt*4)}, {vq(b)}, {vq(b+8+4*nt)}, {'0' if kk == 0 else vq(KV + nt*4)}")
            if i_ + 1 < len(seq): p.wait(lg=[('kv',) + seq[i_ + 1]])
            more(3)
            if i_ % 6 == 5: self.tick()
        assert not rds
        lastm = 0x00ff00ff if A else 0x000f000f
        def pub(mt, nt):
            a = KV + (mt * 3 + nt) * 4
            lo = lastm if nt == NT - 1 else 0xffffffff
            hi = lo if mt == 0 else 0
            L = [(1, f"v_bfi_b32 v{a+j}, v{TMP+1}, s{S_NONCE}, v{a+j}") for j in range(4)]
            st = (f"buffer_store_dwordx4 {vq(a)}, v{V_P1ST}, {srd(SWS)}, s{S_P1ST} offen offset:{(4*mt*F + 16*nt)*16} sc1", 'p1')
            if (lo, hi) == (0xffffffff, 0xffffffff): return L + [(2, st)]
            return L + [(2, [f"s_mov_b32 exec_lo, {hex(lo)}", f"s_mov_b32 exec_hi, {hex(hi)}", st, "s_mov_b64 exec, -1"])]
        p.wait(lg='*')
        self.stamp('kv3')
        for kk in range(4):
            for j in range(4): p(f"v_and_or_b32 v{FB+kk*20+4+j}, v{FB+kk*20+4+j}, v{V_KEEP}, v{V_ONE}")
        mf = [(2, f"{MF} {vq(KV + (3+nt)*4)}, {vq(FB+kk*20+4)}, {vq(FB+kk*20+8+4*nt)}, {'0' if kk == 0 else vq(KV + (3+nt)*4)}") for nt in range(NT) for kk in range(4)]
        pr = [(1, lambda n=n, hf=hf: self.wread(200 + n, hf)) for n in range(D - 1) for hf in range(2)]
        self.put([x for _, x in self.weave(mf, [y for nt in range(NT) for y in pub(0, nt)] + pr)])
        qhead = [y for nt in range(NT) for y in pub(1, nt)]
        self.stamp()
        X = TMP + 8; CK = TMP + 2
        def tagcheck(mask):
            return [f"v_xor_b32 v{CK}, s{S_NONCE}, v{X}"] + [f"v_bitop3_b32 v{CK}, v{CK}, v{X+j}, s{S_NONCE} bitop3:0xf6" for j in range(1, 4 * NI)] + \
                   [f"v_and_b32 v{CK}, {mask}, v{CK}", f"v_cmp_ne_u32 vcc, 0, v{CK}"]
        lds_ = []
        for ii in range(NI):
            lds_ += [f"s_add_u32 s{T0}, s{S_P1LD}, {ii * (65536 // NI)}", f"buffer_load_dwordx4 {vq(X+4*ii)}, v{V_P1LD}, {srd(SWS)}, s{T0} offen sc1"]
        iss, chk = self.checked("L_h1", lds_, tagcheck("0xff"), 'h1')
        red = [f"v_add_f32 v{X+j}, v{X+j}, v{X+4*ii+j}" for ii in range(1, NI) for j in range(4)]
        red += [f"v_permlane32_swap_b32 v{X}, v{X+2}", f"v_permlane32_swap_b32 v{X+1}, v{X+3}", f"v_add_f32 v{X}, v{X}, v{X+2}", f"v_add_f32 v{X+1}, v{X+1}, v{X+3}",
                f"v_mov_b32 v{CK}, 0xffff", f"v_permlane16_swap_b32 v{X}, v{X+1}", f"v_add_f32 v{X}, v{X}, v{X+1}"]
        if not A: red.append(f"v_add_f32_dpp v{X}, v{X}, v{X} row_ror:8 row_mask:0xf bank_mask:0xf")
        red += [f"v_cvt_pk_bf16_f32 v{X}, v{X}, v{X}", f"v_bfi_b32 v{X}, v{CK}, s{S_NONCE}, v{X}"]
        st = (f"buffer_store_dword v{X}, v{V_P2ST}, {srd(SWS)}, s{S_P2ST} offen sc1", 'p2')
        red.append([st] if A else ["s_mov_b32 exec_lo, 0x00ff00ff", "s_mov_b32 exec_hi, 0x00ff00ff", st, "s_mov_b64 exec, -1"])
        n1, n2 = o.get('h1', (62, 84))
        hooks = {n1 + k: iss[2*k:2*k+2] for k in range(NI)}
        qh = deque(qhead)
        for n in range(12): hooks[n] = [lambda: self.gap(qh, 2)]
        for g in range(4): hooks.setdefault(20 * g + 18, []).extend([lambda g=g: self.group_sync(min(12 + g, 14)), lambda g=g: self.release(15 + g)])
        self.gemm_pass(2, ACC_K, xb, fill=chk + [(1, x) for x in red], hooks=hooks, last=True, sync=False, frange=(n2, 100),
                       pace=lambda n: 1 if (n >= 9 and n % (3 if n < o.get('qsw', 24) else o.get('qpace', 5)) == 0 and not n1 <= n < n1 + NI) else 0)
        assert not qh
        p("s_barrier")
        self.release(19)
        self.stamp()
        X = TMP + 96; CK = TMP + 92
        lds_ = [f"buffer_load_dwordx4 {vq(X+4*ii)}, v{V_LIN if ii < NI-1 else V_GAL}, {srd(SWS)}, s{S_P2LD} offen offset:{1024*ii if ii < NI-1 else 0} sc1" for ii in range(NI)]
        iss, chk = self.checked("L_h2", lds_, tagcheck("0xffff"), 'h2')
        pre = [(f"buffer_load_dword v{V_DUMP}, v{V_L128}, {srd(SWS)}, s{S_OP} offen sc1", 'pr'), (f"buffer_load_dword v{V_DUMP}, v{V_F8}, {srd(SWS)}, s{S_FLAG} offen sc1", 'pr')]
        pre = ["s_mov_b32 exec_hi, 0xff", pre[0], "s_mov_b64 exec, 1", pre[1], "s_mov_b64 exec, -1"]
        zw = [f"v_mov_b32 v{CK}, 0", f"v_mov_b32 v{CK+1}, 0", f"ds_write_b64 v{V_ZA}, {vq(CK, 2)}"]
        self.put(zw)
        for k_ in range(o.get('dirty', 0)):
            p(f"s_add_u32 s{T0}, s{S_OP}, {(9 << 20) + (k_ // 5) * (6 << 20) + (k_ % 5) * 1024}")
            p(f"buffer_store_dwordx4 v[2:5], v{V_LIN}, {srd(SWS)}, s{T0} offen {o.get('dirtyf', '')}")
        if o.get('prepos', 0) == 1: self.put(pre)
        if not A:
            for tt in range(6): p(f"v_accvgpr_write_b32 a{40+4*(3*tt+2)+2}, 0"); p(f"v_accvgpr_write_b32 a{40+4*(3*tt+2)+3}, 0")
        if A:
            P0 = self.phiA_parts(x0, E0, M0_, "L_q0", True); P1 = self.phiA_parts(x1, E1, M1_, "L_q1", True)
            L = P0['cvt'] + self.weave(P0['mf'], P1['cvt'] + P0['exp'][:6]) + self.weave(P1['mf'], P0['exp'][6:]) + P0['norm'] + P0['out'] + P1['exp'] + P1['norm'] + P1['out']
        else:
            L = []
            for x, e in ((x0, E0), (x1, E1)):
                L += self.phiB(x, e, True) + [(1, f"v_mov_b32 v{x+10}, 0"), (1, f"v_mov_b32 v{x+11}, 0")]
        tot = sum(c for c, _ in L); cut = tot - o.get('h2lead', 180) if A else tot
        c = 0; k = 0
        while k < len(L) and c < cut: c += L[k][0]; k += 1
        self.run(L[:k], every=o.get('qev', 44))
        self.stamp('q0')
        self.flush_dma(('W', 15))
        self.stamp('q1')
        self.put(iss)
        if o.get('prepos', 0) == 0: self.put(pre)
        self.stamp('q2')
        self.run(L[k:], every=o.get('qev', 44))
        self.stamp()
        self.put([x for _, x in chk])
        for ii in range(NI):
            p(f"v_perm_b32 v{X+4*ii}, v{X+4*ii+1}, v{X+4*ii}, s{S_PERM}")
            p(f"v_perm_b32 v{X+4*ii+1}, v{X+4*ii+3}, v{X+4*ii+2}, s{S_PERM}")
            p(f"ds_write_b64 v{V_LA+ii}, {vq(X+4*ii, 2)}", 'kvw')
        p.wait(lg='*')
        p("s_barrier")
        self.stamp()
        OA = ACC_V
        NU = 5 if A else 3
        SP = TMP + 112
        if A: p(f"v_mov_b32 v{SP}, v{M0_}"); p(f"v_mov_b32 v{SP+1}, v{M1_}")
        OB = TMP + 64
        LO = TMP + 80
        fr = [(tt, u_) for tt in (5, 0, 1, 2, 3, 4) for u_ in range(NU)]
        AO = 40
        rds = deque()
        for n, (tt, u_) in enumerate(fr):
            if not A and u_ == 2: rds.append((f"ds_read_b64 {aq(AO+4*n, 2)}, v{V_FR2} offset:{4*tt*RS + 16*u_}", ('of', n)))
            else: rds.append((f"ds_read_b128 {aq(AO+4*n)}, v{V_FR2} offset:{4*tt*RS + 16*u_}", ('of', n)))
        more(12)
        p(f"s_add_u32 s{T1}, s{S_OP}, 4096")
        p(f"s_cmp_eq_u32 s{S_FAST}, 0")
        def ost(txt):
            k = len(self.ool)
            if o.get('noslow'): p(txt, 'o'); return
            if o.get('nofast'): p(txt + " sc1", 'o'); return
            p(f"s_cbranch_scc0 L_os{k}{self.sfx}"); p(txt + " " + o.get('fastf', ''), 'o'); p(f"L_or{k}{self.sfx}:")
            self.ool.append(f"L_os{k}{self.sfx}:\n    {txt} sc1\n    s_branch L_or{k}{self.sfx}\n")
        epi = deque()
        for rt in range(2):
            dn = OA + (rt * 6 + 5) * 4
            b = OA + rt * 24
            rdy = lambda k: rt * 6 * NU + (k + 1) * NU + 3
            epi.append((rdy(0), 1, f"v_fmac_f32 v{dn}, {EPS}, v{SP+rt}" if A else f"v_add_f32 v{dn}, {EPS}, v{dn}")); epi.append((rdy(0), 2, f"v_rcp_f32 v{dn}, v{dn}"))
            for tt in range(5):
                for r in range(4): epi.append((rdy(tt + 1), 1, f"v_mul_f32 v{b+4*tt+r}, v{b+4*tt+r}, v{dn}"))
                for h in range(2):
                    i = 2 * tt + h
                    d = OB + ((i // 4) * 2 + rt) * 4 + i % 4 if i < 8 else LO + 2 * rt + (i - 8)
                    epi.append((rdy(tt + 1), 1, f"v_cvt_pk_bf16_f32 v{d}, v{b+2*i}, v{b+2*i+1}"))
                if tt in (1, 3):
                    u_ = tt // 2
                    epi.append((0, 2, lambda u_=u_, rt=rt: ost(f"buffer_store_dwordx4 {vq(OB+(u_*2+rt)*4)}, v{V_LIN}, {srd(SWS)}, s{S_OP} offen offset:{(rt*2+u_)*1024}")))
        epi.append((0, 2, lambda: ost(f"buffer_store_dwordx4 {vq(LO)}, v{V_LIN}, {srd(SWS)}, s{T1} offen")))
        pr = deque((300 + n, hf) for n in range(D - 1) for hf in range(2))
        m = 0
        for rt in range(2):
            for n, (tt, u_) in enumerate(fr):
                a = OA + (rt * 6 + tt) * 4
                if m == 0: p.wait(lg=[('of', 0)])
                p(f"{MF} {vq(a)}, {aq(AO+4*n)}, {vq(ACC_K+20*rt+4*u_)}, {'0' if u_ == 0 else vq(a)}")
                m += 1
                if rt == 0 and n + 1 < len(fr): p.wait(lg=[('of', n + 1)])
                bud = 2 if A else 3
                if rds: more(2); bud -= 2
                elif self.dq and m % o.get('opace', 8) == 0: self.tick(); p(f"s_cmp_eq_u32 s{S_FAST}, 0"); bud -= 2
                elif pr and not (epi and epi[0][0] <= m): self.wread(*pr.popleft()); bud -= 1
                while epi and epi[0][0] <= m and epi[0][1] <= bud:
                    _, c, x = epi.popleft(); bud -= c; self.put([x])
        while pr: self.wread(*pr.popleft())
        while epi: self.put([epi.popleft()[2]])
        self.stamp()
        def ob(ks, rt):
            if ks < 2: return vq(OB + (ks * 2 + rt) * 4)
            return aq((ks * 2 + rt) * 4) if ks < 16 else vq(LO + (2 * (ks - 16) + rt) * 4)
        def oload(P):
            if P < 16:
                return [[(f"buffer_load_dwordx4 {aq((P*2+rt)*4)}, v{V_LIN}, {srd(SWS)}, s{S_OP + P//2} offen offset:{(rt*2+P%2)*1024} sc1", ('O', P))] for rt in range(2)]
            return [[f"s_add_u32 s{T0}, s{S_OP + 2*(P-16) + h}, 4096", (f"buffer_load_dwordx4 {vq(LO+(2*(P-16)+h)*4)}, v{V_LIN}, {srd(SWS)}, s{T0} offen sc1", ('O', P))]
                    for h in range(2) if (P, h) != (16, 0)]
        def handshake():
            while self.tick(): pass
            p("s_waitcnt vmcnt(0)")
            p(f"s_cmp_eq_u32 s{S_FAST}, 0")
            p("s_mov_b64 exec, 1")
            ost(f"buffer_store_dword v{V_NONCE}, v{V_FOWN}, {srd(SWS)}, s{S_FLAG} offen")
            p("s_mov_b64 exec, 0xff")
            p("s_barrier")
            iss, chk = self.checked("L_h3", [f"buffer_load_dword v{V_DUMP}, v{V_F8}, {srd(SWS)}, s{S_FLAG} offen sc1"], [f"v_cmp_ne_u32 vcc, s{S_NONCE}, v{V_DUMP}"], 'h3')
            self.put(iss); self.put([x for _, x in chk])
            p("s_mov_b64 exec, -1")
            self.stamp()
            for P in range(2, 20): self.q(0, oload(P))
            for _ in range(o.get('oprime', 8)): self.tick()
        def owait(P):
            self.flush_dma(('O', P))
            p.wait(vm=[('O', P)])
            if P >= 16:
                a = LO + 2 * (P - 16) * 4
                p(f"v_swap_b32 v{a+2}, v{a+4}"); p(f"v_swap_b32 v{a+3}, v{a+5}")
        hooks = {5 * P - 1: [lambda P=P: owait(P)] for P in range(2, 20)}
        hooks[9] = [handshake] + hooks[9]
        hooks[90] = [f"s_or_b32 s{T0}, s{S_RB}, s{S_HEAD}", f"s_cmp_lg_u32 s{T0}, 0", f"s_cselect_b32 s{T0}, {WS_SIZE}, 0", "s_mov_b64 exec, 1",
                     (f"buffer_store_dword v{V_NONCE}, v{V_LIN}, {srd(SWS)}, s{T0} offen offset:{br*128} sc1", 'nn'), "s_mov_b64 exec, -1"]
        rs = o.get('restore', 0)
        if rs:
            for k_, (u_, rt) in enumerate([(0, 0), (1, 0), (0, 1), (1, 1)]):
                hooks.setdefault(rs + 2 * k_, []).append((f"buffer_store_dwordx4 {vq(OB+(u_*2+rt)*4)}, v{V_LIN}, {srd(SWS)}, s{S_OP} offen offset:{(rt*2+u_)*1024} sc1", 'rs'))
            hooks.setdefault(92, []).append((f"buffer_store_dwordx4 {vq(TMP+8)}, v{V_LIN}, {srd(SWS)}, s{T1} offen sc1", 'rs'))
            hooks.setdefault(2, []).extend([f"v_mov_b32 v{TMP+8+j}, v{LO+j}" for j in range(2)])
            hooks.setdefault(3, []).extend([f"v_mov_b32 v{TMP+8+j}, v{LO+j}" for j in range(2, 4)])
        self.gemm_pass(3, ACC_K, ob, hooks=hooks, last=True, sync=False, pace=lambda n: 1 if n % 2 == 0 and n > 9 else 0)
        self.stamp()
        for rt in range(2):
            c = self.cvt20(acc(ACC_K, 0, rt), TMP + 10 * rt)
            for j in range(5):
                p(c[2*j][1]); p(c[2*j+1][1])
                p(f"ds_write_b64 v{V_OW}, {vq(TMP+10*rt+2*j, 2)} offset:{rt*16*OUTS + 8*j}", 'ow')
        for j in range(5): p(f"ds_read_b128 {vq(TMP+24+4*j)}, v{V_ORD+j}", ('or', j))
        for j in range(5):
            p.wait(lg=[('or', j)])
            p(f"buffer_store_dwordx4 {vq(TMP+24+4*j)}, v{V_OG+j}, {srd(SOUT)}, s{S_OUT} offen {o.get('oflag', '')}", 'out')
        if o.get('stamps'):
            p("s_waitcnt vmcnt(0)")
            self.stamp()
            p("s_memrealtime s[100:101]")
            p("s_waitcnt lgkmcnt(0)")
            p.raw(f"""
            s_lshl_b32 s{T0}, s2, 2
            s_add_u32 s{T0}, s{T0}, s{S_W}
            s_lshl_b32 s{T0}, s{T0}, 6
            s_add_u32 s{T0}, s{T0}, {WS_ST}
            v_mov_b32 v{TMP+16}, 0
            v_mov_b32 v{TMP}, s98
            v_mov_b32 v{TMP+1}, s100
            """)
            for k in range(14): p(f"v_mov_b32 v{TMP+2+k}, {'s%d' % (S_ST+k) if k < self.nst else ('s95' if k == 13 else 0)}")
            p("s_mov_b64 exec, 1")
            for k in range(4): p(f"buffer_store_dwordx4 {vq(TMP+4*k)}, v{TMP+16}, {srd(SWS)}, s{T0} offen offset:{16*k}")
        if o.get('amp') and self.sfx in o['amp'][2]:
            p("s_waitcnt vmcnt(0)")
            self.stamp()
            p.raw(f"""
            s_sub_u32 s{T0}, s100, s98
            s_mul_i32 s{T0}, s{T0}, {o['amp'][1]}
            s_min_u32 s{T0}, s{T0}, 100000
            L_amp{self.sfx}:
            s_sleep 2
            s_memrealtime s[62:63]
            s_waitcnt lgkmcnt(0)
            s_sub_u32 s{T1}, s62, s98
            s_cmp_lt_u32 s{T1}, s{T0}
            s_cbranch_scc1 L_amp{self.sfx}
            """)
        p("s_endpgm")
        assert not self.dq
        return p.finalize() + "".join(self.ool)

def sizes(lines):
    import subprocess, re
    src = '.amdgcn_target "amdgcn-amd-amdhsa--gfx950"\n.text\n' + "\n".join(lines) + "\n"
    r = subprocess.run(["llvm-mc", "-triple=amdgcn-amd-amdhsa", "-mcpu=gfx950", "-show-encoding"], input=src, capture_output=True, text=True)
    assert r.returncode == 0, r.stderr[:2000]
    return [len(m.split(',')) for m in re.findall(r'encoding: \[([^\]]*)\]', r.stdout)]
def add_hops(text, sfx):
    lines = text.split("\n")
    i0 = lines.index(f"L_main{sfx}:"); i1 = next(i for i in range(i0, len(lines)) if lines[i].strip() == "s_endpgm")
    body = lines[i0 + 1:i1]
    isi = lambda l: l.startswith("    ")
    sz = iter(sizes([l for l in body if isi(l)]))
    out = []; addr = 0; page = 0; prev = "v_mfma"
    for l in body:
        if isi(l):
            off = addr - page * 4096
            if off >= 0 and (prev.startswith("v_mfma") or off >= 40) and not prev.startswith("s_mov_b64 exec") :
                out.append(("hop", page)); addr += 4; page += 1
            addr += next(sz); prev = l.strip()
        out.append(l)
    assert page >= 4
    res = []
    for x in out:
        if isinstance(x, tuple):
            k = x[1]
            res += [f"L_hop{k}{sfx}:", f"    s_cbranch_execz " + (f"L_hop{k+4}{sfx}" if k + 4 < page else f"L_hopret{sfx}")]
        else: res.append(x)
    print(sfx, "main bytes", addr, file=sys.stderr)
    return "\n".join(lines[:i0 + 1] + res + lines[i1:])

def build(opt):
    ref = open(f"cdna_kernels/{NAME}.s.ref").read().split("\n")
    head = [l for l in ref if l.startswith(";") and "@launch" not in l]
    s = "\n".join(head) + "\n; @launch grid=(256,1,1) block=(256,1,1) lds=163840\n"
    s += f""".amdgcn_target "amdgcn-amd-amdhsa--gfx950"
.text
.globl {NAME}_kernel
.p2align 12
.p2align 8
.type {NAME}_kernel,@function
{NAME}_kernel:
    s_cmp_ge_u32 s2, 256
    s_cbranch_scc1 L_exit
"""
    ga = Gen(True, opt); ta = ga.body(); gb = Gen(False, opt); tb = gb.body()
    ca, ra = ta.split(".split\n"); cb, rb = tb.split(".split\n")
    assert ca == cb
    if opt.get('hops', 1): ra = add_hops(ra, 'A'); rb = add_hops(rb, 'B')
    s += ca + ra + "L_exit:\n    s_endpgm\n.p2align 12\n" + rb
    s += ".fill 2048, 4, 0xbf810000\n"
    s += f""".section .rodata,"a"
.p2align 6
.amdhsa_kernel {NAME}_kernel
  .amdhsa_next_free_vgpr 512
  .amdhsa_next_free_sgpr 102
  .amdhsa_accum_offset 256
  .amdhsa_group_segment_fixed_size 0
  .amdhsa_kernarg_size 80
  .amdhsa_user_sgpr_count 2
  .amdhsa_user_sgpr_kernarg_segment_ptr 1
  .amdhsa_system_sgpr_workgroup_id_x 1
.end_amdhsa_kernel
"""
    print("nops", ga.p.nops, gb.p.nops, "instrs", len(ga.p.ins), len(gb.p.ins), "autow", getattr(ga.p, 'autow', 0), file=sys.stderr)
    return s

if __name__ == "__main__":
    import json
    opt = json.loads(sys.argv[2]) if len(sys.argv) > 2 else {}
    open(sys.argv[1], "w").write(build(opt))
```

```python
import sys
from collections import deque
from emit import Prog
NAME = "concat_heads__linear_kernel_hedgehog__linear_attn_block__prompt"

S_RB, S_HG, S_W = 4, 5, 7
SX, SW, SWO, SWS, SOUT, SPHI = 8, 12, 16, 20, 24, 28
S_NONCE = 32
S_WROW = 33
S_XBASE, S_XU = 38, 39
S_LW, S_LR = 40, 41
T0, T1, T2, T3 = 42, 43, 44, 45
S_WOROW = 46
S_HEAD = 51
S_SPIN = 52
S_FAST = 53
S_L2E, S_NL2E = 54, 55
S_OB = 56
S_WS, S_XS = 57, 58
S_FLAG = 59
S_OP = 60
S_P1ST, S_P1LD, S_P2ST, S_P2LD, S_OWN, S_OUT, S_XCCV, S_PERM = 68, 69, 70, 71, 72, 73, 74, 75
S_KA = 76
S_ST = 76
import os
if os.environ.get('PRO'): S_ST = 88
def srd(b): return f"s[{b}:{b+3}]"
V_LANE = 1
V_WO = 2; V_OF = 7; V_OL = 12; V_XO = 17; V_XR = 21; V_WT = 23; V_LIN = 25
V_PW, V_VW, V_KB, V_KA0, V_KA1, V_FR = 26, 27, 28, 29, 30, 31
ACC_K, ACC_V = 32, 72
TMP = 112
PV = 228
V_P1ST, V_P1LD, V_P2ST, V_GAL, V_LA, V_FR2, V_KEEP, V_ONE, V_OW, V_ORD, V_OG, V_F8, V_DUMP, V_ZA = PV, PV+1, PV+2, PV+3, PV+4, PV+8, PV+9, PV+10, PV+11, PV+12, PV+17, PV+22, PV+23, PV+24
V_L128, V_NONCE, V_FOWN = PV + 25, PV + 26, PV + 27
RING = 0; SLOT = 20480; RBASE = 102400; RW = 15360
OUTL = RBASE + 16384; OUTS = 176
WS_FLAG, WS_XCC, WS_P2, WS_P1, WS_O, WS_ST = 4096, 32768, 65536, 1 << 20, 8 << 20, 16 << 20
WS_SIZE = 32 << 20
D = 6
A_RING = 220
A_PHI = 160
SPIN_MAX = 20000
EPS = "0x358637bd"

def vq(b, n=4): return f"v[{b}:{b+n-1}]"
def aq(b, n=4): return f"a[{b}:{b+n-1}]"
def acc(base, t, rt): return base + (rt * 5 + t) * 4
MF = "v_mfma_f32_16x16x32_bf16"

DEF = {'A': dict(h1=(45, 84)), 'B': dict(h1=(45, 84), vpace=3, qpace=4, qev=24, vsync=1)}
class Gen:
    def __init__(self, isA, opt):
        self.A = isA
        sf = 'A' if isA else 'B'
        opt = dict(DEF[sf], **opt)
        opt.update({k[:-1]: v for k, v in opt.items() if k.endswith(sf)})
        self.o = opt
        self.p = Prog(); self.sfx = 'A' if isA else 'B'
        self.F = 40 if isA else 20
        self.nst = 0
        self.dq = deque()
        self.pos = 0
        self.ool = []
    def stamp(self, name=None):
        p = self.p
        fine = self.o.get('fine')
        if fine:
            if name is None: self.cs = getattr(self, 'cs', 0) + 1; name = 's%d' % (self.cs - 1)
            if name not in fine: return
        elif name is not None: return
        if self.o.get('amp'):
            if self.nst == self.o['amp'][0]:
                p("s_memrealtime s[100:101]"); p("s_waitcnt lgkmcnt(0)")
            self.nst += 1
            return
        if not self.o.get('stamps'): return
        p(f"s_memrealtime s[100:101]" if self.o.get('rt') else f"s_memtime s[100:101]")
        p("s_waitcnt lgkmcnt(0)")
        p(f"s_sub_u32 s{S_ST+self.nst}, s100, {'s98' if self.o.get('rt') else 's96'}")
        self.nst += 1
    def put(self, L):
        for x in L:
            if isinstance(x, tuple): self.p(x[0], x[1])
            elif isinstance(x, list): self.put(x)
            elif callable(x): x()
            else: self.p(x)
    def dma_w(self, G):
        g = G % 5
        pre = [f"s_add_u32 m0, s{S_LW}, {RING + g*SLOT}"]
        if G < 15:
            col = {0: 1280, 1: 2560, 2: 0}[G // 5]
            pre.append(f"s_add_u32 s{S_WS}, s{S_WROW+g}, {col}"); so = f"s{S_WS}"; sd = SW; vo = V_WO
        else:
            so = f"s{S_WOROW+g}"; sd = SWO; vo = V_OF if g < 4 else V_OL
        items = []
        if G // 5 in self.o.get('fake', []):
            base = (G % 5) * 4 * 5120 + (G // 5 if G < 15 else 0) * 819200
            pre = [pre[0], f"s_add_u32 s{S_WS}, s94, {base}"]
            for j in range(5):
                off = f"offset:{j*1024} " if 0 < j < 4 else ""
                L = (pre if j == 0 else []) + [(f"buffer_load_dwordx4 v{V_LIN}, {srd(sd)}, s{S_WS} offen {off}lds", ('W', G))]
                if j == 3: L += [f"s_add_u32 m0, s{S_LW}, {RING + g*SLOT + 4096}", f"s_add_u32 s{S_WS}, s{S_WS}, 4096"]
                items.append(L)
            return items
        for j in range(5):
            off = f"offset:{j*1024} " if 0 < j < 4 else ""
            L = (pre if j == 0 else []) + [(f"buffer_load_dwordx4 v{vo+j}, {srd(sd)}, {so} offen {off}lds", ('W', G))]
            if j == 3: L.append(f"s_add_u32 m0, s{S_LW}, {RING + g*SLOT + 4096}")
            items.append(L)
        return items
    def dma_x(self, pu):
        items = []
        for j in range(4):
            off = f"offset:{j*1024} " if j else ""
            L = []
            if j == 0: L += [f"s_add_u32 m0, s{S_LR}, {(pu % 3) * 4096}", f"s_add_u32 s{S_XS}, s{S_XU}, s{S_XBASE}"]
            L.append((f"buffer_load_dwordx4 v{V_XO+j}, {srd(SX)}, s{S_XS} offen {off}lds", ('X', pu)))
            if j == 0: L += [f"s_add_u32 s{S_XU}, s{S_XU}, 128"]
            if j == 1: L += [f"s_cmp_eq_u32 s{S_XU}, 1280", f"s_cselect_b32 s{S_XU}, 0, s{S_XU}"]
            items.append(L)
        return items
    def q(self, earliest, items):
        for it in items: self.dq.append((earliest, it))
    def release(self, k):
        self.dq = deque((0 if e == 10**6 + k else e, it) for e, it in self.dq)
    def tick(self):
        if self.dq and self.dq[0][0] <= self.pos:
            self.put(self.dq.popleft()[1]); return True
        return False
    def flush_dma(self, tag):
        def has():
            return any(isinstance(x, tuple) and x[1] == tag for _, it in self.dq for x in it)
        while has():
            assert self.dq[0][0] <= self.pos, (tag, self.pos, self.dq[0])
            self.put(self.dq.popleft()[1])
    def run(self, L, every=30):
        c = 0
        for cost, x in L:
            self.put([x]); c += cost
            if c >= every: c = 0; self.tick()
    def wread(self, N, hf):
        G = N // 20; ks = (N % 20) // 5; t = N % 5
        off = RING + (G % 5) * SLOT + ks * 5120 + hf * 2560 + 8 * t
        hi = off >= 51200
        s = A_RING + (N % D) * 4 + 2 * hf
        if G // 5 in self.o.get('fake', []):
            if hf == 0:
                off = RING + (G % 5) * SLOT + ks * 5120 + 1024 * t
                hi = off >= 51200
                self.p(f"ds_read_b128 a[{s}:{s+3}], v{226 + hi} offset:{off - 51200*hi}", ('F', N))
            return
        self.p(f"ds_read_b64_tr_b16 a[{s}:{s+1}], v{V_WT + hi} offset:{off - 51200*hi}", ('F', N))
    def group_sync(self, G):
        self.flush_dma(('W', G))
        self.p.wait(vm=[('W', G)])
        self.p("s_barrier")
    def xread(self, pu, k):
        ksub, rt = divmod(k, 2)
        if k == 0:
            self.flush_dma(('X', pu)); self.p.wait(vm=[('X', pu)])
        a = ((2 * pu + ksub) * 2 + rt) * 4
        self.p(f"ds_read_b128 {aq(a)}, v{V_XR+ksub} offset:{(pu % 3)*4096 + rt*2048}", ('XR', pu))
    def prime(self, ps, sync=True):
        if sync: self.group_sync(ps * 5)
        for n in range(D - 1):
            self.wread(ps * 100 + n, 0); self.wread(ps * 100 + n, 1)
    def gemm_pass(self, ps, accb, bop, fill=None, hooks=None, last=False, pace=None, sync=True, frange=(0, 100), hooks0=None):
        p = self.p
        fill = deque(fill or []); hooks = hooks or {}; hooks0 = hooks0 or {}
        N0 = ps * 100
        p.wait(lg=[('F', N0), ('XR', 0)])
        pace = pace or (lambda n: 0)
        for n in range(100):
            self.pos = N0 + n
            ks, t = divmod(n, 5)
            s = A_RING + ((N0 + n) % D) * 4
            M = n + D - 1
            look = M < 100 or not last
            a = acc(accb, t, 0)
            p(f"{MF} {vq(a)}, {aq(s)}, {bop(ks, 0)}, {'0' if ks == 0 else vq(a)}")
            k0 = len(p.ins)
            if n < 99:
                tg = [('F', N0 + n + 1)]
                if ps == 0 and (n + 1) % 10 == 0: tg.append(('XR', (n + 1) // 10))
                p.wait(lg=tg)
            if n in hooks0: self.put(hooks0[n])
            if look:
                if M % 20 == 0 and sync: self.group_sync((N0 + M) // 20)
                if len(p.ins) == k0: p("s_nop 0")
                self.wread(N0 + M, 0); self.wread(N0 + M, 1)
                if ps in self.o.get('fake', []) and fill and n >= frange[0] and not isinstance(fill[0][1], tuple): self.gap(fill, 1 if fill[0][0] < 2 or n % 2 else 2)
            elif fill and n >= frange[0]: self.gap(fill, 2)
            a = acc(accb, t, 1)
            p(f"{MF} {vq(a)}, {aq(s)}, {bop(ks, 1)}, {'0' if ks == 0 else vq(a)}")
            self.pos = N0 + n + 1
            self.stamp('n%d' % (N0 + n))
            did = 0
            for _ in range(pace(n)): did += self.tick()
            if n in hooks: self.put(hooks[n])
            if fill and n >= frange[0]:
                left = sum(c for c, _ in fill)
                gaps = sum(1 for k in range(n, frange[1]) if not pace(k)) + (min(D - 1, 99 - n) if last and frange[1] == 100 else 0)
                bud = 0 if did else 2
                if left > (3 if ps in self.o.get('fake', []) else 2) * gaps: bud += 2
                self.gap(fill, bud)
        while fill: self.put([fill.popleft()[1]])
        self.pos = N0 + 100
    def gap(self, fill, bud):
        first = True
        while fill:
            c, x = fill[0]
            solo = isinstance(x, tuple)
            if c > bud or (solo and not first): break
            fill.popleft(); self.put([x]); bud -= c
            if solo: break
            if c: first = False
    def cvt20(self, src, dst):
        return [(1, f"v_cvt_pk_bf16_f32 v{dst+i}, v{src+2*i}, v{src+2*i+1}") for i in range(10)]
    def phiA_parts(self, x, e, m, name, isq):
        P = {}
        kb = e + 28
        P['cvt'] = self.cvt20(x, kb) + [(1, f"v_mov_b32 v{kb+10}, 0"), (1, f"v_mov_b32 v{kb+11}, 0")]
        P['mf'] = [(2, f"{MF} {vq(x+4*t)}, {aq(A_PHI + (t*3+u)*4)}, {vq(kb+4*u)}, {'0' if u == 0 else vq(x+4*t)}") for t in range(5) for u in range(3)]
        P['exp'] = [(2, f"v_exp_f32 v{e+i}, v{x+i}") for i in range(20)] + [(2, f"v_exp_f32 v{e+20+i}, -v{x+i}") for i in range(20)]
        def sums():
            L = [f"v_pk_add_f32 v[{m+2*h}:{m+2*h+1}], v[{e+20*h}:{e+20*h+1}], v[{e+20*h+2}:{e+20*h+3}]" for h in range(2)]
            L += [f"v_pk_add_f32 v[{m+2*h}:{m+2*h+1}], v[{m+2*h}:{m+2*h+1}], v[{e+20*h+2*i}:{e+20*h+2*i+1}]" for i in range(2, 10) for h in range(2)]
            L += [f"v_add_f32 v{m+2*h}, v{m+2*h}, v{m+2*h+1}" for h in range(2)]
            return L
        nm = name + self.sfx
        L = sums() + [f"v_max_f32 v{m+1}, v{m}, v{m+2}", f"v_cmp_ngt_f32 vcc, 0x5d800000, v{m+1}"]
        if not isq: L.append(f"v_rcp_f32 v{m+4}, v{m}")
        L += [f"v_rcp_f32 v{m+2}, v{m+2}", [f"s_cbranch_vccnz {nm}_slow", f"{nm}_back:"]]
        o = Prog()
        o(f"{nm}_slow:")
        o(f"v_max3_f32 v{m}, v{x}, v{x+1}, v{x+2}"); o(f"v_min3_f32 v{m+1}, v{x}, v{x+1}, v{x+2}")
        for i in range(3, 19, 2):
            o(f"v_max3_f32 v{m}, v{m}, v{x+i}, v{x+i+1}"); o(f"v_min3_f32 v{m+1}, v{m+1}, v{x+i}, v{x+i+1}")
        o(f"v_max_f32 v{m}, v{m}, v{x+19}"); o(f"v_min_f32 v{m+1}, v{m+1}, v{x+19}")
        for i in range(20): o(f"v_sub_f32 v{e+i}, v{x+i}, v{m}"); o(f"v_sub_f32 v{e+20+i}, v{m+1}, v{x+i}")
        for i in range(40): o(f"v_exp_f32 v{e+i}, v{e+i}")
        for y in sums(): o(y)
        if not isq: o(f"v_rcp_f32 v{m+4}, v{m}")
        o(f"v_rcp_f32 v{m+2}, v{m+2}"); o("s_nop 1"); o(f"s_branch {nm}_back")
        self.ool.append(o.finalize())
        if isq: L.append(f"v_mul_f32 v{m+2}, v{m+2}, v{m}")
        else: L += [f"v_pk_mul_f32 v[{e+2*i}:{e+2*i+1}], v[{e+2*i}:{e+2*i+1}], v[{m+4}:{m+5}] op_sel_hi:[1,0]" for i in range(10)]
        L += [f"v_pk_mul_f32 v[{e+20+2*i}:{e+21+2*i}], v[{e+20+2*i}:{e+21+2*i}], v[{m+2}:{m+3}] op_sel_hi:[1,0]" for i in range(10)]
        P['norm'] = [(1, y) for y in L]
        P['out'] = [(1, f"v_cvt_pk_bf16_f32 v{x+i}, v{e+2*i}, v{e+2*i+1}") for i in range(20)]
        return P
    def weave(self, mf, va, per=2):
        va = deque(va); L = []
        for x in mf:
            L.append(x); b = per
            while va and va[0][0] <= b: b -= va[0][0]; L.append(va.popleft())
        return L + list(va)
    def phiB(self, x, e, packed):
        L = []
        if packed: L += [(1, f"v_pk_mul_f32 v[{e+2*i}:{e+2*i+1}], v[{x+2*i}:{x+2*i+1}], s[{S_L2E}:{S_NL2E}] op_sel_hi:[1,0]") for i in range(10)]
        else: L += [(1, f"v_mul_f32 v{e+i}, s{S_L2E}, v{x+i}") for i in range(20)]
        L += [(2, f"v_exp_f32 v{e+i}, v{e+i} clamp") for i in range(20)]
        L += [(1, f"v_max_f32 v{x+i}, {EPS}, v{x+i}") for i in range(20)]
        if packed: L += [(1, f"v_pk_add_f32 v[{e+2*i}:{e+2*i+1}], v[{e+2*i}:{e+2*i+1}], v[{x+2*i}:{x+2*i+1}]") for i in range(10)]
        else: L += [(1, f"v_add_f32 v{e+i}, v{e+i}, v{x+i}") for i in range(20)]
        L += self.cvt20(e, x)
        return L
    def checked(self, name, loads, check, tag):
        nm = name + self.sfx
        iss = [(x, tag) if x.startswith('buffer') else x for x in loads]
        chk = [(0, lambda: self.p.wait(vm=[tag]))] + [(1, x) for x in check] + [(1, [f"s_cbranch_vccnz {nm}_retry", f"{nm}_ok:"])]
        o = Prog()
        o(f"{nm}_retry:"); o(f"s_mov_b32 s{S_SPIN}, 0"); o(f"{nm}_loop:")
        if self.o.get('stamps'): o(f"s_add_u32 s95, s95, {dict(L_xc=1000000, L_h1=10000, L_h2=100, L_h3=1)[name]}")
        for x in loads: o(x)
        o("s_waitcnt vmcnt(0)")
        for x in check: o(x)
        o(f"s_cbranch_vccz {nm}_ok")
        o(f"s_add_u32 s{S_SPIN}, s{S_SPIN}, 1"); o(f"s_cmp_lt_u32 s{S_SPIN}, {SPIN_MAX}"); o(f"s_cbranch_scc1 {nm}_loop")
        o(f"s_branch {nm}_ok")
        self.ool.append(o.finalize())
        return iss, chk
    def body(self):
        p = self.p; A = self.A; F = self.F; br = 0 if A else 1; o = self.o
        t = TMP
        K = S_KA
        kx, kw, kout, kws = K, K + 2, K + 8, K + 10
        kphi, kwo = (K + 4, K + 6) if A else (None, K + 4)
        p.raw(f"""
        s_and_b32 s{T0}, s2, 4
        s_lshl_b32 s{T0}, s{T0}, 3
        s_load_dwordx8 s[{K}:{K+7}], s[0:1], s{T0}
        s_load_dwordx2 s[{kout}:{kout+1}], s[0:1], 56
        s_load_dwordx2 s[{kws}:{kws+1}], s[0:1], 72
        """)
        if o.get('stamps'): p("s_memtime s[96:97]"); p("s_mov_b32 s95, 0")
        if o.get('stamps') or o.get('amp'): p("s_memrealtime s[98:99]")
        p.raw(f"""
        s_getpc_b64 s[60:61]
        L_pc:
        s_bfe_u32 s{S_HG}, s2, 0x30003
        v_and_b32 v{V_LANE}, 63, v0
        v_lshrrev_b32 v{t}, 6, v0
        s_bitcmp1_b32 s2, 2
        s_cselect_b32 s{T1}, L_setupB-L_setupA, 0
        s_lshl_b32 s{T0}, s{S_HG}, 12
        v_lshlrev_b32 v{V_L128}, 7, v{V_LANE}
        v_readfirstlane_b32 s{S_W}, v{t}
        s_add_u32 s{T0}, s{T0}, s{T1}
        s_add_u32 s{T0}, s{T0}, L_setupA-L_pc
        s_add_u32 s60, s60, s{T0}
        s_addc_u32 s61, s61, 0
        v_lshl_add_u32 v{t+1}, v{t}, 10, v{V_L128}
        s_mov_b64 exec, 0xff
        """)
        p(f"global_load_dword v{V_DUMP}, v{t+1}, s[60:61]", 'cpf')
        p("s_mov_b64 exec, -1")
        ra, rbm, rdiv = o.get('rot', (10, 10, 4))
        p.raw(f"""
        s_and_b32 s{S_RB}, s2, 3
        s_lshl_b32 s{S_RB}, s{S_RB}, 2
        s_lshr_b32 s{T0}, s2, 6
        s_add_u32 s{S_RB}, s{S_RB}, s{T0}
        s_mul_i32 s{T0}, s{S_HG}, {ra}
        s_mul_i32 s{T1}, s{S_RB}, {rbm}
        s_add_u32 s{T0}, s{T0}, s{T1}
        s_lshr_b32 s{T0}, s{T0}, {rdiv.bit_length()-1}
        s_mul_i32 s{T1}, s{T0}, 6554
        s_lshr_b32 s{T1}, s{T1}, 16
        s_mul_i32 s{T1}, s{T1}, 10
        s_sub_u32 s{T3}, s{T0}, s{T1}
        s_lshl_b32 s{S_XU}, s{T3}, 7
        s_lshl_b32 s{T0}, s{S_RB}, 2
        s_add_u32 s{T0}, s{T0}, s{S_W}
        s_mul_i32 s{S_XBASE}, s{T0}, 40960
        s_mul_i32 s{S_LW}, s{S_W}, 5120
        s_mul_i32 s{S_LR}, s{S_W}, {RW}
        s_add_u32 s{S_LR}, s{S_LR}, {RBASE}
        v_lshrrev_b32 v{t}, 3, v{V_LANE}
        v_mul_u32_u24 v{t}, 1280, v{t}
        v_lshrrev_b32 v{t+1}, 4, v{V_LANE}
        v_xor_b32 v{t+1}, v{t+1}, v{V_LANE}
        v_and_b32 v{t+1}, 7, v{t+1}
        v_lshl_add_u32 v{V_XO}, v{t+1}, 4, v{t}
        v_xor_b32 v{t+2}, 64, v{V_XO}
        v_add_u32 v{V_XO+1}, {9216}, v{t+2}
        v_add_u32 v{V_XO+2}, {2*9216}, v{V_XO}
        v_add_u32 v{V_XO+3}, {3*9216}, v{t+2}
        s_lshr_b32 s{T0}, s{S_W}, 1
        s_add_u32 s{T0}, s{T0}, s{T3}
        s_and_b32 s{T1}, s{S_W}, 1
        s_mul_i32 s{T1}, s{T1}, {32*3840}
        s_mul_i32 s{T2}, s{S_HG}, 160
        s_add_u32 s{T1}, s{T1}, s{T2}
        s_mov_b32 s{SX+2}, 2621440
        s_mov_b32 s{SX+3}, 0x20000
        s_mov_b32 s{SW+2}, 2457600
        s_mov_b32 s{SW+3}, 0x20000
        """)
        def wrow(g):
            p.raw(f"""
            s_cmp_ge_u32 s{T0}, 10
            s_cselect_b32 s{T2}, 10, 0
            s_sub_u32 s{T0}, s{T0}, s{T2}
            s_mul_i32 s{T2}, s{T0}, {64*3840}
            s_add_u32 s{S_WROW+g}, s{T2}, s{T1}
            s_add_u32 s{T0}, s{T0}, 2
            """)
        wrow(0)
        RH = TMP + 10
        def woff(j):
            b = RH + 5 * j
            p.raw(f"""
            v_add_u32 v{t}, {64*j}, v{V_LANE}
            v_mul_u32_u24 v{b+4}, 6554, v{t}
            v_lshrrev_b32 v{b+4}, 16, v{b+4}
            v_mul_u32_u24 v{t+2}, 10, v{b+4}
            v_sub_u32 v{b+3}, v{t}, v{t+2}
            v_bfe_u32 v{b}, v{b+4}, 2, 2
            v_lshrrev_b32 v{b+1}, 4, v{b+4}
            v_and_b32 v{b+2}, 3, v{b+4}
            v_lshl_add_u32 v{t}, v{b}, 1, v{b+1}
            v_lshl_add_u32 v{t}, v{t}, 2, v{b+2}
            v_mul_u32_u24 v{t}, 3840, v{t}
            v_lshl_add_u32 v{V_WO+j}, v{b+3}, 4, v{t}
            """)
            if 0 < j < 4: p(f"v_subrev_u32 v{V_WO+j}, {1024*j}, v{V_WO+j}")
        if o.get('fake'):
            p.raw(f"""
            s_mul_i32 s94, s{S_HG}, 102400
            s_add_u32 s94, s94, s{S_LW}
            v_lshlrev_b32 v{V_LIN}, 4, v{V_LANE}
            v_mov_b32 v226, v{V_LIN}
            v_add_u32 v227, 51200, v{V_LIN}
            """)
        woff(0); woff(1)
        if o.get('pre0'): p("s_memtime s[92:93]")
        p.raw(f"""
        s_waitcnt lgkmcnt(0)
        s_mov_b32 s{SX}, s{kx}
        s_mov_b32 s{SX+1}, s{kx+1}
        s_mov_b32 s{SW}, s{kw}
        s_mov_b32 s{SW+1}, s{kw+1}
        """)
        self.stamp('p0')
        if o.get('pre0'): p(f"s_sub_u32 s{S_ST+self.nst}, s92, s96"); self.nst += 1
        self.put(self.dma_x(0))
        w0 = self.dma_w(0)
        self.put(w0[0:2]); woff(2); self.put(w0[2]); woff(3); self.put(w0[3]); woff(4); self.put(w0[4])
        self.stamp('p1')
        if o.get('prowait'):
            p.wait(vm=['cpf']); self.stamp('p2')
            p.wait(vm=[('X', 0)]); self.stamp('p3')
            p.wait(vm=[('W', 0)]); self.stamp('p4')
        p("s_bitcmp1_b32 s2, 2"); p("s_cbranch_scc1 L_setupB")
        p(".split")
        p(f"L_setup{self.sfx}:")
        p(f"s_load_dword s{S_NONCE}, s[{kws}:{kws+1}], {br*128}")
        for g in range(1, 5): wrow(g)
        self.q(0, self.dma_x(1))
        p.raw(f"""
        s_mov_b32 s{SWO}, s{kwo}
        s_mov_b32 s{SWO+1}, s{kwo+1}
        s_mov_b32 s{SWO+2}, 819200
        s_mov_b32 s{SWO+3}, 0x20000
        s_mov_b32 s{SWS}, s{kws}
        s_mov_b32 s{SWS+1}, s{kws+1}
        s_mov_b32 s{SWS+2}, {WS_SIZE}
        s_mov_b32 s{SWS+3}, 0x20000
        s_mov_b32 s{SOUT}, s{kout}
        s_mov_b32 s{SOUT+1}, s{kout+1}
        s_mov_b32 s{SOUT+2}, 5242880
        s_mov_b32 s{SOUT+3}, 0x20000
        s_lshl_b32 s{S_HEAD}, s{S_HG}, 2
        s_add_u32 s{S_HEAD}, s{S_HEAD}, s{S_W}
        v_lshlrev_b32 v{V_LIN}, 4, v{V_LANE}
        """)
        if A:
            p.raw(f"""
            s_mov_b32 s{SPHI}, s{kphi}
            s_mov_b32 s{SPHI+1}, s{kphi+1}
            s_mov_b32 s{SPHI+2}, 25600
            s_mov_b32 s{SPHI+3}, 0x20000
            """)
            self.q(0, [[f"s_mul_i32 s{S_WS}, s{S_HEAD}, 800",
                        (f"buffer_load_dwordx4 {vq(TMP+96)}, v{V_LIN}, {srd(SPHI)}, s{S_WS} offen", 'wphi')]])
        self.q(0, self.dma_w(1)); self.q(0, self.dma_x(2))
        G_, I_, R_, C_ = t, t + 1, t + 2, t + 3
        S = []
        def raw(txt):
            for l in txt.split('\n'):
                if l.strip(): S.append((1, l.strip()))
        raw(f"""
        v_lshrrev_b32 v{G_}, 4, v{V_LANE}
        v_and_b32 v{I_}, 15, v{V_LANE}
        v_bfe_u32 v{R_}, v{V_LANE}, 2, 2
        v_and_b32 v{C_}, 3, v{V_LANE}
        v_lshrrev_b32 v{t+4}, 1, v{I_}
        v_xor_b32 v{t+4}, v{t+4}, v{G_}
        v_lshlrev_b32 v{t+5}, 7, v{I_}
        v_lshl_add_u32 v{t+4}, v{t+4}, 4, v{t+5}
        v_add_u32 v{V_XR}, s{S_LR}, v{t+4}
        v_xor_b32 v{t+4}, 64, v{t+4}
        v_add_u32 v{V_XR+1}, s{S_LR}, v{t+4}
        v_lshrrev_b32 v{t+4}, 2, v{V_LANE}
        v_mul_u32_u24 v{t+5}, 160, v{t+4}
        v_mul_u32_u24 v{t+6}, 40, v{C_}
        v_add_u32 v{V_WT}, v{t+5}, v{t+6}
        v_add_u32 v{V_WT+1}, 51200, v{V_WT}
        v_mul_u32_u24 v{t+5}, 120, v{I_}
        v_mul_u32_u24 v{t+6}, 3840, v{G_}
        v_add3_u32 v{V_PW}, v{t+5}, v{t+6}, s{S_LR}
        v_mul_u32_u24 v{t+6}, 40, v{G_}
        v_mul_u32_u24 v{t+7}, {OUTS}, v{I_}
        s_mul_i32 s{T2}, s{S_W}, {32*OUTS}
        s_add_u32 s{T2}, s{T2}, {OUTL}
        v_add3_u32 v{V_OW}, v{t+7}, v{t+6}, s{T2}
        v_and_b32 v{t+5}, 7, v{t+4}
        v_lshrrev_b32 v{t+6}, 5, v{V_LANE}
        v_lshlrev_b32 v{t+6}, 1, v{t+6}
        v_lshl_add_u32 v{t+5}, v{t+5}, 2, v{t+6}
        v_mul_u32_u24 v{t+5}, 120, v{t+5}
        s_mul_i32 s{T0}, s{S_W}, 3840
        s_add_u32 s{T0}, s{T0}, {RBASE}
        v_add_u32 v{V_KA1}, s{T0}, v{t+5}
        v_lshl_add_u32 v{V_KB}, v{C_}, 3, v{V_KA1}
        s_mov_b32 s{S_L2E}, 0x3fb8aa3b
        s_mov_b32 s{S_NL2E}, 0xbfb8aa3b
        s_mov_b32 s{S_PERM}, 0x07060302
        s_and_b32 s{T3}, s{S_HG}, 1
        """)
        for j in range(5):
            b = RH + 5 * j
            raw(f"""
            v_mul_u32_u24 v{t+4}, 20, v{b}
            v_add_u32 v{t+4}, v{t+4}, v{b+2}
            v_lshl_add_u32 v{t+5}, v{b+1}, 2, v{t+4}
            v_xor_b32 v{t+6}, s{T3}, v{b+1}
            v_mul_u32_u24 v{t+6}, 80, v{t+6}
            v_add3_u32 v{t+6}, v{t+6}, v{t+4}, 16
            v_mul_u32_u24 v{t+5}, 1280, v{t+5}
            v_mul_u32_u24 v{t+6}, 1280, v{t+6}
            v_lshl_add_u32 v{V_OF+j}, v{b+3}, 4, v{t+5}
            v_lshl_add_u32 v{V_OL+j}, v{b+3}, 4, v{t+6}
            v_mul_u32_u24 v{t+5}, {OUTS}, v{b+4}
            v_lshl_add_u32 v{t+5}, v{b+3}, 4, v{t+5}
            v_add_u32 v{V_ORD+j}, s{T2}, v{t+5}
            v_mul_u32_u24 v{t+5}, 2560, v{b+4}
            v_lshl_add_u32 v{V_OG+j}, v{b+3}, 4, v{t+5}
            """)
            if 0 < j < 4:
                raw(f"v_subrev_u32 v{V_OF+j}, {1024*j}, v{V_OF+j}\nv_subrev_u32 v{V_OL+j}, {1024*j}, v{V_OL+j}")
        raw(f"""
        s_lshr_b32 s{T0}, s{S_W}, 1
        s_xor_b32 s{T0}, s{T0}, s{T3}
        s_mul_i32 s{T0}, s{T0}, 80
        s_and_b32 s{T1}, s{S_W}, 1
        s_lshl_b32 s{T1}, s{T1}, 3
        s_add_u32 s{T0}, s{T0}, s{T1}
        s_mul_i32 s{T0}, s{T0}, 1280
        s_mul_i32 s{T2}, s{S_HG}, 160
        s_add_u32 s{T0}, s{T0}, s{T2}
        s_lshr_b32 s{S_SPIN}, s{S_HG}, 1
        s_add_u32 s{T1}, s{S_SPIN}, s{S_W}
        s_and_b32 s{T1}, s{T1}, 3
        s_mul_i32 s{T1}, s{T1}, {160*1280}
        s_add_u32 s{S_WOROW+4}, s{T1}, s{T2}
        s_lshl_b32 s{S_OUT}, s{S_XBASE}, 1
        s_add_u32 s{S_OUT}, s{S_OUT}, s{T2}
        s_add_u32 s{S_OUT}, s{S_OUT}, {br*1280}
        s_add_u32 s{S_OB}, s{S_XBASE}, {WS_O + br*64*40960}
        """)
        for g in range(4):
            raw(f"""
            s_add_u32 s{T1}, s{S_SPIN}, {g}
            s_and_b32 s{T1}, s{T1}, 3
            s_mul_i32 s{T2}, s{T1}, {160*1280}
            s_add_u32 s{S_WOROW+g}, s{T2}, s{T0}
            s_lshl_b32 s{T1}, s{T1}, 1
            s_add_u32 s{T1}, s{T1}, s{T3}
            s_mul_i32 s{T2}, s{T1}, 5120
            s_add_u32 s{S_OP+2*g}, s{T2}, s{S_OB}
            s_xor_b32 s{T1}, s{T1}, 1
            s_mul_i32 s{T2}, s{T1}, 5120
            s_add_u32 s{S_OP+2*g+1}, s{T2}, s{S_OB}
            """)
        SH = 8 if A else 7
        raw(f"""
        s_lshl_b32 s{T0}, s{S_RB}, 2
        s_add_u32 s{T0}, s{T0}, s{S_W}
        s_lshl_b32 s{S_FLAG}, s{T0}, 7
        s_add_u32 s{S_FLAG}, s{S_FLAG}, {WS_FLAG + br*64*128}
        s_lshl_b32 s{T0}, s{S_HEAD}, 16
        s_add_u32 s{T0}, s{T0}, {WS_P1 + br*32*65536}
        s_lshl_b32 s{T1}, s{S_RB}, 12
        s_add_u32 s{S_P1ST}, s{T0}, s{T1}
        s_min_u32 s{T1}, s{S_RB}, 14
        s_lshl_b32 s{T1}, s{T1}, {SH}
        s_add_u32 s{S_P1LD}, s{T0}, s{T1}
        s_lshl_b32 s{T0}, s{S_HEAD}, 12
        s_add_u32 s{S_P2LD}, s{T0}, {WS_P2 + br*32*4096}
        s_add_u32 s{S_P2ST}, s{S_P2LD}, s{T1}
        v_mul_u32_u24 v{t+4}, {F}, v{G_}
        v_add_lshl_u32 v{V_P1ST}, v{t+4}, v{I_}, 4
        v_cmp_gt_u32 vcc, 4, v{I_}
        v_cndmask_b32 v{V_KEEP}, 0, -1, vcc
        v_mov_b32 v{t+4}, 0x3f803f80
        v_cmp_eq_u32 vcc, 4, v{I_}
        v_cndmask_b32 v{V_ONE}, 0, v{t+4}, vcc
        v_and_b32 v{t+4}, 7, v{V_LANE}
        v_lshlrev_b32 v{V_F8}, 2, v{t+4}
        s_lshl_b32 s{T0}, s{S_HG}, 2
        v_mov_b32 v{V_FOWN}, s{T0}
        v_lshlrev_b32 v{V_ZA}, 3, v0
        v_add_u32 v{V_ZA}, {RBASE+7680}, v{V_ZA}
        """)
        if A:
            raw(f"""
            v_lshlrev_b32 v{t+5}, 12, v{G_}
            v_lshl_add_u32 v{V_P1LD}, v{I_}, 4, v{t+5}
            v_lshlrev_b32 v{V_P2ST}, 2, v{V_LANE}
            """)
        else:
            raw(f"""
            v_lshrrev_b32 v{t+5}, 3, v{V_LANE}
            v_lshlrev_b32 v{t+5}, 12, v{t+5}
            v_lshl_add_u32 v{V_P1LD}, v{t+4}, 4, v{t+5}
            v_lshl_add_u32 v{V_P2ST}, v{G_}, 5, v{V_F8}
            """)
        RS = 80 if A else 48
        HS = 24 * RS
        NQ = 240 if A else 120
        NI = 4 if A else 2
        raw(f"s_mul_i32 s{T0}, s{S_W}, {HS}\ns_add_u32 s{T0}, s{T0}, {RBASE}")
        u = t + 4
        for ii in range(NI):
            raw(f"v_add_u32 v{u}, {64*ii}, v{V_LANE}")
            if ii == NI - 1:
                raw(f"""v_subrev_u32 v{u+1}, 64, v{u}
                v_cmp_gt_u32 vcc, {NQ}, v{u}
                v_cndmask_b32 v{u}, v{u+1}, v{u}, vcc
                v_lshlrev_b32 v{V_GAL}, 4, v{u}""")
            if A:
                raw(f"""
                v_lshrrev_b32 v{u+1}, 4, v{u}
                v_and_b32 v{u+2}, 3, v{u}
                v_lshl_add_u32 v{u+1}, v{u+1}, 2, v{u+2}
                v_bfe_u32 v{u+2}, v{u}, 2, 2
                v_mul_u32_u24 v{u+3}, 6554, v{u+1}
                v_lshrrev_b32 v{u+3}, 16, v{u+3}
                v_mul_u32_u24 v{u+4}, 10, v{u+3}
                """)
            else:
                raw(f"""
                v_lshrrev_b32 v{u+1}, 3, v{u}
                v_and_b32 v{u+2}, 1, v{u}
                v_lshl_add_u32 v{u+1}, v{u+1}, 1, v{u+2}
                v_bfe_u32 v{u+2}, v{u}, 1, 2
                v_mul_u32_u24 v{u+3}, 13108, v{u+1}
                v_lshrrev_b32 v{u+3}, 16, v{u+3}
                v_mul_u32_u24 v{u+4}, 5, v{u+3}
                """)
            raw(f"""
            v_sub_u32 v{u+1}, v{u+1}, v{u+4}
            v_lshl_add_u32 v{u+3}, v{u+3}, 2, v{u+2}
            v_mul_u32_u24 v{u+3}, {RS}, v{u+3}
            v_lshl_add_u32 v{u+3}, v{u+1}, 3, v{u+3}
            v_add_u32 v{V_LA+ii}, s{T0}, v{u+3}
            """)
        raw(f"""
        v_cmp_eq_u32 vcc, v{G_}, v{R_}
        v_mul_u32_u24 v{u}, {HS}, v{G_}
        v_mul_u32_u24 v{u+1}, {RS}, v{C_}
        v_add_u32 v{u}, v{u}, v{u+1}
        v_add_u32 v{u}, {RBASE}, v{u}
        v_mov_b32 v{u+1}, {RBASE+7680}
        v_cndmask_b32 v{V_FR2}, v{u+1}, v{u}, vcc
        """)
        if A:
            raw(f"""
            v_mov_b32 v{t+8}, 0
            v_mov_b32 v{t+9}, 0
            v_mov_b32 v{t+10}, 0
            v_mov_b32 v{t+11}, 0
            v_add_u32 v{TMP+100}, s{S_LR}, v{V_LIN}
            ds_write_b128 v{TMP+100}, {vq(t+8)} offset:13312
            v_mul_u32_u24 v{t+4}, {RW}, v{G_}
            v_mul_u32_u24 v{t+5}, 40, v{R_}
            v_add_u32 v{t+4}, v{t+4}, v{t+5}
            v_add_u32 v{t+4}, {RBASE+12288}, v{t+4}
            s_add_u32 s{T0}, s{S_LR}, 13312
            v_mov_b32 v{t+5}, s{T0}
            v_cmp_eq_u32 vcc, v{C_}, v{G_}
            v_cndmask_b32 v{V_FR}, v{t+5}, v{t+4}, vcc
            """)
            for tt in range(5):
                a = A_PHI + (tt * 3 + 2) * 4
                raw(f"v_accvgpr_write_b32 a{a+2}, 0\nv_accvgpr_write_b32 a{a+3}, 0")
        self.run(S, every=o.get('proev', 60))
        self.stamp('p5')
        if o.get('hops', 1):
            p("s_mov_b64 exec, 0")
            for w_ in range(3): p(f"s_cmp_eq_u32 s{S_W}, {w_}"); p(f"s_cbranch_scc1 L_hop{w_}{self.sfx}")
            p(f"s_branch L_hop3{self.sfx}")
            p(f"L_hopret{self.sfx}:")
            p("s_mov_b64 exec, -1")
        while self.tick(): pass
        p.raw(f"""
        s_getreg_b32 s{T0}, hwreg(HW_REG_XCC_ID, 0, 4)
        s_waitcnt lgkmcnt(0)
        s_add_u32 s{S_NONCE}, s{S_NONCE}, 0x9e3779b1
        s_lshl_b32 s{T0}, s{T0}, 28
        s_xor_b32 s{S_XCCV}, s{T0}, s{S_NONCE}
        v_mov_b32 v{V_NONCE}, s{S_NONCE}
        v_mov_b32 v{t}, s{S_XCCV}
        s_add_u32 s{T0}, s{S_FLAG}, {WS_XCC - WS_FLAG}
        s_mov_b64 exec, 1
        """)
        p(f"buffer_store_dword v{t}, v{V_FOWN}, {srd(SWS)}, s{T0} offen sc1", 'xcc')
        p("s_mov_b64 exec, -1")
        self.stamp()
        p(f"s_branch L_main{self.sfx}")
        p(".p2align 12")
        p(f"L_main{self.sfx}:")
        xb = lambda ks, rt: aq((ks * 2 + rt) * 4)
        for pu in range(0, 7):
            if (pu + 3) % 2 == 0: self.q(0, self.dma_w((pu + 3) // 2))
            self.q(10 * pu, self.dma_x(pu + 3))
        for G in range(5, 10): self.q(10**6 + 1 if G % 5 >= 3 else 20 * (G - 3) - 4, self.dma_w(G))
        for G in range(10, 20): self.q(10**6 + G, self.dma_w(G))
        hooks = {}
        for pu in range(1, 10):
            hooks[10 * pu - 5] = [lambda pu=pu: self.xread(pu, 0), lambda pu=pu: self.xread(pu, 1)]
            hooks[10 * pu - 4] = [lambda pu=pu: self.xread(pu, 2), lambda pu=pu: self.xread(pu, 3)]
        if A:
            rd = [(tt, u_, hf) for tt in range(5) for u_ in range(3) for hf in range(2 if u_ < 2 else 1)]
            w = TMP + 96; u2 = TMP + 102
            sc = [lambda: p.wait(vm=['wphi'])]
            for j in range(4):
                sc += [f"v_lshlrev_b32 v{u2}, 16, v{w+j}", f"v_and_b32 v{u2+1}, 0xffff0000, v{w+j}", f"v_mul_f32 v{u2}, s{S_L2E}, v{u2}",
                       f"v_mul_f32 v{u2+1}, s{S_L2E}, v{u2+1}", f"v_cvt_pk_bf16_f32 v{w+j}, v{u2}, v{u2+1}"]
            hooks[8] = sc + [(f"ds_write_b128 v{TMP+100}, {vq(w)} offset:12288", 'phw')]
            hooks[14] = [lambda: p.wait(lg=['phw'])]
            slots = [n for n in range(21, 90) if n % 10 in (0, 1, 2, 3)][:25]
            for k, n in enumerate(slots):
                hooks[n] = [(f"ds_read_b64_tr_b16 a[{A_PHI + (tt*3+u_)*4 + 2*hf}:{A_PHI + (tt*3+u_)*4 + 2*hf + 1}], v{V_FR} offset:{(8*u_+4*hf)*40 + 8*tt}", 'phi')
                            for tt, u_, hf in rd[k:k+1]]
        XV = TMP + 92
        iss, chk = self.checked("L_xc", ["s_mov_b64 exec, 0xff", f"s_add_u32 s{T0}, s{S_FLAG}, {WS_XCC - WS_FLAG}",
                                         f"buffer_load_dword v{XV}, v{V_F8}, {srd(SWS)}, s{T0} offen sc1", "s_mov_b64 exec, -1"],
                                [f"v_xor_b32 v{XV+1}, s{S_NONCE}, v{XV}", f"v_lshlrev_b32 v{XV+1}, 4, v{XV+1}",
                                 "s_mov_b64 exec, 0xff", f"v_cmp_ne_u32 vcc, 0, v{XV+1}", "s_mov_b64 exec, -1"], 'xl')
        hooks[58] = iss
        hooks[88] = [x for _, x in chk] + ["s_mov_b64 exec, 0xff", f"v_cmp_ne_u32 vcc, s{S_XCCV}, v{XV}", "s_mov_b64 exec, -1",
                                                     f"s_mov_b32 s{S_FAST}, vcc_lo"]
        self.group_sync(0)
        for k in range(4): self.xread(0, k)
        self.prime(0, sync=False)
        kp = o.get('kpace', 3)
        self.gemm_pass(0, ACC_K, xb, hooks=hooks, last=True, pace=lambda n: (1 if n % 3 != 2 else 0) if n < 69 else (1 if n % kp == 0 else 0))
        p("s_barrier")
        self.stamp()
        E0, E1, M0_, M1_ = TMP, TMP + 40, TMP + 80, TMP + 86
        x0, x1 = acc(ACC_K, 0, 0), acc(ACC_K, 0, 1)
        self.release(1)
        if o.get('amp'):
            p.raw(f"""
            s_load_dwordx2 s[88:89], s[0:1], 64
            s_not_b32 s{T0}, s98
            v_mov_b32 v{TMP+94}, 0
            v_mov_b32 v{TMP+95}, s{T0}
            s_lshr_b32 s{T0}, s2, 3
            s_or_b32 s{T0}, s{T0}, s{S_W}
            s_cmp_eq_u32 s{T0}, 0
            s_cselect_b32 s{T0}, 0, 64
            v_mov_b32 v{TMP+94}, s{T0}
            s_waitcnt lgkmcnt(0)
            s_cbranch_scc0 L_noat{self.sfx}
            s_mov_b64 exec, 1
            """)
            p.ins.append(__import__('emit').Ins(f"global_atomic_umax v{TMP+94}, v{TMP+95}, s[88:89] sc1"))
            p("s_mov_b64 exec, -1")
            p(f"L_noat{self.sfx}:")
        wr = lambda rt, x, n, o8: [(2, (f"ds_write_b64 v{V_PW}, {vq(x+2*j, 2)} offset:{rt*1920 + o8 + 8*j}", 'pw')) for j in range(n)]
        def mixw(out, w): return [y for j in range(len(w)) for y in out[2*j:2*j+2] + [w[j]]]
        burst = lambda L: [(0, [x for _, x in L])]
        dm = (2, lambda: self.tick())
        if A:
            P0 = self.phiA_parts(x0, E0, M0_, "L_k0", False); P1 = self.phiA_parts(x1, E1, M1_, "L_k1", False)
            pr = [(0, lambda: self.group_sync(5 if o.get('vsync', 0) else 6))] + [(1, lambda n=n, hf=hf: self.wread(100 + n, hf)) for n in range(D - 1) for hf in range(2)]
            self.put([x for _, x in [dm] + P0['cvt'] + self.weave(P0['mf'], [dm] + P1['cvt'] + [dm] + P0['exp'][:4]) + self.weave(P1['mf'], [dm] + P0['exp'][4:12] + [dm] + pr)])
            fill = P0['exp'][12:] + burst(P0['norm']) + mixw(P0['out'], wr(0, x0, 10, 0)) + P1['exp'] + burst(P1['norm']) + mixw(P1['out'], wr(1, x1, 10, 0))
            self.stamp('head')
        else:
            fill = []
            for rt, x, e in ((0, x0, E0), (1, x1, E1)):
                L = self.phiB(x, e, False)
                fill += L[:-10] + mixw(L[-10:], wr(rt, x, 5, 0))
            self.group_sync(5 if o.get('vsync', 0) else 6); self.prime(1, sync=False)
        hooks = {}
        vs = o.get('vsync', 0)
        for g in range(4): hooks.setdefault(20 * g + 18, []).extend(["s_barrier" if vs else (lambda g=g: self.group_sync(7 + g)), lambda g=g: self.release(10 + g)])
        vp = o.get('vpace', 4)
        self.gemm_pass(1, ACC_V, xb, fill=fill, hooks=hooks, last=True, sync=bool(vs), pace=lambda n: 1 if n % vp == 0 else 0)
        self.stamp()
        VB = TMP
        for rt in range(2):
            c = self.cvt20(acc(ACC_V, 0, rt), VB + 10 * rt)
            for j in range(5):
                p(c[2*j][1]); p(c[2*j+1][1])
                p(f"ds_write_b64 v{V_PW}, {vq(VB+10*rt+2*j, 2)} offset:{rt*1920 + 80 + 8*j}", 'vw')
                if j == 4 and rt == 0: self.tick()
        self.tick()
        p.wait(lg='*')
        self.stamp('kv0')
        self.flush_dma(('W', 11)); p.wait(vm=[('W', 11)])
        self.stamp('kv1')
        p("s_barrier")
        self.stamp('kv2')
        self.release(14)
        NT = 3 if A else 2
        FB = ACC_K
        KV = TMP + 64
        rds = deque()
        def rd(reg, av, off, kk, j):
            for hf in range(2): rds.append((f"ds_read_b64_tr_b16 {vq(reg+2*hf, 2)}, v{av} offset:{kk*RW + hf*120 + off}", ('kv', kk, j)))
        for kk in range(4):
            b = FB + kk * 20
            rd(b, V_KB, 80, kk, 'a')
            for nt in range(NT): rd(b + 8 + 4 * nt, V_KB, 32 * nt, kk, nt)
        for kk in range(4): rd(FB + kk * 20 + 4, V_KA1, 112, kk, 'z')
        def more(k):
            while k > 0 and rds and len(p.lgq) < 15: self.put([rds.popleft()]); k -= 1
        p(f"v_mov_b32 v{TMP+1}, 0xff")
        more(15); self.tick()
        seq = [(kk, nt) for kk in range(4) for nt in range(NT)]
        p.wait(lg=[('kv',) + seq[0]])
        for i_, (kk, nt) in enumerate(seq):
            b = FB + kk * 20
            p(f"{MF} {vq(KV + nt*4)}, {vq(b)}, {vq(b+8+4*nt)}, {'0' if kk == 0 else vq(KV + nt*4)}")
            if i_ + 1 < len(seq): p.wait(lg=[('kv',) + seq[i_ + 1]])
            more(3)
            if i_ % 6 == 5: self.tick()
        assert not rds
        lastm = 0x00ff00ff if A else 0x000f000f
        def pub(mt, nt):
            a = KV + (mt * 3 + nt) * 4
            lo = lastm if nt == NT - 1 else 0xffffffff
            hi = lo if mt == 0 else 0
            L = [(1, f"v_bfi_b32 v{a+j}, v{TMP+1}, s{S_NONCE}, v{a+j}") for j in range(4)]
            st = (f"buffer_store_dwordx4 {vq(a)}, v{V_P1ST}, {srd(SWS)}, s{S_P1ST} offen offset:{(4*mt*F + 16*nt)*16} sc1", 'p1')
            if (lo, hi) == (0xffffffff, 0xffffffff): return L + [(2, st)]
            return L + [(2, [f"s_mov_b32 exec_lo, {hex(lo)}", f"s_mov_b32 exec_hi, {hex(hi)}", st, "s_mov_b64 exec, -1"])]
        p.wait(lg='*')
        self.stamp('kv3')
        for kk in range(4):
            for j in range(4): p(f"v_and_or_b32 v{FB+kk*20+4+j}, v{FB+kk*20+4+j}, v{V_KEEP}, v{V_ONE}")
        mf = [(2, f"{MF} {vq(KV + (3+nt)*4)}, {vq(FB+kk*20+4)}, {vq(FB+kk*20+8+4*nt)}, {'0' if kk == 0 else vq(KV + (3+nt)*4)}") for nt in range(NT) for kk in range(4)]
        pr = [(1, lambda n=n, hf=hf: self.wread(200 + n, hf)) for n in range(D - 1) for hf in range(2)]
        self.put([x for _, x in self.weave(mf, [y for nt in range(NT) for y in pub(0, nt)] + pr)])
        qhead = [y for nt in range(NT) for y in pub(1, nt)]
        self.stamp()
        X = TMP + 8; CK = TMP + 2
        def tagcheck(mask):
            return [f"v_xor_b32 v{CK}, s{S_NONCE}, v{X}"] + [f"v_bitop3_b32 v{CK}, v{CK}, v{X+j}, s{S_NONCE} bitop3:0xf6" for j in range(1, 4 * NI)] + \
                   [f"v_and_b32 v{CK}, {mask}, v{CK}", f"v_cmp_ne_u32 vcc, 0, v{CK}"]
        lds_ = []
        for ii in range(NI):
            lds_ += [f"s_add_u32 s{T0}, s{S_P1LD}, {ii * (65536 // NI)}", f"buffer_load_dwordx4 {vq(X+4*ii)}, v{V_P1LD}, {srd(SWS)}, s{T0} offen sc1"]
        iss, chk = self.checked("L_h1", lds_, tagcheck("0xff"), 'h1')
        red = [f"v_add_f32 v{X+j}, v{X+j}, v{X+4*ii+j}" for ii in range(1, NI) for j in range(4)]
        red += [f"v_permlane32_swap_b32 v{X}, v{X+2}", f"v_permlane32_swap_b32 v{X+1}, v{X+3}", f"v_add_f32 v{X}, v{X}, v{X+2}", f"v_add_f32 v{X+1}, v{X+1}, v{X+3}",
                f"v_mov_b32 v{CK}, 0xffff", f"v_permlane16_swap_b32 v{X}, v{X+1}", f"v_add_f32 v{X}, v{X}, v{X+1}"]
        if not A: red.append(f"v_add_f32_dpp v{X}, v{X}, v{X} row_ror:8 row_mask:0xf bank_mask:0xf")
        red += [f"v_cvt_pk_bf16_f32 v{X}, v{X}, v{X}", f"v_bfi_b32 v{X}, v{CK}, s{S_NONCE}, v{X}"]
        st = (f"buffer_store_dword v{X}, v{V_P2ST}, {srd(SWS)}, s{S_P2ST} offen sc1", 'p2')
        red.append([st] if A else ["s_mov_b32 exec_lo, 0x00ff00ff", "s_mov_b32 exec_hi, 0x00ff00ff", st, "s_mov_b64 exec, -1"])
        n1, n2 = o.get('h1', (62, 84))
        hooks = {n1 + k: iss[2*k:2*k+2] for k in range(NI)}
        qh = deque(qhead)
        for n in range(12): hooks[n] = [lambda: self.gap(qh, 2)]
        for g in range(4): hooks.setdefault(20 * g + 18, []).extend([lambda g=g: self.group_sync(min(12 + g, 14)), lambda g=g: self.release(15 + g)])
        self.gemm_pass(2, ACC_K, xb, fill=chk + [(1, x) for x in red], hooks=hooks, last=True, sync=False, frange=(n2, 100),
                       pace=lambda n: 1 if (n >= 9 and n % (3 if n < o.get('qsw', 24) else o.get('qpace', 5)) == 0 and not n1 <= n < n1 + NI) else 0)
        assert not qh
        p("s_barrier")
        self.release(19)
        self.stamp()
        X = TMP + 96; CK = TMP + 92
        lds_ = [f"buffer_load_dwordx4 {vq(X+4*ii)}, v{V_LIN if ii < NI-1 else V_GAL}, {srd(SWS)}, s{S_P2LD} offen offset:{1024*ii if ii < NI-1 else 0} sc1" for ii in range(NI)]
        iss, chk = self.checked("L_h2", lds_, tagcheck("0xffff"), 'h2')
        pre = [(f"buffer_load_dword v{V_DUMP}, v{V_L128}, {srd(SWS)}, s{S_OP} offen sc1", 'pr'), (f"buffer_load_dword v{V_DUMP}, v{V_F8}, {srd(SWS)}, s{S_FLAG} offen sc1", 'pr')]
        pre = ["s_mov_b32 exec_hi, 0xff", pre[0], "s_mov_b64 exec, 1", pre[1], "s_mov_b64 exec, -1"]
        zw = [f"v_mov_b32 v{CK}, 0", f"v_mov_b32 v{CK+1}, 0", f"ds_write_b64 v{V_ZA}, {vq(CK, 2)}"]
        self.put(zw)
        for k_ in range(o.get('dirty', 0)):
            p(f"s_add_u32 s{T0}, s{S_OP}, {(9 << 20) + (k_ // 5) * (6 << 20) + (k_ % 5) * 1024}")
            p(f"buffer_store_dwordx4 v[2:5], v{V_LIN}, {srd(SWS)}, s{T0} offen {o.get('dirtyf', '')}")
        if o.get('prepos', 0) == 1: self.put(pre)
        if not A:
            for tt in range(6): p(f"v_accvgpr_write_b32 a{40+4*(3*tt+2)+2}, 0"); p(f"v_accvgpr_write_b32 a{40+4*(3*tt+2)+3}, 0")
        if A:
            P0 = self.phiA_parts(x0, E0, M0_, "L_q0", True); P1 = self.phiA_parts(x1, E1, M1_, "L_q1", True)
            L = P0['cvt'] + self.weave(P0['mf'], P1['cvt'] + P0['exp'][:6]) + self.weave(P1['mf'], P0['exp'][6:]) + P0['norm'] + P0['out'] + P1['exp'] + P1['norm'] + P1['out']
        else:
            L = []
            for x, e in ((x0, E0), (x1, E1)):
                L += self.phiB(x, e, True) + [(1, f"v_mov_b32 v{x+10}, 0"), (1, f"v_mov_b32 v{x+11}, 0")]
        tot = sum(c for c, _ in L); cut = tot - o.get('h2lead', 180) if A else tot
        c = 0; k = 0
        while k < len(L) and c < cut: c += L[k][0]; k += 1
        self.run(L[:k], every=o.get('qev', 44))
        self.stamp('q0')
        self.flush_dma(('W', 15))
        self.stamp('q1')
        self.put(iss)
        if o.get('prepos', 0) == 0: self.put(pre)
        self.stamp('q2')
        self.run(L[k:], every=o.get('qev', 44))
        self.stamp()
        self.put([x for _, x in chk])
        for ii in range(NI):
            p(f"v_perm_b32 v{X+4*ii}, v{X+4*ii+1}, v{X+4*ii}, s{S_PERM}")
            p(f"v_perm_b32 v{X+4*ii+1}, v{X+4*ii+3}, v{X+4*ii+2}, s{S_PERM}")
            p(f"ds_write_b64 v{V_LA+ii}, {vq(X+4*ii, 2)}", 'kvw')
        p.wait(lg='*')
        p("s_barrier")
        self.stamp()
        OA = ACC_V
        NU = 5 if A else 3
        SP = TMP + 112
        if A: p(f"v_mov_b32 v{SP}, v{M0_}"); p(f"v_mov_b32 v{SP+1}, v{M1_}")
        OB = TMP + 64
        LO = TMP + 80
        fr = [(tt, u_) for tt in (5, 0, 1, 2, 3, 4) for u_ in range(NU)]
        AO = 40
        rds = deque()
        for n, (tt, u_) in enumerate(fr):
            if not A and u_ == 2: rds.append((f"ds_read_b64 {aq(AO+4*n, 2)}, v{V_FR2} offset:{4*tt*RS + 16*u_}", ('of', n)))
            else: rds.append((f"ds_read_b128 {aq(AO+4*n)}, v{V_FR2} offset:{4*tt*RS + 16*u_}", ('of', n)))
        more(12)
        p(f"s_add_u32 s{T1}, s{S_OP}, 4096")
        p(f"s_cmp_eq_u32 s{S_FAST}, 0")
        def ost(txt):
            k = len(self.ool)
            if o.get('noslow'): p(txt, 'o'); return
            if o.get('nofast'): p(txt + " sc1", 'o'); return
            p(f"s_cbranch_scc0 L_os{k}{self.sfx}"); p(txt + " " + o.get('fastf', ''), 'o'); p(f"L_or{k}{self.sfx}:")
            self.ool.append(f"L_os{k}{self.sfx}:\n    {txt} sc1\n    s_branch L_or{k}{self.sfx}\n")
        epi = deque()
        for rt in range(2):
            dn = OA + (rt * 6 + 5) * 4
            b = OA + rt * 24
            rdy = lambda k: rt * 6 * NU + (k + 1) * NU + 3
            epi.append((rdy(0), 1, f"v_fmac_f32 v{dn}, {EPS}, v{SP+rt}" if A else f"v_add_f32 v{dn}, {EPS}, v{dn}")); epi.append((rdy(0), 2, f"v_rcp_f32 v{dn}, v{dn}"))
            for tt in range(5):
                for r in range(4): epi.append((rdy(tt + 1), 1, f"v_mul_f32 v{b+4*tt+r}, v{b+4*tt+r}, v{dn}"))
                for h in range(2):
                    i = 2 * tt + h
                    d = OB + ((i // 4) * 2 + rt) * 4 + i % 4 if i < 8 else LO + 2 * rt + (i - 8)
                    epi.append((rdy(tt + 1), 1, f"v_cvt_pk_bf16_f32 v{d}, v{b+2*i}, v{b+2*i+1}"))
                if tt in (1, 3):
                    u_ = tt // 2
                    epi.append((0, 2, lambda u_=u_, rt=rt: ost(f"buffer_store_dwordx4 {vq(OB+(u_*2+rt)*4)}, v{V_LIN}, {srd(SWS)}, s{S_OP} offen offset:{(rt*2+u_)*1024}")))
        epi.append((0, 2, lambda: ost(f"buffer_store_dwordx4 {vq(LO)}, v{V_LIN}, {srd(SWS)}, s{T1} offen")))
        pr = deque((300 + n, hf) for n in range(D - 1) for hf in range(2))
        m = 0
        for rt in range(2):
            for n, (tt, u_) in enumerate(fr):
                a = OA + (rt * 6 + tt) * 4
                if m == 0: p.wait(lg=[('of', 0)])
                p(f"{MF} {vq(a)}, {aq(AO+4*n)}, {vq(ACC_K+20*rt+4*u_)}, {'0' if u_ == 0 else vq(a)}")
                m += 1
                if rt == 0 and n + 1 < len(fr): p.wait(lg=[('of', n + 1)])
                bud = 2 if A else 3
                if rds: more(2); bud -= 2
                elif self.dq and m % o.get('opace', 8) == 0: self.tick(); p(f"s_cmp_eq_u32 s{S_FAST}, 0"); bud -= 2
                elif pr and not (epi and epi[0][0] <= m): self.wread(*pr.popleft()); bud -= 1
                while epi and epi[0][0] <= m and epi[0][1] <= bud:
                    _, c, x = epi.popleft(); bud -= c; self.put([x])
        while pr: self.wread(*pr.popleft())
        while epi: self.put([epi.popleft()[2]])
        self.stamp()
        def ob(ks, rt):
            if ks < 2: return vq(OB + (ks * 2 + rt) * 4)
            return aq((ks * 2 + rt) * 4) if ks < 16 else vq(LO + (2 * (ks - 16) + rt) * 4)
        def oload(P):
            if P < 16:
                return [[(f"buffer_load_dwordx4 {aq((P*2+rt)*4)}, v{V_LIN}, {srd(SWS)}, s{S_OP + P//2} offen offset:{(rt*2+P%2)*1024} sc1", ('O', P))] for rt in range(2)]
            return [[f"s_add_u32 s{T0}, s{S_OP + 2*(P-16) + h}, 4096", (f"buffer_load_dwordx4 {vq(LO+(2*(P-16)+h)*4)}, v{V_LIN}, {srd(SWS)}, s{T0} offen sc1", ('O', P))]
                    for h in range(2) if (P, h) != (16, 0)]
        def handshake():
            while self.tick(): pass
            p("s_waitcnt vmcnt(0)")
            p(f"s_cmp_eq_u32 s{S_FAST}, 0")
            p("s_mov_b64 exec, 1")
            ost(f"buffer_store_dword v{V_NONCE}, v{V_FOWN}, {srd(SWS)}, s{S_FLAG} offen")
            p("s_mov_b64 exec, 0xff")
            p("s_barrier")
            iss, chk = self.checked("L_h3", [f"buffer_load_dword v{V_DUMP}, v{V_F8}, {srd(SWS)}, s{S_FLAG} offen sc1"], [f"v_cmp_ne_u32 vcc, s{S_NONCE}, v{V_DUMP}"], 'h3')
            self.put(iss); self.put([x for _, x in chk])
            p("s_mov_b64 exec, -1")
            self.stamp()
            for P in range(2, 20): self.q(0, oload(P))
            for _ in range(o.get('oprime', 8)): self.tick()
        def owait(P):
            self.flush_dma(('O', P))
            p.wait(vm=[('O', P)])
            if P >= 16:
                a = LO + 2 * (P - 16) * 4
                p(f"v_swap_b32 v{a+2}, v{a+4}"); p(f"v_swap_b32 v{a+3}, v{a+5}")
        hooks = {5 * P - 1: [lambda P=P: owait(P)] for P in range(2, 20)}
        hooks[9] = [handshake] + hooks[9]
        hooks[90] = [f"s_or_b32 s{T0}, s{S_RB}, s{S_HEAD}", f"s_cmp_lg_u32 s{T0}, 0", f"s_cselect_b32 s{T0}, {WS_SIZE}, 0", "s_mov_b64 exec, 1",
                     (f"buffer_store_dword v{V_NONCE}, v{V_LIN}, {srd(SWS)}, s{T0} offen offset:{br*128} sc1", 'nn'), "s_mov_b64 exec, -1"]
        rs = o.get('restore', 0)
        if rs:
            for k_, (u_, rt) in enumerate([(0, 0), (1, 0), (0, 1), (1, 1)]):
                hooks.setdefault(rs + 2 * k_, []).append((f"buffer_store_dwordx4 {vq(OB+(u_*2+rt)*4)}, v{V_LIN}, {srd(SWS)}, s{S_OP} offen offset:{(rt*2+u_)*1024} sc1", 'rs'))
            hooks.setdefault(92, []).append((f"buffer_store_dwordx4 {vq(TMP+8)}, v{V_LIN}, {srd(SWS)}, s{T1} offen sc1", 'rs'))
            hooks.setdefault(2, []).extend([f"v_mov_b32 v{TMP+8+j}, v{LO+j}" for j in range(2)])
            hooks.setdefault(3, []).extend([f"v_mov_b32 v{TMP+8+j}, v{LO+j}" for j in range(2, 4)])
        self.gemm_pass(3, ACC_K, ob, hooks=hooks, last=True, sync=False, pace=lambda n: 1 if n % 2 == 0 and n > 9 else 0)
        self.stamp()
        for rt in range(2):
            c = self.cvt20(acc(ACC_K, 0, rt), TMP + 10 * rt)
            for j in range(5):
                p(c[2*j][1]); p(c[2*j+1][1])
                p(f"ds_write_b64 v{V_OW}, {vq(TMP+10*rt+2*j, 2)} offset:{rt*16*OUTS + 8*j}", 'ow')
        for j in range(5): p(f"ds_read_b128 {vq(TMP+24+4*j)}, v{V_ORD+j}", ('or', j))
        for j in range(5):
            p.wait(lg=[('or', j)])
            p(f"buffer_store_dwordx4 {vq(TMP+24+4*j)}, v{V_OG+j}, {srd(SOUT)}, s{S_OUT} offen {o.get('oflag', '')}", 'out')
        if o.get('stamps'):
            p("s_waitcnt vmcnt(0)")
            self.stamp()
            p("s_memrealtime s[100:101]")
            p("s_waitcnt lgkmcnt(0)")
            p.raw(f"""
            s_lshl_b32 s{T0}, s2, 2
            s_add_u32 s{T0}, s{T0}, s{S_W}
            s_lshl_b32 s{T0}, s{T0}, 6
            s_add_u32 s{T0}, s{T0}, {WS_ST}
            v_mov_b32 v{TMP+16}, 0
            v_mov_b32 v{TMP}, s98
            v_mov_b32 v{TMP+1}, s100
            """)
            for k in range(14): p(f"v_mov_b32 v{TMP+2+k}, {'s%d' % (S_ST+k) if k < self.nst else ('s95' if k == 13 else 0)}")
            p("s_mov_b64 exec, 1")
            for k in range(4): p(f"buffer_store_dwordx4 {vq(TMP+4*k)}, v{TMP+16}, {srd(SWS)}, s{T0} offen offset:{16*k}")
        if o.get('amp'):
            p("s_waitcnt vmcnt(0)")
            self.stamp()
            if o['amp'][0] < 0: p("s_mov_b32 s100, s98")
            p.raw(f"""
            s_and_b32 s{T0}, s2, 7
            s_lshr_b32 s{T0}, {o['amp'][2]}, s{T0}
            s_bitcmp1_b32 s{T0}, 0
            s_cbranch_scc0 L_ampx{self.sfx}
            s_load_dwordx2 s[62:63], s[0:1], 64
            v_mov_b32 v2, 0
            s_waitcnt lgkmcnt(0)
            global_load_dword v3, v2, s[62:63] sc1
            s_waitcnt vmcnt(0)
            v_readfirstlane_b32 s{T2}, v3
            s_not_b32 s{T2}, s{T2}
            s_sub_u32 s{T0}, s100, s{T2}
            s_add_u32 s{T0}, s{T0}, 300
            s_mul_i32 s{T0}, s{T0}, {o['amp'][1]}
            s_min_u32 s{T0}, s{T0}, 100000
            L_amp{self.sfx}:
            s_sleep 2
            s_memrealtime s[64:65]
            s_waitcnt lgkmcnt(0)
            s_sub_u32 s{T1}, s64, s{T2}
            s_cmp_lt_u32 s{T1}, s{T0}
            s_cbranch_scc1 L_amp{self.sfx}
            L_ampx{self.sfx}:
            """)
        p("s_endpgm")
        assert not self.dq
        return p.finalize() + "".join(self.ool)

def sizes(lines):
    import subprocess, re
    src = '.amdgcn_target "amdgcn-amd-amdhsa--gfx950"\n.text\n' + "\n".join(lines) + "\n"
    r = subprocess.run(["llvm-mc", "-triple=amdgcn-amd-amdhsa", "-mcpu=gfx950", "-show-encoding"], input=src, capture_output=True, text=True)
    assert r.returncode == 0, r.stderr[:2000]
    return [len(m.split(',')) for m in re.findall(r'encoding: \[([^\]]*)\]', r.stdout)]
def add_hops(text, sfx):
    lines = text.split("\n")
    i0 = lines.index(f"L_main{sfx}:"); i1 = next(i for i in range(i0, len(lines)) if lines[i].strip() == "s_endpgm")
    body = lines[i0 + 1:i1]
    isi = lambda l: l.startswith("    ")
    sz = iter(sizes([l for l in body if isi(l)]))
    out = []; addr = 0; page = 0; prev = "v_mfma"
    for l in body:
        if isi(l):
            off = addr - page * 4096
            if off >= 0 and (prev.startswith("v_mfma") or off >= 40) and not prev.startswith("s_mov_b64 exec") :
                out.append(("hop", page)); addr += 4; page += 1
            addr += next(sz); prev = l.strip()
        out.append(l)
    assert page >= 4
    res = []
    for x in out:
        if isinstance(x, tuple):
            k = x[1]
            res += [f"L_hop{k}{sfx}:", f"    s_cbranch_execz " + (f"L_hop{k+4}{sfx}" if k + 4 < page else f"L_hopret{sfx}")]
        else: res.append(x)
    print(sfx, "main bytes", addr, file=sys.stderr)
    return "\n".join(lines[:i0 + 1] + res + lines[i1:])

def build(opt):
    ref = open(f"cdna_kernels/{NAME}.s.ref").read().split("\n")
    head = [l for l in ref if l.startswith(";") and "@launch" not in l]
    s = "\n".join(head) + "\n; @launch grid=(256,1,1) block=(256,1,1) lds=163840\n"
    s += f""".amdgcn_target "amdgcn-amd-amdhsa--gfx950"
.text
.globl {NAME}_kernel
.p2align 12
.p2align 8
.type {NAME}_kernel,@function
{NAME}_kernel:
    s_cmp_ge_u32 s2, 256
    s_cbranch_scc1 L_exit
"""
    ga = Gen(True, opt); ta = ga.body(); gb = Gen(False, opt); tb = gb.body()
    ca, ra = ta.split(".split\n"); cb, rb = tb.split(".split\n")
    assert ca == cb
    if opt.get('hops', 1): ra = add_hops(ra, 'A'); rb = add_hops(rb, 'B')
    s += ca + ra + "L_exit:\n    s_endpgm\n.p2align 12\n" + rb
    s += ".fill 2048, 4, 0xbf810000\n"
    s += f""".section .rodata,"a"
.p2align 6
.amdhsa_kernel {NAME}_kernel
  .amdhsa_next_free_vgpr 512
  .amdhsa_next_free_sgpr 102
  .amdhsa_accum_offset 256
  .amdhsa_group_segment_fixed_size 0
  .amdhsa_kernarg_size 80
  .amdhsa_user_sgpr_count 2
  .amdhsa_user_sgpr_kernarg_segment_ptr 1
  .amdhsa_system_sgpr_workgroup_id_x 1
.end_amdhsa_kernel
"""
    print("nops", ga.p.nops, gb.p.nops, "instrs", len(ga.p.ins), len(gb.p.ins), "autow", getattr(ga.p, 'autow', 0), file=sys.stderr)
    return s

if __name__ == "__main__":
    import json
    opt = json.loads(sys.argv[2]) if len(sys.argv) > 2 else {}
    open(sys.argv[1], "w").write(build(opt))
```

```python
import sys
from collections import deque
from emit import Prog
NAME = "concat_heads__linear_kernel_hedgehog__linear_attn_block__prompt"

S_RB, S_HG, S_W = 4, 5, 7
SX, SW, SWO, SWS, SOUT, SPHI = 8, 12, 16, 20, 24, 28
S_NONCE = 32
S_WROW = 33
S_XBASE, S_XU = 38, 39
S_LW, S_LR = 40, 41
T0, T1, T2, T3 = 42, 43, 44, 45
S_WOROW = 46
S_HEAD = 51
S_SPIN = 52
S_FAST = 53
S_L2E, S_NL2E = 54, 55
S_OB = 56
S_WS, S_XS = 57, 58
S_FLAG = 59
S_OP = 60
S_P1ST, S_P1LD, S_P2ST, S_P2LD, S_OWN, S_OUT, S_XCCV, S_PERM = 68, 69, 70, 71, 72, 73, 74, 75
S_KA = 76
S_ST = 76
import os
if os.environ.get('PRO'): S_ST = 88
def srd(b): return f"s[{b}:{b+3}]"
V_LANE = 1
V_WO = 2; V_OF = 7; V_OL = 12; V_XO = 17; V_XR = 21; V_WT = 23; V_LIN = 25
V_PW, V_VW, V_KB, V_KA0, V_KA1, V_FR = 26, 27, 28, 29, 30, 31
ACC_K, ACC_V = 32, 72
TMP = 112
PV = 228
V_P1ST, V_P1LD, V_P2ST, V_GAL, V_LA, V_FR2, V_KEEP, V_ONE, V_OW, V_ORD, V_OG, V_F8, V_DUMP, V_ZA = PV, PV+1, PV+2, PV+3, PV+4, PV+8, PV+9, PV+10, PV+11, PV+12, PV+17, PV+22, PV+23, PV+24
V_L128, V_NONCE, V_FOWN = PV + 25, PV + 26, PV + 27
RING = 0; SLOT = 20480; RBASE = 102400; RW = 15360
OUTL = RBASE + 16384; OUTS = 176
WS_FLAG, WS_XCC, WS_P2, WS_P1, WS_O, WS_ST = 4096, 32768, 65536, 1 << 20, 8 << 20, 16 << 20
WS_SIZE = 32 << 20
D = 6
A_RING = 220
A_PHI = 160
SPIN_MAX = 20000
EPS = "0x358637bd"

def vq(b, n=4): return f"v[{b}:{b+n-1}]"
def aq(b, n=4): return f"a[{b}:{b+n-1}]"
def acc(base, t, rt): return base + (rt * 5 + t) * 4
MF = "v_mfma_f32_16x16x32_bf16"

DEF = {'A': dict(h1=(45, 84)), 'B': dict(h1=(45, 84), vpace=3, qpace=4, qev=24, vsync=1)}
class Gen:
    def __init__(self, isA, opt):
        self.A = isA
        sf = 'A' if isA else 'B'
        opt = dict(DEF[sf], **opt)
        opt.update({k[:-1]: v for k, v in opt.items() if k.endswith(sf)})
        self.o = opt
        self.p = Prog(); self.sfx = 'A' if isA else 'B'
        self.F = 40 if isA else 20
        self.nst = 0
        self.dq = deque()
        self.pos = 0
        self.ool = []
    def stamp(self, name=None):
        p = self.p
        fine = self.o.get('fine')
        if fine:
            if name is None: self.cs = getattr(self, 'cs', 0) + 1; name = 's%d' % (self.cs - 1)
            if name not in fine: return
        elif name is not None: return
        if self.o.get('amp'):
            if self.nst == self.o['amp'][0]:
                p("s_memrealtime s[100:101]"); p("s_waitcnt lgkmcnt(0)")
            self.nst += 1
            return
        if not self.o.get('stamps'): return
        p(f"s_memrealtime s[100:101]" if self.o.get('rt') else f"s_memtime s[100:101]")
        p("s_waitcnt lgkmcnt(0)")
        p(f"s_sub_u32 s{S_ST+self.nst}, s100, {'s98' if self.o.get('rt') else 's96'}")
        self.nst += 1
    def put(self, L):
        for x in L:
            if isinstance(x, tuple): self.p(x[0], x[1])
            elif isinstance(x, list): self.put(x)
            elif callable(x): x()
            else: self.p(x)
    def dma_w(self, G):
        g = G % 5
        pre = [f"s_add_u32 m0, s{S_LW}, {RING + g*SLOT}"]
        if G < 15:
            col = {0: 1280, 1: 2560, 2: 0}[G // 5]
            pre.append(f"s_add_u32 s{S_WS}, s{S_WROW+g}, {col}"); so = f"s{S_WS}"; sd = SW; vo = V_WO
        else:
            so = f"s{S_WOROW+g}"; sd = SWO; vo = V_OF if g < 4 else V_OL
        items = []
        if G // 5 in self.o.get('fake', []):
            base = (G % 5) * 4 * 5120 + (G // 5 if G < 15 else 0) * 819200
            pre = [pre[0], f"s_add_u32 s{S_WS}, s94, {base}"]
            for j in range(5):
                off = f"offset:{j*1024} " if 0 < j < 4 else ""
                L = (pre if j == 0 else []) + [(f"buffer_load_dwordx4 v{V_LIN}, {srd(sd)}, s{S_WS} offen {off}lds", ('W', G))]
                if j == 3: L += [f"s_add_u32 m0, s{S_LW}, {RING + g*SLOT + 4096}", f"s_add_u32 s{S_WS}, s{S_WS}, 4096"]
                items.append(L)
            return items
        for j in range(5):
            off = f"offset:{j*1024} " if 0 < j < 4 else ""
            L = (pre if j == 0 else []) + [(f"buffer_load_dwordx4 v{vo+j}, {srd(sd)}, {so} offen {off}lds", ('W', G))]
            if j == 3: L.append(f"s_add_u32 m0, s{S_LW}, {RING + g*SLOT + 4096}")
            items.append(L)
        return items
    def dma_x(self, pu):
        items = []
        for j in range(4):
            off = f"offset:{j*1024} " if j else ""
            L = []
            if j == 0: L += [f"s_add_u32 m0, s{S_LR}, {(pu % 3) * 4096}", f"s_add_u32 s{S_XS}, s{S_XU}, s{S_XBASE}"]
            L.append((f"buffer_load_dwordx4 v{V_XO+j}, {srd(SX)}, s{S_XS} offen {off}lds", ('X', pu)))
            if j == 0: L += [f"s_add_u32 s{S_XU}, s{S_XU}, 128"]
            if j == 1: L += [f"s_cmp_eq_u32 s{S_XU}, 1280", f"s_cselect_b32 s{S_XU}, 0, s{S_XU}"]
            items.append(L)
        return items
    def q(self, earliest, items):
        for it in items: self.dq.append((earliest, it))
    def release(self, k):
        self.dq = deque((0 if e == 10**6 + k else e, it) for e, it in self.dq)
    def tick(self):
        if self.dq and self.dq[0][0] <= self.pos:
            self.put(self.dq.popleft()[1]); return True
        return False
    def flush_dma(self, tag):
        def has():
            return any(isinstance(x, tuple) and x[1] == tag for _, it in self.dq for x in it)
        while has():
            assert self.dq[0][0] <= self.pos, (tag, self.pos, self.dq[0])
            self.put(self.dq.popleft()[1])
    def run(self, L, every=30):
        c = 0
        for cost, x in L:
            self.put([x]); c += cost
            if c >= every: c = 0; self.tick()
    def wread(self, N, hf):
        G = N // 20; ks = (N % 20) // 5; t = N % 5
        off = RING + (G % 5) * SLOT + ks * 5120 + hf * 2560 + 8 * t
        hi = off >= 51200
        s = A_RING + (N % D) * 4 + 2 * hf
        if G // 5 in self.o.get('fake', []):
            if hf == 0:
                off = RING + (G % 5) * SLOT + ks * 5120 + 1024 * t
                hi = off >= 51200
                self.p(f"ds_read_b128 a[{s}:{s+3}], v{226 + hi} offset:{off - 51200*hi}", ('F', N))
            return
        self.p(f"ds_read_b64_tr_b16 a[{s}:{s+1}], v{V_WT + hi} offset:{off - 51200*hi}", ('F', N))
    def group_sync(self, G):
        self.flush_dma(('W', G))
        self.p.wait(vm=[('W', G)])
        self.p("s_barrier")
    def xread(self, pu, k):
        ksub, rt = divmod(k, 2)
        if k == 0:
            self.flush_dma(('X', pu)); self.p.wait(vm=[('X', pu)])
        a = ((2 * pu + ksub) * 2 + rt) * 4
        self.p(f"ds_read_b128 {aq(a)}, v{V_XR+ksub} offset:{(pu % 3)*4096 + rt*2048}", ('XR', pu))
    def prime(self, ps, sync=True):
        if sync: self.group_sync(ps * 5)
        for n in range(D - 1):
            self.wread(ps * 100 + n, 0); self.wread(ps * 100 + n, 1)
    def gemm_pass(self, ps, accb, bop, fill=None, hooks=None, last=False, pace=None, sync=True, frange=(0, 100), hooks0=None):
        p = self.p
        fill = deque(fill or []); hooks = hooks or {}; hooks0 = hooks0 or {}
        N0 = ps * 100
        p.wait(lg=[('F', N0), ('XR', 0)])
        pace = pace or (lambda n: 0)
        for n in range(100):
            self.pos = N0 + n
            ks, t = divmod(n, 5)
            s = A_RING + ((N0 + n) % D) * 4
            M = n + D - 1
            look = M < 100 or not last
            a = acc(accb, t, 0)
            p(f"{MF} {vq(a)}, {aq(s)}, {bop(ks, 0)}, {'0' if ks == 0 else vq(a)}")
            k0 = len(p.ins)
            if n < 99:
                tg = [('F', N0 + n + 1)]
                if ps == 0 and (n + 1) % 10 == 0: tg.append(('XR', (n + 1) // 10))
                p.wait(lg=tg)
            if n in hooks0: self.put(hooks0[n])
            if look:
                if M % 20 == 0 and sync: self.group_sync((N0 + M) // 20)
                if len(p.ins) == k0: p("s_nop 0")
                self.wread(N0 + M, 0); self.wread(N0 + M, 1)
                if ps in self.o.get('fake', []) and fill and n >= frange[0] and not isinstance(fill[0][1], tuple): self.gap(fill, 1 if fill[0][0] < 2 or n % 2 else 2)
            elif fill and n >= frange[0]: self.gap(fill, 2)
            a = acc(accb, t, 1)
            p(f"{MF} {vq(a)}, {aq(s)}, {bop(ks, 1)}, {'0' if ks == 0 else vq(a)}")
            self.pos = N0 + n + 1
            self.stamp('n%d' % (N0 + n))
            did = 0
            for _ in range(pace(n)): did += self.tick()
            if n in hooks: self.put(hooks[n])
            if fill and n >= frange[0]:
                left = sum(c for c, _ in fill)
                gaps = sum(1 for k in range(n, frange[1]) if not pace(k)) + (min(D - 1, 99 - n) if last and frange[1] == 100 else 0)
                bud = 0 if did else 2
                if left > (3 if ps in self.o.get('fake', []) else 2) * gaps: bud += 2
                self.gap(fill, bud)
        while fill: self.put([fill.popleft()[1]])
        self.pos = N0 + 100
    def gap(self, fill, bud):
        first = True
        while fill:
            c, x = fill[0]
            solo = isinstance(x, tuple)
            if c > bud or (solo and not first): break
            fill.popleft(); self.put([x]); bud -= c
            if solo: break
            if c: first = False
    def cvt20(self, src, dst):
        return [(1, f"v_cvt_pk_bf16_f32 v{dst+i}, v{src+2*i}, v{src+2*i+1}") for i in range(10)]
    def phiA_parts(self, x, e, m, name, isq):
        P = {}
        kb = e + 28
        P['cvt'] = self.cvt20(x, kb) + [(1, f"v_mov_b32 v{kb+10}, 0"), (1, f"v_mov_b32 v{kb+11}, 0")]
        P['mf'] = [(2, f"{MF} {vq(x+4*t)}, {aq(A_PHI + (t*3+u)*4)}, {vq(kb+4*u)}, {'0' if u == 0 else vq(x+4*t)}") for t in range(5) for u in range(3)]
        P['exp'] = [(2, f"v_exp_f32 v{e+i}, v{x+i}") for i in range(20)] + [(2, f"v_exp_f32 v{e+20+i}, -v{x+i}") for i in range(20)]
        def sums():
            L = [f"v_pk_add_f32 v[{m+2*h}:{m+2*h+1}], v[{e+20*h}:{e+20*h+1}], v[{e+20*h+2}:{e+20*h+3}]" for h in range(2)]
            L += [f"v_pk_add_f32 v[{m+2*h}:{m+2*h+1}], v[{m+2*h}:{m+2*h+1}], v[{e+20*h+2*i}:{e+20*h+2*i+1}]" for i in range(2, 10) for h in range(2)]
            L += [f"v_add_f32 v{m+2*h}, v{m+2*h}, v{m+2*h+1}" for h in range(2)]
            return L
        nm = name + self.sfx
        L = sums() + [f"v_max_f32 v{m+1}, v{m}, v{m+2}", f"v_cmp_ngt_f32 vcc, 0x5d800000, v{m+1}"]
        if not isq: L.append(f"v_rcp_f32 v{m+4}, v{m}")
        L += [f"v_rcp_f32 v{m+2}, v{m+2}", [f"s_cbranch_vccnz {nm}_slow", f"{nm}_back:"]]
        o = Prog()
        o(f"{nm}_slow:")
        o(f"v_max3_f32 v{m}, v{x}, v{x+1}, v{x+2}"); o(f"v_min3_f32 v{m+1}, v{x}, v{x+1}, v{x+2}")
        for i in range(3, 19, 2):
            o(f"v_max3_f32 v{m}, v{m}, v{x+i}, v{x+i+1}"); o(f"v_min3_f32 v{m+1}, v{m+1}, v{x+i}, v{x+i+1}")
        o(f"v_max_f32 v{m}, v{m}, v{x+19}"); o(f"v_min_f32 v{m+1}, v{m+1}, v{x+19}")
        for i in range(20): o(f"v_sub_f32 v{e+i}, v{x+i}, v{m}"); o(f"v_sub_f32 v{e+20+i}, v{m+1}, v{x+i}")
        for i in range(40): o(f"v_exp_f32 v{e+i}, v{e+i}")
        for y in sums(): o(y)
        if not isq: o(f"v_rcp_f32 v{m+4}, v{m}")
        o(f"v_rcp_f32 v{m+2}, v{m+2}"); o("s_nop 1"); o(f"s_branch {nm}_back")
        self.ool.append(o.finalize())
        if isq: L.append(f"v_mul_f32 v{m+2}, v{m+2}, v{m}")
        else: L += [f"v_pk_mul_f32 v[{e+2*i}:{e+2*i+1}], v[{e+2*i}:{e+2*i+1}], v[{m+4}:{m+5}] op_sel_hi:[1,0]" for i in range(10)]
        L += [f"v_pk_mul_f32 v[{e+20+2*i}:{e+21+2*i}], v[{e+20+2*i}:{e+21+2*i}], v[{m+2}:{m+3}] op_sel_hi:[1,0]" for i in range(10)]
        P['norm'] = [(1, y) for y in L]
        P['out'] = [(1, f"v_cvt_pk_bf16_f32 v{x+i}, v{e+2*i}, v{e+2*i+1}") for i in range(20)]
        return P
    def weave(self, mf, va, per=2):
        va = deque(va); L = []
        for x in mf:
            L.append(x); b = per
            while va and va[0][0] <= b: b -= va[0][0]; L.append(va.popleft())
        return L + list(va)
    def phiB(self, x, e, packed):
        L = []
        if packed: L += [(1, f"v_pk_mul_f32 v[{e+2*i}:{e+2*i+1}], v[{x+2*i}:{x+2*i+1}], s[{S_L2E}:{S_NL2E}] op_sel_hi:[1,0]") for i in range(10)]
        else: L += [(1, f"v_mul_f32 v{e+i}, s{S_L2E}, v{x+i}") for i in range(20)]
        L += [(2, f"v_exp_f32 v{e+i}, v{e+i} clamp") for i in range(20)]
        L += [(1, f"v_max_f32 v{x+i}, {EPS}, v{x+i}") for i in range(20)]
        if packed: L += [(1, f"v_pk_add_f32 v[{e+2*i}:{e+2*i+1}], v[{e+2*i}:{e+2*i+1}], v[{x+2*i}:{x+2*i+1}]") for i in range(10)]
        else: L += [(1, f"v_add_f32 v{e+i}, v{e+i}, v{x+i}") for i in range(20)]
        L += self.cvt20(e, x)
        return L
    def checked(self, name, loads, check, tag):
        nm = name + self.sfx
        iss = [(x, tag) if x.startswith('buffer') else x for x in loads]
        chk = [(0, lambda: self.p.wait(vm=[tag]))] + [(1, x) for x in check] + [(1, [f"s_cbranch_vccnz {nm}_retry", f"{nm}_ok:"])]
        o = Prog()
        o(f"{nm}_retry:"); o(f"s_mov_b32 s{S_SPIN}, 0"); o(f"{nm}_loop:")
        if self.o.get('stamps'): o(f"s_add_u32 s95, s95, {dict(L_xc=1000000, L_h1=10000, L_h2=100, L_h3=1)[name]}")
        for x in loads: o(x)
        o("s_waitcnt vmcnt(0)")
        for x in check: o(x)
        o(f"s_cbranch_vccz {nm}_ok")
        o(f"s_add_u32 s{S_SPIN}, s{S_SPIN}, 1"); o(f"s_cmp_lt_u32 s{S_SPIN}, {SPIN_MAX}"); o(f"s_cbranch_scc1 {nm}_loop")
        o(f"s_branch {nm}_ok")
        self.ool.append(o.finalize())
        return iss, chk
    def body(self):
        p = self.p; A = self.A; F = self.F; br = 0 if A else 1; o = self.o
        t = TMP
        K = S_KA
        kx, kw, kout, kws = K, K + 2, K + 8, K + 10
        kphi, kwo = (K + 4, K + 6) if A else (None, K + 4)
        p.raw(f"""
        s_andn2_b32 s{T0}, 1, s2
        s_lshl_b32 s{T0}, s{T0}, 5
        s_load_dwordx8 s[{K}:{K+7}], s[0:1], s{T0}
        s_load_dwordx2 s[{kout}:{kout+1}], s[0:1], 56
        s_load_dwordx2 s[{kws}:{kws+1}], s[0:1], 72
        """)
        if o.get('stamps'): p("s_memtime s[96:97]"); p("s_mov_b32 s95, 0")
        if o.get('stamps') or o.get('amp'): p("s_memrealtime s[98:99]")
        p.raw(f"""
        s_getpc_b64 s[60:61]
        L_pc:
        s_bfe_u32 s{S_HG}, s2, 0x30003
        v_and_b32 v{V_LANE}, 63, v0
        v_lshrrev_b32 v{t}, 6, v0
        s_bitcmp0_b32 s2, 0
        s_cselect_b32 s{T1}, L_setupB-L_setupA, 0
        s_lshl_b32 s{T0}, s{S_HG}, 12
        v_lshlrev_b32 v{V_L128}, 7, v{V_LANE}
        v_readfirstlane_b32 s{S_W}, v{t}
        s_add_u32 s{T0}, s{T0}, s{T1}
        s_add_u32 s{T0}, s{T0}, L_setupA-L_pc
        s_add_u32 s60, s60, s{T0}
        s_addc_u32 s61, s61, 0
        v_lshl_add_u32 v{t+1}, v{t}, 10, v{V_L128}
        s_mov_b64 exec, 0xff
        """)
        p(f"global_load_dword v{V_DUMP}, v{t+1}, s[60:61]", 'cpf')
        p("s_mov_b64 exec, -1")
        ra, rbm, rdiv = o.get('rot', (10, 10, 4))
        p.raw(f"""
        s_and_b32 s{S_RB}, s2, 6
        s_lshl_b32 s{S_RB}, s{S_RB}, 1
        s_lshr_b32 s{T0}, s2, 6
        s_add_u32 s{S_RB}, s{S_RB}, s{T0}
        s_mul_i32 s{T0}, s{S_HG}, {ra}
        s_mul_i32 s{T1}, s{S_RB}, {rbm}
        s_add_u32 s{T0}, s{T0}, s{T1}
        s_lshr_b32 s{T0}, s{T0}, {rdiv.bit_length()-1}
        s_mul_i32 s{T1}, s{T0}, 6554
        s_lshr_b32 s{T1}, s{T1}, 16
        s_mul_i32 s{T1}, s{T1}, 10
        s_sub_u32 s{T3}, s{T0}, s{T1}
        s_lshl_b32 s{S_XU}, s{T3}, 7
        s_lshl_b32 s{T0}, s{S_RB}, 2
        s_add_u32 s{T0}, s{T0}, s{S_W}
        s_mul_i32 s{S_XBASE}, s{T0}, 40960
        s_mul_i32 s{S_LW}, s{S_W}, 5120
        s_mul_i32 s{S_LR}, s{S_W}, {RW}
        s_add_u32 s{S_LR}, s{S_LR}, {RBASE}
        v_lshrrev_b32 v{t}, 3, v{V_LANE}
        v_mul_u32_u24 v{t}, 1280, v{t}
        v_lshrrev_b32 v{t+1}, 4, v{V_LANE}
        v_xor_b32 v{t+1}, v{t+1}, v{V_LANE}
        v_and_b32 v{t+1}, 7, v{t+1}
        v_lshl_add_u32 v{V_XO}, v{t+1}, 4, v{t}
        v_xor_b32 v{t+2}, 64, v{V_XO}
        v_add_u32 v{V_XO+1}, {9216}, v{t+2}
        v_add_u32 v{V_XO+2}, {2*9216}, v{V_XO}
        v_add_u32 v{V_XO+3}, {3*9216}, v{t+2}
        s_lshr_b32 s{T0}, s{S_W}, 1
        s_add_u32 s{T0}, s{T0}, s{T3}
        s_and_b32 s{T1}, s{S_W}, 1
        s_mul_i32 s{T1}, s{T1}, {32*3840}
        s_mul_i32 s{T2}, s{S_HG}, 160
        s_add_u32 s{T1}, s{T1}, s{T2}
        s_mov_b32 s{SX+2}, 2621440
        s_mov_b32 s{SX+3}, 0x20000
        s_mov_b32 s{SW+2}, 2457600
        s_mov_b32 s{SW+3}, 0x20000
        """)
        def wrow(g):
            p.raw(f"""
            s_cmp_ge_u32 s{T0}, 10
            s_cselect_b32 s{T2}, 10, 0
            s_sub_u32 s{T0}, s{T0}, s{T2}
            s_mul_i32 s{T2}, s{T0}, {64*3840}
            s_add_u32 s{S_WROW+g}, s{T2}, s{T1}
            s_add_u32 s{T0}, s{T0}, 2
            """)
        wrow(0)
        RH = TMP + 10
        def woff(j):
            b = RH + 5 * j
            p.raw(f"""
            v_add_u32 v{t}, {64*j}, v{V_LANE}
            v_mul_u32_u24 v{b+4}, 6554, v{t}
            v_lshrrev_b32 v{b+4}, 16, v{b+4}
            v_mul_u32_u24 v{t+2}, 10, v{b+4}
            v_sub_u32 v{b+3}, v{t}, v{t+2}
            v_bfe_u32 v{b}, v{b+4}, 2, 2
            v_lshrrev_b32 v{b+1}, 4, v{b+4}
            v_and_b32 v{b+2}, 3, v{b+4}
            v_lshl_add_u32 v{t}, v{b}, 1, v{b+1}
            v_lshl_add_u32 v{t}, v{t}, 2, v{b+2}
            v_mul_u32_u24 v{t}, 3840, v{t}
            v_lshl_add_u32 v{V_WO+j}, v{b+3}, 4, v{t}
            """)
            if 0 < j < 4: p(f"v_subrev_u32 v{V_WO+j}, {1024*j}, v{V_WO+j}")
        if o.get('fake'):
            p.raw(f"""
            s_mul_i32 s94, s{S_HG}, 102400
            s_add_u32 s94, s94, s{S_LW}
            v_lshlrev_b32 v{V_LIN}, 4, v{V_LANE}
            v_mov_b32 v226, v{V_LIN}
            v_add_u32 v227, 51200, v{V_LIN}
            """)
        woff(0); woff(1)
        if o.get('pre0'): p("s_memtime s[92:93]")
        p.raw(f"""
        s_waitcnt lgkmcnt(0)
        s_mov_b32 s{SX}, s{kx}
        s_mov_b32 s{SX+1}, s{kx+1}
        s_mov_b32 s{SW}, s{kw}
        s_mov_b32 s{SW+1}, s{kw+1}
        """)
        self.stamp('p0')
        if o.get('pre0'): p(f"s_sub_u32 s{S_ST+self.nst}, s92, s96"); self.nst += 1
        self.put(self.dma_x(0))
        w0 = self.dma_w(0)
        self.put(w0[0:2]); woff(2); self.put(w0[2]); woff(3); self.put(w0[3]); woff(4); self.put(w0[4])
        self.stamp('p1')
        if o.get('prowait'):
            p.wait(vm=['cpf']); self.stamp('p2')
            p.wait(vm=[('X', 0)]); self.stamp('p3')
            p.wait(vm=[('W', 0)]); self.stamp('p4')
        p("s_bitcmp0_b32 s2, 0"); p("s_cbranch_scc1 L_setupB")
        p(".split")
        p(f"L_setup{self.sfx}:")
        p(f"s_load_dword s{S_NONCE}, s[{kws}:{kws+1}], {br*128}")
        for g in range(1, 5): wrow(g)
        self.q(0, self.dma_x(1))
        p.raw(f"""
        s_mov_b32 s{SWO}, s{kwo}
        s_mov_b32 s{SWO+1}, s{kwo+1}
        s_mov_b32 s{SWO+2}, 819200
        s_mov_b32 s{SWO+3}, 0x20000
        s_mov_b32 s{SWS}, s{kws}
        s_mov_b32 s{SWS+1}, s{kws+1}
        s_mov_b32 s{SWS+2}, {WS_SIZE}
        s_mov_b32 s{SWS+3}, 0x20000
        s_mov_b32 s{SOUT}, s{kout}
        s_mov_b32 s{SOUT+1}, s{kout+1}
        s_mov_b32 s{SOUT+2}, 5242880
        s_mov_b32 s{SOUT+3}, 0x20000
        s_lshl_b32 s{S_HEAD}, s{S_HG}, 2
        s_add_u32 s{S_HEAD}, s{S_HEAD}, s{S_W}
        v_lshlrev_b32 v{V_LIN}, 4, v{V_LANE}
        """)
        if A:
            p.raw(f"""
            s_mov_b32 s{SPHI}, s{kphi}
            s_mov_b32 s{SPHI+1}, s{kphi+1}
            s_mov_b32 s{SPHI+2}, 25600
            s_mov_b32 s{SPHI+3}, 0x20000
            """)
            self.q(0, [[f"s_mul_i32 s{S_WS}, s{S_HEAD}, 800",
                        (f"buffer_load_dwordx4 {vq(TMP+96)}, v{V_LIN}, {srd(SPHI)}, s{S_WS} offen", 'wphi')]])
        self.q(0, self.dma_w(1)); self.q(0, self.dma_x(2))
        G_, I_, R_, C_ = t, t + 1, t + 2, t + 3
        S = []
        def raw(txt):
            for l in txt.split('\n'):
                if l.strip(): S.append((1, l.strip()))
        raw(f"""
        v_lshrrev_b32 v{G_}, 4, v{V_LANE}
        v_and_b32 v{I_}, 15, v{V_LANE}
        v_bfe_u32 v{R_}, v{V_LANE}, 2, 2
        v_and_b32 v{C_}, 3, v{V_LANE}
        v_lshrrev_b32 v{t+4}, 1, v{I_}
        v_xor_b32 v{t+4}, v{t+4}, v{G_}
        v_lshlrev_b32 v{t+5}, 7, v{I_}
        v_lshl_add_u32 v{t+4}, v{t+4}, 4, v{t+5}
        v_add_u32 v{V_XR}, s{S_LR}, v{t+4}
        v_xor_b32 v{t+4}, 64, v{t+4}
        v_add_u32 v{V_XR+1}, s{S_LR}, v{t+4}
        v_lshrrev_b32 v{t+4}, 2, v{V_LANE}
        v_mul_u32_u24 v{t+5}, 160, v{t+4}
        v_mul_u32_u24 v{t+6}, 40, v{C_}
        v_add_u32 v{V_WT}, v{t+5}, v{t+6}
        v_add_u32 v{V_WT+1}, 51200, v{V_WT}
        v_mul_u32_u24 v{t+5}, 120, v{I_}
        v_mul_u32_u24 v{t+6}, 3840, v{G_}
        v_add3_u32 v{V_PW}, v{t+5}, v{t+6}, s{S_LR}
        v_mul_u32_u24 v{t+6}, 40, v{G_}
        v_mul_u32_u24 v{t+7}, {OUTS}, v{I_}
        s_mul_i32 s{T2}, s{S_W}, {32*OUTS}
        s_add_u32 s{T2}, s{T2}, {OUTL}
        v_add3_u32 v{V_OW}, v{t+7}, v{t+6}, s{T2}
        v_and_b32 v{t+5}, 7, v{t+4}
        v_lshrrev_b32 v{t+6}, 5, v{V_LANE}
        v_lshlrev_b32 v{t+6}, 1, v{t+6}
        v_lshl_add_u32 v{t+5}, v{t+5}, 2, v{t+6}
        v_mul_u32_u24 v{t+5}, 120, v{t+5}
        s_mul_i32 s{T0}, s{S_W}, 3840
        s_add_u32 s{T0}, s{T0}, {RBASE}
        v_add_u32 v{V_KA1}, s{T0}, v{t+5}
        v_lshl_add_u32 v{V_KB}, v{C_}, 3, v{V_KA1}
        s_mov_b32 s{S_L2E}, 0x3fb8aa3b
        s_mov_b32 s{S_NL2E}, 0xbfb8aa3b
        s_mov_b32 s{S_PERM}, 0x07060302
        s_and_b32 s{T3}, s{S_HG}, 1
        """)
        for j in range(5):
            b = RH + 5 * j
            raw(f"""
            v_mul_u32_u24 v{t+4}, 20, v{b}
            v_add_u32 v{t+4}, v{t+4}, v{b+2}
            v_lshl_add_u32 v{t+5}, v{b+1}, 2, v{t+4}
            v_xor_b32 v{t+6}, s{T3}, v{b+1}
            v_mul_u32_u24 v{t+6}, 80, v{t+6}
            v_add3_u32 v{t+6}, v{t+6}, v{t+4}, 16
            v_mul_u32_u24 v{t+5}, 1280, v{t+5}
            v_mul_u32_u24 v{t+6}, 1280, v{t+6}
            v_lshl_add_u32 v{V_OF+j}, v{b+3}, 4, v{t+5}
            v_lshl_add_u32 v{V_OL+j}, v{b+3}, 4, v{t+6}
            v_mul_u32_u24 v{t+5}, {OUTS}, v{b+4}
            v_lshl_add_u32 v{t+5}, v{b+3}, 4, v{t+5}
            v_add_u32 v{V_ORD+j}, s{T2}, v{t+5}
            v_mul_u32_u24 v{t+5}, 2560, v{b+4}
            v_lshl_add_u32 v{V_OG+j}, v{b+3}, 4, v{t+5}
            """)
            if 0 < j < 4:
                raw(f"v_subrev_u32 v{V_OF+j}, {1024*j}, v{V_OF+j}\nv_subrev_u32 v{V_OL+j}, {1024*j}, v{V_OL+j}")
        raw(f"""
        s_lshr_b32 s{T0}, s{S_W}, 1
        s_xor_b32 s{T0}, s{T0}, s{T3}
        s_mul_i32 s{T0}, s{T0}, 80
        s_and_b32 s{T1}, s{S_W}, 1
        s_lshl_b32 s{T1}, s{T1}, 3
        s_add_u32 s{T0}, s{T0}, s{T1}
        s_mul_i32 s{T0}, s{T0}, 1280
        s_mul_i32 s{T2}, s{S_HG}, 160
        s_add_u32 s{T0}, s{T0}, s{T2}
        s_lshr_b32 s{S_SPIN}, s{S_HG}, 1
        s_add_u32 s{T1}, s{S_SPIN}, s{S_W}
        s_and_b32 s{T1}, s{T1}, 3
        s_mul_i32 s{T1}, s{T1}, {160*1280}
        s_add_u32 s{S_WOROW+4}, s{T1}, s{T2}
        s_lshl_b32 s{S_OUT}, s{S_XBASE}, 1
        s_add_u32 s{S_OUT}, s{S_OUT}, s{T2}
        s_add_u32 s{S_OUT}, s{S_OUT}, {br*1280}
        s_add_u32 s{S_OB}, s{S_XBASE}, {WS_O + br*64*40960}
        """)
        for g in range(4):
            raw(f"""
            s_add_u32 s{T1}, s{S_SPIN}, {g}
            s_and_b32 s{T1}, s{T1}, 3
            s_mul_i32 s{T2}, s{T1}, {160*1280}
            s_add_u32 s{S_WOROW+g}, s{T2}, s{T0}
            s_lshl_b32 s{T1}, s{T1}, 1
            s_add_u32 s{T1}, s{T1}, s{T3}
            s_mul_i32 s{T2}, s{T1}, 5120
            s_add_u32 s{S_OP+2*g}, s{T2}, s{S_OB}
            s_xor_b32 s{T1}, s{T1}, 1
            s_mul_i32 s{T2}, s{T1}, 5120
            s_add_u32 s{S_OP+2*g+1}, s{T2}, s{S_OB}
            """)
        SH = 8 if A else 7
        raw(f"""
        s_lshl_b32 s{T0}, s{S_RB}, 2
        s_add_u32 s{T0}, s{T0}, s{S_W}
        s_lshl_b32 s{S_FLAG}, s{T0}, 7
        s_add_u32 s{S_FLAG}, s{S_FLAG}, {WS_FLAG + br*64*128}
        s_lshl_b32 s{T0}, s{S_HEAD}, 16
        s_add_u32 s{T0}, s{T0}, {WS_P1 + br*32*65536}
        s_lshl_b32 s{T1}, s{S_RB}, 12
        s_add_u32 s{S_P1ST}, s{T0}, s{T1}
        s_min_u32 s{T1}, s{S_RB}, 14
        s_lshl_b32 s{T1}, s{T1}, {SH}
        s_add_u32 s{S_P1LD}, s{T0}, s{T1}
        s_lshl_b32 s{T0}, s{S_HEAD}, 12
        s_add_u32 s{S_P2LD}, s{T0}, {WS_P2 + br*32*4096}
        s_add_u32 s{S_P2ST}, s{S_P2LD}, s{T1}
        v_mul_u32_u24 v{t+4}, {F}, v{G_}
        v_add_lshl_u32 v{V_P1ST}, v{t+4}, v{I_}, 4
        v_cmp_gt_u32 vcc, 4, v{I_}
        v_cndmask_b32 v{V_KEEP}, 0, -1, vcc
        v_mov_b32 v{t+4}, 0x3f803f80
        v_cmp_eq_u32 vcc, 4, v{I_}
        v_cndmask_b32 v{V_ONE}, 0, v{t+4}, vcc
        v_and_b32 v{t+4}, 7, v{V_LANE}
        v_lshlrev_b32 v{V_F8}, 2, v{t+4}
        s_lshl_b32 s{T0}, s{S_HG}, 2
        v_mov_b32 v{V_FOWN}, s{T0}
        v_lshlrev_b32 v{V_ZA}, 3, v0
        v_add_u32 v{V_ZA}, {RBASE+7680}, v{V_ZA}
        """)
        if A:
            raw(f"""
            v_lshlrev_b32 v{t+5}, 12, v{G_}
            v_lshl_add_u32 v{V_P1LD}, v{I_}, 4, v{t+5}
            v_lshlrev_b32 v{V_P2ST}, 2, v{V_LANE}
            """)
        else:
            raw(f"""
            v_lshrrev_b32 v{t+5}, 3, v{V_LANE}
            v_lshlrev_b32 v{t+5}, 12, v{t+5}
            v_lshl_add_u32 v{V_P1LD}, v{t+4}, 4, v{t+5}
            v_lshl_add_u32 v{V_P2ST}, v{G_}, 5, v{V_F8}
            """)
        RS = 80 if A else 48
        HS = 24 * RS
        NQ = 240 if A else 120
        NI = 4 if A else 2
        raw(f"s_mul_i32 s{T0}, s{S_W}, {HS}\ns_add_u32 s{T0}, s{T0}, {RBASE}")
        u = t + 4
        for ii in range(NI):
            raw(f"v_add_u32 v{u}, {64*ii}, v{V_LANE}")
            if ii == NI - 1:
                raw(f"""v_subrev_u32 v{u+1}, 64, v{u}
                v_cmp_gt_u32 vcc, {NQ}, v{u}
                v_cndmask_b32 v{u}, v{u+1}, v{u}, vcc
                v_lshlrev_b32 v{V_GAL}, 4, v{u}""")
            if A:
                raw(f"""
                v_lshrrev_b32 v{u+1}, 4, v{u}
                v_and_b32 v{u+2}, 3, v{u}
                v_lshl_add_u32 v{u+1}, v{u+1}, 2, v{u+2}
                v_bfe_u32 v{u+2}, v{u}, 2, 2
                v_mul_u32_u24 v{u+3}, 6554, v{u+1}
                v_lshrrev_b32 v{u+3}, 16, v{u+3}
                v_mul_u32_u24 v{u+4}, 10, v{u+3}
                """)
            else:
                raw(f"""
                v_lshrrev_b32 v{u+1}, 3, v{u}
                v_and_b32 v{u+2}, 1, v{u}
                v_lshl_add_u32 v{u+1}, v{u+1}, 1, v{u+2}
                v_bfe_u32 v{u+2}, v{u}, 1, 2
                v_mul_u32_u24 v{u+3}, 13108, v{u+1}
                v_lshrrev_b32 v{u+3}, 16, v{u+3}
                v_mul_u32_u24 v{u+4}, 5, v{u+3}
                """)
            raw(f"""
            v_sub_u32 v{u+1}, v{u+1}, v{u+4}
            v_lshl_add_u32 v{u+3}, v{u+3}, 2, v{u+2}
            v_mul_u32_u24 v{u+3}, {RS}, v{u+3}
            v_lshl_add_u32 v{u+3}, v{u+1}, 3, v{u+3}
            v_add_u32 v{V_LA+ii}, s{T0}, v{u+3}
            """)
        raw(f"""
        v_cmp_eq_u32 vcc, v{G_}, v{R_}
        v_mul_u32_u24 v{u}, {HS}, v{G_}
        v_mul_u32_u24 v{u+1}, {RS}, v{C_}
        v_add_u32 v{u}, v{u}, v{u+1}
        v_add_u32 v{u}, {RBASE}, v{u}
        v_mov_b32 v{u+1}, {RBASE+7680}
        v_cndmask_b32 v{V_FR2}, v{u+1}, v{u}, vcc
        """)
        if A:
            raw(f"""
            v_mov_b32 v{t+8}, 0
            v_mov_b32 v{t+9}, 0
            v_mov_b32 v{t+10}, 0
            v_mov_b32 v{t+11}, 0
            v_add_u32 v{TMP+100}, s{S_LR}, v{V_LIN}
            ds_write_b128 v{TMP+100}, {vq(t+8)} offset:13312
            v_mul_u32_u24 v{t+4}, {RW}, v{G_}
            v_mul_u32_u24 v{t+5}, 40, v{R_}
            v_add_u32 v{t+4}, v{t+4}, v{t+5}
            v_add_u32 v{t+4}, {RBASE+12288}, v{t+4}
            s_add_u32 s{T0}, s{S_LR}, 13312
            v_mov_b32 v{t+5}, s{T0}
            v_cmp_eq_u32 vcc, v{C_}, v{G_}
            v_cndmask_b32 v{V_FR}, v{t+5}, v{t+4}, vcc
            """)
            for tt in range(5):
                a = A_PHI + (tt * 3 + 2) * 4
                raw(f"v_accvgpr_write_b32 a{a+2}, 0\nv_accvgpr_write_b32 a{a+3}, 0")
        self.run(S, every=o.get('proev', 60))
        self.stamp('p5')
        if o.get('hops', 1):
            p("s_mov_b64 exec, 0")
            for w_ in range(3): p(f"s_cmp_eq_u32 s{S_W}, {w_}"); p(f"s_cbranch_scc1 L_hop{w_}{self.sfx}")
            p(f"s_branch L_hop3{self.sfx}")
            p(f"L_hopret{self.sfx}:")
            p("s_mov_b64 exec, -1")
        while self.tick(): pass
        p.raw(f"""
        s_getreg_b32 s{T0}, hwreg(HW_REG_XCC_ID, 0, 4)
        s_waitcnt lgkmcnt(0)
        s_add_u32 s{S_NONCE}, s{S_NONCE}, 0x9e3779b1
        s_lshl_b32 s{T0}, s{T0}, 28
        s_xor_b32 s{S_XCCV}, s{T0}, s{S_NONCE}
        v_mov_b32 v{V_NONCE}, s{S_NONCE}
        v_mov_b32 v{t}, s{S_XCCV}
        s_add_u32 s{T0}, s{S_FLAG}, {WS_XCC - WS_FLAG}
        s_mov_b64 exec, 1
        """)
        p(f"buffer_store_dword v{t}, v{V_FOWN}, {srd(SWS)}, s{T0} offen sc1", 'xcc')
        p("s_mov_b64 exec, -1")
        self.stamp()
        p(f"s_branch L_main{self.sfx}")
        p(".p2align 12")
        p(f"L_main{self.sfx}:")
        xb = lambda ks, rt: aq((ks * 2 + rt) * 4)
        for pu in range(0, 7):
            if (pu + 3) % 2 == 0: self.q(0, self.dma_w((pu + 3) // 2))
            self.q(10 * pu, self.dma_x(pu + 3))
        for G in range(5, 10): self.q(10**6 + 1 if G % 5 >= 3 else 20 * (G - 3) - 4, self.dma_w(G))
        for G in range(10, 20): self.q(10**6 + G, self.dma_w(G))
        hooks = {}
        for pu in range(1, 10):
            hooks[10 * pu - 5] = [lambda pu=pu: self.xread(pu, 0), lambda pu=pu: self.xread(pu, 1)]
            hooks[10 * pu - 4] = [lambda pu=pu: self.xread(pu, 2), lambda pu=pu: self.xread(pu, 3)]
        if A:
            rd = [(tt, u_, hf) for tt in range(5) for u_ in range(3) for hf in range(2 if u_ < 2 else 1)]
            w = TMP + 96; u2 = TMP + 102
            sc = [lambda: p.wait(vm=['wphi'])]
            for j in range(4):
                sc += [f"v_lshlrev_b32 v{u2}, 16, v{w+j}", f"v_and_b32 v{u2+1}, 0xffff0000, v{w+j}", f"v_mul_f32 v{u2}, s{S_L2E}, v{u2}",
                       f"v_mul_f32 v{u2+1}, s{S_L2E}, v{u2+1}", f"v_cvt_pk_bf16_f32 v{w+j}, v{u2}, v{u2+1}"]
            hooks[8] = sc + [(f"ds_write_b128 v{TMP+100}, {vq(w)} offset:12288", 'phw')]
            hooks[14] = [lambda: p.wait(lg=['phw'])]
            slots = [n for n in range(21, 90) if n % 10 in (0, 1, 2, 3)][:25]
            for k, n in enumerate(slots):
                hooks[n] = [(f"ds_read_b64_tr_b16 a[{A_PHI + (tt*3+u_)*4 + 2*hf}:{A_PHI + (tt*3+u_)*4 + 2*hf + 1}], v{V_FR} offset:{(8*u_+4*hf)*40 + 8*tt}", 'phi')
                            for tt, u_, hf in rd[k:k+1]]
        XV = TMP + 92
        iss, chk = self.checked("L_xc", ["s_mov_b64 exec, 0xff", f"s_add_u32 s{T0}, s{S_FLAG}, {WS_XCC - WS_FLAG}",
                                         f"buffer_load_dword v{XV}, v{V_F8}, {srd(SWS)}, s{T0} offen sc1", "s_mov_b64 exec, -1"],
                                [f"v_xor_b32 v{XV+1}, s{S_NONCE}, v{XV}", f"v_lshlrev_b32 v{XV+1}, 4, v{XV+1}",
                                 "s_mov_b64 exec, 0xff", f"v_cmp_ne_u32 vcc, 0, v{XV+1}", "s_mov_b64 exec, -1"], 'xl')
        hooks[58] = iss
        hooks[88] = [x for _, x in chk] + ["s_mov_b64 exec, 0xff", f"v_cmp_ne_u32 vcc, s{S_XCCV}, v{XV}", "s_mov_b64 exec, -1",
                                                     f"s_mov_b32 s{S_FAST}, vcc_lo"]
        self.group_sync(0)
        for k in range(4): self.xread(0, k)
        self.prime(0, sync=False)
        kp = o.get('kpace', 3)
        self.gemm_pass(0, ACC_K, xb, hooks=hooks, last=True, pace=lambda n: (1 if n % 3 != 2 else 0) if n < 69 else (1 if n % kp == 0 else 0))
        p("s_barrier")
        self.stamp()
        E0, E1, M0_, M1_ = TMP, TMP + 40, TMP + 80, TMP + 86
        x0, x1 = acc(ACC_K, 0, 0), acc(ACC_K, 0, 1)
        self.release(1)
        if o.get('amp'):
            p.raw(f"""
            s_load_dwordx2 s[88:89], s[0:1], 64
            s_not_b32 s{T0}, s98
            v_mov_b32 v{TMP+94}, 0
            v_mov_b32 v{TMP+95}, s{T0}
            s_lshr_b32 s{T0}, s2, 3
            s_or_b32 s{T0}, s{T0}, s{S_W}
            s_cmp_eq_u32 s{T0}, 0
            s_cselect_b32 s{T0}, 0, 64
            v_mov_b32 v{TMP+94}, s{T0}
            s_waitcnt lgkmcnt(0)
            s_cbranch_scc0 L_noat{self.sfx}
            s_mov_b64 exec, 1
            """)
            p.ins.append(__import__('emit').Ins(f"global_atomic_umax v{TMP+94}, v{TMP+95}, s[88:89] sc1"))
            p("s_mov_b64 exec, -1")
            p(f"L_noat{self.sfx}:")
        wr = lambda rt, x, n, o8: [(2, (f"ds_write_b64 v{V_PW}, {vq(x+2*j, 2)} offset:{rt*1920 + o8 + 8*j}", 'pw')) for j in range(n)]
        def mixw(out, w): return [y for j in range(len(w)) for y in out[2*j:2*j+2] + [w[j]]]
        burst = lambda L: [(0, [x for _, x in L])]
        dm = (2, lambda: self.tick())
        if A:
            P0 = self.phiA_parts(x0, E0, M0_, "L_k0", False); P1 = self.phiA_parts(x1, E1, M1_, "L_k1", False)
            pr = [(0, lambda: self.group_sync(5 if o.get('vsync', 0) else 6))] + [(1, lambda n=n, hf=hf: self.wread(100 + n, hf)) for n in range(D - 1) for hf in range(2)]
            self.put([x for _, x in [dm] + P0['cvt'] + self.weave(P0['mf'], [dm] + P1['cvt'] + [dm] + P0['exp'][:4]) + self.weave(P1['mf'], [dm] + P0['exp'][4:12] + [dm] + pr)])
            fill = P0['exp'][12:] + burst(P0['norm']) + mixw(P0['out'], wr(0, x0, 10, 0)) + P1['exp'] + burst(P1['norm']) + mixw(P1['out'], wr(1, x1, 10, 0))
            self.stamp('head')
        else:
            fill = []
            for rt, x, e in ((0, x0, E0), (1, x1, E1)):
                L = self.phiB(x, e, False)
                fill += L[:-10] + mixw(L[-10:], wr(rt, x, 5, 0))
            self.group_sync(5 if o.get('vsync', 0) else 6); self.prime(1, sync=False)
        hooks = {}
        vs = o.get('vsync', 0)
        for g in range(4): hooks.setdefault(20 * g + 18, []).extend(["s_barrier" if vs else (lambda g=g: self.group_sync(7 + g)), lambda g=g: self.release(10 + g)])
        vp = o.get('vpace', 4)
        self.gemm_pass(1, ACC_V, xb, fill=fill, hooks=hooks, last=True, sync=bool(vs), pace=lambda n: 1 if n % vp == 0 else 0)
        self.stamp()
        VB = TMP
        for rt in range(2):
            c = self.cvt20(acc(ACC_V, 0, rt), VB + 10 * rt)
            for j in range(5):
                p(c[2*j][1]); p(c[2*j+1][1])
                p(f"ds_write_b64 v{V_PW}, {vq(VB+10*rt+2*j, 2)} offset:{rt*1920 + 80 + 8*j}", 'vw')
                if j == 4 and rt == 0: self.tick()
        self.tick()
        p.wait(lg='*')
        self.stamp('kv0')
        self.flush_dma(('W', 11)); p.wait(vm=[('W', 11)])
        self.stamp('kv1')
        p("s_barrier")
        self.stamp('kv2')
        self.release(14)
        NT = 3 if A else 2
        FB = ACC_K
        KV = TMP + 64
        rds = deque()
        def rd(reg, av, off, kk, j):
            for hf in range(2): rds.append((f"ds_read_b64_tr_b16 {vq(reg+2*hf, 2)}, v{av} offset:{kk*RW + hf*120 + off}", ('kv', kk, j)))
        for kk in range(4):
            b = FB + kk * 20
            rd(b, V_KB, 80, kk, 'a')
            for nt in range(NT): rd(b + 8 + 4 * nt, V_KB, 32 * nt, kk, nt)
        for kk in range(4): rd(FB + kk * 20 + 4, V_KA1, 112, kk, 'z')
        def more(k):
            while k > 0 and rds and len(p.lgq) < 15: self.put([rds.popleft()]); k -= 1
        p(f"v_mov_b32 v{TMP+1}, 0xff")
        more(15); self.tick()
        seq = [(kk, nt) for kk in range(4) for nt in range(NT)]
        p.wait(lg=[('kv',) + seq[0]])
        for i_, (kk, nt) in enumerate(seq):
            b = FB + kk * 20
            p(f"{MF} {vq(KV + nt*4)}, {vq(b)}, {vq(b+8+4*nt)}, {'0' if kk == 0 else vq(KV + nt*4)}")
            if i_ + 1 < len(seq): p.wait(lg=[('kv',) + seq[i_ + 1]])
            more(3)
            if i_ % 6 == 5: self.tick()
        assert not rds
        lastm = 0x00ff00ff if A else 0x000f000f
        def pub(mt, nt):
            a = KV + (mt * 3 + nt) * 4
            lo = lastm if nt == NT - 1 else 0xffffffff
            hi = lo if mt == 0 else 0
            L = [(1, f"v_bfi_b32 v{a+j}, v{TMP+1}, s{S_NONCE}, v{a+j}") for j in range(4)]
            st = (f"buffer_store_dwordx4 {vq(a)}, v{V_P1ST}, {srd(SWS)}, s{S_P1ST} offen offset:{(4*mt*F + 16*nt)*16} sc1", 'p1')
            if (lo, hi) == (0xffffffff, 0xffffffff): return L + [(2, st)]
            return L + [(2, [f"s_mov_b32 exec_lo, {hex(lo)}", f"s_mov_b32 exec_hi, {hex(hi)}", st, "s_mov_b64 exec, -1"])]
        p.wait(lg='*')
        self.stamp('kv3')
        for kk in range(4):
            for j in range(4): p(f"v_and_or_b32 v{FB+kk*20+4+j}, v{FB+kk*20+4+j}, v{V_KEEP}, v{V_ONE}")
        mf = [(2, f"{MF} {vq(KV + (3+nt)*4)}, {vq(FB+kk*20+4)}, {vq(FB+kk*20+8+4*nt)}, {'0' if kk == 0 else vq(KV + (3+nt)*4)}") for nt in range(NT) for kk in range(4)]
        pr = [(1, lambda n=n, hf=hf: self.wread(200 + n, hf)) for n in range(D - 1) for hf in range(2)]
        self.put([x for _, x in self.weave(mf, [y for nt in range(NT) for y in pub(0, nt)] + pr)])
        qhead = [y for nt in range(NT) for y in pub(1, nt)]
        self.stamp()
        X = TMP + 8; CK = TMP + 2
        def tagcheck(mask):
            return [f"v_xor_b32 v{CK}, s{S_NONCE}, v{X}"] + [f"v_bitop3_b32 v{CK}, v{CK}, v{X+j}, s{S_NONCE} bitop3:0xf6" for j in range(1, 4 * NI)] + \
                   [f"v_and_b32 v{CK}, {mask}, v{CK}", f"v_cmp_ne_u32 vcc, 0, v{CK}"]
        lds_ = []
        for ii in range(NI):
            lds_ += [f"s_add_u32 s{T0}, s{S_P1LD}, {ii * (65536 // NI)}", f"buffer_load_dwordx4 {vq(X+4*ii)}, v{V_P1LD}, {srd(SWS)}, s{T0} offen sc1"]
        iss, chk = self.checked("L_h1", lds_, tagcheck("0xff"), 'h1')
        red = [f"v_add_f32 v{X+j}, v{X+j}, v{X+4*ii+j}" for ii in range(1, NI) for j in range(4)]
        red += [f"v_permlane32_swap_b32 v{X}, v{X+2}", f"v_permlane32_swap_b32 v{X+1}, v{X+3}", f"v_add_f32 v{X}, v{X}, v{X+2}", f"v_add_f32 v{X+1}, v{X+1}, v{X+3}",
                f"v_mov_b32 v{CK}, 0xffff", f"v_permlane16_swap_b32 v{X}, v{X+1}", f"v_add_f32 v{X}, v{X}, v{X+1}"]
        if not A: red.append(f"v_add_f32_dpp v{X}, v{X}, v{X} row_ror:8 row_mask:0xf bank_mask:0xf")
        red += [f"v_cvt_pk_bf16_f32 v{X}, v{X}, v{X}", f"v_bfi_b32 v{X}, v{CK}, s{S_NONCE}, v{X}"]
        st = (f"buffer_store_dword v{X}, v{V_P2ST}, {srd(SWS)}, s{S_P2ST} offen sc1", 'p2')
        red.append([st] if A else ["s_mov_b32 exec_lo, 0x00ff00ff", "s_mov_b32 exec_hi, 0x00ff00ff", st, "s_mov_b64 exec, -1"])
        n1, n2 = o.get('h1', (62, 84))
        hooks = {n1 + k: iss[2*k:2*k+2] for k in range(NI)}
        qh = deque(qhead)
        for n in range(12): hooks[n] = [lambda: self.gap(qh, 2)]
        for g in range(4): hooks.setdefault(20 * g + 18, []).extend([lambda g=g: self.group_sync(min(12 + g, 14)), lambda g=g: self.release(15 + g)])
        self.gemm_pass(2, ACC_K, xb, fill=chk + [(1, x) for x in red], hooks=hooks, last=True, sync=False, frange=(n2, 100),
                       pace=lambda n: 1 if (n >= 9 and n % (3 if n < o.get('qsw', 24) else o.get('qpace', 5)) == 0 and not n1 <= n < n1 + NI) else 0)
        assert not qh
        p("s_barrier")
        self.release(19)
        self.stamp()
        X = TMP + 96; CK = TMP + 92
        lds_ = [f"buffer_load_dwordx4 {vq(X+4*ii)}, v{V_LIN if ii < NI-1 else V_GAL}, {srd(SWS)}, s{S_P2LD} offen offset:{1024*ii if ii < NI-1 else 0} sc1" for ii in range(NI)]
        iss, chk = self.checked("L_h2", lds_, tagcheck("0xffff"), 'h2')
        pre = [(f"buffer_load_dword v{V_DUMP}, v{V_L128}, {srd(SWS)}, s{S_OP} offen sc1", 'pr'), (f"buffer_load_dword v{V_DUMP}, v{V_F8}, {srd(SWS)}, s{S_FLAG} offen sc1", 'pr')]
        pre = ["s_mov_b32 exec_hi, 0xff", pre[0], "s_mov_b64 exec, 1", pre[1], "s_mov_b64 exec, -1"]
        zw = [f"v_mov_b32 v{CK}, 0", f"v_mov_b32 v{CK+1}, 0", f"ds_write_b64 v{V_ZA}, {vq(CK, 2)}"]
        self.put(zw)
        for k_ in range(o.get('dirty', 0)):
            p(f"s_add_u32 s{T0}, s{S_OP}, {(9 << 20) + (k_ // 5) * (6 << 20) + (k_ % 5) * 1024}")
            p(f"buffer_store_dwordx4 v[2:5], v{V_LIN}, {srd(SWS)}, s{T0} offen {o.get('dirtyf', '')}")
        if o.get('prepos', 0) == 1: self.put(pre)
        if not A:
            for tt in range(6): p(f"v_accvgpr_write_b32 a{40+4*(3*tt+2)+2}, 0"); p(f"v_accvgpr_write_b32 a{40+4*(3*tt+2)+3}, 0")
        if A:
            P0 = self.phiA_parts(x0, E0, M0_, "L_q0", True); P1 = self.phiA_parts(x1, E1, M1_, "L_q1", True)
            L = P0['cvt'] + self.weave(P0['mf'], P1['cvt'] + P0['exp'][:6]) + self.weave(P1['mf'], P0['exp'][6:]) + P0['norm'] + P0['out'] + P1['exp'] + P1['norm'] + P1['out']
        else:
            L = []
            for x, e in ((x0, E0), (x1, E1)):
                L += self.phiB(x, e, True) + [(1, f"v_mov_b32 v{x+10}, 0"), (1, f"v_mov_b32 v{x+11}, 0")]
        tot = sum(c for c, _ in L); cut = tot - o.get('h2lead', 180) if A else tot
        c = 0; k = 0
        while k < len(L) and c < cut: c += L[k][0]; k += 1
        self.run(L[:k], every=o.get('qev', 44))
        self.stamp('q0')
        self.flush_dma(('W', 15))
        self.stamp('q1')
        self.put(iss)
        if o.get('prepos', 0) == 0: self.put(pre)
        self.stamp('q2')
        self.run(L[k:], every=o.get('qev', 44))
        self.stamp()
        self.put([x for _, x in chk])
        for ii in range(NI):
            p(f"v_perm_b32 v{X+4*ii}, v{X+4*ii+1}, v{X+4*ii}, s{S_PERM}")
            p(f"v_perm_b32 v{X+4*ii+1}, v{X+4*ii+3}, v{X+4*ii+2}, s{S_PERM}")
            p(f"ds_write_b64 v{V_LA+ii}, {vq(X+4*ii, 2)}", 'kvw')
        p.wait(lg='*')
        p("s_barrier")
        self.stamp()
        OA = ACC_V
        NU = 5 if A else 3
        SP = TMP + 112
        if A: p(f"v_mov_b32 v{SP}, v{M0_}"); p(f"v_mov_b32 v{SP+1}, v{M1_}")
        OB = TMP + 64
        LO = TMP + 80
        fr = [(tt, u_) for tt in (5, 0, 1, 2, 3, 4) for u_ in range(NU)]
        AO = 40
        rds = deque()
        for n, (tt, u_) in enumerate(fr):
            if not A and u_ == 2: rds.append((f"ds_read_b64 {aq(AO+4*n, 2)}, v{V_FR2} offset:{4*tt*RS + 16*u_}", ('of', n)))
            else: rds.append((f"ds_read_b128 {aq(AO+4*n)}, v{V_FR2} offset:{4*tt*RS + 16*u_}", ('of', n)))
        more(12)
        p(f"s_add_u32 s{T1}, s{S_OP}, 4096")
        p(f"s_cmp_eq_u32 s{S_FAST}, 0")
        def ost(txt):
            k = len(self.ool)
            if o.get('noslow'): p(txt, 'o'); return
            if o.get('nofast'): p(txt + " sc1", 'o'); return
            p(f"s_cbranch_scc0 L_os{k}{self.sfx}"); p(txt + " " + (o.get('fastf', '') if 'x4' in txt else ''), 'o'); p(f"L_or{k}{self.sfx}:")
            self.ool.append(f"L_os{k}{self.sfx}:\n    {txt} sc1\n    s_branch L_or{k}{self.sfx}\n")
        epi = deque()
        for rt in range(2):
            dn = OA + (rt * 6 + 5) * 4
            b = OA + rt * 24
            rdy = lambda k: rt * 6 * NU + (k + 1) * NU + 3
            epi.append((rdy(0), 1, f"v_fmac_f32 v{dn}, {EPS}, v{SP+rt}" if A else f"v_add_f32 v{dn}, {EPS}, v{dn}")); epi.append((rdy(0), 2, f"v_rcp_f32 v{dn}, v{dn}"))
            for tt in range(5):
                for r in range(4): epi.append((rdy(tt + 1), 1, f"v_mul_f32 v{b+4*tt+r}, v{b+4*tt+r}, v{dn}"))
                for h in range(2):
                    i = 2 * tt + h
                    d = OB + ((i // 4) * 2 + rt) * 4 + i % 4 if i < 8 else LO + 2 * rt + (i - 8)
                    epi.append((rdy(tt + 1), 1, f"v_cvt_pk_bf16_f32 v{d}, v{b+2*i}, v{b+2*i+1}"))
                if tt in (1, 3):
                    u_ = tt // 2
                    epi.append((0, 2, lambda u_=u_, rt=rt: ost(f"buffer_store_dwordx4 {vq(OB+(u_*2+rt)*4)}, v{V_LIN}, {srd(SWS)}, s{S_OP} offen offset:{(rt*2+u_)*1024}")))
        epi.append((0, 2, lambda: ost(f"buffer_store_dwordx4 {vq(LO)}, v{V_LIN}, {srd(SWS)}, s{T1} offen")))
        pr = deque((300 + n, hf) for n in range(D - 1) for hf in range(2))
        m = 0
        for rt in range(2):
            for n, (tt, u_) in enumerate(fr):
                a = OA + (rt * 6 + tt) * 4
                if m == 0: p.wait(lg=[('of', 0)])
                p(f"{MF} {vq(a)}, {aq(AO+4*n)}, {vq(ACC_K+20*rt+4*u_)}, {'0' if u_ == 0 else vq(a)}")
                m += 1
                if rt == 0 and n + 1 < len(fr): p.wait(lg=[('of', n + 1)])
                bud = 2 if A else 3
                if rds: more(2); bud -= 2
                elif self.dq and m % o.get('opace', 8) == 0: self.tick(); p(f"s_cmp_eq_u32 s{S_FAST}, 0"); bud -= 2
                elif pr and not (epi and epi[0][0] <= m): self.wread(*pr.popleft()); bud -= 1
                while epi and epi[0][0] <= m and epi[0][1] <= bud:
                    _, c, x = epi.popleft(); bud -= c; self.put([x])
        while pr: self.wread(*pr.popleft())
        while epi: self.put([epi.popleft()[2]])
        self.stamp()
        def ob(ks, rt):
            if ks < 2: return vq(OB + (ks * 2 + rt) * 4)
            return aq((ks * 2 + rt) * 4) if ks < 16 else vq(LO + (2 * (ks - 16) + rt) * 4)
        def oload(P):
            if P < 16:
                return [[(f"buffer_load_dwordx4 {aq((P*2+rt)*4)}, v{V_LIN}, {srd(SWS)}, s{S_OP + P//2} offen offset:{(rt*2+P%2)*1024} sc1", ('O', P))] for rt in range(2)]
            return [[f"s_add_u32 s{T0}, s{S_OP + 2*(P-16) + h}, 4096", (f"buffer_load_dwordx4 {vq(LO+(2*(P-16)+h)*4)}, v{V_LIN}, {srd(SWS)}, s{T0} offen sc1", ('O', P))]
                    for h in range(2) if (P, h) != (16, 0)]
        def handshake():
            while self.tick(): pass
            p("s_waitcnt vmcnt(0)")
            p(f"s_cmp_eq_u32 s{S_FAST}, 0")
            p("s_mov_b64 exec, 1")
            ost(f"buffer_store_dword v{V_NONCE}, v{V_FOWN}, {srd(SWS)}, s{S_FLAG} offen")
            p("s_mov_b64 exec, 0xff")
            p("s_barrier")
            iss, chk = self.checked("L_h3", [f"buffer_load_dword v{V_DUMP}, v{V_F8}, {srd(SWS)}, s{S_FLAG} offen sc1"], [f"v_cmp_ne_u32 vcc, s{S_NONCE}, v{V_DUMP}"], 'h3')
            self.put(iss); self.put([x for _, x in chk])
            p("s_mov_b64 exec, -1")
            self.stamp()
            for P in range(2, 20): self.q(0, oload(P))
            for _ in range(o.get('oprime', 8)): self.tick()
        def owait(P):
            self.flush_dma(('O', P))
            p.wait(vm=[('O', P)])
            if P >= 16:
                a = LO + 2 * (P - 16) * 4
                p(f"v_swap_b32 v{a+2}, v{a+4}"); p(f"v_swap_b32 v{a+3}, v{a+5}")
        hooks = {5 * P - 1: [lambda P=P: owait(P)] for P in range(2, 20)}
        hooks[9] = [handshake] + hooks[9]
        hooks[90] = [f"s_or_b32 s{T0}, s{S_RB}, s{S_HEAD}", f"s_cmp_lg_u32 s{T0}, 0", f"s_cselect_b32 s{T0}, {WS_SIZE}, 0", "s_mov_b64 exec, 1",
                     (f"buffer_store_dword v{V_NONCE}, v{V_LIN}, {srd(SWS)}, s{T0} offen offset:{br*128} sc1", 'nn'), "s_mov_b64 exec, -1"]
        rs = o.get('restore', 0)
        if rs:
            for k_, (u_, rt) in enumerate([(0, 0), (1, 0), (0, 1), (1, 1)]):
                hooks.setdefault(rs + 2 * k_, []).append((f"buffer_store_dwordx4 {vq(OB+(u_*2+rt)*4)}, v{V_LIN}, {srd(SWS)}, s{S_OP} offen offset:{(rt*2+u_)*1024} sc1", 'rs'))
            hooks.setdefault(92, []).append((f"buffer_store_dwordx4 {vq(TMP+8)}, v{V_LIN}, {srd(SWS)}, s{T1} offen sc1", 'rs'))
            hooks.setdefault(2, []).extend([f"v_mov_b32 v{TMP+8+j}, v{LO+j}" for j in range(2)])
            hooks.setdefault(3, []).extend([f"v_mov_b32 v{TMP+8+j}, v{LO+j}" for j in range(2, 4)])
        self.gemm_pass(3, ACC_K, ob, hooks=hooks, last=True, sync=False, pace=lambda n: 1 if n % 2 == 0 and n > 9 else 0)
        self.stamp()
        for rt in range(2):
            c = self.cvt20(acc(ACC_K, 0, rt), TMP + 10 * rt)
            for j in range(5):
                p(c[2*j][1]); p(c[2*j+1][1])
                p(f"ds_write_b64 v{V_OW}, {vq(TMP+10*rt+2*j, 2)} offset:{rt*16*OUTS + 8*j}", 'ow')
        for j in range(5): p(f"ds_read_b128 {vq(TMP+24+4*j)}, v{V_ORD+j}", ('or', j))
        for j in range(5):
            p.wait(lg=[('or', j)])
            p(f"buffer_store_dwordx4 {vq(TMP+24+4*j)}, v{V_OG+j}, {srd(SOUT)}, s{S_OUT} offen {o.get('oflag', '')}", 'out')
        if o.get('stamps'):
            p("s_waitcnt vmcnt(0)")
            self.stamp()
            p("s_memrealtime s[100:101]")
            p("s_waitcnt lgkmcnt(0)")
            p.raw(f"""
            s_lshl_b32 s{T0}, s2, 2
            s_add_u32 s{T0}, s{T0}, s{S_W}
            s_lshl_b32 s{T0}, s{T0}, 6
            s_add_u32 s{T0}, s{T0}, {WS_ST}
            v_mov_b32 v{TMP+16}, 0
            v_mov_b32 v{TMP}, s98
            v_mov_b32 v{TMP+1}, s100
            """)
            for k in range(14): p(f"v_mov_b32 v{TMP+2+k}, {'s%d' % (S_ST+k) if k < self.nst else ('s95' if k == 13 else 0)}")
            p("s_mov_b64 exec, 1")
            for k in range(4): p(f"buffer_store_dwordx4 {vq(TMP+4*k)}, v{TMP+16}, {srd(SWS)}, s{T0} offen offset:{16*k}")
        if o.get('amp'):
            p("s_waitcnt vmcnt(0)")
            self.stamp()
            if o['amp'][0] < 0: p("s_mov_b32 s100, s98")
            p.raw(f"""
            s_and_b32 s{T0}, s2, 7
            s_lshr_b32 s{T0}, {o['amp'][2]}, s{T0}
            s_bitcmp1_b32 s{T0}, 0
            s_cbranch_scc0 L_ampx{self.sfx}
            s_load_dwordx2 s[62:63], s[0:1], 64
            v_mov_b32 v2, 0
            s_waitcnt lgkmcnt(0)
            global_load_dword v3, v2, s[62:63] sc1
            s_waitcnt vmcnt(0)
            v_readfirstlane_b32 s{T2}, v3
            s_not_b32 s{T2}, s{T2}
            s_sub_u32 s{T0}, s100, s{T2}
            s_add_u32 s{T0}, s{T0}, 300
            s_mul_i32 s{T0}, s{T0}, {o['amp'][1]}
            s_min_u32 s{T0}, s{T0}, 100000
            L_amp{self.sfx}:
            s_sleep 2
            s_memrealtime s[64:65]
            s_waitcnt lgkmcnt(0)
            s_sub_u32 s{T1}, s64, s{T2}
            s_cmp_lt_u32 s{T1}, s{T0}
            s_cbranch_scc1 L_amp{self.sfx}
            L_ampx{self.sfx}:
            """)
        p("s_endpgm")
        assert not self.dq
        return p.finalize() + "".join(self.ool)

def sizes(lines):
    import subprocess, re
    src = '.amdgcn_target "amdgcn-amd-amdhsa--gfx950"\n.text\n' + "\n".join(lines) + "\n"
    r = subprocess.run(["llvm-mc", "-triple=amdgcn-amd-amdhsa", "-mcpu=gfx950", "-show-encoding"], input=src, capture_output=True, text=True)
    assert r.returncode == 0, r.stderr[:2000]
    return [len(m.split(',')) for m in re.findall(r'encoding: \[([^\]]*)\]', r.stdout)]
def add_hops(text, sfx):
    lines = text.split("\n")
    i0 = lines.index(f"L_main{sfx}:"); i1 = next(i for i in range(i0, len(lines)) if lines[i].strip() == "s_endpgm")
    body = lines[i0 + 1:i1]
    isi = lambda l: l.startswith("    ")
    sz = iter(sizes([l for l in body if isi(l)]))
    out = []; addr = 0; page = 0; prev = "v_mfma"
    for l in body:
        if isi(l):
            off = addr - page * 4096
            if off >= 0 and (prev.startswith("v_mfma") or off >= 40) and not prev.startswith("s_mov_b64 exec") :
                out.append(("hop", page)); addr += 4; page += 1
            addr += next(sz); prev = l.strip()
        out.append(l)
    assert page >= 4
    res = []
    for x in out:
        if isinstance(x, tuple):
            k = x[1]
            res += [f"L_hop{k}{sfx}:", f"    s_cbranch_execz " + (f"L_hop{k+4}{sfx}" if k + 4 < page else f"L_hopret{sfx}")]
        else: res.append(x)
    print(sfx, "main bytes", addr, file=sys.stderr)
    return "\n".join(lines[:i0 + 1] + res + lines[i1:])

def build(opt):
    ref = open(f"cdna_kernels/{NAME}.s.ref").read().split("\n")
    head = [l for l in ref if l.startswith(";") and "@launch" not in l]
    s = "\n".join(head) + "\n; @launch grid=(256,1,1) block=(256,1,1) lds=163840\n"
    s += f""".amdgcn_target "amdgcn-amd-amdhsa--gfx950"
.text
.globl {NAME}_kernel
.p2align 12
.p2align 8
.type {NAME}_kernel,@function
{NAME}_kernel:
    s_cmp_ge_u32 s2, 256
    s_cbranch_scc1 L_exit
"""
    ga = Gen(True, opt); ta = ga.body(); gb = Gen(False, opt); tb = gb.body()
    ca, ra = ta.split(".split\n"); cb, rb = tb.split(".split\n")
    assert ca == cb
    if opt.get('hops', 1): ra = add_hops(ra, 'A'); rb = add_hops(rb, 'B')
    s += ca + ra + "L_exit:\n    s_endpgm\n.p2align 12\n" + rb
    s += ".fill 2048, 4, 0xbf810000\n"
    s += f""".section .rodata,"a"
.p2align 6
.amdhsa_kernel {NAME}_kernel
  .amdhsa_next_free_vgpr 512
  .amdhsa_next_free_sgpr 102
  .amdhsa_accum_offset 256
  .amdhsa_group_segment_fixed_size 0
  .amdhsa_kernarg_size 80
  .amdhsa_user_sgpr_count 2
  .amdhsa_user_sgpr_kernarg_segment_ptr 1
  .amdhsa_system_sgpr_workgroup_id_x 1
.end_amdhsa_kernel
"""
    print("nops", ga.p.nops, gb.p.nops, "instrs", len(ga.p.ins), len(gb.p.ins), "autow", getattr(ga.p, 'autow', 0), file=sys.stderr)
    return s

if __name__ == "__main__":
    import json
    opt = json.loads(sys.argv[2]) if len(sys.argv) > 2 else {}
    open(sys.argv[1], "w").write(build(opt))
```

```python
import sys
from collections import deque
from emit import Prog
NAME = "concat_heads__linear_kernel_hedgehog__linear_attn_block__prompt"

S_RB, S_HG, S_W = 4, 5, 7
SX, SW, SWO, SWS, SOUT, SPHI = 8, 12, 16, 20, 24, 28
S_NONCE = 32
S_WROW = 33
S_XBASE, S_XU = 38, 39
S_LW, S_LR = 40, 41
T0, T1, T2, T3 = 42, 43, 44, 45
S_WOROW = 46
S_HEAD = 51
S_SPIN = 52
S_FAST = 53
S_L2E, S_NL2E = 54, 55
S_OB = 56
S_WS, S_XS = 57, 58
S_FLAG = 59
S_OP = 60
S_P1ST, S_P1LD, S_P2ST, S_P2LD, S_OWN, S_OUT, S_XCCV, S_PERM = 68, 69, 70, 71, 72, 73, 74, 75
S_KA = 76
S_ST = 76
import os
if os.environ.get('PRO'): S_ST = 88
def srd(b): return f"s[{b}:{b+3}]"
V_LANE = 1
V_WO = 2; V_OF = 7; V_OL = 12; V_XO = 17; V_XR = 21; V_WT = 23; V_LIN = 25
V_PW, V_VW, V_KB, V_KA0, V_KA1, V_FR = 26, 27, 28, 29, 30, 31
ACC_K, ACC_V = 32, 72
TMP = 112
PV = 228
V_P1ST, V_P1LD, V_P2ST, V_GAL, V_LA, V_FR2, V_KEEP, V_ONE, V_OW, V_ORD, V_OG, V_F8, V_DUMP, V_ZA = PV, PV+1, PV+2, PV+3, PV+4, PV+8, PV+9, PV+10, PV+11, PV+12, PV+17, PV+22, PV+23, PV+24
V_L128, V_NONCE, V_FOWN = PV + 25, PV + 26, PV + 27
RING = 0; SLOT = 20480; RBASE = 102400; RW = 15360
OUTL = RBASE + 16384; OUTS = 176
WS_FLAG, WS_XCC, WS_P2, WS_P1, WS_O, WS_ST = 4096, 32768, 65536, 1 << 20, 8 << 20, 16 << 20
WS_SIZE = 32 << 20
D = 6
A_RING = 220
A_PHI = 160
A_PARK = 244
V_OO = V_XO
SO = SPHI
SPIN_MAX = 20000
EPS = "0x358637bd"

def vq(b, n=4): return f"v[{b}:{b+n-1}]"
def aq(b, n=4): return f"a[{b}:{b+n-1}]"
def acc(base, t, rt): return base + (rt * 5 + t) * 4
MF = "v_mfma_f32_16x16x32_bf16"

DEF = {'A': dict(h1=(45, 84)), 'B': dict(h1=(45, 84), vpace=3, qpace=4, qev=24, vsync=1)}
class Gen:
    def __init__(self, isA, opt):
        self.A = isA
        sf = 'A' if isA else 'B'
        opt = dict(DEF[sf], **opt)
        opt.update({k[:-1]: v for k, v in opt.items() if k.endswith(sf)})
        self.o = opt
        self.p = Prog(); self.sfx = 'A' if isA else 'B'
        self.F = 40 if isA else 20
        self.nst = 0
        self.dq = deque()
        self.pos = 0
        self.ool = []
    def stamp(self, name=None):
        p = self.p
        fine = self.o.get('fine')
        if fine:
            if name is None: self.cs = getattr(self, 'cs', 0) + 1; name = 's%d' % (self.cs - 1)
            if name not in fine: return
        elif name is not None: return
        if self.o.get('amp'):
            if self.nst == self.o['amp'][0]:
                p("s_memrealtime s[100:101]"); p("s_waitcnt lgkmcnt(0)")
            self.nst += 1
            return
        if not self.o.get('stamps'): return
        p(f"s_memrealtime s[100:101]" if self.o.get('rt') else f"s_memtime s[100:101]")
        p("s_waitcnt lgkmcnt(0)")
        p(f"s_sub_u32 s{S_ST+self.nst}, s100, {'s98' if self.o.get('rt') else 's96'}")
        self.nst += 1
    def put(self, L):
        for x in L:
            if isinstance(x, tuple): self.p(x[0], x[1])
            elif isinstance(x, list): self.put(x)
            elif callable(x): x()
            else: self.p(x)
    def dma_w(self, G):
        g = G % 5
        pre = [f"s_add_u32 m0, s{S_LW}, {RING + g*SLOT}"]
        if G < 15:
            col = {0: 1280, 1: 2560, 2: 0}[G // 5]
            pre.append(f"s_add_u32 s{S_WS}, s{S_WROW+g}, {col}"); so = f"s{S_WS}"; sd = SW; vo = V_WO
        else:
            so = f"s{S_WOROW+g}"; sd = SWO; vo = V_OF if g < 4 else V_OL
        items = []
        if G // 5 in self.o.get('fake', []):
            base = (G % 5) * 4 * 5120 + (G // 5 if G < 15 else 0) * 819200
            pre = [pre[0], f"s_add_u32 s{S_WS}, s94, {base}"]
            for j in range(5):
                off = f"offset:{j*1024} " if 0 < j < 4 else ""
                L = (pre if j == 0 else []) + [(f"buffer_load_dwordx4 v{V_LIN}, {srd(sd)}, s{S_WS} offen {off}lds", ('W', G))]
                if j == 3: L += [f"s_add_u32 m0, s{S_LW}, {RING + g*SLOT + 4096}", f"s_add_u32 s{S_WS}, s{S_WS}, 4096"]
                items.append(L)
            return items
        for j in range(5):
            off = f"offset:{j*1024} " if 0 < j < 4 else ""
            L = (pre if j == 0 else []) + [(f"buffer_load_dwordx4 v{vo+j}, {srd(sd)}, {so} offen {off}lds", ('W', G))]
            if j == 3: L.append(f"s_add_u32 m0, s{S_LW}, {RING + g*SLOT + 4096}")
            items.append(L)
        return items
    def dma_x(self, pu):
        items = []
        for j in range(4):
            off = f"offset:{j*1024} " if j else ""
            L = []
            if j == 0: L += [f"s_add_u32 m0, s{S_LR}, {(pu % 3) * 4096}", f"s_add_u32 s{S_XS}, s{S_XU}, s{S_XBASE}"]
            L.append((f"buffer_load_dwordx4 v{V_XO+j}, {srd(SX)}, s{S_XS} offen {off}lds", ('X', pu)))
            if j == 0: L += [f"s_add_u32 s{S_XU}, s{S_XU}, 128"]
            if j == 1: L += [f"s_cmp_eq_u32 s{S_XU}, 1280", f"s_cselect_b32 s{S_XU}, 0, s{S_XU}"]
            items.append(L)
        return items
    def q(self, earliest, items):
        for it in items: self.dq.append((earliest, it))
    def release(self, k):
        self.dq = deque((0 if e == 10**6 + k else e, it) for e, it in self.dq)
    def tick(self):
        if self.dq and self.dq[0][0] <= self.pos:
            self.put(self.dq.popleft()[1]); return True
        return False
    def flush_dma(self, tag):
        def has():
            return any(isinstance(x, tuple) and x[1] == tag for _, it in self.dq for x in it)
        while has():
            assert self.dq[0][0] <= self.pos, (tag, self.pos, self.dq[0])
            self.put(self.dq.popleft()[1])
    def run(self, L, every=30):
        c = 0
        for cost, x in L:
            self.put([x]); c += cost
            if c >= every: c = 0; self.tick()
    def wread(self, N, hf):
        G = N // 20; ks = (N % 20) // 5; t = N % 5
        off = RING + (G % 5) * SLOT + ks * 5120 + hf * 2560 + 8 * t
        hi = off >= 51200
        s = A_RING + (N % D) * 4 + 2 * hf
        if G // 5 in self.o.get('fake', []):
            if hf == 0:
                off = RING + (G % 5) * SLOT + ks * 5120 + 1024 * t
                hi = off >= 51200
                self.p(f"ds_read_b128 a[{s}:{s+3}], v{226 + hi} offset:{off - 51200*hi}", ('F', N))
            return
        self.p(f"ds_read_b64_tr_b16 a[{s}:{s+1}], v{V_WT + hi} offset:{off - 51200*hi}", ('F', N))
    def group_sync(self, G):
        self.flush_dma(('W', G))
        self.p.wait(vm=[('W', G)])
        self.p("s_barrier")
    def xread(self, pu, k):
        ksub, rt = divmod(k, 2)
        if k == 0:
            self.flush_dma(('X', pu)); self.p.wait(vm=[('X', pu)])
        a = ((2 * pu + ksub) * 2 + rt) * 4
        self.p(f"ds_read_b128 {aq(a)}, v{V_XR+ksub} offset:{(pu % 3)*4096 + rt*2048}", ('XR', pu))
    def prime(self, ps, sync=True):
        if sync: self.group_sync(ps * 5)
        for n in range(D - 1):
            self.wread(ps * 100 + n, 0); self.wread(ps * 100 + n, 1)
    def gemm_pass(self, ps, accb, bop, fill=None, hooks=None, last=False, pace=None, sync=True, frange=(0, 100), hooks0=None):
        p = self.p
        fill = deque(fill or []); hooks = hooks or {}; hooks0 = hooks0 or {}
        N0 = ps * 100
        p.wait(lg=[('F', N0), ('XR', 0)])
        pace = pace or (lambda n: 0)
        for n in range(100):
            self.pos = N0 + n
            ks, t = divmod(n, 5)
            s = A_RING + ((N0 + n) % D) * 4
            M = n + D - 1
            look = M < 100 or not last
            a = acc(accb, t, 0)
            p(f"{MF} {vq(a)}, {aq(s)}, {bop(ks, 0)}, {'0' if ks == 0 else vq(a)}")
            k0 = len(p.ins)
            if n < 99:
                tg = [('F', N0 + n + 1)]
                if ps == 0 and (n + 1) % 10 == 0: tg.append(('XR', (n + 1) // 10))
                p.wait(lg=tg)
            if n in hooks0: self.put(hooks0[n])
            if look:
                if M % 20 == 0 and sync: self.group_sync((N0 + M) // 20)
                if len(p.ins) == k0: p("s_nop 0")
                self.wread(N0 + M, 0); self.wread(N0 + M, 1)
                if ps in self.o.get('fake', []) and fill and n >= frange[0] and not isinstance(fill[0][1], tuple): self.gap(fill, 1 if fill[0][0] < 2 or n % 2 else 2)
            elif fill and n >= frange[0]: self.gap(fill, 2)
            a = acc(accb, t, 1)
            p(f"{MF} {vq(a)}, {aq(s)}, {bop(ks, 1)}, {'0' if ks == 0 else vq(a)}")
            self.pos = N0 + n + 1
            self.stamp('n%d' % (N0 + n))
            did = 0
            for _ in range(pace(n)): did += self.tick()
            if n in hooks: self.put(hooks[n])
            if fill and n >= frange[0]:
                left = sum(c for c, _ in fill)
                gaps = sum(1 for k in range(n, frange[1]) if not pace(k)) + (min(D - 1, 99 - n) if last and frange[1] == 100 else 0)
                bud = 0 if did else 2
                if left > (3 if ps in self.o.get('fake', []) else 2) * gaps: bud += 2
                self.gap(fill, bud)
        while fill: self.put([fill.popleft()[1]])
        self.pos = N0 + 100
    def gap(self, fill, bud):
        first = True
        while fill:
            c, x = fill[0]
            solo = isinstance(x, tuple)
            if c > bud or (solo and not first): break
            fill.popleft(); self.put([x]); bud -= c
            if solo: break
            if c: first = False
    def cvt20(self, src, dst):
        return [(1, f"v_cvt_pk_bf16_f32 v{dst+i}, v{src+2*i}, v{src+2*i+1}") for i in range(10)]
    def phiA_parts(self, x, e, m, name, isq):
        P = {}
        kb = e + 28
        P['cvt'] = self.cvt20(x, kb) + [(1, f"v_mov_b32 v{kb+10}, 0"), (1, f"v_mov_b32 v{kb+11}, 0")]
        P['mf'] = [(2, f"{MF} {vq(x+4*t)}, {aq(A_PHI + (t*3+u)*4)}, {vq(kb+4*u)}, {'0' if u == 0 else vq(x+4*t)}") for t in range(5) for u in range(3)]
        P['exp'] = [(2, f"v_exp_f32 v{e+i}, v{x+i}") for i in range(20)] + [(2, f"v_exp_f32 v{e+20+i}, -v{x+i}") for i in range(20)]
        def sums():
            L = [f"v_pk_add_f32 v[{m+2*h}:{m+2*h+1}], v[{e+20*h}:{e+20*h+1}], v[{e+20*h+2}:{e+20*h+3}]" for h in range(2)]
            L += [f"v_pk_add_f32 v[{m+2*h}:{m+2*h+1}], v[{m+2*h}:{m+2*h+1}], v[{e+20*h+2*i}:{e+20*h+2*i+1}]" for i in range(2, 10) for h in range(2)]
            L += [f"v_add_f32 v{m+2*h}, v{m+2*h}, v{m+2*h+1}" for h in range(2)]
            return L
        nm = name + self.sfx
        L = sums() + [f"v_max_f32 v{m+1}, v{m}, v{m+2}", f"v_cmp_ngt_f32 vcc, 0x5d800000, v{m+1}"]
        if not isq: L.append(f"v_rcp_f32 v{m+4}, v{m}")
        L += [f"v_rcp_f32 v{m+2}, v{m+2}", [f"s_cbranch_vccnz {nm}_slow", f"{nm}_back:"]]
        o = Prog()
        o(f"{nm}_slow:")
        o(f"v_max3_f32 v{m}, v{x}, v{x+1}, v{x+2}"); o(f"v_min3_f32 v{m+1}, v{x}, v{x+1}, v{x+2}")
        for i in range(3, 19, 2):
            o(f"v_max3_f32 v{m}, v{m}, v{x+i}, v{x+i+1}"); o(f"v_min3_f32 v{m+1}, v{m+1}, v{x+i}, v{x+i+1}")
        o(f"v_max_f32 v{m}, v{m}, v{x+19}"); o(f"v_min_f32 v{m+1}, v{m+1}, v{x+19}")
        for i in range(20): o(f"v_sub_f32 v{e+i}, v{x+i}, v{m}"); o(f"v_sub_f32 v{e+20+i}, v{m+1}, v{x+i}")
        for i in range(40): o(f"v_exp_f32 v{e+i}, v{e+i}")
        for y in sums(): o(y)
        if not isq: o(f"v_rcp_f32 v{m+4}, v{m}")
        o(f"v_rcp_f32 v{m+2}, v{m+2}"); o("s_nop 1"); o(f"s_branch {nm}_back")
        self.ool.append(o.finalize())
        if isq: L.append(f"v_mul_f32 v{m+2}, v{m+2}, v{m}")
        else: L += [f"v_pk_mul_f32 v[{e+2*i}:{e+2*i+1}], v[{e+2*i}:{e+2*i+1}], v[{m+4}:{m+5}] op_sel_hi:[1,0]" for i in range(10)]
        L += [f"v_pk_mul_f32 v[{e+20+2*i}:{e+21+2*i}], v[{e+20+2*i}:{e+21+2*i}], v[{m+2}:{m+3}] op_sel_hi:[1,0]" for i in range(10)]
        P['norm'] = [(1, y) for y in L]
        P['out'] = [(1, f"v_cvt_pk_bf16_f32 v{x+i}, v{e+2*i}, v{e+2*i+1}") for i in range(20)]
        return P
    def weave(self, mf, va, per=2):
        va = deque(va); L = []
        for x in mf:
            L.append(x); b = per
            while va and va[0][0] <= b: b -= va[0][0]; L.append(va.popleft())
        return L + list(va)
    def phiB(self, x, e, packed):
        L = []
        if packed: L += [(1, f"v_pk_mul_f32 v[{e+2*i}:{e+2*i+1}], v[{x+2*i}:{x+2*i+1}], s[{S_L2E}:{S_NL2E}] op_sel_hi:[1,0]") for i in range(10)]
        else: L += [(1, f"v_mul_f32 v{e+i}, s{S_L2E}, v{x+i}") for i in range(20)]
        L += [(2, f"v_exp_f32 v{e+i}, v{e+i} clamp") for i in range(20)]
        L += [(1, f"v_max_f32 v{x+i}, {EPS}, v{x+i}") for i in range(20)]
        if packed: L += [(1, f"v_pk_add_f32 v[{e+2*i}:{e+2*i+1}], v[{e+2*i}:{e+2*i+1}], v[{x+2*i}:{x+2*i+1}]") for i in range(10)]
        else: L += [(1, f"v_add_f32 v{e+i}, v{e+i}, v{x+i}") for i in range(20)]
        L += self.cvt20(e, x)
        return L
    def checked(self, name, loads, check, tag):
        nm = name + self.sfx
        iss = [(x, tag) if x.startswith('buffer') else x for x in loads]
        chk = [(0, lambda: self.p.wait(vm=[tag]))] + [(1, x) for x in check] + [(1, [f"s_cbranch_vccnz {nm}_retry", f"{nm}_ok:"])]
        o = Prog()
        o(f"{nm}_retry:"); o(f"s_mov_b32 s{S_SPIN}, 0"); o(f"{nm}_loop:")
        if self.o.get('stamps'): o(f"s_add_u32 s95, s95, {dict(L_xc=1000000, L_h1=10000, L_h2=1000, L_h3=1, L_h4=100)[name]}")
        for x in loads: o(x)
        o("s_waitcnt vmcnt(0)")
        for x in check: o(x)
        o(f"s_cbranch_vccz {nm}_ok")
        o(f"s_add_u32 s{S_SPIN}, s{S_SPIN}, 1"); o(f"s_cmp_lt_u32 s{S_SPIN}, {SPIN_MAX}"); o(f"s_cbranch_scc1 {nm}_loop")
        o(f"s_branch {nm}_ok")
        self.ool.append(o.finalize())
        return iss, chk
    def body(self):
        p = self.p; A = self.A; F = self.F; br = 0 if A else 1; o = self.o
        t = TMP
        K = S_KA
        kx, kw, kout, kws = K, K + 2, K + 8, K + 10
        kphi, kwo = (K + 4, K + 6) if A else (None, K + 4)
        p.raw(f"""
        s_andn2_b32 s{T0}, 1, s2
        s_lshl_b32 s{T0}, s{T0}, 5
        s_load_dwordx8 s[{K}:{K+7}], s[0:1], s{T0}
        s_load_dwordx2 s[{kout}:{kout+1}], s[0:1], 56
        s_load_dwordx2 s[{kws}:{kws+1}], s[0:1], 72
        """)
        if o.get('stamps'): p("s_memtime s[96:97]"); p("s_mov_b32 s95, 0")
        if o.get('stamps') or o.get('amp'): p("s_memrealtime s[98:99]")
        p.raw(f"""
        s_getpc_b64 s[60:61]
        L_pc:
        s_bfe_u32 s{S_HG}, s2, 0x30003
        v_and_b32 v{V_LANE}, 63, v0
        v_lshrrev_b32 v{t}, 6, v0
        s_bitcmp0_b32 s2, 0
        s_cselect_b32 s{T1}, L_setupB-L_setupA, 0
        s_lshl_b32 s{T0}, s{S_HG}, 12
        v_lshlrev_b32 v{V_L128}, 7, v{V_LANE}
        v_readfirstlane_b32 s{S_W}, v{t}
        s_add_u32 s{T0}, s{T0}, s{T1}
        s_add_u32 s{T0}, s{T0}, L_setupA-L_pc
        s_add_u32 s60, s60, s{T0}
        s_addc_u32 s61, s61, 0
        v_lshl_add_u32 v{t+1}, v{t}, 10, v{V_L128}
        s_mov_b64 exec, 0xff
        """)
        p(f"global_load_dword v{V_DUMP}, v{t+1}, s[60:61]", 'cpf')
        p("s_mov_b64 exec, -1")
        ra, rbm, rdiv = o.get('rot', (10, 10, 4))
        p.raw(f"""
        s_and_b32 s{S_RB}, s2, 6
        s_lshl_b32 s{S_RB}, s{S_RB}, 1
        s_lshr_b32 s{T0}, s2, 6
        s_add_u32 s{S_RB}, s{S_RB}, s{T0}
        s_mul_i32 s{T0}, s{S_HG}, {ra}
        s_mul_i32 s{T1}, s{S_RB}, {rbm}
        s_add_u32 s{T0}, s{T0}, s{T1}
        s_lshr_b32 s{T0}, s{T0}, {rdiv.bit_length()-1}
        s_mul_i32 s{T1}, s{T0}, 6554
        s_lshr_b32 s{T1}, s{T1}, 16
        s_mul_i32 s{T1}, s{T1}, 10
        s_sub_u32 s{T3}, s{T0}, s{T1}
        s_lshl_b32 s{S_XU}, s{T3}, 7
        s_lshl_b32 s{T0}, s{S_RB}, 2
        s_add_u32 s{T0}, s{T0}, s{S_W}
        s_mul_i32 s{S_XBASE}, s{T0}, 40960
        s_mul_i32 s{S_LW}, s{S_W}, 5120
        s_mul_i32 s{S_LR}, s{S_W}, {RW}
        s_add_u32 s{S_LR}, s{S_LR}, {RBASE}
        v_lshrrev_b32 v{t}, 3, v{V_LANE}
        v_mul_u32_u24 v{t}, 1280, v{t}
        v_lshrrev_b32 v{t+1}, 4, v{V_LANE}
        v_xor_b32 v{t+1}, v{t+1}, v{V_LANE}
        v_and_b32 v{t+1}, 7, v{t+1}
        v_lshl_add_u32 v{V_XO}, v{t+1}, 4, v{t}
        v_xor_b32 v{t+2}, 64, v{V_XO}
        v_add_u32 v{V_XO+1}, {9216}, v{t+2}
        v_add_u32 v{V_XO+2}, {2*9216}, v{V_XO}
        v_add_u32 v{V_XO+3}, {3*9216}, v{t+2}
        s_lshr_b32 s{T0}, s{S_W}, 1
        s_add_u32 s{T0}, s{T0}, s{T3}
        s_and_b32 s{T1}, s{S_W}, 1
        s_mul_i32 s{T1}, s{T1}, {32*3840}
        s_mul_i32 s{T2}, s{S_HG}, 160
        s_add_u32 s{T1}, s{T1}, s{T2}
        s_mov_b32 s{SX+2}, 2621440
        s_mov_b32 s{SX+3}, 0x20000
        s_mov_b32 s{SW+2}, 2457600
        s_mov_b32 s{SW+3}, 0x20000
        """)
        def wrow(g):
            p.raw(f"""
            s_cmp_ge_u32 s{T0}, 10
            s_cselect_b32 s{T2}, 10, 0
            s_sub_u32 s{T0}, s{T0}, s{T2}
            s_mul_i32 s{T2}, s{T0}, {64*3840}
            s_add_u32 s{S_WROW+g}, s{T2}, s{T1}
            s_add_u32 s{T0}, s{T0}, 2
            """)
        wrow(0)
        RH = TMP + 10
        def woff(j):
            b = RH + 5 * j
            p.raw(f"""
            v_add_u32 v{t}, {64*j}, v{V_LANE}
            v_mul_u32_u24 v{b+4}, 6554, v{t}
            v_lshrrev_b32 v{b+4}, 16, v{b+4}
            v_mul_u32_u24 v{t+2}, 10, v{b+4}
            v_sub_u32 v{b+3}, v{t}, v{t+2}
            v_bfe_u32 v{b}, v{b+4}, 2, 2
            v_lshrrev_b32 v{b+1}, 4, v{b+4}
            v_and_b32 v{b+2}, 3, v{b+4}
            v_lshl_add_u32 v{t}, v{b}, 1, v{b+1}
            v_lshl_add_u32 v{t}, v{t}, 2, v{b+2}
            v_mul_u32_u24 v{t}, 3840, v{t}
            v_lshl_add_u32 v{V_WO+j}, v{b+3}, 4, v{t}
            """)
            if 0 < j < 4: p(f"v_subrev_u32 v{V_WO+j}, {1024*j}, v{V_WO+j}")
        if o.get('fake'):
            p.raw(f"""
            s_mul_i32 s94, s{S_HG}, 102400
            s_add_u32 s94, s94, s{S_LW}
            v_lshlrev_b32 v{V_LIN}, 4, v{V_LANE}
            v_mov_b32 v226, v{V_LIN}
            v_add_u32 v227, 51200, v{V_LIN}
            """)
        woff(0); woff(1)
        if o.get('pre0'): p("s_memtime s[92:93]")
        p.raw(f"""
        s_waitcnt lgkmcnt(0)
        s_mov_b32 s{SX}, s{kx}
        s_mov_b32 s{SX+1}, s{kx+1}
        s_mov_b32 s{SW}, s{kw}
        s_mov_b32 s{SW+1}, s{kw+1}
        """)
        self.stamp('p0')
        if o.get('pre0'): p(f"s_sub_u32 s{S_ST+self.nst}, s92, s96"); self.nst += 1
        self.put(self.dma_x(0))
        w0 = self.dma_w(0)
        self.put(w0[0:2]); woff(2); self.put(w0[2]); woff(3); self.put(w0[3]); woff(4); self.put(w0[4])
        self.stamp('p1')
        if o.get('prowait'):
            p.wait(vm=['cpf']); self.stamp('p2')
            p.wait(vm=[('X', 0)]); self.stamp('p3')
            p.wait(vm=[('W', 0)]); self.stamp('p4')
        p("s_bitcmp0_b32 s2, 0"); p("s_cbranch_scc1 L_setupB")
        p(".split")
        p(f"L_setup{self.sfx}:")
        p(f"s_load_dword s{S_NONCE}, s[{kws}:{kws+1}], {br*128}")
        for g in range(1, 5): wrow(g)
        self.q(0, self.dma_x(1))
        p.raw(f"""
        s_mov_b32 s{SWO}, s{kwo}
        s_mov_b32 s{SWO+1}, s{kwo+1}
        s_mov_b32 s{SWO+2}, 819200
        s_mov_b32 s{SWO+3}, 0x20000
        s_mov_b32 s{SWS}, s{kws}
        s_mov_b32 s{SWS+1}, s{kws+1}
        s_mov_b32 s{SWS+2}, {WS_SIZE}
        s_mov_b32 s{SWS+3}, 0x20000
        s_mov_b32 s{SOUT}, s{kout}
        s_mov_b32 s{SOUT+1}, s{kout+1}
        s_mov_b32 s{SOUT+2}, 5242880
        s_mov_b32 s{SOUT+3}, 0x20000
        s_lshl_b32 s{S_HEAD}, s{S_HG}, 2
        s_add_u32 s{S_HEAD}, s{S_HEAD}, s{S_W}
        v_lshlrev_b32 v{V_LIN}, 4, v{V_LANE}
        """)
        if A:
            p.raw(f"""
            s_mov_b32 s{SPHI}, s{kphi}
            s_mov_b32 s{SPHI+1}, s{kphi+1}
            s_mov_b32 s{SPHI+2}, 25600
            s_mov_b32 s{SPHI+3}, 0x20000
            """)
            self.q(0, [[f"s_mul_i32 s{S_WS}, s{S_HEAD}, 800",
                        (f"buffer_load_dwordx4 {vq(TMP+96)}, v{V_LIN}, {srd(SPHI)}, s{S_WS} offen", 'wphi')]])
        self.q(0, self.dma_w(1)); self.q(0, self.dma_x(2))
        G_, I_, R_, C_ = t, t + 1, t + 2, t + 3
        S = []
        def raw(txt):
            for l in txt.split('\n'):
                if l.strip(): S.append((1, l.strip()))
        raw(f"""
        v_lshrrev_b32 v{G_}, 4, v{V_LANE}
        v_and_b32 v{I_}, 15, v{V_LANE}
        v_bfe_u32 v{R_}, v{V_LANE}, 2, 2
        v_and_b32 v{C_}, 3, v{V_LANE}
        v_lshrrev_b32 v{t+4}, 1, v{I_}
        v_xor_b32 v{t+4}, v{t+4}, v{G_}
        v_lshlrev_b32 v{t+5}, 7, v{I_}
        v_lshl_add_u32 v{t+4}, v{t+4}, 4, v{t+5}
        v_add_u32 v{V_XR}, s{S_LR}, v{t+4}
        v_xor_b32 v{t+4}, 64, v{t+4}
        v_add_u32 v{V_XR+1}, s{S_LR}, v{t+4}
        v_lshrrev_b32 v{t+4}, 2, v{V_LANE}
        v_mul_u32_u24 v{t+5}, 160, v{t+4}
        v_mul_u32_u24 v{t+6}, 40, v{C_}
        v_add_u32 v{V_WT}, v{t+5}, v{t+6}
        v_add_u32 v{V_WT+1}, 51200, v{V_WT}
        v_mul_u32_u24 v{t+5}, 120, v{I_}
        v_mul_u32_u24 v{t+6}, 3840, v{G_}
        v_add3_u32 v{V_PW}, v{t+5}, v{t+6}, s{S_LR}
        v_mul_u32_u24 v{t+6}, 40, v{G_}
        v_mul_u32_u24 v{t+7}, {OUTS}, v{I_}
        s_mul_i32 s{T2}, s{S_W}, {32*OUTS}
        s_add_u32 s{T2}, s{T2}, {OUTL}
        v_add3_u32 v{V_OW}, v{t+7}, v{t+6}, s{T2}
        v_and_b32 v{t+5}, 7, v{t+4}
        v_lshrrev_b32 v{t+6}, 5, v{V_LANE}
        v_lshlrev_b32 v{t+6}, 1, v{t+6}
        v_lshl_add_u32 v{t+5}, v{t+5}, 2, v{t+6}
        v_mul_u32_u24 v{t+5}, 120, v{t+5}
        s_mul_i32 s{T0}, s{S_W}, 3840
        s_add_u32 s{T0}, s{T0}, {RBASE}
        v_add_u32 v{V_KA1}, s{T0}, v{t+5}
        v_lshl_add_u32 v{V_KB}, v{C_}, 3, v{V_KA1}
        s_mov_b32 s{S_L2E}, 0x3fb8aa3b
        s_mov_b32 s{S_NL2E}, 0xbfb8aa3b
        s_mov_b32 s{S_PERM}, 0x07060302
        s_and_b32 s{T3}, s{S_HG}, 1
        """)
        for j in range(5):
            b = RH + 5 * j
            raw(f"""
            v_mul_u32_u24 v{t+4}, 20, v{b}
            v_add_u32 v{t+4}, v{t+4}, v{b+2}
            v_lshl_add_u32 v{t+5}, v{b+1}, 2, v{t+4}
            v_xor_b32 v{t+6}, s{T3}, v{b+1}
            v_mul_u32_u24 v{t+6}, 80, v{t+6}
            v_add3_u32 v{t+6}, v{t+6}, v{t+4}, 16
            v_mul_u32_u24 v{t+5}, 1280, v{t+5}
            v_mul_u32_u24 v{t+6}, 1280, v{t+6}
            v_lshl_add_u32 v{V_OF+j}, v{b+3}, 4, v{t+5}
            v_lshl_add_u32 v{V_OL+j}, v{b+3}, 4, v{t+6}
            v_mul_u32_u24 v{t+5}, {OUTS}, v{b+4}
            v_lshl_add_u32 v{t+5}, v{b+3}, 4, v{t+5}
            v_add_u32 v{V_ORD+j}, s{T2}, v{t+5}
            v_mul_u32_u24 v{t+5}, 2560, v{b+4}
            v_lshl_add_u32 v{V_OG+j}, v{b+3}, 4, v{t+5}
            """)
            if 0 < j < 4:
                raw(f"v_subrev_u32 v{V_OF+j}, {1024*j}, v{V_OF+j}\nv_subrev_u32 v{V_OL+j}, {1024*j}, v{V_OL+j}")
        for j in range(5):
            raw(f"""
            v_lshrrev_b32 v{t+4}, 3, v{RH+5*j+4}
            v_mul_u32_u24 v{t+4}, 1280, v{t+4}
            v_add_u32 v{t+5}, {1024*j}, v{V_LIN}
            v_add_u32 v{t+4}, v{t+4}, v{t+5}
            v_accvgpr_write_b32 a{A_PARK+j}, v{t+4}
            """)
        raw(f"v_mul_u32_u24 v{t+4}, 1280, v{RH+4}\nv_add_u32 v{V_L128}, v{V_L128}, v{t+4}")
        raw(f"""
        s_lshr_b32 s{T0}, s{S_W}, 1
        s_xor_b32 s{T0}, s{T0}, s{T3}
        s_mul_i32 s{T0}, s{T0}, 80
        s_and_b32 s{T1}, s{S_W}, 1
        s_lshl_b32 s{T1}, s{T1}, 3
        s_add_u32 s{T0}, s{T0}, s{T1}
        s_mul_i32 s{T0}, s{T0}, 1280
        s_mul_i32 s{T2}, s{S_HG}, 160
        s_add_u32 s{T0}, s{T0}, s{T2}
        s_lshr_b32 s{S_SPIN}, s{S_HG}, 1
        s_add_u32 s{T1}, s{S_SPIN}, s{S_W}
        s_and_b32 s{T1}, s{T1}, 3
        s_mul_i32 s{T1}, s{T1}, {160*1280}
        s_add_u32 s{S_WOROW+4}, s{T1}, s{T2}
        s_lshl_b32 s{S_OUT}, s{S_XBASE}, 1
        s_add_u32 s{S_OUT}, s{S_OUT}, s{T2}
        s_add_u32 s{S_OUT}, s{S_OUT}, {br*1280}
        s_lshl_b32 s{S_OB}, s{S_XBASE}, 1
        s_add_u32 s{S_OB}, s{S_OB}, {br*1280}
        """)
        for g in range(4):
            raw(f"""
            s_add_u32 s{T1}, s{S_SPIN}, {g}
            s_and_b32 s{T1}, s{T1}, 3
            s_mul_i32 s{T2}, s{T1}, {160*1280}
            s_add_u32 s{S_WOROW+g}, s{T2}, s{T0}
            s_lshl_b32 s{T1}, s{T1}, 1
            s_add_u32 s{T1}, s{T1}, s{T3}
            s_mul_i32 s{T2}, s{T1}, 10240
            s_add_u32 s{S_OP+2*g}, s{T2}, s{S_OB}
            s_xor_b32 s{T1}, s{T1}, 1
            s_mul_i32 s{T2}, s{T1}, 10240
            s_add_u32 s{S_OP+2*g+1}, s{T2}, s{S_OB}
            """)
        SH = 8 if A else 7
        raw(f"""
        s_lshl_b32 s{T0}, s{S_RB}, 2
        s_add_u32 s{T0}, s{T0}, s{S_W}
        s_lshl_b32 s{S_FLAG}, s{T0}, 7
        s_add_u32 s{S_FLAG}, s{S_FLAG}, {WS_FLAG + br*64*128}
        s_lshl_b32 s{T0}, s{S_HEAD}, 16
        s_add_u32 s{T0}, s{T0}, {WS_P1 + br*32*65536}
        s_lshl_b32 s{T1}, s{S_RB}, 12
        s_add_u32 s{S_P1ST}, s{T0}, s{T1}
        s_min_u32 s{T1}, s{S_RB}, 14
        s_lshl_b32 s{T1}, s{T1}, {SH}
        s_add_u32 s{S_P1LD}, s{T0}, s{T1}
        s_lshl_b32 s{T0}, s{S_HEAD}, 12
        s_add_u32 s{S_P2LD}, s{T0}, {WS_P2 + br*32*4096}
        s_add_u32 s{S_P2ST}, s{S_P2LD}, s{T1}
        v_mul_u32_u24 v{t+4}, {F}, v{G_}
        v_add_lshl_u32 v{V_P1ST}, v{t+4}, v{I_}, 4
        v_cmp_gt_u32 vcc, 4, v{I_}
        v_cndmask_b32 v{V_KEEP}, 0, -1, vcc
        v_mov_b32 v{t+4}, 0x3f803f80
        v_cmp_eq_u32 vcc, 4, v{I_}
        v_cndmask_b32 v{V_ONE}, 0, v{t+4}, vcc
        v_and_b32 v{t+4}, 7, v{V_LANE}
        v_lshlrev_b32 v{V_F8}, 2, v{t+4}
        s_lshl_b32 s{T0}, s{S_HG}, 2
        v_mov_b32 v{V_FOWN}, s{T0}
        v_lshlrev_b32 v{V_ZA}, 3, v0
        v_add_u32 v{V_ZA}, {RBASE+7680}, v{V_ZA}
        """)
        if A:
            raw(f"""
            v_lshlrev_b32 v{t+5}, 12, v{G_}
            v_lshl_add_u32 v{V_P1LD}, v{I_}, 4, v{t+5}
            v_lshlrev_b32 v{V_P2ST}, 2, v{V_LANE}
            """)
        else:
            raw(f"""
            v_lshrrev_b32 v{t+5}, 3, v{V_LANE}
            v_lshlrev_b32 v{t+5}, 12, v{t+5}
            v_lshl_add_u32 v{V_P1LD}, v{t+4}, 4, v{t+5}
            v_lshl_add_u32 v{V_P2ST}, v{G_}, 5, v{V_F8}
            """)
        RS = 80 if A else 48
        HS = 24 * RS
        NQ = 240 if A else 120
        NI = 4 if A else 2
        raw(f"s_mul_i32 s{T0}, s{S_W}, {HS}\ns_add_u32 s{T0}, s{T0}, {RBASE}")
        u = t + 4
        for ii in range(NI):
            raw(f"v_add_u32 v{u}, {64*ii}, v{V_LANE}")
            if ii == NI - 1:
                raw(f"""v_subrev_u32 v{u+1}, 64, v{u}
                v_cmp_gt_u32 vcc, {NQ}, v{u}
                v_cndmask_b32 v{u}, v{u+1}, v{u}, vcc
                v_lshlrev_b32 v{V_GAL}, 4, v{u}""")
            if A:
                raw(f"""
                v_lshrrev_b32 v{u+1}, 4, v{u}
                v_and_b32 v{u+2}, 3, v{u}
                v_lshl_add_u32 v{u+1}, v{u+1}, 2, v{u+2}
                v_bfe_u32 v{u+2}, v{u}, 2, 2
                v_mul_u32_u24 v{u+3}, 6554, v{u+1}
                v_lshrrev_b32 v{u+3}, 16, v{u+3}
                v_mul_u32_u24 v{u+4}, 10, v{u+3}
                """)
            else:
                raw(f"""
                v_lshrrev_b32 v{u+1}, 3, v{u}
                v_and_b32 v{u+2}, 1, v{u}
                v_lshl_add_u32 v{u+1}, v{u+1}, 1, v{u+2}
                v_bfe_u32 v{u+2}, v{u}, 1, 2
                v_mul_u32_u24 v{u+3}, 13108, v{u+1}
                v_lshrrev_b32 v{u+3}, 16, v{u+3}
                v_mul_u32_u24 v{u+4}, 5, v{u+3}
                """)
            raw(f"""
            v_sub_u32 v{u+1}, v{u+1}, v{u+4}
            v_lshl_add_u32 v{u+3}, v{u+3}, 2, v{u+2}
            v_mul_u32_u24 v{u+3}, {RS}, v{u+3}
            v_lshl_add_u32 v{u+3}, v{u+1}, 3, v{u+3}
            v_add_u32 v{V_LA+ii}, s{T0}, v{u+3}
            """)
        raw(f"""
        v_cmp_eq_u32 vcc, v{G_}, v{R_}
        v_mul_u32_u24 v{u}, {HS}, v{G_}
        v_mul_u32_u24 v{u+1}, {RS}, v{C_}
        v_add_u32 v{u}, v{u}, v{u+1}
        v_add_u32 v{u}, {RBASE}, v{u}
        v_mov_b32 v{u+1}, {RBASE+7680}
        v_cndmask_b32 v{V_FR2}, v{u+1}, v{u}, vcc
        """)
        if A:
            raw(f"""
            v_mov_b32 v{t+8}, 0
            v_mov_b32 v{t+9}, 0
            v_mov_b32 v{t+10}, 0
            v_mov_b32 v{t+11}, 0
            v_add_u32 v{TMP+100}, s{S_LR}, v{V_LIN}
            ds_write_b128 v{TMP+100}, {vq(t+8)} offset:13312
            v_mul_u32_u24 v{t+4}, {RW}, v{G_}
            v_mul_u32_u24 v{t+5}, 40, v{R_}
            v_add_u32 v{t+4}, v{t+4}, v{t+5}
            v_add_u32 v{t+4}, {RBASE+12288}, v{t+4}
            s_add_u32 s{T0}, s{S_LR}, 13312
            v_mov_b32 v{t+5}, s{T0}
            v_cmp_eq_u32 vcc, v{C_}, v{G_}
            v_cndmask_b32 v{V_FR}, v{t+5}, v{t+4}, vcc
            """)
            for tt in range(5):
                a = A_PHI + (tt * 3 + 2) * 4
                raw(f"v_accvgpr_write_b32 a{a+2}, 0\nv_accvgpr_write_b32 a{a+3}, 0")
        self.run(S, every=o.get('proev', 60))
        self.stamp('p5')
        if o.get('hops', 1):
            p("s_mov_b64 exec, 0")
            for w_ in range(3): p(f"s_cmp_eq_u32 s{S_W}, {w_}"); p(f"s_cbranch_scc1 L_hop{w_}{self.sfx}")
            p(f"s_branch L_hop3{self.sfx}")
            p(f"L_hopret{self.sfx}:")
            p("s_mov_b64 exec, -1")
        while self.tick(): pass
        p.raw(f"""
        s_getreg_b32 s{T0}, hwreg(HW_REG_XCC_ID, 0, 4)
        s_waitcnt lgkmcnt(0)
        s_add_u32 s{S_NONCE}, s{S_NONCE}, 0x9e3779b1
        s_lshl_b32 s{T0}, s{T0}, 28
        s_xor_b32 s{S_XCCV}, s{T0}, s{S_NONCE}
        v_mov_b32 v{V_NONCE}, s{S_NONCE}
        v_mov_b32 v{t}, s{S_XCCV}
        s_add_u32 s{T0}, s{S_FLAG}, {WS_XCC - WS_FLAG}
        s_mov_b64 exec, 1
        """)
        p(f"buffer_store_dword v{t}, v{V_FOWN}, {srd(SWS)}, s{T0} offen sc1", 'xcc')
        p("s_mov_b64 exec, -1")
        self.stamp()
        p(f"s_branch L_main{self.sfx}")
        p(".p2align 12")
        p(f"L_main{self.sfx}:")
        xb = lambda ks, rt: aq((ks * 2 + rt) * 4)
        for pu in range(0, 7):
            if (pu + 3) % 2 == 0: self.q(0, self.dma_w((pu + 3) // 2))
            self.q(10 * pu, self.dma_x(pu + 3))
        for G in range(5, 10): self.q(10**6 + 1 if G % 5 >= 3 else 20 * (G - 3) - 4, self.dma_w(G))
        for G in range(10, 20): self.q(10**6 + G, self.dma_w(G))
        hooks = {}
        for pu in range(1, 10):
            hooks[10 * pu - 5] = [lambda pu=pu: self.xread(pu, 0), lambda pu=pu: self.xread(pu, 1)]
            hooks[10 * pu - 4] = [lambda pu=pu: self.xread(pu, 2), lambda pu=pu: self.xread(pu, 3)]
        if A:
            rd = [(tt, u_, hf) for tt in range(5) for u_ in range(3) for hf in range(2 if u_ < 2 else 1)]
            w = TMP + 96; u2 = TMP + 102
            sc = [lambda: p.wait(vm=['wphi'])]
            for j in range(4):
                sc += [f"v_lshlrev_b32 v{u2}, 16, v{w+j}", f"v_and_b32 v{u2+1}, 0xffff0000, v{w+j}", f"v_mul_f32 v{u2}, s{S_L2E}, v{u2}",
                       f"v_mul_f32 v{u2+1}, s{S_L2E}, v{u2+1}", f"v_cvt_pk_bf16_f32 v{w+j}, v{u2}, v{u2+1}"]
            hooks[8] = sc + [(f"ds_write_b128 v{TMP+100}, {vq(w)} offset:12288", 'phw')]
            hooks[14] = [lambda: p.wait(lg=['phw'])]
            slots = [n for n in range(21, 90) if n % 10 in (0, 1, 2, 3)][:25]
            for k, n in enumerate(slots):
                hooks[n] = [(f"ds_read_b64_tr_b16 a[{A_PHI + (tt*3+u_)*4 + 2*hf}:{A_PHI + (tt*3+u_)*4 + 2*hf + 1}], v{V_FR} offset:{(8*u_+4*hf)*40 + 8*tt}", 'phi')
                            for tt, u_, hf in rd[k:k+1]]
        XV = TMP + 92
        iss, chk = self.checked("L_xc", ["s_mov_b64 exec, 0xff", f"s_add_u32 s{T0}, s{S_FLAG}, {WS_XCC - WS_FLAG}",
                                         f"buffer_load_dword v{XV}, v{V_F8}, {srd(SWS)}, s{T0} offen sc1", "s_mov_b64 exec, -1"],
                                [f"v_xor_b32 v{XV+1}, s{S_NONCE}, v{XV}", f"v_lshlrev_b32 v{XV+1}, 4, v{XV+1}",
                                 "s_mov_b64 exec, 0xff", f"v_cmp_ne_u32 vcc, 0, v{XV+1}", "s_mov_b64 exec, -1"], 'xl')
        hooks[58] = iss
        hooks[88] = [x for _, x in chk] + ["s_mov_b64 exec, 0xff", f"v_cmp_ne_u32 vcc, s{S_XCCV}, v{XV}", "s_mov_b64 exec, -1",
                                                     f"s_mov_b32 s{S_FAST}, vcc_lo"]
        if o.get('nofast'): hooks[88].append(f"s_mov_b32 s{S_FAST}, 1")
        hooks[92] = [f"s_add_u32 s{T0}, s{SWS}, {WS_O}", f"s_addc_u32 s{T1}, s{SWS+1}, 0", f"s_cmp_eq_u32 s{S_FAST}, {0 if o.get('alias', 1) else -1}",
                     f"s_cselect_b32 s{SO}, s{SOUT}, s{T0}", f"s_cselect_b32 s{SO+1}, s{SOUT+1}, s{T1}", f"s_mov_b32 s{SO+2}, 5242880", f"s_mov_b32 s{SO+3}, 0x20000"]
        for j in range(5): hooks[93 + j] = [f"v_accvgpr_read_b32 v{V_OO+j}, a{A_PARK+j}"]
        self.group_sync(0)
        for k in range(4): self.xread(0, k)
        self.prime(0, sync=False)
        kp = o.get('kpace', 3)
        self.gemm_pass(0, ACC_K, xb, hooks=hooks, last=True, pace=lambda n: (1 if n % 3 != 2 else 0) if n < 69 else (1 if n % kp == 0 else 0))
        p("s_barrier")
        self.stamp()
        E0, E1, M0_, M1_ = TMP, TMP + 40, TMP + 80, TMP + 86
        x0, x1 = acc(ACC_K, 0, 0), acc(ACC_K, 0, 1)
        self.release(1)
        if o.get('amp'):
            p.raw(f"""
            s_load_dwordx2 s[88:89], s[0:1], 64
            s_not_b32 s{T0}, s98
            v_mov_b32 v{TMP+94}, 0
            v_mov_b32 v{TMP+95}, s{T0}
            s_lshr_b32 s{T0}, s2, 3
            s_or_b32 s{T0}, s{T0}, s{S_W}
            s_cmp_eq_u32 s{T0}, 0
            s_cselect_b32 s{T0}, 0, 64
            v_mov_b32 v{TMP+94}, s{T0}
            s_waitcnt lgkmcnt(0)
            s_cbranch_scc0 L_noat{self.sfx}
            s_mov_b64 exec, 1
            """)
            p.ins.append(__import__('emit').Ins(f"global_atomic_umax v{TMP+94}, v{TMP+95}, s[88:89] sc1"))
            p("s_mov_b64 exec, -1")
            p(f"L_noat{self.sfx}:")
        wr = lambda rt, x, n, o8: [(2, (f"ds_write_b64 v{V_PW}, {vq(x+2*j, 2)} offset:{rt*1920 + o8 + 8*j}", 'pw')) for j in range(n)]
        def mixw(out, w): return [y for j in range(len(w)) for y in out[2*j:2*j+2] + [w[j]]]
        burst = lambda L: [(0, [x for _, x in L])]
        dm = (2, lambda: self.tick())
        if A:
            P0 = self.phiA_parts(x0, E0, M0_, "L_k0", False); P1 = self.phiA_parts(x1, E1, M1_, "L_k1", False)
            pr = [(0, lambda: self.group_sync(5 if o.get('vsync', 0) else 6))] + [(1, lambda n=n, hf=hf: self.wread(100 + n, hf)) for n in range(D - 1) for hf in range(2)]
            self.put([x for _, x in [dm] + P0['cvt'] + self.weave(P0['mf'], [dm] + P1['cvt'] + [dm] + P0['exp'][:4]) + self.weave(P1['mf'], [dm] + P0['exp'][4:12] + [dm] + pr)])
            fill = P0['exp'][12:] + burst(P0['norm']) + mixw(P0['out'], wr(0, x0, 10, 0)) + P1['exp'] + burst(P1['norm']) + mixw(P1['out'], wr(1, x1, 10, 0))
            self.stamp('head')
        else:
            fill = []
            for rt, x, e in ((0, x0, E0), (1, x1, E1)):
                L = self.phiB(x, e, False)
                fill += L[:-10] + mixw(L[-10:], wr(rt, x, 5, 0))
            self.group_sync(5 if o.get('vsync', 0) else 6); self.prime(1, sync=False)
        hooks = {}
        vs = o.get('vsync', 0)
        for g in range(4): hooks.setdefault(20 * g + 18, []).extend(["s_barrier" if vs else (lambda g=g: self.group_sync(7 + g)), lambda g=g: self.release(10 + g)])
        vp = o.get('vpace', 4)
        self.gemm_pass(1, ACC_V, xb, fill=fill, hooks=hooks, last=True, sync=bool(vs), pace=lambda n: 1 if n % vp == 0 else 0)
        self.stamp()
        VB = TMP
        for rt in range(2):
            c = self.cvt20(acc(ACC_V, 0, rt), VB + 10 * rt)
            for j in range(5):
                p(c[2*j][1]); p(c[2*j+1][1])
                p(f"ds_write_b64 v{V_PW}, {vq(VB+10*rt+2*j, 2)} offset:{rt*1920 + 80 + 8*j}", 'vw')
                if j == 4 and rt == 0: self.tick()
        self.tick()
        p.wait(lg='*')
        self.stamp('kv0')
        self.flush_dma(('W', 11)); p.wait(vm=[('W', 11)])
        self.stamp('kv1')
        p("s_barrier")
        self.stamp('kv2')
        self.release(14)
        NT = 3 if A else 2
        FB = ACC_K
        KV = TMP + 64
        rds = deque()
        def rd(reg, av, off, kk, j):
            for hf in range(2): rds.append((f"ds_read_b64_tr_b16 {vq(reg+2*hf, 2)}, v{av} offset:{kk*RW + hf*120 + off}", ('kv', kk, j)))
        for kk in range(4):
            b = FB + kk * 20
            rd(b, V_KB, 80, kk, 'a')
            for nt in range(NT): rd(b + 8 + 4 * nt, V_KB, 32 * nt, kk, nt)
        for kk in range(4): rd(FB + kk * 20 + 4, V_KA1, 112, kk, 'z')
        def more(k):
            while k > 0 and rds and len(p.lgq) < 15: self.put([rds.popleft()]); k -= 1
        p(f"v_mov_b32 v{TMP+1}, 0xff")
        more(15); self.tick()
        seq = [(kk, nt) for kk in range(4) for nt in range(NT)]
        p.wait(lg=[('kv',) + seq[0]])
        for i_, (kk, nt) in enumerate(seq):
            b = FB + kk * 20
            p(f"{MF} {vq(KV + nt*4)}, {vq(b)}, {vq(b+8+4*nt)}, {'0' if kk == 0 else vq(KV + nt*4)}")
            if i_ + 1 < len(seq): p.wait(lg=[('kv',) + seq[i_ + 1]])
            more(3)
            if i_ % 6 == 5: self.tick()
        assert not rds
        lastm = 0x00ff00ff if A else 0x000f000f
        def pub(mt, nt):
            a = KV + (mt * 3 + nt) * 4
            lo = lastm if nt == NT - 1 else 0xffffffff
            hi = lo if mt == 0 else 0
            L = [(1, f"v_bfi_b32 v{a+j}, v{TMP+1}, s{S_NONCE}, v{a+j}") for j in range(4)]
            st = (f"buffer_store_dwordx4 {vq(a)}, v{V_P1ST}, {srd(SWS)}, s{S_P1ST} offen offset:{(4*mt*F + 16*nt)*16} sc1", 'p1')
            if (lo, hi) == (0xffffffff, 0xffffffff): return L + [(2, st)]
            return L + [(2, [f"s_mov_b32 exec_lo, {hex(lo)}", f"s_mov_b32 exec_hi, {hex(hi)}", st, "s_mov_b64 exec, -1"])]
        p.wait(lg='*')
        self.stamp('kv3')
        for kk in range(4):
            for j in range(4): p(f"v_and_or_b32 v{FB+kk*20+4+j}, v{FB+kk*20+4+j}, v{V_KEEP}, v{V_ONE}")
        mf = [(2, f"{MF} {vq(KV + (3+nt)*4)}, {vq(FB+kk*20+4)}, {vq(FB+kk*20+8+4*nt)}, {'0' if kk == 0 else vq(KV + (3+nt)*4)}") for nt in range(NT) for kk in range(4)]
        pr = [(1, lambda n=n, hf=hf: self.wread(200 + n, hf)) for n in range(D - 1) for hf in range(2)]
        self.put([x for _, x in self.weave(mf, [y for nt in range(NT) for y in pub(0, nt)] + pr)])
        qhead = [y for nt in range(NT) for y in pub(1, nt)]
        self.stamp()
        X = TMP + 8; CK = TMP + 2
        def tagcheck(mask):
            return [f"v_xor_b32 v{CK}, s{S_NONCE}, v{X}"] + [f"v_bitop3_b32 v{CK}, v{CK}, v{X+j}, s{S_NONCE} bitop3:0xf6" for j in range(1, 4 * NI)] + \
                   [f"v_and_b32 v{CK}, {mask}, v{CK}", f"v_cmp_ne_u32 vcc, 0, v{CK}"]
        lds_ = []
        for ii in range(NI):
            lds_ += [f"s_add_u32 s{T0}, s{S_P1LD}, {ii * (65536 // NI)}", f"buffer_load_dwordx4 {vq(X+4*ii)}, v{V_P1LD}, {srd(SWS)}, s{T0} offen sc1"]
        iss, chk = self.checked("L_h1", lds_, tagcheck("0xff"), 'h1')
        red = [f"v_add_f32 v{X+j}, v{X+j}, v{X+4*ii+j}" for ii in range(1, NI) for j in range(4)]
        red += [f"v_permlane32_swap_b32 v{X}, v{X+2}", f"v_permlane32_swap_b32 v{X+1}, v{X+3}", f"v_add_f32 v{X}, v{X}, v{X+2}", f"v_add_f32 v{X+1}, v{X+1}, v{X+3}",
                f"v_mov_b32 v{CK}, 0xffff", f"v_permlane16_swap_b32 v{X}, v{X+1}", f"v_add_f32 v{X}, v{X}, v{X+1}"]
        if not A: red.append(f"v_add_f32_dpp v{X}, v{X}, v{X} row_ror:8 row_mask:0xf bank_mask:0xf")
        red += [f"v_cvt_pk_bf16_f32 v{X}, v{X}, v{X}", f"v_bfi_b32 v{X}, v{CK}, s{S_NONCE}, v{X}"]
        st = (f"buffer_store_dword v{X}, v{V_P2ST}, {srd(SWS)}, s{S_P2ST} offen sc1", 'p2')
        red.append([st] if A else ["s_mov_b32 exec_lo, 0x00ff00ff", "s_mov_b32 exec_hi, 0x00ff00ff", st, "s_mov_b64 exec, -1"])
        n1, n2 = o.get('h1', (62, 84))
        hooks = {n1 + k: iss[2*k:2*k+2] for k in range(NI)}
        qh = deque(qhead)
        for n in range(12): hooks[n] = [lambda: self.gap(qh, 2)]
        for g in range(4): hooks.setdefault(20 * g + 18, []).extend([lambda g=g: self.group_sync(min(12 + g, 14)), lambda g=g: self.release(15 + g)])
        self.gemm_pass(2, ACC_K, xb, fill=chk + [(1, x) for x in red], hooks=hooks, last=True, sync=False, frange=(n2, 100),
                       pace=lambda n: 1 if (n >= 9 and n % (3 if n < o.get('qsw', 24) else o.get('qpace', 5)) == 0 and not n1 <= n < n1 + NI) else 0)
        assert not qh
        p("s_barrier")
        self.release(19)
        self.stamp()
        X = TMP + 96; CK = TMP + 92
        lds_ = [f"buffer_load_dwordx4 {vq(X+4*ii)}, v{V_LIN if ii < NI-1 else V_GAL}, {srd(SWS)}, s{S_P2LD} offen offset:{1024*ii if ii < NI-1 else 0} sc1" for ii in range(NI)]
        iss, chk = self.checked("L_h2", lds_, tagcheck("0xffff"), 'h2')
        pre = [(f"buffer_load_dword v{V_DUMP}, v{V_L128}, {srd(SO)}, s{S_OP} offen sc1", 'pr'), (f"buffer_load_dword v{V_DUMP}, v{V_F8}, {srd(SWS)}, s{S_FLAG} offen sc1", 'pr')]
        pre = ["s_mov_b32 exec_hi, 0xff", pre[0], "s_mov_b64 exec, 1", pre[1], "s_mov_b64 exec, -1"]
        zw = [f"v_mov_b32 v{CK}, 0", f"v_mov_b32 v{CK+1}, 0", f"ds_write_b64 v{V_ZA}, {vq(CK, 2)}"]
        self.put(zw)
        for k_ in range(o.get('dirty', 0)):
            p(f"s_add_u32 s{T0}, s{S_OP}, {(9 << 20) + (k_ // 5) * (6 << 20) + (k_ % 5) * 1024}")
            p(f"buffer_store_dwordx4 v[2:5], v{V_LIN}, {srd(SWS)}, s{T0} offen {o.get('dirtyf', '')}")
        if o.get('prepos', 0) == 1: self.put(pre)
        if not A:
            for tt in range(6): p(f"v_accvgpr_write_b32 a{40+4*(3*tt+2)+2}, 0"); p(f"v_accvgpr_write_b32 a{40+4*(3*tt+2)+3}, 0")
        if A:
            P0 = self.phiA_parts(x0, E0, M0_, "L_q0", True); P1 = self.phiA_parts(x1, E1, M1_, "L_q1", True)
            L = P0['cvt'] + self.weave(P0['mf'], P1['cvt'] + P0['exp'][:6]) + self.weave(P1['mf'], P0['exp'][6:]) + P0['norm'] + P0['out'] + P1['exp'] + P1['norm'] + P1['out']
        else:
            L = []
            for x, e in ((x0, E0), (x1, E1)):
                L += self.phiB(x, e, True) + [(1, f"v_mov_b32 v{x+10}, 0"), (1, f"v_mov_b32 v{x+11}, 0")]
        tot = sum(c for c, _ in L); cut = tot - o.get('h2lead', 180) if A else tot
        c = 0; k = 0
        while k < len(L) and c < cut: c += L[k][0]; k += 1
        self.run(L[:k], every=o.get('qev', 44))
        self.stamp('q0')
        self.flush_dma(('W', 15))
        self.stamp('q1')
        self.put(iss)
        if o.get('prepos', 0) == 0: self.put(pre)
        self.stamp('q2')
        self.run(L[k:], every=o.get('qev', 44))
        self.stamp()
        self.put([x for _, x in chk])
        for ii in range(NI):
            p(f"v_perm_b32 v{X+4*ii}, v{X+4*ii+1}, v{X+4*ii}, s{S_PERM}")
            p(f"v_perm_b32 v{X+4*ii+1}, v{X+4*ii+3}, v{X+4*ii+2}, s{S_PERM}")
            p(f"ds_write_b64 v{V_LA+ii}, {vq(X+4*ii, 2)}", 'kvw')
        p.wait(lg='*')
        p("s_barrier")
        self.stamp()
        OA = ACC_V
        NU = 5 if A else 3
        SP = TMP + 112
        if A: p(f"v_mov_b32 v{SP}, v{M0_}"); p(f"v_mov_b32 v{SP+1}, v{M1_}")
        OB = TMP + 64
        LO = TMP + 80
        fr = [(tt, u_) for tt in (5, 0, 1, 2, 3, 4) for u_ in range(NU)]
        AO = 40
        rds = deque()
        for n, (tt, u_) in enumerate(fr):
            if not A and u_ == 2: rds.append((f"ds_read_b64 {aq(AO+4*n, 2)}, v{V_FR2} offset:{4*tt*RS + 16*u_}", ('of', n)))
            else: rds.append((f"ds_read_b128 {aq(AO+4*n)}, v{V_FR2} offset:{4*tt*RS + 16*u_}", ('of', n)))
        more(12)
        p(f"s_cmp_eq_u32 s{S_FAST}, 0")
        def ost(txt):
            k = len(self.ool)
            if o.get('noslow'): p(txt, 'o'); return
            p(f"s_cbranch_scc0 L_os{k}{self.sfx}"); p(txt + " " + (o.get('fastf', '') if 'x4' in txt else ''), 'o'); p(f"L_or{k}{self.sfx}:")
            self.ool.append(f"L_os{k}{self.sfx}:\n    {txt} sc1\n    s_branch L_or{k}{self.sfx}\n")
        epi = deque()
        for rt in range(2):
            dn = OA + (rt * 6 + 5) * 4
            b = OA + rt * 24
            rdy = lambda k: rt * 6 * NU + (k + 1) * NU + 3
            epi.append((rdy(0), 1, f"v_fmac_f32 v{dn}, {EPS}, v{SP+rt}" if A else f"v_add_f32 v{dn}, {EPS}, v{dn}")); epi.append((rdy(0), 2, f"v_rcp_f32 v{dn}, v{dn}"))
            for tt in range(5):
                for r in range(4): epi.append((rdy(tt + 1), 1, f"v_mul_f32 v{b+4*tt+r}, v{b+4*tt+r}, v{dn}"))
                for h in range(2):
                    i = 2 * tt + h
                    d = OB + ((i // 4) * 2 + rt) * 4 + i % 4 if i < 8 else LO + 2 * rt + (i - 8)
                    epi.append((rdy(tt + 1), 1, f"v_cvt_pk_bf16_f32 v{d}, v{b+2*i}, v{b+2*i+1}"))
                if tt in (1, 3):
                    u_ = tt // 2
                    epi.append((0, 2, lambda u_=u_, rt=rt: ost(f"buffer_store_dwordx4 {vq(OB+(u_*2+rt)*4)}, v{V_OO+rt*2+u_}, {srd(SO)}, s{S_OP} offen")))
        epi.append((0, 2, lambda: ost(f"buffer_store_dwordx4 {vq(LO)}, v{V_OO+4}, {srd(SO)}, s{S_OP} offen")))
        pr = deque((300 + n, hf) for n in range(D - 1) for hf in range(2))
        m = 0
        for rt in range(2):
            for n, (tt, u_) in enumerate(fr):
                a = OA + (rt * 6 + tt) * 4
                if m == 0: p.wait(lg=[('of', 0)])
                p(f"{MF} {vq(a)}, {aq(AO+4*n)}, {vq(ACC_K+20*rt+4*u_)}, {'0' if u_ == 0 else vq(a)}")
                m += 1
                if rt == 0 and n + 1 < len(fr): p.wait(lg=[('of', n + 1)])
                bud = 2 if A else 3
                if rds: more(2); bud -= 2
                elif self.dq and m % o.get('opace', 8) == 0: self.tick(); p(f"s_cmp_eq_u32 s{S_FAST}, 0"); bud -= 2
                elif pr and not (epi and epi[0][0] <= m): self.wread(*pr.popleft()); bud -= 1
                while epi and epi[0][0] <= m and epi[0][1] <= bud:
                    _, c, x = epi.popleft(); bud -= c; self.put([x])
        while pr: self.wread(*pr.popleft())
        while epi: self.put([epi.popleft()[2]])
        self.stamp()
        def ob(ks, rt):
            if ks < 2: return vq(OB + (ks * 2 + rt) * 4)
            return aq((ks * 2 + rt) * 4) if ks < 16 else vq(LO + (2 * (ks - 16) + rt) * 4)
        def oload(P):
            if P < 16:
                return [[(f"buffer_load_dwordx4 {aq((P*2+rt)*4)}, v{V_OO+rt*2+P%2}, {srd(SO)}, s{S_OP + P//2} offen sc1", ('O', P))] for rt in range(2)]
            return [[(f"buffer_load_dwordx4 {vq(LO+(2*(P-16)+h)*4)}, v{V_OO+4}, {srd(SO)}, s{S_OP + 2*(P-16) + h} offen sc1", ('O', P))]
                    for h in range(2) if (P, h) != (16, 0)]
        def handshake():
            while self.tick(): pass
            p("s_waitcnt vmcnt(0)")
            p(f"s_cmp_eq_u32 s{S_FAST}, 0")
            p("s_mov_b64 exec, 1")
            ost(f"buffer_store_dword v{V_NONCE}, v{V_FOWN}, {srd(SWS)}, s{S_FLAG} offen")
            p("s_mov_b64 exec, 0xff")
            p("s_barrier")
            iss, chk = self.checked("L_h3", [f"buffer_load_dword v{V_DUMP}, v{V_F8}, {srd(SWS)}, s{S_FLAG} offen sc1"], [f"v_cmp_ne_u32 vcc, s{S_NONCE}, v{V_DUMP}"], 'h3')
            self.put(iss); self.put([x for _, x in chk])
            p("s_mov_b64 exec, -1")
            self.stamp()
            for P in range(2, 20): self.q(0, oload(P))
            for _ in range(o.get('oprime', 8)): self.tick()
        def owait(P):
            self.flush_dma(('O', P))
            p.wait(vm=[('O', P)])
            if P >= 16:
                a = LO + 2 * (P - 16) * 4
                p(f"v_swap_b32 v{a+2}, v{a+4}"); p(f"v_swap_b32 v{a+3}, v{a+5}")
        hooks = {5 * P - 1: [lambda P=P: owait(P)] for P in range(2, 20)}
        hooks[9] = [handshake] + hooks[9]
        hooks[96] = [f"s_or_b32 s{T0}, s{S_RB}, s{S_HEAD}", f"s_cmp_lg_u32 s{T0}, 0", f"s_cselect_b32 s{T0}, {WS_SIZE}, 0", "s_mov_b64 exec, 1",
                     (f"buffer_store_dword v{V_NONCE}, v{V_LIN}, {srd(SWS)}, s{T0} offen offset:{br*128} sc1", 'nn'), "s_mov_b64 exec, -1"]
        nd, npl = o.get('done', (81, 93))
        def done():
            self.flush_dma(('O', 19)); p.wait(vm=[('O', 19)])
            p(f"s_cmp_eq_u32 s{S_FAST}, 0"); p("s_mov_b64 exec, 1")
            ost(f"buffer_store_dword v{V_NONCE}, v{V_FOWN}, {srd(SWS)}, s{S_FLAG} offen offset:32")
            p("s_mov_b64 exec, -1")
        iss4, chk4 = self.checked("L_h4", ["s_mov_b64 exec, 0xff", f"buffer_load_dword v{V_DUMP}, v{V_F8}, {srd(SWS)}, s{S_FLAG} offen offset:32 sc1", "s_mov_b64 exec, -1"],
                                  ["s_mov_b64 exec, 0xff", f"v_cmp_ne_u32 vcc, s{S_NONCE}, v{V_DUMP}", "s_mov_b64 exec, -1"], 'h4')
        if o.get('alias', 1):
            hooks.setdefault(nd, []).append(done)
            hooks.setdefault(npl, []).extend(iss4)
        self.gemm_pass(3, ACC_K, ob, hooks=hooks, last=True, sync=False, pace=lambda n: 1 if n % 2 == 0 and n > 9 else 0)
        self.stamp()
        for rt in range(2):
            c = self.cvt20(acc(ACC_K, 0, rt), TMP + 10 * rt)
            for j in range(5):
                p(c[2*j][1]); p(c[2*j+1][1])
                p(f"ds_write_b64 v{V_OW}, {vq(TMP+10*rt+2*j, 2)} offset:{rt*16*OUTS + 8*j}", 'ow')
        for j in range(5): p(f"ds_read_b128 {vq(TMP+24+4*j)}, v{V_ORD+j}", ('or', j))
        if o.get('alias', 1): self.put([x for _, x in chk4])
        for j in range(5):
            p.wait(lg=[('or', j)])
            p(f"buffer_store_dwordx4 {vq(TMP+24+4*j)}, v{V_OG+j}, {srd(SOUT)}, s{S_OUT} offen {o.get('oflag', '')}", 'out')
        if o.get('stamps'):
            p("s_waitcnt vmcnt(0)")
            self.stamp()
            p("s_memrealtime s[100:101]")
            p("s_waitcnt lgkmcnt(0)")
            p.raw(f"""
            s_lshl_b32 s{T0}, s2, 2
            s_add_u32 s{T0}, s{T0}, s{S_W}
            s_lshl_b32 s{T0}, s{T0}, 6
            s_add_u32 s{T0}, s{T0}, {WS_ST}
            v_mov_b32 v{TMP+16}, 0
            v_mov_b32 v{TMP}, s98
            v_mov_b32 v{TMP+1}, s100
            """)
            for k in range(14): p(f"v_mov_b32 v{TMP+2+k}, {'s%d' % (S_ST+k) if k < self.nst else ('s95' if k == 13 else 0)}")
            p("s_mov_b64 exec, 1")
            for k in range(4): p(f"buffer_store_dwordx4 {vq(TMP+4*k)}, v{TMP+16}, {srd(SWS)}, s{T0} offen offset:{16*k}")
        if o.get('amp'):
            p("s_waitcnt vmcnt(0)")
            self.stamp()
            if o['amp'][0] < 0: p("s_mov_b32 s100, s98")
            p.raw(f"""
            s_and_b32 s{T0}, s2, 7
            s_lshr_b32 s{T0}, {o['amp'][2]}, s{T0}
            s_bitcmp1_b32 s{T0}, 0
            s_cbranch_scc0 L_ampx{self.sfx}
            s_load_dwordx2 s[62:63], s[0:1], 64
            v_mov_b32 v2, 0
            s_waitcnt lgkmcnt(0)
            global_load_dword v3, v2, s[62:63] sc1
            s_waitcnt vmcnt(0)
            v_readfirstlane_b32 s{T2}, v3
            s_not_b32 s{T2}, s{T2}
            s_sub_u32 s{T0}, s100, s{T2}
            s_add_u32 s{T0}, s{T0}, 300
            s_mul_i32 s{T0}, s{T0}, {o['amp'][1]}
            s_min_u32 s{T0}, s{T0}, 100000
            L_amp{self.sfx}:
            s_sleep 2
            s_memrealtime s[64:65]
            s_waitcnt lgkmcnt(0)
            s_sub_u32 s{T1}, s64, s{T2}
            s_cmp_lt_u32 s{T1}, s{T0}
            s_cbranch_scc1 L_amp{self.sfx}
            L_ampx{self.sfx}:
            """)
        p("s_endpgm")
        assert not self.dq
        return p.finalize() + "".join(self.ool)

def sizes(lines):
    import subprocess, re
    src = '.amdgcn_target "amdgcn-amd-amdhsa--gfx950"\n.text\n' + "\n".join(lines) + "\n"
    r = subprocess.run(["llvm-mc", "-triple=amdgcn-amd-amdhsa", "-mcpu=gfx950", "-show-encoding"], input=src, capture_output=True, text=True)
    assert r.returncode == 0, r.stderr[:2000]
    return [len(m.split(',')) for m in re.findall(r'encoding: \[([^\]]*)\]', r.stdout)]
def add_hops(text, sfx):
    lines = text.split("\n")
    i0 = lines.index(f"L_main{sfx}:"); i1 = next(i for i in range(i0, len(lines)) if lines[i].strip() == "s_endpgm")
    body = lines[i0 + 1:i1]
    isi = lambda l: l.startswith("    ")
    sz = iter(sizes([l for l in body if isi(l)]))
    out = []; addr = 0; page = 0; prev = "v_mfma"
    for l in body:
        if isi(l):
            off = addr - page * 4096
            if off >= 0 and (prev.startswith("v_mfma") or off >= 40) and not prev.startswith("s_mov_b64 exec") :
                out.append(("hop", page)); addr += 4; page += 1
            addr += next(sz); prev = l.strip()
        out.append(l)
    assert page >= 4
    res = []
    for x in out:
        if isinstance(x, tuple):
            k = x[1]
            res += [f"L_hop{k}{sfx}:", f"    s_cbranch_execz " + (f"L_hop{k+4}{sfx}" if k + 4 < page else f"L_hopret{sfx}")]
        else: res.append(x)
    print(sfx, "main bytes", addr, file=sys.stderr)
    return "\n".join(lines[:i0 + 1] + res + lines[i1:])

def build(opt):
    ref = open(f"cdna_kernels/{NAME}.s.ref").read().split("\n")
    head = [l for l in ref if l.startswith(";") and "@launch" not in l]
    s = "\n".join(head) + "\n; @launch grid=(256,1,1) block=(256,1,1) lds=163840\n"
    s += f""".amdgcn_target "amdgcn-amd-amdhsa--gfx950"
.text
.globl {NAME}_kernel
.p2align 12
.p2align 8
.type {NAME}_kernel,@function
{NAME}_kernel:
    s_cmp_ge_u32 s2, 256
    s_cbranch_scc1 L_exit
"""
    ga = Gen(True, opt); ta = ga.body(); gb = Gen(False, opt); tb = gb.body()
    ca, ra = ta.split(".split\n"); cb, rb = tb.split(".split\n")
    assert ca == cb
    if opt.get('hops', 1): ra = add_hops(ra, 'A'); rb = add_hops(rb, 'B')
    s += ca + ra + "L_exit:\n    s_endpgm\n.p2align 12\n" + rb
    s += ".fill 2048, 4, 0xbf810000\n"
    s += f""".section .rodata,"a"
.p2align 6
.amdhsa_kernel {NAME}_kernel
  .amdhsa_next_free_vgpr 512
  .amdhsa_next_free_sgpr 102
  .amdhsa_accum_offset 256
  .amdhsa_group_segment_fixed_size 0
  .amdhsa_kernarg_size 80
  .amdhsa_user_sgpr_count 2
  .amdhsa_user_sgpr_kernarg_segment_ptr 1
  .amdhsa_system_sgpr_workgroup_id_x 1
.end_amdhsa_kernel
"""
    print("nops", ga.p.nops, gb.p.nops, "instrs", len(ga.p.ins), len(gb.p.ins), "autow", getattr(ga.p, 'autow', 0), file=sys.stderr)
    return s

if __name__ == "__main__":
    import json
    opt = json.loads(sys.argv[2]) if len(sys.argv) > 2 else {}
    open(sys.argv[1], "w").write(build(opt))
```

```python
import sys
from collections import deque
from emit import Prog
NAME = "concat_heads__linear_kernel_hedgehog__linear_attn_block__prompt"

S_RB, S_HG, S_W = 4, 5, 7
SX, SW, SWO, SWS, SOUT, SPHI = 8, 12, 16, 20, 24, 28
S_NONCE = 32
S_WROW = 33
S_XBASE, S_XU = 38, 39
S_LW, S_LR = 40, 41
T0, T1, T2, T3 = 42, 43, 44, 45
S_WOROW = 46
S_HEAD = 51
S_SPIN = 52
S_FAST = 53
S_L2E, S_NL2E = 54, 55
S_OB = 56
S_WS, S_XS = 57, 58
S_FLAG = 59
S_OP = 60
S_P1ST, S_P1LD, S_P2ST, S_P2LD, S_OWN, S_OUT, S_XCCV, S_PERM = 68, 69, 70, 71, 72, 73, 74, 75
S_KA = 76
S_ST = 76
import os
if os.environ.get('PRO'): S_ST = 88
def srd(b): return f"s[{b}:{b+3}]"
V_LANE = 1
V_WO = 2; V_OF = 7; V_OL = 12; V_XO = 17; V_XR = 21; V_WT = 23; V_LIN = 25
V_PW, V_VW, V_KB, V_KA0, V_KA1, V_FR = 26, 27, 28, 29, 30, 31
ACC_K, ACC_V = 32, 72
TMP = 112
PV = 228
V_P1ST, V_P1LD, V_P2ST, V_GAL, V_LA, V_FR2, V_KEEP, V_ONE, V_OW, V_ORD, V_OG, V_F8, V_DUMP, V_ZA = PV, PV+1, PV+2, PV+3, PV+4, PV+8, PV+9, PV+10, PV+11, PV+12, PV+17, PV+22, PV+23, PV+24
V_L128, V_NONCE, V_FOWN = PV + 25, PV + 26, PV + 27
RING = 0; SLOT = 20480; RBASE = 102400; RW = 15360
OUTL = RBASE + 16384; OUTS = 176
WS_FLAG, WS_XCC, WS_P2, WS_P1, WS_O, WS_ST = 4096, 32768, 65536, 1 << 20, 8 << 20, 16 << 20
WS_SIZE = 32 << 20
D = 6
A_RING = 220
A_PHI = 160
A_PARK = 244
V_OO = 7; V_LINH = 12; V_PF = 13
WS_PF = 49152; WS_PK = 6 << 20
S_USRC, S_UDST, S_UFL, S_UTAG, S_PFL = 3, 6, 72, 90, 91
SO = SPHI
SPIN_MAX = 20000
EPS = "0x358637bd"

def vq(b, n=4): return f"v[{b}:{b+n-1}]"
def aq(b, n=4): return f"a[{b}:{b+n-1}]"
def acc(base, t, rt): return base + (rt * 5 + t) * 4
MF = "v_mfma_f32_16x16x32_bf16"

DEF = {'A': dict(h1=(52, 86), kpace=4, hx=30, vsync=1, qpace=4, qev=30), 'B': dict(h1=(44, 70), h2lead=100, prepos=290, vpace=4, qpace=4, qev=24, vsync=1)}
class Gen:
    def __init__(self, isA, opt):
        self.A = isA
        sf = 'A' if isA else 'B'
        opt = dict(DEF[sf], **opt)
        opt.update({k[:-1]: v for k, v in opt.items() if k.endswith(sf)})
        self.o = opt
        self.p = Prog(); self.sfx = 'A' if isA else 'B'
        self.F = 40 if isA else 20
        self.nst = 0
        self.dq = deque()
        self.pos = 0
        self.ool = []
    def stamp(self, name=None):
        p = self.p
        fine = self.o.get('fine')
        if fine:
            if name is None: self.cs = getattr(self, 'cs', 0) + 1; name = 's%d' % (self.cs - 1)
            if name not in fine: return
        elif name is not None: return
        if self.o.get('amp'):
            if self.nst == self.o['amp'][0]:
                p("s_memrealtime s[100:101]"); p("s_waitcnt lgkmcnt(0)")
            self.nst += 1
            return
        if not self.o.get('stamps'): return
        p(f"s_memrealtime s[100:101]" if self.o.get('rt') else f"s_memtime s[100:101]")
        p("s_waitcnt lgkmcnt(0)")
        p(f"s_sub_u32 s{S_ST+self.nst}, s100, {'s98' if self.o.get('rt') else 's96'}")
        self.nst += 1
    def put(self, L):
        for x in L:
            if isinstance(x, tuple): self.p(x[0], x[1])
            elif isinstance(x, list): self.put(x)
            elif callable(x): x()
            else: self.p(x)
    def dma_w(self, G):
        g = G % 5
        pre = [f"s_add_u32 m0, s{S_LW}, {RING + g*SLOT}"]
        if G < 15:
            col = {0: 1280, 1: 2560, 2: 0}[G // 5]
            gr = 4 - g if G // 5 in self.o.get('rev', [1, 2]) else g
            pre.append(f"s_add_u32 s{S_WS}, s{S_WROW+gr}, {col}"); so = f"s{S_WS}"; sd = SW; vo = V_WO
        else:
            items = []
            for j in range(5):
                off = f"offset:{j*1024} " if 0 < j < 4 else ""
                L = (pre if j == 0 else []) + [(f"buffer_load_dwordx4 v{V_LIN}, {srd(SWS)}, s{S_WOROW+g} offen {off}sc1 lds", ('W', G))]
                if j == 3: L += [f"s_add_u32 m0, s{S_LW}, {RING + g*SLOT + 4096}", f"s_add_u32 s{S_WOROW+g}, s{S_WOROW+g}, 4096"]
                items.append(L)
            return items
        items = []
        if G // 5 in self.o.get('fake', []):
            base = (G % 5) * 4 * 5120 + (G // 5 if G < 15 else 0) * 819200
            pre = [pre[0], f"s_add_u32 s{S_WS}, s94, {base}"]
            for j in range(5):
                off = f"offset:{j*1024} " if 0 < j < 4 else ""
                L = (pre if j == 0 else []) + [(f"buffer_load_dwordx4 v{V_LIN}, {srd(sd)}, s{S_WS} offen {off}lds", ('W', G))]
                if j == 3: L += [f"s_add_u32 m0, s{S_LW}, {RING + g*SLOT + 4096}", f"s_add_u32 s{S_WS}, s{S_WS}, 4096"]
                items.append(L)
            return items
        for j in range(5):
            off = f"offset:{j*1024} " if 0 < j < 4 else ""
            L = (pre if j == 0 else []) + [(f"buffer_load_dwordx4 v{vo+j}, {srd(sd)}, {so} offen {off}lds", ('W', G))]
            if j == 3: L.append(f"s_add_u32 m0, s{S_LW}, {RING + g*SLOT + 4096}")
            items.append(L)
        return items
    def dma_x(self, pu):
        items = []
        for j in range(4):
            off = f"offset:{j*1024} " if j else ""
            L = []
            if j == 0: L += [f"s_add_u32 m0, s{S_LR}, {(pu % 3) * 4096}", f"s_add_u32 s{S_XS}, s{S_XU}, s{S_XBASE}"]
            L.append((f"buffer_load_dwordx4 v{V_XO+j}, {srd(SX)}, s{S_XS} offen {off}lds", ('X', pu)))
            if j == 0: L += [f"s_add_u32 s{S_XU}, s{S_XU}, 128"]
            if j == 1: L += [f"s_cmp_eq_u32 s{S_XU}, 1280", f"s_cselect_b32 s{S_XU}, 0, s{S_XU}"]
            items.append(L)
        return items
    def q(self, earliest, items):
        for it in items: self.dq.append((earliest, it))
    def release(self, k):
        self.dq = deque((0 if e == 10**6 + k else e, it) for e, it in self.dq)
    def tick(self):
        if self.dq and self.dq[0][0] <= self.pos:
            self.put(self.dq.popleft()[1]); return True
        return False
    def flush_dma(self, tag):
        def has():
            return any(isinstance(x, tuple) and x[1] == tag for _, it in self.dq for x in it)
        while has():
            assert self.dq[0][0] <= self.pos, (tag, self.pos, self.dq[0])
            self.put(self.dq.popleft()[1])
    def run(self, L, every=30):
        c = 0
        for cost, x in L:
            self.put([x]); c += cost
            if c >= every: c = 0; self.tick()
    def wread(self, N, hf):
        G = N // 20; ks = (N % 20) // 5; t = N % 5
        off = RING + (G % 5) * SLOT + ks * 5120 + hf * 2560 + 8 * t
        hi = off >= 51200
        s = A_RING + (N % D) * 4 + 2 * hf
        if G // 5 in self.o.get('fake', []):
            if hf == 0:
                off = RING + (G % 5) * SLOT + ks * 5120 + 1024 * t
                hi = off >= 51200
                self.p(f"ds_read_b128 a[{s}:{s+3}], v{226 + hi} offset:{off - 51200*hi}", ('F', N))
            return
        self.p(f"ds_read_b64_tr_b16 a[{s}:{s+1}], v{V_WT + hi} offset:{off - 51200*hi}", ('F', N))
    def group_sync(self, G):
        self.flush_dma(('W', G))
        self.p.wait(vm=[('W', G)])
        self.p("s_barrier")
    def xread(self, pu, k):
        ksub, rt = divmod(k, 2)
        if k == 0:
            self.flush_dma(('X', pu)); self.p.wait(vm=[('X', pu)])
        a = ((2 * pu + ksub) * 2 + rt) * 4
        self.p(f"ds_read_b128 {aq(a)}, v{V_XR+ksub} offset:{(pu % 3)*4096 + rt*2048}", ('XR', pu))
    def prime(self, ps, sync=True):
        if sync: self.group_sync(ps * 5)
        for n in range(D - 1):
            self.wread(ps * 100 + n, 0); self.wread(ps * 100 + n, 1)
    def gemm_pass(self, ps, accb, bop, fill=None, hooks=None, last=False, pace=None, sync=True, frange=(0, 100), hooks0=None):
        p = self.p
        fill = deque(fill or []); hooks = hooks or {}; hooks0 = hooks0 or {}
        N0 = ps * 100
        p.wait(lg=[('F', N0), ('XR', 0)])
        pace = pace or (lambda n: 0)
        for n in range(100):
            self.pos = N0 + n
            ks, t = divmod(n, 5)
            s = A_RING + ((N0 + n) % D) * 4
            M = n + D - 1
            look = M < 100 or not last
            a = acc(accb, t, 0)
            p(f"{MF} {vq(a)}, {aq(s)}, {bop(ks, 0)}, {'0' if ks == 0 else vq(a)}")
            k0 = len(p.ins)
            if n < 99:
                tg = [('F', N0 + n + 1)]
                if ps == 0 and (n + 1) % 10 == 0: tg.append(('XR', (n + 1) // 10))
                p.wait(lg=tg)
            if n in hooks0: self.put(hooks0[n])
            if look:
                if M % 20 == 0 and sync: self.group_sync((N0 + M) // 20)
                if len(p.ins) == k0: p("s_nop 0")
                self.wread(N0 + M, 0); self.wread(N0 + M, 1)
                if ps in self.o.get('fake', []) and fill and n >= frange[0] and not isinstance(fill[0][1], tuple): self.gap(fill, 1 if fill[0][0] < 2 or n % 2 else 2)
            elif fill and n >= frange[0]: self.gap(fill, 2)
            a = acc(accb, t, 1)
            p(f"{MF} {vq(a)}, {aq(s)}, {bop(ks, 1)}, {'0' if ks == 0 else vq(a)}")
            self.pos = N0 + n + 1
            self.stamp('n%d' % (N0 + n))
            did = 0
            for _ in range(pace(n)): did += self.tick()
            if n in hooks: self.put(hooks[n])
            if fill and n >= frange[0]:
                left = sum(c for c, _ in fill)
                gaps = sum(1 for k in range(n, frange[1]) if not pace(k)) + (min(D - 1, 99 - n) if last and frange[1] == 100 else 0)
                bud = 0 if did else 2
                if left > (3 if ps in self.o.get('fake', []) else 2) * gaps: bud += 2
                self.gap(fill, bud)
        while fill: self.put([fill.popleft()[1]])
        self.pos = N0 + 100
    def gap(self, fill, bud):
        first = True
        while fill:
            c, x = fill[0]
            solo = isinstance(x, tuple)
            if c > bud or (solo and not first): break
            fill.popleft(); self.put([x]); bud -= c
            if solo: break
            if c: first = False
    def cvt20(self, src, dst):
        return [(1, f"v_cvt_pk_bf16_f32 v{dst+i}, v{src+2*i}, v{src+2*i+1}") for i in range(10)]
    def phiA_parts(self, x, e, m, name, isq):
        P = {}
        kb = e + 28
        P['cvt'] = self.cvt20(x, kb) + [(1, f"v_mov_b32 v{kb+10}, 0"), (1, f"v_mov_b32 v{kb+11}, 0")]
        P['mf'] = [(2, f"{MF} {vq(x+4*t)}, {aq(A_PHI + (t*3+u)*4)}, {vq(kb+4*u)}, {'0' if u == 0 else vq(x+4*t)}") for t in range(5) for u in range(3)]
        P['exp'] = [(2, f"v_exp_f32 v{e+i}, v{x+i}") for i in range(20)] + [(2, f"v_exp_f32 v{e+20+i}, -v{x+i}") for i in range(20)]
        def sums():
            L = [f"v_pk_add_f32 v[{m+2*h}:{m+2*h+1}], v[{e+20*h}:{e+20*h+1}], v[{e+20*h+2}:{e+20*h+3}]" for h in range(2)]
            L += [f"v_pk_add_f32 v[{m+2*h}:{m+2*h+1}], v[{m+2*h}:{m+2*h+1}], v[{e+20*h+2*i}:{e+20*h+2*i+1}]" for i in range(2, 10) for h in range(2)]
            L += [f"v_add_f32 v{m+2*h}, v{m+2*h}, v{m+2*h+1}" for h in range(2)]
            return L
        nm = name + self.sfx
        L = sums() + [f"v_max_f32 v{m+1}, v{m}, v{m+2}", f"v_cmp_ngt_f32 vcc, 0x5d800000, v{m+1}"]
        if not isq: L.append(f"v_rcp_f32 v{m+4}, v{m}")
        L += [f"v_rcp_f32 v{m+2}, v{m+2}", [f"s_cbranch_vccnz {nm}_slow", f"{nm}_back:"]]
        o = Prog()
        o(f"{nm}_slow:")
        o(f"v_max3_f32 v{m}, v{x}, v{x+1}, v{x+2}"); o(f"v_min3_f32 v{m+1}, v{x}, v{x+1}, v{x+2}")
        for i in range(3, 19, 2):
            o(f"v_max3_f32 v{m}, v{m}, v{x+i}, v{x+i+1}"); o(f"v_min3_f32 v{m+1}, v{m+1}, v{x+i}, v{x+i+1}")
        o(f"v_max_f32 v{m}, v{m}, v{x+19}"); o(f"v_min_f32 v{m+1}, v{m+1}, v{x+19}")
        for i in range(20): o(f"v_sub_f32 v{e+i}, v{x+i}, v{m}"); o(f"v_sub_f32 v{e+20+i}, v{m+1}, v{x+i}")
        for i in range(40): o(f"v_exp_f32 v{e+i}, v{e+i}")
        for y in sums(): o(y)
        if not isq: o(f"v_rcp_f32 v{m+4}, v{m}")
        o(f"v_rcp_f32 v{m+2}, v{m+2}"); o("s_nop 1"); o(f"s_branch {nm}_back")
        self.ool.append(o.finalize())
        if isq: L.append(f"v_mul_f32 v{m+2}, v{m+2}, v{m}")
        else: L += [f"v_pk_mul_f32 v[{e+2*i}:{e+2*i+1}], v[{e+2*i}:{e+2*i+1}], v[{m+4}:{m+5}] op_sel_hi:[1,0]" for i in range(10)]
        L += [f"v_pk_mul_f32 v[{e+20+2*i}:{e+21+2*i}], v[{e+20+2*i}:{e+21+2*i}], v[{m+2}:{m+3}] op_sel_hi:[1,0]" for i in range(10)]
        P['norm'] = [(1, y) for y in L]
        P['out'] = [(1, f"v_cvt_pk_bf16_f32 v{x+i}, v{e+2*i}, v{e+2*i+1}") for i in range(20)]
        return P
    def weave(self, mf, va, per=2):
        va = deque(va); L = []
        for x in mf:
            L.append(x); b = per
            while va and va[0][0] <= b: b -= va[0][0]; L.append(va.popleft())
        return L + list(va)
    def phiB(self, x, e, packed):
        L = []
        if packed: L += [(1, f"v_pk_mul_f32 v[{e+2*i}:{e+2*i+1}], v[{x+2*i}:{x+2*i+1}], s[{S_L2E}:{S_NL2E}] op_sel_hi:[1,0]") for i in range(10)]
        else: L += [(1, f"v_mul_f32 v{e+i}, s{S_L2E}, v{x+i}") for i in range(20)]
        L += [(2, f"v_exp_f32 v{e+i}, v{e+i} clamp") for i in range(20)]
        L += [(1, f"v_max_f32 v{x+i}, {EPS}, v{x+i}") for i in range(20)]
        if packed: L += [(1, f"v_pk_add_f32 v[{e+2*i}:{e+2*i+1}], v[{e+2*i}:{e+2*i+1}], v[{x+2*i}:{x+2*i+1}]") for i in range(10)]
        else: L += [(1, f"v_add_f32 v{e+i}, v{e+i}, v{x+i}") for i in range(20)]
        L += self.cvt20(e, x)
        return L
    def checked(self, name, loads, check, tag):
        nm = name + self.sfx
        iss = [(x, tag) if x.startswith('buffer') else x for x in loads]
        chk = [(0, lambda: self.p.wait(vm=[tag]))] + [(1, x) for x in check] + [(1, [f"s_cbranch_vccnz {nm}_retry", f"{nm}_ok:"])]
        o = Prog()
        o(f"{nm}_retry:"); o(f"s_mov_b32 s{S_SPIN}, 0"); o(f"{nm}_loop:")
        if self.o.get('stamps'): o(f"s_add_u32 s95, s95, {dict(L_xc=1000000, L_h1=10000, L_h2=1000, L_pf=10000000, L_f0=1, L_f1=100, L_d0=0, L_d1=100000)[name]}")
        for x in loads: o(x)
        o("s_waitcnt vmcnt(0)")
        for x in check: o(x)
        o(f"s_cbranch_vccz {nm}_ok")
        o(f"s_add_u32 s{S_SPIN}, s{S_SPIN}, 1"); o(f"s_cmp_lt_u32 s{S_SPIN}, {SPIN_MAX}"); o(f"s_cbranch_scc1 {nm}_loop")
        o(f"s_branch {nm}_ok")
        self.ool.append(o.finalize())
        return iss, chk
    def body(self):
        p = self.p; A = self.A; F = self.F; br = 0 if A else 1; o = self.o
        t = TMP
        K = S_KA
        kx, kw, kout, kws = K, K + 2, K + 8, K + 10
        kphi, kwo = (K + 4, K + 6) if A else (None, K + 4)
        p.raw(f"""
        s_andn2_b32 s{T0}, 1, s2
        s_lshl_b32 s{T0}, s{T0}, 5
        s_load_dwordx8 s[{K}:{K+7}], s[0:1], s{T0}
        s_load_dwordx2 s[{kout}:{kout+1}], s[0:1], 56
        s_load_dwordx2 s[{kws}:{kws+1}], s[0:1], 72
        """)
        if o.get('stamps'): p("s_memtime s[96:97]"); p("s_mov_b32 s95, 0")
        if o.get('stamps') or o.get('amp'): p("s_memrealtime s[98:99]")
        p.raw(f"""
        s_getpc_b64 s[60:61]
        L_pc:
        s_bfe_u32 s{S_HG}, s2, 0x30003
        v_and_b32 v{V_LANE}, 63, v0
        v_lshrrev_b32 v{t}, 6, v0
        s_bitcmp0_b32 s2, 0
        s_cselect_b32 s{T1}, L_setupB-L_setupA, 0
        s_lshl_b32 s{T0}, s{S_HG}, 12
        v_lshlrev_b32 v{V_L128}, 7, v{V_LANE}
        v_readfirstlane_b32 s{S_W}, v{t}
        s_add_u32 s{T0}, s{T0}, s{T1}
        s_add_u32 s{T0}, s{T0}, L_setupA-L_pc
        s_add_u32 s60, s60, s{T0}
        s_addc_u32 s61, s61, 0
        v_lshl_add_u32 v{t+1}, v{t}, 10, v{V_L128}
        s_mov_b64 exec, 0xff
        """)
        p(f"global_load_dword v{V_DUMP}, v{t+1}, s[60:61]", 'cpf')
        p("s_mov_b64 exec, -1")
        ra, rbm, rdiv = o.get('rot', (10, 10, 4))
        p.raw(f"""
        s_and_b32 s{S_RB}, s2, 6
        s_lshl_b32 s{S_RB}, s{S_RB}, 1
        s_lshr_b32 s{T0}, s2, 6
        s_add_u32 s{S_RB}, s{S_RB}, s{T0}
        s_mul_i32 s{T0}, s{S_HG}, {ra}
        s_mul_i32 s{T1}, s{S_RB}, {rbm}
        s_add_u32 s{T0}, s{T0}, s{T1}
        s_lshr_b32 s{T0}, s{T0}, {rdiv.bit_length()-1}
        s_mul_i32 s{T1}, s{T0}, 6554
        s_lshr_b32 s{T1}, s{T1}, 16
        s_mul_i32 s{T1}, s{T1}, 10
        s_sub_u32 s{T3}, s{T0}, s{T1}
        s_lshl_b32 s{S_XU}, s{T3}, 7
        s_lshl_b32 s{T0}, s{S_RB}, 2
        s_add_u32 s{T0}, s{T0}, s{S_W}
        s_mul_i32 s{S_XBASE}, s{T0}, 40960
        s_mul_i32 s{S_LW}, s{S_W}, 5120
        s_mul_i32 s{S_LR}, s{S_W}, {RW}
        s_add_u32 s{S_LR}, s{S_LR}, {RBASE}
        v_lshrrev_b32 v{t}, 3, v{V_LANE}
        v_mul_u32_u24 v{t}, 1280, v{t}
        v_lshrrev_b32 v{t+1}, 4, v{V_LANE}
        v_xor_b32 v{t+1}, v{t+1}, v{V_LANE}
        v_and_b32 v{t+1}, 7, v{t+1}
        v_lshl_add_u32 v{V_XO}, v{t+1}, 4, v{t}
        v_xor_b32 v{t+2}, 64, v{V_XO}
        v_add_u32 v{V_XO+1}, {9216}, v{t+2}
        v_add_u32 v{V_XO+2}, {2*9216}, v{V_XO}
        v_add_u32 v{V_XO+3}, {3*9216}, v{t+2}
        s_lshr_b32 s{T0}, s{S_W}, 1
        s_add_u32 s{T0}, s{T0}, s{T3}
        s_and_b32 s{T1}, s{S_W}, 1
        s_mul_i32 s{T1}, s{T1}, {32*3840}
        s_mul_i32 s{T2}, s{S_HG}, 160
        s_add_u32 s{T1}, s{T1}, s{T2}
        s_mov_b32 s{SX+2}, 2621440
        s_mov_b32 s{SX+3}, 0x20000
        s_mov_b32 s{SW+2}, 2457600
        s_mov_b32 s{SW+3}, 0x20000
        """)
        def wrow(g):
            p.raw(f"""
            s_cmp_ge_u32 s{T0}, 10
            s_cselect_b32 s{T2}, 10, 0
            s_sub_u32 s{T0}, s{T0}, s{T2}
            s_mul_i32 s{T2}, s{T0}, {64*3840}
            s_add_u32 s{S_WROW+g}, s{T2}, s{T1}
            s_add_u32 s{T0}, s{T0}, 2
            """)
        wrow(0)
        RH = TMP + 10
        def woff(j):
            b = RH + 5 * j
            p.raw(f"""
            v_add_u32 v{t}, {64*j}, v{V_LANE}
            v_mul_u32_u24 v{b+4}, 6554, v{t}
            v_lshrrev_b32 v{b+4}, 16, v{b+4}
            v_mul_u32_u24 v{t+2}, 10, v{b+4}
            v_sub_u32 v{b+3}, v{t}, v{t+2}
            v_bfe_u32 v{b}, v{b+4}, 2, 2
            v_lshrrev_b32 v{b+1}, 4, v{b+4}
            v_and_b32 v{b+2}, 3, v{b+4}
            v_lshl_add_u32 v{t}, v{b}, 1, v{b+1}
            v_lshl_add_u32 v{t}, v{t}, 2, v{b+2}
            v_mul_u32_u24 v{t}, 3840, v{t}
            v_lshl_add_u32 v{V_WO+j}, v{b+3}, 4, v{t}
            """)
            if 0 < j < 4: p(f"v_subrev_u32 v{V_WO+j}, {1024*j}, v{V_WO+j}")
        if o.get('fake'):
            p.raw(f"""
            s_mul_i32 s94, s{S_HG}, 102400
            s_add_u32 s94, s94, s{S_LW}
            v_lshlrev_b32 v{V_LIN}, 4, v{V_LANE}
            v_mov_b32 v226, v{V_LIN}
            v_add_u32 v227, 51200, v{V_LIN}
            """)
        woff(0); woff(1)
        if o.get('pre0'): p("s_memtime s[92:93]")
        p.raw(f"""
        s_waitcnt lgkmcnt(0)
        s_mov_b32 s{SX}, s{kx}
        s_mov_b32 s{SX+1}, s{kx+1}
        s_mov_b32 s{SW}, s{kw}
        s_mov_b32 s{SW+1}, s{kw+1}
        """)
        self.stamp('p0')
        if o.get('pre0'): p(f"s_sub_u32 s{S_ST+self.nst}, s92, s96"); self.nst += 1
        self.put(self.dma_x(0))
        w0 = self.dma_w(0)
        self.put(w0[0:2]); woff(2); self.put(w0[2]); woff(3); self.put(w0[3]); woff(4); self.put(w0[4])
        self.stamp('p1')
        if o.get('prowait'):
            p.wait(vm=['cpf']); self.stamp('p2')
            p.wait(vm=[('X', 0)]); self.stamp('p3')
            p.wait(vm=[('W', 0)]); self.stamp('p4')
        p("s_bitcmp0_b32 s2, 0"); p("s_cbranch_scc1 L_setupB")
        p(".split")
        p(f"L_setup{self.sfx}:")
        p(f"s_load_dword s{S_NONCE}, s[{kws}:{kws+1}], {br*128}")
        if not A:
            p(f"s_load_dword s{S_UTAG}, s[{kws}:{kws+1}], 0")
            p(f"s_load_dwordx2 s[{K+6}:{K+7}], s[0:1], 24")
        for g in range(1, 5): wrow(g)
        self.q(0, self.dma_x(1))
        p.raw(f"""
        s_mov_b32 s{SWS}, s{kws}
        s_mov_b32 s{SWS+1}, s{kws+1}
        s_mov_b32 s{SWS+2}, {WS_SIZE}
        s_mov_b32 s{SWS+3}, 0x20000
        s_mov_b32 s{SOUT}, s{kout}
        s_mov_b32 s{SOUT+1}, s{kout+1}
        s_mov_b32 s{SOUT+2}, 5242880
        s_mov_b32 s{SOUT+3}, 0x20000
        s_lshl_b32 s{S_HEAD}, s{S_HG}, 2
        s_add_u32 s{S_HEAD}, s{S_HEAD}, s{S_W}
        v_lshlrev_b32 v{V_LIN}, 4, v{V_LANE}
        """)
        if A:
            p.raw(f"""
            s_mov_b32 s{SPHI}, s{kphi}
            s_mov_b32 s{SPHI+1}, s{kphi+1}
            s_mov_b32 s{SPHI+2}, 25600
            s_mov_b32 s{SPHI+3}, 0x20000
            """)
            self.q(0, [[f"s_mul_i32 s{S_WS}, s{S_HEAD}, 800",
                        (f"buffer_load_dwordx4 {vq(TMP+96)}, v{V_LIN}, {srd(SPHI)}, s{S_WS} offen", 'wphi')]])
        self.q(0, self.dma_w(1)); self.q(0, self.dma_x(2))
        G_, I_, R_, C_ = t, t + 1, t + 2, t + 3
        S = []
        def raw(txt):
            for l in txt.split('\n'):
                if l.strip(): S.append((1, l.strip()))
        raw(f"""
        v_lshrrev_b32 v{G_}, 4, v{V_LANE}
        v_and_b32 v{I_}, 15, v{V_LANE}
        v_bfe_u32 v{R_}, v{V_LANE}, 2, 2
        v_and_b32 v{C_}, 3, v{V_LANE}
        v_lshrrev_b32 v{t+4}, 1, v{I_}
        v_xor_b32 v{t+4}, v{t+4}, v{G_}
        v_lshlrev_b32 v{t+5}, 7, v{I_}
        v_lshl_add_u32 v{t+4}, v{t+4}, 4, v{t+5}
        v_add_u32 v{V_XR}, s{S_LR}, v{t+4}
        v_xor_b32 v{t+4}, 64, v{t+4}
        v_add_u32 v{V_XR+1}, s{S_LR}, v{t+4}
        v_lshrrev_b32 v{t+4}, 2, v{V_LANE}
        v_mul_u32_u24 v{t+5}, 160, v{t+4}
        v_mul_u32_u24 v{t+6}, 40, v{C_}
        v_add_u32 v{V_WT}, v{t+5}, v{t+6}
        v_add_u32 v{V_WT+1}, 51200, v{V_WT}
        v_mul_u32_u24 v{t+5}, 120, v{I_}
        v_mul_u32_u24 v{t+6}, 3840, v{G_}
        v_add3_u32 v{V_PW}, v{t+5}, v{t+6}, s{S_LR}
        v_mul_u32_u24 v{t+6}, 40, v{G_}
        v_mul_u32_u24 v{t+7}, {OUTS}, v{I_}
        s_mul_i32 s{T2}, s{S_W}, {32*OUTS}
        s_add_u32 s{T2}, s{T2}, {OUTL}
        v_add3_u32 v{V_OW}, v{t+7}, v{t+6}, s{T2}
        v_and_b32 v{t+5}, 7, v{t+4}
        v_lshrrev_b32 v{t+6}, 5, v{V_LANE}
        v_lshlrev_b32 v{t+6}, 1, v{t+6}
        v_lshl_add_u32 v{t+5}, v{t+5}, 2, v{t+6}
        v_mul_u32_u24 v{t+5}, 120, v{t+5}
        s_mul_i32 s{T0}, s{S_W}, 3840
        s_add_u32 s{T0}, s{T0}, {RBASE}
        v_add_u32 v{V_KA1}, s{T0}, v{t+5}
        v_lshl_add_u32 v{V_KB}, v{C_}, 3, v{V_KA1}
        s_mov_b32 s{S_L2E}, 0x3fb8aa3b
        s_mov_b32 s{S_NL2E}, 0xbfb8aa3b
        s_mov_b32 s{S_PERM}, 0x07060302
        s_and_b32 s{T3}, s{S_HG}, 1
        """)
        for j in range(5):
            b = RH + 5 * j
            if j < 3: raw(f"""
            v_mul_u32_u24 v{t+5}, {OUTS}, v{b+4}
            v_lshl_add_u32 v{t+5}, v{b+3}, 4, v{t+5}
            v_add_u32 v{V_ORD+j}, s{T2}, v{t+5}
            v_mul_u32_u24 v{t+5}, 2560, v{b+4}
            v_lshl_add_u32 v{V_OG+j}, v{b+3}, 4, v{t+5}
            """)
            if j == 2: raw(f"""
            v_lshrrev_b32 v{t+5}, 5, v{V_LANE}
            v_lshl_or_b32 v{V_OG+2}, v{t+5}, 30, v{V_OG+2}
            """)
        raw(f"""
        v_mov_b32 v{t+5}, 2304
        v_cmp_gt_u32 vcc, 16, v{V_LANE}
        v_mov_b32 v{t+6}, 1024
        v_cndmask_b32 v{t+5}, v{t+5}, v{t+6}, vcc
        v_add_u32 v{V_OO+1}, v{t+5}, v{V_LIN}
        v_mov_b32 v{V_OO}, v{V_LIN}
        v_add_u32 v{V_OO+2}, 40960, v{V_LIN}
        v_add_u32 v{V_OO+3}, 40960, v{V_OO+1}
        v_lshrrev_b32 v{t+4}, 5, v{V_LANE}
        v_mul_u32_u24 v{t+4}, {40960-512}, v{t+4}
        v_add_u32 v{t+5}, 3328, v{V_LIN}
        v_add_u32 v{V_OO+4}, v{t+4}, v{t+5}
        v_add_u32 v{V_LINH}, 51200, v{V_LIN}
        v_min_u32 v{V_PF}, 39, v{V_LANE}
        v_lshlrev_b32 v{V_PF}, 3, v{V_PF}
        v_and_b32 v{t+4}, 1, v{RH+4}
        v_mul_u32_u24 v{t+4}, 2560, v{t+4}
        v_lshrrev_b32 v{t+5}, 1, v{RH+4}
        v_mul_u32_u24 v{t+5}, 40960, v{t+5}
        v_lshlrev_b32 v{t+6}, 7, v{RH+3}
        v_add3_u32 v{V_L128}, v{t+4}, v{t+5}, v{t+6}
        """)
        raw(f"""
        s_lshl_b32 s{T0}, s{T3}, 1
        s_xor_b32 s{T0}, s{T0}, s{S_W}
        s_mul_i32 s{T0}, s{T0}, 5120
        s_mul_i32 s{T2}, s{S_HG}, 102400
        s_add_u32 s{T2}, s{T2}, {WS_PK + br*819200}
        s_add_u32 s{T0}, s{T0}, s{T2}
        s_lshr_b32 s{S_SPIN}, s{S_HG}, 1
        s_add_u32 s{T1}, s{S_SPIN}, s{S_W}
        s_and_b32 s{T1}, s{T1}, 3
        s_add_u32 s{T1}, s{T1}, 16
        s_mul_i32 s{T1}, s{T1}, 5120
        s_add_u32 s{S_WOROW+4}, s{T1}, s{T2}
        s_lshr_b32 s{S_PFL}, s{S_HG}, 2
        s_lshl_b32 s{S_PFL}, s{S_PFL}, 9
        s_add_u32 s{S_PFL}, s{S_PFL}, {WS_PF + br*1024}
        s_mul_i32 s{T2}, s{S_HG}, 160
        s_lshl_b32 s{S_OUT}, s{S_XBASE}, 1
        s_add_u32 s{S_OUT}, s{S_OUT}, s{T2}
        s_add_u32 s{S_OUT}, s{S_OUT}, {br*1280}
        s_lshl_b32 s{S_OB}, s{S_XBASE}, 1
        s_add_u32 s{S_OB}, s{S_OB}, {br*1280}
        """)
        for g in range(4):
            raw(f"""
            s_add_u32 s{T1}, s{S_SPIN}, {g}
            s_and_b32 s{T1}, s{T1}, 3
            s_mul_i32 s{T2}, s{T1}, 20480
            s_add_u32 s{S_WOROW+g}, s{T2}, s{T0}
            s_lshl_b32 s{T1}, s{T1}, 1
            s_add_u32 s{T1}, s{T1}, s{T3}
            s_mul_i32 s{T2}, s{T1}, 5120
            s_add_u32 s{S_OP+2*g}, s{T2}, s{S_OB}
            s_xor_b32 s{T1}, s{T1}, 1
            s_mul_i32 s{T2}, s{T1}, 5120
            s_add_u32 s{S_OP+2*g+1}, s{T2}, s{S_OB}
            """)
        SH = 8 if A else 7
        raw(f"""
        s_lshl_b32 s{T0}, s{S_RB}, 2
        s_add_u32 s{T0}, s{T0}, s{S_W}
        s_lshl_b32 s{S_FLAG}, s{T0}, 7
        s_add_u32 s{S_FLAG}, s{S_FLAG}, {WS_FLAG + br*64*128}
        s_lshl_b32 s{T0}, s{S_HEAD}, 16
        s_add_u32 s{T0}, s{T0}, {WS_P1 + br*32*65536}
        s_lshl_b32 s{T1}, s{S_RB}, 12
        s_add_u32 s{S_P1ST}, s{T0}, s{T1}
        s_min_u32 s{T1}, s{S_RB}, 14
        s_lshl_b32 s{T1}, s{T1}, {SH}
        s_add_u32 s{S_P1LD}, s{T0}, s{T1}
        s_lshl_b32 s{T0}, s{S_HEAD}, 12
        s_add_u32 s{S_P2LD}, s{T0}, {WS_P2 + br*32*4096}
        s_add_u32 s{S_P2ST}, s{S_P2LD}, s{T1}
        v_mul_u32_u24 v{t+4}, {F}, v{G_}
        v_add_lshl_u32 v{V_P1ST}, v{t+4}, v{I_}, 4
        v_cmp_gt_u32 vcc, 4, v{I_}
        v_cndmask_b32 v{V_KEEP}, 0, -1, vcc
        v_mov_b32 v{t+4}, 0x3f803f80
        v_cmp_eq_u32 vcc, 4, v{I_}
        v_cndmask_b32 v{V_ONE}, 0, v{t+4}, vcc
        v_and_b32 v{t+4}, 7, v{V_LANE}
        v_lshlrev_b32 v{V_F8}, 2, v{t+4}
        s_lshl_b32 s{T0}, s{S_HG}, 2
        v_min_u32 v{V_FOWN}, 1, v{V_LANE}
        v_lshlrev_b32 v{V_FOWN}, 30, v{V_FOWN}
        v_or_b32 v{V_FOWN}, s{T0}, v{V_FOWN}
        v_lshlrev_b32 v{V_ZA}, 3, v0
        v_add_u32 v{V_ZA}, {RBASE+7680}, v{V_ZA}
        """)
        if A:
            raw(f"""
            v_lshlrev_b32 v{t+5}, 12, v{G_}
            v_lshl_add_u32 v{V_P1LD}, v{I_}, 4, v{t+5}
            v_lshlrev_b32 v{V_P2ST}, 2, v{V_LANE}
            """)
        else:
            raw(f"""
            v_lshrrev_b32 v{t+5}, 3, v{V_LANE}
            v_lshlrev_b32 v{t+5}, 12, v{t+5}
            v_lshl_add_u32 v{V_P1LD}, v{t+4}, 4, v{t+5}
            v_lshl_add_u32 v{V_P2ST}, v{G_}, 5, v{V_F8}
            """)
        RS = 80 if A else 48
        HS = 24 * RS
        NQ = 240 if A else 120
        NI = 4 if A else 2
        raw(f"s_mul_i32 s{T0}, s{S_W}, {HS}\ns_add_u32 s{T0}, s{T0}, {RBASE}")
        u = t + 4
        for ii in range(NI):
            raw(f"v_add_u32 v{u}, {64*ii}, v{V_LANE}")
            if ii == NI - 1:
                raw(f"""v_subrev_u32 v{u+1}, 64, v{u}
                v_cmp_gt_u32 vcc, {NQ}, v{u}
                v_cndmask_b32 v{u}, v{u+1}, v{u}, vcc
                v_lshlrev_b32 v{V_GAL}, 4, v{u}""")
            if A:
                raw(f"""
                v_lshrrev_b32 v{u+1}, 4, v{u}
                v_and_b32 v{u+2}, 3, v{u}
                v_lshl_add_u32 v{u+1}, v{u+1}, 2, v{u+2}
                v_bfe_u32 v{u+2}, v{u}, 2, 2
                v_mul_u32_u24 v{u+3}, 6554, v{u+1}
                v_lshrrev_b32 v{u+3}, 16, v{u+3}
                v_mul_u32_u24 v{u+4}, 10, v{u+3}
                """)
            else:
                raw(f"""
                v_lshrrev_b32 v{u+1}, 3, v{u}
                v_and_b32 v{u+2}, 1, v{u}
                v_lshl_add_u32 v{u+1}, v{u+1}, 1, v{u+2}
                v_bfe_u32 v{u+2}, v{u}, 1, 2
                v_mul_u32_u24 v{u+3}, 13108, v{u+1}
                v_lshrrev_b32 v{u+3}, 16, v{u+3}
                v_mul_u32_u24 v{u+4}, 5, v{u+3}
                """)
            raw(f"""
            v_sub_u32 v{u+1}, v{u+1}, v{u+4}
            v_lshl_add_u32 v{u+3}, v{u+3}, 2, v{u+2}
            v_mul_u32_u24 v{u+3}, {RS}, v{u+3}
            v_lshl_add_u32 v{u+3}, v{u+1}, 3, v{u+3}
            v_add_u32 v{V_LA+ii}, s{T0}, v{u+3}
            """)
        raw(f"""
        v_cmp_eq_u32 vcc, v{G_}, v{R_}
        v_mul_u32_u24 v{u}, {HS}, v{G_}
        v_mul_u32_u24 v{u+1}, {RS}, v{C_}
        v_add_u32 v{u}, v{u}, v{u+1}
        v_add_u32 v{u}, {RBASE}, v{u}
        v_mov_b32 v{u+1}, {RBASE+7680}
        v_cndmask_b32 v{V_FR2}, v{u+1}, v{u}, vcc
        """)
        if A:
            raw(f"""
            v_mov_b32 v{t+8}, 0
            v_mov_b32 v{t+9}, 0
            v_mov_b32 v{t+10}, 0
            v_mov_b32 v{t+11}, 0
            v_add_u32 v{TMP+100}, s{S_LR}, v{V_LIN}
            ds_write_b128 v{TMP+100}, {vq(t+8)} offset:13312
            v_mul_u32_u24 v{t+4}, {RW}, v{G_}
            v_mul_u32_u24 v{t+5}, 40, v{R_}
            v_add_u32 v{t+4}, v{t+4}, v{t+5}
            v_add_u32 v{t+4}, {RBASE+12288}, v{t+4}
            s_add_u32 s{T0}, s{S_LR}, 13312
            v_mov_b32 v{t+5}, s{T0}
            v_cmp_eq_u32 vcc, v{C_}, v{G_}
            v_cndmask_b32 v{V_FR}, v{t+5}, v{t+4}, vcc
            """)
            for tt in range(5):
                a = A_PHI + (tt * 3 + 2) * 4
                raw(f"v_accvgpr_write_b32 a{a+2}, 0\nv_accvgpr_write_b32 a{a+3}, 0")
        US, UA, UD = TMP + 40, TMP + 45, TMP + 55
        if not A:
            S.append((1, [x.strip() for x in f"""
            s_lshl_b32 s{T0}, s{S_W}, 3
            s_add_u32 s{T0}, s{T0}, s{S_HG}
            s_lshl_b32 s{T0}, s{T0}, 4
            s_add_u32 s{T0}, s{T0}, s{S_RB}
            s_waitcnt lgkmcnt(0)
            s_cmp_lt_u32 s{T0}, 160
            s_cselect_b32 s{SWO}, s{K+6}, s{kwo}
            s_cselect_b32 s{SWO+1}, s{K+7}, s{kwo+1}
            s_cselect_b32 s{S_UTAG}, s{S_UTAG}, s{S_NONCE}
            s_cselect_b32 s{T1}, 0, 160
            s_cselect_b32 s{S_UDST}, 0, 819200
            s_cselect_b32 s{S_UFL}, 0, 1024
            s_mov_b32 s{SWO+2}, 819200
            s_mov_b32 s{SWO+3}, 0x20000
            s_add_u32 s{S_UTAG}, s{S_UTAG}, 0x9e3779b1
            s_sub_u32 s{T0}, s{T0}, s{T1}
            s_and_b32 s{T1}, s{T0}, 1
            s_mul_i32 s{S_USRC}, s{T1}, 640
            s_mul_i32 s{T2}, s{T1}, 409600
            s_add_u32 s{S_UDST}, s{S_UDST}, s{T2}
            s_lshl_b32 s{T2}, s{T1}, 9
            s_add_u32 s{S_UFL}, s{S_UFL}, s{T2}
            s_lshr_b32 s{T1}, s{T0}, 1
            s_lshl_b32 s{T2}, s{T1}, 2
            s_add_u32 s{S_UFL}, s{S_UFL}, s{T2}
            s_add_u32 s{S_UFL}, s{S_UFL}, {WS_PF}
            s_and_b32 s{T1}, s{T1}, 3
            s_mul_i32 s{T2}, s{T1}, {20*1280}
            s_add_u32 s{S_USRC}, s{S_USRC}, s{T2}
            s_lshl_b32 s{T2}, s{T1}, 8
            s_add_u32 s{S_UDST}, s{S_UDST}, s{T2}
            s_lshr_b32 s{T1}, s{T0}, 3
            s_mul_i32 s{T2}, s{T1}, 5120
            s_add_u32 s{S_UDST}, s{S_UDST}, s{T2}
            s_add_u32 s{S_UDST}, s{S_UDST}, {WS_PK}
            s_lshr_b32 s{T2}, s{T1}, 1
            s_mul_i32 s{T2}, s{T2}, 80
            s_and_b32 s{T3}, s{T1}, 1
            s_lshl_b32 s{T3}, s{T3}, 3
            s_add_u32 s{T2}, s{T2}, s{T3}
            s_mul_i32 s{T3}, s{T1}, 160
            s_sub_u32 s{T3}, s{T3}, {16*160 - 16}
            s_cmp_ge_u32 s{T1}, 16
            s_cselect_b32 s{T2}, s{T3}, s{T2}
            s_cselect_b32 s{T3}, 1, 0
            s_mul_i32 s{T2}, s{T2}, 1280
            s_add_u32 s{S_USRC}, s{S_USRC}, s{T2}
            s_cmp_ge_u32 s{T0}, 160
            s_cselect_b32 s{S_USRC}, 0x1000000, s{S_USRC}
            s_cselect_b32 s{S_UDST}, {WS_SIZE}, s{S_UDST}
            s_cselect_b32 s{S_UFL}, {WS_SIZE}, s{S_UFL}
            s_mul_i32 s{T1}, s{T3}, {76*1280}
            s_add_u32 s{T2}, s{S_LW}, {RING + 4*SLOT}
            """.split('\n') if x.strip()]))
            for j in range(5):
                raw(f"""
                v_lshrrev_b32 v{t+4}, 2, v{RH+5*j+4}
                v_mul_u32_u24 v{t+5}, 640, v{t+4}
                v_lshrrev_b32 v{t+4}, 2, v{t+4}
                v_mul_u32_u24 v{t+4}, s{T1}, v{t+4}
                v_add3_u32 v{US+j}, v{t+4}, v{t+5}, v{V_LIN}
                """)
            raw(f"v_add_u32 v{US+4}, 4096, v{US+4}")
            raw(f"""
            v_mul_u32_u24 v{t+7}, 640, v{R_}
            v_mul_u32_u24 v{t+8}, 40, v{C_}
            v_add3_u32 v{t+7}, v{t+7}, v{t+8}, s{T2}
            """)
            for j in range(5):
                raw(f"""
                v_add_u32 v{t+4}, {4*j}, v{G_}
                v_mul_u32_u24 v{t+5}, 13108, v{t+4}
                v_lshrrev_b32 v{t+5}, 16, v{t+5}
                v_mul_u32_u24 v{t+6}, 120, v{t+5}
                v_lshl_add_u32 v{t+6}, v{t+4}, 3, v{t+6}
                v_add_u32 v{t+6}, v{t+6}, v{t+7}
                v_and_b32 v{t+8}, s{T3}, v{t+5}
                v_mul_u32_u24 v{t+8}, 2560, v{t+8}
                v_add_u32 v{UA+2*j}, v{t+6}, v{t+8}
                v_sub_u32 v{t+6}, v{t+6}, v{t+8}
                v_add_u32 v{UA+2*j+1}, 2560, v{t+6}
                v_mul_u32_u24 v{t+5}, {102400 - 5120}, v{t+5}
                v_lshl_add_u32 v{t+5}, v{t+4}, 10, v{t+5}
                v_lshl_add_u32 v{UD+j}, v{I_}, 4, v{t+5}
                """)
            un = []
            for j in range(5):
                off = f"offset:{j*1024} " if 0 < j < 4 else ""
                L = ([f"s_add_u32 m0, s{S_LW}, {RING + 4*SLOT}", "s_nop 0"] if j == 0 else []) + [(f"buffer_load_dwordx4 v{US+j}, {srd(SWO)}, s{S_USRC} offen {off}lds", 'U')]
                if j == 3: L.append(f"s_add_u32 m0, s{S_LW}, {RING + 4*SLOT + 4096}")
                un.append(L)
            if o.get('uissue', 0) == 0: self.q(10**6 + 77, un)
        self.run(S, every=o.get('proev', 60))
        self.stamp('p5')
        if o.get('uissue', 0) == 0: self.release(77)
        if o.get('hops', 1):
            p("s_mov_b64 exec, 0")
            for w_ in range(3): p(f"s_cmp_eq_u32 s{S_W}, {w_}"); p(f"s_cbranch_scc1 L_hop{w_}{self.sfx}")
            p(f"s_branch L_hop3{self.sfx}")
            p(f"L_hopret{self.sfx}:")
            p("s_mov_b64 exec, -1")
        while self.tick(): pass
        p.raw(f"""
        s_getreg_b32 s{T0}, hwreg(HW_REG_XCC_ID, 0, 4)
        s_waitcnt lgkmcnt(0)
        s_add_u32 s{S_NONCE}, s{S_NONCE}, 0x9e3779b1
        s_lshl_b32 s{T0}, s{T0}, 28
        s_xor_b32 s{S_XCCV}, s{T0}, s{S_NONCE}
        v_mov_b32 v{V_NONCE}, s{S_NONCE}
        v_mov_b32 v{t}, s{S_XCCV}
        s_add_u32 s{T0}, s{S_FLAG}, {WS_XCC - WS_FLAG}
        s_mov_b64 exec, 1
        """)
        p(f"buffer_store_dword v{t}, v{V_FOWN}, {srd(SWS)}, s{T0} offen sc1", 'xcc')
        p("s_mov_b64 exec, -1")
        self.stamp()
        p(f"s_branch L_main{self.sfx}")
        p(".p2align 12")
        p(f"L_main{self.sfx}:")
        xb = lambda ks, rt: aq((ks * 2 + rt) * 4)
        xbp = lambda ps: (lambda ks, rt: xb(4 * (4 - ks // 4) + ks % 4, rt)) if ps in o.get('rev', [1, 2]) else xb
        for pu in range(0, 7):
            if (pu + 3) % 2 == 0: self.q(0, self.dma_w((pu + 3) // 2))
            self.q(10 * pu, self.dma_x(pu + 3))
            if not A and o.get('uissue', 0) == pu + 1: self.q(0, un)
        for G in range(5, 10): self.q(10**6 + 1 if G % 5 >= 3 else 20 * (G - 3) - 4, self.dma_w(G))
        for G in range(10, 20): self.q(10**6 + G, self.dma_w(G))
        hooks = {}
        for pu in range(1, 10):
            hooks[10 * pu - 5] = [lambda pu=pu: self.xread(pu, 0), lambda pu=pu: self.xread(pu, 1)]
            hooks[10 * pu - 4] = [lambda pu=pu: self.xread(pu, 2), lambda pu=pu: self.xread(pu, 3)]
        if A:
            rd = [(tt, u_, hf) for tt in range(5) for u_ in range(3) for hf in range(2 if u_ < 2 else 1)]
            w = TMP + 96; u2 = TMP + 102
            sc = [lambda: p.wait(vm=['wphi'])]
            for j in range(4):
                sc += [f"v_lshlrev_b32 v{u2}, 16, v{w+j}", f"v_and_b32 v{u2+1}, 0xffff0000, v{w+j}", f"v_mul_f32 v{u2}, s{S_L2E}, v{u2}",
                       f"v_mul_f32 v{u2+1}, s{S_L2E}, v{u2+1}", f"v_cvt_pk_bf16_f32 v{w+j}, v{u2}, v{u2+1}"]
            hooks[8] = sc + [(f"ds_write_b128 v{TMP+100}, {vq(w)} offset:12288", 'phw')]
            hooks[14] = [lambda: p.wait(lg=['phw'])]
            slots = [n for n in range(21, 90) if n % 10 in (0, 1, 2, 3)][:25]
            for k, n in enumerate(slots):
                hooks[n] = [(f"ds_read_b64_tr_b16 a[{A_PHI + (tt*3+u_)*4 + 2*hf}:{A_PHI + (tt*3+u_)*4 + 2*hf + 1}], v{V_FR} offset:{(8*u_+4*hf)*40 + 8*tt}", 'phi')
                            for tt, u_, hf in rd[k:k+1]]
        if not A:
            UR = TMP + 60
            u1, u2_, u3 = o.get('upos', (18, 22, 62))
            hooks[u1] = [lambda: p.wait(vm=['U'], lg='*')] + [(f"ds_read_b64_tr_b16 {vq(UR+2*k, 2)}, v{UA+k}", 'UR') for k in range(10)]
            for j in range(5): hooks.setdefault(u2_ + o.get('ustep', 1) * j, []).extend([lambda: p.wait(lg=['UR']), (f"buffer_store_dwordx4 {vq(UR+4*j)}, v{UD+j}, {srd(SWS)}, s{S_UDST} offen sc1", 'US')])
            late3 = {}
            (hooks if u3 < 100 else late3).setdefault(u3 % 100, []).extend([lambda: p.wait(vm=['US']), f"v_mov_b32 v{UR}, s{S_UTAG}", "s_mov_b64 exec, 1",
                         (f"buffer_store_dword v{UR}, v{V_LIN}, {srd(SWS)}, s{S_UFL} offen sc1", 'UF'), "s_mov_b64 exec, -1"])
        XV = TMP + 92
        iss, chk = self.checked("L_xc", ["s_mov_b64 exec, 0xff", f"s_add_u32 s{T0}, s{S_FLAG}, {WS_XCC - WS_FLAG}",
                                         f"buffer_load_dword v{XV}, v{V_F8}, {srd(SWS)}, s{T0} offen sc1", "s_mov_b64 exec, -1"],
                                [f"v_xor_b32 v{XV+1}, s{S_NONCE}, v{XV}", f"v_lshlrev_b32 v{XV+1}, 4, v{XV+1}",
                                 "s_mov_b64 exec, 0xff", f"v_cmp_ne_u32 vcc, 0, v{XV+1}", "s_mov_b64 exec, -1"], 'xl')
        hooks[58] = iss
        hooks[88] = [x for _, x in chk] + ["s_mov_b64 exec, 0xff", f"v_cmp_ne_u32 vcc, s{S_XCCV}, v{XV}", "s_mov_b64 exec, -1",
                                                     f"s_mov_b32 s{S_FAST}, vcc_lo"]
        if o.get('nofast'): hooks[88].append(f"s_mov_b32 s{S_FAST}, 1")
        hooks[92] = [f"s_add_u32 s{T0}, s{SWS}, {WS_O}", f"s_addc_u32 s{T1}, s{SWS+1}, 0", f"s_cmp_eq_u32 s{S_FAST}, {0 if o.get('alias', 1) else -1}",
                     f"s_cselect_b32 s{SO}, s{SOUT}, s{T0}", f"s_cselect_b32 s{SO+1}, s{SOUT+1}, s{T1}", f"s_mov_b32 s{SO+2}, 5242880", f"s_mov_b32 s{SO+3}, 0x20000"]
        self.group_sync(0)
        for k in range(4): self.xread(0, k)
        self.prime(0, sync=False)
        kp = o.get('kpace', 3)
        self.gemm_pass(0, ACC_K, xb, hooks=hooks, last=True, pace=lambda n: (1 if n % 3 != 2 else 0) if n < 69 else (1 if n % kp == 0 else 0))
        p("s_barrier")
        self.stamp()
        E0, E1, M0_, M1_ = TMP, TMP + 40, TMP + 80, TMP + 86
        x0, x1 = acc(ACC_K, 0, 0), acc(ACC_K, 0, 1)
        self.release(1)
        if o.get('amp'):
            p.raw(f"""
            s_load_dwordx2 s[88:89], s[0:1], 64
            s_not_b32 s{T0}, s98
            v_mov_b32 v{TMP+94}, 0
            v_mov_b32 v{TMP+95}, s{T0}
            s_lshr_b32 s{T0}, s2, 3
            s_or_b32 s{T0}, s{T0}, s{S_W}
            s_cmp_eq_u32 s{T0}, 0
            s_cselect_b32 s{T0}, 0, 64
            v_mov_b32 v{TMP+94}, s{T0}
            s_waitcnt lgkmcnt(0)
            s_cbranch_scc0 L_noat{self.sfx}
            s_mov_b64 exec, 1
            """)
            p.ins.append(__import__('emit').Ins(f"global_atomic_umax v{TMP+94}, v{TMP+95}, s[88:89] sc1"))
            p("s_mov_b64 exec, -1")
            p(f"L_noat{self.sfx}:")
        wr = lambda rt, x, n, o8: [(2, (f"ds_write_b64 v{V_PW}, {vq(x+2*j, 2)} offset:{rt*1920 + o8 + 8*j}", 'pw')) for j in range(n)]
        def mixw(out, w): return [y for j in range(len(w)) for y in out[2*j:2*j+2] + [w[j]]]
        burst = lambda L: [(0, [x for _, x in L])]
        dm = (2, lambda: self.tick())
        if A:
            P0 = self.phiA_parts(x0, E0, M0_, "L_k0", False); P1 = self.phiA_parts(x1, E1, M1_, "L_k1", False)
            pr = [(0, lambda: self.group_sync(5 if o.get('vsync', 0) else 6))] + [(1, lambda n=n, hf=hf: self.wread(100 + n, hf)) for n in range(D - 1) for hf in range(2)]
            hx = o.get('hx', 0)
            if hx == 0:
                self.put([x for _, x in [dm] + P0['cvt'] + self.weave(P0['mf'], [dm] + P1['cvt'] + [dm] + P0['exp'][:4]) + self.weave(P1['mf'], [dm] + P0['exp'][4:12] + [dm] + pr)])
                f0 = P0['exp'][12:] + burst(P0['norm'])
            else:
                self.put([x for _, x in [dm] + P0['cvt'] + self.weave(P0['mf'], [dm] + P1['cvt'] + P0['exp'][:7] + [dm]) + self.weave(P1['mf'], P0['exp'][7:14] + [dm] + P0['exp'][14:21])])
                self.run(P0['exp'][21:] + P0['norm'][:-10], every=hx)
                self.put([x for _, x in pr + P0['norm'][-10:]])
                f0 = []
            fill = f0 + mixw(P0['out'], wr(0, x0, 10, 0)) + P1['exp'] + burst(P1['norm']) + mixw(P1['out'], wr(1, x1, 10, 0))
            self.stamp('head')
        else:
            fill = []
            for rt, x, e in ((0, x0, E0), (1, x1, E1)):
                L = self.phiB(x, e, False)
                fill += L[:-10] + mixw(L[-10:], wr(rt, x, 5, 0))
            self.group_sync(5 if o.get('vsync', 0) else 6); self.prime(1, sync=False)
        hooks = {}
        if not A: hooks.update(late3)
        PFV = TMP + 94
        ipf, cpf_ = self.checked("L_pf", [f"buffer_load_dwordx2 {vq(PFV, 2)}, v{V_PF}, {srd(SWS)}, s{S_PFL} offen sc1"],
                                 [f"v_xor_b32 v{PFV}, s{S_NONCE}, v{PFV}", f"v_bitop3_b32 v{PFV}, v{PFV}, v{PFV+1}, s{S_NONCE} bitop3:0xf6", f"v_cmp_ne_u32 vcc, 0, v{PFV}"], 'pf')
        hooks.setdefault(o.get('pfpos', 81), []).extend(ipf)
        pre = ["s_mov_b32 exec_hi, 0xff", (f"buffer_load_dword v{V_DUMP}, v{V_L128}, {srd(SO)}, s{S_OP} offen sc1", 'pr'), "s_mov_b64 exec, 1",
               (f"buffer_load_dword v{V_DUMP}, v{V_F8}, {srd(SWS)}, s{S_FLAG} offen sc1", 'pr'), "s_mov_b64 exec, -1"]
        wp, pp_ = o.get('wopf', -1), o.get('prepos', 0)
        if 100 <= pp_ < 200: hooks.setdefault(pp_ - 100, []).extend(pre)
        vs = o.get('vsync', 0)
        for g in range(4): hooks.setdefault(20 * g + 18, []).extend(["s_barrier" if vs else (lambda g=g: self.group_sync(7 + g)), lambda g=g: self.release(10 + g)])
        vp = o.get('vpace', 4)
        self.gemm_pass(1, ACC_V, xbp(1), fill=fill, hooks=hooks, last=True, sync=bool(vs), pace=lambda n: 1 if n % vp == 0 else 0)
        self.stamp()
        VB = TMP
        for rt in range(2):
            c = self.cvt20(acc(ACC_V, 0, rt), VB + 10 * rt)
            for j in range(5):
                p(c[2*j][1]); p(c[2*j+1][1])
                p(f"ds_write_b64 v{V_PW}, {vq(VB+10*rt+2*j, 2)} offset:{rt*1920 + 80 + 8*j}", 'vw')
                if j == 4 and rt == 0: self.tick()
        self.tick()
        p.wait(lg='*')
        self.stamp('kv0')
        self.flush_dma(('W', 11)); p.wait(vm=[('W', 11)])
        self.stamp('kv1')
        p("s_barrier")
        self.stamp('kv2')
        self.release(14)
        NT = 3 if A else 2
        FB = ACC_K
        KV = TMP + 64
        rds = deque()
        def rd(reg, av, off, kk, j):
            for hf in range(2): rds.append((f"ds_read_b64_tr_b16 {vq(reg+2*hf, 2)}, v{av} offset:{kk*RW + hf*120 + off}", ('kv', kk, j)))
        for kk in range(4):
            b = FB + kk * 20
            rd(b, V_KB, 80, kk, 'a')
            for nt in range(NT): rd(b + 8 + 4 * nt, V_KB, 32 * nt, kk, nt)
        for kk in range(4): rd(FB + kk * 20 + 4, V_KA1, 112, kk, 'z')
        def more(k):
            while k > 0 and rds and len(p.lgq) < 15: self.put([rds.popleft()]); k -= 1
        p(f"v_mov_b32 v{TMP+1}, 0xff")
        more(15); self.tick()
        seq = [(kk, nt) for kk in range(4) for nt in range(NT)]
        p.wait(lg=[('kv',) + seq[0]])
        for i_, (kk, nt) in enumerate(seq):
            b = FB + kk * 20
            p(f"{MF} {vq(KV + nt*4)}, {vq(b)}, {vq(b+8+4*nt)}, {'0' if kk == 0 else vq(KV + nt*4)}")
            if i_ + 1 < len(seq): p.wait(lg=[('kv',) + seq[i_ + 1]])
            more(3)
            if i_ % 6 == 5: self.tick()
        assert not rds
        lastm = 0x00ff00ff if A else 0x000f000f
        def pub(mt, nt):
            a = KV + (mt * 3 + nt) * 4
            lo = lastm if nt == NT - 1 else 0xffffffff
            hi = lo if mt == 0 else 0
            L = [(1, f"v_bfi_b32 v{a+j}, v{TMP+1}, s{S_NONCE}, v{a+j}") for j in range(4)]
            st = (f"buffer_store_dwordx4 {vq(a)}, v{V_P1ST}, {srd(SWS)}, s{S_P1ST} offen offset:{(4*mt*F + 16*nt)*16} sc1", 'p1')
            if (lo, hi) == (0xffffffff, 0xffffffff): return L + [(2, st)]
            return L + [(2, [f"s_mov_b32 exec_lo, {hex(lo)}", f"s_mov_b32 exec_hi, {hex(hi)}", st, "s_mov_b64 exec, -1"])]
        p.wait(lg='*')
        self.stamp('kv3')
        for kk in range(4):
            for j in range(4): p(f"v_and_or_b32 v{FB+kk*20+4+j}, v{FB+kk*20+4+j}, v{V_KEEP}, v{V_ONE}")
        mf = [(2, f"{MF} {vq(KV + (3+nt)*4)}, {vq(FB+kk*20+4)}, {vq(FB+kk*20+8+4*nt)}, {'0' if kk == 0 else vq(KV + (3+nt)*4)}") for nt in range(NT) for kk in range(4)]
        pr = [(1, lambda n=n, hf=hf: self.wread(200 + n, hf)) for n in range(D - 1) for hf in range(2)]
        self.put([x for _, x in self.weave(mf, [y for nt in range(NT) for y in pub(0, nt)] + pr)])
        qhead = [y for nt in range(NT) for y in pub(1, nt)]
        self.stamp()
        X = TMP + 8; CK = TMP + 2
        def tagcheck(mask):
            return [f"v_xor_b32 v{CK}, s{S_NONCE}, v{X}"] + [f"v_bitop3_b32 v{CK}, v{CK}, v{X+j}, s{S_NONCE} bitop3:0xf6" for j in range(1, 4 * NI)] + \
                   [f"v_and_b32 v{CK}, {mask}, v{CK}", f"v_cmp_ne_u32 vcc, 0, v{CK}"]
        lds_ = []
        for ii in range(NI):
            lds_ += [f"s_add_u32 s{T0}, s{S_P1LD}, {ii * (65536 // NI)}", f"buffer_load_dwordx4 {vq(X+4*ii)}, v{V_P1LD}, {srd(SWS)}, s{T0} offen sc1"]
        iss, chk = self.checked("L_h1", lds_, tagcheck("0xff"), 'h1')
        red = [f"v_add_f32 v{X+j}, v{X+j}, v{X+4*ii+j}" for ii in range(1, NI) for j in range(4)]
        red += [f"v_permlane32_swap_b32 v{X}, v{X+2}", f"v_permlane32_swap_b32 v{X+1}, v{X+3}", f"v_add_f32 v{X}, v{X}, v{X+2}", f"v_add_f32 v{X+1}, v{X+1}, v{X+3}",
                f"v_mov_b32 v{CK}, 0xffff", f"v_permlane16_swap_b32 v{X}, v{X+1}", f"v_add_f32 v{X}, v{X}, v{X+1}"]
        if not A: red.append(f"v_add_f32_dpp v{X}, v{X}, v{X} row_ror:8 row_mask:0xf bank_mask:0xf")
        red += [f"v_cvt_pk_bf16_f32 v{X}, v{X}, v{X}", f"v_bfi_b32 v{X}, v{CK}, s{S_NONCE}, v{X}"]
        st = (f"buffer_store_dword v{X}, v{V_P2ST}, {srd(SWS)}, s{S_P2ST} offen sc1", 'p2')
        red.append([st] if A else ["s_mov_b32 exec_lo, 0x00ff00ff", "s_mov_b32 exec_hi, 0x00ff00ff", st, "s_mov_b64 exec, -1"])
        n1, n2 = o.get('h1', (62, 84))
        hooks = {n1 + k: iss[2*k:2*k+2] for k in range(NI)}
        hooks.setdefault(14, []).extend([x for _, x in cpf_])
        if 200 <= pp_ < 300: hooks.setdefault(pp_ - 200, []).extend(pre)
        qh = deque(qhead)
        for n in range(12): hooks[n] = [lambda: self.gap(qh, 2)]
        for g in range(4): hooks.setdefault(20 * g + 18, []).extend([lambda g=g: self.group_sync(min(12 + g, 14)), lambda g=g: self.release(15 + g)])
        self.gemm_pass(2, ACC_K, xbp(2), fill=chk + [(1, x) for x in red], hooks=hooks, last=True, sync=False, frange=(n2, min(100, n2 + 16)),
                       pace=lambda n: 1 if (n >= 9 and n % (3 if n < o.get('qsw', 24) else o.get('qpace', 5)) == 0 and not n1 <= n < n1 + NI) else 0)
        assert not qh
        p("s_barrier")
        self.release(19)
        self.stamp()
        X = TMP + 96; CK = TMP + 92
        lds_ = [f"buffer_load_dwordx4 {vq(X+4*ii)}, v{V_LIN if ii < NI-1 else V_GAL}, {srd(SWS)}, s{S_P2LD} offen offset:{1024*ii if ii < NI-1 else 0} sc1" for ii in range(NI)]
        iss, chk = self.checked("L_h2", lds_, tagcheck("0xffff"), 'h2')
        zw = [f"v_mov_b32 v{CK}, 0", f"v_mov_b32 v{CK+1}, 0", f"ds_write_b64 v{V_ZA}, {vq(CK, 2)}"]
        self.put(zw)
        for k_ in range(o.get('dirty', 0)):
            p(f"s_add_u32 s{T0}, s{S_OP}, {(9 << 20) + (k_ // 5) * (6 << 20) + (k_ % 5) * 1024}")
            p(f"buffer_store_dwordx4 v[2:5], v{V_LIN}, {srd(SWS)}, s{T0} offen {o.get('dirtyf', '')}")
        if o.get('prepos', 0) == 1: self.put(pre)
        if not A:
            for tt in range(6): p(f"v_accvgpr_write_b32 a{40+4*(3*tt+2)+2}, 0"); p(f"v_accvgpr_write_b32 a{40+4*(3*tt+2)+3}, 0")
        if A:
            P0 = self.phiA_parts(x0, E0, M0_, "L_q0", True); P1 = self.phiA_parts(x1, E1, M1_, "L_q1", True)
            L = P0['cvt'] + self.weave(P0['mf'], P1['cvt'] + P0['exp'][:6]) + self.weave(P1['mf'], P0['exp'][6:]) + P0['norm'] + P0['out'] + P1['exp'] + P1['norm'] + P1['out']
        else:
            L = []
            for x, e in ((x0, E0), (x1, E1)):
                L += self.phiB(x, e, True) + [(1, f"v_mov_b32 v{x+10}, 0"), (1, f"v_mov_b32 v{x+11}, 0")]
        tot = sum(c for c, _ in L); cut = tot - o.get('h2lead', 60)
        c = 0; k = 0
        while k < len(L) and c < cut: c += L[k][0]; k += 1
        self.run(L[:k], every=o.get('qev', 44))
        self.stamp('q0')
        self.flush_dma(('W', 17))
        self.stamp('q1')
        self.put(iss)
        if o.get('prepos', 0) == 0: self.put(pre)
        self.stamp('q2')
        self.run(L[k:], every=o.get('qev', 44))
        self.stamp()
        self.put([x for _, x in chk])
        for ii in range(NI):
            p(f"v_perm_b32 v{X+4*ii}, v{X+4*ii+1}, v{X+4*ii}, s{S_PERM}")
            p(f"v_perm_b32 v{X+4*ii+1}, v{X+4*ii+3}, v{X+4*ii+2}, s{S_PERM}")
            p(f"ds_write_b64 v{V_LA+ii}, {vq(X+4*ii, 2)}", 'kvw')
        p.wait(lg='*')
        p("s_barrier")
        self.stamp()
        OA = ACC_V
        NU = 5 if A else 3
        SP = TMP + 112
        if A: p(f"v_mov_b32 v{SP}, v{M0_}"); p(f"v_mov_b32 v{SP+1}, v{M1_}")
        OB = TMP + 64
        LO = TMP + 80
        fr = [(tt, u_) for tt in (5, 0, 1, 2, 3, 4) for u_ in range(NU)]
        AO = 40
        rds = deque()
        for n, (tt, u_) in enumerate(fr):
            if not A and u_ == 2: rds.append((f"ds_read_b64 {aq(AO+4*n, 2)}, v{V_FR2} offset:{4*tt*RS + 16*u_}", ('of', n)))
            else: rds.append((f"ds_read_b128 {aq(AO+4*n)}, v{V_FR2} offset:{4*tt*RS + 16*u_}", ('of', n)))
        more(10)
        def ost(txt, tag='o'):
            k = len(self.ool)
            p(f"s_cmp_eq_u32 s{S_FAST}, 0")
            p(f"s_cbranch_scc0 L_os{k}{self.sfx}"); p(txt, tag); p(f"L_or{k}{self.sfx}:")
            self.ool.append(f"L_os{k}{self.sfx}:\n    {txt} sc1\n    s_branch L_or{k}{self.sfx}\n")
        def flag(k): ost(f"buffer_store_dword v{V_NONCE}, v{V_FOWN}, {srd(SWS)}, s{S_FLAG} offen offset:{32*k}", 'fl')
        def poll(k, name):
            iss, chk = self.checked(name, [f"buffer_load_dword v{V_DUMP}, v{V_F8}, {srd(SWS)}, s{S_FLAG} offen offset:{32*k} sc1"], [f"v_cmp_ne_u32 vcc, s{S_NONCE}, v{V_DUMP}"], name)
            return iss, [x for _, x in chk]
        order = [(0, k) for k in range(5)] + [(1, k) for k in range(5)] + [(0, 5), (1, 5)]
        epi = deque()
        for z, (rt, k) in enumerate(order):
            dn = OA + (rt * 6 + 5) * 4
            b = OA + rt * 24
            rdy = (z + 1) * NU + 3
            if k == 0:
                epi.append((rdy, 1, f"v_fmac_f32 v{dn}, {EPS}, v{SP+rt}" if A else f"v_add_f32 v{dn}, {EPS}, v{dn}")); epi.append((rdy, 2, f"v_rcp_f32 v{dn}, v{dn}"))
                continue
            tt = k - 1
            for r in range(4): epi.append((rdy, 1, f"v_mul_f32 v{b+4*tt+r}, v{b+4*tt+r}, v{dn}"))
            for h in range(2):
                i = 2 * tt + h
                d = OB + ((i // 4) * 2 + rt) * 4 + i % 4 if i < 8 else LO + 2 * rt + (i - 8)
                epi.append((rdy, 1, f"v_cvt_pk_bf16_f32 v{d}, v{b+2*i}, v{b+2*i+1}"))
            if tt in (1, 3):
                u_ = tt // 2
                epi.append((0, 2, lambda u_=u_, rt=rt: ost(f"buffer_store_dwordx4 {vq(OB+(u_*2+rt)*4)}, v{V_OO+rt*2+u_}, {srd(SO)}, s{S_OP} offen", ('S', rt))))
        epi.append((0, 2, lambda: ost(f"buffer_store_dwordx4 {vq(LO)}, v{V_OO+4}, {srd(SO)}, s{S_OP} offen", ('S', 1))))
        LD = o.get('lead', 8); DF = 8
        items = [(P, t_, (0, 1)) for P in range(2) for t_ in range(5)] + [(P, t_, (0,)) for P in range(2, 2 + LD) for t_ in range(5)] + \
                [(P, t_, (0, 1)) for P in range(2 + LD, 20) for t_ in range(5)] + [(P, t_, (1,)) for P in range(2, 2 + LD) for t_ in range(5)]
        def fread(i, hf):
            P, t_, _ = items[i]
            if True:
                if hf == 0:
                    off = RING + P * 5120 + 1024 * t_; hi = off >= 51200; s_ = A_RING + (i % DF) * 4
                    p(f"ds_read_b128 a[{s_}:{s_+3}], v{V_LINH if hi else V_LIN} offset:{off - 51200*hi}", ('FF', i))
                return
            off = RING + (P // 4) * SLOT + (P % 4) * 5120 + hf * 2560 + 8 * t_
            hi = off >= 51200; s_ = A_RING + (i % DF) * 4 + 2 * hf
            p(f"ds_read_b64_tr_b16 a[{s_}:{s_+1}], v{V_WT + hi} offset:{off - 51200*hi}", ('FF', i))
        pr = deque((i, hf) for i in range(DF - 1) for hf in range(2))
        m = 0; mf0 = o.get('mf0', 54 if A else 36); seen = set()
        for rt, k in order:
            for u_ in range(NU):
                n = k * NU + u_; tt = fr[n][0]
                a = OA + (rt * 6 + tt) * 4
                if m == 0: p.wait(lg=[('of', 0)])
                p(f"{MF} {vq(a)}, {aq(AO+4*n)}, {vq(ACC_K+20*rt+4*u_)}, {'0' if u_ == 0 else vq(a)}")
                m += 1
                if n + 1 < len(fr): p.wait(lg=[('of', n + 1)])
                bud = 2 if A else 3
                if m == mf0:
                    assert sum(1 for x in p.ins if x.tag == ('S', 0)) == 2
                    p.wait(vm=[('S', 0)]); flag(0); bud -= 2
                elif rds: more(1); bud -= 1 if not (epi and epi[0][0] <= m and epi[0][1] == 2) else 0
                elif self.dq and m % o.get('opace', 8) == 0: self.tick(); bud -= 2
                elif pr and not (epi and epi[0][0] <= m): fread(*pr.popleft()); fread(*pr.popleft()); bud -= 2
                while epi and epi[0][0] <= m and epi[0][1] <= bud:
                    _, c, x = epi.popleft(); bud -= c
                    self.put([x])
                    if callable(x): break
        while pr: fread(*pr.popleft())
        while epi: self.put([epi.popleft()[2]])
        while self.tick(): pass
        self.stamp()
        def ob(ks, rt):
            if ks < 2: return vq(OB + (ks * 2 + rt) * 4)
            return aq((ks * 2 + rt) * 4) if ks < 16 else vq(LO + (2 * (ks - 16) + rt) * 4)
        def ld(P, rt):
            if P < 16: return [(f"buffer_load_dwordx4 {aq((P*2+rt)*4)}, v{V_OO+rt*2+P%2}, {srd(SO)}, s{S_OP + P//2} offen sc1", ('O', P, rt))]
            return [(f"buffer_load_dwordx4 {vq(LO+(2*(P-16)+rt)*4)}, v{V_OO+4}, {srd(SO)}, s{S_OP + 2*(P-16) + rt} offen sc1", ('O', P, rt))]
        i0, c0 = poll(0, "L_f0"); i1, c1 = poll(1, "L_f1"); i2, c2 = poll(2, "L_d0"); i3, c3 = poll(3, "L_d1")
        lead = [ld(P, 0) for P in range(2, 2 + LD)]
        rest = [ld(P, rt) for P in range(2 + LD, 20) for rt in range(2) if (P, rt) != (16, 0)] + [ld(P, 1) for P in range(2, 2 + LD)]
        def handshake():
            self.put(c0)
            p.wait(vm=[('S', 1), ('W', 18), ('W', 19)])
            flag(1)
            self.stamp()
            k1 = o.get('p1pos', 4)
            self.put(lead[:k1]); p("s_barrier"); self.put(i1)
            self.q(0, lead[k1:]); self.q(10**6 + 50, rest)
            for _ in range(o.get('oprime', 7) - k1): self.tick()
        E0 = len(items) - 5 * LD
        def outp(rt):
            b = TMP + 8
            c = self.cvt20(acc(ACC_K, 0, rt), b)
            L = []
            for j in range(5): L += [[c[2*j][1], c[2*j+1][1]], [(f"ds_write_b64 v{V_OW}, {vq(b+2*j, 2)} offset:{rt*16*OUTS + 8*j}", 'ow')]]
            L += [[(f"ds_read_b128 {vq(TMP+24+4*j)}, v{V_ORD+j} offset:{rt*16*OUTS}", ('or', j))] for j in range(3)]
            S_ = [[lambda j=j: p.wait(lg=[('or', j)]), (f"buffer_store_dwordx4 {vq(TMP+24+4*j)}, v{V_OG+j}, {srd(SOUT)}, s{S_OUT} offen", 'out')] for j in range(3)]
            return L, S_
        hooks = {}
        def hk(i, L): hooks.setdefault(i, []).extend(L)
        hk(o.get('p0pos', 3), i0)
        hk(9, [handshake])
        hk(10 + o.get('c1pos', 6), c1 + [lambda: self.release(50)])
        def done(k, tags):
            for tg in tags: self.flush_dma(tg)
            p.wait(vm=tags); flag(k)
        nd0 = E0 - o.get('d0', 8); hk(nd0, [lambda: done(2, [('O', 19, 0), ('O', 19, 1)])])
        hk(E0 + o.get('d0p', 2), i2)
        L0, S0 = outp(0)
        for j, x in enumerate(L0): hk(E0 + 3 + j, x)
        hk(E0 + 24, c2)
        for j, x in enumerate(S0): hk(E0 + 25 + 2 * j, x)
        nd1 = len(items) - o.get('d1', 19); hk(nd1, [lambda: done(3, [('O', 1 + LD, 1)])])
        hk(len(items) - o.get('d1p', 4), i3)
        hk(len(items) - 2, [f"s_or_b32 s{T0}, s{S_RB}, s{S_HEAD}", f"s_cmp_lg_u32 s{T0}, 0", f"s_cselect_b32 s{T0}, {WS_SIZE}, 0", "s_mov_b64 exec, 1",
                     (f"buffer_store_dword v{V_NONCE}, v{V_LIN}, {srd(SWS)}, s{T0} offen offset:{br*128} sc1", 'nn'), "s_mov_b64 exec, -1"])
        p.wait(lg=[('FF', 0)])
        clk = 0.0; per = o.get('lper', 4.6)
        for i, (P, t_, rts) in enumerate(items):
            s_ = A_RING + (i % DF) * 4
            for z, rt in enumerate(rts):
                a = acc(ACC_K, t_, rt)
                p(f"{MF} {vq(a)}, {aq(s_)}, {ob(P, rt)}, {'0' if P == 0 else vq(a)}")
                if z == 0:
                    k0 = len(p.ins)
                    if i + 1 < len(items): p.wait(lg=[('FF', i + 1)])
                    if i + DF - 1 < len(items):
                        if len(p.ins) == k0: p("s_nop 0")
                        fread(i + DF - 1, 0); fread(i + DF - 1, 1)
            self.stamp('z%d' % i)
            if i >= 10:
                clk += len(rts)
                if clk >= per and self.tick(): clk -= per
            if i in hooks: self.put(hooks[i])
            if t_ == 4 and i + 1 < len(items):
                Pn, _, rn = items[i + 1]
                if Pn >= 2:
                    tags = [('O', Pn, rt) for rt in rn]
                    for tg in tags: self.flush_dma(tg)
                    p.wait(vm=tags)
                    if Pn >= 16:
                        a = LO + 2 * (Pn - 16) * 4
                        p(f"v_swap_b32 v{a+2}, v{a+4}"); p(f"v_swap_b32 v{a+3}, v{a+5}")
        self.stamp()
        L1, S1 = outp(1)
        p(f"s_add_u32 s{S_OUT}, s{S_OUT}, {16*2560}")
        self.put(L1); self.put(c3); self.put(S1)
        if o.get('stamps'):
            p("s_waitcnt vmcnt(0)")
            self.stamp()
            p("s_memrealtime s[100:101]")
            p("s_waitcnt lgkmcnt(0)")
            p.raw(f"""
            s_lshl_b32 s{T0}, s2, 2
            s_add_u32 s{T0}, s{T0}, s{S_W}
            s_lshl_b32 s{T0}, s{T0}, 6
            s_add_u32 s{T0}, s{T0}, {WS_ST}
            v_mov_b32 v{TMP+16}, 0
            v_mov_b32 v{TMP}, s98
            v_mov_b32 v{TMP+1}, s100
            """)
            for k in range(14): p(f"v_mov_b32 v{TMP+2+k}, {'s%d' % (S_ST+k) if k < self.nst else ('s95' if k == 13 else 0)}")
            p("s_mov_b64 exec, 1")
            for k in range(4): p(f"buffer_store_dwordx4 {vq(TMP+4*k)}, v{TMP+16}, {srd(SWS)}, s{T0} offen offset:{16*k}")
        if o.get('amp'):
            p("s_waitcnt vmcnt(0)")
            self.stamp()
            if o['amp'][0] < 0: p("s_mov_b32 s100, s98")
            p.raw(f"""
            s_and_b32 s{T0}, s2, 7
            s_lshr_b32 s{T0}, {o['amp'][2]}, s{T0}
            s_bitcmp1_b32 s{T0}, 0
            s_cbranch_scc0 L_ampx{self.sfx}
            s_load_dwordx2 s[62:63], s[0:1], 64
            v_mov_b32 v2, 0
            s_waitcnt lgkmcnt(0)
            global_load_dword v3, v2, s[62:63] sc1
            s_waitcnt vmcnt(0)
            v_readfirstlane_b32 s{T2}, v3
            s_not_b32 s{T2}, s{T2}
            s_sub_u32 s{T0}, s100, s{T2}
            s_add_u32 s{T0}, s{T0}, 300
            s_mul_i32 s{T0}, s{T0}, {o['amp'][1]}
            s_min_u32 s{T0}, s{T0}, 100000
            L_amp{self.sfx}:
            s_sleep 2
            s_memrealtime s[64:65]
            s_waitcnt lgkmcnt(0)
            s_sub_u32 s{T1}, s64, s{T2}
            s_cmp_lt_u32 s{T1}, s{T0}
            s_cbranch_scc1 L_amp{self.sfx}
            L_ampx{self.sfx}:
            """)
        p("s_endpgm")
        assert not self.dq
        return p.finalize() + "".join(self.ool)

def sizes(lines):
    import subprocess, re
    src = '.amdgcn_target "amdgcn-amd-amdhsa--gfx950"\n.text\n' + "\n".join(lines) + "\n"
    r = subprocess.run(["llvm-mc", "-triple=amdgcn-amd-amdhsa", "-mcpu=gfx950", "-show-encoding"], input=src, capture_output=True, text=True)
    assert r.returncode == 0, r.stderr[:2000]
    return [len(m.split(',')) for m in re.findall(r'encoding: \[([^\]]*)\]', r.stdout)]
def add_hops(text, sfx, align=True):
    lines = text.split("\n")
    i0 = lines.index(f"L_main{sfx}:"); i1 = next(i for i in range(i0, len(lines)) if lines[i].strip() == "s_endpgm")
    body = lines[i0 + 1:i1]
    isi = lambda l: l.startswith("    ")
    szl = sizes([l for l in body if isi(l)])
    insl = [l.strip() for l in body if isi(l)]
    big = [z == 8 and t.startswith("v_") and not t.startswith("v_mfma") for z, t in zip(szl, insl)]
    run = [0] * (len(big) + 1)
    for k in range(len(big) - 1, -1, -1): run[k] = run[k + 1] + 1 if big[k] else 0
    sz = iter(szl); k = -1; nfix = 0
    out = []; addr = 0; page = 0; prev = "v_mfma"
    for l in body:
        if isi(l):
            k += 1
            if align and run[k] >= 3 and addr % 8 == 4:
                pv = out[-1] if isinstance(out[-1], str) else ""
                op = pv.split()[0] if pv.strip() else ""
                if isi(pv) and szl[k - 1] == 4 and op.startswith("v_") and not op.startswith(("v_cmp", "v_swap", "v_permlane", "v_readfirst")):
                    out[-1] = pv.replace(op, op + "_e64", 1); addr += 4; nfix += 1
                elif run[k] >= 6: out.append("    s_nop 0"); addr += 4; nfix += 1
            off = addr - page * 4096
            if off >= 0 and (prev.startswith("v_mfma") or off >= 40) and not prev.startswith("s_mov_b64 exec") :
                out.append(("hop", page)); addr += 4; page += 1
            addr += next(sz); prev = l.strip()
        out.append(l)
    assert page >= 4
    res = []
    for x in out:
        if isinstance(x, tuple):
            k = x[1]
            res += [f"L_hop{k}{sfx}:", f"    s_cbranch_execz " + (f"L_hop{k+4}{sfx}" if k + 4 < page else f"L_hopret{sfx}")]
        else: res.append(x)
    print(sfx, "main bytes", addr, "align fixes", nfix, file=sys.stderr)
    return "\n".join(lines[:i0 + 1] + res + lines[i1:])

def build(opt):
    ref = open(f"cdna_kernels/{NAME}.s.ref").read().split("\n")
    head = [l for l in ref if l.startswith(";") and "@launch" not in l]
    s = "\n".join(head) + "\n; @launch grid=(256,1,1) block=(256,1,1) lds=163840\n"
    s += f""".amdgcn_target "amdgcn-amd-amdhsa--gfx950"
.text
.globl {NAME}_kernel
.p2align 12
.p2align 8
.type {NAME}_kernel,@function
{NAME}_kernel:
    s_cmp_ge_u32 s2, 256
    s_cbranch_scc1 L_exit
"""
    ga = Gen(True, opt); ta = ga.body(); gb = Gen(False, opt); tb = gb.body()
    ca, ra = ta.split(".split\n"); cb, rb = tb.split(".split\n")
    assert ca == cb
    if opt.get('hops', 1): ra = add_hops(ra, 'A', opt.get('align', 1)); rb = add_hops(rb, 'B', opt.get('align', 1))
    s += ca + ra + "L_exit:\n    s_endpgm\n.p2align 12\n" + rb
    s += ".fill 2048, 4, 0xbf810000\n"
    s += f""".section .rodata,"a"
.p2align 6
.amdhsa_kernel {NAME}_kernel
  .amdhsa_next_free_vgpr 512
  .amdhsa_next_free_sgpr 102
  .amdhsa_accum_offset 256
  .amdhsa_group_segment_fixed_size 0
  .amdhsa_kernarg_size 80
  .amdhsa_user_sgpr_count 2
  .amdhsa_user_sgpr_kernarg_segment_ptr 1
  .amdhsa_system_sgpr_workgroup_id_x 1
.end_amdhsa_kernel
"""
    print("nops", ga.p.nops, gb.p.nops, "instrs", len(ga.p.ins), len(gb.p.ins), "autow", getattr(ga.p, 'autow', 0), file=sys.stderr)
    return s

if __name__ == "__main__":
    import json
    opt = json.loads(sys.argv[2]) if len(sys.argv) > 2 else {}
    open(sys.argv[1], "w").write(build(opt))
```

```python
import sys
from collections import deque
from emit import Prog
NAME = "concat_heads__linear_kernel_hedgehog__linear_attn_block__prompt"

S_RB, S_HG, S_W = 4, 5, 7
SX, SW, SWO, SWS, SOUT, SPHI = 8, 12, 16, 20, 24, 28
S_NONCE = 32
S_WROW = 33
S_XBASE, S_XU = 38, 39
S_LW, S_LR = 40, 41
T0, T1, T2, T3 = 42, 43, 44, 45
S_WOROW = 46
S_HEAD = 51
S_SPIN = 52
S_FAST = 53
S_L2E, S_NL2E = 54, 55
S_OB = 56
S_WS, S_XS = 57, 58
S_FLAG = 59
S_OP = 60
S_P1ST, S_P1LD, S_P2ST, S_P2LD, S_OWN, S_OUT, S_XCCV, S_PERM = 68, 69, 70, 71, 72, 73, 74, 75
S_KA = 76
S_ST = 76
import os
if os.environ.get('PRO'): S_ST = 88
def srd(b): return f"s[{b}:{b+3}]"
V_LANE = 1
V_WO = 2; V_OF = 7; V_OL = 12; V_XO = 17; V_XR = 21; V_WT = 23; V_LIN = 25
V_PW, V_VW, V_KB, V_KA0, V_KA1, V_FR = 26, 27, 28, 29, 30, 31
ACC_K, ACC_V = 32, 72
TMP = 112
PV = 228
V_P1ST, V_P1LD, V_P2ST, V_GAL, V_LA, V_FR2, V_KEEP, V_ONE, V_OW, V_ORD, V_OG, V_F8, V_DUMP, V_ZA = PV, PV+1, PV+2, PV+3, PV+4, PV+8, PV+9, PV+10, PV+11, PV+12, PV+17, PV+22, PV+23, PV+24
V_L128, V_NONCE, V_FOWN = PV + 25, PV + 26, PV + 27
RING = 0; SLOT = 20480; RBASE = 102400; RW = 15360
OUTL = RBASE + 16384; OUTS = 176
WS_FLAG, WS_XCC, WS_P2, WS_P1, WS_O, WS_ST = 4096, 32768, 65536, 1 << 20, 8 << 20, 16 << 20
WS_SIZE = 32 << 20
D = 6
A_RING = 220
A_PHI = 160
A_PARK = 244
V_OO = 7; V_LINH = 12; V_PF = 13; V_P1M = 14
WS_PF = 49152; WS_PK = 6 << 20
S_USRC, S_UDST, S_UFL, S_UTAG, S_PFL, S_XA = 3, 6, 72, 90, 91, 93
SO = SPHI
SPIN_MAX = 20000
EPS = "0x358637bd"

def vq(b, n=4): return f"v[{b}:{b+n-1}]"
def aq(b, n=4): return f"a[{b}:{b+n-1}]"
def acc(base, t, rt): return base + (rt * 5 + t) * 4
MF = "v_mfma_f32_16x16x32_bf16"

DEF = {'A': dict(xpos=(117, 190, 222), qpace=4, pfpos=101, pfchk=28, prokeep=4, proev=120, h1=(52, 86), kpace=4, hx=30, vsync=1, qev=26), 'B': dict(xpos=(117, 190, 222), upos=(18, 113, 170), pfpos=101, pfchk=28, h1=(44, 70), h2lead=100, prepos=290, vpace=4, qev=24, vsync=1)}
class Gen:
    def __init__(self, isA, opt):
        self.A = isA
        sf = 'A' if isA else 'B'
        opt = dict(DEF[sf], **opt)
        opt.update({k[:-1]: v for k, v in opt.items() if k.endswith(sf)})
        self.o = opt
        self.p = Prog(); self.sfx = 'A' if isA else 'B'
        self.F = 40 if isA else 20
        self.nst = 0
        self.dq = deque()
        self.pos = 0
        self.ool = []
    def stamp(self, name=None):
        p = self.p
        fine = self.o.get('fine')
        if fine:
            if name is None: self.cs = getattr(self, 'cs', 0) + 1; name = 's%d' % (self.cs - 1)
            if name not in fine: return
        elif name is not None: return
        if self.o.get('amp'):
            if self.nst == self.o['amp'][0]:
                p("s_memrealtime s[100:101]"); p("s_waitcnt lgkmcnt(0)")
            self.nst += 1
            return
        if not self.o.get('stamps'): return
        p(f"s_memrealtime s[100:101]" if self.o.get('rt') else f"s_memtime s[100:101]")
        p("s_waitcnt lgkmcnt(0)")
        p(f"s_sub_u32 s{S_ST+self.nst}, s100, {'s98' if self.o.get('rt') else 's96'}")
        self.nst += 1
    def put(self, L):
        for x in L:
            if isinstance(x, tuple): self.p(x[0], x[1])
            elif isinstance(x, list): self.put(x)
            elif callable(x): x()
            else: self.p(x)
    def dma_w(self, G):
        g = G % 5
        pre = [f"s_add_u32 m0, s{S_LW}, {RING + g*SLOT}"]
        if G < 15:
            col = {0: 1280, 1: 2560, 2: 0}[G // 5]
            gr = 4 - g if G // 5 in self.o.get('rev', [1, 2]) else g
            pre.append(f"s_add_u32 s{S_WS}, s{S_WROW+gr}, {col}"); so = f"s{S_WS}"; sd = SW; vo = V_WO
        else:
            items = []
            for j in range(5):
                off = f"offset:{j*1024} " if 0 < j < 4 else ""
                L = (pre if j == 0 else []) + [(f"buffer_load_dwordx4 v{V_LIN}, {srd(SWS)}, s{S_WOROW+g} offen {off}sc1 lds", ('W', G))]
                if j == 3: L += [f"s_add_u32 m0, s{S_LW}, {RING + g*SLOT + 4096}", f"s_add_u32 s{S_WOROW+g}, s{S_WOROW+g}, 4096"]
                items.append(L)
            return items
        items = []
        if G // 5 in self.o.get('fake', []):
            base = (G % 5) * 4 * 5120 + (G // 5 if G < 15 else 0) * 819200
            pre = [pre[0], f"s_add_u32 s{S_WS}, s94, {base}"]
            for j in range(5):
                off = f"offset:{j*1024} " if 0 < j < 4 else ""
                L = (pre if j == 0 else []) + [(f"buffer_load_dwordx4 v{V_LIN}, {srd(sd)}, s{S_WS} offen {off}lds", ('W', G))]
                if j == 3: L += [f"s_add_u32 m0, s{S_LW}, {RING + g*SLOT + 4096}", f"s_add_u32 s{S_WS}, s{S_WS}, 4096"]
                items.append(L)
            return items
        for j in range(5):
            off = f"offset:{j*1024} " if 0 < j < 4 else ""
            L = (pre if j == 0 else []) + [(f"buffer_load_dwordx4 v{vo+j}, {srd(sd)}, {so} offen {off}lds", ('W', G))]
            if j == 3: L.append(f"s_add_u32 m0, s{S_LW}, {RING + g*SLOT + 4096}")
            items.append(L)
        return items
    def dma_x(self, pu):
        items = []
        for j in range(4):
            off = f"offset:{j*1024} " if j else ""
            L = []
            if j == 0: L += [f"s_add_u32 m0, s{S_LR}, {(pu % 3) * 4096}", f"s_add_u32 s{S_XS}, s{S_XU}, s{S_XBASE}"]
            L.append((f"buffer_load_dwordx4 v{V_XO+j}, {srd(SX)}, s{S_XS} offen {off}lds", ('X', pu)))
            if j == 0: L += [f"s_add_u32 s{S_XU}, s{S_XU}, 128"]
            if j == 1: L += [f"s_cmp_eq_u32 s{S_XU}, 1280", f"s_cselect_b32 s{S_XU}, 0, s{S_XU}"]
            items.append(L)
        return items
    def q(self, earliest, items):
        for it in items: self.dq.append((earliest, it))
    def release(self, k):
        self.dq = deque((0 if e == 10**6 + k else e, it) for e, it in self.dq)
    def tick(self):
        if self.dq and not getattr(self, 'pfok', False) and any(isinstance(x, tuple) and x[1] == ('W', 15) for x in self.dq[0][1]): return False
        if self.dq and self.dq[0][0] <= self.pos:
            self.put(self.dq.popleft()[1]); return True
        return False
    def flush_dma(self, tag):
        def has():
            return any(isinstance(x, tuple) and x[1] == tag for _, it in self.dq for x in it)
        while has():
            assert self.dq[0][0] <= self.pos, (tag, self.pos, self.dq[0])
            self.put(self.dq.popleft()[1])
    def run(self, L, every=30):
        c = 0
        for cost, x in L:
            self.put([x]); c += cost
            if c >= every: c = 0; self.tick()
    def wread(self, N, hf):
        G = N // 20; ks = (N % 20) // 5; t = N % 5
        off = RING + (G % 5) * SLOT + ks * 5120 + hf * 2560 + 8 * t
        hi = off >= 51200
        s = A_RING + (N % D) * 4 + 2 * hf
        if G // 5 in self.o.get('fake', []):
            if hf == 0:
                off = RING + (G % 5) * SLOT + ks * 5120 + 1024 * t
                hi = off >= 51200
                self.p(f"ds_read_b128 a[{s}:{s+3}], v{226 + hi} offset:{off - 51200*hi}", ('F', N))
            return
        self.p(f"ds_read_b64_tr_b16 a[{s}:{s+1}], v{V_WT + hi} offset:{off - 51200*hi}", ('F', N))
    def group_sync(self, G):
        self.flush_dma(('W', G))
        self.p.wait(vm=[('W', G)])
        self.p("s_barrier")
    def xread(self, pu, k):
        ksub, rt = divmod(k, 2)
        if k == 0:
            self.flush_dma(('X', pu)); self.p.wait(vm=[('X', pu)])
        a = ((2 * pu + ksub) * 2 + rt) * 4
        self.p(f"ds_read_b128 {aq(a)}, v{V_XR+ksub} offset:{(pu % 3)*4096 + rt*2048}", ('XR', pu))
    def prime(self, ps, sync=True):
        if sync: self.group_sync(ps * 5)
        for n in range(D - 1):
            self.wread(ps * 100 + n, 0); self.wread(ps * 100 + n, 1)
    def gemm_pass(self, ps, accb, bop, fill=None, hooks=None, last=False, pace=None, sync=True, frange=(0, 100), hooks0=None):
        p = self.p
        fill = deque(fill or []); hooks = hooks or {}; hooks0 = hooks0 or {}
        N0 = ps * 100
        p.wait(lg=[('F', N0), ('XR', 0)])
        pace = pace or (lambda n: 0)
        for n in range(100):
            self.pos = N0 + n
            ks, t = divmod(n, 5)
            s = A_RING + ((N0 + n) % D) * 4
            M = n + D - 1
            look = M < 100 or not last
            a = acc(accb, t, 0)
            p(f"{MF} {vq(a)}, {aq(s)}, {bop(ks, 0)}, {'0' if ks == 0 else vq(a)}")
            k0 = len(p.ins)
            if n < 99:
                tg = [('F', N0 + n + 1)]
                if ps == 0 and (n + 1) % 10 == 0: tg.append(('XR', (n + 1) // 10))
                p.wait(lg=tg)
            if n in hooks0: self.put(hooks0[n])
            if look:
                if M % 20 == 0 and sync: self.group_sync((N0 + M) // 20)
                if len(p.ins) == k0: p("s_nop 0")
                self.wread(N0 + M, 0); self.wread(N0 + M, 1)
                if ps in self.o.get('fake', []) and fill and n >= frange[0] and not isinstance(fill[0][1], tuple): self.gap(fill, 1 if fill[0][0] < 2 or n % 2 else 2)
            elif fill and n >= frange[0]: self.gap(fill, 2)
            a = acc(accb, t, 1)
            p(f"{MF} {vq(a)}, {aq(s)}, {bop(ks, 1)}, {'0' if ks == 0 else vq(a)}")
            self.pos = N0 + n + 1
            self.stamp('n%d' % (N0 + n))
            did = 0
            for _ in range(pace(n)): did += self.tick()
            if n in hooks: self.put(hooks[n])
            if fill and n >= frange[0]:
                left = sum(c for c, _ in fill)
                gaps = sum(1 for k in range(n, frange[1]) if not pace(k)) + (min(D - 1, 99 - n) if last and frange[1] == 100 else 0)
                bud = 0 if did else 2
                if left > (3 if ps in self.o.get('fake', []) else 2) * gaps: bud += 2
                self.gap(fill, bud)
        while fill: self.put([fill.popleft()[1]])
        self.pos = N0 + 100
    def gap(self, fill, bud):
        first = True
        while fill:
            c, x = fill[0]
            solo = isinstance(x, tuple)
            if c > bud or (solo and not first): break
            fill.popleft(); self.put([x]); bud -= c
            if solo: break
            if c: first = False
    def cvt20(self, src, dst):
        return [(1, f"v_cvt_pk_bf16_f32 v{dst+i}, v{src+2*i}, v{src+2*i+1}") for i in range(10)]
    def phiA_parts(self, x, e, m, name, isq):
        P = {}
        kb = e + 28
        P['cvt'] = self.cvt20(x, kb) + [(1, f"v_mov_b32 v{kb+10}, 0"), (1, f"v_mov_b32 v{kb+11}, 0")]
        P['mf'] = [(2, f"{MF} {vq(x+4*t)}, {aq(A_PHI + (t*3+u)*4)}, {vq(kb+4*u)}, {'0' if u == 0 else vq(x+4*t)}") for t in range(5) for u in range(3)]
        P['exp'] = [(2, f"v_exp_f32 v{e+i}, v{x+i}") for i in range(20)] + [(2, f"v_exp_f32 v{e+20+i}, -v{x+i}") for i in range(20)]
        def sums():
            L = [f"v_pk_add_f32 v[{m+2*h}:{m+2*h+1}], v[{e+20*h}:{e+20*h+1}], v[{e+20*h+2}:{e+20*h+3}]" for h in range(2)]
            L += [f"v_pk_add_f32 v[{m+2*h}:{m+2*h+1}], v[{m+2*h}:{m+2*h+1}], v[{e+20*h+2*i}:{e+20*h+2*i+1}]" for i in range(2, 10) for h in range(2)]
            L += [f"v_add_f32 v{m+2*h}, v{m+2*h}, v{m+2*h+1}" for h in range(2)]
            return L
        nm = name + self.sfx
        L = sums() + [f"v_max_f32 v{m+1}, v{m}, v{m+2}", f"v_cmp_ngt_f32 vcc, 0x5d800000, v{m+1}"]
        if not isq: L.append(f"v_rcp_f32 v{m+4}, v{m}")
        L += [f"v_rcp_f32 v{m+2}, v{m+2}", [f"s_cbranch_vccnz {nm}_slow", f"{nm}_back:"]]
        o = Prog()
        o(f"{nm}_slow:")
        o(f"v_max3_f32 v{m}, v{x}, v{x+1}, v{x+2}"); o(f"v_min3_f32 v{m+1}, v{x}, v{x+1}, v{x+2}")
        for i in range(3, 19, 2):
            o(f"v_max3_f32 v{m}, v{m}, v{x+i}, v{x+i+1}"); o(f"v_min3_f32 v{m+1}, v{m+1}, v{x+i}, v{x+i+1}")
        o(f"v_max_f32 v{m}, v{m}, v{x+19}"); o(f"v_min_f32 v{m+1}, v{m+1}, v{x+19}")
        for i in range(20): o(f"v_sub_f32 v{e+i}, v{x+i}, v{m}"); o(f"v_sub_f32 v{e+20+i}, v{m+1}, v{x+i}")
        for i in range(40): o(f"v_exp_f32 v{e+i}, v{e+i}")
        for y in sums(): o(y)
        if not isq: o(f"v_rcp_f32 v{m+4}, v{m}")
        o(f"v_rcp_f32 v{m+2}, v{m+2}"); o("s_nop 1"); o(f"s_branch {nm}_back")
        self.ool.append(o.finalize())
        if isq: L.append(f"v_mul_f32 v{m+2}, v{m+2}, v{m}")
        else: L += [f"v_pk_mul_f32 v[{e+2*i}:{e+2*i+1}], v[{e+2*i}:{e+2*i+1}], v[{m+4}:{m+5}] op_sel_hi:[1,0]" for i in range(10)]
        L += [f"v_pk_mul_f32 v[{e+20+2*i}:{e+21+2*i}], v[{e+20+2*i}:{e+21+2*i}], v[{m+2}:{m+3}] op_sel_hi:[1,0]" for i in range(10)]
        P['norm'] = [(1, y) for y in L]
        P['out'] = [(1, f"v_cvt_pk_bf16_f32 v{x+i}, v{e+2*i}, v{e+2*i+1}") for i in range(20)]
        return P
    def weave(self, mf, va, per=2):
        va = deque(va); L = []
        for x in mf:
            L.append(x); b = per
            while va and va[0][0] <= b: b -= va[0][0]; L.append(va.popleft())
        return L + list(va)
    def phiB(self, x, e, packed):
        L = []
        if packed: L += [(1, f"v_pk_mul_f32 v[{e+2*i}:{e+2*i+1}], v[{x+2*i}:{x+2*i+1}], s[{S_L2E}:{S_NL2E}] op_sel_hi:[1,0]") for i in range(10)]
        else: L += [(1, f"v_mul_f32 v{e+i}, s{S_L2E}, v{x+i}") for i in range(20)]
        L += [(2, f"v_exp_f32 v{e+i}, v{e+i} clamp") for i in range(20)]
        L += [(1, f"v_max_f32 v{x+i}, {EPS}, v{x+i}") for i in range(20)]
        if packed: L += [(1, f"v_pk_add_f32 v[{e+2*i}:{e+2*i+1}], v[{e+2*i}:{e+2*i+1}], v[{x+2*i}:{x+2*i+1}]") for i in range(10)]
        else: L += [(1, f"v_add_f32 v{e+i}, v{e+i}, v{x+i}") for i in range(20)]
        L += self.cvt20(e, x)
        return L
    def checked(self, name, loads, check, tag):
        nm = name + self.sfx
        iss = [(x, tag) if x.startswith('buffer') else x for x in loads]
        chk = [(0, lambda: self.p.wait(vm=[tag]))] + [(1, x) for x in check] + [(1, [f"s_cbranch_vccnz {nm}_retry", f"{nm}_ok:"])]
        o = Prog()
        o(f"{nm}_retry:"); o(f"s_mov_b32 s{S_SPIN}, 0"); o(f"{nm}_loop:")
        if self.o.get('stamps'): o(f"s_add_u32 s95, s95, {dict(L_xc=1000000, L_h1=10000, L_h2=1000, L_pf=10000000, L_f0=1, L_f1=100, L_d0=0, L_d1=100000)[name]}")
        for x in loads: o(x)
        o("s_waitcnt vmcnt(0)")
        for x in check: o(x)
        o(f"s_cbranch_vccz {nm}_ok")
        o(f"s_add_u32 s{S_SPIN}, s{S_SPIN}, 1"); o(f"s_cmp_lt_u32 s{S_SPIN}, {SPIN_MAX}"); o(f"s_cbranch_scc1 {nm}_loop")
        o(f"s_branch {nm}_ok")
        self.ool.append(o.finalize())
        return iss, chk
    def body(self):
        p = self.p; A = self.A; F = self.F; br = 0 if A else 1; o = self.o
        t = TMP
        K = S_KA
        kx, kw, kout, kws = K, K + 2, K + 8, K + 10
        kphi, kwo = (K + 4, K + 6) if A else (None, K + 4)
        p.raw(f"""
        s_andn2_b32 s{T0}, 1, s2
        s_lshl_b32 s{T0}, s{T0}, 5
        s_load_dwordx8 s[{K}:{K+7}], s[0:1], s{T0}
        s_load_dwordx2 s[{kout}:{kout+1}], s[0:1], 56
        s_load_dwordx2 s[{kws}:{kws+1}], s[0:1], 72
        """)
        if o.get('stamps'): p("s_memtime s[96:97]"); p("s_mov_b32 s95, 0")
        if o.get('stamps') or o.get('amp'): p("s_memrealtime s[98:99]")
        p.raw(f"""
        s_getpc_b64 s[60:61]
        L_pc:
        s_bfe_u32 s{S_HG}, s2, 0x30003
        v_and_b32 v{V_LANE}, 63, v0
        v_lshrrev_b32 v{t}, 6, v0
        s_bitcmp0_b32 s2, 0
        s_cselect_b32 s{T1}, L_setupB-L_setupA, 0
        s_lshl_b32 s{T0}, s{S_HG}, 12
        v_lshlrev_b32 v{V_L128}, 7, v{V_LANE}
        v_readfirstlane_b32 s{S_W}, v{t}
        s_add_u32 s{T0}, s{T0}, s{T1}
        s_add_u32 s{T0}, s{T0}, L_setupA-L_pc
        s_add_u32 s60, s60, s{T0}
        s_addc_u32 s61, s61, 0
        v_lshl_add_u32 v{t+1}, v{t}, 10, v{V_L128}
        s_mov_b64 exec, 0xff
        """)
        p(f"global_load_dword v{V_DUMP}, v{t+1}, s[60:61]", 'cpf')
        p("s_mov_b64 exec, -1")
        ra, rbm, rdiv = o.get('rot', (10, 10, 4))
        p.raw(f"""
        s_and_b32 s{S_RB}, s2, 6
        s_lshl_b32 s{S_RB}, s{S_RB}, 1
        s_lshr_b32 s{T0}, s2, 6
        s_add_u32 s{S_RB}, s{S_RB}, s{T0}
        s_mul_i32 s{T0}, s{S_HG}, {ra}
        s_mul_i32 s{T1}, s{S_RB}, {rbm}
        s_add_u32 s{T0}, s{T0}, s{T1}
        s_lshr_b32 s{T0}, s{T0}, {rdiv.bit_length()-1}
        s_mul_i32 s{T1}, s{T0}, 6554
        s_lshr_b32 s{T1}, s{T1}, 16
        s_mul_i32 s{T1}, s{T1}, 10
        s_sub_u32 s{T3}, s{T0}, s{T1}
        s_lshl_b32 s{S_XU}, s{T3}, 7
        s_lshl_b32 s{T0}, s{S_RB}, 2
        s_add_u32 s{T0}, s{T0}, s{S_W}
        s_mul_i32 s{S_XBASE}, s{T0}, 40960
        s_mul_i32 s{S_LW}, s{S_W}, 5120
        s_mul_i32 s{S_LR}, s{S_W}, {RW}
        s_add_u32 s{S_LR}, s{S_LR}, {RBASE}
        v_lshrrev_b32 v{t}, 3, v{V_LANE}
        v_mul_u32_u24 v{t}, 1280, v{t}
        v_lshrrev_b32 v{t+1}, 4, v{V_LANE}
        v_xor_b32 v{t+1}, v{t+1}, v{V_LANE}
        v_and_b32 v{t+1}, 7, v{t+1}
        v_lshl_add_u32 v{V_XO}, v{t+1}, 4, v{t}
        v_xor_b32 v{t+2}, 64, v{V_XO}
        v_add_u32 v{V_XO+1}, {9216}, v{t+2}
        v_add_u32 v{V_XO+2}, {2*9216}, v{V_XO}
        v_add_u32 v{V_XO+3}, {3*9216}, v{t+2}
        s_lshr_b32 s{T0}, s{S_W}, 1
        s_add_u32 s{T0}, s{T0}, s{T3}
        s_and_b32 s{T1}, s{S_W}, 1
        s_mul_i32 s{T1}, s{T1}, {32*3840}
        s_mul_i32 s{T2}, s{S_HG}, 160
        s_add_u32 s{T1}, s{T1}, s{T2}
        s_mov_b32 s{SX+2}, 2621440
        s_mov_b32 s{SX+3}, 0x20000
        s_mov_b32 s{SW+2}, 2457600
        s_mov_b32 s{SW+3}, 0x20000
        """)
        def wrow(g):
            p.raw(f"""
            s_cmp_ge_u32 s{T0}, 10
            s_cselect_b32 s{T2}, 10, 0
            s_sub_u32 s{T0}, s{T0}, s{T2}
            s_mul_i32 s{T2}, s{T0}, {64*3840}
            s_add_u32 s{S_WROW+g}, s{T2}, s{T1}
            s_add_u32 s{T0}, s{T0}, 2
            """)
        wrow(0)
        RH = TMP + 10
        def woff(j):
            b = RH + 5 * j
            p.raw(f"""
            v_add_u32 v{t}, {64*j}, v{V_LANE}
            v_mul_u32_u24 v{b+4}, 6554, v{t}
            v_lshrrev_b32 v{b+4}, 16, v{b+4}
            v_mul_u32_u24 v{t+2}, 10, v{b+4}
            v_sub_u32 v{b+3}, v{t}, v{t+2}
            v_bfe_u32 v{b}, v{b+4}, 2, 2
            v_lshrrev_b32 v{b+1}, 4, v{b+4}
            v_and_b32 v{b+2}, 3, v{b+4}
            v_lshl_add_u32 v{t}, v{b}, 1, v{b+1}
            v_lshl_add_u32 v{t}, v{t}, 2, v{b+2}
            v_mul_u32_u24 v{t}, 3840, v{t}
            v_lshl_add_u32 v{V_WO+j}, v{b+3}, 4, v{t}
            """)
            if 0 < j < 4: p(f"v_subrev_u32 v{V_WO+j}, {1024*j}, v{V_WO+j}")
        if o.get('fake'):
            p.raw(f"""
            s_mul_i32 s94, s{S_HG}, 102400
            s_add_u32 s94, s94, s{S_LW}
            v_lshlrev_b32 v{V_LIN}, 4, v{V_LANE}
            v_mov_b32 v226, v{V_LIN}
            v_add_u32 v227, 51200, v{V_LIN}
            """)
        woff(0); woff(1)
        if o.get('pre0'): p("s_memtime s[92:93]")
        p.raw(f"""
        s_waitcnt lgkmcnt(0)
        s_mov_b32 s{SX}, s{kx}
        s_mov_b32 s{SX+1}, s{kx+1}
        s_mov_b32 s{SW}, s{kw}
        s_mov_b32 s{SW+1}, s{kw+1}
        """)
        self.stamp('p0')
        if o.get('pre0'): p(f"s_sub_u32 s{S_ST+self.nst}, s92, s96"); self.nst += 1
        self.put(self.dma_x(0))
        w0 = self.dma_w(0)
        self.put(w0[0:2]); woff(2); self.put(w0[2]); woff(3); self.put(w0[3]); woff(4); self.put(w0[4])
        self.stamp('p1')
        if o.get('prowait'):
            p.wait(vm=['cpf']); self.stamp('p2')
            p.wait(vm=[('X', 0)]); self.stamp('p3')
            p.wait(vm=[('W', 0)]); self.stamp('p4')
        p("s_bitcmp0_b32 s2, 0"); p("s_cbranch_scc1 L_setupB")
        p(".split")
        p(f"L_setup{self.sfx}:")
        p(f"s_load_dword s{S_NONCE}, s[{kws}:{kws+1}], {br*128}")
        if not A:
            p(f"s_load_dword s{S_UTAG}, s[{kws}:{kws+1}], 0")
            p(f"s_load_dwordx2 s[{K+6}:{K+7}], s[0:1], 24")
        for g in range(1, 5): wrow(g)
        self.q(0, self.dma_x(1))
        p.raw(f"""
        s_mov_b32 s{SWS}, s{kws}
        s_mov_b32 s{SWS+1}, s{kws+1}
        s_mov_b32 s{SWS+2}, {WS_SIZE}
        s_mov_b32 s{SWS+3}, 0x20000
        s_mov_b32 s{SOUT}, s{kout}
        s_mov_b32 s{SOUT+1}, s{kout+1}
        s_mov_b32 s{SOUT+2}, 5242880
        s_mov_b32 s{SOUT+3}, 0x20000
        s_lshl_b32 s{S_HEAD}, s{S_HG}, 2
        s_add_u32 s{S_HEAD}, s{S_HEAD}, s{S_W}
        v_lshlrev_b32 v{V_LIN}, 4, v{V_LANE}
        """)
        if A:
            p.raw(f"""
            s_mov_b32 s{SPHI}, s{kphi}
            s_mov_b32 s{SPHI+1}, s{kphi+1}
            s_mov_b32 s{SPHI+2}, 25600
            s_mov_b32 s{SPHI+3}, 0x20000
            """)
            self.q(0, [[f"s_mul_i32 s{S_WS}, s{S_HEAD}, 800",
                        (f"buffer_load_dwordx4 {vq(TMP+96)}, v{V_LIN}, {srd(SPHI)}, s{S_WS} offen", 'wphi')]])
        self.q(0, self.dma_w(1)); self.q(0, self.dma_x(2))
        G_, I_, R_, C_ = t, t + 1, t + 2, t + 3
        S = []
        def raw(txt):
            for l in txt.split('\n'):
                if l.strip(): S.append((1, l.strip()))
        raw(f"""
        v_lshrrev_b32 v{G_}, 4, v{V_LANE}
        v_and_b32 v{I_}, 15, v{V_LANE}
        v_bfe_u32 v{R_}, v{V_LANE}, 2, 2
        v_and_b32 v{C_}, 3, v{V_LANE}
        v_lshrrev_b32 v{t+4}, 1, v{I_}
        v_xor_b32 v{t+4}, v{t+4}, v{G_}
        v_lshlrev_b32 v{t+5}, 7, v{I_}
        v_lshl_add_u32 v{t+4}, v{t+4}, 4, v{t+5}
        v_add_u32 v{V_XR}, s{S_LR}, v{t+4}
        v_xor_b32 v{t+4}, 64, v{t+4}
        v_add_u32 v{V_XR+1}, s{S_LR}, v{t+4}
        v_lshrrev_b32 v{t+4}, 2, v{V_LANE}
        v_mul_u32_u24 v{t+5}, 160, v{t+4}
        v_mul_u32_u24 v{t+6}, 40, v{C_}
        v_add_u32 v{V_WT}, v{t+5}, v{t+6}
        v_add_u32 v{V_WT+1}, 51200, v{V_WT}
        v_mul_u32_u24 v{t+5}, 120, v{I_}
        v_mul_u32_u24 v{t+6}, 3840, v{G_}
        v_add3_u32 v{V_PW}, v{t+5}, v{t+6}, s{S_LR}
        v_mul_u32_u24 v{t+6}, 40, v{G_}
        v_mul_u32_u24 v{t+7}, {OUTS}, v{I_}
        s_mul_i32 s{T2}, s{S_W}, {32*OUTS}
        s_add_u32 s{T2}, s{T2}, {OUTL}
        v_add3_u32 v{V_OW}, v{t+7}, v{t+6}, s{T2}
        v_and_b32 v{t+5}, 7, v{t+4}
        v_lshrrev_b32 v{t+6}, 5, v{V_LANE}
        v_lshlrev_b32 v{t+6}, 1, v{t+6}
        v_lshl_add_u32 v{t+5}, v{t+5}, 2, v{t+6}
        v_mul_u32_u24 v{t+5}, 120, v{t+5}
        s_mul_i32 s{T0}, s{S_W}, 3840
        s_add_u32 s{T0}, s{T0}, {RBASE}
        v_add_u32 v{V_KA1}, s{T0}, v{t+5}
        v_lshl_add_u32 v{V_KB}, v{C_}, 3, v{V_KA1}
        s_mov_b32 s{S_L2E}, 0x3fb8aa3b
        s_mov_b32 s{S_NL2E}, 0xbfb8aa3b
        s_mov_b32 s{S_PERM}, 0x07060302
        s_and_b32 s{T3}, s{S_HG}, 1
        """)
        for j in range(5):
            b = RH + 5 * j
            if j < 3: raw(f"""
            v_mul_u32_u24 v{t+5}, {OUTS}, v{b+4}
            v_lshl_add_u32 v{t+5}, v{b+3}, 4, v{t+5}
            v_add_u32 v{V_ORD+j}, s{T2}, v{t+5}
            v_mul_u32_u24 v{t+5}, 2560, v{b+4}
            v_lshl_add_u32 v{V_OG+j}, v{b+3}, 4, v{t+5}
            """)
            if j == 2: raw(f"""
            v_lshrrev_b32 v{t+5}, 5, v{V_LANE}
            v_lshl_or_b32 v{V_OG+2}, v{t+5}, 30, v{V_OG+2}
            """)
        raw(f"""
        v_mov_b32 v{t+5}, 2304
        v_cmp_gt_u32 vcc, 16, v{V_LANE}
        v_mov_b32 v{t+6}, 1024
        v_cndmask_b32 v{t+5}, v{t+5}, v{t+6}, vcc
        v_add_u32 v{V_OO+1}, v{t+5}, v{V_LIN}
        v_mov_b32 v{V_OO}, v{V_LIN}
        v_add_u32 v{V_OO+2}, 40960, v{V_LIN}
        v_add_u32 v{V_OO+3}, 40960, v{V_OO+1}
        v_lshrrev_b32 v{t+4}, 5, v{V_LANE}
        v_mul_u32_u24 v{t+4}, {40960-512}, v{t+4}
        v_add_u32 v{t+5}, 3328, v{V_LIN}
        v_add_u32 v{V_OO+4}, v{t+4}, v{t+5}
        v_add_u32 v{V_LINH}, 51200, v{V_LIN}
        v_min_u32 v{V_PF}, 39, v{V_LANE}
        v_lshlrev_b32 v{V_PF}, 3, v{V_PF}
        v_and_b32 v{t+4}, 1, v{RH+4}
        v_mul_u32_u24 v{t+4}, 2560, v{t+4}
        v_lshrrev_b32 v{t+5}, 1, v{RH+4}
        v_mul_u32_u24 v{t+5}, 40960, v{t+5}
        v_lshlrev_b32 v{t+6}, 7, v{RH+3}
        v_add3_u32 v{V_L128}, v{t+4}, v{t+5}, v{t+6}
        """)
        raw(f"""
        s_lshl_b32 s{T0}, s{T3}, 1
        s_xor_b32 s{T0}, s{T0}, s{S_W}
        s_mul_i32 s{T0}, s{T0}, 5120
        s_mul_i32 s{T2}, s{S_HG}, 102400
        s_add_u32 s{T2}, s{T2}, {WS_PK + br*819200}
        s_add_u32 s{T0}, s{T0}, s{T2}
        s_lshr_b32 s{S_SPIN}, s{S_HG}, 1
        s_add_u32 s{T1}, s{S_SPIN}, s{S_W}
        s_and_b32 s{T1}, s{T1}, 3
        s_add_u32 s{T1}, s{T1}, 16
        s_mul_i32 s{T1}, s{T1}, 5120
        s_add_u32 s{S_WOROW+4}, s{T1}, s{T2}
        s_lshr_b32 s{S_PFL}, s{S_HG}, 2
        s_lshl_b32 s{S_PFL}, s{S_PFL}, 9
        s_add_u32 s{S_PFL}, s{S_PFL}, {WS_PF + br*1024}
        s_mul_i32 s{T2}, s{S_HG}, 160
        s_lshl_b32 s{S_OUT}, s{S_XBASE}, 1
        s_add_u32 s{S_OUT}, s{S_OUT}, s{T2}
        s_add_u32 s{S_OUT}, s{S_OUT}, {br*1280}
        s_lshl_b32 s{S_OB}, s{S_XBASE}, 1
        s_add_u32 s{S_OB}, s{S_OB}, {br*1280}
        """)
        for g in range(4):
            raw(f"""
            s_add_u32 s{T1}, s{S_SPIN}, {g}
            s_and_b32 s{T1}, s{T1}, 3
            s_mul_i32 s{T2}, s{T1}, 20480
            s_add_u32 s{S_WOROW+g}, s{T2}, s{T0}
            s_lshl_b32 s{T1}, s{T1}, 1
            s_add_u32 s{T1}, s{T1}, s{T3}
            s_mul_i32 s{T2}, s{T1}, 5120
            s_add_u32 s{S_OP+2*g}, s{T2}, s{S_OB}
            s_xor_b32 s{T1}, s{T1}, 1
            s_mul_i32 s{T2}, s{T1}, 5120
            s_add_u32 s{S_OP+2*g+1}, s{T2}, s{S_OB}
            """)
        SH = 8 if A else 7
        raw(f"""
        s_lshl_b32 s{T0}, s{S_RB}, 2
        s_add_u32 s{T0}, s{T0}, s{S_W}
        s_lshl_b32 s{S_FLAG}, s{T0}, 7
        s_add_u32 s{S_FLAG}, s{S_FLAG}, {WS_FLAG + br*64*128}
        s_lshl_b32 s{T0}, s{S_HEAD}, 16
        s_add_u32 s{T0}, s{T0}, {WS_P1 + br*32*65536}
        s_lshl_b32 s{T1}, s{S_RB}, 12
        s_add_u32 s{S_P1ST}, s{T0}, s{T1}
        s_min_u32 s{T1}, s{S_RB}, 14
        s_lshl_b32 s{T1}, s{T1}, {SH}
        s_add_u32 s{S_P1LD}, s{T0}, s{T1}
        s_lshl_b32 s{T0}, s{S_HEAD}, 12
        s_add_u32 s{S_P2LD}, s{T0}, {WS_P2 + br*32*4096}
        s_add_u32 s{S_P2ST}, s{S_P2LD}, s{T1}
        v_mul_u32_u24 v{t+4}, {F}, v{G_}
        v_add_lshl_u32 v{V_P1ST}, v{t+4}, v{I_}, 4
        v_lshrrev_b32 v{t+4}, {3 if A else 2}, v{I_}
        v_lshl_or_b32 v{V_P1M}, v{t+4}, 28, v{V_P1ST}
        v_lshrrev_b32 v{t+4}, 1, v{G_}
        v_lshl_or_b32 v{V_P1M+1}, v{t+4}, 30, v{V_P1ST}
        v_or_b32 v{V_P1M+2}, v{V_P1M}, v{V_P1M+1}
        v_cmp_gt_u32 vcc, 4, v{I_}
        v_cndmask_b32 v{V_KEEP}, 0, -1, vcc
        v_mov_b32 v{t+4}, 0x3f803f80
        v_cmp_eq_u32 vcc, 4, v{I_}
        v_cndmask_b32 v{V_ONE}, 0, v{t+4}, vcc
        v_and_b32 v{t+4}, 7, v{V_LANE}
        v_lshlrev_b32 v{V_F8}, 2, v{t+4}
        s_lshl_b32 s{T0}, s{S_HG}, 2
        v_min_u32 v{V_FOWN}, 1, v{V_LANE}
        v_lshlrev_b32 v{V_FOWN}, 30, v{V_FOWN}
        v_or_b32 v{V_FOWN}, s{T0}, v{V_FOWN}
        v_lshlrev_b32 v{V_ZA}, 3, v0
        v_add_u32 v{V_ZA}, {RBASE+7680}, v{V_ZA}
        """)
        if A:
            raw(f"""
            v_lshlrev_b32 v{t+5}, 12, v{G_}
            v_lshl_add_u32 v{V_P1LD}, v{I_}, 4, v{t+5}
            v_lshlrev_b32 v{V_P2ST}, 2, v{V_LANE}
            """)
        else:
            raw(f"""
            v_lshrrev_b32 v{t+5}, 3, v{V_LANE}
            v_lshlrev_b32 v{t+5}, 12, v{t+5}
            v_lshl_add_u32 v{V_P1LD}, v{t+4}, 4, v{t+5}
            v_lshl_add_u32 v{V_P2ST}, v{G_}, 5, v{V_F8}
            """)
        RS = 80 if A else 48
        HS = 24 * RS
        NQ = 240 if A else 120
        NI = 4 if A else 2
        raw(f"s_mul_i32 s{T0}, s{S_W}, {HS}\ns_add_u32 s{T0}, s{T0}, {RBASE}")
        u = t + 4
        for ii in range(NI):
            raw(f"v_add_u32 v{u}, {64*ii}, v{V_LANE}")
            if ii == NI - 1:
                raw(f"""v_subrev_u32 v{u+1}, 64, v{u}
                v_cmp_gt_u32 vcc, {NQ}, v{u}
                v_cndmask_b32 v{u}, v{u+1}, v{u}, vcc
                v_lshlrev_b32 v{V_GAL}, 4, v{u}""")
            if A:
                raw(f"""
                v_lshrrev_b32 v{u+1}, 4, v{u}
                v_and_b32 v{u+2}, 3, v{u}
                v_lshl_add_u32 v{u+1}, v{u+1}, 2, v{u+2}
                v_bfe_u32 v{u+2}, v{u}, 2, 2
                v_mul_u32_u24 v{u+3}, 6554, v{u+1}
                v_lshrrev_b32 v{u+3}, 16, v{u+3}
                v_mul_u32_u24 v{u+4}, 10, v{u+3}
                """)
            else:
                raw(f"""
                v_lshrrev_b32 v{u+1}, 3, v{u}
                v_and_b32 v{u+2}, 1, v{u}
                v_lshl_add_u32 v{u+1}, v{u+1}, 1, v{u+2}
                v_bfe_u32 v{u+2}, v{u}, 1, 2
                v_mul_u32_u24 v{u+3}, 13108, v{u+1}
                v_lshrrev_b32 v{u+3}, 16, v{u+3}
                v_mul_u32_u24 v{u+4}, 5, v{u+3}
                """)
            raw(f"""
            v_sub_u32 v{u+1}, v{u+1}, v{u+4}
            v_lshl_add_u32 v{u+3}, v{u+3}, 2, v{u+2}
            v_mul_u32_u24 v{u+3}, {RS}, v{u+3}
            v_lshl_add_u32 v{u+3}, v{u+1}, 3, v{u+3}
            v_add_u32 v{V_LA+ii}, s{T0}, v{u+3}
            """)
        raw(f"""
        v_cmp_eq_u32 vcc, v{G_}, v{R_}
        v_mul_u32_u24 v{u}, {HS}, v{G_}
        v_mul_u32_u24 v{u+1}, {RS}, v{C_}
        v_add_u32 v{u}, v{u}, v{u+1}
        v_add_u32 v{u}, {RBASE}, v{u}
        v_mov_b32 v{u+1}, {RBASE+7680}
        v_cndmask_b32 v{V_FR2}, v{u+1}, v{u}, vcc
        """)
        if A:
            raw(f"""
            v_mov_b32 v{t+36}, 0
            v_mov_b32 v{t+37}, 0
            v_mov_b32 v{t+38}, 0
            v_mov_b32 v{t+39}, 0
            v_add_u32 v{TMP+100}, s{S_LR}, v{V_LIN}
            ds_write_b128 v{TMP+100}, {vq(t+36)} offset:13312
            v_mul_u32_u24 v{t+4}, {RW}, v{G_}
            v_mul_u32_u24 v{t+5}, 40, v{R_}
            v_add_u32 v{t+4}, v{t+4}, v{t+5}
            v_add_u32 v{t+4}, {RBASE+12288}, v{t+4}
            s_add_u32 s{T0}, s{S_LR}, 13312
            v_mov_b32 v{t+5}, s{T0}
            v_cmp_eq_u32 vcc, v{C_}, v{G_}
            v_cndmask_b32 v{V_FR}, v{t+5}, v{t+4}, vcc
            """)
            for tt in range(5):
                a = A_PHI + (tt * 3 + 2) * 4
                raw(f"v_accvgpr_write_b32 a{a+2}, 0\nv_accvgpr_write_b32 a{a+3}, 0")
        US, UA, UD = TMP + 40, TMP + 45, TMP + 80
        nA = o.get('nA', 0); prod = (not A) or nA > 0
        S_UOK = 92
        if prod:
            S.append((1, [x.strip() for x in f"""
            s_add_u32 s{T1}, s{S_HG}, s{S_RB}
            s_and_b32 s{T1}, s{T1}, 1
            s_lshl_b32 s{T0}, s{S_W}, 1
            s_add_u32 s{T0}, s{T0}, s{T1}
            s_lshl_b32 s{T0}, s{T0}, 3
            s_add_u32 s{T0}, s{T0}, s{S_HG}
            s_lshl_b32 s{T0}, s{T0}, 3
            s_lshr_b32 s{T1}, s{S_RB}, 1
            s_add_u32 s{T0}, s{T0}, s{T1}
            s_add_u32 s{T0}, s{T0}, {0 if A else nA}
            s_cmp_lt_u32 s{T0}, {nA if A else 320}
            s_cselect_b32 s{S_UOK}, 1, 0
            s_waitcnt lgkmcnt(0)
            s_cmp_lt_u32 s{T0}, 160
            s_cselect_b32 s{SWO}, s{K+6}, s{kwo}
            s_cselect_b32 s{SWO+1}, s{K+7}, s{kwo+1}
            s_cselect_b32 s{S_UTAG}, s{S_NONCE if A else S_UTAG}, s{S_NONCE}
            s_cselect_b32 s{T1}, 0, 160
            s_cselect_b32 s{S_UDST}, 0, 819200
            s_cselect_b32 s{S_UFL}, 0, 1024
            s_mov_b32 s{SWO+2}, 819200
            s_mov_b32 s{SWO+3}, 0x20000
            s_add_u32 s{S_UTAG}, s{S_UTAG}, 0x9e3779b1
            s_sub_u32 s{T0}, s{T0}, s{T1}
            s_and_b32 s{T1}, s{T0}, 1
            s_mul_i32 s{S_USRC}, s{T1}, 640
            s_mul_i32 s{T2}, s{T1}, 409600
            s_add_u32 s{S_UDST}, s{S_UDST}, s{T2}
            s_lshl_b32 s{T2}, s{T1}, 9
            s_add_u32 s{S_UFL}, s{S_UFL}, s{T2}
            s_lshr_b32 s{T1}, s{T0}, 1
            s_lshl_b32 s{T2}, s{T1}, 2
            s_add_u32 s{S_UFL}, s{S_UFL}, s{T2}
            s_add_u32 s{S_UFL}, s{S_UFL}, {WS_PF}
            s_and_b32 s{T1}, s{T1}, 3
            s_mul_i32 s{T2}, s{T1}, {20*1280}
            s_add_u32 s{S_USRC}, s{S_USRC}, s{T2}
            s_lshl_b32 s{T2}, s{T1}, 8
            s_add_u32 s{S_UDST}, s{S_UDST}, s{T2}
            s_lshr_b32 s{T1}, s{T0}, 3
            s_mul_i32 s{T2}, s{T1}, 5120
            s_add_u32 s{S_UDST}, s{S_UDST}, s{T2}
            s_add_u32 s{S_UDST}, s{S_UDST}, {WS_PK}
            s_lshr_b32 s{T2}, s{T1}, 1
            s_mul_i32 s{T2}, s{T2}, 80
            s_and_b32 s{T3}, s{T1}, 1
            s_lshl_b32 s{T3}, s{T3}, 3
            s_add_u32 s{T2}, s{T2}, s{T3}
            s_mul_i32 s{T3}, s{T1}, 160
            s_sub_u32 s{T3}, s{T3}, {16*160 - 16}
            s_cmp_ge_u32 s{T1}, 16
            s_cselect_b32 s{T2}, s{T3}, s{T2}
            s_cselect_b32 s{T3}, 1, 0
            s_mul_i32 s{T2}, s{T2}, 1280
            s_add_u32 s{S_USRC}, s{S_USRC}, s{T2}
            s_mul_i32 s{T1}, s{T3}, {76*1280}
            s_add_u32 s{T2}, s{S_LW}, {RING + 4*SLOT}
            """.split('\n') if x.strip()]))
            for j in range(5):
                raw(f"""
                v_lshrrev_b32 v{t+4}, 2, v{RH+5*j+4}
                v_mul_u32_u24 v{t+5}, 640, v{t+4}
                v_lshrrev_b32 v{t+4}, 2, v{t+4}
                v_mul_u32_u24 v{t+4}, s{T1}, v{t+4}
                v_add3_u32 v{US+j}, v{t+4}, v{t+5}, v{V_LIN}
                """)
            raw(f"v_add_u32 v{US+4}, 4096, v{US+4}")
            raw(f"""
            v_mul_u32_u24 v{t+7}, 640, v{R_}
            v_mul_u32_u24 v{t+8}, 40, v{C_}
            v_add3_u32 v{t+7}, v{t+7}, v{t+8}, s{T2}
            """)
            for j in range(5):
                raw(f"""
                v_add_u32 v{t+4}, {4*j}, v{G_}
                v_mul_u32_u24 v{t+5}, 13108, v{t+4}
                v_lshrrev_b32 v{t+5}, 16, v{t+5}
                v_mul_u32_u24 v{t+6}, 120, v{t+5}
                v_lshl_add_u32 v{t+6}, v{t+4}, 3, v{t+6}
                v_add_u32 v{t+6}, v{t+6}, v{t+7}
                v_and_b32 v{t+8}, s{T3}, v{t+5}
                v_mul_u32_u24 v{t+8}, 2560, v{t+8}
                v_add_u32 v{UA+2*j}, v{t+6}, v{t+8}
                v_sub_u32 v{t+6}, v{t+6}, v{t+8}
                v_add_u32 v{UA+2*j+1}, 2560, v{t+6}
                v_mul_u32_u24 v{t+5}, {102400 - 5120}, v{t+5}
                v_lshl_add_u32 v{t+5}, v{t+4}, 10, v{t+5}
                v_lshl_add_u32 v{UD+j}, v{I_}, 4, v{t+5}
                """)
            mark = {}
            def cond(name, lines):
                p.untracked([f"s_cmp_eq_u32 s{S_UOK}, 0", f"s_cbranch_scc1 {name}{self.sfx}"] + lines + [f"{name}{self.sfx}:"])
                mark[name] = p.nvm
            L = [f"s_add_u32 m0, s{S_LW}, {RING + 4*SLOT}"]
            for j in range(5):
                off = f"offset:{j*1024} " if 0 < j < 4 else ""
                L.append(f"buffer_load_dwordx4 v{US+j}, {srd(SWO)}, s{S_USRC} offen {off}lds")
                if j == 3: L.append(f"s_add_u32 m0, s{S_LW}, {RING + 4*SLOT + 4096}")
            un = [[lambda L=L: cond("L_u1", L)]]
            if o.get('uissue', 0) == 0: self.q(10**6 + 77, un)
        self.run(S, every=o.get('proev', 60))
        self.stamp('p5')
        if o.get('uissue', 0) == 0: self.release(77)
        if o.get('hops', 1):
            p("s_mov_b64 exec, 0")
            for w_ in range(3): p(f"s_cmp_eq_u32 s{S_W}, {w_}"); p(f"s_cbranch_scc1 L_hop{w_}{self.sfx}")
            p(f"s_branch L_hop3{self.sfx}")
            p(f"L_hopret{self.sfx}:")
            p("s_mov_b64 exec, -1")
        while len(self.dq) > o.get('prokeep', 0) and self.tick(): pass
        p.raw(f"""
        s_getreg_b32 s{T0}, hwreg(HW_REG_XCC_ID, 0, 4)
        s_waitcnt lgkmcnt(0)
        s_add_u32 s{S_NONCE}, s{S_NONCE}, 0x9e3779b1
        s_lshl_b32 s{T0}, s{T0}, 28
        s_xor_b32 s{S_XCCV}, s{T0}, s{S_NONCE}
        v_mov_b32 v{V_NONCE}, s{S_NONCE}
        v_mov_b32 v{V_KA0}, s{S_XCCV}
        s_add_u32 s{S_XA}, s{S_FLAG}, {WS_XCC - WS_FLAG}
        """)
        xst = [(f"buffer_store_dword v{V_KA0}, v{V_FOWN}, {srd(SWS)}, s{S_XA} offen sc1", 'xcc')]
        x1, x2, x3 = o.get('xpos', (-1, 58, 88))
        if x1 < 0: self.put(xst)
        self.stamp()
        p(f"s_branch L_main{self.sfx}")
        p(".p2align 12")
        p(f"L_main{self.sfx}:")
        xb = lambda ks, rt: aq((ks * 2 + rt) * 4)
        xbp = lambda ps: (lambda ks, rt: xb(4 * (4 - ks // 4) + ks % 4, rt)) if ps in o.get('rev', [1, 2]) else xb
        for pu in range(0, 7):
            if (pu + 3) % 2 == 0: self.q(0, self.dma_w((pu + 3) // 2))
            self.q(10 * pu, self.dma_x(pu + 3))
            if prod and o.get('uissue', 0) == pu + 1: self.q(0, un)
        for G in range(5, 10): self.q(10**6 + 1 if G % 5 >= 3 else 20 * (G - 3) - 4, self.dma_w(G))
        for G in range(10, 13): self.q(20 * (G - 3) - 4, self.dma_w(G))
        for G in range(13, 20): self.q(10**6 + G, self.dma_w(G))
        hooks = {}
        for pu in range(1, 10):
            hooks[10 * pu - 5] = [lambda pu=pu: self.xread(pu, 0), lambda pu=pu: self.xread(pu, 1)]
            hooks[10 * pu - 4] = [lambda pu=pu: self.xread(pu, 2), lambda pu=pu: self.xread(pu, 3)]
        if A:
            rd = [(tt, u_, hf) for tt in range(5) for u_ in range(3) for hf in range(2 if u_ < 2 else 1)]
            w = TMP + 96; u2 = TMP + 102
            sc = [lambda: p.wait(vm=['wphi'])]
            for j in range(4):
                sc += [f"v_lshlrev_b32 v{u2}, 16, v{w+j}", f"v_and_b32 v{u2+1}, 0xffff0000, v{w+j}", f"v_mul_f32 v{u2}, s{S_L2E}, v{u2}",
                       f"v_mul_f32 v{u2+1}, s{S_L2E}, v{u2+1}", f"v_cvt_pk_bf16_f32 v{w+j}, v{u2}, v{u2+1}"]
            hooks[8] = sc + [(f"ds_write_b128 v{TMP+100}, {vq(w)} offset:12288", 'phw')]
            hooks[14] = [lambda: p.wait(lg=['phw'])]
            slots = [n for n in range(21, 90) if n % 10 in (0, 1, 2, 3)][:25]
            for k, n in enumerate(slots):
                hooks[n] = [(f"ds_read_b64_tr_b16 a[{A_PHI + (tt*3+u_)*4 + 2*hf}:{A_PHI + (tt*3+u_)*4 + 2*hf + 1}], v{V_FR} offset:{(8*u_+4*hf)*40 + 8*tt}", 'phi')
                            for tt, u_, hf in rd[k:k+1]]
        late3 = {}
        if prod:
            UR = TMP + 60
            u1, u2_, u3 = o.get('upos', (18, 18, 62))
            hooks.setdefault(u1, []).append(lambda: cond("L_u2r", [f"s_waitcnt vmcnt({p.nvm - mark['L_u1']}) lgkmcnt(0)"] +
                [f"ds_read_b64_tr_b16 {vq(UR+2*k, 2)}, v{UA+k}" for k in range(10)] + ["s_waitcnt lgkmcnt(0)"]))
            for j in range(5):
                uj = u2_ + o.get('ustep', 0) * j
                (hooks if uj < 100 else late3).setdefault(uj % 100, []).append(lambda j=j: cond("L_u2" + "abcd "[j].strip(), [f"buffer_store_dwordx4 {vq(UR+4*j)}, v{UD+j}, {srd(SWS)}, s{S_UDST} offen sc1"]))
            (hooks if u3 < 100 else late3).setdefault(u3 % 100, []).append(lambda: cond("L_u3", [f"s_waitcnt vmcnt({p.nvm - mark['L_u2']})", f"v_mov_b32 v{V_DUMP}, s{S_UTAG}", "s_mov_b64 exec, 1",
                         f"buffer_store_dword v{V_DUMP}, v{V_LIN}, {srd(SWS)}, s{S_UFL} offen sc1", "s_mov_b64 exec, -1"]))
        XV = TMP + 92
        iss, chk = self.checked("L_xc", [f"buffer_load_dword v{XV}, v{V_F8}, {srd(SWS)}, s{S_XA} offen sc1"],
                                [f"v_xor_b32 v{XV+1}, s{S_NONCE}, v{XV}", f"v_lshlrev_b32 v{XV+1}, 4, v{XV+1}", f"v_cmp_ne_u32 vcc, 0, v{XV+1}"], 'xl')
        xv, xq = {}, {}
        def xh(pos, L): [hooks, xv, xq][pos // 100].setdefault(pos % 100, []).extend(L)
        if x1 >= 0: xh(x1, xst)
        xh(x2, iss)
        c_ = [x for _, x in chk]
        xh(x3, c_[:3]); xh(x3 + 1, c_[3:4]); xh(x3 + 2, c_[4:] + [f"v_cmp_ne_u32 vcc, s{S_XCCV}, v{XV}"])
        xh(x3 + 3, [f"s_mov_b32 s{S_FAST}, {1 if o.get('nofast') else 'vcc_lo'}", f"s_add_u32 s{T0}, s{SWS}, {WS_O}", f"s_addc_u32 s{T1}, s{SWS+1}, 0"])
        xh(x3 + 4, [f"s_cmp_eq_u32 s{S_FAST}, 0", f"s_cselect_b32 s{SO}, s{SOUT}, s{T0}", f"s_cselect_b32 s{SO+1}, s{SOUT+1}, s{T1}"])
        xh(x3 + 5, [f"s_mov_b32 s{SO+2}, 5242880", f"s_mov_b32 s{SO+3}, 0x20000"])
        self.group_sync(0)
        for k in range(4): self.xread(0, k)
        self.prime(0, sync=False)
        kp = o.get('kpace', 3)
        k1p = {0: lambda n: 1 if n % 3 != 2 else 0, 1: lambda n: 1, 2: lambda n: 2 if n % 10 < 2 else (1 if n % 10 < 5 else 0), 3: lambda n: 1 if n % 4 != 3 else 0}[o.get('k1', 0)]
        self.gemm_pass(0, ACC_K, xb, hooks=hooks, last=True, pace=lambda n: k1p(n) if n < o.get('ksw', 69) else (1 if n % kp == 0 else 0))
        self.stamp()
        E0, E1, M0_, M1_ = TMP, TMP + 40, TMP + 80, TMP + 86
        x0, x1 = acc(ACC_K, 0, 0), acc(ACC_K, 0, 1)
        if o.get('amp'):
            p.raw(f"""
            s_load_dwordx2 s[88:89], s[0:1], 64
            s_not_b32 s{T0}, s98
            v_mov_b32 v{TMP+94}, 0
            v_mov_b32 v{TMP+95}, s{T0}
            s_lshr_b32 s{T0}, s2, 3
            s_or_b32 s{T0}, s{T0}, s{S_W}
            s_cmp_eq_u32 s{T0}, 0
            s_cselect_b32 s{T0}, 0, 64
            v_mov_b32 v{TMP+94}, s{T0}
            s_waitcnt lgkmcnt(0)
            s_cbranch_scc0 L_noat{self.sfx}
            s_mov_b64 exec, 1
            """)
            p.ins.append(__import__('emit').Ins(f"global_atomic_umax v{TMP+94}, v{TMP+95}, s[88:89] sc1"))
            p("s_mov_b64 exec, -1")
            p(f"L_noat{self.sfx}:")
        wr = lambda rt, x, n, o8: [(2, (f"ds_write_b64 v{V_PW}, {vq(x+2*j, 2)} offset:{rt*1920 + o8 + 8*j}", 'pw')) for j in range(n)]
        def mixw(out, w): return [y for j in range(len(w)) for y in out[2*j:2*j+2] + [w[j]]]
        burst = lambda L: [(0, [x for _, x in L])]
        dm = (2, lambda: self.tick())
        if A:
            P0 = self.phiA_parts(x0, E0, M0_, "L_k0", False); P1 = self.phiA_parts(x1, E1, M1_, "L_k1", False)
            pr = [(0, lambda: (self.group_sync(5), self.release(1)))]
            pr = pr + [(1, lambda n=n, hf=hf: self.wread(100 + n, hf)) for n in range(D - 1) for hf in range(2)]
            hx = o.get('hx', 0)
            if hx == 0:
                self.put([x for _, x in [dm] + P0['cvt'] + self.weave(P0['mf'], [dm] + P1['cvt'] + [dm] + P0['exp'][:4]) + self.weave(P1['mf'], [dm] + P0['exp'][4:12] + [dm] + pr)])
                f0 = P0['exp'][12:] + burst(P0['norm'])
            else:
                self.put([x for _, x in [dm] + P0['cvt'] + self.weave(P0['mf'], [dm] + P1['cvt'] + P0['exp'][:7] + [dm]) + self.weave(P1['mf'], P0['exp'][7:14] + [dm] + P0['exp'][14:21])])
                self.run(P0['exp'][21:] + P0['norm'][:-10], every=hx)
                self.put([x for _, x in pr + P0['norm'][-10:]])
                f0 = []
            fill = f0 + mixw(P0['out'], wr(0, x0, 10, 0)) + P1['exp'] + burst(P1['norm']) + mixw(P1['out'], wr(1, x1, 10, 0))
            self.stamp('head')
        else:
            fill = []
            for rt, x, e in ((0, x0, E0), (1, x1, E1)):
                L = self.phiB(x, e, False)
                fill += L[:-10] + mixw(L[-10:], wr(rt, x, 5, 0))
            self.group_sync(5); self.release(1); self.prime(1, sync=False)
        hooks = {}
        hooks.update(late3)
        PFV = TMP + 94
        ipf, cpf_ = self.checked("L_pf", [f"buffer_load_dwordx2 {vq(PFV, 2)}, v{V_PF}, {srd(SWS)}, s{S_PFL} offen sc1"],
                                 [f"v_xor_b32 v{PFV}, s{S_NONCE}, v{PFV}", f"v_bitop3_b32 v{PFV}, v{PFV}, v{PFV+1}, s{S_NONCE} bitop3:0xf6", f"v_cmp_ne_u32 vcc, 0, v{PFV}"], 'pf')
        pfp = o.get('pfpos', 81)
        if pfp < 100: hooks.setdefault(pfp, []).extend(ipf)
        pre = ["s_mov_b32 exec_hi, 0xff", (f"buffer_load_dword v{V_DUMP}, v{V_L128}, {srd(SO)}, s{S_OP} offen sc1", 'pr'), "s_mov_b64 exec, 1",
               (f"buffer_load_dword v{V_DUMP}, v{V_F8}, {srd(SWS)}, s{S_FLAG} offen sc1", 'pr'), "s_mov_b64 exec, -1"]
        wp, pp_ = o.get('wopf', -1), o.get('prepos', 0)
        if 100 <= pp_ < 200: hooks.setdefault(pp_ - 100, []).extend(pre)
        vs = o.get('vsync', 0)
        if o.get('v13'): hooks.setdefault(78, []).extend(["s_barrier", lambda: self.release(13)])
        for k_, v_ in xv.items(): hooks.setdefault(k_, []).extend(v_)
        vp = o.get('vpace', 4)
        self.gemm_pass(1, ACC_V, xbp(1), fill=fill, hooks=hooks, last=True, sync=True, pace=lambda n: 1 if n % vp == 0 else 0)
        self.stamp()
        VB = TMP
        for rt in range(2):
            c = self.cvt20(acc(ACC_V, 0, rt), VB + 10 * rt)
            for j in range(5):
                p(c[2*j][1]); p(c[2*j+1][1])
                p(f"ds_write_b64 v{V_PW}, {vq(VB+10*rt+2*j, 2)} offset:{rt*1920 + 80 + 8*j}", 'vw')
                if j == 4 and rt == 0: self.tick()
        self.tick()
        p.wait(lg='*')
        self.stamp('kv0')
        gk = 11
        self.flush_dma(('W', gk)); p.wait(vm=[('W', gk)])
        self.stamp('kv1')
        p("s_barrier")
        self.stamp('kv2')
        self.release(13); self.release(14)
        NT = 3 if A else 2
        FB = ACC_K
        KV = TMP + 64
        rds = deque()
        def rd(reg, av, off, kk, j):
            for hf in range(2): rds.append((f"ds_read_b64_tr_b16 {vq(reg+2*hf, 2)}, v{av} offset:{kk*RW + hf*120 + off}", ('kv', kk, j)))
        for kk in range(4): rd(FB + kk * 20 + 4, V_KA1, 112, kk, 'z')
        for kk in range(4):
            b = FB + kk * 20
            rd(b, V_KB, 80, kk, 'a')
            for nt in range(NT): rd(b + 8 + 4 * nt, V_KB, 32 * nt, kk, nt)
        def more(k):
            while k > 0 and rds and len(p.lgq) < 15: self.put([rds.popleft()]); k -= 1
        more(15); self.tick()
        p(f"v_mov_b32 v{TMP+1}, 0xff")
        for kk in range(0, 4, 2):
            p.wait(lg=[('kv', kk + 1, 'z')]); more(4)
            for j in range(8): p(f"v_and_or_b32 v{FB+(kk+j//4)*20+4+j%4}, v{FB+(kk+j//4)*20+4+j%4}, v{V_KEEP}, v{V_ONE}")
        seq = [(kk, nt) for kk in range(4) for nt in range(NT)]
        p.wait(lg=[('kv',) + seq[0]])
        for i_, (kk, nt) in enumerate(seq):
            b = FB + kk * 20
            p(f"{MF} {vq(KV + nt*4)}, {vq(b)}, {vq(b+8+4*nt)}, {'0' if kk == 0 else vq(KV + nt*4)}")
            if i_ + 1 < len(seq): p.wait(lg=[('kv',) + seq[i_ + 1]])
            if rds: more(2)
            elif i_ == len(seq) - 2: self.tick()
        assert not rds
        lastm = 0x00ff00ff if A else 0x000f000f
        def pub(mt, nt):
            a = KV + (mt * 3 + nt) * 4
            L = [(1, f"v_bfi_b32 v{a+j}, v{TMP+1}, s{S_NONCE}, v{a+j}") for j in range(4)]
            va = [V_P1ST, V_P1M, V_P1M + 1, V_P1M + 2][2 * mt + (nt == NT - 1)]
            return L + [(2, (f"buffer_store_dwordx4 {vq(a)}, v{va}, {srd(SWS)}, s{S_P1ST} offen offset:{(4*mt*F + 16*nt)*16} sc1", 'p1'))]
        self.stamp('kv3')
        mf = [(2, f"{MF} {vq(KV + (3+nt)*4)}, {vq(FB+kk*20+4)}, {vq(FB+kk*20+8+4*nt)}, {'0' if kk == 0 else vq(KV + (3+nt)*4)}") for nt in range(NT) for kk in range(4)]
        pr = [(1, lambda n=n, hf=hf: self.wread(200 + n, hf)) for n in range(D - 1) for hf in range(2)]
        self.put([x for _, x in self.weave(mf, pr[:4] + [y for nt in range(NT) for y in pub(0, nt)] + pr[4:])])
        qhead = [y for nt in range(NT) for y in pub(1, nt)]
        self.stamp()
        X = TMP + 8; CK = TMP + 2
        def tagcheck(mask):
            return [f"v_xor_b32 v{CK}, s{S_NONCE}, v{X}"] + [f"v_bitop3_b32 v{CK}, v{CK}, v{X+j}, s{S_NONCE} bitop3:0xf6" for j in range(1, 4 * NI)] + \
                   [f"v_and_b32 v{CK}, {mask}, v{CK}", f"v_cmp_ne_u32 vcc, 0, v{CK}"]
        lds_ = []
        for ii in range(NI):
            lds_ += [f"s_add_u32 s{T0}, s{S_P1LD}, {ii * (65536 // NI)}", f"buffer_load_dwordx4 {vq(X+4*ii)}, v{V_P1LD}, {srd(SWS)}, s{T0} offen sc1"]
        iss, chk = self.checked("L_h1", lds_, tagcheck("0xff"), 'h1')
        red = [f"v_add_f32 v{X+j}, v{X+j}, v{X+4*ii+j}" for ii in range(1, NI) for j in range(4)]
        red += [f"v_permlane32_swap_b32 v{X}, v{X+2}", f"v_permlane32_swap_b32 v{X+1}, v{X+3}", f"v_add_f32 v{X}, v{X}, v{X+2}", f"v_add_f32 v{X+1}, v{X+1}, v{X+3}",
                f"v_mov_b32 v{CK}, 0xffff", f"v_permlane16_swap_b32 v{X}, v{X+1}", f"v_add_f32 v{X}, v{X}, v{X+1}"]
        if not A: red.append(f"v_add_f32_dpp v{X}, v{X}, v{X} row_ror:8 row_mask:0xf bank_mask:0xf")
        red += [f"v_cvt_pk_bf16_f32 v{X}, v{X}, v{X}", f"v_bfi_b32 v{X}, v{CK}, s{S_NONCE}, v{X}"]
        st = (f"buffer_store_dword v{X}, v{V_P2ST}, {srd(SWS)}, s{S_P2ST} offen sc1", 'p2')
        red.append([st] if A else ["s_mov_b32 exec_lo, 0x00ff00ff", "s_mov_b32 exec_hi, 0x00ff00ff", st, "s_mov_b64 exec, -1"])
        n1, n2 = o.get('h1', (62, 84))
        hooks = {n1 + k: iss[2*k:2*k+2] for k in range(NI)}
        if pfp >= 100: hooks.setdefault(pfp - 100, []).extend(ipf)
        for k_, v_ in xq.items(): hooks.setdefault(k_, []).extend(v_)
        c_ = [x for _, x in cpf_]
        pc = o.get('pfchk', 13)
        hooks.setdefault(pc, []).extend(c_[:3]); hooks.setdefault(pc + 1, []).extend(c_[3:4]); hooks.setdefault(pc + 3, []).extend(c_[4:] + [lambda: setattr(self, 'pfok', True)])
        if 200 <= pp_ < 300: hooks.setdefault(pp_ - 200, []).extend(pre)
        qh = deque(qhead)
        for n in range(20): hooks.setdefault(n, []).append(lambda: self.gap(qh, 2))
        for fr_, pubg, rel in o.get('qbar', [(18, 12, [15]), (42, 13, [16]), (60, 14, [17]), (78, 14, [18])]):
            hooks.setdefault(fr_, []).extend([lambda g=pubg: self.group_sync(g)] + [lambda r=r: self.release(r) for r in rel])
        self.gemm_pass(2, ACC_K, xbp(2), fill=chk + [(1, x) for x in red], hooks=hooks, last=True, sync=False, frange=(n2, min(100, n2 + 16)),
                       pace=lambda n: 1 if (n >= 9 and n % o.get('qpace', 3) == 0 and not n1 <= n < n1 + NI) else 0)
        assert not qh
        p("s_barrier")
        [self.release(r) for r in range(15, 20)]
        self.stamp()
        X = TMP + 96; CK = TMP + 92
        lds_ = [f"buffer_load_dwordx4 {vq(X+4*ii)}, v{V_LIN if ii < NI-1 else V_GAL}, {srd(SWS)}, s{S_P2LD} offen offset:{1024*ii if ii < NI-1 else 0} sc1" for ii in range(NI)]
        iss, chk = self.checked("L_h2", lds_, tagcheck("0xffff"), 'h2')
        zw = [f"v_mov_b32 v{CK}, 0", f"v_mov_b32 v{CK+1}, 0", f"ds_write_b64 v{V_ZA}, {vq(CK, 2)}"]
        self.put(zw)
        for k_ in range(o.get('dirty', 0)):
            p(f"s_add_u32 s{T0}, s{S_OP}, {(9 << 20) + (k_ // 5) * (6 << 20) + (k_ % 5) * 1024}")
            p(f"buffer_store_dwordx4 v[2:5], v{V_LIN}, {srd(SWS)}, s{T0} offen {o.get('dirtyf', '')}")
        if o.get('prepos', 0) == 1: self.put(pre)
        if not A:
            for tt in range(6): p(f"v_accvgpr_write_b32 a{40+4*(3*tt+2)+2}, 0"); p(f"v_accvgpr_write_b32 a{40+4*(3*tt+2)+3}, 0")
        if A:
            P0 = self.phiA_parts(x0, E0, M0_, "L_q0", True); P1 = self.phiA_parts(x1, E1, M1_, "L_q1", True)
            L = P0['cvt'] + self.weave(P0['mf'], P1['cvt'] + P0['exp'][:6]) + self.weave(P1['mf'], P0['exp'][6:]) + P0['norm'] + P0['out'] + P1['exp'] + P1['norm'] + P1['out']
        else:
            L = []
            for x, e in ((x0, E0), (x1, E1)):
                L += self.phiB(x, e, True) + [(1, f"v_mov_b32 v{x+10}, 0"), (1, f"v_mov_b32 v{x+11}, 0")]
        tot = sum(c for c, _ in L); cut = tot - o.get('h2lead', 60)
        c = 0; k = 0
        while k < len(L) and c < cut: c += L[k][0]; k += 1
        self.run(L[:k], every=o.get('qev', 44))
        self.stamp('q0')
        self.flush_dma(('W', 17))
        self.stamp('q1')
        self.put(iss)
        if o.get('prepos', 0) == 0: self.put(pre)
        self.stamp('q2')
        self.run(L[k:], every=o.get('qev', 44))
        self.stamp()
        self.put([x for _, x in chk])
        for ii in range(NI):
            p(f"v_perm_b32 v{X+4*ii}, v{X+4*ii+1}, v{X+4*ii}, s{S_PERM}")
            p(f"v_perm_b32 v{X+4*ii+1}, v{X+4*ii+3}, v{X+4*ii+2}, s{S_PERM}")
            p(f"ds_write_b64 v{V_LA+ii}, {vq(X+4*ii, 2)}", 'kvw')
        p.wait(lg='*')
        p("s_barrier")
        self.stamp()
        assert not self.dq or True
        import copy
        p(f"s_cmp_eq_u32 s{S_FAST}, 0"); p(f"s_cbranch_scc0 L_tail{self.sfx}s")
        env = dict(RS=RS, M0_=M0_, M1_=M1_)
        sv = (self.p, self.sfx, self.nst, getattr(self, 'cs', 0), deque(self.dq))
        self.p = Prog(); self.p.vmq = list(p.vmq); self.p.lgq = list(p.lgq); self.sfx += 's'
        self.p(f"L_tail{self.sfx}:")
        self.tail(False, **env)
        self.ool.append(self.p.finalize())
        self.p, self.sfx, self.nst, self.cs, self.dq = sv
        self.tail(True, **env)
        return p.finalize() + "".join(self.ool)
    def tail(self, fast, RS, M0_, M1_):
        p = self.p; A = self.A; o = self.o; br = 0 if A else 1
        def more(k):
            while k > 0 and rds and len(p.lgq) < 15: self.put([rds.popleft()]); k -= 1
        OA = ACC_V
        NU = 5 if A else 3
        SP = TMP + 112
        if A: p(f"v_mov_b32 v{SP}, v{M0_}"); p(f"v_mov_b32 v{SP+1}, v{M1_}")
        OB = TMP + 64
        LO = TMP + 80
        fr = [(tt, u_) for tt in (5, 0, 1, 2, 3, 4) for u_ in range(NU)]
        AO = 40
        rds = deque()
        for n, (tt, u_) in enumerate(fr):
            if not A and u_ == 2: rds.append((f"ds_read_b64 {aq(AO+4*n, 2)}, v{V_FR2} offset:{4*tt*RS + 16*u_}", ('of', n)))
            else: rds.append((f"ds_read_b128 {aq(AO+4*n)}, v{V_FR2} offset:{4*tt*RS + 16*u_}", ('of', n)))
        more(10)
        def ost(txt, tag='o'):
            p(txt + ("" if fast else " sc1"), tag)
        def flag(k): ost(f"buffer_store_dword v{V_NONCE}, v{V_FOWN}, {srd(SWS)}, s{S_FLAG} offen offset:{32*k}", 'fl')
        def poll(k, name):
            iss, chk = self.checked(name, [f"buffer_load_dword v{V_DUMP}, v{V_F8}, {srd(SWS)}, s{S_FLAG} offen offset:{32*k} sc1"], [f"v_cmp_ne_u32 vcc, s{S_NONCE}, v{V_DUMP}"], name)
            return iss, [x for _, x in chk]
        order = [(0, k) for k in range(5)] + [(1, k) for k in range(5)] + [(0, 5), (1, 5)]
        epi = deque()
        for z, (rt, k) in enumerate(order):
            dn = OA + (rt * 6 + 5) * 4
            b = OA + rt * 24
            rdy = (z + 1) * NU + o.get('rdy', 4)
            if k == 0:
                epi.append((rdy, 1, f"v_fmac_f32 v{dn}, {EPS}, v{SP+rt}" if A else f"v_add_f32 v{dn}, {EPS}, v{dn}")); epi.append((rdy, 2, f"v_rcp_f32 v{dn}, v{dn}"))
                continue
            tt = k - 1
            for r in range(4): epi.append((rdy, 1, f"v_mul_f32 v{b+4*tt+r}, v{b+4*tt+r}, v{dn}"))
            for h in range(2):
                i = 2 * tt + h
                d = OB + ((i // 4) * 2 + rt) * 4 + i % 4 if i < 8 else LO + 2 * rt + (i - 8)
                epi.append((rdy, 1, f"v_cvt_pk_bf16_f32 v{d}, v{b+2*i}, v{b+2*i+1}"))
            if tt in (1, 3):
                u_ = tt // 2
                epi.append((0, 2, lambda u_=u_, rt=rt: ost(f"buffer_store_dwordx4 {vq(OB+(u_*2+rt)*4)}, v{V_OO+rt*2+u_}, {srd(SO)}, s{S_OP} offen", ('S', rt))))
        epi.append((0, 2, lambda: ost(f"buffer_store_dwordx4 {vq(LO)}, v{V_OO+4}, {srd(SO)}, s{S_OP} offen", ('S', 1))))
        LD = o.get('lead', 8); DF = o.get('df', 11); A_RING = A_PHI
        items = [(P, t_, (0, 1)) for P in range(2) for t_ in range(5)] + [(P, t_, (0,)) for P in range(2, 2 + LD) for t_ in range(5)] + \
                [(P, t_, (0, 1)) for P in range(2 + LD, 20) for t_ in range(5)] + [(P, t_, (1,)) for P in range(2, 2 + LD) for t_ in range(5)]
        def fread(i, hf):
            P, t_, _ = items[i]
            if True:
                if hf == 0:
                    off = RING + P * 5120 + 1024 * t_; hi = off >= 51200; s_ = A_RING + (i % DF) * 4
                    p(f"ds_read_b128 a[{s_}:{s_+3}], v{V_LINH if hi else V_LIN} offset:{off - 51200*hi}", ('FF', i))
                return
            off = RING + (P // 4) * SLOT + (P % 4) * 5120 + hf * 2560 + 8 * t_
            hi = off >= 51200; s_ = A_RING + (i % DF) * 4 + 2 * hf
            p(f"ds_read_b64_tr_b16 a[{s_}:{s_+1}], v{V_WT + hi} offset:{off - 51200*hi}", ('FF', i))
        pr = deque((i, 0) for i in range(DF - 1))
        m = 0; mf0 = o.get('mf0', 54 if A else 36); seen = set()
        for rt, k in order:
            for u_ in range(NU):
                n = k * NU + u_; tt = fr[n][0]
                a = OA + (rt * 6 + tt) * 4
                if m == 0: p.wait(lg=[('of', 0)])
                p(f"{MF} {vq(a)}, {aq(AO+4*n)}, {vq(ACC_K+20*rt+4*u_)}, {'0' if u_ == 0 else vq(a)}")
                m += 1
                if n + 1 < len(fr): p.wait(lg=[('of', n + 1)])
                bud = 2 if A else 3
                if m == mf0:
                    assert sum(1 for x in p.ins if x.tag == ('S', 0)) == 2
                    p.wait(vm=[('S', 0)]); flag(0); bud -= 2
                elif rds: more(1); bud -= 1 if not (epi and epi[0][0] <= m and epi[0][1] == 2) else 0
                elif self.dq and m % o.get('opace', 8) == 0: self.tick(); bud -= 2
                elif pr and not (epi and epi[0][0] <= m): fread(*pr.popleft()); bud -= 1
                while epi and epi[0][0] <= m and epi[0][1] <= bud:
                    _, c, x = epi.popleft(); bud -= c
                    self.put([x])
                    if callable(x): break
        while pr: fread(*pr.popleft())
        while len(epi) > 7: self.put([epi.popleft()[2]])
        while self.tick(): pass
        self.stamp()
        def ob(ks, rt):
            if ks < 2: return vq(OB + (ks * 2 + rt) * 4)
            return aq((ks * 2 + rt) * 4) if ks < 16 else vq(LO + (2 * (ks - 16) + rt) * 4)
        def ld(P, rt):
            if P < 16: return [(f"buffer_load_dwordx4 {aq((P*2+rt)*4)}, v{V_OO+rt*2+P%2}, {srd(SO)}, s{S_OP + P//2} offen sc1", ('O', P, rt))]
            return [(f"buffer_load_dwordx4 {vq(LO+(2*(P-16)+rt)*4)}, v{V_OO+4}, {srd(SO)}, s{S_OP + 2*(P-16) + rt} offen sc1", ('O', P, rt))]
        i0, c0 = poll(0, "L_f0"); i1, c1 = poll(1, "L_f1"); i2, c2 = poll(2, "L_d0"); i3, c3 = poll(3, "L_d1")
        lead = [ld(P, 0) for P in range(2, 2 + LD)]
        rest = [ld(P, rt) for P in range(2 + LD, 20) for rt in range(2) if (P, rt) != (16, 0)] + [ld(P, 1) for P in range(2, 2 + LD)]
        def handshake():
            self.put(c0)
            p.wait(vm=[('S', 1), ('W', 18), ('W', 19)])
            k1 = o.get('p1pos', 4)
            self.put(lead[:1]); flag(1)
            self.stamp()
            self.put(lead[1:k1]); p("s_barrier"); self.put(i1)
            self.q(0, lead[k1:]); self.q(10**6 + 50, rest)
            for _ in range(o.get('oprime', 7) - k1): self.tick()
            p.wait(vm=[('O', 2, 0)])
        E0 = len(items) - 5 * LD
        NI_ = len(items)
        def outp(rt):
            b = TMP + 8
            c = self.cvt20(acc(ACC_K, 0, rt), b)
            L = []
            for j in range(5): L += [c[2*j][1], c[2*j+1][1], (f"ds_write_b64 v{V_OW}, {vq(b+2*j, 2)} offset:{rt*16*OUTS + 8*j}", 'ow')]
            L += [(f"ds_read_b128 {vq(TMP+24+4*j)}, v{V_ORD+j} offset:{rt*16*OUTS}", ('or', j)) for j in range(3)]
            S_ = [(f"buffer_store_dwordx4 {vq(TMP+24+4*j)}, v{V_OG+j}, {srd(SOUT)}, s{S_OUT} offen", 'out') for j in range(3)]
            return L, S_
        vw, lw, sc_, vec = {}, {}, {}, {}
        add = lambda d, i, L: d.setdefault(i, []).extend(L)
        def check(i, c, tag, gapn):
            add(vw, i, [tag]); add(vec, i, [c[1]]); add(sc_, i + gapn, [c[2]])
        ep = [x[2] for x in epi]
        add(vec, 1, ep[:3]); add(vec, 2, ep[3:6]); add(vec, 3, ep[6:])
        add(vec, o.get('p0pos', 4), i0)
        add(vec, 9, [handshake])
        ci = 10 + o.get('c1pos', 5); check(ci, c1, "L_f1", 2); add(sc_, ci + 2, [lambda: self.release(50)])
        for i in range(15, NI_, 5):
            Pn, _, rn = items[i]
            tags = [('O', Pn, rt) for rt in rn]
            if Pn >= 16:
                a = LO + 2 * (Pn - 16) * 4
                add(vw, i - 2, tags); add(vec, i - 2, [f"v_swap_b32 v{a+2}, v{a+4}", f"v_swap_b32 v{a+3}, v{a+5}"])
            else: add(vw, i - 1, tags)
        nd0 = E0 - o.get('d0', 8); add(vw, nd0, [('O', 19, 0), ('O', 19, 1)]); add(vec, nd0, [lambda: flag(2)])
        add(vec, E0 + o.get('d0p', 0), i2)
        L0, S0 = outp(0)
        for j, x in enumerate(L0): add(vec, E0 + 2 + j, [x])
        nd1 = NI_ - o.get('d1', 19); add(vw, nd1, [('O', 1 + LD, 1)]); add(vec, nd1, [lambda: flag(3)])
        check(E0 + 22, c2, "L_d0", 2)
        for j, x in enumerate(S0): add(lw, E0 + 25 + 2 * j, [('or', j)]); add(vec, E0 + 25 + 2 * j, [x])
        add(vec, NI_ - o.get('d1p', 4), i3)
        add(sc_, NI_ - 5, [f"s_or_b32 s{T0}, s{S_RB}, s{S_HEAD}"]); add(sc_, NI_ - 4, [f"s_cmp_lg_u32 s{T0}, 0"]); add(sc_, NI_ - 3, [f"s_cselect_b32 s{T0}, {WS_SIZE}, 0"])
        add(vec, NI_ - 2, [(f"buffer_store_dword v{V_NONCE}, v{V_FOWN}, {srd(SWS)}, s{T0} offen offset:{br*128} sc1", 'nn')])
        p.wait(lg=[('FF', 0)])
        clk = 0.0; per = o.get('lper', 4.6)
        for i, (P, t_, rts) in enumerate(items):
            s_ = A_RING + (i % DF) * 4
            for z, rt in enumerate(rts):
                a = acc(ACC_K, t_, rt)
                p(f"{MF} {vq(a)}, {aq(s_)}, {ob(P, rt)}, {'0' if P == 0 else vq(a)}")
                if z == 0:
                    k0 = len(p.ins)
                    for tg in vw.get(i, []): self.flush_dma(tg)
                    p.wait(vm=vw.get(i), lg=[('FF', i + 1)] + lw.get(i, []))
                    if len(rts) == 1: self.put(sc_.get(i, []))
                    if i + DF - 1 < NI_:
                        if len(p.ins) == k0: p("s_nop 0")
                        fread(i + DF - 1, 0)
                else: self.put(sc_.get(i, []))
            self.stamp('z%d' % i)
            if i >= 10:
                clk += len(rts)
                if clk >= per and i not in vec and self.tick(): clk -= per
            self.put(vec.get(i, []))
        self.stamp()
        L1, S1 = outp(1)
        p(f"s_add_u32 s{S_OUT}, s{S_OUT}, {16*2560}")
        self.put(L1[:12]); self.put(c3[:2]); self.put(L1[12:]); self.put(c3[2:])
        for j in range(3): p.wait(lg=[('or', j)]); self.put([S1[j]])
        if o.get('stamps'):
            p("s_waitcnt vmcnt(0)")
            self.stamp()
            p("s_memrealtime s[100:101]")
            p("s_waitcnt lgkmcnt(0)")
            p.raw(f"""
            s_lshl_b32 s{T0}, s2, 2
            s_add_u32 s{T0}, s{T0}, s{S_W}
            s_lshl_b32 s{T0}, s{T0}, 6
            s_add_u32 s{T0}, s{T0}, {WS_ST}
            v_mov_b32 v{TMP+16}, 0
            v_mov_b32 v{TMP}, s98
            v_mov_b32 v{TMP+1}, s100
            """)
            for k in range(14): p(f"v_mov_b32 v{TMP+2+k}, {'s%d' % (S_ST+k) if k < self.nst else ('s95' if k == 13 else 0)}")
            p("s_mov_b64 exec, 1")
            for k in range(4): p(f"buffer_store_dwordx4 {vq(TMP+4*k)}, v{TMP+16}, {srd(SWS)}, s{T0} offen offset:{16*k}")
        if o.get('amp'):
            p("s_waitcnt vmcnt(0)")
            self.stamp()
            if o['amp'][0] < 0: p("s_mov_b32 s100, s98")
            p.raw(f"""
            s_and_b32 s{T0}, s2, 7
            s_lshr_b32 s{T0}, {o['amp'][2]}, s{T0}
            s_bitcmp1_b32 s{T0}, 0
            s_cbranch_scc0 L_ampx{self.sfx}
            s_load_dwordx2 s[62:63], s[0:1], 64
            v_mov_b32 v2, 0
            s_waitcnt lgkmcnt(0)
            global_load_dword v3, v2, s[62:63] sc1
            s_waitcnt vmcnt(0)
            v_readfirstlane_b32 s{T2}, v3
            s_not_b32 s{T2}, s{T2}
            s_sub_u32 s{T0}, s100, s{T2}
            s_add_u32 s{T0}, s{T0}, 300
            s_mul_i32 s{T0}, s{T0}, {o['amp'][1]}
            s_min_u32 s{T0}, s{T0}, 100000
            L_amp{self.sfx}:
            s_sleep 2
            s_memrealtime s[64:65]
            s_waitcnt lgkmcnt(0)
            s_sub_u32 s{T1}, s64, s{T2}
            s_cmp_lt_u32 s{T1}, s{T0}
            s_cbranch_scc1 L_amp{self.sfx}
            L_ampx{self.sfx}:
            """)
        p("s_endpgm")
        assert not self.dq

def sizes(lines):
    import subprocess, re
    src = '.amdgcn_target "amdgcn-amd-amdhsa--gfx950"\n.text\n' + "\n".join(lines) + "\n"
    r = subprocess.run(["llvm-mc", "-triple=amdgcn-amd-amdhsa", "-mcpu=gfx950", "-show-encoding"], input=src, capture_output=True, text=True)
    assert r.returncode == 0, r.stderr[:2000]
    return [len(m.split(',')) for m in re.findall(r'encoding: \[([^\]]*)\]', r.stdout)]
def add_hops(text, sfx, align=True):
    lines = text.split("\n")
    i0 = lines.index(f"L_main{sfx}:"); i1 = next(i for i in range(i0, len(lines)) if lines[i].strip() == "s_endpgm")
    body = lines[i0 + 1:i1]
    isi = lambda l: l.startswith("    ")
    szl = sizes([l for l in body if isi(l)])
    insl = [l.strip() for l in body if isi(l)]
    big = [z == 8 and t.startswith("v_") and not t.startswith("v_mfma") for z, t in zip(szl, insl)]
    run = [0] * (len(big) + 1)
    for k in range(len(big) - 1, -1, -1): run[k] = run[k + 1] + 1 if big[k] else 0
    sz = iter(szl); k = -1; nfix = 0
    out = []; addr = 0; page = 0; prev = "v_mfma"
    for l in body:
        if isi(l):
            k += 1
            if align and run[k] >= 3 and addr % 8 == 4:
                pv = out[-1] if isinstance(out[-1], str) else ""
                op = pv.split()[0] if pv.strip() else ""
                if isi(pv) and szl[k - 1] == 4 and op.startswith("v_") and not op.startswith(("v_cmp", "v_swap", "v_permlane", "v_readfirst")):
                    out[-1] = pv.replace(op, op + "_e64", 1); addr += 4; nfix += 1
                elif run[k] >= 6: out.append("    s_nop 0"); addr += 4; nfix += 1
            off = addr - page * 4096
            if off >= 0 and (prev.startswith("v_mfma") or off >= 40) and not prev.startswith("s_mov_b64 exec") :
                out.append(("hop", page)); addr += 4; page += 1
            addr += next(sz); prev = l.strip()
        out.append(l)
    assert page >= 4
    res = []
    for x in out:
        if isinstance(x, tuple):
            k = x[1]
            res += [f"L_hop{k}{sfx}:", f"    s_cbranch_execz " + (f"L_hop{k+4}{sfx}" if k + 4 < page else f"L_hopret{sfx}")]
        else: res.append(x)
    print(sfx, "main bytes", addr, "align fixes", nfix, file=sys.stderr)
    return "\n".join(lines[:i0 + 1] + res + lines[i1:])

def build(opt):
    ref = open(f"cdna_kernels/{NAME}.s.ref").read().split("\n")
    head = [l for l in ref if l.startswith(";") and "@launch" not in l]
    s = "\n".join(head) + "\n; @launch grid=(256,1,1) block=(256,1,1) lds=163840\n"
    s += f""".amdgcn_target "amdgcn-amd-amdhsa--gfx950"
.text
.globl {NAME}_kernel
.p2align 12
.p2align 8
.type {NAME}_kernel,@function
{NAME}_kernel:
    s_cmp_ge_u32 s2, 256
    s_cbranch_scc1 L_exit
"""
    ga = Gen(True, opt); ta = ga.body(); gb = Gen(False, opt); tb = gb.body()
    ca, ra = ta.split(".split\n"); cb, rb = tb.split(".split\n")
    assert ca == cb
    if opt.get('hops', 1): ra = add_hops(ra, 'A', opt.get('align', 1)); rb = add_hops(rb, 'B', opt.get('align', 1))
    s += ca + ra + "L_exit:\n    s_endpgm\n.p2align 12\n" + rb
    s += ".fill 2048, 4, 0xbf810000\n"
    s += f""".section .rodata,"a"
.p2align 6
.amdhsa_kernel {NAME}_kernel
  .amdhsa_next_free_vgpr 512
  .amdhsa_next_free_sgpr 102
  .amdhsa_accum_offset 256
  .amdhsa_group_segment_fixed_size 0
  .amdhsa_kernarg_size 80
  .amdhsa_user_sgpr_count 2
  .amdhsa_user_sgpr_kernarg_segment_ptr 1
  .amdhsa_system_sgpr_workgroup_id_x 1
.end_amdhsa_kernel
"""
    print("nops", ga.p.nops, gb.p.nops, "instrs", len(ga.p.ins), len(gb.p.ins), "autow", getattr(ga.p, 'autow', 0), file=sys.stderr)
    return s

if __name__ == "__main__":
    import json
    opt = json.loads(sys.argv[2]) if len(sys.argv) > 2 else {}
    open(sys.argv[1], "w").write(build(opt))
```

```python
import sys
from collections import deque
from emit import Prog
NAME = "concat_heads__linear_kernel_hedgehog__linear_attn_block__prompt"

S_RB, S_HG, S_W = 4, 5, 7
SX, SW, SWO, SWS, SOUT, SPHI = 8, 12, 16, 20, 24, 28
S_NONCE = 32
S_WROW = 33
S_XBASE, S_XU = 38, 39
S_LW, S_LR = 40, 41
T0, T1, T2, T3 = 42, 43, 44, 45
S_WOROW = 46
S_HEAD = 51
S_SPIN = 52
S_FAST = 53
S_L2E, S_NL2E = 54, 55
S_OB = 56
S_WS, S_XS = 57, 58
S_FLAG = 59
S_OP = 60
S_P1ST, S_P1LD, S_P2ST, S_P2LD, S_OWN, S_OUT, S_XCCV, S_PERM = 68, 69, 70, 71, 72, 73, 74, 75
S_KA = 76
S_ST = 76
import os
if os.environ.get('PRO'): S_ST = 88
def srd(b): return f"s[{b}:{b+3}]"
V_LANE = 1
V_WO = 2; V_OF = 7; V_OL = 12; V_XO = 17; V_XR = 21; V_WT = 23; V_LIN = 25
V_PW, V_VW, V_KB, V_KA0, V_KA1, V_FR = 26, 27, 28, 29, 30, 31
ACC_K, ACC_V = 32, 72
TMP = 112
PV = 228
V_P1ST, V_P1LD, V_P2ST, V_GAL, V_LA, V_FR2, V_KEEP, V_ONE, V_OW, V_ORD, V_OG, V_F8, V_DUMP, V_ZA = PV, PV+1, PV+2, PV+3, PV+4, PV+8, PV+9, PV+10, PV+11, PV+12, PV+17, PV+22, PV+23, PV+24
V_L128, V_NONCE, V_FOWN = PV + 25, PV + 26, PV + 27
RING = 0; SLOT = 20480; RBASE = 102400; RW = 15360
OUTL = RBASE + 16384; OUTS = 176
WS_FLAG, WS_XCC, WS_P2, WS_P1, WS_O, WS_ST = 4096, 32768, 65536, 1 << 20, 8 << 20, 16 << 20
WS_SIZE = 32 << 20
D = 6
A_RING = 220
A_PHI = 160
A_PARK = 244
V_OO = 7; V_LINH = 12; V_PF = 13; V_P1M = 14
WS_PF = 49152; WS_PK = 6 << 20
S_USRC, S_UDST, S_UFL, S_UTAG, S_PFL, S_XA = 3, 6, 72, 90, 91, 93
SO = SPHI
SPIN_MAX = 20000
EPS = "0x358637bd"

def vq(b, n=4): return f"v[{b}:{b+n-1}]"
def aq(b, n=4): return f"a[{b}:{b+n-1}]"
def acc(base, t, rt): return base + (rt * 5 + t) * 4
MF = "v_mfma_f32_16x16x32_bf16"

DEF = {'A': dict(xpos=(117, 190, 222), qpace=4, pfpos=101, pfchk=28, prokeep=4, proev=120, h1=(56, 84), h2lead=30, kpace=4, hx=30, vsync=1, qev=26), 'B': dict(xpos=(117, 190, 222), upos=(18, 18, 62), pfpos=101, pfchk=28, h1=(44, 70), h2lead=100, prepos=290, vpace=4, qev=24, vsync=1)}
class Gen:
    def __init__(self, isA, opt):
        self.A = isA
        sf = 'A' if isA else 'B'
        opt = dict(DEF[sf], **opt)
        opt.update({k[:-1]: v for k, v in opt.items() if k.endswith(sf)})
        self.o = opt
        self.p = Prog(); self.sfx = 'A' if isA else 'B'
        self.F = 40 if isA else 20
        self.nst = 0
        self.dq = deque()
        self.pos = 0
        self.ool = []
    def stamp(self, name=None):
        p = self.p
        fine = self.o.get('fine')
        if fine:
            if name is None: self.cs = getattr(self, 'cs', 0) + 1; name = 's%d' % (self.cs - 1)
            if name not in fine: return
        elif name is not None: return
        if self.o.get('amp'):
            if self.nst == self.o['amp'][0]:
                p("s_memrealtime s[100:101]"); p("s_waitcnt lgkmcnt(0)")
            self.nst += 1
            return
        if not self.o.get('stamps'): return
        p(f"s_memrealtime s[100:101]" if self.o.get('rt') else f"s_memtime s[100:101]")
        p("s_waitcnt lgkmcnt(0)")
        p(f"s_sub_u32 s{S_ST+self.nst}, s100, {'s98' if self.o.get('rt') else 's96'}")
        self.nst += 1
    def put(self, L):
        for x in L:
            if isinstance(x, tuple): self.p(x[0], x[1])
            elif isinstance(x, list): self.put(x)
            elif callable(x): x()
            else: self.p(x)
    def dma_w(self, G):
        g = G % 5
        pre = [f"s_add_u32 m0, s{S_LW}, {RING + g*SLOT}"]
        if G < 15:
            col = {0: 1280, 1: 2560, 2: 0}[G // 5]
            gr = 4 - g if G // 5 in self.o.get('rev', [1, 2]) else g
            pre.append(f"s_add_u32 s{S_WS}, s{S_WROW+gr}, {col}"); so = f"s{S_WS}"; sd = SW; vo = V_WO
        else:
            items = []
            for j in range(5):
                off = f"offset:{j*1024} " if 0 < j < 4 else ""
                L = (pre if j == 0 else []) + [(f"buffer_load_dwordx4 v{V_LIN}, {srd(SWS)}, s{S_WOROW+g} offen {off}sc1 lds", ('W', G))]
                if j == 3: L += [f"s_add_u32 m0, s{S_LW}, {RING + g*SLOT + 4096}", f"s_add_u32 s{S_WOROW+g}, s{S_WOROW+g}, 4096"]
                items.append(L)
            return items
        items = []
        if G // 5 in self.o.get('fake', []):
            base = (G % 5) * 4 * 5120 + (G // 5 if G < 15 else 0) * 819200
            pre = [pre[0], f"s_add_u32 s{S_WS}, s94, {base}"]
            for j in range(5):
                off = f"offset:{j*1024} " if 0 < j < 4 else ""
                L = (pre if j == 0 else []) + [(f"buffer_load_dwordx4 v{V_LIN}, {srd(sd)}, s{S_WS} offen {off}lds", ('W', G))]
                if j == 3: L += [f"s_add_u32 m0, s{S_LW}, {RING + g*SLOT + 4096}", f"s_add_u32 s{S_WS}, s{S_WS}, 4096"]
                items.append(L)
            return items
        for j in range(5):
            off = f"offset:{j*1024} " if 0 < j < 4 else ""
            L = (pre if j == 0 else []) + [(f"buffer_load_dwordx4 v{vo+j}, {srd(sd)}, {so} offen {off}lds", ('W', G))]
            if j == 3: L.append(f"s_add_u32 m0, s{S_LW}, {RING + g*SLOT + 4096}")
            items.append(L)
        return items
    def dma_x(self, pu):
        items = []
        for j in range(4):
            off = f"offset:{j*1024} " if j else ""
            L = []
            if j == 0: L += [f"s_add_u32 m0, s{S_LR}, {(pu % 3) * 4096}", f"s_add_u32 s{S_XS}, s{S_XU}, s{S_XBASE}"]
            L.append((f"buffer_load_dwordx4 v{V_XO+j}, {srd(SX)}, s{S_XS} offen {off}lds", ('X', pu)))
            if j == 0: L += [f"s_add_u32 s{S_XU}, s{S_XU}, 128"]
            if j == 1: L += [f"s_cmp_eq_u32 s{S_XU}, 1280", f"s_cselect_b32 s{S_XU}, 0, s{S_XU}"]
            items.append(L)
        return items
    def q(self, earliest, items):
        for it in items: self.dq.append((earliest, it))
    def release(self, k):
        self.dq = deque((0 if e == 10**6 + k else e, it) for e, it in self.dq)
    def tick(self):
        if self.dq and not getattr(self, 'pfok', False) and any(isinstance(x, tuple) and x[1] == ('W', 15) for x in self.dq[0][1]): return False
        if self.dq and self.dq[0][0] <= self.pos:
            self.put(self.dq.popleft()[1]); return True
        return False
    def flush_dma(self, tag):
        def has():
            return any(isinstance(x, tuple) and x[1] == tag for _, it in self.dq for x in it)
        while has():
            assert self.dq[0][0] <= self.pos, (tag, self.pos, self.dq[0])
            self.put(self.dq.popleft()[1])
    def run(self, L, every=30):
        c = 0
        for cost, x in L:
            self.put([x]); c += cost
            if c >= every: c = 0; self.tick()
    def wread(self, N, hf):
        G = N // 20; ks = (N % 20) // 5; t = N % 5
        off = RING + (G % 5) * SLOT + ks * 5120 + hf * 2560 + 8 * t
        hi = off >= 51200
        s = A_RING + (N % D) * 4 + 2 * hf
        if G // 5 in self.o.get('fake', []):
            if hf == 0:
                off = RING + (G % 5) * SLOT + ks * 5120 + 1024 * t
                hi = off >= 51200
                self.p(f"ds_read_b128 a[{s}:{s+3}], v{226 + hi} offset:{off - 51200*hi}", ('F', N))
            return
        self.p(f"ds_read_b64_tr_b16 a[{s}:{s+1}], v{V_WT + hi} offset:{off - 51200*hi}", ('F', N))
    def group_sync(self, G):
        self.flush_dma(('W', G))
        self.p.wait(vm=[('W', G)])
        self.p("s_barrier")
    def xread(self, pu, k):
        ksub, rt = divmod(k, 2)
        if k == 0:
            self.flush_dma(('X', pu)); self.p.wait(vm=[('X', pu)])
        a = ((2 * pu + ksub) * 2 + rt) * 4
        self.p(f"ds_read_b128 {aq(a)}, v{V_XR+ksub} offset:{(pu % 3)*4096 + rt*2048}", ('XR', pu))
    def prime(self, ps, sync=True):
        if sync: self.group_sync(ps * 5)
        for n in range(D - 1):
            self.wread(ps * 100 + n, 0); self.wread(ps * 100 + n, 1)
    def gemm_pass(self, ps, accb, bop, fill=None, hooks=None, last=False, pace=None, sync=True, frange=(0, 100), hooks0=None):
        p = self.p
        fill = deque(fill or []); hooks = hooks or {}; hooks0 = hooks0 or {}
        N0 = ps * 100
        p.wait(lg=[('F', N0), ('XR', 0)])
        pace = pace or (lambda n: 0)
        for n in range(100):
            self.pos = N0 + n
            ks, t = divmod(n, 5)
            s = A_RING + ((N0 + n) % D) * 4
            M = n + D - 1
            look = M < 100 or not last
            a = acc(accb, t, 0)
            p(f"{MF} {vq(a)}, {aq(s)}, {bop(ks, 0)}, {'0' if ks == 0 else vq(a)}")
            k0 = len(p.ins)
            if n < 99:
                tg = [('F', N0 + n + 1)]
                if ps == 0 and (n + 1) % 10 == 0: tg.append(('XR', (n + 1) // 10))
                p.wait(lg=tg)
            if n in hooks0: self.put(hooks0[n])
            if look:
                if M % 20 == 0 and sync: self.group_sync((N0 + M) // 20)
                if len(p.ins) == k0: p("s_nop 0")
                self.wread(N0 + M, 0); self.wread(N0 + M, 1)
                if ps in self.o.get('fake', []) and fill and n >= frange[0] and not isinstance(fill[0][1], tuple): self.gap(fill, 1 if fill[0][0] < 2 or n % 2 else 2)
            elif fill and n >= frange[0]: self.gap(fill, 2)
            a = acc(accb, t, 1)
            p(f"{MF} {vq(a)}, {aq(s)}, {bop(ks, 1)}, {'0' if ks == 0 else vq(a)}")
            self.pos = N0 + n + 1
            self.stamp('n%d' % (N0 + n))
            did = 0
            for _ in range(pace(n)): did += self.tick()
            if n in hooks: self.put(hooks[n])
            if fill and n >= frange[0]:
                left = sum(c for c, _ in fill)
                gaps = sum(1 for k in range(n, frange[1]) if not pace(k)) + (min(D - 1, 99 - n) if last and frange[1] == 100 else 0)
                bud = 0 if did else 2
                if left > (3 if ps in self.o.get('fake', []) else 2) * gaps: bud += 2
                if ps == 2 and left > 4 * gaps: bud = -(-left // max(gaps, 1))
                self.gap(fill, bud)
        while fill: self.put([fill.popleft()[1]])
        self.pos = N0 + 100
    def gap(self, fill, bud):
        first = True
        while fill:
            c, x = fill[0]
            solo = isinstance(x, tuple)
            if c > bud or (solo and not first): break
            fill.popleft(); self.put([x]); bud -= c
            if solo: break
            if c: first = False
    def cvt20(self, src, dst):
        return [(1, f"v_cvt_pk_bf16_f32 v{dst+i}, v{src+2*i}, v{src+2*i+1}") for i in range(10)]
    def phiA_parts(self, x, e, m, name, isq):
        P = {}
        kb = e + 28
        P['cvt'] = self.cvt20(x, kb) + [(1, f"v_mov_b32 v{kb+10}, 0"), (1, f"v_mov_b32 v{kb+11}, 0")]
        P['mf'] = [(2, f"{MF} {vq(x+4*t)}, {aq(A_PHI + (t*3+u)*4)}, {vq(kb+4*u)}, {'0' if u == 0 else vq(x+4*t)}") for t in range(5) for u in range(3)]
        P['exp'] = [(2, f"v_exp_f32 v{e+i}, v{x+i}") for i in range(20)] + [(2, f"v_exp_f32 v{e+20+i}, -v{x+i}") for i in range(20)]
        def sums():
            L = [f"v_pk_add_f32 v[{m+2*h}:{m+2*h+1}], v[{e+20*h}:{e+20*h+1}], v[{e+20*h+2}:{e+20*h+3}]" for h in range(2)]
            L += [f"v_pk_add_f32 v[{m+2*h}:{m+2*h+1}], v[{m+2*h}:{m+2*h+1}], v[{e+20*h+2*i}:{e+20*h+2*i+1}]" for i in range(2, 10) for h in range(2)]
            L += [f"v_add_f32 v{m+2*h}, v{m+2*h}, v{m+2*h+1}" for h in range(2)]
            return L
        nm = name + self.sfx
        L = sums() + [f"v_max_f32 v{m+1}, v{m}, v{m+2}", f"v_cmp_ngt_f32 vcc, 0x5d800000, v{m+1}"]
        if not isq: L.append(f"v_rcp_f32 v{m+4}, v{m}")
        L += [f"v_rcp_f32 v{m+2}, v{m+2}", [f"s_cbranch_vccnz {nm}_slow", f"{nm}_back:"]]
        o = Prog()
        o(f"{nm}_slow:")
        o(f"v_max3_f32 v{m}, v{x}, v{x+1}, v{x+2}"); o(f"v_min3_f32 v{m+1}, v{x}, v{x+1}, v{x+2}")
        for i in range(3, 19, 2):
            o(f"v_max3_f32 v{m}, v{m}, v{x+i}, v{x+i+1}"); o(f"v_min3_f32 v{m+1}, v{m+1}, v{x+i}, v{x+i+1}")
        o(f"v_max_f32 v{m}, v{m}, v{x+19}"); o(f"v_min_f32 v{m+1}, v{m+1}, v{x+19}")
        for i in range(20): o(f"v_sub_f32 v{e+i}, v{x+i}, v{m}"); o(f"v_sub_f32 v{e+20+i}, v{m+1}, v{x+i}")
        for i in range(40): o(f"v_exp_f32 v{e+i}, v{e+i}")
        for y in sums(): o(y)
        if not isq: o(f"v_rcp_f32 v{m+4}, v{m}")
        o(f"v_rcp_f32 v{m+2}, v{m+2}"); o("s_nop 1"); o(f"s_branch {nm}_back")
        self.ool.append(o.finalize())
        if isq: L.append(f"v_mul_f32 v{m+2}, v{m+2}, v{m}")
        else: L += [f"v_pk_mul_f32 v[{e+2*i}:{e+2*i+1}], v[{e+2*i}:{e+2*i+1}], v[{m+4}:{m+5}] op_sel_hi:[1,0]" for i in range(10)]
        L += [f"v_pk_mul_f32 v[{e+20+2*i}:{e+21+2*i}], v[{e+20+2*i}:{e+21+2*i}], v[{m+2}:{m+3}] op_sel_hi:[1,0]" for i in range(10)]
        P['norm'] = [(1, y) for y in L]
        P['out'] = [(1, f"v_cvt_pk_bf16_f32 v{x+i}, v{e+2*i}, v{e+2*i+1}") for i in range(20)]
        return P
    def weave(self, mf, va, per=2):
        va = deque(va); L = []
        for x in mf:
            L.append(x); b = per
            while va and va[0][0] <= b: b -= va[0][0]; L.append(va.popleft())
        return L + list(va)
    def phiB(self, x, e, packed):
        L = []
        if packed: L += [(1, f"v_pk_mul_f32 v[{e+2*i}:{e+2*i+1}], v[{x+2*i}:{x+2*i+1}], s[{S_L2E}:{S_NL2E}] op_sel_hi:[1,0]") for i in range(10)]
        else: L += [(1, f"v_mul_f32 v{e+i}, s{S_L2E}, v{x+i}") for i in range(20)]
        L += [(2, f"v_exp_f32 v{e+i}, v{e+i} clamp") for i in range(20)]
        L += [(1, f"v_max_f32 v{x+i}, {EPS}, v{x+i}") for i in range(20)]
        if packed: L += [(1, f"v_pk_add_f32 v[{e+2*i}:{e+2*i+1}], v[{e+2*i}:{e+2*i+1}], v[{x+2*i}:{x+2*i+1}]") for i in range(10)]
        else: L += [(1, f"v_add_f32 v{e+i}, v{e+i}, v{x+i}") for i in range(20)]
        L += self.cvt20(e, x)
        return L
    def checked(self, name, loads, check, tag):
        nm = name + self.sfx
        iss = [(x, tag) if x.startswith('buffer') else x for x in loads]
        chk = [(0, lambda: self.p.wait(vm=[tag]))] + [(1, x) for x in check] + [(1, [f"s_cbranch_vccnz {nm}_retry", f"{nm}_ok:"])]
        o = Prog()
        o(f"{nm}_retry:"); o(f"s_mov_b32 s{S_SPIN}, 0"); o(f"{nm}_loop:")
        if self.o.get('stamps'): o(f"s_add_u32 s95, s95, {dict(L_xc=1000000, L_h1=10000, L_h2=1000, L_pf=10000000, L_f0=1, L_f1=100, L_d0=0, L_d1=100000)[name]}")
        for x in loads: o(x)
        o("s_waitcnt vmcnt(0)")
        for x in check: o(x)
        o(f"s_cbranch_vccz {nm}_ok")
        o(f"s_add_u32 s{S_SPIN}, s{S_SPIN}, 1"); o(f"s_cmp_lt_u32 s{S_SPIN}, {SPIN_MAX}"); o(f"s_cbranch_scc1 {nm}_loop")
        o(f"s_branch {nm}_ok")
        self.ool.append(o.finalize())
        return iss, chk
    def body(self):
        p = self.p; A = self.A; F = self.F; br = 0 if A else 1; o = self.o
        t = TMP
        K = S_KA
        kx, kw, kout, kws = K, K + 2, K + 8, K + 10
        kphi, kwo = (K + 4, K + 6) if A else (None, K + 4)
        p.raw(f"""
        s_andn2_b32 s{T0}, 1, s2
        s_lshl_b32 s{T0}, s{T0}, 5
        s_load_dwordx8 s[{K}:{K+7}], s[0:1], s{T0}
        s_load_dwordx2 s[{kout}:{kout+1}], s[0:1], 56
        s_load_dwordx2 s[{kws}:{kws+1}], s[0:1], 72
        """)
        if o.get('stamps'): p("s_memtime s[96:97]"); p("s_mov_b32 s95, 0")
        if o.get('stamps') or o.get('amp'): p("s_memrealtime s[98:99]")
        p.raw(f"""
        s_getpc_b64 s[60:61]
        L_pc:
        s_bfe_u32 s{S_HG}, s2, 0x30003
        v_and_b32 v{V_LANE}, 63, v0
        v_lshrrev_b32 v{t}, 6, v0
        s_bitcmp0_b32 s2, 0
        s_cselect_b32 s{T1}, L_setupB-L_setupA, 0
        s_lshl_b32 s{T0}, s{S_HG}, 12
        v_lshlrev_b32 v{V_L128}, 7, v{V_LANE}
        v_readfirstlane_b32 s{S_W}, v{t}
        s_add_u32 s{T0}, s{T0}, s{T1}
        s_add_u32 s{T0}, s{T0}, L_setupA-L_pc
        s_add_u32 s60, s60, s{T0}
        s_addc_u32 s61, s61, 0
        v_lshl_add_u32 v{t+1}, v{t}, 10, v{V_L128}
        s_mov_b64 exec, 0xff
        """)
        p(f"global_load_dword v{V_DUMP}, v{t+1}, s[60:61]", 'cpf')
        p("s_mov_b64 exec, -1")
        ra, rbm, rdiv = o.get('rot', (10, 10, 4))
        p.raw(f"""
        s_and_b32 s{S_RB}, s2, 6
        s_lshl_b32 s{S_RB}, s{S_RB}, 1
        s_lshr_b32 s{T0}, s2, 6
        s_add_u32 s{S_RB}, s{S_RB}, s{T0}
        s_mul_i32 s{T0}, s{S_HG}, {ra}
        s_mul_i32 s{T1}, s{S_RB}, {rbm}
        s_add_u32 s{T0}, s{T0}, s{T1}
        s_lshr_b32 s{T0}, s{T0}, {rdiv.bit_length()-1}
        s_mul_i32 s{T1}, s{T0}, 6554
        s_lshr_b32 s{T1}, s{T1}, 16
        s_mul_i32 s{T1}, s{T1}, 10
        s_sub_u32 s{T3}, s{T0}, s{T1}
        s_lshl_b32 s{S_XU}, s{T3}, 7
        s_lshl_b32 s{T0}, s{S_RB}, 2
        s_add_u32 s{T0}, s{T0}, s{S_W}
        s_mul_i32 s{S_XBASE}, s{T0}, 40960
        s_mul_i32 s{S_LW}, s{S_W}, 5120
        s_mul_i32 s{S_LR}, s{S_W}, {RW}
        s_add_u32 s{S_LR}, s{S_LR}, {RBASE}
        v_lshrrev_b32 v{t}, 3, v{V_LANE}
        v_mul_u32_u24 v{t}, 1280, v{t}
        v_lshrrev_b32 v{t+1}, 4, v{V_LANE}
        v_xor_b32 v{t+1}, v{t+1}, v{V_LANE}
        v_and_b32 v{t+1}, 7, v{t+1}
        v_lshl_add_u32 v{V_XO}, v{t+1}, 4, v{t}
        v_xor_b32 v{t+2}, 64, v{V_XO}
        v_add_u32 v{V_XO+1}, {9216}, v{t+2}
        v_add_u32 v{V_XO+2}, {2*9216}, v{V_XO}
        v_add_u32 v{V_XO+3}, {3*9216}, v{t+2}
        s_lshr_b32 s{T0}, s{S_W}, 1
        s_add_u32 s{T0}, s{T0}, s{T3}
        s_and_b32 s{T1}, s{S_W}, 1
        s_mul_i32 s{T1}, s{T1}, {32*3840}
        s_mul_i32 s{T2}, s{S_HG}, 160
        s_add_u32 s{T1}, s{T1}, s{T2}
        s_mov_b32 s{SX+2}, 2621440
        s_mov_b32 s{SX+3}, 0x20000
        s_mov_b32 s{SW+2}, 2457600
        s_mov_b32 s{SW+3}, 0x20000
        """)
        def wrow(g):
            p.raw(f"""
            s_cmp_ge_u32 s{T0}, 10
            s_cselect_b32 s{T2}, 10, 0
            s_sub_u32 s{T0}, s{T0}, s{T2}
            s_mul_i32 s{T2}, s{T0}, {64*3840}
            s_add_u32 s{S_WROW+g}, s{T2}, s{T1}
            s_add_u32 s{T0}, s{T0}, 2
            """)
        wrow(0)
        RH = TMP + 10
        def woff(j):
            b = RH + 5 * j
            p.raw(f"""
            v_add_u32 v{t}, {64*j}, v{V_LANE}
            v_mul_u32_u24 v{b+4}, 6554, v{t}
            v_lshrrev_b32 v{b+4}, 16, v{b+4}
            v_mul_u32_u24 v{t+2}, 10, v{b+4}
            v_sub_u32 v{b+3}, v{t}, v{t+2}
            v_bfe_u32 v{b}, v{b+4}, 2, 2
            v_lshrrev_b32 v{b+1}, 4, v{b+4}
            v_and_b32 v{b+2}, 3, v{b+4}
            v_lshl_add_u32 v{t}, v{b}, 1, v{b+1}
            v_lshl_add_u32 v{t}, v{t}, 2, v{b+2}
            v_mul_u32_u24 v{t}, 3840, v{t}
            v_lshl_add_u32 v{V_WO+j}, v{b+3}, 4, v{t}
            """)
            if 0 < j < 4: p(f"v_subrev_u32 v{V_WO+j}, {1024*j}, v{V_WO+j}")
        if o.get('fake'):
            p.raw(f"""
            s_mul_i32 s94, s{S_HG}, 102400
            s_add_u32 s94, s94, s{S_LW}
            v_lshlrev_b32 v{V_LIN}, 4, v{V_LANE}
            v_mov_b32 v226, v{V_LIN}
            v_add_u32 v227, 51200, v{V_LIN}
            """)
        woff(0); woff(1)
        if o.get('pre0'): p("s_memtime s[92:93]")
        p.raw(f"""
        s_waitcnt lgkmcnt(0)
        s_mov_b32 s{SX}, s{kx}
        s_mov_b32 s{SX+1}, s{kx+1}
        s_mov_b32 s{SW}, s{kw}
        s_mov_b32 s{SW+1}, s{kw+1}
        """)
        self.stamp('p0')
        if o.get('pre0'): p(f"s_sub_u32 s{S_ST+self.nst}, s92, s96"); self.nst += 1
        self.put(self.dma_x(0))
        w0 = self.dma_w(0)
        self.put(w0[0:2]); woff(2); self.put(w0[2]); woff(3); self.put(w0[3]); woff(4); self.put(w0[4])
        self.stamp('p1')
        if o.get('prowait'):
            p.wait(vm=['cpf']); self.stamp('p2')
            p.wait(vm=[('X', 0)]); self.stamp('p3')
            p.wait(vm=[('W', 0)]); self.stamp('p4')
        p("s_bitcmp0_b32 s2, 0"); p("s_cbranch_scc1 L_setupB")
        p(".split")
        p(f"L_setup{self.sfx}:")
        p(f"s_load_dword s{S_NONCE}, s[{kws}:{kws+1}], {br*128}")
        if not A:
            p(f"s_load_dword s{S_UTAG}, s[{kws}:{kws+1}], 0")
            p(f"s_load_dwordx2 s[{K+6}:{K+7}], s[0:1], 24")
        for g in range(1, 5): wrow(g)
        self.q(0, self.dma_x(1))
        p.raw(f"""
        s_mov_b32 s{SWS}, s{kws}
        s_mov_b32 s{SWS+1}, s{kws+1}
        s_mov_b32 s{SWS+2}, {WS_SIZE}
        s_mov_b32 s{SWS+3}, 0x20000
        s_mov_b32 s{SOUT}, s{kout}
        s_mov_b32 s{SOUT+1}, s{kout+1}
        s_mov_b32 s{SOUT+2}, 5242880
        s_mov_b32 s{SOUT+3}, 0x20000
        s_lshl_b32 s{S_HEAD}, s{S_HG}, 2
        s_add_u32 s{S_HEAD}, s{S_HEAD}, s{S_W}
        v_lshlrev_b32 v{V_LIN}, 4, v{V_LANE}
        """)
        if A:
            p.raw(f"""
            s_mov_b32 s{SPHI}, s{kphi}
            s_mov_b32 s{SPHI+1}, s{kphi+1}
            s_mov_b32 s{SPHI+2}, 25600
            s_mov_b32 s{SPHI+3}, 0x20000
            """)
            self.q(0, [[f"s_mul_i32 s{S_WS}, s{S_HEAD}, 800",
                        (f"buffer_load_dwordx4 {vq(TMP+96)}, v{V_LIN}, {srd(SPHI)}, s{S_WS} offen", 'wphi')]])
        self.q(0, self.dma_w(1)); self.q(0, self.dma_x(2))
        G_, I_, R_, C_ = t, t + 1, t + 2, t + 3
        S = []
        def raw(txt):
            for l in txt.split('\n'):
                if l.strip(): S.append((1, l.strip()))
        raw(f"""
        v_lshrrev_b32 v{G_}, 4, v{V_LANE}
        v_and_b32 v{I_}, 15, v{V_LANE}
        v_bfe_u32 v{R_}, v{V_LANE}, 2, 2
        v_and_b32 v{C_}, 3, v{V_LANE}
        v_lshrrev_b32 v{t+4}, 1, v{I_}
        v_xor_b32 v{t+4}, v{t+4}, v{G_}
        v_lshlrev_b32 v{t+5}, 7, v{I_}
        v_lshl_add_u32 v{t+4}, v{t+4}, 4, v{t+5}
        v_add_u32 v{V_XR}, s{S_LR}, v{t+4}
        v_xor_b32 v{t+4}, 64, v{t+4}
        v_add_u32 v{V_XR+1}, s{S_LR}, v{t+4}
        v_lshrrev_b32 v{t+4}, 2, v{V_LANE}
        v_mul_u32_u24 v{t+5}, 160, v{t+4}
        v_mul_u32_u24 v{t+6}, 40, v{C_}
        v_add_u32 v{V_WT}, v{t+5}, v{t+6}
        v_add_u32 v{V_WT+1}, 51200, v{V_WT}
        v_mul_u32_u24 v{t+5}, 120, v{I_}
        v_mul_u32_u24 v{t+6}, 3840, v{G_}
        v_add3_u32 v{V_PW}, v{t+5}, v{t+6}, s{S_LR}
        v_mul_u32_u24 v{t+6}, 40, v{G_}
        v_mul_u32_u24 v{t+7}, {OUTS}, v{I_}
        s_mul_i32 s{T2}, s{S_W}, {32*OUTS}
        s_add_u32 s{T2}, s{T2}, {OUTL}
        v_add3_u32 v{V_OW}, v{t+7}, v{t+6}, s{T2}
        v_and_b32 v{t+5}, 7, v{t+4}
        v_lshrrev_b32 v{t+6}, 5, v{V_LANE}
        v_lshlrev_b32 v{t+6}, 1, v{t+6}
        v_lshl_add_u32 v{t+5}, v{t+5}, 2, v{t+6}
        v_mul_u32_u24 v{t+5}, 120, v{t+5}
        s_mul_i32 s{T0}, s{S_W}, 3840
        s_add_u32 s{T0}, s{T0}, {RBASE}
        v_add_u32 v{V_KA1}, s{T0}, v{t+5}
        v_lshl_add_u32 v{V_KB}, v{C_}, 3, v{V_KA1}
        s_mov_b32 s{S_L2E}, 0x3fb8aa3b
        s_mov_b32 s{S_NL2E}, 0xbfb8aa3b
        s_mov_b32 s{S_PERM}, 0x07060302
        s_and_b32 s{T3}, s{S_HG}, 1
        """)
        for j in range(5):
            b = RH + 5 * j
            if j < 3: raw(f"""
            v_mul_u32_u24 v{t+5}, {OUTS}, v{b+4}
            v_lshl_add_u32 v{t+5}, v{b+3}, 4, v{t+5}
            v_add_u32 v{V_ORD+j}, s{T2}, v{t+5}
            v_mul_u32_u24 v{t+5}, 2560, v{b+4}
            v_lshl_add_u32 v{V_OG+j}, v{b+3}, 4, v{t+5}
            """)
            if j == 2: raw(f"""
            v_lshrrev_b32 v{t+5}, 5, v{V_LANE}
            v_lshl_or_b32 v{V_OG+2}, v{t+5}, 30, v{V_OG+2}
            """)
        raw(f"""
        v_mov_b32 v{t+5}, 2304
        v_cmp_gt_u32 vcc, 16, v{V_LANE}
        v_mov_b32 v{t+6}, 1024
        v_cndmask_b32 v{t+5}, v{t+5}, v{t+6}, vcc
        v_add_u32 v{V_OO+1}, v{t+5}, v{V_LIN}
        v_mov_b32 v{V_OO}, v{V_LIN}
        v_add_u32 v{V_OO+2}, 40960, v{V_LIN}
        v_add_u32 v{V_OO+3}, 40960, v{V_OO+1}
        v_lshrrev_b32 v{t+4}, 5, v{V_LANE}
        v_mul_u32_u24 v{t+4}, {40960-512}, v{t+4}
        v_add_u32 v{t+5}, 3328, v{V_LIN}
        v_add_u32 v{V_OO+4}, v{t+4}, v{t+5}
        v_add_u32 v{V_LINH}, 51200, v{V_LIN}
        v_min_u32 v{V_PF}, 39, v{V_LANE}
        v_lshlrev_b32 v{V_PF}, 3, v{V_PF}
        v_and_b32 v{t+4}, 1, v{RH+4}
        v_mul_u32_u24 v{t+4}, 2560, v{t+4}
        v_lshrrev_b32 v{t+5}, 1, v{RH+4}
        v_mul_u32_u24 v{t+5}, 40960, v{t+5}
        v_lshlrev_b32 v{t+6}, 7, v{RH+3}
        v_add3_u32 v{V_L128}, v{t+4}, v{t+5}, v{t+6}
        """)
        raw(f"""
        s_lshl_b32 s{T0}, s{T3}, 1
        s_xor_b32 s{T0}, s{T0}, s{S_W}
        s_mul_i32 s{T0}, s{T0}, 5120
        s_mul_i32 s{T2}, s{S_HG}, 102400
        s_add_u32 s{T2}, s{T2}, {WS_PK + br*819200}
        s_add_u32 s{T0}, s{T0}, s{T2}
        s_lshr_b32 s{S_SPIN}, s{S_HG}, 1
        s_add_u32 s{T1}, s{S_SPIN}, s{S_W}
        s_and_b32 s{T1}, s{T1}, 3
        s_add_u32 s{T1}, s{T1}, 16
        s_mul_i32 s{T1}, s{T1}, 5120
        s_add_u32 s{S_WOROW+4}, s{T1}, s{T2}
        s_lshr_b32 s{S_PFL}, s{S_HG}, 2
        s_lshl_b32 s{S_PFL}, s{S_PFL}, 9
        s_add_u32 s{S_PFL}, s{S_PFL}, {WS_PF + br*1024}
        s_mul_i32 s{T2}, s{S_HG}, 160
        s_lshl_b32 s{S_OUT}, s{S_XBASE}, 1
        s_add_u32 s{S_OUT}, s{S_OUT}, s{T2}
        s_add_u32 s{S_OUT}, s{S_OUT}, {br*1280}
        s_lshl_b32 s{S_OB}, s{S_XBASE}, 1
        s_add_u32 s{S_OB}, s{S_OB}, {br*1280}
        """)
        for g in range(4):
            raw(f"""
            s_add_u32 s{T1}, s{S_SPIN}, {g}
            s_and_b32 s{T1}, s{T1}, 3
            s_mul_i32 s{T2}, s{T1}, 20480
            s_add_u32 s{S_WOROW+g}, s{T2}, s{T0}
            s_lshl_b32 s{T1}, s{T1}, 1
            s_add_u32 s{T1}, s{T1}, s{T3}
            s_mul_i32 s{T2}, s{T1}, 5120
            s_add_u32 s{S_OP+2*g}, s{T2}, s{S_OB}
            s_xor_b32 s{T1}, s{T1}, 1
            s_mul_i32 s{T2}, s{T1}, 5120
            s_add_u32 s{S_OP+2*g+1}, s{T2}, s{S_OB}
            """)
        SH = 8 if A else 7
        raw(f"""
        s_lshl_b32 s{T0}, s{S_RB}, 2
        s_add_u32 s{T0}, s{T0}, s{S_W}
        s_lshl_b32 s{S_FLAG}, s{T0}, 7
        s_add_u32 s{S_FLAG}, s{S_FLAG}, {WS_FLAG + br*64*128}
        s_lshl_b32 s{T0}, s{S_HEAD}, 16
        s_add_u32 s{T0}, s{T0}, {WS_P1 + br*32*65536}
        s_lshl_b32 s{T1}, s{S_RB}, 12
        s_add_u32 s{S_P1ST}, s{T0}, s{T1}
        s_min_u32 s{T1}, s{S_RB}, 14
        s_lshl_b32 s{T1}, s{T1}, {SH}
        s_add_u32 s{S_P1LD}, s{T0}, s{T1}
        s_lshl_b32 s{T0}, s{S_HEAD}, 12
        s_add_u32 s{S_P2LD}, s{T0}, {WS_P2 + br*32*4096}
        s_add_u32 s{S_P2ST}, s{S_P2LD}, s{T1}
        v_mul_u32_u24 v{t+4}, {F}, v{G_}
        v_add_lshl_u32 v{V_P1ST}, v{t+4}, v{I_}, 4
        v_lshrrev_b32 v{t+4}, {3 if A else 2}, v{I_}
        v_lshl_or_b32 v{V_P1M}, v{t+4}, 28, v{V_P1ST}
        v_lshrrev_b32 v{t+4}, 1, v{G_}
        v_lshl_or_b32 v{V_P1M+1}, v{t+4}, 30, v{V_P1ST}
        v_or_b32 v{V_P1M+2}, v{V_P1M}, v{V_P1M+1}
        v_cmp_gt_u32 vcc, 4, v{I_}
        v_cndmask_b32 v{V_KEEP}, 0, -1, vcc
        v_mov_b32 v{t+4}, 0x3f803f80
        v_cmp_eq_u32 vcc, 4, v{I_}
        v_cndmask_b32 v{V_ONE}, 0, v{t+4}, vcc
        v_and_b32 v{t+4}, 7, v{V_LANE}
        v_lshlrev_b32 v{V_F8}, 2, v{t+4}
        s_lshl_b32 s{T0}, s{S_HG}, 2
        v_min_u32 v{V_FOWN}, 1, v{V_LANE}
        v_lshlrev_b32 v{V_FOWN}, 30, v{V_FOWN}
        v_or_b32 v{V_FOWN}, s{T0}, v{V_FOWN}
        v_lshlrev_b32 v{V_ZA}, 3, v0
        v_add_u32 v{V_ZA}, {RBASE+7680}, v{V_ZA}
        """)
        if A:
            raw(f"""
            v_lshlrev_b32 v{t+5}, 12, v{G_}
            v_lshl_add_u32 v{V_P1LD}, v{I_}, 4, v{t+5}
            v_lshlrev_b32 v{V_P2ST}, 2, v{V_LANE}
            """)
        else:
            raw(f"""
            v_lshrrev_b32 v{t+5}, 3, v{V_LANE}
            v_lshlrev_b32 v{t+5}, 12, v{t+5}
            v_lshl_add_u32 v{V_P1LD}, v{t+4}, 4, v{t+5}
            v_lshl_add_u32 v{V_P2ST}, v{G_}, 5, v{V_F8}
            """)
        RS = 80 if A else 48
        HS = 24 * RS
        NQ = 240 if A else 120
        NI = 4 if A else 2
        raw(f"s_mul_i32 s{T0}, s{S_W}, {HS}\ns_add_u32 s{T0}, s{T0}, {RBASE}")
        u = t + 4
        for ii in range(NI):
            raw(f"v_add_u32 v{u}, {64*ii}, v{V_LANE}")
            if ii == NI - 1:
                raw(f"""v_subrev_u32 v{u+1}, 64, v{u}
                v_cmp_gt_u32 vcc, {NQ}, v{u}
                v_cndmask_b32 v{u}, v{u+1}, v{u}, vcc
                v_lshlrev_b32 v{V_GAL}, 4, v{u}""")
            if A:
                raw(f"""
                v_lshrrev_b32 v{u+1}, 4, v{u}
                v_and_b32 v{u+2}, 3, v{u}
                v_lshl_add_u32 v{u+1}, v{u+1}, 2, v{u+2}
                v_bfe_u32 v{u+2}, v{u}, 2, 2
                v_mul_u32_u24 v{u+3}, 6554, v{u+1}
                v_lshrrev_b32 v{u+3}, 16, v{u+3}
                v_mul_u32_u24 v{u+4}, 10, v{u+3}
                """)
            else:
                raw(f"""
                v_lshrrev_b32 v{u+1}, 3, v{u}
                v_and_b32 v{u+2}, 1, v{u}
                v_lshl_add_u32 v{u+1}, v{u+1}, 1, v{u+2}
                v_bfe_u32 v{u+2}, v{u}, 1, 2
                v_mul_u32_u24 v{u+3}, 13108, v{u+1}
                v_lshrrev_b32 v{u+3}, 16, v{u+3}
                v_mul_u32_u24 v{u+4}, 5, v{u+3}
                """)
            raw(f"""
            v_sub_u32 v{u+1}, v{u+1}, v{u+4}
            v_lshl_add_u32 v{u+3}, v{u+3}, 2, v{u+2}
            v_mul_u32_u24 v{u+3}, {RS}, v{u+3}
            v_lshl_add_u32 v{u+3}, v{u+1}, 3, v{u+3}
            v_add_u32 v{V_LA+ii}, s{T0}, v{u+3}
            """)
        raw(f"""
        v_cmp_eq_u32 vcc, v{G_}, v{R_}
        v_mul_u32_u24 v{u}, {HS}, v{G_}
        v_mul_u32_u24 v{u+1}, {RS}, v{C_}
        v_add_u32 v{u}, v{u}, v{u+1}
        v_add_u32 v{u}, {RBASE}, v{u}
        v_mov_b32 v{u+1}, {RBASE+7680}
        v_cndmask_b32 v{V_FR2}, v{u+1}, v{u}, vcc
        """)
        if A:
            raw(f"""
            v_mov_b32 v{t+36}, 0
            v_mov_b32 v{t+37}, 0
            v_mov_b32 v{t+38}, 0
            v_mov_b32 v{t+39}, 0
            v_add_u32 v{TMP+100}, s{S_LR}, v{V_LIN}
            ds_write_b128 v{TMP+100}, {vq(t+36)} offset:13312
            v_mul_u32_u24 v{t+4}, {RW}, v{G_}
            v_mul_u32_u24 v{t+5}, 40, v{R_}
            v_add_u32 v{t+4}, v{t+4}, v{t+5}
            v_add_u32 v{t+4}, {RBASE+12288}, v{t+4}
            s_add_u32 s{T0}, s{S_LR}, 13312
            v_mov_b32 v{t+5}, s{T0}
            v_cmp_eq_u32 vcc, v{C_}, v{G_}
            v_cndmask_b32 v{V_FR}, v{t+5}, v{t+4}, vcc
            """)
            for tt in range(5):
                a = A_PHI + (tt * 3 + 2) * 4
                raw(f"v_accvgpr_write_b32 a{a+2}, 0\nv_accvgpr_write_b32 a{a+3}, 0")
        US, UA, UD = TMP + 40, TMP + 45, TMP + 80
        nA = o.get('nA', 0); prod = (not A) or nA > 0
        S_UOK = 92
        if prod:
            S.append((1, [x.strip() for x in f"""
            s_add_u32 s{T1}, s{S_HG}, s{S_RB}
            s_and_b32 s{T1}, s{T1}, 1
            s_lshl_b32 s{T0}, s{S_W}, 1
            s_add_u32 s{T0}, s{T0}, s{T1}
            s_lshl_b32 s{T0}, s{T0}, 3
            s_add_u32 s{T0}, s{T0}, s{S_HG}
            s_lshl_b32 s{T0}, s{T0}, 3
            s_lshr_b32 s{T1}, s{S_RB}, 1
            s_add_u32 s{T0}, s{T0}, s{T1}
            s_add_u32 s{T0}, s{T0}, {0 if A else nA}
            s_cmp_lt_u32 s{T0}, {nA if A else 320}
            s_cselect_b32 s{S_UOK}, 1, 0
            s_waitcnt lgkmcnt(0)
            s_cmp_lt_u32 s{T0}, 160
            s_cselect_b32 s{SWO}, s{K+6}, s{kwo}
            s_cselect_b32 s{SWO+1}, s{K+7}, s{kwo+1}
            s_cselect_b32 s{S_UTAG}, s{S_NONCE if A else S_UTAG}, s{S_NONCE}
            s_cselect_b32 s{T1}, 0, 160
            s_cselect_b32 s{S_UDST}, 0, 819200
            s_cselect_b32 s{S_UFL}, 0, 1024
            s_mov_b32 s{SWO+2}, 819200
            s_mov_b32 s{SWO+3}, 0x20000
            s_add_u32 s{S_UTAG}, s{S_UTAG}, 0x9e3779b1
            s_sub_u32 s{T0}, s{T0}, s{T1}
            s_and_b32 s{T1}, s{T0}, 1
            s_mul_i32 s{S_USRC}, s{T1}, 640
            s_mul_i32 s{T2}, s{T1}, 409600
            s_add_u32 s{S_UDST}, s{S_UDST}, s{T2}
            s_lshl_b32 s{T2}, s{T1}, 9
            s_add_u32 s{S_UFL}, s{S_UFL}, s{T2}
            s_lshr_b32 s{T1}, s{T0}, 1
            s_lshl_b32 s{T2}, s{T1}, 2
            s_add_u32 s{S_UFL}, s{S_UFL}, s{T2}
            s_add_u32 s{S_UFL}, s{S_UFL}, {WS_PF}
            s_and_b32 s{T1}, s{T1}, 3
            s_mul_i32 s{T2}, s{T1}, {20*1280}
            s_add_u32 s{S_USRC}, s{S_USRC}, s{T2}
            s_lshl_b32 s{T2}, s{T1}, 8
            s_add_u32 s{S_UDST}, s{S_UDST}, s{T2}
            s_lshr_b32 s{T1}, s{T0}, 3
            s_mul_i32 s{T2}, s{T1}, 5120
            s_add_u32 s{S_UDST}, s{S_UDST}, s{T2}
            s_add_u32 s{S_UDST}, s{S_UDST}, {WS_PK}
            s_lshr_b32 s{T2}, s{T1}, 1
            s_mul_i32 s{T2}, s{T2}, 80
            s_and_b32 s{T3}, s{T1}, 1
            s_lshl_b32 s{T3}, s{T3}, 3
            s_add_u32 s{T2}, s{T2}, s{T3}
            s_mul_i32 s{T3}, s{T1}, 160
            s_sub_u32 s{T3}, s{T3}, {16*160 - 16}
            s_cmp_ge_u32 s{T1}, 16
            s_cselect_b32 s{T2}, s{T3}, s{T2}
            s_cselect_b32 s{T3}, 1, 0
            s_mul_i32 s{T2}, s{T2}, 1280
            s_add_u32 s{S_USRC}, s{S_USRC}, s{T2}
            s_mul_i32 s{T1}, s{T3}, {76*1280}
            s_add_u32 s{T2}, s{S_LW}, {RING + 4*SLOT}
            """.split('\n') if x.strip()]))
            for j in range(5):
                raw(f"""
                v_lshrrev_b32 v{t+4}, 2, v{RH+5*j+4}
                v_mul_u32_u24 v{t+5}, 640, v{t+4}
                v_lshrrev_b32 v{t+4}, 2, v{t+4}
                v_mul_u32_u24 v{t+4}, s{T1}, v{t+4}
                v_add3_u32 v{US+j}, v{t+4}, v{t+5}, v{V_LIN}
                """)
            raw(f"v_add_u32 v{US+4}, 4096, v{US+4}")
            raw(f"""
            v_mul_u32_u24 v{t+7}, 640, v{R_}
            v_mul_u32_u24 v{t+8}, 40, v{C_}
            v_add3_u32 v{t+7}, v{t+7}, v{t+8}, s{T2}
            """)
            for j in range(5):
                raw(f"""
                v_add_u32 v{t+4}, {4*j}, v{G_}
                v_mul_u32_u24 v{t+5}, 13108, v{t+4}
                v_lshrrev_b32 v{t+5}, 16, v{t+5}
                v_mul_u32_u24 v{t+6}, 120, v{t+5}
                v_lshl_add_u32 v{t+6}, v{t+4}, 3, v{t+6}
                v_add_u32 v{t+6}, v{t+6}, v{t+7}
                v_and_b32 v{t+8}, s{T3}, v{t+5}
                v_mul_u32_u24 v{t+8}, 2560, v{t+8}
                v_add_u32 v{UA+2*j}, v{t+6}, v{t+8}
                v_sub_u32 v{t+6}, v{t+6}, v{t+8}
                v_add_u32 v{UA+2*j+1}, 2560, v{t+6}
                v_mul_u32_u24 v{t+5}, {102400 - 5120}, v{t+5}
                v_lshl_add_u32 v{t+5}, v{t+4}, 10, v{t+5}
                v_lshl_add_u32 v{UD+j}, v{I_}, 4, v{t+5}
                """)
            mark = {}
            def cond(name, lines):
                p.untracked([f"s_cmp_eq_u32 s{S_UOK}, 0", f"s_cbranch_scc1 {name}{self.sfx}"] + lines + [f"{name}{self.sfx}:"])
                mark[name] = p.nvm
            L = [f"s_add_u32 m0, s{S_LW}, {RING + 4*SLOT}"]
            for j in range(5):
                off = f"offset:{j*1024} " if 0 < j < 4 else ""
                L.append(f"buffer_load_dwordx4 v{US+j}, {srd(SWO)}, s{S_USRC} offen {off}lds")
                if j == 3: L.append(f"s_add_u32 m0, s{S_LW}, {RING + 4*SLOT + 4096}")
            un = [[lambda L=L: cond("L_u1", L)]]
            if o.get('uissue', 0) == 0: self.q(10**6 + 77, un)
        self.run(S, every=o.get('proev', 60))
        self.stamp('p5')
        if o.get('uissue', 0) == 0: self.release(77)
        if o.get('hops', 1):
            p("s_mov_b64 exec, 0")
            for w_ in range(3): p(f"s_cmp_eq_u32 s{S_W}, {w_}"); p(f"s_cbranch_scc1 L_hop{w_}{self.sfx}")
            p(f"s_branch L_hop3{self.sfx}")
            p(f"L_hopret{self.sfx}:")
            p("s_mov_b64 exec, -1")
        while len(self.dq) > o.get('prokeep', 0) and self.tick(): pass
        p.raw(f"""
        s_getreg_b32 s{T0}, hwreg(HW_REG_XCC_ID, 0, 4)
        s_waitcnt lgkmcnt(0)
        s_add_u32 s{S_NONCE}, s{S_NONCE}, 0x9e3779b1
        s_lshl_b32 s{T0}, s{T0}, 28
        s_xor_b32 s{S_XCCV}, s{T0}, s{S_NONCE}
        v_mov_b32 v{V_NONCE}, s{S_NONCE}
        v_mov_b32 v{V_KA0}, s{S_XCCV}
        s_add_u32 s{S_XA}, s{S_FLAG}, {WS_XCC - WS_FLAG}
        """)
        xst = [(f"buffer_store_dword v{V_KA0}, v{V_FOWN}, {srd(SWS)}, s{S_XA} offen sc1", 'xcc')]
        x1, x2, x3 = o.get('xpos', (-1, 58, 88))
        if x1 < 0: self.put(xst)
        self.stamp()
        p(f"s_branch L_main{self.sfx}")
        p(".p2align 12")
        p(f"L_main{self.sfx}:")
        xb = lambda ks, rt: aq((ks * 2 + rt) * 4)
        xbp = lambda ps: (lambda ks, rt: xb(4 * (4 - ks // 4) + ks % 4, rt)) if ps in o.get('rev', [1, 2]) else xb
        for pu in range(0, 7):
            if (pu + 3) % 2 == 0: self.q(0, self.dma_w((pu + 3) // 2))
            self.q(10 * pu, self.dma_x(pu + 3))
            if prod and o.get('uissue', 0) == pu + 1: self.q(0, un)
        for G in range(5, 10): self.q(10**6 + 1 if G % 5 >= 3 else 20 * (G - 3) - 4, self.dma_w(G))
        for G in range(10, 13): self.q(20 * (G - 3) - 4, self.dma_w(G))
        for G in range(13, 20): self.q(10**6 + G, self.dma_w(G))
        hooks = {}
        for pu in range(1, 10):
            hooks[10 * pu - 5] = [lambda pu=pu: self.xread(pu, 0), lambda pu=pu: self.xread(pu, 1)]
            hooks[10 * pu - 4] = [lambda pu=pu: self.xread(pu, 2), lambda pu=pu: self.xread(pu, 3)]
        if A:
            rd = [(tt, u_, hf) for tt in range(5) for u_ in range(3) for hf in range(2 if u_ < 2 else 1)]
            w = TMP + 96; u2 = TMP + 102
            sc = [lambda: p.wait(vm=['wphi'])]
            for j in range(4):
                sc += [f"v_lshlrev_b32 v{u2}, 16, v{w+j}", f"v_and_b32 v{u2+1}, 0xffff0000, v{w+j}", f"v_mul_f32 v{u2}, s{S_L2E}, v{u2}",
                       f"v_mul_f32 v{u2+1}, s{S_L2E}, v{u2+1}", f"v_cvt_pk_bf16_f32 v{w+j}, v{u2}, v{u2+1}"]
            hooks[8] = sc + [(f"ds_write_b128 v{TMP+100}, {vq(w)} offset:12288", 'phw')]
            hooks[14] = [lambda: p.wait(lg=['phw'])]
            slots = [n for n in range(21, 90) if n % 10 in (0, 1, 2, 3)][:25]
            for k, n in enumerate(slots):
                hooks[n] = [(f"ds_read_b64_tr_b16 a[{A_PHI + (tt*3+u_)*4 + 2*hf}:{A_PHI + (tt*3+u_)*4 + 2*hf + 1}], v{V_FR} offset:{(8*u_+4*hf)*40 + 8*tt}", 'phi')
                            for tt, u_, hf in rd[k:k+1]]
        late3 = {}
        if prod:
            UR = TMP + 60
            u1, u2_, u3 = o.get('upos', (18, 18, 62))
            hooks.setdefault(u1, []).append(lambda: cond("L_u2r", [f"s_waitcnt vmcnt({p.nvm - mark['L_u1']}) lgkmcnt(0)"] +
                [f"ds_read_b64_tr_b16 {vq(UR+2*k, 2)}, v{UA+k}" for k in range(10)] + ["s_waitcnt lgkmcnt(0)"]))
            for j in range(5):
                uj = u2_ + o.get('ustep', 0) * j
                (hooks if uj < 100 else late3).setdefault(uj % 100, []).append(lambda j=j: cond("L_u2" + "abcd "[j].strip(), [f"buffer_store_dwordx4 {vq(UR+4*j)}, v{UD+j}, {srd(SWS)}, s{S_UDST} offen sc1"]))
            (hooks if u3 < 100 else late3).setdefault(u3 % 100, []).append(lambda: cond("L_u3", [f"s_waitcnt vmcnt({p.nvm - mark['L_u2']})", f"v_mov_b32 v{V_DUMP}, s{S_UTAG}", "s_mov_b64 exec, 1",
                         f"buffer_store_dword v{V_DUMP}, v{V_LIN}, {srd(SWS)}, s{S_UFL} offen sc1", "s_mov_b64 exec, -1"]))
        XV = TMP + 92
        iss, chk = self.checked("L_xc", [f"buffer_load_dword v{XV}, v{V_F8}, {srd(SWS)}, s{S_XA} offen sc1"],
                                [f"v_xor_b32 v{XV+1}, s{S_NONCE}, v{XV}", f"v_lshlrev_b32 v{XV+1}, 4, v{XV+1}", f"v_cmp_ne_u32 vcc, 0, v{XV+1}"], 'xl')
        xv, xq = {}, {}
        def xh(pos, L): [hooks, xv, xq][pos // 100].setdefault(pos % 100, []).extend(L)
        if x1 >= 0: xh(x1, xst)
        xh(x2, iss)
        c_ = [x for _, x in chk]
        xh(x3, c_[:3]); xh(x3 + 1, c_[3:4]); xh(x3 + 2, c_[4:] + [f"v_cmp_ne_u32 vcc, s{S_XCCV}, v{XV}"])
        xh(x3 + 3, [f"s_mov_b32 s{S_FAST}, {1 if o.get('nofast') else 'vcc_lo'}", f"s_add_u32 s{T0}, s{SWS}, {WS_O}", f"s_addc_u32 s{T1}, s{SWS+1}, 0"])
        xh(x3 + 4, [f"s_cmp_eq_u32 s{S_FAST}, 0", f"s_cselect_b32 s{SO}, s{SOUT}, s{T0}", f"s_cselect_b32 s{SO+1}, s{SOUT+1}, s{T1}"])
        xh(x3 + 5, [f"s_mov_b32 s{SO+2}, 5242880", f"s_mov_b32 s{SO+3}, 0x20000"])
        self.group_sync(0)
        for k in range(4): self.xread(0, k)
        self.prime(0, sync=False)
        kp = o.get('kpace', 3)
        k1p = {0: lambda n: 1 if n % 3 != 2 else 0, 1: lambda n: 1, 2: lambda n: 2 if n % 10 < 2 else (1 if n % 10 < 5 else 0), 3: lambda n: 1 if n % 4 != 3 else 0}[o.get('k1', 0)]
        self.gemm_pass(0, ACC_K, xb, hooks=hooks, last=True, pace=lambda n: k1p(n) if n < o.get('ksw', 69) else (1 if n % kp == 0 else 0))
        self.stamp()
        E0, E1, M0_, M1_ = TMP, TMP + 40, TMP + 80, TMP + 86
        x0, x1 = acc(ACC_K, 0, 0), acc(ACC_K, 0, 1)
        if o.get('amp'):
            p.raw(f"""
            s_load_dwordx2 s[88:89], s[0:1], 64
            s_not_b32 s{T0}, s98
            v_mov_b32 v{TMP+94}, 0
            v_mov_b32 v{TMP+95}, s{T0}
            s_lshr_b32 s{T0}, s2, 3
            s_or_b32 s{T0}, s{T0}, s{S_W}
            s_cmp_eq_u32 s{T0}, 0
            s_cselect_b32 s{T0}, 0, 64
            v_mov_b32 v{TMP+94}, s{T0}
            s_waitcnt lgkmcnt(0)
            s_cbranch_scc0 L_noat{self.sfx}
            s_mov_b64 exec, 1
            """)
            p.ins.append(__import__('emit').Ins(f"global_atomic_umax v{TMP+94}, v{TMP+95}, s[88:89] sc1"))
            p("s_mov_b64 exec, -1")
            p(f"L_noat{self.sfx}:")
        wr = lambda rt, x, n, o8: [(2, (f"ds_write_b64 v{V_PW}, {vq(x+2*j, 2)} offset:{rt*1920 + o8 + 8*j}", 'pw')) for j in range(n)]
        def mixw(out, w): return [y for j in range(len(w)) for y in out[2*j:2*j+2] + [w[j]]]
        burst = lambda L: [(0, [x for _, x in L])]
        dm = (2, lambda: self.tick())
        if A:
            P0 = self.phiA_parts(x0, E0, M0_, "L_k0", False); P1 = self.phiA_parts(x1, E1, M1_, "L_k1", False)
            pr = [(0, lambda: (self.group_sync(5), self.release(1)))]
            pr = pr + [(1, lambda n=n, hf=hf: self.wread(100 + n, hf)) for n in range(D - 1) for hf in range(2)]
            hx = o.get('hx', 0)
            if hx == 0:
                self.put([x for _, x in [dm] + P0['cvt'] + self.weave(P0['mf'], [dm] + P1['cvt'] + [dm] + P0['exp'][:4]) + self.weave(P1['mf'], [dm] + P0['exp'][4:12] + [dm] + pr)])
                f0 = P0['exp'][12:] + burst(P0['norm'])
            else:
                self.put([x for _, x in [dm] + P0['cvt'] + self.weave(P0['mf'], [dm] + P1['cvt'] + P0['exp'][:7] + [dm]) + self.weave(P1['mf'], P0['exp'][7:14] + [dm] + P0['exp'][14:21])])
                self.run(P0['exp'][21:] + P0['norm'][:-10], every=hx)
                self.put([x for _, x in pr + P0['norm'][-10:]])
                f0 = []
            fill = f0 + mixw(P0['out'], wr(0, x0, 10, 0)) + P1['exp'] + burst(P1['norm']) + mixw(P1['out'], wr(1, x1, 10, 0))
            self.stamp('head')
        else:
            fill = []
            for rt, x, e in ((0, x0, E0), (1, x1, E1)):
                L = self.phiB(x, e, False)
                fill += L[:-10] + mixw(L[-10:], wr(rt, x, 5, 0))
            self.group_sync(5); self.release(1); self.prime(1, sync=False)
        hooks = {}
        hooks.update(late3)
        PFV = TMP + 94
        ipf, cpf_ = self.checked("L_pf", [f"buffer_load_dwordx2 {vq(PFV, 2)}, v{V_PF}, {srd(SWS)}, s{S_PFL} offen sc1"],
                                 [f"v_xor_b32 v{PFV}, s{S_NONCE}, v{PFV}", f"v_bitop3_b32 v{PFV}, v{PFV}, v{PFV+1}, s{S_NONCE} bitop3:0xf6", f"v_cmp_ne_u32 vcc, 0, v{PFV}"], 'pf')
        pfp = o.get('pfpos', 81)
        if pfp < 100: hooks.setdefault(pfp, []).extend(ipf)
        pre = ["s_mov_b32 exec_hi, 0xff", (f"buffer_load_dword v{V_DUMP}, v{V_L128}, {srd(SO)}, s{S_OP} offen sc1", 'pr'), "s_mov_b64 exec, 1",
               (f"buffer_load_dword v{V_DUMP}, v{V_F8}, {srd(SWS)}, s{S_FLAG} offen sc1", 'pr'), "s_mov_b64 exec, -1"]
        wp, pp_ = o.get('wopf', -1), o.get('prepos', 0)
        if 100 <= pp_ < 200: hooks.setdefault(pp_ - 100, []).extend(pre)
        vs = o.get('vsync', 0)
        if o.get('v13'): hooks.setdefault(78, []).extend(["s_barrier", lambda: self.release(13)])
        for k_, v_ in xv.items(): hooks.setdefault(k_, []).extend(v_)
        vp = o.get('vpace', 4)
        self.gemm_pass(1, ACC_V, xbp(1), fill=fill, hooks=hooks, last=True, sync=True, pace=lambda n: 1 if n % vp == 0 else 0)
        self.stamp()
        VB = TMP
        for rt in range(2):
            c = self.cvt20(acc(ACC_V, 0, rt), VB + 10 * rt)
            for j in range(5):
                p(c[2*j][1]); p(c[2*j+1][1])
                p(f"ds_write_b64 v{V_PW}, {vq(VB+10*rt+2*j, 2)} offset:{rt*1920 + 80 + 8*j}", 'vw')
                if j == 4 and rt == 0: self.tick()
        self.tick()
        p.wait(lg='*')
        self.stamp('kv0')
        gk = 11
        self.flush_dma(('W', gk)); p.wait(vm=[('W', gk)])
        self.stamp('kv1')
        p("s_barrier")
        self.stamp('kv2')
        self.release(13); self.release(14)
        NT = 3 if A else 2
        FB = ACC_K
        KV = TMP + 64
        rds = deque()
        def rd(reg, av, off, kk, j):
            for hf in range(2): rds.append((f"ds_read_b64_tr_b16 {vq(reg+2*hf, 2)}, v{av} offset:{kk*RW + hf*120 + off}", ('kv', kk, j)))
        for kk in range(4): rd(FB + kk * 20 + 4, V_KA1, 112, kk, 'z')
        for kk in range(4):
            b = FB + kk * 20
            rd(b, V_KB, 80, kk, 'a')
            for nt in range(NT): rd(b + 8 + 4 * nt, V_KB, 32 * nt, kk, nt)
        def more(k):
            while k > 0 and rds and len(p.lgq) < 15: self.put([rds.popleft()]); k -= 1
        more(15); self.tick()
        p(f"v_mov_b32 v{TMP+1}, 0xff")
        for kk in range(0, 4, 2):
            p.wait(lg=[('kv', kk + 1, 'z')]); more(4)
            for j in range(8): p(f"v_and_or_b32 v{FB+(kk+j//4)*20+4+j%4}, v{FB+(kk+j//4)*20+4+j%4}, v{V_KEEP}, v{V_ONE}")
        seq = [(kk, nt) for kk in range(4) for nt in range(NT)]
        p.wait(lg=[('kv',) + seq[0]])
        for i_, (kk, nt) in enumerate(seq):
            b = FB + kk * 20
            p(f"{MF} {vq(KV + nt*4)}, {vq(b)}, {vq(b+8+4*nt)}, {'0' if kk == 0 else vq(KV + nt*4)}")
            if i_ + 1 < len(seq): p.wait(lg=[('kv',) + seq[i_ + 1]])
            if rds: more(2)
            elif i_ == len(seq) - 2: self.tick()
        assert not rds
        lastm = 0x00ff00ff if A else 0x000f000f
        def pub(mt, nt):
            a = KV + (mt * 3 + nt) * 4
            L = [(1, f"v_bfi_b32 v{a+j}, v{TMP+1}, s{S_NONCE}, v{a+j}") for j in range(4)]
            va = [V_P1ST, V_P1M, V_P1M + 1, V_P1M + 2][2 * mt + (nt == NT - 1)]
            return L + [(2, (f"buffer_store_dwordx4 {vq(a)}, v{va}, {srd(SWS)}, s{S_P1ST} offen offset:{(4*mt*F + 16*nt)*16} sc1", 'p1'))]
        self.stamp('kv3')
        mf = [(2, f"{MF} {vq(KV + (3+nt)*4)}, {vq(FB+kk*20+4)}, {vq(FB+kk*20+8+4*nt)}, {'0' if kk == 0 else vq(KV + (3+nt)*4)}") for nt in range(NT) for kk in range(4)]
        pr = [(1, lambda n=n, hf=hf: self.wread(200 + n, hf)) for n in range(D - 1) for hf in range(2)]
        self.put([x for _, x in self.weave(mf, pr[:4] + [y for nt in range(NT) for y in pub(0, nt)] + pr[4:])])
        qhead = [y for nt in range(NT) for y in pub(1, nt)]
        self.stamp()
        X = TMP + 8; CK = TMP + 2
        def tagcheck(mask):
            return [f"v_xor_b32 v{CK}, s{S_NONCE}, v{X}"] + [f"v_bitop3_b32 v{CK}, v{CK}, v{X+j}, s{S_NONCE} bitop3:0xf6" for j in range(1, 4 * NI)] + \
                   [f"v_and_b32 v{CK}, {mask}, v{CK}", f"v_cmp_ne_u32 vcc, 0, v{CK}"]
        lds_ = []
        for ii in range(NI):
            lds_ += [f"s_add_u32 s{T0}, s{S_P1LD}, {ii * (65536 // NI)}", f"buffer_load_dwordx4 {vq(X+4*ii)}, v{V_P1LD}, {srd(SWS)}, s{T0} offen sc1"]
        iss, chk = self.checked("L_h1", lds_, tagcheck("0xff"), 'h1')
        red = [f"v_add_f32 v{X+j}, v{X+j}, v{X+4*ii+j}" for ii in range(1, NI) for j in range(4)]
        red += [f"v_permlane32_swap_b32 v{X}, v{X+2}", f"v_permlane32_swap_b32 v{X+1}, v{X+3}", f"v_add_f32 v{X}, v{X}, v{X+2}", f"v_add_f32 v{X+1}, v{X+1}, v{X+3}",
                f"v_mov_b32 v{CK}, 0xffff", f"v_permlane16_swap_b32 v{X}, v{X+1}", f"v_add_f32 v{X}, v{X}, v{X+1}"]
        if not A: red.append(f"v_add_f32_dpp v{X}, v{X}, v{X} row_ror:8 row_mask:0xf bank_mask:0xf")
        red += [f"v_cvt_pk_bf16_f32 v{X}, v{X}, v{X}", f"v_bfi_b32 v{X}, v{CK}, s{S_NONCE}, v{X}"]
        st = (f"buffer_store_dword v{X}, v{V_P2ST}, {srd(SWS)}, s{S_P2ST} offen sc1", 'p2')
        red.append([st] if A else ["s_mov_b32 exec_lo, 0x00ff00ff", "s_mov_b32 exec_hi, 0x00ff00ff", st, "s_mov_b64 exec, -1"])
        n1, n2 = o.get('h1', (62, 84))
        hooks = {n1 + k: iss[2*k:2*k+2] for k in range(NI)}
        if pfp >= 100: hooks.setdefault(pfp - 100, []).extend(ipf)
        for k_, v_ in xq.items(): hooks.setdefault(k_, []).extend(v_)
        c_ = [x for _, x in cpf_]
        pc = o.get('pfchk', 13)
        hooks.setdefault(pc, []).extend(c_[:3]); hooks.setdefault(pc + 1, []).extend(c_[3:4]); hooks.setdefault(pc + 3, []).extend(c_[4:] + [lambda: setattr(self, 'pfok', True)])
        if 200 <= pp_ < 300: hooks.setdefault(pp_ - 200, []).extend(pre)
        qh = deque(qhead)
        for n in range(20): hooks.setdefault(n, []).append(lambda: self.gap(qh, 2))
        for fr_, pubg, rel in o.get('qbar', [(18, 12, [15]), (42, 13, [16]), (60, 14, [17]), (78, 14, [18])]):
            hooks.setdefault(fr_, []).extend([lambda g=pubg: self.group_sync(g)] + [lambda r=r: self.release(r) for r in rel])
        self.gemm_pass(2, ACC_K, xbp(2), fill=chk + [(1, x) for x in red], hooks=hooks, last=True, sync=False, frange=(n2, min(100, n2 + o.get('h1len', 16))),
                       pace=lambda n: 1 if (n >= 9 and n % o.get('qpace', 3) == 0 and not n1 <= n < n1 + NI) else 0)
        assert not qh
        p("s_barrier")
        [self.release(r) for r in range(15, 20)]
        self.stamp()
        X = TMP + 96; CK = TMP + 92
        lds_ = [f"buffer_load_dwordx4 {vq(X+4*ii)}, v{V_LIN if ii < NI-1 else V_GAL}, {srd(SWS)}, s{S_P2LD} offen offset:{1024*ii if ii < NI-1 else 0} sc1" for ii in range(NI)]
        iss, chk = self.checked("L_h2", lds_, tagcheck("0xffff"), 'h2')
        zw = [f"v_mov_b32 v{CK}, 0", f"v_mov_b32 v{CK+1}, 0", f"ds_write_b64 v{V_ZA}, {vq(CK, 2)}"]
        self.put(zw)
        for k_ in range(o.get('dirty', 0)):
            p(f"s_add_u32 s{T0}, s{S_OP}, {(9 << 20) + (k_ // 5) * (6 << 20) + (k_ % 5) * 1024}")
            p(f"buffer_store_dwordx4 v[2:5], v{V_LIN}, {srd(SWS)}, s{T0} offen {o.get('dirtyf', '')}")
        if o.get('prepos', 0) == 1: self.put(pre)
        if not A:
            for tt in range(6): p(f"v_accvgpr_write_b32 a{40+4*(3*tt+2)+2}, 0"); p(f"v_accvgpr_write_b32 a{40+4*(3*tt+2)+3}, 0")
        if A:
            P0 = self.phiA_parts(x0, E0, M0_, "L_q0", True); P1 = self.phiA_parts(x1, E1, M1_, "L_q1", True)
            L = P0['cvt'] + self.weave(P0['mf'], P1['cvt'] + P0['exp'][:6]) + self.weave(P1['mf'], P0['exp'][6:]) + P0['norm'] + P0['out'] + P1['exp'] + P1['norm'] + P1['out']
        else:
            L = []
            for x, e in ((x0, E0), (x1, E1)):
                L += self.phiB(x, e, True) + [(1, f"v_mov_b32 v{x+10}, 0"), (1, f"v_mov_b32 v{x+11}, 0")]
        tot = sum(c for c, _ in L); cut = tot - o.get('h2lead', 60)
        c = 0; k = 0
        while k < len(L) and c < cut: c += L[k][0]; k += 1
        self.run(L[:k], every=o.get('qev', 44))
        self.stamp('q0')
        self.flush_dma(('W', 17))
        self.stamp('q1')
        self.put(iss)
        if o.get('prepos', 0) == 0: self.put(pre)
        self.stamp('q2')
        self.run(L[k:], every=o.get('qev', 44))
        self.stamp()
        self.put([x for _, x in chk])
        for ii in range(NI):
            p(f"v_perm_b32 v{X+4*ii}, v{X+4*ii+1}, v{X+4*ii}, s{S_PERM}")
            p(f"v_perm_b32 v{X+4*ii+1}, v{X+4*ii+3}, v{X+4*ii+2}, s{S_PERM}")
            p(f"ds_write_b64 v{V_LA+ii}, {vq(X+4*ii, 2)}", 'kvw')
        p.wait(lg='*')
        p("s_barrier")
        self.stamp()
        assert not self.dq or True
        import copy
        p(f"s_cmp_eq_u32 s{S_FAST}, 0"); p(f"s_cbranch_scc0 L_tail{self.sfx}s")
        env = dict(RS=RS, M0_=M0_, M1_=M1_)
        sv = (self.p, self.sfx, self.nst, getattr(self, 'cs', 0), deque(self.dq))
        self.p = Prog(); self.p.vmq = list(p.vmq); self.p.lgq = list(p.lgq); self.sfx += 's'
        self.p(f"L_tail{self.sfx}:")
        self.tail(False, **env)
        self.ool.append(self.p.finalize())
        self.p, self.sfx, self.nst, self.cs, self.dq = sv
        self.tail(True, **env)
        return p.finalize() + "".join(self.ool)
    def tail(self, fast, RS, M0_, M1_):
        p = self.p; A = self.A; o = self.o; br = 0 if A else 1
        def more(k):
            while k > 0 and rds and len(p.lgq) < 15: self.put([rds.popleft()]); k -= 1
        OA = ACC_V
        NU = 5 if A else 3
        SP = TMP + 112
        if A: p(f"v_mov_b32 v{SP}, v{M0_}"); p(f"v_mov_b32 v{SP+1}, v{M1_}")
        OB = TMP + 64
        LO = TMP + 80
        fr = [(tt, u_) for tt in (5, 0, 1, 2, 3, 4) for u_ in range(NU)]
        AO = 40
        rds = deque()
        for n, (tt, u_) in enumerate(fr):
            if not A and u_ == 2: rds.append((f"ds_read_b64 {aq(AO+4*n, 2)}, v{V_FR2} offset:{4*tt*RS + 16*u_}", ('of', n)))
            else: rds.append((f"ds_read_b128 {aq(AO+4*n)}, v{V_FR2} offset:{4*tt*RS + 16*u_}", ('of', n)))
        more(10)
        def ost(txt, tag='o'):
            p(txt + ("" if fast else " sc1"), tag)
        def flag(k): ost(f"buffer_store_dword v{V_NONCE}, v{V_FOWN}, {srd(SWS)}, s{S_FLAG} offen offset:{32*k}", 'fl')
        def poll(k, name):
            iss, chk = self.checked(name, [f"buffer_load_dword v{V_DUMP}, v{V_F8}, {srd(SWS)}, s{S_FLAG} offen offset:{32*k} sc1"], [f"v_cmp_ne_u32 vcc, s{S_NONCE}, v{V_DUMP}"], name)
            return iss, [x for _, x in chk]
        order = [(0, k) for k in range(5)] + [(1, k) for k in range(5)] + [(0, 5), (1, 5)]
        epi = deque()
        for z, (rt, k) in enumerate(order):
            dn = OA + (rt * 6 + 5) * 4
            b = OA + rt * 24
            rdy = (z + 1) * NU + o.get('rdy', 4)
            if k == 0:
                epi.append((rdy, 1, f"v_fmac_f32 v{dn}, {EPS}, v{SP+rt}" if A else f"v_add_f32 v{dn}, {EPS}, v{dn}")); epi.append((rdy, 2, f"v_rcp_f32 v{dn}, v{dn}"))
                continue
            tt = k - 1
            for r in range(4): epi.append((rdy, 1, f"v_mul_f32 v{b+4*tt+r}, v{b+4*tt+r}, v{dn}"))
            for h in range(2):
                i = 2 * tt + h
                d = OB + ((i // 4) * 2 + rt) * 4 + i % 4 if i < 8 else LO + 2 * rt + (i - 8)
                epi.append((rdy, 1, f"v_cvt_pk_bf16_f32 v{d}, v{b+2*i}, v{b+2*i+1}"))
            if tt in (1, 3):
                u_ = tt // 2
                epi.append((0, 2, lambda u_=u_, rt=rt: ost(f"buffer_store_dwordx4 {vq(OB+(u_*2+rt)*4)}, v{V_OO+rt*2+u_}, {srd(SO)}, s{S_OP} offen", ('S', rt))))
        epi.append((0, 2, lambda: ost(f"buffer_store_dwordx4 {vq(LO)}, v{V_OO+4}, {srd(SO)}, s{S_OP} offen", ('S', 1))))
        LD = o.get('lead', 12); DF = o.get('df', 11); A_RING = A_PHI
        items = [(P, t_, (0, 1)) for P in range(2) for t_ in range(5)] + [(P, t_, (0,)) for P in range(2, 2 + LD) for t_ in range(5)] + \
                [(P, t_, (0, 1)) for P in range(2 + LD, 20) for t_ in range(5)] + [(P, t_, (1,)) for P in range(2, 2 + LD) for t_ in range(5)]
        def fread(i, hf):
            P, t_, _ = items[i]
            if True:
                if hf == 0:
                    off = RING + P * 5120 + 1024 * t_; hi = off >= 51200; s_ = A_RING + (i % DF) * 4
                    p(f"ds_read_b128 a[{s_}:{s_+3}], v{V_LINH if hi else V_LIN} offset:{off - 51200*hi}", ('FF', i))
                return
            off = RING + (P // 4) * SLOT + (P % 4) * 5120 + hf * 2560 + 8 * t_
            hi = off >= 51200; s_ = A_RING + (i % DF) * 4 + 2 * hf
            p(f"ds_read_b64_tr_b16 a[{s_}:{s_+1}], v{V_WT + hi} offset:{off - 51200*hi}", ('FF', i))
        pr = deque((i, 0) for i in range(DF - 1))
        m = 0; mf0 = o.get('mf0', 54 if A else 36); seen = set()
        for rt, k in order:
            for u_ in range(NU):
                n = k * NU + u_; tt = fr[n][0]
                a = OA + (rt * 6 + tt) * 4
                if m == 0: p.wait(lg=[('of', 0)])
                p(f"{MF} {vq(a)}, {aq(AO+4*n)}, {vq(ACC_K+20*rt+4*u_)}, {'0' if u_ == 0 else vq(a)}")
                m += 1
                if n + 1 < len(fr): p.wait(lg=[('of', n + 1)])
                bud = 2 if A else 3
                if m == mf0:
                    assert sum(1 for x in p.ins if x.tag == ('S', 0)) == 2
                    p.wait(vm=[('S', 0)]); flag(0); bud -= 2
                elif rds: more(1); bud -= 1 if not (epi and epi[0][0] <= m and epi[0][1] == 2) else 0
                elif self.dq and m % o.get('opace', 8) == 0: self.tick(); bud -= 2
                elif pr and not (epi and epi[0][0] <= m): fread(*pr.popleft()); bud -= 1
                while epi and epi[0][0] <= m and epi[0][1] <= bud:
                    _, c, x = epi.popleft(); bud -= c
                    self.put([x])
                    if callable(x): break
        while pr: fread(*pr.popleft())
        while len(epi) > 7: self.put([epi.popleft()[2]])
        while self.tick(): pass
        self.stamp()
        def ob(ks, rt):
            if ks < 2: return vq(OB + (ks * 2 + rt) * 4)
            return aq((ks * 2 + rt) * 4) if ks < 16 else vq(LO + (2 * (ks - 16) + rt) * 4)
        def ld(P, rt):
            if P < 16: return [(f"buffer_load_dwordx4 {aq((P*2+rt)*4)}, v{V_OO+rt*2+P%2}, {srd(SO)}, s{S_OP + P//2} offen sc1", ('O', P, rt))]
            return [(f"buffer_load_dwordx4 {vq(LO+(2*(P-16)+rt)*4)}, v{V_OO+4}, {srd(SO)}, s{S_OP + 2*(P-16) + rt} offen sc1", ('O', P, rt))]
        i0, c0 = poll(0, "L_f0"); i1, c1 = poll(1, "L_f1"); i2, c2 = poll(2, "L_d0"); i3, c3 = poll(3, "L_d1")
        L0x = min(16, 2 + LD + o.get('xlead', 2))
        lead = [ld(P, 0) for P in range(2, L0x)]
        rest = [ld(P, rt) for P in range(2 + LD, 20) for rt in range(2) if (P, rt) != (16, 0) and not (rt == 0 and P < L0x)] + [ld(P, 1) for P in range(2, 2 + LD)]
        def handshake():
            p.wait(vm=[('S', 1), ('W', 18), ('W', 19)])
            flag(1)
            self.put(c0)
            self.stamp()
            self.q(0, lead); self.q(10**6 + 50, rest)
            for k_ in range(o.get('oprime', 7)):
                self.tick()
                if k_ == 3: p("s_barrier")
                if k_ == 3 and o.get('p1it', 4) < 0: self.put(i1)
            p.wait(vm=[('O', 2, 0)])
        E0 = len(items) - 5 * LD
        NI_ = len(items)
        def outp(rt):
            b = TMP + 8
            c = self.cvt20(acc(ACC_K, 0, rt), b)
            L = []
            for j in range(5): L += [c[2*j][1], c[2*j+1][1], (f"ds_write_b64 v{V_OW}, {vq(b+2*j, 2)} offset:{rt*16*OUTS + 8*j}", 'ow')]
            L += [(f"ds_read_b128 {vq(TMP+24+4*j)}, v{V_ORD+j} offset:{rt*16*OUTS}", ('or', j)) for j in range(3)]
            S_ = [(f"buffer_store_dwordx4 {vq(TMP+24+4*j)}, v{V_OG+j}, {srd(SOUT)}, s{S_OUT} offen", 'out') for j in range(3)]
            return L, S_
        vw, lw, sc_, vec = {}, {}, {}, {}
        add = lambda d, i, L: d.setdefault(i, []).extend(L)
        def check(i, c, tag, gapn):
            add(vw, i, [tag]); add(vec, i, [c[1]]); add(sc_, i + gapn, [c[2]])
        ep = [x[2] for x in epi]
        add(vec, 1, ep[:3]); add(vec, 2, ep[3:6]); add(vec, 3, ep[6:])
        add(vec, o.get('p0pos', 4), i0)
        add(vec, 9, [handshake])
        if o.get('p1it', 4) >= 0: add(vec, 10 + o.get('p1it', 4), i1)
        ci = 10 + o.get('c1pos', 28); check(ci, c1, "L_f1", 2); add(sc_, ci + 2, [lambda: self.release(50)])
        for i in range(15, NI_, 5):
            Pn, _, rn = items[i]
            tags = [('O', Pn, rt) for rt in rn]
            if Pn >= 16:
                a = LO + 2 * (Pn - 16) * 4
                add(vw, i - 2, tags); add(vec, i - 2, [f"v_swap_b32 v{a+2}, v{a+4}", f"v_swap_b32 v{a+3}, v{a+5}"])
            else: add(vw, i - 1, tags)
        nd0 = E0 - o.get('d0', 8); add(vw, nd0, [('O', 19, 0), ('O', 19, 1)]); add(vec, nd0, [lambda: flag(2)])
        add(vec, E0 + o.get('d0p', 0), i2)
        L0, S0 = outp(0)
        for j, x in enumerate(L0): add(vec, E0 + 2 + j, [x])
        nd1 = NI_ - o.get('d1', 19); add(vw, nd1, [('O', 1 + LD, 1)]); add(vec, nd1, [lambda: flag(3)])
        check(E0 + 22, c2, "L_d0", 2)
        for j, x in enumerate(S0): add(lw, E0 + 25 + 2 * j, [('or', j)]); add(vec, E0 + 25 + 2 * j, [x])
        add(vec, NI_ - o.get('d1p', 4), i3)
        add(sc_, NI_ - 5, [f"s_or_b32 s{T0}, s{S_RB}, s{S_HEAD}"]); add(sc_, NI_ - 4, [f"s_cmp_lg_u32 s{T0}, 0"]); add(sc_, NI_ - 3, [f"s_cselect_b32 s{T0}, {WS_SIZE}, 0"])
        add(vec, NI_ - 2, [(f"buffer_store_dword v{V_NONCE}, v{V_FOWN}, {srd(SWS)}, s{T0} offen offset:{br*128} sc1", 'nn')])
        p.wait(lg=[('FF', 0)])
        clk = 0.0; per = o.get('lper', 4.6)
        for i, (P, t_, rts) in enumerate(items):
            s_ = A_RING + (i % DF) * 4
            for z, rt in enumerate(rts):
                a = acc(ACC_K, t_, rt)
                p(f"{MF} {vq(a)}, {aq(s_)}, {ob(P, rt)}, {'0' if P == 0 else vq(a)}")
                if z == 0:
                    k0 = len(p.ins)
                    for tg in vw.get(i, []): self.flush_dma(tg)
                    p.wait(vm=vw.get(i), lg=[('FF', i + 1)] + lw.get(i, []))
                    if len(rts) == 1: self.put(sc_.get(i, []))
                    if i + DF - 1 < NI_:
                        if len(p.ins) == k0: p("s_nop 0")
                        fread(i + DF - 1, 0)
                else: self.put(sc_.get(i, []))
            self.stamp('z%d' % i)
            if i >= 10:
                clk += len(rts)
                if clk >= per and i not in vec and self.tick(): clk -= per
            self.put(vec.get(i, []))
        self.stamp()
        L1, S1 = outp(1)
        p(f"s_add_u32 s{S_OUT}, s{S_OUT}, {16*2560}")
        self.put(L1[:12]); self.put(c3[:2]); self.put(L1[12:]); self.put(c3[2:])
        for j in range(3): p.wait(lg=[('or', j)]); self.put([S1[j]])
        if o.get('stamps'):
            p("s_waitcnt vmcnt(0)")
            self.stamp()
            p("s_memrealtime s[100:101]")
            p("s_waitcnt lgkmcnt(0)")
            p.raw(f"""
            s_lshl_b32 s{T0}, s2, 2
            s_add_u32 s{T0}, s{T0}, s{S_W}
            s_lshl_b32 s{T0}, s{T0}, 6
            s_add_u32 s{T0}, s{T0}, {WS_ST}
            v_mov_b32 v{TMP+16}, 0
            v_mov_b32 v{TMP}, s98
            v_mov_b32 v{TMP+1}, s100
            """)
            for k in range(14): p(f"v_mov_b32 v{TMP+2+k}, {'s%d' % (S_ST+k) if k < self.nst else ('s95' if k == 13 else 0)}")
            p("s_mov_b64 exec, 1")
            for k in range(4): p(f"buffer_store_dwordx4 {vq(TMP+4*k)}, v{TMP+16}, {srd(SWS)}, s{T0} offen offset:{16*k}")
        if o.get('amp'):
            p("s_waitcnt vmcnt(0)")
            self.stamp()
            if o['amp'][0] < 0: p("s_mov_b32 s100, s98")
            p.raw(f"""
            s_and_b32 s{T0}, s2, 7
            s_lshr_b32 s{T0}, {o['amp'][2]}, s{T0}
            s_bitcmp1_b32 s{T0}, 0
            s_cbranch_scc0 L_ampx{self.sfx}
            s_load_dwordx2 s[62:63], s[0:1], 64
            v_mov_b32 v2, 0
            s_waitcnt lgkmcnt(0)
            global_load_dword v3, v2, s[62:63] sc1
            s_waitcnt vmcnt(0)
            v_readfirstlane_b32 s{T2}, v3
            s_not_b32 s{T2}, s{T2}
            s_sub_u32 s{T0}, s100, s{T2}
            s_add_u32 s{T0}, s{T0}, 300
            s_mul_i32 s{T0}, s{T0}, {o['amp'][1]}
            s_min_u32 s{T0}, s{T0}, 100000
            L_amp{self.sfx}:
            s_sleep 2
            s_memrealtime s[64:65]
            s_waitcnt lgkmcnt(0)
            s_sub_u32 s{T1}, s64, s{T2}
            s_cmp_lt_u32 s{T1}, s{T0}
            s_cbranch_scc1 L_amp{self.sfx}
            L_ampx{self.sfx}:
            """)
        p("s_endpgm")
        assert not self.dq

def sizes(lines):
    import subprocess, re
    src = '.amdgcn_target "amdgcn-amd-amdhsa--gfx950"\n.text\n' + "\n".join(lines) + "\n"
    r = subprocess.run(["llvm-mc", "-triple=amdgcn-amd-amdhsa", "-mcpu=gfx950", "-show-encoding"], input=src, capture_output=True, text=True)
    assert r.returncode == 0, r.stderr[:2000]
    return [len(m.split(',')) for m in re.findall(r'encoding: \[([^\]]*)\]', r.stdout)]
def add_hops(text, sfx, align=True):
    lines = text.split("\n")
    i0 = lines.index(f"L_main{sfx}:"); i1 = next(i for i in range(i0, len(lines)) if lines[i].strip() == "s_endpgm")
    body = lines[i0 + 1:i1]
    isi = lambda l: l.startswith("    ")
    szl = sizes([l for l in body if isi(l)])
    insl = [l.strip() for l in body if isi(l)]
    big = [z == 8 and t.startswith("v_") and not t.startswith("v_mfma") for z, t in zip(szl, insl)]
    run = [0] * (len(big) + 1)
    for k in range(len(big) - 1, -1, -1): run[k] = run[k + 1] + 1 if big[k] else 0
    sz = iter(szl); k = -1; nfix = 0
    out = []; addr = 0; page = 0; prev = "v_mfma"
    for l in body:
        if isi(l):
            k += 1
            if align and run[k] >= 3 and addr % 8 == 4:
                pv = out[-1] if isinstance(out[-1], str) else ""
                op = pv.split()[0] if pv.strip() else ""
                if isi(pv) and szl[k - 1] == 4 and op.startswith("v_") and not op.startswith(("v_cmp", "v_swap", "v_permlane", "v_readfirst")):
                    out[-1] = pv.replace(op, op + "_e64", 1); addr += 4; nfix += 1
                elif run[k] >= 6: out.append("    s_nop 0"); addr += 4; nfix += 1
            off = addr - page * 4096
            if off >= 0 and (prev.startswith("v_mfma") or off >= 40) and not prev.startswith("s_mov_b64 exec") :
                out.append(("hop", page)); addr += 4; page += 1
            addr += next(sz); prev = l.strip()
        out.append(l)
    assert page >= 4
    res = []
    for x in out:
        if isinstance(x, tuple):
            k = x[1]
            res += [f"L_hop{k}{sfx}:", f"    s_cbranch_execz " + (f"L_hop{k+4}{sfx}" if k + 4 < page else f"L_hopret{sfx}")]
        else: res.append(x)
    print(sfx, "main bytes", addr, "align fixes", nfix, file=sys.stderr)
    return "\n".join(lines[:i0 + 1] + res + lines[i1:])

def build(opt):
    ref = open(f"cdna_kernels/{NAME}.s.ref").read().split("\n")
    head = [l for l in ref if l.startswith(";") and "@launch" not in l]
    s = "\n".join(head) + "\n; @launch grid=(256,1,1) block=(256,1,1) lds=163840\n"
    s += f""".amdgcn_target "amdgcn-amd-amdhsa--gfx950"
.text
.globl {NAME}_kernel
.p2align 12
.p2align 8
.type {NAME}_kernel,@function
{NAME}_kernel:
    s_cmp_ge_u32 s2, 256
    s_cbranch_scc1 L_exit
"""
    ga = Gen(True, opt); ta = ga.body(); gb = Gen(False, opt); tb = gb.body()
    ca, ra = ta.split(".split\n"); cb, rb = tb.split(".split\n")
    assert ca == cb
    if opt.get('hops', 1): ra = add_hops(ra, 'A', opt.get('align', 1)); rb = add_hops(rb, 'B', opt.get('align', 1))
    s += ca + ra + "L_exit:\n    s_endpgm\n.p2align 12\n" + rb
    s += ".fill 2048, 4, 0xbf810000\n"
    s += f""".section .rodata,"a"
.p2align 6
.amdhsa_kernel {NAME}_kernel
  .amdhsa_next_free_vgpr 512
  .amdhsa_next_free_sgpr 102
  .amdhsa_accum_offset 256
  .amdhsa_group_segment_fixed_size 0
  .amdhsa_kernarg_size 80
  .amdhsa_user_sgpr_count 2
  .amdhsa_user_sgpr_kernarg_segment_ptr 1
  .amdhsa_system_sgpr_workgroup_id_x 1
.end_amdhsa_kernel
"""
    print("nops", ga.p.nops, gb.p.nops, "instrs", len(ga.p.ins), len(gb.p.ins), "autow", getattr(ga.p, 'autow', 0), file=sys.stderr)
    return s

if __name__ == "__main__":
    import json
    opt = json.loads(sys.argv[2]) if len(sys.argv) > 2 else {}
    open(sys.argv[1], "w").write(build(opt))
```

```python
import sys
from collections import deque
from emit import Prog
NAME = "concat_heads__linear_kernel_hedgehog__linear_attn_block__prompt"

S_RB, S_HG, S_W = 4, 5, 7
SX, SW, SWO, SWS, SOUT, SPHI = 8, 12, 16, 20, 24, 28
S_NONCE = 32
S_WROW = 33
S_XBASE, S_XU = 38, 39
S_LW, S_LR = 40, 41
T0, T1, T2, T3 = 42, 43, 44, 45
S_WOROW = 46
S_HEAD = 51
S_SPIN = 52
S_FAST = 53
S_L2E, S_NL2E = 54, 55
S_OB = 56
S_WS, S_XS = 57, 58
S_FLAG = 59
S_OP = 60
S_P1ST, S_P1LD, S_P2ST, S_P2LD, S_OWN, S_OUT, S_XCCV, S_PERM = 68, 69, 70, 71, 72, 73, 74, 75
S_KA = 76
S_ST = 76
import os
if os.environ.get('PRO'): S_ST = 88
def srd(b): return f"s[{b}:{b+3}]"
V_LANE = 1
V_WO = 2; V_OF = 7; V_OL = 12; V_XO = 17; V_XR = 21; V_WT = 23; V_LIN = 25
V_PW, V_VW, V_KB, V_KA0, V_KA1, V_FR = 26, 27, 28, 29, 30, 31
ACC_K, ACC_V = 32, 72
TMP = 112
PV = 228
V_P1ST, V_P1LD, V_P2ST, V_GAL, V_LA, V_FR2, V_KEEP, V_ONE, V_OW, V_ORD, V_OG, V_F8, V_DUMP, V_ZA = PV, PV+1, PV+2, PV+3, PV+4, PV+8, PV+9, PV+10, PV+11, PV+12, PV+17, PV+22, PV+23, PV+24
V_L128, V_NONCE, V_FOWN = PV + 25, PV + 26, PV + 27
RING = 0; SLOT = 20480; RBASE = 102400; RW = 15360
OUTL = RBASE + 16384; OUTS = 176
WS_FLAG, WS_XCC, WS_P2, WS_P1, WS_O, WS_ST = 4096, 32768, 65536, 1 << 20, 8 << 20, 16 << 20
WS_SIZE = 32 << 20
D = 6
A_RING = 220
A_PHI = 160
A_PARK = 244
V_OO = 7; V_LINH = 12; V_PF = 13; V_P1M = 14
WS_PF = 49152; WS_PK = 6 << 20
S_USRC, S_UDST, S_UFL, S_UTAG, S_PFL, S_XA = 3, 6, 72, 90, 91, 93
S_TB = SX
S_NHI = 38
SO = SPHI
SPIN_MAX = 20000
EPS = "0x358637bd"

def vq(b, n=4): return f"v[{b}:{b+n-1}]"
def aq(b, n=4): return f"a[{b}:{b+n-1}]"
def acc(base, t, rt): return base + (rt * 5 + t) * 4
MF = "v_mfma_f32_16x16x32_bf16"

DEF = {'A': dict(xpos=(117, 190, 222), qpace=4, pfpos=101, pfchk=28, prokeep=4, proev=120, h1=(50, 78), h1len=8, h2lead=90, kpace=4, hx=30, vsync=1, qev=26), 'B': dict(xpos=(117, 190, 222), upos=(18, 18, 62), pfpos=101, pfchk=28, h1=(50, 70), h1len=5, h2lead=80, prepos=290, vpace=4, qev=24, vsync=1)}
class Gen:
    def __init__(self, isA, opt):
        self.A = isA
        sf = 'A' if isA else 'B'
        opt = dict(DEF[sf], **opt)
        opt.update({k[:-1]: v for k, v in opt.items() if k.endswith(sf)})
        self.o = opt
        self.p = Prog(); self.sfx = 'A' if isA else 'B'
        self.F = 40 if isA else 20
        self.nst = 0
        self.dq = deque()
        self.pos = 0
        self.ool = []
    def stamp(self, name=None):
        p = self.p
        fine = self.o.get('fine')
        if fine:
            if name is None: self.cs = getattr(self, 'cs', 0) + 1; name = 's%d' % (self.cs - 1)
            if name not in fine: return
        elif name is not None: return
        if self.o.get('amp'):
            if self.nst == self.o['amp'][0]:
                p("s_memrealtime s[100:101]"); p("s_waitcnt lgkmcnt(0)")
            self.nst += 1
            return
        if not self.o.get('stamps'): return
        p(f"s_memrealtime s[100:101]" if self.o.get('rt') else f"s_memtime s[100:101]")
        p("s_waitcnt lgkmcnt(0)")
        p(f"s_sub_u32 s{S_ST+self.nst}, s100, {'s98' if self.o.get('rt') else 's96'}")
        self.nst += 1
    def put(self, L):
        for x in L:
            if isinstance(x, tuple): self.p(x[0], x[1])
            elif isinstance(x, list): self.put(x)
            elif callable(x): x()
            else: self.p(x)
    def dma_w(self, G):
        g = G % 5
        pre = [f"s_add_u32 m0, s{S_LW}, {RING + g*SLOT}"]
        if G < 15:
            col = {0: 1280, 1: 2560, 2: 0}[G // 5]
            gr = 4 - g if G // 5 in self.o.get('rev', [1, 2]) else g
            pre.append(f"s_add_u32 s{S_WS}, s{S_WROW+gr}, {col}"); so = f"s{S_WS}"; sd = SW; vo = V_WO
        else:
            items = []
            for j in range(5):
                off = f"offset:{j*1024} " if 0 < j < 4 else ""
                L = (pre if j == 0 else []) + [(f"buffer_load_dwordx4 v{V_LIN}, {srd(SWS)}, s{S_WOROW+g} offen {off}sc1 lds", ('W', G))]
                if j == 3: L += [f"s_add_u32 m0, s{S_LW}, {RING + g*SLOT + 4096}", f"s_add_u32 s{S_WOROW+g}, s{S_WOROW+g}, 4096"]
                items.append(L)
            return items
        items = []
        if G // 5 in self.o.get('fake', []):
            base = (G % 5) * 4 * 5120 + (G // 5 if G < 15 else 0) * 819200
            pre = [pre[0], f"s_add_u32 s{S_WS}, s94, {base}"]
            for j in range(5):
                off = f"offset:{j*1024} " if 0 < j < 4 else ""
                L = (pre if j == 0 else []) + [(f"buffer_load_dwordx4 v{V_LIN}, {srd(sd)}, s{S_WS} offen {off}lds", ('W', G))]
                if j == 3: L += [f"s_add_u32 m0, s{S_LW}, {RING + g*SLOT + 4096}", f"s_add_u32 s{S_WS}, s{S_WS}, 4096"]
                items.append(L)
            return items
        for j in range(5):
            off = f"offset:{j*1024} " if 0 < j < 4 else ""
            L = (pre if j == 0 else []) + [(f"buffer_load_dwordx4 v{vo+j}, {srd(sd)}, {so} offen {off}lds", ('W', G))]
            if j == 3: L.append(f"s_add_u32 m0, s{S_LW}, {RING + g*SLOT + 4096}")
            items.append(L)
        return items
    def dma_x(self, pu):
        items = []
        for j in range(4):
            off = f"offset:{j*1024} " if j else ""
            L = []
            if j == 0: L += [f"s_add_u32 m0, s{S_LR}, {(pu % 3) * 4096}", f"s_add_u32 s{S_XS}, s{S_XU}, s{S_XBASE}"]
            L.append((f"buffer_load_dwordx4 v{V_XO+j}, {srd(SX)}, s{S_XS} offen {off}lds", ('X', pu)))
            if j == 0: L += [f"s_add_u32 s{S_XU}, s{S_XU}, 128"]
            if j == 1: L += [f"s_cmp_eq_u32 s{S_XU}, 1280", f"s_cselect_b32 s{S_XU}, 0, s{S_XU}"]
            items.append(L)
        return items
    def q(self, earliest, items):
        for it in items: self.dq.append((earliest, it))
    def release(self, k):
        self.dq = deque((0 if e == 10**6 + k else e, it) for e, it in self.dq)
    def tick(self):
        if self.dq and not getattr(self, 'pfok', False) and any(isinstance(x, tuple) and x[1] == ('W', 15) for x in self.dq[0][1]): return False
        if self.dq and self.dq[0][0] <= self.pos:
            self.put(self.dq.popleft()[1]); return True
        return False
    def flush_dma(self, tag):
        def has():
            return any(isinstance(x, tuple) and x[1] == tag for _, it in self.dq for x in it)
        while has():
            assert self.dq[0][0] <= self.pos, (tag, self.pos, self.dq[0])
            self.put(self.dq.popleft()[1])
    def run(self, L, every=30):
        c = 0
        for cost, x in L:
            self.put([x]); c += cost
            if c >= every: c = 0; self.tick()
    def wread(self, N, hf):
        G = N // 20; ks = (N % 20) // 5; t = N % 5
        off = RING + (G % 5) * SLOT + ks * 5120 + hf * 2560 + 8 * t
        hi = off >= 51200
        s = A_RING + (N % D) * 4 + 2 * hf
        if G // 5 in self.o.get('fake', []):
            if hf == 0:
                off = RING + (G % 5) * SLOT + ks * 5120 + 1024 * t
                hi = off >= 51200
                self.p(f"ds_read_b128 a[{s}:{s+3}], v{226 + hi} offset:{off - 51200*hi}", ('F', N))
            return
        self.p(f"ds_read_b64_tr_b16 a[{s}:{s+1}], v{V_WT + hi} offset:{off - 51200*hi}", ('F', N))
    def group_sync(self, G):
        self.flush_dma(('W', G))
        self.p.wait(vm=[('W', G)])
        self.p("s_barrier")
    def xread(self, pu, k):
        ksub, rt = divmod(k, 2)
        if k == 0:
            self.flush_dma(('X', pu)); self.p.wait(vm=[('X', pu)])
        a = ((2 * pu + ksub) * 2 + rt) * 4
        self.p(f"ds_read_b128 {aq(a)}, v{V_XR+ksub} offset:{(pu % 3)*4096 + rt*2048}", ('XR', pu))
    def prime(self, ps, sync=True):
        if sync: self.group_sync(ps * 5)
        for n in range(D - 1):
            self.wread(ps * 100 + n, 0); self.wread(ps * 100 + n, 1)
    def gemm_pass(self, ps, accb, bop, fill=None, hooks=None, last=False, pace=None, sync=True, frange=(0, 100), hooks0=None):
        p = self.p
        fill = deque(fill or []); hooks = hooks or {}; hooks0 = hooks0 or {}
        N0 = ps * 100
        p.wait(lg=[('F', N0), ('XR', 0)])
        pace = pace or (lambda n: 0)
        for n in range(100):
            self.pos = N0 + n
            ks, t = divmod(n, 5)
            s = A_RING + ((N0 + n) % D) * 4
            M = n + D - 1
            look = M < 100 or not last
            a = acc(accb, t, 0)
            p(f"{MF} {vq(a)}, {aq(s)}, {bop(ks, 0)}, {'0' if ks == 0 else vq(a)}")
            k0 = len(p.ins)
            if n < 99:
                tg = [('F', N0 + n + 1)]
                if ps == 0 and (n + 1) % 10 == 0: tg.append(('XR', (n + 1) // 10))
                p.wait(lg=tg)
            if n in hooks0: self.put(hooks0[n])
            if look:
                if M % 20 == 0 and sync: self.group_sync((N0 + M) // 20)
                if len(p.ins) == k0: p("s_nop 0")
                self.wread(N0 + M, 0); self.wread(N0 + M, 1)
                if ps in self.o.get('fake', []) and fill and n >= frange[0] and not isinstance(fill[0][1], tuple): self.gap(fill, 1 if fill[0][0] < 2 or n % 2 else 2)
            elif fill and n >= frange[0]: self.gap(fill, 2)
            a = acc(accb, t, 1)
            p(f"{MF} {vq(a)}, {aq(s)}, {bop(ks, 1)}, {'0' if ks == 0 else vq(a)}")
            self.pos = N0 + n + 1
            self.stamp('n%d' % (N0 + n))
            did = 0
            for _ in range(pace(n)): did += self.tick()
            if n in hooks: self.put(hooks[n])
            if fill and n >= frange[0]:
                left = sum(c for c, _ in fill)
                gaps = sum(1 for k in range(n, frange[1]) if not pace(k)) + (min(D - 1, 99 - n) if last and frange[1] == 100 else 0)
                bud = 0 if did else 2
                if left > (3 if ps in self.o.get('fake', []) else 2) * gaps: bud += 2
                if ps == 2 and left > 4 * gaps: bud = -(-left // max(gaps, 1))
                self.gap(fill, bud)
        while fill: self.put([fill.popleft()[1]])
        self.pos = N0 + 100
    def gap(self, fill, bud):
        first = True
        while fill:
            c, x = fill[0]
            solo = isinstance(x, tuple)
            if c > bud or (solo and not first): break
            fill.popleft(); self.put([x]); bud -= c
            if solo: break
            if c: first = False
    def cvt20(self, src, dst):
        return [(1, f"v_cvt_pk_bf16_f32 v{dst+i}, v{src+2*i}, v{src+2*i+1}") for i in range(10)]
    def phiA_parts(self, x, e, m, name, isq):
        P = {}
        kb = e + 28
        P['cvt'] = self.cvt20(x, kb) + [(1, f"v_mov_b32 v{kb+10}, 0"), (1, f"v_mov_b32 v{kb+11}, 0")]
        P['mf'] = [(2, f"{MF} {vq(x+4*t)}, {aq(A_PHI + (t*3+u)*4)}, {vq(kb+4*u)}, {'0' if u == 0 else vq(x+4*t)}") for t in range(5) for u in range(3)]
        P['exp'] = [(2, f"v_exp_f32 v{e+i}, v{x+i}") for i in range(20)] + [(2, f"v_exp_f32 v{e+20+i}, -v{x+i}") for i in range(20)]
        def sums():
            L = [f"v_pk_add_f32 v[{m+2*h}:{m+2*h+1}], v[{e+20*h}:{e+20*h+1}], v[{e+20*h+2}:{e+20*h+3}]" for h in range(2)]
            L += [f"v_pk_add_f32 v[{m+2*h}:{m+2*h+1}], v[{m+2*h}:{m+2*h+1}], v[{e+20*h+2*i}:{e+20*h+2*i+1}]" for i in range(2, 10) for h in range(2)]
            L += [f"v_add_f32 v{m+2*h}, v{m+2*h}, v{m+2*h+1}" for h in range(2)]
            return L
        nm = name + self.sfx
        L = sums() + [f"v_max_f32 v{m+1}, v{m}, v{m+2}", f"v_cmp_ngt_f32 vcc, 0x5d800000, v{m+1}"]
        if not isq: L.append(f"v_rcp_f32 v{m+4}, v{m}")
        L += [f"v_rcp_f32 v{m+2}, v{m+2}", [f"s_cbranch_vccnz {nm}_slow", f"{nm}_back:"]]
        o = Prog()
        o(f"{nm}_slow:")
        o(f"v_max3_f32 v{m}, v{x}, v{x+1}, v{x+2}"); o(f"v_min3_f32 v{m+1}, v{x}, v{x+1}, v{x+2}")
        for i in range(3, 19, 2):
            o(f"v_max3_f32 v{m}, v{m}, v{x+i}, v{x+i+1}"); o(f"v_min3_f32 v{m+1}, v{m+1}, v{x+i}, v{x+i+1}")
        o(f"v_max_f32 v{m}, v{m}, v{x+19}"); o(f"v_min_f32 v{m+1}, v{m+1}, v{x+19}")
        for i in range(20): o(f"v_sub_f32 v{e+i}, v{x+i}, v{m}"); o(f"v_sub_f32 v{e+20+i}, v{m+1}, v{x+i}")
        for i in range(40): o(f"v_exp_f32 v{e+i}, v{e+i}")
        for y in sums(): o(y)
        if not isq: o(f"v_rcp_f32 v{m+4}, v{m}")
        o(f"v_rcp_f32 v{m+2}, v{m+2}"); o("s_nop 1"); o(f"s_branch {nm}_back")
        self.ool.append(o.finalize())
        if isq: L.append(f"v_mul_f32 v{m+2}, v{m+2}, v{m}")
        else: L += [f"v_pk_mul_f32 v[{e+2*i}:{e+2*i+1}], v[{e+2*i}:{e+2*i+1}], v[{m+4}:{m+5}] op_sel_hi:[1,0]" for i in range(10)]
        L += [f"v_pk_mul_f32 v[{e+20+2*i}:{e+21+2*i}], v[{e+20+2*i}:{e+21+2*i}], v[{m+2}:{m+3}] op_sel_hi:[1,0]" for i in range(10)]
        P['norm'] = [(1, y) for y in L]
        P['out'] = [(1, f"v_cvt_pk_bf16_f32 v{x+i}, v{e+2*i}, v{e+2*i+1}") for i in range(20)]
        return P
    def weave(self, mf, va, per=2):
        va = deque(va); L = []
        for x in mf:
            L.append(x); b = per
            while va and va[0][0] <= b: b -= va[0][0]; L.append(va.popleft())
        return L + list(va)
    def phiB(self, x, e, packed):
        L = []
        if packed: L += [(1, f"v_pk_mul_f32 v[{e+2*i}:{e+2*i+1}], v[{x+2*i}:{x+2*i+1}], s[{S_L2E}:{S_NL2E}] op_sel_hi:[1,0]") for i in range(10)]
        else: L += [(1, f"v_mul_f32 v{e+i}, s{S_L2E}, v{x+i}") for i in range(20)]
        L += [(2, f"v_exp_f32 v{e+i}, v{e+i} clamp") for i in range(20)]
        L += [(1, f"v_max_f32 v{x+i}, {EPS}, v{x+i}") for i in range(20)]
        if packed: L += [(1, f"v_pk_add_f32 v[{e+2*i}:{e+2*i+1}], v[{e+2*i}:{e+2*i+1}], v[{x+2*i}:{x+2*i+1}]") for i in range(10)]
        else: L += [(1, f"v_add_f32 v{e+i}, v{e+i}, v{x+i}") for i in range(20)]
        L += self.cvt20(e, x)
        return L
    def checked(self, name, loads, check, tag):
        nm = name + self.sfx
        iss = [(x, tag) if x.startswith('buffer') else x for x in loads]
        chk = [(0, lambda: self.p.wait(vm=[tag]))] + [(1, x) for x in check] + [(1, [f"s_cbranch_vccnz {nm}_retry", f"{nm}_ok:"])]
        o = Prog()
        o(f"{nm}_retry:"); o(f"s_mov_b32 s{S_SPIN}, 0"); o(f"{nm}_loop:")
        if self.o.get('stamps'): o(f"s_add_u32 s95, s95, {dict(L_xc=1000000, L_h1=10000, L_h2=1000, L_pf=10000000, L_f0=1, L_f1=100, L_d0=0, L_d1=100000)[name]}")
        bk = self.o.get('backoff', {}).get(name, 0)
        if bk: o(f"s_sleep {bk}")
        for x in loads: o(x)
        o("s_waitcnt vmcnt(0)")
        for x in check: o(x)
        o(f"s_cbranch_vccz {nm}_ok")
        o(f"s_add_u32 s{S_SPIN}, s{S_SPIN}, 1"); o(f"s_cmp_lt_u32 s{S_SPIN}, {SPIN_MAX}"); o(f"s_cbranch_scc1 {nm}_loop")
        o(f"s_branch {nm}_ok")
        self.ool.append(o.finalize())
        return iss, chk
    def body(self):
        p = self.p; A = self.A; F = self.F; br = 0 if A else 1; o = self.o
        t = TMP
        K = S_KA
        kx, kw, kout, kws = K, K + 2, K + 8, K + 10
        kphi, kwo = (K + 4, K + 6) if A else (None, K + 4)
        p.raw(f"""
        s_andn2_b32 s{T0}, 1, s2
        s_lshl_b32 s{T0}, s{T0}, 5
        s_load_dwordx8 s[{K}:{K+7}], s[0:1], s{T0}
        s_load_dwordx2 s[{kout}:{kout+1}], s[0:1], 56
        s_load_dwordx2 s[{kws}:{kws+1}], s[0:1], 72
        """)
        if o.get('stamps'): p("s_memtime s[96:97]"); p("s_mov_b32 s95, 0")
        if o.get('stamps') or o.get('amp'): p("s_memrealtime s[98:99]")
        p.raw(f"""
        s_getpc_b64 s[60:61]
        L_pc:
        s_bfe_u32 s{S_HG}, s2, 0x30003
        v_and_b32 v{V_LANE}, 63, v0
        v_lshrrev_b32 v{t}, 6, v0
        s_bitcmp0_b32 s2, 0
        s_cselect_b32 s{T1}, L_setupB-L_setupA, 0
        s_lshl_b32 s{T0}, s{S_HG}, 12
        v_lshlrev_b32 v{V_L128}, 7, v{V_LANE}
        v_readfirstlane_b32 s{S_W}, v{t}
        s_add_u32 s{T0}, s{T0}, s{T1}
        s_add_u32 s{T0}, s{T0}, L_setupA-L_pc
        s_add_u32 s60, s60, s{T0}
        s_addc_u32 s61, s61, 0
        v_lshl_add_u32 v{t+1}, v{t}, 10, v{V_L128}
        s_mov_b64 exec, 0xff
        """)
        p(f"global_load_dword v{V_DUMP}, v{t+1}, s[60:61]", 'cpf')
        p("s_mov_b64 exec, -1")
        ra, rbm, rdiv = o.get('rot', (10, 10, 4))
        p.raw(f"""
        s_and_b32 s{S_RB}, s2, 6
        s_lshl_b32 s{S_RB}, s{S_RB}, 1
        s_lshr_b32 s{T0}, s2, 6
        s_add_u32 s{S_RB}, s{S_RB}, s{T0}
        s_mul_i32 s{T0}, s{S_HG}, {ra}
        s_mul_i32 s{T1}, s{S_RB}, {rbm}
        s_add_u32 s{T0}, s{T0}, s{T1}
        s_lshr_b32 s{T0}, s{T0}, {rdiv.bit_length()-1}
        s_mul_i32 s{T1}, s{T0}, 6554
        s_lshr_b32 s{T1}, s{T1}, 16
        s_mul_i32 s{T1}, s{T1}, 10
        s_sub_u32 s{T3}, s{T0}, s{T1}
        s_lshl_b32 s{S_XU}, s{T3}, 7
        s_lshl_b32 s{T0}, s{S_RB}, 2
        s_add_u32 s{T0}, s{T0}, s{S_W}
        s_mul_i32 s{S_XBASE}, s{T0}, 40960
        s_mul_i32 s{S_LW}, s{S_W}, 5120
        s_mul_i32 s{S_LR}, s{S_W}, {RW}
        s_add_u32 s{S_LR}, s{S_LR}, {RBASE}
        v_lshrrev_b32 v{t}, 3, v{V_LANE}
        v_mul_u32_u24 v{t}, 1280, v{t}
        v_lshrrev_b32 v{t+1}, 4, v{V_LANE}
        v_xor_b32 v{t+1}, v{t+1}, v{V_LANE}
        v_and_b32 v{t+1}, 7, v{t+1}
        v_lshl_add_u32 v{V_XO}, v{t+1}, 4, v{t}
        v_xor_b32 v{t+2}, 64, v{V_XO}
        v_add_u32 v{V_XO+1}, {9216}, v{t+2}
        v_add_u32 v{V_XO+2}, {2*9216}, v{V_XO}
        v_add_u32 v{V_XO+3}, {3*9216}, v{t+2}
        s_lshr_b32 s{T0}, s{S_W}, 1
        s_add_u32 s{T0}, s{T0}, s{T3}
        s_and_b32 s{T1}, s{S_W}, 1
        s_mul_i32 s{T1}, s{T1}, {32*3840}
        s_mul_i32 s{T2}, s{S_HG}, 160
        s_add_u32 s{T1}, s{T1}, s{T2}
        s_mov_b32 s{SX+2}, 2621440
        s_mov_b32 s{SX+3}, 0x20000
        s_mov_b32 s{SW+2}, 2457600
        s_mov_b32 s{SW+3}, 0x20000
        """)
        def wrow(g):
            p.raw(f"""
            s_cmp_ge_u32 s{T0}, 10
            s_cselect_b32 s{T2}, 10, 0
            s_sub_u32 s{T0}, s{T0}, s{T2}
            s_mul_i32 s{T2}, s{T0}, {64*3840}
            s_add_u32 s{S_WROW+g}, s{T2}, s{T1}
            s_add_u32 s{T0}, s{T0}, 2
            """)
        wrow(0)
        RH = TMP + 10
        def woff(j):
            b = RH + 5 * j
            p.raw(f"""
            v_add_u32 v{t}, {64*j}, v{V_LANE}
            v_mul_u32_u24 v{b+4}, 6554, v{t}
            v_lshrrev_b32 v{b+4}, 16, v{b+4}
            v_mul_u32_u24 v{t+2}, 10, v{b+4}
            v_sub_u32 v{b+3}, v{t}, v{t+2}
            v_bfe_u32 v{b}, v{b+4}, 2, 2
            v_lshrrev_b32 v{b+1}, 4, v{b+4}
            v_and_b32 v{b+2}, 3, v{b+4}
            v_lshl_add_u32 v{t}, v{b}, 1, v{b+1}
            v_lshl_add_u32 v{t}, v{t}, 2, v{b+2}
            v_mul_u32_u24 v{t}, 3840, v{t}
            v_lshl_add_u32 v{V_WO+j}, v{b+3}, 4, v{t}
            """)
            if 0 < j < 4: p(f"v_subrev_u32 v{V_WO+j}, {1024*j}, v{V_WO+j}")
        if o.get('fake'):
            p.raw(f"""
            s_mul_i32 s94, s{S_HG}, 102400
            s_add_u32 s94, s94, s{S_LW}
            v_lshlrev_b32 v{V_LIN}, 4, v{V_LANE}
            v_mov_b32 v226, v{V_LIN}
            v_add_u32 v227, 51200, v{V_LIN}
            """)
        woff(0); woff(1)
        if o.get('pre0'): p("s_memtime s[92:93]")
        p.raw(f"""
        s_waitcnt lgkmcnt(0)
        s_mov_b32 s{SX}, s{kx}
        s_mov_b32 s{SX+1}, s{kx+1}
        s_mov_b32 s{SW}, s{kw}
        s_mov_b32 s{SW+1}, s{kw+1}
        """)
        self.stamp('p0')
        if o.get('pre0'): p(f"s_sub_u32 s{S_ST+self.nst}, s92, s96"); self.nst += 1
        self.put(self.dma_x(0))
        w0 = self.dma_w(0)
        self.put(w0[0:2]); woff(2); self.put(w0[2]); woff(3); self.put(w0[3]); woff(4); self.put(w0[4])
        self.stamp('p1')
        if o.get('prowait'):
            p.wait(vm=['cpf']); self.stamp('p2')
            p.wait(vm=[('X', 0)]); self.stamp('p3')
            p.wait(vm=[('W', 0)]); self.stamp('p4')
        p("s_bitcmp0_b32 s2, 0"); p("s_cbranch_scc1 L_setupB")
        p(".split")
        p(f"L_setup{self.sfx}:")
        p(f"s_load_dword s{S_NONCE}, s[{kws}:{kws+1}], {br*128}")
        if not A:
            p(f"s_load_dword s{S_UTAG}, s[{kws}:{kws+1}], 0")
            p(f"s_load_dwordx2 s[{K+6}:{K+7}], s[0:1], 24")
        for g in range(1, 5): wrow(g)
        self.q(0, self.dma_x(1))
        p.raw(f"""
        s_mov_b32 s{SWS}, s{kws}
        s_mov_b32 s{SWS+1}, s{kws+1}
        s_mov_b32 s{SWS+2}, {WS_SIZE}
        s_mov_b32 s{SWS+3}, 0x20000
        s_mov_b32 s{SOUT}, s{kout}
        s_mov_b32 s{SOUT+1}, s{kout+1}
        s_mov_b32 s{SOUT+2}, 5242880
        s_mov_b32 s{SOUT+3}, 0x20000
        s_lshl_b32 s{S_HEAD}, s{S_HG}, 2
        s_add_u32 s{S_HEAD}, s{S_HEAD}, s{S_W}
        v_lshlrev_b32 v{V_LIN}, 4, v{V_LANE}
        """)
        if A:
            p.raw(f"""
            s_mov_b32 s{SPHI}, s{kphi}
            s_mov_b32 s{SPHI+1}, s{kphi+1}
            s_mov_b32 s{SPHI+2}, 25600
            s_mov_b32 s{SPHI+3}, 0x20000
            """)
            self.q(0, [[f"s_mul_i32 s{S_WS}, s{S_HEAD}, 800",
                        (f"buffer_load_dwordx4 {vq(TMP+96)}, v{V_LIN}, {srd(SPHI)}, s{S_WS} offen", 'wphi')]])
        self.q(0, self.dma_w(1)); self.q(0, self.dma_x(2))
        G_, I_, R_, C_ = t, t + 1, t + 2, t + 3
        S = []
        def raw(txt):
            for l in txt.split('\n'):
                if l.strip(): S.append((1, l.strip()))
        raw(f"""
        v_lshrrev_b32 v{G_}, 4, v{V_LANE}
        v_and_b32 v{I_}, 15, v{V_LANE}
        v_bfe_u32 v{R_}, v{V_LANE}, 2, 2
        v_and_b32 v{C_}, 3, v{V_LANE}
        v_lshrrev_b32 v{t+4}, 1, v{I_}
        v_xor_b32 v{t+4}, v{t+4}, v{G_}
        v_lshlrev_b32 v{t+5}, 7, v{I_}
        v_lshl_add_u32 v{t+4}, v{t+4}, 4, v{t+5}
        v_add_u32 v{V_XR}, s{S_LR}, v{t+4}
        v_xor_b32 v{t+4}, 64, v{t+4}
        v_add_u32 v{V_XR+1}, s{S_LR}, v{t+4}
        v_lshrrev_b32 v{t+4}, 2, v{V_LANE}
        v_mul_u32_u24 v{t+5}, 160, v{t+4}
        v_mul_u32_u24 v{t+6}, 40, v{C_}
        v_add_u32 v{V_WT}, v{t+5}, v{t+6}
        v_add_u32 v{V_WT+1}, 51200, v{V_WT}
        v_mul_u32_u24 v{t+5}, 120, v{I_}
        v_mul_u32_u24 v{t+6}, 3840, v{G_}
        v_add3_u32 v{V_PW}, v{t+5}, v{t+6}, s{S_LR}
        v_mul_u32_u24 v{t+6}, 40, v{G_}
        v_mul_u32_u24 v{t+7}, {OUTS}, v{I_}
        s_mul_i32 s{T2}, s{S_W}, {32*OUTS}
        s_add_u32 s{T2}, s{T2}, {OUTL}
        v_add3_u32 v{V_OW}, v{t+7}, v{t+6}, s{T2}
        v_and_b32 v{t+5}, 7, v{t+4}
        v_lshrrev_b32 v{t+6}, 5, v{V_LANE}
        v_lshlrev_b32 v{t+6}, 1, v{t+6}
        v_lshl_add_u32 v{t+5}, v{t+5}, 2, v{t+6}
        v_mul_u32_u24 v{t+5}, 120, v{t+5}
        s_mul_i32 s{T0}, s{S_W}, 3840
        s_add_u32 s{T0}, s{T0}, {RBASE}
        v_add_u32 v{V_KA1}, s{T0}, v{t+5}
        v_lshl_add_u32 v{V_KB}, v{C_}, 3, v{V_KA1}
        s_mov_b32 s{S_L2E}, 0x3fb8aa3b
        s_mov_b32 s{S_NL2E}, 0xbfb8aa3b
        s_mov_b32 s{S_PERM}, 0x07060302
        s_and_b32 s{T3}, s{S_HG}, 1
        """)
        for j in range(5):
            b = RH + 5 * j
            if j < 3: raw(f"""
            v_mul_u32_u24 v{t+5}, {OUTS}, v{b+4}
            v_lshl_add_u32 v{t+5}, v{b+3}, 4, v{t+5}
            v_add_u32 v{V_ORD+j}, s{T2}, v{t+5}
            v_mul_u32_u24 v{t+5}, 2560, v{b+4}
            v_lshl_add_u32 v{V_OG+j}, v{b+3}, 4, v{t+5}
            """)
            if j == 2: raw(f"""
            v_lshrrev_b32 v{t+5}, 5, v{V_LANE}
            v_lshl_or_b32 v{V_OG+2}, v{t+5}, 30, v{V_OG+2}
            """)
        raw(f"""
        v_mov_b32 v{t+5}, 2304
        v_cmp_gt_u32 vcc, 16, v{V_LANE}
        v_mov_b32 v{t+6}, 1024
        v_cndmask_b32 v{t+5}, v{t+5}, v{t+6}, vcc
        v_add_u32 v{V_OO+1}, v{t+5}, v{V_LIN}
        v_mov_b32 v{V_OO}, v{V_LIN}
        v_add_u32 v{V_OO+2}, 40960, v{V_LIN}
        v_add_u32 v{V_OO+3}, 40960, v{V_OO+1}
        v_lshrrev_b32 v{t+4}, 5, v{V_LANE}
        v_mul_u32_u24 v{t+4}, {40960-512}, v{t+4}
        v_add_u32 v{t+5}, 3328, v{V_LIN}
        v_add_u32 v{V_OO+4}, v{t+4}, v{t+5}
        v_add_u32 v{V_LINH}, 51200, v{V_LIN}
        v_min_u32 v{V_PF}, 39, v{V_LANE}
        v_lshlrev_b32 v{V_PF}, 3, v{V_PF}
        v_and_b32 v{t+4}, 1, v{RH+4}
        v_mul_u32_u24 v{t+4}, 2560, v{t+4}
        v_lshrrev_b32 v{t+5}, 1, v{RH+4}
        v_mul_u32_u24 v{t+5}, 40960, v{t+5}
        v_lshlrev_b32 v{t+6}, 7, v{RH+3}
        v_add3_u32 v{V_L128}, v{t+4}, v{t+5}, v{t+6}
        """)
        raw(f"""
        s_lshl_b32 s{T0}, s{T3}, 1
        s_xor_b32 s{T0}, s{T0}, s{S_W}
        s_mul_i32 s{T0}, s{T0}, 5120
        s_mul_i32 s{T2}, s{S_HG}, 102400
        s_add_u32 s{T2}, s{T2}, {WS_PK + br*819200}
        s_add_u32 s{T0}, s{T0}, s{T2}
        s_lshr_b32 s{S_SPIN}, s{S_HG}, 1
        s_add_u32 s{T1}, s{S_SPIN}, s{S_W}
        s_and_b32 s{T1}, s{T1}, 3
        s_add_u32 s{T1}, s{T1}, 16
        s_mul_i32 s{T1}, s{T1}, 5120
        s_add_u32 s{S_WOROW+4}, s{T1}, s{T2}
        s_lshr_b32 s{S_PFL}, s{S_HG}, 2
        s_lshl_b32 s{S_PFL}, s{S_PFL}, 9
        s_add_u32 s{S_PFL}, s{S_PFL}, {WS_PF + br*1024}
        s_mul_i32 s{T2}, s{S_HG}, 160
        s_lshl_b32 s{S_OUT}, s{S_XBASE}, 1
        s_add_u32 s{S_OUT}, s{S_OUT}, s{T2}
        s_add_u32 s{S_OUT}, s{S_OUT}, {br*1280}
        s_lshl_b32 s{S_OB}, s{S_XBASE}, 1
        s_add_u32 s{S_OB}, s{S_OB}, {br*1280}
        """)
        for g in range(4):
            raw(f"""
            s_add_u32 s{T1}, s{S_SPIN}, {g}
            s_and_b32 s{T1}, s{T1}, 3
            s_mul_i32 s{T2}, s{T1}, 20480
            s_add_u32 s{S_WOROW+g}, s{T2}, s{T0}
            s_lshl_b32 s{T1}, s{T1}, 1
            s_add_u32 s{T1}, s{T1}, s{T3}
            s_mul_i32 s{T2}, s{T1}, 5120
            s_add_u32 s{S_OP+2*g}, s{T2}, s{S_OB}
            s_xor_b32 s{T1}, s{T1}, 1
            s_mul_i32 s{T2}, s{T1}, 5120
            s_add_u32 s{S_OP+2*g+1}, s{T2}, s{S_OB}
            """)
        SH = 8 if A else 7
        raw(f"""
        s_lshl_b32 s{T0}, s{S_RB}, 2
        s_add_u32 s{T0}, s{T0}, s{S_W}
        s_lshl_b32 s{S_FLAG}, s{T0}, 7
        s_add_u32 s{S_FLAG}, s{S_FLAG}, {WS_FLAG + br*64*128}
        s_lshl_b32 s{T0}, s{S_HEAD}, 16
        s_add_u32 s{T0}, s{T0}, {WS_P1 + br*32*65536}
        s_lshl_b32 s{T1}, s{S_RB}, 12
        s_add_u32 s{S_P1ST}, s{T0}, s{T1}
        s_min_u32 s{T1}, s{S_RB}, 14
        s_lshl_b32 s{T1}, s{T1}, {SH}
        s_add_u32 s{S_P1LD}, s{T0}, s{T1}
        s_lshl_b32 s{T0}, s{S_HEAD}, 12
        s_add_u32 s{S_P2LD}, s{T0}, {WS_P2 + br*32*4096}
        s_add_u32 s{S_P2ST}, s{S_P2LD}, s{T1}
        v_mul_u32_u24 v{t+4}, {F}, v{G_}
        v_add_lshl_u32 v{V_P1ST}, v{t+4}, v{I_}, 4
        v_lshrrev_b32 v{t+4}, {3 if A else 2}, v{I_}
        v_lshl_or_b32 v{V_P1M}, v{t+4}, 28, v{V_P1ST}
        v_lshrrev_b32 v{t+4}, 1, v{G_}
        v_lshl_or_b32 v{V_P1M+1}, v{t+4}, 30, v{V_P1ST}
        v_or_b32 v{V_P1M+2}, v{V_P1M}, v{V_P1M+1}
        v_cmp_gt_u32 vcc, 4, v{I_}
        v_cndmask_b32 v{V_KEEP}, 0, -1, vcc
        v_mov_b32 v{t+4}, 0x3f803f80
        v_cmp_eq_u32 vcc, 4, v{I_}
        v_cndmask_b32 v{V_ONE}, 0, v{t+4}, vcc
        v_and_b32 v{t+4}, 7, v{V_LANE}
        v_lshlrev_b32 v{V_F8}, 2, v{t+4}
        s_lshl_b32 s{T0}, s{S_HG}, 2
        v_min_u32 v{V_FOWN}, 1, v{V_LANE}
        v_lshlrev_b32 v{V_FOWN}, 30, v{V_FOWN}
        v_or_b32 v{V_FOWN}, s{T0}, v{V_FOWN}
        v_lshlrev_b32 v{V_ZA}, 3, v0
        v_add_u32 v{V_ZA}, {RBASE+7680}, v{V_ZA}
        """)
        if A:
            raw(f"""
            v_lshlrev_b32 v{t+5}, 12, v{G_}
            v_lshl_add_u32 v{V_P1LD}, v{I_}, 4, v{t+5}
            v_lshlrev_b32 v{V_P2ST}, 2, v{V_LANE}
            """)
        else:
            raw(f"""
            v_lshrrev_b32 v{t+5}, 3, v{V_LANE}
            v_lshlrev_b32 v{t+5}, 12, v{t+5}
            v_lshl_add_u32 v{V_P1LD}, v{t+4}, 4, v{t+5}
            v_lshl_add_u32 v{V_P2ST}, v{G_}, 5, v{V_F8}
            """)
        RS = 80 if A else 48
        HS = 24 * RS
        NQ = 240 if A else 120
        NI = 4 if A else 2
        raw(f"s_mul_i32 s{T0}, s{S_W}, {HS}\ns_add_u32 s{T0}, s{T0}, {RBASE}")
        u = t + 4
        for ii in range(NI):
            raw(f"v_add_u32 v{u}, {64*ii}, v{V_LANE}")
            if ii == NI - 1:
                raw(f"""v_subrev_u32 v{u+1}, 64, v{u}
                v_cmp_gt_u32 vcc, {NQ}, v{u}
                v_cndmask_b32 v{u}, v{u+1}, v{u}, vcc
                v_lshlrev_b32 v{V_GAL}, 4, v{u}""")
            if A:
                raw(f"""
                v_lshrrev_b32 v{u+1}, 4, v{u}
                v_and_b32 v{u+2}, 3, v{u}
                v_lshl_add_u32 v{u+1}, v{u+1}, 2, v{u+2}
                v_bfe_u32 v{u+2}, v{u}, 2, 2
                v_mul_u32_u24 v{u+3}, 6554, v{u+1}
                v_lshrrev_b32 v{u+3}, 16, v{u+3}
                v_mul_u32_u24 v{u+4}, 10, v{u+3}
                """)
            else:
                raw(f"""
                v_lshrrev_b32 v{u+1}, 3, v{u}
                v_and_b32 v{u+2}, 1, v{u}
                v_lshl_add_u32 v{u+1}, v{u+1}, 1, v{u+2}
                v_bfe_u32 v{u+2}, v{u}, 1, 2
                v_mul_u32_u24 v{u+3}, 13108, v{u+1}
                v_lshrrev_b32 v{u+3}, 16, v{u+3}
                v_mul_u32_u24 v{u+4}, 5, v{u+3}
                """)
            raw(f"""
            v_sub_u32 v{u+1}, v{u+1}, v{u+4}
            v_lshl_add_u32 v{u+3}, v{u+3}, 2, v{u+2}
            v_mul_u32_u24 v{u+3}, {RS}, v{u+3}
            v_lshl_add_u32 v{u+3}, v{u+1}, 3, v{u+3}
            v_add_u32 v{V_LA+ii}, s{T0}, v{u+3}
            """)
        raw(f"""
        v_cmp_eq_u32 vcc, v{G_}, v{R_}
        v_mul_u32_u24 v{u}, {HS}, v{G_}
        v_mul_u32_u24 v{u+1}, {RS}, v{C_}
        v_add_u32 v{u}, v{u}, v{u+1}
        v_add_u32 v{u}, {RBASE}, v{u}
        v_mov_b32 v{u+1}, {RBASE+7680}
        v_cndmask_b32 v{V_FR2}, v{u+1}, v{u}, vcc
        """)
        if A:
            raw(f"""
            v_mov_b32 v{t+36}, 0
            v_mov_b32 v{t+37}, 0
            v_mov_b32 v{t+38}, 0
            v_mov_b32 v{t+39}, 0
            v_add_u32 v{TMP+100}, s{S_LR}, v{V_LIN}
            ds_write_b128 v{TMP+100}, {vq(t+36)} offset:13312
            v_mul_u32_u24 v{t+4}, {RW}, v{G_}
            v_mul_u32_u24 v{t+5}, 40, v{R_}
            v_add_u32 v{t+4}, v{t+4}, v{t+5}
            v_add_u32 v{t+4}, {RBASE+12288}, v{t+4}
            s_add_u32 s{T0}, s{S_LR}, 13312
            v_mov_b32 v{t+5}, s{T0}
            v_cmp_eq_u32 vcc, v{C_}, v{G_}
            v_cndmask_b32 v{V_FR}, v{t+5}, v{t+4}, vcc
            """)
            for tt in range(5):
                a = A_PHI + (tt * 3 + 2) * 4
                raw(f"v_accvgpr_write_b32 a{a+2}, 0\nv_accvgpr_write_b32 a{a+3}, 0")
        US, UA, UD = TMP + 40, TMP + 45, TMP + 80
        nA = o.get('nA', 0); prod = (not A) or nA > 0
        S_UOK = 92
        if prod:
            iS0 = len(S)
            S.append((1, [x.strip() for x in f"""
            s_add_u32 s{T1}, s{S_HG}, s{S_RB}
            s_and_b32 s{T1}, s{T1}, 1
            s_lshl_b32 s{T0}, s{S_W}, 1
            s_add_u32 s{T0}, s{T0}, s{T1}
            s_lshl_b32 s{T0}, s{T0}, 3
            s_add_u32 s{T0}, s{T0}, s{S_HG}
            s_lshl_b32 s{T0}, s{T0}, 3
            s_lshr_b32 s{T1}, s{S_RB}, 1
            s_add_u32 s{T0}, s{T0}, s{T1}
            s_add_u32 s{T0}, s{T0}, {0 if A else nA}
            s_cmp_lt_u32 s{T0}, {nA if A else 320}
            s_cselect_b32 s{S_UOK}, 1, 0
            s_waitcnt lgkmcnt(0)
            s_cmp_lt_u32 s{T0}, 160
            s_cselect_b32 s{SWO}, s{K+6}, s{kwo}
            s_cselect_b32 s{SWO+1}, s{K+7}, s{kwo+1}
            s_cselect_b32 s{S_UTAG}, s{S_NONCE if A else S_UTAG}, s{S_NONCE}
            s_cselect_b32 s{T1}, 0, 160
            s_cselect_b32 s{S_UDST}, 0, 819200
            s_cselect_b32 s{S_UFL}, 0, 1024
            s_mov_b32 s{SWO+2}, 819200
            s_mov_b32 s{SWO+3}, 0x20000
            s_add_u32 s{S_UTAG}, s{S_UTAG}, 0x9e3779b1
            s_sub_u32 s{T0}, s{T0}, s{T1}
            s_and_b32 s{T1}, s{T0}, 1
            s_mul_i32 s{S_USRC}, s{T1}, 640
            s_mul_i32 s{T2}, s{T1}, 409600
            s_add_u32 s{S_UDST}, s{S_UDST}, s{T2}
            s_lshl_b32 s{T2}, s{T1}, 9
            s_add_u32 s{S_UFL}, s{S_UFL}, s{T2}
            s_lshr_b32 s{T1}, s{T0}, 1
            s_lshl_b32 s{T2}, s{T1}, 2
            s_add_u32 s{S_UFL}, s{S_UFL}, s{T2}
            s_add_u32 s{S_UFL}, s{S_UFL}, {WS_PF}
            s_and_b32 s{T1}, s{T1}, 3
            s_mul_i32 s{T2}, s{T1}, {20*1280}
            s_add_u32 s{S_USRC}, s{S_USRC}, s{T2}
            s_lshl_b32 s{T2}, s{T1}, 8
            s_add_u32 s{S_UDST}, s{S_UDST}, s{T2}
            s_lshr_b32 s{T1}, s{T0}, 3
            s_mul_i32 s{T2}, s{T1}, 5120
            s_add_u32 s{S_UDST}, s{S_UDST}, s{T2}
            s_add_u32 s{S_UDST}, s{S_UDST}, {WS_PK}
            s_lshr_b32 s{T2}, s{T1}, 1
            s_mul_i32 s{T2}, s{T2}, 80
            s_and_b32 s{T3}, s{T1}, 1
            s_lshl_b32 s{T3}, s{T3}, 3
            s_add_u32 s{T2}, s{T2}, s{T3}
            s_mul_i32 s{T3}, s{T1}, 160
            s_sub_u32 s{T3}, s{T3}, {16*160 - 16}
            s_cmp_ge_u32 s{T1}, 16
            s_cselect_b32 s{T2}, s{T3}, s{T2}
            s_cselect_b32 s{T3}, 1, 0
            s_mul_i32 s{T2}, s{T2}, 1280
            s_add_u32 s{S_USRC}, s{S_USRC}, s{T2}
            s_mul_i32 s{T1}, s{T3}, {76*1280}
            s_add_u32 s{T2}, s{S_LW}, {RING + 4*SLOT}
            """.split('\n') if x.strip()]))
            for j in range(5):
                raw(f"""
                v_lshrrev_b32 v{t+4}, 2, v{RH+5*j+4}
                v_mul_u32_u24 v{t+5}, 640, v{t+4}
                v_lshrrev_b32 v{t+4}, 2, v{t+4}
                v_mul_u32_u24 v{t+4}, s{T1}, v{t+4}
                v_add3_u32 v{US+j}, v{t+4}, v{t+5}, v{V_LIN}
                """)
            raw(f"v_add_u32 v{US+4}, 4096, v{US+4}")
            iS1 = len(S)
            raw(f"""
            v_mul_u32_u24 v{t+7}, 640, v{R_}
            v_mul_u32_u24 v{t+8}, 40, v{C_}
            v_add3_u32 v{t+7}, v{t+7}, v{t+8}, s{T2}
            """)
            for j in range(5):
                raw(f"""
                v_add_u32 v{t+4}, {4*j}, v{G_}
                v_mul_u32_u24 v{t+5}, 13108, v{t+4}
                v_lshrrev_b32 v{t+5}, 16, v{t+5}
                v_mul_u32_u24 v{t+6}, 120, v{t+5}
                v_lshl_add_u32 v{t+6}, v{t+4}, 3, v{t+6}
                v_add_u32 v{t+6}, v{t+6}, v{t+7}
                v_and_b32 v{t+8}, s{T3}, v{t+5}
                v_mul_u32_u24 v{t+8}, 2560, v{t+8}
                v_add_u32 v{UA+2*j}, v{t+6}, v{t+8}
                v_sub_u32 v{t+6}, v{t+6}, v{t+8}
                v_add_u32 v{UA+2*j+1}, 2560, v{t+6}
                v_mul_u32_u24 v{t+5}, {102400 - 5120}, v{t+5}
                v_lshl_add_u32 v{t+5}, v{t+4}, 10, v{t+5}
                v_lshl_add_u32 v{UD+j}, v{I_}, 4, v{t+5}
                """)
            mark = {}
            def cond(name, lines):
                p.untracked([f"s_cmp_eq_u32 s{S_UOK}, 0", f"s_cbranch_scc1 {name}{self.sfx}"] + lines + [f"{name}{self.sfx}:"])
                mark[name] = p.nvm
            L = [f"s_add_u32 m0, s{S_LW}, {RING + 4*SLOT}"]
            for j in range(5):
                off = f"offset:{j*1024} " if 0 < j < 4 else ""
                L.append(f"buffer_load_dwordx4 v{US+j}, {srd(SWO)}, s{S_USRC} offen {off}lds")
                if j == 3: L.append(f"s_add_u32 m0, s{S_LW}, {RING + 4*SLOT + 4096}")
            un = [[lambda L=L: cond("L_u1", L)]]
            if o.get('uissue', 0) == 0: self.q(10**6 + 77, un)
            if o.get('uissue', 0) == -1: S = S[:4] + S[iS0:iS1] + [(0, un[0])] + S[iS1:] + S[4:iS0]
        self.run(S, every=o.get('proev', 60))
        self.stamp('p5')
        if o.get('uissue', 0) == 0: self.release(77)
        def urd(): cond("L_u2r", [f"s_waitcnt vmcnt({p.nvm - mark['L_u1']}) lgkmcnt(0)"] +
                [f"ds_read_b64_tr_b16 {vq(TMP+60+2*k, 2)}, v{UA+k}" for k in range(10)] + ["s_waitcnt lgkmcnt(0)"])
        def ust(j): cond("L_u2" + "abcd "[j].strip(), [f"buffer_store_dwordx4 {vq(TMP+60+4*j)}, v{UD+j}, {srd(SWS)}, s{S_UDST} offen sc1"])
        if o.get('hops', 1):
            p("s_mov_b64 exec, 0")
            for w_ in range(3): p(f"s_cmp_eq_u32 s{S_W}, {w_}"); p(f"s_cbranch_scc1 L_hop{w_}{self.sfx}")
            p(f"s_branch L_hop3{self.sfx}")
            p(f"L_hopret{self.sfx}:")
            p("s_mov_b64 exec, -1")
        if prod and o.get('upos', (0,))[0] < 0:
            while len(self.dq) > -o['upos'][0] - 1 and self.tick(): pass
            urd()
            for j in range(5): ust(j)
        while len(self.dq) > o.get('prokeep', 0) and self.tick(): pass
        p.raw(f"""
        s_getreg_b32 s{T0}, hwreg(HW_REG_XCC_ID, 0, 4)
        s_waitcnt lgkmcnt(0)
        s_add_u32 s{S_NONCE}, s{S_NONCE}, 0x9e3779b1
        s_lshl_b32 s{T0}, s{T0}, 28
        s_xor_b32 s{S_XCCV}, s{T0}, s{S_NONCE}
        v_mov_b32 v{V_NONCE}, s{S_NONCE}
        v_and_b32 v{V_VW}, 1, v{V_LANE}
        v_lshlrev_b32 v{V_VW}, 4, v{V_VW}
        v_lshrrev_b32 v{V_VW}, v{V_VW}, v{V_NONCE}
        v_mov_b32 v{V_KA0}, s{S_XCCV}
        s_add_u32 s{S_XA}, s{S_FLAG}, {WS_XCC - WS_FLAG}
        """)
        xst = [(f"buffer_store_dword v{V_KA0}, v{V_FOWN}, {srd(SWS)}, s{S_XA} offen sc1", 'xcc')]
        x1, x2, x3 = o.get('xpos', (-1, 58, 88))
        if x1 < 0: self.put(xst)
        self.stamp()
        p(f"s_branch L_main{self.sfx}")
        p(".p2align 12")
        p(f"L_main{self.sfx}:")
        xb = lambda ks, rt: aq((ks * 2 + rt) * 4)
        xbp = lambda ps: (lambda ks, rt: xb(4 * (4 - ks // 4) + ks % 4, rt)) if ps in o.get('rev', [1, 2]) else xb
        for pu in range(0, 7):
            if (pu + 3) % 2 == 0: self.q(0, self.dma_w((pu + 3) // 2))
            self.q(10 * pu, self.dma_x(pu + 3))
            if prod and o.get('uissue', 0) == pu + 1: self.q(0, un)
        for G in range(5, 10): self.q(10**6 + 1 if G % 5 >= 3 else 20 * (G - 3) - 4, self.dma_w(G))
        for G in range(10, 13): self.q(20 * (G - 3) - 4, self.dma_w(G))
        for G in range(13, 20): self.q(10**6 + G, self.dma_w(G))
        hooks = {}
        for pu in range(1, 10):
            hooks[10 * pu - 5] = [lambda pu=pu: self.xread(pu, 0), lambda pu=pu: self.xread(pu, 1)]
            hooks[10 * pu - 4] = [lambda pu=pu: self.xread(pu, 2), lambda pu=pu: self.xread(pu, 3)]
        if A:
            rd = [(tt, u_, hf) for tt in range(5) for u_ in range(3) for hf in range(2 if u_ < 2 else 1)]
            w = TMP + 96; u2 = TMP + 102
            sc = [lambda: p.wait(vm=['wphi'])]
            for j in range(4):
                sc += [f"v_lshlrev_b32 v{u2}, 16, v{w+j}", f"v_and_b32 v{u2+1}, 0xffff0000, v{w+j}", f"v_mul_f32 v{u2}, s{S_L2E}, v{u2}",
                       f"v_mul_f32 v{u2+1}, s{S_L2E}, v{u2+1}", f"v_cvt_pk_bf16_f32 v{w+j}, v{u2}, v{u2+1}"]
            hooks[8] = sc + [(f"ds_write_b128 v{TMP+100}, {vq(w)} offset:12288", 'phw')]
            hooks[14] = [lambda: p.wait(lg=['phw'])]
            slots = [n for n in range(21, 90) if n % 10 in (0, 1, 2, 3)][:25]
            for k, n in enumerate(slots):
                hooks[n] = [(f"ds_read_b64_tr_b16 a[{A_PHI + (tt*3+u_)*4 + 2*hf}:{A_PHI + (tt*3+u_)*4 + 2*hf + 1}], v{V_FR} offset:{(8*u_+4*hf)*40 + 8*tt}", 'phi')
                            for tt, u_, hf in rd[k:k+1]]
        late3 = {}
        if prod:
            UR = TMP + 60
            u1, u2_, u3 = o.get('upos', (18, 18, 62))
            if u1 >= 0: hooks.setdefault(u1, []).append(urd)
            for j in range(5):
                uj = u2_ + o.get('ustep', 0) * j
                if uj >= 0: (hooks if uj < 100 else late3).setdefault(uj % 100, []).append(lambda j=j: ust(j))
            (hooks if u3 < 100 else late3).setdefault(u3 % 100, []).append(lambda: cond("L_u3", [f"s_waitcnt vmcnt({p.nvm - mark['L_u2']})", f"v_mov_b32 v{V_DUMP}, s{S_UTAG}", "s_mov_b64 exec, 1",
                         f"buffer_store_dword v{V_DUMP}, v{V_LIN}, {srd(SWS)}, s{S_UFL} offen sc1", "s_mov_b64 exec, -1"]))
        XV = TMP + 92
        iss, chk = self.checked("L_xc", [f"buffer_load_dword v{XV}, v{V_F8}, {srd(SWS)}, s{S_XA} offen sc1"],
                                [f"v_xor_b32 v{XV+1}, s{S_NONCE}, v{XV}", f"v_lshlrev_b32 v{XV+1}, 4, v{XV+1}", f"v_cmp_ne_u32 vcc, 0, v{XV+1}"], 'xl')
        xv, xq = {}, {}
        def xh(pos, L): [hooks, xv, xq][pos // 100].setdefault(pos % 100, []).extend(L)
        if x1 >= 0: xh(x1, xst)
        xh(x2, iss)
        c_ = [x for _, x in chk]
        xh(x3, c_[:3]); xh(x3 + 1, c_[3:4]); xh(x3 + 2, c_[4:] + [f"v_cmp_ne_u32 vcc, s{S_XCCV}, v{XV}"])
        xh(x3 + 3, [f"s_mov_b32 s{S_FAST}, {1 if o.get('nofast') else 'vcc_lo'}", f"s_add_u32 s{T0}, s{SWS}, {WS_O}", f"s_addc_u32 s{T1}, s{SWS+1}, 0"])
        xh(x3 + 4, [f"s_cmp_eq_u32 s{S_FAST}, 0", f"s_cselect_b32 s{SO}, s{SOUT}, s{T0}", f"s_cselect_b32 s{SO+1}, s{SOUT+1}, s{T1}"])
        xh(x3 + 5, [f"s_mov_b32 s{SO+2}, 5242880", f"s_mov_b32 s{SO+3}, 0x20000"])
        self.group_sync(0)
        for k in range(4): self.xread(0, k)
        self.prime(0, sync=False)
        kp = o.get('kpace', 3)
        k1p = {0: lambda n: 1 if n % 3 != 2 else 0, 1: lambda n: 1, 2: lambda n: 2 if n % 10 < 2 else (1 if n % 10 < 5 else 0), 3: lambda n: 1 if n % 4 != 3 else 0}[o.get('k1', 0)]
        self.gemm_pass(0, ACC_K, xb, hooks=hooks, last=True, pace=lambda n: k1p(n) if n < o.get('ksw', 69) else (1 if n % kp == 0 else 0))
        self.stamp()
        E0, E1, M0_, M1_ = TMP, TMP + 40, TMP + 80, TMP + 86
        x0, x1 = acc(ACC_K, 0, 0), acc(ACC_K, 0, 1)
        tagset = [f"s_bfe_u32 s{S_TB+j}, s{S_NONCE}, {hex(0x80000 + 8*j)}" for j in range(4)] + [f"s_lshr_b32 s{S_NHI}, s{S_NONCE}, 16"]
        if o.get('amp'):
            p.raw(f"""
            s_load_dwordx2 s[88:89], s[0:1], 64
            s_not_b32 s{T0}, s98
            v_mov_b32 v{TMP+94}, 0
            v_mov_b32 v{TMP+95}, s{T0}
            s_lshr_b32 s{T0}, s2, 3
            s_or_b32 s{T0}, s{T0}, s{S_W}
            s_cmp_eq_u32 s{T0}, 0
            s_cselect_b32 s{T0}, 0, 64
            v_mov_b32 v{TMP+94}, s{T0}
            s_waitcnt lgkmcnt(0)
            s_cbranch_scc0 L_noat{self.sfx}
            s_mov_b64 exec, 1
            """)
            p.ins.append(__import__('emit').Ins(f"global_atomic_umax v{TMP+94}, v{TMP+95}, s[88:89] sc1"))
            p("s_mov_b64 exec, -1")
            p(f"L_noat{self.sfx}:")
        wr = lambda rt, x, n, o8: [(2, (f"ds_write_b64 v{V_PW}, {vq(x+2*j, 2)} offset:{rt*1920 + o8 + 8*j}", 'pw')) for j in range(n)]
        def mixw(out, w): return [y for j in range(len(w)) for y in out[2*j:2*j+2] + [w[j]]]
        burst = lambda L: [(0, [x for _, x in L])]
        dm = (2, lambda: self.tick())
        if A:
            P0 = self.phiA_parts(x0, E0, M0_, "L_k0", False); P1 = self.phiA_parts(x1, E1, M1_, "L_k1", False)
            pr = [(0, lambda: (self.group_sync(5), self.release(1)))]
            pr = pr + [(1, lambda n=n, hf=hf: self.wread(100 + n, hf)) for n in range(D - 1) for hf in range(2)]
            hx = o.get('hx', 0)
            if hx == 0:
                self.put([x for _, x in [dm] + P0['cvt'] + self.weave(P0['mf'], [dm] + P1['cvt'] + [dm] + P0['exp'][:4]) + self.weave(P1['mf'], [dm] + P0['exp'][4:12] + [dm] + pr)])
                f0 = P0['exp'][12:] + burst(P0['norm'])
            else:
                self.put([x for _, x in [dm] + P0['cvt'] + self.weave(P0['mf'], [dm] + P1['cvt'] + P0['exp'][:7] + [dm]) + self.weave(P1['mf'], P0['exp'][7:14] + [dm] + P0['exp'][14:21])])
                self.run(P0['exp'][21:] + P0['norm'][:-10], every=hx)
                self.put([x for _, x in pr + P0['norm'][-10:]])
                f0 = []
            fill = f0 + mixw(P0['out'], wr(0, x0, 10, 0)) + P1['exp'] + burst(P1['norm']) + mixw(P1['out'], wr(1, x1, 10, 0))
            self.stamp('head')
        else:
            fill = []
            for rt, x, e in ((0, x0, E0), (1, x1, E1)):
                L = self.phiB(x, e, False)
                fill += L[:-10] + mixw(L[-10:], wr(rt, x, 5, 0))
            self.group_sync(5); self.release(1); self.prime(1, sync=False)
        hooks = {}
        hooks.update(late3)
        PFV = TMP + 94
        ipf, cpf_ = self.checked("L_pf", [f"buffer_load_dwordx2 {vq(PFV, 2)}, v{V_PF}, {srd(SWS)}, s{S_PFL} offen sc1"],
                                 [f"v_xor_b32 v{PFV}, s{S_NONCE}, v{PFV}", f"v_bitop3_b32 v{PFV}, v{PFV}, v{PFV+1}, s{S_NONCE} bitop3:0xf6", f"v_cmp_ne_u32 vcc, 0, v{PFV}"], 'pf')
        pfp = o.get('pfpos', 81)
        if pfp < 100: hooks.setdefault(pfp, []).extend(ipf)
        pre = ["s_mov_b32 exec_hi, 0xff", (f"buffer_load_dword v{V_DUMP}, v{V_L128}, {srd(SO)}, s{S_OP} offen sc1", 'pr'), "s_mov_b64 exec, 1",
               (f"buffer_load_dword v{V_DUMP}, v{V_F8}, {srd(SWS)}, s{S_FLAG} offen sc1", 'pr'), "s_mov_b64 exec, -1"]
        wp, pp_ = o.get('wopf', -1), o.get('prepos', 0)
        if 100 <= pp_ < 200: hooks.setdefault(pp_ - 100, []).extend(pre)
        vs = o.get('vsync', 0)
        if o.get('v13'): hooks.setdefault(78, []).extend(["s_barrier", lambda: self.release(13)])
        for k_, v_ in xv.items(): hooks.setdefault(k_, []).extend(v_)
        for k_, v_ in enumerate(tagset): hooks.setdefault(41 + k_, []).insert(0, v_)
        vp = o.get('vpace', 4)
        self.gemm_pass(1, ACC_V, xbp(1), fill=fill, hooks=hooks, last=True, sync=True, pace=lambda n: 1 if n % vp == 0 else 0)
        self.stamp()
        VB = TMP
        for rt in range(2):
            c = self.cvt20(acc(ACC_V, 0, rt), VB + 10 * rt)
            for j in range(5):
                p(c[2*j][1]); p(c[2*j+1][1])
                p(f"ds_write_b64 v{V_PW}, {vq(VB+10*rt+2*j, 2)} offset:{rt*1920 + 80 + 8*j}", 'vw')
                if j == 4 and rt == 0: self.tick()
        self.tick()
        p.wait(lg='*')
        self.stamp('kv0')
        gk = 11
        self.flush_dma(('W', gk)); p.wait(vm=[('W', gk)])
        self.stamp('kv1')
        p("s_barrier")
        self.stamp('kv2')
        self.release(13); self.release(14)
        NT = 3 if A else 2
        FB = ACC_K
        KV = TMP + 64
        rds = deque()
        def rd(reg, av, off, kk, j):
            for hf in range(2): rds.append((f"ds_read_b64_tr_b16 {vq(reg+2*hf, 2)}, v{av} offset:{kk*RW + hf*120 + off}", ('kv', kk, j)))
        for kk in range(4):
            b = FB + kk * 20
            rd(b, V_KB, 80, kk, 'a')
            for nt in range(NT): rd(b + 8 + 4 * nt, V_KB, 32 * nt, kk, nt)
            rd(b + 4, V_KA1, 112, kk, 'z')
        def more(k):
            while k > 0 and rds and len(p.lgq) < 15: self.put([rds.popleft()]); k -= 1
        more(15); self.tick()
        p(f"v_mov_b32 v{TMP+1}, 0xff")
        seq = [(kk, nt) for kk in range(4) for nt in range(NT)]
        ao = deque((kk, f"v_and_or_b32 v{FB+kk*20+4+j}, v{FB+kk*20+4+j}, v{V_KEEP}, v{V_ONE}") for kk in range(4) for j in range(4))
        p.wait(lg=[('kv',) + seq[0]])
        for i_, (kk, nt) in enumerate(seq):
            b = FB + kk * 20
            p(f"{MF} {vq(KV + nt*4)}, {vq(b)}, {vq(b+8+4*nt)}, {'0' if kk == 0 else vq(KV + nt*4)}")
            p.wait(lg=[('kv',) + seq[i_ + 1]] if i_ + 1 < len(seq) else '*')
            k_ = len(rds); more(o.get('kvr', 4))
            for _ in range(max(0, 3 - (k_ - len(rds)))):
                if ao and ('kv', ao[0][0], 'z') not in p.lgq and not any(x[1] == ('kv', ao[0][0], 'z') for x in rds): p(ao.popleft()[1])
        assert not rds
        while len(ao) > 4: p(ao.popleft()[1])
        lastm = 0x00ff00ff if A else 0x000f000f
        def pub(mt, nt):
            a = KV + (mt * 3 + nt) * 4
            L = [(1, f"v_bfi_b32 v{a+j}, v{TMP+1}, s{S_TB+j}, v{a+j}") for j in range(4)]
            va = [V_P1ST, V_P1M, V_P1M + 1, V_P1M + 2][2 * mt + (nt == NT - 1)]
            return L + [(2, (f"buffer_store_dwordx4 {vq(a)}, v{va}, {srd(SWS)}, s{S_P1ST} offen offset:{(4*mt*F + 16*nt)*16} sc1", 'p1'))]
        self.stamp('kv3')
        mf = [(2, f"{MF} {vq(KV + (3+nt)*4)}, {vq(FB+kk*20+4)}, {vq(FB+kk*20+8+4*nt)}, {'0' if kk == 0 else vq(KV + (3+nt)*4)}") for nt in range(NT) for kk in range(4)]
        pr = [(1, lambda n=n, hf=hf: self.wread(200 + n, hf)) for n in range(D - 1) for hf in range(2)]
        self.put([x for _, x in self.weave(mf, [(1, x[1]) for x in ao] + [y for nt in range(NT) for y in pub(0, nt)] + pr)])
        qhead = [y for nt in range(NT) for y in pub(1, nt)]
        self.stamp()
        X = TMP + 8; CK = TMP + 2
        def tagcheck(mask):
            if mask == "0xff":
                L = [f"v_xor_b32 v{X+j}, s{S_TB+j%4}, v{X+j}" for j in range(4 * NI)] + [f"v_or_b32 v{CK}, v{X}, v{X+1}"]
                L += [f"v_or3_b32 v{CK}, v{CK}, v{X+j}, v{X+j+1}" for j in range(2, 4 * NI, 2)]
            else:
                L = [f"v_xor_b32 v{CK}, s{S_NONCE}, v{X}"] + [f"v_bitop3_b32 v{CK}, v{CK}, v{X+j}, s{S_NHI if j % 2 else S_NONCE} bitop3:0xf6" for j in range(1, 4 * NI)]
            return L + [f"v_and_b32 v{CK}, {mask}, v{CK}", f"v_cmp_ne_u32 vcc, 0, v{CK}"]
        lds_ = []
        for ii in range(NI):
            lds_ += [f"s_add_u32 s{T0}, s{S_P1LD}, {ii * (65536 // NI)}", f"buffer_load_dwordx4 {vq(X+4*ii)}, v{V_P1LD}, {srd(SWS)}, s{T0} offen sc1"]
        iss, chk = self.checked("L_h1", lds_, tagcheck("0xff"), 'h1')
        red = [f"v_add_f32 v{X+j}, v{X+j}, v{X+4*ii+j}" for ii in range(1, NI) for j in range(4)]
        red += [f"v_permlane32_swap_b32 v{X}, v{X+2}", f"v_permlane32_swap_b32 v{X+1}, v{X+3}", f"v_add_f32 v{X}, v{X}, v{X+2}", f"v_add_f32 v{X+1}, v{X+1}, v{X+3}",
                f"v_mov_b32 v{CK}, 0xffff", f"v_permlane16_swap_b32 v{X}, v{X+1}", f"v_add_f32 v{X}, v{X}, v{X+1}"]
        if not A: red.append(f"v_add_f32_dpp v{X}, v{X}, v{X} row_ror:8 row_mask:0xf bank_mask:0xf")
        red += [f"v_cvt_pk_bf16_f32 v{X}, v{X}, v{X}", f"v_bfi_b32 v{X}, v{CK}, v{V_VW}, v{X}"]
        st = (f"buffer_store_dword v{X}, v{V_P2ST}, {srd(SWS)}, s{S_P2ST} offen sc1", 'p2')
        red.append([st] if A else ["s_mov_b32 exec_lo, 0x00ff00ff", "s_mov_b32 exec_hi, 0x00ff00ff", st, "s_mov_b64 exec, -1"])
        n1, n2 = o.get('h1', (62, 84))
        hooks = {n1 + k: iss[2*k:2*k+2] for k in range(NI)}
        if pfp >= 100: hooks.setdefault(pfp - 100, []).extend(ipf)
        for k_, v_ in xq.items(): hooks.setdefault(k_, []).extend(v_)
        c_ = [x for _, x in cpf_]
        pc = o.get('pfchk', 13)
        hooks.setdefault(pc, []).extend(c_[:3]); hooks.setdefault(pc + 1, []).extend(c_[3:4]); hooks.setdefault(pc + 3, []).extend(c_[4:] + [lambda: setattr(self, 'pfok', True)])
        if 200 <= pp_ < 300: hooks.setdefault(pp_ - 200, []).extend(pre)
        qh = deque(qhead)
        for n in range(20): hooks.setdefault(n, []).append(lambda: self.gap(qh, 2))
        for fr_, pubg, rel in o.get('qbar', [(30, 12, [15]), (53, 13, [16]), (66, 14, [17]), (80, 14, [18])]):
            hooks.setdefault(fr_, []).extend([lambda g=pubg: self.group_sync(g)] + [lambda r=r: self.release(r) for r in rel])
        self.gemm_pass(2, ACC_K, xbp(2), fill=chk + [(1, x) for x in red], hooks=hooks, last=True, sync=False, frange=(n2, min(100, n2 + o.get('h1len', 16))),
                       pace=lambda n: 1 if (n >= 9 and n % (o.get('qpace', 3) if n < o.get('qsw', 42) else o.get('qpace2', 3)) == 0 and not n1 <= n < n1 + NI) else 0)
        assert not qh
        p("s_barrier")
        [self.release(r) for r in range(15, 20)]
        self.stamp()
        X = TMP + 96; CK = TMP + 92
        lds_ = [f"buffer_load_dwordx4 {vq(X+4*ii)}, v{V_LIN if ii < NI-1 else V_GAL}, {srd(SWS)}, s{S_P2LD} offen offset:{1024*ii if ii < NI-1 else 0} sc1" for ii in range(NI)]
        iss, chk = self.checked("L_h2", lds_, tagcheck("0xffff"), 'h2')
        zw = [f"v_mov_b32 v{CK}, 0", f"v_mov_b32 v{CK+1}, 0", f"ds_write_b64 v{V_ZA}, {vq(CK, 2)}"]
        self.put(zw)
        for k_ in range(o.get('dirty', 0)):
            p(f"s_add_u32 s{T0}, s{S_OP}, {(9 << 20) + (k_ // 5) * (6 << 20) + (k_ % 5) * 1024}")
            p(f"buffer_store_dwordx4 v[2:5], v{V_LIN}, {srd(SWS)}, s{T0} offen {o.get('dirtyf', '')}")
        if o.get('prepos', 0) == 1: self.put(pre)
        if not A:
            for tt in range(6): p(f"v_accvgpr_write_b32 a{40+4*(3*tt+2)+2}, 0"); p(f"v_accvgpr_write_b32 a{40+4*(3*tt+2)+3}, 0")
        if A:
            P0 = self.phiA_parts(x0, E0, M0_, "L_q0", True); P1 = self.phiA_parts(x1, E1, M1_, "L_q1", True)
            L = P0['cvt'] + self.weave(P0['mf'], P1['cvt'] + P0['exp'][:6]) + self.weave(P1['mf'], P0['exp'][6:]) + P0['norm'] + P0['out'] + P1['exp'] + P1['norm'] + P1['out']
        else:
            L = []
            for x, e in ((x0, E0), (x1, E1)):
                L += self.phiB(x, e, True) + [(1, f"v_mov_b32 v{x+10}, 0"), (1, f"v_mov_b32 v{x+11}, 0")]
        tot = sum(c for c, _ in L); cut = tot - o.get('h2lead', 60)
        c = 0; k = 0
        while k < len(L) and c < cut: c += L[k][0]; k += 1
        self.run(L[:k], every=o.get('qev', 44))
        self.stamp('q0')
        self.flush_dma(('W', 17))
        self.stamp('q1')
        self.put(iss)
        if o.get('prepos', 0) == 0: self.put(pre)
        self.stamp('q2')
        self.run(L[k:], every=o.get('qev', 44))
        self.stamp()
        self.put([x for _, x in chk])
        for ii in range(NI):
            p(f"v_perm_b32 v{X+4*ii}, v{X+4*ii+1}, v{X+4*ii}, s{S_PERM}")
            p(f"v_perm_b32 v{X+4*ii+1}, v{X+4*ii+3}, v{X+4*ii+2}, s{S_PERM}")
            p(f"ds_write_b64 v{V_LA+ii}, {vq(X+4*ii, 2)}", 'kvw')
        p.wait(lg='*')
        p("s_barrier")
        self.stamp()
        assert not self.dq or True
        import copy
        p(f"s_cmp_eq_u32 s{S_FAST}, 0"); p(f"s_cbranch_scc0 L_tail{self.sfx}s")
        env = dict(RS=RS, M0_=M0_, M1_=M1_)
        sv = (self.p, self.sfx, self.nst, getattr(self, 'cs', 0), deque(self.dq))
        self.p = Prog(); self.p.vmq = list(p.vmq); self.p.lgq = list(p.lgq); self.sfx += 's'
        self.p(f"L_tail{self.sfx}:")
        self.tail(False, **env)
        self.ool.append(self.p.finalize())
        self.p, self.sfx, self.nst, self.cs, self.dq = sv
        self.tail(True, **env)
        return p.finalize() + "".join(self.ool)
    def tail(self, fast, RS, M0_, M1_):
        p = self.p; A = self.A; o = self.o; br = 0 if A else 1
        def more(k):
            while k > 0 and rds and len(p.lgq) < 15: self.put([rds.popleft()]); k -= 1
        OA = ACC_V
        NU = 5 if A else 3
        SP = TMP + 112
        if A: p(f"v_mov_b32 v{SP}, v{M0_}"); p(f"v_mov_b32 v{SP+1}, v{M1_}")
        OB = TMP + 64
        LO = TMP + 80
        fr = [(tt, u_) for tt in (5, 0, 1, 2, 3, 4) for u_ in range(NU)]
        AO = 40
        rds = deque()
        for n, (tt, u_) in enumerate(fr):
            if not A and u_ == 2: rds.append((f"ds_read_b64 {aq(AO+4*n, 2)}, v{V_FR2} offset:{4*tt*RS + 16*u_}", ('of', n)))
            else: rds.append((f"ds_read_b128 {aq(AO+4*n)}, v{V_FR2} offset:{4*tt*RS + 16*u_}", ('of', n)))
        more(10)
        def ost(txt, tag='o'):
            p(txt + ("" if fast else " sc1"), tag)
        def flag(k): ost(f"buffer_store_dword v{V_NONCE}, v{V_FOWN}, {srd(SWS)}, s{S_FLAG} offen offset:{32*k}", 'fl')
        def poll(k, name):
            iss, chk = self.checked(name, [f"buffer_load_dword v{V_DUMP}, v{V_F8}, {srd(SWS)}, s{S_FLAG} offen offset:{32*k} sc1"], [f"v_cmp_ne_u32 vcc, s{S_NONCE}, v{V_DUMP}"], name)
            return iss, [x for _, x in chk]
        order = [(0, k) for k in range(5)] + [(1, k) for k in range(5)] + [(0, 5), (1, 5)]
        epi = deque()
        for z, (rt, k) in enumerate(order):
            dn = OA + (rt * 6 + 5) * 4
            b = OA + rt * 24
            rdy = (z + 1) * NU + o.get('rdy', 4)
            if k == 0:
                epi.append((rdy, 1, f"v_fmac_f32 v{dn}, {EPS}, v{SP+rt}" if A else f"v_add_f32 v{dn}, {EPS}, v{dn}")); epi.append((rdy, 2, f"v_rcp_f32 v{dn}, v{dn}"))
                continue
            tt = k - 1
            for r in range(4): epi.append((rdy, 1, f"v_mul_f32 v{b+4*tt+r}, v{b+4*tt+r}, v{dn}"))
            for h in range(2):
                i = 2 * tt + h
                d = OB + ((i // 4) * 2 + rt) * 4 + i % 4 if i < 8 else LO + 2 * rt + (i - 8)
                epi.append((rdy, 1, f"v_cvt_pk_bf16_f32 v{d}, v{b+2*i}, v{b+2*i+1}"))
            if tt in (1, 3):
                u_ = tt // 2
                epi.append((0, 2, lambda u_=u_, rt=rt: ost(f"buffer_store_dwordx4 {vq(OB+(u_*2+rt)*4)}, v{V_OO+rt*2+u_}, {srd(SO)}, s{S_OP} offen", ('S', rt))))
        epi.append((0, 2, lambda: ost(f"buffer_store_dwordx4 {vq(LO)}, v{V_OO+4}, {srd(SO)}, s{S_OP} offen", ('S', 1))))
        LD = o.get('lead', 8); DF = o.get('df', 11); A_RING = A_PHI
        items = [(P, t_, (0, 1)) for P in range(2) for t_ in range(5)] + [(P, t_, (0,)) for P in range(2, 2 + LD) for t_ in range(5)] + \
                [(P, t_, (0, 1)) for P in range(2 + LD, 20) for t_ in range(5)] + [(P, t_, (1,)) for P in range(2, 2 + LD) for t_ in range(5)]
        def fread(i, hf):
            P, t_, _ = items[i]
            if True:
                if hf == 0:
                    off = RING + P * 5120 + 1024 * t_; hi = off >= 51200; s_ = A_RING + (i % DF) * 4
                    p(f"ds_read_b128 a[{s_}:{s_+3}], v{V_LINH if hi else V_LIN} offset:{off - 51200*hi}", ('FF', i))
                return
            off = RING + (P // 4) * SLOT + (P % 4) * 5120 + hf * 2560 + 8 * t_
            hi = off >= 51200; s_ = A_RING + (i % DF) * 4 + 2 * hf
            p(f"ds_read_b64_tr_b16 a[{s_}:{s_+1}], v{V_WT + hi} offset:{off - 51200*hi}", ('FF', i))
        pr = deque((i, 0) for i in range(DF - 1))
        m = 0; mf0 = o.get('mf0', 54 if A else 36); seen = set()
        for rt, k in order:
            for u_ in range(NU):
                n = k * NU + u_; tt = fr[n][0]
                a = OA + (rt * 6 + tt) * 4
                if m == 0: p.wait(lg=[('of', 0)])
                p(f"{MF} {vq(a)}, {aq(AO+4*n)}, {vq(ACC_K+20*rt+4*u_)}, {'0' if u_ == 0 else vq(a)}")
                m += 1
                if n + 1 < len(fr): p.wait(lg=[('of', n + 1)])
                bud = 2 if A else 3
                if m == mf0:
                    assert sum(1 for x in p.ins if x.tag == ('S', 0)) == 2
                    p.wait(vm=[('S', 0)]); flag(0); bud -= 2
                elif rds: more(1); bud -= 1 if not (epi and epi[0][0] <= m and epi[0][1] == 2) else 0
                elif self.dq and m % o.get('opace', 8) == 0: self.tick(); bud -= 2
                elif pr and not (epi and epi[0][0] <= m): fread(*pr.popleft()); bud -= 1
                while epi and epi[0][0] <= m and epi[0][1] <= bud:
                    _, c, x = epi.popleft(); bud -= c
                    self.put([x])
                    if callable(x): break
        while pr: fread(*pr.popleft())
        while len(epi) > 7: self.put([epi.popleft()[2]])
        while self.tick(): pass
        self.stamp()
        def ob(ks, rt):
            if ks < 2: return vq(OB + (ks * 2 + rt) * 4)
            return aq((ks * 2 + rt) * 4) if ks < 16 else vq(LO + (2 * (ks - 16) + rt) * 4)
        def ld(P, rt):
            if P < 16: return [(f"buffer_load_dwordx4 {aq((P*2+rt)*4)}, v{V_OO+rt*2+P%2}, {srd(SO)}, s{S_OP + P//2} offen sc1", ('O', P, rt))]
            return [(f"buffer_load_dwordx4 {vq(LO+(2*(P-16)+rt)*4)}, v{V_OO+4}, {srd(SO)}, s{S_OP + 2*(P-16) + rt} offen sc1", ('O', P, rt))]
        i0, c0 = poll(0, "L_f0"); i1, c1 = poll(1, "L_f1"); i2, c2 = poll(2, "L_d0"); i3, c3 = poll(3, "L_d1")
        L0x = min(16, 2 + LD + o.get('xlead', 0))
        lead = [ld(P, 0) for P in range(2, L0x)]
        rest = [ld(P, rt) for P in range(2 + LD, 20) for rt in range(2) if (P, rt) != (16, 0) and not (rt == 0 and P < L0x)] + [ld(P, 1) for P in range(2, 2 + LD)]
        def handshake():
            p.wait(vm=[('S', 1), ('W', 18), ('W', 19)])
            flag(1)
            self.put(c0)
            self.stamp()
            self.q(0, lead); self.q(10**6 + 50, rest)
            for k_ in range(o.get('oprime', 7)):
                self.tick()
                if k_ == 3: p("s_barrier")
                if k_ == 3 and o.get('p1it', -1) < 0: self.put(i1)
            p.wait(vm=[('O', 2, 0)])
        E0 = len(items) - 5 * LD
        NI_ = len(items)
        def outp(rt):
            b = TMP + 8
            c = self.cvt20(acc(ACC_K, 0, rt), b)
            L = []
            for j in range(5): L += [c[2*j][1], c[2*j+1][1], (f"ds_write_b64 v{V_OW}, {vq(b+2*j, 2)} offset:{rt*16*OUTS + 8*j}", 'ow')]
            L += [(f"ds_read_b128 {vq(TMP+24+4*j)}, v{V_ORD+j} offset:{rt*16*OUTS}", ('or', j)) for j in range(3)]
            S_ = [(f"buffer_store_dwordx4 {vq(TMP+24+4*j)}, v{V_OG+j}, {srd(SOUT)}, s{S_OUT} offen", 'out') for j in range(3)]
            return L, S_
        vw, lw, sc_, vec = {}, {}, {}, {}
        add = lambda d, i, L: d.setdefault(i, []).extend(L)
        def check(i, c, tag, gapn):
            add(vw, i, [tag]); add(vec, i, [c[1]]); add(sc_, i + gapn, [c[2]])
        ep = [x[2] for x in epi]
        add(vec, 1, ep[:3]); add(vec, 2, ep[3:6]); add(vec, 3, ep[6:])
        add(vec, o.get('p0pos', 4), i0)
        add(vec, 9, [handshake])
        if o.get('p1it', -1) >= 0: add(vec, 10 + o.get('p1it', -1), i1)
        ci = 10 + o.get('c1pos', 5); check(ci, c1, "L_f1", 2); add(sc_, ci + 2, [lambda: self.release(50)])
        for i in range(15, NI_, 5):
            Pn, _, rn = items[i]
            tags = [('O', Pn, rt) for rt in rn]
            if Pn >= 16:
                a = LO + 2 * (Pn - 16) * 4
                add(vw, i - 2, tags); add(vec, i - 2, [f"v_swap_b32 v{a+2}, v{a+4}", f"v_swap_b32 v{a+3}, v{a+5}"])
            else: add(vw, i - 1, tags)
        nd0 = E0 - o.get('d0', 8); add(vw, nd0, [('O', 19, 0), ('O', 19, 1)]); add(vec, nd0, [lambda: flag(2)])
        add(vec, E0 + o.get('d0p', 0), i2)
        L0, S0 = outp(0)
        for j, x in enumerate(L0): add(vec, E0 + 2 + j, [x])
        nd1 = NI_ - o.get('d1', 19); add(vw, nd1, [('O', 1 + LD, 1)]); add(vec, nd1, [lambda: flag(3)])
        check(E0 + 22, c2, "L_d0", 2)
        for j, x in enumerate(S0): add(lw, E0 + 25 + 2 * j, [('or', j)]); add(vec, E0 + 25 + 2 * j, [x])
        add(vec, NI_ - o.get('d1p', 4), i3)
        add(sc_, NI_ - 5, [f"s_or_b32 s{T0}, s{S_RB}, s{S_HEAD}"]); add(sc_, NI_ - 4, [f"s_cmp_lg_u32 s{T0}, 0"]); add(sc_, NI_ - 3, [f"s_cselect_b32 s{T0}, {WS_SIZE}, 0"])
        add(vec, NI_ - 2, [(f"buffer_store_dword v{V_NONCE}, v{V_FOWN}, {srd(SWS)}, s{T0} offen offset:{br*128} sc1", 'nn')])
        p.wait(lg=[('FF', 0)])
        clk = 0.0; per = o.get('lper', 4.6)
        for i, (P, t_, rts) in enumerate(items):
            s_ = A_RING + (i % DF) * 4
            for z, rt in enumerate(rts):
                a = acc(ACC_K, t_, rt)
                p(f"{MF} {vq(a)}, {aq(s_)}, {ob(P, rt)}, {'0' if P == 0 else vq(a)}")
                if z == 0:
                    k0 = len(p.ins)
                    for tg in vw.get(i, []): self.flush_dma(tg)
                    p.wait(vm=vw.get(i), lg=[('FF', i + 1)] + lw.get(i, []))
                    if len(rts) == 1: self.put(sc_.get(i, []))
                    if i + DF - 1 < NI_:
                        if len(p.ins) == k0: p("s_nop 0")
                        fread(i + DF - 1, 0)
                else: self.put(sc_.get(i, []))
            self.stamp('z%d' % i)
            if i >= 10:
                clk += len(rts)
                if clk >= per and i not in vec and self.tick(): clk -= per
            self.put(vec.get(i, []))
        self.stamp()
        L1, S1 = outp(1)
        p(f"s_add_u32 s{S_OUT}, s{S_OUT}, {16*2560}")
        self.put(L1[:12]); self.put(c3[:2]); self.put(L1[12:]); self.put(c3[2:])
        for j in range(3): p.wait(lg=[('or', j)]); self.put([S1[j]])
        if o.get('stamps'):
            p("s_waitcnt vmcnt(0)")
            self.stamp()
            p("s_memrealtime s[100:101]")
            p("s_waitcnt lgkmcnt(0)")
            p.raw(f"""
            s_lshl_b32 s{T0}, s2, 2
            s_add_u32 s{T0}, s{T0}, s{S_W}
            s_lshl_b32 s{T0}, s{T0}, 6
            s_add_u32 s{T0}, s{T0}, {WS_ST}
            v_mov_b32 v{TMP+16}, 0
            v_mov_b32 v{TMP}, s98
            v_mov_b32 v{TMP+1}, s100
            """)
            for k in range(14): p(f"v_mov_b32 v{TMP+2+k}, {'s%d' % (S_ST+k) if k < self.nst else ('s95' if k == 13 else 0)}")
            p("s_mov_b64 exec, 1")
            for k in range(4): p(f"buffer_store_dwordx4 {vq(TMP+4*k)}, v{TMP+16}, {srd(SWS)}, s{T0} offen offset:{16*k}")
        if o.get('amp'):
            p("s_waitcnt vmcnt(0)")
            self.stamp()
            if o['amp'][0] < 0: p("s_mov_b32 s100, s98")
            p.raw(f"""
            s_and_b32 s{T0}, s2, 7
            s_lshr_b32 s{T0}, {o['amp'][2]}, s{T0}
            s_bitcmp1_b32 s{T0}, 0
            s_cbranch_scc0 L_ampx{self.sfx}
            s_load_dwordx2 s[62:63], s[0:1], 64
            v_mov_b32 v2, 0
            s_waitcnt lgkmcnt(0)
            global_load_dword v3, v2, s[62:63] sc1
            s_waitcnt vmcnt(0)
            v_readfirstlane_b32 s{T2}, v3
            s_not_b32 s{T2}, s{T2}
            s_sub_u32 s{T0}, s100, s{T2}
            s_add_u32 s{T0}, s{T0}, 300
            s_mul_i32 s{T0}, s{T0}, {o['amp'][1]}
            s_min_u32 s{T0}, s{T0}, 100000
            L_amp{self.sfx}:
            s_sleep 2
            s_memrealtime s[64:65]
            s_waitcnt lgkmcnt(0)
            s_sub_u32 s{T1}, s64, s{T2}
            s_cmp_lt_u32 s{T1}, s{T0}
            s_cbranch_scc1 L_amp{self.sfx}
            L_ampx{self.sfx}:
            """)
        p("s_endpgm")
        assert not self.dq

def sizes(lines):
    import subprocess, re
    src = '.amdgcn_target "amdgcn-amd-amdhsa--gfx950"\n.text\n' + "\n".join(lines) + "\n"
    r = subprocess.run(["llvm-mc", "-triple=amdgcn-amd-amdhsa", "-mcpu=gfx950", "-show-encoding"], input=src, capture_output=True, text=True)
    assert r.returncode == 0, r.stderr[:2000]
    return [len(m.split(',')) for m in re.findall(r'encoding: \[([^\]]*)\]', r.stdout)]
def add_hops(text, sfx, align=True):
    lines = text.split("\n")
    i0 = lines.index(f"L_main{sfx}:"); i1 = next(i for i in range(i0, len(lines)) if lines[i].strip() == "s_endpgm")
    body = lines[i0 + 1:i1]
    isi = lambda l: l.startswith("    ")
    szl = sizes([l for l in body if isi(l)])
    insl = [l.strip() for l in body if isi(l)]
    big = [z == 8 and t.startswith("v_") and not t.startswith("v_mfma") for z, t in zip(szl, insl)]
    run = [0] * (len(big) + 1)
    for k in range(len(big) - 1, -1, -1): run[k] = run[k + 1] + 1 if big[k] else 0
    sz = iter(szl); k = -1; nfix = 0
    out = []; addr = 0; page = 0; prev = "v_mfma"
    for l in body:
        if isi(l):
            k += 1
            if align and run[k] >= 3 and addr % 8 == 4:
                pv = out[-1] if isinstance(out[-1], str) else ""
                op = pv.split()[0] if pv.strip() else ""
                if isi(pv) and szl[k - 1] == 4 and op.startswith("v_") and not op.startswith(("v_cmp", "v_swap", "v_permlane", "v_readfirst")):
                    out[-1] = pv.replace(op, op + "_e64", 1); addr += 4; nfix += 1
                elif run[k] >= 6: out.append("    s_nop 0"); addr += 4; nfix += 1
            off = addr - page * 4096
            if off >= 0 and (prev.startswith("v_mfma") or off >= 40) and not prev.startswith("s_mov_b64 exec") :
                out.append(("hop", page)); addr += 4; page += 1
            addr += next(sz); prev = l.strip()
        out.append(l)
    assert page >= 4
    res = []
    for x in out:
        if isinstance(x, tuple):
            k = x[1]
            res += [f"L_hop{k}{sfx}:", f"    s_cbranch_execz " + (f"L_hop{k+4}{sfx}" if k + 4 < page else f"L_hopret{sfx}")]
        else: res.append(x)
    print(sfx, "main bytes", addr, "align fixes", nfix, file=sys.stderr)
    return "\n".join(lines[:i0 + 1] + res + lines[i1:])

def build(opt):
    ref = open(f"cdna_kernels/{NAME}.s.ref").read().split("\n")
    head = [l for l in ref if l.startswith(";") and "@launch" not in l]
    s = "\n".join(head) + "\n; @launch grid=(256,1,1) block=(256,1,1) lds=163840\n"
    s += f""".amdgcn_target "amdgcn-amd-amdhsa--gfx950"
.text
.globl {NAME}_kernel
.p2align 12
.p2align 8
.type {NAME}_kernel,@function
{NAME}_kernel:
    s_cmp_ge_u32 s2, 256
    s_cbranch_scc1 L_exit
"""
    ga = Gen(True, opt); ta = ga.body(); gb = Gen(False, opt); tb = gb.body()
    ca, ra = ta.split(".split\n"); cb, rb = tb.split(".split\n")
    assert ca == cb
    if opt.get('hops', 1): ra = add_hops(ra, 'A', opt.get('align', 1)); rb = add_hops(rb, 'B', opt.get('align', 1))
    s += ca + ra + "L_exit:\n    s_endpgm\n.p2align 12\n" + rb
    s += ".fill 2048, 4, 0xbf810000\n"
    s += f""".section .rodata,"a"
.p2align 6
.amdhsa_kernel {NAME}_kernel
  .amdhsa_next_free_vgpr 512
  .amdhsa_next_free_sgpr 102
  .amdhsa_accum_offset 256
  .amdhsa_group_segment_fixed_size 0
  .amdhsa_kernarg_size 80
  .amdhsa_user_sgpr_count 2
  .amdhsa_user_sgpr_kernarg_segment_ptr 1
  .amdhsa_system_sgpr_workgroup_id_x 1
.end_amdhsa_kernel
"""
    print("nops", ga.p.nops, gb.p.nops, "instrs", len(ga.p.ins), len(gb.p.ins), "autow", getattr(ga.p, 'autow', 0), file=sys.stderr)
    return s

if __name__ == "__main__":
    import json
    opt = json.loads(sys.argv[2]) if len(sys.argv) > 2 else {}
    open(sys.argv[1], "w").write(build(opt))
```

```python
import sys
from collections import deque
from emit import Prog
NAME = "concat_heads__linear_kernel_hedgehog__linear_attn_block__prompt"

S_RB, S_HG, S_W = 4, 5, 7
SX, SW, SWO, SWS, SOUT, SPHI = 8, 12, 16, 20, 24, 28
S_NONCE = 32
S_WROW = 33
S_XBASE, S_XU = 38, 39
S_LW, S_LR = 40, 41
T0, T1, T2, T3 = 42, 43, 44, 45
S_WOROW = 46
S_HEAD = 51
S_SPIN = 52
S_FAST = 53
S_L2E, S_NL2E = 54, 55
S_OB = 56
S_WS, S_XS = 57, 58
S_FLAG = 59
S_OP = 60
S_P1ST, S_P1LD, S_P2ST, S_P2LD, S_OWN, S_OUT, S_XCCV, S_PERM = 68, 69, 70, 71, 72, 73, 74, 75
S_KA = 76
S_ST = 76
import os
if os.environ.get('PRO'): S_ST = 88
def srd(b): return f"s[{b}:{b+3}]"
V_LANE = 1
V_WO = 2; V_OF = 7; V_OL = 12; V_XO = 17; V_XR = 21; V_WT = 23; V_LIN = 25
V_PW, V_VW, V_KB, V_KA0, V_KA1, V_FR = 26, 27, 28, 29, 30, 31
ACC_K, ACC_V = 32, 72
TMP = 112
PV = 228
V_P1ST, V_P1LD, V_P2ST, V_GAL, V_LA, V_FR2, V_KEEP, V_ONE, V_OW, V_ORD, V_OG, V_F8, V_DUMP, V_ZA = PV, PV+1, PV+2, PV+3, PV+4, PV+8, PV+9, PV+10, PV+11, PV+12, PV+17, PV+22, PV+23, PV+24
V_L128, V_NONCE, V_FOWN = PV + 25, PV + 26, PV + 27
RING = 0; SLOT = 20480; RBASE = 102400; RW = 15360
OUTL = RBASE + 16384; OUTS = 176
WS_FLAG, WS_XCC, WS_P2, WS_P1, WS_O, WS_ST = 4096, 32768, 5 << 20, 1 << 20, 8 << 20, 16 << 20
WS_SIZE = 32 << 20
D = 6
A_RING = 220
A_PHI = 160
A_PARK = 244
V_OO = 7; V_LINH = 12; V_PF = 13; V_P1M = 14
WS_PF = 49152; WS_PK = 6 << 20
S_USRC, S_UDST, S_UFL, S_UTAG, S_PFL, S_XA = 3, 6, 72, 90, 91, 93
S_TB = SX
S_NHI = 38
SO = SPHI
SPIN_MAX = 20000
EPS = "0x358637bd"

def vq(b, n=4): return f"v[{b}:{b+n-1}]"
def aq(b, n=4): return f"a[{b}:{b+n-1}]"
def acc(base, t, rt): return base + (rt * 5 + t) * 4
MF = "v_mfma_f32_16x16x32_bf16"

DEF = {'A': dict(xpos=(117, 190, 222), qpace=4, pfpos=101, pfchk=28, prokeep=4, proev=120, h1=(50, 78), h1len=8, h2lead=120, kpace=4, hx=30, vsync=1, qev=26), 'B': dict(xpos=(117, 190, 222), upos=(18, 18, 62), pfpos=101, pfchk=28, h1=(50, 70), h1len=5, h2lead=80, prepos=290, vpace=4, qev=24, vsync=1)}
class Gen:
    def __init__(self, isA, opt):
        self.A = isA
        sf = 'A' if isA else 'B'
        opt = dict(DEF[sf], **opt)
        opt.update({k[:-1]: v for k, v in opt.items() if k.endswith(sf)})
        self.o = opt
        self.p = Prog(); self.sfx = 'A' if isA else 'B'
        self.F = 40 if isA else 20
        self.nst = 0
        self.dq = deque()
        self.pos = 0
        self.ool = []
    def stamp(self, name=None):
        p = self.p
        fine = self.o.get('fine')
        if fine:
            if name is None: self.cs = getattr(self, 'cs', 0) + 1; name = 's%d' % (self.cs - 1)
            if name not in fine: return
        elif name is not None: return
        if self.o.get('amp'):
            if self.nst == self.o['amp'][0]:
                p("s_memrealtime s[100:101]"); p("s_waitcnt lgkmcnt(0)")
            self.nst += 1
            return
        if not self.o.get('stamps'): return
        p(f"s_memrealtime s[100:101]" if self.o.get('rt') else f"s_memtime s[100:101]")
        p("s_waitcnt lgkmcnt(0)")
        p(f"s_sub_u32 s{S_ST+self.nst}, s100, {'s98' if self.o.get('rt') else 's96'}")
        self.nst += 1
    def put(self, L):
        for x in L:
            if isinstance(x, tuple): self.p(x[0], x[1])
            elif isinstance(x, list): self.put(x)
            elif callable(x): x()
            else: self.p(x)
    def dma_w(self, G):
        g = G % 5
        pre = [f"s_add_u32 m0, s{S_LW}, {RING + g*SLOT}"]
        if G < 15:
            col = {0: 1280, 1: 2560, 2: 0}[G // 5]
            gr = 4 - g if G // 5 in self.o.get('rev', [1, 2]) else g
            pre.append(f"s_add_u32 s{S_WS}, s{S_WROW+gr}, {col}"); so = f"s{S_WS}"; sd = SW; vo = V_WO
        else:
            items = []
            for j in range(5):
                off = f"offset:{j*1024} " if 0 < j < 4 else ""
                L = (pre if j == 0 else []) + [(f"buffer_load_dwordx4 v{V_LIN}, {srd(SWS)}, s{S_WOROW+g} offen {off}sc1 lds", ('W', G))]
                if j == 3: L += [f"s_add_u32 m0, s{S_LW}, {RING + g*SLOT + 4096}", f"s_add_u32 s{S_WOROW+g}, s{S_WOROW+g}, 4096"]
                items.append(L)
            return items
        items = []
        if G // 5 in self.o.get('fake', []):
            base = (G % 5) * 4 * 5120 + (G // 5 if G < 15 else 0) * 819200
            pre = [pre[0], f"s_add_u32 s{S_WS}, s94, {base}"]
            for j in range(5):
                off = f"offset:{j*1024} " if 0 < j < 4 else ""
                L = (pre if j == 0 else []) + [(f"buffer_load_dwordx4 v{V_LIN}, {srd(sd)}, s{S_WS} offen {off}lds", ('W', G))]
                if j == 3: L += [f"s_add_u32 m0, s{S_LW}, {RING + g*SLOT + 4096}", f"s_add_u32 s{S_WS}, s{S_WS}, 4096"]
                items.append(L)
            return items
        for j in range(5):
            off = f"offset:{j*1024} " if 0 < j < 4 else ""
            L = (pre if j == 0 else []) + [(f"buffer_load_dwordx4 v{vo+j}, {srd(sd)}, {so} offen {off}lds", ('W', G))]
            if j == 3: L.append(f"s_add_u32 m0, s{S_LW}, {RING + g*SLOT + 4096}")
            items.append(L)
        return items
    def dma_x(self, pu):
        items = []
        for j in range(4):
            off = f"offset:{j*1024} " if j else ""
            L = []
            if j == 0: L += [f"s_add_u32 m0, s{S_LR}, {(pu % 3) * 4096}", f"s_add_u32 s{S_XS}, s{S_XU}, s{S_XBASE}"]
            L.append((f"buffer_load_dwordx4 v{V_XO+j}, {srd(SX)}, s{S_XS} offen {off}lds", ('X', pu)))
            if j == 0: L += [f"s_add_u32 s{S_XU}, s{S_XU}, 128"]
            if j == 1: L += [f"s_cmp_eq_u32 s{S_XU}, 1280", f"s_cselect_b32 s{S_XU}, 0, s{S_XU}"]
            items.append(L)
        return items
    def q(self, earliest, items):
        for it in items: self.dq.append((earliest, it))
    def release(self, k):
        self.dq = deque((0 if e == 10**6 + k else e, it) for e, it in self.dq)
    def tick(self):
        if self.dq and not getattr(self, 'pfok', False) and any(isinstance(x, tuple) and x[1] == ('W', 15) for x in self.dq[0][1]): return False
        if self.dq and self.dq[0][0] <= self.pos:
            self.put(self.dq.popleft()[1]); return True
        return False
    def flush_dma(self, tag):
        def has():
            return any(isinstance(x, tuple) and x[1] == tag for _, it in self.dq for x in it)
        while has():
            assert self.dq[0][0] <= self.pos, (tag, self.pos, self.dq[0])
            self.put(self.dq.popleft()[1])
    def run(self, L, every=30):
        c = 0
        for cost, x in L:
            self.put([x]); c += cost
            if c >= every: c = 0; self.tick()
    def wread(self, N, hf):
        G = N // 20; ks = (N % 20) // 5; t = N % 5
        off = RING + (G % 5) * SLOT + ks * 5120 + hf * 2560 + 8 * t
        hi = off >= 51200
        s = A_RING + (N % D) * 4 + 2 * hf
        if G // 5 in self.o.get('fake', []):
            if hf == 0:
                off = RING + (G % 5) * SLOT + ks * 5120 + 1024 * t
                hi = off >= 51200
                self.p(f"ds_read_b128 a[{s}:{s+3}], v{226 + hi} offset:{off - 51200*hi}", ('F', N))
            return
        self.p(f"ds_read_b64_tr_b16 a[{s}:{s+1}], v{V_WT + hi} offset:{off - 51200*hi}", ('F', N))
    def group_sync(self, G):
        self.flush_dma(('W', G))
        self.p.wait(vm=[('W', G)])
        self.p("s_barrier")
    def xread(self, pu, k):
        ksub, rt = divmod(k, 2)
        if k == 0:
            self.flush_dma(('X', pu)); self.p.wait(vm=[('X', pu)])
        a = ((2 * pu + ksub) * 2 + rt) * 4
        self.p(f"ds_read_b128 {aq(a)}, v{V_XR+ksub} offset:{(pu % 3)*4096 + rt*2048}", ('XR', pu))
    def prime(self, ps, sync=True):
        if sync: self.group_sync(ps * 5)
        for n in range(D - 1):
            self.wread(ps * 100 + n, 0); self.wread(ps * 100 + n, 1)
    def gemm_pass(self, ps, accb, bop, fill=None, hooks=None, last=False, pace=None, sync=True, frange=(0, 100), hooks0=None):
        p = self.p
        fill = deque(fill or []); hooks = hooks or {}; hooks0 = hooks0 or {}
        N0 = ps * 100
        p.wait(lg=[('F', N0), ('XR', 0)])
        pace = pace or (lambda n: 0)
        for n in range(100):
            self.pos = N0 + n
            ks, t = divmod(n, 5)
            s = A_RING + ((N0 + n) % D) * 4
            M = n + D - 1
            look = M < 100 or not last
            a = acc(accb, t, 0)
            p(f"{MF} {vq(a)}, {aq(s)}, {bop(ks, 0)}, {'0' if ks == 0 else vq(a)}")
            k0 = len(p.ins)
            if n < 99:
                tg = [('F', N0 + n + 1)]
                if ps == 0 and (n + 1) % 10 == 0: tg.append(('XR', (n + 1) // 10))
                p.wait(lg=tg)
            if n in hooks0: self.put(hooks0[n])
            if look:
                if M % 20 == 0 and sync: self.group_sync((N0 + M) // 20)
                if len(p.ins) == k0: p("s_nop 0")
                self.wread(N0 + M, 0); self.wread(N0 + M, 1)
                if ps in self.o.get('fake', []) and fill and n >= frange[0] and not isinstance(fill[0][1], tuple): self.gap(fill, 1 if fill[0][0] < 2 or n % 2 else 2)
            elif fill and n >= frange[0]: self.gap(fill, 2)
            a = acc(accb, t, 1)
            p(f"{MF} {vq(a)}, {aq(s)}, {bop(ks, 1)}, {'0' if ks == 0 else vq(a)}")
            self.pos = N0 + n + 1
            self.stamp('n%d' % (N0 + n))
            did = 0
            for _ in range(pace(n)): did += self.tick()
            if n in hooks: self.put(hooks[n])
            if fill and n >= frange[0]:
                left = sum(c for c, _ in fill)
                gaps = sum(1 for k in range(n, frange[1]) if not pace(k)) + (min(D - 1, 99 - n) if last and frange[1] == 100 else 0)
                bud = 0 if did else 2
                if left > (3 if ps in self.o.get('fake', []) else 2) * gaps: bud += 2
                if ps == 2 and left > 4 * gaps: bud = -(-left // max(gaps, 1))
                self.gap(fill, bud)
        while fill: self.put([fill.popleft()[1]])
        self.pos = N0 + 100
    def gap(self, fill, bud):
        first = True
        while fill:
            c, x = fill[0]
            solo = isinstance(x, tuple)
            if c > bud or (solo and not first): break
            fill.popleft(); self.put([x]); bud -= c
            if solo: break
            if c: first = False
    def cvt20(self, src, dst):
        return [(1, f"v_cvt_pk_bf16_f32 v{dst+i}, v{src+2*i}, v{src+2*i+1}") for i in range(10)]
    def phiA_parts(self, x, e, m, name, isq):
        P = {}
        kb = e + 28
        P['cvt'] = self.cvt20(x, kb) + [(1, f"v_mov_b32 v{kb+10}, 0"), (1, f"v_mov_b32 v{kb+11}, 0")]
        P['mf'] = [(2, f"{MF} {vq(x+4*t)}, {aq(A_PHI + (t*3+u)*4)}, {vq(kb+4*u)}, {'0' if u == 0 else vq(x+4*t)}") for t in range(5) for u in range(3)]
        P['exp'] = [(2, f"v_exp_f32 v{e+i}, v{x+i}") for i in range(20)] + [(2, f"v_exp_f32 v{e+20+i}, -v{x+i}") for i in range(20)]
        def sums():
            L = [f"v_pk_add_f32 v[{m+2*h}:{m+2*h+1}], v[{e+20*h}:{e+20*h+1}], v[{e+20*h+2}:{e+20*h+3}]" for h in range(2)]
            L += [f"v_pk_add_f32 v[{m+2*h}:{m+2*h+1}], v[{m+2*h}:{m+2*h+1}], v[{e+20*h+2*i}:{e+20*h+2*i+1}]" for i in range(2, 10) for h in range(2)]
            L += [f"v_add_f32 v{m+2*h}, v{m+2*h}, v{m+2*h+1}" for h in range(2)]
            return L
        nm = name + self.sfx
        L = sums() + [f"v_max_f32 v{m+1}, v{m}, v{m+2}", f"v_cmp_ngt_f32 vcc, 0x5d800000, v{m+1}"]
        if not isq: L.append(f"v_rcp_f32 v{m+4}, v{m}")
        L += [f"v_rcp_f32 v{m+2}, v{m+2}", [f"s_cbranch_vccnz {nm}_slow", f"{nm}_back:"]]
        o = Prog()
        o(f"{nm}_slow:")
        o(f"v_max3_f32 v{m}, v{x}, v{x+1}, v{x+2}"); o(f"v_min3_f32 v{m+1}, v{x}, v{x+1}, v{x+2}")
        for i in range(3, 19, 2):
            o(f"v_max3_f32 v{m}, v{m}, v{x+i}, v{x+i+1}"); o(f"v_min3_f32 v{m+1}, v{m+1}, v{x+i}, v{x+i+1}")
        o(f"v_max_f32 v{m}, v{m}, v{x+19}"); o(f"v_min_f32 v{m+1}, v{m+1}, v{x+19}")
        for i in range(20): o(f"v_sub_f32 v{e+i}, v{x+i}, v{m}"); o(f"v_sub_f32 v{e+20+i}, v{m+1}, v{x+i}")
        for i in range(40): o(f"v_exp_f32 v{e+i}, v{e+i}")
        for y in sums(): o(y)
        if not isq: o(f"v_rcp_f32 v{m+4}, v{m}")
        o(f"v_rcp_f32 v{m+2}, v{m+2}"); o("s_nop 1"); o(f"s_branch {nm}_back")
        self.ool.append(o.finalize())
        if isq: L.append(f"v_mul_f32 v{m+2}, v{m+2}, v{m}")
        else: L += [f"v_pk_mul_f32 v[{e+2*i}:{e+2*i+1}], v[{e+2*i}:{e+2*i+1}], v[{m+4}:{m+5}] op_sel_hi:[1,0]" for i in range(10)]
        L += [f"v_pk_mul_f32 v[{e+20+2*i}:{e+21+2*i}], v[{e+20+2*i}:{e+21+2*i}], v[{m+2}:{m+3}] op_sel_hi:[1,0]" for i in range(10)]
        P['norm'] = [(1, y) for y in L]
        P['out'] = [(1, f"v_cvt_pk_bf16_f32 v{x+i}, v{e+2*i}, v{e+2*i+1}") for i in range(20)]
        return P
    def weave(self, mf, va, per=2):
        va = deque(va); L = []
        for x in mf:
            L.append(x); b = per
            while va and va[0][0] <= b: b -= va[0][0]; L.append(va.popleft())
        return L + list(va)
    def phiB(self, x, e, packed):
        L = []
        if packed: L += [(1, f"v_pk_mul_f32 v[{e+2*i}:{e+2*i+1}], v[{x+2*i}:{x+2*i+1}], s[{S_L2E}:{S_NL2E}] op_sel_hi:[1,0]") for i in range(10)]
        else: L += [(1, f"v_mul_f32 v{e+i}, s{S_L2E}, v{x+i}") for i in range(20)]
        L += [(2, f"v_exp_f32 v{e+i}, v{e+i} clamp") for i in range(20)]
        L += [(1, f"v_max_f32 v{x+i}, {EPS}, v{x+i}") for i in range(20)]
        if packed: L += [(1, f"v_pk_add_f32 v[{e+2*i}:{e+2*i+1}], v[{e+2*i}:{e+2*i+1}], v[{x+2*i}:{x+2*i+1}]") for i in range(10)]
        else: L += [(1, f"v_add_f32 v{e+i}, v{e+i}, v{x+i}") for i in range(20)]
        L += self.cvt20(e, x)
        return L
    def checked(self, name, loads, check, tag):
        nm = name + self.sfx
        iss = [(x, tag) if x.startswith('buffer') else x for x in loads]
        chk = [(0, lambda: self.p.wait(vm=[tag]))] + [(1, x) for x in check] + [(1, [f"s_cbranch_vccnz {nm}_retry", f"{nm}_ok:"])]
        o = Prog()
        o(f"{nm}_retry:"); o(f"s_mov_b32 s{S_SPIN}, 0"); o(f"{nm}_loop:")
        if self.o.get('stamps'): o(f"s_add_u32 s95, s95, {dict(L_xc=1000000, L_h1=10000, L_h2=1000, L_pf=10000000, L_f0=1, L_f1=100, L_d0=0, L_d1=100000)[name]}")
        bk = self.o.get('backoff', {}).get(name, 0)
        if bk: o(f"s_sleep {bk}")
        for x in loads: o(x)
        o("s_waitcnt vmcnt(0)")
        for x in check: o(x)
        o(f"s_cbranch_vccz {nm}_ok")
        o(f"s_add_u32 s{S_SPIN}, s{S_SPIN}, 1"); o(f"s_cmp_lt_u32 s{S_SPIN}, {SPIN_MAX}"); o(f"s_cbranch_scc1 {nm}_loop")
        o(f"s_branch {nm}_ok")
        self.ool.append(o.finalize())
        return iss, chk
    def body(self):
        p = self.p; A = self.A; F = self.F; br = 0 if A else 1; o = self.o
        t = TMP
        K = S_KA
        kx, kw, kout, kws = K, K + 2, K + 8, K + 10
        kphi, kwo = (K + 4, K + 6) if A else (None, K + 4)
        p.raw(f"""
        s_andn2_b32 s{T0}, 1, s2
        s_lshl_b32 s{T0}, s{T0}, 5
        s_load_dwordx8 s[{K}:{K+7}], s[0:1], s{T0}
        s_load_dwordx2 s[{kout}:{kout+1}], s[0:1], 56
        s_load_dwordx2 s[{kws}:{kws+1}], s[0:1], 72
        """)
        if o.get('stamps'): p("s_memtime s[96:97]"); p("s_mov_b32 s95, 0")
        if o.get('stamps') or o.get('amp'): p("s_memrealtime s[98:99]")
        p.raw(f"""
        s_getpc_b64 s[60:61]
        L_pc:
        s_bfe_u32 s{S_HG}, s2, 0x30003
        v_and_b32 v{V_LANE}, 63, v0
        v_lshrrev_b32 v{t}, 6, v0
        s_bitcmp0_b32 s2, 0
        s_cselect_b32 s{T1}, L_setupB-L_setupA, 0
        s_lshl_b32 s{T0}, s{S_HG}, 12
        v_lshlrev_b32 v{V_L128}, 7, v{V_LANE}
        v_readfirstlane_b32 s{S_W}, v{t}
        s_add_u32 s{T0}, s{T0}, s{T1}
        s_add_u32 s{T0}, s{T0}, L_setupA-L_pc
        s_add_u32 s60, s60, s{T0}
        s_addc_u32 s61, s61, 0
        v_lshl_add_u32 v{t+1}, v{t}, 10, v{V_L128}
        s_mov_b64 exec, 0xff
        """)
        p(f"global_load_dword v{V_DUMP}, v{t+1}, s[60:61]", 'cpf')
        p("s_mov_b64 exec, -1")
        ra, rbm, rdiv = o.get('rot', (10, 10, 4))
        p.raw(f"""
        s_and_b32 s{S_RB}, s2, 6
        s_lshl_b32 s{S_RB}, s{S_RB}, 1
        s_lshr_b32 s{T0}, s2, 6
        s_add_u32 s{S_RB}, s{S_RB}, s{T0}
        s_mul_i32 s{T0}, s{S_HG}, {ra}
        s_mul_i32 s{T1}, s{S_RB}, {rbm}
        s_add_u32 s{T0}, s{T0}, s{T1}
        s_lshr_b32 s{T0}, s{T0}, {rdiv.bit_length()-1}
        s_mul_i32 s{T1}, s{T0}, 6554
        s_lshr_b32 s{T1}, s{T1}, 16
        s_mul_i32 s{T1}, s{T1}, 10
        s_sub_u32 s{T3}, s{T0}, s{T1}
        s_lshl_b32 s{S_XU}, s{T3}, 7
        s_lshl_b32 s{T0}, s{S_RB}, 2
        s_add_u32 s{T0}, s{T0}, s{S_W}
        s_mul_i32 s{S_XBASE}, s{T0}, 40960
        s_mul_i32 s{S_LW}, s{S_W}, 5120
        s_mul_i32 s{S_LR}, s{S_W}, {RW}
        s_add_u32 s{S_LR}, s{S_LR}, {RBASE}
        v_lshrrev_b32 v{t}, 3, v{V_LANE}
        v_mul_u32_u24 v{t}, 1280, v{t}
        v_lshrrev_b32 v{t+1}, 4, v{V_LANE}
        v_xor_b32 v{t+1}, v{t+1}, v{V_LANE}
        v_and_b32 v{t+1}, 7, v{t+1}
        v_lshl_add_u32 v{V_XO}, v{t+1}, 4, v{t}
        v_xor_b32 v{t+2}, 64, v{V_XO}
        v_add_u32 v{V_XO+1}, {9216}, v{t+2}
        v_add_u32 v{V_XO+2}, {2*9216}, v{V_XO}
        v_add_u32 v{V_XO+3}, {3*9216}, v{t+2}
        s_lshr_b32 s{T0}, s{S_W}, 1
        s_add_u32 s{T0}, s{T0}, s{T3}
        s_and_b32 s{T1}, s{S_W}, 1
        s_mul_i32 s{T1}, s{T1}, {32*3840}
        s_mul_i32 s{T2}, s{S_HG}, 160
        s_add_u32 s{T1}, s{T1}, s{T2}
        s_mov_b32 s{SX+2}, 2621440
        s_mov_b32 s{SX+3}, 0x20000
        s_mov_b32 s{SW+2}, 2457600
        s_mov_b32 s{SW+3}, 0x20000
        """)
        def wrow(g):
            p.raw(f"""
            s_cmp_ge_u32 s{T0}, 10
            s_cselect_b32 s{T2}, 10, 0
            s_sub_u32 s{T0}, s{T0}, s{T2}
            s_mul_i32 s{T2}, s{T0}, {64*3840}
            s_add_u32 s{S_WROW+g}, s{T2}, s{T1}
            s_add_u32 s{T0}, s{T0}, 2
            """)
        wrow(0)
        RH = TMP + 10
        def woff(j):
            b = RH + 5 * j
            p.raw(f"""
            v_add_u32 v{t}, {64*j}, v{V_LANE}
            v_mul_u32_u24 v{b+4}, 6554, v{t}
            v_lshrrev_b32 v{b+4}, 16, v{b+4}
            v_mul_u32_u24 v{t+2}, 10, v{b+4}
            v_sub_u32 v{b+3}, v{t}, v{t+2}
            v_bfe_u32 v{b}, v{b+4}, 2, 2
            v_lshrrev_b32 v{b+1}, 4, v{b+4}
            v_and_b32 v{b+2}, 3, v{b+4}
            v_lshl_add_u32 v{t}, v{b}, 1, v{b+1}
            v_lshl_add_u32 v{t}, v{t}, 2, v{b+2}
            v_mul_u32_u24 v{t}, 3840, v{t}
            v_lshl_add_u32 v{V_WO+j}, v{b+3}, 4, v{t}
            """)
            if 0 < j < 4: p(f"v_subrev_u32 v{V_WO+j}, {1024*j}, v{V_WO+j}")
        if o.get('fake'):
            p.raw(f"""
            s_mul_i32 s94, s{S_HG}, 102400
            s_add_u32 s94, s94, s{S_LW}
            v_lshlrev_b32 v{V_LIN}, 4, v{V_LANE}
            v_mov_b32 v226, v{V_LIN}
            v_add_u32 v227, 51200, v{V_LIN}
            """)
        woff(0); woff(1)
        if o.get('pre0'): p("s_memtime s[92:93]")
        p.raw(f"""
        s_waitcnt lgkmcnt(0)
        s_mov_b32 s{SX}, s{kx}
        s_mov_b32 s{SX+1}, s{kx+1}
        s_mov_b32 s{SW}, s{kw}
        s_mov_b32 s{SW+1}, s{kw+1}
        """)
        self.stamp('p0')
        if o.get('pre0'): p(f"s_sub_u32 s{S_ST+self.nst}, s92, s96"); self.nst += 1
        self.put(self.dma_x(0))
        w0 = self.dma_w(0)
        self.put(w0[0:2]); woff(2); self.put(w0[2]); woff(3); self.put(w0[3]); woff(4); self.put(w0[4])
        self.stamp('p1')
        if o.get('prowait'):
            p.wait(vm=['cpf']); self.stamp('p2')
            p.wait(vm=[('X', 0)]); self.stamp('p3')
            p.wait(vm=[('W', 0)]); self.stamp('p4')
        p("s_bitcmp0_b32 s2, 0"); p("s_cbranch_scc1 L_setupB")
        p(".split")
        p(f"L_setup{self.sfx}:")
        p(f"s_load_dword s{S_NONCE}, s[{kws}:{kws+1}], {br*128}")
        if not A:
            p(f"s_load_dword s{S_UTAG}, s[{kws}:{kws+1}], 0")
            p(f"s_load_dwordx2 s[{K+6}:{K+7}], s[0:1], 24")
        for g in range(1, 5): wrow(g)
        self.q(0, self.dma_x(1))
        p.raw(f"""
        s_mov_b32 s{SWS}, s{kws}
        s_mov_b32 s{SWS+1}, s{kws+1}
        s_mov_b32 s{SWS+2}, {WS_SIZE}
        s_mov_b32 s{SWS+3}, 0x20000
        s_mov_b32 s{SOUT}, s{kout}
        s_mov_b32 s{SOUT+1}, s{kout+1}
        s_mov_b32 s{SOUT+2}, 5242880
        s_mov_b32 s{SOUT+3}, 0x20000
        s_lshl_b32 s{S_HEAD}, s{S_HG}, 2
        s_add_u32 s{S_HEAD}, s{S_HEAD}, s{S_W}
        v_lshlrev_b32 v{V_LIN}, 4, v{V_LANE}
        """)
        if A:
            p.raw(f"""
            s_mov_b32 s{SPHI}, s{kphi}
            s_mov_b32 s{SPHI+1}, s{kphi+1}
            s_mov_b32 s{SPHI+2}, 25600
            s_mov_b32 s{SPHI+3}, 0x20000
            """)
            self.q(0, [[f"s_mul_i32 s{S_WS}, s{S_HEAD}, 800",
                        (f"buffer_load_dwordx4 {vq(TMP+96)}, v{V_LIN}, {srd(SPHI)}, s{S_WS} offen", 'wphi')]])
        self.q(0, self.dma_w(1)); self.q(0, self.dma_x(2))
        G_, I_, R_, C_ = t, t + 1, t + 2, t + 3
        S = []
        def raw(txt):
            for l in txt.split('\n'):
                if l.strip(): S.append((1, l.strip()))
        raw(f"""
        v_lshrrev_b32 v{G_}, 4, v{V_LANE}
        v_and_b32 v{I_}, 15, v{V_LANE}
        v_bfe_u32 v{R_}, v{V_LANE}, 2, 2
        v_and_b32 v{C_}, 3, v{V_LANE}
        v_lshrrev_b32 v{t+4}, 1, v{I_}
        v_xor_b32 v{t+4}, v{t+4}, v{G_}
        v_lshlrev_b32 v{t+5}, 7, v{I_}
        v_lshl_add_u32 v{t+4}, v{t+4}, 4, v{t+5}
        v_add_u32 v{V_XR}, s{S_LR}, v{t+4}
        v_xor_b32 v{t+4}, 64, v{t+4}
        v_add_u32 v{V_XR+1}, s{S_LR}, v{t+4}
        v_lshrrev_b32 v{t+4}, 2, v{V_LANE}
        v_mul_u32_u24 v{t+5}, 160, v{t+4}
        v_mul_u32_u24 v{t+6}, 40, v{C_}
        v_add_u32 v{V_WT}, v{t+5}, v{t+6}
        v_add_u32 v{V_WT+1}, 51200, v{V_WT}
        v_mul_u32_u24 v{t+5}, 120, v{I_}
        v_mul_u32_u24 v{t+6}, 3840, v{G_}
        v_add3_u32 v{V_PW}, v{t+5}, v{t+6}, s{S_LR}
        v_mul_u32_u24 v{t+6}, 40, v{G_}
        v_mul_u32_u24 v{t+7}, {OUTS}, v{I_}
        s_mul_i32 s{T2}, s{S_W}, {32*OUTS}
        s_add_u32 s{T2}, s{T2}, {OUTL}
        v_add3_u32 v{V_OW}, v{t+7}, v{t+6}, s{T2}
        v_and_b32 v{t+5}, 7, v{t+4}
        v_lshrrev_b32 v{t+6}, 5, v{V_LANE}
        v_lshlrev_b32 v{t+6}, 1, v{t+6}
        v_lshl_add_u32 v{t+5}, v{t+5}, 2, v{t+6}
        v_mul_u32_u24 v{t+5}, 120, v{t+5}
        s_mul_i32 s{T0}, s{S_W}, 3840
        s_add_u32 s{T0}, s{T0}, {RBASE}
        v_add_u32 v{V_KA1}, s{T0}, v{t+5}
        v_lshl_add_u32 v{V_KB}, v{C_}, 3, v{V_KA1}
        s_mov_b32 s{S_L2E}, 0x3fb8aa3b
        s_mov_b32 s{S_NL2E}, 0xbfb8aa3b
        s_mov_b32 s{S_PERM}, 0x07060302
        s_and_b32 s{T3}, s{S_HG}, 1
        """)
        for j in range(5):
            b = RH + 5 * j
            if j < 3: raw(f"""
            v_mul_u32_u24 v{t+5}, {OUTS}, v{b+4}
            v_lshl_add_u32 v{t+5}, v{b+3}, 4, v{t+5}
            v_add_u32 v{V_ORD+j}, s{T2}, v{t+5}
            v_mul_u32_u24 v{t+5}, 2560, v{b+4}
            v_lshl_add_u32 v{V_OG+j}, v{b+3}, 4, v{t+5}
            """)
            if j == 2: raw(f"""
            v_lshrrev_b32 v{t+5}, 5, v{V_LANE}
            v_lshl_or_b32 v{V_OG+2}, v{t+5}, 30, v{V_OG+2}
            """)
        raw(f"""
        v_mov_b32 v{t+5}, 2304
        v_cmp_gt_u32 vcc, 16, v{V_LANE}
        v_mov_b32 v{t+6}, 1024
        v_cndmask_b32 v{t+5}, v{t+5}, v{t+6}, vcc
        v_add_u32 v{V_OO+1}, v{t+5}, v{V_LIN}
        v_mov_b32 v{V_OO}, v{V_LIN}
        v_add_u32 v{V_OO+2}, 40960, v{V_LIN}
        v_add_u32 v{V_OO+3}, 40960, v{V_OO+1}
        v_lshrrev_b32 v{t+4}, 5, v{V_LANE}
        v_mul_u32_u24 v{t+4}, {40960-512}, v{t+4}
        v_add_u32 v{t+5}, 3328, v{V_LIN}
        v_add_u32 v{V_OO+4}, v{t+4}, v{t+5}
        v_add_u32 v{V_LINH}, 51200, v{V_LIN}
        v_min_u32 v{V_PF}, 39, v{V_LANE}
        v_lshlrev_b32 v{V_PF}, 3, v{V_PF}
        v_and_b32 v{t+4}, 1, v{RH+4}
        v_mul_u32_u24 v{t+4}, 2560, v{t+4}
        v_lshrrev_b32 v{t+5}, 1, v{RH+4}
        v_mul_u32_u24 v{t+5}, 40960, v{t+5}
        v_lshlrev_b32 v{t+6}, 7, v{RH+3}
        v_add3_u32 v{V_L128}, v{t+4}, v{t+5}, v{t+6}
        """)
        raw(f"""
        s_lshl_b32 s{T0}, s{T3}, 1
        s_xor_b32 s{T0}, s{T0}, s{S_W}
        s_mul_i32 s{T0}, s{T0}, 5120
        s_mul_i32 s{T2}, s{S_HG}, 102400
        s_add_u32 s{T2}, s{T2}, {WS_PK + br*819200}
        s_add_u32 s{T0}, s{T0}, s{T2}
        s_lshr_b32 s{S_SPIN}, s{S_HG}, 1
        s_add_u32 s{T1}, s{S_SPIN}, s{S_W}
        s_and_b32 s{T1}, s{T1}, 3
        s_add_u32 s{T1}, s{T1}, 16
        s_mul_i32 s{T1}, s{T1}, 5120
        s_add_u32 s{S_WOROW+4}, s{T1}, s{T2}
        s_lshr_b32 s{S_PFL}, s{S_HG}, 2
        s_lshl_b32 s{S_PFL}, s{S_PFL}, 9
        s_add_u32 s{S_PFL}, s{S_PFL}, {WS_PF + br*1024}
        s_mul_i32 s{T2}, s{S_HG}, 160
        s_lshl_b32 s{S_OUT}, s{S_XBASE}, 1
        s_add_u32 s{S_OUT}, s{S_OUT}, s{T2}
        s_add_u32 s{S_OUT}, s{S_OUT}, {br*1280}
        s_lshl_b32 s{S_OB}, s{S_XBASE}, 1
        s_add_u32 s{S_OB}, s{S_OB}, {br*1280}
        """)
        for g in range(4):
            raw(f"""
            s_add_u32 s{T1}, s{S_SPIN}, {g}
            s_and_b32 s{T1}, s{T1}, 3
            s_mul_i32 s{T2}, s{T1}, 20480
            s_add_u32 s{S_WOROW+g}, s{T2}, s{T0}
            s_lshl_b32 s{T1}, s{T1}, 1
            s_add_u32 s{T1}, s{T1}, s{T3}
            s_mul_i32 s{T2}, s{T1}, 5120
            s_add_u32 s{S_OP+2*g}, s{T2}, s{S_OB}
            s_xor_b32 s{T1}, s{T1}, 1
            s_mul_i32 s{T2}, s{T1}, 5120
            s_add_u32 s{S_OP+2*g+1}, s{T2}, s{S_OB}
            """)
        SH = 8 if A else 7
        raw(f"""
        s_lshl_b32 s{T0}, s{S_RB}, 2
        s_add_u32 s{T0}, s{T0}, s{S_W}
        s_lshl_b32 s{S_FLAG}, s{T0}, 7
        s_add_u32 s{S_FLAG}, s{S_FLAG}, {WS_FLAG + br*64*128}
        s_lshl_b32 s{T0}, s{S_HEAD}, 16
        s_add_u32 s{T0}, s{T0}, {WS_P1 + br*32*65536}
        s_lshl_b32 s{T1}, s{S_RB}, 12
        s_add_u32 s{S_P1ST}, s{T0}, s{T1}
        s_min_u32 s{T1}, s{S_RB}, 14
        s_lshl_b32 s{T1}, s{T1}, {SH}
        s_add_u32 s{S_P1LD}, s{T0}, s{T1}
        s_lshl_b32 s{T0}, s{S_HEAD}, 12
        s_add_u32 s{S_P2LD}, s{T0}, {WS_P2 + br*32*4096}
        s_add_u32 s{S_P2ST}, s{S_P2LD}, s{T1}
        s_lshr_b32 s{T1}, s{S_RB}, {4 - o.get('p2log', 2)}
        s_lshl_b32 s{T1}, s{T1}, 18
        s_add_u32 s{S_P2LD}, s{S_P2LD}, s{T1}
        v_mul_u32_u24 v{t+4}, {F}, v{G_}
        v_add_lshl_u32 v{V_P1ST}, v{t+4}, v{I_}, 4
        v_lshrrev_b32 v{t+4}, {3 if A else 2}, v{I_}
        v_lshl_or_b32 v{V_P1M}, v{t+4}, 28, v{V_P1ST}
        v_lshrrev_b32 v{t+4}, 1, v{G_}
        v_lshl_or_b32 v{V_P1M+1}, v{t+4}, 30, v{V_P1ST}
        v_or_b32 v{V_P1M+2}, v{V_P1M}, v{V_P1M+1}
        v_cmp_gt_u32 vcc, 4, v{I_}
        v_cndmask_b32 v{V_KEEP}, 0, -1, vcc
        v_mov_b32 v{t+4}, 0x3f803f80
        v_cmp_eq_u32 vcc, 4, v{I_}
        v_cndmask_b32 v{V_ONE}, 0, v{t+4}, vcc
        v_and_b32 v{t+4}, 7, v{V_LANE}
        v_lshlrev_b32 v{V_F8}, 2, v{t+4}
        s_lshl_b32 s{T0}, s{S_HG}, 2
        v_min_u32 v{V_FOWN}, 1, v{V_LANE}
        v_lshlrev_b32 v{V_FOWN}, 30, v{V_FOWN}
        v_or_b32 v{V_FOWN}, s{T0}, v{V_FOWN}
        v_lshlrev_b32 v{V_ZA}, 3, v0
        v_add_u32 v{V_ZA}, {RBASE+7680}, v{V_ZA}
        """)
        if A:
            raw(f"""
            v_lshlrev_b32 v{t+5}, 12, v{G_}
            v_lshl_add_u32 v{V_P1LD}, v{I_}, 4, v{t+5}
            v_lshlrev_b32 v{V_P2ST}, 2, v{V_LANE}
            """)
        else:
            raw(f"""
            v_lshrrev_b32 v{t+5}, 3, v{V_LANE}
            v_lshlrev_b32 v{t+5}, 12, v{t+5}
            v_lshl_add_u32 v{V_P1LD}, v{t+4}, 4, v{t+5}
            v_lshl_add_u32 v{V_P2ST}, v{G_}, 5, v{V_F8}
            """)
        RS = 80 if A else 48
        HS = 24 * RS
        NQ = 240 if A else 120
        NI = 4 if A else 2
        raw(f"s_mul_i32 s{T0}, s{S_W}, {HS}\ns_add_u32 s{T0}, s{T0}, {RBASE}")
        u = t + 4
        for ii in range(NI):
            raw(f"v_add_u32 v{u}, {64*ii}, v{V_LANE}")
            if ii == NI - 1:
                raw(f"""v_subrev_u32 v{u+1}, 64, v{u}
                v_cmp_gt_u32 vcc, {NQ}, v{u}
                v_cndmask_b32 v{u}, v{u+1}, v{u}, vcc
                v_lshlrev_b32 v{V_GAL}, 4, v{u}""")
            if A:
                raw(f"""
                v_lshrrev_b32 v{u+1}, 4, v{u}
                v_and_b32 v{u+2}, 3, v{u}
                v_lshl_add_u32 v{u+1}, v{u+1}, 2, v{u+2}
                v_bfe_u32 v{u+2}, v{u}, 2, 2
                v_mul_u32_u24 v{u+3}, 6554, v{u+1}
                v_lshrrev_b32 v{u+3}, 16, v{u+3}
                v_mul_u32_u24 v{u+4}, 10, v{u+3}
                """)
            else:
                raw(f"""
                v_lshrrev_b32 v{u+1}, 3, v{u}
                v_and_b32 v{u+2}, 1, v{u}
                v_lshl_add_u32 v{u+1}, v{u+1}, 1, v{u+2}
                v_bfe_u32 v{u+2}, v{u}, 1, 2
                v_mul_u32_u24 v{u+3}, 13108, v{u+1}
                v_lshrrev_b32 v{u+3}, 16, v{u+3}
                v_mul_u32_u24 v{u+4}, 5, v{u+3}
                """)
            raw(f"""
            v_sub_u32 v{u+1}, v{u+1}, v{u+4}
            v_lshl_add_u32 v{u+3}, v{u+3}, 2, v{u+2}
            v_mul_u32_u24 v{u+3}, {RS}, v{u+3}
            v_lshl_add_u32 v{u+3}, v{u+1}, 3, v{u+3}
            v_add_u32 v{V_LA+ii}, s{T0}, v{u+3}
            """)
        raw(f"""
        v_cmp_eq_u32 vcc, v{G_}, v{R_}
        v_mul_u32_u24 v{u}, {HS}, v{G_}
        v_mul_u32_u24 v{u+1}, {RS}, v{C_}
        v_add_u32 v{u}, v{u}, v{u+1}
        v_add_u32 v{u}, {RBASE}, v{u}
        v_mov_b32 v{u+1}, {RBASE+7680}
        v_cndmask_b32 v{V_FR2}, v{u+1}, v{u}, vcc
        """)
        if A:
            raw(f"""
            v_mov_b32 v{t+36}, 0
            v_mov_b32 v{t+37}, 0
            v_mov_b32 v{t+38}, 0
            v_mov_b32 v{t+39}, 0
            v_add_u32 v{TMP+100}, s{S_LR}, v{V_LIN}
            ds_write_b128 v{TMP+100}, {vq(t+36)} offset:13312
            v_mul_u32_u24 v{t+4}, {RW}, v{G_}
            v_mul_u32_u24 v{t+5}, 40, v{R_}
            v_add_u32 v{t+4}, v{t+4}, v{t+5}
            v_add_u32 v{t+4}, {RBASE+12288}, v{t+4}
            s_add_u32 s{T0}, s{S_LR}, 13312
            v_mov_b32 v{t+5}, s{T0}
            v_cmp_eq_u32 vcc, v{C_}, v{G_}
            v_cndmask_b32 v{V_FR}, v{t+5}, v{t+4}, vcc
            """)
            for tt in range(5):
                a = A_PHI + (tt * 3 + 2) * 4
                raw(f"v_accvgpr_write_b32 a{a+2}, 0\nv_accvgpr_write_b32 a{a+3}, 0")
        US, UA, UD = TMP + 40, TMP + 45, TMP + 80
        nA = o.get('nA', 0); prod = (not A) or nA > 0
        S_UOK = 92
        if prod:
            iS0 = len(S)
            S.append((1, [x.strip() for x in f"""
            s_add_u32 s{T1}, s{S_HG}, s{S_RB}
            s_and_b32 s{T1}, s{T1}, 1
            s_lshl_b32 s{T0}, s{S_W}, 1
            s_add_u32 s{T0}, s{T0}, s{T1}
            s_lshl_b32 s{T0}, s{T0}, 3
            s_add_u32 s{T0}, s{T0}, s{S_HG}
            s_lshl_b32 s{T0}, s{T0}, 3
            s_lshr_b32 s{T1}, s{S_RB}, 1
            s_add_u32 s{T0}, s{T0}, s{T1}
            s_add_u32 s{T0}, s{T0}, {0 if A else nA}
            s_cmp_lt_u32 s{T0}, {nA if A else 320}
            s_cselect_b32 s{S_UOK}, 1, 0
            s_waitcnt lgkmcnt(0)
            s_cmp_lt_u32 s{T0}, 160
            s_cselect_b32 s{SWO}, s{K+6}, s{kwo}
            s_cselect_b32 s{SWO+1}, s{K+7}, s{kwo+1}
            s_cselect_b32 s{S_UTAG}, s{S_NONCE if A else S_UTAG}, s{S_NONCE}
            s_cselect_b32 s{T1}, 0, 160
            s_cselect_b32 s{S_UDST}, 0, 819200
            s_cselect_b32 s{S_UFL}, 0, 1024
            s_mov_b32 s{SWO+2}, 819200
            s_mov_b32 s{SWO+3}, 0x20000
            s_add_u32 s{S_UTAG}, s{S_UTAG}, 0x9e3779b1
            s_sub_u32 s{T0}, s{T0}, s{T1}
            s_and_b32 s{T1}, s{T0}, 1
            s_mul_i32 s{S_USRC}, s{T1}, 640
            s_mul_i32 s{T2}, s{T1}, 409600
            s_add_u32 s{S_UDST}, s{S_UDST}, s{T2}
            s_lshl_b32 s{T2}, s{T1}, 9
            s_add_u32 s{S_UFL}, s{S_UFL}, s{T2}
            s_lshr_b32 s{T1}, s{T0}, 1
            s_lshl_b32 s{T2}, s{T1}, 2
            s_add_u32 s{S_UFL}, s{S_UFL}, s{T2}
            s_add_u32 s{S_UFL}, s{S_UFL}, {WS_PF}
            s_and_b32 s{T1}, s{T1}, 3
            s_mul_i32 s{T2}, s{T1}, {20*1280}
            s_add_u32 s{S_USRC}, s{S_USRC}, s{T2}
            s_lshl_b32 s{T2}, s{T1}, 8
            s_add_u32 s{S_UDST}, s{S_UDST}, s{T2}
            s_lshr_b32 s{T1}, s{T0}, 3
            s_mul_i32 s{T2}, s{T1}, 5120
            s_add_u32 s{S_UDST}, s{S_UDST}, s{T2}
            s_add_u32 s{S_UDST}, s{S_UDST}, {WS_PK}
            s_lshr_b32 s{T2}, s{T1}, 1
            s_mul_i32 s{T2}, s{T2}, 80
            s_and_b32 s{T3}, s{T1}, 1
            s_lshl_b32 s{T3}, s{T3}, 3
            s_add_u32 s{T2}, s{T2}, s{T3}
            s_mul_i32 s{T3}, s{T1}, 160
            s_sub_u32 s{T3}, s{T3}, {16*160 - 16}
            s_cmp_ge_u32 s{T1}, 16
            s_cselect_b32 s{T2}, s{T3}, s{T2}
            s_cselect_b32 s{T3}, 1, 0
            s_mul_i32 s{T2}, s{T2}, 1280
            s_add_u32 s{S_USRC}, s{S_USRC}, s{T2}
            s_mul_i32 s{T1}, s{T3}, {76*1280}
            s_add_u32 s{T2}, s{S_LW}, {RING + 4*SLOT}
            """.split('\n') if x.strip()]))
            for j in range(5):
                raw(f"""
                v_lshrrev_b32 v{t+4}, 2, v{RH+5*j+4}
                v_mul_u32_u24 v{t+5}, 640, v{t+4}
                v_lshrrev_b32 v{t+4}, 2, v{t+4}
                v_mul_u32_u24 v{t+4}, s{T1}, v{t+4}
                v_add3_u32 v{US+j}, v{t+4}, v{t+5}, v{V_LIN}
                """)
            raw(f"v_add_u32 v{US+4}, 4096, v{US+4}")
            iS1 = len(S)
            raw(f"""
            v_mul_u32_u24 v{t+7}, 640, v{R_}
            v_mul_u32_u24 v{t+8}, 40, v{C_}
            v_add3_u32 v{t+7}, v{t+7}, v{t+8}, s{T2}
            """)
            for j in range(5):
                raw(f"""
                v_add_u32 v{t+4}, {4*j}, v{G_}
                v_mul_u32_u24 v{t+5}, 13108, v{t+4}
                v_lshrrev_b32 v{t+5}, 16, v{t+5}
                v_mul_u32_u24 v{t+6}, 120, v{t+5}
                v_lshl_add_u32 v{t+6}, v{t+4}, 3, v{t+6}
                v_add_u32 v{t+6}, v{t+6}, v{t+7}
                v_and_b32 v{t+8}, s{T3}, v{t+5}
                v_mul_u32_u24 v{t+8}, 2560, v{t+8}
                v_add_u32 v{UA+2*j}, v{t+6}, v{t+8}
                v_sub_u32 v{t+6}, v{t+6}, v{t+8}
                v_add_u32 v{UA+2*j+1}, 2560, v{t+6}
                v_mul_u32_u24 v{t+5}, {102400 - 5120}, v{t+5}
                v_lshl_add_u32 v{t+5}, v{t+4}, 10, v{t+5}
                v_lshl_add_u32 v{UD+j}, v{I_}, 4, v{t+5}
                """)
            mark = {}
            def cond(name, lines):
                p.untracked([f"s_cmp_eq_u32 s{S_UOK}, 0", f"s_cbranch_scc1 {name}{self.sfx}"] + lines + [f"{name}{self.sfx}:"])
                mark[name] = p.nvm
            L = [f"s_add_u32 m0, s{S_LW}, {RING + 4*SLOT}"]
            for j in range(5):
                off = f"offset:{j*1024} " if 0 < j < 4 else ""
                L.append(f"buffer_load_dwordx4 v{US+j}, {srd(SWO)}, s{S_USRC} offen {off}lds")
                if j == 3: L.append(f"s_add_u32 m0, s{S_LW}, {RING + 4*SLOT + 4096}")
            un = [[lambda L=L: cond("L_u1", L)]]
            if o.get('uissue', 0) == 0: self.q(10**6 + 77, un)
            if o.get('uissue', 0) == -1: S = S[:4] + S[iS0:iS1] + [(0, un[0])] + S[iS1:] + S[4:iS0]
        self.run(S, every=o.get('proev', 60))
        self.stamp('p5')
        if o.get('uissue', 0) == 0: self.release(77)
        def urd(): cond("L_u2r", [f"s_waitcnt vmcnt({p.nvm - mark['L_u1']}) lgkmcnt(0)"] +
                [f"ds_read_b64_tr_b16 {vq(TMP+60+2*k, 2)}, v{UA+k}" for k in range(10)] + ["s_waitcnt lgkmcnt(0)"])
        def ust(j): cond("L_u2" + "abcd "[j].strip(), [f"buffer_store_dwordx4 {vq(TMP+60+4*j)}, v{UD+j}, {srd(SWS)}, s{S_UDST} offen sc1"])
        if o.get('hops', 1):
            p("s_mov_b64 exec, 0")
            for w_ in range(3): p(f"s_cmp_eq_u32 s{S_W}, {w_}"); p(f"s_cbranch_scc1 L_hop{w_}{self.sfx}")
            p(f"s_branch L_hop3{self.sfx}")
            p(f"L_hopret{self.sfx}:")
            p("s_mov_b64 exec, -1")
        if prod and o.get('upos', (0,))[0] < 0:
            while len(self.dq) > -o['upos'][0] - 1 and self.tick(): pass
            urd()
            for j in range(5): ust(j)
        while len(self.dq) > o.get('prokeep', 0) and self.tick(): pass
        p.raw(f"""
        s_getreg_b32 s{T0}, hwreg(HW_REG_XCC_ID, 0, 4)
        s_waitcnt lgkmcnt(0)
        s_add_u32 s{S_NONCE}, s{S_NONCE}, 0x9e3779b1
        s_lshl_b32 s{T0}, s{T0}, 28
        s_xor_b32 s{S_XCCV}, s{T0}, s{S_NONCE}
        v_mov_b32 v{V_NONCE}, s{S_NONCE}
        v_and_b32 v{V_VW}, 1, v{V_LANE}
        v_lshlrev_b32 v{V_VW}, 4, v{V_VW}
        v_lshrrev_b32 v{V_VW}, v{V_VW}, v{V_NONCE}
        v_mov_b32 v{V_KA0}, s{S_XCCV}
        s_add_u32 s{S_XA}, s{S_FLAG}, {WS_XCC - WS_FLAG}
        """)
        xst = [(f"buffer_store_dword v{V_KA0}, v{V_FOWN}, {srd(SWS)}, s{S_XA} offen sc1", 'xcc')]
        x1, x2, x3 = o.get('xpos', (-1, 58, 88))
        if x1 < 0: self.put(xst)
        self.stamp()
        p(f"s_branch L_main{self.sfx}")
        p(".p2align 12")
        p(f"L_main{self.sfx}:")
        xb = lambda ks, rt: aq((ks * 2 + rt) * 4)
        xbp = lambda ps: (lambda ks, rt: xb(4 * (4 - ks // 4) + ks % 4, rt)) if ps in o.get('rev', [1, 2]) else xb
        for pu in range(0, 7):
            if (pu + 3) % 2 == 0: self.q(0, self.dma_w((pu + 3) // 2))
            self.q(10 * pu, self.dma_x(pu + 3))
            if prod and o.get('uissue', 0) == pu + 1: self.q(0, un)
        for G in range(5, 10): self.q(10**6 + 1 if G % 5 >= 3 else 20 * (G - 3) - 4, self.dma_w(G))
        for G in range(10, 13): self.q(20 * (G - 3) - 4, self.dma_w(G))
        for G in range(13, 20): self.q(10**6 + G, self.dma_w(G))
        hooks = {}
        for pu in range(1, 10):
            hooks[10 * pu - 5] = [lambda pu=pu: self.xread(pu, 0), lambda pu=pu: self.xread(pu, 1)]
            hooks[10 * pu - 4] = [lambda pu=pu: self.xread(pu, 2), lambda pu=pu: self.xread(pu, 3)]
        if A:
            rd = [(tt, u_, hf) for tt in range(5) for u_ in range(3) for hf in range(2 if u_ < 2 else 1)]
            w = TMP + 96; u2 = TMP + 102
            sc = [lambda: p.wait(vm=['wphi'])]
            for j in range(4):
                sc += [f"v_lshlrev_b32 v{u2}, 16, v{w+j}", f"v_and_b32 v{u2+1}, 0xffff0000, v{w+j}", f"v_mul_f32 v{u2}, s{S_L2E}, v{u2}",
                       f"v_mul_f32 v{u2+1}, s{S_L2E}, v{u2+1}", f"v_cvt_pk_bf16_f32 v{w+j}, v{u2}, v{u2+1}"]
            hooks[8] = sc + [(f"ds_write_b128 v{TMP+100}, {vq(w)} offset:12288", 'phw')]
            hooks[14] = [lambda: p.wait(lg=['phw'])]
            slots = [n for n in range(21, 90) if n % 10 in (0, 1, 2, 3)][:25]
            for k, n in enumerate(slots):
                hooks[n] = [(f"ds_read_b64_tr_b16 a[{A_PHI + (tt*3+u_)*4 + 2*hf}:{A_PHI + (tt*3+u_)*4 + 2*hf + 1}], v{V_FR} offset:{(8*u_+4*hf)*40 + 8*tt}", 'phi')
                            for tt, u_, hf in rd[k:k+1]]
        late3 = {}
        if prod:
            UR = TMP + 60
            u1, u2_, u3 = o.get('upos', (18, 18, 62))
            if u1 >= 0: hooks.setdefault(u1, []).append(urd)
            for j in range(5):
                uj = u2_ + o.get('ustep', 0) * j
                if uj >= 0: (hooks if uj < 100 else late3).setdefault(uj % 100, []).append(lambda j=j: ust(j))
            (hooks if u3 < 100 else late3).setdefault(u3 % 100, []).append(lambda: cond("L_u3", [f"s_waitcnt vmcnt({p.nvm - mark['L_u2']})", f"v_mov_b32 v{V_DUMP}, s{S_UTAG}", "s_mov_b64 exec, 1",
                         f"buffer_store_dword v{V_DUMP}, v{V_LIN}, {srd(SWS)}, s{S_UFL} offen sc1", "s_mov_b64 exec, -1"]))
        XV = TMP + 92
        iss, chk = self.checked("L_xc", [f"buffer_load_dword v{XV}, v{V_F8}, {srd(SWS)}, s{S_XA} offen sc1"],
                                [f"v_xor_b32 v{XV+1}, s{S_NONCE}, v{XV}", f"v_lshlrev_b32 v{XV+1}, 4, v{XV+1}", f"v_cmp_ne_u32 vcc, 0, v{XV+1}"], 'xl')
        xv, xq = {}, {}
        def xh(pos, L): [hooks, xv, xq][pos // 100].setdefault(pos % 100, []).extend(L)
        if x1 >= 0: xh(x1, xst)
        xh(x2, iss)
        c_ = [x for _, x in chk]
        xh(x3, c_[:3]); xh(x3 + 1, c_[3:4]); xh(x3 + 2, c_[4:] + [f"v_cmp_ne_u32 vcc, s{S_XCCV}, v{XV}"])
        xh(x3 + 3, [f"s_mov_b32 s{S_FAST}, {1 if o.get('nofast') else 'vcc_lo'}", f"s_add_u32 s{T0}, s{SWS}, {WS_O}", f"s_addc_u32 s{T1}, s{SWS+1}, 0"])
        xh(x3 + 4, [f"s_cmp_eq_u32 s{S_FAST}, 0", f"s_cselect_b32 s{SO}, s{SOUT}, s{T0}", f"s_cselect_b32 s{SO+1}, s{SOUT+1}, s{T1}"])
        xh(x3 + 5, [f"s_mov_b32 s{SO+2}, 5242880", f"s_mov_b32 s{SO+3}, 0x20000"])
        self.group_sync(0)
        for k in range(4): self.xread(0, k)
        self.prime(0, sync=False)
        kp = o.get('kpace', 3)
        k1p = {0: lambda n: 1 if n % 3 != 2 else 0, 1: lambda n: 1, 2: lambda n: 2 if n % 10 < 2 else (1 if n % 10 < 5 else 0), 3: lambda n: 1 if n % 4 != 3 else 0}[o.get('k1', 0)]
        self.gemm_pass(0, ACC_K, xb, hooks=hooks, last=True, pace=lambda n: k1p(n) if n < o.get('ksw', 69) else (1 if n % kp == 0 else 0))
        self.stamp()
        E0, E1, M0_, M1_ = TMP, TMP + 40, TMP + 80, TMP + 86
        x0, x1 = acc(ACC_K, 0, 0), acc(ACC_K, 0, 1)
        tagset = [f"s_bfe_u32 s{S_TB+j}, s{S_NONCE}, {hex(0x80000 + 8*j)}" for j in range(4)] + [f"s_lshr_b32 s{S_NHI}, s{S_NONCE}, 16"]
        if o.get('amp'):
            p.raw(f"""
            s_load_dwordx2 s[88:89], s[0:1], 64
            s_not_b32 s{T0}, s98
            v_mov_b32 v{TMP+94}, 0
            v_mov_b32 v{TMP+95}, s{T0}
            s_lshr_b32 s{T0}, s2, 3
            s_or_b32 s{T0}, s{T0}, s{S_W}
            s_cmp_eq_u32 s{T0}, 0
            s_cselect_b32 s{T0}, 0, 64
            v_mov_b32 v{TMP+94}, s{T0}
            s_waitcnt lgkmcnt(0)
            s_cbranch_scc0 L_noat{self.sfx}
            s_mov_b64 exec, 1
            """)
            p.ins.append(__import__('emit').Ins(f"global_atomic_umax v{TMP+94}, v{TMP+95}, s[88:89] sc1"))
            p("s_mov_b64 exec, -1")
            p(f"L_noat{self.sfx}:")
        wr = lambda rt, x, n, o8: [(2, (f"ds_write_b64 v{V_PW}, {vq(x+2*j, 2)} offset:{rt*1920 + o8 + 8*j}", 'pw')) for j in range(n)]
        def mixw(out, w): return [y for j in range(len(w)) for y in out[2*j:2*j+2] + [w[j]]]
        burst = lambda L: [(0, [x for _, x in L])]
        dm = (2, lambda: self.tick())
        if A:
            P0 = self.phiA_parts(x0, E0, M0_, "L_k0", False); P1 = self.phiA_parts(x1, E1, M1_, "L_k1", False)
            pr = [(0, lambda: (self.group_sync(5), self.release(1)))]
            pr = pr + [(1, lambda n=n, hf=hf: self.wread(100 + n, hf)) for n in range(D - 1) for hf in range(2)]
            hx = o.get('hx', 0)
            if hx == 0:
                self.put([x for _, x in [dm] + P0['cvt'] + self.weave(P0['mf'], [dm] + P1['cvt'] + [dm] + P0['exp'][:4]) + self.weave(P1['mf'], [dm] + P0['exp'][4:12] + [dm] + pr)])
                f0 = P0['exp'][12:] + burst(P0['norm'])
            else:
                self.put([x for _, x in [dm] + P0['cvt'] + self.weave(P0['mf'], [dm] + P1['cvt'] + P0['exp'][:7] + [dm]) + self.weave(P1['mf'], P0['exp'][7:14] + [dm] + P0['exp'][14:21])])
                self.run(P0['exp'][21:] + P0['norm'][:-10], every=hx)
                self.put([x for _, x in pr + P0['norm'][-10:]])
                f0 = []
            fill = f0 + mixw(P0['out'], wr(0, x0, 10, 0)) + P1['exp'] + burst(P1['norm']) + mixw(P1['out'], wr(1, x1, 10, 0))
            self.stamp('head')
        else:
            fill = []
            for rt, x, e in ((0, x0, E0), (1, x1, E1)):
                L = self.phiB(x, e, False)
                fill += L[:-10] + mixw(L[-10:], wr(rt, x, 5, 0))
            self.group_sync(5); self.release(1); self.prime(1, sync=False)
        hooks = {}
        hooks.update(late3)
        PFV = TMP + 94
        ipf, cpf_ = self.checked("L_pf", [f"buffer_load_dwordx2 {vq(PFV, 2)}, v{V_PF}, {srd(SWS)}, s{S_PFL} offen sc1"],
                                 [f"v_xor_b32 v{PFV}, s{S_NONCE}, v{PFV}", f"v_bitop3_b32 v{PFV}, v{PFV}, v{PFV+1}, s{S_NONCE} bitop3:0xf6", f"v_cmp_ne_u32 vcc, 0, v{PFV}"], 'pf')
        pfp = o.get('pfpos', 81)
        if pfp < 100: hooks.setdefault(pfp, []).extend(ipf)
        pre = ["s_mov_b32 exec_hi, 0xff", (f"buffer_load_dword v{V_DUMP}, v{V_L128}, {srd(SO)}, s{S_OP} offen sc1", 'pr'), "s_mov_b64 exec, 1",
               (f"buffer_load_dword v{V_DUMP}, v{V_F8}, {srd(SWS)}, s{S_FLAG} offen sc1", 'pr'), "s_mov_b64 exec, -1"]
        wp, pp_ = o.get('wopf', -1), o.get('prepos', 0)
        if 100 <= pp_ < 200: hooks.setdefault(pp_ - 100, []).extend(pre)
        vs = o.get('vsync', 0)
        if o.get('v13'): hooks.setdefault(78, []).extend(["s_barrier", lambda: self.release(13)])
        for k_, v_ in xv.items(): hooks.setdefault(k_, []).extend(v_)
        for k_, v_ in enumerate(tagset): hooks.setdefault(41 + k_, []).insert(0, v_)
        vp = o.get('vpace', 4)
        self.gemm_pass(1, ACC_V, xbp(1), fill=fill, hooks=hooks, last=True, sync=True, pace=lambda n: 1 if n % vp == 0 else 0)
        self.stamp()
        VB = TMP
        for rt in range(2):
            c = self.cvt20(acc(ACC_V, 0, rt), VB + 10 * rt)
            for j in range(5):
                p(c[2*j][1]); p(c[2*j+1][1])
                p(f"ds_write_b64 v{V_PW}, {vq(VB+10*rt+2*j, 2)} offset:{rt*1920 + 80 + 8*j}", 'vw')
                if j == 4 and rt == 0: self.tick()
        self.tick()
        p.wait(lg='*')
        self.stamp('kv0')
        gk = 11
        self.flush_dma(('W', gk)); p.wait(vm=[('W', gk)])
        self.stamp('kv1')
        p("s_barrier")
        self.stamp('kv2')
        self.release(13); self.release(14)
        NT = 3 if A else 2
        FB = ACC_K
        KV = TMP + 64
        rds = deque()
        def rd(reg, av, off, kk, j):
            for hf in range(2): rds.append((f"ds_read_b64_tr_b16 {vq(reg+2*hf, 2)}, v{av} offset:{kk*RW + hf*120 + off}", ('kv', kk, j)))
        for kk in range(4):
            b = FB + kk * 20
            rd(b, V_KB, 80, kk, 'a')
            for nt in range(NT): rd(b + 8 + 4 * nt, V_KB, 32 * nt, kk, nt)
            rd(b + 4, V_KA1, 112, kk, 'z')
        def more(k):
            while k > 0 and rds and len(p.lgq) < 15: self.put([rds.popleft()]); k -= 1
        more(15); self.tick()
        p(f"v_mov_b32 v{TMP+1}, 0xff")
        seq = [(kk, nt) for kk in range(4) for nt in range(NT)]
        ao = deque((kk, f"v_and_or_b32 v{FB+kk*20+4+j}, v{FB+kk*20+4+j}, v{V_KEEP}, v{V_ONE}") for kk in range(4) for j in range(4))
        p.wait(lg=[('kv',) + seq[0]])
        for i_, (kk, nt) in enumerate(seq):
            b = FB + kk * 20
            p(f"{MF} {vq(KV + nt*4)}, {vq(b)}, {vq(b+8+4*nt)}, {'0' if kk == 0 else vq(KV + nt*4)}")
            p.wait(lg=[('kv',) + seq[i_ + 1]] if i_ + 1 < len(seq) else '*')
            k_ = len(rds); more(o.get('kvr', 4))
            for _ in range(max(0, 3 - (k_ - len(rds)))):
                if ao and ('kv', ao[0][0], 'z') not in p.lgq and not any(x[1] == ('kv', ao[0][0], 'z') for x in rds): p(ao.popleft()[1])
        assert not rds
        while len(ao) > 4: p(ao.popleft()[1])
        lastm = 0x00ff00ff if A else 0x000f000f
        def pub(mt, nt):
            a = KV + (mt * 3 + nt) * 4
            L = [(1, f"v_bfi_b32 v{a+j}, v{TMP+1}, s{S_TB+j}, v{a+j}") for j in range(4)]
            va = [V_P1ST, V_P1M, V_P1M + 1, V_P1M + 2][2 * mt + (nt == NT - 1)]
            return L + [(2, (f"buffer_store_dwordx4 {vq(a)}, v{va}, {srd(SWS)}, s{S_P1ST} offen offset:{(4*mt*F + 16*nt)*16} sc1", 'p1'))]
        self.stamp('kv3')
        mf = [(2, f"{MF} {vq(KV + (3+nt)*4)}, {vq(FB+kk*20+4)}, {vq(FB+kk*20+8+4*nt)}, {'0' if kk == 0 else vq(KV + (3+nt)*4)}") for nt in range(NT) for kk in range(4)]
        pr = [(1, lambda n=n, hf=hf: self.wread(200 + n, hf)) for n in range(D - 1) for hf in range(2)]
        self.put([x for _, x in self.weave(mf, [(1, x[1]) for x in ao] + [y for nt in range(NT) for y in pub(0, nt)] + pr)])
        qhead = [y for nt in range(NT) for y in pub(1, nt)]
        self.stamp()
        X = TMP + 8; CK = TMP + 2
        def tagcheck(mask):
            if mask == "0xff":
                L = [f"v_xor_b32 v{X+j}, s{S_TB+j%4}, v{X+j}" for j in range(4 * NI)] + [f"v_or_b32 v{CK}, v{X}, v{X+1}"]
                L += [f"v_or3_b32 v{CK}, v{CK}, v{X+j}, v{X+j+1}" for j in range(2, 4 * NI, 2)]
            else:
                L = [f"v_xor_b32 v{CK}, s{S_NONCE}, v{X}"] + [f"v_bitop3_b32 v{CK}, v{CK}, v{X+j}, s{S_NHI if j % 2 else S_NONCE} bitop3:0xf6" for j in range(1, 4 * NI)]
            return L + [f"v_and_b32 v{CK}, {mask}, v{CK}", f"v_cmp_ne_u32 vcc, 0, v{CK}"]
        lds_ = []
        for ii in range(NI):
            lds_ += [f"s_add_u32 s{T0}, s{S_P1LD}, {ii * (65536 // NI)}", f"buffer_load_dwordx4 {vq(X+4*ii)}, v{V_P1LD}, {srd(SWS)}, s{T0} offen sc1"]
        iss, chk = self.checked("L_h1", lds_, tagcheck("0xff"), 'h1')
        red = [f"v_add_f32 v{X+j}, v{X+j}, v{X+4*ii+j}" for ii in range(1, NI) for j in range(4)]
        red += [f"v_permlane32_swap_b32 v{X}, v{X+2}", f"v_permlane32_swap_b32 v{X+1}, v{X+3}", f"v_add_f32 v{X}, v{X}, v{X+2}", f"v_add_f32 v{X+1}, v{X+1}, v{X+3}",
                f"v_mov_b32 v{CK}, 0xffff", f"v_permlane16_swap_b32 v{X}, v{X+1}", f"v_add_f32 v{X}, v{X}, v{X+1}"]
        if not A: red.append(f"v_add_f32_dpp v{X}, v{X}, v{X} row_ror:8 row_mask:0xf bank_mask:0xf")
        red += [f"v_cvt_pk_bf16_f32 v{X}, v{X}, v{X}", f"v_bfi_b32 v{X}, v{CK}, v{V_VW}, v{X}"]
        st = (f"buffer_store_dword v{X}, v{V_P2ST}, {srd(SWS)}, s{S_P2ST} offen sc1", 'p2')
        sts = [st]
        for _ in range((1 << o.get('p2log', 2)) - 1): sts += [f"s_add_u32 s{S_P2ST}, s{S_P2ST}, {1 << 18}", st]
        red.append(sts if A else ["s_mov_b32 exec_lo, 0x00ff00ff", "s_mov_b32 exec_hi, 0x00ff00ff"] + sts + ["s_mov_b64 exec, -1"])
        n1, n2 = o.get('h1', (62, 84))
        hooks = {n1 + k: iss[2*k:2*k+2] for k in range(NI)}
        if pfp >= 100: hooks.setdefault(pfp - 100, []).extend(ipf)
        for k_, v_ in xq.items(): hooks.setdefault(k_, []).extend(v_)
        c_ = [x for _, x in cpf_]
        pc = o.get('pfchk', 13)
        hooks.setdefault(pc, []).extend(c_[:3]); hooks.setdefault(pc + 1, []).extend(c_[3:4]); hooks.setdefault(pc + 3, []).extend(c_[4:] + [lambda: setattr(self, 'pfok', True)])
        if 200 <= pp_ < 300: hooks.setdefault(pp_ - 200, []).extend(pre)
        qh = deque(qhead)
        for n in range(20): hooks.setdefault(n, []).append(lambda: self.gap(qh, 2))
        for fr_, pubg, rel in o.get('qbar', [(30, 12, [15]), (53, 13, [16]), (66, 14, [17]), (80, 14, [18])]):
            hooks.setdefault(fr_, []).extend([lambda g=pubg: self.group_sync(g)] + [lambda r=r: self.release(r) for r in rel])
        self.gemm_pass(2, ACC_K, xbp(2), fill=chk + [(1, x) for x in red], hooks=hooks, last=True, sync=False, frange=(n2, min(100, n2 + o.get('h1len', 16))),
                       pace=lambda n: 1 if (n >= 9 and n % (o.get('qpace', 3) if n < o.get('qsw', 42) else o.get('qpace2', 3)) == 0 and not n1 <= n < n1 + NI) else 0)
        assert not qh
        p("s_barrier")
        [self.release(r) for r in range(15, 20)]
        self.stamp()
        X = TMP + 96; CK = TMP + 92
        lds_ = [f"buffer_load_dwordx4 {vq(X+4*ii)}, v{V_LIN if ii < NI-1 else V_GAL}, {srd(SWS)}, s{S_P2LD} offen offset:{1024*ii if ii < NI-1 else 0} sc1" for ii in range(NI)]
        iss, chk = self.checked("L_h2", lds_, tagcheck("0xffff"), 'h2')
        zw = [f"v_mov_b32 v{CK}, 0", f"v_mov_b32 v{CK+1}, 0", f"ds_write_b64 v{V_ZA}, {vq(CK, 2)}"]
        self.put(zw)
        for k_ in range(o.get('dirty', 0)):
            p(f"s_add_u32 s{T0}, s{S_OP}, {(9 << 20) + (k_ // 5) * (6 << 20) + (k_ % 5) * 1024}")
            p(f"buffer_store_dwordx4 v[2:5], v{V_LIN}, {srd(SWS)}, s{T0} offen {o.get('dirtyf', '')}")
        if o.get('prepos', 0) == 1: self.put(pre)
        if not A:
            for tt in range(6): p(f"v_accvgpr_write_b32 a{40+4*(3*tt+2)+2}, 0"); p(f"v_accvgpr_write_b32 a{40+4*(3*tt+2)+3}, 0")
        if A:
            P0 = self.phiA_parts(x0, E0, M0_, "L_q0", True); P1 = self.phiA_parts(x1, E1, M1_, "L_q1", True)
            L = P0['cvt'] + self.weave(P0['mf'], P1['cvt'] + P0['exp'][:6]) + self.weave(P1['mf'], P0['exp'][6:]) + P0['norm'] + P0['out'] + P1['exp'] + P1['norm'] + P1['out']
        else:
            L = []
            for x, e in ((x0, E0), (x1, E1)):
                L += self.phiB(x, e, True) + [(1, f"v_mov_b32 v{x+10}, 0"), (1, f"v_mov_b32 v{x+11}, 0")]
        tot = sum(c for c, _ in L); cut = tot - o.get('h2lead', 60)
        c = 0; k = 0
        while k < len(L) and c < cut: c += L[k][0]; k += 1
        self.run(L[:k], every=o.get('qev', 44))
        self.stamp('q0')
        self.flush_dma(('W', 17))
        self.stamp('q1')
        self.put(iss)
        if o.get('prepos', 0) == 0: self.put(pre)
        self.stamp('q2')
        self.run(L[k:], every=o.get('qev', 44))
        self.stamp()
        self.put([x for _, x in chk])
        for ii in range(NI):
            p(f"v_perm_b32 v{X+4*ii}, v{X+4*ii+1}, v{X+4*ii}, s{S_PERM}")
            p(f"v_perm_b32 v{X+4*ii+1}, v{X+4*ii+3}, v{X+4*ii+2}, s{S_PERM}")
            p(f"ds_write_b64 v{V_LA+ii}, {vq(X+4*ii, 2)}", 'kvw')
        p.wait(lg='*')
        p("s_barrier")
        self.stamp()
        assert not self.dq or True
        import copy
        p(f"s_cmp_eq_u32 s{S_FAST}, 0"); p(f"s_cbranch_scc0 L_tail{self.sfx}s")
        env = dict(RS=RS, M0_=M0_, M1_=M1_)
        sv = (self.p, self.sfx, self.nst, getattr(self, 'cs', 0), deque(self.dq))
        self.p = Prog(); self.p.vmq = list(p.vmq); self.p.lgq = list(p.lgq); self.sfx += 's'
        self.p(f"L_tail{self.sfx}:")
        self.tail(False, **env)
        self.ool.append(self.p.finalize())
        self.p, self.sfx, self.nst, self.cs, self.dq = sv
        self.tail(True, **env)
        return p.finalize() + "".join(self.ool)
    def tail(self, fast, RS, M0_, M1_):
        p = self.p; A = self.A; o = self.o; br = 0 if A else 1
        def more(k):
            while k > 0 and rds and len(p.lgq) < 15: self.put([rds.popleft()]); k -= 1
        OA = ACC_V
        NU = 5 if A else 3
        SP = TMP + 112
        if A: p(f"v_mov_b32 v{SP}, v{M0_}"); p(f"v_mov_b32 v{SP+1}, v{M1_}")
        OB = TMP + 64
        LO = TMP + 80
        fr = [(tt, u_) for tt in (5, 0, 1, 2, 3, 4) for u_ in range(NU)]
        AO = 40
        rds = deque()
        for n, (tt, u_) in enumerate(fr):
            if not A and u_ == 2: rds.append((f"ds_read_b64 {aq(AO+4*n, 2)}, v{V_FR2} offset:{4*tt*RS + 16*u_}", ('of', n)))
            else: rds.append((f"ds_read_b128 {aq(AO+4*n)}, v{V_FR2} offset:{4*tt*RS + 16*u_}", ('of', n)))
        more(10)
        def ost(txt, tag='o'):
            p(txt + ("" if fast else " sc1"), tag)
        def flag(k): ost(f"buffer_store_dword v{V_NONCE}, v{V_FOWN}, {srd(SWS)}, s{S_FLAG} offen offset:{32*k}", 'fl')
        def poll(k, name):
            iss, chk = self.checked(name, [f"buffer_load_dword v{V_DUMP}, v{V_F8}, {srd(SWS)}, s{S_FLAG} offen offset:{32*k} sc1"], [f"v_cmp_ne_u32 vcc, s{S_NONCE}, v{V_DUMP}"], name)
            return iss, [x for _, x in chk]
        order = [(0, k) for k in range(5)] + [(1, k) for k in range(5)] + [(0, 5), (1, 5)]
        epi = deque()
        for z, (rt, k) in enumerate(order):
            dn = OA + (rt * 6 + 5) * 4
            b = OA + rt * 24
            rdy = (z + 1) * NU + o.get('rdy', 4)
            if k == 0:
                epi.append((rdy, 1, f"v_fmac_f32 v{dn}, {EPS}, v{SP+rt}" if A else f"v_add_f32 v{dn}, {EPS}, v{dn}")); epi.append((rdy, 2, f"v_rcp_f32 v{dn}, v{dn}"))
                continue
            tt = k - 1
            for r in range(4): epi.append((rdy, 1, f"v_mul_f32 v{b+4*tt+r}, v{b+4*tt+r}, v{dn}"))
            for h in range(2):
                i = 2 * tt + h
                d = OB + ((i // 4) * 2 + rt) * 4 + i % 4 if i < 8 else LO + 2 * rt + (i - 8)
                epi.append((rdy, 1, f"v_cvt_pk_bf16_f32 v{d}, v{b+2*i}, v{b+2*i+1}"))
            if tt in (1, 3):
                u_ = tt // 2
                epi.append((0, 2, lambda u_=u_, rt=rt: ost(f"buffer_store_dwordx4 {vq(OB+(u_*2+rt)*4)}, v{V_OO+rt*2+u_}, {srd(SO)}, s{S_OP} offen", ('S', rt))))
        epi.append((0, 2, lambda: ost(f"buffer_store_dwordx4 {vq(LO)}, v{V_OO+4}, {srd(SO)}, s{S_OP} offen", ('S', 1))))
        LD = o.get('lead', 8); DF = o.get('df', 11); A_RING = A_PHI
        items = [(P, t_, (0, 1)) for P in range(2) for t_ in range(5)] + [(P, t_, (0,)) for P in range(2, 2 + LD) for t_ in range(5)] + \
                [(P, t_, (0, 1)) for P in range(2 + LD, 20) for t_ in range(5)] + [(P, t_, (1,)) for P in range(2, 2 + LD) for t_ in range(5)]
        def fread(i, hf):
            P, t_, _ = items[i]
            if True:
                if hf == 0:
                    off = RING + P * 5120 + 1024 * t_; hi = off >= 51200; s_ = A_RING + (i % DF) * 4
                    p(f"ds_read_b128 a[{s_}:{s_+3}], v{V_LINH if hi else V_LIN} offset:{off - 51200*hi}", ('FF', i))
                return
            off = RING + (P // 4) * SLOT + (P % 4) * 5120 + hf * 2560 + 8 * t_
            hi = off >= 51200; s_ = A_RING + (i % DF) * 4 + 2 * hf
            p(f"ds_read_b64_tr_b16 a[{s_}:{s_+1}], v{V_WT + hi} offset:{off - 51200*hi}", ('FF', i))
        pr = deque((i, 0) for i in range(DF - 1))
        m = 0; mf0 = o.get('mf0', 54 if A else 36); seen = set()
        for rt, k in order:
            for u_ in range(NU):
                n = k * NU + u_; tt = fr[n][0]
                a = OA + (rt * 6 + tt) * 4
                if m == 0: p.wait(lg=[('of', 0)])
                p(f"{MF} {vq(a)}, {aq(AO+4*n)}, {vq(ACC_K+20*rt+4*u_)}, {'0' if u_ == 0 else vq(a)}")
                m += 1
                if n + 1 < len(fr): p.wait(lg=[('of', n + 1)])
                bud = 2 if A else 3
                if m == mf0:
                    assert sum(1 for x in p.ins if x.tag == ('S', 0)) == 2
                    p.wait(vm=[('S', 0)]); flag(0); bud -= 2
                elif rds: more(1); bud -= 1 if not (epi and epi[0][0] <= m and epi[0][1] == 2) else 0
                elif self.dq and m % o.get('opace', 8) == 0: self.tick(); bud -= 2
                elif pr and not (epi and epi[0][0] <= m): fread(*pr.popleft()); bud -= 1
                while epi and epi[0][0] <= m and epi[0][1] <= bud:
                    _, c, x = epi.popleft(); bud -= c
                    self.put([x])
                    if callable(x): break
        while pr: fread(*pr.popleft())
        while len(epi) > 7: self.put([epi.popleft()[2]])
        while self.tick(): pass
        self.stamp()
        def ob(ks, rt):
            if ks < 2: return vq(OB + (ks * 2 + rt) * 4)
            return aq((ks * 2 + rt) * 4) if ks < 16 else vq(LO + (2 * (ks - 16) + rt) * 4)
        def ld(P, rt):
            if P < 16: return [(f"buffer_load_dwordx4 {aq((P*2+rt)*4)}, v{V_OO+rt*2+P%2}, {srd(SO)}, s{S_OP + P//2} offen sc1", ('O', P, rt))]
            return [(f"buffer_load_dwordx4 {vq(LO+(2*(P-16)+rt)*4)}, v{V_OO+4}, {srd(SO)}, s{S_OP + 2*(P-16) + rt} offen sc1", ('O', P, rt))]
        i0, c0 = poll(0, "L_f0"); i1, c1 = poll(1, "L_f1"); i2, c2 = poll(2, "L_d0"); i3, c3 = poll(3, "L_d1")
        L0x = min(16, 2 + LD + o.get('xlead', 0))
        lead = [ld(P, 0) for P in range(2, L0x)]
        rest = [ld(P, rt) for P in range(2 + LD, 20) for rt in range(2) if (P, rt) != (16, 0) and not (rt == 0 and P < L0x)] + [ld(P, 1) for P in range(2, 2 + LD)]
        def handshake():
            p.wait(vm=[('S', 1), ('W', 18), ('W', 19)])
            flag(1)
            self.put(c0)
            self.stamp()
            self.q(0, lead); self.q(10**6 + 50, rest)
            for k_ in range(o.get('oprime', 7)):
                self.tick()
                if k_ == 3: p("s_barrier")
                if k_ == 3 and o.get('p1it', -1) < 0: self.put(i1)
            p.wait(vm=[('O', 2, 0)])
        E0 = len(items) - 5 * LD
        NI_ = len(items)
        def outp(rt):
            b = TMP + 8
            c = self.cvt20(acc(ACC_K, 0, rt), b)
            L = []
            for j in range(5): L += [c[2*j][1], c[2*j+1][1], (f"ds_write_b64 v{V_OW}, {vq(b+2*j, 2)} offset:{rt*16*OUTS + 8*j}", 'ow')]
            L += [(f"ds_read_b128 {vq(TMP+24+4*j)}, v{V_ORD+j} offset:{rt*16*OUTS}", ('or', j)) for j in range(3)]
            S_ = [(f"buffer_store_dwordx4 {vq(TMP+24+4*j)}, v{V_OG+j}, {srd(SOUT)}, s{S_OUT} offen", 'out') for j in range(3)]
            return L, S_
        vw, lw, sc_, vec = {}, {}, {}, {}
        add = lambda d, i, L: d.setdefault(i, []).extend(L)
        def check(i, c, tag, gapn):
            add(vw, i, [tag]); add(vec, i, [c[1]]); add(sc_, i + gapn, [c[2]])
        ep = [x[2] for x in epi]
        add(vec, 1, ep[:3]); add(vec, 2, ep[3:6]); add(vec, 3, ep[6:])
        add(vec, o.get('p0pos', 4), i0)
        add(vec, 9, [handshake])
        if o.get('p1it', -1) >= 0: add(vec, 10 + o.get('p1it', -1), i1)
        ci = 10 + o.get('c1pos', 5); check(ci, c1, "L_f1", 2); add(sc_, ci + 2, [lambda: self.release(50)])
        for i in range(15, NI_, 5):
            Pn, _, rn = items[i]
            tags = [('O', Pn, rt) for rt in rn]
            if Pn >= 16:
                a = LO + 2 * (Pn - 16) * 4
                add(vw, i - 2, tags); add(vec, i - 2, [f"v_swap_b32 v{a+2}, v{a+4}", f"v_swap_b32 v{a+3}, v{a+5}"])
            else: add(vw, i - 1, tags)
        nd0 = E0 - o.get('d0', 8); add(vw, nd0, [('O', 19, 0), ('O', 19, 1)]); add(vec, nd0, [lambda: flag(2)])
        add(vec, E0 + o.get('d0p', 0), i2)
        L0, S0 = outp(0)
        for j, x in enumerate(L0): add(vec, E0 + 2 + j, [x])
        nd1 = NI_ - o.get('d1', 19); add(vw, nd1, [('O', 1 + LD, 1)]); add(vec, nd1, [lambda: flag(3)])
        check(E0 + 22, c2, "L_d0", 2)
        for j, x in enumerate(S0): add(lw, E0 + 25 + 2 * j, [('or', j)]); add(vec, E0 + 25 + 2 * j, [x])
        add(vec, NI_ - o.get('d1p', 4), i3)
        add(sc_, NI_ - 5, [f"s_or_b32 s{T0}, s{S_RB}, s{S_HEAD}"]); add(sc_, NI_ - 4, [f"s_cmp_lg_u32 s{T0}, 0"]); add(sc_, NI_ - 3, [f"s_cselect_b32 s{T0}, {WS_SIZE}, 0"])
        add(vec, NI_ - 2, [(f"buffer_store_dword v{V_NONCE}, v{V_FOWN}, {srd(SWS)}, s{T0} offen offset:{br*128} sc1", 'nn')])
        p.wait(lg=[('FF', 0)])
        clk = 0.0; per = o.get('lper', 4.6)
        for i, (P, t_, rts) in enumerate(items):
            s_ = A_RING + (i % DF) * 4
            for z, rt in enumerate(rts):
                a = acc(ACC_K, t_, rt)
                p(f"{MF} {vq(a)}, {aq(s_)}, {ob(P, rt)}, {'0' if P == 0 else vq(a)}")
                if z == 0:
                    k0 = len(p.ins)
                    for tg in vw.get(i, []): self.flush_dma(tg)
                    p.wait(vm=vw.get(i), lg=[('FF', i + 1)] + lw.get(i, []))
                    if len(rts) == 1: self.put(sc_.get(i, []))
                    if i + DF - 1 < NI_:
                        if len(p.ins) == k0: p("s_nop 0")
                        fread(i + DF - 1, 0)
                else: self.put(sc_.get(i, []))
            self.stamp('z%d' % i)
            if i >= 10:
                clk += len(rts)
                if clk >= per and i not in vec and self.tick(): clk -= per
            self.put(vec.get(i, []))
        self.stamp()
        L1, S1 = outp(1)
        p(f"s_add_u32 s{S_OUT}, s{S_OUT}, {16*2560}")
        self.put(L1[:12]); self.put(c3[:2]); self.put(L1[12:]); self.put(c3[2:])
        for j in range(3): p.wait(lg=[('or', j)]); self.put([S1[j]])
        if o.get('stamps'):
            p("s_waitcnt vmcnt(0)")
            self.stamp()
            p("s_memrealtime s[100:101]")
            p("s_waitcnt lgkmcnt(0)")
            p.raw(f"""
            s_lshl_b32 s{T0}, s2, 2
            s_add_u32 s{T0}, s{T0}, s{S_W}
            s_lshl_b32 s{T0}, s{T0}, 6
            s_add_u32 s{T0}, s{T0}, {WS_ST}
            v_mov_b32 v{TMP+16}, 0
            v_mov_b32 v{TMP}, s98
            v_mov_b32 v{TMP+1}, s100
            """)
            for k in range(14): p(f"v_mov_b32 v{TMP+2+k}, {'s%d' % (S_ST+k) if k < self.nst else ('s95' if k == 13 else 0)}")
            p("s_mov_b64 exec, 1")
            for k in range(4): p(f"buffer_store_dwordx4 {vq(TMP+4*k)}, v{TMP+16}, {srd(SWS)}, s{T0} offen offset:{16*k}")
        if o.get('amp'):
            p("s_waitcnt vmcnt(0)")
            self.stamp()
            if o['amp'][0] < 0: p("s_mov_b32 s100, s98")
            p.raw(f"""
            s_and_b32 s{T0}, s2, 7
            s_lshr_b32 s{T0}, {o['amp'][2]}, s{T0}
            s_bitcmp1_b32 s{T0}, 0
            s_cbranch_scc0 L_ampx{self.sfx}
            s_load_dwordx2 s[62:63], s[0:1], 64
            v_mov_b32 v2, 0
            s_waitcnt lgkmcnt(0)
            global_load_dword v3, v2, s[62:63] sc1
            s_waitcnt vmcnt(0)
            v_readfirstlane_b32 s{T2}, v3
            s_not_b32 s{T2}, s{T2}
            s_sub_u32 s{T0}, s100, s{T2}
            s_add_u32 s{T0}, s{T0}, 300
            s_mul_i32 s{T0}, s{T0}, {o['amp'][1]}
            s_min_u32 s{T0}, s{T0}, 100000
            L_amp{self.sfx}:
            s_sleep 2
            s_memrealtime s[64:65]
            s_waitcnt lgkmcnt(0)
            s_sub_u32 s{T1}, s64, s{T2}
            s_cmp_lt_u32 s{T1}, s{T0}
            s_cbranch_scc1 L_amp{self.sfx}
            L_ampx{self.sfx}:
            """)
        p("s_endpgm")
        assert not self.dq

def sizes(lines):
    import subprocess, re
    src = '.amdgcn_target "amdgcn-amd-amdhsa--gfx950"\n.text\n' + "\n".join(lines) + "\n"
    r = subprocess.run(["llvm-mc", "-triple=amdgcn-amd-amdhsa", "-mcpu=gfx950", "-show-encoding"], input=src, capture_output=True, text=True)
    assert r.returncode == 0, r.stderr[:2000]
    return [len(m.split(',')) for m in re.findall(r'encoding: \[([^\]]*)\]', r.stdout)]
def add_hops(text, sfx, align=True):
    lines = text.split("\n")
    i0 = lines.index(f"L_main{sfx}:"); i1 = next(i for i in range(i0, len(lines)) if lines[i].strip() == "s_endpgm")
    body = lines[i0 + 1:i1]
    isi = lambda l: l.startswith("    ")
    szl = sizes([l for l in body if isi(l)])
    insl = [l.strip() for l in body if isi(l)]
    big = [z == 8 and t.startswith("v_") and not t.startswith("v_mfma") for z, t in zip(szl, insl)]
    run = [0] * (len(big) + 1)
    for k in range(len(big) - 1, -1, -1): run[k] = run[k + 1] + 1 if big[k] else 0
    sz = iter(szl); k = -1; nfix = 0
    out = []; addr = 0; page = 0; prev = "v_mfma"
    for l in body:
        if isi(l):
            k += 1
            if align and run[k] >= 3 and addr % 8 == 4:
                pv = out[-1] if isinstance(out[-1], str) else ""
                op = pv.split()[0] if pv.strip() else ""
                if isi(pv) and szl[k - 1] == 4 and op.startswith("v_") and not op.startswith(("v_cmp", "v_swap", "v_permlane", "v_readfirst")):
                    out[-1] = pv.replace(op, op + "_e64", 1); addr += 4; nfix += 1
                elif run[k] >= 6: out.append("    s_nop 0"); addr += 4; nfix += 1
            off = addr - page * 4096
            if off >= 0 and (prev.startswith("v_mfma") or off >= 40) and not prev.startswith("s_mov_b64 exec") :
                out.append(("hop", page)); addr += 4; page += 1
            addr += next(sz); prev = l.strip()
        out.append(l)
    assert page >= 4
    res = []
    for x in out:
        if isinstance(x, tuple):
            k = x[1]
            res += [f"L_hop{k}{sfx}:", f"    s_cbranch_execz " + (f"L_hop{k+4}{sfx}" if k + 4 < page else f"L_hopret{sfx}")]
        else: res.append(x)
    print(sfx, "main bytes", addr, "align fixes", nfix, file=sys.stderr)
    return "\n".join(lines[:i0 + 1] + res + lines[i1:])

def build(opt):
    ref = open(f"cdna_kernels/{NAME}.s.ref").read().split("\n")
    head = [l for l in ref if l.startswith(";") and "@launch" not in l]
    s = "\n".join(head) + "\n; @launch grid=(256,1,1) block=(256,1,1) lds=163840\n"
    s += f""".amdgcn_target "amdgcn-amd-amdhsa--gfx950"
.text
.globl {NAME}_kernel
.p2align 12
.p2align 8
.type {NAME}_kernel,@function
{NAME}_kernel:
    s_cmp_ge_u32 s2, 256
    s_cbranch_scc1 L_exit
"""
    ga = Gen(True, opt); ta = ga.body(); gb = Gen(False, opt); tb = gb.body()
    ca, ra = ta.split(".split\n"); cb, rb = tb.split(".split\n")
    assert ca == cb
    if opt.get('hops', 1): ra = add_hops(ra, 'A', opt.get('align', 1)); rb = add_hops(rb, 'B', opt.get('align', 1))
    s += ca + ra + "L_exit:\n    s_endpgm\n.p2align 12\n" + rb
    s += ".fill 2048, 4, 0xbf810000\n"
    s += f""".section .rodata,"a"
.p2align 6
.amdhsa_kernel {NAME}_kernel
  .amdhsa_next_free_vgpr 512
  .amdhsa_next_free_sgpr 102
  .amdhsa_accum_offset 256
  .amdhsa_group_segment_fixed_size 0
  .amdhsa_kernarg_size 80
  .amdhsa_user_sgpr_count 2
  .amdhsa_user_sgpr_kernarg_segment_ptr 1
  .amdhsa_system_sgpr_workgroup_id_x 1
.end_amdhsa_kernel
"""
    print("nops", ga.p.nops, gb.p.nops, "instrs", len(ga.p.ins), len(gb.p.ins), "autow", getattr(ga.p, 'autow', 0), file=sys.stderr)
    return s

if __name__ == "__main__":
    import json
    opt = json.loads(sys.argv[2]) if len(sys.argv) > 2 else {}
    open(sys.argv[1], "w").write(build(opt))
```

```python
import sys
from collections import deque
from emit import Prog
NAME = "concat_heads__linear_kernel_hedgehog__linear_attn_block__prompt"

S_RB, S_HG, S_W = 4, 5, 7
SX, SW, SWO, SWS, SOUT, SPHI = 8, 12, 16, 20, 24, 28
S_NONCE = 32
S_WROW = 33
S_XBASE, S_XU = 38, 39
S_LW, S_LR = 40, 41
T0, T1, T2, T3 = 42, 43, 44, 45
S_WOROW = 46
S_HEAD = 51
S_SPIN = 52
S_FAST = 53
S_L2E, S_NL2E = 54, 55
S_OB = 56
S_WS, S_XS = 57, 58
S_FLAG = 59
S_OP = 60
S_P1ST, S_P1LD, S_P2ST, S_P2LD, S_OWN, S_OUT, S_XCCV, S_PERM = 68, 69, 70, 71, 72, 73, 74, 75
S_KA = 76
S_ST = 76
import os
if os.environ.get('PRO'): S_ST = 88
def srd(b): return f"s[{b}:{b+3}]"
V_LANE = 1
V_WO = 2; V_OF = 7; V_OL = 12; V_XO = 17; V_XR = 21; V_WT = 23; V_LIN = 25
V_PW, V_VW, V_KB, V_KA0, V_KA1, V_FR = 26, 27, 28, 29, 30, 31
ACC_K, ACC_V = 32, 72
TMP = 112
PV = 228
V_P1ST, V_P1LD, V_P2ST, V_GAL, V_LA, V_FR2, V_KEEP, V_ONE, V_OW, V_ORD, V_OG, V_F8, V_DUMP, V_ZA = PV, PV+1, PV+2, PV+3, PV+4, PV+8, PV+9, PV+10, PV+11, PV+12, PV+17, PV+22, PV+23, PV+24
V_L128, V_NONCE, V_FOWN = PV + 25, PV + 26, PV + 27
RING = 0; SLOT = 20480; RBASE = 102400; RW = 15360
OUTL = RBASE + 16384; OUTS = 176
WS_FLAG, WS_XCC, WS_P2, WS_P1, WS_O, WS_ST = 4096, 32768, 5 << 20, 1 << 20, 8 << 20, 16 << 20
WS_SIZE = 32 << 20
D = 6
A_RING = 220
A_PHI = 160
A_PARK = 244
V_OO = 7; V_LINH = 12; V_PF = 13; V_P1M = 14
WS_PF = 49152; WS_PK = 6 << 20
S_USRC, S_UDST, S_UFL, S_UTAG, S_PFL, S_XA = 3, 6, 72, 90, 91, 93
S_TB = SX
S_NHI = 38
SO = SPHI
SPIN_MAX = 20000
EPS = "0x358637bd"

def vq(b, n=4): return f"v[{b}:{b+n-1}]"
def aq(b, n=4): return f"a[{b}:{b+n-1}]"
def acc(base, t, rt): return base + (rt * 5 + t) * 4
MF = "v_mfma_f32_16x16x32_bf16"

DEF = {'A': dict(xpos=(117, 190, 222), qpace=4, pfpos=101, pfchk=28, prokeep=4, proev=120, h1=(50, 78), h1len=8, h2lead=120, kpace=4, hx=30, vsync=1, qev=26), 'B': dict(xpos=(117, 190, 222), upos=(18, 18, 62), pfpos=101, pfchk=28, h1=(50, 70), h1len=5, h2lead=80, prepos=290, vpace=4, qev=24, vsync=1)}
class Gen:
    def __init__(self, isA, opt):
        self.A = isA
        sf = 'A' if isA else 'B'
        opt = dict(DEF[sf], **opt)
        opt.update({k[:-1]: v for k, v in opt.items() if k.endswith(sf)})
        self.o = opt
        self.p = Prog(); self.sfx = 'A' if isA else 'B'
        self.F = 40 if isA else 20
        self.nst = 0
        self.dq = deque()
        self.pos = 0
        self.ool = []
    def stamp(self, name=None):
        p = self.p
        fine = self.o.get('fine')
        if fine:
            if name is None: self.cs = getattr(self, 'cs', 0) + 1; name = 's%d' % (self.cs - 1)
            if name not in fine: return
        elif name is not None: return
        if self.o.get('amp'):
            if self.nst == self.o['amp'][0]:
                p("s_memrealtime s[100:101]"); p("s_waitcnt lgkmcnt(0)")
            self.nst += 1
            return
        if not self.o.get('stamps'): return
        p(f"s_memrealtime s[100:101]" if self.o.get('rt') else f"s_memtime s[100:101]")
        p("s_waitcnt lgkmcnt(0)")
        p(f"s_sub_u32 s{S_ST+self.nst}, s100, {'s98' if self.o.get('rt') else 's96'}")
        self.nst += 1
    def put(self, L):
        for x in L:
            if isinstance(x, tuple): self.p(x[0], x[1])
            elif isinstance(x, list): self.put(x)
            elif callable(x): x()
            else: self.p(x)
    def dma_w(self, G):
        g = G % 5
        pre = [f"s_add_u32 m0, s{S_LW}, {RING + g*SLOT}"]
        if G < 15:
            col = {0: 1280, 1: 2560, 2: 0}[G // 5]
            gr = 4 - g if G // 5 in self.o.get('rev', [1, 2]) else g
            pre.append(f"s_add_u32 s{S_WS}, s{S_WROW+gr}, {col}"); so = f"s{S_WS}"; sd = SW; vo = V_WO
        else:
            items = []
            for j in range(5):
                off = f"offset:{j*1024} " if 0 < j < 4 else ""
                L = (pre if j == 0 else []) + [(f"buffer_load_dwordx4 v{V_LIN}, {srd(SWS)}, s{S_WOROW+g} offen {off}sc1 lds", ('W', G))]
                if j == 3: L += [f"s_add_u32 m0, s{S_LW}, {RING + g*SLOT + 4096}", f"s_add_u32 s{S_WOROW+g}, s{S_WOROW+g}, 4096"]
                items.append(L)
            return items
        items = []
        if G // 5 in self.o.get('fake', []):
            base = (G % 5) * 4 * 5120 + (G // 5 if G < 15 else 0) * 819200
            pre = [pre[0], f"s_add_u32 s{S_WS}, s94, {base}"]
            for j in range(5):
                off = f"offset:{j*1024} " if 0 < j < 4 else ""
                L = (pre if j == 0 else []) + [(f"buffer_load_dwordx4 v{V_LIN}, {srd(sd)}, s{S_WS} offen {off}lds", ('W', G))]
                if j == 3: L += [f"s_add_u32 m0, s{S_LW}, {RING + g*SLOT + 4096}", f"s_add_u32 s{S_WS}, s{S_WS}, 4096"]
                items.append(L)
            return items
        for j in range(5):
            off = f"offset:{j*1024} " if 0 < j < 4 else ""
            L = (pre if j == 0 else []) + [(f"buffer_load_dwordx4 v{vo+j}, {srd(sd)}, {so} offen {off}lds", ('W', G))]
            if j == 3: L.append(f"s_add_u32 m0, s{S_LW}, {RING + g*SLOT + 4096}")
            items.append(L)
        return items
    def dma_x(self, pu):
        items = []
        for j in range(4):
            off = f"offset:{j*1024} " if j else ""
            L = []
            if j == 0: L += [f"s_add_u32 m0, s{S_LR}, {(pu % 3) * 4096}", f"s_add_u32 s{S_XS}, s{S_XU}, s{S_XBASE}"]
            L.append((f"buffer_load_dwordx4 v{V_XO+j}, {srd(SX)}, s{S_XS} offen {off}lds", ('X', pu)))
            if j == 0: L += [f"s_add_u32 s{S_XU}, s{S_XU}, 128"]
            if j == 1: L += [f"s_cmp_eq_u32 s{S_XU}, 1280", f"s_cselect_b32 s{S_XU}, 0, s{S_XU}"]
            items.append(L)
        return items
    def q(self, earliest, items):
        for it in items: self.dq.append((earliest, it))
    def release(self, k):
        self.dq = deque((0 if e == 10**6 + k else e, it) for e, it in self.dq)
    def tick(self):
        if self.dq and not getattr(self, 'pfok', False) and any(isinstance(x, tuple) and x[1] == ('W', 15) for x in self.dq[0][1]): return False
        if self.dq and self.dq[0][0] <= self.pos:
            self.put(self.dq.popleft()[1]); return True
        return False
    def flush_dma(self, tag):
        def has():
            return any(isinstance(x, tuple) and x[1] == tag for _, it in self.dq for x in it)
        while has():
            assert self.dq[0][0] <= self.pos, (tag, self.pos, self.dq[0])
            self.put(self.dq.popleft()[1])
    def run(self, L, every=30):
        c = 0
        for cost, x in L:
            self.put([x]); c += cost
            if c >= every: c = 0; self.tick()
    def wread(self, N, hf):
        G = N // 20; ks = (N % 20) // 5; t = N % 5
        off = RING + (G % 5) * SLOT + ks * 5120 + hf * 2560 + 8 * t
        hi = off >= 51200
        s = A_RING + (N % D) * 4 + 2 * hf
        if G // 5 in self.o.get('fake', []):
            if hf == 0:
                off = RING + (G % 5) * SLOT + ks * 5120 + 1024 * t
                hi = off >= 51200
                self.p(f"ds_read_b128 a[{s}:{s+3}], v{226 + hi} offset:{off - 51200*hi}", ('F', N))
            return
        self.p(f"ds_read_b64_tr_b16 a[{s}:{s+1}], v{V_WT + hi} offset:{off - 51200*hi}", ('F', N))
    def group_sync(self, G):
        self.flush_dma(('W', G))
        self.p.wait(vm=[('W', G)])
        self.p("s_barrier")
    def xread(self, pu, k):
        ksub, rt = divmod(k, 2)
        if k == 0:
            self.flush_dma(('X', pu)); self.p.wait(vm=[('X', pu)])
        a = ((2 * pu + ksub) * 2 + rt) * 4
        self.p(f"ds_read_b128 {aq(a)}, v{V_XR+ksub} offset:{(pu % 3)*4096 + rt*2048}", ('XR', pu))
    def prime(self, ps, sync=True):
        if sync: self.group_sync(ps * 5)
        for n in range(D - 1):
            self.wread(ps * 100 + n, 0); self.wread(ps * 100 + n, 1)
    def gemm_pass(self, ps, accb, bop, fill=None, hooks=None, last=False, pace=None, sync=True, frange=(0, 100), hooks0=None):
        p = self.p
        fill = deque(fill or []); hooks = hooks or {}; hooks0 = hooks0 or {}
        N0 = ps * 100
        p.wait(lg=[('F', N0), ('XR', 0)])
        pace = pace or (lambda n: 0)
        for n in range(100):
            self.pos = N0 + n
            ks, t = divmod(n, 5)
            s = A_RING + ((N0 + n) % D) * 4
            M = n + D - 1
            look = M < 100 or not last
            a = acc(accb, t, 0)
            p(f"{MF} {vq(a)}, {aq(s)}, {bop(ks, 0)}, {'0' if ks == 0 else vq(a)}")
            k0 = len(p.ins)
            if n < 99:
                tg = [('F', N0 + n + 1)]
                if ps == 0 and (n + 1) % 10 == 0: tg.append(('XR', (n + 1) // 10))
                p.wait(lg=tg)
            if n in hooks0: self.put(hooks0[n])
            if look:
                if M % 20 == 0 and sync: self.group_sync((N0 + M) // 20)
                if len(p.ins) == k0: p("s_nop 0")
                self.wread(N0 + M, 0); self.wread(N0 + M, 1)
                if ps in self.o.get('fake', []) and fill and n >= frange[0] and not isinstance(fill[0][1], tuple): self.gap(fill, 1 if fill[0][0] < 2 or n % 2 else 2)
            elif fill and n >= frange[0]: self.gap(fill, 2)
            a = acc(accb, t, 1)
            p(f"{MF} {vq(a)}, {aq(s)}, {bop(ks, 1)}, {'0' if ks == 0 else vq(a)}")
            self.pos = N0 + n + 1
            self.stamp('n%d' % (N0 + n))
            did = 0
            for _ in range(pace(n)): did += self.tick()
            if n in hooks: self.put(hooks[n])
            if fill and n >= frange[0]:
                left = sum(c for c, _ in fill)
                gaps = sum(1 for k in range(n, frange[1]) if not pace(k)) + (min(D - 1, 99 - n) if last and frange[1] == 100 else 0)
                bud = 0 if did else 2
                if left > (3 if ps in self.o.get('fake', []) else 2) * gaps: bud += 2
                if ps == 2 and left > 4 * gaps: bud = -(-left // max(gaps, 1))
                self.gap(fill, bud)
        while fill: self.put([fill.popleft()[1]])
        self.pos = N0 + 100
    def gap(self, fill, bud):
        first = True
        while fill:
            c, x = fill[0]
            solo = isinstance(x, tuple)
            if c > bud or (solo and not first): break
            fill.popleft(); self.put([x]); bud -= c
            if solo: break
            if c: first = False
    def cvt20(self, src, dst):
        return [(1, f"v_cvt_pk_bf16_f32 v{dst+i}, v{src+2*i}, v{src+2*i+1}") for i in range(10)]
    def phiA_parts(self, x, e, m, name, isq):
        P = {}
        kb = e + 28
        P['cvt'] = self.cvt20(x, kb) + [(1, f"v_mov_b32 v{kb+10}, 0"), (1, f"v_mov_b32 v{kb+11}, 0")]
        P['mf'] = [(2, f"{MF} {vq(x+4*t)}, {aq(A_PHI + (t*3+u)*4)}, {vq(kb+4*u)}, {'0' if u == 0 else vq(x+4*t)}") for t in range(5) for u in range(3)]
        P['exp'] = [(2, f"v_exp_f32 v{e+i}, v{x+i}") for i in range(20)] + [(2, f"v_exp_f32 v{e+20+i}, -v{x+i}") for i in range(20)]
        def sums():
            L = [f"v_pk_add_f32 v[{m+2*h}:{m+2*h+1}], v[{e+20*h}:{e+20*h+1}], v[{e+20*h+2}:{e+20*h+3}]" for h in range(2)]
            L += [f"v_pk_add_f32 v[{m+2*h}:{m+2*h+1}], v[{m+2*h}:{m+2*h+1}], v[{e+20*h+2*i}:{e+20*h+2*i+1}]" for i in range(2, 10) for h in range(2)]
            L += [f"v_add_f32 v{m+2*h}, v{m+2*h}, v{m+2*h+1}" for h in range(2)]
            return L
        nm = name + self.sfx
        L = sums() + [f"v_max_f32 v{m+1}, v{m}, v{m+2}", f"v_cmp_ngt_f32 vcc, 0x5d800000, v{m+1}"]
        if not isq: L.append(f"v_rcp_f32 v{m+4}, v{m}")
        L += [f"v_rcp_f32 v{m+2}, v{m+2}", [f"s_cbranch_vccnz {nm}_slow", f"{nm}_back:"]]
        o = Prog()
        o(f"{nm}_slow:")
        o(f"v_max3_f32 v{m}, v{x}, v{x+1}, v{x+2}"); o(f"v_min3_f32 v{m+1}, v{x}, v{x+1}, v{x+2}")
        for i in range(3, 19, 2):
            o(f"v_max3_f32 v{m}, v{m}, v{x+i}, v{x+i+1}"); o(f"v_min3_f32 v{m+1}, v{m+1}, v{x+i}, v{x+i+1}")
        o(f"v_max_f32 v{m}, v{m}, v{x+19}"); o(f"v_min_f32 v{m+1}, v{m+1}, v{x+19}")
        for i in range(20): o(f"v_sub_f32 v{e+i}, v{x+i}, v{m}"); o(f"v_sub_f32 v{e+20+i}, v{m+1}, v{x+i}")
        for i in range(40): o(f"v_exp_f32 v{e+i}, v{e+i}")
        for y in sums(): o(y)
        if not isq: o(f"v_rcp_f32 v{m+4}, v{m}")
        o(f"v_rcp_f32 v{m+2}, v{m+2}"); o("s_nop 1"); o(f"s_branch {nm}_back")
        self.ool.append(o.finalize())
        if isq: L.append(f"v_mul_f32 v{m+2}, v{m+2}, v{m}")
        else: L += [f"v_pk_mul_f32 v[{e+2*i}:{e+2*i+1}], v[{e+2*i}:{e+2*i+1}], v[{m+4}:{m+5}] op_sel_hi:[1,0]" for i in range(10)]
        L += [f"v_pk_mul_f32 v[{e+20+2*i}:{e+21+2*i}], v[{e+20+2*i}:{e+21+2*i}], v[{m+2}:{m+3}] op_sel_hi:[1,0]" for i in range(10)]
        P['norm'] = [(1, y) for y in L]
        P['out'] = [(1, f"v_cvt_pk_bf16_f32 v{x+i}, v{e+2*i}, v{e+2*i+1}") for i in range(20)]
        return P
    def weave(self, mf, va, per=2):
        va = deque(va); L = []
        for x in mf:
            L.append(x); b = per
            while va and va[0][0] <= b: b -= va[0][0]; L.append(va.popleft())
        return L + list(va)
    def phiB(self, x, e, packed):
        L = []
        if packed: L += [(1, f"v_pk_mul_f32 v[{e+2*i}:{e+2*i+1}], v[{x+2*i}:{x+2*i+1}], s[{S_L2E}:{S_NL2E}] op_sel_hi:[1,0]") for i in range(10)]
        else: L += [(1, f"v_mul_f32 v{e+i}, s{S_L2E}, v{x+i}") for i in range(20)]
        L += [(2, f"v_exp_f32 v{e+i}, v{e+i} clamp") for i in range(20)]
        L += [(1, f"v_max_f32 v{x+i}, {EPS}, v{x+i}") for i in range(20)]
        if packed: L += [(1, f"v_pk_add_f32 v[{e+2*i}:{e+2*i+1}], v[{e+2*i}:{e+2*i+1}], v[{x+2*i}:{x+2*i+1}]") for i in range(10)]
        else: L += [(1, f"v_add_f32 v{e+i}, v{e+i}, v{x+i}") for i in range(20)]
        L += self.cvt20(e, x)
        return L
    def checked(self, name, loads, check, tag):
        nm = name + self.sfx
        iss = [(x, tag) if x.startswith('buffer') else x for x in loads]
        chk = [(0, lambda: self.p.wait(vm=[tag]))] + [(1, x) for x in check] + [(1, [f"s_cbranch_vccnz {nm}_retry", f"{nm}_ok:"])]
        o = Prog()
        o(f"{nm}_retry:"); o(f"s_mov_b32 s{S_SPIN}, 0"); o(f"{nm}_loop:")
        if self.o.get('stamps'): o(f"s_add_u32 s95, s95, {dict(L_xc=1000000, L_h1=10000, L_h2=1000, L_pf=10000000, L_f0=1, L_f1=100, L_d0=0, L_d1=100000)[name]}")
        bk = self.o.get('backoff', {}).get(name, 0)
        if bk: o(f"s_sleep {bk}")
        for x in loads: o(x)
        o("s_waitcnt vmcnt(0)")
        for x in check: o(x)
        o(f"s_cbranch_vccz {nm}_ok")
        o(f"s_add_u32 s{S_SPIN}, s{S_SPIN}, 1"); o(f"s_cmp_lt_u32 s{S_SPIN}, {SPIN_MAX}"); o(f"s_cbranch_scc1 {nm}_loop")
        o(f"s_branch {nm}_ok")
        self.ool.append(o.finalize())
        return iss, chk
    def body(self):
        p = self.p; A = self.A; F = self.F; br = 0 if A else 1; o = self.o
        t = TMP
        K = S_KA
        kx, kw, kout, kws = K, K + 2, K + 8, K + 10
        kphi, kwo = (K + 4, K + 6) if A else (None, K + 4)
        p.raw(f"""
        s_andn2_b32 s{T0}, 1, s2
        s_lshl_b32 s{T0}, s{T0}, 5
        s_load_dwordx8 s[{K}:{K+7}], s[0:1], s{T0}
        s_load_dwordx2 s[{kout}:{kout+1}], s[0:1], 56
        s_load_dwordx2 s[{kws}:{kws+1}], s[0:1], 72
        """)
        if o.get('stamps'): p("s_memtime s[96:97]"); p("s_mov_b32 s95, 0")
        if o.get('stamps') or o.get('amp'): p("s_memrealtime s[98:99]")
        p.raw(f"""
        s_getpc_b64 s[60:61]
        L_pc:
        s_bfe_u32 s{S_HG}, s2, 0x30003
        v_and_b32 v{V_LANE}, 63, v0
        v_lshrrev_b32 v{t}, 6, v0
        s_bitcmp0_b32 s2, 0
        s_cselect_b32 s{T1}, L_setupB-L_setupA, 0
        s_lshl_b32 s{T0}, s{S_HG}, 12
        v_lshlrev_b32 v{V_L128}, 7, v{V_LANE}
        v_readfirstlane_b32 s{S_W}, v{t}
        s_add_u32 s{T0}, s{T0}, s{T1}
        s_add_u32 s{T0}, s{T0}, L_setupA-L_pc
        s_add_u32 s60, s60, s{T0}
        s_addc_u32 s61, s61, 0
        v_lshl_add_u32 v{t+1}, v{t}, 10, v{V_L128}
        s_mov_b64 exec, 0xff
        """)
        p(f"global_load_dword v{V_DUMP}, v{t+1}, s[60:61]", 'cpf')
        p("s_mov_b64 exec, -1")
        ra, rbm, rdiv = o.get('rot', (10, 10, 4))
        p.raw(f"""
        s_and_b32 s{S_RB}, s2, 6
        s_lshl_b32 s{S_RB}, s{S_RB}, 1
        s_lshr_b32 s{T0}, s2, 6
        s_add_u32 s{S_RB}, s{S_RB}, s{T0}
        s_mul_i32 s{T0}, s{S_HG}, {ra}
        s_mul_i32 s{T1}, s{S_RB}, {rbm}
        s_add_u32 s{T0}, s{T0}, s{T1}
        s_lshr_b32 s{T0}, s{T0}, {rdiv.bit_length()-1}
        s_mul_i32 s{T1}, s{T0}, 6554
        s_lshr_b32 s{T1}, s{T1}, 16
        s_mul_i32 s{T1}, s{T1}, 10
        s_sub_u32 s{T3}, s{T0}, s{T1}
        s_lshl_b32 s{S_XU}, s{T3}, 7
        s_lshl_b32 s{T0}, s{S_RB}, 2
        s_add_u32 s{T0}, s{T0}, s{S_W}
        s_mul_i32 s{S_XBASE}, s{T0}, 40960
        s_mul_i32 s{S_LW}, s{S_W}, 5120
        s_mul_i32 s{S_LR}, s{S_W}, {RW}
        s_add_u32 s{S_LR}, s{S_LR}, {RBASE}
        v_lshrrev_b32 v{t}, 3, v{V_LANE}
        v_mul_u32_u24 v{t}, 1280, v{t}
        v_lshrrev_b32 v{t+1}, 4, v{V_LANE}
        v_xor_b32 v{t+1}, v{t+1}, v{V_LANE}
        v_and_b32 v{t+1}, 7, v{t+1}
        v_lshl_add_u32 v{V_XO}, v{t+1}, 4, v{t}
        v_xor_b32 v{t+2}, 64, v{V_XO}
        v_add_u32 v{V_XO+1}, {9216}, v{t+2}
        v_add_u32 v{V_XO+2}, {2*9216}, v{V_XO}
        v_add_u32 v{V_XO+3}, {3*9216}, v{t+2}
        s_lshr_b32 s{T0}, s{S_W}, 1
        s_add_u32 s{T0}, s{T0}, s{T3}
        s_and_b32 s{T1}, s{S_W}, 1
        s_mul_i32 s{T1}, s{T1}, {32*3840}
        s_mul_i32 s{T2}, s{S_HG}, 160
        s_add_u32 s{T1}, s{T1}, s{T2}
        s_mov_b32 s{SX+2}, 2621440
        s_mov_b32 s{SX+3}, 0x20000
        s_mov_b32 s{SW+2}, 2457600
        s_mov_b32 s{SW+3}, 0x20000
        """)
        def wrow(g):
            p.raw(f"""
            s_cmp_ge_u32 s{T0}, 10
            s_cselect_b32 s{T2}, 10, 0
            s_sub_u32 s{T0}, s{T0}, s{T2}
            s_mul_i32 s{T2}, s{T0}, {64*3840}
            s_add_u32 s{S_WROW+g}, s{T2}, s{T1}
            s_add_u32 s{T0}, s{T0}, 2
            """)
        wrow(0)
        RH = TMP + 10
        def woff(j):
            b = RH + 5 * j
            p.raw(f"""
            v_add_u32 v{t}, {64*j}, v{V_LANE}
            v_mul_u32_u24 v{b+4}, 6554, v{t}
            v_lshrrev_b32 v{b+4}, 16, v{b+4}
            v_mul_u32_u24 v{t+2}, 10, v{b+4}
            v_sub_u32 v{b+3}, v{t}, v{t+2}
            v_bfe_u32 v{b}, v{b+4}, 2, 2
            v_lshrrev_b32 v{b+1}, 4, v{b+4}
            v_and_b32 v{b+2}, 3, v{b+4}
            v_lshl_add_u32 v{t}, v{b}, 1, v{b+1}
            v_lshl_add_u32 v{t}, v{t}, 2, v{b+2}
            v_mul_u32_u24 v{t}, 3840, v{t}
            v_lshl_add_u32 v{V_WO+j}, v{b+3}, 4, v{t}
            """)
            if 0 < j < 4: p(f"v_subrev_u32 v{V_WO+j}, {1024*j}, v{V_WO+j}")
        if o.get('fake'):
            p.raw(f"""
            s_mul_i32 s94, s{S_HG}, 102400
            s_add_u32 s94, s94, s{S_LW}
            v_lshlrev_b32 v{V_LIN}, 4, v{V_LANE}
            v_mov_b32 v226, v{V_LIN}
            v_add_u32 v227, 51200, v{V_LIN}
            """)
        woff(0); woff(1)
        if o.get('pre0'): p("s_memtime s[92:93]")
        p.raw(f"""
        s_waitcnt lgkmcnt(0)
        s_mov_b32 s{SX}, s{kx}
        s_mov_b32 s{SX+1}, s{kx+1}
        s_mov_b32 s{SW}, s{kw}
        s_mov_b32 s{SW+1}, s{kw+1}
        """)
        self.stamp('p0')
        if o.get('pre0'): p(f"s_sub_u32 s{S_ST+self.nst}, s92, s96"); self.nst += 1
        self.put(self.dma_x(0))
        w0 = self.dma_w(0)
        self.put(w0[0:2]); woff(2); self.put(w0[2]); woff(3); self.put(w0[3]); woff(4); self.put(w0[4])
        self.stamp('p1')
        if o.get('prowait'):
            p.wait(vm=['cpf']); self.stamp('p2')
            p.wait(vm=[('X', 0)]); self.stamp('p3')
            p.wait(vm=[('W', 0)]); self.stamp('p4')
        p("s_bitcmp0_b32 s2, 0"); p("s_cbranch_scc1 L_setupB")
        p(".split")
        p(f"L_setup{self.sfx}:")
        p(f"s_load_dword s{S_NONCE}, s[{kws}:{kws+1}], {br*128}")
        if not A:
            p(f"s_load_dword s{S_UTAG}, s[{kws}:{kws+1}], 0")
            p(f"s_load_dwordx2 s[{K+6}:{K+7}], s[0:1], 24")
        for g in range(1, 5): wrow(g)
        self.q(0, self.dma_x(1))
        p.raw(f"""
        s_mov_b32 s{SWS}, s{kws}
        s_mov_b32 s{SWS+1}, s{kws+1}
        s_mov_b32 s{SWS+2}, {WS_SIZE}
        s_mov_b32 s{SWS+3}, 0x20000
        s_mov_b32 s{SOUT}, s{kout}
        s_mov_b32 s{SOUT+1}, s{kout+1}
        s_mov_b32 s{SOUT+2}, 5242880
        s_mov_b32 s{SOUT+3}, 0x20000
        s_lshl_b32 s{S_HEAD}, s{S_HG}, 2
        s_add_u32 s{S_HEAD}, s{S_HEAD}, s{S_W}
        v_lshlrev_b32 v{V_LIN}, 4, v{V_LANE}
        """)
        if A:
            p.raw(f"""
            s_mov_b32 s{SPHI}, s{kphi}
            s_mov_b32 s{SPHI+1}, s{kphi+1}
            s_mov_b32 s{SPHI+2}, 25600
            s_mov_b32 s{SPHI+3}, 0x20000
            """)
            self.q(0, [[f"s_mul_i32 s{S_WS}, s{S_HEAD}, 800",
                        (f"buffer_load_dwordx4 {vq(TMP+96)}, v{V_LIN}, {srd(SPHI)}, s{S_WS} offen", 'wphi')]])
        self.q(0, self.dma_w(1)); self.q(0, self.dma_x(2))
        G_, I_, R_, C_ = t, t + 1, t + 2, t + 3
        S = []
        def raw(txt):
            for l in txt.split('\n'):
                if l.strip(): S.append((1, l.strip()))
        raw(f"""
        v_lshrrev_b32 v{G_}, 4, v{V_LANE}
        v_and_b32 v{I_}, 15, v{V_LANE}
        v_bfe_u32 v{R_}, v{V_LANE}, 2, 2
        v_and_b32 v{C_}, 3, v{V_LANE}
        v_lshrrev_b32 v{t+4}, 1, v{I_}
        v_xor_b32 v{t+4}, v{t+4}, v{G_}
        v_lshlrev_b32 v{t+5}, 7, v{I_}
        v_lshl_add_u32 v{t+4}, v{t+4}, 4, v{t+5}
        v_add_u32 v{V_XR}, s{S_LR}, v{t+4}
        v_xor_b32 v{t+4}, 64, v{t+4}
        v_add_u32 v{V_XR+1}, s{S_LR}, v{t+4}
        v_lshrrev_b32 v{t+4}, 2, v{V_LANE}
        v_mul_u32_u24 v{t+5}, 160, v{t+4}
        v_mul_u32_u24 v{t+6}, 40, v{C_}
        v_add_u32 v{V_WT}, v{t+5}, v{t+6}
        v_add_u32 v{V_WT+1}, 51200, v{V_WT}
        v_mul_u32_u24 v{t+5}, 120, v{I_}
        v_mul_u32_u24 v{t+6}, 3840, v{G_}
        v_add3_u32 v{V_PW}, v{t+5}, v{t+6}, s{S_LR}
        v_mul_u32_u24 v{t+6}, 40, v{G_}
        v_mul_u32_u24 v{t+7}, {OUTS}, v{I_}
        s_mul_i32 s{T2}, s{S_W}, {32*OUTS}
        s_add_u32 s{T2}, s{T2}, {OUTL}
        v_add3_u32 v{V_OW}, v{t+7}, v{t+6}, s{T2}
        v_and_b32 v{t+5}, 7, v{t+4}
        v_lshrrev_b32 v{t+6}, 5, v{V_LANE}
        v_lshlrev_b32 v{t+6}, 1, v{t+6}
        v_lshl_add_u32 v{t+5}, v{t+5}, 2, v{t+6}
        v_mul_u32_u24 v{t+5}, 120, v{t+5}
        s_mul_i32 s{T0}, s{S_W}, 3840
        s_add_u32 s{T0}, s{T0}, {RBASE}
        v_add_u32 v{V_KA1}, s{T0}, v{t+5}
        v_lshl_add_u32 v{V_KB}, v{C_}, 3, v{V_KA1}
        s_mov_b32 s{S_L2E}, 0x3fb8aa3b
        s_mov_b32 s{S_NL2E}, 0xbfb8aa3b
        s_mov_b32 s{S_PERM}, 0x07060302
        s_and_b32 s{T3}, s{S_HG}, 1
        """)
        for j in range(5):
            b = RH + 5 * j
            if j < 3: raw(f"""
            v_mul_u32_u24 v{t+5}, {OUTS}, v{b+4}
            v_lshl_add_u32 v{t+5}, v{b+3}, 4, v{t+5}
            v_add_u32 v{V_ORD+j}, s{T2}, v{t+5}
            v_mul_u32_u24 v{t+5}, 2560, v{b+4}
            v_lshl_add_u32 v{V_OG+j}, v{b+3}, 4, v{t+5}
            """)
            if j == 2: raw(f"""
            v_lshrrev_b32 v{t+5}, 5, v{V_LANE}
            v_lshl_or_b32 v{V_OG+2}, v{t+5}, 30, v{V_OG+2}
            """)
        raw(f"""
        v_mov_b32 v{t+5}, 2304
        v_cmp_gt_u32 vcc, 16, v{V_LANE}
        v_mov_b32 v{t+6}, 1024
        v_cndmask_b32 v{t+5}, v{t+5}, v{t+6}, vcc
        v_add_u32 v{V_OO+1}, v{t+5}, v{V_LIN}
        v_mov_b32 v{V_OO}, v{V_LIN}
        v_add_u32 v{V_OO+2}, 40960, v{V_LIN}
        v_add_u32 v{V_OO+3}, 40960, v{V_OO+1}
        v_lshrrev_b32 v{t+4}, 5, v{V_LANE}
        v_mul_u32_u24 v{t+4}, {40960-512}, v{t+4}
        v_add_u32 v{t+5}, 3328, v{V_LIN}
        v_add_u32 v{V_OO+4}, v{t+4}, v{t+5}
        v_add_u32 v{V_LINH}, 51200, v{V_LIN}
        v_min_u32 v{V_PF}, 39, v{V_LANE}
        v_lshlrev_b32 v{V_PF}, 3, v{V_PF}
        v_and_b32 v{t+4}, 1, v{RH+4}
        v_mul_u32_u24 v{t+4}, 2560, v{t+4}
        v_lshrrev_b32 v{t+5}, 1, v{RH+4}
        v_mul_u32_u24 v{t+5}, 40960, v{t+5}
        v_lshlrev_b32 v{t+6}, 7, v{RH+3}
        v_add3_u32 v{V_L128}, v{t+4}, v{t+5}, v{t+6}
        """)
        raw(f"""
        s_lshl_b32 s{T0}, s{T3}, 1
        s_xor_b32 s{T0}, s{T0}, s{S_W}
        s_mul_i32 s{T0}, s{T0}, 5120
        s_mul_i32 s{T2}, s{S_HG}, 102400
        s_add_u32 s{T2}, s{T2}, {WS_PK + br*819200}
        s_add_u32 s{T0}, s{T0}, s{T2}
        s_lshr_b32 s{S_SPIN}, s{S_HG}, 1
        s_add_u32 s{T1}, s{S_SPIN}, s{S_W}
        s_and_b32 s{T1}, s{T1}, 3
        s_add_u32 s{T1}, s{T1}, 16
        s_mul_i32 s{T1}, s{T1}, 5120
        s_add_u32 s{S_WOROW+4}, s{T1}, s{T2}
        s_lshr_b32 s{S_PFL}, s{S_HG}, 2
        s_lshl_b32 s{S_PFL}, s{S_PFL}, 9
        s_add_u32 s{S_PFL}, s{S_PFL}, {WS_PF + br*1024}
        s_mul_i32 s{T2}, s{S_HG}, 160
        s_lshl_b32 s{S_OUT}, s{S_XBASE}, 1
        s_add_u32 s{S_OUT}, s{S_OUT}, s{T2}
        s_add_u32 s{S_OUT}, s{S_OUT}, {br*1280}
        s_lshl_b32 s{S_OB}, s{S_XBASE}, 1
        s_add_u32 s{S_OB}, s{S_OB}, {br*1280}
        """)
        for g in range(4):
            raw(f"""
            s_add_u32 s{T1}, s{S_SPIN}, {g}
            s_and_b32 s{T1}, s{T1}, 3
            s_mul_i32 s{T2}, s{T1}, 20480
            s_add_u32 s{S_WOROW+g}, s{T2}, s{T0}
            s_lshl_b32 s{T1}, s{T1}, 1
            s_add_u32 s{T1}, s{T1}, s{T3}
            s_mul_i32 s{T2}, s{T1}, 5120
            s_add_u32 s{S_OP+2*g}, s{T2}, s{S_OB}
            s_xor_b32 s{T1}, s{T1}, 1
            s_mul_i32 s{T2}, s{T1}, 5120
            s_add_u32 s{S_OP+2*g+1}, s{T2}, s{S_OB}
            """)
        SH = 8 if A else 7
        raw(f"""
        s_lshl_b32 s{T0}, s{S_RB}, 2
        s_add_u32 s{T0}, s{T0}, s{S_W}
        s_lshl_b32 s{S_FLAG}, s{T0}, 7
        s_add_u32 s{S_FLAG}, s{S_FLAG}, {WS_FLAG + br*64*128}
        s_lshl_b32 s{T0}, s{S_HEAD}, 16
        s_add_u32 s{T0}, s{T0}, {WS_P1 + br*32*65536}
        s_lshl_b32 s{T1}, s{S_RB}, 12
        s_add_u32 s{S_P1ST}, s{T0}, s{T1}
        s_min_u32 s{T1}, s{S_RB}, 14
        s_lshl_b32 s{T1}, s{T1}, {SH}
        s_add_u32 s{S_P1LD}, s{T0}, s{T1}
        s_lshl_b32 s{T0}, s{S_HEAD}, 12
        s_add_u32 s{S_P2LD}, s{T0}, {WS_P2 + br*32*4096}
        s_add_u32 s{S_P2ST}, s{S_P2LD}, s{T1}
        s_lshr_b32 s{T1}, s{S_RB}, {4 - o.get('p2log', 2)}
        s_lshl_b32 s{T1}, s{T1}, 18
        s_add_u32 s{S_P2LD}, s{S_P2LD}, s{T1}
        v_mul_u32_u24 v{t+4}, {F}, v{G_}
        v_add_lshl_u32 v{V_P1ST}, v{t+4}, v{I_}, 4
        v_lshrrev_b32 v{t+4}, {3 if A else 2}, v{I_}
        v_lshl_or_b32 v{V_P1M}, v{t+4}, 28, v{V_P1ST}
        v_lshrrev_b32 v{t+4}, 1, v{G_}
        v_lshl_or_b32 v{V_P1M+1}, v{t+4}, 30, v{V_P1ST}
        v_or_b32 v{V_P1M+2}, v{V_P1M}, v{V_P1M+1}
        v_cmp_gt_u32 vcc, 4, v{I_}
        v_cndmask_b32 v{V_KEEP}, 0, -1, vcc
        v_mov_b32 v{t+4}, 0x3f803f80
        v_cmp_eq_u32 vcc, 4, v{I_}
        v_cndmask_b32 v{V_ONE}, 0, v{t+4}, vcc
        v_and_b32 v{t+4}, 7, v{V_LANE}
        v_lshlrev_b32 v{V_F8}, 2, v{t+4}
        s_lshl_b32 s{T0}, s{S_HG}, 2
        v_min_u32 v{V_FOWN}, 1, v{V_LANE}
        v_lshlrev_b32 v{V_FOWN}, 30, v{V_FOWN}
        v_or_b32 v{V_FOWN}, s{T0}, v{V_FOWN}
        v_lshlrev_b32 v{V_ZA}, 3, v0
        v_add_u32 v{V_ZA}, {RBASE+7680}, v{V_ZA}
        """)
        if A:
            raw(f"""
            v_lshlrev_b32 v{t+5}, 12, v{G_}
            v_lshl_add_u32 v{V_P1LD}, v{I_}, 4, v{t+5}
            v_lshlrev_b32 v{V_P2ST}, 2, v{V_LANE}
            """)
        else:
            raw(f"""
            v_lshrrev_b32 v{t+5}, 3, v{V_LANE}
            v_lshlrev_b32 v{t+5}, 12, v{t+5}
            v_lshl_add_u32 v{V_P1LD}, v{t+4}, 4, v{t+5}
            v_lshl_add_u32 v{V_P2ST}, v{G_}, 5, v{V_F8}
            """)
        RS = 80 if A else 48
        HS = 24 * RS
        NQ = 240 if A else 120
        NI = 4 if A else 2
        raw(f"s_mul_i32 s{T0}, s{S_W}, {HS}\ns_add_u32 s{T0}, s{T0}, {RBASE}")
        u = t + 4
        for ii in range(NI):
            raw(f"v_add_u32 v{u}, {64*ii}, v{V_LANE}")
            if ii == NI - 1:
                raw(f"""v_subrev_u32 v{u+1}, 64, v{u}
                v_cmp_gt_u32 vcc, {NQ}, v{u}
                v_cndmask_b32 v{u}, v{u+1}, v{u}, vcc
                v_lshlrev_b32 v{V_GAL}, 4, v{u}""")
            if A:
                raw(f"""
                v_lshrrev_b32 v{u+1}, 4, v{u}
                v_and_b32 v{u+2}, 3, v{u}
                v_lshl_add_u32 v{u+1}, v{u+1}, 2, v{u+2}
                v_bfe_u32 v{u+2}, v{u}, 2, 2
                v_mul_u32_u24 v{u+3}, 6554, v{u+1}
                v_lshrrev_b32 v{u+3}, 16, v{u+3}
                v_mul_u32_u24 v{u+4}, 10, v{u+3}
                """)
            else:
                raw(f"""
                v_lshrrev_b32 v{u+1}, 3, v{u}
                v_and_b32 v{u+2}, 1, v{u}
                v_lshl_add_u32 v{u+1}, v{u+1}, 1, v{u+2}
                v_bfe_u32 v{u+2}, v{u}, 1, 2
                v_mul_u32_u24 v{u+3}, 13108, v{u+1}
                v_lshrrev_b32 v{u+3}, 16, v{u+3}
                v_mul_u32_u24 v{u+4}, 5, v{u+3}
                """)
            raw(f"""
            v_sub_u32 v{u+1}, v{u+1}, v{u+4}
            v_lshl_add_u32 v{u+3}, v{u+3}, 2, v{u+2}
            v_mul_u32_u24 v{u+3}, {RS}, v{u+3}
            v_lshl_add_u32 v{u+3}, v{u+1}, 3, v{u+3}
            v_add_u32 v{V_LA+ii}, s{T0}, v{u+3}
            """)
        raw(f"""
        v_cmp_eq_u32 vcc, v{G_}, v{R_}
        v_mul_u32_u24 v{u}, {HS}, v{G_}
        v_mul_u32_u24 v{u+1}, {RS}, v{C_}
        v_add_u32 v{u}, v{u}, v{u+1}
        v_add_u32 v{u}, {RBASE}, v{u}
        v_mov_b32 v{u+1}, {RBASE+7680}
        v_cndmask_b32 v{V_FR2}, v{u+1}, v{u}, vcc
        """)
        if A:
            raw(f"""
            v_mov_b32 v{t+36}, 0
            v_mov_b32 v{t+37}, 0
            v_mov_b32 v{t+38}, 0
            v_mov_b32 v{t+39}, 0
            v_add_u32 v{TMP+100}, s{S_LR}, v{V_LIN}
            ds_write_b128 v{TMP+100}, {vq(t+36)} offset:13312
            v_mul_u32_u24 v{t+4}, {RW}, v{G_}
            v_mul_u32_u24 v{t+5}, 40, v{R_}
            v_add_u32 v{t+4}, v{t+4}, v{t+5}
            v_add_u32 v{t+4}, {RBASE+12288}, v{t+4}
            s_add_u32 s{T0}, s{S_LR}, 13312
            v_mov_b32 v{t+5}, s{T0}
            v_cmp_eq_u32 vcc, v{C_}, v{G_}
            v_cndmask_b32 v{V_FR}, v{t+5}, v{t+4}, vcc
            """)
            for tt in range(5):
                a = A_PHI + (tt * 3 + 2) * 4
                raw(f"v_accvgpr_write_b32 a{a+2}, 0\nv_accvgpr_write_b32 a{a+3}, 0")
        US, UA, UD = TMP + 40, TMP + 45, TMP + 80
        nA = o.get('nA', 0); prod = (not A) or nA > 0
        S_UOK = 92
        if prod:
            iS0 = len(S)
            S.append((1, [x.strip() for x in f"""
            s_add_u32 s{T1}, s{S_HG}, s{S_RB}
            s_and_b32 s{T1}, s{T1}, 1
            s_lshl_b32 s{T0}, s{S_W}, 1
            s_add_u32 s{T0}, s{T0}, s{T1}
            s_lshl_b32 s{T0}, s{T0}, 3
            s_add_u32 s{T0}, s{T0}, s{S_HG}
            s_lshl_b32 s{T0}, s{T0}, 3
            s_lshr_b32 s{T1}, s{S_RB}, 1
            s_add_u32 s{T0}, s{T0}, s{T1}
            s_add_u32 s{T0}, s{T0}, {0 if A else nA}
            s_cmp_lt_u32 s{T0}, {nA if A else 320}
            s_cselect_b32 s{S_UOK}, 1, 0
            s_waitcnt lgkmcnt(0)
            s_cmp_lt_u32 s{T0}, 160
            s_cselect_b32 s{SWO}, s{K+6}, s{kwo}
            s_cselect_b32 s{SWO+1}, s{K+7}, s{kwo+1}
            s_cselect_b32 s{S_UTAG}, s{S_NONCE if A else S_UTAG}, s{S_NONCE}
            s_cselect_b32 s{T1}, 0, 160
            s_cselect_b32 s{S_UDST}, 0, 819200
            s_cselect_b32 s{S_UFL}, 0, 1024
            s_mov_b32 s{SWO+2}, 819200
            s_mov_b32 s{SWO+3}, 0x20000
            s_add_u32 s{S_UTAG}, s{S_UTAG}, 0x9e3779b1
            s_sub_u32 s{T0}, s{T0}, s{T1}
            s_and_b32 s{T1}, s{T0}, 1
            s_mul_i32 s{S_USRC}, s{T1}, 640
            s_mul_i32 s{T2}, s{T1}, 409600
            s_add_u32 s{S_UDST}, s{S_UDST}, s{T2}
            s_lshl_b32 s{T2}, s{T1}, 9
            s_add_u32 s{S_UFL}, s{S_UFL}, s{T2}
            s_lshr_b32 s{T1}, s{T0}, 1
            s_lshl_b32 s{T2}, s{T1}, 2
            s_add_u32 s{S_UFL}, s{S_UFL}, s{T2}
            s_add_u32 s{S_UFL}, s{S_UFL}, {WS_PF}
            s_and_b32 s{T1}, s{T1}, 3
            s_mul_i32 s{T2}, s{T1}, {20*1280}
            s_add_u32 s{S_USRC}, s{S_USRC}, s{T2}
            s_lshl_b32 s{T2}, s{T1}, 8
            s_add_u32 s{S_UDST}, s{S_UDST}, s{T2}
            s_lshr_b32 s{T1}, s{T0}, 3
            s_mul_i32 s{T2}, s{T1}, 5120
            s_add_u32 s{S_UDST}, s{S_UDST}, s{T2}
            s_add_u32 s{S_UDST}, s{S_UDST}, {WS_PK}
            s_lshr_b32 s{T2}, s{T1}, 1
            s_mul_i32 s{T2}, s{T2}, 80
            s_and_b32 s{T3}, s{T1}, 1
            s_lshl_b32 s{T3}, s{T3}, 3
            s_add_u32 s{T2}, s{T2}, s{T3}
            s_mul_i32 s{T3}, s{T1}, 160
            s_sub_u32 s{T3}, s{T3}, {16*160 - 16}
            s_cmp_ge_u32 s{T1}, 16
            s_cselect_b32 s{T2}, s{T3}, s{T2}
            s_cselect_b32 s{T3}, 1, 0
            s_mul_i32 s{T2}, s{T2}, 1280
            s_add_u32 s{S_USRC}, s{S_USRC}, s{T2}
            s_mul_i32 s{T1}, s{T3}, {76*1280}
            s_add_u32 s{T2}, s{S_LW}, {RING + 4*SLOT}
            """.split('\n') if x.strip()]))
            for j in range(5):
                raw(f"""
                v_lshrrev_b32 v{t+4}, 2, v{RH+5*j+4}
                v_mul_u32_u24 v{t+5}, 640, v{t+4}
                v_lshrrev_b32 v{t+4}, 2, v{t+4}
                v_mul_u32_u24 v{t+4}, s{T1}, v{t+4}
                v_add3_u32 v{US+j}, v{t+4}, v{t+5}, v{V_LIN}
                """)
            raw(f"v_add_u32 v{US+4}, 4096, v{US+4}")
            iS1 = len(S)
            raw(f"""
            v_mul_u32_u24 v{t+7}, 640, v{R_}
            v_mul_u32_u24 v{t+8}, 40, v{C_}
            v_add3_u32 v{t+7}, v{t+7}, v{t+8}, s{T2}
            """)
            for j in range(5):
                raw(f"""
                v_add_u32 v{t+4}, {4*j}, v{G_}
                v_mul_u32_u24 v{t+5}, 13108, v{t+4}
                v_lshrrev_b32 v{t+5}, 16, v{t+5}
                v_mul_u32_u24 v{t+6}, 120, v{t+5}
                v_lshl_add_u32 v{t+6}, v{t+4}, 3, v{t+6}
                v_add_u32 v{t+6}, v{t+6}, v{t+7}
                v_and_b32 v{t+8}, s{T3}, v{t+5}
                v_mul_u32_u24 v{t+8}, 2560, v{t+8}
                v_add_u32 v{UA+2*j}, v{t+6}, v{t+8}
                v_sub_u32 v{t+6}, v{t+6}, v{t+8}
                v_add_u32 v{UA+2*j+1}, 2560, v{t+6}
                v_mul_u32_u24 v{t+5}, {102400 - 5120}, v{t+5}
                v_lshl_add_u32 v{t+5}, v{t+4}, 10, v{t+5}
                v_lshl_add_u32 v{UD+j}, v{I_}, 4, v{t+5}
                """)
            mark = {}
            def cond(name, lines):
                p.untracked([f"s_cmp_eq_u32 s{S_UOK}, 0", f"s_cbranch_scc1 {name}{self.sfx}"] + lines + [f"{name}{self.sfx}:"])
                mark[name] = p.nvm
            L = [f"s_add_u32 m0, s{S_LW}, {RING + 4*SLOT}"]
            for j in range(5):
                off = f"offset:{j*1024} " if 0 < j < 4 else ""
                L.append(f"buffer_load_dwordx4 v{US+j}, {srd(SWO)}, s{S_USRC} offen {off}lds")
                if j == 3: L.append(f"s_add_u32 m0, s{S_LW}, {RING + 4*SLOT + 4096}")
            un = [[lambda L=L: cond("L_u1", L)]]
            if o.get('uissue', 0) == 0: self.q(10**6 + 77, un)
            if o.get('uissue', 0) == -1: S = S[:4] + S[iS0:iS1] + [(0, un[0])] + S[iS1:] + S[4:iS0]
        self.run(S, every=o.get('proev', 60))
        self.stamp('p5')
        if o.get('uissue', 0) == 0: self.release(77)
        def urd(): cond("L_u2r", [f"s_waitcnt vmcnt({p.nvm - mark['L_u1']}) lgkmcnt(0)"] +
                [f"ds_read_b64_tr_b16 {vq(TMP+60+2*k, 2)}, v{UA+k}" for k in range(10)] + ["s_waitcnt lgkmcnt(0)"])
        def ust(j): cond("L_u2" + "abcd "[j].strip(), [f"buffer_store_dwordx4 {vq(TMP+60+4*j)}, v{UD+j}, {srd(SWS)}, s{S_UDST} offen sc1"])
        if o.get('hops', 1):
            p("s_mov_b64 exec, 0")
            for w_ in range(3): p(f"s_cmp_eq_u32 s{S_W}, {w_}"); p(f"s_cbranch_scc1 L_hop{w_}{self.sfx}")
            p(f"s_branch L_hop3{self.sfx}")
            p(f"L_hopret{self.sfx}:")
            p("s_mov_b64 exec, -1")
        if prod and o.get('upos', (0,))[0] < 0:
            while len(self.dq) > -o['upos'][0] - 1 and self.tick(): pass
            urd()
            for j in range(5): ust(j)
        while len(self.dq) > o.get('prokeep', 0) and self.tick(): pass
        p.raw(f"""
        s_getreg_b32 s{T0}, hwreg(HW_REG_XCC_ID, 0, 4)
        s_waitcnt lgkmcnt(0)
        s_add_u32 s{S_NONCE}, s{S_NONCE}, 0x9e3779b1
        s_lshl_b32 s{T0}, s{T0}, 28
        s_xor_b32 s{S_XCCV}, s{T0}, s{S_NONCE}
        v_mov_b32 v{V_NONCE}, s{S_NONCE}
        v_and_b32 v{V_VW}, 1, v{V_LANE}
        v_lshlrev_b32 v{V_VW}, 4, v{V_VW}
        v_lshrrev_b32 v{V_VW}, v{V_VW}, v{V_NONCE}
        v_mov_b32 v{V_KA0}, s{S_XCCV}
        s_add_u32 s{S_XA}, s{S_FLAG}, {WS_XCC - WS_FLAG}
        """)
        xst = [(f"buffer_store_dword v{V_KA0}, v{V_FOWN}, {srd(SWS)}, s{S_XA} offen sc1", 'xcc')]
        x1, x2, x3 = o.get('xpos', (-1, 58, 88))
        if x1 < 0: self.put(xst)
        self.stamp()
        p(f"s_branch L_main{self.sfx}")
        p(".p2align 12")
        p(f"L_main{self.sfx}:")
        xb = lambda ks, rt: aq((ks * 2 + rt) * 4)
        xbp = lambda ps: (lambda ks, rt: xb(4 * (4 - ks // 4) + ks % 4, rt)) if ps in o.get('rev', [1, 2]) else xb
        for pu in range(0, 7):
            if (pu + 3) % 2 == 0: self.q(0, self.dma_w((pu + 3) // 2))
            self.q(10 * pu, self.dma_x(pu + 3))
            if prod and o.get('uissue', 0) == pu + 1: self.q(0, un)
        for G in range(5, 10): self.q(10**6 + 1 if G % 5 >= 3 else 20 * (G - 3) - 4, self.dma_w(G))
        for G in range(10, 13): self.q(20 * (G - 3) - 4, self.dma_w(G))
        for G in range(13, 20): self.q(10**6 + G, self.dma_w(G))
        hooks = {}
        for pu in range(1, 10):
            hooks[10 * pu - 5] = [lambda pu=pu: self.xread(pu, 0), lambda pu=pu: self.xread(pu, 1)]
            hooks[10 * pu - 4] = [lambda pu=pu: self.xread(pu, 2), lambda pu=pu: self.xread(pu, 3)]
        if A:
            rd = [(tt, u_, hf) for tt in range(5) for u_ in range(3) for hf in range(2 if u_ < 2 else 1)]
            w = TMP + 96; u2 = TMP + 102
            sc = [lambda: p.wait(vm=['wphi'])]
            for j in range(4):
                sc += [f"v_lshlrev_b32 v{u2}, 16, v{w+j}", f"v_and_b32 v{u2+1}, 0xffff0000, v{w+j}", f"v_mul_f32 v{u2}, s{S_L2E}, v{u2}",
                       f"v_mul_f32 v{u2+1}, s{S_L2E}, v{u2+1}", f"v_cvt_pk_bf16_f32 v{w+j}, v{u2}, v{u2+1}"]
            hooks[8] = sc + [(f"ds_write_b128 v{TMP+100}, {vq(w)} offset:12288", 'phw')]
            hooks[14] = [lambda: p.wait(lg=['phw'])]
            slots = [n for n in range(21, 90) if n % 10 in (0, 1, 2, 3)][:25]
            for k, n in enumerate(slots):
                hooks[n] = [(f"ds_read_b64_tr_b16 a[{A_PHI + (tt*3+u_)*4 + 2*hf}:{A_PHI + (tt*3+u_)*4 + 2*hf + 1}], v{V_FR} offset:{(8*u_+4*hf)*40 + 8*tt}", 'phi')
                            for tt, u_, hf in rd[k:k+1]]
        late3 = {}
        if prod:
            UR = TMP + 60
            u1, u2_, u3 = o.get('upos', (18, 18, 62))
            if u1 >= 0: hooks.setdefault(u1, []).append(urd)
            for j in range(5):
                uj = u2_ + o.get('ustep', 0) * j
                if uj >= 0: (hooks if uj < 100 else late3).setdefault(uj % 100, []).append(lambda j=j: ust(j))
            (hooks if u3 < 100 else late3).setdefault(u3 % 100, []).append(lambda: cond("L_u3", [f"s_waitcnt vmcnt({p.nvm - mark['L_u2']})", f"v_mov_b32 v{V_DUMP}, s{S_UTAG}", "s_mov_b64 exec, 1",
                         f"buffer_store_dword v{V_DUMP}, v{V_LIN}, {srd(SWS)}, s{S_UFL} offen sc1", "s_mov_b64 exec, -1"]))
        XV = TMP + 92
        iss, chk = self.checked("L_xc", [f"buffer_load_dword v{XV}, v{V_F8}, {srd(SWS)}, s{S_XA} offen sc1"],
                                [f"v_xor_b32 v{XV+1}, s{S_NONCE}, v{XV}", f"v_lshlrev_b32 v{XV+1}, 4, v{XV+1}", f"v_cmp_ne_u32 vcc, 0, v{XV+1}"], 'xl')
        xv, xq = {}, {}
        def xh(pos, L): [hooks, xv, xq][pos // 100].setdefault(pos % 100, []).extend(L)
        if x1 >= 0: xh(x1, xst)
        xh(x2, iss)
        c_ = [x for _, x in chk]
        xh(x3, c_[:3]); xh(x3 + 1, c_[3:4]); xh(x3 + 2, c_[4:] + [f"v_cmp_ne_u32 vcc, s{S_XCCV}, v{XV}"])
        xh(x3 + 3, [f"s_mov_b32 s{S_FAST}, {1 if o.get('nofast') else 'vcc_lo'}", f"s_add_u32 s{T0}, s{SWS}, {WS_O}", f"s_addc_u32 s{T1}, s{SWS+1}, 0"])
        xh(x3 + 4, [f"s_cmp_eq_u32 s{S_FAST}, 0", f"s_cselect_b32 s{SO}, s{SOUT}, s{T0}", f"s_cselect_b32 s{SO+1}, s{SOUT+1}, s{T1}"])
        xh(x3 + 5, [f"s_mov_b32 s{SO+2}, 5242880", f"s_mov_b32 s{SO+3}, 0x20000"])
        self.group_sync(0)
        for k in range(4): self.xread(0, k)
        self.prime(0, sync=False)
        kp = o.get('kpace', 3)
        k1p = {0: lambda n: 1 if n % 3 != 2 else 0, 1: lambda n: 1, 2: lambda n: 2 if n % 10 < 2 else (1 if n % 10 < 5 else 0), 3: lambda n: 1 if n % 4 != 3 else 0}[o.get('k1', 0)]
        self.gemm_pass(0, ACC_K, xb, hooks=hooks, last=True, pace=lambda n: k1p(n) if n < o.get('ksw', 69) else (1 if n % kp == 0 else 0))
        self.stamp()
        E0, E1, M0_, M1_ = TMP, TMP + 40, TMP + 80, TMP + 86
        x0, x1 = acc(ACC_K, 0, 0), acc(ACC_K, 0, 1)
        tagset = [f"s_bfe_u32 s{S_TB+j}, s{S_NONCE}, {hex(0x80000 + 8*j)}" for j in range(4)] + [f"s_lshr_b32 s{S_NHI}, s{S_NONCE}, 16"]
        if o.get('amp'):
            p.raw(f"""
            s_load_dwordx2 s[88:89], s[0:1], 64
            s_not_b32 s{T0}, s98
            v_mov_b32 v{TMP+94}, 0
            v_mov_b32 v{TMP+95}, s{T0}
            s_lshr_b32 s{T0}, s2, 3
            s_or_b32 s{T0}, s{T0}, s{S_W}
            s_cmp_eq_u32 s{T0}, 0
            s_cselect_b32 s{T0}, 0, 64
            v_mov_b32 v{TMP+94}, s{T0}
            s_waitcnt lgkmcnt(0)
            s_cbranch_scc0 L_noat{self.sfx}
            s_mov_b64 exec, 1
            """)
            p.ins.append(__import__('emit').Ins(f"global_atomic_umax v{TMP+94}, v{TMP+95}, s[88:89] sc1"))
            p("s_mov_b64 exec, -1")
            p(f"L_noat{self.sfx}:")
        wr = lambda rt, x, n, o8: [(2, (f"ds_write_b64 v{V_PW}, {vq(x+2*j, 2)} offset:{rt*1920 + o8 + 8*j}", 'pw')) for j in range(n)]
        def mixw(out, w): return [y for j in range(len(w)) for y in out[2*j:2*j+2] + [w[j]]]
        burst = lambda L: [(0, [x for _, x in L])]
        dm = (2, lambda: self.tick())
        if A:
            P0 = self.phiA_parts(x0, E0, M0_, "L_k0", False); P1 = self.phiA_parts(x1, E1, M1_, "L_k1", False)
            pr = [(0, lambda: (self.group_sync(5), self.release(1)))]
            pr = pr + [(1, lambda n=n, hf=hf: self.wread(100 + n, hf)) for n in range(D - 1) for hf in range(2)]
            hx = o.get('hx', 0)
            if hx == 0:
                self.put([x for _, x in [dm] + P0['cvt'] + self.weave(P0['mf'], [dm] + P1['cvt'] + [dm] + P0['exp'][:4]) + self.weave(P1['mf'], [dm] + P0['exp'][4:12] + [dm] + pr)])
                f0 = P0['exp'][12:] + burst(P0['norm'])
            else:
                self.put([x for _, x in [dm] + P0['cvt'] + self.weave(P0['mf'], [dm] + P1['cvt'] + P0['exp'][:7] + [dm]) + self.weave(P1['mf'], P0['exp'][7:14] + [dm] + P0['exp'][14:21])])
                self.run(P0['exp'][21:] + P0['norm'][:-10], every=hx)
                self.put([x for _, x in pr + P0['norm'][-10:]])
                f0 = []
            fill = f0 + mixw(P0['out'], wr(0, x0, 10, 0)) + P1['exp'] + burst(P1['norm']) + mixw(P1['out'], wr(1, x1, 10, 0))
            self.stamp('head')
        else:
            fill = []
            for rt, x, e in ((0, x0, E0), (1, x1, E1)):
                L = self.phiB(x, e, False)
                fill += L[:-10] + mixw(L[-10:], wr(rt, x, 5, 0))
            self.group_sync(5); self.release(1); self.prime(1, sync=False)
        hooks = {}
        hooks.update(late3)
        PFV = TMP + 94
        ipf, cpf_ = self.checked("L_pf", [f"buffer_load_dwordx2 {vq(PFV, 2)}, v{V_PF}, {srd(SWS)}, s{S_PFL} offen sc1"],
                                 [f"v_xor_b32 v{PFV}, s{S_NONCE}, v{PFV}", f"v_bitop3_b32 v{PFV}, v{PFV}, v{PFV+1}, s{S_NONCE} bitop3:0xf6", f"v_cmp_ne_u32 vcc, 0, v{PFV}"], 'pf')
        pfp = o.get('pfpos', 81)
        if pfp < 100: hooks.setdefault(pfp, []).extend(ipf)
        pre = ["s_mov_b32 exec_hi, 0xff", (f"buffer_load_dword v{V_DUMP}, v{V_L128}, {srd(SO)}, s{S_OP} offen sc1", 'pr'), "s_mov_b64 exec, 1",
               (f"buffer_load_dword v{V_DUMP}, v{V_F8}, {srd(SWS)}, s{S_FLAG} offen sc1", 'pr'), "s_mov_b64 exec, -1"]
        wp, pp_ = o.get('wopf', -1), o.get('prepos', 0)
        if 100 <= pp_ < 200: hooks.setdefault(pp_ - 100, []).extend(pre)
        vs = o.get('vsync', 0)
        if o.get('v13'): hooks.setdefault(78, []).extend(["s_barrier", lambda: self.release(13)])
        for k_, v_ in xv.items(): hooks.setdefault(k_, []).extend(v_)
        for k_, v_ in enumerate(tagset): hooks.setdefault(41 + k_, []).insert(0, v_)
        vp = o.get('vpace', 4)
        self.gemm_pass(1, ACC_V, xbp(1), fill=fill, hooks=hooks, last=True, sync=True, pace=lambda n: 1 if n % vp == 0 else 0)
        self.stamp()
        VB = TMP
        for rt in range(2):
            c = self.cvt20(acc(ACC_V, 0, rt), VB + 10 * rt)
            for j in range(5):
                p(c[2*j][1]); p(c[2*j+1][1])
                p(f"ds_write_b64 v{V_PW}, {vq(VB+10*rt+2*j, 2)} offset:{rt*1920 + 80 + 8*j}", 'vw')
                if j == 4 and rt == 0: self.tick()
        self.tick()
        p.wait(lg='*')
        self.stamp('kv0')
        gk = 11
        self.flush_dma(('W', gk)); p.wait(vm=[('W', gk)])
        self.stamp('kv1')
        p("s_barrier")
        self.stamp('kv2')
        self.release(13); self.release(14)
        NT = 3 if A else 2
        FB = ACC_K
        KV = TMP + 64
        rds = deque()
        def rd(reg, av, off, kk, j):
            for hf in range(2): rds.append((f"ds_read_b64_tr_b16 {vq(reg+2*hf, 2)}, v{av} offset:{kk*RW + hf*120 + off}", ('kv', kk, j)))
        for kk in range(4):
            b = FB + kk * 20
            rd(b, V_KB, 80, kk, 'a')
            for nt in range(NT): rd(b + 8 + 4 * nt, V_KB, 32 * nt, kk, nt)
            rd(b + 4, V_KA1, 112, kk, 'z')
        def more(k):
            while k > 0 and rds and len(p.lgq) < 15: self.put([rds.popleft()]); k -= 1
        more(15); self.tick()
        p(f"v_mov_b32 v{TMP+1}, 0xff")
        seq = [(kk, nt) for kk in range(4) for nt in range(NT)]
        ao = deque((kk, f"v_and_or_b32 v{FB+kk*20+4+j}, v{FB+kk*20+4+j}, v{V_KEEP}, v{V_ONE}") for kk in range(4) for j in range(4))
        p.wait(lg=[('kv',) + seq[0]])
        for i_, (kk, nt) in enumerate(seq):
            b = FB + kk * 20
            p(f"{MF} {vq(KV + nt*4)}, {vq(b)}, {vq(b+8+4*nt)}, {'0' if kk == 0 else vq(KV + nt*4)}")
            p.wait(lg=[('kv',) + seq[i_ + 1]] if i_ + 1 < len(seq) else '*')
            k_ = len(rds); more(o.get('kvr', 4))
            for _ in range(max(0, 3 - (k_ - len(rds)))):
                if ao and ('kv', ao[0][0], 'z') not in p.lgq and not any(x[1] == ('kv', ao[0][0], 'z') for x in rds): p(ao.popleft()[1])
        assert not rds
        while len(ao) > 4: p(ao.popleft()[1])
        lastm = 0x00ff00ff if A else 0x000f000f
        def pub(mt, nt):
            a = KV + (mt * 3 + nt) * 4
            L = [(1, f"v_bfi_b32 v{a+j}, v{TMP+1}, s{S_TB+j}, v{a+j}") for j in range(4)]
            va = [V_P1ST, V_P1M, V_P1M + 1, V_P1M + 2][2 * mt + (nt == NT - 1)]
            return L + [(2, (f"buffer_store_dwordx4 {vq(a)}, v{va}, {srd(SWS)}, s{S_P1ST} offen offset:{(4*mt*F + 16*nt)*16} sc1", 'p1'))]
        self.stamp('kv3')
        mf = [(2, f"{MF} {vq(KV + (3+nt)*4)}, {vq(FB+kk*20+4)}, {vq(FB+kk*20+8+4*nt)}, {'0' if kk == 0 else vq(KV + (3+nt)*4)}") for nt in range(NT) for kk in range(4)]
        pr = [(1, lambda n=n, hf=hf: self.wread(200 + n, hf)) for n in range(D - 1) for hf in range(2)]
        self.put([x for _, x in self.weave(mf, [(1, x[1]) for x in ao] + [y for nt in range(NT) for y in pub(0, nt)] + pr)])
        qhead = [y for nt in range(NT) for y in pub(1, nt)]
        self.stamp()
        X = TMP + 8; CK = TMP + 2
        def tagcheck(mask):
            if mask == "0xff":
                L = [f"v_xor_b32 v{X+j}, s{S_TB+j%4}, v{X+j}" for j in range(4 * NI)] + [f"v_or_b32 v{CK}, v{X}, v{X+1}"]
                L += [f"v_or3_b32 v{CK}, v{CK}, v{X+j}, v{X+j+1}" for j in range(2, 4 * NI, 2)]
            else:
                L = [f"v_xor_b32 v{CK}, s{S_NONCE}, v{X}"] + [f"v_bitop3_b32 v{CK}, v{CK}, v{X+j}, s{S_NHI if j % 2 else S_NONCE} bitop3:0xf6" for j in range(1, 4 * NI)]
            return L + [f"v_and_b32 v{CK}, {mask}, v{CK}", f"v_cmp_ne_u32 vcc, 0, v{CK}"]
        lds_ = []
        for ii in range(NI):
            lds_ += [f"s_add_u32 s{T0}, s{S_P1LD}, {ii * (65536 // NI)}", f"buffer_load_dwordx4 {vq(X+4*ii)}, v{V_P1LD}, {srd(SWS)}, s{T0} offen sc1"]
        iss, chk = self.checked("L_h1", lds_, tagcheck("0xff"), 'h1')
        red = [f"v_add_f32 v{X+j}, v{X+j}, v{X+4*ii+j}" for ii in range(1, NI) for j in range(4)]
        red += [f"v_permlane32_swap_b32 v{X}, v{X+2}", f"v_permlane32_swap_b32 v{X+1}, v{X+3}", f"v_add_f32 v{X}, v{X}, v{X+2}", f"v_add_f32 v{X+1}, v{X+1}, v{X+3}",
                f"v_mov_b32 v{CK}, 0xffff", f"v_permlane16_swap_b32 v{X}, v{X+1}", f"v_add_f32 v{X}, v{X}, v{X+1}"]
        if not A: red.append(f"v_add_f32_dpp v{X}, v{X}, v{X} row_ror:8 row_mask:0xf bank_mask:0xf")
        red += [f"v_cvt_pk_bf16_f32 v{X}, v{X}, v{X}", f"v_bfi_b32 v{X}, v{CK}, v{V_VW}, v{X}"]
        st = (f"buffer_store_dword v{X}, v{V_P2ST}, {srd(SWS)}, s{S_P2ST} offen sc1", 'p2')
        sts = [st]
        for _ in range((1 << o.get('p2log', 2)) - 1): sts += [f"s_add_u32 s{S_P2ST}, s{S_P2ST}, {1 << 18}", st]
        red.append(sts if A else ["s_mov_b32 exec_lo, 0x00ff00ff", "s_mov_b32 exec_hi, 0x00ff00ff"] + sts + ["s_mov_b64 exec, -1"])
        n1, n2 = o.get('h1', (62, 84))
        hooks = {n1 + k: iss[2*k:2*k+2] for k in range(NI)}
        if pfp >= 100: hooks.setdefault(pfp - 100, []).extend(ipf)
        for k_, v_ in xq.items(): hooks.setdefault(k_, []).extend(v_)
        c_ = [x for _, x in cpf_]
        pc = o.get('pfchk', 13)
        hooks.setdefault(pc, []).extend(c_[:3]); hooks.setdefault(pc + 1, []).extend(c_[3:4]); hooks.setdefault(pc + 3, []).extend(c_[4:] + [lambda: setattr(self, 'pfok', True)])
        if 200 <= pp_ < 300: hooks.setdefault(pp_ - 200, []).extend(pre)
        qh = deque(qhead)
        for n in range(20): hooks.setdefault(n, []).append(lambda: self.gap(qh, 2))
        for fr_, pubg, rel in o.get('qbar', [(30, 12, [15]), (53, 13, [16]), (66, 14, [17]), (80, 14, [18])]):
            hooks.setdefault(fr_, []).extend([lambda g=pubg: self.group_sync(g)] + [lambda r=r: self.release(r) for r in rel])
        self.gemm_pass(2, ACC_K, xbp(2), fill=chk + [(1, x) for x in red], hooks=hooks, last=True, sync=False, frange=(n2, min(100, n2 + o.get('h1len', 16))),
                       pace=lambda n: 1 if (n >= 9 and n % (o.get('qpace', 3) if n < o.get('qsw', 42) else o.get('qpace2', 3)) == 0 and not n1 <= n < n1 + NI) else 0)
        assert not qh
        p("s_barrier")
        [self.release(r) for r in range(15, 20)]
        self.stamp()
        X = TMP + 96; CK = TMP + 92
        lds_ = [f"buffer_load_dwordx4 {vq(X+4*ii)}, v{V_LIN if ii < NI-1 else V_GAL}, {srd(SWS)}, s{S_P2LD} offen offset:{1024*ii if ii < NI-1 else 0} sc1" for ii in range(NI)]
        iss, chk = self.checked("L_h2", lds_, tagcheck("0xffff"), 'h2')
        zw = [f"v_mov_b32 v{CK}, 0", f"v_mov_b32 v{CK+1}, 0", f"ds_write_b64 v{V_ZA}, {vq(CK, 2)}"]
        self.put(zw)
        for k_ in range(o.get('dirty', 0)):
            p(f"s_add_u32 s{T0}, s{S_OP}, {(9 << 20) + (k_ // 5) * (6 << 20) + (k_ % 5) * 1024}")
            p(f"buffer_store_dwordx4 v[2:5], v{V_LIN}, {srd(SWS)}, s{T0} offen {o.get('dirtyf', '')}")
        if o.get('prepos', 0) == 1: self.put(pre)
        if not A:
            for tt in range(6): p(f"v_accvgpr_write_b32 a{40+4*(3*tt+2)+2}, 0"); p(f"v_accvgpr_write_b32 a{40+4*(3*tt+2)+3}, 0")
        if A:
            P0 = self.phiA_parts(x0, E0, M0_, "L_q0", True); P1 = self.phiA_parts(x1, E1, M1_, "L_q1", True)
            L = P0['cvt'] + self.weave(P0['mf'], P1['cvt'] + P0['exp'][:6]) + self.weave(P1['mf'], P0['exp'][6:]) + P0['norm'] + P0['out'] + P1['exp'] + P1['norm'] + P1['out']
        else:
            L = []
            for x, e in ((x0, E0), (x1, E1)):
                L += self.phiB(x, e, True) + [(1, f"v_mov_b32 v{x+10}, 0"), (1, f"v_mov_b32 v{x+11}, 0")]
        d1_, d2_ = o.get('oshift', (0, 0))
        Ld2 = L[len(L) - d2_:]; L = L[:len(L) - d2_]
        Ld1 = L[len(L) - d1_:]; L = L[:len(L) - d1_]
        tot = sum(c for c, _ in L); cut = tot - o.get('h2lead', 60)
        c = 0; k = 0
        while k < len(L) and c < cut: c += L[k][0]; k += 1
        self.run(L[:k], every=o.get('qev', 44))
        self.stamp('q0')
        self.flush_dma(('W', 17))
        self.stamp('q1')
        self.put(iss)
        if o.get('prepos', 0) == 0: self.put(pre)
        self.stamp('q2')
        self.run(L[k:], every=o.get('qev', 44))
        self.stamp()
        self.put([x for _, x in chk])
        for ii in range(NI):
            p(f"v_perm_b32 v{X+4*ii}, v{X+4*ii+1}, v{X+4*ii}, s{S_PERM}")
            p(f"v_perm_b32 v{X+4*ii+1}, v{X+4*ii+3}, v{X+4*ii+2}, s{S_PERM}")
            p(f"ds_write_b64 v{V_LA+ii}, {vq(X+4*ii, 2)}", 'kvw')
        self.put([x for _, x in Ld1])
        p.wait(lg='*')
        p("s_barrier")
        self.stamp()
        assert not self.dq or True
        import copy
        p(f"s_cmp_eq_u32 s{S_FAST}, 0"); p(f"s_cbranch_scc0 L_tail{self.sfx}s")
        env = dict(RS=RS, M0_=M0_, M1_=M1_, Ld2=Ld2)
        sv = (self.p, self.sfx, self.nst, getattr(self, 'cs', 0), deque(self.dq))
        self.p = Prog(); self.p.vmq = list(p.vmq); self.p.lgq = list(p.lgq); self.sfx += 's'
        self.p(f"L_tail{self.sfx}:")
        self.tail(False, **env)
        self.ool.append(self.p.finalize())
        self.p, self.sfx, self.nst, self.cs, self.dq = sv
        self.tail(True, **env)
        return p.finalize() + "".join(self.ool)
    def tail(self, fast, RS, M0_, M1_, Ld2):
        p = self.p; A = self.A; o = self.o; br = 0 if A else 1
        def more(k):
            while k > 0 and rds and len(p.lgq) < 15: self.put([rds.popleft()]); k -= 1
        OA = ACC_V
        NU = 5 if A else 3
        SP = TMP + 112
        OB = TMP + 64
        LO = TMP + 80
        fr = [(tt, u_) for tt in (5, 0, 1, 2, 3, 4) for u_ in range(NU)]
        AO = 40
        rds = deque()
        for n, (tt, u_) in enumerate(fr):
            if not A and u_ == 2: rds.append((f"ds_read_b64 {aq(AO+4*n, 2)}, v{V_FR2} offset:{4*tt*RS + 16*u_}", ('of', n)))
            else: rds.append((f"ds_read_b128 {aq(AO+4*n)}, v{V_FR2} offset:{4*tt*RS + 16*u_}", ('of', n)))
        more(10)
        if A: p(f"v_mov_b32 v{SP}, v{M0_}"); p(f"v_mov_b32 v{SP+1}, v{M1_}")
        self.put([x for _, x in Ld2])
        def ost(txt, tag='o'):
            p(txt + ("" if fast else " sc1"), tag)
        def flag(k): ost(f"buffer_store_dword v{V_NONCE}, v{V_FOWN}, {srd(SWS)}, s{S_FLAG} offen offset:{32*k}", 'fl')
        def poll(k, name):
            iss, chk = self.checked(name, [f"buffer_load_dword v{V_DUMP}, v{V_F8}, {srd(SWS)}, s{S_FLAG} offen offset:{32*k} sc1"], [f"v_cmp_ne_u32 vcc, s{S_NONCE}, v{V_DUMP}"], name)
            return iss, [x for _, x in chk]
        order = [(0, k) for k in range(5)] + [(1, k) for k in range(5)] + [(0, 5), (1, 5)]
        epi = deque()
        for z, (rt, k) in enumerate(order):
            dn = OA + (rt * 6 + 5) * 4
            b = OA + rt * 24
            rdy = (z + 1) * NU + o.get('rdy', 4)
            if k == 0:
                epi.append((rdy, 1, f"v_fmac_f32 v{dn}, {EPS}, v{SP+rt}" if A else f"v_add_f32 v{dn}, {EPS}, v{dn}")); epi.append((rdy, 2, f"v_rcp_f32 v{dn}, v{dn}"))
                continue
            tt = k - 1
            for r in range(4): epi.append((rdy, 1, f"v_mul_f32 v{b+4*tt+r}, v{b+4*tt+r}, v{dn}"))
            for h in range(2):
                i = 2 * tt + h
                d = OB + ((i // 4) * 2 + rt) * 4 + i % 4 if i < 8 else LO + 2 * rt + (i - 8)
                epi.append((rdy, 1, f"v_cvt_pk_bf16_f32 v{d}, v{b+2*i}, v{b+2*i+1}"))
            if tt in (1, 3):
                u_ = tt // 2
                epi.append((0, 2, lambda u_=u_, rt=rt: ost(f"buffer_store_dwordx4 {vq(OB+(u_*2+rt)*4)}, v{V_OO+rt*2+u_}, {srd(SO)}, s{S_OP} offen", ('S', rt))))
        epi.append((0, 2, lambda: ost(f"buffer_store_dwordx4 {vq(LO)}, v{V_OO+4}, {srd(SO)}, s{S_OP} offen", ('S', 1))))
        TM_ = o.get('tmaj', 3); LD = o.get('lead', 8); DF = o.get('df', 11); A_RING = A_PHI
        items = [(P, t_, (0, 1)) for P in range(2) for t_ in range(5)] + [(P, t_, (0,)) for P in range(2, 2 + LD) for t_ in range(5)] + \
                [(P, t_, (0, 1)) for P in range(2 + LD, 20) for t_ in range(5)] + [(P, t_, (1,)) for P in range(2, 2 + LD - TM_) for t_ in range(5)] + \
                [(P, t_, (1,)) for t_ in range(5) for P in range(2 + LD - TM_, 2 + LD)]
        def fread(i, hf):
            P, t_, _ = items[i]
            if True:
                if hf == 0:
                    off = RING + P * 5120 + 1024 * t_; hi = off >= 51200; s_ = A_RING + (i % DF) * 4
                    p(f"ds_read_b128 a[{s_}:{s_+3}], v{V_LINH if hi else V_LIN} offset:{off - 51200*hi}", ('FF', i))
                return
            off = RING + (P // 4) * SLOT + (P % 4) * 5120 + hf * 2560 + 8 * t_
            hi = off >= 51200; s_ = A_RING + (i % DF) * 4 + 2 * hf
            p(f"ds_read_b64_tr_b16 a[{s_}:{s_+1}], v{V_WT + hi} offset:{off - 51200*hi}", ('FF', i))
        pr = deque((i, 0) for i in range(DF - 1))
        m = 0; mf0 = o.get('mf0', 54 if A else 36); seen = set()
        for rt, k in order:
            for u_ in range(NU):
                n = k * NU + u_; tt = fr[n][0]
                a = OA + (rt * 6 + tt) * 4
                if m == 0: p.wait(lg=[('of', 0)])
                p(f"{MF} {vq(a)}, {aq(AO+4*n)}, {vq(ACC_K+20*rt+4*u_)}, {'0' if u_ == 0 else vq(a)}")
                m += 1
                if n + 1 < len(fr): p.wait(lg=[('of', n + 1)])
                bud = 2 if A else 3
                if m == mf0:
                    assert sum(1 for x in p.ins if x.tag == ('S', 0)) == 2
                    p.wait(vm=[('S', 0)]); flag(0); bud -= 2
                elif rds: more(1); bud -= 1 if not (epi and epi[0][0] <= m and epi[0][1] == 2) else 0
                elif self.dq and m % o.get('opace', 8) == 0: self.tick(); bud -= 2
                elif pr and not (epi and epi[0][0] <= m): fread(*pr.popleft()); bud -= 1
                while epi and epi[0][0] <= m and epi[0][1] <= bud:
                    _, c, x = epi.popleft(); bud -= c
                    self.put([x])
                    if callable(x): break
        while pr: fread(*pr.popleft())
        while len(epi) > 7: self.put([epi.popleft()[2]])
        while self.tick(): pass
        self.stamp()
        def ob(ks, rt):
            if ks < 2: return vq(OB + (ks * 2 + rt) * 4)
            return aq((ks * 2 + rt) * 4) if ks < 16 else vq(LO + (2 * (ks - 16) + rt) * 4)
        def ld(P, rt):
            if P < 16: return [(f"buffer_load_dwordx4 {aq((P*2+rt)*4)}, v{V_OO+rt*2+P%2}, {srd(SO)}, s{S_OP + P//2} offen sc1", ('O', P, rt))]
            return [(f"buffer_load_dwordx4 {vq(LO+(2*(P-16)+rt)*4)}, v{V_OO+4}, {srd(SO)}, s{S_OP + 2*(P-16) + rt} offen sc1", ('O', P, rt))]
        i0, c0 = poll(0, "L_f0"); i1, c1 = poll(1, "L_f1"); i2, c2 = poll(2, "L_d0"); i3, c3 = poll(3, "L_d1")
        L0x = min(16, 2 + LD + o.get('xlead', 0))
        lead = [ld(P, 0) for P in range(2, L0x)]
        rest = [ld(P, rt) for P in range(2 + LD, 20) for rt in range(2) if (P, rt) != (16, 0) and not (rt == 0 and P < L0x)] + [ld(P, 1) for P in range(2, 2 + LD)]
        def handshake():
            p.wait(vm=[('S', 1), ('W', 18), ('W', 19)])
            flag(1)
            self.put(c0)
            self.stamp()
            self.q(0, lead); self.q(10**6 + 50, rest)
            for k_ in range(o.get('oprime', 7)):
                self.tick()
                if k_ == 3: p("s_barrier")
                if k_ == 3 and o.get('p1it', -1) < 0: self.put(i1)
            p.wait(vm=[('O', 2, 0)])
        E0 = len(items) - 5 * LD
        NI_ = len(items)
        def outp(rt):
            b = TMP + 8
            c = self.cvt20(acc(ACC_K, 0, rt), b)
            L = []
            for j in range(5): L += [c[2*j][1], c[2*j+1][1], (f"ds_write_b64 v{V_OW}, {vq(b+2*j, 2)} offset:{rt*16*OUTS + 8*j}", 'ow')]
            L += [(f"ds_read_b128 {vq(TMP+24+4*j)}, v{V_ORD+j} offset:{rt*16*OUTS}", ('or', j)) for j in range(3)]
            S_ = [(f"buffer_store_dwordx4 {vq(TMP+24+4*j)}, v{V_OG+j}, {srd(SOUT)}, s{S_OUT} offen", 'out') for j in range(3)]
            return L, S_
        vw, lw, sc_, vec = {}, {}, {}, {}
        add = lambda d, i, L: d.setdefault(i, []).extend(L)
        def check(i, c, tag, gapn):
            add(vw, i, [tag]); add(vec, i, [c[1]]); add(sc_, i + gapn, [c[2]])
        ep = [x[2] for x in epi]
        add(vec, 1, ep[:3]); add(vec, 2, ep[3:6]); add(vec, 3, ep[6:])
        add(vec, o.get('p0pos', 4), i0)
        add(vec, 9, [handshake])
        if o.get('p1it', -1) >= 0: add(vec, 10 + o.get('p1it', -1), i1)
        ci = 10 + o.get('c1pos', 5); check(ci, c1, "L_f1", 2); add(sc_, ci + 2, [lambda: self.release(50)])
        for i in range(15, NI_ - 5 * TM_ + 1, 5):
            if i == NI_: break
            Pn, _, rn = items[i]
            tags = [('O', Pn, rt) for rt in rn]
            if i == NI_ - 5 * TM_: tags = [('O', 1 + LD, 1)]
            if Pn >= 16:
                a = LO + 2 * (Pn - 16) * 4
                add(vw, i - 2, tags); add(vec, i - 2, [f"v_swap_b32 v{a+2}, v{a+4}", f"v_swap_b32 v{a+3}, v{a+5}"])
            else: add(vw, i - 1, tags)
        nd0 = E0 - o.get('d0', 8); add(vw, nd0, [('O', 19, 0), ('O', 19, 1)]); add(vec, nd0, [lambda: flag(2)])
        add(vec, E0 + o.get('d0p', 0), i2)
        L0, S0 = outp(0)
        for j, x in enumerate(L0): add(vec, E0 + 2 + j, [x])
        nd1 = NI_ - o.get('d1', 24); add(vw, nd1, [('O', 1 + LD, 1)]); add(vec, nd1, [lambda: flag(3)])
        check(E0 + 22, c2, "L_d0", 2)
        for j, x in enumerate(S0): add(lw, E0 + 25 + 2 * j, [('or', j)]); add(vec, E0 + 25 + 2 * j, [x])
        L1, S1 = outp(1)
        n1e = 0
        if TM_:
            for j in range(15):
                pos = NI_ - 5 * TM_ + (j // 3 + 1) * TM_ + 2 + j % 3
                if pos < NI_: add(vec, pos, [L1[j]]); n1e = j + 1
        add(vec, NI_ - o.get('d1p', 8), i3)
        add(sc_, NI_ - 5, [f"s_or_b32 s{T0}, s{S_RB}, s{S_HEAD}"]); add(sc_, NI_ - 4, [f"s_cmp_lg_u32 s{T0}, 0"]); add(sc_, NI_ - 3, [f"s_cselect_b32 s{T0}, {WS_SIZE}, 0"])
        add(vec, NI_ - 2, [(f"buffer_store_dword v{V_NONCE}, v{V_FOWN}, {srd(SWS)}, s{T0} offen offset:{br*128} sc1", 'nn')])
        p.wait(lg=[('FF', 0)])
        clk = 0.0; per = o.get('lper', 4.6)
        for i, (P, t_, rts) in enumerate(items):
            s_ = A_RING + (i % DF) * 4
            for z, rt in enumerate(rts):
                a = acc(ACC_K, t_, rt)
                p(f"{MF} {vq(a)}, {aq(s_)}, {ob(P, rt)}, {'0' if P == 0 else vq(a)}")
                if z == 0:
                    k0 = len(p.ins)
                    for tg in vw.get(i, []): self.flush_dma(tg)
                    p.wait(vm=vw.get(i), lg=[('FF', i + 1)] + lw.get(i, []))
                    if len(rts) == 1: self.put(sc_.get(i, []))
                    if i + DF - 1 < NI_:
                        if len(p.ins) == k0: p("s_nop 0")
                        fread(i + DF - 1, 0)
                else: self.put(sc_.get(i, []))
            self.stamp('z%d' % i)
            if i >= 10:
                clk += len(rts)
                if clk >= per and i not in vec and self.tick(): clk -= per
            self.put(vec.get(i, []))
        self.stamp()
        p(f"s_add_u32 s{S_OUT}, s{S_OUT}, {16*2560}")
        self.put(L1[n1e:12]); self.put(c3[:2]); self.put(L1[12:]); self.put(c3[2:])
        for j in range(3): p.wait(lg=[('or', j)]); self.put([S1[j]])
        if o.get('stamps'):
            p("s_waitcnt vmcnt(0)")
            self.stamp()
            p("s_memrealtime s[100:101]")
            p("s_waitcnt lgkmcnt(0)")
            p.raw(f"""
            s_lshl_b32 s{T0}, s2, 2
            s_add_u32 s{T0}, s{T0}, s{S_W}
            s_lshl_b32 s{T0}, s{T0}, 6
            s_add_u32 s{T0}, s{T0}, {WS_ST}
            v_mov_b32 v{TMP+16}, 0
            v_mov_b32 v{TMP}, s98
            v_mov_b32 v{TMP+1}, s100
            """)
            for k in range(14): p(f"v_mov_b32 v{TMP+2+k}, {'s%d' % (S_ST+k) if k < self.nst else ('s95' if k == 13 else 0)}")
            p("s_mov_b64 exec, 1")
            for k in range(4): p(f"buffer_store_dwordx4 {vq(TMP+4*k)}, v{TMP+16}, {srd(SWS)}, s{T0} offen offset:{16*k}")
        if o.get('amp'):
            p("s_waitcnt vmcnt(0)")
            self.stamp()
            if o['amp'][0] < 0: p("s_mov_b32 s100, s98")
            p.raw(f"""
            s_and_b32 s{T0}, s2, 7
            s_lshr_b32 s{T0}, {o['amp'][2]}, s{T0}
            s_bitcmp1_b32 s{T0}, 0
            s_cbranch_scc0 L_ampx{self.sfx}
            s_load_dwordx2 s[62:63], s[0:1], 64
            v_mov_b32 v2, 0
            s_waitcnt lgkmcnt(0)
            global_load_dword v3, v2, s[62:63] sc1
            s_waitcnt vmcnt(0)
            v_readfirstlane_b32 s{T2}, v3
            s_not_b32 s{T2}, s{T2}
            s_sub_u32 s{T0}, s100, s{T2}
            s_add_u32 s{T0}, s{T0}, 300
            s_mul_i32 s{T0}, s{T0}, {o['amp'][1]}
            s_min_u32 s{T0}, s{T0}, 100000
            L_amp{self.sfx}:
            s_sleep 2
            s_memrealtime s[64:65]
            s_waitcnt lgkmcnt(0)
            s_sub_u32 s{T1}, s64, s{T2}
            s_cmp_lt_u32 s{T1}, s{T0}
            s_cbranch_scc1 L_amp{self.sfx}
            L_ampx{self.sfx}:
            """)
        p("s_endpgm")
        assert not self.dq

def sizes(lines):
    import subprocess, re
    src = '.amdgcn_target "amdgcn-amd-amdhsa--gfx950"\n.text\n' + "\n".join(lines) + "\n"
    r = subprocess.run(["llvm-mc", "-triple=amdgcn-amd-amdhsa", "-mcpu=gfx950", "-show-encoding"], input=src, capture_output=True, text=True)
    assert r.returncode == 0, r.stderr[:2000]
    return [len(m.split(',')) for m in re.findall(r'encoding: \[([^\]]*)\]', r.stdout)]
def add_hops(text, sfx, align=True):
    lines = text.split("\n")
    i0 = lines.index(f"L_main{sfx}:"); i1 = next(i for i in range(i0, len(lines)) if lines[i].strip() == "s_endpgm")
    body = lines[i0 + 1:i1]
    isi = lambda l: l.startswith("    ")
    szl = sizes([l for l in body if isi(l)])
    insl = [l.strip() for l in body if isi(l)]
    big = [z == 8 and t.startswith("v_") and not t.startswith("v_mfma") for z, t in zip(szl, insl)]
    run = [0] * (len(big) + 1)
    for k in range(len(big) - 1, -1, -1): run[k] = run[k + 1] + 1 if big[k] else 0
    sz = iter(szl); k = -1; nfix = 0
    out = []; addr = 0; page = 0; prev = "v_mfma"
    for l in body:
        if isi(l):
            k += 1
            if align and run[k] >= 3 and addr % 8 == 4:
                pv = out[-1] if isinstance(out[-1], str) else ""
                op = pv.split()[0] if pv.strip() else ""
                if isi(pv) and szl[k - 1] == 4 and op.startswith("v_") and not op.startswith(("v_cmp", "v_swap", "v_permlane", "v_readfirst")):
                    out[-1] = pv.replace(op, op + "_e64", 1); addr += 4; nfix += 1
                elif run[k] >= 6: out.append("    s_nop 0"); addr += 4; nfix += 1
            off = addr - page * 4096
            if off >= 0 and (prev.startswith("v_mfma") or off >= 40) and not prev.startswith("s_mov_b64 exec") :
                out.append(("hop", page)); addr += 4; page += 1
            addr += next(sz); prev = l.strip()
        out.append(l)
    assert page >= 4
    res = []
    for x in out:
        if isinstance(x, tuple):
            k = x[1]
            res += [f"L_hop{k}{sfx}:", f"    s_cbranch_execz " + (f"L_hop{k+4}{sfx}" if k + 4 < page else f"L_hopret{sfx}")]
        else: res.append(x)
    print(sfx, "main bytes", addr, "align fixes", nfix, file=sys.stderr)
    return "\n".join(lines[:i0 + 1] + res + lines[i1:])

def build(opt):
    ref = open(f"cdna_kernels/{NAME}.s.ref").read().split("\n")
    head = [l for l in ref if l.startswith(";") and "@launch" not in l]
    s = "\n".join(head) + "\n; @launch grid=(256,1,1) block=(256,1,1) lds=163840\n"
    s += f""".amdgcn_target "amdgcn-amd-amdhsa--gfx950"
.text
.globl {NAME}_kernel
.p2align 12
.p2align 8
.type {NAME}_kernel,@function
{NAME}_kernel:
    s_cmp_ge_u32 s2, 256
    s_cbranch_scc1 L_exit
"""
    ga = Gen(True, opt); ta = ga.body(); gb = Gen(False, opt); tb = gb.body()
    ca, ra = ta.split(".split\n"); cb, rb = tb.split(".split\n")
    assert ca == cb
    if opt.get('hops', 1): ra = add_hops(ra, 'A', opt.get('align', 1)); rb = add_hops(rb, 'B', opt.get('align', 1))
    s += ca + ra + "L_exit:\n    s_endpgm\n.p2align 12\n" + rb
    s += ".fill 2048, 4, 0xbf810000\n"
    s += f""".section .rodata,"a"
.p2align 6
.amdhsa_kernel {NAME}_kernel
  .amdhsa_next_free_vgpr 512
  .amdhsa_next_free_sgpr 102
  .amdhsa_accum_offset 256
  .amdhsa_group_segment_fixed_size 0
  .amdhsa_kernarg_size 80
  .amdhsa_user_sgpr_count 2
  .amdhsa_user_sgpr_kernarg_segment_ptr 1
  .amdhsa_system_sgpr_workgroup_id_x 1
.end_amdhsa_kernel
"""
    print("nops", ga.p.nops, gb.p.nops, "instrs", len(ga.p.ins), len(gb.p.ins), "autow", getattr(ga.p, 'autow', 0), file=sys.stderr)
    return s

if __name__ == "__main__":
    import json
    opt = json.loads(sys.argv[2]) if len(sys.argv) > 2 else {}
    open(sys.argv[1], "w").write(build(opt))
```

```python
import sys
from collections import deque
from emit import Prog
NAME = "concat_heads__linear_kernel_hedgehog__linear_attn_block__prompt"

S_RB, S_HG, S_W = 4, 5, 7
SX, SW, SWO, SWS, SOUT, SPHI = 8, 12, 16, 20, 24, 28
S_NONCE = 32
S_WROW = 33
S_XBASE, S_XU = 38, 39
S_LW, S_LR = 40, 41
T0, T1, T2, T3 = 42, 43, 44, 45
S_WOROW = 46
S_HEAD = 51
S_SPIN = 52
S_FAST = 53
S_L2E, S_NL2E = 54, 55
S_OB = 56
S_WS, S_XS = 57, 58
S_FLAG = 59
S_OP = 60
S_P1ST, S_P1LD, S_P2ST, S_P2LD, S_OWN, S_OUT, S_XCCV, S_PERM = 68, 69, 70, 71, 72, 73, 74, 75
S_KA = 76
S_ST = 76
import os
if os.environ.get('PRO'): S_ST = 88
def srd(b): return f"s[{b}:{b+3}]"
V_LANE = 1
V_WO = 2; V_OF = 7; V_OL = 12; V_XO = 17; V_XR = 21; V_WT = 23; V_LIN = 25
V_PW, V_VW, V_KB, V_KA0, V_KA1, V_FR = 26, 27, 28, 29, 30, 31
ACC_K, ACC_V = 32, 72
TMP = 112
PV = 228
V_P1ST, V_P1LD, V_P2ST, V_GAL, V_LA, V_FR2, V_KEEP, V_ONE, V_OW, V_ORD, V_OG, V_F8, V_DUMP, V_ZA = PV, PV+1, PV+2, PV+3, PV+4, PV+8, PV+9, PV+10, PV+11, PV+12, PV+17, PV+22, PV+23, PV+24
V_L128, V_NONCE, V_FOWN = PV + 25, PV + 26, PV + 27
RING = 0; SLOT = 20480; RBASE = 102400; RW = 15360
OUTL = RBASE + 16384; OUTS = 176
WS_FLAG, WS_XCC, WS_P2, WS_P1, WS_O, WS_ST = 4096, 32768, 5 << 20, 1 << 20, 8 << 20, 16 << 20
WS_SIZE = 32 << 20
D = 6
A_RING = 220
A_PHI = 160
A_PARK = 244
V_OO = 7; V_LINH = 12; V_PF = 13; V_P1M = 14
WS_PF = 49152; WS_PK = 6 << 20
S_USRC, S_UDST, S_UFL, S_UTAG, S_PFL, S_XA = 3, 6, 72, 90, 91, 93
S_TB = SX
S_NHI = 38
SO = SPHI
SPIN_MAX = 20000
EPS = "0x358637bd"

def vq(b, n=4): return f"v[{b}:{b+n-1}]"
def aq(b, n=4): return f"a[{b}:{b+n-1}]"
def acc(base, t, rt): return base + (rt * 5 + t) * 4
MF = "v_mfma_f32_16x16x32_bf16"

DEF = {'A': dict(xpos=(117, 190, 222), qpace=4, pfpos=101, pfchk=28, prokeep=4, proev=60, h1=(46, 72), h1len=8, h2lead=180, prelead=60, kpace=4, hx=30, vsync=1, qev=26), 'B': dict(xpos=(117, 190, 222), upos=(18, 18, 62), pfpos=101, pfchk=28, h1=(50, 76), h1len=5, h2lead=80, prem=(283, -70, -30), vpace=3, qev=24, vsync=1)}
class Gen:
    def __init__(self, isA, opt):
        self.A = isA
        sf = 'A' if isA else 'B'
        opt = dict(DEF[sf], **opt)
        opt.update({k[:-1]: v for k, v in opt.items() if k.endswith(sf)})
        self.o = opt
        self.p = Prog(); self.sfx = 'A' if isA else 'B'
        self.F = 40 if isA else 20
        self.nst = 0
        self.dq = deque()
        self.pos = 0
        self.ool = []
    def stamp(self, name=None):
        p = self.p
        if name is None and self.o.get('idle'):
            self.ic = getattr(self, 'ic', -1) + 1
            if self.ic == self.o['idle'][0]: p(f"s_sleep {self.o['idle'][1]}")
        fine = self.o.get('fine')
        if fine:
            if name is None: self.cs = getattr(self, 'cs', 0) + 1; name = 's%d' % (self.cs - 1)
            if name not in fine: return
        elif name is not None: return
        if self.o.get('amp'):
            if self.nst == self.o['amp'][0]:
                p("s_memrealtime s[100:101]"); p("s_waitcnt lgkmcnt(0)")
            self.nst += 1
            return
        if not self.o.get('stamps'): return
        p(f"s_memrealtime s[100:101]" if self.o.get('rt') else f"s_memtime s[100:101]")
        p("s_waitcnt lgkmcnt(0)")
        p(f"s_sub_u32 s{S_ST+self.nst}, s100, {'s98' if self.o.get('rt') else 's96'}")
        self.nst += 1
    def put(self, L):
        for x in L:
            if isinstance(x, tuple): self.p(x[0], x[1])
            elif isinstance(x, list): self.put(x)
            elif callable(x): x()
            else: self.p(x)
    def dma_w(self, G):
        g = G % 5
        pre = [f"s_add_u32 m0, s{S_LW}, {RING + g*SLOT}"]
        if G < 15:
            col = {0: 1280, 1: 2560, 2: 0}[G // 5]
            gr = 4 - g if G // 5 in self.o.get('rev', [1, 2]) else g
            pre.append(f"s_add_u32 s{S_WS}, s{S_WROW+gr}, {col}"); so = f"s{S_WS}"; sd = SW; vo = V_WO
        else:
            items = []
            for j in range(5):
                off = f"offset:{j*1024} " if 0 < j < 4 else ""
                L = (pre if j == 0 else []) + [(f"buffer_load_dwordx4 v{V_LIN}, {srd(SWS)}, s{S_WOROW+g} offen {off}sc1 lds", ('W', G))]
                if j == 3: L += [f"s_add_u32 m0, s{S_LW}, {RING + g*SLOT + 4096}", f"s_add_u32 s{S_WOROW+g}, s{S_WOROW+g}, 4096"]
                items.append(L)
            return items
        items = []
        if G // 5 in self.o.get('fake', []):
            base = (G % 5) * 4 * 5120 + (G // 5 if G < 15 else 0) * 819200
            if self.o.get('fakerot'):
                pre = [pre[0], f"s_mul_hi_u32 s{S_WS}, s{S_WROW+gr}, 34953", f"s_mul_i32 s{S_WS}, s{S_WS}, 5120", f"s_add_u32 s{S_WS}, s{S_WS}, s94", f"s_sub_u32 s{S_WS}, s{S_WS}, s{S_LW}",
                       f"s_add_u32 s{S_WS}, s{S_WS}, {(G // 5) * 819200}"]
            else: pre = [pre[0], f"s_add_u32 s{S_WS}, s94, {base}"]
            for j in range(5):
                off = f"offset:{j*1024} " if 0 < j < 4 else ""
                L = (pre if j == 0 else []) + [(f"buffer_load_dwordx4 v{V_LIN}, {srd(sd)}, s{S_WS} offen {off}lds", ('W', G))]
                if j == 3: L += [f"s_add_u32 m0, s{S_LW}, {RING + g*SLOT + 4096}", f"s_add_u32 s{S_WS}, s{S_WS}, 4096"]
                items.append(L)
            return items
        for j in range(5):
            off = f"offset:{j*1024} " if 0 < j < 4 else ""
            L = (pre if j == 0 else []) + [(f"buffer_load_dwordx4 v{vo+j}, {srd(sd)}, {so} offen {off}lds", ('W', G))]
            if j == 3: L.append(f"s_add_u32 m0, s{S_LW}, {RING + g*SLOT + 4096}")
            items.append(L)
        return items
    def dma_x(self, pu):
        items = []
        for j in range(4):
            off = f"offset:{j*1024} " if j else ""
            L = []
            if j == 0: L += [f"s_add_u32 m0, s{S_LR}, {(pu % 3) * 4096}", f"s_add_u32 s{S_XS}, s{S_XU}, s{S_XBASE}"]
            L.append((f"buffer_load_dwordx4 v{V_XO+j}, {srd(SX)}, s{S_XS} offen {off}lds", ('X', pu)))
            if j == 0: L += [f"s_add_u32 s{S_XU}, s{S_XU}, 128"]
            if j == 1: L += [f"s_cmp_eq_u32 s{S_XU}, 1280", f"s_cselect_b32 s{S_XU}, 0, s{S_XU}"]
            items.append(L)
        return items
    def q(self, earliest, items):
        for it in items: self.dq.append((earliest, it))
    def release(self, k):
        self.dq = deque((0 if e == 10**6 + k else e, it) for e, it in self.dq)
    def tick(self):
        if self.dq and not getattr(self, 'pfok', False) and any(isinstance(x, tuple) and x[1] == ('W', 15) for x in self.dq[0][1]): return False
        if self.dq and self.dq[0][0] <= self.pos:
            self.put(self.dq.popleft()[1]); return True
        return False
    def flush_dma(self, tag):
        def has():
            return any(isinstance(x, tuple) and x[1] == tag for _, it in self.dq for x in it)
        while has():
            assert self.dq[0][0] <= self.pos, (tag, self.pos, self.dq[0])
            self.put(self.dq.popleft()[1])
    def run(self, L, every=30):
        c = 0
        for cost, x in L:
            self.put([x]); c += cost
            if c >= every: c = 0; self.tick()
    def wread(self, N, hf):
        G = N // 20; ks = (N % 20) // 5; t = N % 5
        off = RING + (G % 5) * SLOT + ks * 5120 + hf * 2560 + 8 * t
        hi = off >= 51200
        s = A_RING + (N % D) * 4 + 2 * hf
        if G // 5 in self.o.get('fake', []):
            if hf == 0:
                off = RING + (G % 5) * SLOT + ks * 5120 + 1024 * t
                hi = off >= 51200
                self.p(f"ds_read_b128 a[{s}:{s+3}], v{226 + hi} offset:{off - 51200*hi}", ('F', N))
            return
        self.p(f"ds_read_b64_tr_b16 a[{s}:{s+1}], v{V_WT + hi} offset:{off - 51200*hi}", ('F', N))
    def group_sync(self, G):
        self.flush_dma(('W', G))
        self.p.wait(vm=[('W', G)])
        self.p("s_barrier")
    def xread(self, pu, k):
        ksub, rt = divmod(k, 2)
        if k == 0:
            self.flush_dma(('X', pu)); self.p.wait(vm=[('X', pu)])
        a = ((2 * pu + ksub) * 2 + rt) * 4
        self.p(f"ds_read_b128 {aq(a)}, v{V_XR+ksub} offset:{(pu % 3)*4096 + rt*2048}", ('XR', pu))
    def prime(self, ps, sync=True):
        if sync: self.group_sync(ps * 5)
        for n in range(D - 1):
            self.wread(ps * 100 + n, 0); self.wread(ps * 100 + n, 1)
    def gemm_pass(self, ps, accb, bop, fill=None, hooks=None, last=False, pace=None, sync=True, frange=(0, 100), hooks0=None):
        p = self.p
        fill = deque(fill or []); hooks = hooks or {}; hooks0 = hooks0 or {}
        N0 = ps * 100
        p.wait(lg=[('F', N0), ('XR', 0)])
        pace = pace or (lambda n: 0)
        for n in range(100):
            self.pos = N0 + n
            ks, t = divmod(n, 5)
            s = A_RING + ((N0 + n) % D) * 4
            M = n + D - 1
            look = M < 100 or not last
            a = acc(accb, t, 0)
            p(f"{MF} {vq(a)}, {aq(s)}, {bop(ks, 0)}, {'0' if ks == 0 else vq(a)}")
            k0 = len(p.ins)
            if n < 99:
                tg = [('F', N0 + n + 1)]
                if ps == 0 and (n + 1) % 10 == 0: tg.append(('XR', (n + 1) // 10))
                p.wait(lg=tg)
            if n in hooks0: self.put(hooks0[n])
            if look:
                if M % 20 == 0 and sync: self.group_sync((N0 + M) // 20)
                if len(p.ins) == k0: p("s_nop 0")
                self.wread(N0 + M, 0); self.wread(N0 + M, 1)
                if ps in self.o.get('fake', []) and fill and n >= frange[0] and not isinstance(fill[0][1], tuple): self.gap(fill, 1 if fill[0][0] < 2 or n % 2 else 2)
            elif fill and n >= frange[0]: self.gap(fill, 2)
            a = acc(accb, t, 1)
            p(f"{MF} {vq(a)}, {aq(s)}, {bop(ks, 1)}, {'0' if ks == 0 else vq(a)}")
            self.pos = N0 + n + 1
            self.stamp('n%d' % (N0 + n))
            did = 0
            for _ in range(pace(n)): did += self.tick()
            if n in hooks: self.put(hooks[n])
            if fill and n >= frange[0]:
                left = sum(c for c, _ in fill)
                gaps = sum(1 for k in range(n, frange[1]) if not pace(k)) + (min(D - 1, 99 - n) if last and frange[1] == 100 else 0)
                bud = 0 if did else 2
                if left > (3 if ps in self.o.get('fake', []) else 2) * gaps: bud += 2
                if ps == 2 and left > 4 * gaps: bud = -(-left // max(gaps, 1))
                self.gap(fill, bud)
        while fill: self.put([fill.popleft()[1]])
        self.pos = N0 + 100
    def gap(self, fill, bud):
        first = True
        while fill:
            c, x = fill[0]
            solo = isinstance(x, tuple)
            if c > bud or (solo and not first): break
            fill.popleft(); self.put([x]); bud -= c
            if solo: break
            if c: first = False
    def cvt20(self, src, dst):
        return [(1, f"v_cvt_pk_bf16_f32 v{dst+i}, v{src+2*i}, v{src+2*i+1}") for i in range(10)]
    def phiA_parts(self, x, e, m, name, isq):
        P = {}
        kb = e + 28
        P['cvt'] = self.cvt20(x, kb) + [(1, f"v_mov_b32 v{kb+10}, 0"), (1, f"v_mov_b32 v{kb+11}, 0")]
        P['mf'] = [(2, f"{MF} {vq(x+4*t)}, {aq(A_PHI + (t*3+u)*4)}, {vq(kb+4*u)}, {'0' if u == 0 else vq(x+4*t)}") for t in range(5) for u in range(3)]
        P['exp'] = [(2, f"v_exp_f32 v{e+i}, v{x+i}") for i in range(20)] + [(2, f"v_exp_f32 v{e+20+i}, -v{x+i}") for i in range(20)]
        def sums():
            L = [f"v_pk_add_f32 v[{m+2*h}:{m+2*h+1}], v[{e+20*h}:{e+20*h+1}], v[{e+20*h+2}:{e+20*h+3}]" for h in range(2)]
            L += [f"v_pk_add_f32 v[{m+2*h}:{m+2*h+1}], v[{m+2*h}:{m+2*h+1}], v[{e+20*h+2*i}:{e+20*h+2*i+1}]" for i in range(2, 10) for h in range(2)]
            L += [f"v_add_f32 v{m+2*h}, v{m+2*h}, v{m+2*h+1}" for h in range(2)]
            return L
        nm = name + self.sfx
        L = sums() + [f"v_max_f32 v{m+1}, v{m}, v{m+2}", f"v_cmp_ngt_f32 vcc, 0x5d800000, v{m+1}"]
        if not isq: L.append(f"v_rcp_f32 v{m+4}, v{m}")
        L += [f"v_rcp_f32 v{m+2}, v{m+2}", [f"s_cbranch_vccnz {nm}_slow", f"{nm}_back:"]]
        o = Prog()
        o(f"{nm}_slow:")
        o(f"v_max3_f32 v{m}, v{x}, v{x+1}, v{x+2}"); o(f"v_min3_f32 v{m+1}, v{x}, v{x+1}, v{x+2}")
        for i in range(3, 19, 2):
            o(f"v_max3_f32 v{m}, v{m}, v{x+i}, v{x+i+1}"); o(f"v_min3_f32 v{m+1}, v{m+1}, v{x+i}, v{x+i+1}")
        o(f"v_max_f32 v{m}, v{m}, v{x+19}"); o(f"v_min_f32 v{m+1}, v{m+1}, v{x+19}")
        for i in range(20): o(f"v_sub_f32 v{e+i}, v{x+i}, v{m}"); o(f"v_sub_f32 v{e+20+i}, v{m+1}, v{x+i}")
        for i in range(40): o(f"v_exp_f32 v{e+i}, v{e+i}")
        for y in sums(): o(y)
        if not isq: o(f"v_rcp_f32 v{m+4}, v{m}")
        o(f"v_rcp_f32 v{m+2}, v{m+2}"); o("s_nop 1"); o(f"s_branch {nm}_back")
        self.ool.append(o.finalize())
        if isq: L.append(f"v_mul_f32 v{m+2}, v{m+2}, v{m}")
        else: L += [f"v_pk_mul_f32 v[{e+2*i}:{e+2*i+1}], v[{e+2*i}:{e+2*i+1}], v[{m+4}:{m+5}] op_sel_hi:[1,0]" for i in range(10)]
        L += [f"v_pk_mul_f32 v[{e+20+2*i}:{e+21+2*i}], v[{e+20+2*i}:{e+21+2*i}], v[{m+2}:{m+3}] op_sel_hi:[1,0]" for i in range(10)]
        if self.o.get('whatif') == ('q' if isq else 'k'): L = [y for y in L if not (isinstance(y, str) and y.startswith('v_pk_add') and y.split()[1] == y.split()[2])]
        P['norm'] = [(1, y) for y in L]
        P['out'] = [(1, f"v_cvt_pk_bf16_f32 v{x+i}, v{e+2*i}, v{e+2*i+1}") for i in range(20)]
        return P
    def weave(self, mf, va, per=2):
        va = deque(va); L = []
        for x in mf:
            L.append(x); b = per
            while va and va[0][0] <= b: b -= va[0][0]; L.append(va.popleft())
        return L + list(va)
    def phiB(self, x, e, packed):
        L = []
        if packed: L += [(1, f"v_pk_mul_f32 v[{e+2*i}:{e+2*i+1}], v[{x+2*i}:{x+2*i+1}], s[{S_L2E}:{S_NL2E}] op_sel_hi:[1,0]") for i in range(10)]
        else: L += [(1, f"v_mul_f32 v{e+i}, s{S_L2E}, v{x+i}") for i in range(20)]
        L += [(2, f"v_exp_f32 v{e+i}, v{e+i} clamp") for i in range(20)]
        L += [(1, f"v_max_f32 v{x+i}, {EPS}, v{x+i}") for i in range(20)]
        if packed: L += [(1, f"v_pk_add_f32 v[{e+2*i}:{e+2*i+1}], v[{e+2*i}:{e+2*i+1}], v[{x+2*i}:{x+2*i+1}]") for i in range(10)]
        else: L += [(1, f"v_add_f32 v{e+i}, v{e+i}, v{x+i}") for i in range(20)]
        L += self.cvt20(e, x)
        return L
    def checked(self, name, loads, check, tag):
        nm = name + self.sfx
        iss = [(x, tag) if x.startswith('buffer') else x for x in loads]
        chk = [(0, lambda: self.p.wait(vm=[tag]))] + [(1, x) for x in check] + [(1, [f"s_cbranch_vccnz {nm}_retry", f"{nm}_ok:"])]
        o = Prog()
        o(f"{nm}_retry:"); o(f"s_mov_b32 s{S_SPIN}, 0")
        if self.o.get('cnt') == name: o("s_mov_b32 s95, 1")
        o(f"{nm}_loop:")
        if self.o.get('stamps'): o(f"s_add_u32 s95, s95, {dict(L_xc=1000000, L_h1=10000, L_h2=1000, L_pf=10000000, L_f0=1, L_f1=100, L_d0=0, L_d1=100000)[name]}")
        bk = self.o.get('backoff', {}).get(name, 0)
        if bk: o(f"s_sleep {bk}")
        for x in loads: o(x)
        o("s_waitcnt vmcnt(0)")
        for x in check: o(x)
        o(f"s_cbranch_vccz {nm}_ok")
        o(f"s_add_u32 s{S_SPIN}, s{S_SPIN}, 1"); o(f"s_cmp_lt_u32 s{S_SPIN}, {SPIN_MAX}"); o(f"s_cbranch_scc1 {nm}_loop")
        o(f"s_branch {nm}_ok")
        self.ool.append(o.finalize())
        return iss, chk
    def body(self):
        p = self.p; A = self.A; F = self.F; br = 0 if A else 1; o = self.o
        t = TMP
        K = S_KA
        kx, kw, kout, kws = K, K + 2, K + 8, K + 10
        kphi, kwo = (K + 4, K + 6) if A else (None, K + 4)
        p.raw(f"""
        s_andn2_b32 s{T0}, 1, s2
        s_lshl_b32 s{T0}, s{T0}, 5
        s_load_dwordx8 s[{K}:{K+7}], s[0:1], s{T0}
        s_load_dwordx2 s[{kout}:{kout+1}], s[0:1], 56
        s_load_dwordx2 s[{kws}:{kws+1}], s[0:1], 72
        """)
        if o.get('stamps'): p("s_memtime s[96:97]"); p("s_mov_b32 s95, 0")
        if o.get('stamps') or o.get('amp') or o.get('cntm'): p("s_memrealtime s[98:99]")
        if o.get('cntm'): p("s_mov_b32 s95, 0")
        p.raw(f"""
        s_getpc_b64 s[60:61]
        L_pc:
        s_bfe_u32 s{S_HG}, s2, 0x30003
        v_and_b32 v{V_LANE}, 63, v0
        v_lshrrev_b32 v{t}, 6, v0
        s_bitcmp0_b32 s2, 0
        s_cselect_b32 s{T1}, L_setupB-L_setupA, 0
        s_lshl_b32 s{T0}, s{S_HG}, 12
        v_lshlrev_b32 v{V_L128}, 7, v{V_LANE}
        v_readfirstlane_b32 s{S_W}, v{t}
        s_add_u32 s{T0}, s{T0}, s{T1}
        s_add_u32 s{T0}, s{T0}, L_setupA-L_pc
        s_add_u32 s60, s60, s{T0}
        s_addc_u32 s61, s61, 0
        v_lshl_add_u32 v{t+1}, v{t}, 10, v{V_L128}
        s_mov_b64 exec, 0xff
        """)
        p(f"global_load_dword v{V_DUMP}, v{t+1}, s[60:61]", 'cpf')
        p("s_mov_b64 exec, -1")
        ra, rbm, rdiv = o.get('rot', (10, 10, 4))
        p.raw(f"""
        s_and_b32 s{S_RB}, s2, 6
        s_lshl_b32 s{S_RB}, s{S_RB}, 1
        s_lshr_b32 s{T0}, s2, 6
        s_add_u32 s{S_RB}, s{S_RB}, s{T0}
        s_mul_i32 s{T0}, s{S_HG}, {ra}
        s_mul_i32 s{T1}, s{S_RB}, {rbm}
        s_add_u32 s{T0}, s{T0}, s{T1}
        s_lshr_b32 s{T0}, s{T0}, {rdiv.bit_length()-1}
        s_mul_i32 s{T1}, s{T0}, 6554
        s_lshr_b32 s{T1}, s{T1}, 16
        s_mul_i32 s{T1}, s{T1}, 10
        s_sub_u32 s{T3}, s{T0}, s{T1}
        s_lshl_b32 s{S_XU}, s{T3}, 7
        s_lshl_b32 s{T0}, s{S_RB}, 2
        s_add_u32 s{T0}, s{T0}, s{S_W}
        s_mul_i32 s{S_XBASE}, s{T0}, 40960
        s_mul_i32 s{S_LW}, s{S_W}, 5120
        s_mul_i32 s{S_LR}, s{S_W}, {RW}
        s_add_u32 s{S_LR}, s{S_LR}, {RBASE}
        v_lshrrev_b32 v{t}, 3, v{V_LANE}
        v_mul_u32_u24 v{t}, 1280, v{t}
        v_lshrrev_b32 v{t+1}, 4, v{V_LANE}
        v_xor_b32 v{t+1}, v{t+1}, v{V_LANE}
        v_and_b32 v{t+1}, 7, v{t+1}
        v_lshl_add_u32 v{V_XO}, v{t+1}, 4, v{t}
        v_xor_b32 v{t+2}, 64, v{V_XO}
        v_add_u32 v{V_XO+1}, {9216}, v{t+2}
        v_add_u32 v{V_XO+2}, {2*9216}, v{V_XO}
        v_add_u32 v{V_XO+3}, {3*9216}, v{t+2}
        s_lshr_b32 s{T0}, s{S_W}, 1
        s_add_u32 s{T0}, s{T0}, s{T3}
        s_and_b32 s{T1}, s{S_W}, 1
        s_mul_i32 s{T1}, s{T1}, {32*3840}
        s_mul_i32 s{T2}, s{S_HG}, 160
        s_add_u32 s{T1}, s{T1}, s{T2}
        s_mov_b32 s{SX+2}, 2621440
        s_mov_b32 s{SX+3}, 0x20000
        s_mov_b32 s{SW+2}, 2457600
        s_mov_b32 s{SW+3}, 0x20000
        """)
        def wrow(g):
            p.raw(f"""
            s_cmp_ge_u32 s{T0}, 10
            s_cselect_b32 s{T2}, 10, 0
            s_sub_u32 s{T0}, s{T0}, s{T2}
            s_mul_i32 s{T2}, s{T0}, {64*3840}
            s_add_u32 s{S_WROW+g}, s{T2}, s{T1}
            s_add_u32 s{T0}, s{T0}, 2
            """)
        wrow(0)
        RH = TMP + 10
        def woff(j):
            b = RH + 5 * j
            p.raw(f"""
            v_add_u32 v{t}, {64*j}, v{V_LANE}
            v_mul_u32_u24 v{b+4}, 6554, v{t}
            v_lshrrev_b32 v{b+4}, 16, v{b+4}
            v_mul_u32_u24 v{t+2}, 10, v{b+4}
            v_sub_u32 v{b+3}, v{t}, v{t+2}
            v_bfe_u32 v{b}, v{b+4}, 2, 2
            v_lshrrev_b32 v{b+1}, 4, v{b+4}
            v_and_b32 v{b+2}, 3, v{b+4}
            v_lshl_add_u32 v{t}, v{b}, 1, v{b+1}
            v_lshl_add_u32 v{t}, v{t}, 2, v{b+2}
            v_mul_u32_u24 v{t}, 3840, v{t}
            v_lshl_add_u32 v{V_WO+j}, v{b+3}, 4, v{t}
            """)
            if 0 < j < 4: p(f"v_subrev_u32 v{V_WO+j}, {1024*j}, v{V_WO+j}")
        if o.get('fakeinit'):
            p.raw(f"""
            s_mul_i32 s94, s{S_HG}, 102400
            s_add_u32 s94, s94, s{S_LW}
            v_lshlrev_b32 v{V_LIN}, 4, v{V_LANE}
            v_mov_b32 v226, v{V_LIN}
            v_add_u32 v227, 51200, v{V_LIN}
            """)
        woff(0); woff(1)
        if o.get('pre0'): p("s_memtime s[92:93]")
        p.raw(f"""
        s_waitcnt lgkmcnt(0)
        s_mov_b32 s{SX}, s{kx}
        s_mov_b32 s{SX+1}, s{kx+1}
        s_mov_b32 s{SW}, s{kw}
        s_mov_b32 s{SW+1}, s{kw+1}
        """)
        if o.get('bdelay'): p.raw(f"s_bitcmp1_b32 s2, 0\ns_cbranch_scc1 L_nd\ns_sleep {o['bdelay']}\nL_nd:")
        self.stamp('p0')
        if o.get('pre0'): p(f"s_sub_u32 s{S_ST+self.nst}, s92, s96"); self.nst += 1
        self.put(self.dma_x(0))
        w0 = self.dma_w(0)
        self.put(w0[0:2]); woff(2); self.put(w0[2]); woff(3); self.put(w0[3]); woff(4); self.put(w0[4])
        self.stamp('p1')
        if o.get('prowait'):
            p.wait(vm=['cpf']); self.stamp('p2')
            p.wait(vm=[('X', 0)]); self.stamp('p3')
            p.wait(vm=[('W', 0)]); self.stamp('p4')
        p("s_bitcmp0_b32 s2, 0"); p("s_cbranch_scc1 L_setupB")
        p(".split")
        p(f"L_setup{self.sfx}:")
        p(f"s_load_dword s{S_NONCE}, s[{kws}:{kws+1}], {br*128}")
        if not A:
            p(f"s_load_dword s{S_UTAG}, s[{kws}:{kws+1}], 0")
            p(f"s_load_dwordx2 s[{K+6}:{K+7}], s[0:1], 24")
        for g in range(1, 5): wrow(g)
        if o.get('bal'):
            nw, nx, where = o['bal']
            L_ = [f"s_add_u32 s{T0}, s{S_HG}, s{S_RB}", f"s_bitcmp1_b32 s{T0}, 0", f"s_cbranch_scc1 L_bal{self.sfx}",
                  f"s_cmp_ge_u32 s{S_W}, 2", f"s_cbranch_scc1 L_balx{self.sfx}",
                  f"s_mul_i32 s{T0}, s{S_W}, {32*3840 - 156}", f"s_sub_u32 s{T0}, s{S_WROW+2}, s{T0}", f"v_mul_u32_u24 v{TMP+104}, 3840, v{V_LANE}",
                  f"s_mov_b32 exec_lo, {hex(((1 << nw) - 1) & 0xffffffff)}", f"s_mov_b32 exec_hi, {hex(((1 << nw) - 1) >> 32)}",
                  f"buffer_load_dword v{V_DUMP}, v{TMP+104}, {srd(SW)}, s{T0} offen offset:1280", f"s_branch L_bal{self.sfx}",
                  f"L_balx{self.sfx}:",
                  f"s_mul_i32 s{T0}, s{S_RB}, {128*1280}", f"s_bfe_u32 s{T1}, s{S_HG}, 0x10002", f"s_lshl_b32 s{T1}, s{T1}, 1", f"s_add_u32 s{T1}, s{T1}, s{S_W}", f"s_sub_u32 s{T1}, s{T1}, 2",
                  f"s_mul_i32 s{T1}, s{T1}, {32*1280}", f"s_add_u32 s{T0}, s{T0}, s{T1}", f"s_lshl_b32 s{T1}, s{T3}, 7", f"s_add_u32 s{T0}, s{T0}, s{T1}", f"v_mul_u32_u24 v{TMP+104}, 1280, v{V_LANE}",
                  f"s_mov_b32 exec_lo, {hex((1 << nx) - 1)}", "s_mov_b32 exec_hi, 0",
                  f"buffer_load_dword v{V_DUMP}, v{TMP+104}, {srd(SX)}, s{T0} offen offset:512",
                  f"L_bal{self.sfx}:", "s_mov_b64 exec, -1"]
            if where == 0: p.untracked(L_)
            else:
                self.put(self.dma_x(1)); p.untracked(L_)
        if not (o.get('bal') and o['bal'][2]): self.q(0, self.dma_x(1))
        p.raw(f"""
        s_mov_b32 s{SWS}, s{kws}
        s_mov_b32 s{SWS+1}, s{kws+1}
        s_mov_b32 s{SWS+2}, {WS_SIZE}
        s_mov_b32 s{SWS+3}, 0x20000
        s_mov_b32 s{SOUT}, s{kout}
        s_mov_b32 s{SOUT+1}, s{kout+1}
        s_mov_b32 s{SOUT+2}, 5242880
        s_mov_b32 s{SOUT+3}, 0x20000
        s_lshl_b32 s{S_HEAD}, s{S_HG}, 2
        s_add_u32 s{S_HEAD}, s{S_HEAD}, s{S_W}
        v_lshlrev_b32 v{V_LIN}, 4, v{V_LANE}
        """)
        if A:
            p.raw(f"""
            s_mov_b32 s{SPHI}, s{kphi}
            s_mov_b32 s{SPHI+1}, s{kphi+1}
            s_mov_b32 s{SPHI+2}, 25600
            s_mov_b32 s{SPHI+3}, 0x20000
            """)
            self.q(0, [[f"s_mul_i32 s{S_WS}, s{S_HEAD}, 800",
                        (f"buffer_load_dwordx4 {vq(TMP+96)}, v{V_LIN}, {srd(SPHI)}, s{S_WS} offen", 'wphi')]])
        self.q(0, self.dma_w(1)); self.q(0, self.dma_x(2))
        G_, I_, R_, C_ = t, t + 1, t + 2, t + 3
        S = []
        def raw(txt):
            for l in txt.split('\n'):
                if l.strip(): S.append((1, l.strip()))
        raw(f"""
        v_lshrrev_b32 v{G_}, 4, v{V_LANE}
        v_and_b32 v{I_}, 15, v{V_LANE}
        v_bfe_u32 v{R_}, v{V_LANE}, 2, 2
        v_and_b32 v{C_}, 3, v{V_LANE}
        v_lshrrev_b32 v{t+4}, 1, v{I_}
        v_xor_b32 v{t+4}, v{t+4}, v{G_}
        v_lshlrev_b32 v{t+5}, 7, v{I_}
        v_lshl_add_u32 v{t+4}, v{t+4}, 4, v{t+5}
        v_add_u32 v{V_XR}, s{S_LR}, v{t+4}
        v_xor_b32 v{t+4}, 64, v{t+4}
        v_add_u32 v{V_XR+1}, s{S_LR}, v{t+4}
        v_lshrrev_b32 v{t+4}, 2, v{V_LANE}
        v_mul_u32_u24 v{t+5}, 160, v{t+4}
        v_mul_u32_u24 v{t+6}, 40, v{C_}
        v_add_u32 v{V_WT}, v{t+5}, v{t+6}
        v_add_u32 v{V_WT+1}, 51200, v{V_WT}
        v_mul_u32_u24 v{t+5}, 120, v{I_}
        v_mul_u32_u24 v{t+6}, 3840, v{G_}
        v_add3_u32 v{V_PW}, v{t+5}, v{t+6}, s{S_LR}
        v_mul_u32_u24 v{t+6}, 40, v{G_}
        v_mul_u32_u24 v{t+7}, {OUTS}, v{I_}
        s_mul_i32 s{T2}, s{S_W}, {32*OUTS}
        s_add_u32 s{T2}, s{T2}, {OUTL}
        v_add3_u32 v{V_OW}, v{t+7}, v{t+6}, s{T2}
        v_and_b32 v{t+5}, 7, v{t+4}
        v_lshrrev_b32 v{t+6}, 5, v{V_LANE}
        v_lshlrev_b32 v{t+6}, 1, v{t+6}
        v_lshl_add_u32 v{t+5}, v{t+5}, 2, v{t+6}
        v_mul_u32_u24 v{t+5}, 120, v{t+5}
        s_mul_i32 s{T0}, s{S_W}, 3840
        s_add_u32 s{T0}, s{T0}, {RBASE}
        v_add_u32 v{V_KA1}, s{T0}, v{t+5}
        v_lshl_add_u32 v{V_KB}, v{C_}, 3, v{V_KA1}
        s_mov_b32 s{S_L2E}, 0x3fb8aa3b
        s_mov_b32 s{S_NL2E}, 0xbfb8aa3b
        s_mov_b32 s{S_PERM}, 0x07060302
        s_and_b32 s{T3}, s{S_HG}, 1
        """)
        for j in range(5):
            b = RH + 5 * j
            if j < 3: raw(f"""
            v_mul_u32_u24 v{t+5}, {OUTS}, v{b+4}
            v_lshl_add_u32 v{t+5}, v{b+3}, 4, v{t+5}
            v_add_u32 v{V_ORD+j}, s{T2}, v{t+5}
            v_mul_u32_u24 v{t+5}, 2560, v{b+4}
            v_lshl_add_u32 v{V_OG+j}, v{b+3}, 4, v{t+5}
            """)
            if j == 2: raw(f"""
            v_lshrrev_b32 v{t+5}, 5, v{V_LANE}
            v_lshl_or_b32 v{V_OG+2}, v{t+5}, 30, v{V_OG+2}
            """)
        raw(f"""
        v_mov_b32 v{t+5}, 2304
        v_cmp_gt_u32 vcc, 16, v{V_LANE}
        v_mov_b32 v{t+6}, 1024
        v_cndmask_b32 v{t+5}, v{t+5}, v{t+6}, vcc
        v_add_u32 v{V_OO+1}, v{t+5}, v{V_LIN}
        v_mov_b32 v{V_OO}, v{V_LIN}
        v_add_u32 v{V_OO+2}, 40960, v{V_LIN}
        v_add_u32 v{V_OO+3}, 40960, v{V_OO+1}
        v_lshrrev_b32 v{t+4}, 5, v{V_LANE}
        v_mul_u32_u24 v{t+4}, {40960-512}, v{t+4}
        v_add_u32 v{t+5}, 3328, v{V_LIN}
        v_add_u32 v{V_OO+4}, v{t+4}, v{t+5}
        v_add_u32 v{V_LINH}, 51200, v{V_LIN}
        v_min_u32 v{V_PF}, 39, v{V_LANE}
        v_lshlrev_b32 v{V_PF}, 3, v{V_PF}
        v_and_b32 v{t+4}, 1, v{RH+4}
        v_mul_u32_u24 v{t+4}, 2560, v{t+4}
        v_lshrrev_b32 v{t+5}, 1, v{RH+4}
        v_mul_u32_u24 v{t+5}, 40960, v{t+5}
        v_lshlrev_b32 v{t+6}, 7, v{RH+3}
        v_add3_u32 v{V_L128}, v{t+4}, v{t+5}, v{t+6}
        """)
        raw(f"""
        s_lshl_b32 s{T0}, s{T3}, 1
        s_xor_b32 s{T0}, s{T0}, s{S_W}
        s_mul_i32 s{T0}, s{T0}, 5120
        s_mul_i32 s{T2}, s{S_HG}, 102400
        s_add_u32 s{T2}, s{T2}, {WS_PK + br*819200}
        s_add_u32 s{T0}, s{T0}, s{T2}
        s_lshr_b32 s{S_SPIN}, s{S_HG}, 1
        s_add_u32 s{T1}, s{S_SPIN}, s{S_W}
        s_and_b32 s{T1}, s{T1}, 3
        s_add_u32 s{T1}, s{T1}, 16
        s_mul_i32 s{T1}, s{T1}, 5120
        s_add_u32 s{S_WOROW+4}, s{T1}, s{T2}
        s_lshr_b32 s{S_PFL}, s{S_HG}, 2
        s_lshl_b32 s{S_PFL}, s{S_PFL}, 9
        s_add_u32 s{S_PFL}, s{S_PFL}, {WS_PF + br*1024}
        s_mul_i32 s{T2}, s{S_HG}, 160
        s_lshl_b32 s{S_OUT}, s{S_XBASE}, 1
        s_add_u32 s{S_OUT}, s{S_OUT}, s{T2}
        s_add_u32 s{S_OUT}, s{S_OUT}, {br*1280}
        s_lshl_b32 s{S_OB}, s{S_XBASE}, 1
        s_add_u32 s{S_OB}, s{S_OB}, {br*1280}
        """)
        for g in range(4):
            raw(f"""
            s_add_u32 s{T1}, s{S_SPIN}, {g}
            s_and_b32 s{T1}, s{T1}, 3
            s_mul_i32 s{T2}, s{T1}, 20480
            s_add_u32 s{S_WOROW+g}, s{T2}, s{T0}
            s_lshl_b32 s{T1}, s{T1}, 1
            s_add_u32 s{T1}, s{T1}, s{T3}
            s_mul_i32 s{T2}, s{T1}, 5120
            s_add_u32 s{S_OP+2*g}, s{T2}, s{S_OB}
            s_xor_b32 s{T1}, s{T1}, 1
            s_mul_i32 s{T2}, s{T1}, 5120
            s_add_u32 s{S_OP+2*g+1}, s{T2}, s{S_OB}
            """)
        SH = 8 if A else 7
        raw(f"""
        s_lshl_b32 s{T0}, s{S_RB}, 2
        s_add_u32 s{T0}, s{T0}, s{S_W}
        s_lshl_b32 s{S_FLAG}, s{T0}, 7
        s_add_u32 s{S_FLAG}, s{S_FLAG}, {WS_FLAG + br*64*128}
        s_lshl_b32 s{T0}, s{S_HEAD}, 16
        s_add_u32 s{T0}, s{T0}, {WS_P1 + br*32*65536}
        s_lshl_b32 s{T1}, s{S_RB}, 12
        s_add_u32 s{S_P1ST}, s{T0}, s{T1}
        s_min_u32 s{T1}, s{S_RB}, 14
        s_lshl_b32 s{T1}, s{T1}, {SH}
        s_add_u32 s{S_P1LD}, s{T0}, s{T1}
        s_lshl_b32 s{T0}, s{S_HEAD}, 12
        s_add_u32 s{S_P2LD}, s{T0}, {WS_P2 + br*32*4096}
        s_add_u32 s{S_P2ST}, s{S_P2LD}, s{T1}
        s_lshr_b32 s{T1}, s{S_RB}, {4 - o.get('p2log', 2)}
        s_lshl_b32 s{T1}, s{T1}, 18
        s_add_u32 s{S_P2LD}, s{S_P2LD}, s{T1}
        v_mul_u32_u24 v{t+4}, {F}, v{G_}
        v_add_lshl_u32 v{V_P1ST}, v{t+4}, v{I_}, 4
        v_lshrrev_b32 v{t+4}, {3 if A else 2}, v{I_}
        v_lshl_or_b32 v{V_P1M}, v{t+4}, 28, v{V_P1ST}
        v_lshrrev_b32 v{t+4}, 1, v{G_}
        v_lshl_or_b32 v{V_P1M+1}, v{t+4}, 30, v{V_P1ST}
        v_or_b32 v{V_P1M+2}, v{V_P1M}, v{V_P1M+1}
        v_cmp_gt_u32 vcc, 4, v{I_}
        v_cndmask_b32 v{V_KEEP}, 0, -1, vcc
        v_mov_b32 v{t+4}, 0x3f803f80
        v_cmp_eq_u32 vcc, 4, v{I_}
        v_cndmask_b32 v{V_ONE}, 0, v{t+4}, vcc
        v_and_b32 v{t+4}, 7, v{V_LANE}
        v_lshlrev_b32 v{V_F8}, 2, v{t+4}
        s_lshl_b32 s{T0}, s{S_HG}, 2
        v_min_u32 v{V_FOWN}, 1, v{V_LANE}
        v_lshlrev_b32 v{V_FOWN}, 30, v{V_FOWN}
        v_or_b32 v{V_FOWN}, s{T0}, v{V_FOWN}
        v_lshlrev_b32 v{V_ZA}, 3, v0
        v_add_u32 v{V_ZA}, {RBASE+7680}, v{V_ZA}
        """)
        if A:
            raw(f"""
            v_lshlrev_b32 v{t+5}, 12, v{G_}
            v_lshl_add_u32 v{V_P1LD}, v{I_}, 4, v{t+5}
            v_lshlrev_b32 v{V_P2ST}, 2, v{V_LANE}
            """)
        else:
            raw(f"""
            v_lshrrev_b32 v{t+5}, 3, v{V_LANE}
            v_lshlrev_b32 v{t+5}, 12, v{t+5}
            v_lshl_add_u32 v{V_P1LD}, v{t+4}, 4, v{t+5}
            v_lshl_add_u32 v{V_P2ST}, v{G_}, 5, v{V_F8}
            """)
        RS = 80 if A else 48
        HS = 24 * RS
        NQ = 240 if A else 120
        NI = 4 if A else 2
        raw(f"s_mul_i32 s{T0}, s{S_W}, {HS}\ns_add_u32 s{T0}, s{T0}, {RBASE}")
        u = t + 4
        for ii in range(NI):
            raw(f"v_add_u32 v{u}, {64*ii}, v{V_LANE}")
            if ii == NI - 1:
                raw(f"""v_subrev_u32 v{u+1}, 64, v{u}
                v_cmp_gt_u32 vcc, {NQ}, v{u}
                v_cndmask_b32 v{u}, v{u+1}, v{u}, vcc
                v_lshlrev_b32 v{V_GAL}, 4, v{u}""")
            if A:
                raw(f"""
                v_lshrrev_b32 v{u+1}, 4, v{u}
                v_and_b32 v{u+2}, 3, v{u}
                v_lshl_add_u32 v{u+1}, v{u+1}, 2, v{u+2}
                v_bfe_u32 v{u+2}, v{u}, 2, 2
                v_mul_u32_u24 v{u+3}, 6554, v{u+1}
                v_lshrrev_b32 v{u+3}, 16, v{u+3}
                v_mul_u32_u24 v{u+4}, 10, v{u+3}
                """)
            else:
                raw(f"""
                v_lshrrev_b32 v{u+1}, 3, v{u}
                v_and_b32 v{u+2}, 1, v{u}
                v_lshl_add_u32 v{u+1}, v{u+1}, 1, v{u+2}
                v_bfe_u32 v{u+2}, v{u}, 1, 2
                v_mul_u32_u24 v{u+3}, 13108, v{u+1}
                v_lshrrev_b32 v{u+3}, 16, v{u+3}
                v_mul_u32_u24 v{u+4}, 5, v{u+3}
                """)
            raw(f"""
            v_sub_u32 v{u+1}, v{u+1}, v{u+4}
            v_lshl_add_u32 v{u+3}, v{u+3}, 2, v{u+2}
            v_mul_u32_u24 v{u+3}, {RS}, v{u+3}
            v_lshl_add_u32 v{u+3}, v{u+1}, 3, v{u+3}
            v_add_u32 v{V_LA+ii}, s{T0}, v{u+3}
            """)
        raw(f"""
        v_cmp_eq_u32 vcc, v{G_}, v{R_}
        v_mul_u32_u24 v{u}, {HS}, v{G_}
        v_mul_u32_u24 v{u+1}, {RS}, v{C_}
        v_add_u32 v{u}, v{u}, v{u+1}
        v_add_u32 v{u}, {RBASE}, v{u}
        v_mov_b32 v{u+1}, {RBASE+7680}
        v_cndmask_b32 v{V_FR2}, v{u+1}, v{u}, vcc
        """)
        if A:
            raw(f"""
            v_mov_b32 v{t+36}, 0
            v_mov_b32 v{t+37}, 0
            v_mov_b32 v{t+38}, 0
            v_mov_b32 v{t+39}, 0
            v_add_u32 v{TMP+100}, s{S_LR}, v{V_LIN}
            ds_write_b128 v{TMP+100}, {vq(t+36)} offset:13312
            v_mul_u32_u24 v{t+4}, {RW}, v{G_}
            v_mul_u32_u24 v{t+5}, 40, v{R_}
            v_add_u32 v{t+4}, v{t+4}, v{t+5}
            v_add_u32 v{t+4}, {RBASE+12288}, v{t+4}
            s_add_u32 s{T0}, s{S_LR}, 13312
            v_mov_b32 v{t+5}, s{T0}
            v_cmp_eq_u32 vcc, v{C_}, v{G_}
            v_cndmask_b32 v{V_FR}, v{t+5}, v{t+4}, vcc
            """)
            for tt in range(5):
                a = A_PHI + (tt * 3 + 2) * 4
                raw(f"v_accvgpr_write_b32 a{a+2}, 0\nv_accvgpr_write_b32 a{a+3}, 0")
        US, UA, UD = TMP + 40, TMP + 45, TMP + 80
        nA = o.get('nA', 0); prod = (not A) or nA > 0
        S_UOK = 92
        if prod:
            iS0 = len(S)
            S.append((1, [x.strip() for x in f"""
            s_add_u32 s{T1}, s{S_HG}, s{S_RB}
            s_and_b32 s{T1}, s{T1}, 1
            s_lshl_b32 s{T0}, s{S_W}, 1
            s_add_u32 s{T0}, s{T0}, s{T1}
            s_lshl_b32 s{T0}, s{T0}, 3
            s_add_u32 s{T0}, s{T0}, s{S_HG}
            s_lshl_b32 s{T0}, s{T0}, 3
            s_lshr_b32 s{T1}, s{S_RB}, 1
            s_add_u32 s{T0}, s{T0}, s{T1}
            s_add_u32 s{T0}, s{T0}, {0 if A else nA}
            s_cmp_lt_u32 s{T0}, {nA if A else 320}
            s_cselect_b32 s{S_UOK}, 1, 0
            s_waitcnt lgkmcnt(0)
            s_cmp_lt_u32 s{T0}, 160
            s_cselect_b32 s{SWO}, s{K+6}, s{kwo}
            s_cselect_b32 s{SWO+1}, s{K+7}, s{kwo+1}
            s_cselect_b32 s{S_UTAG}, s{S_NONCE if A else S_UTAG}, s{S_NONCE}
            s_cselect_b32 s{T1}, 0, 160
            s_cselect_b32 s{S_UDST}, 0, 819200
            s_cselect_b32 s{S_UFL}, 0, 1024
            s_mov_b32 s{SWO+2}, 819200
            s_mov_b32 s{SWO+3}, 0x20000
            s_add_u32 s{S_UTAG}, s{S_UTAG}, 0x9e3779b1
            s_sub_u32 s{T0}, s{T0}, s{T1}
            s_and_b32 s{T1}, s{T0}, 1
            s_mul_i32 s{S_USRC}, s{T1}, 640
            s_mul_i32 s{T2}, s{T1}, 409600
            s_add_u32 s{S_UDST}, s{S_UDST}, s{T2}
            s_lshl_b32 s{T2}, s{T1}, 9
            s_add_u32 s{S_UFL}, s{S_UFL}, s{T2}
            s_lshr_b32 s{T1}, s{T0}, 1
            s_lshl_b32 s{T2}, s{T1}, 2
            s_add_u32 s{S_UFL}, s{S_UFL}, s{T2}
            s_add_u32 s{S_UFL}, s{S_UFL}, {WS_PF}
            s_and_b32 s{T1}, s{T1}, 3
            s_mul_i32 s{T2}, s{T1}, {20*1280}
            s_add_u32 s{S_USRC}, s{S_USRC}, s{T2}
            s_lshl_b32 s{T2}, s{T1}, 8
            s_add_u32 s{S_UDST}, s{S_UDST}, s{T2}
            s_lshr_b32 s{T1}, s{T0}, 3
            s_mul_i32 s{T2}, s{T1}, 5120
            s_add_u32 s{S_UDST}, s{S_UDST}, s{T2}
            s_add_u32 s{S_UDST}, s{S_UDST}, {WS_PK}
            s_lshr_b32 s{T2}, s{T1}, 1
            s_mul_i32 s{T2}, s{T2}, 80
            s_and_b32 s{T3}, s{T1}, 1
            s_lshl_b32 s{T3}, s{T3}, 3
            s_add_u32 s{T2}, s{T2}, s{T3}
            s_mul_i32 s{T3}, s{T1}, 160
            s_sub_u32 s{T3}, s{T3}, {16*160 - 16}
            s_cmp_ge_u32 s{T1}, 16
            s_cselect_b32 s{T2}, s{T3}, s{T2}
            s_cselect_b32 s{T3}, 1, 0
            s_mul_i32 s{T2}, s{T2}, 1280
            s_add_u32 s{S_USRC}, s{S_USRC}, s{T2}
            s_mul_i32 s{T1}, s{T3}, {76*1280}
            s_add_u32 s{T2}, s{S_LW}, {RING + 4*SLOT}
            """.split('\n') if x.strip()]))
            for j in range(5):
                raw(f"""
                v_lshrrev_b32 v{t+4}, 2, v{RH+5*j+4}
                v_mul_u32_u24 v{t+5}, 640, v{t+4}
                v_lshrrev_b32 v{t+4}, 2, v{t+4}
                v_mul_u32_u24 v{t+4}, s{T1}, v{t+4}
                v_add3_u32 v{US+j}, v{t+4}, v{t+5}, v{V_LIN}
                """)
            raw(f"v_add_u32 v{US+4}, 4096, v{US+4}")
            iS1 = len(S)
            raw(f"""
            v_mul_u32_u24 v{t+7}, 640, v{R_}
            v_mul_u32_u24 v{t+8}, 40, v{C_}
            v_add3_u32 v{t+7}, v{t+7}, v{t+8}, s{T2}
            """)
            for j in range(5):
                raw(f"""
                v_add_u32 v{t+4}, {4*j}, v{G_}
                v_mul_u32_u24 v{t+5}, 13108, v{t+4}
                v_lshrrev_b32 v{t+5}, 16, v{t+5}
                v_mul_u32_u24 v{t+6}, 120, v{t+5}
                v_lshl_add_u32 v{t+6}, v{t+4}, 3, v{t+6}
                v_add_u32 v{t+6}, v{t+6}, v{t+7}
                v_and_b32 v{t+8}, s{T3}, v{t+5}
                v_mul_u32_u24 v{t+8}, 2560, v{t+8}
                v_add_u32 v{UA+2*j}, v{t+6}, v{t+8}
                v_sub_u32 v{t+6}, v{t+6}, v{t+8}
                v_add_u32 v{UA+2*j+1}, 2560, v{t+6}
                v_mul_u32_u24 v{t+5}, {102400 - 5120}, v{t+5}
                v_lshl_add_u32 v{t+5}, v{t+4}, 10, v{t+5}
                v_lshl_add_u32 v{UD+j}, v{I_}, 4, v{t+5}
                """)
            mark = {}
            def cond(name, lines):
                p.untracked([f"s_cmp_eq_u32 s{S_UOK}, 0", f"s_cbranch_scc1 {name}{self.sfx}"] + lines + [f"{name}{self.sfx}:"])
                mark[name] = p.nvm
            L = [f"s_add_u32 m0, s{S_LW}, {RING + 4*SLOT}"]
            for j in range(5):
                off = f"offset:{j*1024} " if 0 < j < 4 else ""
                L.append(f"buffer_load_dwordx4 v{US+j}, {srd(SWO)}, s{S_USRC} offen {off}lds")
                if j == 3: L.append(f"s_add_u32 m0, s{S_LW}, {RING + 4*SLOT + 4096}")
            un = [[lambda L=L: cond("L_u1", L)]]
            if o.get('uissue', 0) == 0: self.q(10**6 + 77, un)
            if o.get('uissue', 0) == -1: S = S[:4] + S[iS0:iS1] + [(0, un[0])] + S[iS1:] + S[4:iS0]
        self.run(S, every=o.get('proev', 60))
        self.stamp('p5')
        if o.get('uissue', 0) == 0: self.release(77)
        def urd():
            assert not any(x.tag == ('W', 4) for x in p.ins)
            cond("L_u2r", [f"s_waitcnt vmcnt({p.nvm - mark['L_u1']}) lgkmcnt(0)"] +
                [f"ds_read_b64_tr_b16 {vq(TMP+60+2*k, 2)}, v{UA+k}" for k in range(10)] + ["s_waitcnt lgkmcnt(0)"])
        def ust(j): cond("L_u2" + "abcd "[j].strip(), [f"buffer_store_dwordx4 {vq(TMP+60+4*j)}, v{UD+j}, {srd(SWS)}, s{S_UDST} offen sc1"])
        if o.get('hops', 1):
            p("s_mov_b64 exec, 0")
            for w_ in range(3): p(f"s_cmp_eq_u32 s{S_W}, {w_}"); p(f"s_cbranch_scc1 L_hop{w_}{self.sfx}")
            p(f"s_branch L_hop3{self.sfx}")
            p(f"L_hopret{self.sfx}:")
            p("s_mov_b64 exec, -1")
        if prod and o.get('upos', (0,))[0] < 0:
            while len(self.dq) > -o['upos'][0] - 1 and self.tick(): pass
            urd()
            for j in range(5): ust(j)
        while len(self.dq) > o.get('prokeep', 0) and self.tick(): pass
        p.raw(f"""
        s_getreg_b32 s{T0}, hwreg(HW_REG_XCC_ID, 0, 4)
        s_waitcnt lgkmcnt(0)
        s_add_u32 s{S_NONCE}, s{S_NONCE}, 0x9e3779b1
        s_lshl_b32 s{T0}, s{T0}, 28
        s_xor_b32 s{S_XCCV}, s{T0}, s{S_NONCE}
        v_mov_b32 v{V_NONCE}, s{S_NONCE}
        v_and_b32 v{V_VW}, 1, v{V_LANE}
        v_lshlrev_b32 v{V_VW}, 4, v{V_VW}
        v_lshrrev_b32 v{V_VW}, v{V_VW}, v{V_NONCE}
        v_mov_b32 v{V_KA0}, s{S_XCCV}
        s_add_u32 s{S_XA}, s{S_FLAG}, {WS_XCC - WS_FLAG}
        """)
        xst = [(f"buffer_store_dword v{V_KA0}, v{V_FOWN}, {srd(SWS)}, s{S_XA} offen sc1", 'xcc')]
        x1, x2, x3 = o.get('xpos', (-1, 58, 88))
        if x1 < 0: self.put(xst)
        self.stamp()
        p(f"s_branch L_main{self.sfx}")
        p(".p2align 12")
        p(f"L_main{self.sfx}:")
        xb = lambda ks, rt: aq((ks * 2 + rt) * 4)
        xbp = lambda ps: (lambda ks, rt: xb(4 * (4 - ks // 4) + ks % 4, rt)) if ps in o.get('rev', [1, 2]) else xb
        for pu in range(0, 7):
            if (pu + 3) % 2 == 0: self.q(0, self.dma_w((pu + 3) // 2))
            self.q(10 * pu, self.dma_x(pu + 3))
            if prod and o.get('uissue', 0) == pu + 1: self.q(0, un)
        for G in range(5, 10): self.q(10**6 + 1 if G % 5 >= 3 else 20 * (G - 3) - 4, self.dma_w(G))
        for G in range(10, 13): self.q(20 * (G - 3) - 4, self.dma_w(G))
        for G in range(13, 20): self.q(10**6 + G, self.dma_w(G))
        hooks = {}
        for pu in range(1, 10):
            hooks[10 * pu - 5] = [lambda pu=pu: self.xread(pu, 0), lambda pu=pu: self.xread(pu, 1)]
            hooks[10 * pu - 4] = [lambda pu=pu: self.xread(pu, 2), lambda pu=pu: self.xread(pu, 3)]
        if A:
            rd = [(tt, u_, hf) for tt in range(5) for u_ in range(3) for hf in range(2 if u_ < 2 else 1)]
            w = TMP + 96; u2 = TMP + 102
            sc = [lambda: p.wait(vm=['wphi'])]
            for j in range(4):
                sc += [f"v_lshlrev_b32 v{u2}, 16, v{w+j}", f"v_and_b32 v{u2+1}, 0xffff0000, v{w+j}", f"v_mul_f32 v{u2}, s{S_L2E}, v{u2}",
                       f"v_mul_f32 v{u2+1}, s{S_L2E}, v{u2+1}", f"v_cvt_pk_bf16_f32 v{w+j}, v{u2}, v{u2+1}"]
            hooks[8] = sc + [(f"ds_write_b128 v{TMP+100}, {vq(w)} offset:12288", 'phw')]
            hooks[14] = [lambda: p.wait(lg=['phw'])]
            slots = [n for n in range(21, 90) if n % 10 in (0, 1, 2, 3)][:25]
            for k, n in enumerate(slots):
                hooks[n] = [(f"ds_read_b64_tr_b16 a[{A_PHI + (tt*3+u_)*4 + 2*hf}:{A_PHI + (tt*3+u_)*4 + 2*hf + 1}], v{V_FR} offset:{(8*u_+4*hf)*40 + 8*tt}", 'phi')
                            for tt, u_, hf in rd[k:k+1]]
        late3 = {}
        if prod:
            UR = TMP + 60
            u1, u2_, u3 = o.get('upos', (18, 18, 62))
            if u1 >= 0: hooks.setdefault(u1, []).append(urd)
            for j in range(5):
                uj = u2_ + o.get('ustep', 0) * j
                if uj >= 0: (hooks if uj < 100 else late3).setdefault(uj % 100, []).append(lambda j=j: ust(j))
            (hooks if u3 < 100 else late3).setdefault(u3 % 100, []).append(lambda: cond("L_u3", [f"s_waitcnt vmcnt({p.nvm - mark['L_u2']})", f"v_mov_b32 v{V_DUMP}, s{S_UTAG}", "s_mov_b64 exec, 1",
                         f"buffer_store_dword v{V_DUMP}, v{V_LIN}, {srd(SWS)}, s{S_UFL} offen sc1", "s_mov_b64 exec, -1"]))
        KBV = [V_KB, 17, 18, 19]; KAV = [V_KA1, 20, 21, 22]
        if o.get('kvown', 0):
            for kk in (1, 2, 3, 0):
                hooks.setdefault(89 + 2 * ((kk + 3) % 4), []).extend([f"s_add_u32 s{T2}, s{S_W}, {kk}", f"s_and_b32 s{T2}, s{T2}, 3", f"s_mul_i32 s{T2}, s{T2}, {RW}"])
                hooks.setdefault(90 + 2 * ((kk + 3) % 4), []).extend([f"v_add_u32 v{KBV[kk]}, s{T2}, v{V_KB}", f"v_add_u32 v{KAV[kk]}, s{T2}, v{V_KA1}"])
        XV = TMP + 92
        iss, chk = self.checked("L_xc", [f"buffer_load_dword v{XV}, v{V_F8}, {srd(SWS)}, s{S_XA} offen sc1"],
                                [f"v_xor_b32 v{XV+1}, s{S_NONCE}, v{XV}", f"v_lshlrev_b32 v{XV+1}, 4, v{XV+1}", f"v_cmp_ne_u32 vcc, 0, v{XV+1}"], 'xl')
        xv, xq = {}, {}
        def xh(pos, L): [hooks, xv, xq][pos // 100].setdefault(pos % 100, []).extend(L)
        if x1 >= 0: xh(x1, xst)
        xh(x2, iss)
        c_ = [x for _, x in chk]
        xh(x3, c_[:3]); xh(x3 + 1, c_[3:4]); xh(x3 + 2, c_[4:] + [f"v_cmp_ne_u32 vcc, s{S_XCCV}, v{XV}"])
        xh(x3 + 3, [f"s_mov_b32 s{S_FAST}, {1 if o.get('nofast') else 'vcc_lo'}", f"s_add_u32 s{T0}, s{SWS}, {WS_O}", f"s_addc_u32 s{T1}, s{SWS+1}, 0"])
        xh(x3 + 4, [f"s_cmp_eq_u32 s{S_FAST}, 0", f"s_cselect_b32 s{SO}, s{SOUT}, s{T0}", f"s_cselect_b32 s{SO+1}, s{SOUT+1}, s{T1}"])
        xh(x3 + 5, [f"s_mov_b32 s{SO+2}, 5242880", f"s_mov_b32 s{SO+3}, 0x20000"])
        self.group_sync(0)
        for k in range(4): self.xread(0, k)
        self.prime(0, sync=False)
        kp = o.get('kpace', 3)
        k1p = {0: lambda n: 1 if n % 3 != 2 else 0, 1: lambda n: 1, 2: lambda n: 2 if n % 10 < 2 else (1 if n % 10 < 5 else 0), 3: lambda n: 1 if n % 4 != 3 else 0}[o.get('k1', 0)]
        self.gemm_pass(0, ACC_K, xb, hooks=hooks, last=True, pace=lambda n: k1p(n) if n < o.get('ksw', 69) else (1 if n % kp == 0 else 0))
        self.stamp()
        E0, E1, M0_, M1_ = TMP, TMP + 40, TMP + 80, TMP + 86
        x0, x1 = acc(ACC_K, 0, 0), acc(ACC_K, 0, 1)
        tagset = [f"s_bfe_u32 s{S_TB+j}, s{S_NONCE}, {hex(0x80000 + 8*j)}" for j in range(4)] + [f"s_lshr_b32 s{S_NHI}, s{S_NONCE}, 16"]
        if o.get('amp'):
            p.raw(f"""
            s_load_dwordx2 s[88:89], s[0:1], 64
            s_not_b32 s{T0}, s98
            v_mov_b32 v{TMP+94}, 0
            v_mov_b32 v{TMP+95}, s{T0}
            s_lshr_b32 s{T0}, s2, 3
            s_or_b32 s{T0}, s{T0}, s{S_W}
            s_cmp_eq_u32 s{T0}, 0
            s_cselect_b32 s{T0}, 0, 64
            v_mov_b32 v{TMP+94}, s{T0}
            s_waitcnt lgkmcnt(0)
            s_cbranch_scc0 L_noat{self.sfx}
            s_mov_b64 exec, 1
            """)
            p.ins.append(__import__('emit').Ins(f"global_atomic_umax v{TMP+94}, v{TMP+95}, s[88:89] sc1"))
            p("s_mov_b64 exec, -1")
            p(f"L_noat{self.sfx}:")
        wr = lambda rt, x, n, o8: [(2, (f"ds_write_b64 v{V_PW}, {vq(x+2*j, 2)} offset:{rt*1920 + o8 + 8*j}", 'pw')) for j in range(n)]
        def mixw(out, w): return [y for j in range(len(w)) for y in out[2*j:2*j+2] + [w[j]]]
        burst = lambda L: [(0, [x for _, x in L])]
        dm = (2, lambda: self.tick())
        if A:
            P0 = self.phiA_parts(x0, E0, M0_, "L_k0", False); P1 = self.phiA_parts(x1, E1, M1_, "L_k1", False)
            pr = [(0, lambda: (self.group_sync(5), self.release(1)))]
            pr = pr + [(1, lambda n=n, hf=hf: self.wread(100 + n, hf)) for n in range(D - 1) for hf in range(2)]
            hx = o.get('hx', 0)
            if hx == 0:
                self.put([x for _, x in [dm] + P0['cvt'] + self.weave(P0['mf'], [dm] + P1['cvt'] + [dm] + P0['exp'][:4]) + self.weave(P1['mf'], [dm] + P0['exp'][4:12] + [dm] + pr)])
                f0 = P0['exp'][12:] + burst(P0['norm'])
            else:
                self.put([x for _, x in [dm] + P0['cvt'] + self.weave(P0['mf'], [dm] + P1['cvt'] + P0['exp'][:7] + [dm]) + self.weave(P1['mf'], P0['exp'][7:14] + [dm] + P0['exp'][14:21])])
                self.run(P0['exp'][21:] + P0['norm'][:-10], every=hx)
                self.put([x for _, x in pr + P0['norm'][-10:]])
                f0 = []
            fill = f0 + mixw(P0['out'], wr(0, x0, 10, 0)) + P1['exp'] + burst(P1['norm']) + mixw(P1['out'], wr(1, x1, 10, 0))
            self.stamp('head')
        else:
            fill = []
            for rt, x, e in ((0, x0, E0), (1, x1, E1)):
                L = self.phiB(x, e, False)
                fill += L[:-10] + mixw(L[-10:], wr(rt, x, 5, 0))
            self.group_sync(5); self.release(1); self.prime(1, sync=False)
        hooks = {}
        hooks.update(late3)
        PFV = TMP + 94
        ipf, cpf_ = self.checked("L_pf", [f"buffer_load_dwordx2 {vq(PFV, 2)}, v{V_PF}, {srd(SWS)}, s{S_PFL} offen sc1"],
                                 [f"v_xor_b32 v{PFV}, s{S_NONCE}, v{PFV}", f"v_bitop3_b32 v{PFV}, v{PFV}, v{PFV+1}, s{S_NONCE} bitop3:0xf6", f"v_cmp_ne_u32 vcc, 0, v{PFV}"], 'pf')
        pfp = o.get('pfpos', 81)
        if pfp < 100: hooks.setdefault(pfp, []).extend(ipf)
        pre = ["s_mov_b32 exec_hi, 0xff", (f"buffer_load_dword v{V_DUMP}, v{V_L128}, {srd(SO)}, s{S_OP} offen sc1", 'pr'), "s_mov_b64 exec, 1",
               (f"buffer_load_dword v{V_DUMP}, v{V_F8}, {srd(SWS)}, s{S_FLAG} offen sc1", 'pr'), "s_mov_b64 exec, -1"]
        pre1 = []
        if o.get('pre1m') is not None:
            pre1 = ["s_mov_b32 exec_lo, 0xfff00000", "s_mov_b32 exec_hi, 0xff", pre[1], "s_mov_b64 exec, -1"]
            pre = ["s_mov_b64 exec, 0xfffff"] + pre[1:]
        prel = []
        if o.get('prem'):
            n_ = len(o['prem']); o['prepos'] = 2
            for k_, ps_ in enumerate(o['prem']):
                lo_, hi_ = 40 * k_ // n_, 40 * (k_ + 1) // n_
                mk = ((1 << hi_) - 1) ^ ((1 << lo_) - 1)
                L_ = [f"s_mov_b32 exec_lo, {hex(mk & 0xffffffff)}", f"s_mov_b32 exec_hi, {hex(mk >> 32)}", pre[1]] + (pre[2:4] if k_ == 0 else []) + ["s_mov_b64 exec, -1"]
                assert ps_ <= 0 or ps_ > x3 + 5
                if ps_ >= 200: xq.setdefault(ps_ - 200, []).extend(L_)
                elif ps_ >= 100: xv.setdefault(ps_ - 100, []).extend(L_)
                else: prel.append((ps_, L_))
        wp, pp_ = o.get('wopf', -1), o.get('prepos', 0)
        if 100 <= pp_ < 200: hooks.setdefault(pp_ - 100, []).extend(pre)
        vs = o.get('vsync', 0)
        if o.get('v13'): hooks.setdefault(78, []).extend(["s_barrier", lambda: self.release(13)])
        for k_, v_ in xv.items(): hooks.setdefault(k_, []).extend(v_)
        for k_, v_ in enumerate(tagset): hooks.setdefault(41 + k_, []).insert(0, v_)
        vp = o.get('vpace', 4)
        self.gemm_pass(1, ACC_V, xbp(1), fill=fill, hooks=hooks, last=True, sync=True, pace=lambda n: 1 if n % vp == 0 else 0)
        self.stamp()
        VB = TMP
        for rt in range(2):
            c = self.cvt20(acc(ACC_V, 0, rt), VB + 10 * rt)
            for j in range(5):
                p(c[2*j][1]); p(c[2*j+1][1])
                p(f"ds_write_b64 v{V_PW}, {vq(VB+10*rt+2*j, 2)} offset:{rt*1920 + 80 + 8*j}", 'vw')
                if j == 4 and rt == 0: self.tick()
        NT = 3 if A else 2
        FB = ACC_K
        KV = TMP + 64
        rds = deque()
        own = o.get('kvown', 0)
        def rd(reg, av, off, kk, j):
            for hf in range(2): rds.append((f"ds_read_b64_tr_b16 {vq(reg+2*hf, 2)}, v{av[kk] if own else av[0]} offset:{(0 if own else kk*RW) + hf*120 + off}", ('kv', kk, j)))
        for kk in range(4):
            b = FB + kk * 20
            rd(b, KBV, 80, kk, 'a')
            for nt in range(NT): rd(b + 8 + 4 * nt, KBV, 32 * nt, kk, nt)
            rd(b + 4, KAV, 112, kk, 'z')
        if own:
            p("s_waitcnt lgkmcnt(5)")
            for _ in range(2 * NT + 4): self.put([rds.popleft()])
        self.tick()
        gk = 11
        self.flush_dma(('W', gk)); p.wait(vm=[('W', gk)], lg=['vw', 'pw'])
        p("s_barrier")
        self.release(13); self.release(14)
        def more(k):
            while k > 0 and rds and len(p.lgq) < 15: self.put([rds.popleft()]); k -= 1
        if own: more(5); p.wait(lg=[('kv', 0, 'z')])
        more(o.get('kvi', 15)); self.tick()
        p(f"v_mov_b32 v{TMP+1}, 0xff")
        seq = [(kk, nt) for kk in range(4) for nt in range(NT)]
        ao = deque((kk, f"v_and_or_b32 v{FB+kk*20+4+j}, v{FB+kk*20+4+j}, v{V_KEEP}, v{V_ONE}") for kk in range(4) for j in range(4))
        p.wait(lg=[('kv',) + seq[0]])
        for i_, (kk, nt) in enumerate(seq):
            b = FB + kk * 20
            p(f"{MF} {vq(KV + nt*4)}, {vq(b)}, {vq(b+8+4*nt)}, {'0' if kk == 0 else vq(KV + nt*4)}")
            p.wait(lg=[('kv',) + seq[i_ + 1]] if i_ + 1 < len(seq) else '*')
            k_ = len(rds); more(o.get('kvr', 4))
            for _ in range(max(0, 3 - (k_ - len(rds)))):
                if ao and ('kv', ao[0][0], 'z') not in p.lgq and not any(x[1] == ('kv', ao[0][0], 'z') for x in rds): p(ao.popleft()[1])
        assert not rds
        while len(ao) > 4: p(ao.popleft()[1])
        lastm = 0x00ff00ff if A else 0x000f000f
        def pub(mt, nt):
            a = KV + (mt * 3 + nt) * 4
            L = [(1, f"v_bfi_b32 v{a+j}, v{TMP+1}, s{S_TB+j}, v{a+j}") for j in range(4)]
            va = [V_P1ST, V_P1M, V_P1M + 1, V_P1M + 2][2 * mt + (nt == NT - 1)]
            return L + [(2, (f"buffer_store_dwordx4 {vq(a)}, v{va}, {srd(SWS)}, s{S_P1ST} offen offset:{(4*mt*F + 16*nt)*16} sc1", 'p1'))]
        self.stamp('kv3')
        mf = [(2, f"{MF} {vq(KV + (3+nt)*4)}, {vq(FB+kk*20+4)}, {vq(FB+kk*20+8+4*nt)}, {'0' if kk == 0 else vq(KV + (3+nt)*4)}") for nt in range(NT) for kk in range(4)]
        pr = [(1, lambda n=n, hf=hf: self.wread(200 + n, hf)) for n in range(D - 1) for hf in range(2)]
        self.put([x for _, x in self.weave(mf, [(1, x[1]) for x in ao] + [y for nt in range(NT) for y in pub(0, nt)] + pr)])
        qhead = [y for nt in range(NT) for y in pub(1, nt)]
        pb = o.get('pubb', 0)
        self.put([x for _, x in qhead[:pb]]); qhead = qhead[pb:]
        self.stamp()
        X = TMP + 8; CK = TMP + 2
        def tagcheck(mask):
            if mask == "0xff":
                L = [f"v_xor_b32 v{X+j}, s{S_TB+j%4}, v{X+j}" for j in range(4 * NI)] + [f"v_or_b32 v{CK}, v{X}, v{X+1}"]
                L += [f"v_or3_b32 v{CK}, v{CK}, v{X+j}, v{X+j+1}" for j in range(2, 4 * NI, 2)]
            else:
                L = [f"v_xor_b32 v{CK}, s{S_NONCE}, v{X}"] + [f"v_bitop3_b32 v{CK}, v{CK}, v{X+j}, s{S_NHI if j % 2 else S_NONCE} bitop3:0xf6" for j in range(1, 4 * NI)]
            return L + [f"v_and_b32 v{CK}, {mask}, v{CK}", f"v_cmp_ne_u32 vcc, 0, v{CK}"]
        lds_ = []
        for ii in range(NI):
            lds_ += [f"s_add_u32 s{T0}, s{S_P1LD}, {ii * (65536 // NI)}", f"buffer_load_dwordx4 {vq(X+4*ii)}, v{V_P1LD}, {srd(SWS)}, s{T0} offen sc1"]
        iss, chk = self.checked("L_h1", lds_, tagcheck("0xff"), 'h1')
        red = [f"v_add_f32 v{X+j}, v{X+j}, v{X+4*ii+j}" for ii in range(1, NI) for j in range(4)]
        red += [f"v_permlane32_swap_b32 v{X}, v{X+2}", f"v_permlane32_swap_b32 v{X+1}, v{X+3}", f"v_add_f32 v{X}, v{X}, v{X+2}", f"v_add_f32 v{X+1}, v{X+1}, v{X+3}",
                f"v_mov_b32 v{CK}, 0xffff", f"v_permlane16_swap_b32 v{X}, v{X+1}", f"v_add_f32 v{X}, v{X}, v{X+1}"]
        if not A: red.append(f"v_add_f32_dpp v{X}, v{X}, v{X} row_ror:8 row_mask:0xf bank_mask:0xf")
        red += [f"v_cvt_pk_bf16_f32 v{X}, v{X}, v{X}", f"v_bfi_b32 v{X}, v{CK}, v{V_VW}, v{X}"]
        st = (f"buffer_store_dword v{X}, v{V_P2ST}, {srd(SWS)}, s{S_P2ST} offen sc1", 'p2')
        sts = [st]
        for _ in range((1 << o.get('p2log', 2)) - 1): sts += [f"s_add_u32 s{S_P2ST}, s{S_P2ST}, {1 << 18}", st]
        red.append(sts if A else ["s_mov_b32 exec_lo, 0x00ff00ff", "s_mov_b32 exec_hi, 0x00ff00ff"] + sts + ["s_mov_b64 exec, -1"])
        n1, n2 = o.get('h1', (62, 84))
        hooks = {n1 + k: iss[2*k:2*k+2] for k in range(NI)}
        if pfp >= 100: hooks.setdefault(pfp - 100, []).extend(ipf)
        for k_, v_ in xq.items(): hooks.setdefault(k_, []).extend(v_)
        c_ = [x for _, x in cpf_]
        pc = o.get('pfchk', 13)
        hooks.setdefault(pc, []).extend(c_[:3]); hooks.setdefault(pc + 1, []).extend(c_[3:4]); hooks.setdefault(pc + 3, []).extend(c_[4:] + [lambda: setattr(self, 'pfok', True)])
        if 200 <= pp_ < 300: hooks.setdefault(pp_ - 200, []).extend(pre)
        qh = deque(qhead)
        for n in range(20): hooks.setdefault(n, []).append(lambda: self.gap(qh, 2))
        qb_ = o.get('qb', (30, 53, 66, 80))
        assert 18 <= qb_[0] <= 34 and 38 <= qb_[1] <= 54 and 58 <= qb_[2] <= 74 and 78 <= qb_[3] <= 98
        busy = sorted([(pc, pc + 3), (n1, n1 + NI), (n2, min(100, n2 + o.get('h1len', 16)) + 1)] + ([(x3 - 200, x3 - 195)] if x3 >= 200 else []))
        assert all(a_[1] < b_[0] for a_, b_ in zip(busy, busy[1:])), busy
        assert pfp - 100 < pc and x2 < x3 and (pp_ < 100 or pp_ > x3 + 5)
        for fr_, pubg, rel in [(qb_[0], 12, [15]), (qb_[1], 13, [16]), (qb_[2], 14, [17]), (qb_[3], 14, [18])]:
            hooks.setdefault(fr_, []).extend([lambda g=pubg: self.group_sync(g)] + [lambda r=r: self.release(r) for r in rel])
        self.gemm_pass(2, ACC_K, xbp(2), fill=chk + [(1, x) for x in red], hooks=hooks, last=True, sync=False, frange=(n2, min(100, n2 + o.get('h1len', 16))),
                       pace=lambda n: 1 if (n >= 9 and n % (o.get('qpace', 3) if n < o.get('qsw', 42) else o.get('qpace2', 3)) == 0 and not n1 <= n < n1 + NI) else 0)
        assert not qh
        p("s_barrier")
        [self.release(r) for r in range(15, 20)]
        self.stamp()
        X = TMP + 96; CK = TMP + 92
        lds_ = [f"buffer_load_dwordx4 {vq(X+4*ii)}, v{V_LIN if ii < NI-1 else V_GAL}, {srd(SWS)}, s{S_P2LD} offen offset:{1024*ii if ii < NI-1 else 0} sc1" for ii in range(NI)]
        iss, chk = self.checked("L_h2", lds_, tagcheck("0xffff"), 'h2')
        zw = [f"v_mov_b32 v{CK}, 0", f"v_mov_b32 v{CK+1}, 0", f"ds_write_b64 v{V_ZA}, {vq(CK, 2)}"]
        self.put(zw)
        for k_ in range(o.get('dirty', 0)):
            p(f"s_add_u32 s{T0}, s{S_OP}, {(9 << 20) + (k_ // 5) * (6 << 20) + (k_ % 5) * 1024}")
            p(f"buffer_store_dwordx4 v[2:5], v{V_LIN}, {srd(SWS)}, s{T0} offen {o.get('dirtyf', '')}")
        if o.get('prepos', 0) == 1: self.put(pre)
        if not A:
            for tt in range(6): p(f"v_accvgpr_write_b32 a{40+4*(3*tt+2)+2}, 0"); p(f"v_accvgpr_write_b32 a{40+4*(3*tt+2)+3}, 0")
        if A:
            P0 = self.phiA_parts(x0, E0, M0_, "L_q0", True); P1 = self.phiA_parts(x1, E1, M1_, "L_q1", True)
            L = P0['cvt'] + self.weave(P0['mf'], P1['cvt'] + P0['exp'][:6]) + self.weave(P1['mf'], P0['exp'][6:]) + P0['norm'] + P0['out'] + P1['exp'] + P1['norm'] + P1['out']
        else:
            L = []
            for x, e in ((x0, E0), (x1, E1)):
                L += self.phiB(x, e, True) + [(1, f"v_mov_b32 v{x+10}, 0"), (1, f"v_mov_b32 v{x+11}, 0")]
        d1_, d2_ = o.get('oshift', (0, 0))
        Ld2 = L[len(L) - d2_:]; L = L[:len(L) - d2_]
        Ld1 = L[len(L) - d1_:]; L = L[:len(L) - d1_]
        tot = sum(c for c, _ in L)
        ev = [(tot - o.get('h2lead', 60), iss)]
        if o.get('prepos', 0) == 0 and o.get('prelead', 0) >= 0: ev.append((tot - o.get('prelead', o.get('h2lead', 60)) + 0.5, pre))
        if (o.get('pre1m') or 0) < -1: ev.append((tot + o['pre1m'] + 0.5, pre1))
        for ps_, L_ in prel: ev.append((tot + ps_ + 0.5, L_))
        L2 = []; c = 0; ev.sort(key=lambda e_: e_[0])
        for it_ in L + [(0, [])]:
            while ev and c >= ev[0][0] - (0.5 if it_[0] == 0 else 0): L2.append((0, ev.pop(0)[1]))
            L2.append(it_); c += it_[0]
        assert not ev
        self.run(L2, every=o.get('qev', 44))
        self.flush_dma(('W', 17))
        self.stamp()
        self.put([x for _, x in chk])
        if o.get('prepos', 0) == 0 and o.get('prelead', 0) < 0: self.put(pre)
        if o.get('pre1m') == -1: self.put(pre1)
        for ii in range(NI):
            p(f"v_perm_b32 v{X+4*ii}, v{X+4*ii+1}, v{X+4*ii}, s{S_PERM}")
            p(f"v_perm_b32 v{X+4*ii+1}, v{X+4*ii+3}, v{X+4*ii+2}, s{S_PERM}")
            p(f"ds_write_b64 v{V_LA+ii}, {vq(X+4*ii, 2)}", 'kvw')
        self.put([x for _, x in Ld1])
        p.wait(vm=[('W', 17)], lg='*')
        p("s_barrier")
        self.stamp()
        assert not self.dq or True
        import copy
        p(f"s_cmp_eq_u32 s{S_FAST}, 0"); p(f"s_cbranch_scc0 L_tail{self.sfx}s")
        env = dict(RS=RS, M0_=M0_, M1_=M1_, Ld2=Ld2, pre1=pre1)
        sv = (self.p, self.sfx, self.nst, getattr(self, 'cs', 0), deque(self.dq))
        self.p = Prog(); self.p.vmq = list(p.vmq); self.p.lgq = list(p.lgq); self.sfx += 's'
        self.p(f"L_tail{self.sfx}:")
        self.tail(False, **env)
        self.ool.append(self.p.finalize())
        self.p, self.sfx, self.nst, self.cs, self.dq = sv
        self.tail(True, **env)
        return p.finalize() + "".join(self.ool)
    def tail(self, fast, RS, M0_, M1_, Ld2, pre1):
        p = self.p; A = self.A; o = self.o; br = 0 if A else 1
        def more(k):
            while k > 0 and rds and len(p.lgq) < 15: self.put([rds.popleft()]); k -= 1
        OA = ACC_V
        NU = 5 if A else 3
        SP = TMP + 112
        OB = TMP + 64
        LO = TMP + 80
        fr = [(tt, u_) for tt in (5, 0, 1, 2, 3, 4) for u_ in range(NU)]
        AO = 40
        rds = deque()
        for n, (tt, u_) in enumerate(fr):
            if not A and u_ == 2: rds.append((f"ds_read_b64 {aq(AO+4*n, 2)}, v{V_FR2} offset:{4*tt*RS + 16*u_}", ('of', n)))
            else: rds.append((f"ds_read_b128 {aq(AO+4*n)}, v{V_FR2} offset:{4*tt*RS + 16*u_}", ('of', n)))
        more(10)
        if A: p(f"v_mov_b32 v{SP}, v{M0_}"); p(f"v_mov_b32 v{SP+1}, v{M1_}")
        self.put([x for _, x in Ld2])
        def ost(txt, tag='o'):
            p(txt + ("" if fast else " sc1"), tag)
        def flag(k): ost(f"buffer_store_dword v{V_NONCE}, v{V_FOWN}, {srd(SWS)}, s{S_FLAG} offen offset:{32*k}", 'fl')
        def poll(k, name):
            iss, chk = self.checked(name, [f"buffer_load_dword v{V_DUMP}, v{V_F8}, {srd(SWS)}, s{S_FLAG} offen offset:{32*k} sc1"], [f"v_cmp_ne_u32 vcc, s{S_NONCE}, v{V_DUMP}"], name)
            return iss, [x for _, x in chk]
        order = [(0, k) for k in range(5)] + [(1, k) for k in range(5)] + [(0, 5), (1, 5)]
        epi = deque()
        for z, (rt, k) in enumerate(order):
            dn = OA + (rt * 6 + 5) * 4
            b = OA + rt * 24
            rdy = (z + 1) * NU + o.get('rdy', 4)
            if k == 0:
                epi.append((rdy, 1, f"v_fmac_f32 v{dn}, {EPS}, v{SP+rt}" if A else f"v_add_f32 v{dn}, {EPS}, v{dn}")); epi.append((rdy, 2, f"v_rcp_f32 v{dn}, v{dn}"))
                continue
            tt = k - 1
            for r in range(4): epi.append((rdy, 1, f"v_mul_f32 v{b+4*tt+r}, v{b+4*tt+r}, v{dn}"))
            for h in range(2):
                i = 2 * tt + h
                d = OB + ((i // 4) * 2 + rt) * 4 + i % 4 if i < 8 else LO + 2 * rt + (i - 8)
                epi.append((rdy, 1, f"v_cvt_pk_bf16_f32 v{d}, v{b+2*i}, v{b+2*i+1}"))
            if tt in (1, 3):
                u_ = tt // 2
                epi.append((0, 2, lambda u_=u_, rt=rt: ost(f"buffer_store_dwordx4 {vq(OB+(u_*2+rt)*4)}, v{V_OO+rt*2+u_}, {srd(SO)}, s{S_OP} offen", ('S', rt))))
        epi.append((0, 2, lambda: ost(f"buffer_store_dwordx4 {vq(LO)}, v{V_OO+4}, {srd(SO)}, s{S_OP} offen", ('S', 1))))
        TM_ = o.get('tmaj', 3); LD = o.get('lead', 8); DF = o.get('df', 11); A_RING = A_PHI
        items = [(P, t_, (0, 1)) for P in range(2) for t_ in range(5)] + [(P, t_, (0,)) for P in range(2, 2 + LD) for t_ in range(5)] + \
                [(P, t_, (0, 1)) for P in range(2 + LD, 20) for t_ in range(5)] + [(P, t_, (1,)) for P in range(2, 2 + LD - TM_) for t_ in range(5)] + \
                [(P, t_, (1,)) for t_ in range(5) for P in range(2 + LD - TM_, 2 + LD)]
        def fread(i, hf):
            P, t_, _ = items[i]
            if True:
                if hf == 0:
                    off = RING + P * 5120 + 1024 * t_; hi = off >= 51200; s_ = A_RING + (i % DF) * 4
                    p(f"ds_read_b128 a[{s_}:{s_+3}], v{V_LINH if hi else V_LIN} offset:{off - 51200*hi}", ('FF', i))
                return
            off = RING + (P // 4) * SLOT + (P % 4) * 5120 + hf * 2560 + 8 * t_
            hi = off >= 51200; s_ = A_RING + (i % DF) * 4 + 2 * hf
            p(f"ds_read_b64_tr_b16 a[{s_}:{s_+1}], v{V_WT + hi} offset:{off - 51200*hi}", ('FF', i))
        pr = deque((i, 0) for i in range(DF - 1))
        m = 0; mf0 = o.get('mf0', 54 if A else 36); seen = set()
        for rt, k in order:
            for u_ in range(NU):
                n = k * NU + u_; tt = fr[n][0]
                a = OA + (rt * 6 + tt) * 4
                if m == 0: p.wait(lg=[('of', 0)])
                p(f"{MF} {vq(a)}, {aq(AO+4*n)}, {vq(ACC_K+20*rt+4*u_)}, {'0' if u_ == 0 else vq(a)}")
                m += 1
                if n + 1 < len(fr): p.wait(lg=[('of', n + 1)])
                bud = 2 if A else 3
                if m == mf0:
                    assert sum(1 for x in p.ins if x.tag == ('S', 0)) == 2
                    p.wait(vm=[('S', 0)]); flag(0); bud -= 2
                elif m == o.get('pre1m'): self.put(pre1); bud -= 2
                elif rds: more(1); bud -= 1 if not (epi and epi[0][0] <= m and epi[0][1] == 2) else 0
                elif self.dq and m % o.get('opace', 8) == 0: self.tick(); bud -= 2
                elif pr and not (epi and epi[0][0] <= m): fread(*pr.popleft()); bud -= 1
                while epi and epi[0][0] <= m and epi[0][1] <= bud:
                    _, c, x = epi.popleft(); bud -= c
                    self.put([x])
                    if callable(x): break
        while pr: fread(*pr.popleft())
        while len(epi) > 7: self.put([epi.popleft()[2]])
        while self.tick(): pass
        self.stamp()
        def ob(ks, rt):
            if ks < 2: return vq(OB + (ks * 2 + rt) * 4)
            return aq((ks * 2 + rt) * 4) if ks < 16 else vq(LO + (2 * (ks - 16) + rt) * 4)
        def ld(P, rt):
            if P < 16: return [(f"buffer_load_dwordx4 {aq((P*2+rt)*4)}, v{V_OO+rt*2+P%2}, {srd(SO)}, s{S_OP + P//2} offen sc1", ('O', P, rt))]
            return [(f"buffer_load_dwordx4 {vq(LO+(2*(P-16)+rt)*4)}, v{V_OO+4}, {srd(SO)}, s{S_OP + 2*(P-16) + rt} offen sc1", ('O', P, rt))]
        i0, c0 = poll(0, "L_f0"); i1, c1 = poll(1, "L_f1"); i2, c2 = poll(2, "L_d0"); i3, c3 = poll(3, "L_d1")
        L0x = min(16, 2 + LD + o.get('xlead', 0))
        lead = [ld(P, 0) for P in range(2, L0x)]
        rest = [ld(P, rt) for P in range(2 + LD, 20) for rt in range(2) if (P, rt) != (16, 0) and not (rt == 0 and P < L0x)] + [ld(P, 1) for P in range(2, 2 + LD)]
        def handshake():
            p.wait(vm=[('S', 1), ('W', 18), ('W', 19)])
            flag(1)
            self.put(c0)
            self.stamp()
            self.q(0, lead); self.q(10**6 + 50, rest)
            for k_ in range(o.get('oprime', 7)):
                self.tick()
                if k_ == 3: p("s_barrier")
                if k_ == 3 and o.get('p1it', -1) < 0: self.put(i1)
            p.wait(vm=[('O', 2, 0)])
        E0 = len(items) - 5 * LD
        NI_ = len(items)
        def outp(rt):
            b = TMP + 8
            c = self.cvt20(acc(ACC_K, 0, rt), b)
            L = []
            for j in range(5): L += [c[2*j][1], c[2*j+1][1], (f"ds_write_b64 v{V_OW}, {vq(b+2*j, 2)} offset:{rt*16*OUTS + 8*j}", 'ow')]
            L += [(f"ds_read_b128 {vq(TMP+24+4*j)}, v{V_ORD+j} offset:{rt*16*OUTS}", ('or', j)) for j in range(3)]
            S_ = [(f"buffer_store_dwordx4 {vq(TMP+24+4*j)}, v{V_OG+j}, {srd(SOUT)}, s{S_OUT} offen", 'out') for j in range(3)]
            return L, S_
        vw, lw, sc_, vec = {}, {}, {}, {}
        add = lambda d, i, L: d.setdefault(i, []).extend(L)
        def check(i, c, tag, gapn):
            add(vw, i, [tag]); add(vec, i, [c[1]]); add(sc_, i + gapn, [c[2]])
        ep = [x[2] for x in epi]
        add(vec, 1, ep[:3]); add(vec, 2, ep[3:6]); add(vec, 3, ep[6:])
        add(vec, o.get('p0pos', 4), i0)
        add(vec, 9, [handshake])
        if o.get('p1it', -1) >= 0: add(vec, 10 + o.get('p1it', -1), i1)
        ci = 10 + o.get('c1pos', 5); check(ci, c1, "L_f1", 2); add(sc_, ci + 2, [lambda: self.release(50)])
        for i in range(15, NI_ - 5 * TM_ + 1, 5):
            if i == NI_: break
            Pn, _, rn = items[i]
            tags = [('O', Pn, rt) for rt in rn]
            if i == NI_ - 5 * TM_: tags = [('O', 1 + LD, 1)]
            if Pn >= 16:
                a = LO + 2 * (Pn - 16) * 4
                add(vw, i - 2, tags); add(vec, i - 2, [f"v_swap_b32 v{a+2}, v{a+4}", f"v_swap_b32 v{a+3}, v{a+5}"])
            else: add(vw, i - 1, tags)
        nd0 = E0 - o.get('d0', 8); add(vw, nd0, [('O', 19, 0), ('O', 19, 1)]); add(vec, nd0, [lambda: flag(2)])
        add(vec, E0 + o.get('d0p', 0), i2)
        L0, S0 = outp(0)
        for j, x in enumerate(L0): add(vec, E0 + 2 + j, [x])
        nd1 = NI_ - o.get('d1', 24); add(vw, nd1, [('O', 1 + LD, 1)]); add(vec, nd1, [lambda: flag(3)])
        check(E0 + 22, c2, "L_d0", 2)
        for j, x in enumerate(S0): add(lw, E0 + 25 + 2 * j, [('or', j)]); add(vec, E0 + 25 + 2 * j, [x])
        L1, S1 = outp(1)
        n1e = 0
        if TM_:
            for j in range(15):
                pos = NI_ - 5 * TM_ + (j // 3 + 1) * TM_ + 2 + j % 3
                if pos < NI_: add(vec, pos, [L1[j]]); n1e = j + 1
        add(vec, NI_ - o.get('d1p', 8), i3)
        add(sc_, NI_ - 5, [f"s_or_b32 s{T0}, s{S_RB}, s{S_HEAD}"]); add(sc_, NI_ - 4, [f"s_cmp_lg_u32 s{T0}, 0"]); add(sc_, NI_ - 3, [f"s_cselect_b32 s{T0}, {WS_SIZE}, 0"])
        add(vec, NI_ - 2, [(f"buffer_store_dword v{V_NONCE}, v{V_FOWN}, {srd(SWS)}, s{T0} offen offset:{br*128} sc1", 'nn')])
        assert ci + 2 < E0 + o.get('d0p', 0) < E0 + 22 and E0 + 24 < NI_ - o.get('d1p', 8) and nd1 < NI_ - o.get('d1p', 8) and nd0 < E0 + o.get('d0p', 0)
        assert 3 < o.get('p0pos', 4) <= 9 and E0 + 29 < NI_ - 5 * TM_ + TM_ + 2 + 15
        p.wait(lg=[('FF', 0)])
        clk = 0.0; per = o.get('lper', 4.6)
        for i, (P, t_, rts) in enumerate(items):
            s_ = A_RING + (i % DF) * 4
            for z, rt in enumerate(rts):
                a = acc(ACC_K, t_, rt)
                p(f"{MF} {vq(a)}, {aq(s_)}, {ob(P, rt)}, {'0' if P == 0 else vq(a)}")
                if z == 0:
                    k0 = len(p.ins)
                    for tg in vw.get(i, []): self.flush_dma(tg)
                    p.wait(vm=vw.get(i), lg=[('FF', i + 1)] + lw.get(i, []))
                    if len(rts) == 1: self.put(sc_.get(i, []))
                    if i + DF - 1 < NI_:
                        if len(p.ins) == k0: p("s_nop 0")
                        fread(i + DF - 1, 0)
                else: self.put(sc_.get(i, []))
            self.stamp('z%d' % i)
            if i >= 10:
                clk += len(rts)
                if clk >= per and i not in vec and self.tick(): clk -= per
            self.put(vec.get(i, []))
        self.stamp()
        p(f"s_add_u32 s{S_OUT}, s{S_OUT}, {16*2560}")
        self.put(L1[n1e:12]); self.put(c3[:2]); self.put(L1[12:]); self.put(c3[2:])
        for j in range(3): p.wait(lg=[('or', j)]); self.put([S1[j]])
        if o.get('stamps'):
            p("s_waitcnt vmcnt(0)")
            self.stamp()
            p("s_memrealtime s[100:101]")
            p("s_waitcnt lgkmcnt(0)")
            p.raw(f"""
            s_lshl_b32 s{T0}, s2, 2
            s_add_u32 s{T0}, s{T0}, s{S_W}
            s_lshl_b32 s{T0}, s{T0}, 6
            s_add_u32 s{T0}, s{T0}, {WS_ST}
            v_mov_b32 v{TMP+16}, 0
            v_mov_b32 v{TMP}, s98
            v_mov_b32 v{TMP+1}, s100
            """)
            for k in range(14): p(f"v_mov_b32 v{TMP+2+k}, {'s%d' % (S_ST+k) if k < self.nst else ('s95' if k == 13 else 0)}")
            p("s_mov_b64 exec, 1")
            for k in range(4): p(f"buffer_store_dwordx4 {vq(TMP+4*k)}, v{TMP+16}, {srd(SWS)}, s{T0} offen offset:{16*k}")
        if o.get('cntm'):
            p.raw(f"""
            s_load_dwordx2 s[62:63], s[0:1], 64
            v_mov_b32 v2, 0
            v_mov_b32 v3, s95
            s_waitcnt lgkmcnt(0)
            s_cmp_eq_u32 s95, 0
            s_cbranch_scc1 L_cn0{self.sfx}
            s_mov_b64 exec, 1
            global_atomic_add v2, v3, s[62:63] sc1
            L_cn0{self.sfx}:
            s_or_b32 s{T0}, s{S_RB}, s{S_HEAD}
            s_cmp_lg_u32 s{T0}, 0
            s_cbranch_scc1 L_cn2{self.sfx}
            s_movk_i32 s{T0}, 3500
            s_mov_b32 s{T2}, 0
            L_cn1{self.sfx}:
            s_sleep 2
            s_memrealtime s[64:65]
            s_waitcnt lgkmcnt(0)
            s_sub_u32 s{T1}, s64, s98
            s_cmp_lt_u32 s{T1}, s{T0}
            s_cbranch_scc1 L_cn1{self.sfx}
            s_cmp_eq_u32 s{T2}, 1
            s_cbranch_scc1 L_cn2{self.sfx}
            global_load_dword v3, v2, s[62:63] sc1
            s_waitcnt vmcnt(0)
            v_readfirstlane_b32 s{T0}, v3
            s_min_u32 s{T0}, s{T0}, 1024
            s_mul_i32 s{T0}, s{T0}, 20
            s_add_u32 s{T0}, s{T0}, 4000
            s_mov_b32 s{T2}, 1
            s_branch L_cn1{self.sfx}
            L_cn2{self.sfx}:
            """)
        if o.get('amp'):
            p("s_waitcnt vmcnt(0)")
            self.stamp()
            if o['amp'][0] < 0: p("s_mov_b32 s100, s98")
            p.raw(f"""
            s_and_b32 s{T0}, s2, 7
            s_lshr_b32 s{T0}, {o['amp'][2]}, s{T0}
            s_bitcmp1_b32 s{T0}, 0
            s_cbranch_scc0 L_ampx{self.sfx}
            s_load_dwordx2 s[62:63], s[0:1], 64
            v_mov_b32 v2, 0
            s_waitcnt lgkmcnt(0)
            global_load_dword v3, v2, s[62:63] sc1
            s_waitcnt vmcnt(0)
            v_readfirstlane_b32 s{T2}, v3
            s_not_b32 s{T2}, s{T2}
            s_sub_u32 s{T0}, s100, s{T2}
            s_add_u32 s{T0}, s{T0}, 300
            s_mul_i32 s{T0}, s{T0}, {o['amp'][1]}
            s_min_u32 s{T0}, s{T0}, 100000
            L_amp{self.sfx}:
            s_sleep 2
            s_memrealtime s[64:65]
            s_waitcnt lgkmcnt(0)
            s_sub_u32 s{T1}, s64, s{T2}
            s_cmp_lt_u32 s{T1}, s{T0}
            s_cbranch_scc1 L_amp{self.sfx}
            L_ampx{self.sfx}:
            """)
        p("s_endpgm")
        assert not self.dq

def sizes(lines):
    import subprocess, re
    src = '.amdgcn_target "amdgcn-amd-amdhsa--gfx950"\n.text\n' + "\n".join(lines) + "\n"
    r = subprocess.run(["llvm-mc", "-triple=amdgcn-amd-amdhsa", "-mcpu=gfx950", "-show-encoding"], input=src, capture_output=True, text=True)
    assert r.returncode == 0, r.stderr[:2000]
    return [len(m.split(',')) for m in re.findall(r'encoding: \[([^\]]*)\]', r.stdout)]
def add_hops(text, sfx, align=True):
    lines = text.split("\n")
    i0 = lines.index(f"L_main{sfx}:"); i1 = next(i for i in range(i0, len(lines)) if lines[i].strip() == "s_endpgm")
    body = lines[i0 + 1:i1]
    isi = lambda l: l.startswith("    ")
    szl = sizes([l for l in body if isi(l)])
    insl = [l.strip() for l in body if isi(l)]
    big = [z == 8 and t.startswith("v_") and not t.startswith("v_mfma") for z, t in zip(szl, insl)]
    run = [0] * (len(big) + 1)
    for k in range(len(big) - 1, -1, -1): run[k] = run[k + 1] + 1 if big[k] else 0
    sz = iter(szl); k = -1; nfix = 0
    out = []; addr = 0; page = 0; prev = "v_mfma"
    for l in body:
        if isi(l):
            k += 1
            if align and run[k] >= 3 and addr % 8 == 4:
                pv = out[-1] if isinstance(out[-1], str) else ""
                op = pv.split()[0] if pv.strip() else ""
                if isi(pv) and szl[k - 1] == 4 and op.startswith("v_") and not op.startswith(("v_cmp", "v_swap", "v_permlane", "v_readfirst")):
                    out[-1] = pv.replace(op, op + "_e64", 1); addr += 4; nfix += 1
                elif run[k] >= 6: out.append("    s_nop 0"); addr += 4; nfix += 1
            off = addr - page * 4096
            if off >= 0 and (prev.startswith("v_mfma") or off >= 40) and not prev.startswith("s_mov_b64 exec") :
                out.append(("hop", page)); addr += 4; page += 1
            addr += next(sz); prev = l.strip()
        out.append(l)
    assert page >= 4
    res = []
    for x in out:
        if isinstance(x, tuple):
            k = x[1]
            res += [f"L_hop{k}{sfx}:", f"    s_cbranch_execz " + (f"L_hop{k+4}{sfx}" if k + 4 < page else f"L_hopret{sfx}")]
        else: res.append(x)
    print(sfx, "main bytes", addr, "align fixes", nfix, file=sys.stderr)
    return "\n".join(lines[:i0 + 1] + res + lines[i1:])

def build(opt):
    ref = open(f"cdna_kernels/{NAME}.s.ref").read().split("\n")
    head = [l for l in ref if l.startswith(";") and "@launch" not in l]
    s = "\n".join(head) + "\n; @launch grid=(256,1,1) block=(256,1,1) lds=163840\n"
    s += f""".amdgcn_target "amdgcn-amd-amdhsa--gfx950"
.text
.globl {NAME}_kernel
.p2align 12
.p2align 8
.type {NAME}_kernel,@function
{NAME}_kernel:
    s_cmp_ge_u32 s2, 256
    s_cbranch_scc1 L_exit
"""
    ga = Gen(True, opt); ta = ga.body(); gb = Gen(False, opt); tb = gb.body()
    ca, ra = ta.split(".split\n"); cb, rb = tb.split(".split\n")
    assert ca == cb
    if opt.get('hops', 1): ra = add_hops(ra, 'A', opt.get('align', 1)); rb = add_hops(rb, 'B', opt.get('align', 1))
    s += ca + ra + "L_exit:\n    s_endpgm\n.p2align 12\n" + rb
    s += ".fill 2048, 4, 0xbf810000\n"
    s += f""".section .rodata,"a"
.p2align 6
.amdhsa_kernel {NAME}_kernel
  .amdhsa_next_free_vgpr 512
  .amdhsa_next_free_sgpr 102
  .amdhsa_accum_offset 256
  .amdhsa_group_segment_fixed_size 0
  .amdhsa_kernarg_size 80
  .amdhsa_user_sgpr_count 2
  .amdhsa_user_sgpr_kernarg_segment_ptr 1
  .amdhsa_system_sgpr_workgroup_id_x 1
.end_amdhsa_kernel
"""
    print("nops", ga.p.nops, gb.p.nops, "instrs", len(ga.p.ins), len(gb.p.ins), "autow", getattr(ga.p, 'autow', 0), file=sys.stderr)
    return s

if __name__ == "__main__":
    import json
    opt = json.loads(sys.argv[2]) if len(sys.argv) > 2 else {}
    open(sys.argv[1], "w").write(build(opt))
```

```python
import sys
from collections import deque
from emit import Prog
NAME = "concat_heads__linear_kernel_hedgehog__linear_attn_block__prompt"

S_RB, S_HG, S_W = 4, 5, 7
SX, SW, SWO, SWS, SOUT, SPHI = 8, 12, 16, 20, 24, 28
S_NONCE = 32
S_WROW = 33
S_XBASE, S_XU = 38, 39
S_LW, S_LR = 40, 41
T0, T1, T2, T3 = 42, 43, 44, 45
S_WOROW = 46
S_HEAD = 51
S_SPIN = 52
S_FAST = 53
S_L2E, S_NL2E = 54, 55
S_OB = 56
S_WS, S_XS = 57, 58
S_FLAG = 59
S_OP = 60
S_P1ST, S_P1LD, S_P2ST, S_P2LD, S_OWN, S_OUT, S_XCCV, S_PERM = 68, 69, 70, 71, 72, 73, 74, 75
S_KA = 76
S_ST = 76
import os
if os.environ.get('PRO'): S_ST = 88
def srd(b): return f"s[{b}:{b+3}]"
V_LANE = 1
V_WO = 2; V_OF = 7; V_OL = 12; V_XO = 17; V_XR = 21; V_WT = 23; V_LIN = 25
V_PW, V_VW, V_KB, V_KA0, V_KA1, V_FR = 26, 27, 28, 29, 30, 31
ACC_K, ACC_V = 32, 72
TMP = 112
PV = 228
V_P1ST, V_P1LD, V_P2ST, V_GAL, V_LA, V_FR2, V_KEEP, V_ONE, V_OW, V_ORD, V_OG, V_F8, V_DUMP, V_ZA = PV, PV+1, PV+2, PV+3, PV+4, PV+8, PV+9, PV+10, PV+11, PV+12, PV+17, PV+22, PV+23, PV+24
V_L128, V_NONCE, V_FOWN = PV + 25, PV + 26, PV + 27
RING = 0; SLOT = 20480; RBASE = 102400; RW = 15360
OUTL = RBASE + 16384; OUTS = 176
WS_FLAG, WS_XCC, WS_P2, WS_P1, WS_O, WS_ST = 4096, 32768, 5 << 20, 1 << 20, 8 << 20, 16 << 20
WS_SIZE = 32 << 20
D = 6
A_RING = 220
A_PHI = 160
A_PARK = 244
V_OO = 7; V_LINH = 12; V_PF = 13; V_P1M = 14
WS_PF = 49152; WS_PK = 6 << 20
S_USRC, S_UDST, S_UFL, S_UTAG, S_PFL, S_XA = 3, 6, 72, 90, 91, 93
S_TB = SX
S_NHI = 38
SO = SPHI
SPIN_MAX = 20000
EPS = "0x358637bd"

def vq(b, n=4): return f"v[{b}:{b+n-1}]"
def aq(b, n=4): return f"a[{b}:{b+n-1}]"
def acc(base, t, rt): return base + (rt * 5 + t) * 4
MF = "v_mfma_f32_16x16x32_bf16"

DEF = {'A': dict(xpos=(117, 190, 222), qpace=4, pfpos=101, pfchk=28, prokeep=4, proev=60, h1=(46, 72), h1len=8, h2lead=180, prelead=60, kpace=4, hx=30, vsync=1, qev=26), 'B': dict(xpos=(117, 190, 222), upos=(18, 18, 62), pfpos=101, pfchk=28, h1=(50, 76), h1len=5, h2lead=80, prem=(283, -70, -30), vpace=3, qev=24, vsync=1)}
class Gen:
    def __init__(self, isA, opt):
        self.A = isA
        sf = 'A' if isA else 'B'
        opt = dict(DEF[sf], **opt)
        opt.update({k[:-1]: v for k, v in opt.items() if k.endswith(sf)})
        self.o = opt
        self.p = Prog(); self.sfx = 'A' if isA else 'B'
        self.F = 40 if isA else 20
        self.nst = 0
        self.dq = deque()
        self.pos = 0
        self.ool = []
    def stamp(self, name=None):
        p = self.p
        if name is None and self.o.get('idle'):
            self.ic = getattr(self, 'ic', -1) + 1
            if self.ic == self.o['idle'][0]: p(f"s_sleep {self.o['idle'][1]}")
        fine = self.o.get('fine')
        if fine:
            if name is None: self.cs = getattr(self, 'cs', 0) + 1; name = 's%d' % (self.cs - 1)
            if name not in fine: return
        elif name is not None: return
        if self.o.get('amp'):
            if self.nst == self.o['amp'][0]:
                p("s_memrealtime s[100:101]"); p("s_waitcnt lgkmcnt(0)")
            self.nst += 1
            return
        if not self.o.get('stamps'): return
        p(f"s_memrealtime s[100:101]" if self.o.get('rt') else f"s_memtime s[100:101]")
        p("s_waitcnt lgkmcnt(0)")
        p(f"s_sub_u32 s{S_ST+self.nst}, s100, {'s98' if self.o.get('rt') else 's96'}")
        self.nst += 1
    def put(self, L):
        for x in L:
            if isinstance(x, tuple): self.p(x[0], x[1])
            elif isinstance(x, list): self.put(x)
            elif callable(x): x()
            else: self.p(x)
    def dma_w(self, G):
        g = G % 5
        pre = [f"s_add_u32 m0, s{S_LW}, {RING + g*SLOT}"]
        if G < 15:
            col = {0: 1280, 1: 2560, 2: 0}[G // 5]
            gr = 4 - g if G // 5 in self.o.get('rev', [1, 2]) else g
            pre.append(f"s_add_u32 s{S_WS}, s{S_WROW+gr}, {col}"); so = f"s{S_WS}"; sd = SW; vo = V_WO
        else:
            items = []
            for j in range(5):
                off = f"offset:{j*1024} " if 0 < j < 4 else ""
                L = (pre if j == 0 else []) + [(f"buffer_load_dwordx4 v{V_LIN}, {srd(SWS)}, s{S_WOROW+g} offen {off}sc1 lds", ('W', G))]
                if j == 3: L += [f"s_add_u32 m0, s{S_LW}, {RING + g*SLOT + 4096}", f"s_add_u32 s{S_WOROW+g}, s{S_WOROW+g}, 4096"]
                items.append(L)
            return items
        items = []
        if G // 5 in self.o.get('fake', []):
            base = (G % 5) * 4 * 5120 + (G // 5 if G < 15 else 0) * 819200
            if self.o.get('fakerot'):
                pre = [pre[0], f"s_mul_hi_u32 s{S_WS}, s{S_WROW+gr}, 34953", f"s_mul_i32 s{S_WS}, s{S_WS}, 5120", f"s_add_u32 s{S_WS}, s{S_WS}, s94", f"s_sub_u32 s{S_WS}, s{S_WS}, s{S_LW}",
                       f"s_add_u32 s{S_WS}, s{S_WS}, {(G // 5) * 819200}"]
            else: pre = [pre[0], f"s_add_u32 s{S_WS}, s94, {base}"]
            for j in range(5):
                off = f"offset:{j*1024} " if 0 < j < 4 else ""
                L = (pre if j == 0 else []) + [(f"buffer_load_dwordx4 v{V_LIN}, {srd(sd)}, s{S_WS} offen {off}lds", ('W', G))]
                if j == 3: L += [f"s_add_u32 m0, s{S_LW}, {RING + g*SLOT + 4096}", f"s_add_u32 s{S_WS}, s{S_WS}, 4096"]
                items.append(L)
            return items
        for j in range(5):
            off = f"offset:{j*1024} " if 0 < j < 4 else ""
            L = (pre if j == 0 else []) + [(f"buffer_load_dwordx4 v{vo+j}, {srd(sd)}, {so} offen {off}lds", ('W', G))]
            if j == 3: L.append(f"s_add_u32 m0, s{S_LW}, {RING + g*SLOT + 4096}")
            items.append(L)
        return items
    def dma_x(self, pu):
        items = []
        for j in range(4):
            off = f"offset:{j*1024} " if j else ""
            L = []
            if j == 0: L += [f"s_add_u32 m0, s{S_LR}, {(pu % 3) * 4096}", f"s_add_u32 s{S_XS}, s{S_XU}, s{S_XBASE}"]
            L.append((f"buffer_load_dwordx4 v{V_XO+j}, {srd(SX)}, s{S_XS} offen {off}lds", ('X', pu)))
            if j == 0: L += [f"s_add_u32 s{S_XU}, s{S_XU}, 128"]
            if j == 1: L += [f"s_cmp_eq_u32 s{S_XU}, 1280", f"s_cselect_b32 s{S_XU}, 0, s{S_XU}"]
            items.append(L)
        return items
    def q(self, earliest, items):
        for it in items: self.dq.append((earliest, it))
    def release(self, k):
        self.dq = deque((0 if e == 10**6 + k else e, it) for e, it in self.dq)
    def tick(self):
        if self.dq and not getattr(self, 'pfok', False) and any(isinstance(x, tuple) and x[1] == ('W', 15) for x in self.dq[0][1]): return False
        if self.dq and self.dq[0][0] <= self.pos:
            self.put(self.dq.popleft()[1]); return True
        return False
    def flush_dma(self, tag):
        def has():
            return any(isinstance(x, tuple) and x[1] == tag for _, it in self.dq for x in it)
        while has():
            assert self.dq[0][0] <= self.pos, (tag, self.pos, self.dq[0])
            self.put(self.dq.popleft()[1])
    def run(self, L, every=30):
        c = 0
        for cost, x in L:
            self.put([x]); c += cost
            if c >= every: c = 0; self.tick()
    def wread(self, N, hf):
        G = N // 20; ks = (N % 20) // 5; t = N % 5
        off = RING + (G % 5) * SLOT + ks * 5120 + hf * 2560 + 8 * t
        hi = off >= 51200
        s = A_RING + (N % D) * 4 + 2 * hf
        if G // 5 in self.o.get('fake', []):
            if hf == 0:
                off = RING + (G % 5) * SLOT + ks * 5120 + 1024 * t
                hi = off >= 51200
                self.p(f"ds_read_b128 a[{s}:{s+3}], v{226 + hi} offset:{off - 51200*hi}", ('F', N))
            return
        self.p(f"ds_read_b64_tr_b16 a[{s}:{s+1}], v{V_WT + hi} offset:{off - 51200*hi}", ('F', N))
    def group_sync(self, G):
        self.flush_dma(('W', G))
        self.p.wait(vm=[('W', G)])
        self.p("s_barrier")
    def xread(self, pu, k):
        ksub, rt = divmod(k, 2)
        if k == 0:
            self.flush_dma(('X', pu)); self.p.wait(vm=[('X', pu)])
        a = ((2 * pu + ksub) * 2 + rt) * 4
        self.p(f"ds_read_b128 {aq(a)}, v{V_XR+ksub} offset:{(pu % 3)*4096 + rt*2048}", ('XR', pu))
    def prime(self, ps, sync=True):
        if sync: self.group_sync(ps * 5)
        for n in range(D - 1):
            self.wread(ps * 100 + n, 0); self.wread(ps * 100 + n, 1)
    def gemm_pass(self, ps, accb, bop, fill=None, hooks=None, last=False, pace=None, sync=True, frange=(0, 100), hooks0=None):
        p = self.p
        fill = deque(fill or []); hooks = hooks or {}; hooks0 = hooks0 or {}
        N0 = ps * 100
        p.wait(lg=[('F', N0), ('XR', 0)])
        pace = pace or (lambda n: 0)
        for n in range(100):
            self.pos = N0 + n
            ks, t = divmod(n, 5)
            s = A_RING + ((N0 + n) % D) * 4
            M = n + D - 1
            look = M < 100 or not last
            a = acc(accb, t, 0)
            p(f"{MF} {vq(a)}, {aq(s)}, {bop(ks, 0)}, {'0' if ks == 0 else vq(a)}")
            k0 = len(p.ins)
            if n < 99:
                tg = [('F', N0 + n + 1)]
                if ps == 0 and (n + 1) % 10 == 0: tg.append(('XR', (n + 1) // 10))
                p.wait(lg=tg)
            if n in hooks0: self.put(hooks0[n])
            if look:
                if M % 20 == 0 and sync: self.group_sync((N0 + M) // 20)
                if len(p.ins) == k0: p("s_nop 0")
                self.wread(N0 + M, 0); self.wread(N0 + M, 1)
                if ps in self.o.get('fake', []) and fill and n >= frange[0] and not isinstance(fill[0][1], tuple): self.gap(fill, 1 if fill[0][0] < 2 or n % 2 else 2)
            elif fill and n >= frange[0]: self.gap(fill, 2)
            a = acc(accb, t, 1)
            p(f"{MF} {vq(a)}, {aq(s)}, {bop(ks, 1)}, {'0' if ks == 0 else vq(a)}")
            self.pos = N0 + n + 1
            self.stamp('n%d' % (N0 + n))
            did = 0
            for _ in range(pace(n)): did += self.tick()
            if n in hooks: self.put(hooks[n])
            if fill and n >= frange[0]:
                left = sum(c for c, _ in fill)
                gaps = sum(1 for k in range(n, frange[1]) if not pace(k)) + (min(D - 1, 99 - n) if last and frange[1] == 100 else 0)
                bud = 0 if did else 2
                if left > (3 if ps in self.o.get('fake', []) else 2) * gaps: bud += 2
                if ps == 2 and left > 4 * gaps: bud = -(-left // max(gaps, 1))
                self.gap(fill, bud)
        while fill: self.put([fill.popleft()[1]])
        self.pos = N0 + 100
    def gap(self, fill, bud):
        first = True
        while fill:
            c, x = fill[0]
            solo = isinstance(x, tuple)
            if c > bud or (solo and not first): break
            fill.popleft(); self.put([x]); bud -= c
            if solo: break
            if c: first = False
    def cvt20(self, src, dst):
        return [(1, f"v_cvt_pk_bf16_f32 v{dst+i}, v{src+2*i}, v{src+2*i+1}") for i in range(10)]
    def phiA_parts(self, x, e, m, name, isq):
        P = {}
        kb = e + 28
        P['cvt'] = self.cvt20(x, kb) + [(1, f"v_mov_b32 v{kb+10}, 0"), (1, f"v_mov_b32 v{kb+11}, 0")]
        P['mf'] = [(2, f"{MF} {vq(x+4*t)}, {aq(A_PHI + (t*3+u)*4)}, {vq(kb+4*u)}, {'0' if u == 0 else vq(x+4*t)}") for t in range(5) for u in range(3)]
        P['exp'] = [(2, f"v_exp_f32 v{e+i}, v{x+i}") for i in range(20)] + [(2, f"v_exp_f32 v{e+20+i}, -v{x+i}") for i in range(20)]
        def sums():
            L = [f"v_pk_add_f32 v[{m+2*h}:{m+2*h+1}], v[{e+20*h}:{e+20*h+1}], v[{e+20*h+2}:{e+20*h+3}]" for h in range(2)]
            L += [f"v_pk_add_f32 v[{m+2*h}:{m+2*h+1}], v[{m+2*h}:{m+2*h+1}], v[{e+20*h+2*i}:{e+20*h+2*i+1}]" for i in range(2, 10) for h in range(2)]
            L += [f"v_add_f32 v{m+2*h}, v{m+2*h}, v{m+2*h+1}" for h in range(2)]
            return L
        nm = name + self.sfx
        L = sums() + [f"v_max_f32 v{m+1}, v{m}, v{m+2}", f"v_cmp_ngt_f32 vcc, 0x5d800000, v{m+1}"]
        if not isq: L.append(f"v_rcp_f32 v{m+4}, v{m}")
        L += [f"v_rcp_f32 v{m+2}, v{m+2}", [f"s_cbranch_vccnz {nm}_slow", f"{nm}_back:"]]
        o = Prog()
        o(f"{nm}_slow:")
        o(f"v_max3_f32 v{m}, v{x}, v{x+1}, v{x+2}"); o(f"v_min3_f32 v{m+1}, v{x}, v{x+1}, v{x+2}")
        for i in range(3, 19, 2):
            o(f"v_max3_f32 v{m}, v{m}, v{x+i}, v{x+i+1}"); o(f"v_min3_f32 v{m+1}, v{m+1}, v{x+i}, v{x+i+1}")
        o(f"v_max_f32 v{m}, v{m}, v{x+19}"); o(f"v_min_f32 v{m+1}, v{m+1}, v{x+19}")
        for i in range(20): o(f"v_sub_f32 v{e+i}, v{x+i}, v{m}"); o(f"v_sub_f32 v{e+20+i}, v{m+1}, v{x+i}")
        for i in range(40): o(f"v_exp_f32 v{e+i}, v{e+i}")
        for y in sums(): o(y)
        if not isq: o(f"v_rcp_f32 v{m+4}, v{m}")
        o(f"v_rcp_f32 v{m+2}, v{m+2}"); o("s_nop 1"); o(f"s_branch {nm}_back")
        self.ool.append(o.finalize())
        if isq: L.append(f"v_mul_f32 v{m+2}, v{m+2}, v{m}")
        else: L += [f"v_pk_mul_f32 v[{e+2*i}:{e+2*i+1}], v[{e+2*i}:{e+2*i+1}], v[{m+4}:{m+5}] op_sel_hi:[1,0]" for i in range(10)]
        L += [f"v_pk_mul_f32 v[{e+20+2*i}:{e+21+2*i}], v[{e+20+2*i}:{e+21+2*i}], v[{m+2}:{m+3}] op_sel_hi:[1,0]" for i in range(10)]
        if self.o.get('whatif') == ('q' if isq else 'k'): L = [y for y in L if not (isinstance(y, str) and y.startswith('v_pk_add') and y.split()[1] == y.split()[2])]
        P['norm'] = [(1, y) for y in L]
        P['out'] = [(1, f"v_cvt_pk_bf16_f32 v{x+i}, v{e+2*i}, v{e+2*i+1}") for i in range(20)]
        return P
    def weave(self, mf, va, per=2):
        va = deque(va); L = []
        for x in mf:
            L.append(x); b = per
            while va and va[0][0] <= b: b -= va[0][0]; L.append(va.popleft())
        return L + list(va)
    def phiB(self, x, e, packed):
        L = []
        if packed: L += [(1, f"v_pk_mul_f32 v[{e+2*i}:{e+2*i+1}], v[{x+2*i}:{x+2*i+1}], s[{S_L2E}:{S_NL2E}] op_sel_hi:[1,0]") for i in range(10)]
        else: L += [(1, f"v_mul_f32 v{e+i}, s{S_L2E}, v{x+i}") for i in range(20)]
        L += [(2, f"v_exp_f32 v{e+i}, v{e+i} clamp") for i in range(20)]
        L += [(1, f"v_max_f32 v{x+i}, {EPS}, v{x+i}") for i in range(20)]
        if packed: L += [(1, f"v_pk_add_f32 v[{e+2*i}:{e+2*i+1}], v[{e+2*i}:{e+2*i+1}], v[{x+2*i}:{x+2*i+1}]") for i in range(10)]
        else: L += [(1, f"v_add_f32 v{e+i}, v{e+i}, v{x+i}") for i in range(20)]
        L += self.cvt20(e, x)
        return L
    def checked(self, name, loads, check, tag):
        nm = name + self.sfx
        iss = [(x, tag) if x.startswith('buffer') else x for x in loads]
        chk = [(0, lambda: self.p.wait(vm=[tag]))] + [(1, x) for x in check] + [(1, [f"s_cbranch_vccnz {nm}_retry", f"{nm}_ok:"])]
        o = Prog()
        o(f"{nm}_retry:"); o(f"s_mov_b32 s{S_SPIN}, 0")
        if self.o.get('cnt') == name: o("s_mov_b32 s95, 1")
        o(f"{nm}_loop:")
        if self.o.get('stamps'): o(f"s_add_u32 s95, s95, {dict(L_xc=1000000, L_h1=10000, L_h2=1000, L_pf=10000000, L_f0=1, L_f1=100, L_d0=0, L_d1=100000)[name]}")
        bk = self.o.get('backoff', {}).get(name, 0)
        if bk: o(f"s_sleep {bk}")
        for x in loads: o(x)
        o("s_waitcnt vmcnt(0)")
        for x in check: o(x)
        o(f"s_cbranch_vccz {nm}_ok")
        o(f"s_add_u32 s{S_SPIN}, s{S_SPIN}, 1"); o(f"s_cmp_lt_u32 s{S_SPIN}, {SPIN_MAX}"); o(f"s_cbranch_scc1 {nm}_loop")
        o(f"s_branch {nm}_ok")
        self.ool.append(o.finalize())
        return iss, chk
    def body(self):
        p = self.p; A = self.A; F = self.F; br = 0 if A else 1; o = self.o
        t = TMP
        K = S_KA
        kx, kw, kout, kws = K, K + 2, K + 8, K + 10
        kphi, kwo = (K + 4, K + 6) if A else (None, K + 4)
        p.raw(f"""
        s_andn2_b32 s{T0}, 1, s2
        s_lshl_b32 s{T0}, s{T0}, 5
        s_load_dwordx8 s[{K}:{K+7}], s[0:1], s{T0}
        s_load_dwordx2 s[{kout}:{kout+1}], s[0:1], 56
        s_load_dwordx2 s[{kws}:{kws+1}], s[0:1], 72
        """)
        if o.get('stamps'): p("s_memtime s[96:97]"); p("s_mov_b32 s95, 0")
        if o.get('stamps') or o.get('amp') or o.get('cntm'): p("s_memrealtime s[98:99]")
        if o.get('cntm'): p("s_mov_b32 s95, 0")
        p.raw(f"""
        s_getpc_b64 s[60:61]
        L_pc:
        s_bfe_u32 s{S_HG}, s2, 0x30003
        v_and_b32 v{V_LANE}, 63, v0
        v_lshrrev_b32 v{t}, 6, v0
        s_bitcmp0_b32 s2, 0
        s_cselect_b32 s{T1}, L_setupB-L_setupA, 0
        s_lshl_b32 s{T0}, s{S_HG}, 12
        v_lshlrev_b32 v{V_L128}, 7, v{V_LANE}
        v_readfirstlane_b32 s{S_W}, v{t}
        s_add_u32 s{T0}, s{T0}, s{T1}
        s_add_u32 s{T0}, s{T0}, L_setupA-L_pc
        s_add_u32 s60, s60, s{T0}
        s_addc_u32 s61, s61, 0
        v_lshl_add_u32 v{t+1}, v{t}, 10, v{V_L128}
        s_mov_b64 exec, 0xff
        """)
        p(f"global_load_dword v{V_DUMP}, v{t+1}, s[60:61]", 'cpf')
        p("s_mov_b64 exec, -1")
        ra, rbm, rdiv = o.get('rot', (10, 10, 4))
        p.raw(f"""
        s_and_b32 s{S_RB}, s2, 6
        s_lshl_b32 s{S_RB}, s{S_RB}, 1
        s_lshr_b32 s{T0}, s2, 6
        s_add_u32 s{S_RB}, s{S_RB}, s{T0}
        s_mul_i32 s{T0}, s{S_HG}, {ra}
        s_mul_i32 s{T1}, s{S_RB}, {rbm}
        s_add_u32 s{T0}, s{T0}, s{T1}
        s_lshr_b32 s{T0}, s{T0}, {rdiv.bit_length()-1}
        s_mul_i32 s{T1}, s{T0}, 6554
        s_lshr_b32 s{T1}, s{T1}, 16
        s_mul_i32 s{T1}, s{T1}, 10
        s_sub_u32 s{T3}, s{T0}, s{T1}
        s_lshl_b32 s{S_XU}, s{T3}, 7
        s_lshl_b32 s{T0}, s{S_RB}, 2
        s_add_u32 s{T0}, s{T0}, s{S_W}
        s_mul_i32 s{S_XBASE}, s{T0}, 40960
        s_mul_i32 s{S_LW}, s{S_W}, 5120
        s_mul_i32 s{S_LR}, s{S_W}, {RW}
        s_add_u32 s{S_LR}, s{S_LR}, {RBASE}
        v_lshrrev_b32 v{t}, 3, v{V_LANE}
        v_mul_u32_u24 v{t}, 1280, v{t}
        v_lshrrev_b32 v{t+1}, 4, v{V_LANE}
        v_xor_b32 v{t+1}, v{t+1}, v{V_LANE}
        v_and_b32 v{t+1}, 7, v{t+1}
        v_lshl_add_u32 v{V_XO}, v{t+1}, 4, v{t}
        v_xor_b32 v{t+2}, 64, v{V_XO}
        v_add_u32 v{V_XO+1}, {9216}, v{t+2}
        v_add_u32 v{V_XO+2}, {2*9216}, v{V_XO}
        v_add_u32 v{V_XO+3}, {3*9216}, v{t+2}
        s_lshr_b32 s{T0}, s{S_W}, 1
        s_add_u32 s{T0}, s{T0}, s{T3}
        s_and_b32 s{T1}, s{S_W}, 1
        s_mul_i32 s{T1}, s{T1}, {32*3840}
        s_mul_i32 s{T2}, s{S_HG}, 160
        s_add_u32 s{T1}, s{T1}, s{T2}
        s_mov_b32 s{SX+2}, 2621440
        s_mov_b32 s{SX+3}, 0x20000
        s_mov_b32 s{SW+2}, 2457600
        s_mov_b32 s{SW+3}, 0x20000
        """)
        def wrow(g):
            p.raw(f"""
            s_cmp_ge_u32 s{T0}, 10
            s_cselect_b32 s{T2}, 10, 0
            s_sub_u32 s{T0}, s{T0}, s{T2}
            s_mul_i32 s{T2}, s{T0}, {64*3840}
            s_add_u32 s{S_WROW+g}, s{T2}, s{T1}
            s_add_u32 s{T0}, s{T0}, 2
            """)
        wrow(0)
        RH = TMP + 10
        def woff(j):
            b = RH + 5 * j
            p.raw(f"""
            v_add_u32 v{t}, {64*j}, v{V_LANE}
            v_mul_u32_u24 v{b+4}, 6554, v{t}
            v_lshrrev_b32 v{b+4}, 16, v{b+4}
            v_mul_u32_u24 v{t+2}, 10, v{b+4}
            v_sub_u32 v{b+3}, v{t}, v{t+2}
            v_bfe_u32 v{b}, v{b+4}, 2, 2
            v_lshrrev_b32 v{b+1}, 4, v{b+4}
            v_and_b32 v{b+2}, 3, v{b+4}
            v_lshl_add_u32 v{t}, v{b}, 1, v{b+1}
            v_lshl_add_u32 v{t}, v{t}, 2, v{b+2}
            v_mul_u32_u24 v{t}, 3840, v{t}
            v_lshl_add_u32 v{V_WO+j}, v{b+3}, 4, v{t}
            """)
            if 0 < j < 4: p(f"v_subrev_u32 v{V_WO+j}, {1024*j}, v{V_WO+j}")
        if o.get('fakeinit'):
            p.raw(f"""
            s_mul_i32 s94, s{S_HG}, 102400
            s_add_u32 s94, s94, s{S_LW}
            v_lshlrev_b32 v{V_LIN}, 4, v{V_LANE}
            v_mov_b32 v226, v{V_LIN}
            v_add_u32 v227, 51200, v{V_LIN}
            """)
        woff(0); woff(1)
        if o.get('pre0'): p("s_memtime s[92:93]")
        p.raw(f"""
        s_waitcnt lgkmcnt(0)
        s_mov_b32 s{SX}, s{kx}
        s_mov_b32 s{SX+1}, s{kx+1}
        s_mov_b32 s{SW}, s{kw}
        s_mov_b32 s{SW+1}, s{kw+1}
        """)
        if o.get('late0'): p.raw(f"s_and_b32 s60, s2, 7\ns_cmp_lg_u32 s60, 0\ns_cbranch_scc1 L_nd0\ns_sleep {o['late0']}\nL_nd0:")
        if o.get('bdelay'): p.raw(f"s_bitcmp1_b32 s2, 0\ns_cbranch_scc1 L_nd\ns_sleep {o['bdelay']}\nL_nd:")
        self.stamp('p0')
        if o.get('pre0'): p(f"s_sub_u32 s{S_ST+self.nst}, s92, s96"); self.nst += 1
        self.put(self.dma_x(0))
        w0 = self.dma_w(0)
        self.put(w0[0:2]); woff(2); self.put(w0[2]); woff(3); self.put(w0[3]); woff(4); self.put(w0[4])
        self.stamp('p1')
        if o.get('prowait'):
            p.wait(vm=['cpf']); self.stamp('p2')
            p.wait(vm=[('X', 0)]); self.stamp('p3')
            p.wait(vm=[('W', 0)]); self.stamp('p4')
        p("s_bitcmp0_b32 s2, 0"); p("s_cbranch_scc1 L_setupB")
        p(".split")
        p(f"L_setup{self.sfx}:")
        p(f"s_load_dword s{S_NONCE}, s[{kws}:{kws+1}], {br*128}")
        if not A:
            p(f"s_load_dword s{S_UTAG}, s[{kws}:{kws+1}], 0")
            p(f"s_load_dwordx2 s[{K+6}:{K+7}], s[0:1], 24")
        for g in range(1, 5): wrow(g)
        if o.get('bal'):
            nw, nx, where = o['bal']
            L_ = [f"s_add_u32 s{T0}, s{S_HG}, s{S_RB}", f"s_bitcmp1_b32 s{T0}, 0", f"s_cbranch_scc1 L_bal{self.sfx}",
                  f"s_cmp_ge_u32 s{S_W}, 2", f"s_cbranch_scc1 L_balx{self.sfx}",
                  f"s_mul_i32 s{T0}, s{S_W}, {32*3840 - 156}", f"s_sub_u32 s{T0}, s{S_WROW+2}, s{T0}", f"v_mul_u32_u24 v{TMP+104}, 3840, v{V_LANE}",
                  f"s_mov_b32 exec_lo, {hex(((1 << nw) - 1) & 0xffffffff)}", f"s_mov_b32 exec_hi, {hex(((1 << nw) - 1) >> 32)}",
                  f"buffer_load_dword v{V_DUMP}, v{TMP+104}, {srd(SW)}, s{T0} offen offset:1280", f"s_branch L_bal{self.sfx}",
                  f"L_balx{self.sfx}:",
                  f"s_mul_i32 s{T0}, s{S_RB}, {128*1280}", f"s_bfe_u32 s{T1}, s{S_HG}, 0x10002", f"s_lshl_b32 s{T1}, s{T1}, 1", f"s_add_u32 s{T1}, s{T1}, s{S_W}", f"s_sub_u32 s{T1}, s{T1}, 2",
                  f"s_mul_i32 s{T1}, s{T1}, {32*1280}", f"s_add_u32 s{T0}, s{T0}, s{T1}", f"s_lshl_b32 s{T1}, s{T3}, 7", f"s_add_u32 s{T0}, s{T0}, s{T1}", f"v_mul_u32_u24 v{TMP+104}, 1280, v{V_LANE}",
                  f"s_mov_b32 exec_lo, {hex((1 << nx) - 1)}", "s_mov_b32 exec_hi, 0",
                  f"buffer_load_dword v{V_DUMP}, v{TMP+104}, {srd(SX)}, s{T0} offen offset:512",
                  f"L_bal{self.sfx}:", "s_mov_b64 exec, -1"]
            if where == 0: p.untracked(L_)
            else:
                self.put(self.dma_x(1)); p.untracked(L_)
        if not (o.get('bal') and o['bal'][2]): self.q(0, self.dma_x(1))
        p.raw(f"""
        s_mov_b32 s{SWS}, s{kws}
        s_mov_b32 s{SWS+1}, s{kws+1}
        s_mov_b32 s{SWS+2}, {WS_SIZE}
        s_mov_b32 s{SWS+3}, 0x20000
        s_mov_b32 s{SOUT}, s{kout}
        s_mov_b32 s{SOUT+1}, s{kout+1}
        s_mov_b32 s{SOUT+2}, 5242880
        s_mov_b32 s{SOUT+3}, 0x20000
        s_lshl_b32 s{S_HEAD}, s{S_HG}, 2
        s_add_u32 s{S_HEAD}, s{S_HEAD}, s{S_W}
        v_lshlrev_b32 v{V_LIN}, 4, v{V_LANE}
        """)
        if A:
            p.raw(f"""
            s_mov_b32 s{SPHI}, s{kphi}
            s_mov_b32 s{SPHI+1}, s{kphi+1}
            s_mov_b32 s{SPHI+2}, 25600
            s_mov_b32 s{SPHI+3}, 0x20000
            """)
            self.q(0, [[f"s_mul_i32 s{S_WS}, s{S_HEAD}, 800",
                        (f"buffer_load_dwordx4 {vq(TMP+96)}, v{V_LIN}, {srd(SPHI)}, s{S_WS} offen", 'wphi')]])
        self.q(0, self.dma_w(1)); self.q(0, self.dma_x(2))
        G_, I_, R_, C_ = t, t + 1, t + 2, t + 3
        S = []
        def raw(txt):
            for l in txt.split('\n'):
                if l.strip(): S.append((1, l.strip()))
        raw(f"""
        v_lshrrev_b32 v{G_}, 4, v{V_LANE}
        v_and_b32 v{I_}, 15, v{V_LANE}
        v_bfe_u32 v{R_}, v{V_LANE}, 2, 2
        v_and_b32 v{C_}, 3, v{V_LANE}
        v_lshrrev_b32 v{t+4}, 1, v{I_}
        v_xor_b32 v{t+4}, v{t+4}, v{G_}
        v_lshlrev_b32 v{t+5}, 7, v{I_}
        v_lshl_add_u32 v{t+4}, v{t+4}, 4, v{t+5}
        v_add_u32 v{V_XR}, s{S_LR}, v{t+4}
        v_xor_b32 v{t+4}, 64, v{t+4}
        v_add_u32 v{V_XR+1}, s{S_LR}, v{t+4}
        v_lshrrev_b32 v{t+4}, 2, v{V_LANE}
        v_mul_u32_u24 v{t+5}, 160, v{t+4}
        v_mul_u32_u24 v{t+6}, 40, v{C_}
        v_add_u32 v{V_WT}, v{t+5}, v{t+6}
        v_add_u32 v{V_WT+1}, 51200, v{V_WT}
        v_mul_u32_u24 v{t+5}, 120, v{I_}
        v_mul_u32_u24 v{t+6}, 3840, v{G_}
        v_add3_u32 v{V_PW}, v{t+5}, v{t+6}, s{S_LR}
        v_mul_u32_u24 v{t+6}, 40, v{G_}
        v_mul_u32_u24 v{t+7}, {OUTS}, v{I_}
        s_mul_i32 s{T2}, s{S_W}, {32*OUTS}
        s_add_u32 s{T2}, s{T2}, {OUTL}
        v_add3_u32 v{V_OW}, v{t+7}, v{t+6}, s{T2}
        v_and_b32 v{t+5}, 7, v{t+4}
        v_lshrrev_b32 v{t+6}, 5, v{V_LANE}
        v_lshlrev_b32 v{t+6}, 1, v{t+6}
        v_lshl_add_u32 v{t+5}, v{t+5}, 2, v{t+6}
        v_mul_u32_u24 v{t+5}, 120, v{t+5}
        s_mul_i32 s{T0}, s{S_W}, 3840
        s_add_u32 s{T0}, s{T0}, {RBASE}
        v_add_u32 v{V_KA1}, s{T0}, v{t+5}
        v_lshl_add_u32 v{V_KB}, v{C_}, 3, v{V_KA1}
        s_mov_b32 s{S_L2E}, 0x3fb8aa3b
        s_mov_b32 s{S_NL2E}, 0xbfb8aa3b
        s_mov_b32 s{S_PERM}, 0x07060302
        s_and_b32 s{T3}, s{S_HG}, 1
        """)
        for j in range(5):
            b = RH + 5 * j
            if j < 3: raw(f"""
            v_mul_u32_u24 v{t+5}, {OUTS}, v{b+4}
            v_lshl_add_u32 v{t+5}, v{b+3}, 4, v{t+5}
            v_add_u32 v{V_ORD+j}, s{T2}, v{t+5}
            v_mul_u32_u24 v{t+5}, 2560, v{b+4}
            v_lshl_add_u32 v{V_OG+j}, v{b+3}, 4, v{t+5}
            """)
            if j == 2: raw(f"""
            v_lshrrev_b32 v{t+5}, 5, v{V_LANE}
            v_lshl_or_b32 v{V_OG+2}, v{t+5}, 30, v{V_OG+2}
            """)
        raw(f"""
        v_mov_b32 v{t+5}, 2304
        v_cmp_gt_u32 vcc, 16, v{V_LANE}
        v_mov_b32 v{t+6}, 1024
        v_cndmask_b32 v{t+5}, v{t+5}, v{t+6}, vcc
        v_add_u32 v{V_OO+1}, v{t+5}, v{V_LIN}
        v_mov_b32 v{V_OO}, v{V_LIN}
        v_add_u32 v{V_OO+2}, 40960, v{V_LIN}
        v_add_u32 v{V_OO+3}, 40960, v{V_OO+1}
        v_lshrrev_b32 v{t+4}, 5, v{V_LANE}
        v_mul_u32_u24 v{t+4}, {40960-512}, v{t+4}
        v_add_u32 v{t+5}, 3328, v{V_LIN}
        v_add_u32 v{V_OO+4}, v{t+4}, v{t+5}
        v_add_u32 v{V_LINH}, 51200, v{V_LIN}
        v_min_u32 v{V_PF}, 39, v{V_LANE}
        v_lshlrev_b32 v{V_PF}, 3, v{V_PF}
        v_and_b32 v{t+4}, 1, v{RH+4}
        v_mul_u32_u24 v{t+4}, 2560, v{t+4}
        v_lshrrev_b32 v{t+5}, 1, v{RH+4}
        v_mul_u32_u24 v{t+5}, 40960, v{t+5}
        v_lshlrev_b32 v{t+6}, 7, v{RH+3}
        v_add3_u32 v{V_L128}, v{t+4}, v{t+5}, v{t+6}
        """)
        raw(f"""
        s_lshl_b32 s{T0}, s{T3}, 1
        s_xor_b32 s{T0}, s{T0}, s{S_W}
        s_mul_i32 s{T0}, s{T0}, 5120
        s_mul_i32 s{T2}, s{S_HG}, 102400
        s_add_u32 s{T2}, s{T2}, {WS_PK + br*819200}
        s_add_u32 s{T0}, s{T0}, s{T2}
        s_lshr_b32 s{S_SPIN}, s{S_HG}, 1
        s_add_u32 s{T1}, s{S_SPIN}, s{S_W}
        s_and_b32 s{T1}, s{T1}, 3
        s_add_u32 s{T1}, s{T1}, 16
        s_mul_i32 s{T1}, s{T1}, 5120
        s_add_u32 s{S_WOROW+4}, s{T1}, s{T2}
        s_lshr_b32 s{S_PFL}, s{S_HG}, 2
        s_lshl_b32 s{S_PFL}, s{S_PFL}, 9
        s_add_u32 s{S_PFL}, s{S_PFL}, {WS_PF + br*1024}
        s_mul_i32 s{T2}, s{S_HG}, 160
        s_lshl_b32 s{S_OUT}, s{S_XBASE}, 1
        s_add_u32 s{S_OUT}, s{S_OUT}, s{T2}
        s_add_u32 s{S_OUT}, s{S_OUT}, {br*1280}
        s_lshl_b32 s{S_OB}, s{S_XBASE}, 1
        s_add_u32 s{S_OB}, s{S_OB}, {br*1280}
        """)
        for g in range(4):
            raw(f"""
            s_add_u32 s{T1}, s{S_SPIN}, {g}
            s_and_b32 s{T1}, s{T1}, 3
            s_mul_i32 s{T2}, s{T1}, 20480
            s_add_u32 s{S_WOROW+g}, s{T2}, s{T0}
            s_lshl_b32 s{T1}, s{T1}, 1
            s_add_u32 s{T1}, s{T1}, s{T3}
            s_mul_i32 s{T2}, s{T1}, 5120
            s_add_u32 s{S_OP+2*g}, s{T2}, s{S_OB}
            s_xor_b32 s{T1}, s{T1}, 1
            s_mul_i32 s{T2}, s{T1}, 5120
            s_add_u32 s{S_OP+2*g+1}, s{T2}, s{S_OB}
            """)
        SH = 8 if A else 7
        raw(f"""
        s_lshl_b32 s{T0}, s{S_RB}, 2
        s_add_u32 s{T0}, s{T0}, s{S_W}
        s_lshl_b32 s{S_FLAG}, s{T0}, 7
        s_add_u32 s{S_FLAG}, s{S_FLAG}, {WS_FLAG + br*64*128}
        s_lshl_b32 s{T0}, s{S_HEAD}, 16
        s_add_u32 s{T0}, s{T0}, {WS_P1 + br*32*65536}
        s_lshl_b32 s{T1}, s{S_RB}, 12
        s_add_u32 s{S_P1ST}, s{T0}, s{T1}
        s_min_u32 s{T1}, s{S_RB}, 14
        s_lshl_b32 s{T1}, s{T1}, {SH}
        s_add_u32 s{S_P1LD}, s{T0}, s{T1}
        s_lshl_b32 s{T0}, s{S_HEAD}, 12
        s_add_u32 s{S_P2LD}, s{T0}, {WS_P2 + br*32*4096}
        s_add_u32 s{S_P2ST}, s{S_P2LD}, s{T1}
        s_lshr_b32 s{T1}, s{S_RB}, {4 - o.get('p2log', 2)}
        s_lshl_b32 s{T1}, s{T1}, 18
        s_add_u32 s{S_P2LD}, s{S_P2LD}, s{T1}
        v_mul_u32_u24 v{t+4}, {F}, v{G_}
        v_add_lshl_u32 v{V_P1ST}, v{t+4}, v{I_}, 4
        v_lshrrev_b32 v{t+4}, {3 if A else 2}, v{I_}
        v_lshl_or_b32 v{V_P1M}, v{t+4}, 28, v{V_P1ST}
        v_lshrrev_b32 v{t+4}, 1, v{G_}
        v_lshl_or_b32 v{V_P1M+1}, v{t+4}, 30, v{V_P1ST}
        v_or_b32 v{V_P1M+2}, v{V_P1M}, v{V_P1M+1}
        v_cmp_gt_u32 vcc, 4, v{I_}
        v_cndmask_b32 v{V_KEEP}, 0, -1, vcc
        v_mov_b32 v{t+4}, 0x3f803f80
        v_cmp_eq_u32 vcc, 4, v{I_}
        v_cndmask_b32 v{V_ONE}, 0, v{t+4}, vcc
        v_and_b32 v{t+4}, 7, v{V_LANE}
        v_lshlrev_b32 v{V_F8}, 2, v{t+4}
        s_lshl_b32 s{T0}, s{S_HG}, 2
        v_min_u32 v{V_FOWN}, 1, v{V_LANE}
        v_lshlrev_b32 v{V_FOWN}, 30, v{V_FOWN}
        v_or_b32 v{V_FOWN}, s{T0}, v{V_FOWN}
        v_lshlrev_b32 v{V_ZA}, 3, v0
        v_add_u32 v{V_ZA}, {RBASE+7680}, v{V_ZA}
        """)
        if A:
            raw(f"""
            v_lshlrev_b32 v{t+5}, 12, v{G_}
            v_lshl_add_u32 v{V_P1LD}, v{I_}, 4, v{t+5}
            v_lshlrev_b32 v{V_P2ST}, 2, v{V_LANE}
            """)
        else:
            raw(f"""
            v_lshrrev_b32 v{t+5}, 3, v{V_LANE}
            v_lshlrev_b32 v{t+5}, 12, v{t+5}
            v_lshl_add_u32 v{V_P1LD}, v{t+4}, 4, v{t+5}
            v_lshl_add_u32 v{V_P2ST}, v{G_}, 5, v{V_F8}
            """)
        RS = 80 if A else 48
        HS = 24 * RS
        NQ = 240 if A else 120
        NI = 4 if A else 2
        raw(f"s_mul_i32 s{T0}, s{S_W}, {HS}\ns_add_u32 s{T0}, s{T0}, {RBASE}")
        u = t + 4
        for ii in range(NI):
            raw(f"v_add_u32 v{u}, {64*ii}, v{V_LANE}")
            if ii == NI - 1:
                raw(f"""v_subrev_u32 v{u+1}, 64, v{u}
                v_cmp_gt_u32 vcc, {NQ}, v{u}
                v_cndmask_b32 v{u}, v{u+1}, v{u}, vcc
                v_lshlrev_b32 v{V_GAL}, 4, v{u}""")
            if A:
                raw(f"""
                v_lshrrev_b32 v{u+1}, 4, v{u}
                v_and_b32 v{u+2}, 3, v{u}
                v_lshl_add_u32 v{u+1}, v{u+1}, 2, v{u+2}
                v_bfe_u32 v{u+2}, v{u}, 2, 2
                v_mul_u32_u24 v{u+3}, 6554, v{u+1}
                v_lshrrev_b32 v{u+3}, 16, v{u+3}
                v_mul_u32_u24 v{u+4}, 10, v{u+3}
                """)
            else:
                raw(f"""
                v_lshrrev_b32 v{u+1}, 3, v{u}
                v_and_b32 v{u+2}, 1, v{u}
                v_lshl_add_u32 v{u+1}, v{u+1}, 1, v{u+2}
                v_bfe_u32 v{u+2}, v{u}, 1, 2
                v_mul_u32_u24 v{u+3}, 13108, v{u+1}
                v_lshrrev_b32 v{u+3}, 16, v{u+3}
                v_mul_u32_u24 v{u+4}, 5, v{u+3}
                """)
            raw(f"""
            v_sub_u32 v{u+1}, v{u+1}, v{u+4}
            v_lshl_add_u32 v{u+3}, v{u+3}, 2, v{u+2}
            v_mul_u32_u24 v{u+3}, {RS}, v{u+3}
            v_lshl_add_u32 v{u+3}, v{u+1}, 3, v{u+3}
            v_add_u32 v{V_LA+ii}, s{T0}, v{u+3}
            """)
        raw(f"""
        v_cmp_eq_u32 vcc, v{G_}, v{R_}
        v_mul_u32_u24 v{u}, {HS}, v{G_}
        v_mul_u32_u24 v{u+1}, {RS}, v{C_}
        v_add_u32 v{u}, v{u}, v{u+1}
        v_add_u32 v{u}, {RBASE}, v{u}
        v_mov_b32 v{u+1}, {RBASE+7680}
        v_cndmask_b32 v{V_FR2}, v{u+1}, v{u}, vcc
        """)
        if A:
            raw(f"""
            v_mov_b32 v{t+36}, 0
            v_mov_b32 v{t+37}, 0
            v_mov_b32 v{t+38}, 0
            v_mov_b32 v{t+39}, 0
            v_add_u32 v{TMP+100}, s{S_LR}, v{V_LIN}
            ds_write_b128 v{TMP+100}, {vq(t+36)} offset:13312
            v_mul_u32_u24 v{t+4}, {RW}, v{G_}
            v_mul_u32_u24 v{t+5}, 40, v{R_}
            v_add_u32 v{t+4}, v{t+4}, v{t+5}
            v_add_u32 v{t+4}, {RBASE+12288}, v{t+4}
            s_add_u32 s{T0}, s{S_LR}, 13312
            v_mov_b32 v{t+5}, s{T0}
            v_cmp_eq_u32 vcc, v{C_}, v{G_}
            v_cndmask_b32 v{V_FR}, v{t+5}, v{t+4}, vcc
            """)
            for tt in range(5):
                a = A_PHI + (tt * 3 + 2) * 4
                raw(f"v_accvgpr_write_b32 a{a+2}, 0\nv_accvgpr_write_b32 a{a+3}, 0")
        US, UA, UD = TMP + 40, TMP + 45, TMP + 80
        nA = o.get('nA', 0); prod = (not A) or nA > 0
        S_UOK = 92
        if prod:
            if o.get('umap', 1) == 0: umap = f"""s_add_u32 s{T1}, s{S_HG}, s{S_RB}
            s_and_b32 s{T1}, s{T1}, 1
            s_lshl_b32 s{T0}, s{S_W}, 1
            s_add_u32 s{T0}, s{T0}, s{T1}
            s_lshl_b32 s{T0}, s{T0}, 3
            s_add_u32 s{T0}, s{T0}, s{S_HG}
            s_lshl_b32 s{T0}, s{T0}, 3
            s_lshr_b32 s{T1}, s{S_RB}, 1
            s_add_u32 s{T0}, s{T0}, s{T1}
            s_add_u32 s{T0}, s{T0}, {0 if A else nA}
            s_cmp_lt_u32 s{T0}, {nA if A else 320}
            s_cselect_b32 s{S_UOK}, 1, 0"""
            elif o.get('umap', 1) == 1:
                umap = f"""s_lshr_b32 s{T1}, s{S_RB}, 2
                s_mul_i32 s{T0}, s{T1}, 3
                s_add_u32 s{T0}, s{T0}, s{S_W}
                s_sub_u32 s{T0}, s{T0}, 2
                s_cmp_eq_u32 s{T1}, 0
                s_cselect_b32 s{T0}, 0, s{T0}
                s_cselect_b32 s{T1}, 1, 3
                s_cmp_lt_u32 s{S_W}, s{T1}
                s_cselect_b32 s{S_UOK}, 1, 0
                s_lshl_b32 s{T0}, s{T0}, 5
                s_lshr_b32 s{T1}, s2, 3
                s_add_u32 s{T0}, s{T0}, s{T1}"""
            else:
                umap = f"""s_lshr_b32 s{T1}, s{S_RB}, 2
                s_sub_u32 s{T1}, s{T1}, 1
                s_add_u32 s{T2}, s{S_HG}, s{S_RB}
                s_and_b32 s{T2}, s{T2}, 1
                s_lshl_b32 s{T0}, s{S_W}, 1
                s_add_u32 s{T0}, s{T0}, s{T2}
                s_lshl_b32 s{T0}, s{T0}, 4
                s_lshr_b32 s{T2}, s2, 4
                s_add_u32 s{T0}, s{T0}, s{T2}
                s_mul_i32 s{T0}, s{T0}, 3
                s_add_u32 s{T0}, s{T0}, s{T1}
                s_cmp_lt_u32 s{T0}, 320
                s_cselect_b32 s{S_UOK}, 1, 0
                s_cmp_lt_u32 s{S_RB}, 4
                s_cselect_b32 s{S_UOK}, 0, s{S_UOK}"""
            iS0 = len(S)
            S.append((1, [x.strip() for x in f"""
            {umap}
            s_waitcnt lgkmcnt(0)
            s_cmp_lt_u32 s{T0}, 160
            s_cselect_b32 s{SWO}, s{K+6}, s{kwo}
            s_cselect_b32 s{SWO+1}, s{K+7}, s{kwo+1}
            s_cselect_b32 s{S_UTAG}, s{S_NONCE if A else S_UTAG}, s{S_NONCE}
            s_cselect_b32 s{T1}, 0, 160
            s_cselect_b32 s{S_UDST}, 0, 819200
            s_cselect_b32 s{S_UFL}, 0, 1024
            s_mov_b32 s{SWO+2}, 819200
            s_mov_b32 s{SWO+3}, 0x20000
            s_add_u32 s{S_UTAG}, s{S_UTAG}, 0x9e3779b1
            s_sub_u32 s{T0}, s{T0}, s{T1}
            s_and_b32 s{T1}, s{T0}, 1
            s_mul_i32 s{S_USRC}, s{T1}, 640
            s_mul_i32 s{T2}, s{T1}, 409600
            s_add_u32 s{S_UDST}, s{S_UDST}, s{T2}
            s_lshl_b32 s{T2}, s{T1}, 9
            s_add_u32 s{S_UFL}, s{S_UFL}, s{T2}
            s_lshr_b32 s{T1}, s{T0}, 1
            s_lshl_b32 s{T2}, s{T1}, 2
            s_add_u32 s{S_UFL}, s{S_UFL}, s{T2}
            s_add_u32 s{S_UFL}, s{S_UFL}, {WS_PF}
            s_and_b32 s{T1}, s{T1}, 3
            s_mul_i32 s{T2}, s{T1}, {20*1280}
            s_add_u32 s{S_USRC}, s{S_USRC}, s{T2}
            s_lshl_b32 s{T2}, s{T1}, 8
            s_add_u32 s{S_UDST}, s{S_UDST}, s{T2}
            s_lshr_b32 s{T1}, s{T0}, 3
            s_mul_i32 s{T2}, s{T1}, 5120
            s_add_u32 s{S_UDST}, s{S_UDST}, s{T2}
            s_add_u32 s{S_UDST}, s{S_UDST}, {WS_PK}
            s_lshr_b32 s{T2}, s{T1}, 1
            s_mul_i32 s{T2}, s{T2}, 80
            s_and_b32 s{T3}, s{T1}, 1
            s_lshl_b32 s{T3}, s{T3}, 3
            s_add_u32 s{T2}, s{T2}, s{T3}
            s_mul_i32 s{T3}, s{T1}, 160
            s_sub_u32 s{T3}, s{T3}, {16*160 - 16}
            s_cmp_ge_u32 s{T1}, 16
            s_cselect_b32 s{T2}, s{T3}, s{T2}
            s_cselect_b32 s{T3}, 1, 0
            s_mul_i32 s{T2}, s{T2}, 1280
            s_add_u32 s{S_USRC}, s{S_USRC}, s{T2}
            s_mul_i32 s{T1}, s{T3}, {76*1280}
            s_add_u32 s{T2}, s{S_LW}, {RING + 4*SLOT}
            """.split('\n') if x.strip()]))
            for j in range(5):
                raw(f"""
                v_lshrrev_b32 v{t+4}, 2, v{RH+5*j+4}
                v_mul_u32_u24 v{t+5}, 640, v{t+4}
                v_lshrrev_b32 v{t+4}, 2, v{t+4}
                v_mul_u32_u24 v{t+4}, s{T1}, v{t+4}
                v_add3_u32 v{US+j}, v{t+4}, v{t+5}, v{V_LIN}
                """)
            raw(f"v_add_u32 v{US+4}, 4096, v{US+4}")
            iS1 = len(S)
            raw(f"""
            v_mul_u32_u24 v{t+7}, 640, v{R_}
            v_mul_u32_u24 v{t+8}, 40, v{C_}
            v_add3_u32 v{t+7}, v{t+7}, v{t+8}, s{T2}
            """)
            for j in range(5):
                raw(f"""
                v_add_u32 v{t+4}, {4*j}, v{G_}
                v_mul_u32_u24 v{t+5}, 13108, v{t+4}
                v_lshrrev_b32 v{t+5}, 16, v{t+5}
                v_mul_u32_u24 v{t+6}, 120, v{t+5}
                v_lshl_add_u32 v{t+6}, v{t+4}, 3, v{t+6}
                v_add_u32 v{t+6}, v{t+6}, v{t+7}
                v_and_b32 v{t+8}, s{T3}, v{t+5}
                v_mul_u32_u24 v{t+8}, 2560, v{t+8}
                v_add_u32 v{UA+2*j}, v{t+6}, v{t+8}
                v_sub_u32 v{t+6}, v{t+6}, v{t+8}
                v_add_u32 v{UA+2*j+1}, 2560, v{t+6}
                v_mul_u32_u24 v{t+5}, {102400 - 5120}, v{t+5}
                v_lshl_add_u32 v{t+5}, v{t+4}, 10, v{t+5}
                v_lshl_add_u32 v{UD+j}, v{I_}, 4, v{t+5}
                """)
            mark = {}
            def cond(name, lines):
                p.untracked([f"s_cmp_eq_u32 s{S_UOK}, 0", f"s_cbranch_scc1 {name}{self.sfx}"] + lines + [f"{name}{self.sfx}:"])
                mark[name] = p.nvm
            L = [f"s_add_u32 m0, s{S_LW}, {RING + 4*SLOT}"]
            for j in range(5):
                off = f"offset:{j*1024} " if 0 < j < 4 else ""
                L.append(f"buffer_load_dwordx4 v{US+j}, {srd(SWO)}, s{S_USRC} offen {off}lds")
                if j == 3: L.append(f"s_add_u32 m0, s{S_LW}, {RING + 4*SLOT + 4096}")
            un = [[lambda L=L: cond("L_u1", L)]]
            if o.get('uissue', 0) == 0: self.q(10**6 + 77, un)
            if o.get('uissue', 0) == -1: S = S[:4] + S[iS0:iS1] + [(0, un[0])] + S[iS1:] + S[4:iS0]
        self.run(S, every=o.get('proev', 60))
        self.stamp('p5')
        if o.get('uissue', 0) == 0: self.release(77)
        def urd():
            assert not any(x.tag == ('W', 4) for x in p.ins)
            cond("L_u2r", [f"s_waitcnt vmcnt({p.nvm - mark['L_u1']}) lgkmcnt(0)"] +
                [f"ds_read_b64_tr_b16 {vq(TMP+60+2*k, 2)}, v{UA+k}" for k in range(10)] + ["s_waitcnt lgkmcnt(0)"])
        def ust(j): cond("L_u2" + "abcd "[j].strip(), [f"buffer_store_dwordx4 {vq(TMP+60+4*j)}, v{UD+j}, {srd(SWS)}, s{S_UDST} offen sc1"])
        if o.get('hops', 1):
            p("s_mov_b64 exec, 0")
            for w_ in range(3): p(f"s_cmp_eq_u32 s{S_W}, {w_}"); p(f"s_cbranch_scc1 L_hop{w_}{self.sfx}")
            p(f"s_branch L_hop3{self.sfx}")
            p(f"L_hopret{self.sfx}:")
            p("s_mov_b64 exec, -1")
        if prod and o.get('upos', (0,))[0] < 0:
            while len(self.dq) > -o['upos'][0] - 1 and self.tick(): pass
            urd()
            for j in range(5): ust(j)
        while len(self.dq) > o.get('prokeep', 0) and self.tick(): pass
        p.raw(f"""
        s_getreg_b32 s{T0}, hwreg(HW_REG_XCC_ID, 0, 4)
        s_waitcnt lgkmcnt(0)
        s_add_u32 s{S_NONCE}, s{S_NONCE}, 0x9e3779b1
        s_lshl_b32 s{T0}, s{T0}, 28
        s_xor_b32 s{S_XCCV}, s{T0}, s{S_NONCE}
        v_mov_b32 v{V_NONCE}, s{S_NONCE}
        v_and_b32 v{V_VW}, 1, v{V_LANE}
        v_lshlrev_b32 v{V_VW}, 4, v{V_VW}
        v_lshrrev_b32 v{V_VW}, v{V_VW}, v{V_NONCE}
        v_mov_b32 v{V_KA0}, s{S_XCCV}
        s_add_u32 s{S_XA}, s{S_FLAG}, {WS_XCC - WS_FLAG}
        """)
        xst = [(f"buffer_store_dword v{V_KA0}, v{V_FOWN}, {srd(SWS)}, s{S_XA} offen sc1", 'xcc')]
        x1, x2, x3 = o.get('xpos', (-1, 58, 88))
        if x1 < 0: self.put(xst)
        self.stamp()
        p(f"s_branch L_main{self.sfx}")
        p(".p2align 12")
        p(f"L_main{self.sfx}:")
        xb = lambda ks, rt: aq((ks * 2 + rt) * 4)
        xbp = lambda ps: (lambda ks, rt: xb(4 * (4 - ks // 4) + ks % 4, rt)) if ps in o.get('rev', [1, 2]) else xb
        for pu in range(0, 7):
            if (pu + 3) % 2 == 0: self.q(0, self.dma_w((pu + 3) // 2))
            self.q(10 * pu, self.dma_x(pu + 3))
            if prod and o.get('uissue', 0) == pu + 1: self.q(0, un)
        for G in range(5, 10): self.q(10**6 + 1 if G % 5 >= 3 else 20 * (G - 3) - 4, self.dma_w(G))
        for G in range(10, 13): self.q(20 * (G - 3) - 4, self.dma_w(G))
        for G in range(13, 20): self.q(10**6 + G, self.dma_w(G))
        hooks = {}
        for pu in range(1, 10):
            hooks[10 * pu - 5] = [lambda pu=pu: self.xread(pu, 0), lambda pu=pu: self.xread(pu, 1)]
            hooks[10 * pu - 4] = [lambda pu=pu: self.xread(pu, 2), lambda pu=pu: self.xread(pu, 3)]
        if A:
            rd = [(tt, u_, hf) for tt in range(5) for u_ in range(3) for hf in range(2 if u_ < 2 else 1)]
            w = TMP + 96; u2 = TMP + 102
            sc = [lambda: p.wait(vm=['wphi'])]
            for j in range(4):
                sc += [f"v_lshlrev_b32 v{u2}, 16, v{w+j}", f"v_and_b32 v{u2+1}, 0xffff0000, v{w+j}", f"v_mul_f32 v{u2}, s{S_L2E}, v{u2}",
                       f"v_mul_f32 v{u2+1}, s{S_L2E}, v{u2+1}", f"v_cvt_pk_bf16_f32 v{w+j}, v{u2}, v{u2+1}"]
            hooks[8] = sc + [(f"ds_write_b128 v{TMP+100}, {vq(w)} offset:12288", 'phw')]
            hooks[14] = [lambda: p.wait(lg=['phw'])]
            slots = [n for n in range(21, 90) if n % 10 in (0, 1, 2, 3)][:25]
            for k, n in enumerate(slots):
                hooks[n] = [(f"ds_read_b64_tr_b16 a[{A_PHI + (tt*3+u_)*4 + 2*hf}:{A_PHI + (tt*3+u_)*4 + 2*hf + 1}], v{V_FR} offset:{(8*u_+4*hf)*40 + 8*tt}", 'phi')
                            for tt, u_, hf in rd[k:k+1]]
        late3 = {}
        if prod:
            UR = TMP + 60
            u1, u2_, u3 = o.get('upos', (18, 18, 62))
            if u1 >= 0: hooks.setdefault(u1, []).append(urd)
            for j in range(5):
                uj = u2_ + o.get('ustep', 0) * j
                if uj >= 0: (hooks if uj < 100 else late3).setdefault(uj % 100, []).append(lambda j=j: ust(j))
            (hooks if u3 < 100 else late3).setdefault(u3 % 100, []).append(lambda: cond("L_u3", [f"s_waitcnt vmcnt({p.nvm - mark['L_u2']})", f"v_mov_b32 v{V_DUMP}, s{S_UTAG}", "s_mov_b64 exec, 1",
                         f"buffer_store_dword v{V_DUMP}, v{V_LIN}, {srd(SWS)}, s{S_UFL} offen sc1", "s_mov_b64 exec, -1"]))
        KBV = [V_KB, 17, 18, 19]; KAV = [V_KA1, 20, 21, 22]
        if o.get('kvown', 0):
            for kk in (1, 2, 3, 0):
                hooks.setdefault(89 + 2 * ((kk + 3) % 4), []).extend([f"s_add_u32 s{T2}, s{S_W}, {kk}", f"s_and_b32 s{T2}, s{T2}, 3", f"s_mul_i32 s{T2}, s{T2}, {RW}"])
                hooks.setdefault(90 + 2 * ((kk + 3) % 4), []).extend([f"v_add_u32 v{KBV[kk]}, s{T2}, v{V_KB}", f"v_add_u32 v{KAV[kk]}, s{T2}, v{V_KA1}"])
        XV = TMP + 92
        iss, chk = self.checked("L_xc", [f"buffer_load_dword v{XV}, v{V_F8}, {srd(SWS)}, s{S_XA} offen sc1"],
                                [f"v_xor_b32 v{XV+1}, s{S_NONCE}, v{XV}", f"v_lshlrev_b32 v{XV+1}, 4, v{XV+1}", f"v_cmp_ne_u32 vcc, 0, v{XV+1}"], 'xl')
        xv, xq = {}, {}
        def xh(pos, L): [hooks, xv, xq][pos // 100].setdefault(pos % 100, []).extend(L)
        if x1 >= 0: xh(x1, xst)
        xh(x2, iss)
        c_ = [x for _, x in chk]
        xh(x3, c_[:3]); xh(x3 + 1, c_[3:4]); xh(x3 + 2, c_[4:] + [f"v_cmp_ne_u32 vcc, s{S_XCCV}, v{XV}"])
        xh(x3 + 3, [f"s_mov_b32 s{S_FAST}, {1 if o.get('nofast') else 'vcc_lo'}", f"s_add_u32 s{T0}, s{SWS}, {WS_O}", f"s_addc_u32 s{T1}, s{SWS+1}, 0"])
        xh(x3 + 4, [f"s_cmp_eq_u32 s{S_FAST}, 0", f"s_cselect_b32 s{SO}, s{SOUT}, s{T0}", f"s_cselect_b32 s{SO+1}, s{SOUT+1}, s{T1}"])
        xh(x3 + 5, [f"s_mov_b32 s{SO+2}, 5242880", f"s_mov_b32 s{SO+3}, 0x20000"])
        self.group_sync(0)
        for k in range(4): self.xread(0, k)
        self.prime(0, sync=False)
        kp = o.get('kpace', 3)
        k1p = {0: lambda n: 1 if n % 3 != 2 else 0, 1: lambda n: 1, 2: lambda n: 2 if n % 10 < 2 else (1 if n % 10 < 5 else 0), 3: lambda n: 1 if n % 4 != 3 else 0}[o.get('k1', 0)]
        self.gemm_pass(0, ACC_K, xb, hooks=hooks, last=True, pace=lambda n: k1p(n) if n < o.get('ksw', 69) else (1 if n % kp == 0 else 0))
        self.stamp()
        E0, E1, M0_, M1_ = TMP, TMP + 40, TMP + 80, TMP + 86
        x0, x1 = acc(ACC_K, 0, 0), acc(ACC_K, 0, 1)
        tagset = [f"s_bfe_u32 s{S_TB+j}, s{S_NONCE}, {hex(0x80000 + 8*j)}" for j in range(4)] + [f"s_lshr_b32 s{S_NHI}, s{S_NONCE}, 16"]
        if o.get('amp'):
            p.raw(f"""
            s_load_dwordx2 s[88:89], s[0:1], 64
            s_not_b32 s{T0}, s98
            v_mov_b32 v{TMP+94}, 0
            v_mov_b32 v{TMP+95}, s{T0}
            s_lshr_b32 s{T0}, s2, 3
            s_or_b32 s{T0}, s{T0}, s{S_W}
            s_cmp_eq_u32 s{T0}, 0
            s_cselect_b32 s{T0}, 0, 64
            v_mov_b32 v{TMP+94}, s{T0}
            s_waitcnt lgkmcnt(0)
            s_cbranch_scc0 L_noat{self.sfx}
            s_mov_b64 exec, 1
            """)
            p.ins.append(__import__('emit').Ins(f"global_atomic_umax v{TMP+94}, v{TMP+95}, s[88:89] sc1"))
            p("s_mov_b64 exec, -1")
            p(f"L_noat{self.sfx}:")
        wr = lambda rt, x, n, o8: [(2, (f"ds_write_b64 v{V_PW}, {vq(x+2*j, 2)} offset:{rt*1920 + o8 + 8*j}", 'pw')) for j in range(n)]
        def mixw(out, w): return [y for j in range(len(w)) for y in out[2*j:2*j+2] + [w[j]]]
        burst = lambda L: [(0, [x for _, x in L])]
        dm = (2, lambda: self.tick())
        if A:
            P0 = self.phiA_parts(x0, E0, M0_, "L_k0", False); P1 = self.phiA_parts(x1, E1, M1_, "L_k1", False)
            pr = [(0, lambda: (self.group_sync(5), self.release(1)))]
            pr = pr + [(1, lambda n=n, hf=hf: self.wread(100 + n, hf)) for n in range(D - 1) for hf in range(2)]
            hx = o.get('hx', 0)
            if hx == 0:
                self.put([x for _, x in [dm] + P0['cvt'] + self.weave(P0['mf'], [dm] + P1['cvt'] + [dm] + P0['exp'][:4]) + self.weave(P1['mf'], [dm] + P0['exp'][4:12] + [dm] + pr)])
                f0 = P0['exp'][12:] + burst(P0['norm'])
            else:
                self.put([x for _, x in [dm] + P0['cvt'] + self.weave(P0['mf'], [dm] + P1['cvt'] + P0['exp'][:7] + [dm]) + self.weave(P1['mf'], P0['exp'][7:14] + [dm] + P0['exp'][14:21])])
                self.run(P0['exp'][21:] + P0['norm'][:-10], every=hx)
                self.put([x for _, x in pr + P0['norm'][-10:]])
                f0 = []
            fill = f0 + mixw(P0['out'], wr(0, x0, 10, 0)) + P1['exp'] + burst(P1['norm']) + mixw(P1['out'], wr(1, x1, 10, 0))
            self.stamp('head')
        else:
            fill = []
            for rt, x, e in ((0, x0, E0), (1, x1, E1)):
                L = self.phiB(x, e, False)
                fill += L[:-10] + mixw(L[-10:], wr(rt, x, 5, 0))
            self.group_sync(5); self.release(1); self.prime(1, sync=False)
        hooks = {}
        hooks.update(late3)
        PFV = TMP + 94
        ipf, cpf_ = self.checked("L_pf", [f"buffer_load_dwordx2 {vq(PFV, 2)}, v{V_PF}, {srd(SWS)}, s{S_PFL} offen sc1"],
                                 [f"v_xor_b32 v{PFV}, s{S_NONCE}, v{PFV}", f"v_bitop3_b32 v{PFV}, v{PFV}, v{PFV+1}, s{S_NONCE} bitop3:0xf6", f"v_cmp_ne_u32 vcc, 0, v{PFV}"], 'pf')
        pfp = o.get('pfpos', 81)
        if pfp < 100: hooks.setdefault(pfp, []).extend(ipf)
        pre = ["s_mov_b32 exec_hi, 0xff", (f"buffer_load_dword v{V_DUMP}, v{V_L128}, {srd(SO)}, s{S_OP} offen sc1", 'pr'), "s_mov_b64 exec, 1",
               (f"buffer_load_dword v{V_DUMP}, v{V_F8}, {srd(SWS)}, s{S_FLAG} offen sc1", 'pr'), "s_mov_b64 exec, -1"]
        pre1 = []
        if o.get('pre1m') is not None:
            pre1 = ["s_mov_b32 exec_lo, 0xfff00000", "s_mov_b32 exec_hi, 0xff", pre[1], "s_mov_b64 exec, -1"]
            pre = ["s_mov_b64 exec, 0xfffff"] + pre[1:]
        prel = []
        if o.get('prem'):
            n_ = len(o['prem']); o['prepos'] = 2
            for k_, ps_ in enumerate(o['prem']):
                lo_, hi_ = 40 * k_ // n_, 40 * (k_ + 1) // n_
                mk = ((1 << hi_) - 1) ^ ((1 << lo_) - 1)
                L_ = [f"s_mov_b32 exec_lo, {hex(mk & 0xffffffff)}", f"s_mov_b32 exec_hi, {hex(mk >> 32)}", pre[1]] + (pre[2:4] if k_ == 0 else []) + ["s_mov_b64 exec, -1"]
                assert ps_ <= 0 or ps_ > x3 + 5
                if ps_ >= 200: xq.setdefault(ps_ - 200, []).extend(L_)
                elif ps_ >= 100: xv.setdefault(ps_ - 100, []).extend(L_)
                else: prel.append((ps_, L_))
        wp, pp_ = o.get('wopf', -1), o.get('prepos', 0)
        if 100 <= pp_ < 200: hooks.setdefault(pp_ - 100, []).extend(pre)
        vs = o.get('vsync', 0)
        if o.get('v13'): hooks.setdefault(78, []).extend(["s_barrier", lambda: self.release(13)])
        for k_, v_ in xv.items(): hooks.setdefault(k_, []).extend(v_)
        for k_, v_ in enumerate(tagset): hooks.setdefault(41 + k_, []).insert(0, v_)
        vp = o.get('vpace', 4)
        self.gemm_pass(1, ACC_V, xbp(1), fill=fill, hooks=hooks, last=True, sync=True, pace=lambda n: 1 if n % vp == 0 else 0)
        self.stamp()
        VB = TMP
        for rt in range(2):
            c = self.cvt20(acc(ACC_V, 0, rt), VB + 10 * rt)
            for j in range(5):
                p(c[2*j][1]); p(c[2*j+1][1])
                p(f"ds_write_b64 v{V_PW}, {vq(VB+10*rt+2*j, 2)} offset:{rt*1920 + 80 + 8*j}", 'vw')
                if j == 4 and rt == 0: self.tick()
        NT = 3 if A else 2
        FB = ACC_K
        KV = TMP + 64
        rds = deque()
        own = o.get('kvown', 0)
        def rd(reg, av, off, kk, j):
            for hf in range(2): rds.append((f"ds_read_b64_tr_b16 {vq(reg+2*hf, 2)}, v{av[kk] if own else av[0]} offset:{(0 if own else kk*RW) + hf*120 + off}", ('kv', kk, j)))
        for kk in range(4):
            b = FB + kk * 20
            rd(b, KBV, 80, kk, 'a')
            for nt in range(NT): rd(b + 8 + 4 * nt, KBV, 32 * nt, kk, nt)
            rd(b + 4, KAV, 112, kk, 'z')
        if own:
            p("s_waitcnt lgkmcnt(5)")
            for _ in range(2 * NT + 4): self.put([rds.popleft()])
        self.tick()
        gk = 11
        self.flush_dma(('W', gk)); p.wait(vm=[('W', gk)], lg=['vw', 'pw'])
        p("s_barrier")
        self.release(13); self.release(14)
        def more(k):
            while k > 0 and rds and len(p.lgq) < 15: self.put([rds.popleft()]); k -= 1
        if own: more(5); p.wait(lg=[('kv', 0, 'z')])
        more(o.get('kvi', 15)); self.tick()
        p(f"v_mov_b32 v{TMP+1}, 0xff")
        seq = [(kk, nt) for kk in range(4) for nt in range(NT)]
        ao = deque((kk, f"v_and_or_b32 v{FB+kk*20+4+j}, v{FB+kk*20+4+j}, v{V_KEEP}, v{V_ONE}") for kk in range(4) for j in range(4))
        p.wait(lg=[('kv',) + seq[0]])
        for i_, (kk, nt) in enumerate(seq):
            b = FB + kk * 20
            p(f"{MF} {vq(KV + nt*4)}, {vq(b)}, {vq(b+8+4*nt)}, {'0' if kk == 0 else vq(KV + nt*4)}")
            p.wait(lg=[('kv',) + seq[i_ + 1]] if i_ + 1 < len(seq) else '*')
            k_ = len(rds); more(o.get('kvr', 4))
            for _ in range(max(0, 3 - (k_ - len(rds)))):
                if ao and ('kv', ao[0][0], 'z') not in p.lgq and not any(x[1] == ('kv', ao[0][0], 'z') for x in rds): p(ao.popleft()[1])
        assert not rds
        while len(ao) > 4: p(ao.popleft()[1])
        lastm = 0x00ff00ff if A else 0x000f000f
        def pub(mt, nt):
            a = KV + (mt * 3 + nt) * 4
            L = [(1, f"v_bfi_b32 v{a+j}, v{TMP+1}, s{S_TB+j}, v{a+j}") for j in range(4)]
            va = [V_P1ST, V_P1M, V_P1M + 1, V_P1M + 2][2 * mt + (nt == NT - 1)]
            return L + [(2, (f"buffer_store_dwordx4 {vq(a)}, v{va}, {srd(SWS)}, s{S_P1ST} offen offset:{(4*mt*F + 16*nt)*16} sc1", 'p1'))]
        self.stamp('kv3')
        mf = [(2, f"{MF} {vq(KV + (3+nt)*4)}, {vq(FB+kk*20+4)}, {vq(FB+kk*20+8+4*nt)}, {'0' if kk == 0 else vq(KV + (3+nt)*4)}") for nt in range(NT) for kk in range(4)]
        pr = [(1, lambda n=n, hf=hf: self.wread(200 + n, hf)) for n in range(D - 1) for hf in range(2)]
        self.put([x for _, x in self.weave(mf, [(1, x[1]) for x in ao] + [y for nt in range(NT) for y in pub(0, nt)] + pr)])
        qhead = [y for nt in range(NT) for y in pub(1, nt)]
        pb = o.get('pubb', 0)
        self.put([x for _, x in qhead[:pb]]); qhead = qhead[pb:]
        self.stamp()
        X = TMP + 8; CK = TMP + 2
        def tagcheck(mask):
            if mask == "0xff":
                L = [f"v_xor_b32 v{X+j}, s{S_TB+j%4}, v{X+j}" for j in range(4 * NI)] + [f"v_or_b32 v{CK}, v{X}, v{X+1}"]
                L += [f"v_or3_b32 v{CK}, v{CK}, v{X+j}, v{X+j+1}" for j in range(2, 4 * NI, 2)]
            else:
                L = [f"v_xor_b32 v{CK}, s{S_NONCE}, v{X}"] + [f"v_bitop3_b32 v{CK}, v{CK}, v{X+j}, s{S_NHI if j % 2 else S_NONCE} bitop3:0xf6" for j in range(1, 4 * NI)]
            return L + [f"v_and_b32 v{CK}, {mask}, v{CK}", f"v_cmp_ne_u32 vcc, 0, v{CK}"]
        lds_ = []
        for ii in range(NI):
            lds_ += [f"s_add_u32 s{T0}, s{S_P1LD}, {ii * (65536 // NI)}", f"buffer_load_dwordx4 {vq(X+4*ii)}, v{V_P1LD}, {srd(SWS)}, s{T0} offen sc1"]
        iss, chk = self.checked("L_h1", lds_, tagcheck("0xff"), 'h1')
        red = [f"v_add_f32 v{X+j}, v{X+j}, v{X+4*ii+j}" for ii in range(1, NI) for j in range(4)]
        red += [f"v_permlane32_swap_b32 v{X}, v{X+2}", f"v_permlane32_swap_b32 v{X+1}, v{X+3}", f"v_add_f32 v{X}, v{X}, v{X+2}", f"v_add_f32 v{X+1}, v{X+1}, v{X+3}",
                f"v_mov_b32 v{CK}, 0xffff", f"v_permlane16_swap_b32 v{X}, v{X+1}", f"v_add_f32 v{X}, v{X}, v{X+1}"]
        if not A: red.append(f"v_add_f32_dpp v{X}, v{X}, v{X} row_ror:8 row_mask:0xf bank_mask:0xf")
        red += [f"v_cvt_pk_bf16_f32 v{X}, v{X}, v{X}", f"v_bfi_b32 v{X}, v{CK}, v{V_VW}, v{X}"]
        st = (f"buffer_store_dword v{X}, v{V_P2ST}, {srd(SWS)}, s{S_P2ST} offen sc1", 'p2')
        sts = [st]
        for _ in range((1 << o.get('p2log', 2)) - 1): sts += [f"s_add_u32 s{S_P2ST}, s{S_P2ST}, {1 << 18}", st]
        red.append(sts if A else ["s_mov_b32 exec_lo, 0x00ff00ff", "s_mov_b32 exec_hi, 0x00ff00ff"] + sts + ["s_mov_b64 exec, -1"])
        n1, n2 = o.get('h1', (62, 84))
        hooks = {n1 + k: iss[2*k:2*k+2] for k in range(NI)}
        if pfp >= 100: hooks.setdefault(pfp - 100, []).extend(ipf)
        for k_, v_ in xq.items(): hooks.setdefault(k_, []).extend(v_)
        c_ = [x for _, x in cpf_]
        pc = o.get('pfchk', 13)
        hooks.setdefault(pc, []).extend(c_[:3]); hooks.setdefault(pc + 1, []).extend(c_[3:4]); hooks.setdefault(pc + 3, []).extend(c_[4:] + [lambda: setattr(self, 'pfok', True)])
        if 200 <= pp_ < 300: hooks.setdefault(pp_ - 200, []).extend(pre)
        qh = deque(qhead)
        for n in range(20): hooks.setdefault(n, []).append(lambda: self.gap(qh, 2))
        qb_ = o.get('qb', (30, 53, 66, 80))
        assert 18 <= qb_[0] <= 34 and 38 <= qb_[1] <= 54 and 58 <= qb_[2] <= 74 and 78 <= qb_[3] <= 98
        busy = sorted([(pc, pc + 3), (n1, n1 + NI), (n2, min(100, n2 + o.get('h1len', 16)) + 1)] + ([(x3 - 200, x3 - 195)] if x3 >= 200 else []))
        assert all(a_[1] < b_[0] for a_, b_ in zip(busy, busy[1:])), busy
        assert pfp - 100 < pc and x2 < x3 and (pp_ < 100 or pp_ > x3 + 5)
        for fr_, pubg, rel in [(qb_[0], 12, [15]), (qb_[1], 13, [16]), (qb_[2], 14, [17]), (qb_[3], 14, [18])]:
            hooks.setdefault(fr_, []).extend([lambda g=pubg: self.group_sync(g)] + [lambda r=r: self.release(r) for r in rel])
        self.gemm_pass(2, ACC_K, xbp(2), fill=chk + [(1, x) for x in red], hooks=hooks, last=True, sync=False, frange=(n2, min(100, n2 + o.get('h1len', 16))),
                       pace=lambda n: 1 if (n >= 9 and n % (o.get('qpace', 3) if n < o.get('qsw', 42) else o.get('qpace2', 3)) == 0 and not n1 <= n < n1 + NI) else 0)
        assert not qh
        p("s_barrier")
        [self.release(r) for r in range(15, 20)]
        self.stamp()
        X = TMP + 96; CK = TMP + 92
        lds_ = [f"buffer_load_dwordx4 {vq(X+4*ii)}, v{V_LIN if ii < NI-1 else V_GAL}, {srd(SWS)}, s{S_P2LD} offen offset:{1024*ii if ii < NI-1 else 0} sc1" for ii in range(NI)]
        iss, chk = self.checked("L_h2", lds_, tagcheck("0xffff"), 'h2')
        zw = [f"v_mov_b32 v{CK}, 0", f"v_mov_b32 v{CK+1}, 0", f"ds_write_b64 v{V_ZA}, {vq(CK, 2)}"]
        self.put(zw)
        for k_ in range(o.get('dirty', 0)):
            p(f"s_add_u32 s{T0}, s{S_OP}, {(9 << 20) + (k_ // 5) * (6 << 20) + (k_ % 5) * 1024}")
            p(f"buffer_store_dwordx4 v[2:5], v{V_LIN}, {srd(SWS)}, s{T0} offen {o.get('dirtyf', '')}")
        if o.get('prepos', 0) == 1: self.put(pre)
        if not A:
            for tt in range(6): p(f"v_accvgpr_write_b32 a{40+4*(3*tt+2)+2}, 0"); p(f"v_accvgpr_write_b32 a{40+4*(3*tt+2)+3}, 0")
        if A:
            P0 = self.phiA_parts(x0, E0, M0_, "L_q0", True); P1 = self.phiA_parts(x1, E1, M1_, "L_q1", True)
            L = P0['cvt'] + self.weave(P0['mf'], P1['cvt'] + P0['exp'][:6]) + self.weave(P1['mf'], P0['exp'][6:]) + P0['norm'] + P0['out'] + P1['exp'] + P1['norm'] + P1['out']
        else:
            L = []
            for x, e in ((x0, E0), (x1, E1)):
                L += self.phiB(x, e, True) + [(1, f"v_mov_b32 v{x+10}, 0"), (1, f"v_mov_b32 v{x+11}, 0")]
        d1_, d2_ = o.get('oshift', (0, 0))
        Ld2 = L[len(L) - d2_:]; L = L[:len(L) - d2_]
        Ld1 = L[len(L) - d1_:]; L = L[:len(L) - d1_]
        tot = sum(c for c, _ in L)
        ev = [(tot - o.get('h2lead', 60), iss)]
        if o.get('prepos', 0) == 0 and o.get('prelead', 0) >= 0: ev.append((tot - o.get('prelead', o.get('h2lead', 60)) + 0.5, pre))
        if (o.get('pre1m') or 0) < -1: ev.append((tot + o['pre1m'] + 0.5, pre1))
        for ps_, L_ in prel: ev.append((tot + ps_ + 0.5, L_))
        L2 = []; c = 0; ev.sort(key=lambda e_: e_[0])
        for it_ in L + [(0, [])]:
            while ev and c >= ev[0][0] - (0.5 if it_[0] == 0 else 0): L2.append((0, ev.pop(0)[1]))
            L2.append(it_); c += it_[0]
        assert not ev
        self.run(L2, every=o.get('qev', 44))
        self.flush_dma(('W', 17))
        self.stamp()
        self.put([x for _, x in chk])
        if o.get('prepos', 0) == 0 and o.get('prelead', 0) < 0: self.put(pre)
        if o.get('pre1m') == -1: self.put(pre1)
        for ii in range(NI):
            p(f"v_perm_b32 v{X+4*ii}, v{X+4*ii+1}, v{X+4*ii}, s{S_PERM}")
            p(f"v_perm_b32 v{X+4*ii+1}, v{X+4*ii+3}, v{X+4*ii+2}, s{S_PERM}")
            p(f"ds_write_b64 v{V_LA+ii}, {vq(X+4*ii, 2)}", 'kvw')
        self.put([x for _, x in Ld1])
        p.wait(vm=[('W', 17)], lg='*')
        p("s_barrier")
        self.stamp()
        assert not self.dq or True
        import copy
        p(f"s_cmp_eq_u32 s{S_FAST}, 0"); p(f"s_cbranch_scc0 L_tail{self.sfx}s")
        env = dict(RS=RS, M0_=M0_, M1_=M1_, Ld2=Ld2, pre1=pre1)
        sv = (self.p, self.sfx, self.nst, getattr(self, 'cs', 0), deque(self.dq))
        self.p = Prog(); self.p.vmq = list(p.vmq); self.p.lgq = list(p.lgq); self.sfx += 's'
        self.p(f"L_tail{self.sfx}:")
        self.tail(False, **env)
        self.ool.append(self.p.finalize())
        self.p, self.sfx, self.nst, self.cs, self.dq = sv
        self.tail(True, **env)
        return p.finalize() + "".join(self.ool)
    def tail(self, fast, RS, M0_, M1_, Ld2, pre1):
        p = self.p; A = self.A; o = self.o; br = 0 if A else 1
        def more(k):
            while k > 0 and rds and len(p.lgq) < 15: self.put([rds.popleft()]); k -= 1
        OA = ACC_V
        NU = 5 if A else 3
        SP = TMP + 112
        OB = TMP + 64
        LO = TMP + 80
        fr = [(tt, u_) for tt in (5, 0, 1, 2, 3, 4) for u_ in range(NU)]
        AO = 40
        rds = deque()
        for n, (tt, u_) in enumerate(fr):
            if not A and u_ == 2: rds.append((f"ds_read_b64 {aq(AO+4*n, 2)}, v{V_FR2} offset:{4*tt*RS + 16*u_}", ('of', n)))
            else: rds.append((f"ds_read_b128 {aq(AO+4*n)}, v{V_FR2} offset:{4*tt*RS + 16*u_}", ('of', n)))
        more(10)
        if A: p(f"v_mov_b32 v{SP}, v{M0_}"); p(f"v_mov_b32 v{SP+1}, v{M1_}")
        self.put([x for _, x in Ld2])
        def ost(txt, tag='o'):
            p(txt + ("" if fast else " sc1"), tag)
        def flag(k): ost(f"buffer_store_dword v{V_NONCE}, v{V_FOWN}, {srd(SWS)}, s{S_FLAG} offen offset:{32*k}", 'fl')
        def poll(k, name):
            iss, chk = self.checked(name, [f"buffer_load_dword v{V_DUMP}, v{V_F8}, {srd(SWS)}, s{S_FLAG} offen offset:{32*k} sc1"], [f"v_cmp_ne_u32 vcc, s{S_NONCE}, v{V_DUMP}"], name)
            return iss, [x for _, x in chk]
        order = [(0, k) for k in range(5)] + [(1, k) for k in range(5)] + [(0, 5), (1, 5)]
        epi = deque()
        for z, (rt, k) in enumerate(order):
            dn = OA + (rt * 6 + 5) * 4
            b = OA + rt * 24
            rdy = (z + 1) * NU + o.get('rdy', 4)
            if k == 0:
                epi.append((rdy, 1, f"v_fmac_f32 v{dn}, {EPS}, v{SP+rt}" if A else f"v_add_f32 v{dn}, {EPS}, v{dn}")); epi.append((rdy, 2, f"v_rcp_f32 v{dn}, v{dn}"))
                continue
            tt = k - 1
            for r in range(4): epi.append((rdy, 1, f"v_mul_f32 v{b+4*tt+r}, v{b+4*tt+r}, v{dn}"))
            for h in range(2):
                i = 2 * tt + h
                d = OB + ((i // 4) * 2 + rt) * 4 + i % 4 if i < 8 else LO + 2 * rt + (i - 8)
                epi.append((rdy, 1, f"v_cvt_pk_bf16_f32 v{d}, v{b+2*i}, v{b+2*i+1}"))
            if tt in (1, 3):
                u_ = tt // 2
                epi.append((0, 2, lambda u_=u_, rt=rt: ost(f"buffer_store_dwordx4 {vq(OB+(u_*2+rt)*4)}, v{V_OO+rt*2+u_}, {srd(SO)}, s{S_OP} offen", ('S', rt))))
        epi.append((0, 2, lambda: ost(f"buffer_store_dwordx4 {vq(LO)}, v{V_OO+4}, {srd(SO)}, s{S_OP} offen", ('S', 1))))
        TM_ = o.get('tmaj', 3); LD = o.get('lead', 8); DF = o.get('df', 11); A_RING = A_PHI
        items = [(P, t_, (0, 1)) for P in range(2) for t_ in range(5)] + [(P, t_, (0,)) for P in range(2, 2 + LD) for t_ in range(5)] + \
                [(P, t_, (0, 1)) for P in range(2 + LD, 20) for t_ in range(5)] + [(P, t_, (1,)) for P in range(2, 2 + LD - TM_) for t_ in range(5)] + \
                [(P, t_, (1,)) for t_ in range(5) for P in range(2 + LD - TM_, 2 + LD)]
        def fread(i, hf):
            P, t_, _ = items[i]
            if True:
                if hf == 0:
                    off = RING + P * 5120 + 1024 * t_; hi = off >= 51200; s_ = A_RING + (i % DF) * 4
                    p(f"ds_read_b128 a[{s_}:{s_+3}], v{V_LINH if hi else V_LIN} offset:{off - 51200*hi}", ('FF', i))
                return
            off = RING + (P // 4) * SLOT + (P % 4) * 5120 + hf * 2560 + 8 * t_
            hi = off >= 51200; s_ = A_RING + (i % DF) * 4 + 2 * hf
            p(f"ds_read_b64_tr_b16 a[{s_}:{s_+1}], v{V_WT + hi} offset:{off - 51200*hi}", ('FF', i))
        pr = deque((i, 0) for i in range(DF - 1))
        m = 0; mf0 = o.get('mf0', 54 if A else 36); seen = set()
        for rt, k in order:
            for u_ in range(NU):
                n = k * NU + u_; tt = fr[n][0]
                a = OA + (rt * 6 + tt) * 4
                if m == 0: p.wait(lg=[('of', 0)])
                p(f"{MF} {vq(a)}, {aq(AO+4*n)}, {vq(ACC_K+20*rt+4*u_)}, {'0' if u_ == 0 else vq(a)}")
                m += 1
                if n + 1 < len(fr): p.wait(lg=[('of', n + 1)])
                bud = 2 if A else 3
                if m == mf0:
                    assert sum(1 for x in p.ins if x.tag == ('S', 0)) == 2
                    p.wait(vm=[('S', 0)]); flag(0); bud -= 2
                elif m == o.get('pre1m'): self.put(pre1); bud -= 2
                elif rds: more(1); bud -= 1 if not (epi and epi[0][0] <= m and epi[0][1] == 2) else 0
                elif self.dq and m % o.get('opace', 8) == 0: self.tick(); bud -= 2
                elif pr and not (epi and epi[0][0] <= m): fread(*pr.popleft()); bud -= 1
                while epi and epi[0][0] <= m and epi[0][1] <= bud:
                    _, c, x = epi.popleft(); bud -= c
                    self.put([x])
                    if callable(x): break
        while pr: fread(*pr.popleft())
        while len(epi) > 7: self.put([epi.popleft()[2]])
        while self.tick(): pass
        self.stamp()
        def ob(ks, rt):
            if ks < 2: return vq(OB + (ks * 2 + rt) * 4)
            return aq((ks * 2 + rt) * 4) if ks < 16 else vq(LO + (2 * (ks - 16) + rt) * 4)
        def ld(P, rt):
            if P < 16: return [(f"buffer_load_dwordx4 {aq((P*2+rt)*4)}, v{V_OO+rt*2+P%2}, {srd(SO)}, s{S_OP + P//2} offen sc1", ('O', P, rt))]
            return [(f"buffer_load_dwordx4 {vq(LO+(2*(P-16)+rt)*4)}, v{V_OO+4}, {srd(SO)}, s{S_OP + 2*(P-16) + rt} offen sc1", ('O', P, rt))]
        i0, c0 = poll(0, "L_f0"); i1, c1 = poll(1, "L_f1"); i2, c2 = poll(2, "L_d0"); i3, c3 = poll(3, "L_d1")
        L0x = min(16, 2 + LD + o.get('xlead', 0))
        lead = [ld(P, 0) for P in range(2, L0x)]
        rest = [ld(P, rt) for P in range(2 + LD, 20) for rt in range(2) if (P, rt) != (16, 0) and not (rt == 0 and P < L0x)] + [ld(P, 1) for P in range(2, 2 + LD)]
        def handshake():
            p.wait(vm=[('S', 1), ('W', 18), ('W', 19)])
            flag(1)
            self.put(c0)
            self.stamp()
            self.q(0, lead); self.q(10**6 + 50, rest)
            for k_ in range(o.get('oprime', 7)):
                self.tick()
                if k_ == 3: p("s_barrier")
                if k_ == 3 and o.get('p1it', -1) < 0: self.put(i1)
            p.wait(vm=[('O', 2, 0)])
        E0 = len(items) - 5 * LD
        NI_ = len(items)
        def outp(rt):
            b = TMP + 8
            c = self.cvt20(acc(ACC_K, 0, rt), b)
            L = []
            for j in range(5): L += [c[2*j][1], c[2*j+1][1], (f"ds_write_b64 v{V_OW}, {vq(b+2*j, 2)} offset:{rt*16*OUTS + 8*j}", 'ow')]
            L += [(f"ds_read_b128 {vq(TMP+24+4*j)}, v{V_ORD+j} offset:{rt*16*OUTS}", ('or', j)) for j in range(3)]
            S_ = [(f"buffer_store_dwordx4 {vq(TMP+24+4*j)}, v{V_OG+j}, {srd(SOUT)}, s{S_OUT} offen", 'out') for j in range(3)]
            return L, S_
        vw, lw, sc_, vec = {}, {}, {}, {}
        add = lambda d, i, L: d.setdefault(i, []).extend(L)
        def check(i, c, tag, gapn):
            add(vw, i, [tag]); add(vec, i, [c[1]]); add(sc_, i + gapn, [c[2]])
        ep = [x[2] for x in epi]
        add(vec, 1, ep[:3]); add(vec, 2, ep[3:6]); add(vec, 3, ep[6:])
        add(vec, o.get('p0pos', 4), i0)
        add(vec, 9, [handshake])
        if o.get('p1it', -1) >= 0: add(vec, 10 + o.get('p1it', -1), i1)
        ci = 10 + o.get('c1pos', 5); check(ci, c1, "L_f1", 2); add(sc_, ci + 2, [lambda: self.release(50)])
        for i in range(15, NI_ - 5 * TM_ + 1, 5):
            if i == NI_: break
            Pn, _, rn = items[i]
            tags = [('O', Pn, rt) for rt in rn]
            if i == NI_ - 5 * TM_: tags = [('O', 1 + LD, 1)]
            if Pn >= 16:
                a = LO + 2 * (Pn - 16) * 4
                add(vw, i - 2, tags); add(vec, i - 2, [f"v_swap_b32 v{a+2}, v{a+4}", f"v_swap_b32 v{a+3}, v{a+5}"])
            else: add(vw, i - 1, tags)
        nd0 = E0 - o.get('d0', 8); add(vw, nd0, [('O', 19, 0), ('O', 19, 1)]); add(vec, nd0, [lambda: flag(2)])
        add(vec, E0 + o.get('d0p', 0), i2)
        L0, S0 = outp(0)
        for j, x in enumerate(L0): add(vec, E0 + 2 + j, [x])
        nd1 = NI_ - o.get('d1', 24); add(vw, nd1, [('O', 1 + LD, 1)]); add(vec, nd1, [lambda: flag(3)])
        check(E0 + 22, c2, "L_d0", 2)
        for j, x in enumerate(S0): add(lw, E0 + 25 + 2 * j, [('or', j)]); add(vec, E0 + 25 + 2 * j, [x])
        L1, S1 = outp(1)
        n1e = 0
        if TM_:
            for j in range(15):
                pos = NI_ - 5 * TM_ + (j // 3 + 1) * TM_ + 2 + j % 3
                if pos < NI_: add(vec, pos, [L1[j]]); n1e = j + 1
        add(vec, NI_ - o.get('d1p', 8), i3)
        add(sc_, NI_ - 5, [f"s_or_b32 s{T0}, s{S_RB}, s{S_HEAD}"]); add(sc_, NI_ - 4, [f"s_cmp_lg_u32 s{T0}, 0"]); add(sc_, NI_ - 3, [f"s_cselect_b32 s{T0}, {WS_SIZE}, 0"])
        add(vec, NI_ - 2, [(f"buffer_store_dword v{V_NONCE}, v{V_FOWN}, {srd(SWS)}, s{T0} offen offset:{br*128} sc1", 'nn')])
        assert ci + 2 < E0 + o.get('d0p', 0) < E0 + 22 and E0 + 24 < NI_ - o.get('d1p', 8) and nd1 < NI_ - o.get('d1p', 8) and nd0 < E0 + o.get('d0p', 0)
        assert 3 < o.get('p0pos', 4) <= 9 and E0 + 29 < NI_ - 5 * TM_ + TM_ + 2 + 15
        p.wait(lg=[('FF', 0)])
        clk = 0.0; per = o.get('lper', 4.6)
        for i, (P, t_, rts) in enumerate(items):
            s_ = A_RING + (i % DF) * 4
            for z, rt in enumerate(rts):
                a = acc(ACC_K, t_, rt)
                p(f"{MF} {vq(a)}, {aq(s_)}, {ob(P, rt)}, {'0' if P == 0 else vq(a)}")
                if z == 0:
                    k0 = len(p.ins)
                    for tg in vw.get(i, []): self.flush_dma(tg)
                    p.wait(vm=vw.get(i), lg=[('FF', i + 1)] + lw.get(i, []))
                    if len(rts) == 1: self.put(sc_.get(i, []))
                    if i + DF - 1 < NI_:
                        if len(p.ins) == k0: p("s_nop 0")
                        fread(i + DF - 1, 0)
                else: self.put(sc_.get(i, []))
            self.stamp('z%d' % i)
            if i >= 10:
                clk += len(rts)
                if clk >= per and i not in vec and self.tick(): clk -= per
            self.put(vec.get(i, []))
        self.stamp()
        p(f"s_add_u32 s{S_OUT}, s{S_OUT}, {16*2560}")
        self.put(L1[n1e:12]); self.put(c3[:2]); self.put(L1[12:]); self.put(c3[2:])
        for j in range(3): p.wait(lg=[('or', j)]); self.put([S1[j]])
        if o.get('stamps'):
            p("s_waitcnt vmcnt(0)")
            self.stamp()
            p("s_memrealtime s[100:101]")
            p("s_waitcnt lgkmcnt(0)")
            p.raw(f"""
            s_lshl_b32 s{T0}, s2, 2
            s_add_u32 s{T0}, s{T0}, s{S_W}
            s_lshl_b32 s{T0}, s{T0}, 6
            s_add_u32 s{T0}, s{T0}, {WS_ST}
            v_mov_b32 v{TMP+16}, 0
            v_mov_b32 v{TMP}, s98
            v_mov_b32 v{TMP+1}, s100
            """)
            for k in range(14): p(f"v_mov_b32 v{TMP+2+k}, {'s%d' % (S_ST+k) if k < self.nst else ('s95' if k == 13 else 0)}")
            p("s_mov_b64 exec, 1")
            for k in range(4): p(f"buffer_store_dwordx4 {vq(TMP+4*k)}, v{TMP+16}, {srd(SWS)}, s{T0} offen offset:{16*k}")
        if o.get('cntm'):
            p.raw(f"""
            s_load_dwordx2 s[62:63], s[0:1], 64
            v_mov_b32 v2, 0
            v_mov_b32 v3, s95
            s_waitcnt lgkmcnt(0)
            s_cmp_eq_u32 s95, 0
            s_cbranch_scc1 L_cn0{self.sfx}
            s_mov_b64 exec, 1
            global_atomic_add v2, v3, s[62:63] sc1
            L_cn0{self.sfx}:
            s_or_b32 s{T0}, s{S_RB}, s{S_HEAD}
            s_cmp_lg_u32 s{T0}, 0
            s_cbranch_scc1 L_cn2{self.sfx}
            s_movk_i32 s{T0}, 3500
            s_mov_b32 s{T2}, 0
            L_cn1{self.sfx}:
            s_sleep 2
            s_memrealtime s[64:65]
            s_waitcnt lgkmcnt(0)
            s_sub_u32 s{T1}, s64, s98
            s_cmp_lt_u32 s{T1}, s{T0}
            s_cbranch_scc1 L_cn1{self.sfx}
            s_cmp_eq_u32 s{T2}, 1
            s_cbranch_scc1 L_cn2{self.sfx}
            global_load_dword v3, v2, s[62:63] sc1
            s_waitcnt vmcnt(0)
            v_readfirstlane_b32 s{T0}, v3
            s_min_u32 s{T0}, s{T0}, 1024
            s_mul_i32 s{T0}, s{T0}, 20
            s_add_u32 s{T0}, s{T0}, 4000
            s_mov_b32 s{T2}, 1
            s_branch L_cn1{self.sfx}
            L_cn2{self.sfx}:
            """)
        if o.get('amp'):
            p("s_waitcnt vmcnt(0)")
            self.stamp()
            if o['amp'][0] < 0: p("s_mov_b32 s100, s98")
            p.raw(f"""
            s_and_b32 s{T0}, s2, 7
            s_lshr_b32 s{T0}, {o['amp'][2]}, s{T0}
            s_bitcmp1_b32 s{T0}, 0
            s_cbranch_scc0 L_ampx{self.sfx}
            s_load_dwordx2 s[62:63], s[0:1], 64
            v_mov_b32 v2, 0
            s_waitcnt lgkmcnt(0)
            global_load_dword v3, v2, s[62:63] sc1
            s_waitcnt vmcnt(0)
            v_readfirstlane_b32 s{T2}, v3
            s_not_b32 s{T2}, s{T2}
            s_sub_u32 s{T0}, s100, s{T2}
            s_add_u32 s{T0}, s{T0}, 300
            s_mul_i32 s{T0}, s{T0}, {o['amp'][1]}
            s_min_u32 s{T0}, s{T0}, 100000
            L_amp{self.sfx}:
            s_sleep 2
            s_memrealtime s[64:65]
            s_waitcnt lgkmcnt(0)
            s_sub_u32 s{T1}, s64, s{T2}
            s_cmp_lt_u32 s{T1}, s{T0}
            s_cbranch_scc1 L_amp{self.sfx}
            L_ampx{self.sfx}:
            """)
        p("s_endpgm")
        assert not self.dq

def sizes(lines):
    import subprocess, re
    src = '.amdgcn_target "amdgcn-amd-amdhsa--gfx950"\n.text\n' + "\n".join(lines) + "\n"
    r = subprocess.run(["llvm-mc", "-triple=amdgcn-amd-amdhsa", "-mcpu=gfx950", "-show-encoding"], input=src, capture_output=True, text=True)
    assert r.returncode == 0, r.stderr[:2000]
    return [len(m.split(',')) for m in re.findall(r'encoding: \[([^\]]*)\]', r.stdout)]
def add_hops(text, sfx, align=True):
    lines = text.split("\n")
    i0 = lines.index(f"L_main{sfx}:"); i1 = next(i for i in range(i0, len(lines)) if lines[i].strip() == "s_endpgm")
    body = lines[i0 + 1:i1]
    isi = lambda l: l.startswith("    ")
    szl = sizes([l for l in body if isi(l)])
    insl = [l.strip() for l in body if isi(l)]
    big = [z == 8 and t.startswith("v_") and not t.startswith("v_mfma") for z, t in zip(szl, insl)]
    run = [0] * (len(big) + 1)
    for k in range(len(big) - 1, -1, -1): run[k] = run[k + 1] + 1 if big[k] else 0
    sz = iter(szl); k = -1; nfix = 0
    out = []; addr = 0; page = 0; prev = "v_mfma"
    for l in body:
        if isi(l):
            k += 1
            if align and run[k] >= 3 and addr % 8 == 4:
                pv = out[-1] if isinstance(out[-1], str) else ""
                op = pv.split()[0] if pv.strip() else ""
                if isi(pv) and szl[k - 1] == 4 and op.startswith("v_") and not op.startswith(("v_cmp", "v_swap", "v_permlane", "v_readfirst")):
                    out[-1] = pv.replace(op, op + "_e64", 1); addr += 4; nfix += 1
                elif run[k] >= 6: out.append("    s_nop 0"); addr += 4; nfix += 1
            off = addr - page * 4096
            if off >= 0 and (prev.startswith("v_mfma") or off >= 40) and not prev.startswith("s_mov_b64 exec") :
                out.append(("hop", page)); addr += 4; page += 1
            addr += next(sz); prev = l.strip()
        out.append(l)
    assert page >= 4
    res = []
    for x in out:
        if isinstance(x, tuple):
            k = x[1]
            res += [f"L_hop{k}{sfx}:", f"    s_cbranch_execz " + (f"L_hop{k+4}{sfx}" if k + 4 < page else f"L_hopret{sfx}")]
        else: res.append(x)
    print(sfx, "main bytes", addr, "align fixes", nfix, file=sys.stderr)
    return "\n".join(lines[:i0 + 1] + res + lines[i1:])

def build(opt):
    ref = open(f"cdna_kernels/{NAME}.s.ref").read().split("\n")
    head = [l for l in ref if l.startswith(";") and "@launch" not in l]
    s = "\n".join(head) + "\n; @launch grid=(256,1,1) block=(256,1,1) lds=163840\n"
    s += f""".amdgcn_target "amdgcn-amd-amdhsa--gfx950"
.text
.globl {NAME}_kernel
.p2align 12
.p2align 8
.type {NAME}_kernel,@function
{NAME}_kernel:
    s_cmp_ge_u32 s2, 256
    s_cbranch_scc1 L_exit
"""
    ga = Gen(True, opt); ta = ga.body(); gb = Gen(False, opt); tb = gb.body()
    ca, ra = ta.split(".split\n"); cb, rb = tb.split(".split\n")
    assert ca == cb
    if opt.get('hops', 1): ra = add_hops(ra, 'A', opt.get('align', 1)); rb = add_hops(rb, 'B', opt.get('align', 1))
    s += ca + ra + "L_exit:\n    s_endpgm\n.p2align 12\n" + rb
    s += ".fill 2048, 4, 0xbf810000\n"
    s += f""".section .rodata,"a"
.p2align 6
.amdhsa_kernel {NAME}_kernel
  .amdhsa_next_free_vgpr 512
  .amdhsa_next_free_sgpr 102
  .amdhsa_accum_offset 256
  .amdhsa_group_segment_fixed_size 0
  .amdhsa_kernarg_size 80
  .amdhsa_user_sgpr_count 2
  .amdhsa_user_sgpr_kernarg_segment_ptr 1
  .amdhsa_system_sgpr_workgroup_id_x 1
.end_amdhsa_kernel
"""
    print("nops", ga.p.nops, gb.p.nops, "instrs", len(ga.p.ins), len(gb.p.ins), "autow", getattr(ga.p, 'autow', 0), file=sys.stderr)
    return s

if __name__ == "__main__":
    import json
    opt = json.loads(sys.argv[2]) if len(sys.argv) > 2 else {}
    open(sys.argv[1], "w").write(build(opt))
```

```python
import sys
from collections import deque
from emit import Prog
NAME = "concat_heads__linear_kernel_hedgehog__linear_attn_block__prompt"

S_RB, S_HG, S_W = 4, 5, 7
SX, SW, SWO, SWS, SOUT, SPHI = 8, 12, 16, 20, 24, 28
S_NONCE = 32
S_WROW = 33
S_XBASE, S_XU = 38, 39
S_LW, S_LR = 40, 41
T0, T1, T2, T3 = 42, 43, 44, 45
S_WOROW = 46
S_HEAD = 51
S_SPIN = 52
S_FAST = 53
S_L2E, S_NL2E = 54, 55
S_OB = 56
S_WS, S_XS = 57, 58
S_FLAG = 59
S_OP = 60
S_P1ST, S_P1LD, S_P2ST, S_P2LD, S_OWN, S_OUT, S_XCCV, S_PERM = 68, 69, 70, 71, 72, 73, 74, 75
S_KA = 76
S_ST = 76
import os
if os.environ.get('PRO'): S_ST = 88
def srd(b): return f"s[{b}:{b+3}]"
V_LANE = 1
V_WO = 2; V_OF = 7; V_OL = 12; V_XO = 17; V_XR = 21; V_WT = 23; V_LIN = 25
V_PW, V_VW, V_KB, V_KA0, V_KA1, V_FR = 26, 27, 28, 29, 30, 31
ACC_K, ACC_V = 32, 72
TMP = 112
PV = 228
V_P1ST, V_P1LD, V_P2ST, V_GAL, V_LA, V_FR2, V_KEEP, V_ONE, V_OW, V_ORD, V_OG, V_F8, V_DUMP, V_ZA = PV, PV+1, PV+2, PV+3, PV+4, PV+8, PV+9, PV+10, PV+11, PV+12, PV+17, PV+22, PV+23, PV+24
V_L128, V_NONCE, V_FOWN = PV + 25, PV + 26, PV + 27
RING = 0; SLOT = 20480; RBASE = 102400; RW = 15360
OUTL = RBASE + 16384; OUTS = 176
WS_FLAG, WS_XCC, WS_P2, WS_P1, WS_O, WS_ST = 4096, 32768, 5 << 20, 1 << 20, 8 << 20, 16 << 20
WS_SIZE = 32 << 20
D = 6
A_RING = 220
A_PHI = 160
A_PARK = 244
V_OO = 7; V_LINH = 12; V_PF = 13; V_P1M = 14
WS_PF = 49152; WS_PK = 6 << 20
S_USRC, S_UDST, S_UFL, S_UTAG, S_PFL, S_XA = 3, 6, 72, 90, 91, 93
S_TB = SX
S_NHI = 38
SO = SPHI
SPIN_MAX = 20000
EPS = "0x358637bd"

def vq(b, n=4): return f"v[{b}:{b+n-1}]"
def aq(b, n=4): return f"a[{b}:{b+n-1}]"
def acc(base, t, rt): return base + (rt * 5 + t) * 4
MF = "v_mfma_f32_16x16x32_bf16"

DEF = {'A': dict(xpos=(117, 190, 222), qpace=4, pfpos=101, pfchk=28, prokeep=4, proev=60, h1=(48, 74), h1len=8, h2lead=140, prelead=100, kpace=4, hx=30, vsync=1, qev=26), 'B': dict(xpos=(117, 190, 222), upos=(18, 18, 62), pfpos=101, pfchk=28, h1=(50, 76), h1len=5, h2lead=80, prem=(283, -70, -30), vpace=3, qev=24, vsync=1)}
class Gen:
    def __init__(self, isA, opt):
        self.A = isA
        sf = 'A' if isA else 'B'
        opt = dict(DEF[sf], **opt)
        opt.update({k[:-1]: v for k, v in opt.items() if k.endswith(sf)})
        self.o = opt
        self.p = Prog(); self.sfx = 'A' if isA else 'B'
        self.F = 40 if isA else 20
        self.nst = 0
        self.dq = deque()
        self.pos = 0
        self.ool = []
    def stamp(self, name=None):
        p = self.p
        if name is None and self.o.get('idle'):
            self.ic = getattr(self, 'ic', -1) + 1
            if self.ic == self.o['idle'][0]: p(f"s_sleep {self.o['idle'][1]}")
        fine = self.o.get('fine')
        if fine:
            if name is None: self.cs = getattr(self, 'cs', 0) + 1; name = 's%d' % (self.cs - 1)
            if name not in fine: return
        elif name is not None: return
        if self.o.get('amp'):
            if self.nst == self.o['amp'][0]:
                p("s_memrealtime s[100:101]"); p("s_waitcnt lgkmcnt(0)")
            self.nst += 1
            return
        if not self.o.get('stamps'): return
        p(f"s_memrealtime s[100:101]" if self.o.get('rt') else f"s_memtime s[100:101]")
        p("s_waitcnt lgkmcnt(0)")
        p(f"s_sub_u32 s{S_ST+self.nst}, s100, {'s98' if self.o.get('rt') else 's96'}")
        self.nst += 1
    def put(self, L):
        for x in L:
            if isinstance(x, tuple): self.p(x[0], x[1])
            elif isinstance(x, list): self.put(x)
            elif callable(x): x()
            else: self.p(x)
    def dma_w(self, G):
        g = G % 5
        pre = [f"s_add_u32 m0, s{S_LW}, {RING + g*SLOT}"]
        if G < 15:
            col = {0: 1280, 1: 2560, 2: 0}[G // 5]
            gr = 4 - g if G // 5 in self.o.get('rev', [1, 2]) else g
            pre.append(f"s_add_u32 s{S_WS}, s{S_WROW+gr}, {col}"); so = f"s{S_WS}"; sd = SW; vo = V_WO
        else:
            items = []
            for j in range(5):
                off = f"offset:{j*1024} " if 0 < j < 4 else ""
                L = (pre if j == 0 else []) + [(f"buffer_load_dwordx4 v{V_LIN}, {srd(SWS)}, s{S_WOROW+g} offen {off}sc1 lds", ('W', G))]
                if j == 3: L += [f"s_add_u32 m0, s{S_LW}, {RING + g*SLOT + 4096}", f"s_add_u32 s{S_WOROW+g}, s{S_WOROW+g}, 4096"]
                items.append(L)
            return items
        items = []
        if G // 5 in self.o.get('fake', []):
            base = (G % 5) * 4 * 5120 + (G // 5 if G < 15 else 0) * 819200
            if self.o.get('fakerot'):
                pre = [pre[0], f"s_mul_hi_u32 s{S_WS}, s{S_WROW+gr}, 34953", f"s_mul_i32 s{S_WS}, s{S_WS}, 5120", f"s_add_u32 s{S_WS}, s{S_WS}, s94", f"s_sub_u32 s{S_WS}, s{S_WS}, s{S_LW}",
                       f"s_add_u32 s{S_WS}, s{S_WS}, {(G // 5) * 819200}"]
            else: pre = [pre[0], f"s_add_u32 s{S_WS}, s94, {base}"]
            for j in range(5):
                off = f"offset:{j*1024} " if 0 < j < 4 else ""
                L = (pre if j == 0 else []) + [(f"buffer_load_dwordx4 v{V_LIN}, {srd(sd)}, s{S_WS} offen {off}lds", ('W', G))]
                if j == 3: L += [f"s_add_u32 m0, s{S_LW}, {RING + g*SLOT + 4096}", f"s_add_u32 s{S_WS}, s{S_WS}, 4096"]
                items.append(L)
            return items
        for j in range(5):
            off = f"offset:{j*1024} " if 0 < j < 4 else ""
            L = (pre if j == 0 else []) + [(f"buffer_load_dwordx4 v{vo+j}, {srd(sd)}, {so} offen {off}lds", ('W', G))]
            if j == 3: L.append(f"s_add_u32 m0, s{S_LW}, {RING + g*SLOT + 4096}")
            items.append(L)
        return items
    def dma_x(self, pu):
        items = []
        for j in range(4):
            off = f"offset:{j*1024} " if j else ""
            L = []
            if j == 0: L += [f"s_add_u32 m0, s{S_LR}, {(pu % 3) * 4096}", f"s_add_u32 s{S_XS}, s{S_XU}, s{S_XBASE}"]
            L.append((f"buffer_load_dwordx4 v{V_XO+j}, {srd(SX)}, s{S_XS} offen {off}lds", ('X', pu)))
            if j == 0: L += [f"s_add_u32 s{S_XU}, s{S_XU}, 128"]
            if j == 1: L += [f"s_cmp_eq_u32 s{S_XU}, 1280", f"s_cselect_b32 s{S_XU}, 0, s{S_XU}"]
            items.append(L)
        return items
    def q(self, earliest, items):
        for it in items: self.dq.append((earliest, it))
    def release(self, k):
        self.dq = deque((0 if e == 10**6 + k else e, it) for e, it in self.dq)
    def tick(self):
        if self.dq and not getattr(self, 'pfok', False) and any(isinstance(x, tuple) and x[1] == ('W', 15) for x in self.dq[0][1]): return False
        if self.dq and self.dq[0][0] <= self.pos:
            self.put(self.dq.popleft()[1]); return True
        return False
    def flush_dma(self, tag):
        def has():
            return any(isinstance(x, tuple) and x[1] == tag for _, it in self.dq for x in it)
        while has():
            assert self.dq[0][0] <= self.pos, (tag, self.pos, self.dq[0])
            self.put(self.dq.popleft()[1])
    def run(self, L, every=30):
        c = 0
        for cost, x in L:
            self.put([x]); c += cost
            if c >= every: c = 0; self.tick()
    def wread(self, N, hf):
        G = N // 20; ks = (N % 20) // 5; t = N % 5
        off = RING + (G % 5) * SLOT + ks * 5120 + hf * 2560 + 8 * t
        hi = off >= 51200
        s = A_RING + (N % D) * 4 + 2 * hf
        if G // 5 in self.o.get('fake', []):
            if hf == 0:
                off = RING + (G % 5) * SLOT + ks * 5120 + 1024 * t
                hi = off >= 51200
                self.p(f"ds_read_b128 a[{s}:{s+3}], v{226 + hi} offset:{off - 51200*hi}", ('F', N))
            return
        self.p(f"ds_read_b64_tr_b16 a[{s}:{s+1}], v{V_WT + hi} offset:{off - 51200*hi}", ('F', N))
    def group_sync(self, G):
        self.flush_dma(('W', G))
        self.p.wait(vm=[('W', G)])
        self.p("s_barrier")
    def xread(self, pu, k):
        ksub, rt = divmod(k, 2)
        if k == 0:
            self.flush_dma(('X', pu)); self.p.wait(vm=[('X', pu)])
        a = ((2 * pu + ksub) * 2 + rt) * 4
        self.p(f"ds_read_b128 {aq(a)}, v{V_XR+ksub} offset:{(pu % 3)*4096 + rt*2048}", ('XR', pu))
    def prime(self, ps, sync=True):
        if sync: self.group_sync(ps * 5)
        for n in range(D - 1):
            self.wread(ps * 100 + n, 0); self.wread(ps * 100 + n, 1)
    def gemm_pass(self, ps, accb, bop, fill=None, hooks=None, last=False, pace=None, sync=True, frange=(0, 100), hooks0=None):
        p = self.p
        fill = deque(fill or []); hooks = hooks or {}; hooks0 = hooks0 or {}
        N0 = ps * 100
        p.wait(lg=[('F', N0), ('XR', 0)])
        pace = pace or (lambda n: 0)
        for n in range(100):
            self.pos = N0 + n
            ks, t = divmod(n, 5)
            s = A_RING + ((N0 + n) % D) * 4
            M = n + D - 1
            look = M < 100 or not last
            a = acc(accb, t, 0)
            p(f"{MF} {vq(a)}, {aq(s)}, {bop(ks, 0)}, {'0' if ks == 0 else vq(a)}")
            k0 = len(p.ins)
            if n < 99:
                tg = [('F', N0 + n + 1)]
                if ps == 0 and (n + 1) % 10 == 0: tg.append(('XR', (n + 1) // 10))
                p.wait(lg=tg)
            if n in hooks0: self.put(hooks0[n])
            if look:
                if M % 20 == 0 and sync: self.group_sync((N0 + M) // 20)
                if len(p.ins) == k0: p("s_nop 0")
                self.wread(N0 + M, 0); self.wread(N0 + M, 1)
                if ps in self.o.get('fake', []) and fill and n >= frange[0] and not isinstance(fill[0][1], tuple): self.gap(fill, 1 if fill[0][0] < 2 or n % 2 else 2)
            elif fill and n >= frange[0]: self.gap(fill, 2)
            a = acc(accb, t, 1)
            p(f"{MF} {vq(a)}, {aq(s)}, {bop(ks, 1)}, {'0' if ks == 0 else vq(a)}")
            self.pos = N0 + n + 1
            self.stamp('n%d' % (N0 + n))
            did = 0
            for _ in range(pace(n)): did += self.tick()
            if n in hooks: self.put(hooks[n])
            if fill and n >= frange[0]:
                left = sum(c for c, _ in fill)
                gaps = sum(1 for k in range(n, frange[1]) if not pace(k)) + (min(D - 1, 99 - n) if last and frange[1] == 100 else 0)
                bud = 0 if did else 2
                if left > (3 if ps in self.o.get('fake', []) else 2) * gaps: bud += 2
                if ps == 2 and left > 4 * gaps: bud = -(-left // max(gaps, 1))
                self.gap(fill, bud)
        while fill: self.put([fill.popleft()[1]])
        self.pos = N0 + 100
    def gap(self, fill, bud):
        first = True
        while fill:
            c, x = fill[0]
            solo = isinstance(x, tuple)
            if c > bud or (solo and not first): break
            fill.popleft(); self.put([x]); bud -= c
            if solo: break
            if c: first = False
    def cvt20(self, src, dst):
        return [(1, f"v_cvt_pk_bf16_f32 v{dst+i}, v{src+2*i}, v{src+2*i+1}") for i in range(10)]
    def phiA_parts(self, x, e, m, name, isq):
        P = {}
        kb = e + 28
        P['cvt'] = self.cvt20(x, kb) + [(1, f"v_mov_b32 v{kb+10}, 0"), (1, f"v_mov_b32 v{kb+11}, 0")]
        P['mf'] = [(2, f"{MF} {vq(x+4*t)}, {aq(A_PHI + (t*3+u)*4)}, {vq(kb+4*u)}, {'0' if u == 0 else vq(x+4*t)}") for t in range(5) for u in range(3)]
        P['exp'] = [(2, f"v_exp_f32 v{e+i}, v{x+i}") for i in range(20)] + [(2, f"v_exp_f32 v{e+20+i}, -v{x+i}") for i in range(20)]
        def sums():
            L = [f"v_pk_add_f32 v[{m+2*h}:{m+2*h+1}], v[{e+20*h}:{e+20*h+1}], v[{e+20*h+2}:{e+20*h+3}]" for h in range(2)]
            L += [f"v_pk_add_f32 v[{m+2*h}:{m+2*h+1}], v[{m+2*h}:{m+2*h+1}], v[{e+20*h+2*i}:{e+20*h+2*i+1}]" for i in range(2, 10) for h in range(2)]
            L += [f"v_add_f32 v{m+2*h}, v{m+2*h}, v{m+2*h+1}" for h in range(2)]
            return L
        nm = name + self.sfx
        L = sums() + [f"v_max_f32 v{m+1}, v{m}, v{m+2}", f"v_cmp_ngt_f32 vcc, 0x5d800000, v{m+1}"]
        if not isq: L.append(f"v_rcp_f32 v{m+4}, v{m}")
        L += [f"v_rcp_f32 v{m+2}, v{m+2}", [f"s_cbranch_vccnz {nm}_slow", f"{nm}_back:"]]
        o = Prog()
        o(f"{nm}_slow:")
        o(f"v_max3_f32 v{m}, v{x}, v{x+1}, v{x+2}"); o(f"v_min3_f32 v{m+1}, v{x}, v{x+1}, v{x+2}")
        for i in range(3, 19, 2):
            o(f"v_max3_f32 v{m}, v{m}, v{x+i}, v{x+i+1}"); o(f"v_min3_f32 v{m+1}, v{m+1}, v{x+i}, v{x+i+1}")
        o(f"v_max_f32 v{m}, v{m}, v{x+19}"); o(f"v_min_f32 v{m+1}, v{m+1}, v{x+19}")
        for i in range(20): o(f"v_sub_f32 v{e+i}, v{x+i}, v{m}"); o(f"v_sub_f32 v{e+20+i}, v{m+1}, v{x+i}")
        for i in range(40): o(f"v_exp_f32 v{e+i}, v{e+i}")
        for y in sums(): o(y)
        if not isq: o(f"v_rcp_f32 v{m+4}, v{m}")
        o(f"v_rcp_f32 v{m+2}, v{m+2}"); o("s_nop 1"); o(f"s_branch {nm}_back")
        self.ool.append(o.finalize())
        if isq: L.append(f"v_mul_f32 v{m+2}, v{m+2}, v{m}")
        else: L += [f"v_pk_mul_f32 v[{e+2*i}:{e+2*i+1}], v[{e+2*i}:{e+2*i+1}], v[{m+4}:{m+5}] op_sel_hi:[1,0]" for i in range(10)]
        L += [f"v_pk_mul_f32 v[{e+20+2*i}:{e+21+2*i}], v[{e+20+2*i}:{e+21+2*i}], v[{m+2}:{m+3}] op_sel_hi:[1,0]" for i in range(10)]
        if self.o.get('whatif') == ('q' if isq else 'k'): L = [y for y in L if not (isinstance(y, str) and y.startswith('v_pk_add') and y.split()[1] == y.split()[2])]
        P['norm'] = [(1, y) for y in L]
        P['out'] = [(1, f"v_cvt_pk_bf16_f32 v{x+i}, v{e+2*i}, v{e+2*i+1}") for i in range(20)]
        return P
    def weave(self, mf, va, per=2):
        va = deque(va); L = []
        for x in mf:
            L.append(x); b = per
            while va and va[0][0] <= b: b -= va[0][0]; L.append(va.popleft())
        return L + list(va)
    def phiB(self, x, e, packed):
        L = []
        if packed: L += [(1, f"v_pk_mul_f32 v[{e+2*i}:{e+2*i+1}], v[{x+2*i}:{x+2*i+1}], s[{S_L2E}:{S_NL2E}] op_sel_hi:[1,0]") for i in range(10)]
        else: L += [(1, f"v_mul_f32 v{e+i}, s{S_L2E}, v{x+i}") for i in range(20)]
        L += [(2, f"v_exp_f32 v{e+i}, v{e+i} clamp") for i in range(20)]
        L += [(1, f"v_max_f32 v{x+i}, {EPS}, v{x+i}") for i in range(20)]
        if packed: L += [(1, f"v_pk_add_f32 v[{e+2*i}:{e+2*i+1}], v[{e+2*i}:{e+2*i+1}], v[{x+2*i}:{x+2*i+1}]") for i in range(10)]
        else: L += [(1, f"v_add_f32 v{e+i}, v{e+i}, v{x+i}") for i in range(20)]
        L += self.cvt20(e, x)
        return L
    def checked(self, name, loads, check, tag):
        nm = name + self.sfx
        iss = [(x, tag) if x.startswith('buffer') else x for x in loads]
        chk = [(0, lambda: self.p.wait(vm=[tag]))] + [(1, x) for x in check] + [(1, [f"s_cbranch_vccnz {nm}_retry", f"{nm}_ok:"])]
        o = Prog()
        o(f"{nm}_retry:"); o(f"s_mov_b32 s{S_SPIN}, 0")
        if self.o.get('cnt') == name: o("s_mov_b32 s95, 1")
        o(f"{nm}_loop:")
        if self.o.get('stamps'): o(f"s_add_u32 s95, s95, {dict(L_xc=1000000, L_h1=10000, L_h2=1000, L_pf=10000000, L_f0=1, L_f1=100, L_d0=0, L_d1=100000)[name]}")
        bk = self.o.get('backoff', {}).get(name, 0)
        if bk: o(f"s_sleep {bk}")
        for x in loads: o(x)
        o("s_waitcnt vmcnt(0)")
        for x in check: o(x)
        o(f"s_cbranch_vccz {nm}_ok")
        o(f"s_add_u32 s{S_SPIN}, s{S_SPIN}, 1"); o(f"s_cmp_lt_u32 s{S_SPIN}, {SPIN_MAX}"); o(f"s_cbranch_scc1 {nm}_loop")
        o(f"s_branch {nm}_ok")
        self.ool.append(o.finalize())
        return iss, chk
    def body(self):
        p = self.p; A = self.A; F = self.F; br = 0 if A else 1; o = self.o
        t = TMP
        K = S_KA
        kx, kw, kout, kws = K, K + 2, K + 8, K + 10
        kphi, kwo = (K + 4, K + 6) if A else (None, K + 4)
        p.raw(f"""
        s_andn2_b32 s{T0}, 1, s2
        s_lshl_b32 s{T0}, s{T0}, 5
        s_load_dwordx8 s[{K}:{K+7}], s[0:1], s{T0}
        s_load_dwordx2 s[{kout}:{kout+1}], s[0:1], 56
        s_load_dwordx2 s[{kws}:{kws+1}], s[0:1], 72
        """)
        if o.get('stamps'): p("s_memtime s[96:97]"); p("s_mov_b32 s95, 0")
        if o.get('stamps') or o.get('amp') or o.get('cntm'): p("s_memrealtime s[98:99]")
        if o.get('cntm'): p("s_mov_b32 s95, 0")
        p.raw(f"""
        s_getpc_b64 s[60:61]
        L_pc:
        s_bfe_u32 s{S_HG}, s2, 0x30003
        v_and_b32 v{V_LANE}, 63, v0
        v_lshrrev_b32 v{t}, 6, v0
        s_bitcmp0_b32 s2, 0
        s_cselect_b32 s{T1}, L_setupB-L_setupA, 0
        s_lshl_b32 s{T0}, s{S_HG}, 12
        v_lshlrev_b32 v{V_L128}, 7, v{V_LANE}
        v_readfirstlane_b32 s{S_W}, v{t}
        s_add_u32 s{T0}, s{T0}, s{T1}
        s_add_u32 s{T0}, s{T0}, L_setupA-L_pc
        s_add_u32 s60, s60, s{T0}
        s_addc_u32 s61, s61, 0
        v_lshl_add_u32 v{t+1}, v{t}, 10, v{V_L128}
        s_mov_b64 exec, 0xff
        """)
        p(f"global_load_dword v{V_DUMP}, v{t+1}, s[60:61]", 'cpf')
        p("s_mov_b64 exec, -1")
        ra, rbm, rdiv = o.get('rot', (10, 10, 4))
        p.raw(f"""
        s_and_b32 s{S_RB}, s2, 6
        s_lshl_b32 s{S_RB}, s{S_RB}, 1
        s_lshr_b32 s{T0}, s2, 6
        s_add_u32 s{S_RB}, s{S_RB}, s{T0}
        s_mul_i32 s{T0}, s{S_HG}, {ra}
        s_mul_i32 s{T1}, s{S_RB}, {rbm}
        s_add_u32 s{T0}, s{T0}, s{T1}
        s_lshr_b32 s{T0}, s{T0}, {rdiv.bit_length()-1}
        s_mul_i32 s{T1}, s{T0}, 6554
        s_lshr_b32 s{T1}, s{T1}, 16
        s_mul_i32 s{T1}, s{T1}, 10
        s_sub_u32 s{T3}, s{T0}, s{T1}
        s_lshl_b32 s{S_XU}, s{T3}, 7
        s_lshl_b32 s{T0}, s{S_RB}, 2
        s_add_u32 s{T0}, s{T0}, s{S_W}
        s_mul_i32 s{S_XBASE}, s{T0}, 40960
        s_mul_i32 s{S_LW}, s{S_W}, 5120
        s_mul_i32 s{S_LR}, s{S_W}, {RW}
        s_add_u32 s{S_LR}, s{S_LR}, {RBASE}
        v_lshrrev_b32 v{t}, 3, v{V_LANE}
        v_mul_u32_u24 v{t}, 1280, v{t}
        v_lshrrev_b32 v{t+1}, 4, v{V_LANE}
        v_xor_b32 v{t+1}, v{t+1}, v{V_LANE}
        v_and_b32 v{t+1}, 7, v{t+1}
        v_lshl_add_u32 v{V_XO}, v{t+1}, 4, v{t}
        v_xor_b32 v{t+2}, 64, v{V_XO}
        v_add_u32 v{V_XO+1}, {9216}, v{t+2}
        v_add_u32 v{V_XO+2}, {2*9216}, v{V_XO}
        v_add_u32 v{V_XO+3}, {3*9216}, v{t+2}
        s_lshr_b32 s{T0}, s{S_W}, 1
        s_add_u32 s{T0}, s{T0}, s{T3}
        s_and_b32 s{T1}, s{S_W}, 1
        s_mul_i32 s{T1}, s{T1}, {32*3840}
        s_mul_i32 s{T2}, s{S_HG}, 160
        s_add_u32 s{T1}, s{T1}, s{T2}
        s_mov_b32 s{SX+2}, 2621440
        s_mov_b32 s{SX+3}, 0x20000
        s_mov_b32 s{SW+2}, 2457600
        s_mov_b32 s{SW+3}, 0x20000
        """)
        def wrow(g):
            p.raw(f"""
            s_cmp_ge_u32 s{T0}, 10
            s_cselect_b32 s{T2}, 10, 0
            s_sub_u32 s{T0}, s{T0}, s{T2}
            s_mul_i32 s{T2}, s{T0}, {64*3840}
            s_add_u32 s{S_WROW+g}, s{T2}, s{T1}
            s_add_u32 s{T0}, s{T0}, 2
            """)
        wrow(0)
        RH = TMP + 10
        def woff(j):
            b = RH + 5 * j
            p.raw(f"""
            v_add_u32 v{t}, {64*j}, v{V_LANE}
            v_mul_u32_u24 v{b+4}, 6554, v{t}
            v_lshrrev_b32 v{b+4}, 16, v{b+4}
            v_mul_u32_u24 v{t+2}, 10, v{b+4}
            v_sub_u32 v{b+3}, v{t}, v{t+2}
            v_bfe_u32 v{b}, v{b+4}, 2, 2
            v_lshrrev_b32 v{b+1}, 4, v{b+4}
            v_and_b32 v{b+2}, 3, v{b+4}
            v_lshl_add_u32 v{t}, v{b}, 1, v{b+1}
            v_lshl_add_u32 v{t}, v{t}, 2, v{b+2}
            v_mul_u32_u24 v{t}, 3840, v{t}
            v_lshl_add_u32 v{V_WO+j}, v{b+3}, 4, v{t}
            """)
            if 0 < j < 4: p(f"v_subrev_u32 v{V_WO+j}, {1024*j}, v{V_WO+j}")
        if o.get('fakeinit'):
            p.raw(f"""
            s_mul_i32 s94, s{S_HG}, 102400
            s_add_u32 s94, s94, s{S_LW}
            v_lshlrev_b32 v{V_LIN}, 4, v{V_LANE}
            v_mov_b32 v226, v{V_LIN}
            v_add_u32 v227, 51200, v{V_LIN}
            """)
        woff(0); woff(1)
        if o.get('pre0'): p("s_memtime s[92:93]")
        p.raw(f"""
        s_waitcnt lgkmcnt(0)
        s_mov_b32 s{SX}, s{kx}
        s_mov_b32 s{SX+1}, s{kx+1}
        s_mov_b32 s{SW}, s{kw}
        s_mov_b32 s{SW+1}, s{kw+1}
        """)
        if o.get('late0'): p.raw(f"s_and_b32 s60, s2, 7\ns_cmp_lg_u32 s60, 0\ns_cbranch_scc1 L_nd0\ns_sleep {o['late0']}\nL_nd0:")
        if o.get('bdelay'): p.raw(f"s_bitcmp1_b32 s2, 0\ns_cbranch_scc1 L_nd\ns_sleep {o['bdelay']}\nL_nd:")
        self.stamp('p0')
        if o.get('pre0'): p(f"s_sub_u32 s{S_ST+self.nst}, s92, s96"); self.nst += 1
        self.put(self.dma_x(0))
        w0 = self.dma_w(0)
        self.put(w0[0:2]); woff(2); self.put(w0[2]); woff(3); self.put(w0[3]); woff(4); self.put(w0[4])
        self.stamp('p1')
        if o.get('prowait'):
            p.wait(vm=['cpf']); self.stamp('p2')
            p.wait(vm=[('X', 0)]); self.stamp('p3')
            p.wait(vm=[('W', 0)]); self.stamp('p4')
        p("s_bitcmp0_b32 s2, 0"); p("s_cbranch_scc1 L_setupB")
        p(".split")
        p(f"L_setup{self.sfx}:")
        p(f"s_load_dword s{S_NONCE}, s[{kws}:{kws+1}], {br*128}")
        if not A:
            p(f"s_load_dword s{S_UTAG}, s[{kws}:{kws+1}], 0")
            p(f"s_load_dwordx2 s[{K+6}:{K+7}], s[0:1], 24")
        for g in range(1, 5): wrow(g)
        if o.get('bal'):
            nw, nx, where = o['bal']
            L_ = [f"s_add_u32 s{T0}, s{S_HG}, s{S_RB}", f"s_bitcmp1_b32 s{T0}, 0", f"s_cbranch_scc1 L_bal{self.sfx}",
                  f"s_cmp_ge_u32 s{S_W}, 2", f"s_cbranch_scc1 L_balx{self.sfx}",
                  f"s_mul_i32 s{T0}, s{S_W}, {32*3840 - 156}", f"s_sub_u32 s{T0}, s{S_WROW+2}, s{T0}", f"v_mul_u32_u24 v{TMP+104}, 3840, v{V_LANE}",
                  f"s_mov_b32 exec_lo, {hex(((1 << nw) - 1) & 0xffffffff)}", f"s_mov_b32 exec_hi, {hex(((1 << nw) - 1) >> 32)}",
                  f"buffer_load_dword v{V_DUMP}, v{TMP+104}, {srd(SW)}, s{T0} offen offset:1280", f"s_branch L_bal{self.sfx}",
                  f"L_balx{self.sfx}:",
                  f"s_mul_i32 s{T0}, s{S_RB}, {128*1280}", f"s_bfe_u32 s{T1}, s{S_HG}, 0x10002", f"s_lshl_b32 s{T1}, s{T1}, 1", f"s_add_u32 s{T1}, s{T1}, s{S_W}", f"s_sub_u32 s{T1}, s{T1}, 2",
                  f"s_mul_i32 s{T1}, s{T1}, {32*1280}", f"s_add_u32 s{T0}, s{T0}, s{T1}", f"s_lshl_b32 s{T1}, s{T3}, 7", f"s_add_u32 s{T0}, s{T0}, s{T1}", f"v_mul_u32_u24 v{TMP+104}, 1280, v{V_LANE}",
                  f"s_mov_b32 exec_lo, {hex((1 << nx) - 1)}", "s_mov_b32 exec_hi, 0",
                  f"buffer_load_dword v{V_DUMP}, v{TMP+104}, {srd(SX)}, s{T0} offen offset:512",
                  f"L_bal{self.sfx}:", "s_mov_b64 exec, -1"]
            if where == 0: p.untracked(L_)
            else:
                self.put(self.dma_x(1)); p.untracked(L_)
        if not (o.get('bal') and o['bal'][2]): self.q(0, self.dma_x(1))
        p.raw(f"""
        s_mov_b32 s{SWS}, s{kws}
        s_mov_b32 s{SWS+1}, s{kws+1}
        s_mov_b32 s{SWS+2}, {WS_SIZE}
        s_mov_b32 s{SWS+3}, 0x20000
        s_mov_b32 s{SOUT}, s{kout}
        s_mov_b32 s{SOUT+1}, s{kout+1}
        s_mov_b32 s{SOUT+2}, 5242880
        s_mov_b32 s{SOUT+3}, 0x20000
        s_lshl_b32 s{S_HEAD}, s{S_HG}, 2
        s_add_u32 s{S_HEAD}, s{S_HEAD}, s{S_W}
        v_lshlrev_b32 v{V_LIN}, 4, v{V_LANE}
        """)
        if A:
            p.raw(f"""
            s_mov_b32 s{SPHI}, s{kphi}
            s_mov_b32 s{SPHI+1}, s{kphi+1}
            s_mov_b32 s{SPHI+2}, 25600
            s_mov_b32 s{SPHI+3}, 0x20000
            """)
            self.q(0, [[f"s_mul_i32 s{S_WS}, s{S_HEAD}, 800",
                        (f"buffer_load_dwordx4 {vq(TMP+96)}, v{V_LIN}, {srd(SPHI)}, s{S_WS} offen", 'wphi')]])
        self.q(0, self.dma_w(1)); self.q(0, self.dma_x(2))
        G_, I_, R_, C_ = t, t + 1, t + 2, t + 3
        S = []
        def raw(txt):
            for l in txt.split('\n'):
                if l.strip(): S.append((1, l.strip()))
        raw(f"""
        v_lshrrev_b32 v{G_}, 4, v{V_LANE}
        v_and_b32 v{I_}, 15, v{V_LANE}
        v_bfe_u32 v{R_}, v{V_LANE}, 2, 2
        v_and_b32 v{C_}, 3, v{V_LANE}
        v_lshrrev_b32 v{t+4}, 1, v{I_}
        v_xor_b32 v{t+4}, v{t+4}, v{G_}
        v_lshlrev_b32 v{t+5}, 7, v{I_}
        v_lshl_add_u32 v{t+4}, v{t+4}, 4, v{t+5}
        v_add_u32 v{V_XR}, s{S_LR}, v{t+4}
        v_xor_b32 v{t+4}, 64, v{t+4}
        v_add_u32 v{V_XR+1}, s{S_LR}, v{t+4}
        v_lshrrev_b32 v{t+4}, 2, v{V_LANE}
        v_mul_u32_u24 v{t+5}, 160, v{t+4}
        v_mul_u32_u24 v{t+6}, 40, v{C_}
        v_add_u32 v{V_WT}, v{t+5}, v{t+6}
        v_add_u32 v{V_WT+1}, 51200, v{V_WT}
        v_mul_u32_u24 v{t+5}, 120, v{I_}
        v_mul_u32_u24 v{t+6}, 3840, v{G_}
        v_add3_u32 v{V_PW}, v{t+5}, v{t+6}, s{S_LR}
        v_mul_u32_u24 v{t+6}, 40, v{G_}
        v_mul_u32_u24 v{t+7}, {OUTS}, v{I_}
        s_mul_i32 s{T2}, s{S_W}, {32*OUTS}
        s_add_u32 s{T2}, s{T2}, {OUTL}
        v_add3_u32 v{V_OW}, v{t+7}, v{t+6}, s{T2}
        v_and_b32 v{t+5}, 7, v{t+4}
        v_lshrrev_b32 v{t+6}, 5, v{V_LANE}
        v_lshlrev_b32 v{t+6}, 1, v{t+6}
        v_lshl_add_u32 v{t+5}, v{t+5}, 2, v{t+6}
        v_mul_u32_u24 v{t+5}, 120, v{t+5}
        s_mul_i32 s{T0}, s{S_W}, 3840
        s_add_u32 s{T0}, s{T0}, {RBASE}
        v_add_u32 v{V_KA1}, s{T0}, v{t+5}
        v_lshl_add_u32 v{V_KB}, v{C_}, 3, v{V_KA1}
        s_mov_b32 s{S_L2E}, 0x3fb8aa3b
        s_mov_b32 s{S_NL2E}, 0xbfb8aa3b
        s_mov_b32 s{S_PERM}, 0x07060302
        s_and_b32 s{T3}, s{S_HG}, 1
        """)
        for j in range(5):
            b = RH + 5 * j
            if j < 3: raw(f"""
            v_mul_u32_u24 v{t+5}, {OUTS}, v{b+4}
            v_lshl_add_u32 v{t+5}, v{b+3}, 4, v{t+5}
            v_add_u32 v{V_ORD+j}, s{T2}, v{t+5}
            v_mul_u32_u24 v{t+5}, 2560, v{b+4}
            v_lshl_add_u32 v{V_OG+j}, v{b+3}, 4, v{t+5}
            """)
            if j == 2: raw(f"""
            v_lshrrev_b32 v{t+5}, 5, v{V_LANE}
            v_lshl_or_b32 v{V_OG+2}, v{t+5}, 30, v{V_OG+2}
            """)
        raw(f"""
        v_mov_b32 v{t+5}, 2304
        v_cmp_gt_u32 vcc, 16, v{V_LANE}
        v_mov_b32 v{t+6}, 1024
        v_cndmask_b32 v{t+5}, v{t+5}, v{t+6}, vcc
        v_add_u32 v{V_OO+1}, v{t+5}, v{V_LIN}
        v_mov_b32 v{V_OO}, v{V_LIN}
        v_add_u32 v{V_OO+2}, 40960, v{V_LIN}
        v_add_u32 v{V_OO+3}, 40960, v{V_OO+1}
        v_lshrrev_b32 v{t+4}, 5, v{V_LANE}
        v_mul_u32_u24 v{t+4}, {40960-512}, v{t+4}
        v_add_u32 v{t+5}, 3328, v{V_LIN}
        v_add_u32 v{V_OO+4}, v{t+4}, v{t+5}
        v_add_u32 v{V_LINH}, 51200, v{V_LIN}
        v_min_u32 v{V_PF}, 39, v{V_LANE}
        v_lshlrev_b32 v{V_PF}, 3, v{V_PF}
        v_and_b32 v{t+4}, 1, v{RH+4}
        v_mul_u32_u24 v{t+4}, 2560, v{t+4}
        v_lshrrev_b32 v{t+5}, 1, v{RH+4}
        v_mul_u32_u24 v{t+5}, 40960, v{t+5}
        v_lshlrev_b32 v{t+6}, 7, v{RH+3}
        v_add3_u32 v{V_L128}, v{t+4}, v{t+5}, v{t+6}
        """)
        raw(f"""
        s_lshl_b32 s{T0}, s{T3}, 1
        s_xor_b32 s{T0}, s{T0}, s{S_W}
        s_mul_i32 s{T0}, s{T0}, 5120
        s_mul_i32 s{T2}, s{S_HG}, 102400
        s_add_u32 s{T2}, s{T2}, {WS_PK + br*819200}
        s_add_u32 s{T0}, s{T0}, s{T2}
        s_lshr_b32 s{S_SPIN}, s{S_HG}, 1
        s_add_u32 s{T1}, s{S_SPIN}, s{S_W}
        s_and_b32 s{T1}, s{T1}, 3
        s_add_u32 s{T1}, s{T1}, 16
        s_mul_i32 s{T1}, s{T1}, 5120
        s_add_u32 s{S_WOROW+4}, s{T1}, s{T2}
        s_lshr_b32 s{S_PFL}, s{S_HG}, 2
        s_lshl_b32 s{S_PFL}, s{S_PFL}, 9
        s_add_u32 s{S_PFL}, s{S_PFL}, {WS_PF + br*1024}
        s_mul_i32 s{T2}, s{S_HG}, 160
        s_lshl_b32 s{S_OUT}, s{S_XBASE}, 1
        s_add_u32 s{S_OUT}, s{S_OUT}, s{T2}
        s_add_u32 s{S_OUT}, s{S_OUT}, {br*1280}
        s_lshl_b32 s{S_OB}, s{S_XBASE}, 1
        s_add_u32 s{S_OB}, s{S_OB}, {br*1280}
        """)
        for g in range(4):
            raw(f"""
            s_add_u32 s{T1}, s{S_SPIN}, {g}
            s_and_b32 s{T1}, s{T1}, 3
            s_mul_i32 s{T2}, s{T1}, 20480
            s_add_u32 s{S_WOROW+g}, s{T2}, s{T0}
            s_lshl_b32 s{T1}, s{T1}, 1
            s_add_u32 s{T1}, s{T1}, s{T3}
            s_mul_i32 s{T2}, s{T1}, 5120
            s_add_u32 s{S_OP+2*g}, s{T2}, s{S_OB}
            s_xor_b32 s{T1}, s{T1}, 1
            s_mul_i32 s{T2}, s{T1}, 5120
            s_add_u32 s{S_OP+2*g+1}, s{T2}, s{S_OB}
            """)
        SH = 8 if A else 7
        raw(f"""
        s_lshl_b32 s{T0}, s{S_RB}, 2
        s_add_u32 s{T0}, s{T0}, s{S_W}
        s_lshl_b32 s{S_FLAG}, s{T0}, 7
        s_add_u32 s{S_FLAG}, s{S_FLAG}, {WS_FLAG + br*64*128}
        s_lshl_b32 s{T0}, s{S_HEAD}, 16
        s_add_u32 s{T0}, s{T0}, {WS_P1 + br*32*65536}
        s_lshl_b32 s{T1}, s{S_RB}, 12
        s_add_u32 s{S_P1ST}, s{T0}, s{T1}
        s_min_u32 s{T1}, s{S_RB}, 14
        s_lshl_b32 s{T1}, s{T1}, {SH}
        s_add_u32 s{S_P1LD}, s{T0}, s{T1}
        s_lshl_b32 s{T0}, s{S_HEAD}, 12
        s_add_u32 s{S_P2LD}, s{T0}, {WS_P2 + br*32*4096}
        s_add_u32 s{S_P2ST}, s{S_P2LD}, s{T1}
        s_lshr_b32 s{T1}, s{S_RB}, {4 - o.get('p2log', 2)}
        s_lshl_b32 s{T1}, s{T1}, 18
        s_add_u32 s{S_P2LD}, s{S_P2LD}, s{T1}
        v_mul_u32_u24 v{t+4}, {F if A else 16}, v{G_}
        v_add_lshl_u32 v{V_P1ST}, v{t+4}, v{I_}, 4
        v_mul_u32_u24 v{t+4}, {F if A else 4}, v{G_}
        v_add_lshl_u32 v{t+5}, v{t+4}, v{I_}, 4
        v_lshrrev_b32 v{t+4}, {3 if A else 2}, v{I_}
        v_lshl_or_b32 v{V_P1M}, v{t+4}, 28, v{t+5}
        v_lshrrev_b32 v{t+4}, 1, v{G_}
        v_lshl_or_b32 v{V_P1M+1}, v{t+4}, 30, v{V_P1ST}
        v_lshl_or_b32 v{V_P1M+2}, v{t+4}, 30, v{V_P1M}
        v_cmp_gt_u32 vcc, 4, v{I_}
        v_cndmask_b32 v{V_KEEP}, 0, -1, vcc
        v_mov_b32 v{t+4}, 0x3f803f80
        v_cmp_eq_u32 vcc, 4, v{I_}
        v_cndmask_b32 v{V_ONE}, 0, v{t+4}, vcc
        v_and_b32 v{t+4}, 7, v{V_LANE}
        v_lshlrev_b32 v{V_F8}, 2, v{t+4}
        s_lshl_b32 s{T0}, s{S_HG}, 2
        v_min_u32 v{V_FOWN}, 1, v{V_LANE}
        v_lshlrev_b32 v{V_FOWN}, 30, v{V_FOWN}
        v_or_b32 v{V_FOWN}, s{T0}, v{V_FOWN}
        v_lshlrev_b32 v{V_ZA}, 3, v0
        v_add_u32 v{V_ZA}, {RBASE+7680}, v{V_ZA}
        """)
        if A:
            raw(f"""
            v_lshlrev_b32 v{t+5}, 12, v{G_}
            v_lshl_add_u32 v{V_P1LD}, v{I_}, 4, v{t+5}
            v_lshlrev_b32 v{V_P2ST}, 2, v{V_LANE}
            """)
        else:
            raw(f"""
            v_lshrrev_b32 v{t+5}, 3, v{V_LANE}
            v_lshlrev_b32 v{t+5}, 12, v{t+5}
            v_lshl_add_u32 v{V_P1LD}, v{t+4}, 4, v{t+5}
            v_lshl_add_u32 v{V_P2ST}, v{G_}, 5, v{V_F8}
            """)
        RS = 80 if A else 48
        HS = 24 * RS
        NQ = 240 if A else 120
        NI = 4 if A else 2
        raw(f"s_mul_i32 s{T0}, s{S_W}, {HS}\ns_add_u32 s{T0}, s{T0}, {RBASE}")
        u = t + 4
        for ii in range(NI):
            raw(f"v_add_u32 v{u}, {64*ii}, v{V_LANE}")
            if ii == NI - 1:
                raw(f"""v_subrev_u32 v{u+1}, 64, v{u}
                v_cmp_gt_u32 vcc, {NQ}, v{u}
                v_cndmask_b32 v{u}, v{u+1}, v{u}, vcc
                v_lshlrev_b32 v{V_GAL}, 4, v{u}""")
            if A:
                raw(f"""
                v_lshrrev_b32 v{u+1}, 4, v{u}
                v_and_b32 v{u+2}, 3, v{u}
                v_lshl_add_u32 v{u+1}, v{u+1}, 2, v{u+2}
                v_bfe_u32 v{u+2}, v{u}, 2, 2
                v_mul_u32_u24 v{u+3}, 6554, v{u+1}
                v_lshrrev_b32 v{u+3}, 16, v{u+3}
                v_mul_u32_u24 v{u+4}, 10, v{u+3}
                """)
            else:
                raw(f"""
                v_lshrrev_b32 v{u+1}, 3, v{u}
                v_and_b32 v{u+2}, 1, v{u}
                v_lshl_add_u32 v{u+1}, v{u+1}, 1, v{u+2}
                v_bfe_u32 v{u+2}, v{u}, 1, 2
                v_cmp_gt_u32 vcc, 24, v{u+1}
                v_lshrrev_b32 v{u+3}, 2, v{u+1}
                v_subrev_u32 v{u+4}, 24, v{u+1}
                v_cndmask_b32 v{u+3}, v{u+4}, v{u+3}, vcc
                v_and_b32 v{u+1}, 3, v{u+1}
                v_cndmask_b32 v{u+1}, 4, v{u+1}, vcc
                v_mov_b32 v{u+4}, 0
                """)
            raw(f"""
            v_sub_u32 v{u+1}, v{u+1}, v{u+4}
            v_lshl_add_u32 v{u+3}, v{u+3}, 2, v{u+2}
            v_mul_u32_u24 v{u+3}, {RS}, v{u+3}
            v_lshl_add_u32 v{u+3}, v{u+1}, 3, v{u+3}
            v_add_u32 v{V_LA+ii}, s{T0}, v{u+3}
            """)
        raw(f"""
        v_cmp_eq_u32 vcc, v{G_}, v{R_}
        v_mul_u32_u24 v{u}, {HS}, v{G_}
        v_mul_u32_u24 v{u+1}, {RS}, v{C_}
        v_add_u32 v{u}, v{u}, v{u+1}
        v_add_u32 v{u}, {RBASE}, v{u}
        v_mov_b32 v{u+1}, {RBASE+7680}
        v_cndmask_b32 v{V_FR2}, v{u+1}, v{u}, vcc
        """)
        if A:
            raw(f"""
            v_mov_b32 v{t+36}, 0
            v_mov_b32 v{t+37}, 0
            v_mov_b32 v{t+38}, 0
            v_mov_b32 v{t+39}, 0
            v_add_u32 v{TMP+100}, s{S_LR}, v{V_LIN}
            ds_write_b128 v{TMP+100}, {vq(t+36)} offset:13312
            v_mul_u32_u24 v{t+4}, {RW}, v{G_}
            v_mul_u32_u24 v{t+5}, 40, v{R_}
            v_add_u32 v{t+4}, v{t+4}, v{t+5}
            v_add_u32 v{t+4}, {RBASE+12288}, v{t+4}
            s_add_u32 s{T0}, s{S_LR}, 13312
            v_mov_b32 v{t+5}, s{T0}
            v_cmp_eq_u32 vcc, v{C_}, v{G_}
            v_cndmask_b32 v{V_FR}, v{t+5}, v{t+4}, vcc
            """)
            for tt in range(5):
                a = A_PHI + (tt * 3 + 2) * 4
                raw(f"v_accvgpr_write_b32 a{a+2}, 0\nv_accvgpr_write_b32 a{a+3}, 0")
        US, UA, UD = TMP + 40, TMP + 45, TMP + 80
        nA = o.get('nA', 0); prod = (not A) or nA > 0
        S_UOK = 92
        if prod:
            if o.get('umap', 1) == 0: umap = f"""s_add_u32 s{T1}, s{S_HG}, s{S_RB}
            s_and_b32 s{T1}, s{T1}, 1
            s_lshl_b32 s{T0}, s{S_W}, 1
            s_add_u32 s{T0}, s{T0}, s{T1}
            s_lshl_b32 s{T0}, s{T0}, 3
            s_add_u32 s{T0}, s{T0}, s{S_HG}
            s_lshl_b32 s{T0}, s{T0}, 3
            s_lshr_b32 s{T1}, s{S_RB}, 1
            s_add_u32 s{T0}, s{T0}, s{T1}
            s_add_u32 s{T0}, s{T0}, {0 if A else nA}
            s_cmp_lt_u32 s{T0}, {nA if A else 320}
            s_cselect_b32 s{S_UOK}, 1, 0"""
            elif o.get('umap', 1) == 1:
                umap = f"""s_lshr_b32 s{T1}, s{S_RB}, 2
                s_mul_i32 s{T0}, s{T1}, 3
                s_add_u32 s{T0}, s{T0}, s{S_W}
                s_sub_u32 s{T0}, s{T0}, 2
                s_cmp_eq_u32 s{T1}, 0
                s_cselect_b32 s{T0}, 0, s{T0}
                s_cselect_b32 s{T1}, 1, 3
                s_cmp_lt_u32 s{S_W}, s{T1}
                s_cselect_b32 s{S_UOK}, 1, 0
                s_lshl_b32 s{T0}, s{T0}, 5
                s_lshr_b32 s{T1}, s2, 3
                s_add_u32 s{T0}, s{T0}, s{T1}"""
            else:
                umap = f"""s_lshr_b32 s{T1}, s{S_RB}, 2
                s_sub_u32 s{T1}, s{T1}, 1
                s_add_u32 s{T2}, s{S_HG}, s{S_RB}
                s_and_b32 s{T2}, s{T2}, 1
                s_lshl_b32 s{T0}, s{S_W}, 1
                s_add_u32 s{T0}, s{T0}, s{T2}
                s_lshl_b32 s{T0}, s{T0}, 4
                s_lshr_b32 s{T2}, s2, 4
                s_add_u32 s{T0}, s{T0}, s{T2}
                s_mul_i32 s{T0}, s{T0}, 3
                s_add_u32 s{T0}, s{T0}, s{T1}
                s_cmp_lt_u32 s{T0}, 320
                s_cselect_b32 s{S_UOK}, 1, 0
                s_cmp_lt_u32 s{S_RB}, 4
                s_cselect_b32 s{S_UOK}, 0, s{S_UOK}"""
            iS0 = len(S)
            S.append((1, [x.strip() for x in f"""
            {umap}
            s_waitcnt lgkmcnt(0)
            s_cmp_lt_u32 s{T0}, 160
            s_cselect_b32 s{SWO}, s{K+6}, s{kwo}
            s_cselect_b32 s{SWO+1}, s{K+7}, s{kwo+1}
            s_cselect_b32 s{S_UTAG}, s{S_NONCE if A else S_UTAG}, s{S_NONCE}
            s_cselect_b32 s{T1}, 0, 160
            s_cselect_b32 s{S_UDST}, 0, 819200
            s_cselect_b32 s{S_UFL}, 0, 1024
            s_mov_b32 s{SWO+2}, 819200
            s_mov_b32 s{SWO+3}, 0x20000
            s_add_u32 s{S_UTAG}, s{S_UTAG}, 0x9e3779b1
            s_sub_u32 s{T0}, s{T0}, s{T1}
            s_and_b32 s{T1}, s{T0}, 1
            s_mul_i32 s{S_USRC}, s{T1}, 640
            s_mul_i32 s{T2}, s{T1}, 409600
            s_add_u32 s{S_UDST}, s{S_UDST}, s{T2}
            s_lshl_b32 s{T2}, s{T1}, 9
            s_add_u32 s{S_UFL}, s{S_UFL}, s{T2}
            s_lshr_b32 s{T1}, s{T0}, 1
            s_lshl_b32 s{T2}, s{T1}, 2
            s_add_u32 s{S_UFL}, s{S_UFL}, s{T2}
            s_add_u32 s{S_UFL}, s{S_UFL}, {WS_PF}
            s_and_b32 s{T1}, s{T1}, 3
            s_mul_i32 s{T2}, s{T1}, {20*1280}
            s_add_u32 s{S_USRC}, s{S_USRC}, s{T2}
            s_lshl_b32 s{T2}, s{T1}, 8
            s_add_u32 s{S_UDST}, s{S_UDST}, s{T2}
            s_lshr_b32 s{T1}, s{T0}, 3
            s_mul_i32 s{T2}, s{T1}, 5120
            s_add_u32 s{S_UDST}, s{S_UDST}, s{T2}
            s_add_u32 s{S_UDST}, s{S_UDST}, {WS_PK}
            s_lshr_b32 s{T2}, s{T1}, 1
            s_mul_i32 s{T2}, s{T2}, 80
            s_and_b32 s{T3}, s{T1}, 1
            s_lshl_b32 s{T3}, s{T3}, 3
            s_add_u32 s{T2}, s{T2}, s{T3}
            s_mul_i32 s{T3}, s{T1}, 160
            s_sub_u32 s{T3}, s{T3}, {16*160 - 16}
            s_cmp_ge_u32 s{T1}, 16
            s_cselect_b32 s{T2}, s{T3}, s{T2}
            s_cselect_b32 s{T3}, 1, 0
            s_mul_i32 s{T2}, s{T2}, 1280
            s_add_u32 s{S_USRC}, s{S_USRC}, s{T2}
            s_mul_i32 s{T1}, s{T3}, {76*1280}
            s_add_u32 s{T2}, s{S_LW}, {RING + 4*SLOT}
            """.split('\n') if x.strip()]))
            for j in range(5):
                raw(f"""
                v_lshrrev_b32 v{t+4}, 2, v{RH+5*j+4}
                v_mul_u32_u24 v{t+5}, 640, v{t+4}
                v_lshrrev_b32 v{t+4}, 2, v{t+4}
                v_mul_u32_u24 v{t+4}, s{T1}, v{t+4}
                v_add3_u32 v{US+j}, v{t+4}, v{t+5}, v{V_LIN}
                """)
            raw(f"v_add_u32 v{US+4}, 4096, v{US+4}")
            iS1 = len(S)
            raw(f"""
            v_mul_u32_u24 v{t+7}, 640, v{R_}
            v_mul_u32_u24 v{t+8}, 40, v{C_}
            v_add3_u32 v{t+7}, v{t+7}, v{t+8}, s{T2}
            """)
            for j in range(5):
                raw(f"""
                v_add_u32 v{t+4}, {4*j}, v{G_}
                v_mul_u32_u24 v{t+5}, 13108, v{t+4}
                v_lshrrev_b32 v{t+5}, 16, v{t+5}
                v_mul_u32_u24 v{t+6}, 120, v{t+5}
                v_lshl_add_u32 v{t+6}, v{t+4}, 3, v{t+6}
                v_add_u32 v{t+6}, v{t+6}, v{t+7}
                v_and_b32 v{t+8}, s{T3}, v{t+5}
                v_mul_u32_u24 v{t+8}, 2560, v{t+8}
                v_add_u32 v{UA+2*j}, v{t+6}, v{t+8}
                v_sub_u32 v{t+6}, v{t+6}, v{t+8}
                v_add_u32 v{UA+2*j+1}, 2560, v{t+6}
                v_mul_u32_u24 v{t+5}, {102400 - 5120}, v{t+5}
                v_lshl_add_u32 v{t+5}, v{t+4}, 10, v{t+5}
                v_lshl_add_u32 v{UD+j}, v{I_}, 4, v{t+5}
                """)
            mark = {}
            def cond(name, lines):
                p.untracked([f"s_cmp_eq_u32 s{S_UOK}, 0", f"s_cbranch_scc1 {name}{self.sfx}"] + lines + [f"{name}{self.sfx}:"])
                mark[name] = p.nvm
            L = [f"s_add_u32 m0, s{S_LW}, {RING + 4*SLOT}"]
            for j in range(5):
                off = f"offset:{j*1024} " if 0 < j < 4 else ""
                L.append(f"buffer_load_dwordx4 v{US+j}, {srd(SWO)}, s{S_USRC} offen {off}lds")
                if j == 3: L.append(f"s_add_u32 m0, s{S_LW}, {RING + 4*SLOT + 4096}")
            un = [[lambda L=L: cond("L_u1", L)]]
            if o.get('uissue', 0) == 0: self.q(10**6 + 77, un)
            if o.get('uissue', 0) == -1: S = S[:4] + S[iS0:iS1] + [(0, un[0])] + S[iS1:] + S[4:iS0]
        self.run(S, every=o.get('proev', 60))
        self.stamp('p5')
        if o.get('uissue', 0) == 0: self.release(77)
        def urd():
            assert not any(x.tag == ('W', 4) for x in p.ins)
            cond("L_u2r", [f"s_waitcnt vmcnt({p.nvm - mark['L_u1']}) lgkmcnt(0)"] +
                [f"ds_read_b64_tr_b16 {vq(TMP+60+2*k, 2)}, v{UA+k}" for k in range(10)] + ["s_waitcnt lgkmcnt(0)"])
        def ust(j): cond("L_u2" + "abcd "[j].strip(), [f"buffer_store_dwordx4 {vq(TMP+60+4*j)}, v{UD+j}, {srd(SWS)}, s{S_UDST} offen sc1"])
        if o.get('hops', 1):
            p("s_mov_b64 exec, 0")
            for w_ in range(3): p(f"s_cmp_eq_u32 s{S_W}, {w_}"); p(f"s_cbranch_scc1 L_hop{w_}{self.sfx}")
            p(f"s_branch L_hop3{self.sfx}")
            p(f"L_hopret{self.sfx}:")
            p("s_mov_b64 exec, -1")
        if prod and o.get('upos', (0,))[0] < 0:
            while len(self.dq) > -o['upos'][0] - 1 and self.tick(): pass
            urd()
            for j in range(5): ust(j)
        while len(self.dq) > o.get('prokeep', 0) and self.tick(): pass
        p.raw(f"""
        s_getreg_b32 s{T0}, hwreg(HW_REG_XCC_ID, 0, 4)
        s_waitcnt lgkmcnt(0)
        s_add_u32 s{S_NONCE}, s{S_NONCE}, 0x9e3779b1
        s_lshl_b32 s{T0}, s{T0}, 28
        s_xor_b32 s{S_XCCV}, s{T0}, s{S_NONCE}
        v_mov_b32 v{V_NONCE}, s{S_NONCE}
        v_and_b32 v{V_VW}, 1, v{V_LANE}
        v_lshlrev_b32 v{V_VW}, 4, v{V_VW}
        v_lshrrev_b32 v{V_VW}, v{V_VW}, v{V_NONCE}
        v_mov_b32 v{V_KA0}, s{S_XCCV}
        s_add_u32 s{S_XA}, s{S_FLAG}, {WS_XCC - WS_FLAG}
        """)
        xst = [(f"buffer_store_dword v{V_KA0}, v{V_FOWN}, {srd(SWS)}, s{S_XA} offen sc1", 'xcc')]
        x1, x2, x3 = o.get('xpos', (-1, 58, 88))
        if x1 < 0: self.put(xst)
        self.stamp()
        p(f"s_branch L_main{self.sfx}")
        p(".p2align 12")
        p(f"L_main{self.sfx}:")
        xb = lambda ks, rt: aq((ks * 2 + rt) * 4)
        xbp = lambda ps: (lambda ks, rt: xb(4 * (4 - ks // 4) + ks % 4, rt)) if ps in o.get('rev', [1, 2]) else xb
        for pu in range(0, 7):
            if (pu + 3) % 2 == 0: self.q(0, self.dma_w((pu + 3) // 2))
            self.q(10 * pu, self.dma_x(pu + 3))
            if prod and o.get('uissue', 0) == pu + 1: self.q(0, un)
        for G in range(5, 10): self.q(10**6 + 1 if G % 5 >= 3 else 20 * (G - 3) - 4, self.dma_w(G))
        for G in range(10, 13): self.q(20 * (G - 3) - 4, self.dma_w(G))
        for G in range(13, 20): self.q(10**6 + G, self.dma_w(G))
        hooks = {}
        for pu in range(1, 10):
            hooks[10 * pu - 5] = [lambda pu=pu: self.xread(pu, 0), lambda pu=pu: self.xread(pu, 1)]
            hooks[10 * pu - 4] = [lambda pu=pu: self.xread(pu, 2), lambda pu=pu: self.xread(pu, 3)]
        if A:
            rd = [(tt, u_, hf) for tt in range(5) for u_ in range(3) for hf in range(2 if u_ < 2 else 1)]
            w = TMP + 96; u2 = TMP + 102
            sc = [lambda: p.wait(vm=['wphi'])]
            for j in range(4):
                sc += [f"v_lshlrev_b32 v{u2}, 16, v{w+j}", f"v_and_b32 v{u2+1}, 0xffff0000, v{w+j}", f"v_mul_f32 v{u2}, s{S_L2E}, v{u2}",
                       f"v_mul_f32 v{u2+1}, s{S_L2E}, v{u2+1}", f"v_cvt_pk_bf16_f32 v{w+j}, v{u2}, v{u2+1}"]
            hooks[8] = sc + [(f"ds_write_b128 v{TMP+100}, {vq(w)} offset:12288", 'phw')]
            hooks[14] = [lambda: p.wait(lg=['phw'])]
            slots = [n for n in range(21, 90) if n % 10 in (0, 1, 2, 3)][:25]
            for k, n in enumerate(slots):
                hooks[n] = [(f"ds_read_b64_tr_b16 a[{A_PHI + (tt*3+u_)*4 + 2*hf}:{A_PHI + (tt*3+u_)*4 + 2*hf + 1}], v{V_FR} offset:{(8*u_+4*hf)*40 + 8*tt}", 'phi')
                            for tt, u_, hf in rd[k:k+1]]
        late3 = {}
        if prod:
            UR = TMP + 60
            u1, u2_, u3 = o.get('upos', (18, 18, 62))
            if u1 >= 0: hooks.setdefault(u1, []).append(urd)
            for j in range(5):
                uj = u2_ + o.get('ustep', 0) * j
                if uj >= 0: (hooks if uj < 100 else late3).setdefault(uj % 100, []).append(lambda j=j: ust(j))
            (hooks if u3 < 100 else late3).setdefault(u3 % 100, []).append(lambda: cond("L_u3", [f"s_waitcnt vmcnt({p.nvm - mark['L_u2']})", f"v_mov_b32 v{V_DUMP}, s{S_UTAG}", "s_mov_b64 exec, 1",
                         f"buffer_store_dword v{V_DUMP}, v{V_LIN}, {srd(SWS)}, s{S_UFL} offen sc1", "s_mov_b64 exec, -1"]))
        KBV = [V_KB, 17, 18, 19]; KAV = [V_KA1, 20, 21, 22]
        if o.get('kvown', 0):
            for kk in (1, 2, 3, 0):
                hooks.setdefault(89 + 2 * ((kk + 3) % 4), []).extend([f"s_add_u32 s{T2}, s{S_W}, {kk}", f"s_and_b32 s{T2}, s{T2}, 3", f"s_mul_i32 s{T2}, s{T2}, {RW}"])
                hooks.setdefault(90 + 2 * ((kk + 3) % 4), []).extend([f"v_add_u32 v{KBV[kk]}, s{T2}, v{V_KB}", f"v_add_u32 v{KAV[kk]}, s{T2}, v{V_KA1}"])
        XV = TMP + 92
        iss, chk = self.checked("L_xc", [f"buffer_load_dword v{XV}, v{V_F8}, {srd(SWS)}, s{S_XA} offen sc1"],
                                [f"v_xor_b32 v{XV+1}, s{S_NONCE}, v{XV}", f"v_lshlrev_b32 v{XV+1}, 4, v{XV+1}", f"v_cmp_ne_u32 vcc, 0, v{XV+1}"], 'xl')
        xv, xq = {}, {}
        def xh(pos, L): [hooks, xv, xq][pos // 100].setdefault(pos % 100, []).extend(L)
        if x1 >= 0: xh(x1, xst)
        xh(x2, iss)
        c_ = [x for _, x in chk]
        xh(x3, c_[:3]); xh(x3 + 1, c_[3:4]); xh(x3 + 2, c_[4:] + [f"v_cmp_ne_u32 vcc, s{S_XCCV}, v{XV}"])
        xh(x3 + 3, [f"s_mov_b32 s{S_FAST}, {1 if o.get('nofast') else 'vcc_lo'}", f"s_add_u32 s{T0}, s{SWS}, {WS_O}", f"s_addc_u32 s{T1}, s{SWS+1}, 0"])
        xh(x3 + 4, [f"s_cmp_eq_u32 s{S_FAST}, 0", f"s_cselect_b32 s{SO}, s{SOUT}, s{T0}", f"s_cselect_b32 s{SO+1}, s{SOUT+1}, s{T1}"])
        xh(x3 + 5, [f"s_mov_b32 s{SO+2}, 5242880", f"s_mov_b32 s{SO+3}, 0x20000"])
        self.group_sync(0)
        for k in range(4): self.xread(0, k)
        self.prime(0, sync=False)
        kp = o.get('kpace', 3)
        k1p = {0: lambda n: 1 if n % 3 != 2 else 0, 1: lambda n: 1, 2: lambda n: 2 if n % 10 < 2 else (1 if n % 10 < 5 else 0), 3: lambda n: 1 if n % 4 != 3 else 0}[o.get('k1', 0)]
        self.gemm_pass(0, ACC_K, xb, hooks=hooks, last=True, pace=lambda n: k1p(n) if n < o.get('ksw', 69) else (1 if n % kp == 0 else 0))
        self.stamp()
        E0, E1, M0_, M1_ = TMP, TMP + 40, TMP + 80, TMP + 86
        x0, x1 = acc(ACC_K, 0, 0), acc(ACC_K, 0, 1)
        tagset = [f"s_bfe_u32 s{S_TB+j}, s{S_NONCE}, {hex(0x80000 + 8*j)}" for j in range(4)] + [f"s_lshr_b32 s{S_NHI}, s{S_NONCE}, 16"]
        if o.get('amp'):
            p.raw(f"""
            s_load_dwordx2 s[88:89], s[0:1], 64
            s_not_b32 s{T0}, s98
            v_mov_b32 v{TMP+94}, 0
            v_mov_b32 v{TMP+95}, s{T0}
            s_lshr_b32 s{T0}, s2, 3
            s_or_b32 s{T0}, s{T0}, s{S_W}
            s_cmp_eq_u32 s{T0}, 0
            s_cselect_b32 s{T0}, 0, 64
            v_mov_b32 v{TMP+94}, s{T0}
            s_waitcnt lgkmcnt(0)
            s_cbranch_scc0 L_noat{self.sfx}
            s_mov_b64 exec, 1
            """)
            p.ins.append(__import__('emit').Ins(f"global_atomic_umax v{TMP+94}, v{TMP+95}, s[88:89] sc1"))
            p("s_mov_b64 exec, -1")
            p(f"L_noat{self.sfx}:")
        wr = lambda rt, x, n, o8: [(2, (f"ds_write_b64 v{V_PW}, {vq(x+2*j, 2)} offset:{rt*1920 + o8 + 8*j}", 'pw')) for j in range(n)]
        def mixw(out, w): return [y for j in range(len(w)) for y in out[2*j:2*j+2] + [w[j]]]
        burst = lambda L: [(0, [x for _, x in L])]
        dm = (2, lambda: self.tick())
        if A:
            P0 = self.phiA_parts(x0, E0, M0_, "L_k0", False); P1 = self.phiA_parts(x1, E1, M1_, "L_k1", False)
            pr = [(0, lambda: (self.group_sync(5), self.release(1)))]
            pr = pr + [(1, lambda n=n, hf=hf: self.wread(100 + n, hf)) for n in range(D - 1) for hf in range(2)]
            hx = o.get('hx', 0)
            if hx == 0:
                self.put([x for _, x in [dm] + P0['cvt'] + self.weave(P0['mf'], [dm] + P1['cvt'] + [dm] + P0['exp'][:4]) + self.weave(P1['mf'], [dm] + P0['exp'][4:12] + [dm] + pr)])
                f0 = P0['exp'][12:] + burst(P0['norm'])
            else:
                self.put([x for _, x in [dm] + P0['cvt'] + self.weave(P0['mf'], [dm] + P1['cvt'] + P0['exp'][:7] + [dm]) + self.weave(P1['mf'], P0['exp'][7:14] + [dm] + P0['exp'][14:21])])
                self.run(P0['exp'][21:] + P0['norm'][:-10], every=hx)
                self.put([x for _, x in pr + P0['norm'][-10:]])
                f0 = []
            fill = f0 + mixw(P0['out'], wr(0, x0, 10, 0)) + P1['exp'] + burst(P1['norm']) + mixw(P1['out'], wr(1, x1, 10, 0))
            self.stamp('head')
        else:
            fill = []
            for rt, x, e in ((0, x0, E0), (1, x1, E1)):
                L = self.phiB(x, e, False)
                fill += L[:-10] + mixw(L[-10:], wr(rt, x, 5, 0))
            self.group_sync(5); self.release(1); self.prime(1, sync=False)
        hooks = {}
        hooks.update(late3)
        PFV = TMP + 94
        ipf, cpf_ = self.checked("L_pf", [f"buffer_load_dwordx2 {vq(PFV, 2)}, v{V_PF}, {srd(SWS)}, s{S_PFL} offen sc1"],
                                 [f"v_xor_b32 v{PFV}, s{S_NONCE}, v{PFV}", f"v_bitop3_b32 v{PFV}, v{PFV}, v{PFV+1}, s{S_NONCE} bitop3:0xf6", f"v_cmp_ne_u32 vcc, 0, v{PFV}"], 'pf')
        pfp = o.get('pfpos', 81)
        if pfp < 100: hooks.setdefault(pfp, []).extend(ipf)
        pre = ["s_mov_b32 exec_hi, 0xff", (f"buffer_load_dword v{V_DUMP}, v{V_L128}, {srd(SO)}, s{S_OP} offen sc1", 'pr'), "s_mov_b64 exec, 1",
               (f"buffer_load_dword v{V_DUMP}, v{V_F8}, {srd(SWS)}, s{S_FLAG} offen sc1", 'pr'), "s_mov_b64 exec, -1"]
        pre1 = []
        if o.get('pre1m') is not None:
            pre1 = ["s_mov_b32 exec_lo, 0xfff00000", "s_mov_b32 exec_hi, 0xff", pre[1], "s_mov_b64 exec, -1"]
            pre = ["s_mov_b64 exec, 0xfffff"] + pre[1:]
        prel = []
        if o.get('prem'):
            n_ = len(o['prem']); o['prepos'] = 2
            for k_, ps_ in enumerate(o['prem']):
                lo_, hi_ = 40 * k_ // n_, 40 * (k_ + 1) // n_
                mk = ((1 << hi_) - 1) ^ ((1 << lo_) - 1)
                L_ = [f"s_mov_b32 exec_lo, {hex(mk & 0xffffffff)}", f"s_mov_b32 exec_hi, {hex(mk >> 32)}", pre[1]] + (pre[2:4] if k_ == 0 else []) + ["s_mov_b64 exec, -1"]
                assert ps_ <= 0 or ps_ > x3 + 5
                if ps_ >= 200: xq.setdefault(ps_ - 200, []).extend(L_)
                elif ps_ >= 100: xv.setdefault(ps_ - 100, []).extend(L_)
                else: prel.append((ps_, L_))
        wp, pp_ = o.get('wopf', -1), o.get('prepos', 0)
        if 100 <= pp_ < 200: hooks.setdefault(pp_ - 100, []).extend(pre)
        vs = o.get('vsync', 0)
        if o.get('v13'): hooks.setdefault(78, []).extend(["s_barrier", lambda: self.release(13)])
        for k_, v_ in xv.items(): hooks.setdefault(k_, []).extend(v_)
        for k_, v_ in enumerate(tagset): hooks.setdefault(41 + k_, []).insert(0, v_)
        vp = o.get('vpace', 4)
        self.gemm_pass(1, ACC_V, xbp(1), fill=fill, hooks=hooks, last=True, sync=True, pace=lambda n: 1 if n % vp == 0 else 0)
        self.stamp()
        VB = TMP
        for rt in range(2):
            c = self.cvt20(acc(ACC_V, 0, rt), VB + 10 * rt)
            for j in range(5):
                p(c[2*j][1]); p(c[2*j+1][1])
                p(f"ds_write_b64 v{V_PW}, {vq(VB+10*rt+2*j, 2)} offset:{rt*1920 + 80 + 8*j}", 'vw')
                if j == 4 and rt == 0: self.tick()
        NT = 3 if A else 2
        FB = ACC_K
        KV = TMP + 64
        rds = deque()
        own = o.get('kvown', 0)
        def rd(reg, av, off, kk, j):
            for hf in range(2): rds.append((f"ds_read_b64_tr_b16 {vq(reg+2*hf, 2)}, v{av[kk] if own else av[0]} offset:{(0 if own else kk*RW) + hf*120 + off}", ('kv', kk, j)))
        for kk in range(4):
            b = FB + kk * 20
            rd(b, KBV, 80, kk, 'a')
            for nt in range(NT): rd(b + 8 + 4 * nt, KBV, 32 * nt, kk, nt)
            rd(b + 4, KAV, 112, kk, 'z')
        if own:
            p("s_waitcnt lgkmcnt(5)")
            for _ in range(2 * NT + 4): self.put([rds.popleft()])
        self.tick()
        gk = 11
        self.flush_dma(('W', gk)); p.wait(vm=[('W', gk)], lg=['vw', 'pw'])
        p("s_barrier")
        self.release(13); self.release(14)
        def more(k):
            while k > 0 and rds and len(p.lgq) < 15: self.put([rds.popleft()]); k -= 1
        if own: more(5); p.wait(lg=[('kv', 0, 'z')])
        more(o.get('kvi', 15)); self.tick()
        p(f"v_mov_b32 v{TMP+1}, 0xff")
        seq = [(kk, nt) for kk in range(4) for nt in range(NT)]
        ao = deque((kk, f"v_and_or_b32 v{FB+kk*20+4+j}, v{FB+kk*20+4+j}, v{V_KEEP}, v{V_ONE}") for kk in range(4) for j in range(4))
        p.wait(lg=[('kv',) + seq[0]])
        for i_, (kk, nt) in enumerate(seq):
            b = FB + kk * 20
            p(f"{MF} {vq(KV + nt*4)}, {vq(b)}, {vq(b+8+4*nt)}, {'0' if kk == 0 else vq(KV + nt*4)}")
            p.wait(lg=[('kv',) + seq[i_ + 1]] if i_ + 1 < len(seq) else '*')
            k_ = len(rds); more(o.get('kvr', 4))
            for _ in range(max(0, 3 - (k_ - len(rds)))):
                if ao and ('kv', ao[0][0], 'z') not in p.lgq and not any(x[1] == ('kv', ao[0][0], 'z') for x in rds): p(ao.popleft()[1])
        assert not rds
        while len(ao) > 4: p(ao.popleft()[1])
        lastm = 0x00ff00ff if A else 0x000f000f
        def pub(mt, nt):
            a = KV + (mt * 3 + nt) * 4
            L = [(1, f"v_bfi_b32 v{a+j}, v{TMP+1}, s{S_TB+j}, v{a+j}") for j in range(4)]
            va = [V_P1ST, V_P1M, V_P1M + 1, V_P1M + 2][2 * mt + (nt == NT - 1)]
            return L + [(2, (f"buffer_store_dwordx4 {vq(a)}, v{va}, {srd(SWS)}, s{S_P1ST} offen offset:{(4*mt*F + 16*nt)*16 if A else [1024*mt, 1536 + 256*mt][nt]} sc1", 'p1'))]
        self.stamp('kv3')
        mf = [(2, f"{MF} {vq(KV + (3+nt)*4)}, {vq(FB+kk*20+4)}, {vq(FB+kk*20+8+4*nt)}, {'0' if kk == 0 else vq(KV + (3+nt)*4)}") for nt in range(NT) for kk in range(4)]
        pr = [(1, lambda n=n, hf=hf: self.wread(200 + n, hf)) for n in range(D - 1) for hf in range(2)]
        self.put([x for _, x in self.weave(mf, [(1, x[1]) for x in ao] + [y for nt in range(NT) for y in pub(0, nt)] + pr)])
        qhead = [y for nt in range(NT) for y in pub(1, nt)]
        pb = o.get('pubb', 0)
        self.put([x for _, x in qhead[:pb]]); qhead = qhead[pb:]
        self.stamp()
        X = TMP + 8; CK = TMP + 2
        def tagcheck(mask):
            if mask == "0xff":
                L = [f"v_xor_b32 v{X+j}, s{S_TB+j%4}, v{X+j}" for j in range(4 * NI)] + [f"v_or_b32 v{CK}, v{X}, v{X+1}"]
                L += [f"v_or3_b32 v{CK}, v{CK}, v{X+j}, v{X+j+1}" for j in range(2, 4 * NI, 2)]
            else:
                L = [f"v_xor_b32 v{CK}, s{S_NONCE}, v{X}"] + [f"v_bitop3_b32 v{CK}, v{CK}, v{X+j}, s{S_NHI if j % 2 else S_NONCE} bitop3:0xf6" for j in range(1, 4 * NI)]
            return L + [f"v_and_b32 v{CK}, {mask}, v{CK}", f"v_cmp_ne_u32 vcc, 0, v{CK}"]
        lds_ = []
        for ii in range(NI):
            lds_ += [f"s_add_u32 s{T0}, s{S_P1LD}, {ii * (65536 // NI)}", f"buffer_load_dwordx4 {vq(X+4*ii)}, v{V_P1LD}, {srd(SWS)}, s{T0} offen sc1"]
        iss, chk = self.checked("L_h1", lds_, tagcheck("0xff"), 'h1')
        red = [f"v_add_f32 v{X+j}, v{X+j}, v{X+4*ii+j}" for ii in range(1, NI) for j in range(4)]
        red += [f"v_permlane32_swap_b32 v{X}, v{X+2}", f"v_permlane32_swap_b32 v{X+1}, v{X+3}", f"v_add_f32 v{X}, v{X}, v{X+2}", f"v_add_f32 v{X+1}, v{X+1}, v{X+3}",
                f"v_mov_b32 v{CK}, 0xffff", f"v_permlane16_swap_b32 v{X}, v{X+1}", f"v_add_f32 v{X}, v{X}, v{X+1}"]
        if not A: red.append(f"v_add_f32_dpp v{X}, v{X}, v{X} row_ror:8 row_mask:0xf bank_mask:0xf")
        red += [f"v_cvt_pk_bf16_f32 v{X}, v{X}, v{X}", f"v_bfi_b32 v{X}, v{CK}, v{V_VW}, v{X}"]
        st = (f"buffer_store_dword v{X}, v{V_P2ST}, {srd(SWS)}, s{S_P2ST} offen sc1", 'p2')
        sts = [st]
        for _ in range((1 << o.get('p2log', 2)) - 1): sts += [f"s_add_u32 s{S_P2ST}, s{S_P2ST}, {1 << 18}", st]
        red.append(sts if A else ["s_mov_b32 exec_lo, 0x00ff00ff", "s_mov_b32 exec_hi, 0x00ff00ff"] + sts + ["s_mov_b64 exec, -1"])
        n1, n2 = o.get('h1', (62, 84))
        hooks = {n1 + k: iss[2*k:2*k+2] for k in range(NI)}
        if pfp >= 100: hooks.setdefault(pfp - 100, []).extend(ipf)
        for k_, v_ in xq.items(): hooks.setdefault(k_, []).extend(v_)
        c_ = [x for _, x in cpf_]
        pc = o.get('pfchk', 13)
        hooks.setdefault(pc, []).extend(c_[:3]); hooks.setdefault(pc + 1, []).extend(c_[3:4]); hooks.setdefault(pc + 3, []).extend(c_[4:] + [lambda: setattr(self, 'pfok', True)])
        if 200 <= pp_ < 300: hooks.setdefault(pp_ - 200, []).extend(pre)
        qh = deque(qhead)
        for n in range(20): hooks.setdefault(n, []).append(lambda: self.gap(qh, 2))
        qb_ = o.get('qb', (30, 53, 66, 80))
        assert 18 <= qb_[0] <= 34 and 38 <= qb_[1] <= 54 and 58 <= qb_[2] <= 74 and 78 <= qb_[3] <= 98
        busy = sorted([(pc, pc + 3), (n1, n1 + NI), (n2, min(100, n2 + o.get('h1len', 16)) + 1)] + ([(x3 - 200, x3 - 195)] if x3 >= 200 else []))
        assert all(a_[1] < b_[0] for a_, b_ in zip(busy, busy[1:])), busy
        assert pfp - 100 < pc and x2 < x3 and (pp_ < 100 or pp_ > x3 + 5)
        for fr_, pubg, rel in [(qb_[0], 12, [15]), (qb_[1], 13, [16]), (qb_[2], 14, [17]), (qb_[3], 14, [18])]:
            hooks.setdefault(fr_, []).extend([lambda g=pubg: self.group_sync(g)] + [lambda r=r: self.release(r) for r in rel])
        self.gemm_pass(2, ACC_K, xbp(2), fill=chk + [(1, x) for x in red], hooks=hooks, last=True, sync=False, frange=(n2, min(100, n2 + o.get('h1len', 16))),
                       pace=lambda n: 1 if (n >= 9 and n % (o.get('qpace', 3) if n < o.get('qsw', 42) else o.get('qpace2', 3)) == 0 and not n1 <= n < n1 + NI) else 0)
        assert not qh
        p("s_barrier")
        [self.release(r) for r in range(15, 20)]
        self.stamp()
        X = TMP + 96; CK = TMP + 92
        lds_ = [f"buffer_load_dwordx4 {vq(X+4*ii)}, v{V_LIN if ii < NI-1 else V_GAL}, {srd(SWS)}, s{S_P2LD} offen offset:{1024*ii if ii < NI-1 else 0} sc1" for ii in range(NI)]
        iss, chk = self.checked("L_h2", lds_, tagcheck("0xffff"), 'h2')
        zw = [f"v_mov_b32 v{CK}, 0", f"v_mov_b32 v{CK+1}, 0", f"ds_write_b64 v{V_ZA}, {vq(CK, 2)}"]
        self.put(zw)
        for k_ in range(o.get('dirty', 0)):
            p(f"s_add_u32 s{T0}, s{S_OP}, {(9 << 20) + (k_ // 5) * (6 << 20) + (k_ % 5) * 1024}")
            p(f"buffer_store_dwordx4 v[2:5], v{V_LIN}, {srd(SWS)}, s{T0} offen {o.get('dirtyf', '')}")
        if o.get('prepos', 0) == 1: self.put(pre)
        if not A:
            for tt in range(6): p(f"v_accvgpr_write_b32 a{40+4*(3*tt+2)+2}, 0"); p(f"v_accvgpr_write_b32 a{40+4*(3*tt+2)+3}, 0")
        if A:
            P0 = self.phiA_parts(x0, E0, M0_, "L_q0", True); P1 = self.phiA_parts(x1, E1, M1_, "L_q1", True)
            L = P0['cvt'] + self.weave(P0['mf'], P1['cvt'] + P0['exp'][:6]) + self.weave(P1['mf'], P0['exp'][6:]) + P0['norm'] + P0['out'] + P1['exp'] + P1['norm'] + P1['out']
        else:
            L = []
            for x, e in ((x0, E0), (x1, E1)):
                L += self.phiB(x, e, True) + [(1, f"v_mov_b32 v{x+10}, 0"), (1, f"v_mov_b32 v{x+11}, 0")]
        d1_, d2_ = o.get('oshift', (0, 0))
        Ld2 = L[len(L) - d2_:]; L = L[:len(L) - d2_]
        Ld1 = L[len(L) - d1_:]; L = L[:len(L) - d1_]
        tot = sum(c for c, _ in L)
        ev = [(tot - o.get('h2lead', 60), iss)]
        if o.get('prepos', 0) == 0 and o.get('prelead', 0) >= 0: ev.append((tot - o.get('prelead', o.get('h2lead', 60)) + 0.5, pre))
        if (o.get('pre1m') or 0) < -1: ev.append((tot + o['pre1m'] + 0.5, pre1))
        for ps_, L_ in prel: ev.append((tot + ps_ + 0.5, L_))
        L2 = []; c = 0; ev.sort(key=lambda e_: e_[0])
        for it_ in L + [(0, [])]:
            while ev and c >= ev[0][0] - (0.5 if it_[0] == 0 else 0): L2.append((0, ev.pop(0)[1]))
            L2.append(it_); c += it_[0]
        assert not ev
        self.run(L2, every=o.get('qev', 44))
        self.flush_dma(('W', 17))
        self.stamp()
        self.put([x for _, x in chk])
        if o.get('prepos', 0) == 0 and o.get('prelead', 0) < 0: self.put(pre)
        if o.get('pre1m') == -1: self.put(pre1)
        for ii in range(NI):
            p(f"v_perm_b32 v{X+4*ii}, v{X+4*ii+1}, v{X+4*ii}, s{S_PERM}")
            p(f"v_perm_b32 v{X+4*ii+1}, v{X+4*ii+3}, v{X+4*ii+2}, s{S_PERM}")
            p(f"ds_write_b64 v{V_LA+ii}, {vq(X+4*ii, 2)}", 'kvw')
        self.put([x for _, x in Ld1])
        p.wait(vm=[('W', 17)], lg='*')
        p("s_barrier")
        self.stamp()
        assert not self.dq or True
        import copy
        p(f"s_cmp_eq_u32 s{S_FAST}, 0"); p(f"s_cbranch_scc0 L_tail{self.sfx}s")
        env = dict(RS=RS, M0_=M0_, M1_=M1_, Ld2=Ld2, pre1=pre1)
        sv = (self.p, self.sfx, self.nst, getattr(self, 'cs', 0), deque(self.dq))
        self.p = Prog(); self.p.vmq = list(p.vmq); self.p.lgq = list(p.lgq); self.sfx += 's'
        self.p(f"L_tail{self.sfx}:")
        self.tail(False, **env)
        self.ool.append(self.p.finalize())
        self.p, self.sfx, self.nst, self.cs, self.dq = sv
        self.tail(True, **env)
        return p.finalize() + "".join(self.ool)
    def tail(self, fast, RS, M0_, M1_, Ld2, pre1):
        p = self.p; A = self.A; o = self.o; br = 0 if A else 1
        def more(k):
            while k > 0 and rds and len(p.lgq) < 15: self.put([rds.popleft()]); k -= 1
        OA = ACC_V
        NU = 5 if A else 3
        SP = TMP + 112
        OB = TMP + 64
        LO = TMP + 80
        fr = [(tt, u_) for tt in (5, 0, 1, 2, 3, 4) for u_ in range(NU)]
        AO = 40
        rds = deque()
        for n, (tt, u_) in enumerate(fr):
            if not A and u_ == 2: rds.append((f"ds_read_b64 {aq(AO+4*n, 2)}, v{V_FR2} offset:{4*tt*RS + 16*u_}", ('of', n)))
            else: rds.append((f"ds_read_b128 {aq(AO+4*n)}, v{V_FR2} offset:{4*tt*RS + 16*u_}", ('of', n)))
        more(10)
        if A: p(f"v_mov_b32 v{SP}, v{M0_}"); p(f"v_mov_b32 v{SP+1}, v{M1_}")
        self.put([x for _, x in Ld2])
        def ost(txt, tag='o'):
            p(txt + ("" if fast else " sc1"), tag)
        def flag(k): ost(f"buffer_store_dword v{V_NONCE}, v{V_FOWN}, {srd(SWS)}, s{S_FLAG} offen offset:{32*k}", 'fl')
        def poll(k, name):
            iss, chk = self.checked(name, [f"buffer_load_dword v{V_DUMP}, v{V_F8}, {srd(SWS)}, s{S_FLAG} offen offset:{32*k} sc1"], [f"v_cmp_ne_u32 vcc, s{S_NONCE}, v{V_DUMP}"], name)
            return iss, [x for _, x in chk]
        order = [(0, k) for k in range(5)] + [(1, k) for k in range(5)] + [(0, 5), (1, 5)]
        epi = deque()
        for z, (rt, k) in enumerate(order):
            dn = OA + (rt * 6 + 5) * 4
            b = OA + rt * 24
            rdy = (z + 1) * NU + o.get('rdy', 4)
            if k == 0:
                epi.append((rdy, 1, f"v_fmac_f32 v{dn}, {EPS}, v{SP+rt}" if A else f"v_add_f32 v{dn}, {EPS}, v{dn}")); epi.append((rdy, 2, f"v_rcp_f32 v{dn}, v{dn}"))
                continue
            tt = k - 1
            for r in range(4): epi.append((rdy, 1, f"v_mul_f32 v{b+4*tt+r}, v{b+4*tt+r}, v{dn}"))
            for h in range(2):
                i = 2 * tt + h
                d = OB + ((i // 4) * 2 + rt) * 4 + i % 4 if i < 8 else LO + 2 * rt + (i - 8)
                epi.append((rdy, 1, f"v_cvt_pk_bf16_f32 v{d}, v{b+2*i}, v{b+2*i+1}"))
            if tt in (1, 3):
                u_ = tt // 2
                epi.append((0, 2, lambda u_=u_, rt=rt: ost(f"buffer_store_dwordx4 {vq(OB+(u_*2+rt)*4)}, v{V_OO+rt*2+u_}, {srd(SO)}, s{S_OP} offen", ('S', rt))))
        epi.append((0, 2, lambda: ost(f"buffer_store_dwordx4 {vq(LO)}, v{V_OO+4}, {srd(SO)}, s{S_OP} offen", ('S', 1))))
        TM_ = o.get('tmaj', 3); LD = o.get('lead', 8); DF = o.get('df', 11); A_RING = A_PHI
        items = [(P, t_, (0, 1)) for P in range(2) for t_ in range(5)] + [(P, t_, (0,)) for P in range(2, 2 + LD) for t_ in range(5)] + \
                [(P, t_, (0, 1)) for P in range(2 + LD, 20) for t_ in range(5)] + [(P, t_, (1,)) for P in range(2, 2 + LD - TM_) for t_ in range(5)] + \
                [(P, t_, (1,)) for t_ in range(5) for P in range(2 + LD - TM_, 2 + LD)]
        def fread(i, hf):
            P, t_, _ = items[i]
            if True:
                if hf == 0:
                    off = RING + P * 5120 + 1024 * t_; hi = off >= 51200; s_ = A_RING + (i % DF) * 4
                    p(f"ds_read_b128 a[{s_}:{s_+3}], v{V_LINH if hi else V_LIN} offset:{off - 51200*hi}", ('FF', i))
                return
            off = RING + (P // 4) * SLOT + (P % 4) * 5120 + hf * 2560 + 8 * t_
            hi = off >= 51200; s_ = A_RING + (i % DF) * 4 + 2 * hf
            p(f"ds_read_b64_tr_b16 a[{s_}:{s_+1}], v{V_WT + hi} offset:{off - 51200*hi}", ('FF', i))
        pr = deque((i, 0) for i in range(DF - 1))
        m = 0; mf0 = o.get('mf0', 54 if A else 36); seen = set()
        for rt, k in order:
            for u_ in range(NU):
                n = k * NU + u_; tt = fr[n][0]
                a = OA + (rt * 6 + tt) * 4
                if m == 0: p.wait(lg=[('of', 0)])
                p(f"{MF} {vq(a)}, {aq(AO+4*n)}, {vq(ACC_K+20*rt+4*u_)}, {'0' if u_ == 0 else vq(a)}")
                m += 1
                if n + 1 < len(fr): p.wait(lg=[('of', n + 1)])
                bud = 2 if A else 3
                if m == mf0:
                    assert sum(1 for x in p.ins if x.tag == ('S', 0)) == 2
                    p.wait(vm=[('S', 0)]); flag(0); bud -= 2
                elif m == o.get('pre1m'): self.put(pre1); bud -= 2
                elif rds: more(1); bud -= 1 if not (epi and epi[0][0] <= m and epi[0][1] == 2) else 0
                elif self.dq and m % o.get('opace', 8) == 0: self.tick(); bud -= 2
                elif pr and not (epi and epi[0][0] <= m): fread(*pr.popleft()); bud -= 1
                while epi and epi[0][0] <= m and epi[0][1] <= bud:
                    _, c, x = epi.popleft(); bud -= c
                    self.put([x])
                    if callable(x): break
        while pr: fread(*pr.popleft())
        while len(epi) > 7: self.put([epi.popleft()[2]])
        while self.tick(): pass
        self.stamp()
        def ob(ks, rt):
            if ks < 2: return vq(OB + (ks * 2 + rt) * 4)
            return aq((ks * 2 + rt) * 4) if ks < 16 else vq(LO + (2 * (ks - 16) + rt) * 4)
        def ld(P, rt):
            if P < 16: return [(f"buffer_load_dwordx4 {aq((P*2+rt)*4)}, v{V_OO+rt*2+P%2}, {srd(SO)}, s{S_OP + P//2} offen sc1", ('O', P, rt))]
            return [(f"buffer_load_dwordx4 {vq(LO+(2*(P-16)+rt)*4)}, v{V_OO+4}, {srd(SO)}, s{S_OP + 2*(P-16) + rt} offen sc1", ('O', P, rt))]
        i0, c0 = poll(0, "L_f0"); i1, c1 = poll(1, "L_f1"); i2, c2 = poll(2, "L_d0"); i3, c3 = poll(3, "L_d1")
        L0x = min(16, 2 + LD + o.get('xlead', 0))
        lead = [ld(P, 0) for P in range(2, L0x)]
        rest = [ld(P, rt) for P in range(2 + LD, 20) for rt in range(2) if (P, rt) != (16, 0) and not (rt == 0 and P < L0x)] + [ld(P, 1) for P in range(2, 2 + LD)]
        def handshake():
            p.wait(vm=[('S', 1), ('W', 18), ('W', 19)])
            flag(1)
            self.put(c0)
            self.stamp()
            self.q(0, lead); self.q(10**6 + 50, rest)
            for k_ in range(o.get('oprime', 7)):
                self.tick()
                if k_ == 3: p("s_barrier")
                if k_ == 3 and o.get('p1it', -1) < 0: self.put(i1)
            p.wait(vm=[('O', 2, 0)])
        E0 = len(items) - 5 * LD
        NI_ = len(items)
        def outp(rt):
            b = TMP + 8
            c = self.cvt20(acc(ACC_K, 0, rt), b)
            L = []
            for j in range(5): L += [c[2*j][1], c[2*j+1][1], (f"ds_write_b64 v{V_OW}, {vq(b+2*j, 2)} offset:{rt*16*OUTS + 8*j}", 'ow')]
            L += [(f"ds_read_b128 {vq(TMP+24+4*j)}, v{V_ORD+j} offset:{rt*16*OUTS}", ('or', j)) for j in range(3)]
            S_ = [(f"buffer_store_dwordx4 {vq(TMP+24+4*j)}, v{V_OG+j}, {srd(SOUT)}, s{S_OUT} offen", 'out') for j in range(3)]
            return L, S_
        vw, lw, sc_, vec = {}, {}, {}, {}
        add = lambda d, i, L: d.setdefault(i, []).extend(L)
        def check(i, c, tag, gapn):
            add(vw, i, [tag]); add(vec, i, [c[1]]); add(sc_, i + gapn, [c[2]])
        ep = [x[2] for x in epi]
        add(vec, 1, ep[:3]); add(vec, 2, ep[3:6]); add(vec, 3, ep[6:])
        add(vec, o.get('p0pos', 4), i0)
        add(vec, 9, [handshake])
        if o.get('p1it', -1) >= 0: add(vec, 10 + o.get('p1it', -1), i1)
        ci = 10 + o.get('c1pos', 5); check(ci, c1, "L_f1", 2); add(sc_, ci + 2, [lambda: self.release(50)])
        for i in range(15, NI_ - 5 * TM_ + 1, 5):
            if i == NI_: break
            Pn, _, rn = items[i]
            tags = [('O', Pn, rt) for rt in rn]
            if i == NI_ - 5 * TM_: tags = [('O', 1 + LD, 1)]
            if Pn >= 16:
                a = LO + 2 * (Pn - 16) * 4
                add(vw, i - 2, tags); add(vec, i - 2, [f"v_swap_b32 v{a+2}, v{a+4}", f"v_swap_b32 v{a+3}, v{a+5}"])
            else: add(vw, i - 1, tags)
        nd0 = E0 - o.get('d0', 8); add(vw, nd0, [('O', 19, 0), ('O', 19, 1)]); add(vec, nd0, [lambda: flag(2)])
        add(vec, E0 + o.get('d0p', 0), i2)
        L0, S0 = outp(0)
        for j, x in enumerate(L0): add(vec, E0 + 2 + j, [x])
        nd1 = NI_ - o.get('d1', 24); add(vw, nd1, [('O', 1 + LD, 1)]); add(vec, nd1, [lambda: flag(3)])
        check(E0 + 22, c2, "L_d0", 2)
        for j, x in enumerate(S0): add(lw, E0 + 25 + 2 * j, [('or', j)]); add(vec, E0 + 25 + 2 * j, [x])
        L1, S1 = outp(1)
        n1e = 0
        if TM_:
            for j in range(15):
                pos = NI_ - 5 * TM_ + (j // 3 + 1) * TM_ + 2 + j % 3
                if pos < NI_: add(vec, pos, [L1[j]]); n1e = j + 1
        add(vec, NI_ - o.get('d1p', 8), i3)
        add(sc_, NI_ - 5, [f"s_or_b32 s{T0}, s{S_RB}, s{S_HEAD}"]); add(sc_, NI_ - 4, [f"s_cmp_lg_u32 s{T0}, 0"]); add(sc_, NI_ - 3, [f"s_cselect_b32 s{T0}, {WS_SIZE}, 0"])
        add(vec, NI_ - 2, [(f"buffer_store_dword v{V_NONCE}, v{V_FOWN}, {srd(SWS)}, s{T0} offen offset:{br*128} sc1", 'nn')])
        assert ci + 2 < E0 + o.get('d0p', 0) < E0 + 22 and E0 + 24 < NI_ - o.get('d1p', 8) and nd1 < NI_ - o.get('d1p', 8) and nd0 < E0 + o.get('d0p', 0)
        assert 3 < o.get('p0pos', 4) <= 9 and E0 + 29 < NI_ - 5 * TM_ + TM_ + 2 + 15
        p.wait(lg=[('FF', 0)])
        clk = 0.0; per = o.get('lper', 4.6)
        for i, (P, t_, rts) in enumerate(items):
            s_ = A_RING + (i % DF) * 4
            for z, rt in enumerate(rts):
                a = acc(ACC_K, t_, rt)
                p(f"{MF} {vq(a)}, {aq(s_)}, {ob(P, rt)}, {'0' if P == 0 else vq(a)}")
                if z == 0:
                    k0 = len(p.ins)
                    for tg in vw.get(i, []): self.flush_dma(tg)
                    p.wait(vm=vw.get(i), lg=[('FF', i + 1)] + lw.get(i, []))
                    if len(rts) == 1: self.put(sc_.get(i, []))
                    if i + DF - 1 < NI_:
                        if len(p.ins) == k0: p("s_nop 0")
                        fread(i + DF - 1, 0)
                else: self.put(sc_.get(i, []))
            self.stamp('z%d' % i)
            if i >= 10:
                clk += len(rts)
                if clk >= per and i not in vec and self.tick(): clk -= per
            self.put(vec.get(i, []))
        self.stamp()
        p(f"s_add_u32 s{S_OUT}, s{S_OUT}, {16*2560}")
        self.put(L1[n1e:12]); self.put(c3[:2]); self.put(L1[12:]); self.put(c3[2:])
        for j in range(3): p.wait(lg=[('or', j)]); self.put([S1[j]])
        if o.get('stamps'):
            p("s_waitcnt vmcnt(0)")
            self.stamp()
            p("s_memrealtime s[100:101]")
            p("s_waitcnt lgkmcnt(0)")
            p.raw(f"""
            s_lshl_b32 s{T0}, s2, 2
            s_add_u32 s{T0}, s{T0}, s{S_W}
            s_lshl_b32 s{T0}, s{T0}, 6
            s_add_u32 s{T0}, s{T0}, {WS_ST}
            v_mov_b32 v{TMP+16}, 0
            v_mov_b32 v{TMP}, s98
            v_mov_b32 v{TMP+1}, s100
            """)
            for k in range(14): p(f"v_mov_b32 v{TMP+2+k}, {'s%d' % (S_ST+k) if k < self.nst else ('s95' if k == 13 else 0)}")
            p("s_mov_b64 exec, 1")
            for k in range(4): p(f"buffer_store_dwordx4 {vq(TMP+4*k)}, v{TMP+16}, {srd(SWS)}, s{T0} offen offset:{16*k}")
        if o.get('cntm'):
            p.raw(f"""
            s_load_dwordx2 s[62:63], s[0:1], 64
            v_mov_b32 v2, 0
            v_mov_b32 v3, s95
            s_waitcnt lgkmcnt(0)
            s_cmp_eq_u32 s95, 0
            s_cbranch_scc1 L_cn0{self.sfx}
            s_mov_b64 exec, 1
            global_atomic_add v2, v3, s[62:63] sc1
            L_cn0{self.sfx}:
            s_or_b32 s{T0}, s{S_RB}, s{S_HEAD}
            s_cmp_lg_u32 s{T0}, 0
            s_cbranch_scc1 L_cn2{self.sfx}
            s_movk_i32 s{T0}, 3500
            s_mov_b32 s{T2}, 0
            L_cn1{self.sfx}:
            s_sleep 2
            s_memrealtime s[64:65]
            s_waitcnt lgkmcnt(0)
            s_sub_u32 s{T1}, s64, s98
            s_cmp_lt_u32 s{T1}, s{T0}
            s_cbranch_scc1 L_cn1{self.sfx}
            s_cmp_eq_u32 s{T2}, 1
            s_cbranch_scc1 L_cn2{self.sfx}
            global_load_dword v3, v2, s[62:63] sc1
            s_waitcnt vmcnt(0)
            v_readfirstlane_b32 s{T0}, v3
            s_min_u32 s{T0}, s{T0}, 1024
            s_mul_i32 s{T0}, s{T0}, 20
            s_add_u32 s{T0}, s{T0}, 4000
            s_mov_b32 s{T2}, 1
            s_branch L_cn1{self.sfx}
            L_cn2{self.sfx}:
            """)
        if o.get('amp'):
            p("s_waitcnt vmcnt(0)")
            self.stamp()
            if o['amp'][0] < 0: p("s_mov_b32 s100, s98")
            p.raw(f"""
            s_and_b32 s{T0}, s2, 7
            s_lshr_b32 s{T0}, {o['amp'][2]}, s{T0}
            s_bitcmp1_b32 s{T0}, 0
            s_cbranch_scc0 L_ampx{self.sfx}
            s_load_dwordx2 s[62:63], s[0:1], 64
            v_mov_b32 v2, 0
            s_waitcnt lgkmcnt(0)
            global_load_dword v3, v2, s[62:63] sc1
            s_waitcnt vmcnt(0)
            v_readfirstlane_b32 s{T2}, v3
            s_not_b32 s{T2}, s{T2}
            s_sub_u32 s{T0}, s100, s{T2}
            s_add_u32 s{T0}, s{T0}, 300
            s_mul_i32 s{T0}, s{T0}, {o['amp'][1]}
            s_min_u32 s{T0}, s{T0}, 100000
            L_amp{self.sfx}:
            s_sleep 2
            s_memrealtime s[64:65]
            s_waitcnt lgkmcnt(0)
            s_sub_u32 s{T1}, s64, s{T2}
            s_cmp_lt_u32 s{T1}, s{T0}
            s_cbranch_scc1 L_amp{self.sfx}
            L_ampx{self.sfx}:
            """)
        p("s_endpgm")
        assert not self.dq

def sizes(lines):
    import subprocess, re
    src = '.amdgcn_target "amdgcn-amd-amdhsa--gfx950"\n.text\n' + "\n".join(lines) + "\n"
    r = subprocess.run(["llvm-mc", "-triple=amdgcn-amd-amdhsa", "-mcpu=gfx950", "-show-encoding"], input=src, capture_output=True, text=True)
    assert r.returncode == 0, r.stderr[:2000]
    return [len(m.split(',')) for m in re.findall(r'encoding: \[([^\]]*)\]', r.stdout)]
def add_hops(text, sfx, align=True):
    lines = text.split("\n")
    i0 = lines.index(f"L_main{sfx}:"); i1 = next(i for i in range(i0, len(lines)) if lines[i].strip() == "s_endpgm")
    body = lines[i0 + 1:i1]
    isi = lambda l: l.startswith("    ")
    szl = sizes([l for l in body if isi(l)])
    insl = [l.strip() for l in body if isi(l)]
    big = [z == 8 and t.startswith("v_") and not t.startswith("v_mfma") for z, t in zip(szl, insl)]
    run = [0] * (len(big) + 1)
    for k in range(len(big) - 1, -1, -1): run[k] = run[k + 1] + 1 if big[k] else 0
    sz = iter(szl); k = -1; nfix = 0
    out = []; addr = 0; page = 0; prev = "v_mfma"
    for l in body:
        if isi(l):
            k += 1
            if align and run[k] >= 3 and addr % 8 == 4:
                pv = out[-1] if isinstance(out[-1], str) else ""
                op = pv.split()[0] if pv.strip() else ""
                if isi(pv) and szl[k - 1] == 4 and op.startswith("v_") and not op.startswith(("v_cmp", "v_swap", "v_permlane", "v_readfirst")):
                    out[-1] = pv.replace(op, op + "_e64", 1); addr += 4; nfix += 1
                elif run[k] >= 6: out.append("    s_nop 0"); addr += 4; nfix += 1
            off = addr - page * 4096
            if off >= 0 and (prev.startswith("v_mfma") or off >= 40) and not prev.startswith("s_mov_b64 exec") :
                out.append(("hop", page)); addr += 4; page += 1
            addr += next(sz); prev = l.strip()
        out.append(l)
    assert page >= 4
    res = []
    for x in out:
        if isinstance(x, tuple):
            k = x[1]
            res += [f"L_hop{k}{sfx}:", f"    s_cbranch_execz " + (f"L_hop{k+4}{sfx}" if k + 4 < page else f"L_hopret{sfx}")]
        else: res.append(x)
    print(sfx, "main bytes", addr, "align fixes", nfix, file=sys.stderr)
    return "\n".join(lines[:i0 + 1] + res + lines[i1:])

def build(opt):
    ref = open(f"cdna_kernels/{NAME}.s.ref").read().split("\n")
    head = [l for l in ref if l.startswith(";") and "@launch" not in l]
    s = "\n".join(head) + "\n; @launch grid=(256,1,1) block=(256,1,1) lds=163840\n"
    s += f""".amdgcn_target "amdgcn-amd-amdhsa--gfx950"
.text
.globl {NAME}_kernel
.p2align 12
.p2align 8
.type {NAME}_kernel,@function
{NAME}_kernel:
    s_cmp_ge_u32 s2, 256
    s_cbranch_scc1 L_exit
"""
    ga = Gen(True, opt); ta = ga.body(); gb = Gen(False, opt); tb = gb.body()
    ca, ra = ta.split(".split\n"); cb, rb = tb.split(".split\n")
    assert ca == cb
    if opt.get('hops', 1): ra = add_hops(ra, 'A', opt.get('align', 1)); rb = add_hops(rb, 'B', opt.get('align', 1))
    s += ca + ra + "L_exit:\n    s_endpgm\n.p2align 12\n" + rb
    s += ".fill 2048, 4, 0xbf810000\n"
    s += f""".section .rodata,"a"
.p2align 6
.amdhsa_kernel {NAME}_kernel
  .amdhsa_next_free_vgpr 512
  .amdhsa_next_free_sgpr 102
  .amdhsa_accum_offset 256
  .amdhsa_group_segment_fixed_size 0
  .amdhsa_kernarg_size 80
  .amdhsa_user_sgpr_count 2
  .amdhsa_user_sgpr_kernarg_segment_ptr 1
  .amdhsa_system_sgpr_workgroup_id_x 1
.end_amdhsa_kernel
"""
    print("nops", ga.p.nops, gb.p.nops, "instrs", len(ga.p.ins), len(gb.p.ins), "autow", getattr(ga.p, 'autow', 0), file=sys.stderr)
    return s

if __name__ == "__main__":
    import json
    opt = json.loads(sys.argv[2]) if len(sys.argv) > 2 else {}
    open(sys.argv[1], "w").write(build(opt))
```

```python
import sys
from collections import deque
from emit import Prog
NAME = "concat_heads__linear_kernel_hedgehog__linear_attn_block__prompt"

S_RB, S_HG, S_W = 4, 5, 7
SX, SW, SWO, SWS, SOUT, SPHI = 8, 12, 16, 20, 24, 28
S_NONCE = 32
S_WROW = 33
S_XBASE, S_XU = 38, 39
S_LW, S_LR = 40, 41
T0, T1, T2, T3 = 42, 43, 44, 45
S_WOROW = 46
S_HEAD = 51
S_SPIN = 52
S_FAST = 53
S_L2E, S_NL2E = 54, 55
S_OB = 56
S_WS, S_XS = 57, 58
S_FLAG = 59
S_OP = 60
S_P1ST, S_P1LD, S_P2ST, S_P2LD, S_OWN, S_OUT, S_XCCV, S_PERM = 68, 69, 70, 71, 72, 73, 74, 75
S_KA = 76
S_ST = 76
import os
if os.environ.get('PRO'): S_ST = 88
def srd(b): return f"s[{b}:{b+3}]"
V_LANE = 1
V_WO = 2; V_OF = 7; V_OL = 12; V_XO = 17; V_XR = 21; V_WT = 23; V_LIN = 25
V_PW, V_VW, V_KB, V_KA0, V_KA1, V_FR = 26, 27, 28, 29, 30, 31
ACC_K, ACC_V = 32, 72
TMP = 112
PV = 228
V_P1ST, V_P1LD, V_P2ST, V_GAL, V_LA, V_FR2, V_KEEP, V_ONE, V_OW, V_ORD, V_OG, V_F8, V_DUMP, V_ZA = PV, PV+1, PV+2, PV+3, PV+4, PV+8, PV+9, PV+10, PV+11, PV+12, PV+17, PV+22, PV+23, PV+24
V_L128, V_NONCE, V_FOWN = PV + 25, PV + 26, PV + 27
RING = 0; SLOT = 20480; RBASE = 102400; RW = 15360
OUTL = RBASE + 16384; OUTS = 176
WS_FLAG, WS_XCC, WS_P2, WS_P1, WS_O, WS_ST = 4096, 32768, 5 << 20, 1 << 20, 8 << 20, 16 << 20
WS_SIZE = 32 << 20
D = 6
A_RING = 220
A_PHI = 160
A_PARK = 244
V_OO = 7; V_LINH = 12; V_PF = 13; V_P1M = 14
WS_PF = 49152; WS_PK = 6 << 20
S_USRC, S_UDST, S_UFL, S_UTAG, S_PFL, S_XA = 3, 6, 72, 90, 91, 93
S_TB = SX
S_NHI = 38
SO = SPHI
SPIN_MAX = 20000
EPS = "0x358637bd"

def vq(b, n=4): return f"v[{b}:{b+n-1}]"
def aq(b, n=4): return f"a[{b}:{b+n-1}]"
def acc(base, t, rt): return base + (rt * 5 + t) * 4
MF = "v_mfma_f32_16x16x32_bf16"

DEF = {'A': dict(xpos=(117, 190, 222), qpace=4, pfpos=101, pfchk=28, prokeep=4, proev=60, h1=(48, 74), h1len=8, h2lead=160, prelead=125, kpace=4, hx=30, vsync=1, qev=26), 'B': dict(xpos=(117, 190, 222), upos=(18, 18, 62), pfpos=101, pfchk=28, h1=(50, 76), h1len=5, h2lead=80, prem=(283, -70, -30), vpace=3, qev=24, vsync=1)}
class Gen:
    def __init__(self, isA, opt):
        self.A = isA
        sf = 'A' if isA else 'B'
        opt = dict(DEF[sf], **opt)
        opt.update({k[:-1]: v for k, v in opt.items() if k.endswith(sf)})
        self.o = opt
        self.p = Prog(); self.sfx = 'A' if isA else 'B'
        self.F = 40 if isA else 20
        self.nst = 0
        self.dq = deque()
        self.pos = 0
        self.ool = []
    def stamp(self, name=None):
        p = self.p
        if name is None and self.o.get('idle'):
            self.ic = getattr(self, 'ic', -1) + 1
            if self.ic == self.o['idle'][0]: p(f"s_sleep {self.o['idle'][1]}")
        fine = self.o.get('fine')
        if fine:
            if name is None: self.cs = getattr(self, 'cs', 0) + 1; name = 's%d' % (self.cs - 1)
            if name not in fine: return
        elif name is not None: return
        if self.o.get('amp'):
            if self.nst == self.o['amp'][0]:
                p("s_memrealtime s[100:101]"); p("s_waitcnt lgkmcnt(0)")
            self.nst += 1
            return
        if not self.o.get('stamps'): return
        p(f"s_memrealtime s[100:101]" if self.o.get('rt') else f"s_memtime s[100:101]")
        p("s_waitcnt lgkmcnt(0)")
        p(f"s_sub_u32 s{S_ST+self.nst}, s100, {'s98' if self.o.get('rt') else 's96'}")
        self.nst += 1
    def put(self, L):
        for x in L:
            if isinstance(x, tuple): self.p(x[0], x[1])
            elif isinstance(x, list): self.put(x)
            elif callable(x): x()
            else: self.p(x)
    def dma_w(self, G):
        g = G % 5
        pre = [f"s_add_u32 m0, s{S_LW}, {RING + g*SLOT}"]
        if G < 15:
            col = {0: 1280, 1: 2560, 2: 0}[G // 5]
            gr = 4 - g if G // 5 in self.o.get('rev', [1, 2]) else g
            pre.append(f"s_add_u32 s{S_WS}, s{S_WROW+gr}, {col}"); so = f"s{S_WS}"; sd = SW; vo = V_WO
        else:
            items = []
            for j in range(5):
                off = f"offset:{j*1024} " if 0 < j < 4 else ""
                L = (pre if j == 0 else []) + [(f"buffer_load_dwordx4 v{V_LIN}, {srd(SWS)}, s{S_WOROW+g} offen {off}sc1 lds", ('W', G))]
                if j == 3: L += [f"s_add_u32 m0, s{S_LW}, {RING + g*SLOT + 4096}", f"s_add_u32 s{S_WOROW+g}, s{S_WOROW+g}, 4096"]
                items.append(L)
            return items
        items = []
        if G // 5 in self.o.get('fake', []):
            base = (G % 5) * 4 * 5120 + (G // 5 if G < 15 else 0) * 819200
            if self.o.get('fakerot'):
                pre = [pre[0], f"s_mul_hi_u32 s{S_WS}, s{S_WROW+gr}, 34953", f"s_mul_i32 s{S_WS}, s{S_WS}, 5120", f"s_add_u32 s{S_WS}, s{S_WS}, s94", f"s_sub_u32 s{S_WS}, s{S_WS}, s{S_LW}",
                       f"s_add_u32 s{S_WS}, s{S_WS}, {(G // 5) * 819200}"]
            else: pre = [pre[0], f"s_add_u32 s{S_WS}, s94, {base}"]
            for j in range(5):
                off = f"offset:{j*1024} " if 0 < j < 4 else ""
                L = (pre if j == 0 else []) + [(f"buffer_load_dwordx4 v{V_LIN}, {srd(sd)}, s{S_WS} offen {off}lds", ('W', G))]
                if j == 3: L += [f"s_add_u32 m0, s{S_LW}, {RING + g*SLOT + 4096}", f"s_add_u32 s{S_WS}, s{S_WS}, 4096"]
                items.append(L)
            return items
        for j in range(5):
            off = f"offset:{j*1024} " if 0 < j < 4 else ""
            L = (pre if j == 0 else []) + [(f"buffer_load_dwordx4 v{vo+j}, {srd(sd)}, {so} offen {off}lds", ('W', G))]
            if j == 3: L.append(f"s_add_u32 m0, s{S_LW}, {RING + g*SLOT + 4096}")
            items.append(L)
        return items
    def dma_x(self, pu):
        items = []
        for j in range(4):
            off = f"offset:{j*1024} " if j else ""
            L = []
            if j == 0: L += [f"s_add_u32 m0, s{S_LR}, {(pu % 3) * 4096}", f"s_add_u32 s{S_XS}, s{S_XU}, s{S_XBASE}"]
            L.append((f"buffer_load_dwordx4 v{V_XO+j}, {srd(SX)}, s{S_XS} offen {off}lds", ('X', pu)))
            if j == 0: L += [f"s_add_u32 s{S_XU}, s{S_XU}, 128"]
            if j == 1: L += [f"s_cmp_eq_u32 s{S_XU}, 1280", f"s_cselect_b32 s{S_XU}, 0, s{S_XU}"]
            items.append(L)
        return items
    def q(self, earliest, items):
        for it in items: self.dq.append((earliest, it))
    def release(self, k):
        self.dq = deque((0 if e == 10**6 + k else e, it) for e, it in self.dq)
    def tick(self):
        if self.dq and not getattr(self, 'pfok', False) and any(isinstance(x, tuple) and x[1] == ('W', 15) for x in self.dq[0][1]): return False
        if self.dq and self.dq[0][0] <= self.pos:
            self.put(self.dq.popleft()[1]); return True
        return False
    def flush_dma(self, tag):
        def has():
            return any(isinstance(x, tuple) and x[1] == tag for _, it in self.dq for x in it)
        while has():
            assert self.dq[0][0] <= self.pos, (tag, self.pos, self.dq[0])
            self.put(self.dq.popleft()[1])
    def run(self, L, every=30):
        c = 0
        for cost, x in L:
            self.put([x]); c += cost
            if c >= every: c = 0; self.tick()
    def wread(self, N, hf):
        G = N // 20; ks = (N % 20) // 5; t = N % 5
        off = RING + (G % 5) * SLOT + ks * 5120 + hf * 2560 + 8 * t
        hi = off >= 51200
        s = A_RING + (N % D) * 4 + 2 * hf
        if G // 5 in self.o.get('fake', []):
            if hf == 0:
                off = RING + (G % 5) * SLOT + ks * 5120 + 1024 * t
                hi = off >= 51200
                self.p(f"ds_read_b128 a[{s}:{s+3}], v{226 + hi} offset:{off - 51200*hi}", ('F', N))
            return
        self.p(f"ds_read_b64_tr_b16 a[{s}:{s+1}], v{V_WT + hi} offset:{off - 51200*hi}", ('F', N))
    def group_sync(self, G):
        self.flush_dma(('W', G))
        self.p.wait(vm=[('W', G)])
        self.p("s_barrier")
    def xread(self, pu, k):
        ksub, rt = divmod(k, 2)
        if k == 0:
            self.flush_dma(('X', pu)); self.p.wait(vm=[('X', pu)])
        a = ((2 * pu + ksub) * 2 + rt) * 4
        self.p(f"ds_read_b128 {aq(a)}, v{V_XR+ksub} offset:{(pu % 3)*4096 + rt*2048}", ('XR', pu))
    def prime(self, ps, sync=True):
        if sync: self.group_sync(ps * 5)
        for n in range(D - 1):
            self.wread(ps * 100 + n, 0); self.wread(ps * 100 + n, 1)
    def gemm_pass(self, ps, accb, bop, fill=None, hooks=None, last=False, pace=None, sync=True, frange=(0, 100), hooks0=None):
        p = self.p
        fill = deque(fill or []); hooks = hooks or {}; hooks0 = hooks0 or {}
        N0 = ps * 100
        p.wait(lg=[('F', N0), ('XR', 0)])
        pace = pace or (lambda n: 0)
        for n in range(100):
            self.pos = N0 + n
            ks, t = divmod(n, 5)
            s = A_RING + ((N0 + n) % D) * 4
            M = n + D - 1
            look = M < 100 or not last
            a = acc(accb, t, 0)
            p(f"{MF} {vq(a)}, {aq(s)}, {bop(ks, 0)}, {'0' if ks == 0 else vq(a)}")
            k0 = len(p.ins)
            if n < 99:
                tg = [('F', N0 + n + 1)]
                if ps == 0 and (n + 1) % 10 == 0: tg.append(('XR', (n + 1) // 10))
                p.wait(lg=tg)
            if n in hooks0: self.put(hooks0[n])
            pk_ = ps in self.o.get('fake', [])
            if pk_:
                if n % 2 == 0 and n + 4 < 100:
                    if (n + 4) % 20 == 0 and sync: self.group_sync((N0 + n + 4) // 20)
                    if len(p.ins) == k0: p("s_nop 0")
                    if n: self.wread(N0 + n + 4, 0)
                    self.wread(N0 + n + 5, 0)
                elif fill and n >= frange[0]: self.gap(fill, 2)
            elif look:
                if M % 20 == 0 and sync: self.group_sync((N0 + M) // 20)
                if len(p.ins) == k0: p("s_nop 0")
                self.wread(N0 + M, 0); self.wread(N0 + M, 1)
            elif fill and n >= frange[0]: self.gap(fill, 2)
            a = acc(accb, t, 1)
            p(f"{MF} {vq(a)}, {aq(s)}, {bop(ks, 1)}, {'0' if ks == 0 else vq(a)}")
            self.pos = N0 + n + 1
            self.stamp('n%d' % (N0 + n))
            did = 0
            for _ in range(pace(n)): did += self.tick()
            if n in hooks: self.put(hooks[n])
            if fill and n >= frange[0]:
                left = sum(c for c, _ in fill)
                gaps = sum(1 for k in range(n, frange[1]) if not pace(k)) + (min(D - 1, 99 - n) if last and frange[1] == 100 else 0)
                if pk_: gaps = sum(1 for k in range(n, frange[1]) if not pace(k)) + (frange[1] - n) // 2
                bud = 0 if did else 2
                if left > 2 * gaps: bud += 2
                if ps == 2 and left > 4 * gaps: bud = -(-left // max(gaps, 1))
                self.gap(fill, bud)
        while fill: self.put([fill.popleft()[1]])
        self.pos = N0 + 100
    def gap(self, fill, bud):
        first = True
        while fill:
            c, x = fill[0]
            solo = isinstance(x, tuple)
            if c > bud or (solo and not first): break
            fill.popleft(); self.put([x]); bud -= c
            if solo: break
            if c: first = False
    def cvt20(self, src, dst):
        return [(1, f"v_cvt_pk_bf16_f32 v{dst+i}, v{src+2*i}, v{src+2*i+1}") for i in range(10)]
    def phiA_parts(self, x, e, m, name, isq):
        P = {}
        kb = e + 28
        P['cvt'] = self.cvt20(x, kb) + [(1, f"v_mov_b32 v{kb+10}, 0"), (1, f"v_mov_b32 v{kb+11}, 0")]
        P['mf'] = [(2, f"{MF} {vq(x+4*t)}, {aq(A_PHI + (t*3+u)*4)}, {vq(kb+4*u)}, {'0' if u == 0 else vq(x+4*t)}") for t in range(5) for u in range(3)]
        P['exp'] = [(2, f"v_exp_f32 v{e+i}, v{x+i}") for i in range(20)] + [(2, f"v_exp_f32 v{e+20+i}, -v{x+i}") for i in range(20)]
        def sums():
            L = [f"v_pk_add_f32 v[{m+2*h}:{m+2*h+1}], v[{e+20*h}:{e+20*h+1}], v[{e+20*h+2}:{e+20*h+3}]" for h in range(2)]
            L += [f"v_pk_add_f32 v[{m+2*h}:{m+2*h+1}], v[{m+2*h}:{m+2*h+1}], v[{e+20*h+2*i}:{e+20*h+2*i+1}]" for i in range(2, 10) for h in range(2)]
            L += [f"v_add_f32 v{m+2*h}, v{m+2*h}, v{m+2*h+1}" for h in range(2)]
            return L
        nm = name + self.sfx
        L = sums() + [f"v_max_f32 v{m+1}, v{m}, v{m+2}", f"v_cmp_ngt_f32 vcc, 0x5d800000, v{m+1}"]
        if not isq: L.append(f"v_rcp_f32 v{m+4}, v{m}")
        L += [f"v_rcp_f32 v{m+2}, v{m+2}", [f"s_cbranch_vccnz {nm}_slow", f"{nm}_back:"]]
        o = Prog()
        o(f"{nm}_slow:")
        o(f"v_max3_f32 v{m}, v{x}, v{x+1}, v{x+2}"); o(f"v_min3_f32 v{m+1}, v{x}, v{x+1}, v{x+2}")
        for i in range(3, 19, 2):
            o(f"v_max3_f32 v{m}, v{m}, v{x+i}, v{x+i+1}"); o(f"v_min3_f32 v{m+1}, v{m+1}, v{x+i}, v{x+i+1}")
        o(f"v_max_f32 v{m}, v{m}, v{x+19}"); o(f"v_min_f32 v{m+1}, v{m+1}, v{x+19}")
        for i in range(20): o(f"v_sub_f32 v{e+i}, v{x+i}, v{m}"); o(f"v_sub_f32 v{e+20+i}, v{m+1}, v{x+i}")
        for i in range(40): o(f"v_exp_f32 v{e+i}, v{e+i}")
        for y in sums(): o(y)
        if not isq: o(f"v_rcp_f32 v{m+4}, v{m}")
        o(f"v_rcp_f32 v{m+2}, v{m+2}"); o("s_nop 1"); o(f"s_branch {nm}_back")
        self.ool.append(o.finalize())
        if isq: L.append(f"v_mul_f32 v{m+2}, v{m+2}, v{m}")
        else: L += [f"v_pk_mul_f32 v[{e+2*i}:{e+2*i+1}], v[{e+2*i}:{e+2*i+1}], v[{m+4}:{m+5}] op_sel_hi:[1,0]" for i in range(10)]
        L += [f"v_pk_mul_f32 v[{e+20+2*i}:{e+21+2*i}], v[{e+20+2*i}:{e+21+2*i}], v[{m+2}:{m+3}] op_sel_hi:[1,0]" for i in range(10)]
        if self.o.get('whatif') == ('q' if isq else 'k'): L = [y for y in L if not (isinstance(y, str) and y.startswith('v_pk_add') and y.split()[1] == y.split()[2])]
        if self.o.get('whatif') == ('Q' if isq else 'K'): L = [y for y in L if not (isinstance(y, str) and y.startswith('v_pk_') and y.split()[1] == y.split()[2])]
        P['norm'] = [(1, y) for y in L]
        P['out'] = [(1, f"v_cvt_pk_bf16_f32 v{x+i}, v{e+2*i}, v{e+2*i+1}") for i in range(20)]
        return P
    def weave(self, mf, va, per=2):
        va = deque(va); L = []
        for x in mf:
            L.append(x); b = per
            while va and va[0][0] <= b: b -= va[0][0]; L.append(va.popleft())
        return L + list(va)
    def phiB(self, x, e, packed):
        L = []
        if packed: L += [(1, f"v_pk_mul_f32 v[{e+2*i}:{e+2*i+1}], v[{x+2*i}:{x+2*i+1}], s[{S_L2E}:{S_NL2E}] op_sel_hi:[1,0]") for i in range(10)]
        else: L += [(1, f"v_mul_f32 v{e+i}, s{S_L2E}, v{x+i}") for i in range(20)]
        L += [(2, f"v_exp_f32 v{e+i}, v{e+i} clamp") for i in range(20)]
        L += [(1, f"v_max_f32 v{x+i}, {EPS}, v{x+i}") for i in range(20)]
        if packed: L += [(1, f"v_pk_add_f32 v[{e+2*i}:{e+2*i+1}], v[{e+2*i}:{e+2*i+1}], v[{x+2*i}:{x+2*i+1}]") for i in range(10)]
        else: L += [(1, f"v_add_f32 v{e+i}, v{e+i}, v{x+i}") for i in range(20)]
        L += self.cvt20(e, x)
        return L
    def checked(self, name, loads, check, tag):
        nm = name + self.sfx
        iss = [(x, tag) if x.startswith('buffer') else x for x in loads]
        chk = [(0, lambda: self.p.wait(vm=[tag]))] + [(1, x) for x in check] + [(1, [f"s_cbranch_vccnz {nm}_retry", f"{nm}_ok:"])]
        o = Prog()
        o(f"{nm}_retry:"); o(f"s_mov_b32 s{S_SPIN}, 0")
        if self.o.get('cnt') == name: o("s_mov_b32 s95, 1")
        o(f"{nm}_loop:")
        if self.o.get('stamps'): o(f"s_add_u32 s95, s95, {dict(L_xc=1000000, L_h1=10000, L_h2=1000, L_pf=10000000, L_f0=1, L_f1=100, L_d0=0, L_d1=100000)[name]}")
        bk = self.o.get('backoff', {}).get(name, 0)
        if bk: o(f"s_sleep {bk}")
        for x in loads: o(x)
        o("s_waitcnt vmcnt(0)")
        for x in check: o(x)
        o(f"s_cbranch_vccz {nm}_ok")
        o(f"s_add_u32 s{S_SPIN}, s{S_SPIN}, 1"); o(f"s_cmp_lt_u32 s{S_SPIN}, {SPIN_MAX}"); o(f"s_cbranch_scc1 {nm}_loop")
        o(f"s_branch {nm}_ok")
        self.ool.append(o.finalize())
        return iss, chk
    def body(self):
        p = self.p; A = self.A; F = self.F; br = 0 if A else 1; o = self.o
        t = TMP
        K = S_KA
        kx, kw, kout, kws = K, K + 2, K + 8, K + 10
        kphi, kwo = (K + 4, K + 6) if A else (None, K + 4)
        p.raw(f"""
        s_andn2_b32 s{T0}, 1, s2
        s_lshl_b32 s{T0}, s{T0}, 5
        s_load_dwordx8 s[{K}:{K+7}], s[0:1], s{T0}
        s_load_dwordx2 s[{kout}:{kout+1}], s[0:1], 56
        s_load_dwordx2 s[{kws}:{kws+1}], s[0:1], 72
        """)
        if o.get('stamps'): p("s_memtime s[96:97]"); p("s_mov_b32 s95, 0")
        if o.get('stamps') or o.get('amp') or o.get('cntm'): p("s_memrealtime s[98:99]")
        if o.get('cntm'): p("s_mov_b32 s95, 0")
        p.raw(f"""
        s_getpc_b64 s[60:61]
        L_pc:
        s_bfe_u32 s{S_HG}, s2, 0x30003
        v_and_b32 v{V_LANE}, 63, v0
        v_lshrrev_b32 v{t}, 6, v0
        s_bitcmp0_b32 s2, 0
        s_cselect_b32 s{T1}, L_setupB-L_setupA, 0
        s_lshl_b32 s{T0}, s{S_HG}, 12
        v_lshlrev_b32 v{V_L128}, 7, v{V_LANE}
        v_readfirstlane_b32 s{S_W}, v{t}
        s_add_u32 s{T0}, s{T0}, s{T1}
        s_add_u32 s{T0}, s{T0}, L_setupA-L_pc
        s_add_u32 s60, s60, s{T0}
        s_addc_u32 s61, s61, 0
        v_lshl_add_u32 v{t+1}, v{t}, 10, v{V_L128}
        s_mov_b64 exec, 0xff
        """)
        p(f"global_load_dword v{V_DUMP}, v{t+1}, s[60:61]", 'cpf')
        p("s_mov_b64 exec, -1")
        ra, rbm, rdiv = o.get('rot', (10, 10, 4))
        p.raw(f"""
        s_and_b32 s{S_RB}, s2, 6
        s_lshl_b32 s{S_RB}, s{S_RB}, 1
        s_lshr_b32 s{T0}, s2, 6
        s_add_u32 s{S_RB}, s{S_RB}, s{T0}
        s_mul_i32 s{T0}, s{S_HG}, {ra}
        s_mul_i32 s{T1}, s{S_RB}, {rbm}
        s_add_u32 s{T0}, s{T0}, s{T1}
        s_lshr_b32 s{T0}, s{T0}, {rdiv.bit_length()-1}
        s_mul_i32 s{T1}, s{T0}, 6554
        s_lshr_b32 s{T1}, s{T1}, 16
        s_mul_i32 s{T1}, s{T1}, 10
        s_sub_u32 s{T3}, s{T0}, s{T1}
        s_lshl_b32 s{S_XU}, s{T3}, 7
        s_lshl_b32 s{T0}, s{S_RB}, 2
        s_add_u32 s{T0}, s{T0}, s{S_W}
        s_mul_i32 s{S_XBASE}, s{T0}, 40960
        s_mul_i32 s{S_LW}, s{S_W}, 5120
        s_mul_i32 s{S_LR}, s{S_W}, {RW}
        s_add_u32 s{S_LR}, s{S_LR}, {RBASE}
        v_lshrrev_b32 v{t}, 3, v{V_LANE}
        v_mul_u32_u24 v{t}, 1280, v{t}
        v_lshrrev_b32 v{t+1}, 4, v{V_LANE}
        v_xor_b32 v{t+1}, v{t+1}, v{V_LANE}
        v_and_b32 v{t+1}, 7, v{t+1}
        v_lshl_add_u32 v{V_XO}, v{t+1}, 4, v{t}
        v_xor_b32 v{t+2}, 64, v{V_XO}
        v_add_u32 v{V_XO+1}, {9216}, v{t+2}
        v_add_u32 v{V_XO+2}, {2*9216}, v{V_XO}
        v_add_u32 v{V_XO+3}, {3*9216}, v{t+2}
        s_lshr_b32 s{T0}, s{S_W}, 1
        s_add_u32 s{T0}, s{T0}, s{T3}
        s_and_b32 s{T1}, s{S_W}, 1
        s_mul_i32 s{T1}, s{T1}, {32*3840}
        s_mul_i32 s{T2}, s{S_HG}, 160
        s_add_u32 s{T1}, s{T1}, s{T2}
        s_mov_b32 s{SX+2}, 2621440
        s_mov_b32 s{SX+3}, 0x20000
        s_mov_b32 s{SW+2}, 2457600
        s_mov_b32 s{SW+3}, 0x20000
        """)
        def wrow(g):
            p.raw(f"""
            s_cmp_ge_u32 s{T0}, 10
            s_cselect_b32 s{T2}, 10, 0
            s_sub_u32 s{T0}, s{T0}, s{T2}
            s_mul_i32 s{T2}, s{T0}, {64*3840}
            s_add_u32 s{S_WROW+g}, s{T2}, s{T1}
            s_add_u32 s{T0}, s{T0}, 2
            """)
        wrow(0)
        RH = TMP + 10
        def woff(j):
            b = RH + 5 * j
            p.raw(f"""
            v_add_u32 v{t}, {64*j}, v{V_LANE}
            v_mul_u32_u24 v{b+4}, 6554, v{t}
            v_lshrrev_b32 v{b+4}, 16, v{b+4}
            v_mul_u32_u24 v{t+2}, 10, v{b+4}
            v_sub_u32 v{b+3}, v{t}, v{t+2}
            v_bfe_u32 v{b}, v{b+4}, 2, 2
            v_lshrrev_b32 v{b+1}, 4, v{b+4}
            v_and_b32 v{b+2}, 3, v{b+4}
            v_lshl_add_u32 v{t}, v{b}, 1, v{b+1}
            v_lshl_add_u32 v{t}, v{t}, 2, v{b+2}
            v_mul_u32_u24 v{t}, 3840, v{t}
            v_lshl_add_u32 v{V_WO+j}, v{b+3}, 4, v{t}
            """)
            if 0 < j < 4: p(f"v_subrev_u32 v{V_WO+j}, {1024*j}, v{V_WO+j}")
        if o.get('fakeinit'):
            p.raw(f"""
            s_mul_i32 s94, s{S_HG}, 102400
            s_add_u32 s94, s94, s{S_LW}
            v_lshlrev_b32 v{V_LIN}, 4, v{V_LANE}
            v_mov_b32 v226, v{V_LIN}
            v_add_u32 v227, 51200, v{V_LIN}
            """)
        woff(0); woff(1)
        if o.get('pre0'): p("s_memtime s[92:93]")
        p.raw(f"""
        s_waitcnt lgkmcnt(0)
        s_mov_b32 s{SX}, s{kx}
        s_mov_b32 s{SX+1}, s{kx+1}
        s_mov_b32 s{SW}, s{kw}
        s_mov_b32 s{SW+1}, s{kw+1}
        """)
        if o.get('late0'): p.raw(f"s_and_b32 s60, s2, 7\ns_cmp_lg_u32 s60, 0\ns_cbranch_scc1 L_nd0\ns_sleep {o['late0']}\nL_nd0:")
        if o.get('bdelay'): p.raw(f"s_bitcmp1_b32 s2, 0\ns_cbranch_scc1 L_nd\ns_sleep {o['bdelay']}\nL_nd:")
        self.stamp('p0')
        if o.get('pre0'): p(f"s_sub_u32 s{S_ST+self.nst}, s92, s96"); self.nst += 1
        self.put(self.dma_x(0))
        w0 = self.dma_w(0)
        self.put(w0[0:2]); woff(2); self.put(w0[2]); woff(3); self.put(w0[3]); woff(4); self.put(w0[4])
        self.stamp('p1')
        if o.get('prowait'):
            p.wait(vm=['cpf']); self.stamp('p2')
            p.wait(vm=[('X', 0)]); self.stamp('p3')
            p.wait(vm=[('W', 0)]); self.stamp('p4')
        p("s_bitcmp0_b32 s2, 0"); p("s_cbranch_scc1 L_setupB")
        p(".split")
        p(f"L_setup{self.sfx}:")
        p(f"s_load_dword s{S_NONCE}, s[{kws}:{kws+1}], {br*128}")
        if not A:
            p(f"s_load_dword s{S_UTAG}, s[{kws}:{kws+1}], 0")
            p(f"s_load_dwordx2 s[{K+6}:{K+7}], s[0:1], 24")
        for g in range(1, 5): wrow(g)
        if o.get('bal'):
            nw, nx, where = o['bal']
            L_ = [f"s_add_u32 s{T0}, s{S_HG}, s{S_RB}", f"s_bitcmp1_b32 s{T0}, 0", f"s_cbranch_scc1 L_bal{self.sfx}",
                  f"s_cmp_ge_u32 s{S_W}, 2", f"s_cbranch_scc1 L_balx{self.sfx}",
                  f"s_mul_i32 s{T0}, s{S_W}, {32*3840 - 156}", f"s_sub_u32 s{T0}, s{S_WROW+2}, s{T0}", f"v_mul_u32_u24 v{TMP+104}, 3840, v{V_LANE}",
                  f"s_mov_b32 exec_lo, {hex(((1 << nw) - 1) & 0xffffffff)}", f"s_mov_b32 exec_hi, {hex(((1 << nw) - 1) >> 32)}",
                  f"buffer_load_dword v{V_DUMP}, v{TMP+104}, {srd(SW)}, s{T0} offen offset:1280", f"s_branch L_bal{self.sfx}",
                  f"L_balx{self.sfx}:",
                  f"s_mul_i32 s{T0}, s{S_RB}, {128*1280}", f"s_bfe_u32 s{T1}, s{S_HG}, 0x10002", f"s_lshl_b32 s{T1}, s{T1}, 1", f"s_add_u32 s{T1}, s{T1}, s{S_W}", f"s_sub_u32 s{T1}, s{T1}, 2",
                  f"s_mul_i32 s{T1}, s{T1}, {32*1280}", f"s_add_u32 s{T0}, s{T0}, s{T1}", f"s_lshl_b32 s{T1}, s{T3}, 7", f"s_add_u32 s{T0}, s{T0}, s{T1}", f"v_mul_u32_u24 v{TMP+104}, 1280, v{V_LANE}",
                  f"s_mov_b32 exec_lo, {hex((1 << nx) - 1)}", "s_mov_b32 exec_hi, 0",
                  f"buffer_load_dword v{V_DUMP}, v{TMP+104}, {srd(SX)}, s{T0} offen offset:512",
                  f"L_bal{self.sfx}:", "s_mov_b64 exec, -1"]
            if where == 0: p.untracked(L_)
            else:
                self.put(self.dma_x(1)); p.untracked(L_)
        if not (o.get('bal') and o['bal'][2]): self.q(0, self.dma_x(1))
        p.raw(f"""
        s_mov_b32 s{SWS}, s{kws}
        s_mov_b32 s{SWS+1}, s{kws+1}
        s_mov_b32 s{SWS+2}, {WS_SIZE}
        s_mov_b32 s{SWS+3}, 0x20000
        s_mov_b32 s{SOUT}, s{kout}
        s_mov_b32 s{SOUT+1}, s{kout+1}
        s_mov_b32 s{SOUT+2}, 5242880
        s_mov_b32 s{SOUT+3}, 0x20000
        s_lshl_b32 s{S_HEAD}, s{S_HG}, 2
        s_add_u32 s{S_HEAD}, s{S_HEAD}, s{S_W}
        v_lshlrev_b32 v{V_LIN}, 4, v{V_LANE}
        """)
        if A:
            p.raw(f"""
            s_mov_b32 s{SPHI}, s{kphi}
            s_mov_b32 s{SPHI+1}, s{kphi+1}
            s_mov_b32 s{SPHI+2}, 25600
            s_mov_b32 s{SPHI+3}, 0x20000
            """)
            self.q(0, [[f"s_mul_i32 s{S_WS}, s{S_HEAD}, 800",
                        (f"buffer_load_dwordx4 {vq(TMP+96)}, v{V_LIN}, {srd(SPHI)}, s{S_WS} offen", 'wphi')]])
        self.q(0, self.dma_w(1)); self.q(0, self.dma_x(2))
        G_, I_, R_, C_ = t, t + 1, t + 2, t + 3
        S = []
        def raw(txt):
            for l in txt.split('\n'):
                if l.strip(): S.append((1, l.strip()))
        raw(f"""
        v_lshrrev_b32 v{G_}, 4, v{V_LANE}
        v_and_b32 v{I_}, 15, v{V_LANE}
        v_bfe_u32 v{R_}, v{V_LANE}, 2, 2
        v_and_b32 v{C_}, 3, v{V_LANE}
        v_lshrrev_b32 v{t+4}, 1, v{I_}
        v_xor_b32 v{t+4}, v{t+4}, v{G_}
        v_lshlrev_b32 v{t+5}, 7, v{I_}
        v_lshl_add_u32 v{t+4}, v{t+4}, 4, v{t+5}
        v_add_u32 v{V_XR}, s{S_LR}, v{t+4}
        v_xor_b32 v{t+4}, 64, v{t+4}
        v_add_u32 v{V_XR+1}, s{S_LR}, v{t+4}
        v_lshrrev_b32 v{t+4}, 2, v{V_LANE}
        v_mul_u32_u24 v{t+5}, 160, v{t+4}
        v_mul_u32_u24 v{t+6}, 40, v{C_}
        v_add_u32 v{V_WT}, v{t+5}, v{t+6}
        v_add_u32 v{V_WT+1}, 51200, v{V_WT}
        v_mul_u32_u24 v{t+5}, 120, v{I_}
        v_mul_u32_u24 v{t+6}, 3840, v{G_}
        v_add3_u32 v{V_PW}, v{t+5}, v{t+6}, s{S_LR}
        v_mul_u32_u24 v{t+6}, 40, v{G_}
        v_mul_u32_u24 v{t+7}, {OUTS}, v{I_}
        s_mul_i32 s{T2}, s{S_W}, {32*OUTS}
        s_add_u32 s{T2}, s{T2}, {OUTL}
        v_add3_u32 v{V_OW}, v{t+7}, v{t+6}, s{T2}
        v_and_b32 v{t+5}, 7, v{t+4}
        v_lshrrev_b32 v{t+6}, 5, v{V_LANE}
        v_lshlrev_b32 v{t+6}, 1, v{t+6}
        v_lshl_add_u32 v{t+5}, v{t+5}, 2, v{t+6}
        v_mul_u32_u24 v{t+5}, 120, v{t+5}
        s_mul_i32 s{T0}, s{S_W}, 3840
        s_add_u32 s{T0}, s{T0}, {RBASE}
        v_add_u32 v{V_KA1}, s{T0}, v{t+5}
        v_lshl_add_u32 v{V_KB}, v{C_}, 3, v{V_KA1}
        s_mov_b32 s{S_L2E}, 0x3fb8aa3b
        s_mov_b32 s{S_NL2E}, 0xbfb8aa3b
        s_mov_b32 s{S_PERM}, 0x07060302
        s_and_b32 s{T3}, s{S_HG}, 1
        """)
        for j in range(5):
            b = RH + 5 * j
            if j < 3: raw(f"""
            v_mul_u32_u24 v{t+5}, {OUTS}, v{b+4}
            v_lshl_add_u32 v{t+5}, v{b+3}, 4, v{t+5}
            v_add_u32 v{V_ORD+j}, s{T2}, v{t+5}
            v_mul_u32_u24 v{t+5}, 2560, v{b+4}
            v_lshl_add_u32 v{V_OG+j}, v{b+3}, 4, v{t+5}
            """)
            if j == 2: raw(f"""
            v_lshrrev_b32 v{t+5}, 5, v{V_LANE}
            v_lshl_or_b32 v{V_OG+2}, v{t+5}, 30, v{V_OG+2}
            """)
        raw(f"""
        v_mov_b32 v{t+5}, 2304
        v_cmp_gt_u32 vcc, 16, v{V_LANE}
        v_mov_b32 v{t+6}, 1024
        v_cndmask_b32 v{t+5}, v{t+5}, v{t+6}, vcc
        v_add_u32 v{V_OO+1}, v{t+5}, v{V_LIN}
        v_mov_b32 v{V_OO}, v{V_LIN}
        v_add_u32 v{V_OO+2}, 40960, v{V_LIN}
        v_add_u32 v{V_OO+3}, 40960, v{V_OO+1}
        v_lshrrev_b32 v{t+4}, 5, v{V_LANE}
        v_mul_u32_u24 v{t+4}, {40960-512}, v{t+4}
        v_add_u32 v{t+5}, 3328, v{V_LIN}
        v_add_u32 v{V_OO+4}, v{t+4}, v{t+5}
        v_add_u32 v{V_LINH}, 51200, v{V_LIN}
        v_min_u32 v{V_PF}, 39, v{V_LANE}
        v_lshlrev_b32 v{V_PF}, 3, v{V_PF}
        v_and_b32 v{t+4}, 1, v{RH+4}
        v_mul_u32_u24 v{t+4}, 2560, v{t+4}
        v_lshrrev_b32 v{t+5}, 1, v{RH+4}
        v_mul_u32_u24 v{t+5}, 40960, v{t+5}
        v_lshlrev_b32 v{t+6}, 7, v{RH+3}
        v_add3_u32 v{V_L128}, v{t+4}, v{t+5}, v{t+6}
        """)
        raw(f"""
        s_lshl_b32 s{T0}, s{T3}, 1
        s_xor_b32 s{T0}, s{T0}, s{S_W}
        s_mul_i32 s{T0}, s{T0}, 5120
        s_mul_i32 s{T2}, s{S_HG}, 102400
        s_add_u32 s{T2}, s{T2}, {WS_PK + br*819200}
        s_add_u32 s{T0}, s{T0}, s{T2}
        s_lshr_b32 s{S_SPIN}, s{S_HG}, 1
        s_add_u32 s{T1}, s{S_SPIN}, s{S_W}
        s_and_b32 s{T1}, s{T1}, 3
        s_add_u32 s{T1}, s{T1}, 16
        s_mul_i32 s{T1}, s{T1}, 5120
        s_add_u32 s{S_WOROW+4}, s{T1}, s{T2}
        s_lshr_b32 s{S_PFL}, s{S_HG}, 2
        s_lshl_b32 s{S_PFL}, s{S_PFL}, 9
        s_add_u32 s{S_PFL}, s{S_PFL}, {WS_PF + br*1024}
        s_mul_i32 s{T2}, s{S_HG}, 160
        s_lshl_b32 s{S_OUT}, s{S_XBASE}, 1
        s_add_u32 s{S_OUT}, s{S_OUT}, s{T2}
        s_add_u32 s{S_OUT}, s{S_OUT}, {br*1280}
        s_lshl_b32 s{S_OB}, s{S_XBASE}, 1
        s_add_u32 s{S_OB}, s{S_OB}, {br*1280}
        """)
        for g in range(4):
            raw(f"""
            s_add_u32 s{T1}, s{S_SPIN}, {g}
            s_and_b32 s{T1}, s{T1}, 3
            s_mul_i32 s{T2}, s{T1}, 20480
            s_add_u32 s{S_WOROW+g}, s{T2}, s{T0}
            s_lshl_b32 s{T1}, s{T1}, 1
            s_add_u32 s{T1}, s{T1}, s{T3}
            s_mul_i32 s{T2}, s{T1}, 5120
            s_add_u32 s{S_OP+2*g}, s{T2}, s{S_OB}
            s_xor_b32 s{T1}, s{T1}, 1
            s_mul_i32 s{T2}, s{T1}, 5120
            s_add_u32 s{S_OP+2*g+1}, s{T2}, s{S_OB}
            """)
        SH = 8 if A else 7
        raw(f"""
        s_lshl_b32 s{T0}, s{S_RB}, 2
        s_add_u32 s{T0}, s{T0}, s{S_W}
        s_lshl_b32 s{S_FLAG}, s{T0}, 7
        s_add_u32 s{S_FLAG}, s{S_FLAG}, {WS_FLAG + br*64*128}
        s_lshl_b32 s{T0}, s{S_HEAD}, 16
        s_add_u32 s{T0}, s{T0}, {WS_P1 + br*32*65536}
        s_lshl_b32 s{T1}, s{S_RB}, 12
        s_add_u32 s{S_P1ST}, s{T0}, s{T1}
        s_min_u32 s{T1}, s{S_RB}, 14
        s_lshl_b32 s{T1}, s{T1}, {SH}
        s_add_u32 s{S_P1LD}, s{T0}, s{T1}
        s_lshl_b32 s{T0}, s{S_HEAD}, 12
        s_add_u32 s{S_P2LD}, s{T0}, {WS_P2 + br*32*4096}
        s_add_u32 s{S_P2ST}, s{S_P2LD}, s{T1}
        s_lshr_b32 s{T1}, s{S_RB}, {4 - o.get('p2log', 2)}
        s_lshl_b32 s{T1}, s{T1}, 18
        s_add_u32 s{S_P2LD}, s{S_P2LD}, s{T1}
        v_mul_u32_u24 v{t+4}, {F if A else 16}, v{G_}
        v_add_lshl_u32 v{V_P1ST}, v{t+4}, v{I_}, 4
        v_mul_u32_u24 v{t+4}, {F if A else 4}, v{G_}
        v_add_lshl_u32 v{t+5}, v{t+4}, v{I_}, 4
        v_lshrrev_b32 v{t+4}, {3 if A else 2}, v{I_}
        v_lshl_or_b32 v{V_P1M}, v{t+4}, 28, v{t+5}
        v_lshrrev_b32 v{t+4}, 1, v{G_}
        v_lshl_or_b32 v{V_P1M+1}, v{t+4}, 30, v{V_P1ST}
        v_lshl_or_b32 v{V_P1M+2}, v{t+4}, 30, v{V_P1M}
        v_cmp_gt_u32 vcc, 4, v{I_}
        v_cndmask_b32 v{V_KEEP}, 0, -1, vcc
        v_mov_b32 v{t+4}, 0x3f803f80
        v_cmp_eq_u32 vcc, 4, v{I_}
        v_cndmask_b32 v{V_ONE}, 0, v{t+4}, vcc
        v_and_b32 v{t+4}, 7, v{V_LANE}
        v_lshlrev_b32 v{V_F8}, 2, v{t+4}
        s_lshl_b32 s{T0}, s{S_HG}, 2
        v_min_u32 v{V_FOWN}, 1, v{V_LANE}
        v_lshlrev_b32 v{V_FOWN}, 30, v{V_FOWN}
        v_or_b32 v{V_FOWN}, s{T0}, v{V_FOWN}
        v_lshlrev_b32 v{V_ZA}, 3, v0
        v_add_u32 v{V_ZA}, {RBASE+7680}, v{V_ZA}
        """)
        if A:
            raw(f"""
            v_lshlrev_b32 v{t+5}, 12, v{G_}
            v_lshl_add_u32 v{V_P1LD}, v{I_}, 4, v{t+5}
            v_lshlrev_b32 v{V_P2ST}, 2, v{V_LANE}
            """)
        else:
            raw(f"""
            v_lshrrev_b32 v{t+5}, 3, v{V_LANE}
            v_lshlrev_b32 v{t+5}, 12, v{t+5}
            v_lshl_add_u32 v{V_P1LD}, v{t+4}, 4, v{t+5}
            v_lshl_add_u32 v{V_P2ST}, v{G_}, 5, v{V_F8}
            """)
        RS = 80 if A else 48
        HS = 24 * RS
        NQ = 240 if A else 120
        NI = 4 if A else 2
        raw(f"s_mul_i32 s{T0}, s{S_W}, {HS}\ns_add_u32 s{T0}, s{T0}, {RBASE}")
        u = t + 4
        for ii in range(NI):
            raw(f"v_add_u32 v{u}, {64*ii}, v{V_LANE}")
            if ii == NI - 1:
                raw(f"""v_subrev_u32 v{u+1}, 64, v{u}
                v_cmp_gt_u32 vcc, {NQ}, v{u}
                v_cndmask_b32 v{u}, v{u+1}, v{u}, vcc
                v_lshlrev_b32 v{V_GAL}, 4, v{u}""")
            if A:
                raw(f"""
                v_lshrrev_b32 v{u+1}, 4, v{u}
                v_and_b32 v{u+2}, 3, v{u}
                v_lshl_add_u32 v{u+1}, v{u+1}, 2, v{u+2}
                v_bfe_u32 v{u+2}, v{u}, 2, 2
                v_mul_u32_u24 v{u+3}, 6554, v{u+1}
                v_lshrrev_b32 v{u+3}, 16, v{u+3}
                v_mul_u32_u24 v{u+4}, 10, v{u+3}
                """)
            else:
                raw(f"""
                v_lshrrev_b32 v{u+1}, 3, v{u}
                v_and_b32 v{u+2}, 1, v{u}
                v_lshl_add_u32 v{u+1}, v{u+1}, 1, v{u+2}
                v_bfe_u32 v{u+2}, v{u}, 1, 2
                v_cmp_gt_u32 vcc, 24, v{u+1}
                v_lshrrev_b32 v{u+3}, 2, v{u+1}
                v_subrev_u32 v{u+4}, 24, v{u+1}
                v_cndmask_b32 v{u+3}, v{u+4}, v{u+3}, vcc
                v_and_b32 v{u+1}, 3, v{u+1}
                v_cndmask_b32 v{u+1}, 4, v{u+1}, vcc
                v_mov_b32 v{u+4}, 0
                """)
            raw(f"""
            v_sub_u32 v{u+1}, v{u+1}, v{u+4}
            v_lshl_add_u32 v{u+3}, v{u+3}, 2, v{u+2}
            v_mul_u32_u24 v{u+3}, {RS}, v{u+3}
            v_lshl_add_u32 v{u+3}, v{u+1}, 3, v{u+3}
            v_add_u32 v{V_LA+ii}, s{T0}, v{u+3}
            """)
        raw(f"""
        v_cmp_eq_u32 vcc, v{G_}, v{R_}
        v_mul_u32_u24 v{u}, {HS}, v{G_}
        v_mul_u32_u24 v{u+1}, {RS}, v{C_}
        v_add_u32 v{u}, v{u}, v{u+1}
        v_add_u32 v{u}, {RBASE}, v{u}
        v_mov_b32 v{u+1}, {RBASE+7680}
        v_cndmask_b32 v{V_FR2}, v{u+1}, v{u}, vcc
        """)
        if A:
            raw(f"""
            v_mov_b32 v{t+36}, 0
            v_mov_b32 v{t+37}, 0
            v_mov_b32 v{t+38}, 0
            v_mov_b32 v{t+39}, 0
            v_add_u32 v{TMP+100}, s{S_LR}, v{V_LIN}
            ds_write_b128 v{TMP+100}, {vq(t+36)} offset:13312
            v_mul_u32_u24 v{t+4}, {RW}, v{G_}
            v_mul_u32_u24 v{t+5}, 40, v{R_}
            v_add_u32 v{t+4}, v{t+4}, v{t+5}
            v_add_u32 v{t+4}, {RBASE+12288}, v{t+4}
            s_add_u32 s{T0}, s{S_LR}, 13312
            v_mov_b32 v{t+5}, s{T0}
            v_cmp_eq_u32 vcc, v{C_}, v{G_}
            v_cndmask_b32 v{V_FR}, v{t+5}, v{t+4}, vcc
            """)
            for tt in range(5):
                a = A_PHI + (tt * 3 + 2) * 4
                raw(f"v_accvgpr_write_b32 a{a+2}, 0\nv_accvgpr_write_b32 a{a+3}, 0")
        US, UA, UD = TMP + 40, TMP + 45, TMP + 80
        nA = o.get('nA', 0); prod = (not A) or nA > 0
        S_UOK = 92
        if prod:
            if o.get('umap', 1) == 0: umap = f"""s_add_u32 s{T1}, s{S_HG}, s{S_RB}
            s_and_b32 s{T1}, s{T1}, 1
            s_lshl_b32 s{T0}, s{S_W}, 1
            s_add_u32 s{T0}, s{T0}, s{T1}
            s_lshl_b32 s{T0}, s{T0}, 3
            s_add_u32 s{T0}, s{T0}, s{S_HG}
            s_lshl_b32 s{T0}, s{T0}, 3
            s_lshr_b32 s{T1}, s{S_RB}, 1
            s_add_u32 s{T0}, s{T0}, s{T1}
            s_add_u32 s{T0}, s{T0}, {0 if A else nA}
            s_cmp_lt_u32 s{T0}, {nA if A else 320}
            s_cselect_b32 s{S_UOK}, 1, 0"""
            elif o.get('umap', 1) == 1:
                umap = f"""s_lshr_b32 s{T1}, s{S_RB}, 2
                s_mul_i32 s{T0}, s{T1}, 3
                s_add_u32 s{T0}, s{T0}, s{S_W}
                s_sub_u32 s{T0}, s{T0}, 2
                s_cmp_eq_u32 s{T1}, 0
                s_cselect_b32 s{T0}, 0, s{T0}
                s_cselect_b32 s{T1}, 1, 3
                s_cmp_lt_u32 s{S_W}, s{T1}
                s_cselect_b32 s{S_UOK}, 1, 0
                s_lshl_b32 s{T0}, s{T0}, 5
                s_lshr_b32 s{T1}, s2, 3
                s_add_u32 s{T0}, s{T0}, s{T1}"""
            else:
                umap = f"""s_lshr_b32 s{T1}, s{S_RB}, 2
                s_sub_u32 s{T1}, s{T1}, 1
                s_add_u32 s{T2}, s{S_HG}, s{S_RB}
                s_and_b32 s{T2}, s{T2}, 1
                s_lshl_b32 s{T0}, s{S_W}, 1
                s_add_u32 s{T0}, s{T0}, s{T2}
                s_lshl_b32 s{T0}, s{T0}, 4
                s_lshr_b32 s{T2}, s2, 4
                s_add_u32 s{T0}, s{T0}, s{T2}
                s_mul_i32 s{T0}, s{T0}, 3
                s_add_u32 s{T0}, s{T0}, s{T1}
                s_cmp_lt_u32 s{T0}, 320
                s_cselect_b32 s{S_UOK}, 1, 0
                s_cmp_lt_u32 s{S_RB}, 4
                s_cselect_b32 s{S_UOK}, 0, s{S_UOK}"""
            iS0 = len(S)
            S.append((1, [x.strip() for x in f"""
            {umap}
            s_waitcnt lgkmcnt(0)
            s_cmp_lt_u32 s{T0}, 160
            s_cselect_b32 s{SWO}, s{K+6}, s{kwo}
            s_cselect_b32 s{SWO+1}, s{K+7}, s{kwo+1}
            s_cselect_b32 s{S_UTAG}, s{S_NONCE if A else S_UTAG}, s{S_NONCE}
            s_cselect_b32 s{T1}, 0, 160
            s_cselect_b32 s{S_UDST}, 0, 819200
            s_cselect_b32 s{S_UFL}, 0, 1024
            s_mov_b32 s{SWO+2}, 819200
            s_mov_b32 s{SWO+3}, 0x20000
            s_add_u32 s{S_UTAG}, s{S_UTAG}, 0x9e3779b1
            s_sub_u32 s{T0}, s{T0}, s{T1}
            s_and_b32 s{T1}, s{T0}, 1
            s_mul_i32 s{S_USRC}, s{T1}, 640
            s_mul_i32 s{T2}, s{T1}, 409600
            s_add_u32 s{S_UDST}, s{S_UDST}, s{T2}
            s_lshl_b32 s{T2}, s{T1}, 9
            s_add_u32 s{S_UFL}, s{S_UFL}, s{T2}
            s_lshr_b32 s{T1}, s{T0}, 1
            s_lshl_b32 s{T2}, s{T1}, 2
            s_add_u32 s{S_UFL}, s{S_UFL}, s{T2}
            s_add_u32 s{S_UFL}, s{S_UFL}, {WS_PF}
            s_and_b32 s{T1}, s{T1}, 3
            s_mul_i32 s{T2}, s{T1}, {20*1280}
            s_add_u32 s{S_USRC}, s{S_USRC}, s{T2}
            s_lshl_b32 s{T2}, s{T1}, 8
            s_add_u32 s{S_UDST}, s{S_UDST}, s{T2}
            s_lshr_b32 s{T1}, s{T0}, 3
            s_mul_i32 s{T2}, s{T1}, 5120
            s_add_u32 s{S_UDST}, s{S_UDST}, s{T2}
            s_add_u32 s{S_UDST}, s{S_UDST}, {WS_PK}
            s_lshr_b32 s{T2}, s{T1}, 1
            s_mul_i32 s{T2}, s{T2}, 80
            s_and_b32 s{T3}, s{T1}, 1
            s_lshl_b32 s{T3}, s{T3}, 3
            s_add_u32 s{T2}, s{T2}, s{T3}
            s_mul_i32 s{T3}, s{T1}, 160
            s_sub_u32 s{T3}, s{T3}, {16*160 - 16}
            s_cmp_ge_u32 s{T1}, 16
            s_cselect_b32 s{T2}, s{T3}, s{T2}
            s_cselect_b32 s{T3}, 1, 0
            s_mul_i32 s{T2}, s{T2}, 1280
            s_add_u32 s{S_USRC}, s{S_USRC}, s{T2}
            s_mul_i32 s{T1}, s{T3}, {76*1280}
            s_add_u32 s{T2}, s{S_LW}, {RING + 4*SLOT}
            """.split('\n') if x.strip()]))
            for j in range(5):
                raw(f"""
                v_lshrrev_b32 v{t+4}, 2, v{RH+5*j+4}
                v_mul_u32_u24 v{t+5}, 640, v{t+4}
                v_lshrrev_b32 v{t+4}, 2, v{t+4}
                v_mul_u32_u24 v{t+4}, s{T1}, v{t+4}
                v_add3_u32 v{US+j}, v{t+4}, v{t+5}, v{V_LIN}
                """)
            raw(f"v_add_u32 v{US+4}, 4096, v{US+4}")
            iS1 = len(S)
            raw(f"""
            v_mul_u32_u24 v{t+7}, 640, v{R_}
            v_mul_u32_u24 v{t+8}, 40, v{C_}
            v_add3_u32 v{t+7}, v{t+7}, v{t+8}, s{T2}
            """)
            for j in range(5):
                raw(f"""
                v_add_u32 v{t+4}, {4*j}, v{G_}
                v_mul_u32_u24 v{t+5}, 13108, v{t+4}
                v_lshrrev_b32 v{t+5}, 16, v{t+5}
                v_mul_u32_u24 v{t+6}, 120, v{t+5}
                v_lshl_add_u32 v{t+6}, v{t+4}, 3, v{t+6}
                v_add_u32 v{t+6}, v{t+6}, v{t+7}
                v_and_b32 v{t+8}, s{T3}, v{t+5}
                v_mul_u32_u24 v{t+8}, 2560, v{t+8}
                v_add_u32 v{UA+2*j}, v{t+6}, v{t+8}
                v_sub_u32 v{t+6}, v{t+6}, v{t+8}
                v_add_u32 v{UA+2*j+1}, 2560, v{t+6}
                v_mul_u32_u24 v{t+5}, {102400 - 5120}, v{t+5}
                v_lshl_add_u32 v{t+5}, v{t+4}, 10, v{t+5}
                v_lshl_add_u32 v{UD+j}, v{I_}, 4, v{t+5}
                """)
            mark = {}
            def cond(name, lines):
                p.untracked([f"s_cmp_eq_u32 s{S_UOK}, 0", f"s_cbranch_scc1 {name}{self.sfx}"] + lines + [f"{name}{self.sfx}:"])
                mark[name] = p.nvm
            L = [f"s_add_u32 m0, s{S_LW}, {RING + 4*SLOT}"]
            for j in range(5):
                off = f"offset:{j*1024} " if 0 < j < 4 else ""
                L.append(f"buffer_load_dwordx4 v{US+j}, {srd(SWO)}, s{S_USRC} offen {off}lds")
                if j == 3: L.append(f"s_add_u32 m0, s{S_LW}, {RING + 4*SLOT + 4096}")
            un = [[lambda L=L: cond("L_u1", L)]]
            if o.get('uissue', 0) == 0: self.q(10**6 + 77, un)
            if o.get('uissue', 0) == -1: S = S[:4] + S[iS0:iS1] + [(0, un[0])] + S[iS1:] + S[4:iS0]
        self.run(S, every=o.get('proev', 60))
        self.stamp('p5')
        if o.get('uissue', 0) == 0: self.release(77)
        def urd():
            assert not any(x.tag == ('W', 4) for x in p.ins)
            cond("L_u2r", [f"s_waitcnt vmcnt({p.nvm - mark['L_u1']}) lgkmcnt(0)"] +
                [f"ds_read_b64_tr_b16 {vq(TMP+60+2*k, 2)}, v{UA+k}" for k in range(10)] + ["s_waitcnt lgkmcnt(0)"])
        def ust(j): cond("L_u2" + "abcd "[j].strip(), [f"buffer_store_dwordx4 {vq(TMP+60+4*j)}, v{UD+j}, {srd(SWS)}, s{S_UDST} offen sc1"])
        if o.get('hops', 1):
            p("s_mov_b64 exec, 0")
            for w_ in range(3): p(f"s_cmp_eq_u32 s{S_W}, {w_}"); p(f"s_cbranch_scc1 L_hop{w_}{self.sfx}")
            p(f"s_branch L_hop3{self.sfx}")
            p(f"L_hopret{self.sfx}:")
            p("s_mov_b64 exec, -1")
        if prod and o.get('upos', (0,))[0] < 0:
            while len(self.dq) > -o['upos'][0] - 1 and self.tick(): pass
            urd()
            for j in range(5): ust(j)
        while len(self.dq) > o.get('prokeep', 0) and self.tick(): pass
        p.raw(f"""
        s_getreg_b32 s{T0}, hwreg(HW_REG_XCC_ID, 0, 4)
        s_waitcnt lgkmcnt(0)
        s_add_u32 s{S_NONCE}, s{S_NONCE}, 0x9e3779b1
        s_lshl_b32 s{T0}, s{T0}, 28
        s_xor_b32 s{S_XCCV}, s{T0}, s{S_NONCE}
        v_mov_b32 v{V_NONCE}, s{S_NONCE}
        v_and_b32 v{V_VW}, 1, v{V_LANE}
        v_lshlrev_b32 v{V_VW}, 4, v{V_VW}
        v_lshrrev_b32 v{V_VW}, v{V_VW}, v{V_NONCE}
        v_mov_b32 v{V_KA0}, s{S_XCCV}
        s_add_u32 s{S_XA}, s{S_FLAG}, {WS_XCC - WS_FLAG}
        """)
        xst = [(f"buffer_store_dword v{V_KA0}, v{V_FOWN}, {srd(SWS)}, s{S_XA} offen sc1", 'xcc')]
        x1, x2, x3 = o.get('xpos', (-1, 58, 88))
        if x1 < 0: self.put(xst)
        self.stamp()
        p(f"s_branch L_main{self.sfx}")
        p(".p2align 12")
        p(f"L_main{self.sfx}:")
        xb = lambda ks, rt: aq((ks * 2 + rt) * 4)
        xbp = lambda ps: (lambda ks, rt: xb(4 * (4 - ks // 4) + ks % 4, rt)) if ps in o.get('rev', [1, 2]) else xb
        for pu in range(0, 7):
            if (pu + 3) % 2 == 0: self.q(0, self.dma_w((pu + 3) // 2))
            self.q(10 * pu, self.dma_x(pu + 3))
            if prod and o.get('uissue', 0) == pu + 1: self.q(0, un)
        for G in range(5, 10): self.q(10**6 + 1 if G % 5 >= 3 else 20 * (G - 3) - 4, self.dma_w(G))
        for G in range(10, 13): self.q(20 * (G - 3) - 3, self.dma_w(G))
        for G in range(13, 20): self.q(10**6 + G, self.dma_w(G))
        hooks = {}
        for pu in range(1, 10):
            hooks[10 * pu - 5] = [lambda pu=pu: self.xread(pu, 0), lambda pu=pu: self.xread(pu, 1)]
            hooks[10 * pu - 4] = [lambda pu=pu: self.xread(pu, 2), lambda pu=pu: self.xread(pu, 3)]
        if A:
            rd = [(tt, u_, hf) for tt in range(5) for u_ in range(3) for hf in range(2 if u_ < 2 else 1)]
            w = TMP + 96; u2 = TMP + 102
            sc = [lambda: p.wait(vm=['wphi'])]
            for j in range(4):
                sc += [f"v_lshlrev_b32 v{u2}, 16, v{w+j}", f"v_and_b32 v{u2+1}, 0xffff0000, v{w+j}", f"v_mul_f32 v{u2}, s{S_L2E}, v{u2}",
                       f"v_mul_f32 v{u2+1}, s{S_L2E}, v{u2+1}", f"v_cvt_pk_bf16_f32 v{w+j}, v{u2}, v{u2+1}"]
            hooks[8] = sc + [(f"ds_write_b128 v{TMP+100}, {vq(w)} offset:12288", 'phw')]
            hooks[14] = [lambda: p.wait(lg=['phw'])]
            slots = [n for n in range(21, 90) if n % 10 in (0, 1, 2, 3)][:25]
            for k, n in enumerate(slots):
                hooks[n] = [(f"ds_read_b64_tr_b16 a[{A_PHI + (tt*3+u_)*4 + 2*hf}:{A_PHI + (tt*3+u_)*4 + 2*hf + 1}], v{V_FR} offset:{(8*u_+4*hf)*40 + 8*tt}", 'phi')
                            for tt, u_, hf in rd[k:k+1]]
        late3 = {}
        if prod:
            UR = TMP + 60
            u1, u2_, u3 = o.get('upos', (18, 18, 62))
            if u1 >= 0: hooks.setdefault(u1, []).append(urd)
            for j in range(5):
                uj = u2_ + o.get('ustep', 0) * j
                if uj >= 0: (hooks if uj < 100 else late3).setdefault(uj % 100, []).append(lambda j=j: ust(j))
            (hooks if u3 < 100 else late3).setdefault(u3 % 100, []).append(lambda: cond("L_u3", [f"s_waitcnt vmcnt({p.nvm - mark['L_u2']})", f"v_mov_b32 v{V_DUMP}, s{S_UTAG}", "s_mov_b64 exec, 1",
                         f"buffer_store_dword v{V_DUMP}, v{V_LIN}, {srd(SWS)}, s{S_UFL} offen sc1", "s_mov_b64 exec, -1"]))
        KBV = [V_KB, 17, 18, 19]; KAV = [V_KA1, 20, 21, 22]
        if o.get('kvown', 0):
            for kk in (1, 2, 3, 0):
                hooks.setdefault(89 + 2 * ((kk + 3) % 4), []).extend([f"s_add_u32 s{T2}, s{S_W}, {kk}", f"s_and_b32 s{T2}, s{T2}, 3", f"s_mul_i32 s{T2}, s{T2}, {RW}"])
                hooks.setdefault(90 + 2 * ((kk + 3) % 4), []).extend([f"v_add_u32 v{KBV[kk]}, s{T2}, v{V_KB}", f"v_add_u32 v{KAV[kk]}, s{T2}, v{V_KA1}"])
        XV = TMP + 92
        iss, chk = self.checked("L_xc", [f"buffer_load_dword v{XV}, v{V_F8}, {srd(SWS)}, s{S_XA} offen sc1"],
                                [f"v_xor_b32 v{XV+1}, s{S_NONCE}, v{XV}", f"v_lshlrev_b32 v{XV+1}, 4, v{XV+1}", f"v_cmp_ne_u32 vcc, 0, v{XV+1}"], 'xl')
        xv, xq = {}, {}
        def xh(pos, L): [hooks, xv, xq][pos // 100].setdefault(pos % 100, []).extend(L)
        if x1 >= 0: xh(x1, xst)
        xh(x2, iss)
        c_ = [x for _, x in chk]
        xh(x3, c_[:3]); xh(x3 + 1, c_[3:4]); xh(x3 + 2, c_[4:] + [f"v_cmp_ne_u32 vcc, s{S_XCCV}, v{XV}"])
        xh(x3 + 3, [f"s_mov_b32 s{S_FAST}, {1 if o.get('nofast') else 'vcc_lo'}", f"s_add_u32 s{T0}, s{SWS}, {WS_O}", f"s_addc_u32 s{T1}, s{SWS+1}, 0"])
        xh(x3 + 4, [f"s_cmp_eq_u32 s{S_FAST}, 0", f"s_cselect_b32 s{SO}, s{SOUT}, s{T0}", f"s_cselect_b32 s{SO+1}, s{SOUT+1}, s{T1}"])
        xh(x3 + 5, [f"s_mov_b32 s{SO+2}, 5242880", f"s_mov_b32 s{SO+3}, 0x20000"])
        self.group_sync(0)
        for k in range(4): self.xread(0, k)
        self.prime(0, sync=False)
        kp = o.get('kpace', 3)
        k1p = {0: lambda n: 1 if n % 3 != 2 else 0, 1: lambda n: 1, 2: lambda n: 2 if n % 10 < 2 else (1 if n % 10 < 5 else 0), 3: lambda n: 1 if n % 4 != 3 else 0}[o.get('k1', 0)]
        self.gemm_pass(0, ACC_K, xb, hooks=hooks, last=True, pace=lambda n: k1p(n) if n < o.get('ksw', 69) else (1 if n % kp == 0 else 0))
        self.stamp()
        E0, E1, M0_, M1_ = TMP, TMP + 40, TMP + 80, TMP + 86
        x0, x1 = acc(ACC_K, 0, 0), acc(ACC_K, 0, 1)
        tagset = [f"s_bfe_u32 s{S_TB+j}, s{S_NONCE}, {hex(0x80000 + 8*j)}" for j in range(4)] + [f"s_lshr_b32 s{S_NHI}, s{S_NONCE}, 16"]
        if o.get('amp'):
            p.raw(f"""
            s_load_dwordx2 s[88:89], s[0:1], 64
            s_not_b32 s{T0}, s98
            v_mov_b32 v{TMP+94}, 0
            v_mov_b32 v{TMP+95}, s{T0}
            s_lshr_b32 s{T0}, s2, 3
            s_or_b32 s{T0}, s{T0}, s{S_W}
            s_cmp_eq_u32 s{T0}, 0
            s_cselect_b32 s{T0}, 0, 64
            v_mov_b32 v{TMP+94}, s{T0}
            s_waitcnt lgkmcnt(0)
            s_cbranch_scc0 L_noat{self.sfx}
            s_mov_b64 exec, 1
            """)
            p.ins.append(__import__('emit').Ins(f"global_atomic_umax v{TMP+94}, v{TMP+95}, s[88:89] sc1"))
            p("s_mov_b64 exec, -1")
            p(f"L_noat{self.sfx}:")
        wr = lambda rt, x, n, o8: [(2, (f"ds_write_b64 v{V_PW}, {vq(x+2*j, 2)} offset:{rt*1920 + o8 + 8*j}", 'pw')) for j in range(n)]
        def mixw(out, w): return [y for j in range(len(w)) for y in out[2*j:2*j+2] + [w[j]]]
        burst = lambda L: [(0, [x for _, x in L])]
        dm = (2, lambda: self.tick())
        if A:
            P0 = self.phiA_parts(x0, E0, M0_, "L_k0", False); P1 = self.phiA_parts(x1, E1, M1_, "L_k1", False)
            pr = [(0, lambda: (self.group_sync(5), self.release(1)))]
            pr = pr + [(1, lambda n=n, hf=hf: self.wread(100 + n, hf)) for n in range(D - 1) for hf in range(2)]
            hx = o.get('hx', 0)
            if hx == 0:
                self.put([x for _, x in [dm] + P0['cvt'] + self.weave(P0['mf'], [dm] + P1['cvt'] + [dm] + P0['exp'][:4]) + self.weave(P1['mf'], [dm] + P0['exp'][4:12] + [dm] + pr)])
                f0 = P0['exp'][12:] + burst(P0['norm'])
            elif hx < 0:
                pr = [y for k_, y in enumerate(pr) if k_ == 0 or k_ % 2 == 1]
                self.put([x for _, x in [dm] + P0['cvt'] + self.weave(P0['mf'], [dm] + P1['cvt'] + P0['exp'][:7] + [dm]) + self.weave(P1['mf'], P0['exp'][7:14] + [dm] + P0['exp'][14:16] + pr + P0['exp'][16:18])])
            else:
                self.put([x for _, x in [dm] + P0['cvt'] + self.weave(P0['mf'], [dm] + P1['cvt'] + P0['exp'][:7] + [dm]) + self.weave(P1['mf'], P0['exp'][7:14] + [dm] + P0['exp'][14:21])])
                nb_ = 10 if o.get('whatif') != 'K' else 1
                self.run(P0['exp'][21:] + P0['norm'][:-nb_], every=hx)
                self.put([x for _, x in pr + P0['norm'][-nb_:]])
                f0 = []
            def tailf(P, rt, x, e, m, sc, head_done):
                nb = P['norm'][:len(P['norm']) - sc]
                L = [] if head_done else burst(nb)
                w_ = wr(rt, x, 10, 0)
                for j in range(10):
                    for i in (2 * j, 2 * j + 1):
                        if i >= 20 - sc: L += [(1, f"v_mul_f32 v{e+2*i+h}, v{e+2*i+h}, v{m+4 if i < 10 else m+2}") for h in range(2)]
                    L += P['out'][2*j:2*j+2] + [w_[j]]
                return L
            sc0, sc1 = o.get('scal', (0, 0))
            if hx == 0: fill = P0['exp'][12:] + tailf(P0, 0, x0, E0, M0_, sc0, False)
            elif hx < 0: fill = P0['exp'][18:] + tailf(P0, 0, x0, E0, M0_, sc0, False)
            else: fill = tailf(P0, 0, x0, E0, M0_, 0, True)
            fill += P1['exp'] + tailf(P1, 1, x1, E1, M1_, sc1, False)
            self.stamp('head')
        else:
            fill = []
            for rt, x, e in ((0, x0, E0), (1, x1, E1)):
                L = self.phiB(x, e, False)
                fill += L[:-10] + mixw(L[-10:], wr(rt, x, 5, 0))
            self.group_sync(5); self.release(1); self.prime(1, sync=False)
        hooks = {}
        hooks.update(late3)
        PFV = TMP + 94
        ipf, cpf_ = self.checked("L_pf", [f"buffer_load_dwordx2 {vq(PFV, 2)}, v{V_PF}, {srd(SWS)}, s{S_PFL} offen sc1"],
                                 [f"v_xor_b32 v{PFV}, s{S_NONCE}, v{PFV}", f"v_bitop3_b32 v{PFV}, v{PFV}, v{PFV+1}, s{S_NONCE} bitop3:0xf6", f"v_cmp_ne_u32 vcc, 0, v{PFV}"], 'pf')
        pfp = o.get('pfpos', 81)
        if pfp < 100: hooks.setdefault(pfp, []).extend(ipf)
        pre = ["s_mov_b32 exec_hi, 0xff", (f"buffer_load_dword v{V_DUMP}, v{V_L128}, {srd(SO)}, s{S_OP} offen sc1", 'pr'), "s_mov_b64 exec, 1",
               (f"buffer_load_dword v{V_DUMP}, v{V_F8}, {srd(SWS)}, s{S_FLAG} offen sc1", 'pr'), "s_mov_b64 exec, -1"]
        pre1 = []
        if o.get('pre1m') is not None:
            pre1 = ["s_mov_b32 exec_lo, 0xfff00000", "s_mov_b32 exec_hi, 0xff", pre[1], "s_mov_b64 exec, -1"]
            pre = ["s_mov_b64 exec, 0xfffff"] + pre[1:]
        prel = []
        if o.get('prem'):
            n_ = len(o['prem']); o['prepos'] = 2
            for k_, ps_ in enumerate(o['prem']):
                lo_, hi_ = 40 * k_ // n_, 40 * (k_ + 1) // n_
                mk = ((1 << hi_) - 1) ^ ((1 << lo_) - 1)
                L_ = [f"s_mov_b32 exec_lo, {hex(mk & 0xffffffff)}", f"s_mov_b32 exec_hi, {hex(mk >> 32)}", pre[1]] + (pre[2:4] if k_ == 0 else []) + ["s_mov_b64 exec, -1"]
                assert ps_ <= 0 or ps_ > x3 + 5
                if ps_ >= 200: xq.setdefault(ps_ - 200, []).extend(L_)
                elif ps_ >= 100: xv.setdefault(ps_ - 100, []).extend(L_)
                else: prel.append((ps_, L_))
        wp, pp_ = o.get('wopf', -1), o.get('prepos', 0)
        if 100 <= pp_ < 200: hooks.setdefault(pp_ - 100, []).extend(pre)
        vs = o.get('vsync', 0)
        if o.get('v13'): hooks.setdefault(78, []).extend(["s_barrier", lambda: self.release(13)])
        for k_, v_ in xv.items(): hooks.setdefault(k_, []).extend(v_)
        for k_, v_ in enumerate(tagset): hooks.setdefault(41 + k_, []).insert(0, v_)
        vp = o.get('vpace', 4)
        vset = set(range(0, 100, vp))
        if o.get('vsch'):
            vset = set(); n_ = 0
            for cnt_, st_ in o['vsch']:
                for _ in range(cnt_): vset.add(n_); n_ += st_
        self.gemm_pass(1, ACC_V, xbp(1), fill=fill, hooks=hooks, last=True, sync=True, pace=lambda n: 1 if n in vset else 0)
        self.stamp()
        VB = TMP
        for rt in range(2):
            c = self.cvt20(acc(ACC_V, 0, rt), VB + 10 * rt)
            for j in range(5):
                p(c[2*j][1]); p(c[2*j+1][1])
                p(f"ds_write_b64 v{V_PW}, {vq(VB+10*rt+2*j, 2)} offset:{rt*1920 + 80 + 8*j}", 'vw')
                if j == 4 and rt == 0: self.tick()
        NT = 3 if A else 2
        FB = ACC_K
        KV = TMP + 64
        rds = deque()
        own = o.get('kvown', 0)
        def rd(reg, av, off, kk, j):
            for hf in range(2): rds.append((f"ds_read_b64_tr_b16 {vq(reg+2*hf, 2)}, v{av[kk] if own else av[0]} offset:{(0 if own else kk*RW) + hf*120 + off}", ('kv', kk, j)))
        for kk in range(4):
            b = FB + kk * 20
            rd(b, KBV, 80, kk, 'a')
            for nt in range(NT): rd(b + 8 + 4 * nt, KBV, 32 * nt, kk, nt)
            rd(b + 4, KAV, 112, kk, 'z')
        if own:
            p("s_waitcnt lgkmcnt(5)")
            for _ in range(2 * NT + 4): self.put([rds.popleft()])
        self.tick()
        gk = 11
        self.flush_dma(('W', gk)); p.wait(vm=[('W', gk)], lg=['vw', 'pw'])
        p("s_barrier")
        self.release(13); self.release(14)
        def more(k):
            while k > 0 and rds and len(p.lgq) < 15: self.put([rds.popleft()]); k -= 1
        if own: more(5); p.wait(lg=[('kv', 0, 'z')])
        more(o.get('kvi', 15)); self.tick()
        p(f"v_mov_b32 v{TMP+1}, 0xff")
        seq = [(kk, nt) for kk in range(4) for nt in range(NT)]
        ao = deque((kk, f"v_and_or_b32 v{FB+kk*20+4+j}, v{FB+kk*20+4+j}, v{V_KEEP}, v{V_ONE}") for kk in range(4) for j in range(4))
        p.wait(lg=[('kv',) + seq[0]])
        for i_, (kk, nt) in enumerate(seq):
            b = FB + kk * 20
            p(f"{MF} {vq(KV + nt*4)}, {vq(b)}, {vq(b+8+4*nt)}, {'0' if kk == 0 else vq(KV + nt*4)}")
            p.wait(lg=[('kv',) + seq[i_ + 1]] if i_ + 1 < len(seq) else '*')
            k_ = len(rds); more(o.get('kvr', 4))
            for _ in range(max(0, 3 - (k_ - len(rds)))):
                if ao and ('kv', ao[0][0], 'z') not in p.lgq and not any(x[1] == ('kv', ao[0][0], 'z') for x in rds): p(ao.popleft()[1])
        assert not rds
        while len(ao) > 4: p(ao.popleft()[1])
        lastm = 0x00ff00ff if A else 0x000f000f
        def pub(mt, nt):
            a = KV + (mt * 3 + nt) * 4
            L = [(1, f"v_bfi_b32 v{a+j}, v{TMP+1}, s{S_TB+j}, v{a+j}") for j in range(4)]
            va = [V_P1ST, V_P1M, V_P1M + 1, V_P1M + 2][2 * mt + (nt == NT - 1)]
            return L + [(2, (f"buffer_store_dwordx4 {vq(a)}, v{va}, {srd(SWS)}, s{S_P1ST} offen offset:{(4*mt*F + 16*nt)*16 if A else [1024*mt, 1536 + 256*mt][nt]} sc1", 'p1'))]
        self.stamp('kv3')
        mf = [(2, f"{MF} {vq(KV + (3+nt)*4)}, {vq(FB+kk*20+4)}, {vq(FB+kk*20+8+4*nt)}, {'0' if kk == 0 else vq(KV + (3+nt)*4)}") for nt in range(NT) for kk in range(4)]
        pr = [(1, lambda n=n, hf=hf: self.wread(200 + n, hf)) for n in range(D - 1) for hf in range(2)]
        self.put([x for _, x in self.weave(mf, [(1, x[1]) for x in ao] + [y for nt in range(NT) for y in pub(0, nt)] + pr)])
        qhead = [y for nt in range(NT) for y in pub(1, nt)]
        pb = o.get('pubb', 0)
        self.put([x for _, x in qhead[:pb]]); qhead = qhead[pb:]
        self.stamp()
        X = TMP + 8; CK = TMP + 2
        def tagcheck(mask):
            if mask == "0xff":
                L = [f"v_xor_b32 v{X+j}, s{S_TB+j%4}, v{X+j}" for j in range(4 * NI)] + [f"v_or_b32 v{CK}, v{X}, v{X+1}"]
                L += [f"v_or3_b32 v{CK}, v{CK}, v{X+j}, v{X+j+1}" for j in range(2, 4 * NI, 2)]
            else:
                L = [f"v_xor_b32 v{CK}, s{S_NONCE}, v{X}"] + [f"v_bitop3_b32 v{CK}, v{CK}, v{X+j}, s{S_NHI if j % 2 else S_NONCE} bitop3:0xf6" for j in range(1, 4 * NI)]
            return L + [f"v_and_b32 v{CK}, {mask}, v{CK}", f"v_cmp_ne_u32 vcc, 0, v{CK}"]
        lds_ = []
        for ii in range(NI):
            lds_ += [f"s_add_u32 s{T0}, s{S_P1LD}, {ii * (65536 // NI)}", f"buffer_load_dwordx4 {vq(X+4*ii)}, v{V_P1LD}, {srd(SWS)}, s{T0} offen sc1"]
        iss, chk = self.checked("L_h1", lds_, tagcheck("0xff"), 'h1')
        red = [f"v_add_f32 v{X+j}, v{X+j}, v{X+4*ii+j}" for ii in range(1, NI) for j in range(4)]
        red += [f"v_permlane32_swap_b32 v{X}, v{X+2}", f"v_permlane32_swap_b32 v{X+1}, v{X+3}", f"v_add_f32 v{X}, v{X}, v{X+2}", f"v_add_f32 v{X+1}, v{X+1}, v{X+3}",
                f"v_mov_b32 v{CK}, 0xffff", f"v_permlane16_swap_b32 v{X}, v{X+1}", f"v_add_f32 v{X}, v{X}, v{X+1}"]
        if not A: red.append(f"v_add_f32_dpp v{X}, v{X}, v{X} row_ror:8 row_mask:0xf bank_mask:0xf")
        red += [f"v_cvt_pk_bf16_f32 v{X}, v{X}, v{X}", f"v_bfi_b32 v{X}, v{CK}, v{V_VW}, v{X}"]
        st = (f"buffer_store_dword v{X}, v{V_P2ST}, {srd(SWS)}, s{S_P2ST} offen sc1", 'p2')
        sts = [st]
        for _ in range((1 << o.get('p2log', 2)) - 1): sts += [f"s_add_u32 s{S_P2ST}, s{S_P2ST}, {1 << 18}", st]
        red.append(sts if A else ["s_mov_b32 exec_lo, 0x00ff00ff", "s_mov_b32 exec_hi, 0x00ff00ff"] + sts + ["s_mov_b64 exec, -1"])
        n1, n2 = o.get('h1', (62, 84))
        hooks = {n1 + k: iss[2*k:2*k+2] for k in range(NI)}
        if pfp >= 100: hooks.setdefault(pfp - 100, []).extend(ipf)
        for k_, v_ in xq.items(): hooks.setdefault(k_, []).extend(v_)
        c_ = [x for _, x in cpf_]
        pc = o.get('pfchk', 13)
        hooks.setdefault(pc, []).extend(c_[:3]); hooks.setdefault(pc + 1, []).extend(c_[3:4]); hooks.setdefault(pc + 3, []).extend(c_[4:] + [lambda: setattr(self, 'pfok', True)])
        if 200 <= pp_ < 300: hooks.setdefault(pp_ - 200, []).extend(pre)
        qh = deque(qhead)
        for n in range(20): hooks.setdefault(n, []).append(lambda: self.gap(qh, 2))
        qb_ = o.get('qb', (30, 53, 66, 80))
        assert 18 <= qb_[0] <= 34 and 38 <= qb_[1] <= 54 and 58 <= qb_[2] <= 74 and 78 <= qb_[3] <= 98
        busy = sorted([(pc, pc + 3), (n1, n1 + NI), (n2, min(100, n2 + o.get('h1len', 16)) + 1)] + ([(x3 - 200, x3 - 195)] if x3 >= 200 else []))
        assert all(a_[1] < b_[0] for a_, b_ in zip(busy, busy[1:])), busy
        assert pfp - 100 < pc and x2 < x3 and (pp_ < 100 or pp_ > x3 + 5)
        for fr_, pubg, rel in [(qb_[0], 12, [15]), (qb_[1], 13, [16]), (qb_[2], 14, [17]), (qb_[3], 14, [18])]:
            hooks.setdefault(fr_, []).extend([lambda g=pubg: self.group_sync(g)] + [lambda r=r: self.release(r) for r in rel])
        self.gemm_pass(2, ACC_K, xbp(2), fill=chk + [(1, x) for x in red], hooks=hooks, last=True, sync=False, frange=(n2, min(100, n2 + o.get('h1len', 16))),
                       pace=lambda n: 1 if (n >= 9 and n % (o.get('qpace', 3) if n < o.get('qsw', 42) else o.get('qpace2', 3)) == 0 and not n1 <= n < n1 + NI) else 0)
        assert not qh
        p("s_barrier")
        [self.release(r) for r in range(15, 20)]
        self.stamp()
        X = TMP + 96; CK = TMP + 92
        lds_ = [f"buffer_load_dwordx4 {vq(X+4*ii)}, v{V_LIN if ii < NI-1 else V_GAL}, {srd(SWS)}, s{S_P2LD} offen offset:{1024*ii if ii < NI-1 else 0} sc1" for ii in range(NI)]
        iss, chk = self.checked("L_h2", lds_, tagcheck("0xffff"), 'h2')
        zw = [f"v_mov_b32 v{CK}, 0", f"v_mov_b32 v{CK+1}, 0", f"ds_write_b64 v{V_ZA}, {vq(CK, 2)}"]
        self.put(zw)
        for k_ in range(o.get('dirty', 0)):
            p(f"s_add_u32 s{T0}, s{S_OP}, {(9 << 20) + (k_ // 5) * (6 << 20) + (k_ % 5) * 1024}")
            p(f"buffer_store_dwordx4 v[2:5], v{V_LIN}, {srd(SWS)}, s{T0} offen {o.get('dirtyf', '')}")
        if o.get('prepos', 0) == 1: self.put(pre)
        if not A:
            for tt in range(6): p(f"v_accvgpr_write_b32 a{40+4*(3*tt+2)+2}, 0"); p(f"v_accvgpr_write_b32 a{40+4*(3*tt+2)+3}, 0")
        if A:
            P0 = self.phiA_parts(x0, E0, M0_, "L_q0", True); P1 = self.phiA_parts(x1, E1, M1_, "L_q1", True)
            L = P0['cvt'] + self.weave(P0['mf'], P1['cvt'] + P0['exp'][:6]) + self.weave(P1['mf'], P0['exp'][6:]) + P0['norm'] + P0['out'] + P1['exp'] + P1['norm'] + P1['out']
        else:
            L = []
            for x, e in ((x0, E0), (x1, E1)):
                L += self.phiB(x, e, True) + [(1, f"v_mov_b32 v{x+10}, 0"), (1, f"v_mov_b32 v{x+11}, 0")]
        d1_, d2_ = o.get('oshift', (0, 0))
        Ld2 = L[len(L) - d2_:]; L = L[:len(L) - d2_]
        Ld1 = L[len(L) - d1_:]; L = L[:len(L) - d1_]
        tot = sum(c for c, _ in L)
        ev = [(tot - o.get('h2lead', 60), iss)]
        if o.get('prepos', 0) == 0 and o.get('prelead', 0) >= 0: ev.append((tot - o.get('prelead', o.get('h2lead', 60)) + 0.5, pre))
        if (o.get('pre1m') or 0) < -1: ev.append((tot + o['pre1m'] + 0.5, pre1))
        for ps_, L_ in prel: ev.append((tot + ps_ + 0.5, L_))
        L2 = []; c = 0; ev.sort(key=lambda e_: e_[0])
        for it_ in L + [(0, [])]:
            while ev and c >= ev[0][0] - (0.5 if it_[0] == 0 else 0): L2.append((0, ev.pop(0)[1]))
            L2.append(it_); c += it_[0]
        assert not ev
        self.run(L2, every=o.get('qev', 44))
        self.flush_dma(('W', 17))
        self.stamp()
        self.put([x for _, x in chk])
        if o.get('prepos', 0) == 0 and o.get('prelead', 0) < 0: self.put(pre)
        if o.get('pre1m') == -1: self.put(pre1)
        for ii in range(NI):
            p(f"v_perm_b32 v{X+4*ii}, v{X+4*ii+1}, v{X+4*ii}, s{S_PERM}")
            p(f"v_perm_b32 v{X+4*ii+1}, v{X+4*ii+3}, v{X+4*ii+2}, s{S_PERM}")
            p(f"ds_write_b64 v{V_LA+ii}, {vq(X+4*ii, 2)}", 'kvw')
        self.put([x for _, x in Ld1])
        p.wait(vm=[('W', 17)], lg='*')
        p("s_barrier")
        self.stamp()
        assert not self.dq or True
        import copy
        p(f"s_cmp_eq_u32 s{S_FAST}, 0"); p(f"s_cbranch_scc0 L_tail{self.sfx}s")
        env = dict(RS=RS, M0_=M0_, M1_=M1_, Ld2=Ld2, pre1=pre1)
        sv = (self.p, self.sfx, self.nst, getattr(self, 'cs', 0), deque(self.dq))
        self.p = Prog(); self.p.vmq = list(p.vmq); self.p.lgq = list(p.lgq); self.sfx += 's'
        self.p(f"L_tail{self.sfx}:")
        self.tail(False, **env)
        self.ool.append(self.p.finalize())
        self.p, self.sfx, self.nst, self.cs, self.dq = sv
        self.tail(True, **env)
        return p.finalize() + "".join(self.ool)
    def tail(self, fast, RS, M0_, M1_, Ld2, pre1):
        p = self.p; A = self.A; o = self.o; br = 0 if A else 1
        def more(k):
            while k > 0 and rds and len(p.lgq) < 15: self.put([rds.popleft()]); k -= 1
        OA = ACC_V
        NU = 5 if A else 3
        SP = TMP + 112
        OB = TMP + 64
        LO = TMP + 80
        fr = [(tt, u_) for tt in (5, 0, 1, 2, 3, 4) for u_ in range(NU)]
        AO = 40
        rds = deque()
        for n, (tt, u_) in enumerate(fr):
            if not A and u_ == 2: rds.append((f"ds_read_b64 {aq(AO+4*n, 2)}, v{V_FR2} offset:{4*tt*RS + 16*u_}", ('of', n)))
            else: rds.append((f"ds_read_b128 {aq(AO+4*n)}, v{V_FR2} offset:{4*tt*RS + 16*u_}", ('of', n)))
        more(10)
        if A: p(f"v_mov_b32 v{SP}, v{M0_}"); p(f"v_mov_b32 v{SP+1}, v{M1_}")
        self.put([x for _, x in Ld2])
        def ost(txt, tag='o'):
            p(txt + ("" if fast else " sc1"), tag)
        def flag(k): ost(f"buffer_store_dword v{V_NONCE}, v{V_FOWN}, {srd(SWS)}, s{S_FLAG} offen offset:{32*k}", 'fl')
        def poll(k, name):
            iss, chk = self.checked(name, [f"buffer_load_dword v{V_DUMP}, v{V_F8}, {srd(SWS)}, s{S_FLAG} offen offset:{32*k} sc1"], [f"v_cmp_ne_u32 vcc, s{S_NONCE}, v{V_DUMP}"], name)
            return iss, [x for _, x in chk]
        order = [(0, k) for k in range(5)] + [(1, k) for k in range(5)] + [(0, 5), (1, 5)]
        epi = deque()
        for z, (rt, k) in enumerate(order):
            dn = OA + (rt * 6 + 5) * 4
            b = OA + rt * 24
            rdy = (z + 1) * NU + o.get('rdy', 4)
            if k == 0:
                epi.append((rdy, 1, f"v_fmac_f32 v{dn}, {EPS}, v{SP+rt}" if A else f"v_add_f32 v{dn}, {EPS}, v{dn}")); epi.append((rdy, 2, f"v_rcp_f32 v{dn}, v{dn}"))
                continue
            tt = k - 1
            for r in range(4): epi.append((rdy, 1, f"v_mul_f32 v{b+4*tt+r}, v{b+4*tt+r}, v{dn}"))
            for h in range(2):
                i = 2 * tt + h
                d = OB + ((i // 4) * 2 + rt) * 4 + i % 4 if i < 8 else LO + 2 * rt + (i - 8)
                epi.append((rdy, 1, f"v_cvt_pk_bf16_f32 v{d}, v{b+2*i}, v{b+2*i+1}"))
            if tt in (1, 3):
                u_ = tt // 2
                epi.append((0, 2, lambda u_=u_, rt=rt: ost(f"buffer_store_dwordx4 {vq(OB+(u_*2+rt)*4)}, v{V_OO+rt*2+u_}, {srd(SO)}, s{S_OP} offen", ('S', rt))))
        epi.append((0, 2, lambda: ost(f"buffer_store_dwordx4 {vq(LO)}, v{V_OO+4}, {srd(SO)}, s{S_OP} offen", ('S', 1))))
        TM_ = o.get('tmaj', 3); LD = o.get('lead', 8); DF = o.get('df', 11); A_RING = A_PHI
        items = [(P, t_, (0, 1)) for P in range(2) for t_ in range(5)] + [(P, t_, (0,)) for P in range(2, 2 + LD) for t_ in range(5)] + \
                [(P, t_, (0, 1)) for P in range(2 + LD, 20) for t_ in range(5)] + [(P, t_, (1,)) for P in range(2, 2 + LD - TM_) for t_ in range(5)] + \
                [(P, t_, (1,)) for t_ in range(5) for P in range(2 + LD - TM_, 2 + LD)]
        def fread(i, hf):
            P, t_, _ = items[i]
            if True:
                if hf == 0:
                    off = RING + P * 5120 + 1024 * t_; hi = off >= 51200; s_ = A_RING + (i % DF) * 4
                    p(f"ds_read_b128 a[{s_}:{s_+3}], v{V_LINH if hi else V_LIN} offset:{off - 51200*hi}", ('FF', i))
                return
            off = RING + (P // 4) * SLOT + (P % 4) * 5120 + hf * 2560 + 8 * t_
            hi = off >= 51200; s_ = A_RING + (i % DF) * 4 + 2 * hf
            p(f"ds_read_b64_tr_b16 a[{s_}:{s_+1}], v{V_WT + hi} offset:{off - 51200*hi}", ('FF', i))
        pr = deque((i, 0) for i in range(DF - 1))
        m = 0; mf0 = o.get('mf0', 54 if A else 36); seen = set()
        for rt, k in order:
            for u_ in range(NU):
                n = k * NU + u_; tt = fr[n][0]
                a = OA + (rt * 6 + tt) * 4
                if m == 0: p.wait(lg=[('of', 0)])
                p(f"{MF} {vq(a)}, {aq(AO+4*n)}, {vq(ACC_K+20*rt+4*u_)}, {'0' if u_ == 0 else vq(a)}")
                m += 1
                if n + 1 < len(fr): p.wait(lg=[('of', n + 1)])
                bud = 2 if A else 3
                if m == mf0:
                    assert sum(1 for x in p.ins if x.tag == ('S', 0)) == 2
                    p.wait(vm=[('S', 0)]); flag(0); bud -= 2
                elif m == o.get('pre1m'): self.put(pre1); bud -= 2
                elif rds: more(1); bud -= 1 if not (epi and epi[0][0] <= m and epi[0][1] == 2) else 0
                elif self.dq and m % o.get('opace', 8) == 0: self.tick(); bud -= 2
                elif pr and not (epi and epi[0][0] <= m): fread(*pr.popleft()); bud -= 1
                while epi and epi[0][0] <= m and epi[0][1] <= bud:
                    _, c, x = epi.popleft(); bud -= c
                    self.put([x])
                    if callable(x): break
        while pr: fread(*pr.popleft())
        while len(epi) > 7: self.put([epi.popleft()[2]])
        while self.tick(): pass
        self.stamp()
        def ob(ks, rt):
            if ks < 2: return vq(OB + (ks * 2 + rt) * 4)
            return aq((ks * 2 + rt) * 4) if ks < 16 else vq(LO + (2 * (ks - 16) + rt) * 4)
        def ld(P, rt):
            if P < 16: return [(f"buffer_load_dwordx4 {aq((P*2+rt)*4)}, v{V_OO+rt*2+P%2}, {srd(SO)}, s{S_OP + P//2} offen sc1", ('O', P, rt))]
            return [(f"buffer_load_dwordx4 {vq(LO+(2*(P-16)+rt)*4)}, v{V_OO+4}, {srd(SO)}, s{S_OP + 2*(P-16) + rt} offen sc1", ('O', P, rt))]
        i0, c0 = poll(0, "L_f0"); i1, c1 = poll(1, "L_f1"); i2, c2 = poll(2, "L_d0"); i3, c3 = poll(3, "L_d1")
        L0x = min(16, 2 + LD + o.get('xlead', 0))
        lead = [ld(P, 0) for P in range(2, L0x)]
        rest = [ld(P, rt) for P in range(2 + LD, 20) for rt in range(2) if (P, rt) != (16, 0) and not (rt == 0 and P < L0x)] + [ld(P, 1) for P in range(2, 2 + LD)]
        def handshake():
            p.wait(vm=[('S', 1), ('W', 18), ('W', 19)])
            flag(1)
            self.put(c0)
            self.stamp()
            self.q(0, lead); self.q(10**6 + 50, rest)
            for k_ in range(o.get('oprime', 7)):
                self.tick()
                if k_ == 3: p("s_barrier")
                if k_ == 3 and o.get('p1it', -1) < 0: self.put(i1)
            p.wait(vm=[('O', 2, 0)])
        E0 = len(items) - 5 * LD
        NI_ = len(items)
        def outp(rt):
            b = TMP + 8
            c = self.cvt20(acc(ACC_K, 0, rt), b)
            L = []
            for j in range(5): L += [c[2*j][1], c[2*j+1][1], (f"ds_write_b64 v{V_OW}, {vq(b+2*j, 2)} offset:{rt*16*OUTS + 8*j}", 'ow')]
            L += [(f"ds_read_b128 {vq(TMP+24+4*j)}, v{V_ORD+j} offset:{rt*16*OUTS}", ('or', j)) for j in range(3)]
            S_ = [(f"buffer_store_dwordx4 {vq(TMP+24+4*j)}, v{V_OG+j}, {srd(SOUT)}, s{S_OUT} offen", 'out') for j in range(3)]
            return L, S_
        vw, lw, sc_, vec = {}, {}, {}, {}
        add = lambda d, i, L: d.setdefault(i, []).extend(L)
        def check(i, c, tag, gapn):
            add(vw, i, [tag]); add(vec, i, [c[1]]); add(sc_, i + gapn, [c[2]])
        ep = [x[2] for x in epi]
        add(vec, 1, ep[:3]); add(vec, 2, ep[3:6]); add(vec, 3, ep[6:])
        add(vec, o.get('p0pos', 4), i0)
        add(vec, 9, [handshake])
        if o.get('p1it', -1) >= 0: add(vec, 10 + o.get('p1it', -1), i1)
        ci = 10 + o.get('c1pos', 5); check(ci, c1, "L_f1", 2); add(sc_, ci + 2, [lambda: self.release(50)])
        for i in range(15, NI_ - 5 * TM_ + 1, 5):
            if i == NI_: break
            Pn, _, rn = items[i]
            tags = [('O', Pn, rt) for rt in rn]
            if i == NI_ - 5 * TM_: tags = [('O', 1 + LD, 1)]
            if Pn >= 16:
                a = LO + 2 * (Pn - 16) * 4
                add(vw, i - 2, tags); add(vec, i - 2, [f"v_swap_b32 v{a+2}, v{a+4}", f"v_swap_b32 v{a+3}, v{a+5}"])
            else: add(vw, i - 1, tags)
        nd0 = E0 - o.get('d0', 8); add(vw, nd0, [('O', 19, 0), ('O', 19, 1)]); add(vec, nd0, [lambda: flag(2)])
        add(vec, E0 + o.get('d0p', 0), i2)
        L0, S0 = outp(0)
        for j, x in enumerate(L0): add(vec, E0 + 2 + j, [x])
        nd1 = NI_ - o.get('d1', 24); add(vw, nd1, [('O', 1 + LD, 1)]); add(vec, nd1, [lambda: flag(3)])
        check(E0 + 22, c2, "L_d0", 2)
        for j, x in enumerate(S0): add(lw, E0 + 25 + 2 * j, [('or', j)]); add(vec, E0 + 25 + 2 * j, [x])
        L1, S1 = outp(1)
        n1e = 0
        if TM_:
            for j in range(15):
                pos = NI_ - 5 * TM_ + (j // 3 + 1) * TM_ + 2 + j % 3
                if pos < NI_: add(vec, pos, [L1[j]]); n1e = j + 1
        add(vec, NI_ - o.get('d1p', 8), i3)
        add(sc_, NI_ - 5, [f"s_or_b32 s{T0}, s{S_RB}, s{S_HEAD}"]); add(sc_, NI_ - 4, [f"s_cmp_lg_u32 s{T0}, 0"]); add(sc_, NI_ - 3, [f"s_cselect_b32 s{T0}, {WS_SIZE}, 0"])
        add(vec, NI_ - 2, [(f"buffer_store_dword v{V_NONCE}, v{V_FOWN}, {srd(SWS)}, s{T0} offen offset:{br*128} sc1", 'nn')])
        assert ci + 2 < E0 + o.get('d0p', 0) < E0 + 22 and E0 + 24 < NI_ - o.get('d1p', 8) and nd1 < NI_ - o.get('d1p', 8) and nd0 < E0 + o.get('d0p', 0)
        assert 3 < o.get('p0pos', 4) <= 9 and E0 + 29 < NI_ - 5 * TM_ + TM_ + 2 + 15
        p.wait(lg=[('FF', 0)])
        clk = 0.0; per = o.get('lper', 4.6)
        for i, (P, t_, rts) in enumerate(items):
            s_ = A_RING + (i % DF) * 4
            for z, rt in enumerate(rts):
                a = acc(ACC_K, t_, rt)
                p(f"{MF} {vq(a)}, {aq(s_)}, {ob(P, rt)}, {'0' if P == 0 else vq(a)}")
                if z == 0:
                    k0 = len(p.ins)
                    for tg in vw.get(i, []): self.flush_dma(tg)
                    p.wait(vm=vw.get(i), lg=[('FF', i + 1)] + lw.get(i, []))
                    if len(rts) == 1: self.put(sc_.get(i, []))
                    if i + DF - 1 < NI_:
                        if len(p.ins) == k0: p("s_nop 0")
                        fread(i + DF - 1, 0)
                else: self.put(sc_.get(i, []))
            self.stamp('z%d' % i)
            if i >= 10:
                clk += len(rts)
                if clk >= per and i not in vec and self.tick(): clk -= per
            self.put(vec.get(i, []))
        self.stamp()
        p(f"s_add_u32 s{S_OUT}, s{S_OUT}, {16*2560}")
        self.put(L1[n1e:12]); self.put(c3[:2]); self.put(L1[12:]); self.put(c3[2:])
        for j in range(3): p.wait(lg=[('or', j)]); self.put([S1[j]])
        if o.get('stamps'):
            p("s_waitcnt vmcnt(0)")
            self.stamp()
            p("s_memrealtime s[100:101]")
            p("s_waitcnt lgkmcnt(0)")
            p.raw(f"""
            s_lshl_b32 s{T0}, s2, 2
            s_add_u32 s{T0}, s{T0}, s{S_W}
            s_lshl_b32 s{T0}, s{T0}, 6
            s_add_u32 s{T0}, s{T0}, {WS_ST}
            v_mov_b32 v{TMP+16}, 0
            v_mov_b32 v{TMP}, s98
            v_mov_b32 v{TMP+1}, s100
            """)
            for k in range(14): p(f"v_mov_b32 v{TMP+2+k}, {'s%d' % (S_ST+k) if k < self.nst else ('s95' if k == 13 else 0)}")
            p("s_mov_b64 exec, 1")
            for k in range(4): p(f"buffer_store_dwordx4 {vq(TMP+4*k)}, v{TMP+16}, {srd(SWS)}, s{T0} offen offset:{16*k}")
        if o.get('cntm'):
            p.raw(f"""
            s_load_dwordx2 s[62:63], s[0:1], 64
            v_mov_b32 v2, 0
            v_mov_b32 v3, s95
            s_waitcnt lgkmcnt(0)
            s_cmp_eq_u32 s95, 0
            s_cbranch_scc1 L_cn0{self.sfx}
            s_mov_b64 exec, 1
            global_atomic_add v2, v3, s[62:63] sc1
            L_cn0{self.sfx}:
            s_or_b32 s{T0}, s{S_RB}, s{S_HEAD}
            s_cmp_lg_u32 s{T0}, 0
            s_cbranch_scc1 L_cn2{self.sfx}
            s_movk_i32 s{T0}, 3500
            s_mov_b32 s{T2}, 0
            L_cn1{self.sfx}:
            s_sleep 2
            s_memrealtime s[64:65]
            s_waitcnt lgkmcnt(0)
            s_sub_u32 s{T1}, s64, s98
            s_cmp_lt_u32 s{T1}, s{T0}
            s_cbranch_scc1 L_cn1{self.sfx}
            s_cmp_eq_u32 s{T2}, 1
            s_cbranch_scc1 L_cn2{self.sfx}
            global_load_dword v3, v2, s[62:63] sc1
            s_waitcnt vmcnt(0)
            v_readfirstlane_b32 s{T0}, v3
            s_min_u32 s{T0}, s{T0}, 1024
            s_mul_i32 s{T0}, s{T0}, 20
            s_add_u32 s{T0}, s{T0}, 4000
            s_mov_b32 s{T2}, 1
            s_branch L_cn1{self.sfx}
            L_cn2{self.sfx}:
            """)
        if o.get('amp'):
            p("s_waitcnt vmcnt(0)")
            self.stamp()
            if o['amp'][0] < 0: p("s_mov_b32 s100, s98")
            p.raw(f"""
            s_and_b32 s{T0}, s2, 7
            s_lshr_b32 s{T0}, {o['amp'][2]}, s{T0}
            s_bitcmp1_b32 s{T0}, 0
            s_cbranch_scc0 L_ampx{self.sfx}
            s_load_dwordx2 s[62:63], s[0:1], 64
            v_mov_b32 v2, 0
            s_waitcnt lgkmcnt(0)
            global_load_dword v3, v2, s[62:63] sc1
            s_waitcnt vmcnt(0)
            v_readfirstlane_b32 s{T2}, v3
            s_not_b32 s{T2}, s{T2}
            s_sub_u32 s{T0}, s100, s{T2}
            s_add_u32 s{T0}, s{T0}, 300
            s_mul_i32 s{T0}, s{T0}, {o['amp'][1]}
            s_min_u32 s{T0}, s{T0}, 100000
            L_amp{self.sfx}:
            s_sleep 2
            s_memrealtime s[64:65]
            s_waitcnt lgkmcnt(0)
            s_sub_u32 s{T1}, s64, s{T2}
            s_cmp_lt_u32 s{T1}, s{T0}
            s_cbranch_scc1 L_amp{self.sfx}
            L_ampx{self.sfx}:
            """)
        p("s_endpgm")
        assert not self.dq

def sizes(lines):
    import subprocess, re
    src = '.amdgcn_target "amdgcn-amd-amdhsa--gfx950"\n.text\n' + "\n".join(lines) + "\n"
    r = subprocess.run(["llvm-mc", "-triple=amdgcn-amd-amdhsa", "-mcpu=gfx950", "-show-encoding"], input=src, capture_output=True, text=True)
    assert r.returncode == 0, r.stderr[:2000]
    return [len(m.split(',')) for m in re.findall(r'encoding: \[([^\]]*)\]', r.stdout)]
def add_hops(text, sfx, align=True):
    lines = text.split("\n")
    i0 = lines.index(f"L_main{sfx}:"); i1 = next(i for i in range(i0, len(lines)) if lines[i].strip() == "s_endpgm")
    body = lines[i0 + 1:i1]
    isi = lambda l: l.startswith("    ")
    szl = sizes([l for l in body if isi(l)])
    insl = [l.strip() for l in body if isi(l)]
    big = [z == 8 and t.startswith("v_") and not t.startswith("v_mfma") for z, t in zip(szl, insl)]
    run = [0] * (len(big) + 1)
    for k in range(len(big) - 1, -1, -1): run[k] = run[k + 1] + 1 if big[k] else 0
    sz = iter(szl); k = -1; nfix = 0
    out = []; addr = 0; page = 0; prev = "v_mfma"
    for l in body:
        if isi(l):
            k += 1
            if align and run[k] >= 3 and addr % 8 == 4:
                pv = out[-1] if isinstance(out[-1], str) else ""
                op = pv.split()[0] if pv.strip() else ""
                if isi(pv) and szl[k - 1] == 4 and op.startswith("v_") and not op.startswith(("v_cmp", "v_swap", "v_permlane", "v_readfirst")):
                    out[-1] = pv.replace(op, op + "_e64", 1); addr += 4; nfix += 1
                elif run[k] >= 6: out.append("    s_nop 0"); addr += 4; nfix += 1
            off = addr - page * 4096
            if off >= 0 and (prev.startswith("v_mfma") or off >= 40) and not prev.startswith("s_mov_b64 exec") :
                out.append(("hop", page)); addr += 4; page += 1
            addr += next(sz); prev = l.strip()
        out.append(l)
    assert page >= 4
    res = []
    for x in out:
        if isinstance(x, tuple):
            k = x[1]
            res += [f"L_hop{k}{sfx}:", f"    s_cbranch_execz " + (f"L_hop{k+4}{sfx}" if k + 4 < page else f"L_hopret{sfx}")]
        else: res.append(x)
    print(sfx, "main bytes", addr, "align fixes", nfix, file=sys.stderr)
    return "\n".join(lines[:i0 + 1] + res + lines[i1:])

def build(opt):
    ref = open(f"cdna_kernels/{NAME}.s.ref").read().split("\n")
    head = [l for l in ref if l.startswith(";") and "@launch" not in l]
    s = "\n".join(head) + "\n; @launch grid=(256,1,1) block=(256,1,1) lds=163840\n"
    s += f""".amdgcn_target "amdgcn-amd-amdhsa--gfx950"
.text
.globl {NAME}_kernel
.p2align 12
.p2align 8
.type {NAME}_kernel,@function
{NAME}_kernel:
    s_cmp_ge_u32 s2, 256
    s_cbranch_scc1 L_exit
"""
    ga = Gen(True, opt); ta = ga.body(); gb = Gen(False, opt); tb = gb.body()
    ca, ra = ta.split(".split\n"); cb, rb = tb.split(".split\n")
    assert ca == cb
    if opt.get('hops', 1): ra = add_hops(ra, 'A', opt.get('align', 1)); rb = add_hops(rb, 'B', opt.get('align', 1))
    s += ca + ra + "L_exit:\n    s_endpgm\n.p2align 12\n" + rb
    s += ".fill 2048, 4, 0xbf810000\n"
    s += f""".section .rodata,"a"
.p2align 6
.amdhsa_kernel {NAME}_kernel
  .amdhsa_next_free_vgpr 512
  .amdhsa_next_free_sgpr 102
  .amdhsa_accum_offset 256
  .amdhsa_group_segment_fixed_size 0
  .amdhsa_kernarg_size 80
  .amdhsa_user_sgpr_count 2
  .amdhsa_user_sgpr_kernarg_segment_ptr 1
  .amdhsa_system_sgpr_workgroup_id_x 1
.end_amdhsa_kernel
"""
    print("nops", ga.p.nops, gb.p.nops, "instrs", len(ga.p.ins), len(gb.p.ins), "autow", getattr(ga.p, 'autow', 0), file=sys.stderr)
    return s

if __name__ == "__main__":
    import json
    opt = json.loads(sys.argv[2]) if len(sys.argv) > 2 else {}
    open(sys.argv[1], "w").write(build(opt))
```

```python
import sys
from collections import deque
from emit import Prog
NAME = "concat_heads__linear_kernel_hedgehog__linear_attn_block__prompt"

S_RB, S_HG, S_W = 4, 5, 7
SX, SW, SWO, SWS, SOUT, SPHI = 8, 12, 16, 20, 24, 28
S_NONCE = 32
S_WROW = 33
S_XBASE, S_XU = 38, 39
S_LW, S_LR = 40, 41
T0, T1, T2, T3 = 42, 43, 44, 45
S_WOROW = 46
S_HEAD = 51
S_SPIN = 52
S_FAST = 53
S_L2E, S_NL2E = 54, 55
S_OB = 56
S_WS, S_XS = 57, 58
S_FLAG = 59
S_OP = 60
S_P1ST, S_P1LD, S_P2ST, S_P2LD, S_OWN, S_OUT, S_XCCV, S_PERM = 68, 69, 70, 71, 72, 73, 74, 75
S_KA = 76
S_ST = 76
import os
if os.environ.get('PRO'): S_ST = 88
def srd(b): return f"s[{b}:{b+3}]"
V_LANE = 1
V_WO = 2; V_OF = 7; V_OL = 12; V_XO = 17; V_XR = 21; V_WT = 23; V_LIN = 25
V_PW, V_VW, V_KB, V_KA0, V_KA1, V_FR = 26, 27, 28, 29, 30, 31
ACC_K, ACC_V = 32, 72
TMP = 112
PV = 228
V_P1ST, V_P1LD, V_P2ST, V_GAL, V_LA, V_FR2, V_KEEP, V_ONE, V_OW, V_ORD, V_OG, V_F8, V_DUMP, V_ZA = PV, PV+1, PV+2, PV+3, PV+4, PV+8, PV+9, PV+10, PV+11, PV+12, PV+17, PV+22, PV+23, PV+24
V_L128, V_NONCE, V_FOWN = PV + 25, PV + 26, PV + 27
RING = 0; SLOT = 20480; RBASE = 102400; RW = 15360
OUTL = RBASE + 16384; OUTS = 176
WS_FLAG, WS_XCC, WS_P2, WS_P1, WS_O, WS_ST = 4096, 32768, 5 << 20, 1 << 20, 8 << 20, 16 << 20
WS_SIZE = 32 << 20
D = 6
A_RING = 220
A_PHI = 160
A_PARK = 244
V_OO = 7; V_LINH = 12; V_PF = 13; V_P1M = 14
WS_PF = 49152; WS_PK = 6 << 20
S_USRC, S_UDST, S_UFL, S_UTAG, S_PFL, S_XA = 3, 6, 72, 90, 91, 93
S_TB = SX
S_NHI = 38
SO = SPHI
SPIN_MAX = 20000
EPS = "0x358637bd"

def vq(b, n=4): return f"v[{b}:{b+n-1}]"
def aq(b, n=4): return f"a[{b}:{b+n-1}]"
def acc(base, t, rt): return base + (rt * 5 + t) * 4
MF = "v_mfma_f32_16x16x32_bf16"

DEF = {'A': dict(h1pipe=1, xpos=(117, 190, 222), qpace=4, pfpos=101, pfchk=28, prokeep=4, proev=60, h1=(48, 74), h1len=8, h2lead=160, prelead=125, kpace=4, hx=26, d0=11, vsync=1, qev=26), 'B': dict(h1pipe=1, xpos=(117, 190, 222), upos=(18, 68, 120), ustep=4, qb=(20, 53, 66, 80), d0=11, pfpos=101, pfchk=28, h1=(46, 72), h1len=5, h2lead=80, prem=(283, -70, -30), vpace=3, qev=24, vsync=1)}
class Gen:
    def __init__(self, isA, opt):
        self.A = isA
        sf = 'A' if isA else 'B'
        opt = dict(DEF[sf], **opt)
        opt.update({k[:-1]: v for k, v in opt.items() if k.endswith(sf)})
        self.o = opt
        self.p = Prog(); self.sfx = 'A' if isA else 'B'
        self.F = 40 if isA else 20
        self.nst = 0
        self.dq = deque()
        self.pos = 0
        self.ool = []
    def stamp(self, name=None):
        p = self.p
        if name is None and self.o.get('idle'):
            self.ic = getattr(self, 'ic', -1) + 1
            if self.ic == self.o['idle'][0]: p(f"s_sleep {self.o['idle'][1]}")
        fine = self.o.get('fine')
        if fine:
            if name is None: self.cs = getattr(self, 'cs', 0) + 1; name = 's%d' % (self.cs - 1)
            if name not in fine: return
        elif name is not None: return
        if self.o.get('amp'):
            if self.nst == self.o['amp'][0]:
                p("s_memrealtime s[100:101]"); p("s_waitcnt lgkmcnt(0)")
            self.nst += 1
            return
        if not self.o.get('stamps'): return
        p(f"s_memrealtime s[100:101]" if self.o.get('rt') else f"s_memtime s[100:101]")
        p("s_waitcnt lgkmcnt(0)")
        p(f"s_sub_u32 s{S_ST+self.nst}, s100, {'s98' if self.o.get('rt') else 's96'}")
        self.nst += 1
    def put(self, L):
        for x in L:
            if isinstance(x, tuple): self.p(x[0], x[1])
            elif isinstance(x, list): self.put(x)
            elif callable(x): x()
            else: self.p(x)
    def dma_w(self, G):
        g = G % 5
        pre = [f"s_add_u32 m0, s{S_LW}, {RING + g*SLOT}"]
        if G < 15:
            col = {0: 1280, 1: 2560, 2: 0}[G // 5]
            gr = 4 - g if G // 5 in self.o.get('rev', [1, 2]) else g
            pre.append(f"s_add_u32 s{S_WS}, s{S_WROW+gr}, {col}"); so = f"s{S_WS}"; sd = SW; vo = V_WO
        else:
            items = []
            for j in range(5):
                off = f"offset:{j*1024} " if 0 < j < 4 else ""
                L = (pre if j == 0 else []) + [(f"buffer_load_dwordx4 v{V_LIN}, {srd(SWS)}, s{S_WOROW+g} offen {off}sc1 lds", ('W', G))]
                if j == 3: L += [f"s_add_u32 m0, s{S_LW}, {RING + g*SLOT + 4096}", f"s_add_u32 s{S_WOROW+g}, s{S_WOROW+g}, 4096"]
                items.append(L)
            return items
        items = []
        if G // 5 in self.o.get('fake', []):
            base = (G % 5) * 4 * 5120 + (G // 5 if G < 15 else 0) * 819200
            if self.o.get('fakerot'):
                pre = [pre[0], f"s_mul_hi_u32 s{S_WS}, s{S_WROW+gr}, 34953", f"s_mul_i32 s{S_WS}, s{S_WS}, 5120", f"s_add_u32 s{S_WS}, s{S_WS}, s94", f"s_sub_u32 s{S_WS}, s{S_WS}, s{S_LW}",
                       f"s_add_u32 s{S_WS}, s{S_WS}, {(G // 5) * 819200}"]
            else: pre = [pre[0], f"s_add_u32 s{S_WS}, s94, {base}"]
            for j in range(5):
                off = f"offset:{j*1024} " if 0 < j < 4 else ""
                L = (pre if j == 0 else []) + [(f"buffer_load_dwordx4 v{V_LIN}, {srd(sd)}, s{S_WS} offen {off}lds", ('W', G))]
                if j == 3: L += [f"s_add_u32 m0, s{S_LW}, {RING + g*SLOT + 4096}", f"s_add_u32 s{S_WS}, s{S_WS}, 4096"]
                items.append(L)
            return items
        for j in range(5):
            off = f"offset:{j*1024} " if 0 < j < 4 else ""
            L = (pre if j == 0 else []) + [(f"buffer_load_dwordx4 v{vo+j}, {srd(sd)}, {so} offen {off}lds", ('W', G))]
            if j == 3: L.append(f"s_add_u32 m0, s{S_LW}, {RING + g*SLOT + 4096}")
            items.append(L)
        return items
    def dma_x(self, pu):
        items = []
        for j in range(4):
            off = f"offset:{j*1024} " if j else ""
            L = []
            if j == 0: L += [f"s_add_u32 m0, s{S_LR}, {(pu % 3) * 4096}", f"s_add_u32 s{S_XS}, s{S_XU}, s{S_XBASE}"]
            L.append((f"buffer_load_dwordx4 v{V_XO+j}, {srd(SX)}, s{S_XS} offen {off}lds", ('X', pu)))
            if j == 0: L += [f"s_add_u32 s{S_XU}, s{S_XU}, 128"]
            if j == 1: L += [f"s_cmp_eq_u32 s{S_XU}, 1280", f"s_cselect_b32 s{S_XU}, 0, s{S_XU}"]
            items.append(L)
        return items
    def q(self, earliest, items):
        for it in items: self.dq.append((earliest, it))
    def release(self, k):
        self.dq = deque((0 if e == 10**6 + k else e, it) for e, it in self.dq)
    def tick(self):
        if self.dq and not getattr(self, 'pfok', False) and any(isinstance(x, tuple) and x[1] == ('W', 15) for x in self.dq[0][1]): return False
        if self.dq and self.dq[0][0] <= self.pos:
            self.put(self.dq.popleft()[1]); return True
        return False
    def flush_dma(self, tag):
        def has():
            return any(isinstance(x, tuple) and x[1] == tag for _, it in self.dq for x in it)
        while has():
            assert self.dq[0][0] <= self.pos, (tag, self.pos, self.dq[0])
            self.put(self.dq.popleft()[1])
    def run(self, L, every=30):
        c = 0
        for cost, x in L:
            self.put([x]); c += cost
            if c >= every: c = 0; self.tick()
    def kt(self, N):
        ps, n = divmod(N, 100); tm = self.o.get('tm', (0, 0, 0))[ps]
        if n >= 100 - 5 * tm:
            t, j = divmod(n - (100 - 5 * tm), tm); return 20 - tm + j, t
        return divmod(n, 5)
    def wread(self, N, hf):
        G = N // 20; ks, t = self.kt(N); ks %= 4
        off = RING + (G % 5) * SLOT + ks * 5120 + hf * 2560 + 8 * t
        hi = off >= 51200
        s = A_RING + (N % D) * 4 + 2 * hf
        if G // 5 in self.o.get('fake', []):
            if hf == 0:
                off = RING + (G % 5) * SLOT + ks * 5120 + 1024 * t
                hi = off >= 51200
                self.p(f"ds_read_b128 a[{s}:{s+3}], v{226 + hi} offset:{off - 51200*hi}", ('F', N))
            return
        self.p(f"ds_read_b64_tr_b16 a[{s}:{s+1}], v{V_WT + hi} offset:{off - 51200*hi}", ('F', N))
    def group_sync(self, G):
        self.flush_dma(('W', G))
        self.p.wait(vm=[('W', G)])
        self.p("s_barrier")
    def xread(self, pu, k):
        ksub, rt = divmod(k, 2)
        if k == 0:
            self.flush_dma(('X', pu)); self.p.wait(vm=[('X', pu)])
        a = ((2 * pu + ksub) * 2 + rt) * 4
        self.p(f"ds_read_b128 {aq(a)}, v{V_XR+ksub} offset:{(pu % 3)*4096 + rt*2048}", ('XR', pu))
    def prime(self, ps, sync=True):
        if sync: self.group_sync(ps * 5)
        for n in range(D - 1):
            self.wread(ps * 100 + n, 0); self.wread(ps * 100 + n, 1)
    def gemm_pass(self, ps, accb, bop, fill=None, hooks=None, last=False, pace=None, sync=True, frange=(0, 100), hooks0=None, late=None):
        p = self.p
        fill = deque(fill or []); hooks = hooks or {}; hooks0 = hooks0 or {}
        N0 = ps * 100
        p.wait(lg=[('F', N0), ('XR', 0)])
        pace = pace or (lambda n: 0)
        for n in range(100):
            self.pos = N0 + n
            ks, t = self.kt(N0 + n)
            s = A_RING + ((N0 + n) % D) * 4
            M = n + D - 1
            look = M < 100 or not last
            a = acc(accb, t, 0)
            p(f"{MF} {vq(a)}, {aq(s)}, {bop(ks, 0)}, {'0' if ks == 0 else vq(a)}")
            k0 = len(p.ins)
            if n < 99:
                tg = [('F', N0 + n + 1)]
                if ps == 0 and (n + 1) % 10 == 0: tg.append(('XR', (n + 1) // 10))
                p.wait(lg=tg)
            if n in hooks0: self.put(hooks0[n])
            pk_ = ps in self.o.get('fake', [])
            if pk_:
                if n % 2 == 0 and n + 4 < 100:
                    if (n + 4) % 20 == 0 and sync: self.group_sync((N0 + n + 4) // 20)
                    if len(p.ins) == k0: p("s_nop 0")
                    if n: self.wread(N0 + n + 4, 0)
                    self.wread(N0 + n + 5, 0)
                elif fill and n >= frange[0]: self.gap(fill, 2)
            elif look:
                if M % 20 == 0 and sync: self.group_sync((N0 + M) // 20)
                if len(p.ins) == k0: p("s_nop 0")
                self.wread(N0 + M, 0); self.wread(N0 + M, 1)
            elif fill and n >= frange[0]: self.gap(fill, 2)
            elif late: self.gapl(late, n - 0.5)
            a = acc(accb, t, 1)
            p(f"{MF} {vq(a)}, {aq(s)}, {bop(ks, 1)}, {'0' if ks == 0 else vq(a)}")
            self.pos = N0 + n + 1
            self.stamp('n%d' % (N0 + n))
            did = 0
            for _ in range(pace(n)): did += self.tick()
            if n in hooks: self.put(hooks[n])
            if fill and n >= frange[0]:
                left = sum(c for c, _ in fill)
                gaps = sum(1 for k in range(n, frange[1]) if not pace(k)) + (min(D - 1, 99 - n) if last and frange[1] == 100 else 0)
                if pk_: gaps = sum(1 for k in range(n, frange[1]) if not pace(k)) + (frange[1] - n) // 2
                bud = 0 if did else 2
                if left > 2 * gaps: bud += 2
                if ps == 2 and left > 4 * gaps: bud = -(-left // max(gaps, 1))
                self.gap(fill, bud)
            elif late and not did and n not in hooks: self.gapl(late, n)
        while fill: self.put([fill.popleft()[1]])
        self.pos = N0 + 100
    def gapl(self, late, n):
        q = deque()
        for r, c, x in late:
            if r > n: break
            q.append((c, x))
        k = len(q); self.gap(q, 2)
        for _ in range(k - len(q)): late.popleft()
    def gap(self, fill, bud):
        first = True
        while fill:
            c, x = fill[0]
            solo = isinstance(x, tuple)
            if c > bud or (solo and not first): break
            fill.popleft(); self.put([x]); bud -= c
            if solo: break
            if c: first = False
    def cvt20(self, src, dst):
        return [(1, f"v_cvt_pk_bf16_f32 v{dst+i}, v{src+2*i}, v{src+2*i+1}") for i in range(10)]
    def phiA_parts(self, x, e, m, name, isq):
        P = {}
        kb = e + 28
        P['cvt'] = self.cvt20(x, kb)
        P['zero'] = [(1, f"v_mov_b32 v{kb+10}, 0"), (1, f"v_mov_b32 v{kb+11}, 0")]
        P['mf'] = [(2, f"{MF} {vq(x+4*t)}, {aq(A_PHI + (t*3+u)*4)}, {vq(kb+4*u)}, {'0' if u == 0 else vq(x+4*t)}") for t in range(5) for u in range(3)]
        P['exp'] = [(2, f"v_exp_f32 v{e+i}, v{x+i}") for i in range(20)] + [(2, f"v_exp_f32 v{e+20+i}, -v{x+i}") for i in range(20)]
        def sums():
            L = [f"v_pk_add_f32 v[{m+2*h}:{m+2*h+1}], v[{e+20*h}:{e+20*h+1}], v[{e+20*h+2}:{e+20*h+3}]" for h in range(2)]
            L += [f"v_pk_add_f32 v[{m+2*h}:{m+2*h+1}], v[{m+2*h}:{m+2*h+1}], v[{e+20*h+2*i}:{e+20*h+2*i+1}]" for i in range(2, 10) for h in range(2)]
            L += [f"v_add_f32 v{m+2*h}, v{m+2*h}, v{m+2*h+1}" for h in range(2)]
            return L
        nm = name + self.sfx
        L = sums() + [f"v_max_f32 v{m+1}, v{m}, v{m+2}", f"v_cmp_ngt_f32 vcc, 0x5d800000, v{m+1}"]
        if not isq: L.append(f"v_rcp_f32 v{m+4}, v{m}")
        L += [f"v_rcp_f32 v{m+2}, v{m+2}", [f"s_cbranch_vccnz {nm}_slow", f"{nm}_back:"]]
        o = Prog()
        o(f"{nm}_slow:")
        o(f"v_max3_f32 v{m}, v{x}, v{x+1}, v{x+2}"); o(f"v_min3_f32 v{m+1}, v{x}, v{x+1}, v{x+2}")
        for i in range(3, 19, 2):
            o(f"v_max3_f32 v{m}, v{m}, v{x+i}, v{x+i+1}"); o(f"v_min3_f32 v{m+1}, v{m+1}, v{x+i}, v{x+i+1}")
        o(f"v_max_f32 v{m}, v{m}, v{x+19}"); o(f"v_min_f32 v{m+1}, v{m+1}, v{x+19}")
        for i in range(20): o(f"v_sub_f32 v{e+i}, v{x+i}, v{m}"); o(f"v_sub_f32 v{e+20+i}, v{m+1}, v{x+i}")
        for i in range(40): o(f"v_exp_f32 v{e+i}, v{e+i}")
        for y in sums(): o(y)
        if not isq: o(f"v_rcp_f32 v{m+4}, v{m}")
        o(f"v_rcp_f32 v{m+2}, v{m+2}"); o("s_nop 1"); o(f"s_branch {nm}_back")
        self.ool.append(o.finalize())
        if isq: L.append(f"v_mul_f32 v{m+2}, v{m+2}, v{m}")
        else: L += [f"v_pk_mul_f32 v[{e+2*i}:{e+2*i+1}], v[{e+2*i}:{e+2*i+1}], v[{m+4}:{m+5}] op_sel_hi:[1,0]" for i in range(10)]
        L += [f"v_pk_mul_f32 v[{e+20+2*i}:{e+21+2*i}], v[{e+20+2*i}:{e+21+2*i}], v[{m+2}:{m+3}] op_sel_hi:[1,0]" for i in range(10)]
        if self.o.get('whatif') == ('q' if isq else 'k'): L = [y for y in L if not (isinstance(y, str) and y.startswith('v_pk_add') and y.split()[1] == y.split()[2])]
        if self.o.get('whatif') == ('Q' if isq else 'K'): L = [y for y in L if not (isinstance(y, str) and y.startswith('v_pk_') and y.split()[1] == y.split()[2])]
        P['norm'] = [(1, y) for y in L]
        P['out'] = [(1, f"v_cvt_pk_bf16_f32 v{x+i}, v{e+2*i}, v{e+2*i+1}") for i in range(20)]
        return P
    def weave(self, mf, va, per=2):
        va = deque(va); L = []
        for x in mf:
            L.append(x); b = per
            while va and va[0][0] <= b: b -= va[0][0]; L.append(va.popleft())
        return L + list(va)
    def phiB(self, x, e, packed):
        L = []
        if packed: L += [(1, f"v_pk_mul_f32 v[{e+2*i}:{e+2*i+1}], v[{x+2*i}:{x+2*i+1}], s[{S_L2E}:{S_NL2E}] op_sel_hi:[1,0]") for i in range(10)]
        else: L += [(1, f"v_mul_f32 v{e+i}, s{S_L2E}, v{x+i}") for i in range(20)]
        L += [(2, f"v_exp_f32 v{e+i}, v{e+i} clamp") for i in range(20)]
        L += [(1, f"v_max_f32 v{x+i}, {EPS}, v{x+i}") for i in range(20)]
        if packed: L += [(1, f"v_pk_add_f32 v[{e+2*i}:{e+2*i+1}], v[{e+2*i}:{e+2*i+1}], v[{x+2*i}:{x+2*i+1}]") for i in range(10)]
        else: L += [(1, f"v_add_f32 v{e+i}, v{e+i}, v{x+i}") for i in range(20)]
        L += self.cvt20(e, x)
        return L
    def checked(self, name, loads, check, tag, redo=()):
        nm = name + self.sfx
        iss = [(x, tag) if x.startswith('buffer') else x for x in loads]
        chk = [(0, lambda: self.p.wait(vm=[tag]))] + [(1, x) for x in check] + [(1, [f"s_cbranch_vccnz {nm}_retry", f"{nm}_ok:"])]
        o = Prog()
        o(f"{nm}_retry:"); o(f"s_mov_b32 s{S_SPIN}, 0")
        if self.o.get('cnt') == name: o("s_mov_b32 s95, 1")
        o(f"{nm}_loop:")
        if self.o.get('stamps'): o(f"s_add_u32 s95, s95, {dict(L_xc=1000000, L_h1=10000, L_h2=1000, L_pf=10000000, L_f0=1, L_f1=100, L_d0=0, L_d1=100000)[name]}")
        bk = self.o.get('backoff', {}).get(name, 0)
        if bk: o(f"s_sleep {bk}")
        for x in loads: o(x)
        o("s_waitcnt vmcnt(0)")
        for x in check: o(x)
        o(f"s_cbranch_vccz {nm}_{'redo' if redo else 'ok'}")
        o(f"s_add_u32 s{S_SPIN}, s{S_SPIN}, 1"); o(f"s_cmp_lt_u32 s{S_SPIN}, {SPIN_MAX}"); o(f"s_cbranch_scc1 {nm}_loop")
        if redo:
            o(f"{nm}_redo:")
            for x in redo: o(x)
        o(f"s_branch {nm}_ok")
        self.ool.append(o.finalize())
        return iss, chk
    def body(self):
        p = self.p; A = self.A; F = self.F; br = 0 if A else 1; o = self.o
        t = TMP
        K = S_KA
        kx, kw, kout, kws = K, K + 2, K + 8, K + 10
        kphi, kwo = (K + 4, K + 6) if A else (None, K + 4)
        p.raw(f"""
        s_andn2_b32 s{T0}, 1, s2
        s_lshl_b32 s{T0}, s{T0}, 5
        s_load_dwordx8 s[{K}:{K+7}], s[0:1], s{T0}
        s_load_dwordx2 s[{kout}:{kout+1}], s[0:1], 56
        s_load_dwordx2 s[{kws}:{kws+1}], s[0:1], 72
        """)
        if o.get('stamps'): p("s_memtime s[96:97]"); p("s_mov_b32 s95, 0")
        if o.get('stamps') or o.get('amp') or o.get('cntm'): p("s_memrealtime s[98:99]")
        if o.get('cntm'): p("s_mov_b32 s95, 0")
        p.raw(f"""
        s_getpc_b64 s[60:61]
        L_pc:
        s_bfe_u32 s{S_HG}, s2, 0x30003
        v_and_b32 v{V_LANE}, 63, v0
        v_lshrrev_b32 v{t}, 6, v0
        s_bitcmp0_b32 s2, 0
        s_cselect_b32 s{T1}, L_setupB-L_setupA, 0
        s_lshl_b32 s{T0}, s{S_HG}, 12
        v_lshlrev_b32 v{V_L128}, 7, v{V_LANE}
        v_readfirstlane_b32 s{S_W}, v{t}
        s_add_u32 s{T0}, s{T0}, s{T1}
        s_add_u32 s{T0}, s{T0}, L_setupA-L_pc
        s_add_u32 s60, s60, s{T0}
        s_addc_u32 s61, s61, 0
        v_lshl_add_u32 v{t+1}, v{t}, 10, v{V_L128}
        s_mov_b64 exec, 0xff
        """)
        p(f"global_load_dword v{V_DUMP}, v{t+1}, s[60:61]", 'cpf')
        p("s_mov_b64 exec, -1")
        ra, rbm, rdiv = o.get('rot', (10, 10, 4))
        p.raw(f"""
        s_and_b32 s{S_RB}, s2, 6
        s_lshl_b32 s{S_RB}, s{S_RB}, 1
        s_lshr_b32 s{T0}, s2, 6
        s_add_u32 s{S_RB}, s{S_RB}, s{T0}
        s_mul_i32 s{T0}, s{S_HG}, {ra}
        s_mul_i32 s{T1}, s{S_RB}, {rbm}
        s_add_u32 s{T0}, s{T0}, s{T1}
        s_lshr_b32 s{T0}, s{T0}, {rdiv.bit_length()-1}
        s_mul_i32 s{T1}, s{T0}, 6554
        s_lshr_b32 s{T1}, s{T1}, 16
        s_mul_i32 s{T1}, s{T1}, 10
        s_sub_u32 s{T3}, s{T0}, s{T1}
        s_lshl_b32 s{S_XU}, s{T3}, 7
        s_lshl_b32 s{T0}, s{S_RB}, 2
        s_add_u32 s{T0}, s{T0}, s{S_W}
        s_mul_i32 s{S_XBASE}, s{T0}, 40960
        s_mul_i32 s{S_LW}, s{S_W}, 5120
        s_mul_i32 s{S_LR}, s{S_W}, {RW}
        s_add_u32 s{S_LR}, s{S_LR}, {RBASE}
        v_lshrrev_b32 v{t}, 3, v{V_LANE}
        v_mul_u32_u24 v{t}, 1280, v{t}
        v_lshrrev_b32 v{t+1}, 4, v{V_LANE}
        v_xor_b32 v{t+1}, v{t+1}, v{V_LANE}
        v_and_b32 v{t+1}, 7, v{t+1}
        v_lshl_add_u32 v{V_XO}, v{t+1}, 4, v{t}
        v_xor_b32 v{t+2}, 64, v{V_XO}
        v_add_u32 v{V_XO+1}, {9216}, v{t+2}
        v_add_u32 v{V_XO+2}, {2*9216}, v{V_XO}
        v_add_u32 v{V_XO+3}, {3*9216}, v{t+2}
        s_lshr_b32 s{T0}, s{S_W}, 1
        s_add_u32 s{T0}, s{T0}, s{T3}
        s_and_b32 s{T1}, s{S_W}, 1
        s_mul_i32 s{T1}, s{T1}, {32*3840}
        s_mul_i32 s{T2}, s{S_HG}, 160
        s_add_u32 s{T1}, s{T1}, s{T2}
        s_mov_b32 s{SX+2}, 2621440
        s_mov_b32 s{SX+3}, 0x20000
        s_mov_b32 s{SW+2}, 2457600
        s_mov_b32 s{SW+3}, 0x20000
        """)
        def wrow(g):
            p.raw(f"""
            s_cmp_ge_u32 s{T0}, 10
            s_cselect_b32 s{T2}, 10, 0
            s_sub_u32 s{T0}, s{T0}, s{T2}
            s_mul_i32 s{T2}, s{T0}, {64*3840}
            s_add_u32 s{S_WROW+g}, s{T2}, s{T1}
            s_add_u32 s{T0}, s{T0}, 2
            """)
        wrow(0)
        RH = TMP + 10
        def woff(j):
            b = RH + 5 * j
            p.raw(f"""
            v_add_u32 v{t}, {64*j}, v{V_LANE}
            v_mul_u32_u24 v{b+4}, 6554, v{t}
            v_lshrrev_b32 v{b+4}, 16, v{b+4}
            v_mul_u32_u24 v{t+2}, 10, v{b+4}
            v_sub_u32 v{b+3}, v{t}, v{t+2}
            v_bfe_u32 v{b}, v{b+4}, 2, 2
            v_lshrrev_b32 v{b+1}, 4, v{b+4}
            v_and_b32 v{b+2}, 3, v{b+4}
            v_lshl_add_u32 v{t}, v{b}, 1, v{b+1}
            v_lshl_add_u32 v{t}, v{t}, 2, v{b+2}
            v_mul_u32_u24 v{t}, 3840, v{t}
            v_lshl_add_u32 v{V_WO+j}, v{b+3}, 4, v{t}
            """)
            if 0 < j < 4: p(f"v_subrev_u32 v{V_WO+j}, {1024*j}, v{V_WO+j}")
        if o.get('fakeinit'):
            p.raw(f"""
            s_mul_i32 s94, s{S_HG}, 102400
            s_add_u32 s94, s94, s{S_LW}
            v_lshlrev_b32 v{V_LIN}, 4, v{V_LANE}
            v_mov_b32 v226, v{V_LIN}
            v_add_u32 v227, 51200, v{V_LIN}
            """)
        woff(0); woff(1)
        if o.get('pre0'): p("s_memtime s[92:93]")
        p.raw(f"""
        s_waitcnt lgkmcnt(0)
        s_mov_b32 s{SX}, s{kx}
        s_mov_b32 s{SX+1}, s{kx+1}
        s_mov_b32 s{SW}, s{kw}
        s_mov_b32 s{SW+1}, s{kw+1}
        """)
        if o.get('late0'): p.raw(f"s_and_b32 s60, s2, 7\ns_cmp_lg_u32 s60, 0\ns_cbranch_scc1 L_nd0\ns_sleep {o['late0']}\nL_nd0:")
        if o.get('bdelay'): p.raw(f"s_bitcmp1_b32 s2, 0\ns_cbranch_scc1 L_nd\ns_sleep {o['bdelay']}\nL_nd:")
        self.stamp('p0')
        if o.get('pre0'): p(f"s_sub_u32 s{S_ST+self.nst}, s92, s96"); self.nst += 1
        self.put(self.dma_x(0))
        w0 = self.dma_w(0)
        self.put(w0[0:2]); woff(2); self.put(w0[2]); woff(3); self.put(w0[3]); woff(4); self.put(w0[4])
        self.stamp('p1')
        if o.get('prowait'):
            p.wait(vm=['cpf']); self.stamp('p2')
            p.wait(vm=[('X', 0)]); self.stamp('p3')
            p.wait(vm=[('W', 0)]); self.stamp('p4')
        p("s_bitcmp0_b32 s2, 0"); p("s_cbranch_scc1 L_setupB")
        p(".split")
        p(f"L_setup{self.sfx}:")
        p(f"s_load_dword s{S_NONCE}, s[{kws}:{kws+1}], {br*128}")
        if not A:
            p(f"s_load_dword s{S_UTAG}, s[{kws}:{kws+1}], 0")
            p(f"s_load_dwordx2 s[{K+6}:{K+7}], s[0:1], 24")
        for g in range(1, 5): wrow(g)
        if o.get('bal'):
            nw, nx, where = o['bal']
            L_ = [f"s_add_u32 s{T0}, s{S_HG}, s{S_RB}", f"s_bitcmp1_b32 s{T0}, 0", f"s_cbranch_scc1 L_bal{self.sfx}",
                  f"s_cmp_ge_u32 s{S_W}, 2", f"s_cbranch_scc1 L_balx{self.sfx}",
                  f"s_mul_i32 s{T0}, s{S_W}, {32*3840 - 156}", f"s_sub_u32 s{T0}, s{S_WROW+2}, s{T0}", f"v_mul_u32_u24 v{TMP+104}, 3840, v{V_LANE}",
                  f"s_mov_b32 exec_lo, {hex(((1 << nw) - 1) & 0xffffffff)}", f"s_mov_b32 exec_hi, {hex(((1 << nw) - 1) >> 32)}",
                  f"buffer_load_dword v{V_DUMP}, v{TMP+104}, {srd(SW)}, s{T0} offen offset:1280", f"s_branch L_bal{self.sfx}",
                  f"L_balx{self.sfx}:",
                  f"s_mul_i32 s{T0}, s{S_RB}, {128*1280}", f"s_bfe_u32 s{T1}, s{S_HG}, 0x10002", f"s_lshl_b32 s{T1}, s{T1}, 1", f"s_add_u32 s{T1}, s{T1}, s{S_W}", f"s_sub_u32 s{T1}, s{T1}, 2",
                  f"s_mul_i32 s{T1}, s{T1}, {32*1280}", f"s_add_u32 s{T0}, s{T0}, s{T1}", f"s_lshl_b32 s{T1}, s{T3}, 7", f"s_add_u32 s{T0}, s{T0}, s{T1}", f"v_mul_u32_u24 v{TMP+104}, 1280, v{V_LANE}",
                  f"s_mov_b32 exec_lo, {hex((1 << nx) - 1)}", "s_mov_b32 exec_hi, 0",
                  f"buffer_load_dword v{V_DUMP}, v{TMP+104}, {srd(SX)}, s{T0} offen offset:512",
                  f"L_bal{self.sfx}:", "s_mov_b64 exec, -1"]
            if where == 0: p.untracked(L_)
            else:
                self.put(self.dma_x(1)); p.untracked(L_)
        if not (o.get('bal') and o['bal'][2]): self.q(0, self.dma_x(1))
        p.raw(f"""
        s_mov_b32 s{SWS}, s{kws}
        s_mov_b32 s{SWS+1}, s{kws+1}
        s_mov_b32 s{SWS+2}, {WS_SIZE}
        s_mov_b32 s{SWS+3}, 0x20000
        s_mov_b32 s{SOUT}, s{kout}
        s_mov_b32 s{SOUT+1}, s{kout+1}
        s_mov_b32 s{SOUT+2}, 5242880
        s_mov_b32 s{SOUT+3}, 0x20000
        s_lshl_b32 s{S_HEAD}, s{S_HG}, 2
        s_add_u32 s{S_HEAD}, s{S_HEAD}, s{S_W}
        v_lshlrev_b32 v{V_LIN}, 4, v{V_LANE}
        """)
        if A:
            p.raw(f"""
            s_mov_b32 s{SPHI}, s{kphi}
            s_mov_b32 s{SPHI+1}, s{kphi+1}
            s_mov_b32 s{SPHI+2}, 25600
            s_mov_b32 s{SPHI+3}, 0x20000
            """)
            self.q(0, [[f"s_mul_i32 s{S_WS}, s{S_HEAD}, 800",
                        (f"buffer_load_dwordx4 {vq(TMP+96)}, v{V_LIN}, {srd(SPHI)}, s{S_WS} offen", 'wphi')]])
        self.q(0, self.dma_w(1)); self.q(0, self.dma_x(2))
        G_, I_, R_, C_ = t, t + 1, t + 2, t + 3
        S = []
        def raw(txt):
            for l in txt.split('\n'):
                if l.strip(): S.append((1, l.strip()))
        raw(f"""
        v_lshrrev_b32 v{G_}, 4, v{V_LANE}
        v_and_b32 v{I_}, 15, v{V_LANE}
        v_bfe_u32 v{R_}, v{V_LANE}, 2, 2
        v_and_b32 v{C_}, 3, v{V_LANE}
        v_lshrrev_b32 v{t+4}, 1, v{I_}
        v_xor_b32 v{t+4}, v{t+4}, v{G_}
        v_lshlrev_b32 v{t+5}, 7, v{I_}
        v_lshl_add_u32 v{t+4}, v{t+4}, 4, v{t+5}
        v_add_u32 v{V_XR}, s{S_LR}, v{t+4}
        v_xor_b32 v{t+4}, 64, v{t+4}
        v_add_u32 v{V_XR+1}, s{S_LR}, v{t+4}
        v_lshrrev_b32 v{t+4}, 2, v{V_LANE}
        v_mul_u32_u24 v{t+5}, 160, v{t+4}
        v_mul_u32_u24 v{t+6}, 40, v{C_}
        v_add_u32 v{V_WT}, v{t+5}, v{t+6}
        v_add_u32 v{V_WT+1}, 51200, v{V_WT}
        v_mul_u32_u24 v{t+5}, 120, v{I_}
        v_mul_u32_u24 v{t+6}, 3840, v{G_}
        v_add3_u32 v{V_PW}, v{t+5}, v{t+6}, s{S_LR}
        v_mul_u32_u24 v{t+6}, 40, v{G_}
        v_mul_u32_u24 v{t+7}, {OUTS}, v{I_}
        s_mul_i32 s{T2}, s{S_W}, {32*OUTS}
        s_add_u32 s{T2}, s{T2}, {OUTL}
        v_add3_u32 v{V_OW}, v{t+7}, v{t+6}, s{T2}
        v_and_b32 v{t+5}, 7, v{t+4}
        v_lshrrev_b32 v{t+6}, 5, v{V_LANE}
        v_lshlrev_b32 v{t+6}, 1, v{t+6}
        v_lshl_add_u32 v{t+5}, v{t+5}, 2, v{t+6}
        v_mul_u32_u24 v{t+5}, 120, v{t+5}
        s_mul_i32 s{T0}, s{S_W}, 3840
        s_add_u32 s{T0}, s{T0}, {RBASE}
        v_add_u32 v{V_KA1}, s{T0}, v{t+5}
        v_lshl_add_u32 v{V_KB}, v{C_}, 3, v{V_KA1}
        s_mov_b32 s{S_L2E}, 0x3fb8aa3b
        s_mov_b32 s{S_NL2E}, 0xbfb8aa3b
        s_mov_b32 s{S_PERM}, 0x07060302
        s_and_b32 s{T3}, s{S_HG}, 1
        """)
        for j in range(5):
            b = RH + 5 * j
            if j < 3: raw(f"""
            v_mul_u32_u24 v{t+5}, {OUTS}, v{b+4}
            v_lshl_add_u32 v{t+5}, v{b+3}, 4, v{t+5}
            v_add_u32 v{V_ORD+j}, s{T2}, v{t+5}
            v_mul_u32_u24 v{t+5}, 2560, v{b+4}
            v_lshl_add_u32 v{V_OG+j}, v{b+3}, 4, v{t+5}
            """)
            if j == 2: raw(f"""
            v_lshrrev_b32 v{t+5}, 5, v{V_LANE}
            v_lshl_or_b32 v{V_OG+2}, v{t+5}, 30, v{V_OG+2}
            """)
        raw(f"""
        v_mov_b32 v{t+5}, 2304
        v_cmp_gt_u32 vcc, 16, v{V_LANE}
        v_mov_b32 v{t+6}, 1024
        v_cndmask_b32 v{t+5}, v{t+5}, v{t+6}, vcc
        v_add_u32 v{V_OO+1}, v{t+5}, v{V_LIN}
        v_mov_b32 v{V_OO}, v{V_LIN}
        v_add_u32 v{V_OO+2}, 40960, v{V_LIN}
        v_add_u32 v{V_OO+3}, 40960, v{V_OO+1}
        v_lshrrev_b32 v{t+4}, 5, v{V_LANE}
        v_mul_u32_u24 v{t+4}, {40960-512}, v{t+4}
        v_add_u32 v{t+5}, 3328, v{V_LIN}
        v_add_u32 v{V_OO+4}, v{t+4}, v{t+5}
        v_add_u32 v{V_LINH}, 51200, v{V_LIN}
        v_min_u32 v{V_PF}, 39, v{V_LANE}
        v_lshlrev_b32 v{V_PF}, 3, v{V_PF}
        v_and_b32 v{t+4}, 1, v{RH+4}
        v_mul_u32_u24 v{t+4}, 2560, v{t+4}
        v_lshrrev_b32 v{t+5}, 1, v{RH+4}
        v_mul_u32_u24 v{t+5}, 40960, v{t+5}
        v_lshlrev_b32 v{t+6}, 7, v{RH+3}
        v_add3_u32 v{V_L128}, v{t+4}, v{t+5}, v{t+6}
        """)
        raw(f"""
        s_lshl_b32 s{T0}, s{T3}, 1
        s_xor_b32 s{T0}, s{T0}, s{S_W}
        s_mul_i32 s{T0}, s{T0}, 5120
        s_mul_i32 s{T2}, s{S_HG}, 102400
        s_add_u32 s{T2}, s{T2}, {WS_PK + br*819200}
        s_add_u32 s{T0}, s{T0}, s{T2}
        s_lshr_b32 s{S_SPIN}, s{S_HG}, 1
        s_add_u32 s{T1}, s{S_SPIN}, s{S_W}
        s_and_b32 s{T1}, s{T1}, 3
        s_add_u32 s{T1}, s{T1}, 16
        s_mul_i32 s{T1}, s{T1}, 5120
        s_add_u32 s{S_WOROW+4}, s{T1}, s{T2}
        s_lshr_b32 s{S_PFL}, s{S_HG}, 2
        s_lshl_b32 s{S_PFL}, s{S_PFL}, 9
        s_add_u32 s{S_PFL}, s{S_PFL}, {WS_PF + br*1024}
        s_mul_i32 s{T2}, s{S_HG}, 160
        s_lshl_b32 s{S_OUT}, s{S_XBASE}, 1
        s_add_u32 s{S_OUT}, s{S_OUT}, s{T2}
        s_add_u32 s{S_OUT}, s{S_OUT}, {br*1280}
        s_lshl_b32 s{S_OB}, s{S_XBASE}, 1
        s_add_u32 s{S_OB}, s{S_OB}, {br*1280}
        """)
        for g in range(4):
            raw(f"""
            s_add_u32 s{T1}, s{S_SPIN}, {g}
            s_and_b32 s{T1}, s{T1}, 3
            s_mul_i32 s{T2}, s{T1}, 20480
            s_add_u32 s{S_WOROW+g}, s{T2}, s{T0}
            s_lshl_b32 s{T1}, s{T1}, 1
            s_add_u32 s{T1}, s{T1}, s{T3}
            s_mul_i32 s{T2}, s{T1}, 5120
            s_add_u32 s{S_OP+2*g}, s{T2}, s{S_OB}
            s_xor_b32 s{T1}, s{T1}, 1
            s_mul_i32 s{T2}, s{T1}, 5120
            s_add_u32 s{S_OP+2*g+1}, s{T2}, s{S_OB}
            """)
        SH = 8 if A else 7
        raw(f"""
        s_lshl_b32 s{T0}, s{S_RB}, 2
        s_add_u32 s{T0}, s{T0}, s{S_W}
        s_lshl_b32 s{S_FLAG}, s{T0}, 7
        s_add_u32 s{S_FLAG}, s{S_FLAG}, {WS_FLAG + br*64*128}
        s_lshl_b32 s{T0}, s{S_HEAD}, 16
        s_add_u32 s{T0}, s{T0}, {WS_P1 + br*32*65536}
        s_lshl_b32 s{T1}, s{S_RB}, 12
        s_add_u32 s{S_P1ST}, s{T0}, s{T1}
        s_min_u32 s{T1}, s{S_RB}, 14
        s_lshl_b32 s{T1}, s{T1}, {SH}
        s_add_u32 s{S_P1LD}, s{T0}, s{T1}
        s_lshl_b32 s{T0}, s{S_HEAD}, 12
        s_add_u32 s{S_P2LD}, s{T0}, {WS_P2 + br*32*4096}
        s_add_u32 s{S_P2ST}, s{S_P2LD}, s{T1}
        s_lshr_b32 s{T1}, s{S_RB}, {4 - o.get('p2log', 2)}
        s_lshl_b32 s{T1}, s{T1}, 18
        s_add_u32 s{S_P2LD}, s{S_P2LD}, s{T1}
        v_mul_u32_u24 v{t+4}, {F if A else 16}, v{G_}
        v_add_lshl_u32 v{V_P1ST}, v{t+4}, v{I_}, 4
        v_mul_u32_u24 v{t+4}, {F if A else 4}, v{G_}
        v_add_lshl_u32 v{t+5}, v{t+4}, v{I_}, 4
        v_lshrrev_b32 v{t+4}, {3 if A else 2}, v{I_}
        v_lshl_or_b32 v{V_P1M}, v{t+4}, 28, v{t+5}
        v_lshrrev_b32 v{t+4}, 1, v{G_}
        v_lshl_or_b32 v{V_P1M+1}, v{t+4}, 30, v{V_P1ST}
        v_lshl_or_b32 v{V_P1M+2}, v{t+4}, 30, v{V_P1M}
        v_cmp_gt_u32 vcc, 4, v{I_}
        v_cndmask_b32 v{V_KEEP}, 0, -1, vcc
        v_mov_b32 v{t+4}, 0x3f803f80
        v_cmp_eq_u32 vcc, 4, v{I_}
        v_cndmask_b32 v{V_ONE}, 0, v{t+4}, vcc
        v_and_b32 v{t+4}, 7, v{V_LANE}
        v_lshlrev_b32 v{V_F8}, 2, v{t+4}
        s_lshl_b32 s{T0}, s{S_HG}, 2
        v_min_u32 v{V_FOWN}, 1, v{V_LANE}
        v_lshlrev_b32 v{V_FOWN}, 30, v{V_FOWN}
        v_or_b32 v{V_FOWN}, s{T0}, v{V_FOWN}
        v_lshlrev_b32 v{V_ZA}, 3, v0
        v_add_u32 v{V_ZA}, {RBASE+7680}, v{V_ZA}
        """)
        if A:
            raw(f"""
            v_lshlrev_b32 v{t+5}, 12, v{G_}
            v_lshl_add_u32 v{V_P1LD}, v{I_}, 4, v{t+5}
            v_lshlrev_b32 v{V_P2ST}, 2, v{V_LANE}
            """)
        else:
            raw(f"""
            v_lshrrev_b32 v{t+5}, 3, v{V_LANE}
            v_lshlrev_b32 v{t+5}, 12, v{t+5}
            v_lshl_add_u32 v{V_P1LD}, v{t+4}, 4, v{t+5}
            v_lshl_add_u32 v{V_P2ST}, v{G_}, 5, v{V_F8}
            """)
        RS = 80 if A else 48
        HS = 24 * RS
        NQ = 240 if A else 120
        NI = 4 if A else 2
        raw(f"s_mul_i32 s{T0}, s{S_W}, {HS}\ns_add_u32 s{T0}, s{T0}, {RBASE}")
        u = t + 4
        for ii in range(NI):
            raw(f"v_add_u32 v{u}, {64*ii}, v{V_LANE}")
            if ii == NI - 1:
                raw(f"""v_subrev_u32 v{u+1}, 64, v{u}
                v_cmp_gt_u32 vcc, {NQ}, v{u}
                v_cndmask_b32 v{u}, v{u+1}, v{u}, vcc
                v_lshlrev_b32 v{V_GAL}, 4, v{u}""")
            if A:
                raw(f"""
                v_lshrrev_b32 v{u+1}, 4, v{u}
                v_and_b32 v{u+2}, 3, v{u}
                v_lshl_add_u32 v{u+1}, v{u+1}, 2, v{u+2}
                v_bfe_u32 v{u+2}, v{u}, 2, 2
                v_mul_u32_u24 v{u+3}, 6554, v{u+1}
                v_lshrrev_b32 v{u+3}, 16, v{u+3}
                v_mul_u32_u24 v{u+4}, 10, v{u+3}
                """)
            else:
                raw(f"""
                v_lshrrev_b32 v{u+1}, 3, v{u}
                v_and_b32 v{u+2}, 1, v{u}
                v_lshl_add_u32 v{u+1}, v{u+1}, 1, v{u+2}
                v_bfe_u32 v{u+2}, v{u}, 1, 2
                v_cmp_gt_u32 vcc, 24, v{u+1}
                v_lshrrev_b32 v{u+3}, 2, v{u+1}
                v_subrev_u32 v{u+4}, 24, v{u+1}
                v_cndmask_b32 v{u+3}, v{u+4}, v{u+3}, vcc
                v_and_b32 v{u+1}, 3, v{u+1}
                v_cndmask_b32 v{u+1}, 4, v{u+1}, vcc
                v_mov_b32 v{u+4}, 0
                """)
            raw(f"""
            v_sub_u32 v{u+1}, v{u+1}, v{u+4}
            v_lshl_add_u32 v{u+3}, v{u+3}, 2, v{u+2}
            v_mul_u32_u24 v{u+3}, {RS}, v{u+3}
            v_lshl_add_u32 v{u+3}, v{u+1}, 3, v{u+3}
            v_add_u32 v{V_LA+ii}, s{T0}, v{u+3}
            """)
        raw(f"""
        v_cmp_eq_u32 vcc, v{G_}, v{R_}
        v_mul_u32_u24 v{u}, {HS}, v{G_}
        v_mul_u32_u24 v{u+1}, {RS}, v{C_}
        v_add_u32 v{u}, v{u}, v{u+1}
        v_add_u32 v{u}, {RBASE}, v{u}
        v_mov_b32 v{u+1}, {RBASE+7680}
        v_cndmask_b32 v{V_FR2}, v{u+1}, v{u}, vcc
        """)
        if A:
            raw(f"""
            v_mov_b32 v{t+36}, 0
            v_mov_b32 v{t+37}, 0
            v_mov_b32 v{t+38}, 0
            v_mov_b32 v{t+39}, 0
            v_add_u32 v{TMP+100}, s{S_LR}, v{V_LIN}
            ds_write_b128 v{TMP+100}, {vq(t+36)} offset:13312
            v_mul_u32_u24 v{t+4}, {RW}, v{G_}
            v_mul_u32_u24 v{t+5}, 40, v{R_}
            v_add_u32 v{t+4}, v{t+4}, v{t+5}
            v_add_u32 v{t+4}, {RBASE+12288}, v{t+4}
            s_add_u32 s{T0}, s{S_LR}, 13312
            v_mov_b32 v{t+5}, s{T0}
            v_cmp_eq_u32 vcc, v{C_}, v{G_}
            v_cndmask_b32 v{V_FR}, v{t+5}, v{t+4}, vcc
            """)
            for tt in range(5):
                a = A_PHI + (tt * 3 + 2) * 4
                raw(f"v_accvgpr_write_b32 a{a+2}, 0\nv_accvgpr_write_b32 a{a+3}, 0")
        US, UA, UD = TMP + 40, TMP + 45, TMP + 80
        nA = o.get('nA', 0); prod = (not A) or nA > 0
        S_UOK = 92
        if prod:
            if o.get('umap', 1) == 0: umap = f"""s_add_u32 s{T1}, s{S_HG}, s{S_RB}
            s_and_b32 s{T1}, s{T1}, 1
            s_lshl_b32 s{T0}, s{S_W}, 1
            s_add_u32 s{T0}, s{T0}, s{T1}
            s_lshl_b32 s{T0}, s{T0}, 3
            s_add_u32 s{T0}, s{T0}, s{S_HG}
            s_lshl_b32 s{T0}, s{T0}, 3
            s_lshr_b32 s{T1}, s{S_RB}, 1
            s_add_u32 s{T0}, s{T0}, s{T1}
            s_add_u32 s{T0}, s{T0}, {0 if A else nA}
            s_cmp_lt_u32 s{T0}, {nA if A else 320}
            s_cselect_b32 s{S_UOK}, 1, 0"""
            elif o.get('umap', 1) == 1:
                umap = f"""s_lshr_b32 s{T1}, s{S_RB}, 2
                s_mul_i32 s{T0}, s{T1}, 3
                s_add_u32 s{T0}, s{T0}, s{S_W}
                s_sub_u32 s{T0}, s{T0}, 2
                s_cmp_eq_u32 s{T1}, 0
                s_cselect_b32 s{T0}, 0, s{T0}
                s_cselect_b32 s{T1}, 1, 3
                s_cmp_lt_u32 s{S_W}, s{T1}
                s_cselect_b32 s{S_UOK}, 1, 0
                s_lshl_b32 s{T0}, s{T0}, 5
                s_lshr_b32 s{T1}, s2, 3
                s_add_u32 s{T0}, s{T0}, s{T1}"""
            else:
                umap = f"""s_lshr_b32 s{T1}, s{S_RB}, 2
                s_sub_u32 s{T1}, s{T1}, 1
                s_add_u32 s{T2}, s{S_HG}, s{S_RB}
                s_and_b32 s{T2}, s{T2}, 1
                s_lshl_b32 s{T0}, s{S_W}, 1
                s_add_u32 s{T0}, s{T0}, s{T2}
                s_lshl_b32 s{T0}, s{T0}, 4
                s_lshr_b32 s{T2}, s2, 4
                s_add_u32 s{T0}, s{T0}, s{T2}
                s_mul_i32 s{T0}, s{T0}, 3
                s_add_u32 s{T0}, s{T0}, s{T1}
                s_cmp_lt_u32 s{T0}, 320
                s_cselect_b32 s{S_UOK}, 1, 0
                s_cmp_lt_u32 s{S_RB}, 4
                s_cselect_b32 s{S_UOK}, 0, s{S_UOK}"""
            iS0 = len(S)
            S.append((1, [x.strip() for x in f"""
            {umap}
            s_waitcnt lgkmcnt(0)
            s_cmp_lt_u32 s{T0}, 160
            s_cselect_b32 s{SWO}, s{K+6}, s{kwo}
            s_cselect_b32 s{SWO+1}, s{K+7}, s{kwo+1}
            s_cselect_b32 s{S_UTAG}, s{S_NONCE if A else S_UTAG}, s{S_NONCE}
            s_cselect_b32 s{T1}, 0, 160
            s_cselect_b32 s{S_UDST}, 0, 819200
            s_cselect_b32 s{S_UFL}, 0, 1024
            s_mov_b32 s{SWO+2}, 819200
            s_mov_b32 s{SWO+3}, 0x20000
            s_add_u32 s{S_UTAG}, s{S_UTAG}, 0x9e3779b1
            s_sub_u32 s{T0}, s{T0}, s{T1}
            s_and_b32 s{T1}, s{T0}, 1
            s_mul_i32 s{S_USRC}, s{T1}, 640
            s_mul_i32 s{T2}, s{T1}, 409600
            s_add_u32 s{S_UDST}, s{S_UDST}, s{T2}
            s_lshl_b32 s{T2}, s{T1}, 9
            s_add_u32 s{S_UFL}, s{S_UFL}, s{T2}
            s_lshr_b32 s{T1}, s{T0}, 1
            s_lshl_b32 s{T2}, s{T1}, 2
            s_add_u32 s{S_UFL}, s{S_UFL}, s{T2}
            s_add_u32 s{S_UFL}, s{S_UFL}, {WS_PF}
            s_and_b32 s{T1}, s{T1}, 3
            s_mul_i32 s{T2}, s{T1}, {20*1280}
            s_add_u32 s{S_USRC}, s{S_USRC}, s{T2}
            s_lshl_b32 s{T2}, s{T1}, 8
            s_add_u32 s{S_UDST}, s{S_UDST}, s{T2}
            s_lshr_b32 s{T1}, s{T0}, 3
            s_mul_i32 s{T2}, s{T1}, 5120
            s_add_u32 s{S_UDST}, s{S_UDST}, s{T2}
            s_add_u32 s{S_UDST}, s{S_UDST}, {WS_PK}
            s_lshr_b32 s{T2}, s{T1}, 1
            s_mul_i32 s{T2}, s{T2}, 80
            s_and_b32 s{T3}, s{T1}, 1
            s_lshl_b32 s{T3}, s{T3}, 3
            s_add_u32 s{T2}, s{T2}, s{T3}
            s_mul_i32 s{T3}, s{T1}, 160
            s_sub_u32 s{T3}, s{T3}, {16*160 - 16}
            s_cmp_ge_u32 s{T1}, 16
            s_cselect_b32 s{T2}, s{T3}, s{T2}
            s_cselect_b32 s{T3}, 1, 0
            s_mul_i32 s{T2}, s{T2}, 1280
            s_add_u32 s{S_USRC}, s{S_USRC}, s{T2}
            s_mul_i32 s{T1}, s{T3}, {76*1280}
            s_add_u32 s{T2}, s{S_LW}, {RING + 4*SLOT}
            """.split('\n') if x.strip()]))
            for j in range(5):
                raw(f"""
                v_lshrrev_b32 v{t+4}, 2, v{RH+5*j+4}
                v_mul_u32_u24 v{t+5}, 640, v{t+4}
                v_lshrrev_b32 v{t+4}, 2, v{t+4}
                v_mul_u32_u24 v{t+4}, s{T1}, v{t+4}
                v_add3_u32 v{US+j}, v{t+4}, v{t+5}, v{V_LIN}
                """)
            raw(f"v_add_u32 v{US+4}, 4096, v{US+4}")
            iS1 = len(S)
            raw(f"""
            v_mul_u32_u24 v{t+7}, 640, v{R_}
            v_mul_u32_u24 v{t+8}, 40, v{C_}
            v_add3_u32 v{t+7}, v{t+7}, v{t+8}, s{T2}
            """)
            for j in range(5):
                raw(f"""
                v_add_u32 v{t+4}, {4*j}, v{G_}
                v_mul_u32_u24 v{t+5}, 13108, v{t+4}
                v_lshrrev_b32 v{t+5}, 16, v{t+5}
                v_mul_u32_u24 v{t+6}, 120, v{t+5}
                v_lshl_add_u32 v{t+6}, v{t+4}, 3, v{t+6}
                v_add_u32 v{t+6}, v{t+6}, v{t+7}
                v_and_b32 v{t+8}, s{T3}, v{t+5}
                v_mul_u32_u24 v{t+8}, 2560, v{t+8}
                v_add_u32 v{UA+2*j}, v{t+6}, v{t+8}
                v_sub_u32 v{t+6}, v{t+6}, v{t+8}
                v_add_u32 v{UA+2*j+1}, 2560, v{t+6}
                v_mul_u32_u24 v{t+5}, {102400 - 5120}, v{t+5}
                v_lshl_add_u32 v{t+5}, v{t+4}, 10, v{t+5}
                v_lshl_add_u32 v{UD+j}, v{I_}, 4, v{t+5}
                """)
            mark = {}
            def cond(name, lines):
                p.untracked([f"s_cmp_eq_u32 s{S_UOK}, 0", f"s_cbranch_scc1 {name}{self.sfx}"] + lines + [f"{name}{self.sfx}:"])
                mark[name] = p.nvm
            L = [f"s_add_u32 m0, s{S_LW}, {RING + 4*SLOT}"]
            for j in range(5):
                off = f"offset:{j*1024} " if 0 < j < 4 else ""
                L.append(f"buffer_load_dwordx4 v{US+j}, {srd(SWO)}, s{S_USRC} offen {off}lds")
                if j == 3: L.append(f"s_add_u32 m0, s{S_LW}, {RING + 4*SLOT + 4096}")
            un = [[lambda L=L: cond("L_u1", L)]]
            if o.get('uissue', 0) == 0: self.q(10**6 + 77, un)
            if o.get('uissue', 0) == -1: S = S[:4] + S[iS0:iS1] + [(0, un[0])] + S[iS1:] + S[4:iS0]
        self.run(S, every=o.get('proev', 60))
        self.stamp('p5')
        if o.get('uissue', 0) == 0: self.release(77)
        def urd():
            assert not any(x.tag == ('W', 4) for x in p.ins)
            cond("L_u2r", [f"s_waitcnt vmcnt({p.nvm - mark['L_u1']}) lgkmcnt(0)"] +
                [f"ds_read_b64_tr_b16 {vq(TMP+60+2*k, 2)}, v{UA+k}" for k in range(10)] + ["s_waitcnt lgkmcnt(0)"])
        def ust(j): cond("L_u2" + "abcd "[j].strip(), [f"buffer_store_dwordx4 {vq(TMP+60+4*j)}, v{UD+j}, {srd(SWS)}, s{S_UDST} offen sc1"])
        if o.get('hops', 1):
            p("s_mov_b64 exec, 0")
            for w_ in range(3): p(f"s_cmp_eq_u32 s{S_W}, {w_}"); p(f"s_cbranch_scc1 L_hop{w_}{self.sfx}")
            p(f"s_branch L_hop3{self.sfx}")
            p(f"L_hopret{self.sfx}:")
            p("s_mov_b64 exec, -1")
        if prod and o.get('upos', (0,))[0] < 0:
            while len(self.dq) > -o['upos'][0] - 1 and self.tick(): pass
            urd()
            for j in range(5): ust(j)
        while len(self.dq) > o.get('prokeep', 0) and self.tick(): pass
        p.raw(f"""
        s_getreg_b32 s{T0}, hwreg(HW_REG_XCC_ID, 0, 4)
        s_waitcnt lgkmcnt(0)
        s_add_u32 s{S_NONCE}, s{S_NONCE}, 0x9e3779b1
        s_lshl_b32 s{T0}, s{T0}, 28
        s_xor_b32 s{S_XCCV}, s{T0}, s{S_NONCE}
        v_mov_b32 v{V_NONCE}, s{S_NONCE}
        v_and_b32 v{V_VW}, 1, v{V_LANE}
        v_lshlrev_b32 v{V_VW}, 4, v{V_VW}
        v_lshrrev_b32 v{V_VW}, v{V_VW}, v{V_NONCE}
        v_mov_b32 v{V_KA0}, s{S_XCCV}
        s_add_u32 s{S_XA}, s{S_FLAG}, {WS_XCC - WS_FLAG}
        """)
        xst = [(f"buffer_store_dword v{V_KA0}, v{V_FOWN}, {srd(SWS)}, s{S_XA} offen sc1", 'xcc')]
        x1, x2, x3 = o.get('xpos', (-1, 58, 88))
        if x1 < 0: self.put(xst)
        self.stamp()
        p(f"s_branch L_main{self.sfx}")
        p(".p2align 12")
        p(f"L_main{self.sfx}:")
        xb = lambda ks, rt: aq((ks * 2 + rt) * 4)
        xbp = lambda ps: (lambda ks, rt: xb(4 * (4 - ks // 4) + ks % 4, rt)) if ps in o.get('rev', [1, 2]) else xb
        for pu in range(0, 7):
            if (pu + 3) % 2 == 0: self.q(0, self.dma_w((pu + 3) // 2))
            self.q(10 * pu, self.dma_x(pu + 3))
            if prod and o.get('uissue', 0) == pu + 1: self.q(0, un)
        for G in range(5, 10): self.q(10**6 + 1 if G % 5 >= 3 else 20 * (G - 3) - 4, self.dma_w(G))
        for G in range(10, 13): self.q(20 * (G - 3) - 3, self.dma_w(G))
        for G in range(13, 20): self.q(10**6 + G, self.dma_w(G))
        hooks = {}
        for pu in range(1, 10):
            hooks[10 * pu - 5] = [lambda pu=pu: self.xread(pu, 0), lambda pu=pu: self.xread(pu, 1)]
            hooks[10 * pu - 4] = [lambda pu=pu: self.xread(pu, 2), lambda pu=pu: self.xread(pu, 3)]
        if A:
            rd = [(tt, u_, hf) for tt in range(5) for u_ in range(3) for hf in range(2 if u_ < 2 else 1)]
            w = TMP + 96; u2 = TMP + 102
            sc = [lambda: p.wait(vm=['wphi'])]
            for j in range(4):
                sc += [f"v_lshlrev_b32 v{u2}, 16, v{w+j}", f"v_and_b32 v{u2+1}, 0xffff0000, v{w+j}", f"v_mul_f32 v{u2}, s{S_L2E}, v{u2}",
                       f"v_mul_f32 v{u2+1}, s{S_L2E}, v{u2+1}", f"v_cvt_pk_bf16_f32 v{w+j}, v{u2}, v{u2+1}"]
            hooks[8] = sc + [(f"ds_write_b128 v{TMP+100}, {vq(w)} offset:12288", 'phw')]
            hooks[14] = [lambda: p.wait(lg=['phw'])]
            slots = [n for n in range(21, 90) if n % 10 in (0, 1, 2, 3)][:25]
            for k, n in enumerate(slots):
                hooks[n] = [(f"ds_read_b64_tr_b16 a[{A_PHI + (tt*3+u_)*4 + 2*hf}:{A_PHI + (tt*3+u_)*4 + 2*hf + 1}], v{V_FR} offset:{(8*u_+4*hf)*40 + 8*tt}", 'phi')
                            for tt, u_, hf in rd[k:k+1]]
        late3 = {}
        if prod:
            UR = TMP + 60
            u1, u2_, u3 = o.get('upos', (18, 18, 62))
            if u1 >= 0: hooks.setdefault(u1, []).append(urd)
            for j in range(5):
                uj = u2_ + o.get('ustep', 0) * j
                if uj >= 0: (hooks if uj < 100 else late3).setdefault(uj % 100, []).append(lambda j=j: ust(j))
            (hooks if u3 < 100 else late3).setdefault(u3 % 100, []).append(lambda: cond("L_u3", [f"s_waitcnt vmcnt({p.nvm - mark['L_u2']})", f"v_mov_b32 v{V_DUMP}, s{S_UTAG}", "s_mov_b64 exec, 1",
                         f"buffer_store_dword v{V_DUMP}, v{V_LIN}, {srd(SWS)}, s{S_UFL} offen sc1", "s_mov_b64 exec, -1"]))
        KBV = [V_KB, 17, 18, 19]; KAV = [V_KA1, 20, 21, 22]
        if o.get('kvown', 0):
            for kk in (1, 2, 3, 0):
                hooks.setdefault(89 + 2 * ((kk + 3) % 4), []).extend([f"s_add_u32 s{T2}, s{S_W}, {kk}", f"s_and_b32 s{T2}, s{T2}, 3", f"s_mul_i32 s{T2}, s{T2}, {RW}"])
                hooks.setdefault(90 + 2 * ((kk + 3) % 4), []).extend([f"v_add_u32 v{KBV[kk]}, s{T2}, v{V_KB}", f"v_add_u32 v{KAV[kk]}, s{T2}, v{V_KA1}"])
        XV = TMP + 92
        iss, chk = self.checked("L_xc", [f"buffer_load_dword v{XV}, v{V_F8}, {srd(SWS)}, s{S_XA} offen sc1"],
                                [f"v_xor_b32 v{XV+1}, s{S_NONCE}, v{XV}", f"v_lshlrev_b32 v{XV+1}, 4, v{XV+1}", f"v_cmp_ne_u32 vcc, 0, v{XV+1}"], 'xl')
        xv, xq = {}, {}
        def xh(pos, L): [hooks, xv, xq][pos // 100].setdefault(pos % 100, []).extend(L)
        if x1 >= 0: xh(x1, xst)
        xh(x2, iss)
        c_ = [x for _, x in chk]
        xh(x3, c_[:3]); xh(x3 + 1, c_[3:4]); xh(x3 + 2, c_[4:] + [f"v_cmp_ne_u32 vcc, s{S_XCCV}, v{XV}"])
        xh(x3 + 3, [f"s_mov_b32 s{S_FAST}, {1 if o.get('nofast') else 'vcc_lo'}", f"s_add_u32 s{T0}, s{SWS}, {WS_O}", f"s_addc_u32 s{T1}, s{SWS+1}, 0"])
        xh(x3 + 4, [f"s_cmp_eq_u32 s{S_FAST}, 0", f"s_cselect_b32 s{SO}, s{SOUT}, s{T0}", f"s_cselect_b32 s{SO+1}, s{SOUT+1}, s{T1}"])
        xh(x3 + 5, [f"s_mov_b32 s{SO+2}, 5242880", f"s_mov_b32 s{SO+3}, 0x20000"])
        self.group_sync(0)
        for k in range(4): self.xread(0, k)
        self.prime(0, sync=False)
        kp = o.get('kpace', 3)
        k1p = {0: lambda n: 1 if n % 3 != 2 else 0, 1: lambda n: 1, 2: lambda n: 2 if n % 10 < 2 else (1 if n % 10 < 5 else 0), 3: lambda n: 1 if n % 4 != 3 else 0}[o.get('k1', 0)]
        E0, E1, M0_, M1_ = TMP, TMP + 40, TMP + 80, TMP + 86
        x0, x1 = acc(ACC_K, 0, 0), acc(ACC_K, 0, 1)
        def early(ps, P0, P1):
            tm = o.get('tm', (0, 0, 0))[ps]
            L = [(80, c, x) for c, x in P0['zero'] + P1['zero']]
            for t_ in range(5):
                r = 100 - 5 * tm + tm * (t_ + 1) + 1 if tm else 95 + t_ + 2
                L += [(r, c, x) for c, x in P0['cvt'][2*t_:2*t_+2] + P1['cvt'][2*t_:2*t_+2]]
            return deque(L)
        def split(late, P0):
            c0 = {x for _, x in P0['cvt'] + P0['zero']}
            return [(c, x) for _, c, x in late if x in c0], [(c, x) for _, c, x in late if x not in c0]
        lateK = None
        if A:
            P0 = self.phiA_parts(x0, E0, M0_, "L_k0", False); P1 = self.phiA_parts(x1, E1, M1_, "L_k1", False)
            lateK = early(0, P0, P1)
        self.gemm_pass(0, ACC_K, xb, hooks=hooks, last=True, late=lateK, pace=lambda n: k1p(n) if n < o.get('ksw', 69) else (1 if n % kp == 0 else 0))
        self.stamp()
        E0, E1, M0_, M1_ = TMP, TMP + 40, TMP + 80, TMP + 86
        x0, x1 = acc(ACC_K, 0, 0), acc(ACC_K, 0, 1)
        tagset = [f"s_bfe_u32 s{S_TB+j}, s{S_NONCE}, {hex(0x80000 + 8*j)}" for j in range(4)] + [f"s_lshr_b32 s{S_NHI}, s{S_NONCE}, 16"]
        if o.get('amp'):
            p.raw(f"""
            s_load_dwordx2 s[88:89], s[0:1], 64
            s_not_b32 s{T0}, s98
            v_mov_b32 v{TMP+94}, 0
            v_mov_b32 v{TMP+95}, s{T0}
            s_lshr_b32 s{T0}, s2, 3
            s_or_b32 s{T0}, s{T0}, s{S_W}
            s_cmp_eq_u32 s{T0}, 0
            s_cselect_b32 s{T0}, 0, 64
            v_mov_b32 v{TMP+94}, s{T0}
            s_waitcnt lgkmcnt(0)
            s_cbranch_scc0 L_noat{self.sfx}
            s_mov_b64 exec, 1
            """)
            p.ins.append(__import__('emit').Ins(f"global_atomic_umax v{TMP+94}, v{TMP+95}, s[88:89] sc1"))
            p("s_mov_b64 exec, -1")
            p(f"L_noat{self.sfx}:")
        wr = lambda rt, x, n, o8: [(2, (f"ds_write_b64 v{V_PW}, {vq(x+2*j, 2)} offset:{rt*1920 + o8 + 8*j}", 'pw')) for j in range(n)]
        def mixw(out, w): return [y for j in range(len(w)) for y in out[2*j:2*j+2] + [w[j]]]
        burst = lambda L: [(0, [x for _, x in L])]
        dm = (2, lambda: self.tick())
        if A:
            r0, r1 = split(lateK, P0)
            def headA(P0, P1, r0, r1, extra0, extra1):
                L = list(r0); side = deque(r1); ne = 0; ex0 = dict(extra0); ex1 = dict(extra1)
                for k_, mfx in enumerate(P0['mf'] + P1['mf']):
                    if k_ == 15: L += list(side); side.clear()
                    L.append(mfx)
                    ex = ex0.get(k_) if k_ < 15 else ex1.get(k_ - 15)
                    if ex: L += ex
                    elif side:
                        for _ in range(2):
                            if side: L.append(side.popleft())
                    elif k_ >= 3 * ((ne % 20) // 4) + 2 + 3 and (ne < 28 or k_ >= 16): L.append(P0['exp'][ne]); ne += 1
                return L, ne
            pr = [(0, lambda: (self.group_sync(5), self.release(1)))]
            pr = pr + [(1, lambda n=n, hf=hf: self.wread(100 + n, hf)) for n in range(D - 1) for hf in range(2)]
            hx = o.get('hx', 30)
            L_, ne = headA(P0, P1, r0, r1, {0: [dm], 14: [dm]}, {7: [dm]})
            self.put([x for _, x in [dm] + L_])
            hm = o.get('hmore', 0)
            self.run(P0['exp'][ne:] + P1['exp'][:hm] + P0['norm'][:-10], every=hx)
            self.put([x for _, x in pr + P0['norm'][-10:]])
            def tailf(P, rt, x, e, m, sc, head_done):
                nb = P['norm'][:len(P['norm']) - sc]
                L = [] if head_done else burst(nb)
                w_ = wr(rt, x, 10, 0)
                for j in range(10):
                    for i in (2 * j, 2 * j + 1):
                        if i >= 20 - sc: L += [(1, f"v_mul_f32 v{e+2*i+h}, v{e+2*i+h}, v{m+4 if i < 10 else m+2}") for h in range(2)]
                    L += P['out'][2*j:2*j+2] + [w_[j]]
                return L
            sc0, sc1 = o.get('scal', (0, 0))
            fill = tailf(P0, 0, x0, E0, M0_, 0, True) + P1['exp'][hm:] + tailf(P1, 1, x1, E1, M1_, sc1, False)
            self.stamp('head')
        else:
            fill = []
            for rt, x, e in ((0, x0, E0), (1, x1, E1)):
                L = self.phiB(x, e, False)
                fill += L[:-10] + mixw(L[-10:], wr(rt, x, 5, 0))
            self.group_sync(5); self.release(1); self.prime(1, sync=False)
        hooks = {}
        hooks.update(late3)
        PFV = TMP + 94
        ipf, cpf_ = self.checked("L_pf", [f"buffer_load_dwordx2 {vq(PFV, 2)}, v{V_PF}, {srd(SWS)}, s{S_PFL} offen sc1"],
                                 [f"v_xor_b32 v{PFV}, s{S_NONCE}, v{PFV}", f"v_bitop3_b32 v{PFV}, v{PFV}, v{PFV+1}, s{S_NONCE} bitop3:0xf6", f"v_cmp_ne_u32 vcc, 0, v{PFV}"], 'pf')
        pfp = o.get('pfpos', 81)
        if pfp < 100: hooks.setdefault(pfp, []).extend(ipf)
        pre = ["s_mov_b32 exec_hi, 0xff", (f"buffer_load_dword v{V_DUMP}, v{V_L128}, {srd(SO)}, s{S_OP} offen sc1", 'pr'), "s_mov_b64 exec, 1",
               (f"buffer_load_dword v{V_DUMP}, v{V_F8}, {srd(SWS)}, s{S_FLAG} offen sc1", 'pr'), "s_mov_b64 exec, -1"]
        pre1 = []
        if o.get('pre1m') is not None:
            pre1 = ["s_mov_b32 exec_lo, 0xfff00000", "s_mov_b32 exec_hi, 0xff", pre[1], "s_mov_b64 exec, -1"]
            pre = ["s_mov_b64 exec, 0xfffff"] + pre[1:]
        prel = []
        if o.get('prem'):
            n_ = len(o['prem']); o['prepos'] = 2
            for k_, ps_ in enumerate(o['prem']):
                lo_, hi_ = 40 * k_ // n_, 40 * (k_ + 1) // n_
                mk = ((1 << hi_) - 1) ^ ((1 << lo_) - 1)
                L_ = [f"s_mov_b32 exec_lo, {hex(mk & 0xffffffff)}", f"s_mov_b32 exec_hi, {hex(mk >> 32)}", pre[1]] + (pre[2:4] if k_ == 0 else []) + ["s_mov_b64 exec, -1"]
                assert ps_ <= 0 or ps_ > x3 + 5
                if ps_ >= 200: xq.setdefault(ps_ - 200, []).extend(L_)
                elif ps_ >= 100: xv.setdefault(ps_ - 100, []).extend(L_)
                else: prel.append((ps_, L_))
        wp, pp_ = o.get('wopf', -1), o.get('prepos', 0)
        if 100 <= pp_ < 200: hooks.setdefault(pp_ - 100, []).extend(pre)
        vs = o.get('vsync', 0)
        if o.get('v13'): hooks.setdefault(78, []).extend(["s_barrier", lambda: self.release(13)])
        for k_, v_ in xv.items(): hooks.setdefault(k_, []).extend(v_)
        for k_, v_ in enumerate(tagset): hooks.setdefault(41 + k_, []).insert(0, v_)
        vp = o.get('vpace', 4)
        vset = set(range(0, 100, vp))
        if o.get('vsch'):
            vset = set(); n_ = 0
            for cnt_, st_ in o['vsch']:
                for _ in range(cnt_): vset.add(n_); n_ += st_
        VB = TMP
        tmv = o.get('tm', (0, 0, 0))[1]
        lateV = deque()
        for j in range(5):
            for rt in range(2):
                c = self.cvt20(acc(ACC_V, 0, rt), VB + 10 * rt)
                r = 100 - 5 * tmv + tmv * (j + 1) + 1 if tmv else 200
                lateV.extend([(r, 1, c[2*j][1]), (r, 1, c[2*j+1][1]), (r, 2, (f"ds_write_b64 v{V_PW}, {vq(VB+10*rt+2*j, 2)} offset:{rt*1920 + 80 + 8*j}", 'vw'))])
        self.gemm_pass(1, ACC_V, xbp(1), fill=fill, hooks=hooks, last=True, sync=True, late=lateV, frange=(0, o.get('vend', 100)), pace=lambda n: 1 if n in vset else 0)
        self.stamp()
        for k_, (_, _, x) in enumerate(lateV):
            self.put([x])
            if k_ == 14: self.tick()
        NT = 3 if A else 2
        FB = ACC_K
        KV = TMP + 64
        rds = deque()
        own = o.get('kvown', 0)
        def rd(reg, av, off, kk, j):
            for hf in range(2): rds.append((f"ds_read_b64_tr_b16 {vq(reg+2*hf, 2)}, v{av[kk] if own else av[0]} offset:{(0 if own else kk*RW) + hf*120 + off}", ('kv', kk, j)))
        for kk in range(4):
            b = FB + kk * 20
            rd(b, KBV, 80, kk, 'a')
            for nt in range(NT): rd(b + 8 + 4 * nt, KBV, 32 * nt, kk, nt)
            rd(b + 4, KAV, 112, kk, 'z')
        if own:
            p("s_waitcnt lgkmcnt(5)")
            for _ in range(2 * NT + 4): self.put([rds.popleft()])
        self.tick()
        gk = 11
        self.flush_dma(('W', gk)); p.wait(vm=[('W', gk)], lg=['vw', 'pw'])
        p("s_barrier")
        self.release(13); self.release(14)
        def more(k):
            while k > 0 and rds and len(p.lgq) < 15: self.put([rds.popleft()]); k -= 1
        if own: more(5); p.wait(lg=[('kv', 0, 'z')])
        more(o.get('kvi', 15)); self.tick()
        p(f"v_mov_b32 v{TMP+1}, 0xff")
        seq = [(kk, nt) for kk in range(4) for nt in range(NT)]
        ao = deque((kk, f"v_and_or_b32 v{FB+kk*20+4+j}, v{FB+kk*20+4+j}, v{V_KEEP}, v{V_ONE}") for kk in range(4) for j in range(4))
        p.wait(lg=[('kv',) + seq[0]])
        for i_, (kk, nt) in enumerate(seq):
            b = FB + kk * 20
            p(f"{MF} {vq(KV + nt*4)}, {vq(b)}, {vq(b+8+4*nt)}, {'0' if kk == 0 else vq(KV + nt*4)}")
            p.wait(lg=[('kv',) + seq[i_ + 1]] if i_ + 1 < len(seq) else '*')
            k_ = len(rds); more(o.get('kvr', 4))
            for _ in range(max(0, 3 - (k_ - len(rds)))):
                if ao and ('kv', ao[0][0], 'z') not in p.lgq and not any(x[1] == ('kv', ao[0][0], 'z') for x in rds): p(ao.popleft()[1])
        assert not rds
        while len(ao) > 4: p(ao.popleft()[1])
        lastm = 0x00ff00ff if A else 0x000f000f
        def pub(mt, nt):
            a = KV + (mt * 3 + nt) * 4
            L = [(1, f"v_bfi_b32 v{a+j}, v{TMP+1}, s{S_TB+j}, v{a+j}") for j in range(4)]
            va = [V_P1ST, V_P1M, V_P1M + 1, V_P1M + 2][2 * mt + (nt == NT - 1)]
            return L + [(2, (f"buffer_store_dwordx4 {vq(a)}, v{va}, {srd(SWS)}, s{S_P1ST} offen offset:{(4*mt*F + 16*nt)*16 if A else [1024*mt, 1536 + 256*mt][nt]} sc1", 'p1'))]
        self.stamp('kv3')
        mf = [(2, f"{MF} {vq(KV + (3+nt)*4)}, {vq(FB+kk*20+4)}, {vq(FB+kk*20+8+4*nt)}, {'0' if kk == 0 else vq(KV + (3+nt)*4)}") for nt in range(NT) for kk in range(4)]
        pr = [(1, lambda n=n, hf=hf: self.wread(200 + n, hf)) for n in range(D - 1) for hf in range(2)]
        self.put([x for _, x in self.weave(mf, [(1, x[1]) for x in ao] + [y for nt in range(NT) for y in pub(0, nt)] + pr)])
        qhead = [y for nt in range(NT) for y in pub(1, nt)]
        pb = o.get('pubb', 0)
        self.put([x for _, x in qhead[:pb]]); qhead = qhead[pb:]
        self.stamp()
        X = TMP + 8; CK = TMP + 2
        def tagcheck(mask):
            if mask == "0xff":
                L = [f"v_xor_b32 v{X+j}, s{S_TB+j%4}, v{X+j}" for j in range(4 * NI)] + [f"v_or_b32 v{CK}, v{X}, v{X+1}"]
                L += [f"v_or3_b32 v{CK}, v{CK}, v{X+j}, v{X+j+1}" for j in range(2, 4 * NI, 2)]
            else:
                L = [f"v_xor_b32 v{CK}, s{S_NONCE}, v{X}"] + [f"v_bitop3_b32 v{CK}, v{CK}, v{X+j}, s{S_NHI if j % 2 else S_NONCE} bitop3:0xf6" for j in range(1, 4 * NI)]
            return L + [f"v_and_b32 v{CK}, {mask}, v{CK}", f"v_cmp_ne_u32 vcc, 0, v{CK}"]
        lds_ = []
        for ii in range(NI):
            lds_ += [f"s_add_u32 s{T0}, s{S_P1LD}, {ii * (65536 // NI)}", f"buffer_load_dwordx4 {vq(X+4*ii)}, v{V_P1LD}, {srd(SWS)}, s{T0} offen sc1"]
        adds = [f"v_add_f32 v{X+j}, v{X+j}, v{X+4*ii+j}" for ii in range(1, NI) for j in range(4)]
        if o.get('h1pipe'):
            iss, chk = self.checked("L_h1", lds_, tagcheck("0xff"), 'h1', redo=adds)
            iss = [(x[0], ('h1', k_ // 2)) if isinstance(x, tuple) else x for k_, x in enumerate(iss)]
            c2 = []
            for ii in range(NI):
                c2 += [(0, lambda ii=ii: p.wait(vm=[('h1', ii)]))] + [(1, f"v_xor_b32 v{X+4*ii+j}, s{S_TB+j}, v{X+4*ii+j}") for j in range(4)]
                c2 += [(1, f"v_or_b32 v{CK}, v{X}, v{X+1}" if ii == 0 else f"v_or3_b32 v{CK}, v{CK}, v{X+4*ii}, v{X+4*ii+1}"), (1, f"v_or3_b32 v{CK}, v{CK}, v{X+4*ii+2}, v{X+4*ii+3}")]
                if ii == NI - 1: c2 += chk[-3:-1]
                if ii: c2 += [(1, y) for y in adds[4*ii-4:4*ii]]
            chk = c2 + chk[-1:]; red = []
        else:
            iss, chk = self.checked("L_h1", lds_, tagcheck("0xff"), 'h1')
            red = list(adds)
        red += [f"v_permlane32_swap_b32 v{X}, v{X+2}", f"v_permlane32_swap_b32 v{X+1}, v{X+3}", f"v_add_f32 v{X}, v{X}, v{X+2}", f"v_add_f32 v{X+1}, v{X+1}, v{X+3}",
                f"v_mov_b32 v{CK}, 0xffff", f"v_permlane16_swap_b32 v{X}, v{X+1}", f"v_add_f32 v{X}, v{X}, v{X+1}"]
        if not A: red.append(f"v_add_f32_dpp v{X}, v{X}, v{X} row_ror:8 row_mask:0xf bank_mask:0xf")
        red += [f"v_cvt_pk_bf16_f32 v{X}, v{X}, v{X}", f"v_bfi_b32 v{X}, v{CK}, v{V_VW}, v{X}"]
        st = (f"buffer_store_dword v{X}, v{V_P2ST}, {srd(SWS)}, s{S_P2ST} offen sc1", 'p2')
        sts = [st]
        for _ in range((1 << o.get('p2log', 2)) - 1): sts += [f"s_add_u32 s{S_P2ST}, s{S_P2ST}, {1 << 18}", st]
        if A and o.get('h1pipe'):
            red += [sts[0:1]] + [sts[k_:k_+2] for k_ in range(1, len(sts), 2)]
        else: red.append(sts if A else ["s_mov_b32 exec_lo, 0x00ff00ff", "s_mov_b32 exec_hi, 0x00ff00ff"] + sts + ["s_mov_b64 exec, -1"])
        n1, n2 = o.get('h1', (62, 84))
        hooks = {n1 + k: iss[2*k:2*k+2] for k in range(NI)}
        if pfp >= 100: hooks.setdefault(pfp - 100, []).extend(ipf)
        for k_, v_ in xq.items(): hooks.setdefault(k_, []).extend(v_)
        c_ = [x for _, x in cpf_]
        pc = o.get('pfchk', 13)
        hooks.setdefault(pc, []).extend(c_[:3]); hooks.setdefault(pc + 1, []).extend(c_[3:4]); hooks.setdefault(pc + 3, []).extend(c_[4:] + [lambda: setattr(self, 'pfok', True)])
        if 200 <= pp_ < 300: hooks.setdefault(pp_ - 200, []).extend(pre)
        qh = deque(qhead)
        for n in range(20): hooks.setdefault(n, []).append(lambda: self.gap(qh, 2))
        qb_ = o.get('qb', (30, 53, 66, 80))
        assert 18 <= qb_[0] <= 34 and 38 <= qb_[1] <= 54 and 58 <= qb_[2] <= 74 and 78 <= qb_[3] <= 98
        busy = sorted([(pc, pc + 3), (n1, n1 + NI), (n2, min(100, n2 + o.get('h1len', 16)) + 1)] + ([(x3 - 200, x3 - 195)] if x3 >= 200 else []))
        assert all(a_[1] < b_[0] for a_, b_ in zip(busy, busy[1:])), busy
        assert pfp - 100 < pc and x2 < x3 and (pp_ < 100 or pp_ > x3 + 5)
        for fr_, pubg, rel in [(qb_[0], 12, [15]), (qb_[1], 13, [16]), (qb_[2], 14, [17]), (qb_[3], 14, [18])]:
            hooks.setdefault(fr_, []).extend([lambda g=pubg: self.group_sync(g)] + [lambda r=r: self.release(r) for r in rel])
        lateQ = None
        if A:
            P0 = self.phiA_parts(x0, E0, M0_, "L_q0", True); P1 = self.phiA_parts(x1, E1, M1_, "L_q1", True)
            lateQ = early(2, P0, P1)
        self.gemm_pass(2, ACC_K, xbp(2), late=lateQ, fill=chk + [(2 if isinstance(x, list) and o.get('h1pipe') else 1, x) for x in red], hooks=hooks, last=True, sync=False, frange=(n2, min(100, n2 + o.get('h1len', 16))),
                       pace=lambda n: 1 if (n >= 9 and n % (o.get('qpace', 3) if n < o.get('qsw', 42) else o.get('qpace2', 3)) == 0 and not n1 <= n < n1 + NI) else 0)
        assert not qh
        p("s_barrier")
        [self.release(r) for r in range(15, 20)]
        self.stamp()
        X = TMP + 96; CK = TMP + 92
        lds_ = [f"buffer_load_dwordx4 {vq(X+4*ii)}, v{V_LIN if ii < NI-1 else V_GAL}, {srd(SWS)}, s{S_P2LD} offen offset:{1024*ii if ii < NI-1 else 0} sc1" for ii in range(NI)]
        PB = TMP + 8
        img = [y for ii in range(NI) for y in (f"v_perm_b32 v{PB+2*ii}, v{X+4*ii+1}, v{X+4*ii}, s{S_PERM}", f"v_perm_b32 v{PB+2*ii+1}, v{X+4*ii+3}, v{X+4*ii+2}, s{S_PERM}",
                                               f"ds_write_b64 v{V_LA+ii}, {vq(PB+2*ii, 2)}")]
        iss, chk = self.checked("L_h2", lds_, tagcheck("0xffff"), 'h2', redo=img)
        zw = [f"v_mov_b32 v{CK}, 0", f"v_mov_b32 v{CK+1}, 0", f"ds_write_b64 v{V_ZA}, {vq(CK, 2)}"]
        if not A: self.put(zw)
        for k_ in range(o.get('dirty', 0)):
            p(f"s_add_u32 s{T0}, s{S_OP}, {(9 << 20) + (k_ // 5) * (6 << 20) + (k_ % 5) * 1024}")
            p(f"buffer_store_dwordx4 v[2:5], v{V_LIN}, {srd(SWS)}, s{T0} offen {o.get('dirtyf', '')}")
        if o.get('prepos', 0) == 1: self.put(pre)
        if not A:
            for tt in range(6): p(f"v_accvgpr_write_b32 a{40+4*(3*tt+2)+2}, 0"); p(f"v_accvgpr_write_b32 a{40+4*(3*tt+2)+3}, 0")
        if A:
            r0, r1 = split(lateQ, P0)
            L_, ne = headA(P0, P1, r0, r1, {0: [dm], 2: [(0, zw)]} if not r1 else {}, {})
            L = L_ + P0['exp'][ne:] + P0['norm'] + P0['out'] + P1['exp'] + P1['norm'] + P1['out']
            if r1: self.put(zw)
        else:
            L = []
            for x, e in ((x0, E0), (x1, E1)):
                L += self.phiB(x, e, True) + [(1, f"v_mov_b32 v{x+10}, 0"), (1, f"v_mov_b32 v{x+11}, 0")]
        d1_, d2_ = o.get('oshift', (0, 0))
        Ld2 = L[len(L) - d2_:]; L = L[:len(L) - d2_]
        Ld1 = L[len(L) - d1_:]; L = L[:len(L) - d1_]
        tot = sum(c for c, _ in L)
        ev = [(tot - o.get('h2lead', 60), iss)]
        if o.get('prepos', 0) == 0 and o.get('prelead', 0) >= 0: ev.append((tot - o.get('prelead', o.get('h2lead', 60)) + 0.5, pre))
        if (o.get('pre1m') or 0) < -1: ev.append((tot + o['pre1m'] + 0.5, pre1))
        for ps_, L_ in prel: ev.append((tot + ps_ + 0.5, L_))
        L2 = []; c = 0; ev.sort(key=lambda e_: e_[0])
        for it_ in L + [(0, [])]:
            while ev and c >= ev[0][0] - (0.5 if it_[0] == 0 else 0): L2.append((0, ev.pop(0)[1]))
            L2.append(it_); c += it_[0]
        assert not ev
        self.run(L2, every=o.get('qev', 44))
        self.flush_dma(('W', 17))
        self.stamp()
        self.put([chk[0][1]] + img + [x for _, x in chk[1:]])
        if o.get('prepos', 0) == 0 and o.get('prelead', 0) < 0: self.put(pre)
        if o.get('pre1m') == -1: self.put(pre1)
        self.put([x for _, x in Ld1])
        p(f"s_cmp_eq_u32 s{S_FAST}, 0")
        p.wait(vm=[('W', 17)], lg='*')
        p("s_barrier")
        self.stamp()
        assert not self.dq or True
        import copy
        if o.get('stamps'): p(f"s_cmp_eq_u32 s{S_FAST}, 0")
        p(f"s_cbranch_scc0 L_tail{self.sfx}s")
        env = dict(RS=RS, M0_=M0_, M1_=M1_, Ld2=Ld2, pre1=pre1)
        sv = (self.p, self.sfx, self.nst, getattr(self, 'cs', 0), deque(self.dq))
        self.p = Prog(); self.p.vmq = list(p.vmq); self.p.lgq = list(p.lgq); self.sfx += 's'
        self.p(f"L_tail{self.sfx}:")
        self.tail(False, **env)
        self.ool.append(self.p.finalize())
        self.p, self.sfx, self.nst, self.cs, self.dq = sv
        self.tail(True, **env)
        return p.finalize() + "".join(self.ool)
    def tail(self, fast, RS, M0_, M1_, Ld2, pre1):
        p = self.p; A = self.A; o = self.o; br = 0 if A else 1
        def more(k):
            while k > 0 and rds and len(p.lgq) < 15: self.put([rds.popleft()]); k -= 1
        OA = ACC_V
        NU = 5 if A else 3
        SP = TMP + 112
        OB = TMP + 64
        LO = TMP + 80
        fr = [(tt, u_) for tt in (5, 0, 1, 2, 3, 4) for u_ in range(NU)]
        AO = 40
        rds = deque()
        for n, (tt, u_) in enumerate(fr):
            if not A and u_ == 2: rds.append((f"ds_read_b64 {aq(AO+4*n, 2)}, v{V_FR2} offset:{4*tt*RS + 16*u_}", ('of', n)))
            else: rds.append((f"ds_read_b128 {aq(AO+4*n)}, v{V_FR2} offset:{4*tt*RS + 16*u_}", ('of', n)))
        more(10)
        if A: p(f"v_mov_b32 v{SP}, v{M0_}"); p(f"v_mov_b32 v{SP+1}, v{M1_}")
        self.put([x for _, x in Ld2])
        def ost(txt, tag='o'):
            p(txt + ("" if fast else " sc1"), tag)
        def flag(k): ost(f"buffer_store_dword v{V_NONCE}, v{V_FOWN}, {srd(SWS)}, s{S_FLAG} offen offset:{32*k}", 'fl')
        def poll(k, name):
            iss, chk = self.checked(name, [f"buffer_load_dword v{V_DUMP}, v{V_F8}, {srd(SWS)}, s{S_FLAG} offen offset:{32*k} sc1"], [f"v_cmp_ne_u32 vcc, s{S_NONCE}, v{V_DUMP}"], name)
            return iss, [x for _, x in chk]
        order = [(0, k) for k in range(5)] + [(1, k) for k in range(5)] + [(0, 5), (1, 5)]
        epi = deque()
        for z, (rt, k) in enumerate(order):
            dn = OA + (rt * 6 + 5) * 4
            b = OA + rt * 24
            rdy = (z + 1) * NU + o.get('rdy', 4)
            if k == 0:
                epi.append((rdy, 1, f"v_fmac_f32 v{dn}, {EPS}, v{SP+rt}" if A else f"v_add_f32 v{dn}, {EPS}, v{dn}")); epi.append((rdy, 2, f"v_rcp_f32 v{dn}, v{dn}"))
                continue
            tt = k - 1
            for r in range(4): epi.append((rdy, 1, f"v_mul_f32 v{b+4*tt+r}, v{b+4*tt+r}, v{dn}"))
            for h in range(2):
                i = 2 * tt + h
                d = OB + ((i // 4) * 2 + rt) * 4 + i % 4 if i < 8 else LO + 2 * rt + (i - 8)
                epi.append((rdy, 1, f"v_cvt_pk_bf16_f32 v{d}, v{b+2*i}, v{b+2*i+1}"))
            if tt in (1, 3):
                u_ = tt // 2
                epi.append((0, 2, lambda u_=u_, rt=rt: ost(f"buffer_store_dwordx4 {vq(OB+(u_*2+rt)*4)}, v{V_OO+rt*2+u_}, {srd(SO)}, s{S_OP} offen", ('S', rt))))
        epi.append((0, 2, lambda: ost(f"buffer_store_dwordx4 {vq(LO)}, v{V_OO+4}, {srd(SO)}, s{S_OP} offen", ('S', 1))))
        TM_ = o.get('tmaj', 3); LD = o.get('lead', 8); DF = o.get('df', 11); A_RING = A_PHI
        items = [(P, t_, (0, 1)) for P in range(2) for t_ in range(5)] + [(P, t_, (0,)) for P in range(2, 2 + LD) for t_ in range(5)] + \
                [(P, t_, (0, 1)) for P in range(2 + LD, 20) for t_ in range(5)] + [(P, t_, (1,)) for P in range(2, 2 + LD - TM_) for t_ in range(5)] + \
                [(P, t_, (1,)) for t_ in range(5) for P in range(2 + LD - TM_, 2 + LD)]
        def fread(i, hf):
            P, t_, _ = items[i]
            if True:
                if hf == 0:
                    off = RING + P * 5120 + 1024 * t_; hi = off >= 51200; s_ = A_RING + (i % DF) * 4
                    p(f"ds_read_b128 a[{s_}:{s_+3}], v{V_LINH if hi else V_LIN} offset:{off - 51200*hi}", ('FF', i))
                return
            off = RING + (P // 4) * SLOT + (P % 4) * 5120 + hf * 2560 + 8 * t_
            hi = off >= 51200; s_ = A_RING + (i % DF) * 4 + 2 * hf
            p(f"ds_read_b64_tr_b16 a[{s_}:{s_+1}], v{V_WT + hi} offset:{off - 51200*hi}", ('FF', i))
        pr = deque((i, 0) for i in range(DF - 1))
        m = 0; mf0 = o.get('mf0', 54 if A else 36); seen = set()
        for rt, k in order:
            for u_ in range(NU):
                n = k * NU + u_; tt = fr[n][0]
                a = OA + (rt * 6 + tt) * 4
                if m == 0: p.wait(lg=[('of', 0)])
                p(f"{MF} {vq(a)}, {aq(AO+4*n)}, {vq(ACC_K+20*rt+4*u_)}, {'0' if u_ == 0 else vq(a)}")
                m += 1
                if n + 1 < len(fr): p.wait(lg=[('of', n + 1)])
                bud = 2 if A else 3
                if m == mf0:
                    assert sum(1 for x in p.ins if x.tag == ('S', 0)) == 2
                    p.wait(vm=[('S', 0)]); flag(0); bud -= 2
                elif m == o.get('pre1m'): self.put(pre1); bud -= 2
                elif rds: more(1); bud -= 1 if not (epi and epi[0][0] <= m and epi[0][1] == 2) else 0
                elif self.dq and m % o.get('opace', 8) == 0: self.tick(); bud -= 2
                elif pr and not (epi and epi[0][0] <= m): fread(*pr.popleft()); bud -= 1
                while epi and epi[0][0] <= m and epi[0][1] <= bud:
                    _, c, x = epi.popleft(); bud -= c
                    self.put([x])
                    if callable(x): break
        while pr: fread(*pr.popleft())
        while len(epi) > 7: self.put([epi.popleft()[2]])
        while self.tick(): pass
        self.stamp()
        def ob(ks, rt):
            if ks < 2: return vq(OB + (ks * 2 + rt) * 4)
            return aq((ks * 2 + rt) * 4) if ks < 16 else vq(LO + (2 * (ks - 16) + rt) * 4)
        ofl = o.get('ofl', 'sc1') if fast else 'sc1'
        def ld(P, rt):
            if P < 16: return [(f"buffer_load_dwordx4 {aq((P*2+rt)*4)}, v{V_OO+rt*2+P%2}, {srd(SO)}, s{S_OP + P//2} offen {ofl}", ('O', P, rt))]
            return [(f"buffer_load_dwordx4 {vq(LO+(2*(P-16)+rt)*4)}, v{V_OO+4}, {srd(SO)}, s{S_OP + 2*(P-16) + rt} offen {ofl}", ('O', P, rt))]
        i0, c0 = poll(0, "L_f0"); i1, c1 = poll(1, "L_f1"); i2, c2 = poll(2, "L_d0"); i3, c3 = poll(3, "L_d1")
        L0x = min(16, 2 + LD + o.get('xlead', 0))
        lead = [ld(P, 0) for P in range(2, L0x)]
        rest = [ld(P, rt) for P in range(2 + LD, 20) for rt in range(2) if (P, rt) != (16, 0) and not (rt == 0 and P < L0x)] + [ld(P, 1) for P in range(2, 2 + LD)]
        def handshake():
            p.wait(vm=[('S', 1), ('W', 18), ('W', 19)])
            flag(1)
            self.put(c0)
            self.stamp()
            self.q(0, lead); self.q(10**6 + 50, rest)
            for k_ in range(o.get('oprime', 7)):
                self.tick()
                if k_ == 3: p("s_barrier")
                if k_ == 3 and o.get('p1it', -1) < 0: self.put(i1)
            p.wait(vm=[('O', 2, 0)])
        E0 = len(items) - 5 * LD
        NI_ = len(items)
        def outp(rt):
            b = TMP + 8
            c = self.cvt20(acc(ACC_K, 0, rt), b)
            L = []
            for j in range(5): L += [c[2*j][1], c[2*j+1][1], (f"ds_write_b64 v{V_OW}, {vq(b+2*j, 2)} offset:{rt*16*OUTS + 8*j}", 'ow')]
            L += [(f"ds_read_b128 {vq(TMP+24+4*j)}, v{V_ORD+j} offset:{rt*16*OUTS}", ('or', j)) for j in range(3)]
            S_ = [(f"buffer_store_dwordx4 {vq(TMP+24+4*j)}, v{V_OG+j}, {srd(SOUT)}, s{S_OUT} offen", 'out') for j in range(3)]
            return L, S_
        vw, lw, sc_, vec = {}, {}, {}, {}
        add = lambda d, i, L: d.setdefault(i, []).extend(L)
        def check(i, c, tag, gapn):
            add(vw, i, [tag]); add(vec, i, [c[1]]); add(sc_, i + gapn, [c[2]])
        ep = [x[2] for x in epi]
        add(vec, 1, ep[:3]); add(vec, 2, ep[3:6]); add(vec, 3, ep[6:])
        add(vec, o.get('p0pos', 4), i0)
        add(vec, 9, [handshake])
        if o.get('p1it', -1) >= 0: add(vec, 10 + o.get('p1it', -1), i1)
        ci = 10 + o.get('c1pos', 5); check(ci, c1, "L_f1", 2); add(sc_, ci + 2, [lambda: self.release(50)])
        for i in range(15, NI_ - 5 * TM_ + 1, 5):
            if i == NI_: break
            Pn, _, rn = items[i]
            tags = [('O', Pn, rt) for rt in rn]
            if i == NI_ - 5 * TM_: tags = [('O', 1 + LD, 1)]
            if Pn >= 16:
                a = LO + 2 * (Pn - 16) * 4
                add(vw, i - 2, tags); add(vec, i - 2, [f"v_swap_b32 v{a+2}, v{a+4}", f"v_swap_b32 v{a+3}, v{a+5}"])
            else: add(vw, i - 1, tags)
        nd0 = E0 - o.get('d0', 8); add(vw, nd0, [('O', 19, 0), ('O', 19, 1)]); add(vec, nd0, [lambda: flag(2)])
        add(vec, E0 + o.get('d0p', 0), i2)
        L0, S0 = outp(0)
        for j, x in enumerate(L0): add(vec, E0 + 2 + j, [x])
        nd1 = NI_ - o.get('d1', 24); add(vw, nd1, [('O', 1 + LD, 1)]); add(vec, nd1, [lambda: flag(3)])
        check(E0 + 22, c2, "L_d0", 2)
        for j, x in enumerate(S0): add(lw, E0 + 25 + 2 * j, [('or', j)]); add(vec, E0 + 25 + 2 * j, [x])
        L1, S1 = outp(1)
        n1e = 0
        if TM_:
            for j in range(15):
                pos = NI_ - 5 * TM_ + (j // 3 + 1) * TM_ + 2 + j % 3
                if pos < NI_: add(vec, pos, [L1[j]]); n1e = j + 1
        add(vec, NI_ - o.get('d1p', 8), i3)
        add(sc_, NI_ - 5, [f"s_or_b32 s{T0}, s{S_RB}, s{S_HEAD}"]); add(sc_, NI_ - 4, [f"s_cmp_lg_u32 s{T0}, 0"]); add(sc_, NI_ - 3, [f"s_cselect_b32 s{T0}, {WS_SIZE}, 0"])
        add(vec, NI_ - 2, [(f"buffer_store_dword v{V_NONCE}, v{V_FOWN}, {srd(SWS)}, s{T0} offen offset:{br*128} sc1", 'nn')])
        assert ci + 2 < E0 + o.get('d0p', 0) < E0 + 22 and E0 + 24 < NI_ - o.get('d1p', 8) and nd1 < NI_ - o.get('d1p', 8) and nd0 < E0 + o.get('d0p', 0)
        assert 3 < o.get('p0pos', 4) <= 9 and E0 + 29 < NI_ - 5 * TM_ + TM_ + 2 + 15
        p.wait(lg=[('FF', 0)])
        clk = 0.0; per = o.get('lper', 4.6)
        for i, (P, t_, rts) in enumerate(items):
            s_ = A_RING + (i % DF) * 4
            for z, rt in enumerate(rts):
                a = acc(ACC_K, t_, rt)
                p(f"{MF} {vq(a)}, {aq(s_)}, {ob(P, rt)}, {'0' if P == 0 else vq(a)}")
                if z == 0:
                    k0 = len(p.ins)
                    for tg in vw.get(i, []): self.flush_dma(tg)
                    p.wait(vm=vw.get(i), lg=[('FF', i + 1)] + lw.get(i, []))
                    if len(rts) == 1: self.put(sc_.get(i, []))
                    if i + DF - 1 < NI_:
                        if len(p.ins) == k0: p("s_nop 0")
                        fread(i + DF - 1, 0)
                else: self.put(sc_.get(i, []))
            self.stamp('z%d' % i)
            if i >= 10:
                clk += len(rts)
                if clk >= per and i not in vec and self.tick(): clk -= per
            self.put(vec.get(i, []))
        self.stamp()
        p(f"s_add_u32 s{S_OUT}, s{S_OUT}, {16*2560}")
        self.put(L1[n1e:12]); self.put(c3[:2]); self.put(L1[12:]); self.put(c3[2:])
        for j in range(3): p.wait(lg=[('or', j)]); self.put([S1[j]])
        if o.get('stamps'):
            p("s_waitcnt vmcnt(0)")
            self.stamp()
            p("s_memrealtime s[100:101]")
            p("s_waitcnt lgkmcnt(0)")
            p.raw(f"""
            s_lshl_b32 s{T0}, s2, 2
            s_add_u32 s{T0}, s{T0}, s{S_W}
            s_lshl_b32 s{T0}, s{T0}, 6
            s_add_u32 s{T0}, s{T0}, {WS_ST}
            v_mov_b32 v{TMP+16}, 0
            v_mov_b32 v{TMP}, s98
            v_mov_b32 v{TMP+1}, s100
            """)
            for k in range(14): p(f"v_mov_b32 v{TMP+2+k}, {'s%d' % (S_ST+k) if k < self.nst else ('s95' if k == 13 else 0)}")
            p("s_mov_b64 exec, 1")
            for k in range(4): p(f"buffer_store_dwordx4 {vq(TMP+4*k)}, v{TMP+16}, {srd(SWS)}, s{T0} offen offset:{16*k}")
        if o.get('cntm'):
            p.raw(f"""
            s_load_dwordx2 s[62:63], s[0:1], 64
            v_mov_b32 v2, 0
            v_mov_b32 v3, s95
            s_waitcnt lgkmcnt(0)
            s_cmp_eq_u32 s95, 0
            s_cbranch_scc1 L_cn0{self.sfx}
            s_mov_b64 exec, 1
            global_atomic_add v2, v3, s[62:63] sc1
            L_cn0{self.sfx}:
            s_or_b32 s{T0}, s{S_RB}, s{S_HEAD}
            s_cmp_lg_u32 s{T0}, 0
            s_cbranch_scc1 L_cn2{self.sfx}
            s_movk_i32 s{T0}, 3500
            s_mov_b32 s{T2}, 0
            L_cn1{self.sfx}:
            s_sleep 2
            s_memrealtime s[64:65]
            s_waitcnt lgkmcnt(0)
            s_sub_u32 s{T1}, s64, s98
            s_cmp_lt_u32 s{T1}, s{T0}
            s_cbranch_scc1 L_cn1{self.sfx}
            s_cmp_eq_u32 s{T2}, 1
            s_cbranch_scc1 L_cn2{self.sfx}
            global_load_dword v3, v2, s[62:63] sc1
            s_waitcnt vmcnt(0)
            v_readfirstlane_b32 s{T0}, v3
            s_min_u32 s{T0}, s{T0}, 1024
            s_mul_i32 s{T0}, s{T0}, 20
            s_add_u32 s{T0}, s{T0}, 4000
            s_mov_b32 s{T2}, 1
            s_branch L_cn1{self.sfx}
            L_cn2{self.sfx}:
            """)
        if o.get('amp'):
            p("s_waitcnt vmcnt(0)")
            self.stamp()
            if o['amp'][0] < 0: p("s_mov_b32 s100, s98")
            p.raw(f"""
            s_and_b32 s{T0}, s2, 7
            s_lshr_b32 s{T0}, {o['amp'][2]}, s{T0}
            s_bitcmp1_b32 s{T0}, 0
            s_cbranch_scc0 L_ampx{self.sfx}
            s_load_dwordx2 s[62:63], s[0:1], 64
            v_mov_b32 v2, 0
            s_waitcnt lgkmcnt(0)
            global_load_dword v3, v2, s[62:63] sc1
            s_waitcnt vmcnt(0)
            v_readfirstlane_b32 s{T2}, v3
            s_not_b32 s{T2}, s{T2}
            s_sub_u32 s{T0}, s100, s{T2}
            s_add_u32 s{T0}, s{T0}, 300
            s_mul_i32 s{T0}, s{T0}, {o['amp'][1]}
            s_min_u32 s{T0}, s{T0}, 100000
            L_amp{self.sfx}:
            s_sleep 2
            s_memrealtime s[64:65]
            s_waitcnt lgkmcnt(0)
            s_sub_u32 s{T1}, s64, s{T2}
            s_cmp_lt_u32 s{T1}, s{T0}
            s_cbranch_scc1 L_amp{self.sfx}
            L_ampx{self.sfx}:
            """)
        p("s_endpgm")
        assert not self.dq

def sizes(lines):
    import subprocess, re
    src = '.amdgcn_target "amdgcn-amd-amdhsa--gfx950"\n.text\n' + "\n".join(lines) + "\n"
    r = subprocess.run(["llvm-mc", "-triple=amdgcn-amd-amdhsa", "-mcpu=gfx950", "-show-encoding"], input=src, capture_output=True, text=True)
    assert r.returncode == 0, r.stderr[:2000]
    return [len(m.split(',')) for m in re.findall(r'encoding: \[([^\]]*)\]', r.stdout)]
def add_hops(text, sfx, align=True):
    lines = text.split("\n")
    i0 = lines.index(f"L_main{sfx}:"); i1 = next(i for i in range(i0, len(lines)) if lines[i].strip() == "s_endpgm")
    body = lines[i0 + 1:i1]
    isi = lambda l: l.startswith("    ")
    szl = sizes([l for l in body if isi(l)])
    insl = [l.strip() for l in body if isi(l)]
    big = [z == 8 and t.startswith("v_") and not t.startswith("v_mfma") for z, t in zip(szl, insl)]
    run = [0] * (len(big) + 1)
    for k in range(len(big) - 1, -1, -1): run[k] = run[k + 1] + 1 if big[k] else 0
    sz = iter(szl); k = -1; nfix = 0
    out = []; addr = 0; page = 0; prev = "v_mfma"
    for l in body:
        if isi(l):
            k += 1
            if align and run[k] >= 3 and addr % 8 == 4:
                pv = out[-1] if isinstance(out[-1], str) else ""
                op = pv.split()[0] if pv.strip() else ""
                if isi(pv) and szl[k - 1] == 4 and op.startswith("v_") and not op.startswith(("v_cmp", "v_swap", "v_permlane", "v_readfirst")):
                    out[-1] = pv.replace(op, op + "_e64", 1); addr += 4; nfix += 1
                elif run[k] >= 6: out.append("    s_nop 0"); addr += 4; nfix += 1
            off = addr - page * 4096
            if off >= 0 and (prev.startswith("v_mfma") or off >= 40) and not prev.startswith("s_mov_b64 exec") :
                out.append(("hop", page)); addr += 4; page += 1
            addr += next(sz); prev = l.strip()
        out.append(l)
    assert page >= 4
    res = []
    for x in out:
        if isinstance(x, tuple):
            k = x[1]
            res += [f"L_hop{k}{sfx}:", f"    s_cbranch_execz " + (f"L_hop{k+4}{sfx}" if k + 4 < page else f"L_hopret{sfx}")]
        else: res.append(x)
    print(sfx, "main bytes", addr, "align fixes", nfix, file=sys.stderr)
    return "\n".join(lines[:i0 + 1] + res + lines[i1:])

def build(opt):
    ref = open(f"cdna_kernels/{NAME}.s.ref").read().split("\n")
    head = [l for l in ref if l.startswith(";") and "@launch" not in l]
    s = "\n".join(head) + "\n; @launch grid=(256,1,1) block=(256,1,1) lds=163840\n"
    s += f""".amdgcn_target "amdgcn-amd-amdhsa--gfx950"
.text
.globl {NAME}_kernel
.p2align 12
.p2align 8
.type {NAME}_kernel,@function
{NAME}_kernel:
    s_cmp_ge_u32 s2, 256
    s_cbranch_scc1 L_exit
"""
    ga = Gen(True, opt); ta = ga.body(); gb = Gen(False, opt); tb = gb.body()
    ca, ra = ta.split(".split\n"); cb, rb = tb.split(".split\n")
    assert ca == cb
    if opt.get('hops', 1): ra = add_hops(ra, 'A', opt.get('align', 1)); rb = add_hops(rb, 'B', opt.get('align', 1))
    s += ca + ra + "L_exit:\n    s_endpgm\n.p2align 12\n" + rb
    s += ".fill 2048, 4, 0xbf810000\n"
    s += f""".section .rodata,"a"
.p2align 6
.amdhsa_kernel {NAME}_kernel
  .amdhsa_next_free_vgpr 512
  .amdhsa_next_free_sgpr 102
  .amdhsa_accum_offset 256
  .amdhsa_group_segment_fixed_size 0
  .amdhsa_kernarg_size 80
  .amdhsa_user_sgpr_count 2
  .amdhsa_user_sgpr_kernarg_segment_ptr 1
  .amdhsa_system_sgpr_workgroup_id_x 1
.end_amdhsa_kernel
"""
    print("nops", ga.p.nops, gb.p.nops, "instrs", len(ga.p.ins), len(gb.p.ins), "autow", getattr(ga.p, 'autow', 0), file=sys.stderr)
    return s

if __name__ == "__main__":
    import json
    opt = json.loads(sys.argv[2]) if len(sys.argv) > 2 else {}
    open(sys.argv[1], "w").write(build(opt))
```

```python
import sys
from collections import deque
from emit import Prog
NAME = "concat_heads__linear_kernel_hedgehog__linear_attn_block__prompt"

S_RB, S_HG, S_W = 4, 5, 7
SX, SW, SWO, SWS, SOUT, SPHI = 8, 12, 16, 20, 24, 28
S_NONCE = 32
S_WROW = 33
S_XBASE, S_XU = 38, 39
S_LW, S_LR = 40, 41
T0, T1, T2, T3 = 42, 43, 44, 45
S_WOROW = 46
S_HEAD = 51
S_SPIN = 52
S_FAST = 53
S_L2E, S_NL2E = 54, 55
S_OB = 56
S_WS, S_XS = 57, 58
S_FLAG = 59
S_OP = 60
S_P1ST, S_P1LD, S_P2ST, S_P2LD, S_OWN, S_OUT, S_XCCV, S_PERM = 68, 69, 70, 71, 72, 73, 74, 75
S_KA = 76
S_ST = 76
import os
if os.environ.get('PRO'): S_ST = 88
def srd(b): return f"s[{b}:{b+3}]"
V_LANE = 1
V_WO = 2; V_OF = 7; V_OL = 12; V_XO = 17; V_XR = 21; V_WT = 23; V_LIN = 25
V_PW, V_VW, V_KB, V_KA0, V_KA1, V_FR = 26, 27, 28, 29, 30, 31
ACC_K, ACC_V = 32, 72
TMP = 112
PV = 228
V_P1ST, V_P1LD, V_P2ST, V_GAL, V_LA, V_FR2, V_KEEP, V_ONE, V_OW, V_ORD, V_OG, V_F8, V_DUMP, V_ZA = PV, PV+1, PV+2, PV+3, PV+4, PV+8, PV+9, PV+10, PV+11, PV+12, PV+17, PV+22, PV+23, PV+24
V_L128, V_NONCE, V_FOWN = PV + 25, PV + 26, PV + 27
RING = 0; SLOT = 20480; RBASE = 102400; RW = 15360
OUTL = RBASE + 16384; OUTS = 176
WS_FLAG, WS_XCC, WS_P2, WS_P1, WS_O, WS_ST = 4096, 32768, 5 << 20, 1 << 20, 8 << 20, 16 << 20
WS_SIZE = 32 << 20
D = 6
A_RING = 220
A_PHI = 160
A_PARK = 244
V_OO = 7; V_LINH = 12; V_PF = 13; V_P1M = 14
WS_PF = 49152; WS_PK = 6 << 20
S_USRC, S_UDST, S_UFL, S_UTAG, S_PFL, S_XA = 3, 6, 72, 90, 91, 93
S_TB = SX
S_NHI = 38
SO = SPHI
SPIN_MAX = 100000
EPS = "0x358637bd"

def vq(b, n=4): return f"v[{b}:{b+n-1}]"
def aq(b, n=4): return f"a[{b}:{b+n-1}]"
def acc(base, t, rt): return base + (rt * 5 + t) * 4
MF = "v_mfma_f32_16x16x32_bf16"

DEF = {'A': dict(h1pipe=1, xpos=(117, 190, 222), qpace=4, pfpos=101, pfchk=28, prokeep=4, proev=60, h1=(48, 74), h1len=8, h2lead=160, prelead=125, kpace=4, hx=26, d0=11, vsync=1, qev=26), 'B': dict(h1pipe=1, xpos=(117, 190, 222), upos=(18, 68, 120), ustep=4, qb=(20, 53, 66, 80), d0=11, pfpos=101, pfchk=28, h1=(46, 72), h1len=5, h2lead=80, prem=(283, -70, -30), vpace=3, qev=24, vsync=1)}
class Gen:
    def __init__(self, isA, opt):
        self.A = isA
        sf = 'A' if isA else 'B'
        opt = dict(DEF[sf], **opt)
        opt.update({k[:-1]: v for k, v in opt.items() if k.endswith(sf)})
        self.o = opt
        self.p = Prog(); self.sfx = 'A' if isA else 'B'
        self.F = 40 if isA else 20
        self.nst = 0
        self.dq = deque()
        self.pos = 0
        self.ool = []
    def stamp(self, name=None):
        p = self.p
        if name is None and self.o.get('idle'):
            self.ic = getattr(self, 'ic', -1) + 1
            if self.ic == self.o['idle'][0]: p(f"s_sleep {self.o['idle'][1]}")
        fine = self.o.get('fine')
        if fine:
            if name is None: self.cs = getattr(self, 'cs', 0) + 1; name = 's%d' % (self.cs - 1)
            if name not in fine: return
        elif name is not None: return
        if self.o.get('amp'):
            if self.nst == self.o['amp'][0]:
                p("s_memrealtime s[100:101]"); p("s_waitcnt lgkmcnt(0)")
            self.nst += 1
            return
        if not self.o.get('stamps'): return
        p(f"s_memrealtime s[100:101]" if self.o.get('rt') else f"s_memtime s[100:101]")
        p("s_waitcnt lgkmcnt(0)")
        p(f"s_sub_u32 s{S_ST+self.nst}, s100, {'s98' if self.o.get('rt') else 's96'}")
        self.nst += 1
    def put(self, L):
        for x in L:
            if isinstance(x, tuple): self.p(x[0], x[1])
            elif isinstance(x, list): self.put(x)
            elif callable(x): x()
            else: self.p(x)
    def dma_w(self, G):
        g = G % 5
        pre = [f"s_add_u32 m0, s{S_LW}, {RING + g*SLOT}"]
        if G < 15:
            col = {0: 1280, 1: 2560, 2: 0}[G // 5]
            gr = 4 - g if G // 5 in self.o.get('rev', [1, 2]) else g
            pre.append(f"s_add_u32 s{S_WS}, s{S_WROW+gr}, {col}"); so = f"s{S_WS}"; sd = SW; vo = V_WO
        else:
            items = []
            for j in range(5):
                off = f"offset:{j*1024} " if 0 < j < 4 else ""
                L = (pre if j == 0 else []) + [(f"buffer_load_dwordx4 v{V_LIN}, {srd(SWS)}, s{S_WOROW+g} offen {off}sc1 lds", ('W', G))]
                if j == 3: L += [f"s_add_u32 m0, s{S_LW}, {RING + g*SLOT + 4096}", f"s_add_u32 s{S_WOROW+g}, s{S_WOROW+g}, 4096"]
                items.append(L)
            return items
        items = []
        if G // 5 in self.o.get('fake', []):
            base = (G % 5) * 4 * 5120 + (G // 5 if G < 15 else 0) * 819200
            if self.o.get('fakerot'):
                pre = [pre[0], f"s_mul_hi_u32 s{S_WS}, s{S_WROW+gr}, 34953", f"s_mul_i32 s{S_WS}, s{S_WS}, 5120", f"s_add_u32 s{S_WS}, s{S_WS}, s94", f"s_sub_u32 s{S_WS}, s{S_WS}, s{S_LW}",
                       f"s_add_u32 s{S_WS}, s{S_WS}, {(G // 5) * 819200}"]
            else: pre = [pre[0], f"s_add_u32 s{S_WS}, s94, {base}"]
            for j in range(5):
                off = f"offset:{j*1024} " if 0 < j < 4 else ""
                L = (pre if j == 0 else []) + [(f"buffer_load_dwordx4 v{V_LIN}, {srd(sd)}, s{S_WS} offen {off}lds", ('W', G))]
                if j == 3: L += [f"s_add_u32 m0, s{S_LW}, {RING + g*SLOT + 4096}", f"s_add_u32 s{S_WS}, s{S_WS}, 4096"]
                items.append(L)
            return items
        for j in range(5):
            off = f"offset:{j*1024} " if 0 < j < 4 else ""
            L = (pre if j == 0 else []) + [(f"buffer_load_dwordx4 v{vo+j}, {srd(sd)}, {so} offen {off}lds", ('W', G))]
            if j == 3: L.append(f"s_add_u32 m0, s{S_LW}, {RING + g*SLOT + 4096}")
            items.append(L)
        return items
    def dma_x(self, pu):
        items = []
        for j in range(4):
            off = f"offset:{j*1024} " if j else ""
            L = []
            if j == 0: L += [f"s_add_u32 m0, s{S_LR}, {(pu % 3) * 4096}", f"s_add_u32 s{S_XS}, s{S_XU}, s{S_XBASE}"]
            L.append((f"buffer_load_dwordx4 v{V_XO+j}, {srd(SX)}, s{S_XS} offen {off}lds", ('X', pu)))
            if j == 0: L += [f"s_add_u32 s{S_XU}, s{S_XU}, 128"]
            if j == 1: L += [f"s_cmp_eq_u32 s{S_XU}, 1280", f"s_cselect_b32 s{S_XU}, 0, s{S_XU}"]
            items.append(L)
        return items
    def q(self, earliest, items):
        for it in items: self.dq.append((earliest, it))
    def release(self, k):
        self.dq = deque((0 if e == 10**6 + k else e, it) for e, it in self.dq)
    def tick(self):
        if self.dq and not getattr(self, 'pfok', False) and any(isinstance(x, tuple) and x[1] == ('W', 15) for x in self.dq[0][1]): return False
        if self.dq and self.dq[0][0] <= self.pos:
            self.put(self.dq.popleft()[1]); return True
        return False
    def flush_dma(self, tag):
        def has():
            return any(isinstance(x, tuple) and x[1] == tag for _, it in self.dq for x in it)
        while has():
            assert self.dq[0][0] <= self.pos, (tag, self.pos, self.dq[0])
            self.put(self.dq.popleft()[1])
    def run(self, L, every=30):
        c = 0
        for cost, x in L:
            self.put([x]); c += cost
            if c >= every: c = 0; self.tick()
    def kt(self, N):
        ps, n = divmod(N, 100); tm = self.o.get('tm', (0, 0, 0))[ps]
        if n >= 100 - 5 * tm:
            t, j = divmod(n - (100 - 5 * tm), tm); return 20 - tm + j, t
        return divmod(n, 5)
    def wread(self, N, hf):
        G = N // 20; ks, t = self.kt(N); ks %= 4
        off = RING + (G % 5) * SLOT + ks * 5120 + hf * 2560 + 8 * t
        hi = off >= 51200
        s = A_RING + (N % D) * 4 + 2 * hf
        if G // 5 in self.o.get('fake', []):
            if hf == 0:
                off = RING + (G % 5) * SLOT + ks * 5120 + 1024 * t
                hi = off >= 51200
                self.p(f"ds_read_b128 a[{s}:{s+3}], v{226 + hi} offset:{off - 51200*hi}", ('F', N))
            return
        self.p(f"ds_read_b64_tr_b16 a[{s}:{s+1}], v{V_WT + hi} offset:{off - 51200*hi}", ('F', N))
    def group_sync(self, G):
        self.flush_dma(('W', G))
        self.p.wait(vm=[('W', G)])
        self.p("s_barrier")
    def xread(self, pu, k):
        ksub, rt = divmod(k, 2)
        if k == 0:
            self.flush_dma(('X', pu)); self.p.wait(vm=[('X', pu)])
        a = ((2 * pu + ksub) * 2 + rt) * 4
        self.p(f"ds_read_b128 {aq(a)}, v{V_XR+ksub} offset:{(pu % 3)*4096 + rt*2048}", ('XR', pu))
    def prime(self, ps, sync=True):
        if sync: self.group_sync(ps * 5)
        for n in range(D - 1):
            self.wread(ps * 100 + n, 0); self.wread(ps * 100 + n, 1)
    def gemm_pass(self, ps, accb, bop, fill=None, hooks=None, last=False, pace=None, sync=True, frange=(0, 100), hooks0=None, late=None):
        p = self.p
        fill = deque(fill or []); hooks = hooks or {}; hooks0 = hooks0 or {}
        N0 = ps * 100
        p.wait(lg=[('F', N0), ('XR', 0)])
        pace = pace or (lambda n: 0)
        for n in range(100):
            self.pos = N0 + n
            ks, t = self.kt(N0 + n)
            s = A_RING + ((N0 + n) % D) * 4
            M = n + D - 1
            look = M < 100 or not last
            a = acc(accb, t, 0)
            p(f"{MF} {vq(a)}, {aq(s)}, {bop(ks, 0)}, {'0' if ks == 0 else vq(a)}")
            k0 = len(p.ins)
            if n < 99:
                tg = [('F', N0 + n + 1)]
                if ps == 0 and (n + 1) % 10 == 0: tg.append(('XR', (n + 1) // 10))
                p.wait(lg=tg)
            if n in hooks0: self.put(hooks0[n])
            pk_ = ps in self.o.get('fake', [])
            if pk_:
                if n % 2 == 0 and n + 4 < 100:
                    if (n + 4) % 20 == 0 and sync: self.group_sync((N0 + n + 4) // 20)
                    if len(p.ins) == k0: p("s_nop 0")
                    if n: self.wread(N0 + n + 4, 0)
                    self.wread(N0 + n + 5, 0)
                elif fill and n >= frange[0]: self.gap(fill, 2)
            elif look:
                if M % 20 == 0 and sync: self.group_sync((N0 + M) // 20)
                if len(p.ins) == k0: p("s_nop 0")
                self.wread(N0 + M, 0); self.wread(N0 + M, 1)
            elif fill and n >= frange[0]: self.gap(fill, 2)
            elif late: self.gapl(late, n - 0.5)
            a = acc(accb, t, 1)
            p(f"{MF} {vq(a)}, {aq(s)}, {bop(ks, 1)}, {'0' if ks == 0 else vq(a)}")
            self.pos = N0 + n + 1
            self.stamp('n%d' % (N0 + n))
            did = 0
            for _ in range(pace(n)): did += self.tick()
            if n in hooks: self.put(hooks[n])
            if fill and n >= frange[0]:
                left = sum(c for c, _ in fill)
                gaps = sum(1 for k in range(n, frange[1]) if not pace(k)) + (min(D - 1, 99 - n) if last and frange[1] == 100 else 0)
                if pk_: gaps = sum(1 for k in range(n, frange[1]) if not pace(k)) + (frange[1] - n) // 2
                bud = 0 if did else 2
                if left > 2 * gaps: bud += 2
                if ps == 2 and left > 4 * gaps: bud = -(-left // max(gaps, 1))
                self.gap(fill, bud)
            elif late and not did and n not in hooks: self.gapl(late, n)
        while fill: self.put([fill.popleft()[1]])
        self.pos = N0 + 100
    def gapl(self, late, n):
        q = deque()
        for r, c, x in late:
            if r > n: break
            q.append((c, x))
        k = len(q); self.gap(q, 2)
        for _ in range(k - len(q)): late.popleft()
    def gap(self, fill, bud):
        first = True
        while fill:
            c, x = fill[0]
            solo = isinstance(x, tuple)
            if c > bud or (solo and not first): break
            fill.popleft(); self.put([x]); bud -= c
            if solo: break
            if c: first = False
    def cvt20(self, src, dst):
        return [(1, f"v_cvt_pk_bf16_f32 v{dst+i}, v{src+2*i}, v{src+2*i+1}") for i in range(10)]
    def phiA_parts(self, x, e, m, name, isq):
        P = {}
        kb = e + 28
        P['cvt'] = self.cvt20(x, kb)
        P['zero'] = [(1, f"v_mov_b32 v{kb+10}, 0"), (1, f"v_mov_b32 v{kb+11}, 0")]
        P['mf'] = [(2, f"{MF} {vq(x+4*t)}, {aq(A_PHI + (t*3+u)*4)}, {vq(kb+4*u)}, {'0' if u == 0 else vq(x+4*t)}") for t in range(5) for u in range(3)]
        P['exp'] = [(2, f"v_exp_f32 v{e+i}, v{x+i}") for i in range(20)] + [(2, f"v_exp_f32 v{e+20+i}, -v{x+i}") for i in range(20)]
        def sums():
            L = [f"v_pk_add_f32 v[{m+2*h}:{m+2*h+1}], v[{e+20*h}:{e+20*h+1}], v[{e+20*h+2}:{e+20*h+3}]" for h in range(2)]
            L += [f"v_pk_add_f32 v[{m+2*h}:{m+2*h+1}], v[{m+2*h}:{m+2*h+1}], v[{e+20*h+2*i}:{e+20*h+2*i+1}]" for i in range(2, 10) for h in range(2)]
            L += [f"v_add_f32 v{m+2*h}, v{m+2*h}, v{m+2*h+1}" for h in range(2)]
            return L
        nm = name + self.sfx
        L = sums() + [f"v_max_f32 v{m+1}, v{m}, v{m+2}", f"v_cmp_ngt_f32 vcc, 0x53800000, v{m+1}"]
        if not isq: L.append(f"v_rcp_f32 v{m+4}, v{m}")
        L += [f"v_rcp_f32 v{m+2}, v{m+2}", [f"s_cbranch_vccnz {nm}_slow", f"{nm}_back:"]]
        o = Prog()
        o(f"{nm}_slow:")
        o(f"v_max3_f32 v{m}, v{x}, v{x+1}, v{x+2}"); o(f"v_min3_f32 v{m+1}, v{x}, v{x+1}, v{x+2}")
        for i in range(3, 19, 2):
            o(f"v_max3_f32 v{m}, v{m}, v{x+i}, v{x+i+1}"); o(f"v_min3_f32 v{m+1}, v{m+1}, v{x+i}, v{x+i+1}")
        o(f"v_max_f32 v{m}, v{m}, v{x+19}"); o(f"v_min_f32 v{m+1}, v{m+1}, v{x+19}")
        for i in range(20): o(f"v_sub_f32 v{e+i}, v{x+i}, v{m}"); o(f"v_sub_f32 v{e+20+i}, v{m+1}, v{x+i}")
        for i in range(40): o(f"v_exp_f32 v{e+i}, v{e+i}")
        for y in sums(): o(y)
        if not isq: o(f"v_rcp_f32 v{m+4}, v{m}")
        o(f"v_rcp_f32 v{m+2}, v{m+2}"); o("s_nop 1"); o(f"s_branch {nm}_back")
        self.ool.append(o.finalize())
        if isq: L.append(f"v_mul_f32 v{m+2}, v{m+2}, v{m}")
        else: L += [f"v_pk_mul_f32 v[{e+2*i}:{e+2*i+1}], v[{e+2*i}:{e+2*i+1}], v[{m+4}:{m+5}] op_sel_hi:[1,0]" for i in range(10)]
        L += [f"v_pk_mul_f32 v[{e+20+2*i}:{e+21+2*i}], v[{e+20+2*i}:{e+21+2*i}], v[{m+2}:{m+3}] op_sel_hi:[1,0]" for i in range(10)]
        if self.o.get('whatif') == ('q' if isq else 'k'): L = [y for y in L if not (isinstance(y, str) and y.startswith('v_pk_add') and y.split()[1] == y.split()[2])]
        if self.o.get('whatif') == ('Q' if isq else 'K'): L = [y for y in L if not (isinstance(y, str) and y.startswith('v_pk_') and y.split()[1] == y.split()[2])]
        P['norm'] = [(1, y) for y in L]
        P['out'] = [(1, f"v_cvt_pk_bf16_f32 v{x+i}, v{e+2*i}, v{e+2*i+1}") for i in range(20)]
        return P
    def weave(self, mf, va, per=2):
        va = deque(va); L = []
        for x in mf:
            L.append(x); b = per
            while va and va[0][0] <= b: b -= va[0][0]; L.append(va.popleft())
        return L + list(va)
    def phiB(self, x, e, packed):
        L = []
        if packed: L += [(1, f"v_pk_mul_f32 v[{e+2*i}:{e+2*i+1}], v[{x+2*i}:{x+2*i+1}], s[{S_L2E}:{S_NL2E}] op_sel_hi:[1,0]") for i in range(10)]
        else: L += [(1, f"v_mul_f32 v{e+i}, s{S_L2E}, v{x+i}") for i in range(20)]
        L += [(2, f"v_exp_f32 v{e+i}, v{e+i} clamp") for i in range(20)]
        L += [(1, f"v_max_f32 v{x+i}, {EPS}, v{x+i}") for i in range(20)]
        if packed: L += [(1, f"v_pk_add_f32 v[{e+2*i}:{e+2*i+1}], v[{e+2*i}:{e+2*i+1}], v[{x+2*i}:{x+2*i+1}]") for i in range(10)]
        else: L += [(1, f"v_add_f32 v{e+i}, v{e+i}, v{x+i}") for i in range(20)]
        L += self.cvt20(e, x)
        return L
    def checked(self, name, loads, check, tag, redo=()):
        nm = name + self.sfx
        iss = [(x, tag) if x.startswith('buffer') else x for x in loads]
        chk = [(0, lambda: self.p.wait(vm=[tag]))] + [(1, x) for x in check] + [(1, [f"s_cbranch_vccnz {nm}_retry", f"{nm}_ok:"])]
        o = Prog()
        o(f"{nm}_retry:"); o(f"s_mov_b32 s{S_SPIN}, 0")
        if self.o.get('cnt') == name: o("s_mov_b32 s95, 1")
        o(f"{nm}_loop:")
        if self.o.get('stamps'): o(f"s_add_u32 s95, s95, {dict(L_xc=1000000, L_h1=10000, L_h2=1000, L_pf=10000000, L_f0=1, L_f1=100, L_d0=0, L_d1=100000)[name]}")
        bk = self.o.get('backoff', {}).get(name, 0)
        if bk: o(f"s_sleep {bk}")
        for x in loads: o(x)
        o("s_waitcnt vmcnt(0)")
        for x in check: o(x)
        o(f"s_cbranch_vccz {nm}_{'redo' if redo else 'ok'}")
        o(f"s_add_u32 s{S_SPIN}, s{S_SPIN}, 1"); o(f"s_cmp_lt_u32 s{S_SPIN}, {SPIN_MAX}"); o(f"s_cbranch_scc1 {nm}_loop")
        if redo:
            o(f"{nm}_redo:")
            for x in redo: o(x)
        o(f"s_branch {nm}_ok")
        self.ool.append(o.finalize())
        return iss, chk
    def body(self):
        p = self.p; A = self.A; F = self.F; br = 0 if A else 1; o = self.o
        t = TMP
        K = S_KA
        kx, kw, kout, kws = K, K + 2, K + 8, K + 10
        kphi, kwo = (K + 4, K + 6) if A else (None, K + 4)
        p.raw(f"""
        s_andn2_b32 s{T0}, 1, s2
        s_lshl_b32 s{T0}, s{T0}, 5
        s_load_dwordx8 s[{K}:{K+7}], s[0:1], s{T0}
        s_load_dwordx2 s[{kout}:{kout+1}], s[0:1], 56
        s_load_dwordx2 s[{kws}:{kws+1}], s[0:1], 72
        """)
        if o.get('stamps'): p("s_memtime s[96:97]"); p("s_mov_b32 s95, 0")
        if o.get('stamps') or o.get('amp') or o.get('cntm'): p("s_memrealtime s[98:99]")
        if o.get('cntm'): p("s_mov_b32 s95, 0")
        p.raw(f"""
        s_getpc_b64 s[60:61]
        L_pc:
        s_bfe_u32 s{S_HG}, s2, 0x30003
        v_and_b32 v{V_LANE}, 63, v0
        v_lshrrev_b32 v{t}, 6, v0
        s_bitcmp0_b32 s2, 0
        s_cselect_b32 s{T1}, L_setupB-L_setupA, 0
        s_lshl_b32 s{T0}, s{S_HG}, 12
        v_lshlrev_b32 v{V_L128}, 7, v{V_LANE}
        v_readfirstlane_b32 s{S_W}, v{t}
        s_add_u32 s{T0}, s{T0}, s{T1}
        s_add_u32 s{T0}, s{T0}, L_setupA-L_pc
        s_add_u32 s60, s60, s{T0}
        s_addc_u32 s61, s61, 0
        v_lshl_add_u32 v{t+1}, v{t}, 10, v{V_L128}
        s_mov_b64 exec, 0xff
        """)
        p(f"global_load_dword v{V_DUMP}, v{t+1}, s[60:61]", 'cpf')
        p("s_mov_b64 exec, -1")
        ra, rbm, rdiv = o.get('rot', (10, 10, 4))
        p.raw(f"""
        s_and_b32 s{S_RB}, s2, 6
        s_lshl_b32 s{S_RB}, s{S_RB}, 1
        s_lshr_b32 s{T0}, s2, 6
        s_add_u32 s{S_RB}, s{S_RB}, s{T0}
        s_mul_i32 s{T0}, s{S_HG}, {ra}
        s_mul_i32 s{T1}, s{S_RB}, {rbm}
        s_add_u32 s{T0}, s{T0}, s{T1}
        s_lshr_b32 s{T0}, s{T0}, {rdiv.bit_length()-1}
        s_mul_i32 s{T1}, s{T0}, 6554
        s_lshr_b32 s{T1}, s{T1}, 16
        s_mul_i32 s{T1}, s{T1}, 10
        s_sub_u32 s{T3}, s{T0}, s{T1}
        s_lshl_b32 s{S_XU}, s{T3}, 7
        s_lshl_b32 s{T0}, s{S_RB}, 2
        s_add_u32 s{T0}, s{T0}, s{S_W}
        s_mul_i32 s{S_XBASE}, s{T0}, 40960
        s_mul_i32 s{S_LW}, s{S_W}, 5120
        s_mul_i32 s{S_LR}, s{S_W}, {RW}
        s_add_u32 s{S_LR}, s{S_LR}, {RBASE}
        v_lshrrev_b32 v{t}, 3, v{V_LANE}
        v_mul_u32_u24 v{t}, 1280, v{t}
        v_lshrrev_b32 v{t+1}, 4, v{V_LANE}
        v_xor_b32 v{t+1}, v{t+1}, v{V_LANE}
        v_and_b32 v{t+1}, 7, v{t+1}
        v_lshl_add_u32 v{V_XO}, v{t+1}, 4, v{t}
        v_xor_b32 v{t+2}, 64, v{V_XO}
        v_add_u32 v{V_XO+1}, {9216}, v{t+2}
        v_add_u32 v{V_XO+2}, {2*9216}, v{V_XO}
        v_add_u32 v{V_XO+3}, {3*9216}, v{t+2}
        s_lshr_b32 s{T0}, s{S_W}, 1
        s_add_u32 s{T0}, s{T0}, s{T3}
        s_and_b32 s{T1}, s{S_W}, 1
        s_mul_i32 s{T1}, s{T1}, {32*3840}
        s_mul_i32 s{T2}, s{S_HG}, 160
        s_add_u32 s{T1}, s{T1}, s{T2}
        s_mov_b32 s{SX+2}, 2621440
        s_mov_b32 s{SX+3}, 0x20000
        s_mov_b32 s{SW+2}, 2457600
        s_mov_b32 s{SW+3}, 0x20000
        """)
        def wrow(g):
            p.raw(f"""
            s_cmp_ge_u32 s{T0}, 10
            s_cselect_b32 s{T2}, 10, 0
            s_sub_u32 s{T0}, s{T0}, s{T2}
            s_mul_i32 s{T2}, s{T0}, {64*3840}
            s_add_u32 s{S_WROW+g}, s{T2}, s{T1}
            s_add_u32 s{T0}, s{T0}, 2
            """)
        wrow(0)
        RH = TMP + 10
        def woff(j):
            b = RH + 5 * j
            p.raw(f"""
            v_add_u32 v{t}, {64*j}, v{V_LANE}
            v_mul_u32_u24 v{b+4}, 6554, v{t}
            v_lshrrev_b32 v{b+4}, 16, v{b+4}
            v_mul_u32_u24 v{t+2}, 10, v{b+4}
            v_sub_u32 v{b+3}, v{t}, v{t+2}
            v_bfe_u32 v{b}, v{b+4}, 2, 2
            v_lshrrev_b32 v{b+1}, 4, v{b+4}
            v_and_b32 v{b+2}, 3, v{b+4}
            v_lshl_add_u32 v{t}, v{b}, 1, v{b+1}
            v_lshl_add_u32 v{t}, v{t}, 2, v{b+2}
            v_mul_u32_u24 v{t}, 3840, v{t}
            v_lshl_add_u32 v{V_WO+j}, v{b+3}, 4, v{t}
            """)
            if 0 < j < 4: p(f"v_subrev_u32 v{V_WO+j}, {1024*j}, v{V_WO+j}")
        if o.get('fakeinit'):
            p.raw(f"""
            s_mul_i32 s94, s{S_HG}, 102400
            s_add_u32 s94, s94, s{S_LW}
            v_lshlrev_b32 v{V_LIN}, 4, v{V_LANE}
            v_mov_b32 v226, v{V_LIN}
            v_add_u32 v227, 51200, v{V_LIN}
            """)
        woff(0); woff(1)
        if o.get('pre0'): p("s_memtime s[92:93]")
        p.raw(f"""
        s_waitcnt lgkmcnt(0)
        s_mov_b32 s{SX}, s{kx}
        s_mov_b32 s{SX+1}, s{kx+1}
        s_mov_b32 s{SW}, s{kw}
        s_mov_b32 s{SW+1}, s{kw+1}
        """)
        if o.get('late0'): p.raw(f"s_and_b32 s60, s2, 7\ns_cmp_lg_u32 s60, 0\ns_cbranch_scc1 L_nd0\ns_sleep {o['late0']}\nL_nd0:")
        if o.get('bdelay'): p.raw(f"s_bitcmp1_b32 s2, 0\ns_cbranch_scc1 L_nd\ns_sleep {o['bdelay']}\nL_nd:")
        self.stamp('p0')
        if o.get('pre0'): p(f"s_sub_u32 s{S_ST+self.nst}, s92, s96"); self.nst += 1
        self.put(self.dma_x(0))
        w0 = self.dma_w(0)
        self.put(w0[0:2]); woff(2); self.put(w0[2]); woff(3); self.put(w0[3]); woff(4); self.put(w0[4])
        self.stamp('p1')
        if o.get('prowait'):
            p.wait(vm=['cpf']); self.stamp('p2')
            p.wait(vm=[('X', 0)]); self.stamp('p3')
            p.wait(vm=[('W', 0)]); self.stamp('p4')
        p("s_bitcmp0_b32 s2, 0"); p("s_cbranch_scc1 L_setupB")
        p(".split")
        p(f"L_setup{self.sfx}:")
        p(f"s_load_dword s{S_NONCE}, s[{kws}:{kws+1}], {br*128}")
        if not A:
            p(f"s_load_dword s{S_UTAG}, s[{kws}:{kws+1}], 0")
            p(f"s_load_dwordx2 s[{K+6}:{K+7}], s[0:1], 24")
        for g in range(1, 5): wrow(g)
        if o.get('bal'):
            nw, nx, where = o['bal']
            L_ = [f"s_add_u32 s{T0}, s{S_HG}, s{S_RB}", f"s_bitcmp1_b32 s{T0}, 0", f"s_cbranch_scc1 L_bal{self.sfx}",
                  f"s_cmp_ge_u32 s{S_W}, 2", f"s_cbranch_scc1 L_balx{self.sfx}",
                  f"s_mul_i32 s{T0}, s{S_W}, {32*3840 - 156}", f"s_sub_u32 s{T0}, s{S_WROW+2}, s{T0}", f"v_mul_u32_u24 v{TMP+104}, 3840, v{V_LANE}",
                  f"s_mov_b32 exec_lo, {hex(((1 << nw) - 1) & 0xffffffff)}", f"s_mov_b32 exec_hi, {hex(((1 << nw) - 1) >> 32)}",
                  f"buffer_load_dword v{V_DUMP}, v{TMP+104}, {srd(SW)}, s{T0} offen offset:1280", f"s_branch L_bal{self.sfx}",
                  f"L_balx{self.sfx}:",
                  f"s_mul_i32 s{T0}, s{S_RB}, {128*1280}", f"s_bfe_u32 s{T1}, s{S_HG}, 0x10002", f"s_lshl_b32 s{T1}, s{T1}, 1", f"s_add_u32 s{T1}, s{T1}, s{S_W}", f"s_sub_u32 s{T1}, s{T1}, 2",
                  f"s_mul_i32 s{T1}, s{T1}, {32*1280}", f"s_add_u32 s{T0}, s{T0}, s{T1}", f"s_lshl_b32 s{T1}, s{T3}, 7", f"s_add_u32 s{T0}, s{T0}, s{T1}", f"v_mul_u32_u24 v{TMP+104}, 1280, v{V_LANE}",
                  f"s_mov_b32 exec_lo, {hex((1 << nx) - 1)}", "s_mov_b32 exec_hi, 0",
                  f"buffer_load_dword v{V_DUMP}, v{TMP+104}, {srd(SX)}, s{T0} offen offset:512",
                  f"L_bal{self.sfx}:", "s_mov_b64 exec, -1"]
            if where == 0: p.untracked(L_)
            else:
                self.put(self.dma_x(1)); p.untracked(L_)
        if not (o.get('bal') and o['bal'][2]): self.q(0, self.dma_x(1))
        p.raw(f"""
        s_mov_b32 s{SWS}, s{kws}
        s_mov_b32 s{SWS+1}, s{kws+1}
        s_mov_b32 s{SWS+2}, {WS_SIZE}
        s_mov_b32 s{SWS+3}, 0x20000
        s_mov_b32 s{SOUT}, s{kout}
        s_mov_b32 s{SOUT+1}, s{kout+1}
        s_mov_b32 s{SOUT+2}, 5242880
        s_mov_b32 s{SOUT+3}, 0x20000
        s_lshl_b32 s{S_HEAD}, s{S_HG}, 2
        s_add_u32 s{S_HEAD}, s{S_HEAD}, s{S_W}
        v_lshlrev_b32 v{V_LIN}, 4, v{V_LANE}
        """)
        if A:
            p.raw(f"""
            s_mov_b32 s{SPHI}, s{kphi}
            s_mov_b32 s{SPHI+1}, s{kphi+1}
            s_mov_b32 s{SPHI+2}, 25600
            s_mov_b32 s{SPHI+3}, 0x20000
            """)
            self.q(0, [[f"s_mul_i32 s{S_WS}, s{S_HEAD}, 800",
                        (f"buffer_load_dwordx4 {vq(TMP+96)}, v{V_LIN}, {srd(SPHI)}, s{S_WS} offen", 'wphi')]])
        self.q(0, self.dma_w(1)); self.q(0, self.dma_x(2))
        G_, I_, R_, C_ = t, t + 1, t + 2, t + 3
        S = []
        def raw(txt):
            for l in txt.split('\n'):
                if l.strip(): S.append((1, l.strip()))
        raw(f"""
        v_lshrrev_b32 v{G_}, 4, v{V_LANE}
        v_and_b32 v{I_}, 15, v{V_LANE}
        v_bfe_u32 v{R_}, v{V_LANE}, 2, 2
        v_and_b32 v{C_}, 3, v{V_LANE}
        v_lshrrev_b32 v{t+4}, 1, v{I_}
        v_xor_b32 v{t+4}, v{t+4}, v{G_}
        v_lshlrev_b32 v{t+5}, 7, v{I_}
        v_lshl_add_u32 v{t+4}, v{t+4}, 4, v{t+5}
        v_add_u32 v{V_XR}, s{S_LR}, v{t+4}
        v_xor_b32 v{t+4}, 64, v{t+4}
        v_add_u32 v{V_XR+1}, s{S_LR}, v{t+4}
        v_lshrrev_b32 v{t+4}, 2, v{V_LANE}
        v_mul_u32_u24 v{t+5}, 160, v{t+4}
        v_mul_u32_u24 v{t+6}, 40, v{C_}
        v_add_u32 v{V_WT}, v{t+5}, v{t+6}
        v_add_u32 v{V_WT+1}, 51200, v{V_WT}
        v_mul_u32_u24 v{t+5}, 120, v{I_}
        v_mul_u32_u24 v{t+6}, 3840, v{G_}
        v_add3_u32 v{V_PW}, v{t+5}, v{t+6}, s{S_LR}
        v_mul_u32_u24 v{t+6}, 40, v{G_}
        v_mul_u32_u24 v{t+7}, {OUTS}, v{I_}
        s_mul_i32 s{T2}, s{S_W}, {32*OUTS}
        s_add_u32 s{T2}, s{T2}, {OUTL}
        v_add3_u32 v{V_OW}, v{t+7}, v{t+6}, s{T2}
        v_and_b32 v{t+5}, 7, v{t+4}
        v_lshrrev_b32 v{t+6}, 5, v{V_LANE}
        v_lshlrev_b32 v{t+6}, 1, v{t+6}
        v_lshl_add_u32 v{t+5}, v{t+5}, 2, v{t+6}
        v_mul_u32_u24 v{t+5}, 120, v{t+5}
        s_mul_i32 s{T0}, s{S_W}, 3840
        s_add_u32 s{T0}, s{T0}, {RBASE}
        v_add_u32 v{V_KA1}, s{T0}, v{t+5}
        v_lshl_add_u32 v{V_KB}, v{C_}, 3, v{V_KA1}
        s_mov_b32 s{S_L2E}, 0x3fb8aa3b
        s_mov_b32 s{S_NL2E}, 0xbfb8aa3b
        s_mov_b32 s{S_PERM}, 0x07060302
        s_and_b32 s{T3}, s{S_HG}, 1
        """)
        for j in range(5):
            b = RH + 5 * j
            if j < 3: raw(f"""
            v_mul_u32_u24 v{t+5}, {OUTS}, v{b+4}
            v_lshl_add_u32 v{t+5}, v{b+3}, 4, v{t+5}
            v_add_u32 v{V_ORD+j}, s{T2}, v{t+5}
            v_mul_u32_u24 v{t+5}, 2560, v{b+4}
            v_lshl_add_u32 v{V_OG+j}, v{b+3}, 4, v{t+5}
            """)
            if j == 2: raw(f"""
            v_lshrrev_b32 v{t+5}, 5, v{V_LANE}
            v_lshl_or_b32 v{V_OG+2}, v{t+5}, 30, v{V_OG+2}
            """)
        raw(f"""
        v_mov_b32 v{t+5}, 2304
        v_cmp_gt_u32 vcc, 16, v{V_LANE}
        v_mov_b32 v{t+6}, 1024
        v_cndmask_b32 v{t+5}, v{t+5}, v{t+6}, vcc
        v_add_u32 v{V_OO+1}, v{t+5}, v{V_LIN}
        v_mov_b32 v{V_OO}, v{V_LIN}
        v_add_u32 v{V_OO+2}, 40960, v{V_LIN}
        v_add_u32 v{V_OO+3}, 40960, v{V_OO+1}
        v_lshrrev_b32 v{t+4}, 5, v{V_LANE}
        v_mul_u32_u24 v{t+4}, {40960-512}, v{t+4}
        v_add_u32 v{t+5}, 3328, v{V_LIN}
        v_add_u32 v{V_OO+4}, v{t+4}, v{t+5}
        v_add_u32 v{V_LINH}, 51200, v{V_LIN}
        v_min_u32 v{V_PF}, 39, v{V_LANE}
        v_lshlrev_b32 v{V_PF}, 3, v{V_PF}
        v_and_b32 v{t+4}, 1, v{RH+4}
        v_mul_u32_u24 v{t+4}, 2560, v{t+4}
        v_lshrrev_b32 v{t+5}, 1, v{RH+4}
        v_mul_u32_u24 v{t+5}, 40960, v{t+5}
        v_lshlrev_b32 v{t+6}, 7, v{RH+3}
        v_add3_u32 v{V_L128}, v{t+4}, v{t+5}, v{t+6}
        """)
        raw(f"""
        s_lshl_b32 s{T0}, s{T3}, 1
        s_xor_b32 s{T0}, s{T0}, s{S_W}
        s_mul_i32 s{T0}, s{T0}, 5120
        s_mul_i32 s{T2}, s{S_HG}, 102400
        s_add_u32 s{T2}, s{T2}, {WS_PK + br*819200}
        s_add_u32 s{T0}, s{T0}, s{T2}
        s_lshr_b32 s{S_SPIN}, s{S_HG}, 1
        s_add_u32 s{T1}, s{S_SPIN}, s{S_W}
        s_and_b32 s{T1}, s{T1}, 3
        s_add_u32 s{T1}, s{T1}, 16
        s_mul_i32 s{T1}, s{T1}, 5120
        s_add_u32 s{S_WOROW+4}, s{T1}, s{T2}
        s_lshr_b32 s{S_PFL}, s{S_HG}, 2
        s_lshl_b32 s{S_PFL}, s{S_PFL}, 9
        s_add_u32 s{S_PFL}, s{S_PFL}, {WS_PF + br*1024}
        s_mul_i32 s{T2}, s{S_HG}, 160
        s_lshl_b32 s{S_OUT}, s{S_XBASE}, 1
        s_add_u32 s{S_OUT}, s{S_OUT}, s{T2}
        s_add_u32 s{S_OUT}, s{S_OUT}, {br*1280}
        s_lshl_b32 s{S_OB}, s{S_XBASE}, 1
        s_add_u32 s{S_OB}, s{S_OB}, {br*1280}
        """)
        for g in range(4):
            raw(f"""
            s_add_u32 s{T1}, s{S_SPIN}, {g}
            s_and_b32 s{T1}, s{T1}, 3
            s_mul_i32 s{T2}, s{T1}, 20480
            s_add_u32 s{S_WOROW+g}, s{T2}, s{T0}
            s_lshl_b32 s{T1}, s{T1}, 1
            s_add_u32 s{T1}, s{T1}, s{T3}
            s_mul_i32 s{T2}, s{T1}, 5120
            s_add_u32 s{S_OP+2*g}, s{T2}, s{S_OB}
            s_xor_b32 s{T1}, s{T1}, 1
            s_mul_i32 s{T2}, s{T1}, 5120
            s_add_u32 s{S_OP+2*g+1}, s{T2}, s{S_OB}
            """)
        SH = 8 if A else 7
        raw(f"""
        s_lshl_b32 s{T0}, s{S_RB}, 2
        s_add_u32 s{T0}, s{T0}, s{S_W}
        s_lshl_b32 s{S_FLAG}, s{T0}, 7
        s_add_u32 s{S_FLAG}, s{S_FLAG}, {WS_FLAG + br*64*128}
        s_lshl_b32 s{T0}, s{S_HEAD}, 16
        s_add_u32 s{T0}, s{T0}, {WS_P1 + br*32*65536}
        s_lshl_b32 s{T1}, s{S_RB}, 12
        s_add_u32 s{S_P1ST}, s{T0}, s{T1}
        s_min_u32 s{T1}, s{S_RB}, 14
        s_lshl_b32 s{T1}, s{T1}, {SH}
        s_add_u32 s{S_P1LD}, s{T0}, s{T1}
        s_lshl_b32 s{T0}, s{S_HEAD}, 12
        s_add_u32 s{S_P2LD}, s{T0}, {WS_P2 + br*32*4096}
        s_add_u32 s{S_P2ST}, s{S_P2LD}, s{T1}
        s_lshr_b32 s{T1}, s{S_RB}, {4 - o.get('p2log', 2)}
        s_lshl_b32 s{T1}, s{T1}, 18
        s_add_u32 s{S_P2LD}, s{S_P2LD}, s{T1}
        v_mul_u32_u24 v{t+4}, {F if A else 16}, v{G_}
        v_add_lshl_u32 v{V_P1ST}, v{t+4}, v{I_}, 4
        v_mul_u32_u24 v{t+4}, {F if A else 4}, v{G_}
        v_add_lshl_u32 v{t+5}, v{t+4}, v{I_}, 4
        v_lshrrev_b32 v{t+4}, {3 if A else 2}, v{I_}
        v_lshl_or_b32 v{V_P1M}, v{t+4}, 28, v{t+5}
        v_lshrrev_b32 v{t+4}, 1, v{G_}
        v_lshl_or_b32 v{V_P1M+1}, v{t+4}, 30, v{V_P1ST}
        v_lshl_or_b32 v{V_P1M+2}, v{t+4}, 30, v{V_P1M}
        v_cmp_gt_u32 vcc, 4, v{I_}
        v_cndmask_b32 v{V_KEEP}, 0, -1, vcc
        v_mov_b32 v{t+4}, 0x3f803f80
        v_cmp_eq_u32 vcc, 4, v{I_}
        v_cndmask_b32 v{V_ONE}, 0, v{t+4}, vcc
        v_and_b32 v{t+4}, 7, v{V_LANE}
        v_lshlrev_b32 v{V_F8}, 2, v{t+4}
        s_lshl_b32 s{T0}, s{S_HG}, 2
        v_min_u32 v{V_FOWN}, 1, v{V_LANE}
        v_lshlrev_b32 v{V_FOWN}, 30, v{V_FOWN}
        v_or_b32 v{V_FOWN}, s{T0}, v{V_FOWN}
        v_lshlrev_b32 v{V_ZA}, 3, v0
        v_add_u32 v{V_ZA}, {RBASE+7680}, v{V_ZA}
        """)
        if A:
            raw(f"""
            v_lshlrev_b32 v{t+5}, 12, v{G_}
            v_lshl_add_u32 v{V_P1LD}, v{I_}, 4, v{t+5}
            v_lshlrev_b32 v{V_P2ST}, 2, v{V_LANE}
            """)
        else:
            raw(f"""
            v_lshrrev_b32 v{t+5}, 3, v{V_LANE}
            v_lshlrev_b32 v{t+5}, 12, v{t+5}
            v_lshl_add_u32 v{V_P1LD}, v{t+4}, 4, v{t+5}
            v_lshl_add_u32 v{V_P2ST}, v{G_}, 5, v{V_F8}
            """)
        RS = 80 if A else 48
        HS = 24 * RS
        NQ = 240 if A else 120
        NI = 4 if A else 2
        raw(f"s_mul_i32 s{T0}, s{S_W}, {HS}\ns_add_u32 s{T0}, s{T0}, {RBASE}")
        u = t + 4
        for ii in range(NI):
            raw(f"v_add_u32 v{u}, {64*ii}, v{V_LANE}")
            if ii == NI - 1:
                raw(f"""v_subrev_u32 v{u+1}, 64, v{u}
                v_cmp_gt_u32 vcc, {NQ}, v{u}
                v_cndmask_b32 v{u}, v{u+1}, v{u}, vcc
                v_lshlrev_b32 v{V_GAL}, 4, v{u}""")
            if A:
                raw(f"""
                v_lshrrev_b32 v{u+1}, 4, v{u}
                v_and_b32 v{u+2}, 3, v{u}
                v_lshl_add_u32 v{u+1}, v{u+1}, 2, v{u+2}
                v_bfe_u32 v{u+2}, v{u}, 2, 2
                v_mul_u32_u24 v{u+3}, 6554, v{u+1}
                v_lshrrev_b32 v{u+3}, 16, v{u+3}
                v_mul_u32_u24 v{u+4}, 10, v{u+3}
                """)
            else:
                raw(f"""
                v_lshrrev_b32 v{u+1}, 3, v{u}
                v_and_b32 v{u+2}, 1, v{u}
                v_lshl_add_u32 v{u+1}, v{u+1}, 1, v{u+2}
                v_bfe_u32 v{u+2}, v{u}, 1, 2
                v_cmp_gt_u32 vcc, 24, v{u+1}
                v_lshrrev_b32 v{u+3}, 2, v{u+1}
                v_subrev_u32 v{u+4}, 24, v{u+1}
                v_cndmask_b32 v{u+3}, v{u+4}, v{u+3}, vcc
                v_and_b32 v{u+1}, 3, v{u+1}
                v_cndmask_b32 v{u+1}, 4, v{u+1}, vcc
                v_mov_b32 v{u+4}, 0
                """)
            raw(f"""
            v_sub_u32 v{u+1}, v{u+1}, v{u+4}
            v_lshl_add_u32 v{u+3}, v{u+3}, 2, v{u+2}
            v_mul_u32_u24 v{u+3}, {RS}, v{u+3}
            v_lshl_add_u32 v{u+3}, v{u+1}, 3, v{u+3}
            v_add_u32 v{V_LA+ii}, s{T0}, v{u+3}
            """)
        raw(f"""
        v_cmp_eq_u32 vcc, v{G_}, v{R_}
        v_mul_u32_u24 v{u}, {HS}, v{G_}
        v_mul_u32_u24 v{u+1}, {RS}, v{C_}
        v_add_u32 v{u}, v{u}, v{u+1}
        v_add_u32 v{u}, {RBASE}, v{u}
        v_mov_b32 v{u+1}, {RBASE+7680}
        v_cndmask_b32 v{V_FR2}, v{u+1}, v{u}, vcc
        """)
        if A:
            raw(f"""
            v_mov_b32 v{t+36}, 0
            v_mov_b32 v{t+37}, 0
            v_mov_b32 v{t+38}, 0
            v_mov_b32 v{t+39}, 0
            v_add_u32 v{TMP+100}, s{S_LR}, v{V_LIN}
            ds_write_b128 v{TMP+100}, {vq(t+36)} offset:13312
            v_mul_u32_u24 v{t+4}, {RW}, v{G_}
            v_mul_u32_u24 v{t+5}, 40, v{R_}
            v_add_u32 v{t+4}, v{t+4}, v{t+5}
            v_add_u32 v{t+4}, {RBASE+12288}, v{t+4}
            s_add_u32 s{T0}, s{S_LR}, 13312
            v_mov_b32 v{t+5}, s{T0}
            v_cmp_eq_u32 vcc, v{C_}, v{G_}
            v_cndmask_b32 v{V_FR}, v{t+5}, v{t+4}, vcc
            """)
            for tt in range(5):
                a = A_PHI + (tt * 3 + 2) * 4
                raw(f"v_accvgpr_write_b32 a{a+2}, 0\nv_accvgpr_write_b32 a{a+3}, 0")
        US, UA, UD = TMP + 40, TMP + 45, TMP + 80
        nA = o.get('nA', 0); prod = (not A) or nA > 0
        S_UOK = 92
        if prod:
            if o.get('umap', 1) == 0: umap = f"""s_add_u32 s{T1}, s{S_HG}, s{S_RB}
            s_and_b32 s{T1}, s{T1}, 1
            s_lshl_b32 s{T0}, s{S_W}, 1
            s_add_u32 s{T0}, s{T0}, s{T1}
            s_lshl_b32 s{T0}, s{T0}, 3
            s_add_u32 s{T0}, s{T0}, s{S_HG}
            s_lshl_b32 s{T0}, s{T0}, 3
            s_lshr_b32 s{T1}, s{S_RB}, 1
            s_add_u32 s{T0}, s{T0}, s{T1}
            s_add_u32 s{T0}, s{T0}, {0 if A else nA}
            s_cmp_lt_u32 s{T0}, {nA if A else 320}
            s_cselect_b32 s{S_UOK}, 1, 0"""
            elif o.get('umap', 1) == 1:
                umap = f"""s_lshr_b32 s{T1}, s{S_RB}, 2
                s_mul_i32 s{T0}, s{T1}, 3
                s_add_u32 s{T0}, s{T0}, s{S_W}
                s_sub_u32 s{T0}, s{T0}, 2
                s_cmp_eq_u32 s{T1}, 0
                s_cselect_b32 s{T0}, 0, s{T0}
                s_cselect_b32 s{T1}, 1, 3
                s_cmp_lt_u32 s{S_W}, s{T1}
                s_cselect_b32 s{S_UOK}, 1, 0
                s_lshl_b32 s{T0}, s{T0}, 5
                s_lshr_b32 s{T1}, s2, 3
                s_add_u32 s{T0}, s{T0}, s{T1}"""
            else:
                umap = f"""s_lshr_b32 s{T1}, s{S_RB}, 2
                s_sub_u32 s{T1}, s{T1}, 1
                s_add_u32 s{T2}, s{S_HG}, s{S_RB}
                s_and_b32 s{T2}, s{T2}, 1
                s_lshl_b32 s{T0}, s{S_W}, 1
                s_add_u32 s{T0}, s{T0}, s{T2}
                s_lshl_b32 s{T0}, s{T0}, 4
                s_lshr_b32 s{T2}, s2, 4
                s_add_u32 s{T0}, s{T0}, s{T2}
                s_mul_i32 s{T0}, s{T0}, 3
                s_add_u32 s{T0}, s{T0}, s{T1}
                s_cmp_lt_u32 s{T0}, 320
                s_cselect_b32 s{S_UOK}, 1, 0
                s_cmp_lt_u32 s{S_RB}, 4
                s_cselect_b32 s{S_UOK}, 0, s{S_UOK}"""
            iS0 = len(S)
            S.append((1, [x.strip() for x in f"""
            {umap}
            s_waitcnt lgkmcnt(0)
            s_cmp_lt_u32 s{T0}, 160
            s_cselect_b32 s{SWO}, s{K+6}, s{kwo}
            s_cselect_b32 s{SWO+1}, s{K+7}, s{kwo+1}
            s_cselect_b32 s{S_UTAG}, s{S_NONCE if A else S_UTAG}, s{S_NONCE}
            s_cselect_b32 s{T1}, 0, 160
            s_cselect_b32 s{S_UDST}, 0, 819200
            s_cselect_b32 s{S_UFL}, 0, 1024
            s_mov_b32 s{SWO+2}, 819200
            s_mov_b32 s{SWO+3}, 0x20000
            s_add_u32 s{S_UTAG}, s{S_UTAG}, 0x9e3779b1
            s_sub_u32 s{T0}, s{T0}, s{T1}
            s_and_b32 s{T1}, s{T0}, 1
            s_mul_i32 s{S_USRC}, s{T1}, 640
            s_mul_i32 s{T2}, s{T1}, 409600
            s_add_u32 s{S_UDST}, s{S_UDST}, s{T2}
            s_lshl_b32 s{T2}, s{T1}, 9
            s_add_u32 s{S_UFL}, s{S_UFL}, s{T2}
            s_lshr_b32 s{T1}, s{T0}, 1
            s_lshl_b32 s{T2}, s{T1}, 2
            s_add_u32 s{S_UFL}, s{S_UFL}, s{T2}
            s_add_u32 s{S_UFL}, s{S_UFL}, {WS_PF}
            s_and_b32 s{T1}, s{T1}, 3
            s_mul_i32 s{T2}, s{T1}, {20*1280}
            s_add_u32 s{S_USRC}, s{S_USRC}, s{T2}
            s_lshl_b32 s{T2}, s{T1}, 8
            s_add_u32 s{S_UDST}, s{S_UDST}, s{T2}
            s_lshr_b32 s{T1}, s{T0}, 3
            s_mul_i32 s{T2}, s{T1}, 5120
            s_add_u32 s{S_UDST}, s{S_UDST}, s{T2}
            s_add_u32 s{S_UDST}, s{S_UDST}, {WS_PK}
            s_lshr_b32 s{T2}, s{T1}, 1
            s_mul_i32 s{T2}, s{T2}, 80
            s_and_b32 s{T3}, s{T1}, 1
            s_lshl_b32 s{T3}, s{T3}, 3
            s_add_u32 s{T2}, s{T2}, s{T3}
            s_mul_i32 s{T3}, s{T1}, 160
            s_sub_u32 s{T3}, s{T3}, {16*160 - 16}
            s_cmp_ge_u32 s{T1}, 16
            s_cselect_b32 s{T2}, s{T3}, s{T2}
            s_cselect_b32 s{T3}, 1, 0
            s_mul_i32 s{T2}, s{T2}, 1280
            s_add_u32 s{S_USRC}, s{S_USRC}, s{T2}
            s_mul_i32 s{T1}, s{T3}, {76*1280}
            s_add_u32 s{T2}, s{S_LW}, {RING + 4*SLOT}
            """.split('\n') if x.strip()]))
            for j in range(5):
                raw(f"""
                v_lshrrev_b32 v{t+4}, 2, v{RH+5*j+4}
                v_mul_u32_u24 v{t+5}, 640, v{t+4}
                v_lshrrev_b32 v{t+4}, 2, v{t+4}
                v_mul_u32_u24 v{t+4}, s{T1}, v{t+4}
                v_add3_u32 v{US+j}, v{t+4}, v{t+5}, v{V_LIN}
                """)
            raw(f"v_add_u32 v{US+4}, 4096, v{US+4}")
            iS1 = len(S)
            raw(f"""
            v_mul_u32_u24 v{t+7}, 640, v{R_}
            v_mul_u32_u24 v{t+8}, 40, v{C_}
            v_add3_u32 v{t+7}, v{t+7}, v{t+8}, s{T2}
            """)
            for j in range(5):
                raw(f"""
                v_add_u32 v{t+4}, {4*j}, v{G_}
                v_mul_u32_u24 v{t+5}, 13108, v{t+4}
                v_lshrrev_b32 v{t+5}, 16, v{t+5}
                v_mul_u32_u24 v{t+6}, 120, v{t+5}
                v_lshl_add_u32 v{t+6}, v{t+4}, 3, v{t+6}
                v_add_u32 v{t+6}, v{t+6}, v{t+7}
                v_and_b32 v{t+8}, s{T3}, v{t+5}
                v_mul_u32_u24 v{t+8}, 2560, v{t+8}
                v_add_u32 v{UA+2*j}, v{t+6}, v{t+8}
                v_sub_u32 v{t+6}, v{t+6}, v{t+8}
                v_add_u32 v{UA+2*j+1}, 2560, v{t+6}
                v_mul_u32_u24 v{t+5}, {102400 - 5120}, v{t+5}
                v_lshl_add_u32 v{t+5}, v{t+4}, 10, v{t+5}
                v_lshl_add_u32 v{UD+j}, v{I_}, 4, v{t+5}
                """)
            mark = {}
            def cond(name, lines):
                p.untracked([f"s_cmp_eq_u32 s{S_UOK}, 0", f"s_cbranch_scc1 {name}{self.sfx}"] + lines + [f"{name}{self.sfx}:"])
                mark[name] = p.nvm
            L = [f"s_add_u32 m0, s{S_LW}, {RING + 4*SLOT}"]
            for j in range(5):
                off = f"offset:{j*1024} " if 0 < j < 4 else ""
                L.append(f"buffer_load_dwordx4 v{US+j}, {srd(SWO)}, s{S_USRC} offen {off}lds")
                if j == 3: L.append(f"s_add_u32 m0, s{S_LW}, {RING + 4*SLOT + 4096}")
            un = [[lambda L=L: cond("L_u1", L)]]
            if o.get('uissue', 0) == 0: self.q(10**6 + 77, un)
            if o.get('uissue', 0) == -1: S = S[:4] + S[iS0:iS1] + [(0, un[0])] + S[iS1:] + S[4:iS0]
        self.run(S, every=o.get('proev', 60))
        self.stamp('p5')
        if o.get('uissue', 0) == 0: self.release(77)
        def urd():
            assert not any(x.tag == ('W', 4) for x in p.ins)
            cond("L_u2r", [f"s_waitcnt vmcnt({p.nvm - mark['L_u1']}) lgkmcnt(0)"] +
                [f"ds_read_b64_tr_b16 {vq(TMP+60+2*k, 2)}, v{UA+k}" for k in range(10)] + ["s_waitcnt lgkmcnt(0)"])
        def ust(j): cond("L_u2" + "abcd "[j].strip(), [f"buffer_store_dwordx4 {vq(TMP+60+4*j)}, v{UD+j}, {srd(SWS)}, s{S_UDST} offen sc1"])
        if o.get('hops', 1):
            p("s_mov_b64 exec, 0")
            for w_ in range(3): p(f"s_cmp_eq_u32 s{S_W}, {w_}"); p(f"s_cbranch_scc1 L_hop{w_}{self.sfx}")
            p(f"s_branch L_hop3{self.sfx}")
            p(f"L_hopret{self.sfx}:")
            p("s_mov_b64 exec, -1")
        if prod and o.get('upos', (0,))[0] < 0:
            while len(self.dq) > -o['upos'][0] - 1 and self.tick(): pass
            urd()
            for j in range(5): ust(j)
        while len(self.dq) > o.get('prokeep', 0) and self.tick(): pass
        p.raw(f"""
        s_getreg_b32 s{T0}, hwreg(HW_REG_XCC_ID, 0, 4)
        s_waitcnt lgkmcnt(0)
        s_add_u32 s{S_NONCE}, s{S_NONCE}, 0x9e3779b1
        s_lshl_b32 s{T0}, s{T0}, 28
        s_xor_b32 s{S_XCCV}, s{T0}, s{S_NONCE}
        v_mov_b32 v{V_NONCE}, s{S_NONCE}
        v_and_b32 v{V_VW}, 1, v{V_LANE}
        v_lshlrev_b32 v{V_VW}, 4, v{V_VW}
        v_lshrrev_b32 v{V_VW}, v{V_VW}, v{V_NONCE}
        v_mov_b32 v{V_KA0}, s{S_XCCV}
        s_add_u32 s{S_XA}, s{S_FLAG}, {WS_XCC - WS_FLAG}
        """)
        xst = [(f"buffer_store_dword v{V_KA0}, v{V_FOWN}, {srd(SWS)}, s{S_XA} offen sc1", 'xcc')]
        x1, x2, x3 = o.get('xpos', (-1, 58, 88))
        if x1 < 0: self.put(xst)
        self.stamp()
        p(f"s_branch L_main{self.sfx}")
        p(".p2align 12")
        p(f"L_main{self.sfx}:")
        xb = lambda ks, rt: aq((ks * 2 + rt) * 4)
        xbp = lambda ps: (lambda ks, rt: xb(4 * (4 - ks // 4) + ks % 4, rt)) if ps in o.get('rev', [1, 2]) else xb
        for pu in range(0, 7):
            if (pu + 3) % 2 == 0: self.q(0, self.dma_w((pu + 3) // 2))
            self.q(10 * pu, self.dma_x(pu + 3))
            if prod and o.get('uissue', 0) == pu + 1: self.q(0, un)
        for G in range(5, 10): self.q(10**6 + 1 if G % 5 >= 3 else 20 * (G - 3) - 4, self.dma_w(G))
        for G in range(10, 13): self.q(20 * (G - 3) - 3, self.dma_w(G))
        for G in range(13, 20): self.q(10**6 + G, self.dma_w(G))
        hooks = {}
        for pu in range(1, 10):
            hooks[10 * pu - 5] = [lambda pu=pu: self.xread(pu, 0), lambda pu=pu: self.xread(pu, 1)]
            hooks[10 * pu - 4] = [lambda pu=pu: self.xread(pu, 2), lambda pu=pu: self.xread(pu, 3)]
        if A:
            rd = [(tt, u_, hf) for tt in range(5) for u_ in range(3) for hf in range(2 if u_ < 2 else 1)]
            w = TMP + 96; u2 = TMP + 102
            sc = [lambda: p.wait(vm=['wphi'])]
            for j in range(4):
                sc += [f"v_lshlrev_b32 v{u2}, 16, v{w+j}", f"v_and_b32 v{u2+1}, 0xffff0000, v{w+j}", f"v_mul_f32 v{u2}, s{S_L2E}, v{u2}",
                       f"v_mul_f32 v{u2+1}, s{S_L2E}, v{u2+1}", f"v_cvt_pk_bf16_f32 v{w+j}, v{u2}, v{u2+1}"]
            hooks[8] = sc + [(f"ds_write_b128 v{TMP+100}, {vq(w)} offset:12288", 'phw')]
            hooks[14] = [lambda: p.wait(lg=['phw'])]
            slots = [n for n in range(21, 90) if n % 10 in (0, 1, 2, 3)][:25]
            for k, n in enumerate(slots):
                hooks[n] = [(f"ds_read_b64_tr_b16 a[{A_PHI + (tt*3+u_)*4 + 2*hf}:{A_PHI + (tt*3+u_)*4 + 2*hf + 1}], v{V_FR} offset:{(8*u_+4*hf)*40 + 8*tt}", 'phi')
                            for tt, u_, hf in rd[k:k+1]]
        late3 = {}
        if prod:
            UR = TMP + 60
            u1, u2_, u3 = o.get('upos', (18, 18, 62))
            if u1 >= 0: hooks.setdefault(u1, []).append(urd)
            for j in range(5):
                uj = u2_ + o.get('ustep', 0) * j
                if uj >= 0: (hooks if uj < 100 else late3).setdefault(uj % 100, []).append(lambda j=j: ust(j))
            (hooks if u3 < 100 else late3).setdefault(u3 % 100, []).append(lambda: cond("L_u3", [f"s_waitcnt vmcnt({p.nvm - mark['L_u2']})", f"v_mov_b32 v{V_DUMP}, s{S_UTAG}", "s_mov_b64 exec, 1",
                         f"buffer_store_dword v{V_DUMP}, v{V_LIN}, {srd(SWS)}, s{S_UFL} offen sc1", "s_mov_b64 exec, -1"]))
        KBV = [V_KB, 17, 18, 19]; KAV = [V_KA1, 20, 21, 22]
        if o.get('kvown', 0):
            for kk in (1, 2, 3, 0):
                hooks.setdefault(89 + 2 * ((kk + 3) % 4), []).extend([f"s_add_u32 s{T2}, s{S_W}, {kk}", f"s_and_b32 s{T2}, s{T2}, 3", f"s_mul_i32 s{T2}, s{T2}, {RW}"])
                hooks.setdefault(90 + 2 * ((kk + 3) % 4), []).extend([f"v_add_u32 v{KBV[kk]}, s{T2}, v{V_KB}", f"v_add_u32 v{KAV[kk]}, s{T2}, v{V_KA1}"])
        XV = TMP + 92
        iss, chk = self.checked("L_xc", [f"buffer_load_dword v{XV}, v{V_F8}, {srd(SWS)}, s{S_XA} offen sc1"],
                                [f"v_xor_b32 v{XV+1}, s{S_NONCE}, v{XV}", f"v_lshlrev_b32 v{XV+1}, 4, v{XV+1}", f"v_cmp_ne_u32 vcc, 0, v{XV+1}"], 'xl')
        xv, xq = {}, {}
        def xh(pos, L): [hooks, xv, xq][pos // 100].setdefault(pos % 100, []).extend(L)
        if x1 >= 0: xh(x1, xst)
        xh(x2, iss)
        c_ = [x for _, x in chk]
        xh(x3, c_[:3]); xh(x3 + 1, c_[3:4]); xh(x3 + 2, c_[4:] + [f"v_cmp_ne_u32 vcc, s{S_XCCV}, v{XV}"])
        xh(x3 + 3, [f"s_mov_b32 s{S_FAST}, {1 if o.get('nofast') else 'vcc_lo'}", f"s_add_u32 s{T0}, s{SWS}, {WS_O}", f"s_addc_u32 s{T1}, s{SWS+1}, 0"])
        xh(x3 + 4, [f"s_cmp_eq_u32 s{S_FAST}, 0", f"s_cselect_b32 s{SO}, s{SOUT}, s{T0}", f"s_cselect_b32 s{SO+1}, s{SOUT+1}, s{T1}"])
        xh(x3 + 5, [f"s_mov_b32 s{SO+2}, 5242880", f"s_mov_b32 s{SO+3}, 0x20000"])
        self.group_sync(0)
        for k in range(4): self.xread(0, k)
        self.prime(0, sync=False)
        kp = o.get('kpace', 3)
        k1p = {0: lambda n: 1 if n % 3 != 2 else 0, 1: lambda n: 1, 2: lambda n: 2 if n % 10 < 2 else (1 if n % 10 < 5 else 0), 3: lambda n: 1 if n % 4 != 3 else 0}[o.get('k1', 0)]
        E0, E1, M0_, M1_ = TMP, TMP + 40, TMP + 80, TMP + 86
        x0, x1 = acc(ACC_K, 0, 0), acc(ACC_K, 0, 1)
        def early(ps, P0, P1):
            tm = o.get('tm', (0, 0, 0))[ps]
            L = [(80, c, x) for c, x in P0['zero'] + P1['zero']]
            for t_ in range(5):
                r = 100 - 5 * tm + tm * (t_ + 1) + 1 if tm else 95 + t_ + 2
                L += [(r, c, x) for c, x in P0['cvt'][2*t_:2*t_+2] + P1['cvt'][2*t_:2*t_+2]]
            return deque(L)
        def split(late, P0):
            c0 = {x for _, x in P0['cvt'] + P0['zero']}
            return [(c, x) for _, c, x in late if x in c0], [(c, x) for _, c, x in late if x not in c0]
        lateK = None
        if A:
            P0 = self.phiA_parts(x0, E0, M0_, "L_k0", False); P1 = self.phiA_parts(x1, E1, M1_, "L_k1", False)
            lateK = early(0, P0, P1)
        self.gemm_pass(0, ACC_K, xb, hooks=hooks, last=True, late=lateK, pace=lambda n: k1p(n) if n < o.get('ksw', 69) else (1 if n % kp == 0 else 0))
        self.stamp()
        E0, E1, M0_, M1_ = TMP, TMP + 40, TMP + 80, TMP + 86
        x0, x1 = acc(ACC_K, 0, 0), acc(ACC_K, 0, 1)
        tagset = [f"s_bfe_u32 s{S_TB+j}, s{S_NONCE}, {hex(0x80000 + 8*j)}" for j in range(4)] + [f"s_lshr_b32 s{S_NHI}, s{S_NONCE}, 16"]
        if o.get('amp'):
            p.raw(f"""
            s_load_dwordx2 s[88:89], s[0:1], 64
            s_not_b32 s{T0}, s98
            v_mov_b32 v{TMP+94}, 0
            v_mov_b32 v{TMP+95}, s{T0}
            s_lshr_b32 s{T0}, s2, 3
            s_or_b32 s{T0}, s{T0}, s{S_W}
            s_cmp_eq_u32 s{T0}, 0
            s_cselect_b32 s{T0}, 0, 64
            v_mov_b32 v{TMP+94}, s{T0}
            s_waitcnt lgkmcnt(0)
            s_cbranch_scc0 L_noat{self.sfx}
            s_mov_b64 exec, 1
            """)
            p.ins.append(__import__('emit').Ins(f"global_atomic_umax v{TMP+94}, v{TMP+95}, s[88:89] sc1"))
            p("s_mov_b64 exec, -1")
            p(f"L_noat{self.sfx}:")
        wr = lambda rt, x, n, o8: [(2, (f"ds_write_b64 v{V_PW}, {vq(x+2*j, 2)} offset:{rt*1920 + o8 + 8*j}", 'pw')) for j in range(n)]
        def mixw(out, w): return [y for j in range(len(w)) for y in out[2*j:2*j+2] + [w[j]]]
        burst = lambda L: [(0, [x for _, x in L])]
        dm = (2, lambda: self.tick())
        if A:
            r0, r1 = split(lateK, P0)
            def headA(P0, P1, r0, r1, extra0, extra1):
                L = list(r0); side = deque(r1); ne = 0; ex0 = dict(extra0); ex1 = dict(extra1)
                for k_, mfx in enumerate(P0['mf'] + P1['mf']):
                    if k_ == 15: L += list(side); side.clear()
                    L.append(mfx)
                    ex = ex0.get(k_) if k_ < 15 else ex1.get(k_ - 15)
                    if ex: L += ex
                    elif side:
                        for _ in range(2):
                            if side: L.append(side.popleft())
                    elif k_ >= 3 * ((ne % 20) // 4) + 2 + 3 and (ne < 28 or k_ >= 16): L.append(P0['exp'][ne]); ne += 1
                return L, ne
            pr = [(0, lambda: (self.group_sync(5), self.release(1)))]
            pr = pr + [(1, lambda n=n, hf=hf: self.wread(100 + n, hf)) for n in range(D - 1) for hf in range(2)]
            hx = o.get('hx', 30)
            L_, ne = headA(P0, P1, r0, r1, {0: [dm], 14: [dm]}, {7: [dm]})
            self.put([x for _, x in [dm] + L_])
            hm = o.get('hmore', 0)
            self.run(P0['exp'][ne:] + P1['exp'][:hm] + P0['norm'][:-10], every=hx)
            self.put([x for _, x in pr + P0['norm'][-10:]])
            def tailf(P, rt, x, e, m, sc, head_done):
                nb = P['norm'][:len(P['norm']) - sc]
                L = [] if head_done else burst(nb)
                w_ = wr(rt, x, 10, 0)
                for j in range(10):
                    for i in (2 * j, 2 * j + 1):
                        if i >= 20 - sc: L += [(1, f"v_mul_f32 v{e+2*i+h}, v{e+2*i+h}, v{m+4 if i < 10 else m+2}") for h in range(2)]
                    L += P['out'][2*j:2*j+2] + [w_[j]]
                return L
            sc0, sc1 = o.get('scal', (0, 0))
            fill = tailf(P0, 0, x0, E0, M0_, 0, True) + P1['exp'][hm:] + tailf(P1, 1, x1, E1, M1_, sc1, False)
            self.stamp('head')
        else:
            fill = []
            for rt, x, e in ((0, x0, E0), (1, x1, E1)):
                L = self.phiB(x, e, False)
                fill += L[:-10] + mixw(L[-10:], wr(rt, x, 5, 0))
            self.group_sync(5); self.release(1); self.prime(1, sync=False)
        hooks = {}
        hooks.update(late3)
        PFV = TMP + 94
        ipf, cpf_ = self.checked("L_pf", [f"buffer_load_dwordx2 {vq(PFV, 2)}, v{V_PF}, {srd(SWS)}, s{S_PFL} offen sc1"],
                                 [f"v_xor_b32 v{PFV}, s{S_NONCE}, v{PFV}", f"v_bitop3_b32 v{PFV}, v{PFV}, v{PFV+1}, s{S_NONCE} bitop3:0xf6", f"v_cmp_ne_u32 vcc, 0, v{PFV}"], 'pf')
        pfp = o.get('pfpos', 81)
        if pfp < 100: hooks.setdefault(pfp, []).extend(ipf)
        pre = ["s_mov_b32 exec_hi, 0xff", (f"buffer_load_dword v{V_DUMP}, v{V_L128}, {srd(SO)}, s{S_OP} offen sc1", 'pr'), "s_mov_b64 exec, 1",
               (f"buffer_load_dword v{V_DUMP}, v{V_F8}, {srd(SWS)}, s{S_FLAG} offen sc1", 'pr'), "s_mov_b64 exec, -1"]
        pre1 = []
        if o.get('pre1m') is not None:
            pre1 = ["s_mov_b32 exec_lo, 0xfff00000", "s_mov_b32 exec_hi, 0xff", pre[1], "s_mov_b64 exec, -1"]
            pre = ["s_mov_b64 exec, 0xfffff"] + pre[1:]
        prel = []
        if o.get('prem'):
            n_ = len(o['prem']); o['prepos'] = 2
            for k_, ps_ in enumerate(o['prem']):
                lo_, hi_ = 40 * k_ // n_, 40 * (k_ + 1) // n_
                mk = ((1 << hi_) - 1) ^ ((1 << lo_) - 1)
                L_ = [f"s_mov_b32 exec_lo, {hex(mk & 0xffffffff)}", f"s_mov_b32 exec_hi, {hex(mk >> 32)}", pre[1]] + (pre[2:4] if k_ == 0 else []) + ["s_mov_b64 exec, -1"]
                assert ps_ <= 0 or ps_ > x3 + 5
                if ps_ >= 200: xq.setdefault(ps_ - 200, []).extend(L_)
                elif ps_ >= 100: xv.setdefault(ps_ - 100, []).extend(L_)
                else: prel.append((ps_, L_))
        wp, pp_ = o.get('wopf', -1), o.get('prepos', 0)
        if 100 <= pp_ < 200: hooks.setdefault(pp_ - 100, []).extend(pre)
        vs = o.get('vsync', 0)
        if o.get('v13'): hooks.setdefault(78, []).extend(["s_barrier", lambda: self.release(13)])
        for k_, v_ in xv.items(): hooks.setdefault(k_, []).extend(v_)
        for k_, v_ in enumerate(tagset): hooks.setdefault(41 + k_, []).insert(0, v_)
        vp = o.get('vpace', 4)
        vset = set(range(0, 100, vp))
        if o.get('vsch'):
            vset = set(); n_ = 0
            for cnt_, st_ in o['vsch']:
                for _ in range(cnt_): vset.add(n_); n_ += st_
        VB = TMP
        tmv = o.get('tm', (0, 0, 0))[1]
        lateV = deque()
        for j in range(5):
            for rt in range(2):
                c = self.cvt20(acc(ACC_V, 0, rt), VB + 10 * rt)
                r = 100 - 5 * tmv + tmv * (j + 1) + 1 if tmv else 200
                lateV.extend([(r, 1, c[2*j][1]), (r, 1, c[2*j+1][1]), (r, 2, (f"ds_write_b64 v{V_PW}, {vq(VB+10*rt+2*j, 2)} offset:{rt*1920 + 80 + 8*j}", 'vw'))])
        self.gemm_pass(1, ACC_V, xbp(1), fill=fill, hooks=hooks, last=True, sync=True, late=lateV, frange=(0, o.get('vend', 100)), pace=lambda n: 1 if n in vset else 0)
        self.stamp()
        for k_, (_, _, x) in enumerate(lateV):
            self.put([x])
            if k_ == 14: self.tick()
        NT = 3 if A else 2
        FB = ACC_K
        KV = TMP + 64
        rds = deque()
        own = o.get('kvown', 0)
        def rd(reg, av, off, kk, j):
            for hf in range(2): rds.append((f"ds_read_b64_tr_b16 {vq(reg+2*hf, 2)}, v{av[kk] if own else av[0]} offset:{(0 if own else kk*RW) + hf*120 + off}", ('kv', kk, j)))
        for kk in range(4):
            b = FB + kk * 20
            rd(b, KBV, 80, kk, 'a')
            for nt in range(NT): rd(b + 8 + 4 * nt, KBV, 32 * nt, kk, nt)
            rd(b + 4, KAV, 112, kk, 'z')
        if own:
            p("s_waitcnt lgkmcnt(5)")
            for _ in range(2 * NT + 4): self.put([rds.popleft()])
        self.tick()
        gk = 11
        self.flush_dma(('W', gk)); p.wait(vm=[('W', gk)], lg=['vw', 'pw'])
        p("s_barrier")
        self.release(13); self.release(14)
        def more(k):
            while k > 0 and rds and len(p.lgq) < 15: self.put([rds.popleft()]); k -= 1
        if own: more(5); p.wait(lg=[('kv', 0, 'z')])
        more(o.get('kvi', 15)); self.tick()
        p(f"v_mov_b32 v{TMP+1}, 0xff")
        seq = [(kk, nt) for kk in range(4) for nt in range(NT)]
        ao = deque((kk, f"v_and_or_b32 v{FB+kk*20+4+j}, v{FB+kk*20+4+j}, v{V_KEEP}, v{V_ONE}") for kk in range(4) for j in range(4))
        p.wait(lg=[('kv',) + seq[0]])
        for i_, (kk, nt) in enumerate(seq):
            b = FB + kk * 20
            p(f"{MF} {vq(KV + nt*4)}, {vq(b)}, {vq(b+8+4*nt)}, {'0' if kk == 0 else vq(KV + nt*4)}")
            p.wait(lg=[('kv',) + seq[i_ + 1]] if i_ + 1 < len(seq) else '*')
            k_ = len(rds); more(o.get('kvr', 4))
            for _ in range(max(0, 3 - (k_ - len(rds)))):
                if ao and ('kv', ao[0][0], 'z') not in p.lgq and not any(x[1] == ('kv', ao[0][0], 'z') for x in rds): p(ao.popleft()[1])
        assert not rds
        while len(ao) > 4: p(ao.popleft()[1])
        lastm = 0x00ff00ff if A else 0x000f000f
        def pub(mt, nt):
            a = KV + (mt * 3 + nt) * 4
            L = [(1, f"v_bfi_b32 v{a+j}, v{TMP+1}, s{S_TB+j}, v{a+j}") for j in range(4)]
            va = [V_P1ST, V_P1M, V_P1M + 1, V_P1M + 2][2 * mt + (nt == NT - 1)]
            return L + [(2, (f"buffer_store_dwordx4 {vq(a)}, v{va}, {srd(SWS)}, s{S_P1ST} offen offset:{(4*mt*F + 16*nt)*16 if A else [1024*mt, 1536 + 256*mt][nt]} sc1", 'p1'))]
        self.stamp('kv3')
        mf = [(2, f"{MF} {vq(KV + (3+nt)*4)}, {vq(FB+kk*20+4)}, {vq(FB+kk*20+8+4*nt)}, {'0' if kk == 0 else vq(KV + (3+nt)*4)}") for nt in range(NT) for kk in range(4)]
        pr = [(1, lambda n=n, hf=hf: self.wread(200 + n, hf)) for n in range(D - 1) for hf in range(2)]
        self.put([x for _, x in self.weave(mf, [(1, x[1]) for x in ao] + [y for nt in range(NT) for y in pub(0, nt)] + pr)])
        qhead = [y for nt in range(NT) for y in pub(1, nt)]
        pb = o.get('pubb', 0)
        self.put([x for _, x in qhead[:pb]]); qhead = qhead[pb:]
        self.stamp()
        X = TMP + 8; CK = TMP + 2
        def tagcheck(mask):
            if mask == "0xff":
                L = [f"v_xor_b32 v{X+j}, s{S_TB+j%4}, v{X+j}" for j in range(4 * NI)] + [f"v_or_b32 v{CK}, v{X}, v{X+1}"]
                L += [f"v_or3_b32 v{CK}, v{CK}, v{X+j}, v{X+j+1}" for j in range(2, 4 * NI, 2)]
            else:
                L = [f"v_xor_b32 v{CK}, s{S_NONCE}, v{X}"] + [f"v_bitop3_b32 v{CK}, v{CK}, v{X+j}, s{S_NHI if j % 2 else S_NONCE} bitop3:0xf6" for j in range(1, 4 * NI)]
            return L + [f"v_and_b32 v{CK}, {mask}, v{CK}", f"v_cmp_ne_u32 vcc, 0, v{CK}"]
        lds_ = []
        for ii in range(NI):
            lds_ += [f"s_add_u32 s{T0}, s{S_P1LD}, {ii * (65536 // NI)}", f"buffer_load_dwordx4 {vq(X+4*ii)}, v{V_P1LD}, {srd(SWS)}, s{T0} offen sc1"]
        adds = [f"v_add_f32 v{X+j}, v{X+j}, v{X+4*ii+j}" for ii in range(1, NI) for j in range(4)]
        if o.get('h1pipe'):
            iss, chk = self.checked("L_h1", lds_, tagcheck("0xff"), 'h1', redo=adds)
            iss = [(x[0], ('h1', k_ // 2)) if isinstance(x, tuple) else x for k_, x in enumerate(iss)]
            c2 = []
            for ii in range(NI):
                c2 += [(0, lambda ii=ii: p.wait(vm=[('h1', ii)]))] + [(1, f"v_xor_b32 v{X+4*ii+j}, s{S_TB+j}, v{X+4*ii+j}") for j in range(4)]
                c2 += [(1, f"v_or_b32 v{CK}, v{X}, v{X+1}" if ii == 0 else f"v_or3_b32 v{CK}, v{CK}, v{X+4*ii}, v{X+4*ii+1}"), (1, f"v_or3_b32 v{CK}, v{CK}, v{X+4*ii+2}, v{X+4*ii+3}")]
                if ii == NI - 1: c2 += chk[-3:-1]
                if ii: c2 += [(1, y) for y in adds[4*ii-4:4*ii]]
            chk = c2 + chk[-1:]; red = []
        else:
            iss, chk = self.checked("L_h1", lds_, tagcheck("0xff"), 'h1')
            red = list(adds)
        red += [f"v_permlane32_swap_b32 v{X}, v{X+2}", f"v_permlane32_swap_b32 v{X+1}, v{X+3}", f"v_add_f32 v{X}, v{X}, v{X+2}", f"v_add_f32 v{X+1}, v{X+1}, v{X+3}",
                f"v_mov_b32 v{CK}, 0xffff", f"v_permlane16_swap_b32 v{X}, v{X+1}", f"v_add_f32 v{X}, v{X}, v{X+1}"]
        if not A: red.append(f"v_add_f32_dpp v{X}, v{X}, v{X} row_ror:8 row_mask:0xf bank_mask:0xf")
        red += [f"v_cvt_pk_bf16_f32 v{X}, v{X}, v{X}", f"v_bfi_b32 v{X}, v{CK}, v{V_VW}, v{X}"]
        st = (f"buffer_store_dword v{X}, v{V_P2ST}, {srd(SWS)}, s{S_P2ST} offen sc1", 'p2')
        sts = [st]
        for _ in range((1 << o.get('p2log', 2)) - 1): sts += [f"s_add_u32 s{S_P2ST}, s{S_P2ST}, {1 << 18}", st]
        if A and o.get('h1pipe'):
            red += [sts[0:1]] + [sts[k_:k_+2] for k_ in range(1, len(sts), 2)]
        else: red.append(sts if A else ["s_mov_b32 exec_lo, 0x00ff00ff", "s_mov_b32 exec_hi, 0x00ff00ff"] + sts + ["s_mov_b64 exec, -1"])
        n1, n2 = o.get('h1', (62, 84))
        hooks = {n1 + k: iss[2*k:2*k+2] for k in range(NI)}
        if pfp >= 100: hooks.setdefault(pfp - 100, []).extend(ipf)
        for k_, v_ in xq.items(): hooks.setdefault(k_, []).extend(v_)
        c_ = [x for _, x in cpf_]
        pc = o.get('pfchk', 13)
        hooks.setdefault(pc, []).extend(c_[:3]); hooks.setdefault(pc + 1, []).extend(c_[3:4]); hooks.setdefault(pc + 3, []).extend(c_[4:] + [lambda: setattr(self, 'pfok', True)])
        if 200 <= pp_ < 300: hooks.setdefault(pp_ - 200, []).extend(pre)
        qh = deque(qhead)
        for n in range(20): hooks.setdefault(n, []).append(lambda: self.gap(qh, 2))
        qb_ = o.get('qb', (30, 53, 66, 80))
        assert 18 <= qb_[0] <= 34 and 38 <= qb_[1] <= 54 and 58 <= qb_[2] <= 74 and 78 <= qb_[3] <= 98
        busy = sorted([(pc, pc + 3), (n1, n1 + NI), (n2, min(100, n2 + o.get('h1len', 16)) + 1)] + ([(x3 - 200, x3 - 195)] if x3 >= 200 else []))
        assert all(a_[1] < b_[0] for a_, b_ in zip(busy, busy[1:])), busy
        assert pfp - 100 < pc and x2 < x3 and (pp_ < 100 or pp_ > x3 + 5)
        for fr_, pubg, rel in [(qb_[0], 12, [15]), (qb_[1], 13, [16]), (qb_[2], 14, [17]), (qb_[3], 14, [18])]:
            hooks.setdefault(fr_, []).extend([lambda g=pubg: self.group_sync(g)] + [lambda r=r: self.release(r) for r in rel])
        lateQ = None
        if A:
            P0 = self.phiA_parts(x0, E0, M0_, "L_q0", True); P1 = self.phiA_parts(x1, E1, M1_, "L_q1", True)
            lateQ = early(2, P0, P1)
        self.gemm_pass(2, ACC_K, xbp(2), late=lateQ, fill=chk + [(2 if isinstance(x, list) and o.get('h1pipe') else 1, x) for x in red], hooks=hooks, last=True, sync=False, frange=(n2, min(100, n2 + o.get('h1len', 16))),
                       pace=lambda n: 1 if (n >= 9 and n % (o.get('qpace', 3) if n < o.get('qsw', 42) else o.get('qpace2', 3)) == 0 and not n1 <= n < n1 + NI) else 0)
        assert not qh
        p("s_barrier")
        [self.release(r) for r in range(15, 20)]
        self.stamp()
        X = TMP + 96; CK = TMP + 92
        lds_ = [f"buffer_load_dwordx4 {vq(X+4*ii)}, v{V_LIN if ii < NI-1 else V_GAL}, {srd(SWS)}, s{S_P2LD} offen offset:{1024*ii if ii < NI-1 else 0} sc1" for ii in range(NI)]
        PB = TMP + 8
        img = [y for ii in range(NI) for y in (f"v_perm_b32 v{PB+2*ii}, v{X+4*ii+1}, v{X+4*ii}, s{S_PERM}", f"v_perm_b32 v{PB+2*ii+1}, v{X+4*ii+3}, v{X+4*ii+2}, s{S_PERM}",
                                               f"ds_write_b64 v{V_LA+ii}, {vq(PB+2*ii, 2)}")]
        iss, chk = self.checked("L_h2", lds_, tagcheck("0xffff"), 'h2', redo=img)
        zw = [f"v_mov_b32 v{CK}, 0", f"v_mov_b32 v{CK+1}, 0", f"ds_write_b64 v{V_ZA}, {vq(CK, 2)}"]
        if not A: self.put(zw)
        for k_ in range(o.get('dirty', 0)):
            p(f"s_add_u32 s{T0}, s{S_OP}, {(9 << 20) + (k_ // 5) * (6 << 20) + (k_ % 5) * 1024}")
            p(f"buffer_store_dwordx4 v[2:5], v{V_LIN}, {srd(SWS)}, s{T0} offen {o.get('dirtyf', '')}")
        if o.get('prepos', 0) == 1: self.put(pre)
        if not A:
            for tt in range(6): p(f"v_accvgpr_write_b32 a{40+4*(3*tt+2)+2}, 0"); p(f"v_accvgpr_write_b32 a{40+4*(3*tt+2)+3}, 0")
        if A:
            r0, r1 = split(lateQ, P0)
            L_, ne = headA(P0, P1, r0, r1, {0: [dm], 2: [(0, zw)]} if not r1 else {}, {})
            L = L_ + P0['exp'][ne:] + P0['norm'] + P0['out'] + P1['exp'] + P1['norm'] + P1['out']
            if r1: self.put(zw)
        else:
            L = []
            for x, e in ((x0, E0), (x1, E1)):
                L += self.phiB(x, e, True) + [(1, f"v_mov_b32 v{x+10}, 0"), (1, f"v_mov_b32 v{x+11}, 0")]
        d1_, d2_ = o.get('oshift', (0, 0))
        Ld2 = L[len(L) - d2_:]; L = L[:len(L) - d2_]
        Ld1 = L[len(L) - d1_:]; L = L[:len(L) - d1_]
        tot = sum(c for c, _ in L)
        ev = [(tot - o.get('h2lead', 60), iss)]
        if o.get('prepos', 0) == 0 and o.get('prelead', 0) >= 0: ev.append((tot - o.get('prelead', o.get('h2lead', 60)) + 0.5, pre))
        if (o.get('pre1m') or 0) < -1: ev.append((tot + o['pre1m'] + 0.5, pre1))
        for ps_, L_ in prel: ev.append((tot + ps_ + 0.5, L_))
        L2 = []; c = 0; ev.sort(key=lambda e_: e_[0])
        for it_ in L + [(0, [])]:
            while ev and c >= ev[0][0] - (0.5 if it_[0] == 0 else 0): L2.append((0, ev.pop(0)[1]))
            L2.append(it_); c += it_[0]
        assert not ev
        self.run(L2, every=o.get('qev', 44))
        self.flush_dma(('W', 17))
        self.stamp()
        self.put([chk[0][1]] + img + [x for _, x in chk[1:]])
        if o.get('prepos', 0) == 0 and o.get('prelead', 0) < 0: self.put(pre)
        if o.get('pre1m') == -1: self.put(pre1)
        self.put([x for _, x in Ld1])
        p(f"s_cmp_eq_u32 s{S_FAST}, 0")
        p.wait(vm=[('W', 17)], lg='*')
        p("s_barrier")
        self.stamp()
        assert not self.dq or True
        import copy
        if o.get('stamps'): p(f"s_cmp_eq_u32 s{S_FAST}, 0")
        p(f"s_cbranch_scc0 L_tail{self.sfx}s")
        env = dict(RS=RS, M0_=M0_, M1_=M1_, Ld2=Ld2, pre1=pre1)
        sv = (self.p, self.sfx, self.nst, getattr(self, 'cs', 0), deque(self.dq))
        self.p = Prog(); self.p.vmq = list(p.vmq); self.p.lgq = list(p.lgq); self.sfx += 's'
        self.p(f"L_tail{self.sfx}:")
        self.tail(False, **env)
        self.ool.append(self.p.finalize())
        self.p, self.sfx, self.nst, self.cs, self.dq = sv
        self.tail(True, **env)
        return p.finalize() + "".join(self.ool)
    def tail(self, fast, RS, M0_, M1_, Ld2, pre1):
        p = self.p; A = self.A; o = self.o; br = 0 if A else 1
        def more(k):
            while k > 0 and rds and len(p.lgq) < 15: self.put([rds.popleft()]); k -= 1
        OA = ACC_V
        NU = 5 if A else 3
        SP = TMP + 112
        OB = TMP + 64
        LO = TMP + 80
        fr = [(tt, u_) for tt in (5, 0, 1, 2, 3, 4) for u_ in range(NU)]
        AO = 40
        rds = deque()
        for n, (tt, u_) in enumerate(fr):
            if not A and u_ == 2: rds.append((f"ds_read_b64 {aq(AO+4*n, 2)}, v{V_FR2} offset:{4*tt*RS + 16*u_}", ('of', n)))
            else: rds.append((f"ds_read_b128 {aq(AO+4*n)}, v{V_FR2} offset:{4*tt*RS + 16*u_}", ('of', n)))
        more(10)
        if A: p(f"v_mov_b32 v{SP}, v{M0_}"); p(f"v_mov_b32 v{SP+1}, v{M1_}")
        self.put([x for _, x in Ld2])
        def ost(txt, tag='o'):
            p(txt + ("" if fast else " sc1"), tag)
        def flag(k): ost(f"buffer_store_dword v{V_NONCE}, v{V_FOWN}, {srd(SWS)}, s{S_FLAG} offen offset:{32*k}", 'fl')
        def poll(k, name):
            iss, chk = self.checked(name, [f"buffer_load_dword v{V_DUMP}, v{V_F8}, {srd(SWS)}, s{S_FLAG} offen offset:{32*k} sc1"], [f"v_cmp_ne_u32 vcc, s{S_NONCE}, v{V_DUMP}"], name)
            return iss, [x for _, x in chk]
        order = [(0, k) for k in range(5)] + [(1, k) for k in range(5)] + [(0, 5), (1, 5)]
        epi = deque()
        for z, (rt, k) in enumerate(order):
            dn = OA + (rt * 6 + 5) * 4
            b = OA + rt * 24
            rdy = (z + 1) * NU + o.get('rdy', 4)
            if k == 0:
                epi.append((rdy, 1, f"v_fmac_f32 v{dn}, {EPS}, v{SP+rt}" if A else f"v_add_f32 v{dn}, {EPS}, v{dn}")); epi.append((rdy, 2, f"v_rcp_f32 v{dn}, v{dn}"))
                continue
            tt = k - 1
            for r in range(4): epi.append((rdy, 1, f"v_mul_f32 v{b+4*tt+r}, v{b+4*tt+r}, v{dn}"))
            for h in range(2):
                i = 2 * tt + h
                d = OB + ((i // 4) * 2 + rt) * 4 + i % 4 if i < 8 else LO + 2 * rt + (i - 8)
                epi.append((rdy, 1, f"v_cvt_pk_bf16_f32 v{d}, v{b+2*i}, v{b+2*i+1}"))
            if tt in (1, 3):
                u_ = tt // 2
                epi.append((0, 2, lambda u_=u_, rt=rt: ost(f"buffer_store_dwordx4 {vq(OB+(u_*2+rt)*4)}, v{V_OO+rt*2+u_}, {srd(SO)}, s{S_OP} offen", ('S', rt))))
        epi.append((0, 2, lambda: ost(f"buffer_store_dwordx4 {vq(LO)}, v{V_OO+4}, {srd(SO)}, s{S_OP} offen", ('S', 1))))
        TM_ = o.get('tmaj', 3); LD = o.get('lead', 8); DF = o.get('df', 11); A_RING = A_PHI
        items = [(P, t_, (0, 1)) for P in range(2) for t_ in range(5)] + [(P, t_, (0,)) for P in range(2, 2 + LD) for t_ in range(5)] + \
                [(P, t_, (0, 1)) for P in range(2 + LD, 20) for t_ in range(5)] + [(P, t_, (1,)) for P in range(2, 2 + LD - TM_) for t_ in range(5)] + \
                [(P, t_, (1,)) for t_ in range(5) for P in range(2 + LD - TM_, 2 + LD)]
        def fread(i, hf):
            P, t_, _ = items[i]
            if True:
                if hf == 0:
                    off = RING + P * 5120 + 1024 * t_; hi = off >= 51200; s_ = A_RING + (i % DF) * 4
                    p(f"ds_read_b128 a[{s_}:{s_+3}], v{V_LINH if hi else V_LIN} offset:{off - 51200*hi}", ('FF', i))
                return
            off = RING + (P // 4) * SLOT + (P % 4) * 5120 + hf * 2560 + 8 * t_
            hi = off >= 51200; s_ = A_RING + (i % DF) * 4 + 2 * hf
            p(f"ds_read_b64_tr_b16 a[{s_}:{s_+1}], v{V_WT + hi} offset:{off - 51200*hi}", ('FF', i))
        pr = deque((i, 0) for i in range(DF - 1))
        m = 0; mf0 = o.get('mf0', 54 if A else 36); seen = set()
        for rt, k in order:
            for u_ in range(NU):
                n = k * NU + u_; tt = fr[n][0]
                a = OA + (rt * 6 + tt) * 4
                if m == 0: p.wait(lg=[('of', 0)])
                p(f"{MF} {vq(a)}, {aq(AO+4*n)}, {vq(ACC_K+20*rt+4*u_)}, {'0' if u_ == 0 else vq(a)}")
                m += 1
                if n + 1 < len(fr): p.wait(lg=[('of', n + 1)])
                bud = 2 if A else 3
                if m == mf0:
                    assert sum(1 for x in p.ins if x.tag == ('S', 0)) == 2
                    p.wait(vm=[('S', 0)]); flag(0); bud -= 2
                elif m == o.get('pre1m'): self.put(pre1); bud -= 2
                elif rds: more(1); bud -= 1 if not (epi and epi[0][0] <= m and epi[0][1] == 2) else 0
                elif self.dq and m % o.get('opace', 8) == 0: self.tick(); bud -= 2
                elif pr and not (epi and epi[0][0] <= m): fread(*pr.popleft()); bud -= 1
                while epi and epi[0][0] <= m and epi[0][1] <= bud:
                    _, c, x = epi.popleft(); bud -= c
                    self.put([x])
                    if callable(x): break
        while pr: fread(*pr.popleft())
        while len(epi) > 7: self.put([epi.popleft()[2]])
        while self.tick(): pass
        self.stamp()
        def ob(ks, rt):
            if ks < 2: return vq(OB + (ks * 2 + rt) * 4)
            return aq((ks * 2 + rt) * 4) if ks < 16 else vq(LO + (2 * (ks - 16) + rt) * 4)
        ofl = o.get('ofl', 'sc1') if fast else 'sc1'
        def ld(P, rt):
            if P < 16: return [(f"buffer_load_dwordx4 {aq((P*2+rt)*4)}, v{V_OO+rt*2+P%2}, {srd(SO)}, s{S_OP + P//2} offen {ofl}", ('O', P, rt))]
            return [(f"buffer_load_dwordx4 {vq(LO+(2*(P-16)+rt)*4)}, v{V_OO+4}, {srd(SO)}, s{S_OP + 2*(P-16) + rt} offen {ofl}", ('O', P, rt))]
        i0, c0 = poll(0, "L_f0"); i1, c1 = poll(1, "L_f1"); i2, c2 = poll(2, "L_d0"); i3, c3 = poll(3, "L_d1")
        L0x = min(16, 2 + LD + o.get('xlead', 0))
        if o.get('nod'):
            if '0' in o['nod']: i2 = []; c2 = [[], [], c2[2][1:]]
            if '1' in o['nod']: i3 = []; c3 = [[], [], c3[2][1:]]
        lead = [ld(P, 0) for P in range(2, L0x)]
        rest = [ld(P, rt) for P in range(2 + LD, 20) for rt in range(2) if (P, rt) != (16, 0) and not (rt == 0 and P < L0x)] + [ld(P, 1) for P in range(2, 2 + LD)]
        def handshake():
            p.wait(vm=[('S', 1), ('W', 18), ('W', 19)])
            flag(1)
            self.put(c0)
            self.stamp()
            self.q(0, lead); self.q(10**6 + 50, rest)
            for k_ in range(o.get('oprime', 7)):
                self.tick()
                if k_ == 3: p("s_barrier")
                if k_ == 3 and o.get('p1it', -1) < 0: self.put(i1)
            p.wait(vm=[('O', 2, 0)])
        E0 = len(items) - 5 * LD
        NI_ = len(items)
        def outp(rt):
            b = TMP + 8
            c = self.cvt20(acc(ACC_K, 0, rt), b)
            L = []
            for j in range(5): L += [c[2*j][1], c[2*j+1][1], (f"ds_write_b64 v{V_OW}, {vq(b+2*j, 2)} offset:{rt*16*OUTS + 8*j}", 'ow')]
            L += [(f"ds_read_b128 {vq(TMP+24+4*j)}, v{V_ORD+j} offset:{rt*16*OUTS}", ('or', j)) for j in range(3)]
            S_ = [(f"buffer_store_dwordx4 {vq(TMP+24+4*j)}, v{V_OG+j}, {srd(SOUT)}, s{S_OUT} offen", 'out') for j in range(3)]
            return L, S_
        vw, lw, sc_, vec = {}, {}, {}, {}
        add = lambda d, i, L: d.setdefault(i, []).extend(L)
        def check(i, c, tag, gapn):
            add(vw, i, [tag]); add(vec, i, [c[1]]); add(sc_, i + gapn, [c[2]])
        ep = [x[2] for x in epi]
        add(vec, 1, ep[:3]); add(vec, 2, ep[3:6]); add(vec, 3, ep[6:])
        add(vec, o.get('p0pos', 4), i0)
        add(vec, 9, [handshake])
        if o.get('p1it', -1) >= 0: add(vec, 10 + o.get('p1it', -1), i1)
        ci = 10 + o.get('c1pos', 5); check(ci, c1, "L_f1", 2); add(sc_, ci + 2, [lambda: self.release(50)])
        for i in range(15, NI_ - 5 * TM_ + 1, 5):
            if i == NI_: break
            Pn, _, rn = items[i]
            tags = [('O', Pn, rt) for rt in rn]
            if i == NI_ - 5 * TM_: tags = [('O', 1 + LD, 1)]
            if Pn >= 16:
                a = LO + 2 * (Pn - 16) * 4
                add(vw, i - 2, tags); add(vec, i - 2, [f"v_swap_b32 v{a+2}, v{a+4}", f"v_swap_b32 v{a+3}, v{a+5}"])
            else: add(vw, i - 1, tags)
        nd0 = E0 - o.get('d0', 8); add(vw, nd0, [('O', 19, 0), ('O', 19, 1)]); add(vec, nd0, [lambda: flag(2)])
        add(vec, E0 + o.get('d0p', 0), i2)
        L0, S0 = outp(0)
        for j, x in enumerate(L0): add(vec, E0 + 2 + j, [x])
        nd1 = NI_ - o.get('d1', 24); (add(vw, nd1, [('O', 1 + LD, 1)]), add(vec, nd1, [lambda: flag(3)])) if '1' not in o.get('nod', '') else None
        check(E0 + 22, c2, "L_d0", 2)
        for j, x in enumerate(S0): add(lw, E0 + 25 + 2 * j, [('or', j)]); add(vec, E0 + 25 + 2 * j, [x])
        L1, S1 = outp(1)
        n1e = 0
        if TM_:
            for j in range(15):
                pos = NI_ - 5 * TM_ + (j // 3 + 1) * TM_ + 2 + j % 3
                if pos < NI_: add(vec, pos, [L1[j]]); n1e = j + 1
        add(vec, NI_ - o.get('d1p', 8), i3)
        add(sc_, NI_ - 5, [f"s_or_b32 s{T0}, s{S_RB}, s{S_HEAD}"]); add(sc_, NI_ - 4, [f"s_cmp_lg_u32 s{T0}, 0"]); add(sc_, NI_ - 3, [f"s_cselect_b32 s{T0}, {WS_SIZE}, 0"])
        add(vec, NI_ - 2, [(f"buffer_store_dword v{V_NONCE}, v{V_FOWN}, {srd(SWS)}, s{T0} offen offset:{br*128} sc1", 'nn')])
        assert ci + 2 < E0 + o.get('d0p', 0) < E0 + 22 and E0 + 24 < NI_ - o.get('d1p', 8) and nd1 < NI_ - o.get('d1p', 8) and nd0 < E0 + o.get('d0p', 0)
        assert 3 < o.get('p0pos', 4) <= 9 and E0 + 29 < NI_ - 5 * TM_ + TM_ + 2 + 15
        p.wait(lg=[('FF', 0)])
        clk = 0.0; per = o.get('lper', 4.6)
        for i, (P, t_, rts) in enumerate(items):
            s_ = A_RING + (i % DF) * 4
            for z, rt in enumerate(rts):
                a = acc(ACC_K, t_, rt)
                p(f"{MF} {vq(a)}, {aq(s_)}, {ob(P, rt)}, {'0' if P == 0 else vq(a)}")
                if z == 0:
                    k0 = len(p.ins)
                    for tg in vw.get(i, []): self.flush_dma(tg)
                    p.wait(vm=vw.get(i), lg=[('FF', i + 1)] + lw.get(i, []))
                    if len(rts) == 1: self.put(sc_.get(i, []))
                    if i + DF - 1 < NI_:
                        if len(p.ins) == k0: p("s_nop 0")
                        fread(i + DF - 1, 0)
                else: self.put(sc_.get(i, []))
            self.stamp('z%d' % i)
            if i >= 10:
                clk += len(rts)
                if clk >= per and i not in vec and self.tick(): clk -= per
            self.put(vec.get(i, []))
        self.stamp()
        p(f"s_add_u32 s{S_OUT}, s{S_OUT}, {16*2560}")
        self.put(L1[n1e:12]); self.put(c3[:2]); self.put(L1[12:]); self.put(c3[2:])
        for j in range(3): p.wait(lg=[('or', j)]); self.put([S1[j]])
        if o.get('stamps'):
            p("s_waitcnt vmcnt(0)")
            self.stamp()
            p("s_memrealtime s[100:101]")
            p("s_waitcnt lgkmcnt(0)")
            p.raw(f"""
            s_lshl_b32 s{T0}, s2, 2
            s_add_u32 s{T0}, s{T0}, s{S_W}
            s_lshl_b32 s{T0}, s{T0}, 6
            s_add_u32 s{T0}, s{T0}, {WS_ST}
            v_mov_b32 v{TMP+16}, 0
            v_mov_b32 v{TMP}, s98
            v_mov_b32 v{TMP+1}, s100
            """)
            for k in range(14): p(f"v_mov_b32 v{TMP+2+k}, {'s%d' % (S_ST+k) if k < self.nst else ('s95' if k == 13 else 0)}")
            p("s_mov_b64 exec, 1")
            for k in range(4): p(f"buffer_store_dwordx4 {vq(TMP+4*k)}, v{TMP+16}, {srd(SWS)}, s{T0} offen offset:{16*k}")
        if o.get('cntm'):
            p.raw(f"""
            s_load_dwordx2 s[62:63], s[0:1], 64
            v_mov_b32 v2, 0
            v_mov_b32 v3, s95
            s_waitcnt lgkmcnt(0)
            s_cmp_eq_u32 s95, 0
            s_cbranch_scc1 L_cn0{self.sfx}
            s_mov_b64 exec, 1
            global_atomic_add v2, v3, s[62:63] sc1
            L_cn0{self.sfx}:
            s_or_b32 s{T0}, s{S_RB}, s{S_HEAD}
            s_cmp_lg_u32 s{T0}, 0
            s_cbranch_scc1 L_cn2{self.sfx}
            s_movk_i32 s{T0}, 3500
            s_mov_b32 s{T2}, 0
            L_cn1{self.sfx}:
            s_sleep 2
            s_memrealtime s[64:65]
            s_waitcnt lgkmcnt(0)
            s_sub_u32 s{T1}, s64, s98
            s_cmp_lt_u32 s{T1}, s{T0}
            s_cbranch_scc1 L_cn1{self.sfx}
            s_cmp_eq_u32 s{T2}, 1
            s_cbranch_scc1 L_cn2{self.sfx}
            global_load_dword v3, v2, s[62:63] sc1
            s_waitcnt vmcnt(0)
            v_readfirstlane_b32 s{T0}, v3
            s_min_u32 s{T0}, s{T0}, 1024
            s_mul_i32 s{T0}, s{T0}, 20
            s_add_u32 s{T0}, s{T0}, 4000
            s_mov_b32 s{T2}, 1
            s_branch L_cn1{self.sfx}
            L_cn2{self.sfx}:
            """)
        if o.get('amp'):
            p("s_waitcnt vmcnt(0)")
            self.stamp()
            if o['amp'][0] < 0: p("s_mov_b32 s100, s98")
            p.raw(f"""
            s_and_b32 s{T0}, s2, 7
            s_lshr_b32 s{T0}, {o['amp'][2]}, s{T0}
            s_bitcmp1_b32 s{T0}, 0
            s_cbranch_scc0 L_ampx{self.sfx}
            s_load_dwordx2 s[62:63], s[0:1], 64
            v_mov_b32 v2, 0
            s_waitcnt lgkmcnt(0)
            global_load_dword v3, v2, s[62:63] sc1
            s_waitcnt vmcnt(0)
            v_readfirstlane_b32 s{T2}, v3
            s_not_b32 s{T2}, s{T2}
            s_sub_u32 s{T0}, s100, s{T2}
            s_add_u32 s{T0}, s{T0}, 300
            s_mul_i32 s{T0}, s{T0}, {o['amp'][1]}
            s_min_u32 s{T0}, s{T0}, 100000
            L_amp{self.sfx}:
            s_sleep 2
            s_memrealtime s[64:65]
            s_waitcnt lgkmcnt(0)
            s_sub_u32 s{T1}, s64, s{T2}
            s_cmp_lt_u32 s{T1}, s{T0}
            s_cbranch_scc1 L_amp{self.sfx}
            L_ampx{self.sfx}:
            """)
        p("s_endpgm")
        assert not self.dq

def sizes(lines):
    import subprocess, re
    src = '.amdgcn_target "amdgcn-amd-amdhsa--gfx950"\n.text\n' + "\n".join(lines) + "\n"
    r = subprocess.run(["llvm-mc", "-triple=amdgcn-amd-amdhsa", "-mcpu=gfx950", "-show-encoding"], input=src, capture_output=True, text=True)
    assert r.returncode == 0, r.stderr[:2000]
    return [len(m.split(',')) for m in re.findall(r'encoding: \[([^\]]*)\]', r.stdout)]
def add_hops(text, sfx, align=True):
    lines = text.split("\n")
    i0 = lines.index(f"L_main{sfx}:"); i1 = next(i for i in range(i0, len(lines)) if lines[i].strip() == "s_endpgm")
    body = lines[i0 + 1:i1]
    isi = lambda l: l.startswith("    ")
    szl = sizes([l for l in body if isi(l)])
    insl = [l.strip() for l in body if isi(l)]
    big = [z == 8 and t.startswith("v_") and not t.startswith("v_mfma") for z, t in zip(szl, insl)]
    run = [0] * (len(big) + 1)
    for k in range(len(big) - 1, -1, -1): run[k] = run[k + 1] + 1 if big[k] else 0
    sz = iter(szl); k = -1; nfix = 0
    out = []; addr = 0; page = 0; prev = "v_mfma"
    for l in body:
        if isi(l):
            k += 1
            if align and run[k] >= 3 and addr % 8 == 4:
                pv = out[-1] if isinstance(out[-1], str) else ""
                op = pv.split()[0] if pv.strip() else ""
                if isi(pv) and szl[k - 1] == 4 and op.startswith("v_") and not op.startswith(("v_cmp", "v_swap", "v_permlane", "v_readfirst")):
                    out[-1] = pv.replace(op, op + "_e64", 1); addr += 4; nfix += 1
                elif run[k] >= 6: out.append("    s_nop 0"); addr += 4; nfix += 1
            off = addr - page * 4096
            if off >= 0 and (prev.startswith("v_mfma") or off >= 40) and not prev.startswith("s_mov_b64 exec") :
                out.append(("hop", page)); addr += 4; page += 1
            addr += next(sz); prev = l.strip()
        out.append(l)
    assert page >= 4
    res = []
    for x in out:
        if isinstance(x, tuple):
            k = x[1]
            res += [f"L_hop{k}{sfx}:", f"    s_cbranch_execz " + (f"L_hop{k+4}{sfx}" if k + 4 < page else f"L_hopret{sfx}")]
        else: res.append(x)
    print(sfx, "main bytes", addr, "align fixes", nfix, file=sys.stderr)
    return "\n".join(lines[:i0 + 1] + res + lines[i1:])

def build(opt):
    ref = open(f"cdna_kernels/{NAME}.s.ref").read().split("\n")
    head = [l for l in ref if l.startswith(";") and "@launch" not in l]
    s = "\n".join(head) + "\n; @launch grid=(256,1,1) block=(256,1,1) lds=163840\n"
    s += f""".amdgcn_target "amdgcn-amd-amdhsa--gfx950"
.text
.globl {NAME}_kernel
.p2align 12
.p2align 8
.type {NAME}_kernel,@function
{NAME}_kernel:
    ;  kv / z       : per-workgroup partials, reduce-scatter + all-gather through d_ws; every word carries a launch tag
    s_cmp_ge_u32 s2, 256
    s_cbranch_scc1 L_exit
"""
    ga = Gen(True, opt); ta = ga.body(); gb = Gen(False, opt); tb = gb.body()
    ca, ra = ta.split(".split\n"); cb, rb = tb.split(".split\n")
    assert ca == cb
    if opt.get('hops', 1): ra = add_hops(ra, 'A', opt.get('align', 1)); rb = add_hops(rb, 'B', opt.get('align', 1))
    s += ca + ra + "L_exit:\n    s_endpgm\n.p2align 12\n" + rb
    s += ".fill 2048, 4, 0xbf810000\n"
    s += f""".section .rodata,"a"
.p2align 6
.amdhsa_kernel {NAME}_kernel
  .amdhsa_next_free_vgpr 512
  .amdhsa_next_free_sgpr 102
  .amdhsa_accum_offset 256
  .amdhsa_group_segment_fixed_size 0
  .amdhsa_kernarg_size 80
  .amdhsa_user_sgpr_count 2
  .amdhsa_user_sgpr_kernarg_segment_ptr 1
  .amdhsa_system_sgpr_workgroup_id_x 1
.end_amdhsa_kernel
"""
    print("nops", ga.p.nops, gb.p.nops, "instrs", len(ga.p.ins), len(gb.p.ins), "autow", getattr(ga.p, 'autow', 0), file=sys.stderr)
    return s

if __name__ == "__main__":
    import json
    opt = json.loads(sys.argv[2]) if len(sys.argv) > 2 else {}
    open(sys.argv[1], "w").write(build(opt))
```

```python
import sys
from collections import deque
from emit import Prog
NAME = "concat_heads__linear_kernel_hedgehog__linear_attn_block__prompt"

S_RB, S_HG, S_W = 4, 5, 7
SX, SW, SWO, SWS, SOUT, SPHI = 8, 12, 16, 20, 24, 28
S_NONCE = 32
S_WROW = 33
S_XBASE, S_XU = 38, 39
S_LW, S_LR = 40, 41
T0, T1, T2, T3 = 42, 43, 44, 45
S_WOROW = 46
S_HEAD = 51
S_SPIN = 52
S_FAST = 53
S_L2E, S_NL2E = 54, 55
S_OB = 56
S_WS, S_XS = 57, 58
S_FLAG = 59
S_OP = 60
S_P1ST, S_P1LD, S_P2ST, S_P2LD, S_OWN, S_OUT, S_XCCV, S_PERM = 68, 69, 70, 71, 72, 73, 74, 75
S_KA = 76
S_ST = 76
import os
if os.environ.get('PRO'): S_ST = 88
def srd(b): return f"s[{b}:{b+3}]"
V_LANE = 1
V_WO = 2; V_OF = 7; V_OL = 12; V_XO = 17; V_XR = 21; V_WT = 23; V_LIN = 25
V_PW, V_VW, V_KB, V_KA0, V_KA1, V_FR = 26, 27, 28, 29, 30, 31
ACC_K, ACC_V = 32, 72
TMP = 112
PV = 228
V_P1ST, V_P1LD, V_P2ST, V_GAL, V_LA, V_FR2, V_KEEP, V_ONE, V_OW, V_ORD, V_OG, V_F8, V_DUMP, V_ZA = PV, PV+1, PV+2, PV+3, PV+4, PV+8, PV+9, PV+10, PV+11, PV+12, PV+17, PV+22, PV+23, PV+24
V_L128, V_NONCE, V_FOWN = PV + 25, PV + 26, PV + 27
RING = 0; SLOT = 20480; RBASE = 102400; RW = 15360
OUTL = RBASE + 16384; OUTS = 176
WS_FLAG, WS_XCC, WS_P2, WS_P1, WS_O, WS_ST = 4096, 32768, 5 << 20, 1 << 20, 8 << 20, 16 << 20
WS_SIZE = 32 << 20
D = 6
A_RING = 220
A_PHI = 160
A_PARK = 244
V_OO = 7; V_LINH = 12; V_PF = 13; V_P1M = 14
WS_PF = 49152; WS_PK = 6 << 20
S_USRC, S_UDST, S_UFL, S_UTAG, S_PFL, S_XA = 3, 6, 72, 90, 91, 93
S_TB = SX
S_NHI = 38
SO = SPHI
SPIN_MAX = 100000
EPS = "0x358637bd"

def vq(b, n=4): return f"v[{b}:{b+n-1}]"
def aq(b, n=4): return f"a[{b}:{b+n-1}]"
def acc(base, t, rt): return base + (rt * 5 + t) * 4
MF = "v_mfma_f32_16x16x32_bf16"

DEF = {'A': dict(h1pipe=1, xpos=(117, 190, 222), qpace=4, pfpos=101, pfchk=28, prokeep=4, proev=60, h1=(48, 74), h1len=8, h2lead=160, prelead=125, kpace=4, hx=26, d0=11, vsync=1, qev=26), 'B': dict(h1pipe=1, xpos=(117, 190, 222), upos=(18, 68, 120), ustep=4, qb=(20, 53, 66, 80), d0=11, pfpos=101, pfchk=28, h1=(46, 72), h1len=5, h2lead=80, prem=(283, -70, -30), vpace=3, qev=24, vsync=1)}
class Gen:
    def __init__(self, isA, opt):
        self.A = isA
        sf = 'A' if isA else 'B'
        opt = dict(DEF[sf], **opt)
        opt.update({k[:-1]: v for k, v in opt.items() if k.endswith(sf)})
        self.o = opt
        self.p = Prog(); self.sfx = 'A' if isA else 'B'
        self.F = 40 if isA else 20
        self.nst = 0
        self.dq = deque()
        self.pos = 0
        self.ool = []
    def stamp(self, name=None):
        p = self.p
        if name is None and self.o.get('idle'):
            self.ic = getattr(self, 'ic', -1) + 1
            if self.ic == self.o['idle'][0]: p(f"s_sleep {self.o['idle'][1]}")
        fine = self.o.get('fine')
        if fine:
            if name is None: self.cs = getattr(self, 'cs', 0) + 1; name = 's%d' % (self.cs - 1)
            if name not in fine: return
        elif name is not None: return
        if self.o.get('amp'):
            if self.nst == self.o['amp'][0]:
                p("s_memrealtime s[100:101]"); p("s_waitcnt lgkmcnt(0)")
            self.nst += 1
            return
        if not self.o.get('stamps'): return
        p(f"s_memrealtime s[100:101]" if self.o.get('rt') else f"s_memtime s[100:101]")
        p("s_waitcnt lgkmcnt(0)")
        p(f"s_sub_u32 s{S_ST+self.nst}, s100, {'s98' if self.o.get('rt') else 's96'}")
        self.nst += 1
    def put(self, L):
        for x in L:
            if isinstance(x, tuple): self.p(x[0], x[1])
            elif isinstance(x, list): self.put(x)
            elif callable(x): x()
            else: self.p(x)
    def dma_w(self, G):
        g = G % 5
        pre = [f"s_add_u32 m0, s{S_LW}, {RING + g*SLOT}"]
        if G < 15:
            col = {0: 1280, 1: 2560, 2: 0}[G // 5]
            gr = 4 - g if G // 5 in self.o.get('rev', [1, 2]) else g
            pre.append(f"s_add_u32 s{S_WS}, s{S_WROW+gr}, {col}"); so = f"s{S_WS}"; sd = SW; vo = V_WO
        else:
            items = []
            for j in range(5):
                off = f"offset:{j*1024} " if 0 < j < 4 else ""
                L = (pre if j == 0 else []) + [(f"buffer_load_dwordx4 v{V_LIN}, {srd(SWS)}, s{S_WOROW+g} offen {off}sc1 lds", ('W', G))]
                if j == 3: L += [f"s_add_u32 m0, s{S_LW}, {RING + g*SLOT + 4096}", f"s_add_u32 s{S_WOROW+g}, s{S_WOROW+g}, 4096"]
                items.append(L)
            return items
        items = []
        if G // 5 in self.o.get('fake', []):
            base = (G % 5) * 4 * 5120 + (G // 5 if G < 15 else 0) * 819200
            if self.o.get('fakerot'):
                pre = [pre[0], f"s_mul_hi_u32 s{S_WS}, s{S_WROW+gr}, 34953", f"s_mul_i32 s{S_WS}, s{S_WS}, 5120", f"s_add_u32 s{S_WS}, s{S_WS}, s94", f"s_sub_u32 s{S_WS}, s{S_WS}, s{S_LW}",
                       f"s_add_u32 s{S_WS}, s{S_WS}, {(G // 5) * 819200}"]
            else: pre = [pre[0], f"s_add_u32 s{S_WS}, s94, {base}"]
            for j in range(5):
                off = f"offset:{j*1024} " if 0 < j < 4 else ""
                L = (pre if j == 0 else []) + [(f"buffer_load_dwordx4 v{V_LIN}, {srd(sd)}, s{S_WS} offen {off}lds", ('W', G))]
                if j == 3: L += [f"s_add_u32 m0, s{S_LW}, {RING + g*SLOT + 4096}", f"s_add_u32 s{S_WS}, s{S_WS}, 4096"]
                items.append(L)
            return items
        for j in range(5):
            off = f"offset:{j*1024} " if 0 < j < 4 else ""
            L = (pre if j == 0 else []) + [(f"buffer_load_dwordx4 v{vo+j}, {srd(sd)}, {so} offen {off}lds", ('W', G))]
            if j == 3: L.append(f"s_add_u32 m0, s{S_LW}, {RING + g*SLOT + 4096}")
            items.append(L)
        return items
    def dma_x(self, pu):
        items = []
        for j in range(4):
            off = f"offset:{j*1024} " if j else ""
            L = []
            if j == 0: L += [f"s_add_u32 m0, s{S_LR}, {(pu % 3) * 4096}", f"s_add_u32 s{S_XS}, s{S_XU}, s{S_XBASE}"]
            L.append((f"buffer_load_dwordx4 v{V_XO+j}, {srd(SX)}, s{S_XS} offen {off}lds", ('X', pu)))
            if j == 0: L += [f"s_add_u32 s{S_XU}, s{S_XU}, 128"]
            if j == 1: L += [f"s_cmp_eq_u32 s{S_XU}, 1280", f"s_cselect_b32 s{S_XU}, 0, s{S_XU}"]
            items.append(L)
        return items
    def q(self, earliest, items):
        for it in items: self.dq.append((earliest, it))
    def release(self, k):
        self.dq = deque((0 if e == 10**6 + k else e, it) for e, it in self.dq)
    def tick(self):
        if self.dq and not getattr(self, 'pfok', False) and any(isinstance(x, tuple) and x[1] == ('W', 15) for x in self.dq[0][1]): return False
        if self.dq and self.dq[0][0] <= self.pos:
            self.put(self.dq.popleft()[1]); return True
        return False
    def flush_dma(self, tag):
        def has():
            return any(isinstance(x, tuple) and x[1] == tag for _, it in self.dq for x in it)
        while has():
            assert self.dq[0][0] <= self.pos, (tag, self.pos, self.dq[0])
            self.put(self.dq.popleft()[1])
    def run(self, L, every=30):
        c = 0
        for cost, x in L:
            self.put([x]); c += cost
            if c >= every: c = 0; self.tick()
    def kt(self, N):
        ps, n = divmod(N, 100); tm = self.o.get('tm', (0, 0, 0))[ps]
        if n >= 100 - 5 * tm:
            t, j = divmod(n - (100 - 5 * tm), tm); return 20 - tm + j, t
        return divmod(n, 5)
    def wread(self, N, hf):
        G = N // 20; ks, t = self.kt(N); ks %= 4
        off = RING + (G % 5) * SLOT + ks * 5120 + hf * 2560 + 8 * t
        hi = off >= 51200
        s = A_RING + (N % D) * 4 + 2 * hf
        if G // 5 in self.o.get('fake', []):
            if hf == 0:
                off = RING + (G % 5) * SLOT + ks * 5120 + 1024 * t
                hi = off >= 51200
                self.p(f"ds_read_b128 a[{s}:{s+3}], v{226 + hi} offset:{off - 51200*hi}", ('F', N))
            return
        self.p(f"ds_read_b64_tr_b16 a[{s}:{s+1}], v{V_WT + hi} offset:{off - 51200*hi}", ('F', N))
    def group_sync(self, G):
        self.flush_dma(('W', G))
        self.p.wait(vm=[('W', G)])
        self.p("s_barrier")
    def xread(self, pu, k):
        ksub, rt = divmod(k, 2)
        if k == 0:
            self.flush_dma(('X', pu)); self.p.wait(vm=[('X', pu)])
        a = ((2 * pu + ksub) * 2 + rt) * 4
        self.p(f"ds_read_b128 {aq(a)}, v{V_XR+ksub} offset:{(pu % 3)*4096 + rt*2048}", ('XR', pu))
    def prime(self, ps, sync=True):
        if sync: self.group_sync(ps * 5)
        for n in range(D - 1):
            self.wread(ps * 100 + n, 0); self.wread(ps * 100 + n, 1)
    def gemm_pass(self, ps, accb, bop, fill=None, hooks=None, last=False, pace=None, sync=True, frange=(0, 100), hooks0=None, late=None):
        p = self.p
        fill = deque(fill or []); hooks = hooks or {}; hooks0 = hooks0 or {}
        N0 = ps * 100
        p.wait(lg=[('F', N0), ('XR', 0)])
        pace = pace or (lambda n: 0)
        for n in range(100):
            self.pos = N0 + n
            ks, t = self.kt(N0 + n)
            s = A_RING + ((N0 + n) % D) * 4
            M = n + D - 1
            look = M < 100 or not last
            a = acc(accb, t, 0)
            p(f"{MF} {vq(a)}, {aq(s)}, {bop(ks, 0)}, {'0' if ks == 0 else vq(a)}")
            k0 = len(p.ins)
            if n < 99:
                tg = [('F', N0 + n + 1)]
                if ps == 0 and (n + 1) % 10 == 0: tg.append(('XR', (n + 1) // 10))
                p.wait(lg=tg)
            if n in hooks0: self.put(hooks0[n])
            pk_ = ps in self.o.get('fake', [])
            if pk_:
                if n % 2 == 0 and n + 4 < 100:
                    if (n + 4) % 20 == 0 and sync: self.group_sync((N0 + n + 4) // 20)
                    if len(p.ins) == k0: p("s_nop 0")
                    if n: self.wread(N0 + n + 4, 0)
                    self.wread(N0 + n + 5, 0)
                elif fill and n >= frange[0]: self.gap(fill, 2)
            elif look:
                if M % 20 == 0 and sync: self.group_sync((N0 + M) // 20)
                if len(p.ins) == k0: p("s_nop 0")
                self.wread(N0 + M, 0); self.wread(N0 + M, 1)
            elif fill and n >= frange[0]: self.gap(fill, 2)
            elif late: self.gapl(late, n - 0.5)
            a = acc(accb, t, 1)
            p(f"{MF} {vq(a)}, {aq(s)}, {bop(ks, 1)}, {'0' if ks == 0 else vq(a)}")
            self.pos = N0 + n + 1
            self.stamp('n%d' % (N0 + n))
            did = 0
            for _ in range(pace(n)): did += self.tick()
            if n in hooks: self.put(hooks[n])
            if fill and n >= frange[0]:
                left = sum(c for c, _ in fill)
                gaps = sum(1 for k in range(n, frange[1]) if not pace(k)) + (min(D - 1, 99 - n) if last and frange[1] == 100 else 0)
                if pk_: gaps = sum(1 for k in range(n, frange[1]) if not pace(k)) + (frange[1] - n) // 2
                bud = 0 if did else 2
                if left > 2 * gaps: bud += 2
                if ps == 2 and left > 4 * gaps: bud = -(-left // max(gaps, 1))
                self.gap(fill, bud)
            elif late and not did and n not in hooks: self.gapl(late, n)
        while fill: self.put([fill.popleft()[1]])
        self.pos = N0 + 100
    def gapl(self, late, n):
        q = deque()
        for r, c, x in late:
            if r > n: break
            q.append((c, x))
        k = len(q); self.gap(q, 2)
        for _ in range(k - len(q)): late.popleft()
    def gap(self, fill, bud):
        first = True
        while fill:
            c, x = fill[0]
            solo = isinstance(x, tuple)
            if c > bud or (solo and not first): break
            fill.popleft(); self.put([x]); bud -= c
            if solo: break
            if c: first = False
    def cvt20(self, src, dst):
        return [(1, f"v_cvt_pk_bf16_f32 v{dst+i}, v{src+2*i}, v{src+2*i+1}") for i in range(10)]
    def phiA_parts(self, x, e, m, name, isq):
        P = {}
        kb = e + 28
        P['cvt'] = self.cvt20(x, kb)
        P['zero'] = [(1, f"v_mov_b32 v{kb+10}, 0"), (1, f"v_mov_b32 v{kb+11}, 0")]
        P['mf'] = [(2, f"{MF} {vq(x+4*t)}, {aq(A_PHI + (t*3+u)*4)}, {vq(kb+4*u)}, {'0' if u == 0 else vq(x+4*t)}") for t in range(5) for u in range(3)]
        P['exp'] = [(2, f"v_exp_f32 v{e+i}, v{x+i}") for i in range(20)] + [(2, f"v_exp_f32 v{e+20+i}, -v{x+i}") for i in range(20)]
        def sums():
            L = [f"v_pk_add_f32 v[{m+2*h}:{m+2*h+1}], v[{e+20*h}:{e+20*h+1}], v[{e+20*h+2}:{e+20*h+3}]" for h in range(2)]
            L += [f"v_pk_add_f32 v[{m+2*h}:{m+2*h+1}], v[{m+2*h}:{m+2*h+1}], v[{e+20*h+2*i}:{e+20*h+2*i+1}]" for i in range(2, 10) for h in range(2)]
            L += [f"v_add_f32 v{m+2*h}, v{m+2*h}, v{m+2*h+1}" for h in range(2)]
            return L
        nm = name + self.sfx
        L = sums() + [f"v_max_f32 v{m+1}, v{m}, v{m+2}", f"v_cmp_ngt_f32 vcc, 0x53800000, v{m+1}"]
        if not isq: L.append(f"v_rcp_f32 v{m+4}, v{m}")
        L += [f"v_rcp_f32 v{m+2}, v{m+2}", [f"s_cbranch_vccnz {nm}_slow", f"{nm}_back:"]]
        o = Prog()
        o(f"{nm}_slow:")
        o(f"v_max3_f32 v{m}, v{x}, v{x+1}, v{x+2}"); o(f"v_min3_f32 v{m+1}, v{x}, v{x+1}, v{x+2}")
        for i in range(3, 19, 2):
            o(f"v_max3_f32 v{m}, v{m}, v{x+i}, v{x+i+1}"); o(f"v_min3_f32 v{m+1}, v{m+1}, v{x+i}, v{x+i+1}")
        o(f"v_max_f32 v{m}, v{m}, v{x+19}"); o(f"v_min_f32 v{m+1}, v{m+1}, v{x+19}")
        for i in range(20): o(f"v_sub_f32 v{e+i}, v{x+i}, v{m}"); o(f"v_sub_f32 v{e+20+i}, v{m+1}, v{x+i}")
        for i in range(40): o(f"v_exp_f32 v{e+i}, v{e+i}")
        for y in sums(): o(y)
        if not isq: o(f"v_rcp_f32 v{m+4}, v{m}")
        o(f"v_rcp_f32 v{m+2}, v{m+2}"); o("s_nop 1"); o(f"s_branch {nm}_back")
        self.ool.append(o.finalize())
        if isq: L.append(f"v_mul_f32 v{m+2}, v{m+2}, v{m}")
        else: L += [f"v_pk_mul_f32 v[{e+2*i}:{e+2*i+1}], v[{e+2*i}:{e+2*i+1}], v[{m+4}:{m+5}] op_sel_hi:[1,0]" for i in range(10)]
        L += [f"v_pk_mul_f32 v[{e+20+2*i}:{e+21+2*i}], v[{e+20+2*i}:{e+21+2*i}], v[{m+2}:{m+3}] op_sel_hi:[1,0]" for i in range(10)]
        if self.o.get('whatif') == ('q' if isq else 'k'): L = [y for y in L if not (isinstance(y, str) and y.startswith('v_pk_add') and y.split()[1] == y.split()[2])]
        if self.o.get('whatif') == ('Q' if isq else 'K'): L = [y for y in L if not (isinstance(y, str) and y.startswith('v_pk_') and y.split()[1] == y.split()[2])]
        P['norm'] = [(1, y) for y in L]
        P['out'] = [(1, f"v_cvt_pk_bf16_f32 v{x+i}, v{e+2*i}, v{e+2*i+1}") for i in range(20)]
        return P
    def weave(self, mf, va, per=2):
        va = deque(va); L = []
        for x in mf:
            L.append(x); b = per
            while va and va[0][0] <= b: b -= va[0][0]; L.append(va.popleft())
        return L + list(va)
    def phiB(self, x, e, packed):
        L = []
        if packed: L += [(1, f"v_pk_mul_f32 v[{e+2*i}:{e+2*i+1}], v[{x+2*i}:{x+2*i+1}], s[{S_L2E}:{S_NL2E}] op_sel_hi:[1,0]") for i in range(10)]
        else: L += [(1, f"v_mul_f32 v{e+i}, s{S_L2E}, v{x+i}") for i in range(20)]
        L += [(2, f"v_exp_f32 v{e+i}, v{e+i} clamp") for i in range(20)]
        L += [(1, f"v_max_f32 v{x+i}, {EPS}, v{x+i}") for i in range(20)]
        if packed: L += [(1, f"v_pk_add_f32 v[{e+2*i}:{e+2*i+1}], v[{e+2*i}:{e+2*i+1}], v[{x+2*i}:{x+2*i+1}]") for i in range(10)]
        else: L += [(1, f"v_add_f32 v{e+i}, v{e+i}, v{x+i}") for i in range(20)]
        L += self.cvt20(e, x)
        return L
    def checked(self, name, loads, check, tag, redo=()):
        nm = name + self.sfx
        iss = [(x, tag) if x.startswith('buffer') else x for x in loads]
        chk = [(0, lambda: self.p.wait(vm=[tag]))] + [(1, x) for x in check] + [(1, [f"s_cbranch_vccnz {nm}_retry", f"{nm}_ok:"])]
        o = Prog()
        o(f"{nm}_retry:"); o(f"s_mov_b32 s{S_SPIN}, 0")
        if self.o.get('cnt') == name: o("s_mov_b32 s95, 1")
        o(f"{nm}_loop:")
        if self.o.get('stamps'): o(f"s_add_u32 s95, s95, {dict(L_xc=1000000, L_h1=10000, L_h2=1000, L_pf=10000000, L_f0=1, L_f1=100, L_d0=0, L_d1=100000)[name]}")
        bk = self.o.get('backoff', {}).get(name, 0)
        if bk: o(f"s_sleep {bk}")
        for x in loads: o(x)
        o("s_waitcnt vmcnt(0)")
        for x in check: o(x)
        o(f"s_cbranch_vccz {nm}_{'redo' if redo else 'ok'}")
        o(f"s_add_u32 s{S_SPIN}, s{S_SPIN}, 1"); o(f"s_cmp_lt_u32 s{S_SPIN}, {SPIN_MAX}"); o(f"s_cbranch_scc1 {nm}_loop")
        if redo:
            o(f"{nm}_redo:")
            for x in redo: o(x)
        o(f"s_branch {nm}_ok")
        self.ool.append(o.finalize())
        return iss, chk
    def body(self):
        p = self.p; A = self.A; F = self.F; br = 0 if A else 1; o = self.o
        t = TMP
        K = S_KA
        kx, kw, kout, kws = K, K + 2, K + 8, K + 10
        kphi, kwo = (K + 4, K + 6) if A else (None, K + 4)
        p.raw(f"""
        s_andn2_b32 s{T0}, 1, s2
        s_lshl_b32 s{T0}, s{T0}, 5
        s_load_dwordx8 s[{K}:{K+7}], s[0:1], s{T0}
        s_load_dwordx2 s[{kout}:{kout+1}], s[0:1], 56
        s_load_dwordx2 s[{kws}:{kws+1}], s[0:1], 72
        """)
        if o.get('stamps'): p("s_memtime s[96:97]"); p("s_mov_b32 s95, 0")
        if o.get('stamps') or o.get('amp') or o.get('cntm'): p("s_memrealtime s[98:99]")
        if o.get('cntm'): p("s_mov_b32 s95, 0")
        p.raw(f"""
        s_getpc_b64 s[60:61]
        L_pc:
        s_bfe_u32 s{S_HG}, s2, 0x30003
        v_and_b32 v{V_LANE}, 63, v0
        v_lshrrev_b32 v{t}, 6, v0
        s_bitcmp0_b32 s2, 0
        s_cselect_b32 s{T1}, L_setupB-L_setupA, 0
        s_lshl_b32 s{T0}, s{S_HG}, 12
        v_lshlrev_b32 v{V_L128}, 7, v{V_LANE}
        v_readfirstlane_b32 s{S_W}, v{t}
        s_add_u32 s{T0}, s{T0}, s{T1}
        s_add_u32 s{T0}, s{T0}, L_setupA-L_pc
        s_add_u32 s60, s60, s{T0}
        s_addc_u32 s61, s61, 0
        v_lshl_add_u32 v{t+1}, v{t}, 10, v{V_L128}
        s_mov_b64 exec, 0xff
        """)
        p(f"global_load_dword v{V_DUMP}, v{t+1}, s[60:61]", 'cpf')
        p("s_mov_b64 exec, -1")
        ra, rbm, rdiv = o.get('rot', (10, 10, 4))
        p.raw(f"""
        s_and_b32 s{S_RB}, s2, 6
        s_lshl_b32 s{S_RB}, s{S_RB}, 1
        s_lshr_b32 s{T0}, s2, 6
        s_add_u32 s{S_RB}, s{S_RB}, s{T0}
        s_mul_i32 s{T0}, s{S_HG}, {ra}
        s_mul_i32 s{T1}, s{S_RB}, {rbm}
        s_add_u32 s{T0}, s{T0}, s{T1}
        s_lshr_b32 s{T0}, s{T0}, {rdiv.bit_length()-1}
        s_mul_i32 s{T1}, s{T0}, 6554
        s_lshr_b32 s{T1}, s{T1}, 16
        s_mul_i32 s{T1}, s{T1}, 10
        s_sub_u32 s{T3}, s{T0}, s{T1}
        s_lshl_b32 s{S_XU}, s{T3}, 7
        s_lshl_b32 s{T0}, s{S_RB}, 2
        s_add_u32 s{T0}, s{T0}, s{S_W}
        s_mul_i32 s{S_XBASE}, s{T0}, 40960
        s_mul_i32 s{S_LW}, s{S_W}, 5120
        s_mul_i32 s{S_LR}, s{S_W}, {RW}
        s_add_u32 s{S_LR}, s{S_LR}, {RBASE}
        v_lshrrev_b32 v{t}, 3, v{V_LANE}
        v_mul_u32_u24 v{t}, 1280, v{t}
        v_lshrrev_b32 v{t+1}, 4, v{V_LANE}
        v_xor_b32 v{t+1}, v{t+1}, v{V_LANE}
        v_and_b32 v{t+1}, 7, v{t+1}
        v_lshl_add_u32 v{V_XO}, v{t+1}, 4, v{t}
        v_xor_b32 v{t+2}, 64, v{V_XO}
        v_add_u32 v{V_XO+1}, {9216}, v{t+2}
        v_add_u32 v{V_XO+2}, {2*9216}, v{V_XO}
        v_add_u32 v{V_XO+3}, {3*9216}, v{t+2}
        s_lshr_b32 s{T0}, s{S_W}, 1
        s_add_u32 s{T0}, s{T0}, s{T3}
        s_and_b32 s{T1}, s{S_W}, 1
        s_mul_i32 s{T1}, s{T1}, {32*3840}
        s_mul_i32 s{T2}, s{S_HG}, 160
        s_add_u32 s{T1}, s{T1}, s{T2}
        s_mov_b32 s{SX+2}, 2621440
        s_mov_b32 s{SX+3}, 0x20000
        s_mov_b32 s{SW+2}, 2457600
        s_mov_b32 s{SW+3}, 0x20000
        """)
        def wrow(g):
            p.raw(f"""
            s_cmp_ge_u32 s{T0}, 10
            s_cselect_b32 s{T2}, 10, 0
            s_sub_u32 s{T0}, s{T0}, s{T2}
            s_mul_i32 s{T2}, s{T0}, {64*3840}
            s_add_u32 s{S_WROW+g}, s{T2}, s{T1}
            s_add_u32 s{T0}, s{T0}, 2
            """)
        wrow(0)
        RH = TMP + 10
        def woff(j):
            b = RH + 5 * j
            p.raw(f"""
            v_add_u32 v{t}, {64*j}, v{V_LANE}
            v_mul_u32_u24 v{b+4}, 6554, v{t}
            v_lshrrev_b32 v{b+4}, 16, v{b+4}
            v_mul_u32_u24 v{t+2}, 10, v{b+4}
            v_sub_u32 v{b+3}, v{t}, v{t+2}
            v_bfe_u32 v{b}, v{b+4}, 2, 2
            v_lshrrev_b32 v{b+1}, 4, v{b+4}
            v_and_b32 v{b+2}, 3, v{b+4}
            v_lshl_add_u32 v{t}, v{b}, 1, v{b+1}
            v_lshl_add_u32 v{t}, v{t}, 2, v{b+2}
            v_mul_u32_u24 v{t}, 3840, v{t}
            v_lshl_add_u32 v{V_WO+j}, v{b+3}, 4, v{t}
            """)
            if 0 < j < 4: p(f"v_subrev_u32 v{V_WO+j}, {1024*j}, v{V_WO+j}")
        if o.get('fakeinit'):
            p.raw(f"""
            s_mul_i32 s94, s{S_HG}, 102400
            s_add_u32 s94, s94, s{S_LW}
            v_lshlrev_b32 v{V_LIN}, 4, v{V_LANE}
            v_mov_b32 v226, v{V_LIN}
            v_add_u32 v227, 51200, v{V_LIN}
            """)
        woff(0); woff(1)
        if o.get('pre0'): p("s_memtime s[92:93]")
        p.raw(f"""
        s_waitcnt lgkmcnt(0)
        s_mov_b32 s{SX}, s{kx}
        s_mov_b32 s{SX+1}, s{kx+1}
        s_mov_b32 s{SW}, s{kw}
        s_mov_b32 s{SW+1}, s{kw+1}
        """)
        if o.get('late0'): p.raw(f"s_and_b32 s60, s2, 7\ns_cmp_lg_u32 s60, 0\ns_cbranch_scc1 L_nd0\ns_sleep {o['late0']}\nL_nd0:")
        if o.get('bdelay'): p.raw(f"s_bitcmp1_b32 s2, 0\ns_cbranch_scc1 L_nd\ns_sleep {o['bdelay']}\nL_nd:")
        self.stamp('p0')
        if o.get('pre0'): p(f"s_sub_u32 s{S_ST+self.nst}, s92, s96"); self.nst += 1
        self.put(self.dma_x(0))
        w0 = self.dma_w(0)
        self.put(w0[0:2]); woff(2); self.put(w0[2]); woff(3); self.put(w0[3]); woff(4); self.put(w0[4])
        self.stamp('p1')
        if o.get('prowait'):
            p.wait(vm=['cpf']); self.stamp('p2')
            p.wait(vm=[('X', 0)]); self.stamp('p3')
            p.wait(vm=[('W', 0)]); self.stamp('p4')
        p("s_bitcmp0_b32 s2, 0"); p("s_cbranch_scc1 L_setupB")
        p(".split")
        p(f"L_setup{self.sfx}:")
        p(f"s_load_dword s{S_NONCE}, s[{kws}:{kws+1}], {br*128}")
        if not A:
            p(f"s_load_dword s{S_UTAG}, s[{kws}:{kws+1}], 0")
            p(f"s_load_dwordx2 s[{K+6}:{K+7}], s[0:1], 24")
        for g in range(1, 5): wrow(g)
        if o.get('bal'):
            nw, nx, where = o['bal']
            L_ = [f"s_add_u32 s{T0}, s{S_HG}, s{S_RB}", f"s_bitcmp1_b32 s{T0}, 0", f"s_cbranch_scc1 L_bal{self.sfx}",
                  f"s_cmp_ge_u32 s{S_W}, 2", f"s_cbranch_scc1 L_balx{self.sfx}",
                  f"s_mul_i32 s{T0}, s{S_W}, {32*3840 - 156}", f"s_sub_u32 s{T0}, s{S_WROW+2}, s{T0}", f"v_mul_u32_u24 v{TMP+104}, 3840, v{V_LANE}",
                  f"s_mov_b32 exec_lo, {hex(((1 << nw) - 1) & 0xffffffff)}", f"s_mov_b32 exec_hi, {hex(((1 << nw) - 1) >> 32)}",
                  f"buffer_load_dword v{V_DUMP}, v{TMP+104}, {srd(SW)}, s{T0} offen offset:1280", f"s_branch L_bal{self.sfx}",
                  f"L_balx{self.sfx}:",
                  f"s_mul_i32 s{T0}, s{S_RB}, {128*1280}", f"s_bfe_u32 s{T1}, s{S_HG}, 0x10002", f"s_lshl_b32 s{T1}, s{T1}, 1", f"s_add_u32 s{T1}, s{T1}, s{S_W}", f"s_sub_u32 s{T1}, s{T1}, 2",
                  f"s_mul_i32 s{T1}, s{T1}, {32*1280}", f"s_add_u32 s{T0}, s{T0}, s{T1}", f"s_lshl_b32 s{T1}, s{T3}, 7", f"s_add_u32 s{T0}, s{T0}, s{T1}", f"v_mul_u32_u24 v{TMP+104}, 1280, v{V_LANE}",
                  f"s_mov_b32 exec_lo, {hex((1 << nx) - 1)}", "s_mov_b32 exec_hi, 0",
                  f"buffer_load_dword v{V_DUMP}, v{TMP+104}, {srd(SX)}, s{T0} offen offset:512",
                  f"L_bal{self.sfx}:", "s_mov_b64 exec, -1"]
            if where == 0: p.untracked(L_)
            else:
                self.put(self.dma_x(1)); p.untracked(L_)
        if not (o.get('bal') and o['bal'][2]): self.q(0, self.dma_x(1))
        p.raw(f"""
        s_mov_b32 s{SWS}, s{kws}
        s_mov_b32 s{SWS+1}, s{kws+1}
        s_mov_b32 s{SWS+2}, {WS_SIZE}
        s_mov_b32 s{SWS+3}, 0x20000
        s_mov_b32 s{SOUT}, s{kout}
        s_mov_b32 s{SOUT+1}, s{kout+1}
        s_mov_b32 s{SOUT+2}, 5242880
        s_mov_b32 s{SOUT+3}, 0x20000
        s_lshl_b32 s{S_HEAD}, s{S_HG}, 2
        s_add_u32 s{S_HEAD}, s{S_HEAD}, s{S_W}
        v_lshlrev_b32 v{V_LIN}, 4, v{V_LANE}
        """)
        if A:
            p.raw(f"""
            s_mov_b32 s{SPHI}, s{kphi}
            s_mov_b32 s{SPHI+1}, s{kphi+1}
            s_mov_b32 s{SPHI+2}, 25600
            s_mov_b32 s{SPHI+3}, 0x20000
            """)
            self.q(0, [[f"s_mul_i32 s{S_WS}, s{S_HEAD}, 800",
                        (f"buffer_load_dwordx4 {vq(TMP+96)}, v{V_LIN}, {srd(SPHI)}, s{S_WS} offen", 'wphi')]])
        self.q(0, self.dma_w(1)); self.q(0, self.dma_x(2))
        G_, I_, R_, C_ = t, t + 1, t + 2, t + 3
        S = []
        def raw(txt):
            for l in txt.split('\n'):
                if l.strip(): S.append((1, l.strip()))
        raw(f"""
        v_lshrrev_b32 v{G_}, 4, v{V_LANE}
        v_and_b32 v{I_}, 15, v{V_LANE}
        v_bfe_u32 v{R_}, v{V_LANE}, 2, 2
        v_and_b32 v{C_}, 3, v{V_LANE}
        v_lshrrev_b32 v{t+4}, 1, v{I_}
        v_xor_b32 v{t+4}, v{t+4}, v{G_}
        v_lshlrev_b32 v{t+5}, 7, v{I_}
        v_lshl_add_u32 v{t+4}, v{t+4}, 4, v{t+5}
        v_add_u32 v{V_XR}, s{S_LR}, v{t+4}
        v_xor_b32 v{t+4}, 64, v{t+4}
        v_add_u32 v{V_XR+1}, s{S_LR}, v{t+4}
        v_lshrrev_b32 v{t+4}, 2, v{V_LANE}
        v_mul_u32_u24 v{t+5}, 160, v{t+4}
        v_mul_u32_u24 v{t+6}, 40, v{C_}
        v_add_u32 v{V_WT}, v{t+5}, v{t+6}
        v_add_u32 v{V_WT+1}, 51200, v{V_WT}
        v_mul_u32_u24 v{t+5}, 120, v{I_}
        v_mul_u32_u24 v{t+6}, 3840, v{G_}
        v_add3_u32 v{V_PW}, v{t+5}, v{t+6}, s{S_LR}
        v_mul_u32_u24 v{t+6}, 40, v{G_}
        v_mul_u32_u24 v{t+7}, {OUTS}, v{I_}
        s_mul_i32 s{T2}, s{S_W}, {32*OUTS}
        s_add_u32 s{T2}, s{T2}, {OUTL}
        v_add3_u32 v{V_OW}, v{t+7}, v{t+6}, s{T2}
        v_and_b32 v{t+5}, 7, v{t+4}
        v_lshrrev_b32 v{t+6}, 5, v{V_LANE}
        v_lshlrev_b32 v{t+6}, 1, v{t+6}
        v_lshl_add_u32 v{t+5}, v{t+5}, 2, v{t+6}
        v_mul_u32_u24 v{t+5}, 120, v{t+5}
        s_mul_i32 s{T0}, s{S_W}, 3840
        s_add_u32 s{T0}, s{T0}, {RBASE}
        v_add_u32 v{V_KA1}, s{T0}, v{t+5}
        v_lshl_add_u32 v{V_KB}, v{C_}, 3, v{V_KA1}
        s_mov_b32 s{S_L2E}, 0x3fb8aa3b
        s_mov_b32 s{S_NL2E}, 0xbfb8aa3b
        s_mov_b32 s{S_PERM}, 0x07060302
        s_and_b32 s{T3}, s{S_HG}, 1
        """)
        for j in range(5):
            b = RH + 5 * j
            if j < 3: raw(f"""
            v_mul_u32_u24 v{t+5}, {OUTS}, v{b+4}
            v_lshl_add_u32 v{t+5}, v{b+3}, 4, v{t+5}
            v_add_u32 v{V_ORD+j}, s{T2}, v{t+5}
            v_mul_u32_u24 v{t+5}, 2560, v{b+4}
            v_lshl_add_u32 v{V_OG+j}, v{b+3}, 4, v{t+5}
            """)
            if j == 2: raw(f"""
            v_lshrrev_b32 v{t+5}, 5, v{V_LANE}
            v_lshl_or_b32 v{V_OG+2}, v{t+5}, 30, v{V_OG+2}
            """)
        raw(f"""
        v_mov_b32 v{t+5}, 2304
        v_cmp_gt_u32 vcc, 16, v{V_LANE}
        v_mov_b32 v{t+6}, 1024
        v_cndmask_b32 v{t+5}, v{t+5}, v{t+6}, vcc
        v_add_u32 v{V_OO+1}, v{t+5}, v{V_LIN}
        v_mov_b32 v{V_OO}, v{V_LIN}
        v_add_u32 v{V_OO+2}, 40960, v{V_LIN}
        v_add_u32 v{V_OO+3}, 40960, v{V_OO+1}
        v_lshrrev_b32 v{t+4}, 5, v{V_LANE}
        v_mul_u32_u24 v{t+4}, {40960-512}, v{t+4}
        v_add_u32 v{t+5}, 3328, v{V_LIN}
        v_add_u32 v{V_OO+4}, v{t+4}, v{t+5}
        v_add_u32 v{V_LINH}, 51200, v{V_LIN}
        v_min_u32 v{V_PF}, 39, v{V_LANE}
        v_lshlrev_b32 v{V_PF}, 3, v{V_PF}
        v_and_b32 v{t+4}, 1, v{RH+4}
        v_mul_u32_u24 v{t+4}, 2560, v{t+4}
        v_lshrrev_b32 v{t+5}, 1, v{RH+4}
        v_mul_u32_u24 v{t+5}, 40960, v{t+5}
        v_lshlrev_b32 v{t+6}, 7, v{RH+3}
        v_add3_u32 v{V_L128}, v{t+4}, v{t+5}, v{t+6}
        """)
        raw(f"""
        s_lshl_b32 s{T0}, s{T3}, 1
        s_xor_b32 s{T0}, s{T0}, s{S_W}
        s_mul_i32 s{T0}, s{T0}, 5120
        s_mul_i32 s{T2}, s{S_HG}, 102400
        s_add_u32 s{T2}, s{T2}, {WS_PK + br*819200}
        s_add_u32 s{T0}, s{T0}, s{T2}
        s_lshr_b32 s{S_SPIN}, s{S_HG}, 1
        s_add_u32 s{T1}, s{S_SPIN}, s{S_W}
        s_and_b32 s{T1}, s{T1}, 3
        s_add_u32 s{T1}, s{T1}, 16
        s_mul_i32 s{T1}, s{T1}, 5120
        s_add_u32 s{S_WOROW+4}, s{T1}, s{T2}
        s_lshr_b32 s{S_PFL}, s{S_HG}, 2
        s_lshl_b32 s{S_PFL}, s{S_PFL}, 9
        s_add_u32 s{S_PFL}, s{S_PFL}, {WS_PF + br*1024}
        s_mul_i32 s{T2}, s{S_HG}, 160
        s_lshl_b32 s{S_OUT}, s{S_XBASE}, 1
        s_add_u32 s{S_OUT}, s{S_OUT}, s{T2}
        s_add_u32 s{S_OUT}, s{S_OUT}, {br*1280}
        s_lshl_b32 s{S_OB}, s{S_XBASE}, 1
        s_add_u32 s{S_OB}, s{S_OB}, {br*1280}
        """)
        for g in range(4):
            raw(f"""
            s_add_u32 s{T1}, s{S_SPIN}, {g}
            s_and_b32 s{T1}, s{T1}, 3
            s_mul_i32 s{T2}, s{T1}, 20480
            s_add_u32 s{S_WOROW+g}, s{T2}, s{T0}
            s_lshl_b32 s{T1}, s{T1}, 1
            s_add_u32 s{T1}, s{T1}, s{T3}
            s_mul_i32 s{T2}, s{T1}, 5120
            s_add_u32 s{S_OP+2*g}, s{T2}, s{S_OB}
            s_xor_b32 s{T1}, s{T1}, 1
            s_mul_i32 s{T2}, s{T1}, 5120
            s_add_u32 s{S_OP+2*g+1}, s{T2}, s{S_OB}
            """)
        SH = 8 if A else 7
        raw(f"""
        s_lshl_b32 s{T0}, s{S_RB}, 2
        s_add_u32 s{T0}, s{T0}, s{S_W}
        s_lshl_b32 s{S_FLAG}, s{T0}, 7
        s_add_u32 s{S_FLAG}, s{S_FLAG}, {WS_FLAG + br*64*128}
        s_lshl_b32 s{T0}, s{S_HEAD}, 16
        s_add_u32 s{T0}, s{T0}, {WS_P1 + br*32*65536}
        s_lshl_b32 s{T1}, s{S_RB}, 12
        s_add_u32 s{S_P1ST}, s{T0}, s{T1}
        s_min_u32 s{T1}, s{S_RB}, 14
        s_lshl_b32 s{T1}, s{T1}, {SH}
        s_add_u32 s{S_P1LD}, s{T0}, s{T1}
        s_lshl_b32 s{T0}, s{S_HEAD}, 12
        s_add_u32 s{S_P2LD}, s{T0}, {WS_P2 + br*32*4096}
        s_add_u32 s{S_P2ST}, s{S_P2LD}, s{T1}
        s_lshr_b32 s{T1}, s{S_RB}, {4 - o.get('p2log', 2)}
        s_lshl_b32 s{T1}, s{T1}, 18
        s_add_u32 s{S_P2LD}, s{S_P2LD}, s{T1}
        v_mul_u32_u24 v{t+4}, {F if A else 16}, v{G_}
        v_add_lshl_u32 v{V_P1ST}, v{t+4}, v{I_}, 4
        v_mul_u32_u24 v{t+4}, {F if A else 4}, v{G_}
        v_add_lshl_u32 v{t+5}, v{t+4}, v{I_}, 4
        v_lshrrev_b32 v{t+4}, {3 if A else 2}, v{I_}
        v_lshl_or_b32 v{V_P1M}, v{t+4}, 28, v{t+5}
        v_lshrrev_b32 v{t+4}, 1, v{G_}
        v_lshl_or_b32 v{V_P1M+1}, v{t+4}, 30, v{V_P1ST}
        v_lshl_or_b32 v{V_P1M+2}, v{t+4}, 30, v{V_P1M}
        v_cmp_gt_u32 vcc, 4, v{I_}
        v_cndmask_b32 v{V_KEEP}, 0, -1, vcc
        v_mov_b32 v{t+4}, 0x3f803f80
        v_cmp_eq_u32 vcc, 4, v{I_}
        v_cndmask_b32 v{V_ONE}, 0, v{t+4}, vcc
        v_and_b32 v{t+4}, 7, v{V_LANE}
        v_lshlrev_b32 v{V_F8}, 2, v{t+4}
        s_lshl_b32 s{T0}, s{S_HG}, 2
        v_min_u32 v{V_FOWN}, 1, v{V_LANE}
        v_lshlrev_b32 v{V_FOWN}, 30, v{V_FOWN}
        v_or_b32 v{V_FOWN}, s{T0}, v{V_FOWN}
        v_lshlrev_b32 v{V_ZA}, 3, v0
        v_add_u32 v{V_ZA}, {RBASE+7680}, v{V_ZA}
        """)
        if A:
            raw(f"""
            v_lshlrev_b32 v{t+5}, 12, v{G_}
            v_lshl_add_u32 v{V_P1LD}, v{I_}, 4, v{t+5}
            v_lshlrev_b32 v{V_P2ST}, 2, v{V_LANE}
            """)
        else:
            raw(f"""
            v_lshrrev_b32 v{t+5}, 3, v{V_LANE}
            v_lshlrev_b32 v{t+5}, 12, v{t+5}
            v_lshl_add_u32 v{V_P1LD}, v{t+4}, 4, v{t+5}
            v_lshl_add_u32 v{V_P2ST}, v{G_}, 5, v{V_F8}
            """)
        RS = 80 if A else 48
        HS = 24 * RS
        NQ = 240 if A else 120
        NI = 4 if A else 2
        raw(f"s_mul_i32 s{T0}, s{S_W}, {HS}\ns_add_u32 s{T0}, s{T0}, {RBASE}")
        u = t + 4
        for ii in range(NI):
            raw(f"v_add_u32 v{u}, {64*ii}, v{V_LANE}")
            if ii == NI - 1:
                raw(f"""v_subrev_u32 v{u+1}, 64, v{u}
                v_cmp_gt_u32 vcc, {NQ}, v{u}
                v_cndmask_b32 v{u}, v{u+1}, v{u}, vcc
                v_lshlrev_b32 v{V_GAL}, 4, v{u}""")
            if A:
                raw(f"""
                v_lshrrev_b32 v{u+1}, 4, v{u}
                v_and_b32 v{u+2}, 3, v{u}
                v_lshl_add_u32 v{u+1}, v{u+1}, 2, v{u+2}
                v_bfe_u32 v{u+2}, v{u}, 2, 2
                v_mul_u32_u24 v{u+3}, 6554, v{u+1}
                v_lshrrev_b32 v{u+3}, 16, v{u+3}
                v_mul_u32_u24 v{u+4}, 10, v{u+3}
                """)
            else:
                raw(f"""
                v_lshrrev_b32 v{u+1}, 3, v{u}
                v_and_b32 v{u+2}, 1, v{u}
                v_lshl_add_u32 v{u+1}, v{u+1}, 1, v{u+2}
                v_bfe_u32 v{u+2}, v{u}, 1, 2
                v_cmp_gt_u32 vcc, 24, v{u+1}
                v_lshrrev_b32 v{u+3}, 2, v{u+1}
                v_subrev_u32 v{u+4}, 24, v{u+1}
                v_cndmask_b32 v{u+3}, v{u+4}, v{u+3}, vcc
                v_and_b32 v{u+1}, 3, v{u+1}
                v_cndmask_b32 v{u+1}, 4, v{u+1}, vcc
                v_mov_b32 v{u+4}, 0
                """)
            raw(f"""
            v_sub_u32 v{u+1}, v{u+1}, v{u+4}
            v_lshl_add_u32 v{u+3}, v{u+3}, 2, v{u+2}
            v_mul_u32_u24 v{u+3}, {RS}, v{u+3}
            v_lshl_add_u32 v{u+3}, v{u+1}, 3, v{u+3}
            v_add_u32 v{V_LA+ii}, s{T0}, v{u+3}
            """)
        raw(f"""
        v_cmp_eq_u32 vcc, v{G_}, v{R_}
        v_mul_u32_u24 v{u}, {HS}, v{G_}
        v_mul_u32_u24 v{u+1}, {RS}, v{C_}
        v_add_u32 v{u}, v{u}, v{u+1}
        v_add_u32 v{u}, {RBASE}, v{u}
        v_mov_b32 v{u+1}, {RBASE+7680}
        v_cndmask_b32 v{V_FR2}, v{u+1}, v{u}, vcc
        """)
        if A:
            raw(f"""
            v_mov_b32 v{t+36}, 0
            v_mov_b32 v{t+37}, 0
            v_mov_b32 v{t+38}, 0
            v_mov_b32 v{t+39}, 0
            v_add_u32 v{TMP+100}, s{S_LR}, v{V_LIN}
            ds_write_b128 v{TMP+100}, {vq(t+36)} offset:13312
            v_mul_u32_u24 v{t+4}, {RW}, v{G_}
            v_mul_u32_u24 v{t+5}, 40, v{R_}
            v_add_u32 v{t+4}, v{t+4}, v{t+5}
            v_add_u32 v{t+4}, {RBASE+12288}, v{t+4}
            s_add_u32 s{T0}, s{S_LR}, 13312
            v_mov_b32 v{t+5}, s{T0}
            v_cmp_eq_u32 vcc, v{C_}, v{G_}
            v_cndmask_b32 v{V_FR}, v{t+5}, v{t+4}, vcc
            """)
            for tt in range(5):
                a = A_PHI + (tt * 3 + 2) * 4
                raw(f"v_accvgpr_write_b32 a{a+2}, 0\nv_accvgpr_write_b32 a{a+3}, 0")
        US, UA, UD = TMP + 40, TMP + 45, TMP + 80
        nA = o.get('nA', 0); prod = (not A) or nA > 0
        S_UOK = 92
        if prod:
            if o.get('umap', 1) == 0: umap = f"""s_add_u32 s{T1}, s{S_HG}, s{S_RB}
            s_and_b32 s{T1}, s{T1}, 1
            s_lshl_b32 s{T0}, s{S_W}, 1
            s_add_u32 s{T0}, s{T0}, s{T1}
            s_lshl_b32 s{T0}, s{T0}, 3
            s_add_u32 s{T0}, s{T0}, s{S_HG}
            s_lshl_b32 s{T0}, s{T0}, 3
            s_lshr_b32 s{T1}, s{S_RB}, 1
            s_add_u32 s{T0}, s{T0}, s{T1}
            s_add_u32 s{T0}, s{T0}, {0 if A else nA}
            s_cmp_lt_u32 s{T0}, {nA if A else 320}
            s_cselect_b32 s{S_UOK}, 1, 0"""
            elif o.get('umap', 1) == 1:
                umap = f"""s_lshr_b32 s{T1}, s{S_RB}, 2
                s_mul_i32 s{T0}, s{T1}, 3
                s_add_u32 s{T0}, s{T0}, s{S_W}
                s_sub_u32 s{T0}, s{T0}, 2
                s_cmp_eq_u32 s{T1}, 0
                s_cselect_b32 s{T0}, 0, s{T0}
                s_cselect_b32 s{T1}, 1, 3
                s_cmp_lt_u32 s{S_W}, s{T1}
                s_cselect_b32 s{S_UOK}, 1, 0
                s_lshl_b32 s{T0}, s{T0}, 5
                s_lshr_b32 s{T1}, s2, 3
                s_add_u32 s{T0}, s{T0}, s{T1}"""
            else:
                umap = f"""s_lshr_b32 s{T1}, s{S_RB}, 2
                s_sub_u32 s{T1}, s{T1}, 1
                s_add_u32 s{T2}, s{S_HG}, s{S_RB}
                s_and_b32 s{T2}, s{T2}, 1
                s_lshl_b32 s{T0}, s{S_W}, 1
                s_add_u32 s{T0}, s{T0}, s{T2}
                s_lshl_b32 s{T0}, s{T0}, 4
                s_lshr_b32 s{T2}, s2, 4
                s_add_u32 s{T0}, s{T0}, s{T2}
                s_mul_i32 s{T0}, s{T0}, 3
                s_add_u32 s{T0}, s{T0}, s{T1}
                s_cmp_lt_u32 s{T0}, 320
                s_cselect_b32 s{S_UOK}, 1, 0
                s_cmp_lt_u32 s{S_RB}, 4
                s_cselect_b32 s{S_UOK}, 0, s{S_UOK}"""
            iS0 = len(S)
            S.append((1, [x.strip() for x in f"""
            {umap}
            s_waitcnt lgkmcnt(0)
            s_cmp_lt_u32 s{T0}, 160
            s_cselect_b32 s{SWO}, s{K+6}, s{kwo}
            s_cselect_b32 s{SWO+1}, s{K+7}, s{kwo+1}
            s_cselect_b32 s{S_UTAG}, s{S_NONCE if A else S_UTAG}, s{S_NONCE}
            s_cselect_b32 s{T1}, 0, 160
            s_cselect_b32 s{S_UDST}, 0, 819200
            s_cselect_b32 s{S_UFL}, 0, 1024
            s_mov_b32 s{SWO+2}, 819200
            s_mov_b32 s{SWO+3}, 0x20000
            s_add_u32 s{S_UTAG}, s{S_UTAG}, 0x9e3779b1
            s_sub_u32 s{T0}, s{T0}, s{T1}
            s_and_b32 s{T1}, s{T0}, 1
            s_mul_i32 s{S_USRC}, s{T1}, 640
            s_mul_i32 s{T2}, s{T1}, 409600
            s_add_u32 s{S_UDST}, s{S_UDST}, s{T2}
            s_lshl_b32 s{T2}, s{T1}, 9
            s_add_u32 s{S_UFL}, s{S_UFL}, s{T2}
            s_lshr_b32 s{T1}, s{T0}, 1
            s_lshl_b32 s{T2}, s{T1}, 2
            s_add_u32 s{S_UFL}, s{S_UFL}, s{T2}
            s_add_u32 s{S_UFL}, s{S_UFL}, {WS_PF}
            s_and_b32 s{T1}, s{T1}, 3
            s_mul_i32 s{T2}, s{T1}, {20*1280}
            s_add_u32 s{S_USRC}, s{S_USRC}, s{T2}
            s_lshl_b32 s{T2}, s{T1}, 8
            s_add_u32 s{S_UDST}, s{S_UDST}, s{T2}
            s_lshr_b32 s{T1}, s{T0}, 3
            s_mul_i32 s{T2}, s{T1}, 5120
            s_add_u32 s{S_UDST}, s{S_UDST}, s{T2}
            s_add_u32 s{S_UDST}, s{S_UDST}, {WS_PK}
            s_lshr_b32 s{T2}, s{T1}, 1
            s_mul_i32 s{T2}, s{T2}, 80
            s_and_b32 s{T3}, s{T1}, 1
            s_lshl_b32 s{T3}, s{T3}, 3
            s_add_u32 s{T2}, s{T2}, s{T3}
            s_mul_i32 s{T3}, s{T1}, 160
            s_sub_u32 s{T3}, s{T3}, {16*160 - 16}
            s_cmp_ge_u32 s{T1}, 16
            s_cselect_b32 s{T2}, s{T3}, s{T2}
            s_cselect_b32 s{T3}, 1, 0
            s_mul_i32 s{T2}, s{T2}, 1280
            s_add_u32 s{S_USRC}, s{S_USRC}, s{T2}
            s_mul_i32 s{T1}, s{T3}, {76*1280}
            s_add_u32 s{T2}, s{S_LW}, {RING + 4*SLOT}
            """.split('\n') if x.strip()]))
            for j in range(5):
                raw(f"""
                v_lshrrev_b32 v{t+4}, 2, v{RH+5*j+4}
                v_mul_u32_u24 v{t+5}, 640, v{t+4}
                v_lshrrev_b32 v{t+4}, 2, v{t+4}
                v_mul_u32_u24 v{t+4}, s{T1}, v{t+4}
                v_add3_u32 v{US+j}, v{t+4}, v{t+5}, v{V_LIN}
                """)
            raw(f"v_add_u32 v{US+4}, 4096, v{US+4}")
            iS1 = len(S)
            raw(f"""
            v_mul_u32_u24 v{t+7}, 640, v{R_}
            v_mul_u32_u24 v{t+8}, 40, v{C_}
            v_add3_u32 v{t+7}, v{t+7}, v{t+8}, s{T2}
            """)
            for j in range(5):
                raw(f"""
                v_add_u32 v{t+4}, {4*j}, v{G_}
                v_mul_u32_u24 v{t+5}, 13108, v{t+4}
                v_lshrrev_b32 v{t+5}, 16, v{t+5}
                v_mul_u32_u24 v{t+6}, 120, v{t+5}
                v_lshl_add_u32 v{t+6}, v{t+4}, 3, v{t+6}
                v_add_u32 v{t+6}, v{t+6}, v{t+7}
                v_and_b32 v{t+8}, s{T3}, v{t+5}
                v_mul_u32_u24 v{t+8}, 2560, v{t+8}
                v_add_u32 v{UA+2*j}, v{t+6}, v{t+8}
                v_sub_u32 v{t+6}, v{t+6}, v{t+8}
                v_add_u32 v{UA+2*j+1}, 2560, v{t+6}
                v_mul_u32_u24 v{t+5}, {102400 - 5120}, v{t+5}
                v_lshl_add_u32 v{t+5}, v{t+4}, 10, v{t+5}
                v_lshl_add_u32 v{UD+j}, v{I_}, 4, v{t+5}
                """)
            mark = {}
            def cond(name, lines):
                p.untracked([f"s_cmp_eq_u32 s{S_UOK}, 0", f"s_cbranch_scc1 {name}{self.sfx}"] + lines + [f"{name}{self.sfx}:"])
                mark[name] = p.nvm
            L = [f"s_add_u32 m0, s{S_LW}, {RING + 4*SLOT}"]
            for j in range(5):
                off = f"offset:{j*1024} " if 0 < j < 4 else ""
                L.append(f"buffer_load_dwordx4 v{US+j}, {srd(SWO)}, s{S_USRC} offen {off}lds")
                if j == 3: L.append(f"s_add_u32 m0, s{S_LW}, {RING + 4*SLOT + 4096}")
            un = [[lambda L=L: cond("L_u1", L)]]
            if o.get('uissue', 0) == 0: self.q(10**6 + 77, un)
            if o.get('uissue', 0) == -1: S = S[:4] + S[iS0:iS1] + [(0, un[0])] + S[iS1:] + S[4:iS0]
        self.run(S, every=o.get('proev', 60))
        self.stamp('p5')
        if o.get('uissue', 0) == 0: self.release(77)
        def urd():
            assert not any(x.tag == ('W', 4) for x in p.ins)
            cond("L_u2r", [f"s_waitcnt vmcnt({p.nvm - mark['L_u1']}) lgkmcnt(0)"] +
                [f"ds_read_b64_tr_b16 {vq(TMP+60+2*k, 2)}, v{UA+k}" for k in range(10)] + ["s_waitcnt lgkmcnt(0)"])
        def ust(j): cond("L_u2" + "abcd "[j].strip(), [f"buffer_store_dwordx4 {vq(TMP+60+4*j)}, v{UD+j}, {srd(SWS)}, s{S_UDST} offen sc1"])
        if o.get('hops', 1):
            p("s_mov_b64 exec, 0")
            for w_ in range(3): p(f"s_cmp_eq_u32 s{S_W}, {w_}"); p(f"s_cbranch_scc1 L_hop{w_}{self.sfx}")
            p(f"s_branch L_hop3{self.sfx}")
            p(f"L_hopret{self.sfx}:")
            p("s_mov_b64 exec, -1")
        if prod and o.get('upos', (0,))[0] < 0:
            while len(self.dq) > -o['upos'][0] - 1 and self.tick(): pass
            urd()
            for j in range(5): ust(j)
        while len(self.dq) > o.get('prokeep', 0) and self.tick(): pass
        p.raw(f"""
        s_getreg_b32 s{T0}, hwreg(HW_REG_XCC_ID, 0, 4)
        s_waitcnt lgkmcnt(0)
        s_add_u32 s{S_NONCE}, s{S_NONCE}, 0x9e3779b1
        s_lshl_b32 s{T0}, s{T0}, 28
        s_xor_b32 s{S_XCCV}, s{T0}, s{S_NONCE}
        v_mov_b32 v{V_NONCE}, s{S_NONCE}
        v_and_b32 v{V_VW}, 1, v{V_LANE}
        v_lshlrev_b32 v{V_VW}, 4, v{V_VW}
        v_lshrrev_b32 v{V_VW}, v{V_VW}, v{V_NONCE}
        v_mov_b32 v{V_KA0}, s{S_XCCV}
        s_add_u32 s{S_XA}, s{S_FLAG}, {WS_XCC - WS_FLAG}
        """)
        xst = [(f"buffer_store_dword v{V_KA0}, v{V_FOWN}, {srd(SWS)}, s{S_XA} offen sc1", 'xcc')]
        x1, x2, x3 = o.get('xpos', (-1, 58, 88))
        if x1 < 0: self.put(xst)
        self.stamp()
        p(f"s_branch L_main{self.sfx}")
        p(".p2align 12")
        p(f"L_main{self.sfx}:")
        xb = lambda ks, rt: aq((ks * 2 + rt) * 4)
        xbp = lambda ps: (lambda ks, rt: xb(4 * (4 - ks // 4) + ks % 4, rt)) if ps in o.get('rev', [1, 2]) else xb
        for pu in range(0, 7):
            if (pu + 3) % 2 == 0: self.q(0, self.dma_w((pu + 3) // 2))
            self.q(10 * pu, self.dma_x(pu + 3))
            if prod and o.get('uissue', 0) == pu + 1: self.q(0, un)
        for G in range(5, 10): self.q(10**6 + 1 if G % 5 >= 3 else 20 * (G - 3) - 4, self.dma_w(G))
        for G in range(10, 13): self.q(20 * (G - 3) - 3, self.dma_w(G))
        for G in range(13, 20): self.q(10**6 + G, self.dma_w(G))
        hooks = {}
        for pu in range(1, 10):
            hooks[10 * pu - 5] = [lambda pu=pu: self.xread(pu, 0), lambda pu=pu: self.xread(pu, 1)]
            hooks[10 * pu - 4] = [lambda pu=pu: self.xread(pu, 2), lambda pu=pu: self.xread(pu, 3)]
        if A:
            rd = [(tt, u_, hf) for tt in range(5) for u_ in range(3) for hf in range(2 if u_ < 2 else 1)]
            w = TMP + 96; u2 = TMP + 102
            sc = [lambda: p.wait(vm=['wphi'])]
            for j in range(4):
                sc += [f"v_lshlrev_b32 v{u2}, 16, v{w+j}", f"v_and_b32 v{u2+1}, 0xffff0000, v{w+j}", f"v_mul_f32 v{u2}, s{S_L2E}, v{u2}",
                       f"v_mul_f32 v{u2+1}, s{S_L2E}, v{u2+1}", f"v_cvt_pk_bf16_f32 v{w+j}, v{u2}, v{u2+1}"]
            hooks[8] = sc + [(f"ds_write_b128 v{TMP+100}, {vq(w)} offset:12288", 'phw')]
            hooks[14] = [lambda: p.wait(lg=['phw'])]
            slots = [n for n in range(21, 90) if n % 10 in (0, 1, 2, 3)][:25]
            for k, n in enumerate(slots):
                hooks[n] = [(f"ds_read_b64_tr_b16 a[{A_PHI + (tt*3+u_)*4 + 2*hf}:{A_PHI + (tt*3+u_)*4 + 2*hf + 1}], v{V_FR} offset:{(8*u_+4*hf)*40 + 8*tt}", 'phi')
                            for tt, u_, hf in rd[k:k+1]]
        late3 = {}
        if prod:
            UR = TMP + 60
            u1, u2_, u3 = o.get('upos', (18, 18, 62))
            if u1 >= 0: hooks.setdefault(u1, []).append(urd)
            for j in range(5):
                uj = u2_ + o.get('ustep', 0) * j
                if uj >= 0: (hooks if uj < 100 else late3).setdefault(uj % 100, []).append(lambda j=j: ust(j))
            (hooks if u3 < 100 else late3).setdefault(u3 % 100, []).append(lambda: cond("L_u3", [f"s_waitcnt vmcnt({p.nvm - mark['L_u2']})", f"v_mov_b32 v{V_DUMP}, s{S_UTAG}", "s_mov_b64 exec, 1",
                         f"buffer_store_dword v{V_DUMP}, v{V_LIN}, {srd(SWS)}, s{S_UFL} offen sc1", "s_mov_b64 exec, -1"]))
        KBV = [V_KB, 17, 18, 19]; KAV = [V_KA1, 20, 21, 22]
        if o.get('kvown', 0):
            for kk in (1, 2, 3, 0):
                hooks.setdefault(89 + 2 * ((kk + 3) % 4), []).extend([f"s_add_u32 s{T2}, s{S_W}, {kk}", f"s_and_b32 s{T2}, s{T2}, 3", f"s_mul_i32 s{T2}, s{T2}, {RW}"])
                hooks.setdefault(90 + 2 * ((kk + 3) % 4), []).extend([f"v_add_u32 v{KBV[kk]}, s{T2}, v{V_KB}", f"v_add_u32 v{KAV[kk]}, s{T2}, v{V_KA1}"])
        XV = TMP + 92
        iss, chk = self.checked("L_xc", [f"buffer_load_dword v{XV}, v{V_F8}, {srd(SWS)}, s{S_XA} offen sc1"],
                                [f"v_xor_b32 v{XV+1}, s{S_NONCE}, v{XV}", f"v_lshlrev_b32 v{XV+1}, 4, v{XV+1}", f"v_cmp_ne_u32 vcc, 0, v{XV+1}"], 'xl')
        xv, xq = {}, {}
        def xh(pos, L): [hooks, xv, xq][pos // 100].setdefault(pos % 100, []).extend(L)
        if x1 >= 0: xh(x1, xst)
        xh(x2, iss)
        c_ = [x for _, x in chk]
        xh(x3, c_[:3]); xh(x3 + 1, c_[3:4]); xh(x3 + 2, c_[4:] + [f"v_cmp_ne_u32 vcc, s{S_XCCV}, v{XV}"])
        xh(x3 + 3, [f"s_mov_b32 s{S_FAST}, {1 if o.get('nofast') else 'vcc_lo'}", f"s_add_u32 s{T0}, s{SWS}, {WS_O}", f"s_addc_u32 s{T1}, s{SWS+1}, 0"])
        xh(x3 + 4, [f"s_cmp_eq_u32 s{S_FAST}, 0", f"s_cselect_b32 s{SO}, s{SOUT}, s{T0}", f"s_cselect_b32 s{SO+1}, s{SOUT+1}, s{T1}"])
        xh(x3 + 5, [f"s_mov_b32 s{SO+2}, 5242880", f"s_mov_b32 s{SO+3}, 0x20000"])
        self.group_sync(0)
        for k in range(4): self.xread(0, k)
        self.prime(0, sync=False)
        kp = o.get('kpace', 3)
        k1p = {0: lambda n: 1 if n % 3 != 2 else 0, 1: lambda n: 1, 2: lambda n: 2 if n % 10 < 2 else (1 if n % 10 < 5 else 0), 3: lambda n: 1 if n % 4 != 3 else 0}[o.get('k1', 0)]
        E0, E1, M0_, M1_ = TMP, TMP + 40, TMP + 80, TMP + 86
        x0, x1 = acc(ACC_K, 0, 0), acc(ACC_K, 0, 1)
        def early(ps, P0, P1):
            tm = o.get('tm', (0, 0, 0))[ps]
            L = [(80, c, x) for c, x in P0['zero'] + P1['zero']]
            for t_ in range(5):
                r = 100 - 5 * tm + tm * (t_ + 1) + 1 if tm else 95 + t_ + 2
                L += [(r, c, x) for c, x in P0['cvt'][2*t_:2*t_+2] + P1['cvt'][2*t_:2*t_+2]]
            return deque(L)
        def split(late, P0):
            c0 = {x for _, x in P0['cvt'] + P0['zero']}
            return [(c, x) for _, c, x in late if x in c0], [(c, x) for _, c, x in late if x not in c0]
        lateK = None
        if A:
            P0 = self.phiA_parts(x0, E0, M0_, "L_k0", False); P1 = self.phiA_parts(x1, E1, M1_, "L_k1", False)
            lateK = early(0, P0, P1)
        self.gemm_pass(0, ACC_K, xb, hooks=hooks, last=True, late=lateK, pace=lambda n: k1p(n) if n < o.get('ksw', 69) else (1 if n % kp == 0 else 0))
        self.stamp()
        E0, E1, M0_, M1_ = TMP, TMP + 40, TMP + 80, TMP + 86
        x0, x1 = acc(ACC_K, 0, 0), acc(ACC_K, 0, 1)
        tagset = [f"s_bfe_u32 s{S_TB+j}, s{S_NONCE}, {hex(0x80000 + 8*j)}" for j in range(4)] + [f"s_lshr_b32 s{S_NHI}, s{S_NONCE}, 16"]
        if o.get('amp'):
            p.raw(f"""
            s_load_dwordx2 s[88:89], s[0:1], 64
            s_not_b32 s{T0}, s98
            v_mov_b32 v{TMP+94}, 0
            v_mov_b32 v{TMP+95}, s{T0}
            s_lshr_b32 s{T0}, s2, 3
            s_or_b32 s{T0}, s{T0}, s{S_W}
            s_cmp_eq_u32 s{T0}, 0
            s_cselect_b32 s{T0}, 0, 64
            v_mov_b32 v{TMP+94}, s{T0}
            s_waitcnt lgkmcnt(0)
            s_cbranch_scc0 L_noat{self.sfx}
            s_mov_b64 exec, 1
            """)
            p.ins.append(__import__('emit').Ins(f"global_atomic_umax v{TMP+94}, v{TMP+95}, s[88:89] sc1"))
            p("s_mov_b64 exec, -1")
            p(f"L_noat{self.sfx}:")
        wr = lambda rt, x, n, o8: [(2, (f"ds_write_b64 v{V_PW}, {vq(x+2*j, 2)} offset:{rt*1920 + o8 + 8*j}", 'pw')) for j in range(n)]
        def mixw(out, w): return [y for j in range(len(w)) for y in out[2*j:2*j+2] + [w[j]]]
        burst = lambda L: [(0, [x for _, x in L])]
        dm = (2, lambda: self.tick())
        if A:
            r0, r1 = split(lateK, P0)
            def headA(P0, P1, r0, r1, extra0, extra1):
                L = list(r0); side = deque(r1); ne = 0; ex0 = dict(extra0); ex1 = dict(extra1)
                for k_, mfx in enumerate(P0['mf'] + P1['mf']):
                    if k_ == 15: L += list(side); side.clear()
                    L.append(mfx)
                    ex = ex0.get(k_) if k_ < 15 else ex1.get(k_ - 15)
                    if ex: L += ex
                    elif side:
                        for _ in range(2):
                            if side: L.append(side.popleft())
                    elif k_ >= 3 * ((ne % 20) // 4) + 2 + 3 and (ne < 28 or k_ >= 16): L.append(P0['exp'][ne]); ne += 1
                return L, ne
            pr = [(0, lambda: (self.group_sync(5), self.release(1)))]
            pr = pr + [(1, lambda n=n, hf=hf: self.wread(100 + n, hf)) for n in range(D - 1) for hf in range(2)]
            hx = o.get('hx', 30)
            L_, ne = headA(P0, P1, r0, r1, {0: [dm], 14: [dm]}, {7: [dm]})
            self.put([x for _, x in [dm] + L_])
            hm = o.get('hmore', 0)
            self.run(P0['exp'][ne:] + P1['exp'][:hm] + P0['norm'][:-10], every=hx)
            self.put([x for _, x in pr + P0['norm'][-10:]])
            def tailf(P, rt, x, e, m, sc, head_done):
                nb = P['norm'][:len(P['norm']) - sc]
                L = [] if head_done else burst(nb)
                w_ = wr(rt, x, 10, 0)
                for j in range(10):
                    for i in (2 * j, 2 * j + 1):
                        if i >= 20 - sc: L += [(1, f"v_mul_f32 v{e+2*i+h}, v{e+2*i+h}, v{m+4 if i < 10 else m+2}") for h in range(2)]
                    L += P['out'][2*j:2*j+2] + [w_[j]]
                return L
            sc0, sc1 = o.get('scal', (0, 0))
            fill = tailf(P0, 0, x0, E0, M0_, 0, True) + P1['exp'][hm:] + tailf(P1, 1, x1, E1, M1_, sc1, False)
            self.stamp('head')
        else:
            fill = []
            for rt, x, e in ((0, x0, E0), (1, x1, E1)):
                L = self.phiB(x, e, False)
                fill += L[:-10] + mixw(L[-10:], wr(rt, x, 5, 0))
            self.group_sync(5); self.release(1); self.prime(1, sync=False)
        hooks = {}
        hooks.update(late3)
        PFV = TMP + 94
        ipf, cpf_ = self.checked("L_pf", [f"buffer_load_dwordx2 {vq(PFV, 2)}, v{V_PF}, {srd(SWS)}, s{S_PFL} offen sc1"],
                                 [f"v_xor_b32 v{PFV}, s{S_NONCE}, v{PFV}", f"v_bitop3_b32 v{PFV}, v{PFV}, v{PFV+1}, s{S_NONCE} bitop3:0xf6", f"v_cmp_ne_u32 vcc, 0, v{PFV}"], 'pf')
        pfp = o.get('pfpos', 81)
        if pfp < 100: hooks.setdefault(pfp, []).extend(ipf)
        pre = ["s_mov_b32 exec_hi, 0xff", (f"buffer_load_dword v{V_DUMP}, v{V_L128}, {srd(SO)}, s{S_OP} offen sc1", 'pr'), "s_mov_b64 exec, 1",
               (f"buffer_load_dword v{V_DUMP}, v{V_F8}, {srd(SWS)}, s{S_FLAG} offen sc1", 'pr'), "s_mov_b64 exec, -1"]
        pre1 = []
        if o.get('pre1m') is not None:
            pre1 = ["s_mov_b32 exec_lo, 0xfff00000", "s_mov_b32 exec_hi, 0xff", pre[1], "s_mov_b64 exec, -1"]
            pre = ["s_mov_b64 exec, 0xfffff"] + pre[1:]
        prel = []
        if o.get('prem'):
            n_ = len(o['prem']); o['prepos'] = 2
            for k_, ps_ in enumerate(o['prem']):
                lo_, hi_ = 40 * k_ // n_, 40 * (k_ + 1) // n_
                mk = ((1 << hi_) - 1) ^ ((1 << lo_) - 1)
                L_ = [f"s_mov_b32 exec_lo, {hex(mk & 0xffffffff)}", f"s_mov_b32 exec_hi, {hex(mk >> 32)}", pre[1]] + (pre[2:4] if k_ == 0 else []) + ["s_mov_b64 exec, -1"]
                assert ps_ <= 0 or ps_ > x3 + 5
                if ps_ >= 200: xq.setdefault(ps_ - 200, []).extend(L_)
                elif ps_ >= 100: xv.setdefault(ps_ - 100, []).extend(L_)
                else: prel.append((ps_, L_))
        wp, pp_ = o.get('wopf', -1), o.get('prepos', 0)
        if 100 <= pp_ < 200: hooks.setdefault(pp_ - 100, []).extend(pre)
        vs = o.get('vsync', 0)
        if o.get('v13'): hooks.setdefault(78, []).extend(["s_barrier", lambda: self.release(13)])
        for k_, v_ in xv.items(): hooks.setdefault(k_, []).extend(v_)
        for k_, v_ in enumerate(tagset): hooks.setdefault(41 + k_, []).insert(0, v_)
        vp = o.get('vpace', 4)
        vset = set(range(0, 100, vp))
        if o.get('vsch'):
            vset = set(); n_ = 0
            for cnt_, st_ in o['vsch']:
                for _ in range(cnt_): vset.add(n_); n_ += st_
        VB = TMP
        tmv = o.get('tm', (0, 0, 0))[1]
        lateV = deque()
        for j in range(5):
            for rt in range(2):
                c = self.cvt20(acc(ACC_V, 0, rt), VB + 10 * rt)
                r = 100 - 5 * tmv + tmv * (j + 1) + 1 if tmv else 200
                lateV.extend([(r, 1, c[2*j][1]), (r, 1, c[2*j+1][1]), (r, 2, (f"ds_write_b64 v{V_PW}, {vq(VB+10*rt+2*j, 2)} offset:{rt*1920 + 80 + 8*j}", 'vw'))])
        self.gemm_pass(1, ACC_V, xbp(1), fill=fill, hooks=hooks, last=True, sync=True, late=lateV, frange=(0, o.get('vend', 100)), pace=lambda n: 1 if n in vset else 0)
        self.stamp()
        for k_, (_, _, x) in enumerate(lateV):
            self.put([x])
            if k_ == 14: self.tick()
        NT = 3 if A else 2
        FB = ACC_K
        KV = TMP + 64
        rds = deque()
        own = o.get('kvown', 0)
        def rd(reg, av, off, kk, j):
            for hf in range(2): rds.append((f"ds_read_b64_tr_b16 {vq(reg+2*hf, 2)}, v{av[kk] if own else av[0]} offset:{(0 if own else kk*RW) + hf*120 + off}", ('kv', kk, j)))
        for kk in range(4):
            b = FB + kk * 20
            rd(b, KBV, 80, kk, 'a')
            for nt in range(NT): rd(b + 8 + 4 * nt, KBV, 32 * nt, kk, nt)
            rd(b + 4, KAV, 112, kk, 'z')
        if own:
            p("s_waitcnt lgkmcnt(5)")
            for _ in range(2 * NT + 4): self.put([rds.popleft()])
        self.tick()
        gk = 11
        self.flush_dma(('W', gk)); p.wait(vm=[('W', gk)], lg=['vw', 'pw'])
        p("s_barrier")
        self.release(13); self.release(14)
        def more(k):
            while k > 0 and rds and len(p.lgq) < 15: self.put([rds.popleft()]); k -= 1
        if own: more(5); p.wait(lg=[('kv', 0, 'z')])
        more(o.get('kvi', 15)); self.tick()
        p(f"v_mov_b32 v{TMP+1}, 0xff")
        seq = [(kk, nt) for kk in range(4) for nt in range(NT)]
        ao = deque((kk, f"v_and_or_b32 v{FB+kk*20+4+j}, v{FB+kk*20+4+j}, v{V_KEEP}, v{V_ONE}") for kk in range(4) for j in range(4))
        p.wait(lg=[('kv',) + seq[0]])
        for i_, (kk, nt) in enumerate(seq):
            b = FB + kk * 20
            p(f"{MF} {vq(KV + nt*4)}, {vq(b)}, {vq(b+8+4*nt)}, {'0' if kk == 0 else vq(KV + nt*4)}")
            p.wait(lg=[('kv',) + seq[i_ + 1]] if i_ + 1 < len(seq) else '*')
            k_ = len(rds); more(o.get('kvr', 4))
            for _ in range(max(0, 3 - (k_ - len(rds)))):
                if ao and ('kv', ao[0][0], 'z') not in p.lgq and not any(x[1] == ('kv', ao[0][0], 'z') for x in rds): p(ao.popleft()[1])
        assert not rds
        while len(ao) > 4: p(ao.popleft()[1])
        lastm = 0x00ff00ff if A else 0x000f000f
        def pub(mt, nt):
            a = KV + (mt * 3 + nt) * 4
            L = [(1, f"v_bfi_b32 v{a+j}, v{TMP+1}, s{S_TB+j}, v{a+j}") for j in range(4)]
            va = [V_P1ST, V_P1M, V_P1M + 1, V_P1M + 2][2 * mt + (nt == NT - 1)]
            return L + [(2, (f"buffer_store_dwordx4 {vq(a)}, v{va}, {srd(SWS)}, s{S_P1ST} offen offset:{(4*mt*F + 16*nt)*16 if A else [1024*mt, 1536 + 256*mt][nt]} sc1", 'p1'))]
        self.stamp('kv3')
        mf = [(2, f"{MF} {vq(KV + (3+nt)*4)}, {vq(FB+kk*20+4)}, {vq(FB+kk*20+8+4*nt)}, {'0' if kk == 0 else vq(KV + (3+nt)*4)}") for nt in range(NT) for kk in range(4)]
        pr = [(1, lambda n=n, hf=hf: self.wread(200 + n, hf)) for n in range(D - 1) for hf in range(2)]
        self.put([x for _, x in self.weave(mf, [(1, x[1]) for x in ao] + [y for nt in range(NT) for y in pub(0, nt)] + pr)])
        qhead = [y for nt in range(NT) for y in pub(1, nt)]
        pb = o.get('pubb', 0)
        self.put([x for _, x in qhead[:pb]]); qhead = qhead[pb:]
        self.stamp()
        X = TMP + 8; CK = TMP + 2
        def tagcheck(mask):
            if mask == "0xff":
                L = [f"v_xor_b32 v{X+j}, s{S_TB+j%4}, v{X+j}" for j in range(4 * NI)] + [f"v_or_b32 v{CK}, v{X}, v{X+1}"]
                L += [f"v_or3_b32 v{CK}, v{CK}, v{X+j}, v{X+j+1}" for j in range(2, 4 * NI, 2)]
            else:
                L = [f"v_xor_b32 v{CK}, s{S_NONCE}, v{X}"] + [f"v_bitop3_b32 v{CK}, v{CK}, v{X+j}, s{S_NHI if j % 2 else S_NONCE} bitop3:0xf6" for j in range(1, 4 * NI)]
            return L + [f"v_and_b32 v{CK}, {mask}, v{CK}", f"v_cmp_ne_u32 vcc, 0, v{CK}"]
        lds_ = []
        for ii in range(NI):
            lds_ += [f"s_add_u32 s{T0}, s{S_P1LD}, {ii * (65536 // NI)}", f"buffer_load_dwordx4 {vq(X+4*ii)}, v{V_P1LD}, {srd(SWS)}, s{T0} offen sc1"]
        adds = [f"v_add_f32 v{X+j}, v{X+j}, v{X+4*ii+j}" for ii in range(1, NI) for j in range(4)]
        if o.get('h1pipe'):
            iss, chk = self.checked("L_h1", lds_, tagcheck("0xff"), 'h1', redo=adds)
            iss = [(x[0], ('h1', k_ // 2)) if isinstance(x, tuple) else x for k_, x in enumerate(iss)]
            c2 = []
            for ii in range(NI):
                c2 += [(0, lambda ii=ii: p.wait(vm=[('h1', ii)]))] + [(1, f"v_xor_b32 v{X+4*ii+j}, s{S_TB+j}, v{X+4*ii+j}") for j in range(4)]
                c2 += [(1, f"v_or_b32 v{CK}, v{X}, v{X+1}" if ii == 0 else f"v_or3_b32 v{CK}, v{CK}, v{X+4*ii}, v{X+4*ii+1}"), (1, f"v_or3_b32 v{CK}, v{CK}, v{X+4*ii+2}, v{X+4*ii+3}")]
                if ii == NI - 1: c2 += chk[-3:-1]
                if ii: c2 += [(1, y) for y in adds[4*ii-4:4*ii]]
            chk = c2 + chk[-1:]; red = []
        else:
            iss, chk = self.checked("L_h1", lds_, tagcheck("0xff"), 'h1')
            red = list(adds)
        red += [f"v_permlane32_swap_b32 v{X}, v{X+2}", f"v_permlane32_swap_b32 v{X+1}, v{X+3}", f"v_add_f32 v{X}, v{X}, v{X+2}", f"v_add_f32 v{X+1}, v{X+1}, v{X+3}",
                f"v_mov_b32 v{CK}, 0xffff", f"v_permlane16_swap_b32 v{X}, v{X+1}", f"v_add_f32 v{X}, v{X}, v{X+1}"]
        if not A: red.append(f"v_add_f32_dpp v{X}, v{X}, v{X} row_ror:8 row_mask:0xf bank_mask:0xf")
        red += [f"v_cvt_pk_bf16_f32 v{X}, v{X}, v{X}", f"v_bfi_b32 v{X}, v{CK}, v{V_VW}, v{X}"]
        st = (f"buffer_store_dword v{X}, v{V_P2ST}, {srd(SWS)}, s{S_P2ST} offen sc1", 'p2')
        sts = [st]
        for _ in range((1 << o.get('p2log', 2)) - 1): sts += [f"s_add_u32 s{S_P2ST}, s{S_P2ST}, {1 << 18}", st]
        if A and o.get('h1pipe'):
            red += [sts[0:1]] + [sts[k_:k_+2] for k_ in range(1, len(sts), 2)]
        else: red.append(sts if A else ["s_mov_b32 exec_lo, 0x00ff00ff", "s_mov_b32 exec_hi, 0x00ff00ff"] + sts + ["s_mov_b64 exec, -1"])
        n1, n2 = o.get('h1', (62, 84))
        hooks = {n1 + k: iss[2*k:2*k+2] for k in range(NI)}
        if pfp >= 100: hooks.setdefault(pfp - 100, []).extend(ipf)
        for k_, v_ in xq.items(): hooks.setdefault(k_, []).extend(v_)
        c_ = [x for _, x in cpf_]
        pc = o.get('pfchk', 13)
        hooks.setdefault(pc, []).extend(c_[:3]); hooks.setdefault(pc + 1, []).extend(c_[3:4]); hooks.setdefault(pc + 3, []).extend(c_[4:] + [lambda: setattr(self, 'pfok', True)])
        if 200 <= pp_ < 300: hooks.setdefault(pp_ - 200, []).extend(pre)
        qh = deque(qhead)
        for n in range(20): hooks.setdefault(n, []).append(lambda: self.gap(qh, 2))
        qb_ = o.get('qb', (30, 53, 66, 80))
        assert 18 <= qb_[0] <= 34 and 38 <= qb_[1] <= 54 and 58 <= qb_[2] <= 74 and 78 <= qb_[3] <= 98
        busy = sorted([(pc, pc + 3), (n1, n1 + NI), (n2, min(100, n2 + o.get('h1len', 16)) + 1)] + ([(x3 - 200, x3 - 195)] if x3 >= 200 else []))
        assert all(a_[1] < b_[0] for a_, b_ in zip(busy, busy[1:])), busy
        assert pfp - 100 < pc and x2 < x3 and (pp_ < 100 or pp_ > x3 + 5)
        for fr_, pubg, rel in [(qb_[0], 12, [15]), (qb_[1], 13, [16]), (qb_[2], 14, [17]), (qb_[3], 14, [18])]:
            hooks.setdefault(fr_, []).extend([lambda g=pubg: self.group_sync(g)] + [lambda r=r: self.release(r) for r in rel])
        lateQ = None
        if A:
            P0 = self.phiA_parts(x0, E0, M0_, "L_q0", True); P1 = self.phiA_parts(x1, E1, M1_, "L_q1", True)
            lateQ = early(2, P0, P1)
        self.gemm_pass(2, ACC_K, xbp(2), late=lateQ, fill=chk + [(2 if isinstance(x, list) and o.get('h1pipe') else 1, x) for x in red], hooks=hooks, last=True, sync=False, frange=(n2, min(100, n2 + o.get('h1len', 16))),
                       pace=lambda n: 1 if (n >= 9 and n % (o.get('qpace', 3) if n < o.get('qsw', 42) else o.get('qpace2', 3)) == 0 and not n1 <= n < n1 + NI) else 0)
        assert not qh
        p("s_barrier")
        [self.release(r) for r in range(15, 20)]
        self.stamp()
        X = TMP + 96; CK = TMP + 92
        lds_ = [f"buffer_load_dwordx4 {vq(X+4*ii)}, v{V_LIN if ii < NI-1 else V_GAL}, {srd(SWS)}, s{S_P2LD} offen offset:{1024*ii if ii < NI-1 else 0} sc1" for ii in range(NI)]
        PB = TMP + 8
        img = [y for ii in range(NI) for y in (f"v_perm_b32 v{PB+2*ii}, v{X+4*ii+1}, v{X+4*ii}, s{S_PERM}", f"v_perm_b32 v{PB+2*ii+1}, v{X+4*ii+3}, v{X+4*ii+2}, s{S_PERM}",
                                               f"ds_write_b64 v{V_LA+ii}, {vq(PB+2*ii, 2)}")]
        iss, chk = self.checked("L_h2", lds_, tagcheck("0xffff"), 'h2', redo=img)
        zw = [f"v_mov_b32 v{CK}, 0", f"v_mov_b32 v{CK+1}, 0", f"ds_write_b64 v{V_ZA}, {vq(CK, 2)}"]
        if not A: self.put(zw)
        for k_ in range(o.get('dirty', 0)):
            p(f"s_add_u32 s{T0}, s{S_OP}, {(9 << 20) + (k_ // 5) * (6 << 20) + (k_ % 5) * 1024}")
            p(f"buffer_store_dwordx4 v[2:5], v{V_LIN}, {srd(SWS)}, s{T0} offen {o.get('dirtyf', '')}")
        if o.get('prepos', 0) == 1: self.put(pre)
        if not A:
            for tt in range(6): p(f"v_accvgpr_write_b32 a{40+4*(3*tt+2)+2}, 0"); p(f"v_accvgpr_write_b32 a{40+4*(3*tt+2)+3}, 0")
        if A:
            r0, r1 = split(lateQ, P0)
            L_, ne = headA(P0, P1, r0, r1, {0: [dm], 2: [(0, zw)]} if not r1 else {}, {})
            L = L_ + P0['exp'][ne:] + P0['norm'] + P0['out'] + P1['exp'] + P1['norm'] + P1['out']
            if r1: self.put(zw)
        else:
            L = []
            for x, e in ((x0, E0), (x1, E1)):
                L += self.phiB(x, e, True) + [(1, f"v_mov_b32 v{x+10}, 0"), (1, f"v_mov_b32 v{x+11}, 0")]
        d1_, d2_ = o.get('oshift', (0, 0))
        Ld2 = L[len(L) - d2_:]; L = L[:len(L) - d2_]
        Ld1 = L[len(L) - d1_:]; L = L[:len(L) - d1_]
        tot = sum(c for c, _ in L)
        ev = [(tot - o.get('h2lead', 60), iss)]
        if o.get('prepos', 0) == 0 and o.get('prelead', 0) >= 0: ev.append((tot - o.get('prelead', o.get('h2lead', 60)) + 0.5, pre))
        if (o.get('pre1m') or 0) < -1: ev.append((tot + o['pre1m'] + 0.5, pre1))
        for ps_, L_ in prel: ev.append((tot + ps_ + 0.5, L_))
        L2 = []; c = 0; ev.sort(key=lambda e_: e_[0])
        for it_ in L + [(0, [])]:
            while ev and c >= ev[0][0] - (0.5 if it_[0] == 0 else 0): L2.append((0, ev.pop(0)[1]))
            L2.append(it_); c += it_[0]
        assert not ev
        self.run(L2, every=o.get('qev', 44))
        self.flush_dma(('W', 17))
        self.stamp()
        self.put([chk[0][1]] + img + [x for _, x in chk[1:]])
        if o.get('prepos', 0) == 0 and o.get('prelead', 0) < 0: self.put(pre)
        if o.get('pre1m') == -1: self.put(pre1)
        self.put([x for _, x in Ld1])
        p(f"s_cmp_eq_u32 s{S_FAST}, 0")
        p.wait(vm=[('W', 17)], lg='*')
        p("s_barrier")
        self.stamp()
        assert not self.dq or True
        import copy
        if o.get('stamps'): p(f"s_cmp_eq_u32 s{S_FAST}, 0")
        p(f"s_cbranch_scc0 L_tail{self.sfx}s")
        env = dict(RS=RS, M0_=M0_, M1_=M1_, Ld2=Ld2, pre1=pre1)
        sv = (self.p, self.sfx, self.nst, getattr(self, 'cs', 0), deque(self.dq))
        self.p = Prog(); self.p.vmq = list(p.vmq); self.p.lgq = list(p.lgq); self.sfx += 's'
        self.p(f"L_tail{self.sfx}:")
        self.tail(False, **env)
        self.ool.append(self.p.finalize())
        self.p, self.sfx, self.nst, self.cs, self.dq = sv
        self.tail(True, **env)
        return p.finalize() + "".join(self.ool)
    def tail(self, fast, RS, M0_, M1_, Ld2, pre1):
        p = self.p; A = self.A; o = self.o; br = 0 if A else 1
        def more(k):
            while k > 0 and rds and len(p.lgq) < 15: self.put([rds.popleft()]); k -= 1
        OA = ACC_V
        NU = 5 if A else 3
        SP = TMP + 112
        OB = TMP + 64
        LO = TMP + 80
        fr = [(tt, u_) for tt in (5, 0, 1, 2, 3, 4) for u_ in range(NU)]
        AO = 40
        rds = deque()
        for n, (tt, u_) in enumerate(fr):
            if not A and u_ == 2: rds.append((f"ds_read_b64 {aq(AO+4*n, 2)}, v{V_FR2} offset:{4*tt*RS + 16*u_}", ('of', n)))
            else: rds.append((f"ds_read_b128 {aq(AO+4*n)}, v{V_FR2} offset:{4*tt*RS + 16*u_}", ('of', n)))
        more(10)
        if A: p(f"v_mov_b32 v{SP}, v{M0_}"); p(f"v_mov_b32 v{SP+1}, v{M1_}")
        self.put([x for _, x in Ld2])
        def ost(txt, tag='o'):
            p(txt + ("" if fast else " sc1"), tag)
        def flag(k): ost(f"buffer_store_dword v{V_NONCE}, v{V_FOWN}, {srd(SWS)}, s{S_FLAG} offen offset:{32*k}", 'fl')
        def poll(k, name):
            iss, chk = self.checked(name, [f"buffer_load_dword v{V_DUMP}, v{V_F8}, {srd(SWS)}, s{S_FLAG} offen offset:{32*k} sc1"], [f"v_cmp_ne_u32 vcc, s{S_NONCE}, v{V_DUMP}"], name)
            return iss, [x for _, x in chk]
        order = [(0, k) for k in range(5)] + [(1, k) for k in range(5)] + [(0, 5), (1, 5)]
        epi = deque()
        for z, (rt, k) in enumerate(order):
            dn = OA + (rt * 6 + 5) * 4
            b = OA + rt * 24
            rdy = (z + 1) * NU + o.get('rdy', 4)
            if k == 0:
                epi.append((rdy, 1, f"v_fmac_f32 v{dn}, {EPS}, v{SP+rt}" if A else f"v_add_f32 v{dn}, {EPS}, v{dn}")); epi.append((rdy, 2, f"v_rcp_f32 v{dn}, v{dn}"))
                continue
            tt = k - 1
            for r in range(4): epi.append((rdy, 1, f"v_mul_f32 v{b+4*tt+r}, v{b+4*tt+r}, v{dn}"))
            for h in range(2):
                i = 2 * tt + h
                d = OB + ((i // 4) * 2 + rt) * 4 + i % 4 if i < 8 else LO + 2 * rt + (i - 8)
                epi.append((rdy, 1, f"v_cvt_pk_bf16_f32 v{d}, v{b+2*i}, v{b+2*i+1}"))
            if tt in (1, 3):
                u_ = tt // 2
                epi.append((0, 2, lambda u_=u_, rt=rt: ost(f"buffer_store_dwordx4 {vq(OB+(u_*2+rt)*4)}, v{V_OO+rt*2+u_}, {srd(SO)}, s{S_OP} offen", ('S', rt))))
        epi.append((0, 2, lambda: ost(f"buffer_store_dwordx4 {vq(LO)}, v{V_OO+4}, {srd(SO)}, s{S_OP} offen", ('S', 1))))
        TM_ = o.get('tmaj', 3); LD = o.get('lead', 8); DF = o.get('df', 11); A_RING = A_PHI
        items = [(P, t_, (0, 1)) for P in range(2) for t_ in range(5)] + [(P, t_, (0,)) for P in range(2, 2 + LD) for t_ in range(5)] + \
                [(P, t_, (0, 1)) for P in range(2 + LD, 20) for t_ in range(5)] + [(P, t_, (1,)) for P in range(2, 2 + LD - TM_) for t_ in range(5)] + \
                [(P, t_, (1,)) for t_ in range(5) for P in range(2 + LD - TM_, 2 + LD)]
        def fread(i, hf):
            P, t_, _ = items[i]
            if True:
                if hf == 0:
                    off = RING + P * 5120 + 1024 * t_; hi = off >= 51200; s_ = A_RING + (i % DF) * 4
                    p(f"ds_read_b128 a[{s_}:{s_+3}], v{V_LINH if hi else V_LIN} offset:{off - 51200*hi}", ('FF', i))
                return
            off = RING + (P // 4) * SLOT + (P % 4) * 5120 + hf * 2560 + 8 * t_
            hi = off >= 51200; s_ = A_RING + (i % DF) * 4 + 2 * hf
            p(f"ds_read_b64_tr_b16 a[{s_}:{s_+1}], v{V_WT + hi} offset:{off - 51200*hi}", ('FF', i))
        pr = deque((i, 0) for i in range(DF - 1))
        m = 0; mf0 = o.get('mf0', 54 if A else 36); seen = set()
        for rt, k in order:
            for u_ in range(NU):
                n = k * NU + u_; tt = fr[n][0]
                a = OA + (rt * 6 + tt) * 4
                if m == 0: p.wait(lg=[('of', 0)])
                p(f"{MF} {vq(a)}, {aq(AO+4*n)}, {vq(ACC_K+20*rt+4*u_)}, {'0' if u_ == 0 else vq(a)}")
                m += 1
                if n + 1 < len(fr): p.wait(lg=[('of', n + 1)])
                bud = 2 if A else 3
                if m == mf0:
                    assert sum(1 for x in p.ins if x.tag == ('S', 0)) == 2
                    p.wait(vm=[('S', 0)]); flag(0); bud -= 2
                elif m == o.get('pre1m'): self.put(pre1); bud -= 2
                elif rds: more(1); bud -= 1 if not (epi and epi[0][0] <= m and epi[0][1] == 2) else 0
                elif self.dq and m % o.get('opace', 8) == 0: self.tick(); bud -= 2
                elif pr and not (epi and epi[0][0] <= m): fread(*pr.popleft()); bud -= 1
                while epi and epi[0][0] <= m and epi[0][1] <= bud:
                    _, c, x = epi.popleft(); bud -= c
                    self.put([x])
                    if callable(x): break
        while pr: fread(*pr.popleft())
        while len(epi) > 7: self.put([epi.popleft()[2]])
        while self.tick(): pass
        self.stamp()
        def ob(ks, rt):
            if ks < 2: return vq(OB + (ks * 2 + rt) * 4)
            return aq((ks * 2 + rt) * 4) if ks < 16 else vq(LO + (2 * (ks - 16) + rt) * 4)
        ofl = o.get('ofl', 'sc1') if fast else 'sc1'
        def ld(P, rt):
            if P < 16: return [(f"buffer_load_dwordx4 {aq((P*2+rt)*4)}, v{V_OO+rt*2+P%2}, {srd(SO)}, s{S_OP + P//2} offen {ofl}", ('O', P, rt))]
            return [(f"buffer_load_dwordx4 {vq(LO+(2*(P-16)+rt)*4)}, v{V_OO+4}, {srd(SO)}, s{S_OP + 2*(P-16) + rt} offen {ofl}", ('O', P, rt))]
        i0, c0 = poll(0, "L_f0"); i1, c1 = poll(1, "L_f1"); i2, c2 = poll(2, "L_d0"); i3, c3 = poll(3, "L_d1")
        L0x = min(16, 2 + LD + o.get('xlead', 0))
        if o.get('nod'):
            if '0' in o['nod']: i2 = []; c2 = [[], [], c2[2][1:]]
            if '1' in o['nod']: i3 = []; c3 = [[], [], c3[2][1:]]
        lead = [ld(P, 0) for P in range(2, L0x)]
        rest = [ld(P, rt) for P in range(2 + LD, 20) for rt in range(2) if (P, rt) != (16, 0) and not (rt == 0 and P < L0x)] + [ld(P, 1) for P in range(2, 2 + LD)]
        def handshake():
            p.wait(vm=[('S', 1), ('W', 18), ('W', 19)])
            flag(1)
            self.put(c0)
            self.stamp()
            self.q(0, lead); self.q(10**6 + 50, rest)
            for k_ in range(o.get('oprime', 7)):
                self.tick()
                if k_ == 3: p("s_barrier")
                if k_ == 3 and o.get('p1it', -1) < 0: self.put(i1)
            p.wait(vm=[('O', 2, 0)])
        E0 = len(items) - 5 * LD
        NI_ = len(items)
        def outp(rt):
            b = TMP + 8
            c = self.cvt20(acc(ACC_K, 0, rt), b)
            L = []
            for j in range(5): L += [c[2*j][1], c[2*j+1][1], (f"ds_write_b64 v{V_OW}, {vq(b+2*j, 2)} offset:{rt*16*OUTS + 8*j}", 'ow')]
            L += [(f"ds_read_b128 {vq(TMP+24+4*j)}, v{V_ORD+j} offset:{rt*16*OUTS}", ('or', j)) for j in range(3)]
            S_ = [(f"buffer_store_dwordx4 {vq(TMP+24+4*j)}, v{V_OG+j}, {srd(SOUT)}, s{S_OUT} offen", 'out') for j in range(3)]
            return L, S_
        vw, lw, sc_, vec = {}, {}, {}, {}
        add = lambda d, i, L: d.setdefault(i, []).extend(L)
        def check(i, c, tag, gapn):
            add(vw, i, [tag]); add(vec, i, [c[1]]); add(sc_, i + gapn, [c[2]])
        ep = [x[2] for x in epi]
        add(vec, 1, ep[:3]); add(vec, 2, ep[3:6]); add(vec, 3, ep[6:])
        add(vec, o.get('p0pos', 4), i0)
        add(vec, 9, [handshake])
        if o.get('p1it', -1) >= 0: add(vec, 10 + o.get('p1it', -1), i1)
        ci = 10 + o.get('c1pos', 5); check(ci, c1, "L_f1", 2); add(sc_, ci + 2, [lambda: self.release(50)])
        for i in range(15, NI_ - 5 * TM_ + 1, 5):
            if i == NI_: break
            Pn, _, rn = items[i]
            tags = [('O', Pn, rt) for rt in rn]
            if i == NI_ - 5 * TM_: tags = [('O', 1 + LD, 1)]
            if Pn >= 16:
                a = LO + 2 * (Pn - 16) * 4
                add(vw, i - 2, tags); add(vec, i - 2, [f"v_swap_b32 v{a+2}, v{a+4}", f"v_swap_b32 v{a+3}, v{a+5}"])
            else: add(vw, i - 1, tags)
        nd0 = E0 - o.get('d0', 8); add(vw, nd0, [('O', 19, 0), ('O', 19, 1)]); add(vec, nd0, [lambda: flag(2)])
        add(vec, E0 + o.get('d0p', 0), i2)
        L0, S0 = outp(0)
        for j, x in enumerate(L0): add(vec, E0 + 2 + j, [x])
        nd1 = NI_ - o.get('d1', 24); (add(vw, nd1, [('O', 1 + LD, 1)]), add(vec, nd1, [lambda: flag(3)])) if '1' not in o.get('nod', '') else None
        check(E0 + 22, c2, "L_d0", 2)
        for j, x in enumerate(S0): add(lw, E0 + 25 + 2 * j, [('or', j)]); add(vec, E0 + 25 + 2 * j, [x])
        L1, S1 = outp(1)
        n1e = 0
        if TM_:
            for j in range(15):
                pos = NI_ - 5 * TM_ + (j // 3 + 1) * TM_ + 2 + j % 3
                if pos < NI_: add(vec, pos, [L1[j]]); n1e = j + 1
        add(vec, NI_ - o.get('d1p', 8), i3)
        add(sc_, NI_ - 5, [f"s_or_b32 s{T0}, s{S_RB}, s{S_HEAD}"]); add(sc_, NI_ - 4, [f"s_cmp_lg_u32 s{T0}, 0"]); add(sc_, NI_ - 3, [f"s_cselect_b32 s{T0}, {WS_SIZE}, 0"])
        add(vec, NI_ - 2, [(f"buffer_store_dword v{V_NONCE}, v{V_FOWN}, {srd(SWS)}, s{T0} offen offset:{br*128} sc1", 'nn')])
        assert ci + 2 < E0 + o.get('d0p', 0) < E0 + 22 and E0 + 24 < NI_ - o.get('d1p', 8) and nd1 < NI_ - o.get('d1p', 8) and nd0 < E0 + o.get('d0p', 0)
        assert 3 < o.get('p0pos', 4) <= 9 and E0 + 29 < NI_ - 5 * TM_ + TM_ + 2 + 15
        p.wait(lg=[('FF', 0)])
        clk = 0.0; per = o.get('lper', 4.6)
        for i, (P, t_, rts) in enumerate(items):
            s_ = A_RING + (i % DF) * 4
            for z, rt in enumerate(rts):
                a = acc(ACC_K, t_, rt)
                p(f"{MF} {vq(a)}, {aq(s_)}, {ob(P, rt)}, {'0' if P == 0 else vq(a)}")
                if z == 0:
                    k0 = len(p.ins)
                    for tg in vw.get(i, []): self.flush_dma(tg)
                    p.wait(vm=vw.get(i), lg=[('FF', i + 1)] + lw.get(i, []))
                    if len(rts) == 1: self.put(sc_.get(i, []))
                    if i + DF - 1 < NI_:
                        if len(p.ins) == k0: p("s_nop 0")
                        fread(i + DF - 1, 0)
                else: self.put(sc_.get(i, []))
            self.stamp('z%d' % i)
            if i >= 10:
                clk += len(rts)
                if clk >= per and i not in vec and self.tick(): clk -= per
            self.put(vec.get(i, []))
        self.stamp()
        p(f"s_add_u32 s{S_OUT}, s{S_OUT}, {16*2560}")
        self.put(L1[n1e:12]); self.put(c3[:2]); self.put(L1[12:]); self.put(c3[2:])
        for j in range(3): p.wait(lg=[('or', j)]); self.put([S1[j]])
        if o.get('stamps'):
            p("s_waitcnt vmcnt(0)")
            self.stamp()
            p("s_memrealtime s[100:101]")
            p("s_waitcnt lgkmcnt(0)")
            p.raw(f"""
            s_lshl_b32 s{T0}, s2, 2
            s_add_u32 s{T0}, s{T0}, s{S_W}
            s_lshl_b32 s{T0}, s{T0}, 6
            s_add_u32 s{T0}, s{T0}, {WS_ST}
            v_mov_b32 v{TMP+16}, 0
            v_mov_b32 v{TMP}, s98
            v_mov_b32 v{TMP+1}, s100
            """)
            for k in range(14): p(f"v_mov_b32 v{TMP+2+k}, {'s%d' % (S_ST+k) if k < self.nst else ('s95' if k == 13 else 0)}")
            p("s_mov_b64 exec, 1")
            for k in range(4): p(f"buffer_store_dwordx4 {vq(TMP+4*k)}, v{TMP+16}, {srd(SWS)}, s{T0} offen offset:{16*k}")
        if o.get('cntm'):
            wbd = "" if not o.get('wbd') else f"""s_lshr_b32 s{T0}, s2, 3
            s_or_b32 s{T0}, s{T0}, s{S_W}
            s_cmp_lg_u32 s{T0}, 0
            s_cbranch_scc1 L_wb2{self.sfx}
            L_wb1{self.sfx}:
            s_sleep 2
            s_memrealtime s[64:65]
            s_waitcnt lgkmcnt(0)
            s_sub_u32 s{T1}, s64, s98
            s_cmp_lt_u32 s{T1}, 2500
            s_cbranch_scc1 L_wb1{self.sfx}
            buffer_wbl2 sc1
            s_waitcnt vmcnt(0)
            L_wb2{self.sfx}:"""
            p.raw(f"""
            s_load_dwordx2 s[62:63], s[0:1], 64
            v_mov_b32 v2, 0
            v_mov_b32 v3, s95
            s_waitcnt lgkmcnt(0)
            s_cmp_eq_u32 s95, 0
            s_cbranch_scc1 L_cn0{self.sfx}
            s_mov_b64 exec, 1
            global_atomic_add v2, v3, s[62:63] sc1
            L_cn0{self.sfx}:
            {wbd}
            s_or_b32 s{T0}, s{S_RB}, s{S_HEAD}
            s_cmp_lg_u32 s{T0}, 0
            s_cbranch_scc1 L_cn2{self.sfx}
            s_movk_i32 s{T0}, 3500
            s_mov_b32 s{T2}, 0
            L_cn1{self.sfx}:
            s_sleep 2
            s_memrealtime s[64:65]
            s_waitcnt lgkmcnt(0)
            s_sub_u32 s{T1}, s64, s98
            s_cmp_lt_u32 s{T1}, s{T0}
            s_cbranch_scc1 L_cn1{self.sfx}
            s_cmp_eq_u32 s{T2}, 1
            s_cbranch_scc1 L_cn2{self.sfx}
            global_load_dword v3, v2, s[62:63] sc1
            s_waitcnt vmcnt(0)
            v_readfirstlane_b32 s{T0}, v3
            s_min_u32 s{T0}, s{T0}, 1024
            s_mul_i32 s{T0}, s{T0}, 20
            s_add_u32 s{T0}, s{T0}, 4000
            s_mov_b32 s{T2}, 1
            s_branch L_cn1{self.sfx}
            L_cn2{self.sfx}:
            """)
        if o.get('amp'):
            p("s_waitcnt vmcnt(0)")
            self.stamp()
            if o['amp'][0] < 0: p("s_mov_b32 s100, s98")
            p.raw(f"""
            s_and_b32 s{T0}, s2, 7
            s_lshr_b32 s{T0}, {o['amp'][2]}, s{T0}
            s_bitcmp1_b32 s{T0}, 0
            s_cbranch_scc0 L_ampx{self.sfx}
            s_load_dwordx2 s[62:63], s[0:1], 64
            v_mov_b32 v2, 0
            s_waitcnt lgkmcnt(0)
            global_load_dword v3, v2, s[62:63] sc1
            s_waitcnt vmcnt(0)
            v_readfirstlane_b32 s{T2}, v3
            s_not_b32 s{T2}, s{T2}
            s_sub_u32 s{T0}, s100, s{T2}
            s_add_u32 s{T0}, s{T0}, 300
            s_mul_i32 s{T0}, s{T0}, {o['amp'][1]}
            s_min_u32 s{T0}, s{T0}, 100000
            L_amp{self.sfx}:
            s_sleep 2
            s_memrealtime s[64:65]
            s_waitcnt lgkmcnt(0)
            s_sub_u32 s{T1}, s64, s{T2}
            s_cmp_lt_u32 s{T1}, s{T0}
            s_cbranch_scc1 L_amp{self.sfx}
            L_ampx{self.sfx}:
            """)
        p("s_endpgm")
        assert not self.dq

def sizes(lines):
    import subprocess, re
    src = '.amdgcn_target "amdgcn-amd-amdhsa--gfx950"\n.text\n' + "\n".join(lines) + "\n"
    r = subprocess.run(["llvm-mc", "-triple=amdgcn-amd-amdhsa", "-mcpu=gfx950", "-show-encoding"], input=src, capture_output=True, text=True)
    assert r.returncode == 0, r.stderr[:2000]
    return [len(m.split(',')) for m in re.findall(r'encoding: \[([^\]]*)\]', r.stdout)]
def add_hops(text, sfx, align=True):
    lines = text.split("\n")
    i0 = lines.index(f"L_main{sfx}:"); i1 = next(i for i in range(i0, len(lines)) if lines[i].strip() == "s_endpgm")
    body = lines[i0 + 1:i1]
    isi = lambda l: l.startswith("    ")
    szl = sizes([l for l in body if isi(l)])
    insl = [l.strip() for l in body if isi(l)]
    big = [z == 8 and t.startswith("v_") and not t.startswith("v_mfma") for z, t in zip(szl, insl)]
    run = [0] * (len(big) + 1)
    for k in range(len(big) - 1, -1, -1): run[k] = run[k + 1] + 1 if big[k] else 0
    sz = iter(szl); k = -1; nfix = 0
    out = []; addr = 0; page = 0; prev = "v_mfma"
    for l in body:
        if isi(l):
            k += 1
            if align and run[k] >= 3 and addr % 8 == 4:
                pv = out[-1] if isinstance(out[-1], str) else ""
                op = pv.split()[0] if pv.strip() else ""
                if isi(pv) and szl[k - 1] == 4 and op.startswith("v_") and not op.startswith(("v_cmp", "v_swap", "v_permlane", "v_readfirst")):
                    out[-1] = pv.replace(op, op + "_e64", 1); addr += 4; nfix += 1
                elif run[k] >= 6: out.append("    s_nop 0"); addr += 4; nfix += 1
            off = addr - page * 4096
            if off >= 0 and (prev.startswith("v_mfma") or off >= 40) and not prev.startswith("s_mov_b64 exec") :
                out.append(("hop", page)); addr += 4; page += 1
            addr += next(sz); prev = l.strip()
        out.append(l)
    assert page >= 4
    res = []
    for x in out:
        if isinstance(x, tuple):
            k = x[1]
            res += [f"L_hop{k}{sfx}:", f"    s_cbranch_execz " + (f"L_hop{k+4}{sfx}" if k + 4 < page else f"L_hopret{sfx}")]
        else: res.append(x)
    print(sfx, "main bytes", addr, "align fixes", nfix, file=sys.stderr)
    return "\n".join(lines[:i0 + 1] + res + lines[i1:])

def build(opt):
    ref = open(f"cdna_kernels/{NAME}.s.ref").read().split("\n")
    head = [l for l in ref if l.startswith(";") and "@launch" not in l]
    s = "\n".join(head) + "\n; @launch grid=(256,1,1) block=(256,1,1) lds=163840\n"
    s += f""".amdgcn_target "amdgcn-amd-amdhsa--gfx950"
.text
.globl {NAME}_kernel
.p2align 12
.p2align 8
.type {NAME}_kernel,@function
{NAME}_kernel:
    ;  kv / z       : per-workgroup partials, reduce-scatter + all-gather through d_ws; every word carries a launch tag
    s_cmp_ge_u32 s2, 256
    s_cbranch_scc1 L_exit
"""
    ga = Gen(True, opt); ta = ga.body(); gb = Gen(False, opt); tb = gb.body()
    ca, ra = ta.split(".split\n"); cb, rb = tb.split(".split\n")
    assert ca == cb
    if opt.get('hops', 1): ra = add_hops(ra, 'A', opt.get('align', 1)); rb = add_hops(rb, 'B', opt.get('align', 1))
    s += ca + ra + "L_exit:\n    s_endpgm\n.p2align 12\n" + rb
    s += ".fill 2048, 4, 0xbf810000\n"
    s += f""".section .rodata,"a"
.p2align 6
.amdhsa_kernel {NAME}_kernel
  .amdhsa_next_free_vgpr 512
  .amdhsa_next_free_sgpr 102
  .amdhsa_accum_offset 256
  .amdhsa_group_segment_fixed_size 0
  .amdhsa_kernarg_size 80
  .amdhsa_user_sgpr_count 2
  .amdhsa_user_sgpr_kernarg_segment_ptr 1
  .amdhsa_system_sgpr_workgroup_id_x 1
.end_amdhsa_kernel
"""
    print("nops", ga.p.nops, gb.p.nops, "instrs", len(ga.p.ins), len(gb.p.ins), "autow", getattr(ga.p, 'autow', 0), file=sys.stderr)
    return s

if __name__ == "__main__":
    import json
    opt = json.loads(sys.argv[2]) if len(sys.argv) > 2 else {}
    open(sys.argv[1], "w").write(build(opt))
```

```python
import sys
from collections import deque
from emit import Prog
NAME = "concat_heads__linear_kernel_hedgehog__linear_attn_block__prompt"

S_RB, S_HG, S_W = 4, 5, 7
SX, SW, SWO, SWS, SOUT, SPHI = 8, 12, 16, 20, 24, 28
S_NONCE = 32
S_WROW = 33
S_XBASE, S_XU = 38, 39
S_LW, S_LR = 40, 41
T0, T1, T2, T3 = 42, 43, 44, 45
S_WOROW = 46
S_HEAD = 51
S_SPIN = 52
S_FAST = 53
S_L2E, S_NL2E = 54, 55
S_OB = 56
S_WS, S_XS = 57, 58
S_FLAG = 59
S_OP = 60
S_P1ST, S_P1LD, S_P2ST, S_P2LD, S_OWN, S_OUT, S_XCCV, S_PERM = 68, 69, 70, 71, 72, 73, 74, 75
S_KA = 76
S_ST = 76
import os
if os.environ.get('PRO'): S_ST = 88
def srd(b): return f"s[{b}:{b+3}]"
V_LANE = 1
V_WO = 2; V_OF = 7; V_OL = 12; V_XO = 17; V_XR = 21; V_WT = 23; V_LIN = 25
V_PW, V_VW, V_KB, V_KA0, V_KA1, V_FR = 26, 27, 28, 29, 30, 31
ACC_K, ACC_V = 32, 72
TMP = 112
PV = 228
V_P1ST, V_P1LD, V_P2ST, V_GAL, V_LA, V_FR2, V_KEEP, V_ONE, V_OW, V_ORD, V_OG, V_F8, V_DUMP, V_ZA = PV, PV+1, PV+2, PV+3, PV+4, PV+8, PV+9, PV+10, PV+11, PV+12, PV+17, PV+22, PV+23, PV+24
V_L128, V_NONCE, V_FOWN = PV + 25, PV + 26, PV + 27
RING = 0; SLOT = 20480; RBASE = 102400; RW = 15360
OUTL = RBASE + 16384; OUTS = 176
WS_FLAG, WS_XCC, WS_P2, WS_P1, WS_O, WS_ST = 4096, 32768, 5 << 20, 1 << 20, 8 << 20, 16 << 20
WS_SIZE = 32 << 20
D = 6
A_RING = 220
A_PHI = 160
A_PARK = 244
V_OO = 7; V_LINH = 12; V_PF = 13; V_P1M = 14
WS_PF = 49152; WS_PK = 6 << 20
S_USRC, S_UDST, S_UFL, S_UTAG, S_PFL, S_XA = 3, 6, 72, 90, 91, 93
S_TB = SX
S_NHI = 38
SO = SPHI
SPIN_MAX = 100000
EPS = "0x358637bd"

def vq(b, n=4): return f"v[{b}:{b+n-1}]"
def aq(b, n=4): return f"a[{b}:{b+n-1}]"
def acc(base, t, rt): return base + (rt * 5 + t) * 4
MF = "v_mfma_f32_16x16x32_bf16"

DEF = {'A': dict(h1pipe=1, xpos=(117, 190, 222), qpace=4, pfpos=101, pfchk=28, prokeep=4, proev=60, h1=(48, 74), h1len=8, h2lead=160, prelead=125, kpace=4, hx=26, d0=11, vsync=1, qev=26), 'B': dict(h1pipe=1, xpos=(117, 190, 222), upos=(18, 68, 120), ustep=4, qb=(20, 53, 66, 80), d0=11, pfpos=101, pfchk=28, h1=(46, 72), h1len=5, h2lead=80, prem=(283, -70, -30), vpace=3, qev=24, vsync=1)}
class Gen:
    def __init__(self, isA, opt):
        self.A = isA
        sf = 'A' if isA else 'B'
        opt = dict(DEF[sf], **opt)
        opt.update({k[:-1]: v for k, v in opt.items() if k.endswith(sf)})
        self.o = opt
        self.p = Prog(); self.sfx = 'A' if isA else 'B'
        self.F = 40 if isA else 20
        self.nst = 0
        self.dq = deque()
        self.pos = 0
        self.ool = []
    def stamp(self, name=None):
        p = self.p
        if name is None and self.o.get('idle'):
            self.ic = getattr(self, 'ic', -1) + 1
            if self.ic == self.o['idle'][0]: p(f"s_sleep {self.o['idle'][1]}")
        fine = self.o.get('fine')
        if fine:
            if name is None: self.cs = getattr(self, 'cs', 0) + 1; name = 's%d' % (self.cs - 1)
            if name not in fine: return
        elif name is not None: return
        if self.o.get('amp'):
            if self.nst == self.o['amp'][0]:
                p("s_memrealtime s[100:101]"); p("s_waitcnt lgkmcnt(0)")
            self.nst += 1
            return
        if not self.o.get('stamps'): return
        p(f"s_memrealtime s[100:101]" if self.o.get('rt') else f"s_memtime s[100:101]")
        p("s_waitcnt lgkmcnt(0)")
        p(f"s_sub_u32 s{S_ST+self.nst}, s100, {'s98' if self.o.get('rt') else 's96'}")
        self.nst += 1
    def put(self, L):
        for x in L:
            if isinstance(x, tuple): self.p(x[0], x[1])
            elif isinstance(x, list): self.put(x)
            elif callable(x): x()
            else: self.p(x)
    def dma_w(self, G):
        g = G % 5
        pre = [f"s_add_u32 m0, s{S_LW}, {RING + g*SLOT}"]
        if G < 15:
            col = {0: 1280, 1: 2560, 2: 0}[G // 5]
            gr = 4 - g if G // 5 in self.o.get('rev', [1, 2]) else g
            pre.append(f"s_add_u32 s{S_WS}, s{S_WROW+gr}, {col}"); so = f"s{S_WS}"; sd = SW; vo = V_WO
        else:
            items = []
            for j in range(5):
                off = f"offset:{j*1024} " if 0 < j < 4 else ""
                L = (pre if j == 0 else []) + [(f"buffer_load_dwordx4 v{V_LIN}, {srd(SWS)}, s{S_WOROW+g} offen {off}sc1 lds", ('W', G))]
                if j == 3: L += [f"s_add_u32 m0, s{S_LW}, {RING + g*SLOT + 4096}", f"s_add_u32 s{S_WOROW+g}, s{S_WOROW+g}, 4096"]
                items.append(L)
            return items
        items = []
        if G // 5 in self.o.get('fake', []):
            base = (G % 5) * 4 * 5120 + (G // 5 if G < 15 else 0) * 819200
            if self.o.get('fakerot'):
                pre = [pre[0], f"s_mul_hi_u32 s{S_WS}, s{S_WROW+gr}, 34953", f"s_mul_i32 s{S_WS}, s{S_WS}, 5120", f"s_add_u32 s{S_WS}, s{S_WS}, s94", f"s_sub_u32 s{S_WS}, s{S_WS}, s{S_LW}",
                       f"s_add_u32 s{S_WS}, s{S_WS}, {(G // 5) * 819200}"]
            else: pre = [pre[0], f"s_add_u32 s{S_WS}, s94, {base}"]
            for j in range(5):
                off = f"offset:{j*1024} " if 0 < j < 4 else ""
                L = (pre if j == 0 else []) + [(f"buffer_load_dwordx4 v{V_LIN}, {srd(sd)}, s{S_WS} offen {off}lds", ('W', G))]
                if j == 3: L += [f"s_add_u32 m0, s{S_LW}, {RING + g*SLOT + 4096}", f"s_add_u32 s{S_WS}, s{S_WS}, 4096"]
                items.append(L)
            return items
        for j in range(5):
            off = f"offset:{j*1024} " if 0 < j < 4 else ""
            L = (pre if j == 0 else []) + [(f"buffer_load_dwordx4 v{vo+j}, {srd(sd)}, {so} offen {off}lds", ('W', G))]
            if j == 3: L.append(f"s_add_u32 m0, s{S_LW}, {RING + g*SLOT + 4096}")
            items.append(L)
        return items
    def dma_x(self, pu):
        items = []
        for j in range(4):
            off = f"offset:{j*1024} " if j else ""
            L = []
            if j == 0: L += [f"s_add_u32 m0, s{S_LR}, {(pu % 3) * 4096}", f"s_add_u32 s{S_XS}, s{S_XU}, s{S_XBASE}"]
            L.append((f"buffer_load_dwordx4 v{V_XO+j}, {srd(SX)}, s{S_XS} offen {off}lds", ('X', pu)))
            if j == 0: L += [f"s_add_u32 s{S_XU}, s{S_XU}, 128"]
            if j == 1: L += [f"s_cmp_eq_u32 s{S_XU}, 1280", f"s_cselect_b32 s{S_XU}, 0, s{S_XU}"]
            items.append(L)
        return items
    def q(self, earliest, items):
        for it in items: self.dq.append((earliest, it))
    def release(self, k):
        self.dq = deque((0 if e == 10**6 + k else e, it) for e, it in self.dq)
    def tick(self):
        if self.dq and not getattr(self, 'pfok', False) and any(isinstance(x, tuple) and x[1] == ('W', 15) for x in self.dq[0][1]): return False
        if self.dq and self.dq[0][0] <= self.pos:
            self.put(self.dq.popleft()[1]); return True
        return False
    def flush_dma(self, tag):
        def has():
            return any(isinstance(x, tuple) and x[1] == tag for _, it in self.dq for x in it)
        while has():
            assert self.dq[0][0] <= self.pos, (tag, self.pos, self.dq[0])
            self.put(self.dq.popleft()[1])
    def run(self, L, every=30):
        c = 0
        for cost, x in L:
            self.put([x]); c += cost
            if c >= every: c = 0; self.tick()
    def kt(self, N):
        ps, n = divmod(N, 100); tm = self.o.get('tm', (0, 0, 0))[ps]
        if n >= 100 - 5 * tm:
            t, j = divmod(n - (100 - 5 * tm), tm); return 20 - tm + j, t
        return divmod(n, 5)
    def wread(self, N, hf):
        G = N // 20; ks, t = self.kt(N); ks %= 4
        off = RING + (G % 5) * SLOT + ks * 5120 + hf * 2560 + 8 * t
        hi = off >= 51200
        s = A_RING + (N % D) * 4 + 2 * hf
        if G // 5 in self.o.get('fake', []):
            if hf == 0:
                off = RING + (G % 5) * SLOT + ks * 5120 + 1024 * t
                hi = off >= 51200
                self.p(f"ds_read_b128 a[{s}:{s+3}], v{226 + hi} offset:{off - 51200*hi}", ('F', N))
            return
        self.p(f"ds_read_b64_tr_b16 a[{s}:{s+1}], v{V_WT + hi} offset:{off - 51200*hi}", ('F', N))
    def group_sync(self, G):
        self.flush_dma(('W', G))
        self.p.wait(vm=[('W', G)])
        self.p("s_barrier")
    def xread(self, pu, k):
        ksub, rt = divmod(k, 2)
        if k == 0:
            self.flush_dma(('X', pu)); self.p.wait(vm=[('X', pu)])
        a = ((2 * pu + ksub) * 2 + rt) * 4
        self.p(f"ds_read_b128 {aq(a)}, v{V_XR+ksub} offset:{(pu % 3)*4096 + rt*2048}", ('XR', pu))
    def prime(self, ps, sync=True):
        if sync: self.group_sync(ps * 5)
        for n in range(D - 1):
            self.wread(ps * 100 + n, 0); self.wread(ps * 100 + n, 1)
    def gemm_pass(self, ps, accb, bop, fill=None, hooks=None, last=False, pace=None, sync=True, frange=(0, 100), hooks0=None, late=None):
        p = self.p
        fill = deque(fill or []); hooks = hooks or {}; hooks0 = hooks0 or {}
        N0 = ps * 100
        p.wait(lg=[('F', N0), ('XR', 0)])
        pace = pace or (lambda n: 0)
        for n in range(100):
            self.pos = N0 + n
            ks, t = self.kt(N0 + n)
            s = A_RING + ((N0 + n) % D) * 4
            M = n + D - 1
            look = M < 100 or not last
            a = acc(accb, t, 0)
            p(f"{MF} {vq(a)}, {aq(s)}, {bop(ks, 0)}, {'0' if ks == 0 else vq(a)}")
            k0 = len(p.ins)
            if n < 99:
                tg = [('F', N0 + n + 1)]
                if ps == 0 and (n + 1) % 10 == 0: tg.append(('XR', (n + 1) // 10))
                p.wait(lg=tg)
            if n in hooks0: self.put(hooks0[n])
            pk_ = ps in self.o.get('fake', [])
            if pk_:
                if n % 2 == 0 and n + 4 < 100:
                    if (n + 4) % 20 == 0 and sync: self.group_sync((N0 + n + 4) // 20)
                    if len(p.ins) == k0: p("s_nop 0")
                    if n: self.wread(N0 + n + 4, 0)
                    self.wread(N0 + n + 5, 0)
                elif fill and n >= frange[0]: self.gap(fill, 2)
            elif look:
                if M % 20 == 0 and sync: self.group_sync((N0 + M) // 20)
                if len(p.ins) == k0: p("s_nop 0")
                self.wread(N0 + M, 0); self.wread(N0 + M, 1)
            elif fill and n >= frange[0]: self.gap(fill, 2)
            elif late: self.gapl(late, n - 0.5)
            a = acc(accb, t, 1)
            p(f"{MF} {vq(a)}, {aq(s)}, {bop(ks, 1)}, {'0' if ks == 0 else vq(a)}")
            self.pos = N0 + n + 1
            self.stamp('n%d' % (N0 + n))
            did = 0
            for _ in range(pace(n)): did += self.tick()
            if n in hooks: self.put(hooks[n])
            if fill and n >= frange[0]:
                left = sum(c for c, _ in fill)
                gaps = sum(1 for k in range(n, frange[1]) if not pace(k)) + (min(D - 1, 99 - n) if last and frange[1] == 100 else 0)
                if pk_: gaps = sum(1 for k in range(n, frange[1]) if not pace(k)) + (frange[1] - n) // 2
                bud = 0 if did else 2
                if left > 2 * gaps: bud += 2
                if ps == 2 and left > 4 * gaps: bud = -(-left // max(gaps, 1))
                self.gap(fill, bud)
            elif late and not did and n not in hooks: self.gapl(late, n)
        while fill: self.put([fill.popleft()[1]])
        self.pos = N0 + 100
    def gapl(self, late, n):
        q = deque()
        for r, c, x in late:
            if r > n: break
            q.append((c, x))
        k = len(q); self.gap(q, 2)
        for _ in range(k - len(q)): late.popleft()
    def gap(self, fill, bud):
        first = True
        while fill:
            c, x = fill[0]
            solo = isinstance(x, tuple)
            if c > bud or (solo and not first): break
            fill.popleft(); self.put([x]); bud -= c
            if solo: break
            if c: first = False
    def cvt20(self, src, dst):
        return [(1, f"v_cvt_pk_bf16_f32 v{dst+i}, v{src+2*i}, v{src+2*i+1}") for i in range(10)]
    def phiA_parts(self, x, e, m, name, isq):
        P = {}
        kb = e + 28
        P['cvt'] = self.cvt20(x, kb)
        P['zero'] = [(1, f"v_mov_b32 v{kb+10}, 0"), (1, f"v_mov_b32 v{kb+11}, 0")]
        P['mf'] = [(2, f"{MF} {vq(x+4*t)}, {aq(A_PHI + (t*3+u)*4)}, {vq(kb+4*u)}, {'0' if u == 0 else vq(x+4*t)}") for t in range(5) for u in range(3)]
        P['exp'] = [(2, f"v_exp_f32 v{e+i}, v{x+i}") for i in range(20)] + [(2, f"v_exp_f32 v{e+20+i}, -v{x+i}") for i in range(20)]
        def sums():
            L = [f"v_pk_add_f32 v[{m+2*h}:{m+2*h+1}], v[{e+20*h}:{e+20*h+1}], v[{e+20*h+2}:{e+20*h+3}]" for h in range(2)]
            L += [f"v_pk_add_f32 v[{m+2*h}:{m+2*h+1}], v[{m+2*h}:{m+2*h+1}], v[{e+20*h+2*i}:{e+20*h+2*i+1}]" for i in range(2, 10) for h in range(2)]
            L += [f"v_add_f32 v{m+2*h}, v{m+2*h}, v{m+2*h+1}" for h in range(2)]
            return L
        nm = name + self.sfx
        L = sums() + [f"v_max_f32 v{m+1}, v{m}, v{m+2}", f"v_cmp_ngt_f32 vcc, 0x53800000, v{m+1}"]
        if not isq: L.append(f"v_rcp_f32 v{m+4}, v{m}")
        L += [f"v_rcp_f32 v{m+2}, v{m+2}", [f"s_cbranch_vccnz {nm}_slow", f"{nm}_back:"]]
        o = Prog()
        o(f"{nm}_slow:")
        o(f"v_max3_f32 v{m}, v{x}, v{x+1}, v{x+2}"); o(f"v_min3_f32 v{m+1}, v{x}, v{x+1}, v{x+2}")
        for i in range(3, 19, 2):
            o(f"v_max3_f32 v{m}, v{m}, v{x+i}, v{x+i+1}"); o(f"v_min3_f32 v{m+1}, v{m+1}, v{x+i}, v{x+i+1}")
        o(f"v_max_f32 v{m}, v{m}, v{x+19}"); o(f"v_min_f32 v{m+1}, v{m+1}, v{x+19}")
        for i in range(20): o(f"v_sub_f32 v{e+i}, v{x+i}, v{m}"); o(f"v_sub_f32 v{e+20+i}, v{m+1}, v{x+i}")
        for i in range(40): o(f"v_exp_f32 v{e+i}, v{e+i}")
        for y in sums(): o(y)
        if not isq: o(f"v_rcp_f32 v{m+4}, v{m}")
        o(f"v_rcp_f32 v{m+2}, v{m+2}"); o("s_nop 1"); o(f"s_branch {nm}_back")
        self.ool.append(o.finalize())
        if isq: L.append(f"v_mul_f32 v{m+2}, v{m+2}, v{m}")
        else: L += [f"v_pk_mul_f32 v[{e+2*i}:{e+2*i+1}], v[{e+2*i}:{e+2*i+1}], v[{m+4}:{m+5}] op_sel_hi:[1,0]" for i in range(10)]
        L += [f"v_pk_mul_f32 v[{e+20+2*i}:{e+21+2*i}], v[{e+20+2*i}:{e+21+2*i}], v[{m+2}:{m+3}] op_sel_hi:[1,0]" for i in range(10)]
        if self.o.get('whatif') == ('q' if isq else 'k'): L = [y for y in L if not (isinstance(y, str) and y.startswith('v_pk_add') and y.split()[1] == y.split()[2])]
        if self.o.get('whatif') == ('Q' if isq else 'K'): L = [y for y in L if not (isinstance(y, str) and y.startswith('v_pk_') and y.split()[1] == y.split()[2])]
        P['norm'] = [(1, y) for y in L]
        P['out'] = [(1, f"v_cvt_pk_bf16_f32 v{x+i}, v{e+2*i}, v{e+2*i+1}") for i in range(20)]
        return P
    def weave(self, mf, va, per=2):
        va = deque(va); L = []
        for x in mf:
            L.append(x); b = per
            while va and va[0][0] <= b: b -= va[0][0]; L.append(va.popleft())
        return L + list(va)
    def phiB(self, x, e, packed):
        L = []
        if packed: L += [(1, f"v_pk_mul_f32 v[{e+2*i}:{e+2*i+1}], v[{x+2*i}:{x+2*i+1}], s[{S_L2E}:{S_NL2E}] op_sel_hi:[1,0]") for i in range(10)]
        else: L += [(1, f"v_mul_f32 v{e+i}, s{S_L2E}, v{x+i}") for i in range(20)]
        L += [(2, f"v_exp_f32 v{e+i}, v{e+i} clamp") for i in range(20)]
        L += [(1, f"v_max_f32 v{x+i}, {EPS}, v{x+i}") for i in range(20)]
        if packed: L += [(1, f"v_pk_add_f32 v[{e+2*i}:{e+2*i+1}], v[{e+2*i}:{e+2*i+1}], v[{x+2*i}:{x+2*i+1}]") for i in range(10)]
        else: L += [(1, f"v_add_f32 v{e+i}, v{e+i}, v{x+i}") for i in range(20)]
        L += self.cvt20(e, x)
        return L
    def checked(self, name, loads, check, tag, redo=()):
        nm = name + self.sfx
        iss = [(x, tag) if x.startswith('buffer') else x for x in loads]
        chk = [(0, lambda: self.p.wait(vm=[tag]))] + [(1, x) for x in check] + [(1, [f"s_cbranch_vccnz {nm}_retry", f"{nm}_ok:"])]
        o = Prog()
        o(f"{nm}_retry:"); o(f"s_mov_b32 s{S_SPIN}, 0")
        if self.o.get('cnt') == name: o("s_mov_b32 s95, 1")
        o(f"{nm}_loop:")
        if self.o.get('stamps'): o(f"s_add_u32 s95, s95, {dict(L_xc=1000000, L_h1=10000, L_h2=1000, L_pf=10000000, L_f0=1, L_f1=100, L_d0=0, L_d1=100000)[name]}")
        bk = self.o.get('backoff', {}).get(name, 0)
        if bk: o(f"s_sleep {bk}")
        for x in loads: o(x)
        o("s_waitcnt vmcnt(0)")
        for x in check: o(x)
        o(f"s_cbranch_vccz {nm}_{'redo' if redo else 'ok'}")
        o(f"s_add_u32 s{S_SPIN}, s{S_SPIN}, 1"); o(f"s_cmp_lt_u32 s{S_SPIN}, {SPIN_MAX}"); o(f"s_cbranch_scc1 {nm}_loop")
        if redo:
            o(f"{nm}_redo:")
            for x in redo: o(x)
        o(f"s_branch {nm}_ok")
        self.ool.append(o.finalize())
        return iss, chk
    def body(self):
        p = self.p; A = self.A; F = self.F; br = 0 if A else 1; o = self.o
        t = TMP
        K = S_KA
        kx, kw, kout, kws = K, K + 2, K + 8, K + 10
        kphi, kwo = (K + 4, K + 6) if A else (None, K + 4)
        p.raw(f"""
        s_andn2_b32 s{T0}, 1, s2
        s_lshl_b32 s{T0}, s{T0}, 5
        s_load_dwordx8 s[{K}:{K+7}], s[0:1], s{T0}
        s_load_dwordx2 s[{kout}:{kout+1}], s[0:1], 56
        s_load_dwordx2 s[{kws}:{kws+1}], s[0:1], 72
        """)
        if o.get('stamps'): p("s_memtime s[96:97]"); p("s_mov_b32 s95, 0")
        if o.get('stamps') or o.get('amp') or o.get('cntm'): p("s_memrealtime s[98:99]")
        if o.get('cntm'): p("s_mov_b32 s95, 0")
        p.raw(f"""
        s_getpc_b64 s[60:61]
        L_pc:
        s_bfe_u32 s{S_HG}, s2, 0x30003
        v_and_b32 v{V_LANE}, 63, v0
        v_lshrrev_b32 v{t}, 6, v0
        s_bitcmp0_b32 s2, 0
        s_cselect_b32 s{T1}, L_setupB-L_setupA, 0
        s_lshl_b32 s{T0}, s{S_HG}, 12
        v_lshlrev_b32 v{V_L128}, 7, v{V_LANE}
        v_readfirstlane_b32 s{S_W}, v{t}
        s_add_u32 s{T0}, s{T0}, s{T1}
        s_add_u32 s{T0}, s{T0}, L_setupA-L_pc
        s_add_u32 s60, s60, s{T0}
        s_addc_u32 s61, s61, 0
        v_lshl_add_u32 v{t+1}, v{t}, 10, v{V_L128}
        s_mov_b64 exec, 0xff
        """)
        p(f"global_load_dword v{V_DUMP}, v{t+1}, s[60:61]", 'cpf')
        p("s_mov_b64 exec, -1")
        ra, rbm, rdiv = o.get('rot', (10, 10, 4))
        p.raw(f"""
        s_and_b32 s{S_RB}, s2, 6
        s_lshl_b32 s{S_RB}, s{S_RB}, 1
        s_lshr_b32 s{T0}, s2, 6
        s_add_u32 s{S_RB}, s{S_RB}, s{T0}
        s_mul_i32 s{T0}, s{S_HG}, {ra}
        s_mul_i32 s{T1}, s{S_RB}, {rbm}
        s_add_u32 s{T0}, s{T0}, s{T1}
        s_lshr_b32 s{T0}, s{T0}, {rdiv.bit_length()-1}
        s_mul_i32 s{T1}, s{T0}, 6554
        s_lshr_b32 s{T1}, s{T1}, 16
        s_mul_i32 s{T1}, s{T1}, 10
        s_sub_u32 s{T3}, s{T0}, s{T1}
        s_lshl_b32 s{S_XU}, s{T3}, 7
        s_lshl_b32 s{T0}, s{S_RB}, 2
        s_add_u32 s{T0}, s{T0}, s{S_W}
        s_mul_i32 s{S_XBASE}, s{T0}, 40960
        s_mul_i32 s{S_LW}, s{S_W}, 5120
        s_mul_i32 s{S_LR}, s{S_W}, {RW}
        s_add_u32 s{S_LR}, s{S_LR}, {RBASE}
        v_lshrrev_b32 v{t}, 3, v{V_LANE}
        v_mul_u32_u24 v{t}, 1280, v{t}
        v_lshrrev_b32 v{t+1}, 4, v{V_LANE}
        v_xor_b32 v{t+1}, v{t+1}, v{V_LANE}
        v_and_b32 v{t+1}, 7, v{t+1}
        v_lshl_add_u32 v{V_XO}, v{t+1}, 4, v{t}
        v_xor_b32 v{t+2}, 64, v{V_XO}
        v_add_u32 v{V_XO+1}, {9216}, v{t+2}
        v_add_u32 v{V_XO+2}, {2*9216}, v{V_XO}
        v_add_u32 v{V_XO+3}, {3*9216}, v{t+2}
        s_lshr_b32 s{T0}, s{S_W}, 1
        s_add_u32 s{T0}, s{T0}, s{T3}
        s_and_b32 s{T1}, s{S_W}, 1
        s_mul_i32 s{T1}, s{T1}, {32*3840}
        s_mul_i32 s{T2}, s{S_HG}, 160
        s_add_u32 s{T1}, s{T1}, s{T2}
        s_mov_b32 s{SX+2}, 2621440
        s_mov_b32 s{SX+3}, 0x20000
        s_mov_b32 s{SW+2}, 2457600
        s_mov_b32 s{SW+3}, 0x20000
        """)
        def wrow(g):
            p.raw(f"""
            s_cmp_ge_u32 s{T0}, 10
            s_cselect_b32 s{T2}, 10, 0
            s_sub_u32 s{T0}, s{T0}, s{T2}
            s_mul_i32 s{T2}, s{T0}, {64*3840}
            s_add_u32 s{S_WROW+g}, s{T2}, s{T1}
            s_add_u32 s{T0}, s{T0}, 2
            """)
        wrow(0)
        RH = TMP + 10
        def woff(j):
            b = RH + 5 * j
            p.raw(f"""
            v_add_u32 v{t}, {64*j}, v{V_LANE}
            v_mul_u32_u24 v{b+4}, 6554, v{t}
            v_lshrrev_b32 v{b+4}, 16, v{b+4}
            v_mul_u32_u24 v{t+2}, 10, v{b+4}
            v_sub_u32 v{b+3}, v{t}, v{t+2}
            v_bfe_u32 v{b}, v{b+4}, 2, 2
            v_lshrrev_b32 v{b+1}, 4, v{b+4}
            v_and_b32 v{b+2}, 3, v{b+4}
            v_lshl_add_u32 v{t}, v{b}, 1, v{b+1}
            v_lshl_add_u32 v{t}, v{t}, 2, v{b+2}
            v_mul_u32_u24 v{t}, 3840, v{t}
            v_lshl_add_u32 v{V_WO+j}, v{b+3}, 4, v{t}
            """)
            if 0 < j < 4: p(f"v_subrev_u32 v{V_WO+j}, {1024*j}, v{V_WO+j}")
        if o.get('fakeinit'):
            p.raw(f"""
            s_mul_i32 s94, s{S_HG}, 102400
            s_add_u32 s94, s94, s{S_LW}
            v_lshlrev_b32 v{V_LIN}, 4, v{V_LANE}
            v_mov_b32 v226, v{V_LIN}
            v_add_u32 v227, 51200, v{V_LIN}
            """)
        woff(0); woff(1)
        if o.get('pre0'): p("s_memtime s[92:93]")
        p.raw(f"""
        s_waitcnt lgkmcnt(0)
        s_mov_b32 s{SX}, s{kx}
        s_mov_b32 s{SX+1}, s{kx+1}
        s_mov_b32 s{SW}, s{kw}
        s_mov_b32 s{SW+1}, s{kw+1}
        """)
        if o.get('late0'): p.raw(f"s_and_b32 s60, s2, 7\ns_cmp_lg_u32 s60, 0\ns_cbranch_scc1 L_nd0\ns_sleep {o['late0']}\nL_nd0:")
        if o.get('bdelay'): p.raw(f"s_bitcmp1_b32 s2, 0\ns_cbranch_scc1 L_nd\ns_sleep {o['bdelay']}\nL_nd:")
        self.stamp('p0')
        if o.get('pre0'): p(f"s_sub_u32 s{S_ST+self.nst}, s92, s96"); self.nst += 1
        self.put(self.dma_x(0))
        w0 = self.dma_w(0)
        self.put(w0[0:2]); woff(2); self.put(w0[2]); woff(3); self.put(w0[3]); woff(4); self.put(w0[4])
        self.stamp('p1')
        if o.get('prowait'):
            p.wait(vm=['cpf']); self.stamp('p2')
            p.wait(vm=[('X', 0)]); self.stamp('p3')
            p.wait(vm=[('W', 0)]); self.stamp('p4')
        p("s_bitcmp0_b32 s2, 0"); p("s_cbranch_scc1 L_setupB")
        p(".split")
        p(f"L_setup{self.sfx}:")
        p(f"s_load_dword s{S_NONCE}, s[{kws}:{kws+1}], {br*128}")
        if not A:
            p(f"s_load_dword s{S_UTAG}, s[{kws}:{kws+1}], 0")
            p(f"s_load_dwordx2 s[{K+6}:{K+7}], s[0:1], 24")
        for g in range(1, 5): wrow(g)
        if o.get('bal'):
            nw, nx, where = o['bal']
            L_ = [f"s_add_u32 s{T0}, s{S_HG}, s{S_RB}", f"s_bitcmp1_b32 s{T0}, 0", f"s_cbranch_scc1 L_bal{self.sfx}",
                  f"s_cmp_ge_u32 s{S_W}, 2", f"s_cbranch_scc1 L_balx{self.sfx}",
                  f"s_mul_i32 s{T0}, s{S_W}, {32*3840 - 156}", f"s_sub_u32 s{T0}, s{S_WROW+2}, s{T0}", f"v_mul_u32_u24 v{TMP+104}, 3840, v{V_LANE}",
                  f"s_mov_b32 exec_lo, {hex(((1 << nw) - 1) & 0xffffffff)}", f"s_mov_b32 exec_hi, {hex(((1 << nw) - 1) >> 32)}",
                  f"buffer_load_dword v{V_DUMP}, v{TMP+104}, {srd(SW)}, s{T0} offen offset:1280", f"s_branch L_bal{self.sfx}",
                  f"L_balx{self.sfx}:",
                  f"s_mul_i32 s{T0}, s{S_RB}, {128*1280}", f"s_bfe_u32 s{T1}, s{S_HG}, 0x10002", f"s_lshl_b32 s{T1}, s{T1}, 1", f"s_add_u32 s{T1}, s{T1}, s{S_W}", f"s_sub_u32 s{T1}, s{T1}, 2",
                  f"s_mul_i32 s{T1}, s{T1}, {32*1280}", f"s_add_u32 s{T0}, s{T0}, s{T1}", f"s_lshl_b32 s{T1}, s{T3}, 7", f"s_add_u32 s{T0}, s{T0}, s{T1}", f"v_mul_u32_u24 v{TMP+104}, 1280, v{V_LANE}",
                  f"s_mov_b32 exec_lo, {hex((1 << nx) - 1)}", "s_mov_b32 exec_hi, 0",
                  f"buffer_load_dword v{V_DUMP}, v{TMP+104}, {srd(SX)}, s{T0} offen offset:512",
                  f"L_bal{self.sfx}:", "s_mov_b64 exec, -1"]
            if where == 0: p.untracked(L_)
            else:
                self.put(self.dma_x(1)); p.untracked(L_)
        if not (o.get('bal') and o['bal'][2]): self.q(0, self.dma_x(1))
        p.raw(f"""
        s_mov_b32 s{SWS}, s{kws}
        s_mov_b32 s{SWS+1}, s{kws+1}
        s_mov_b32 s{SWS+2}, {WS_SIZE}
        s_mov_b32 s{SWS+3}, 0x20000
        s_mov_b32 s{SOUT}, s{kout}
        s_mov_b32 s{SOUT+1}, s{kout+1}
        s_mov_b32 s{SOUT+2}, 5242880
        s_mov_b32 s{SOUT+3}, 0x20000
        s_lshl_b32 s{S_HEAD}, s{S_HG}, 2
        s_add_u32 s{S_HEAD}, s{S_HEAD}, s{S_W}
        v_lshlrev_b32 v{V_LIN}, 4, v{V_LANE}
        """)
        if A:
            p.raw(f"""
            s_mov_b32 s{SPHI}, s{kphi}
            s_mov_b32 s{SPHI+1}, s{kphi+1}
            s_mov_b32 s{SPHI+2}, 25600
            s_mov_b32 s{SPHI+3}, 0x20000
            """)
            self.q(0, [[f"s_mul_i32 s{S_WS}, s{S_HEAD}, 800",
                        (f"buffer_load_dwordx4 {vq(TMP+96)}, v{V_LIN}, {srd(SPHI)}, s{S_WS} offen", 'wphi')]])
        self.q(0, self.dma_w(1)); self.q(0, self.dma_x(2))
        G_, I_, R_, C_ = t, t + 1, t + 2, t + 3
        S = []
        def raw(txt):
            for l in txt.split('\n'):
                if l.strip(): S.append((1, l.strip()))
        raw(f"""
        v_lshrrev_b32 v{G_}, 4, v{V_LANE}
        v_and_b32 v{I_}, 15, v{V_LANE}
        v_bfe_u32 v{R_}, v{V_LANE}, 2, 2
        v_and_b32 v{C_}, 3, v{V_LANE}
        v_lshrrev_b32 v{t+4}, 1, v{I_}
        v_xor_b32 v{t+4}, v{t+4}, v{G_}
        v_lshlrev_b32 v{t+5}, 7, v{I_}
        v_lshl_add_u32 v{t+4}, v{t+4}, 4, v{t+5}
        v_add_u32 v{V_XR}, s{S_LR}, v{t+4}
        v_xor_b32 v{t+4}, 64, v{t+4}
        v_add_u32 v{V_XR+1}, s{S_LR}, v{t+4}
        v_lshrrev_b32 v{t+4}, 2, v{V_LANE}
        v_mul_u32_u24 v{t+5}, 160, v{t+4}
        v_mul_u32_u24 v{t+6}, 40, v{C_}
        v_add_u32 v{V_WT}, v{t+5}, v{t+6}
        v_add_u32 v{V_WT+1}, 51200, v{V_WT}
        v_mul_u32_u24 v{t+5}, 120, v{I_}
        v_mul_u32_u24 v{t+6}, 3840, v{G_}
        v_add3_u32 v{V_PW}, v{t+5}, v{t+6}, s{S_LR}
        v_mul_u32_u24 v{t+6}, 40, v{G_}
        v_mul_u32_u24 v{t+7}, {OUTS}, v{I_}
        s_mul_i32 s{T2}, s{S_W}, {32*OUTS}
        s_add_u32 s{T2}, s{T2}, {OUTL}
        v_add3_u32 v{V_OW}, v{t+7}, v{t+6}, s{T2}
        v_and_b32 v{t+5}, 7, v{t+4}
        v_lshrrev_b32 v{t+6}, 5, v{V_LANE}
        v_lshlrev_b32 v{t+6}, 1, v{t+6}
        v_lshl_add_u32 v{t+5}, v{t+5}, 2, v{t+6}
        v_mul_u32_u24 v{t+5}, 120, v{t+5}
        s_mul_i32 s{T0}, s{S_W}, 3840
        s_add_u32 s{T0}, s{T0}, {RBASE}
        v_add_u32 v{V_KA1}, s{T0}, v{t+5}
        v_lshl_add_u32 v{V_KB}, v{C_}, 3, v{V_KA1}
        s_mov_b32 s{S_L2E}, 0x3fb8aa3b
        s_mov_b32 s{S_NL2E}, 0xbfb8aa3b
        s_mov_b32 s{S_PERM}, 0x07060302
        s_and_b32 s{T3}, s{S_HG}, 1
        """)
        for j in range(5):
            b = RH + 5 * j
            if j < 3: raw(f"""
            v_mul_u32_u24 v{t+5}, {OUTS}, v{b+4}
            v_lshl_add_u32 v{t+5}, v{b+3}, 4, v{t+5}
            v_add_u32 v{V_ORD+j}, s{T2}, v{t+5}
            v_mul_u32_u24 v{t+5}, 2560, v{b+4}
            v_lshl_add_u32 v{V_OG+j}, v{b+3}, 4, v{t+5}
            """)
            if j == 2: raw(f"""
            v_lshrrev_b32 v{t+5}, 5, v{V_LANE}
            v_lshl_or_b32 v{V_OG+2}, v{t+5}, 30, v{V_OG+2}
            """)
        raw(f"""
        v_mov_b32 v{t+5}, 2304
        v_cmp_gt_u32 vcc, 16, v{V_LANE}
        v_mov_b32 v{t+6}, 1024
        v_cndmask_b32 v{t+5}, v{t+5}, v{t+6}, vcc
        v_add_u32 v{V_OO+1}, v{t+5}, v{V_LIN}
        v_mov_b32 v{V_OO}, v{V_LIN}
        v_add_u32 v{V_OO+2}, 40960, v{V_LIN}
        v_add_u32 v{V_OO+3}, 40960, v{V_OO+1}
        v_lshrrev_b32 v{t+4}, 5, v{V_LANE}
        v_mul_u32_u24 v{t+4}, {40960-512}, v{t+4}
        v_add_u32 v{t+5}, 3328, v{V_LIN}
        v_add_u32 v{V_OO+4}, v{t+4}, v{t+5}
        v_add_u32 v{V_LINH}, 51200, v{V_LIN}
        v_min_u32 v{V_PF}, 39, v{V_LANE}
        v_lshlrev_b32 v{V_PF}, 3, v{V_PF}
        v_and_b32 v{t+4}, 1, v{RH+4}
        v_mul_u32_u24 v{t+4}, 2560, v{t+4}
        v_lshrrev_b32 v{t+5}, 1, v{RH+4}
        v_mul_u32_u24 v{t+5}, 40960, v{t+5}
        v_lshlrev_b32 v{t+6}, 7, v{RH+3}
        v_add3_u32 v{V_L128}, v{t+4}, v{t+5}, v{t+6}
        """)
        raw(f"""
        s_lshl_b32 s{T0}, s{T3}, 1
        s_xor_b32 s{T0}, s{T0}, s{S_W}
        s_mul_i32 s{T0}, s{T0}, 5120
        s_mul_i32 s{T2}, s{S_HG}, 102400
        s_add_u32 s{T2}, s{T2}, {WS_PK + br*819200}
        s_add_u32 s{T0}, s{T0}, s{T2}
        s_lshr_b32 s{S_SPIN}, s{S_HG}, 1
        s_add_u32 s{T1}, s{S_SPIN}, s{S_W}
        s_and_b32 s{T1}, s{T1}, 3
        s_add_u32 s{T1}, s{T1}, 16
        s_mul_i32 s{T1}, s{T1}, 5120
        s_add_u32 s{S_WOROW+4}, s{T1}, s{T2}
        s_lshr_b32 s{S_PFL}, s{S_HG}, 2
        s_lshl_b32 s{S_PFL}, s{S_PFL}, 9
        s_add_u32 s{S_PFL}, s{S_PFL}, {WS_PF + br*1024}
        s_mul_i32 s{T2}, s{S_HG}, 160
        s_lshl_b32 s{S_OUT}, s{S_XBASE}, 1
        s_add_u32 s{S_OUT}, s{S_OUT}, s{T2}
        s_add_u32 s{S_OUT}, s{S_OUT}, {br*1280}
        s_lshl_b32 s{S_OB}, s{S_XBASE}, 1
        s_add_u32 s{S_OB}, s{S_OB}, {br*1280}
        """)
        for g in range(4):
            raw(f"""
            s_add_u32 s{T1}, s{S_SPIN}, {g}
            s_and_b32 s{T1}, s{T1}, 3
            s_mul_i32 s{T2}, s{T1}, 20480
            s_add_u32 s{S_WOROW+g}, s{T2}, s{T0}
            s_lshl_b32 s{T1}, s{T1}, 1
            s_add_u32 s{T1}, s{T1}, s{T3}
            s_mul_i32 s{T2}, s{T1}, 5120
            s_add_u32 s{S_OP+2*g}, s{T2}, s{S_OB}
            s_xor_b32 s{T1}, s{T1}, 1
            s_mul_i32 s{T2}, s{T1}, 5120
            s_add_u32 s{S_OP+2*g+1}, s{T2}, s{S_OB}
            """)
        SH = 8 if A else 7
        raw(f"""
        s_lshl_b32 s{T0}, s{S_RB}, 2
        s_add_u32 s{T0}, s{T0}, s{S_W}
        s_lshl_b32 s{S_FLAG}, s{T0}, 7
        s_add_u32 s{S_FLAG}, s{S_FLAG}, {WS_FLAG + br*64*128}
        s_lshl_b32 s{T0}, s{S_HEAD}, 16
        s_add_u32 s{T0}, s{T0}, {WS_P1 + br*32*65536}
        s_lshl_b32 s{T1}, s{S_RB}, 12
        s_add_u32 s{S_P1ST}, s{T0}, s{T1}
        s_min_u32 s{T1}, s{S_RB}, 14
        s_lshl_b32 s{T1}, s{T1}, {SH}
        s_add_u32 s{S_P1LD}, s{T0}, s{T1}
        s_lshl_b32 s{T0}, s{S_HEAD}, 12
        s_add_u32 s{S_P2LD}, s{T0}, {WS_P2 + br*32*4096}
        s_add_u32 s{S_P2ST}, s{S_P2LD}, s{T1}
        s_lshr_b32 s{T1}, s{S_RB}, {4 - o.get('p2log', 2)}
        s_lshl_b32 s{T1}, s{T1}, 18
        s_add_u32 s{S_P2LD}, s{S_P2LD}, s{T1}
        v_mul_u32_u24 v{t+4}, {F if A else 16}, v{G_}
        v_add_lshl_u32 v{V_P1ST}, v{t+4}, v{I_}, 4
        v_mul_u32_u24 v{t+4}, {F if A else 4}, v{G_}
        v_add_lshl_u32 v{t+5}, v{t+4}, v{I_}, 4
        v_lshrrev_b32 v{t+4}, {3 if A else 2}, v{I_}
        v_lshl_or_b32 v{V_P1M}, v{t+4}, 28, v{t+5}
        v_lshrrev_b32 v{t+4}, 1, v{G_}
        v_lshl_or_b32 v{V_P1M+1}, v{t+4}, 30, v{V_P1ST}
        v_lshl_or_b32 v{V_P1M+2}, v{t+4}, 30, v{V_P1M}
        v_cmp_gt_u32 vcc, 4, v{I_}
        v_cndmask_b32 v{V_KEEP}, 0, -1, vcc
        v_mov_b32 v{t+4}, 0x3f803f80
        v_cmp_eq_u32 vcc, 4, v{I_}
        v_cndmask_b32 v{V_ONE}, 0, v{t+4}, vcc
        v_and_b32 v{t+4}, 7, v{V_LANE}
        v_lshlrev_b32 v{V_F8}, 2, v{t+4}
        s_lshl_b32 s{T0}, s{S_HG}, 2
        v_min_u32 v{V_FOWN}, 1, v{V_LANE}
        v_lshlrev_b32 v{V_FOWN}, 30, v{V_FOWN}
        v_or_b32 v{V_FOWN}, s{T0}, v{V_FOWN}
        v_lshlrev_b32 v{V_ZA}, 3, v0
        v_add_u32 v{V_ZA}, {RBASE+7680}, v{V_ZA}
        """)
        if A:
            raw(f"""
            v_lshlrev_b32 v{t+5}, 12, v{G_}
            v_lshl_add_u32 v{V_P1LD}, v{I_}, 4, v{t+5}
            v_lshlrev_b32 v{V_P2ST}, 2, v{V_LANE}
            """)
        else:
            raw(f"""
            v_lshrrev_b32 v{t+5}, 3, v{V_LANE}
            v_lshlrev_b32 v{t+5}, 12, v{t+5}
            v_lshl_add_u32 v{V_P1LD}, v{t+4}, 4, v{t+5}
            v_lshl_add_u32 v{V_P2ST}, v{G_}, 5, v{V_F8}
            """)
        RS = 80 if A else 48
        HS = 24 * RS
        NQ = 240 if A else 120
        NI = 4 if A else 2
        raw(f"s_mul_i32 s{T0}, s{S_W}, {HS}\ns_add_u32 s{T0}, s{T0}, {RBASE}")
        u = t + 4
        for ii in range(NI):
            raw(f"v_add_u32 v{u}, {64*ii}, v{V_LANE}")
            if ii == NI - 1:
                raw(f"""v_subrev_u32 v{u+1}, 64, v{u}
                v_cmp_gt_u32 vcc, {NQ}, v{u}
                v_cndmask_b32 v{u}, v{u+1}, v{u}, vcc
                v_lshlrev_b32 v{V_GAL}, 4, v{u}""")
            if A:
                raw(f"""
                v_lshrrev_b32 v{u+1}, 4, v{u}
                v_and_b32 v{u+2}, 3, v{u}
                v_lshl_add_u32 v{u+1}, v{u+1}, 2, v{u+2}
                v_bfe_u32 v{u+2}, v{u}, 2, 2
                v_mul_u32_u24 v{u+3}, 6554, v{u+1}
                v_lshrrev_b32 v{u+3}, 16, v{u+3}
                v_mul_u32_u24 v{u+4}, 10, v{u+3}
                """)
            else:
                raw(f"""
                v_lshrrev_b32 v{u+1}, 3, v{u}
                v_and_b32 v{u+2}, 1, v{u}
                v_lshl_add_u32 v{u+1}, v{u+1}, 1, v{u+2}
                v_bfe_u32 v{u+2}, v{u}, 1, 2
                v_cmp_gt_u32 vcc, 24, v{u+1}
                v_lshrrev_b32 v{u+3}, 2, v{u+1}
                v_subrev_u32 v{u+4}, 24, v{u+1}
                v_cndmask_b32 v{u+3}, v{u+4}, v{u+3}, vcc
                v_and_b32 v{u+1}, 3, v{u+1}
                v_cndmask_b32 v{u+1}, 4, v{u+1}, vcc
                v_mov_b32 v{u+4}, 0
                """)
            raw(f"""
            v_sub_u32 v{u+1}, v{u+1}, v{u+4}
            v_lshl_add_u32 v{u+3}, v{u+3}, 2, v{u+2}
            v_mul_u32_u24 v{u+3}, {RS}, v{u+3}
            v_lshl_add_u32 v{u+3}, v{u+1}, 3, v{u+3}
            v_add_u32 v{V_LA+ii}, s{T0}, v{u+3}
            """)
        raw(f"""
        v_cmp_eq_u32 vcc, v{G_}, v{R_}
        v_mul_u32_u24 v{u}, {HS}, v{G_}
        v_mul_u32_u24 v{u+1}, {RS}, v{C_}
        v_add_u32 v{u}, v{u}, v{u+1}
        v_add_u32 v{u}, {RBASE}, v{u}
        v_mov_b32 v{u+1}, {RBASE+7680+o.get('zoff', 64)}
        v_cndmask_b32 v{V_FR2}, v{u+1}, v{u}, vcc
        """)
        if A:
            raw(f"""
            v_mov_b32 v{t+36}, 0
            v_mov_b32 v{t+37}, 0
            v_mov_b32 v{t+38}, 0
            v_mov_b32 v{t+39}, 0
            v_add_u32 v{TMP+100}, s{S_LR}, v{V_LIN}
            ds_write_b128 v{TMP+100}, {vq(t+36)} offset:13312
            v_mul_u32_u24 v{t+4}, {RW}, v{G_}
            v_mul_u32_u24 v{t+5}, 40, v{R_}
            v_add_u32 v{t+4}, v{t+4}, v{t+5}
            v_add_u32 v{t+4}, {RBASE+12288}, v{t+4}
            s_add_u32 s{T0}, s{S_LR}, 13312
            v_mov_b32 v{t+5}, s{T0}
            v_cmp_eq_u32 vcc, v{C_}, v{G_}
            v_cndmask_b32 v{V_FR}, v{t+5}, v{t+4}, vcc
            """)
            for tt in range(5):
                a = A_PHI + (tt * 3 + 2) * 4
                raw(f"v_accvgpr_write_b32 a{a+2}, 0\nv_accvgpr_write_b32 a{a+3}, 0")
        US, UA, UD = TMP + 40, TMP + 45, TMP + 80
        nA = o.get('nA', 0); prod = (not A) or nA > 0
        S_UOK = 92
        if prod:
            if o.get('umap', 1) == 0: umap = f"""s_add_u32 s{T1}, s{S_HG}, s{S_RB}
            s_and_b32 s{T1}, s{T1}, 1
            s_lshl_b32 s{T0}, s{S_W}, 1
            s_add_u32 s{T0}, s{T0}, s{T1}
            s_lshl_b32 s{T0}, s{T0}, 3
            s_add_u32 s{T0}, s{T0}, s{S_HG}
            s_lshl_b32 s{T0}, s{T0}, 3
            s_lshr_b32 s{T1}, s{S_RB}, 1
            s_add_u32 s{T0}, s{T0}, s{T1}
            s_add_u32 s{T0}, s{T0}, {0 if A else nA}
            s_cmp_lt_u32 s{T0}, {nA if A else 320}
            s_cselect_b32 s{S_UOK}, 1, 0"""
            elif o.get('umap', 1) == 1:
                umap = f"""s_lshr_b32 s{T1}, s{S_RB}, 2
                s_mul_i32 s{T0}, s{T1}, 3
                s_add_u32 s{T0}, s{T0}, s{S_W}
                s_sub_u32 s{T0}, s{T0}, 2
                s_cmp_eq_u32 s{T1}, 0
                s_cselect_b32 s{T0}, 0, s{T0}
                s_cselect_b32 s{T1}, 1, 3
                s_cmp_lt_u32 s{S_W}, s{T1}
                s_cselect_b32 s{S_UOK}, 1, 0
                s_lshl_b32 s{T0}, s{T0}, 5
                s_lshr_b32 s{T1}, s2, 3
                s_add_u32 s{T0}, s{T0}, s{T1}"""
            else:
                umap = f"""s_lshr_b32 s{T1}, s{S_RB}, 2
                s_sub_u32 s{T1}, s{T1}, 1
                s_add_u32 s{T2}, s{S_HG}, s{S_RB}
                s_and_b32 s{T2}, s{T2}, 1
                s_lshl_b32 s{T0}, s{S_W}, 1
                s_add_u32 s{T0}, s{T0}, s{T2}
                s_lshl_b32 s{T0}, s{T0}, 4
                s_lshr_b32 s{T2}, s2, 4
                s_add_u32 s{T0}, s{T0}, s{T2}
                s_mul_i32 s{T0}, s{T0}, 3
                s_add_u32 s{T0}, s{T0}, s{T1}
                s_cmp_lt_u32 s{T0}, 320
                s_cselect_b32 s{S_UOK}, 1, 0
                s_cmp_lt_u32 s{S_RB}, 4
                s_cselect_b32 s{S_UOK}, 0, s{S_UOK}"""
            iS0 = len(S)
            S.append((1, [x.strip() for x in f"""
            {umap}
            s_waitcnt lgkmcnt(0)
            s_cmp_lt_u32 s{T0}, 160
            s_cselect_b32 s{SWO}, s{K+6}, s{kwo}
            s_cselect_b32 s{SWO+1}, s{K+7}, s{kwo+1}
            s_cselect_b32 s{S_UTAG}, s{S_NONCE if A else S_UTAG}, s{S_NONCE}
            s_cselect_b32 s{T1}, 0, 160
            s_cselect_b32 s{S_UDST}, 0, 819200
            s_cselect_b32 s{S_UFL}, 0, 1024
            s_mov_b32 s{SWO+2}, 819200
            s_mov_b32 s{SWO+3}, 0x20000
            s_add_u32 s{S_UTAG}, s{S_UTAG}, 0x9e3779b1
            s_sub_u32 s{T0}, s{T0}, s{T1}
            s_and_b32 s{T1}, s{T0}, 1
            s_mul_i32 s{S_USRC}, s{T1}, 640
            s_mul_i32 s{T2}, s{T1}, 409600
            s_add_u32 s{S_UDST}, s{S_UDST}, s{T2}
            s_lshl_b32 s{T2}, s{T1}, 9
            s_add_u32 s{S_UFL}, s{S_UFL}, s{T2}
            s_lshr_b32 s{T1}, s{T0}, 1
            s_lshl_b32 s{T2}, s{T1}, 2
            s_add_u32 s{S_UFL}, s{S_UFL}, s{T2}
            s_add_u32 s{S_UFL}, s{S_UFL}, {WS_PF}
            s_and_b32 s{T1}, s{T1}, 3
            s_mul_i32 s{T2}, s{T1}, {20*1280}
            s_add_u32 s{S_USRC}, s{S_USRC}, s{T2}
            s_lshl_b32 s{T2}, s{T1}, 8
            s_add_u32 s{S_UDST}, s{S_UDST}, s{T2}
            s_lshr_b32 s{T1}, s{T0}, 3
            s_mul_i32 s{T2}, s{T1}, 5120
            s_add_u32 s{S_UDST}, s{S_UDST}, s{T2}
            s_add_u32 s{S_UDST}, s{S_UDST}, {WS_PK}
            s_lshr_b32 s{T2}, s{T1}, 1
            s_mul_i32 s{T2}, s{T2}, 80
            s_and_b32 s{T3}, s{T1}, 1
            s_lshl_b32 s{T3}, s{T3}, 3
            s_add_u32 s{T2}, s{T2}, s{T3}
            s_mul_i32 s{T3}, s{T1}, 160
            s_sub_u32 s{T3}, s{T3}, {16*160 - 16}
            s_cmp_ge_u32 s{T1}, 16
            s_cselect_b32 s{T2}, s{T3}, s{T2}
            s_cselect_b32 s{T3}, 1, 0
            s_mul_i32 s{T2}, s{T2}, 1280
            s_add_u32 s{S_USRC}, s{S_USRC}, s{T2}
            s_mul_i32 s{T1}, s{T3}, {76*1280}
            s_add_u32 s{T2}, s{S_LW}, {RING + 4*SLOT}
            """.split('\n') if x.strip()]))
            for j in range(5):
                raw(f"""
                v_lshrrev_b32 v{t+4}, 2, v{RH+5*j+4}
                v_mul_u32_u24 v{t+5}, 640, v{t+4}
                v_lshrrev_b32 v{t+4}, 2, v{t+4}
                v_mul_u32_u24 v{t+4}, s{T1}, v{t+4}
                v_add3_u32 v{US+j}, v{t+4}, v{t+5}, v{V_LIN}
                """)
            raw(f"v_add_u32 v{US+4}, 4096, v{US+4}")
            iS1 = len(S)
            raw(f"""
            v_mul_u32_u24 v{t+7}, 640, v{R_}
            v_mul_u32_u24 v{t+8}, 40, v{C_}
            v_add3_u32 v{t+7}, v{t+7}, v{t+8}, s{T2}
            """)
            for j in range(5):
                raw(f"""
                v_add_u32 v{t+4}, {4*j}, v{G_}
                v_mul_u32_u24 v{t+5}, 13108, v{t+4}
                v_lshrrev_b32 v{t+5}, 16, v{t+5}
                v_mul_u32_u24 v{t+6}, 120, v{t+5}
                v_lshl_add_u32 v{t+6}, v{t+4}, 3, v{t+6}
                v_add_u32 v{t+6}, v{t+6}, v{t+7}
                v_and_b32 v{t+8}, s{T3}, v{t+5}
                v_mul_u32_u24 v{t+8}, 2560, v{t+8}
                v_add_u32 v{UA+2*j}, v{t+6}, v{t+8}
                v_sub_u32 v{t+6}, v{t+6}, v{t+8}
                v_add_u32 v{UA+2*j+1}, 2560, v{t+6}
                v_mul_u32_u24 v{t+5}, {102400 - 5120}, v{t+5}
                v_lshl_add_u32 v{t+5}, v{t+4}, 10, v{t+5}
                v_lshl_add_u32 v{UD+j}, v{I_}, 4, v{t+5}
                """)
            mark = {}
            def cond(name, lines):
                p.untracked([f"s_cmp_eq_u32 s{S_UOK}, 0", f"s_cbranch_scc1 {name}{self.sfx}"] + lines + [f"{name}{self.sfx}:"])
                mark[name] = p.nvm
            L = [f"s_add_u32 m0, s{S_LW}, {RING + 4*SLOT}"]
            for j in range(5):
                off = f"offset:{j*1024} " if 0 < j < 4 else ""
                L.append(f"buffer_load_dwordx4 v{US+j}, {srd(SWO)}, s{S_USRC} offen {off}lds")
                if j == 3: L.append(f"s_add_u32 m0, s{S_LW}, {RING + 4*SLOT + 4096}")
            un = [[lambda L=L: cond("L_u1", L)]]
            if o.get('uissue', 0) == 0: self.q(10**6 + 77, un)
            if o.get('uissue', 0) == -1: S = S[:4] + S[iS0:iS1] + [(0, un[0])] + S[iS1:] + S[4:iS0]
        self.run(S, every=o.get('proev', 60))
        self.stamp('p5')
        if o.get('uissue', 0) == 0: self.release(77)
        def urd():
            assert not any(x.tag == ('W', 4) for x in p.ins)
            cond("L_u2r", [f"s_waitcnt vmcnt({p.nvm - mark['L_u1']}) lgkmcnt(0)"] +
                [f"ds_read_b64_tr_b16 {vq(TMP+60+2*k, 2)}, v{UA+k}" for k in range(10)] + ["s_waitcnt lgkmcnt(0)"])
        def ust(j): cond("L_u2" + "abcd "[j].strip(), [f"buffer_store_dwordx4 {vq(TMP+60+4*j)}, v{UD+j}, {srd(SWS)}, s{S_UDST} offen sc1"])
        if o.get('hops', 1):
            p("s_mov_b64 exec, 0")
            for w_ in range(3): p(f"s_cmp_eq_u32 s{S_W}, {w_}"); p(f"s_cbranch_scc1 L_hop{w_}{self.sfx}")
            p(f"s_branch L_hop3{self.sfx}")
            p(f"L_hopret{self.sfx}:")
            p("s_mov_b64 exec, -1")
        if prod and o.get('upos', (0,))[0] < 0:
            while len(self.dq) > -o['upos'][0] - 1 and self.tick(): pass
            urd()
            for j in range(5): ust(j)
        while len(self.dq) > o.get('prokeep', 0) and self.tick(): pass
        p.raw(f"""
        s_getreg_b32 s{T0}, hwreg(HW_REG_XCC_ID, 0, 4)
        s_waitcnt lgkmcnt(0)
        s_add_u32 s{S_NONCE}, s{S_NONCE}, 0x9e3779b1
        s_lshl_b32 s{T0}, s{T0}, 28
        s_xor_b32 s{S_XCCV}, s{T0}, s{S_NONCE}
        v_mov_b32 v{V_NONCE}, s{S_NONCE}
        v_and_b32 v{V_VW}, 1, v{V_LANE}
        v_lshlrev_b32 v{V_VW}, 4, v{V_VW}
        v_lshrrev_b32 v{V_VW}, v{V_VW}, v{V_NONCE}
        v_mov_b32 v{V_KA0}, s{S_XCCV}
        s_add_u32 s{S_XA}, s{S_FLAG}, {WS_XCC - WS_FLAG}
        """)
        xst = [(f"buffer_store_dword v{V_KA0}, v{V_FOWN}, {srd(SWS)}, s{S_XA} offen sc1", 'xcc')]
        x1, x2, x3 = o.get('xpos', (-1, 58, 88))
        if x1 < 0: self.put(xst)
        self.stamp()
        p(f"s_branch L_main{self.sfx}")
        p(".p2align 12")
        p(f"L_main{self.sfx}:")
        xb = lambda ks, rt: aq((ks * 2 + rt) * 4)
        xbp = lambda ps: (lambda ks, rt: xb(4 * (4 - ks // 4) + ks % 4, rt)) if ps in o.get('rev', [1, 2]) else xb
        for pu in range(0, 7):
            if (pu + 3) % 2 == 0: self.q(0, self.dma_w((pu + 3) // 2))
            self.q(10 * pu, self.dma_x(pu + 3))
            if prod and o.get('uissue', 0) == pu + 1: self.q(0, un)
        for G in range(5, 10): self.q(10**6 + 1 if G % 5 >= 3 else 20 * (G - 3) - 4, self.dma_w(G))
        for G in range(10, 13): self.q(20 * (G - 3) - 3, self.dma_w(G))
        for G in range(13, 20): self.q(10**6 + G, self.dma_w(G))
        hooks = {}
        for pu in range(1, 10):
            hooks[10 * pu - 5] = [lambda pu=pu: self.xread(pu, 0), lambda pu=pu: self.xread(pu, 1)]
            hooks[10 * pu - 4] = [lambda pu=pu: self.xread(pu, 2), lambda pu=pu: self.xread(pu, 3)]
        if A:
            rd = [(tt, u_, hf) for tt in range(5) for u_ in range(3) for hf in range(2 if u_ < 2 else 1)]
            w = TMP + 96; u2 = TMP + 102
            sc = [lambda: p.wait(vm=['wphi'])]
            for j in range(4):
                sc += [f"v_lshlrev_b32 v{u2}, 16, v{w+j}", f"v_and_b32 v{u2+1}, 0xffff0000, v{w+j}", f"v_mul_f32 v{u2}, s{S_L2E}, v{u2}",
                       f"v_mul_f32 v{u2+1}, s{S_L2E}, v{u2+1}", f"v_cvt_pk_bf16_f32 v{w+j}, v{u2}, v{u2+1}"]
            hooks[8] = sc + [(f"ds_write_b128 v{TMP+100}, {vq(w)} offset:12288", 'phw')]
            hooks[14] = [lambda: p.wait(lg=['phw'])]
            slots = [n for n in range(21, 90) if n % 10 in (0, 1, 2, 3)][:25]
            for k, n in enumerate(slots):
                hooks[n] = [(f"ds_read_b64_tr_b16 a[{A_PHI + (tt*3+u_)*4 + 2*hf}:{A_PHI + (tt*3+u_)*4 + 2*hf + 1}], v{V_FR} offset:{(8*u_+4*hf)*40 + 8*tt}", 'phi')
                            for tt, u_, hf in rd[k:k+1]]
        late3 = {}
        if prod:
            UR = TMP + 60
            u1, u2_, u3 = o.get('upos', (18, 18, 62))
            if u1 >= 0: hooks.setdefault(u1, []).append(urd)
            for j in range(5):
                uj = u2_ + o.get('ustep', 0) * j
                if uj >= 0: (hooks if uj < 100 else late3).setdefault(uj % 100, []).append(lambda j=j: ust(j))
            (hooks if u3 < 100 else late3).setdefault(u3 % 100, []).append(lambda: cond("L_u3", [f"s_waitcnt vmcnt({p.nvm - mark['L_u2']})", f"v_mov_b32 v{V_DUMP}, s{S_UTAG}", "s_mov_b64 exec, 1",
                         f"buffer_store_dword v{V_DUMP}, v{V_LIN}, {srd(SWS)}, s{S_UFL} offen sc1", "s_mov_b64 exec, -1"]))
        KBV = [V_KB, 17, 18, 19]; KAV = [V_KA1, 20, 21, 22]
        if o.get('kvown', 0):
            for kk in (1, 2, 3, 0):
                hooks.setdefault(89 + 2 * ((kk + 3) % 4), []).extend([f"s_add_u32 s{T2}, s{S_W}, {kk}", f"s_and_b32 s{T2}, s{T2}, 3", f"s_mul_i32 s{T2}, s{T2}, {RW}"])
                hooks.setdefault(90 + 2 * ((kk + 3) % 4), []).extend([f"v_add_u32 v{KBV[kk]}, s{T2}, v{V_KB}", f"v_add_u32 v{KAV[kk]}, s{T2}, v{V_KA1}"])
        XV = TMP + 92
        iss, chk = self.checked("L_xc", [f"buffer_load_dword v{XV}, v{V_F8}, {srd(SWS)}, s{S_XA} offen sc1"],
                                [f"v_xor_b32 v{XV+1}, s{S_NONCE}, v{XV}", f"v_lshlrev_b32 v{XV+1}, 4, v{XV+1}", f"v_cmp_ne_u32 vcc, 0, v{XV+1}"], 'xl')
        xv, xq = {}, {}
        def xh(pos, L): [hooks, xv, xq][pos // 100].setdefault(pos % 100, []).extend(L)
        if x1 >= 0: xh(x1, xst)
        xh(x2, iss)
        c_ = [x for _, x in chk]
        xh(x3, c_[:3]); xh(x3 + 1, c_[3:4]); xh(x3 + 2, c_[4:] + [f"v_cmp_ne_u32 vcc, s{S_XCCV}, v{XV}"])
        xh(x3 + 3, [f"s_mov_b32 s{S_FAST}, {1 if o.get('nofast') else 'vcc_lo'}", f"s_add_u32 s{T0}, s{SWS}, {WS_O}", f"s_addc_u32 s{T1}, s{SWS+1}, 0"])
        xh(x3 + 4, [f"s_cmp_eq_u32 s{S_FAST}, 0", f"s_cselect_b32 s{SO}, s{SOUT}, s{T0}", f"s_cselect_b32 s{SO+1}, s{SOUT+1}, s{T1}"])
        xh(x3 + 5, [f"s_mov_b32 s{SO+2}, 5242880", f"s_mov_b32 s{SO+3}, 0x20000"])
        self.group_sync(0)
        for k in range(4): self.xread(0, k)
        self.prime(0, sync=False)
        kp = o.get('kpace', 3)
        k1p = {0: lambda n: 1 if n % 3 != 2 else 0, 1: lambda n: 1, 2: lambda n: 2 if n % 10 < 2 else (1 if n % 10 < 5 else 0), 3: lambda n: 1 if n % 4 != 3 else 0}[o.get('k1', 0)]
        E0, E1, M0_, M1_ = TMP, TMP + 40, TMP + 80, TMP + 86
        x0, x1 = acc(ACC_K, 0, 0), acc(ACC_K, 0, 1)
        def early(ps, P0, P1):
            tm = o.get('tm', (0, 0, 0))[ps]
            L = [(80, c, x) for c, x in P0['zero'] + P1['zero']]
            for t_ in range(5):
                r = 100 - 5 * tm + tm * (t_ + 1) + 1 if tm else 95 + t_ + 2
                L += [(r, c, x) for c, x in P0['cvt'][2*t_:2*t_+2] + P1['cvt'][2*t_:2*t_+2]]
            return deque(L)
        def split(late, P0):
            c0 = {x for _, x in P0['cvt'] + P0['zero']}
            return [(c, x) for _, c, x in late if x in c0], [(c, x) for _, c, x in late if x not in c0]
        lateK = None
        if A:
            P0 = self.phiA_parts(x0, E0, M0_, "L_k0", False); P1 = self.phiA_parts(x1, E1, M1_, "L_k1", False)
            lateK = early(0, P0, P1)
        self.gemm_pass(0, ACC_K, xb, hooks=hooks, last=True, late=lateK, pace=lambda n: k1p(n) if n < o.get('ksw', 69) else (1 if n % kp == 0 else 0))
        self.stamp()
        E0, E1, M0_, M1_ = TMP, TMP + 40, TMP + 80, TMP + 86
        x0, x1 = acc(ACC_K, 0, 0), acc(ACC_K, 0, 1)
        tagset = [f"s_bfe_u32 s{S_TB+j}, s{S_NONCE}, {hex(0x80000 + 8*j)}" for j in range(4)] + [f"s_lshr_b32 s{S_NHI}, s{S_NONCE}, 16"]
        if o.get('amp'):
            p.raw(f"""
            s_load_dwordx2 s[88:89], s[0:1], 64
            s_not_b32 s{T0}, s98
            v_mov_b32 v{TMP+94}, 0
            v_mov_b32 v{TMP+95}, s{T0}
            s_lshr_b32 s{T0}, s2, 3
            s_or_b32 s{T0}, s{T0}, s{S_W}
            s_cmp_eq_u32 s{T0}, 0
            s_cselect_b32 s{T0}, 0, 64
            v_mov_b32 v{TMP+94}, s{T0}
            s_waitcnt lgkmcnt(0)
            s_cbranch_scc0 L_noat{self.sfx}
            s_mov_b64 exec, 1
            """)
            p.ins.append(__import__('emit').Ins(f"global_atomic_umax v{TMP+94}, v{TMP+95}, s[88:89] sc1"))
            p("s_mov_b64 exec, -1")
            p(f"L_noat{self.sfx}:")
        wr = lambda rt, x, n, o8: [(2, (f"ds_write_b64 v{V_PW}, {vq(x+2*j, 2)} offset:{rt*1920 + o8 + 8*j}", 'pw')) for j in range(n)]
        def mixw(out, w): return [y for j in range(len(w)) for y in out[2*j:2*j+2] + [w[j]]]
        burst = lambda L: [(0, [x for _, x in L])]
        dm = (2, lambda: self.tick())
        if A:
            r0, r1 = split(lateK, P0)
            def headA(P0, P1, r0, r1, extra0, extra1):
                L = list(r0); side = deque(r1); ne = 0; ex0 = dict(extra0); ex1 = dict(extra1)
                for k_, mfx in enumerate(P0['mf'] + P1['mf']):
                    if k_ == 15: L += list(side); side.clear()
                    L.append(mfx)
                    ex = ex0.get(k_) if k_ < 15 else ex1.get(k_ - 15)
                    if ex: L += ex
                    elif side:
                        for _ in range(2):
                            if side: L.append(side.popleft())
                    elif k_ >= 3 * ((ne % 20) // 4) + 2 + 3 and (ne < 28 or k_ >= 16): L.append(P0['exp'][ne]); ne += 1
                return L, ne
            pr = [(0, lambda: (self.group_sync(5), self.release(1)))]
            pr = pr + [(1, lambda n=n, hf=hf: self.wread(100 + n, hf)) for n in range(D - 1) for hf in range(2)]
            hx = o.get('hx', 30)
            L_, ne = headA(P0, P1, r0, r1, {0: [dm], 14: [dm]}, {7: [dm]})
            self.put([x for _, x in [dm] + L_])
            hm = o.get('hmore', 0)
            self.run(P0['exp'][ne:] + P1['exp'][:hm] + P0['norm'][:-10], every=hx)
            self.put([x for _, x in pr + P0['norm'][-10:]])
            def tailf(P, rt, x, e, m, sc, head_done):
                nb = P['norm'][:len(P['norm']) - sc]
                L = [] if head_done else burst(nb)
                w_ = wr(rt, x, 10, 0)
                for j in range(10):
                    for i in (2 * j, 2 * j + 1):
                        if i >= 20 - sc: L += [(1, f"v_mul_f32 v{e+2*i+h}, v{e+2*i+h}, v{m+4 if i < 10 else m+2}") for h in range(2)]
                    L += P['out'][2*j:2*j+2] + [w_[j]]
                return L
            sc0, sc1 = o.get('scal', (0, 0))
            fill = tailf(P0, 0, x0, E0, M0_, 0, True) + P1['exp'][hm:] + tailf(P1, 1, x1, E1, M1_, sc1, False)
            self.stamp('head')
        else:
            fill = []
            for rt, x, e in ((0, x0, E0), (1, x1, E1)):
                L = self.phiB(x, e, False)
                fill += L[:-10] + mixw(L[-10:], wr(rt, x, 5, 0))
            self.group_sync(5); self.release(1); self.prime(1, sync=False)
        hooks = {}
        hooks.update(late3)
        PFV = TMP + 94
        ipf, cpf_ = self.checked("L_pf", [f"buffer_load_dwordx2 {vq(PFV, 2)}, v{V_PF}, {srd(SWS)}, s{S_PFL} offen sc1"],
                                 [f"v_xor_b32 v{PFV}, s{S_NONCE}, v{PFV}", f"v_bitop3_b32 v{PFV}, v{PFV}, v{PFV+1}, s{S_NONCE} bitop3:0xf6", f"v_cmp_ne_u32 vcc, 0, v{PFV}"], 'pf')
        pfp = o.get('pfpos', 81)
        if pfp < 100: hooks.setdefault(pfp, []).extend(ipf)
        pre = ["s_mov_b32 exec_hi, 0xff", (f"buffer_load_dword v{V_DUMP}, v{V_L128}, {srd(SO)}, s{S_OP} offen sc1", 'pr'), "s_mov_b64 exec, 1",
               (f"buffer_load_dword v{V_DUMP}, v{V_F8}, {srd(SWS)}, s{S_FLAG} offen sc1", 'pr'), "s_mov_b64 exec, -1"]
        pre1 = []
        if o.get('pre1m') is not None:
            pre1 = ["s_mov_b32 exec_lo, 0xfff00000", "s_mov_b32 exec_hi, 0xff", pre[1], "s_mov_b64 exec, -1"]
            pre = ["s_mov_b64 exec, 0xfffff"] + pre[1:]
        prel = []
        if o.get('prem'):
            n_ = len(o['prem']); o['prepos'] = 2
            for k_, ps_ in enumerate(o['prem']):
                lo_, hi_ = 40 * k_ // n_, 40 * (k_ + 1) // n_
                mk = ((1 << hi_) - 1) ^ ((1 << lo_) - 1)
                L_ = [f"s_mov_b32 exec_lo, {hex(mk & 0xffffffff)}", f"s_mov_b32 exec_hi, {hex(mk >> 32)}", pre[1]] + (pre[2:4] if k_ == 0 else []) + ["s_mov_b64 exec, -1"]
                assert ps_ <= 0 or ps_ > x3 + 5
                if ps_ >= 200: xq.setdefault(ps_ - 200, []).extend(L_)
                elif ps_ >= 100: xv.setdefault(ps_ - 100, []).extend(L_)
                else: prel.append((ps_, L_))
        wp, pp_ = o.get('wopf', -1), o.get('prepos', 0)
        if 100 <= pp_ < 200: hooks.setdefault(pp_ - 100, []).extend(pre)
        vs = o.get('vsync', 0)
        if o.get('v13'): hooks.setdefault(78, []).extend(["s_barrier", lambda: self.release(13)])
        for k_, v_ in xv.items(): hooks.setdefault(k_, []).extend(v_)
        for k_, v_ in enumerate(tagset): hooks.setdefault(41 + k_, []).insert(0, v_)
        vp = o.get('vpace', 4)
        vset = set(range(0, 100, vp))
        if o.get('vsch'):
            vset = set(); n_ = 0
            for cnt_, st_ in o['vsch']:
                for _ in range(cnt_): vset.add(n_); n_ += st_
        VB = TMP
        tmv = o.get('tm', (0, 0, 0))[1]
        lateV = deque()
        for j in range(5):
            for rt in range(2):
                c = self.cvt20(acc(ACC_V, 0, rt), VB + 10 * rt)
                r = 100 - 5 * tmv + tmv * (j + 1) + 1 if tmv else 200
                lateV.extend([(r, 1, c[2*j][1]), (r, 1, c[2*j+1][1]), (r, 2, (f"ds_write_b64 v{V_PW}, {vq(VB+10*rt+2*j, 2)} offset:{rt*1920 + 80 + 8*j}", 'vw'))])
        self.gemm_pass(1, ACC_V, xbp(1), fill=fill, hooks=hooks, last=True, sync=True, late=lateV, frange=(0, o.get('vend', 100)), pace=lambda n: 1 if n in vset else 0)
        self.stamp()
        for k_, (_, _, x) in enumerate(lateV):
            self.put([x])
            if k_ == 14: self.tick()
        NT = 3 if A else 2
        FB = ACC_K
        KV = TMP + 64
        rds = deque()
        own = o.get('kvown', 0)
        def rd(reg, av, off, kk, j):
            for hf in range(2): rds.append((f"ds_read_b64_tr_b16 {vq(reg+2*hf, 2)}, v{av[kk] if own else av[0]} offset:{(0 if own else kk*RW) + hf*120 + off}", ('kv', kk, j)))
        for kk in range(4):
            b = FB + kk * 20
            rd(b, KBV, 80, kk, 'a')
            for nt in range(NT): rd(b + 8 + 4 * nt, KBV, 32 * nt, kk, nt)
            rd(b + 4, KAV, 112, kk, 'z')
        if own:
            p("s_waitcnt lgkmcnt(5)")
            for _ in range(2 * NT + 4): self.put([rds.popleft()])
        self.tick()
        gk = 11
        self.flush_dma(('W', gk)); p.wait(vm=[('W', gk)], lg=['vw', 'pw'])
        p("s_barrier")
        self.release(13); self.release(14)
        def more(k):
            while k > 0 and rds and len(p.lgq) < 15: self.put([rds.popleft()]); k -= 1
        if own: more(5); p.wait(lg=[('kv', 0, 'z')])
        more(o.get('kvi', 15)); self.tick()
        p(f"v_mov_b32 v{TMP+1}, 0xff")
        seq = [(kk, nt) for kk in range(4) for nt in range(NT)]
        ao = deque((kk, f"v_and_or_b32 v{FB+kk*20+4+j}, v{FB+kk*20+4+j}, v{V_KEEP}, v{V_ONE}") for kk in range(4) for j in range(4))
        p.wait(lg=[('kv',) + seq[0]])
        for i_, (kk, nt) in enumerate(seq):
            b = FB + kk * 20
            p(f"{MF} {vq(KV + nt*4)}, {vq(b)}, {vq(b+8+4*nt)}, {'0' if kk == 0 else vq(KV + nt*4)}")
            p.wait(lg=[('kv',) + seq[i_ + 1]] if i_ + 1 < len(seq) else '*')
            k_ = len(rds); more(o.get('kvr', 4))
            for _ in range(max(0, 3 - (k_ - len(rds)))):
                if ao and ('kv', ao[0][0], 'z') not in p.lgq and not any(x[1] == ('kv', ao[0][0], 'z') for x in rds): p(ao.popleft()[1])
        assert not rds
        while len(ao) > 4: p(ao.popleft()[1])
        lastm = 0x00ff00ff if A else 0x000f000f
        def pub(mt, nt):
            a = KV + (mt * 3 + nt) * 4
            L = [(1, f"v_bfi_b32 v{a+j}, v{TMP+1}, s{S_TB+j}, v{a+j}") for j in range(4)]
            va = [V_P1ST, V_P1M, V_P1M + 1, V_P1M + 2][2 * mt + (nt == NT - 1)]
            return L + [(2, (f"buffer_store_dwordx4 {vq(a)}, v{va}, {srd(SWS)}, s{S_P1ST} offen offset:{(4*mt*F + 16*nt)*16 if A else [1024*mt, 1536 + 256*mt][nt]} sc1", 'p1'))]
        self.stamp('kv3')
        mf = [(2, f"{MF} {vq(KV + (3+nt)*4)}, {vq(FB+kk*20+4)}, {vq(FB+kk*20+8+4*nt)}, {'0' if kk == 0 else vq(KV + (3+nt)*4)}") for nt in range(NT) for kk in range(4)]
        pr = [(1, lambda n=n, hf=hf: self.wread(200 + n, hf)) for n in range(D - 1) for hf in range(2)]
        self.put([x for _, x in self.weave(mf, [(1, x[1]) for x in ao] + [y for nt in range(NT) for y in pub(0, nt)] + pr)])
        qhead = [y for nt in range(NT) for y in pub(1, nt)]
        pb = o.get('pubb', 0)
        self.put([x for _, x in qhead[:pb]]); qhead = qhead[pb:]
        self.stamp()
        X = TMP + 8; CK = TMP + 2
        def tagcheck(mask):
            if mask == "0xff":
                L = [f"v_xor_b32 v{X+j}, s{S_TB+j%4}, v{X+j}" for j in range(4 * NI)] + [f"v_or_b32 v{CK}, v{X}, v{X+1}"]
                L += [f"v_or3_b32 v{CK}, v{CK}, v{X+j}, v{X+j+1}" for j in range(2, 4 * NI, 2)]
            else:
                L = [f"v_xor_b32 v{CK}, s{S_NONCE}, v{X}"] + [f"v_bitop3_b32 v{CK}, v{CK}, v{X+j}, s{S_NHI if j % 2 else S_NONCE} bitop3:0xf6" for j in range(1, 4 * NI)]
            return L + [f"v_and_b32 v{CK}, {mask}, v{CK}", f"v_cmp_ne_u32 vcc, 0, v{CK}"]
        lds_ = []
        for ii in range(NI):
            lds_ += [f"s_add_u32 s{T0}, s{S_P1LD}, {ii * (65536 // NI)}", f"buffer_load_dwordx4 {vq(X+4*ii)}, v{V_P1LD}, {srd(SWS)}, s{T0} offen sc1"]
        adds = [f"v_add_f32 v{X+j}, v{X+j}, v{X+4*ii+j}" for ii in range(1, NI) for j in range(4)]
        if o.get('h1pipe'):
            iss, chk = self.checked("L_h1", lds_, tagcheck("0xff"), 'h1', redo=adds)
            iss = [(x[0], ('h1', k_ // 2)) if isinstance(x, tuple) else x for k_, x in enumerate(iss)]
            c2 = []
            for ii in range(NI):
                c2 += [(0, lambda ii=ii: p.wait(vm=[('h1', ii)]))] + [(1, f"v_xor_b32 v{X+4*ii+j}, s{S_TB+j}, v{X+4*ii+j}") for j in range(4)]
                c2 += [(1, f"v_or_b32 v{CK}, v{X}, v{X+1}" if ii == 0 else f"v_or3_b32 v{CK}, v{CK}, v{X+4*ii}, v{X+4*ii+1}"), (1, f"v_or3_b32 v{CK}, v{CK}, v{X+4*ii+2}, v{X+4*ii+3}")]
                if ii == NI - 1: c2 += chk[-3:-1]
                if ii: c2 += [(1, y) for y in adds[4*ii-4:4*ii]]
            chk = c2 + chk[-1:]; red = []
        else:
            iss, chk = self.checked("L_h1", lds_, tagcheck("0xff"), 'h1')
            red = list(adds)
        red += [f"v_permlane32_swap_b32 v{X}, v{X+2}", f"v_permlane32_swap_b32 v{X+1}, v{X+3}", f"v_add_f32 v{X}, v{X}, v{X+2}", f"v_add_f32 v{X+1}, v{X+1}, v{X+3}",
                f"v_mov_b32 v{CK}, 0xffff", f"v_permlane16_swap_b32 v{X}, v{X+1}", f"v_add_f32 v{X}, v{X}, v{X+1}"]
        if not A: red.append(f"v_add_f32_dpp v{X}, v{X}, v{X} row_ror:8 row_mask:0xf bank_mask:0xf")
        red += [f"v_cvt_pk_bf16_f32 v{X}, v{X}, v{X}", f"v_bfi_b32 v{X}, v{CK}, v{V_VW}, v{X}"]
        st = (f"buffer_store_dword v{X}, v{V_P2ST}, {srd(SWS)}, s{S_P2ST} offen sc1", 'p2')
        sts = [st]
        for _ in range((1 << o.get('p2log', 2)) - 1): sts += [f"s_add_u32 s{S_P2ST}, s{S_P2ST}, {1 << 18}", st]
        if A and o.get('h1pipe'):
            red += [sts[0:1]] + [sts[k_:k_+2] for k_ in range(1, len(sts), 2)]
        else: red.append(sts if A else ["s_mov_b32 exec_lo, 0x00ff00ff", "s_mov_b32 exec_hi, 0x00ff00ff"] + sts + ["s_mov_b64 exec, -1"])
        n1, n2 = o.get('h1', (62, 84))
        hooks = {n1 + k: iss[2*k:2*k+2] for k in range(NI)}
        if pfp >= 100: hooks.setdefault(pfp - 100, []).extend(ipf)
        for k_, v_ in xq.items(): hooks.setdefault(k_, []).extend(v_)
        c_ = [x for _, x in cpf_]
        pc = o.get('pfchk', 13)
        hooks.setdefault(pc, []).extend(c_[:3]); hooks.setdefault(pc + 1, []).extend(c_[3:4]); hooks.setdefault(pc + 3, []).extend(c_[4:] + [lambda: setattr(self, 'pfok', True)])
        if 200 <= pp_ < 300: hooks.setdefault(pp_ - 200, []).extend(pre)
        qh = deque(qhead)
        for n in range(20): hooks.setdefault(n, []).append(lambda: self.gap(qh, 2))
        qb_ = o.get('qb', (30, 53, 66, 80))
        assert 18 <= qb_[0] <= 34 and 38 <= qb_[1] <= 54 and 58 <= qb_[2] <= 74 and 78 <= qb_[3] <= 98
        busy = sorted([(pc, pc + 3), (n1, n1 + NI), (n2, min(100, n2 + o.get('h1len', 16)) + 1)] + ([(x3 - 200, x3 - 195)] if x3 >= 200 else []))
        assert all(a_[1] < b_[0] for a_, b_ in zip(busy, busy[1:])), busy
        assert pfp - 100 < pc and x2 < x3 and (pp_ < 100 or pp_ > x3 + 5)
        for fr_, pubg, rel in [(qb_[0], 12, [15]), (qb_[1], 13, [16]), (qb_[2], 14, [17]), (qb_[3], 14, [18])]:
            hooks.setdefault(fr_, []).extend([lambda g=pubg: self.group_sync(g)] + [lambda r=r: self.release(r) for r in rel])
        lateQ = None
        if A:
            P0 = self.phiA_parts(x0, E0, M0_, "L_q0", True); P1 = self.phiA_parts(x1, E1, M1_, "L_q1", True)
            lateQ = early(2, P0, P1)
        self.gemm_pass(2, ACC_K, xbp(2), late=lateQ, fill=chk + [(2 if isinstance(x, list) and o.get('h1pipe') else 1, x) for x in red], hooks=hooks, last=True, sync=False, frange=(n2, min(100, n2 + o.get('h1len', 16))),
                       pace=lambda n: 1 if (n >= 9 and n % (o.get('qpace', 3) if n < o.get('qsw', 42) else o.get('qpace2', 3)) == 0 and not n1 <= n < n1 + NI) else 0)
        assert not qh
        p("s_barrier")
        [self.release(r) for r in range(15, 20)]
        self.stamp()
        X = TMP + 96; CK = TMP + 92
        lds_ = [f"buffer_load_dwordx4 {vq(X+4*ii)}, v{V_LIN if ii < NI-1 else V_GAL}, {srd(SWS)}, s{S_P2LD} offen offset:{1024*ii if ii < NI-1 else 0} sc1" for ii in range(NI)]
        PB = TMP + 8
        img = [y for ii in range(NI) for y in (f"v_perm_b32 v{PB+2*ii}, v{X+4*ii+1}, v{X+4*ii}, s{S_PERM}", f"v_perm_b32 v{PB+2*ii+1}, v{X+4*ii+3}, v{X+4*ii+2}, s{S_PERM}",
                                               f"ds_write_b64 v{V_LA+ii}, {vq(PB+2*ii, 2)}")]
        iss, chk = self.checked("L_h2", lds_, tagcheck("0xffff"), 'h2', redo=img)
        zw = [f"v_mov_b32 v{CK}, 0", f"v_mov_b32 v{CK+1}, 0", f"ds_write_b64 v{V_ZA}, {vq(CK, 2)}"]
        if not A: self.put(zw)
        for k_ in range(o.get('dirty', 0)):
            p(f"s_add_u32 s{T0}, s{S_OP}, {(9 << 20) + (k_ // 5) * (6 << 20) + (k_ % 5) * 1024}")
            p(f"buffer_store_dwordx4 v[2:5], v{V_LIN}, {srd(SWS)}, s{T0} offen {o.get('dirtyf', '')}")
        if o.get('prepos', 0) == 1: self.put(pre)
        if not A:
            for tt in range(6): p(f"v_accvgpr_write_b32 a{40+4*(3*tt+2)+2}, 0"); p(f"v_accvgpr_write_b32 a{40+4*(3*tt+2)+3}, 0")
        if A:
            r0, r1 = split(lateQ, P0)
            L_, ne = headA(P0, P1, r0, r1, {0: [dm], 2: [(0, zw)]} if not r1 else {}, {})
            L = L_ + P0['exp'][ne:] + P0['norm'] + P0['out'] + P1['exp'] + P1['norm'] + P1['out']
            if r1: self.put(zw)
        else:
            L = []
            for x, e in ((x0, E0), (x1, E1)):
                L += self.phiB(x, e, True) + [(1, f"v_mov_b32 v{x+10}, 0"), (1, f"v_mov_b32 v{x+11}, 0")]
        d1_, d2_ = o.get('oshift', (0, 0))
        Ld2 = L[len(L) - d2_:]; L = L[:len(L) - d2_]
        Ld1 = L[len(L) - d1_:]; L = L[:len(L) - d1_]
        tot = sum(c for c, _ in L)
        ev = [(tot - o.get('h2lead', 60), iss)]
        if o.get('prepos', 0) == 0 and o.get('prelead', 0) >= 0: ev.append((tot - o.get('prelead', o.get('h2lead', 60)) + 0.5, pre))
        if (o.get('pre1m') or 0) < -1: ev.append((tot + o['pre1m'] + 0.5, pre1))
        for ps_, L_ in prel: ev.append((tot + ps_ + 0.5, L_))
        L2 = []; c = 0; ev.sort(key=lambda e_: e_[0])
        for it_ in L + [(0, [])]:
            while ev and c >= ev[0][0] - (0.5 if it_[0] == 0 else 0): L2.append((0, ev.pop(0)[1]))
            L2.append(it_); c += it_[0]
        assert not ev
        self.run(L2, every=o.get('qev', 44))
        self.flush_dma(('W', 17))
        self.stamp()
        self.put([chk[0][1]] + img + [x for _, x in chk[1:]])
        if o.get('prepos', 0) == 0 and o.get('prelead', 0) < 0: self.put(pre)
        if o.get('pre1m') == -1: self.put(pre1)
        self.put([x for _, x in Ld1])
        p(f"s_cmp_eq_u32 s{S_FAST}, 0")
        p.wait(vm=[('W', 17)], lg='*')
        p("s_barrier")
        self.stamp()
        assert not self.dq or True
        import copy
        if o.get('stamps'): p(f"s_cmp_eq_u32 s{S_FAST}, 0")
        p(f"s_cbranch_scc0 L_tail{self.sfx}s")
        env = dict(RS=RS, M0_=M0_, M1_=M1_, Ld2=Ld2, pre1=pre1)
        sv = (self.p, self.sfx, self.nst, getattr(self, 'cs', 0), deque(self.dq))
        self.p = Prog(); self.p.vmq = list(p.vmq); self.p.lgq = list(p.lgq); self.sfx += 's'
        self.p(f"L_tail{self.sfx}:")
        self.tail(False, **env)
        self.ool.append(self.p.finalize())
        self.p, self.sfx, self.nst, self.cs, self.dq = sv
        self.tail(True, **env)
        return p.finalize() + "".join(self.ool)
    def tail(self, fast, RS, M0_, M1_, Ld2, pre1):
        p = self.p; A = self.A; o = self.o; br = 0 if A else 1
        def more(k):
            while k > 0 and rds and len(p.lgq) < 15: self.put([rds.popleft()]); k -= 1
        OA = ACC_V
        NU = 5 if A else 3
        SP = TMP + 112
        OB = TMP + 64
        LO = TMP + 80
        fr = [(tt, u_) for tt in (5, 0, 1, 2, 3, 4) for u_ in range(NU)]
        AO = 40
        rds = deque()
        for n, (tt, u_) in enumerate(fr):
            if not A and u_ == 2: rds.append((f"ds_read_b64 {aq(AO+4*n, 2)}, v{V_FR2} offset:{4*tt*RS + 16*u_}", ('of', n)))
            else: rds.append((f"ds_read_b128 {aq(AO+4*n)}, v{V_FR2} offset:{4*tt*RS + 16*u_}", ('of', n)))
        more(10)
        if A: p(f"v_mov_b32 v{SP}, v{M0_}"); p(f"v_mov_b32 v{SP+1}, v{M1_}")
        self.put([x for _, x in Ld2])
        def ost(txt, tag='o'):
            p(txt + ((o.get('fastf', '') if 'x4' in txt else '') if fast else " sc1"), tag)
        def flag(k): ost(f"buffer_store_dword v{V_NONCE}, v{V_FOWN}, {srd(SWS)}, s{S_FLAG} offen offset:{32*k}", 'fl')
        def poll(k, name):
            iss, chk = self.checked(name, [f"buffer_load_dword v{V_DUMP}, v{V_F8}, {srd(SWS)}, s{S_FLAG} offen offset:{32*k} sc1"], [f"v_cmp_ne_u32 vcc, s{S_NONCE}, v{V_DUMP}"], name)
            return iss, [x for _, x in chk]
        order = [(0, k) for k in range(5)] + [(1, k) for k in range(5)] + [(0, 5), (1, 5)]
        epi = deque()
        for z, (rt, k) in enumerate(order):
            dn = OA + (rt * 6 + 5) * 4
            b = OA + rt * 24
            rdy = (z + 1) * NU + o.get('rdy', 4)
            if k == 0:
                epi.append((rdy, 1, f"v_fmac_f32 v{dn}, {EPS}, v{SP+rt}" if A else f"v_add_f32 v{dn}, {EPS}, v{dn}")); epi.append((rdy, 2, f"v_rcp_f32 v{dn}, v{dn}"))
                continue
            tt = k - 1
            for r in range(4): epi.append((rdy, 1, f"v_mul_f32 v{b+4*tt+r}, v{b+4*tt+r}, v{dn}"))
            for h in range(2):
                i = 2 * tt + h
                d = OB + ((i // 4) * 2 + rt) * 4 + i % 4 if i < 8 else LO + 2 * rt + (i - 8)
                epi.append((rdy, 1, f"v_cvt_pk_bf16_f32 v{d}, v{b+2*i}, v{b+2*i+1}"))
            if tt in (1, 3):
                u_ = tt // 2
                epi.append((0, 2, lambda u_=u_, rt=rt: ost(f"buffer_store_dwordx4 {vq(OB+(u_*2+rt)*4)}, v{V_OO+rt*2+u_}, {srd(SO)}, s{S_OP} offen", ('S', rt))))
        epi.append((0, 2, lambda: ost(f"buffer_store_dwordx4 {vq(LO)}, v{V_OO+4}, {srd(SO)}, s{S_OP} offen", ('S', 1))))
        TM_ = o.get('tmaj', 3); LD = o.get('lead', 8); DF = o.get('df', 11); A_RING = A_PHI
        items = [(P, t_, (0, 1)) for P in range(2) for t_ in range(5)] + [(P, t_, (0,)) for P in range(2, 2 + LD) for t_ in range(5)] + \
                [(P, t_, (0, 1)) for P in range(2 + LD, 20) for t_ in range(5)] + [(P, t_, (1,)) for P in range(2, 2 + LD - TM_) for t_ in range(5)] + \
                [(P, t_, (1,)) for t_ in range(5) for P in range(2 + LD - TM_, 2 + LD)]
        keep = o.get('keep', 40); DP = 7
        assert not Ld2 or not keep
        dest = {}; prevuse = {}; order_r = []; ringn = 0; cache = {}; lastring = {}
        for i, (P, t_, rts) in enumerate(items):
            if (P, t_) in cache: dest[i] = cache[(P, t_)]; continue
            if not keep: r_ = aq(A_RING + (i % DF) * 4)
            elif rts == (0,) and len(cache) < keep:
                k_ = len(cache); r_ = aq(128 + 4 * k_) if k_ < 32 else vq(72 + 4 * (k_ - 32)); cache[(P, t_)] = r_
            else: r_ = vq(TMP + 36 + 4 * (ringn % DP)); ringn += 1
            prevuse[i] = lastring.get(r_, -1); lastring[r_] = i
            dest[i] = r_; order_r.append(i)
        mpos = [0]
        for it_ in items: mpos.append(mpos[-1] + len(it_[2]))
        rq = deque(order_r)
        def fread(i=None, hf=0):
            i = rq.popleft(); P, t_, _ = items[i]
            off = RING + P * 5120 + 1024 * t_; hi = off >= 51200
            p(f"ds_read_b128 {dest[i]}, v{V_LINH if hi else V_LIN} offset:{off - 51200*hi}", ('FF', i))
        def canread(i):
            return rq and prevuse[rq[0]] < i and mpos[rq[0]] - mpos[i] <= (o.get('look', 12) if keep else 99) and len(p.lgq) < 14
        pr = deque((i, 0) for i in range(DP - 1 if keep else DF - 1))
        m = 0; mf0 = o.get('mf0', 54 if A else 36); seen = set()
        for rt, k in order:
            for u_ in range(NU):
                n = k * NU + u_; tt = fr[n][0]
                a = OA + (rt * 6 + tt) * 4
                if m == 0: p.wait(lg=[('of', 0)])
                p(f"{MF} {vq(a)}, {aq(AO+4*n)}, {vq(ACC_K+20*rt+4*u_)}, {'0' if u_ == 0 else vq(a)}")
                m += 1
                if n + 1 < len(fr): p.wait(lg=[('of', n + 1)])
                bud = 2 if A else 3
                if m == mf0:
                    assert sum(1 for x in p.ins if x.tag == ('S', 0)) == 2
                    p.wait(vm=[('S', 0)]); flag(0); bud -= 2
                elif m == o.get('pre1m'): self.put(pre1); bud -= 2
                elif rds: more(1); bud -= 1 if not (epi and epi[0][0] <= m and epi[0][1] == 2) else 0
                elif self.dq and m % o.get('opace', 8) == 0: self.tick(); bud -= 2
                elif pr and not (epi and epi[0][0] <= m): fread(*pr.popleft()); bud -= 1
                while epi and epi[0][0] <= m and epi[0][1] <= bud:
                    _, c, x = epi.popleft(); bud -= c
                    self.put([x])
                    if callable(x): break
        while pr: fread(*pr.popleft())
        while len(epi) > 7: self.put([epi.popleft()[2]])
        while self.tick(): pass
        self.stamp()
        def ob(ks, rt):
            if ks < 2: return vq(OB + (ks * 2 + rt) * 4)
            return aq((ks * 2 + rt) * 4) if ks < 16 else vq(LO + (2 * (ks - 16) + rt) * 4)
        ofl = o.get('ofl', 'sc1') if fast else 'sc1'
        def ld(P, rt):
            if P < 16: return [(f"buffer_load_dwordx4 {aq((P*2+rt)*4)}, v{V_OO+rt*2+P%2}, {srd(SO)}, s{S_OP + P//2} offen {ofl}", ('O', P, rt))]
            return [(f"buffer_load_dwordx4 {vq(LO+(2*(P-16)+rt)*4)}, v{V_OO+4}, {srd(SO)}, s{S_OP + 2*(P-16) + rt} offen {ofl}", ('O', P, rt))]
        i0, c0 = poll(0, "L_f0"); i1, c1 = poll(1, "L_f1"); i2, c2 = poll(2, "L_d0"); i3, c3 = poll(3, "L_d1")
        L0x = min(16, 2 + LD + o.get('xlead', 0))
        if o.get('nod'):
            if '0' in o['nod']: i2 = []; c2 = [[], [], c2[2][1:]]
            if '1' in o['nod']: i3 = []; c3 = [[], [], c3[2][1:]]
        lead = [ld(P, 0) for P in range(2, L0x)]
        rest = [ld(P, rt) for P in range(2 + LD, 20) for rt in range(2) if (P, rt) != (16, 0) and not (rt == 0 and P < L0x)] + [ld(P, 1) for P in range(2, 2 + LD)]
        def handshake():
            p.wait(vm=[('S', 1), ('W', 18), ('W', 19)])
            flag(1)
            self.put(c0)
            self.stamp()
            self.q(0, lead); self.q(10**6 + 50, rest)
            for k_ in range(o.get('oprime', 7)):
                self.tick()
                if k_ == 3: p("s_barrier")
                if k_ == 3 and o.get('p1it', -1) < 0: self.put(i1)
            p.wait(vm=[('O', 2, 0)])
        E0 = len(items) - 5 * LD
        NI_ = len(items)
        def outp(rt):
            b = TMP + 8
            c = self.cvt20(acc(ACC_K, 0, rt), b)
            L = []
            for j in range(5): L += [c[2*j][1], c[2*j+1][1], (f"ds_write_b64 v{V_OW}, {vq(b+2*j, 2)} offset:{rt*16*OUTS + 8*j}", 'ow')]
            L += [(f"ds_read_b128 {vq(TMP+24+4*j)}, v{V_ORD+j} offset:{rt*16*OUTS}", ('or', j)) for j in range(3)]
            S_ = [(f"buffer_store_dwordx4 {vq(TMP+24+4*j)}, v{V_OG+j}, {srd(SOUT)}, s{S_OUT} offen{o.get('oflag', ('', ''))[rt]}", 'out') for j in range(3)]
            return L, S_
        vw, lw, sc_, vec = {}, {}, {}, {}
        add = lambda d, i, L: d.setdefault(i, []).extend(L)
        def check(i, c, tag, gapn):
            add(vw, i, [tag]); add(vec, i, [c[1]]); add(sc_, i + gapn, [c[2]])
        ep = [x[2] for x in epi]
        add(vec, 1, ep[:3]); add(vec, 2, ep[3:6]); add(vec, 3, ep[6:])
        add(vec, o.get('p0pos', 4), i0)
        add(vec, 9, [handshake])
        if o.get('p1it', -1) >= 0: add(vec, 10 + o.get('p1it', -1), i1)
        ci = 10 + o.get('c1pos', 5); check(ci, c1, "L_f1", 2); add(sc_, ci + 2, [lambda: self.release(50)])
        for i in range(15, NI_ - 5 * TM_ + 1, 5):
            if i == NI_: break
            Pn, _, rn = items[i]
            tags = [('O', Pn, rt) for rt in rn]
            if i == NI_ - 5 * TM_: tags = [('O', 1 + LD, 1)]
            if Pn >= 16:
                a = LO + 2 * (Pn - 16) * 4
                add(vw, i - 2, tags); add(vec, i - 2, [f"v_swap_b32 v{a+2}, v{a+4}", f"v_swap_b32 v{a+3}, v{a+5}"])
            else: add(vw, i - 1, tags)
        nd0 = E0 - o.get('d0', 8); add(vw, nd0, [('O', 19, 0), ('O', 19, 1)]); add(vec, nd0, [lambda: flag(2)])
        add(vec, E0 + o.get('d0p', 0), i2)
        L0, S0 = outp(0)
        if keep >= 5 * LD:
            for j in range(5): add(vec, E0 + 3 + 2 * j, L0[3*j:3*j+2]); add(vec, E0 + 4 + 2 * j, L0[3*j+2:3*j+3])
            add(vec, E0 + 13, L0[15:17]); add(vec, E0 + 14, L0[17:18])
        else:
            for j, x in enumerate(L0): add(vec, E0 + 2 + j, [x])
        nd1 = NI_ - o.get('d1', 24); (add(vw, nd1, [('O', 1 + LD, 1)]), add(vec, nd1, [lambda: flag(3)])) if '1' not in o.get('nod', '') else None
        check(E0 + 22, c2, "L_d0", 2)
        for j, x in enumerate(S0): add(lw, E0 + 25 + 2 * j, [('or', j)]); add(vec, E0 + 25 + 2 * j, [x])
        L1, S1 = outp(1)
        n1e = 0
        if TM_:
            for j in range(15):
                pos = NI_ - 5 * TM_ + (j // 3 + 1) * TM_ + (2 + j % 3 if keep < 5 * LD else o.get('o1lag', 3) + (j % 3) // 2)
                if pos < NI_: add(vec, pos, [L1[j]]); n1e = j + 1
        add(vec, NI_ - o.get('d1p', 8), i3)
        add(sc_, NI_ - 5, [f"s_or_b32 s{T0}, s{S_RB}, s{S_HEAD}"]); add(sc_, NI_ - 4, [f"s_cmp_lg_u32 s{T0}, 0"]); add(sc_, NI_ - 3, [f"s_cselect_b32 s{T0}, {WS_SIZE}, 0"])
        add(vec, NI_ - 2, [(f"buffer_store_dword v{V_NONCE}, v{V_FOWN}, {srd(SWS)}, s{T0} offen offset:{br*128}{'' if o.get('nplain', 0) else ' sc1'}", 'nn')])
        assert ci + 2 < E0 + o.get('d0p', 0) < E0 + 22 and E0 + 24 < NI_ - o.get('d1p', 8) and nd1 < NI_ - o.get('d1p', 8) and nd0 < E0 + o.get('d0p', 0)
        assert 3 < o.get('p0pos', 4) <= 9 and E0 + 29 < NI_ - 5 * TM_ + TM_ + 2 + 15
        def wb():
            m_ = o.get('wbm', 31)
            p.untracked([f"s_lshr_b32 s{T1}, s2, 3", f"s_and_b32 s{T1}, s{T1}, {m_}", f"s_or_b32 s{T1}, s{T1}, s{S_W}", f"s_cbranch_scc1 L_wb{self.sfx}", "buffer_wbl2 sc1", f"L_wb{self.sfx}:"])
        if fast and o.get('wb', 0) > 0: add(vec, NI_ - o['wb'], [wb])
        p.wait(lg=[('FF', 0)])
        clk = 0.0; per = o.get('lper', 4.6)
        for i, (P, t_, rts) in enumerate(items):
            for z, rt in enumerate(rts):
                a = acc(ACC_K, t_, rt)
                p(f"{MF} {vq(a)}, {dest[i]}, {ob(P, rt)}, {'0' if P == 0 else vq(a)}")
                if z == 0:
                    k0 = len(p.ins)
                    for tg in vw.get(i, []): self.flush_dma(tg)
                    assert i + 1 not in rq
                    p.wait(vm=vw.get(i), lg=[('FF', i + 1)] + lw.get(i, []))
                    if len(rts) == 1: self.put(sc_.get(i, []))
                    if canread(i):
                        if len(p.ins) == k0: p("s_nop 0")
                        fread()
                        if keep and len(rts) == 2 and canread(i): fread()
                else: self.put(sc_.get(i, []))
            self.stamp('z%d' % i)
            if i >= 10:
                clk += len(rts)
                if clk >= per and i not in vec and self.tick(): clk -= per
            self.put(vec.get(i, []))
        self.stamp()
        p(f"s_add_u32 s{S_OUT}, s{S_OUT}, {16*2560}")
        self.put(L1[n1e:12]); self.put(c3[:2]); self.put(L1[12:]); self.put(c3[2:])
        if fast and o.get('wb', 0) == -2: wb()
        for j in range(3): p.wait(lg=[('or', j)]); self.put([S1[j]])
        if fast and o.get('wb', 0) == -1: wb()
        if o.get('stamps'):
            p("s_waitcnt vmcnt(0)")
            self.stamp()
            p("s_memrealtime s[100:101]")
            p("s_waitcnt lgkmcnt(0)")
            p.raw(f"""
            s_lshl_b32 s{T0}, s2, 2
            s_add_u32 s{T0}, s{T0}, s{S_W}
            s_lshl_b32 s{T0}, s{T0}, 6
            s_add_u32 s{T0}, s{T0}, {WS_ST}
            v_mov_b32 v{TMP+16}, 0
            v_mov_b32 v{TMP}, s98
            v_mov_b32 v{TMP+1}, s100
            """)
            for k in range(14): p(f"v_mov_b32 v{TMP+2+k}, {'s%d' % (S_ST+k) if k < self.nst else ('s95' if k == 13 else 0)}")
            p("s_mov_b64 exec, 1")
            for k in range(4): p(f"buffer_store_dwordx4 {vq(TMP+4*k)}, v{TMP+16}, {srd(SWS)}, s{T0} offen offset:{16*k}")
        if o.get('cntm'):
            wbd = "" if not o.get('wbd') else f"""s_lshr_b32 s{T0}, s2, 3
            s_or_b32 s{T0}, s{T0}, s{S_W}
            s_cmp_lg_u32 s{T0}, 0
            s_cbranch_scc1 L_wb2{self.sfx}
            L_wb1{self.sfx}:
            s_sleep 2
            s_memrealtime s[64:65]
            s_waitcnt lgkmcnt(0)
            s_sub_u32 s{T1}, s64, s98
            s_cmp_lt_u32 s{T1}, 2500
            s_cbranch_scc1 L_wb1{self.sfx}
            buffer_wbl2 sc1
            s_waitcnt vmcnt(0)
            L_wb2{self.sfx}:"""
            p.raw(f"""
            s_load_dwordx2 s[62:63], s[0:1], 64
            v_mov_b32 v2, 0
            v_mov_b32 v3, s95
            s_waitcnt lgkmcnt(0)
            s_cmp_eq_u32 s95, 0
            s_cbranch_scc1 L_cn0{self.sfx}
            s_mov_b64 exec, 1
            global_atomic_add v2, v3, s[62:63] sc1
            L_cn0{self.sfx}:
            {wbd}
            s_or_b32 s{T0}, s{S_RB}, s{S_HEAD}
            s_cmp_lg_u32 s{T0}, 0
            s_cbranch_scc1 L_cn2{self.sfx}
            s_movk_i32 s{T0}, 3500
            s_mov_b32 s{T2}, 0
            L_cn1{self.sfx}:
            s_sleep 2
            s_memrealtime s[64:65]
            s_waitcnt lgkmcnt(0)
            s_sub_u32 s{T1}, s64, s98
            s_cmp_lt_u32 s{T1}, s{T0}
            s_cbranch_scc1 L_cn1{self.sfx}
            s_cmp_eq_u32 s{T2}, 1
            s_cbranch_scc1 L_cn2{self.sfx}
            global_load_dword v3, v2, s[62:63] sc1
            s_waitcnt vmcnt(0)
            v_readfirstlane_b32 s{T0}, v3
            s_min_u32 s{T0}, s{T0}, 1024
            s_mul_i32 s{T0}, s{T0}, 20
            s_add_u32 s{T0}, s{T0}, 4000
            s_mov_b32 s{T2}, 1
            s_branch L_cn1{self.sfx}
            L_cn2{self.sfx}:
            """)
        if o.get('amp'):
            p("s_waitcnt vmcnt(0)")
            self.stamp()
            if o['amp'][0] < 0: p("s_mov_b32 s100, s98")
            p.raw(f"""
            s_and_b32 s{T0}, s2, 7
            s_lshr_b32 s{T0}, {o['amp'][2]}, s{T0}
            s_bitcmp1_b32 s{T0}, 0
            s_cbranch_scc0 L_ampx{self.sfx}
            s_load_dwordx2 s[62:63], s[0:1], 64
            v_mov_b32 v2, 0
            s_waitcnt lgkmcnt(0)
            global_load_dword v3, v2, s[62:63] sc1
            s_waitcnt vmcnt(0)
            v_readfirstlane_b32 s{T2}, v3
            s_not_b32 s{T2}, s{T2}
            s_sub_u32 s{T0}, s100, s{T2}
            s_add_u32 s{T0}, s{T0}, 300
            s_mul_i32 s{T0}, s{T0}, {o['amp'][1]}
            s_min_u32 s{T0}, s{T0}, 100000
            L_amp{self.sfx}:
            s_sleep 2
            s_memrealtime s[64:65]
            s_waitcnt lgkmcnt(0)
            s_sub_u32 s{T1}, s64, s{T2}
            s_cmp_lt_u32 s{T1}, s{T0}
            s_cbranch_scc1 L_amp{self.sfx}
            L_ampx{self.sfx}:
            """)
        p("s_endpgm")
        assert not self.dq

def sizes(lines):
    import subprocess, re
    src = '.amdgcn_target "amdgcn-amd-amdhsa--gfx950"\n.text\n' + "\n".join(lines) + "\n"
    r = subprocess.run(["llvm-mc", "-triple=amdgcn-amd-amdhsa", "-mcpu=gfx950", "-show-encoding"], input=src, capture_output=True, text=True)
    assert r.returncode == 0, r.stderr[:2000]
    return [len(m.split(',')) for m in re.findall(r'encoding: \[([^\]]*)\]', r.stdout)]
def add_hops(text, sfx, align=True):
    lines = text.split("\n")
    i0 = lines.index(f"L_main{sfx}:"); i1 = next(i for i in range(i0, len(lines)) if lines[i].strip() == "s_endpgm")
    body = lines[i0 + 1:i1]
    isi = lambda l: l.startswith("    ")
    szl = sizes([l for l in body if isi(l)])
    insl = [l.strip() for l in body if isi(l)]
    big = [z == 8 and t.startswith("v_") and not t.startswith("v_mfma") for z, t in zip(szl, insl)]
    run = [0] * (len(big) + 1)
    for k in range(len(big) - 1, -1, -1): run[k] = run[k + 1] + 1 if big[k] else 0
    sz = iter(szl); k = -1; nfix = 0
    out = []; addr = 0; page = 0; prev = "v_mfma"
    for l in body:
        if isi(l):
            k += 1
            if align and run[k] >= 3 and addr % 8 == 4:
                pv = out[-1] if isinstance(out[-1], str) else ""
                op = pv.split()[0] if pv.strip() else ""
                if isi(pv) and szl[k - 1] == 4 and op.startswith("v_") and not op.startswith(("v_cmp", "v_swap", "v_permlane", "v_readfirst")):
                    out[-1] = pv.replace(op, op + "_e64", 1); addr += 4; nfix += 1
                elif run[k] >= 6: out.append("    s_nop 0"); addr += 4; nfix += 1
            off = addr - page * 4096
            if off >= 0 and (prev.startswith("v_mfma") or off >= 40) and not prev.startswith("s_mov_b64 exec") :
                out.append(("hop", page)); addr += 4; page += 1
            addr += next(sz); prev = l.strip()
        out.append(l)
    assert page >= 4
    res = []
    for x in out:
        if isinstance(x, tuple):
            k = x[1]
            res += [f"L_hop{k}{sfx}:", f"    s_cbranch_execz " + (f"L_hop{k+4}{sfx}" if k + 4 < page else f"L_hopret{sfx}")]
        else: res.append(x)
    print(sfx, "main bytes", addr, "align fixes", nfix, file=sys.stderr)
    return "\n".join(lines[:i0 + 1] + res + lines[i1:])

def build(opt):
    ref = open(f"cdna_kernels/{NAME}.s.ref").read().split("\n")
    head = [l for l in ref if l.startswith(";") and "@launch" not in l]
    s = "\n".join(head) + "\n; @launch grid=(256,1,1) block=(256,1,1) lds=163840\n"
    s += f""".amdgcn_target "amdgcn-amd-amdhsa--gfx950"
.text
.globl {NAME}_kernel
.p2align 12
.p2align 8
.type {NAME}_kernel,@function
{NAME}_kernel:
    ;  kv / z       : per-workgroup partials, reduce-scatter + all-gather through d_ws; every word carries a launch tag
    s_cmp_ge_u32 s2, 256
    s_cbranch_scc1 L_exit
"""
    ga = Gen(True, opt); ta = ga.body(); gb = Gen(False, opt); tb = gb.body()
    ca, ra = ta.split(".split\n"); cb, rb = tb.split(".split\n")
    assert ca == cb
    if opt.get('hops', 1): ra = add_hops(ra, 'A', opt.get('align', 1)); rb = add_hops(rb, 'B', opt.get('align', 1))
    s += ca + ra + "L_exit:\n    s_endpgm\n.p2align 12\n" + rb
    s += ".fill 2048, 4, 0xbf810000\n"
    s += f""".section .rodata,"a"
.p2align 6
.amdhsa_kernel {NAME}_kernel
  .amdhsa_next_free_vgpr 512
  .amdhsa_next_free_sgpr 102
  .amdhsa_accum_offset 256
  .amdhsa_group_segment_fixed_size 0
  .amdhsa_kernarg_size 80
  .amdhsa_user_sgpr_count 2
  .amdhsa_user_sgpr_kernarg_segment_ptr 1
  .amdhsa_system_sgpr_workgroup_id_x 1
.end_amdhsa_kernel
"""
    print("nops", ga.p.nops, gb.p.nops, "instrs", len(ga.p.ins), len(gb.p.ins), "autow", getattr(ga.p, 'autow', 0), file=sys.stderr)
    return s

if __name__ == "__main__":
    import json
    opt = json.loads(sys.argv[2]) if len(sys.argv) > 2 else {}
    open(sys.argv[1], "w").write(build(opt))
```

```python
import sys
from collections import deque
from emit import Prog
NAME = "concat_heads__linear_kernel_hedgehog__linear_attn_block__prompt"

S_RB, S_HG, S_W = 4, 5, 7
SX, SW, SWO, SWS, SOUT, SPHI = 8, 12, 16, 20, 24, 28
S_NONCE = 32
S_WROW = 33
S_XBASE, S_XU = 38, 39
S_LW, S_LR = 40, 41
T0, T1, T2, T3 = 42, 43, 44, 45
S_WOROW = 46
S_HEAD = 51
S_SPIN = 52
S_FAST = 53
S_L2E, S_NL2E = 54, 55
S_OB = 56
S_WS, S_XS = 57, 58
S_FLAG = 59
S_OP = 60
S_P1ST, S_P1LD, S_P2ST, S_P2LD, S_OWN, S_OUT, S_XCCV, S_PERM = 68, 69, 70, 71, 72, 73, 74, 75
S_KA = 76
S_ST = 76
import os
if os.environ.get('PRO'): S_ST = 88
def srd(b): return f"s[{b}:{b+3}]"
V_LANE = 1
V_WO = 2; V_OF = 7; V_OL = 12; V_XO = 17; V_XR = 21; V_WT = 23; V_LIN = 25
V_PW, V_VW, V_KB, V_KA0, V_KA1, V_FR = 26, 27, 28, 29, 30, 31
ACC_K, ACC_V = 32, 72
TMP = 112
PV = 228
V_P1ST, V_P1LD, V_P2ST, V_GAL, V_LA, V_FR2, V_KEEP, V_ONE, V_OW, V_ORD, V_OG, V_F8, V_DUMP, V_ZA = PV, PV+1, PV+2, PV+3, PV+4, PV+8, PV+9, PV+10, PV+11, PV+12, PV+17, PV+22, PV+23, PV+24
V_L128, V_NONCE, V_FOWN = PV + 25, PV + 26, PV + 27
RING = 0; SLOT = 20480; RBASE = 102400; RW = 15360
OUTL = RBASE + 50688; OUTW = 2592; XSLOT = RBASE + 9728; V_LINX = 226
WS_FLAG, WS_XCC, WS_P2, WS_P1, WS_O, WS_ST = 4096, 32768, 5 << 20, 1 << 20, 8 << 20, 16 << 20
WS_SIZE = 32 << 20
D = 6
A_RING = 220
A_PHI = 160
A_PARK = 244
V_OO = 7; V_LINH = 12; V_PF = 13; V_P1M = 14
WS_PF = 49152; WS_PK = 6 << 20
S_USRC, S_UDST, S_UFL, S_UTAG, S_PFL, S_XA = 3, 6, 72, 90, 91, 93
S_TB = SX
S_NHI = 38
SO = SPHI
SPIN_MAX = 100000
EPS = "0x358637bd"

def vq(b, n=4): return f"v[{b}:{b+n-1}]"
def aq(b, n=4): return f"a[{b}:{b+n-1}]"
def acc(base, t, rt): return base + (rt * 5 + t) * 4
MF = "v_mfma_f32_16x16x32_bf16"

DEF = {'A': dict(h1pipe=1, xpos=(117, 190, 222), qpace=4, pfpos=101, pfchk=28, prokeep=4, proev=60, rslot=1, h1=(46, 70), h1len=8, h2lead=160, prelead=125, kpace=4, hx=26, d0=11, vsync=1, qev=20, nohb=1), 'B': dict(h1pipe=1, xpos=(117, 190, 222), uissue=2, upos=(44, 90, 140), tm=(0, 4, 0), qpace2=2, ustep=4, qb=(20, 53, 66, 80), d0=11, pfpos=101, pfchk=28, h1=(46, 72), h1len=5, h2lead=80, prem=(283, -70, -30), vpace=3, qev=24, vsync=1)}
class Gen:
    def __init__(self, isA, opt):
        self.A = isA
        sf = 'A' if isA else 'B'
        opt = dict(DEF[sf], **opt)
        opt.update({k[:-1]: v for k, v in opt.items() if k.endswith(sf)})
        self.o = opt
        self.p = Prog(); self.sfx = 'A' if isA else 'B'
        self.F = 40 if isA else 20
        self.nst = 0
        self.dq = deque()
        self.pos = 0
        self.ool = []
    def stamp(self, name=None):
        p = self.p
        if name is None and self.o.get('idle'):
            self.ic = getattr(self, 'ic', -1) + 1
            if self.ic == self.o['idle'][0]: p(f"s_sleep {self.o['idle'][1]}")
        fine = self.o.get('fine')
        if fine:
            if name is None: self.cs = getattr(self, 'cs', 0) + 1; name = 's%d' % (self.cs - 1)
            if name not in fine: return
        elif name is not None: return
        if self.o.get('amp'):
            if self.nst == self.o['amp'][0]:
                p("s_memrealtime s[100:101]"); p("s_waitcnt lgkmcnt(0)")
            self.nst += 1
            return
        if not self.o.get('stamps'): return
        p(f"s_memrealtime s[100:101]" if self.o.get('rt') else f"s_memtime s[100:101]")
        p("s_waitcnt lgkmcnt(0)")
        p(f"s_sub_u32 s{S_ST+self.nst}, s100, {'s98' if self.o.get('rt') else 's96'}")
        self.nst += 1
    def put(self, L):
        for x in L:
            if isinstance(x, tuple): self.p(x[0], x[1])
            elif isinstance(x, list): self.put(x)
            elif callable(x): x()
            else: self.p(x)
    def dma_w(self, G):
        g = G % 5
        lb = XSLOT + (G - 18) * SLOT if G >= 18 and self.o.get('rslot') else RING + g * SLOT
        pre = [f"s_add_u32 m0, s{S_LW}, {lb}"]
        if G < 15:
            col = {0: 1280, 1: 2560, 2: 0}[G // 5]
            gr = 4 - g if G // 5 in self.o.get('rev', [1, 2]) else g
            pre.append(f"s_add_u32 s{S_WS}, s{S_WROW+gr}, {col}"); so = f"s{S_WS}"; sd = SW; vo = V_WO
        else:
            items = []
            for j in range(5):
                off = f"offset:{j*1024} " if 0 < j < 4 else ""
                L = (pre if j == 0 else []) + [(f"buffer_load_dwordx4 v{V_LIN}, {srd(SWS)}, s{S_WOROW+g} offen {off}sc1 lds", ('W', G))]
                if j == 3: L += [f"s_add_u32 m0, s{S_LW}, {lb + 4096}", f"s_add_u32 s{S_WOROW+g}, s{S_WOROW+g}, 4096"]
                items.append(L)
            return items
        items = []
        if G // 5 in self.o.get('fake', []):
            base = (G % 5) * 4 * 5120 + (G // 5 if G < 15 else 0) * 819200
            if self.o.get('fakerot'):
                pre = [pre[0], f"s_mul_hi_u32 s{S_WS}, s{S_WROW+gr}, 34953", f"s_mul_i32 s{S_WS}, s{S_WS}, 5120", f"s_add_u32 s{S_WS}, s{S_WS}, s94", f"s_sub_u32 s{S_WS}, s{S_WS}, s{S_LW}",
                       f"s_add_u32 s{S_WS}, s{S_WS}, {(G // 5) * 819200}"]
            else: pre = [pre[0], f"s_add_u32 s{S_WS}, s94, {base}"]
            for j in range(5):
                off = f"offset:{j*1024} " if 0 < j < 4 else ""
                L = (pre if j == 0 else []) + [(f"buffer_load_dwordx4 v{V_LIN}, {srd(sd)}, s{S_WS} offen {off}lds", ('W', G))]
                if j == 3: L += [f"s_add_u32 m0, s{S_LW}, {RING + g*SLOT + 4096}", f"s_add_u32 s{S_WS}, s{S_WS}, 4096"]
                items.append(L)
            return items
        for j in range(5):
            off = f"offset:{j*1024} " if 0 < j < 4 else ""
            L = (pre if j == 0 else []) + [(f"buffer_load_dwordx4 v{vo+j}, {srd(sd)}, {so} offen {off}lds", ('W', G))]
            if j == 3: L.append(f"s_add_u32 m0, s{S_LW}, {RING + g*SLOT + 4096}")
            items.append(L)
        return items
    def dma_x(self, pu):
        items = []
        for j in range(4):
            off = f"offset:{j*1024} " if j else ""
            L = []
            if j == 0: L += [f"s_add_u32 m0, s{S_LR}, {(pu % 3) * 4096}", f"s_add_u32 s{S_XS}, s{S_XU}, s{S_XBASE}"]
            L.append((f"buffer_load_dwordx4 v{V_XO+j}, {srd(SX)}, s{S_XS} offen {off}lds", ('X', pu)))
            if j == 0: L += [f"s_add_u32 s{S_XU}, s{S_XU}, 128"]
            if j == 1: L += [f"s_cmp_eq_u32 s{S_XU}, 1280", f"s_cselect_b32 s{S_XU}, 0, s{S_XU}"]
            items.append(L)
        return items
    def q(self, earliest, items):
        for it in items: self.dq.append((earliest, it))
    def release(self, k):
        self.dq = deque((0 if e == 10**6 + k else e, it) for e, it in self.dq)
    def tick(self):
        if self.dq and not getattr(self, 'pfok', False) and any(isinstance(x, tuple) and x[1] == ('W', 15) for x in self.dq[0][1]): return False
        if self.dq and self.dq[0][0] <= self.pos:
            self.put(self.dq.popleft()[1]); return True
        return False
    def flush_dma(self, tag):
        def has():
            return any(isinstance(x, tuple) and x[1] == tag for _, it in self.dq for x in it)
        while has():
            assert self.dq[0][0] <= self.pos, (tag, self.pos, self.dq[0])
            self.put(self.dq.popleft()[1])
    def run(self, L, every=30):
        c = 0
        for cost, x in L:
            self.put([x]); c += cost
            if c >= every: c = 0; self.tick()
    def D(self, ps): return self.o.get('dd', (6, 6, 6))[ps]
    def kt(self, N):
        ps, n = divmod(N, 100); tm = self.o.get('tm', (0, 0, 0))[ps]
        if n >= 100 - 5 * tm:
            t, j = divmod(n - (100 - 5 * tm), tm); return 20 - tm + j, t
        return divmod(n, 5)
    def wread(self, N, hf):
        G = N // 20; ks, t = self.kt(N); ks %= 4
        off = RING + (G % 5) * SLOT + ks * 5120 + hf * 2560 + 8 * t
        hi = off >= 51200
        s = A_RING + (N % self.D(N // 100)) * 4 + 2 * hf
        if G // 5 in self.o.get('fake', []):
            if hf == 0:
                off = RING + (G % 5) * SLOT + ks * 5120 + 1024 * t
                hi = off >= 51200
                self.p(f"ds_read_b128 a[{s}:{s+3}], v{226 + hi} offset:{off - 51200*hi}", ('F', N))
            return
        self.p(f"ds_read_b64_tr_b16 a[{s}:{s+1}], v{V_WT + hi} offset:{off - 51200*hi}", ('F', N))
    def group_sync(self, G):
        self.flush_dma(('W', G))
        self.p.wait(vm=[('W', G)])
        self.p("s_barrier")
    def xread(self, pu, k):
        ksub, rt = divmod(k, 2)
        if k == 0:
            self.flush_dma(('X', pu)); self.p.wait(vm=[('X', pu)])
        a = ((2 * pu + ksub) * 2 + rt) * 4
        self.p(f"ds_read_b128 {aq(a)}, v{V_XR+ksub} offset:{(pu % 3)*4096 + rt*2048}", ('XR', pu))
    def prime(self, ps, sync=True):
        if sync: self.group_sync(ps * 5)
        for n in range(self.D(ps) - 1):
            self.wread(ps * 100 + n, 0); self.wread(ps * 100 + n, 1)
    def gemm_pass(self, ps, accb, bop, fill=None, hooks=None, last=False, pace=None, sync=True, frange=(0, 100), hooks0=None, late=None):
        p = self.p
        fill = deque(fill or []); hooks = hooks or {}; hooks0 = hooks0 or {}
        N0 = ps * 100; D = self.D(ps)
        p.wait(lg=[('F', N0), ('XR', 0)])
        pace = pace or (lambda n: 0)
        for n in range(100):
            self.pos = N0 + n
            ks, t = self.kt(N0 + n)
            s = A_RING + ((N0 + n) % D) * 4
            M = n + D - 1
            look = M < 100 or not last
            a = acc(accb, t, 0)
            p(f"{MF} {vq(a)}, {aq(s)}, {bop(ks, 0)}, {'0' if ks == 0 else vq(a)}")
            k0 = len(p.ins)
            if n < 99:
                tg = [('F', N0 + n + 1)]
                if ps == 0 and (n + 1) % 10 == 0: tg.append(('XR', (n + 1) // 10))
                p.wait(lg=tg)
            if n in hooks0: self.put(hooks0[n])
            pk_ = ps in self.o.get('fake', [])
            if pk_:
                if n % 2 == 0 and n + 4 < 100:
                    if (n + 4) % 20 == 0 and sync: self.group_sync((N0 + n + 4) // 20)
                    if len(p.ins) == k0: p("s_nop 0")
                    if n: self.wread(N0 + n + 4, 0)
                    self.wread(N0 + n + 5, 0)
                elif fill and n >= frange[0]: self.gap(fill, 2)
            elif look:
                if M % 20 == 0 and sync: self.group_sync((N0 + M) // 20)
                if len(p.ins) == k0: p("s_nop 0")
                self.wread(N0 + M, 0); self.wread(N0 + M, 1)
            elif fill and n >= frange[0]: self.gap(fill, 2)
            elif late: self.gapl(late, n - 0.5)
            a = acc(accb, t, 1)
            p(f"{MF} {vq(a)}, {aq(s)}, {bop(ks, 1)}, {'0' if ks == 0 else vq(a)}")
            self.pos = N0 + n + 1
            self.stamp('n%d' % (N0 + n))
            did = 0
            for _ in range(pace(n)): did += self.tick()
            if n in hooks: self.put(hooks[n])
            if fill and n >= frange[0]:
                left = sum(c for c, _ in fill)
                gaps = sum(1 for k in range(n, frange[1]) if not pace(k)) + (min(D - 1, 99 - n) if last and frange[1] == 100 else 0)
                if pk_: gaps = sum(1 for k in range(n, frange[1]) if not pace(k)) + (frange[1] - n) // 2
                bud = 0 if did else 2
                if left > 2 * gaps: bud += 2
                if ps == 2 and left > 4 * gaps: bud = -(-left // max(gaps, 1))
                self.gap(fill, bud)
            elif late and not did and n not in hooks: self.gapl(late, n)
        while fill: self.put([fill.popleft()[1]])
        self.pos = N0 + 100
    def gapl(self, late, n):
        q = deque()
        for r, c, x in late:
            if r > n: break
            q.append((c, x))
        k = len(q); self.gap(q, 2)
        for _ in range(k - len(q)): late.popleft()
    def gap(self, fill, bud):
        first = True
        while fill:
            c, x = fill[0]
            solo = isinstance(x, tuple)
            if c > bud or (solo and not first): break
            fill.popleft(); self.put([x]); bud -= c
            if solo: break
            if c: first = False
    def cvt20(self, src, dst):
        return [(1, f"v_cvt_pk_bf16_f32 v{dst+i}, v{src+2*i}, v{src+2*i+1}") for i in range(10)]
    def phiA_parts(self, x, e, m, name, isq):
        P = {}
        kb = e + 28
        P['cvt'] = self.cvt20(x, kb)
        P['zero'] = [(1, f"v_mov_b32 v{kb+10}, 0"), (1, f"v_mov_b32 v{kb+11}, 0")]
        P['mf'] = [(2, f"{MF} {vq(x+4*t)}, {aq(A_PHI + (t*3+u)*4)}, {vq(kb+4*u)}, {'0' if u == 0 else vq(x+4*t)}") for t in range(5) for u in range(3)]
        P['exp'] = [(2, f"v_exp_f32 v{e+i}, v{x+i}") for i in range(20)] + [(2, f"v_exp_f32 v{e+20+i}, -v{x+i}") for i in range(20)]
        def sums():
            L = [f"v_pk_add_f32 v[{m+2*h}:{m+2*h+1}], v[{e+20*h}:{e+20*h+1}], v[{e+20*h+2}:{e+20*h+3}]" for h in range(2)]
            L += [f"v_pk_add_f32 v[{m+2*h}:{m+2*h+1}], v[{m+2*h}:{m+2*h+1}], v[{e+20*h+2*i}:{e+20*h+2*i+1}]" for i in range(2, 10) for h in range(2)]
            L += [f"v_add_f32 v{m+2*h}, v{m+2*h}, v{m+2*h+1}" for h in range(2)]
            return L
        nm = name + self.sfx
        L = sums() + [f"v_max_f32 v{m+1}, v{m}, v{m+2}", f"v_cmp_ngt_f32 vcc, 0x53800000, v{m+1}"]
        if not isq: L.append(f"v_rcp_f32 v{m+4}, v{m}")
        L += [f"v_rcp_f32 v{m+2}, v{m+2}", [f"s_cbranch_vccnz {nm}_slow", f"{nm}_back:"]]
        o = Prog()
        o(f"{nm}_slow:")
        o(f"v_max3_f32 v{m}, v{x}, v{x+1}, v{x+2}"); o(f"v_min3_f32 v{m+1}, v{x}, v{x+1}, v{x+2}")
        for i in range(3, 19, 2):
            o(f"v_max3_f32 v{m}, v{m}, v{x+i}, v{x+i+1}"); o(f"v_min3_f32 v{m+1}, v{m+1}, v{x+i}, v{x+i+1}")
        o(f"v_max_f32 v{m}, v{m}, v{x+19}"); o(f"v_min_f32 v{m+1}, v{m+1}, v{x+19}")
        for i in range(20): o(f"v_sub_f32 v{e+i}, v{x+i}, v{m}"); o(f"v_sub_f32 v{e+20+i}, v{m+1}, v{x+i}")
        for i in range(40): o(f"v_exp_f32 v{e+i}, v{e+i}")
        for y in sums(): o(y)
        if not isq: o(f"v_rcp_f32 v{m+4}, v{m}")
        o(f"v_rcp_f32 v{m+2}, v{m+2}"); o("s_nop 1"); o(f"s_branch {nm}_back")
        self.ool.append(o.finalize())
        if isq: L.append(f"v_mul_f32 v{m+2}, v{m+2}, v{m}")
        else: L += [f"v_pk_mul_f32 v[{e+2*i}:{e+2*i+1}], v[{e+2*i}:{e+2*i+1}], v[{m+4}:{m+5}] op_sel_hi:[1,0]" for i in range(10)]
        L += [f"v_pk_mul_f32 v[{e+20+2*i}:{e+21+2*i}], v[{e+20+2*i}:{e+21+2*i}], v[{m+2}:{m+3}] op_sel_hi:[1,0]" for i in range(10)]
        if self.o.get('whatif') == ('q' if isq else 'k'): L = [y for y in L if not (isinstance(y, str) and y.startswith('v_pk_add') and y.split()[1] == y.split()[2])]
        if self.o.get('whatif') == ('Q' if isq else 'K'): L = [y for y in L if not (isinstance(y, str) and y.startswith('v_pk_') and y.split()[1] == y.split()[2])]
        P['norm'] = [(1, y) for y in L]
        P['out'] = [(1, f"v_cvt_pk_bf16_f32 v{x+i}, v{e+2*i}, v{e+2*i+1}") for i in range(20)]
        return P
    def weave(self, mf, va, per=2):
        va = deque(va); L = []
        for x in mf:
            L.append(x); b = per
            while va and va[0][0] <= b: b -= va[0][0]; L.append(va.popleft())
        return L + list(va)
    def phiB(self, x, e, packed):
        L = []
        if packed: L += [(1, f"v_pk_mul_f32 v[{e+2*i}:{e+2*i+1}], v[{x+2*i}:{x+2*i+1}], s[{S_L2E}:{S_NL2E}] op_sel_hi:[1,0]") for i in range(10)]
        else: L += [(1, f"v_mul_f32 v{e+i}, s{S_L2E}, v{x+i}") for i in range(20)]
        L += [(2, f"v_exp_f32 v{e+i}, v{e+i} clamp") for i in range(20)]
        L += [(1, f"v_max_f32 v{x+i}, {EPS}, v{x+i}") for i in range(20)]
        if packed: L += [(1, f"v_pk_add_f32 v[{e+2*i}:{e+2*i+1}], v[{e+2*i}:{e+2*i+1}], v[{x+2*i}:{x+2*i+1}]") for i in range(10)]
        else: L += [(1, f"v_add_f32 v{e+i}, v{e+i}, v{x+i}") for i in range(20)]
        L += self.cvt20(e, x)
        return L
    def checked(self, name, loads, check, tag, redo=()):
        nm = name + self.sfx
        iss = [(x, tag) if x.startswith('buffer') else x for x in loads]
        chk = [(0, lambda: self.p.wait(vm=[tag]))] + [(1, x) for x in check] + [(1, [f"s_cbranch_vccnz {nm}_retry", f"{nm}_ok:"])]
        o = Prog()
        o(f"{nm}_retry:"); o(f"s_mov_b32 s{S_SPIN}, 0")
        if self.o.get('cnt') == name: o("s_mov_b32 s95, 1")
        o(f"{nm}_loop:")
        if self.o.get('stamps'): o(f"s_add_u32 s95, s95, {dict(L_xc=1000000, L_h1=10000, L_h2=1000, L_pf=10000000, L_f0=1, L_f1=100, L_d0=0, L_d1=100000)[name]}")
        bk = self.o.get('backoff', {}).get(name, 0)
        if bk: o(f"s_sleep {bk}")
        for x in loads: o(x)
        o("s_waitcnt vmcnt(0)")
        for x in check: o(x)
        o(f"s_cbranch_vccz {nm}_{'redo' if redo else 'ok'}")
        o(f"s_add_u32 s{S_SPIN}, s{S_SPIN}, 1"); o(f"s_cmp_lt_u32 s{S_SPIN}, {SPIN_MAX}"); o(f"s_cbranch_scc1 {nm}_loop")
        if redo:
            o(f"{nm}_redo:")
            for x in redo: o(x)
        o(f"s_branch {nm}_ok")
        self.ool.append(o.finalize())
        return iss, chk
    def body(self):
        p = self.p; A = self.A; F = self.F; br = 0 if A else 1; o = self.o
        t = TMP
        K = S_KA
        kx, kw, kout, kws = K, K + 2, K + 8, K + 10
        kphi, kwo = (K + 4, K + 6) if A else (None, K + 4)
        p.raw(f"""
        s_andn2_b32 s{T0}, 1, s2
        s_lshl_b32 s{T0}, s{T0}, 5
        s_load_dwordx8 s[{K}:{K+7}], s[0:1], s{T0}
        s_load_dwordx2 s[{kout}:{kout+1}], s[0:1], 56
        s_load_dwordx2 s[{kws}:{kws+1}], s[0:1], 72
        """)
        if o.get('stamps'): p("s_memtime s[96:97]"); p("s_mov_b32 s95, 0")
        if o.get('stamps') or o.get('amp') or o.get('cntm'): p("s_memrealtime s[98:99]")
        if o.get('cntm'): p("s_mov_b32 s95, 0")
        p.raw(f"""
        s_getpc_b64 s[60:61]
        L_pc:
        s_bfe_u32 s{S_HG}, s2, 0x30003
        v_and_b32 v{V_LANE}, 63, v0
        v_lshrrev_b32 v{t}, 6, v0
        s_bitcmp0_b32 s2, 0
        s_cselect_b32 s{T1}, L_setupB-L_setupA, 0
        s_lshl_b32 s{T0}, s{S_HG}, 12
        v_lshlrev_b32 v{V_L128}, 7, v{V_LANE}
        v_readfirstlane_b32 s{S_W}, v{t}
        s_add_u32 s{T0}, s{T0}, s{T1}
        s_add_u32 s{T0}, s{T0}, L_setupA-L_pc
        s_add_u32 s60, s60, s{T0}
        s_addc_u32 s61, s61, 0
        v_lshl_add_u32 v{t+1}, v{t}, 10, v{V_L128}
        s_mov_b64 exec, 0xff
        """)
        p(f"global_load_dword v{V_DUMP}, v{t+1}, s[60:61]", 'cpf')
        p("s_mov_b64 exec, -1")
        ra, rbm, rdiv = o.get('rot', (10, 10, 4))
        p.raw(f"""
        s_and_b32 s{S_RB}, s2, 6
        s_lshl_b32 s{S_RB}, s{S_RB}, 1
        s_lshr_b32 s{T0}, s2, 6
        s_add_u32 s{S_RB}, s{S_RB}, s{T0}
        s_mul_i32 s{T0}, s{S_HG}, {ra}
        s_mul_i32 s{T1}, s{S_RB}, {rbm}
        s_add_u32 s{T0}, s{T0}, s{T1}
        s_lshr_b32 s{T0}, s{T0}, {rdiv.bit_length()-1}
        s_mul_i32 s{T1}, s{T0}, 6554
        s_lshr_b32 s{T1}, s{T1}, 16
        s_mul_i32 s{T1}, s{T1}, 10
        s_sub_u32 s{T3}, s{T0}, s{T1}
        s_lshl_b32 s{S_XU}, s{T3}, 7
        s_lshl_b32 s{T0}, s{S_RB}, 2
        s_add_u32 s{T0}, s{T0}, s{S_W}
        s_mul_i32 s{S_XBASE}, s{T0}, 40960
        s_mul_i32 s{S_LW}, s{S_W}, 5120
        s_mul_i32 s{S_LR}, s{S_W}, {RW}
        s_add_u32 s{S_LR}, s{S_LR}, {RBASE}
        v_lshrrev_b32 v{t}, 3, v{V_LANE}
        v_mul_u32_u24 v{t}, 1280, v{t}
        v_lshrrev_b32 v{t+1}, 4, v{V_LANE}
        v_xor_b32 v{t+1}, v{t+1}, v{V_LANE}
        v_and_b32 v{t+1}, 7, v{t+1}
        v_lshl_add_u32 v{V_XO}, v{t+1}, 4, v{t}
        v_xor_b32 v{t+2}, 64, v{V_XO}
        v_add_u32 v{V_XO+1}, {9216}, v{t+2}
        v_add_u32 v{V_XO+2}, {2*9216}, v{V_XO}
        v_add_u32 v{V_XO+3}, {3*9216}, v{t+2}
        s_lshr_b32 s{T0}, s{S_W}, 1
        s_add_u32 s{T0}, s{T0}, s{T3}
        s_and_b32 s{T1}, s{S_W}, 1
        s_mul_i32 s{T1}, s{T1}, {32*3840}
        s_mul_i32 s{T2}, s{S_HG}, 160
        s_add_u32 s{T1}, s{T1}, s{T2}
        s_mov_b32 s{SX+2}, 2621440
        s_mov_b32 s{SX+3}, 0x20000
        s_mov_b32 s{SW+2}, 2457600
        s_mov_b32 s{SW+3}, 0x20000
        """)
        def wrow(g):
            p.raw(f"""
            s_cmp_ge_u32 s{T0}, 10
            s_cselect_b32 s{T2}, 10, 0
            s_sub_u32 s{T0}, s{T0}, s{T2}
            s_mul_i32 s{T2}, s{T0}, {64*3840}
            s_add_u32 s{S_WROW+g}, s{T2}, s{T1}
            s_add_u32 s{T0}, s{T0}, 2
            """)
        wrow(0)
        RH = TMP + 10
        def woff(j):
            b = RH + 5 * j
            p.raw(f"""
            v_add_u32 v{t}, {64*j}, v{V_LANE}
            v_mul_u32_u24 v{b+4}, 6554, v{t}
            v_lshrrev_b32 v{b+4}, 16, v{b+4}
            v_mul_u32_u24 v{t+2}, 10, v{b+4}
            v_sub_u32 v{b+3}, v{t}, v{t+2}
            v_bfe_u32 v{b}, v{b+4}, 2, 2
            v_lshrrev_b32 v{b+1}, 4, v{b+4}
            v_and_b32 v{b+2}, 3, v{b+4}
            v_lshl_add_u32 v{t}, v{b}, 1, v{b+1}
            v_lshl_add_u32 v{t}, v{t}, 2, v{b+2}
            v_mul_u32_u24 v{t}, 3840, v{t}
            v_lshl_add_u32 v{V_WO+j}, v{b+3}, 4, v{t}
            """)
            if 0 < j < 4: p(f"v_subrev_u32 v{V_WO+j}, {1024*j}, v{V_WO+j}")
        if o.get('fakeinit'):
            p.raw(f"""
            s_mul_i32 s94, s{S_HG}, 102400
            s_add_u32 s94, s94, s{S_LW}
            v_lshlrev_b32 v{V_LIN}, 4, v{V_LANE}
            v_mov_b32 v226, v{V_LIN}
            v_add_u32 v227, 51200, v{V_LIN}
            """)
        woff(0); woff(1)
        if o.get('pre0'): p("s_memtime s[92:93]")
        p.raw(f"""
        s_waitcnt lgkmcnt(0)
        s_mov_b32 s{SX}, s{kx}
        s_mov_b32 s{SX+1}, s{kx+1}
        s_mov_b32 s{SW}, s{kw}
        s_mov_b32 s{SW+1}, s{kw+1}
        """)
        if o.get('late0'): p.raw(f"s_and_b32 s60, s2, 7\ns_cmp_lg_u32 s60, 0\ns_cbranch_scc1 L_nd0\ns_sleep {o['late0']}\nL_nd0:")
        if o.get('bdelay'): p.raw(f"s_bitcmp1_b32 s2, 0\ns_cbranch_scc1 L_nd\ns_sleep {o['bdelay']}\nL_nd:")
        self.stamp('p0')
        if o.get('pre0'): p(f"s_sub_u32 s{S_ST+self.nst}, s92, s96"); self.nst += 1
        self.put(self.dma_x(0))
        w0 = self.dma_w(0)
        self.put(w0[0:2]); woff(2); self.put(w0[2]); woff(3); self.put(w0[3]); woff(4); self.put(w0[4])
        self.stamp('p1')
        if o.get('prowait'):
            p.wait(vm=['cpf']); self.stamp('p2')
            p.wait(vm=[('X', 0)]); self.stamp('p3')
            p.wait(vm=[('W', 0)]); self.stamp('p4')
        p("s_bitcmp0_b32 s2, 0"); p("s_cbranch_scc1 L_setupB")
        p(".split")
        p(f"L_setup{self.sfx}:")
        p(f"s_load_dword s{S_NONCE}, s[{kws}:{kws+1}], {br*128}")
        if not A:
            p(f"s_load_dword s{S_UTAG}, s[{kws}:{kws+1}], 0")
            p(f"s_load_dwordx2 s[{K+6}:{K+7}], s[0:1], 24")
        for g in range(1, 5): wrow(g)
        if o.get('bal'):
            nw, nx, where = o['bal']
            L_ = [f"s_add_u32 s{T0}, s{S_HG}, s{S_RB}", f"s_bitcmp1_b32 s{T0}, 0", f"s_cbranch_scc1 L_bal{self.sfx}",
                  f"s_cmp_ge_u32 s{S_W}, 2", f"s_cbranch_scc1 L_balx{self.sfx}",
                  f"s_mul_i32 s{T0}, s{S_W}, {32*3840 - 156}", f"s_sub_u32 s{T0}, s{S_WROW+2}, s{T0}", f"v_mul_u32_u24 v{TMP+104}, 3840, v{V_LANE}",
                  f"s_mov_b32 exec_lo, {hex(((1 << nw) - 1) & 0xffffffff)}", f"s_mov_b32 exec_hi, {hex(((1 << nw) - 1) >> 32)}",
                  f"buffer_load_dword v{V_DUMP}, v{TMP+104}, {srd(SW)}, s{T0} offen offset:1280", f"s_branch L_bal{self.sfx}",
                  f"L_balx{self.sfx}:",
                  f"s_mul_i32 s{T0}, s{S_RB}, {128*1280}", f"s_bfe_u32 s{T1}, s{S_HG}, 0x10002", f"s_lshl_b32 s{T1}, s{T1}, 1", f"s_add_u32 s{T1}, s{T1}, s{S_W}", f"s_sub_u32 s{T1}, s{T1}, 2",
                  f"s_mul_i32 s{T1}, s{T1}, {32*1280}", f"s_add_u32 s{T0}, s{T0}, s{T1}", f"s_lshl_b32 s{T1}, s{T3}, 7", f"s_add_u32 s{T0}, s{T0}, s{T1}", f"v_mul_u32_u24 v{TMP+104}, 1280, v{V_LANE}",
                  f"s_mov_b32 exec_lo, {hex((1 << nx) - 1)}", "s_mov_b32 exec_hi, 0",
                  f"buffer_load_dword v{V_DUMP}, v{TMP+104}, {srd(SX)}, s{T0} offen offset:512",
                  f"L_bal{self.sfx}:", "s_mov_b64 exec, -1"]
            if where == 0: p.untracked(L_)
            else:
                self.put(self.dma_x(1)); p.untracked(L_)
        if not (o.get('bal') and o['bal'][2]): self.q(0, self.dma_x(1))
        p.raw(f"""
        s_mov_b32 s{SWS}, s{kws}
        s_mov_b32 s{SWS+1}, s{kws+1}
        s_mov_b32 s{SWS+2}, {WS_SIZE}
        s_mov_b32 s{SWS+3}, 0x20000
        s_mov_b32 s{SOUT}, s{kout}
        s_mov_b32 s{SOUT+1}, s{kout+1}
        s_mov_b32 s{SOUT+2}, 5242880
        s_mov_b32 s{SOUT+3}, 0x20000
        s_lshl_b32 s{S_HEAD}, s{S_HG}, 2
        s_add_u32 s{S_HEAD}, s{S_HEAD}, s{S_W}
        v_lshlrev_b32 v{V_LIN}, 4, v{V_LANE}
        """)
        if A:
            p.raw(f"""
            s_mov_b32 s{SPHI}, s{kphi}
            s_mov_b32 s{SPHI+1}, s{kphi+1}
            s_mov_b32 s{SPHI+2}, 25600
            s_mov_b32 s{SPHI+3}, 0x20000
            """)
            self.q(0, [[f"s_mul_i32 s{S_WS}, s{S_HEAD}, 800",
                        (f"buffer_load_dwordx4 {vq(TMP+96)}, v{V_LIN}, {srd(SPHI)}, s{S_WS} offen", 'wphi')]])
        self.q(0, self.dma_w(1)); self.q(0, self.dma_x(2))
        G_, I_, R_, C_ = t, t + 1, t + 2, t + 3
        S = []
        def raw(txt):
            for l in txt.split('\n'):
                if l.strip(): S.append((1, l.strip()))
        raw(f"""
        v_lshrrev_b32 v{G_}, 4, v{V_LANE}
        v_and_b32 v{I_}, 15, v{V_LANE}
        v_bfe_u32 v{R_}, v{V_LANE}, 2, 2
        v_and_b32 v{C_}, 3, v{V_LANE}
        v_lshrrev_b32 v{t+4}, 1, v{I_}
        v_xor_b32 v{t+4}, v{t+4}, v{G_}
        v_lshlrev_b32 v{t+5}, 7, v{I_}
        v_lshl_add_u32 v{t+4}, v{t+4}, 4, v{t+5}
        v_add_u32 v{V_XR}, s{S_LR}, v{t+4}
        v_xor_b32 v{t+4}, 64, v{t+4}
        v_add_u32 v{V_XR+1}, s{S_LR}, v{t+4}
        v_lshrrev_b32 v{t+4}, 2, v{V_LANE}
        v_mul_u32_u24 v{t+5}, 160, v{t+4}
        v_mul_u32_u24 v{t+6}, 40, v{C_}
        v_add_u32 v{V_WT}, v{t+5}, v{t+6}
        v_add_u32 v{V_WT+1}, 51200, v{V_WT}
        v_mul_u32_u24 v{t+5}, 120, v{I_}
        v_mul_u32_u24 v{t+6}, 3840, v{G_}
        v_add3_u32 v{V_PW}, v{t+5}, v{t+6}, s{S_LR}
        v_mul_u32_u24 v{t+6}, 40, v{G_}
        v_mul_u32_u24 v{t+7}, 160, v{I_}
        v_lshrrev_b32 v{t+8}, 3, v{I_}
        v_lshl_add_u32 v{t+7}, v{t+8}, 4, v{t+7}
        s_mul_i32 s{T2}, s{S_W}, {OUTW}
        s_add_u32 s{T2}, s{T2}, {OUTL}
        v_add3_u32 v{V_OW}, v{t+7}, v{t+6}, s{T2}
        v_and_b32 v{t+5}, 7, v{t+4}
        v_lshrrev_b32 v{t+6}, 5, v{V_LANE}
        v_lshlrev_b32 v{t+6}, 1, v{t+6}
        v_lshl_add_u32 v{t+5}, v{t+5}, 2, v{t+6}
        v_mul_u32_u24 v{t+5}, 120, v{t+5}
        s_mul_i32 s{T0}, s{S_W}, 3840
        s_add_u32 s{T0}, s{T0}, {RBASE}
        v_add_u32 v{V_KA1}, s{T0}, v{t+5}
        v_lshl_add_u32 v{V_KB}, v{C_}, 3, v{V_KA1}
        s_mov_b32 s{S_L2E}, 0x3fb8aa3b
        s_mov_b32 s{S_NL2E}, 0xbfb8aa3b
        s_mov_b32 s{S_PERM}, 0x07060302
        s_and_b32 s{T3}, s{S_HG}, 1
        """)
        for j in range(5):
            b = RH + 5 * j
            if j < 3: raw(f"""
            v_lshrrev_b32 v{t+5}, 3, v{b+4}
            v_min_u32 v{t+5}, 1, v{t+5}
            v_and_b32 v{t+6}, {63 if j < 2 else 31}, v{V_LANE}
            v_add_lshl_u32 v{t+5}, v{t+5}, v{t+6}, 4
            v_add_u32 v{t+5}, {1024*j}, v{t+5}
            v_add_u32 v{V_ORD+j}, s{T2}, v{t+5}
            v_mul_u32_u24 v{t+5}, 2560, v{b+4}
            v_lshl_add_u32 v{V_OG+j}, v{b+3}, 4, v{t+5}
            """)
            if j == 2: raw(f"""
            v_lshrrev_b32 v{t+5}, 5, v{V_LANE}
            v_lshl_or_b32 v{V_OG+2}, v{t+5}, 30, v{V_OG+2}
            """)
        raw(f"""
        v_mov_b32 v{t+5}, 2304
        v_cmp_gt_u32 vcc, 16, v{V_LANE}
        v_mov_b32 v{t+6}, 1024
        v_cndmask_b32 v{t+5}, v{t+5}, v{t+6}, vcc
        v_add_u32 v{V_OO+1}, v{t+5}, v{V_LIN}
        v_mov_b32 v{V_OO}, v{V_LIN}
        v_add_u32 v{V_OO+2}, 40960, v{V_LIN}
        v_add_u32 v{V_OO+3}, 40960, v{V_OO+1}
        v_lshrrev_b32 v{t+4}, 5, v{V_LANE}
        v_mul_u32_u24 v{t+4}, {40960-512}, v{t+4}
        v_add_u32 v{t+5}, 3328, v{V_LIN}
        v_add_u32 v{V_OO+4}, v{t+4}, v{t+5}
        v_add_u32 v{V_LINH}, 51200, v{V_LIN}
        v_add_u32 v{V_LINX}, {XSLOT}, v{V_LIN}
        v_min_u32 v{V_PF}, 39, v{V_LANE}
        v_lshlrev_b32 v{V_PF}, 3, v{V_PF}
        v_and_b32 v{t+4}, 1, v{RH+4}
        v_mul_u32_u24 v{t+4}, 2560, v{t+4}
        v_lshrrev_b32 v{t+5}, 1, v{RH+4}
        v_mul_u32_u24 v{t+5}, 40960, v{t+5}
        v_lshlrev_b32 v{t+6}, 7, v{RH+3}
        v_add3_u32 v{V_L128}, v{t+4}, v{t+5}, v{t+6}
        """)
        raw(f"""
        s_lshl_b32 s{T0}, s{T3}, 1
        s_xor_b32 s{T0}, s{T0}, s{S_W}
        s_mul_i32 s{T0}, s{T0}, 5120
        s_mul_i32 s{T2}, s{S_HG}, 102400
        s_add_u32 s{T2}, s{T2}, {WS_PK + br*819200}
        s_add_u32 s{T0}, s{T0}, s{T2}
        s_lshr_b32 s{S_SPIN}, s{S_HG}, 1
        s_add_u32 s{T1}, s{S_SPIN}, s{S_W}
        s_and_b32 s{T1}, s{T1}, 3
        s_add_u32 s{T1}, s{T1}, 16
        s_mul_i32 s{T1}, s{T1}, 5120
        s_add_u32 s{S_WOROW+4}, s{T1}, s{T2}
        s_lshr_b32 s{S_PFL}, s{S_HG}, 2
        s_lshl_b32 s{S_PFL}, s{S_PFL}, 9
        s_add_u32 s{S_PFL}, s{S_PFL}, {WS_PF + br*1024}
        s_mul_i32 s{T2}, s{S_HG}, 160
        s_lshl_b32 s{S_OUT}, s{S_XBASE}, 1
        s_add_u32 s{S_OUT}, s{S_OUT}, s{T2}
        s_add_u32 s{S_OUT}, s{S_OUT}, {br*1280}
        s_lshl_b32 s{S_OB}, s{S_XBASE}, 1
        s_add_u32 s{S_OB}, s{S_OB}, {br*1280}
        """)
        for g in range(4):
            raw(f"""
            s_add_u32 s{T1}, s{S_SPIN}, {g}
            s_and_b32 s{T1}, s{T1}, 3
            s_mul_i32 s{T2}, s{T1}, 20480
            s_add_u32 s{S_WOROW+g}, s{T2}, s{T0}
            s_lshl_b32 s{T1}, s{T1}, 1
            s_add_u32 s{T1}, s{T1}, s{T3}
            s_mul_i32 s{T2}, s{T1}, 5120
            s_add_u32 s{S_OP+2*g}, s{T2}, s{S_OB}
            s_xor_b32 s{T1}, s{T1}, 1
            s_mul_i32 s{T2}, s{T1}, 5120
            s_add_u32 s{S_OP+2*g+1}, s{T2}, s{S_OB}
            """)
        SH = 8 if A else 7
        raw(f"""
        s_lshl_b32 s{T0}, s{S_RB}, 2
        s_add_u32 s{T0}, s{T0}, s{S_W}
        s_lshl_b32 s{S_FLAG}, s{T0}, 7
        s_add_u32 s{S_FLAG}, s{S_FLAG}, {WS_FLAG + br*64*128}
        s_lshl_b32 s{T0}, s{S_HEAD}, 16
        s_add_u32 s{T0}, s{T0}, {WS_P1 + br*32*65536}
        s_lshl_b32 s{T1}, s{S_RB}, 12
        s_add_u32 s{S_P1ST}, s{T0}, s{T1}
        s_min_u32 s{T1}, s{S_RB}, 14
        s_lshl_b32 s{T1}, s{T1}, {SH}
        s_add_u32 s{S_P1LD}, s{T0}, s{T1}
        s_lshl_b32 s{T0}, s{S_HEAD}, 12
        s_add_u32 s{S_P2LD}, s{T0}, {WS_P2 + br*32*4096}
        s_add_u32 s{S_P2ST}, s{S_P2LD}, s{T1}
        s_lshr_b32 s{T1}, s{S_RB}, {4 - o.get('p2log', 2)}
        s_lshl_b32 s{T1}, s{T1}, 18
        s_add_u32 s{S_P2LD}, s{S_P2LD}, s{T1}
        v_mul_u32_u24 v{t+4}, {F if A else 16}, v{G_}
        v_add_lshl_u32 v{V_P1ST}, v{t+4}, v{I_}, 4
        v_mul_u32_u24 v{t+4}, {F if A else 4}, v{G_}
        v_add_lshl_u32 v{t+5}, v{t+4}, v{I_}, 4
        v_lshrrev_b32 v{t+4}, {3 if A else 2}, v{I_}
        v_lshl_or_b32 v{V_P1M}, v{t+4}, 28, v{t+5}
        v_lshrrev_b32 v{t+4}, 1, v{G_}
        v_lshl_or_b32 v{V_P1M+1}, v{t+4}, 30, v{V_P1ST}
        v_lshl_or_b32 v{V_P1M+2}, v{t+4}, 30, v{V_P1M}
        v_cmp_gt_u32 vcc, 4, v{I_}
        v_cndmask_b32 v{V_KEEP}, 0, -1, vcc
        v_mov_b32 v{t+4}, 0x3f803f80
        v_cmp_eq_u32 vcc, 4, v{I_}
        v_cndmask_b32 v{V_ONE}, 0, v{t+4}, vcc
        v_and_b32 v{t+4}, 7, v{V_LANE}
        v_lshlrev_b32 v{V_F8}, 2, v{t+4}
        s_lshl_b32 s{T0}, s{S_HG}, 2
        v_min_u32 v{V_FOWN}, 1, v{V_LANE}
        v_lshlrev_b32 v{V_FOWN}, 30, v{V_FOWN}
        v_or_b32 v{V_FOWN}, s{T0}, v{V_FOWN}
        v_lshlrev_b32 v{V_ZA}, 3, v0
        v_add_u32 v{V_ZA}, {RBASE+7680}, v{V_ZA}
        """)
        if A:
            raw(f"""
            v_lshlrev_b32 v{t+5}, 12, v{G_}
            v_lshl_add_u32 v{V_P1LD}, v{I_}, 4, v{t+5}
            v_lshlrev_b32 v{V_P2ST}, 2, v{V_LANE}
            """)
        else:
            raw(f"""
            v_lshrrev_b32 v{t+5}, 3, v{V_LANE}
            v_lshlrev_b32 v{t+5}, 12, v{t+5}
            v_lshl_add_u32 v{V_P1LD}, v{t+4}, 4, v{t+5}
            v_lshl_add_u32 v{V_P2ST}, v{G_}, 5, v{V_F8}
            """)
        RS = 80 if A else 48
        HS = 24 * RS
        NQ = 240 if A else 120
        NI = 4 if A else 2
        raw(f"s_mul_i32 s{T0}, s{S_W}, {HS}\ns_add_u32 s{T0}, s{T0}, {RBASE}")
        u = t + 4
        for ii in range(NI):
            raw(f"v_add_u32 v{u}, {64*ii}, v{V_LANE}")
            if ii == NI - 1:
                raw(f"""v_subrev_u32 v{u+1}, 64, v{u}
                v_cmp_gt_u32 vcc, {NQ}, v{u}
                v_cndmask_b32 v{u}, v{u+1}, v{u}, vcc
                v_lshlrev_b32 v{V_GAL}, 4, v{u}""")
            if A:
                raw(f"""
                v_lshrrev_b32 v{u+1}, 4, v{u}
                v_and_b32 v{u+2}, 3, v{u}
                v_lshl_add_u32 v{u+1}, v{u+1}, 2, v{u+2}
                v_bfe_u32 v{u+2}, v{u}, 2, 2
                v_mul_u32_u24 v{u+3}, 6554, v{u+1}
                v_lshrrev_b32 v{u+3}, 16, v{u+3}
                v_mul_u32_u24 v{u+4}, 10, v{u+3}
                """)
            else:
                raw(f"""
                v_lshrrev_b32 v{u+1}, 3, v{u}
                v_and_b32 v{u+2}, 1, v{u}
                v_lshl_add_u32 v{u+1}, v{u+1}, 1, v{u+2}
                v_bfe_u32 v{u+2}, v{u}, 1, 2
                v_cmp_gt_u32 vcc, 24, v{u+1}
                v_lshrrev_b32 v{u+3}, 2, v{u+1}
                v_subrev_u32 v{u+4}, 24, v{u+1}
                v_cndmask_b32 v{u+3}, v{u+4}, v{u+3}, vcc
                v_and_b32 v{u+1}, 3, v{u+1}
                v_cndmask_b32 v{u+1}, 4, v{u+1}, vcc
                v_mov_b32 v{u+4}, 0
                """)
            raw(f"""
            v_sub_u32 v{u+1}, v{u+1}, v{u+4}
            v_lshl_add_u32 v{u+3}, v{u+3}, 2, v{u+2}
            v_mul_u32_u24 v{u+3}, {RS}, v{u+3}
            v_lshl_add_u32 v{u+3}, v{u+1}, 3, v{u+3}
            v_add_u32 v{V_LA+ii}, s{T0}, v{u+3}
            """)
        raw(f"""
        v_cmp_eq_u32 vcc, v{G_}, v{R_}
        v_mul_u32_u24 v{u}, {HS}, v{G_}
        v_mul_u32_u24 v{u+1}, {RS}, v{C_}
        v_add_u32 v{u}, v{u}, v{u+1}
        v_add_u32 v{u}, {RBASE}, v{u}
        v_mov_b32 v{u+1}, {RBASE+7680+o.get('zoff', 64)}
        v_cndmask_b32 v{V_FR2}, v{u+1}, v{u}, vcc
        """)
        if A:
            raw(f"""
            v_mov_b32 v{t+36}, 0
            v_mov_b32 v{t+37}, 0
            v_mov_b32 v{t+38}, 0
            v_mov_b32 v{t+39}, 0
            v_add_u32 v{TMP+100}, s{S_LR}, v{V_LIN}
            ds_write_b128 v{TMP+100}, {vq(t+36)} offset:13312
            v_mul_u32_u24 v{t+4}, {RW}, v{G_}
            v_mul_u32_u24 v{t+5}, 40, v{R_}
            v_add_u32 v{t+4}, v{t+4}, v{t+5}
            v_add_u32 v{t+4}, {RBASE+12288}, v{t+4}
            s_add_u32 s{T0}, s{S_LR}, 13312
            v_mov_b32 v{t+5}, s{T0}
            v_cmp_eq_u32 vcc, v{C_}, v{G_}
            v_cndmask_b32 v{V_FR}, v{t+5}, v{t+4}, vcc
            """)
            for tt in range(5):
                a = A_PHI + (tt * 3 + 2) * 4
                raw(f"v_accvgpr_write_b32 a{a+2}, 0\nv_accvgpr_write_b32 a{a+3}, 0")
        US, UA, UD = TMP + 40, TMP + 45, TMP + 80
        nA = o.get('nA', 0); prod = (not A) or nA > 0
        S_UOK = 92
        if prod:
            if o.get('umap', 1) == 0: umap = f"""s_add_u32 s{T1}, s{S_HG}, s{S_RB}
            s_and_b32 s{T1}, s{T1}, 1
            s_lshl_b32 s{T0}, s{S_W}, 1
            s_add_u32 s{T0}, s{T0}, s{T1}
            s_lshl_b32 s{T0}, s{T0}, 3
            s_add_u32 s{T0}, s{T0}, s{S_HG}
            s_lshl_b32 s{T0}, s{T0}, 3
            s_lshr_b32 s{T1}, s{S_RB}, 1
            s_add_u32 s{T0}, s{T0}, s{T1}
            s_add_u32 s{T0}, s{T0}, {0 if A else nA}
            s_cmp_lt_u32 s{T0}, {nA if A else 320}
            s_cselect_b32 s{S_UOK}, 1, 0"""
            elif o.get('umap', 1) == 1:
                umap = f"""s_lshr_b32 s{T1}, s{S_RB}, 2
                s_mul_i32 s{T0}, s{T1}, 3
                s_add_u32 s{T0}, s{T0}, s{S_W}
                s_sub_u32 s{T0}, s{T0}, 2
                s_cmp_eq_u32 s{T1}, 0
                s_cselect_b32 s{T0}, 0, s{T0}
                s_cselect_b32 s{T1}, 1, 3
                s_cmp_lt_u32 s{S_W}, s{T1}
                s_cselect_b32 s{S_UOK}, 1, 0
                s_lshl_b32 s{T0}, s{T0}, 5
                s_lshr_b32 s{T1}, s2, 3
                s_add_u32 s{T0}, s{T0}, s{T1}"""
            else:
                umap = f"""s_lshr_b32 s{T1}, s{S_RB}, 2
                s_sub_u32 s{T1}, s{T1}, 1
                s_add_u32 s{T2}, s{S_HG}, s{S_RB}
                s_and_b32 s{T2}, s{T2}, 1
                s_lshl_b32 s{T0}, s{S_W}, 1
                s_add_u32 s{T0}, s{T0}, s{T2}
                s_lshl_b32 s{T0}, s{T0}, 4
                s_lshr_b32 s{T2}, s2, 4
                s_add_u32 s{T0}, s{T0}, s{T2}
                s_mul_i32 s{T0}, s{T0}, 3
                s_add_u32 s{T0}, s{T0}, s{T1}
                s_cmp_lt_u32 s{T0}, 320
                s_cselect_b32 s{S_UOK}, 1, 0
                s_cmp_lt_u32 s{S_RB}, 4
                s_cselect_b32 s{S_UOK}, 0, s{S_UOK}"""
            iS0 = len(S)
            S.append((1, [x.strip() for x in f"""
            {umap}
            s_waitcnt lgkmcnt(0)
            s_cmp_lt_u32 s{T0}, 160
            s_cselect_b32 s{SWO}, s{K+6}, s{kwo}
            s_cselect_b32 s{SWO+1}, s{K+7}, s{kwo+1}
            s_cselect_b32 s{S_UTAG}, s{S_NONCE if A else S_UTAG}, s{S_NONCE}
            s_cselect_b32 s{T1}, 0, 160
            s_cselect_b32 s{S_UDST}, 0, 819200
            s_cselect_b32 s{S_UFL}, 0, 1024
            s_mov_b32 s{SWO+2}, 819200
            s_mov_b32 s{SWO+3}, 0x20000
            s_add_u32 s{S_UTAG}, s{S_UTAG}, 0x9e3779b1
            s_sub_u32 s{T0}, s{T0}, s{T1}
            s_and_b32 s{T1}, s{T0}, 1
            s_mul_i32 s{S_USRC}, s{T1}, 640
            s_mul_i32 s{T2}, s{T1}, 409600
            s_add_u32 s{S_UDST}, s{S_UDST}, s{T2}
            s_lshl_b32 s{T2}, s{T1}, 9
            s_add_u32 s{S_UFL}, s{S_UFL}, s{T2}
            s_lshr_b32 s{T1}, s{T0}, 1
            s_lshl_b32 s{T2}, s{T1}, 2
            s_add_u32 s{S_UFL}, s{S_UFL}, s{T2}
            s_add_u32 s{S_UFL}, s{S_UFL}, {WS_PF}
            s_and_b32 s{T1}, s{T1}, 3
            s_mul_i32 s{T2}, s{T1}, {20*1280}
            s_add_u32 s{S_USRC}, s{S_USRC}, s{T2}
            s_lshl_b32 s{T2}, s{T1}, 8
            s_add_u32 s{S_UDST}, s{S_UDST}, s{T2}
            s_lshr_b32 s{T1}, s{T0}, 3
            s_mul_i32 s{T2}, s{T1}, 5120
            s_add_u32 s{S_UDST}, s{S_UDST}, s{T2}
            s_add_u32 s{S_UDST}, s{S_UDST}, {WS_PK}
            s_lshr_b32 s{T2}, s{T1}, 1
            s_mul_i32 s{T2}, s{T2}, 80
            s_and_b32 s{T3}, s{T1}, 1
            s_lshl_b32 s{T3}, s{T3}, 3
            s_add_u32 s{T2}, s{T2}, s{T3}
            s_mul_i32 s{T3}, s{T1}, 160
            s_sub_u32 s{T3}, s{T3}, {16*160 - 16}
            s_cmp_ge_u32 s{T1}, 16
            s_cselect_b32 s{T2}, s{T3}, s{T2}
            s_cselect_b32 s{T3}, 1, 0
            s_mul_i32 s{T2}, s{T2}, 1280
            s_add_u32 s{S_USRC}, s{S_USRC}, s{T2}
            s_mul_i32 s{T1}, s{T3}, {76*1280}
            s_add_u32 s{T2}, s{S_LW}, {RING + 4*SLOT}
            """.split('\n') if x.strip()]))
            for j in range(5):
                raw(f"""
                v_lshrrev_b32 v{t+4}, 2, v{RH+5*j+4}
                v_mul_u32_u24 v{t+5}, 640, v{t+4}
                v_lshrrev_b32 v{t+4}, 2, v{t+4}
                v_mul_u32_u24 v{t+4}, s{T1}, v{t+4}
                v_add3_u32 v{US+j}, v{t+4}, v{t+5}, v{V_LIN}
                """)
            raw(f"v_add_u32 v{US+4}, 4096, v{US+4}")
            iS1 = len(S)
            raw(f"""
            v_mul_u32_u24 v{t+7}, 640, v{R_}
            v_mul_u32_u24 v{t+8}, 40, v{C_}
            v_add3_u32 v{t+7}, v{t+7}, v{t+8}, s{T2}
            """)
            for j in range(5):
                raw(f"""
                v_add_u32 v{t+4}, {4*j}, v{G_}
                v_mul_u32_u24 v{t+5}, 13108, v{t+4}
                v_lshrrev_b32 v{t+5}, 16, v{t+5}
                v_mul_u32_u24 v{t+6}, 120, v{t+5}
                v_lshl_add_u32 v{t+6}, v{t+4}, 3, v{t+6}
                v_add_u32 v{t+6}, v{t+6}, v{t+7}
                v_and_b32 v{t+8}, s{T3}, v{t+5}
                v_mul_u32_u24 v{t+8}, 2560, v{t+8}
                v_add_u32 v{UA+2*j}, v{t+6}, v{t+8}
                v_sub_u32 v{t+6}, v{t+6}, v{t+8}
                v_add_u32 v{UA+2*j+1}, 2560, v{t+6}
                v_mul_u32_u24 v{t+5}, {102400 - 5120}, v{t+5}
                v_lshl_add_u32 v{t+5}, v{t+4}, 10, v{t+5}
                v_lshl_add_u32 v{UD+j}, v{I_}, 4, v{t+5}
                """)
            mark = {}
            def cond(name, lines):
                p.untracked([f"s_cmp_eq_u32 s{S_UOK}, 0", f"s_cbranch_scc1 {name}{self.sfx}"] + lines + [f"{name}{self.sfx}:"])
                mark[name] = p.nvm
            L = [f"s_add_u32 m0, s{S_LW}, {RING + 4*SLOT}"]
            for j in range(5):
                off = f"offset:{j*1024} " if 0 < j < 4 else ""
                L.append(f"buffer_load_dwordx4 v{US+j}, {srd(SWO)}, s{S_USRC} offen {off}lds")
                if j == 3: L.append(f"s_add_u32 m0, s{S_LW}, {RING + 4*SLOT + 4096}")
            un = [[lambda L=L: cond("L_u1", L)]]
            if o.get('uissue', 0) == 0: self.q(10**6 + 77, un)
            if o.get('uissue', 0) == -1: S = S[:4] + S[iS0:iS1] + [(0, un[0])] + S[iS1:] + S[4:iS0]
        self.run(S, every=o.get('proev', 60))
        self.stamp('p5')
        if o.get('uissue', 0) == 0: self.release(77)
        def urd():
            assert not any(x.tag == ('W', 4) for x in p.ins)
            cond("L_u2r", [f"s_waitcnt vmcnt({p.nvm - mark['L_u1']}) lgkmcnt(0)"] +
                [f"ds_read_b64_tr_b16 {vq(TMP+60+2*k, 2)}, v{UA+k}" for k in range(10)] + ["s_waitcnt lgkmcnt(0)"])
        def ust(j): cond("L_u2" + "abcd "[j].strip(), [f"buffer_store_dwordx4 {vq(TMP+60+4*j)}, v{UD+j}, {srd(SWS)}, s{S_UDST} offen sc1"])
        if o.get('hops', 1):
            p("s_mov_b64 exec, 0")
            for w_ in range(3): p(f"s_cmp_eq_u32 s{S_W}, {w_}"); p(f"s_cbranch_scc1 L_hop{w_}{self.sfx}")
            p(f"s_branch L_hop3{self.sfx}")
            p(f"L_hopret{self.sfx}:")
            p("s_mov_b64 exec, -1")
        if prod and o.get('upos', (0,))[0] < 0:
            while len(self.dq) > -o['upos'][0] - 1 and self.tick(): pass
            urd()
            for j in range(5): ust(j)
        while len(self.dq) > o.get('prokeep', 0) and self.tick(): pass
        p.raw(f"""
        s_getreg_b32 s{T0}, hwreg(HW_REG_XCC_ID, 0, 4)
        s_waitcnt lgkmcnt(0)
        s_add_u32 s{S_NONCE}, s{S_NONCE}, 0x9e3779b1
        s_lshl_b32 s{T0}, s{T0}, 28
        s_xor_b32 s{S_XCCV}, s{T0}, s{S_NONCE}
        v_mov_b32 v{V_NONCE}, s{S_NONCE}
        v_and_b32 v{V_VW}, 1, v{V_LANE}
        v_lshlrev_b32 v{V_VW}, 4, v{V_VW}
        v_lshrrev_b32 v{V_VW}, v{V_VW}, v{V_NONCE}
        v_mov_b32 v{V_KA0}, s{S_XCCV}
        s_add_u32 s{S_XA}, s{S_FLAG}, {WS_XCC - WS_FLAG}
        """)
        xst = [(f"buffer_store_dword v{V_KA0}, v{V_FOWN}, {srd(SWS)}, s{S_XA} offen sc1", 'xcc')]
        x1, x2, x3 = o.get('xpos', (-1, 58, 88))
        if x1 < 0: self.put(xst)
        self.stamp()
        p(f"s_branch L_main{self.sfx}")
        p(".p2align 12")
        p(f"L_main{self.sfx}:")
        xb = lambda ks, rt: aq((ks * 2 + rt) * 4)
        xbp = lambda ps: (lambda ks, rt: xb(4 * (4 - ks // 4) + ks % 4, rt)) if ps in o.get('rev', [1, 2]) else xb
        for pu in range(0, 7):
            if (pu + 3) % 2 == 0: self.q(0, self.dma_w((pu + 3) // 2))
            self.q(10 * pu, self.dma_x(pu + 3))
            if prod and o.get('uissue', 0) == pu + 1: self.q(0, un)
        for G in range(5, 10): self.q(10**6 + 1 if G % 5 >= 3 else 20 * (G - 3) - 4, self.dma_w(G))
        for G in range(10, 13): self.q(20 * (G - 3) - 3, self.dma_w(G))
        for G in range(13, 20): self.q(10**6 + G, self.dma_w(G))
        hooks = {}
        for pu in range(1, 10):
            hooks[10 * pu - 5] = [lambda pu=pu: self.xread(pu, 0), lambda pu=pu: self.xread(pu, 1)]
            hooks[10 * pu - 4] = [lambda pu=pu: self.xread(pu, 2), lambda pu=pu: self.xread(pu, 3)]
        if A:
            rd = [(tt, u_, hf) for tt in range(5) for u_ in range(3) for hf in range(2 if u_ < 2 else 1)]
            w = TMP + 96; u2 = TMP + 102
            sc = [lambda: p.wait(vm=['wphi'])]
            for j in range(4):
                sc += [f"v_lshlrev_b32 v{u2}, 16, v{w+j}", f"v_and_b32 v{u2+1}, 0xffff0000, v{w+j}", f"v_mul_f32 v{u2}, s{S_L2E}, v{u2}",
                       f"v_mul_f32 v{u2+1}, s{S_L2E}, v{u2+1}", f"v_cvt_pk_bf16_f32 v{w+j}, v{u2}, v{u2+1}"]
            hooks[8] = sc + [(f"ds_write_b128 v{TMP+100}, {vq(w)} offset:12288", 'phw')]
            hooks[14] = [lambda: p.wait(lg=['phw'])]
            slots = [n for n in range(21, 90) if n % 10 in (0, 1, 2, 3)][:25]
            for k, n in enumerate(slots):
                hooks[n] = [(f"ds_read_b64_tr_b16 a[{A_PHI + (tt*3+u_)*4 + 2*hf}:{A_PHI + (tt*3+u_)*4 + 2*hf + 1}], v{V_FR} offset:{(8*u_+4*hf)*40 + 8*tt}", 'phi')
                            for tt, u_, hf in rd[k:k+1]]
        late3 = {}
        if prod:
            UR = TMP + 60
            u1, u2_, u3 = o.get('upos', (18, 18, 62))
            if u1 >= 0: hooks.setdefault(u1, []).append(urd)
            for j in range(5):
                uj = u2_ + o.get('ustep', 0) * j
                if uj >= 0: (hooks if uj < 100 else late3).setdefault(uj % 100, []).append(lambda j=j: ust(j))
            (hooks if u3 < 100 else late3).setdefault(u3 % 100, []).append(lambda: cond("L_u3", [f"s_waitcnt vmcnt({p.nvm - mark['L_u2']})", f"v_mov_b32 v{V_DUMP}, s{S_UTAG}", "s_mov_b64 exec, 1",
                         f"buffer_store_dword v{V_DUMP}, v{V_LIN}, {srd(SWS)}, s{S_UFL} offen sc1", "s_mov_b64 exec, -1"]))
        KBV = [V_KB, 17, 18, 19]; KAV = [V_KA1, 20, 21, 22]
        if o.get('kvown', 0):
            for kk in (1, 2, 3, 0):
                hooks.setdefault(89 + 2 * ((kk + 3) % 4), []).extend([f"s_add_u32 s{T2}, s{S_W}, {kk}", f"s_and_b32 s{T2}, s{T2}, 3", f"s_mul_i32 s{T2}, s{T2}, {RW}"])
                hooks.setdefault(90 + 2 * ((kk + 3) % 4), []).extend([f"v_add_u32 v{KBV[kk]}, s{T2}, v{V_KB}", f"v_add_u32 v{KAV[kk]}, s{T2}, v{V_KA1}"])
        XV = TMP + 92
        iss, chk = self.checked("L_xc", [f"buffer_load_dword v{XV}, v{V_F8}, {srd(SWS)}, s{S_XA} offen sc1"],
                                [f"v_xor_b32 v{XV+1}, s{S_NONCE}, v{XV}", f"v_lshlrev_b32 v{XV+1}, 4, v{XV+1}", f"v_cmp_ne_u32 vcc, 0, v{XV+1}"], 'xl')
        xv, xq = {}, {}
        def xh(pos, L): [hooks, xv, xq][pos // 100].setdefault(pos % 100, []).extend(L)
        if x1 >= 0: xh(x1, xst)
        xh(x2, iss)
        c_ = [x for _, x in chk]
        xh(x3, c_[:3]); xh(x3 + 1, c_[3:4]); xh(x3 + 2, c_[4:] + [f"v_cmp_ne_u32 vcc, s{S_XCCV}, v{XV}"])
        xh(x3 + 3, [f"s_mov_b32 s{S_FAST}, {1 if o.get('nofast') else 'vcc_lo'}", f"s_add_u32 s{T0}, s{SWS}, {WS_O}", f"s_addc_u32 s{T1}, s{SWS+1}, 0"])
        xh(x3 + 4, [f"s_cmp_eq_u32 s{S_FAST}, 0", f"s_cselect_b32 s{SO}, s{SOUT}, s{T0}", f"s_cselect_b32 s{SO+1}, s{SOUT+1}, s{T1}"])
        xh(x3 + 5, [f"s_mov_b32 s{SO+2}, 5242880", f"s_mov_b32 s{SO+3}, 0x20000"])
        self.group_sync(0)
        for k in range(4): self.xread(0, k)
        self.prime(0, sync=False)
        kp = o.get('kpace', 3)
        k1p = {0: lambda n: 1 if n % 3 != 2 else 0, 1: lambda n: 1, 2: lambda n: 2 if n % 10 < 2 else (1 if n % 10 < 5 else 0), 3: lambda n: 1 if n % 4 != 3 else 0}[o.get('k1', 0)]
        E0, E1, M0_, M1_ = TMP, TMP + 40, TMP + 80, TMP + 86
        x0, x1 = acc(ACC_K, 0, 0), acc(ACC_K, 0, 1)
        def early(ps, P0, P1):
            tm = o.get('tm', (0, 0, 0))[ps]
            L = [(80, c, x) for c, x in P0['zero'] + P1['zero']]
            for t_ in range(5):
                r = 100 - 5 * tm + tm * (t_ + 1) + 1 if tm else 95 + t_ + 2
                L += [(r, c, x) for c, x in P0['cvt'][2*t_:2*t_+2] + P1['cvt'][2*t_:2*t_+2]]
            return deque(L)
        def split(late, P0):
            c0 = {x for _, x in P0['cvt'] + P0['zero']}
            return [(c, x) for _, c, x in late if x in c0], [(c, x) for _, c, x in late if x not in c0]
        lateK = None
        if A:
            P0 = self.phiA_parts(x0, E0, M0_, "L_k0", False); P1 = self.phiA_parts(x1, E1, M1_, "L_k1", False)
            lateK = early(0, P0, P1)
        self.gemm_pass(0, ACC_K, xb, hooks=hooks, last=True, late=lateK, pace=lambda n: k1p(n) if n < o.get('ksw', 69) else (1 if n % kp == 0 else 0))
        self.stamp()
        E0, E1, M0_, M1_ = TMP, TMP + 40, TMP + 80, TMP + 86
        x0, x1 = acc(ACC_K, 0, 0), acc(ACC_K, 0, 1)
        tagset = [f"s_bfe_u32 s{S_TB+j}, s{S_NONCE}, {hex(0x80000 + 8*j)}" for j in range(4)] + [f"s_lshr_b32 s{S_NHI}, s{S_NONCE}, 16"]
        if o.get('amp'):
            p.raw(f"""
            s_load_dwordx2 s[88:89], s[0:1], 64
            s_not_b32 s{T0}, s98
            v_mov_b32 v{TMP+94}, 0
            v_mov_b32 v{TMP+95}, s{T0}
            s_lshr_b32 s{T0}, s2, 3
            s_or_b32 s{T0}, s{T0}, s{S_W}
            s_cmp_eq_u32 s{T0}, 0
            s_cselect_b32 s{T0}, 0, 64
            v_mov_b32 v{TMP+94}, s{T0}
            s_waitcnt lgkmcnt(0)
            s_cbranch_scc0 L_noat{self.sfx}
            s_mov_b64 exec, 1
            """)
            p.ins.append(__import__('emit').Ins(f"global_atomic_umax v{TMP+94}, v{TMP+95}, s[88:89] sc1"))
            p("s_mov_b64 exec, -1")
            p(f"L_noat{self.sfx}:")
        wr = lambda rt, x, n, o8: [(2, (f"ds_write_b64 v{V_PW}, {vq(x+2*j, 2)} offset:{rt*1920 + o8 + 8*j}", 'pw')) for j in range(n)]
        def mixw(out, w): return [y for j in range(len(w)) for y in out[2*j:2*j+2] + [w[j]]]
        burst = lambda L: [(0, [x for _, x in L])]
        dm = (2, lambda: self.tick())
        if A:
            r0, r1 = split(lateK, P0)
            def headA(P0, P1, r0, r1, extra0, extra1):
                L = list(r0); side = deque(r1); ne = 0; ex0 = dict(extra0); ex1 = dict(extra1)
                for k_, mfx in enumerate(P0['mf'] + P1['mf']):
                    if k_ == 15: L += list(side); side.clear()
                    L.append(mfx)
                    ex = ex0.get(k_) if k_ < 15 else ex1.get(k_ - 15)
                    if ex: L += ex
                    elif side:
                        for _ in range(2):
                            if side: L.append(side.popleft())
                    elif k_ >= 3 * ((ne % 20) // 4) + 2 + 3 and (ne < 28 or k_ >= 16): L.append(P0['exp'][ne]); ne += 1
                return L, ne
            pr = [(0, lambda: (self.group_sync(5), self.release(1)))]
            pr = pr + [(1, lambda n=n, hf=hf: self.wread(100 + n, hf)) for n in range(self.D(1) - 1) for hf in range(2)]
            hx = o.get('hx', 30)
            L_, ne = headA(P0, P1, r0, r1, {0: [dm], 14: [dm]}, {7: [dm]})
            self.put([x for _, x in [dm] + L_])
            hm = o.get('hmore', 0)
            self.run(P0['exp'][ne:] + P1['exp'][:hm] + P0['norm'][:-10], every=hx)
            self.put([x for _, x in pr + P0['norm'][-10:]])
            def tailf(P, rt, x, e, m, sc, head_done):
                nb = P['norm'][:len(P['norm']) - sc]
                L = [] if head_done else burst(nb)
                w_ = wr(rt, x, 10, 0)
                for j in range(10):
                    for i in (2 * j, 2 * j + 1):
                        if i >= 20 - sc: L += [(1, f"v_mul_f32 v{e+2*i+h}, v{e+2*i+h}, v{m+4 if i < 10 else m+2}") for h in range(2)]
                    L += P['out'][2*j:2*j+2] + [w_[j]]
                return L
            sc0, sc1 = o.get('scal', (0, 0))
            fill = tailf(P0, 0, x0, E0, M0_, 0, True) + P1['exp'][hm:] + tailf(P1, 1, x1, E1, M1_, sc1, False)
            self.stamp('head')
        else:
            fill = []
            for rt, x, e in ((0, x0, E0), (1, x1, E1)):
                L = self.phiB(x, e, False)
                fill += L[:-10] + mixw(L[-10:], wr(rt, x, 5, 0))
            self.group_sync(5); self.release(1); self.prime(1, sync=False)
        hooks = {}
        hooks.update(late3)
        PFV = TMP + 94
        ipf, cpf_ = self.checked("L_pf", [f"buffer_load_dwordx2 {vq(PFV, 2)}, v{V_PF}, {srd(SWS)}, s{S_PFL} offen sc1"],
                                 [f"v_xor_b32 v{PFV}, s{S_NONCE}, v{PFV}", f"v_bitop3_b32 v{PFV}, v{PFV}, v{PFV+1}, s{S_NONCE} bitop3:0xf6", f"v_cmp_ne_u32 vcc, 0, v{PFV}"], 'pf')
        pfp = o.get('pfpos', 81)
        if pfp < 100: hooks.setdefault(pfp, []).extend(ipf)
        pre = ["s_mov_b32 exec_hi, 0xff", (f"buffer_load_dword v{V_DUMP}, v{V_L128}, {srd(SO)}, s{S_OP} offen sc1", 'pr'), "s_mov_b64 exec, 1",
               (f"buffer_load_dword v{V_DUMP}, v{V_F8}, {srd(SWS)}, s{S_FLAG} offen sc1", 'pr'), "s_mov_b64 exec, -1"]
        pre1 = []
        if o.get('pre1m') is not None:
            pre1 = ["s_mov_b32 exec_lo, 0xfff00000", "s_mov_b32 exec_hi, 0xff", pre[1], "s_mov_b64 exec, -1"]
            pre = ["s_mov_b64 exec, 0xfffff"] + pre[1:]
        prel = []
        if o.get('prem'):
            n_ = len(o['prem']); o['prepos'] = 2
            for k_, ps_ in enumerate(o['prem']):
                lo_, hi_ = 40 * k_ // n_, 40 * (k_ + 1) // n_
                mk = ((1 << hi_) - 1) ^ ((1 << lo_) - 1)
                L_ = [f"s_mov_b32 exec_lo, {hex(mk & 0xffffffff)}", f"s_mov_b32 exec_hi, {hex(mk >> 32)}", pre[1]] + (pre[2:4] if k_ == 0 else []) + ["s_mov_b64 exec, -1"]
                assert ps_ <= 0 or ps_ > x3 + 5
                if ps_ >= 200: xq.setdefault(ps_ - 200, []).extend(L_)
                elif ps_ >= 100: xv.setdefault(ps_ - 100, []).extend(L_)
                else: prel.append((ps_, L_))
        wp, pp_ = o.get('wopf', -1), o.get('prepos', 0)
        if 100 <= pp_ < 200: hooks.setdefault(pp_ - 100, []).extend(pre)
        vs = o.get('vsync', 0)
        if o.get('v13'): hooks.setdefault(78, []).extend(["s_barrier", lambda: self.release(13)])
        for k_, v_ in xv.items(): hooks.setdefault(k_, []).extend(v_)
        for k_, v_ in enumerate(tagset): hooks.setdefault(41 + k_, []).insert(0, v_)
        vp = o.get('vpace', 4)
        vset = set(range(0, 100, vp))
        if o.get('vsch'):
            vset = set(); n_ = 0
            for cnt_, st_ in o['vsch']:
                for _ in range(cnt_): vset.add(n_); n_ += st_
        VB = TMP
        tmv = o.get('tm', (0, 0, 0))[1]
        lateV = deque()
        for j in range(5):
            for rt in range(2):
                c = self.cvt20(acc(ACC_V, 0, rt), VB + 10 * rt)
                r = 100 - 5 * tmv + tmv * (j + 1) + 1 if tmv else 200
                lateV.extend([(r, 1, c[2*j][1]), (r, 1, c[2*j+1][1]), (r, 2, (f"ds_write_b64 v{V_PW}, {vq(VB+10*rt+2*j, 2)} offset:{rt*1920 + 80 + 8*j}", 'vw'))])
        self.gemm_pass(1, ACC_V, xbp(1), fill=fill, hooks=hooks, last=True, sync=True, late=lateV, frange=(0, o.get('vend', 100)), pace=lambda n: 1 if n in vset else 0)
        self.stamp()
        for k_, (_, _, x) in enumerate(lateV):
            self.put([x])
            if k_ == 14: self.tick()
        NT = 3 if A else 2
        FB = ACC_K
        KV = TMP + 64
        rds = deque()
        own = o.get('kvown', 0)
        def rd(reg, av, off, kk, j):
            for hf in range(2): rds.append((f"ds_read_b64_tr_b16 {vq(reg+2*hf, 2)}, v{av[kk] if own else av[0]} offset:{(0 if own else kk*RW) + hf*120 + off}", ('kv', kk, j)))
        for kk in range(4):
            b = FB + kk * 20
            rd(b, KBV, 80, kk, 'a')
            for nt in range(NT): rd(b + 8 + 4 * nt, KBV, 32 * nt, kk, nt)
            rd(b + 4, KAV, 112, kk, 'z')
        if own:
            p("s_waitcnt lgkmcnt(5)")
            for _ in range(2 * NT + 4): self.put([rds.popleft()])
        self.tick()
        gk = 11
        self.flush_dma(('W', gk)); p.wait(vm=[('W', gk)], lg=['vw', 'pw'])
        p("s_barrier")
        self.release(13); self.release(14)
        def more(k):
            while k > 0 and rds and len(p.lgq) < 15: self.put([rds.popleft()]); k -= 1
        if own: more(5); p.wait(lg=[('kv', 0, 'z')])
        more(o.get('kvi', 15)); self.tick()
        p(f"v_mov_b32 v{TMP+1}, 0xff")
        seq = [(kk, nt) for kk in range(4) for nt in range(NT)]
        ao = deque((kk, f"v_and_or_b32 v{FB+kk*20+4+j}, v{FB+kk*20+4+j}, v{V_KEEP}, v{V_ONE}") for kk in range(4) for j in range(4))
        p.wait(lg=[('kv',) + seq[0]])
        for i_, (kk, nt) in enumerate(seq):
            b = FB + kk * 20
            p(f"{MF} {vq(KV + nt*4)}, {vq(b)}, {vq(b+8+4*nt)}, {'0' if kk == 0 else vq(KV + nt*4)}")
            p.wait(lg=[('kv',) + seq[i_ + 1]] if i_ + 1 < len(seq) else '*')
            k_ = len(rds); more(o.get('kvr', 4))
            for _ in range(max(0, 3 - (k_ - len(rds)))):
                if ao and ('kv', ao[0][0], 'z') not in p.lgq and not any(x[1] == ('kv', ao[0][0], 'z') for x in rds): p(ao.popleft()[1])
        assert not rds
        while len(ao) > 4: p(ao.popleft()[1])
        lastm = 0x00ff00ff if A else 0x000f000f
        def pub(mt, nt):
            a = KV + (mt * 3 + nt) * 4
            L = [(1, f"v_bfi_b32 v{a+j}, v{TMP+1}, s{S_TB+j}, v{a+j}") for j in range(4)]
            va = [V_P1ST, V_P1M, V_P1M + 1, V_P1M + 2][2 * mt + (nt == NT - 1)]
            return L + [(2, (f"buffer_store_dwordx4 {vq(a)}, v{va}, {srd(SWS)}, s{S_P1ST} offen offset:{(4*mt*F + 16*nt)*16 if A else [1024*mt, 1536 + 256*mt][nt]} sc1", 'p1'))]
        self.stamp('kv3')
        mf = [(2, f"{MF} {vq(KV + (3+nt)*4)}, {vq(FB+kk*20+4)}, {vq(FB+kk*20+8+4*nt)}, {'0' if kk == 0 else vq(KV + (3+nt)*4)}") for nt in range(NT) for kk in range(4)]
        pr = [(1, lambda n=n, hf=hf: self.wread(200 + n, hf)) for n in range(self.D(2) - 1) for hf in range(2)]
        self.put([x for _, x in self.weave(mf, [(1, x[1]) for x in ao] + [y for nt in range(NT) for y in pub(0, nt)] + pr)])
        qhead = [y for nt in range(NT) for y in pub(1, nt)]
        pb = o.get('pubb', 0)
        self.put([x for _, x in qhead[:pb]]); qhead = qhead[pb:]
        self.stamp()
        X = TMP + 8; CK = TMP + 2
        def tagcheck(mask):
            if mask == "0xff":
                L = [f"v_xor_b32 v{X+j}, s{S_TB+j%4}, v{X+j}" for j in range(4 * NI)] + [f"v_or_b32 v{CK}, v{X}, v{X+1}"]
                L += [f"v_or3_b32 v{CK}, v{CK}, v{X+j}, v{X+j+1}" for j in range(2, 4 * NI, 2)]
            else:
                L = [f"v_xor_b32 v{CK}, s{S_NONCE}, v{X}"] + [f"v_bitop3_b32 v{CK}, v{CK}, v{X+j}, s{S_NHI if j % 2 else S_NONCE} bitop3:0xf6" for j in range(1, 4 * NI)]
            return L + [f"v_and_b32 v{CK}, {mask}, v{CK}", f"v_cmp_ne_u32 vcc, 0, v{CK}"]
        lds_ = []
        for ii in range(NI):
            lds_ += [f"s_add_u32 s{T0}, s{S_P1LD}, {ii * (65536 // NI)}", f"buffer_load_dwordx4 {vq(X+4*ii)}, v{V_P1LD}, {srd(SWS)}, s{T0} offen sc1"]
        adds = [f"v_add_f32 v{X+j}, v{X+j}, v{X+4*ii+j}" for ii in range(1, NI) for j in range(4)]
        if o.get('h1pipe'):
            iss, chk = self.checked("L_h1", lds_, tagcheck("0xff"), 'h1', redo=adds)
            iss = [(x[0], ('h1', k_ // 2)) if isinstance(x, tuple) else x for k_, x in enumerate(iss)]
            c2 = []
            for ii in range(NI):
                c2 += [(0, lambda ii=ii: p.wait(vm=[('h1', ii)]))] + [(1, f"v_xor_b32 v{X+4*ii+j}, s{S_TB+j}, v{X+4*ii+j}") for j in range(4)]
                c2 += [(1, f"v_or_b32 v{CK}, v{X}, v{X+1}" if ii == 0 else f"v_or3_b32 v{CK}, v{CK}, v{X+4*ii}, v{X+4*ii+1}"), (1, f"v_or3_b32 v{CK}, v{CK}, v{X+4*ii+2}, v{X+4*ii+3}")]
                if ii == NI - 1: c2 += chk[-3:-1]
                if ii: c2 += [(1, y) for y in adds[4*ii-4:4*ii]]
            chk = c2 + chk[-1:]; red = []
        else:
            iss, chk = self.checked("L_h1", lds_, tagcheck("0xff"), 'h1')
            red = list(adds)
        red += [f"v_permlane32_swap_b32 v{X}, v{X+2}", f"v_permlane32_swap_b32 v{X+1}, v{X+3}", f"v_add_f32 v{X}, v{X}, v{X+2}", f"v_add_f32 v{X+1}, v{X+1}, v{X+3}",
                f"v_mov_b32 v{CK}, 0xffff", f"v_permlane16_swap_b32 v{X}, v{X+1}", f"v_add_f32 v{X}, v{X}, v{X+1}"]
        if not A: red.append(f"v_add_f32_dpp v{X}, v{X}, v{X} row_ror:8 row_mask:0xf bank_mask:0xf")
        red += [f"v_cvt_pk_bf16_f32 v{X}, v{X}, v{X}", f"v_bfi_b32 v{X}, v{CK}, v{V_VW}, v{X}"]
        st = (f"buffer_store_dword v{X}, v{V_P2ST}, {srd(SWS)}, s{S_P2ST} offen sc1", 'p2')
        sts = [st]
        for _ in range((1 << o.get('p2log', 2)) - 1): sts += [f"s_add_u32 s{S_P2ST}, s{S_P2ST}, {1 << 18}", st]
        if A and o.get('h1pipe'):
            red += [sts[0:1]] + [sts[k_:k_+2] for k_ in range(1, len(sts), 2)]
        else: red.append(sts if A else ["s_mov_b32 exec_lo, 0x00ff00ff", "s_mov_b32 exec_hi, 0x00ff00ff"] + sts + ["s_mov_b64 exec, -1"])
        n1, n2 = o.get('h1', (62, 84))
        hooks = {n1 + k: iss[2*k:2*k+2] for k in range(NI)}
        if pfp >= 100: hooks.setdefault(pfp - 100, []).extend(ipf)
        for k_, v_ in xq.items(): hooks.setdefault(k_, []).extend(v_)
        c_ = [x for _, x in cpf_]
        pc = o.get('pfchk', 13)
        hooks.setdefault(pc, []).extend(c_[:3]); hooks.setdefault(pc + 1, []).extend(c_[3:4]); hooks.setdefault(pc + 3, []).extend(c_[4:] + [lambda: setattr(self, 'pfok', True)])
        if 200 <= pp_ < 300: hooks.setdefault(pp_ - 200, []).extend(pre)
        qh = deque(qhead)
        for n in range(20): hooks.setdefault(n, []).append(lambda: self.gap(qh, 2))
        qb_ = o.get('qb', (30, 53, 66, 80))
        dq_ = self.D(2); assert self.D(0) == 6 and self.D(1) >= 5
        assert 18 <= qb_[0] <= 40 - dq_ and 38 <= qb_[1] <= 60 - dq_ and 58 <= qb_[2] <= 80 - dq_ and 78 <= qb_[3] <= 98
        busy = sorted([(pc, pc + 3), (n1, n1 + NI), (n2, min(100, n2 + o.get('h1len', 16)) + 1)] + ([(x3 - 200, x3 - 195)] if x3 >= 200 else []))
        assert all(a_[1] < b_[0] for a_, b_ in zip(busy, busy[1:])), busy
        assert pfp - 100 < pc and x2 < x3 and (pp_ < 100 or pp_ > x3 + 5)
        zw = [f"v_mov_b32 v{TMP+4}, 0", f"v_mov_b32 v{TMP+5}, 0", (f"ds_write_b64 v{V_ZA}, {vq(TMP+4, 2)}", 'zw')]
        if o.get('rslot'):
            hooks.setdefault(qb_[0] + 4, []).extend(zw[:2]); hooks.setdefault(qb_[0] + 5, []).extend(zw[2:])
        for fr_, pubg, rel in [(qb_[0], 12, [15, 18, 19] if o.get('rslot') else [15]), (qb_[1], 13, [16]), (qb_[2], 14, [17])] + ([] if o.get('rslot') else [(qb_[3], 14, [18])]):
            hooks.setdefault(fr_, []).extend([lambda g=pubg: self.group_sync(g)] + [lambda r=r: self.release(r) for r in rel])
        lateQ = None
        if A:
            P0 = self.phiA_parts(x0, E0, M0_, "L_q0", True); P1 = self.phiA_parts(x1, E1, M1_, "L_q1", True)
            lateQ = early(2, P0, P1)
        self.gemm_pass(2, ACC_K, xbp(2), late=lateQ, fill=chk + [(2 if isinstance(x, list) and o.get('h1pipe') else 1, x) for x in red], hooks=hooks, last=True, sync=False, frange=(n2, min(100, n2 + o.get('h1len', 16))),
                       pace=lambda n: 1 if (n >= 9 and n % (o.get('qpace', 3) if n < o.get('qsw', 42) else o.get('qpace2', 3)) == 0 and not n1 <= n < n1 + NI) else 0)
        assert not qh
        if not o.get('rslot'): p("s_barrier")
        [self.release(r) for r in range(15, 20)]
        self.stamp()
        X = TMP + 96; CK = TMP + 92
        lds_ = [f"buffer_load_dwordx4 {vq(X+4*ii)}, v{V_LIN if ii < NI-1 else V_GAL}, {srd(SWS)}, s{S_P2LD} offen offset:{1024*ii if ii < NI-1 else 0} sc1" for ii in range(NI)]
        PB = TMP + 8
        img = [y for ii in range(NI) for y in (f"v_perm_b32 v{PB+2*ii}, v{X+4*ii+1}, v{X+4*ii}, s{S_PERM}", f"v_perm_b32 v{PB+2*ii+1}, v{X+4*ii+3}, v{X+4*ii+2}, s{S_PERM}",
                                               f"ds_write_b64 v{V_LA+ii}, {vq(PB+2*ii, 2)}")]
        iss, chk = self.checked("L_h2", lds_, tagcheck("0xffff"), 'h2', redo=img)
        zw = [f"v_mov_b32 v{CK}, 0", f"v_mov_b32 v{CK+1}, 0", f"ds_write_b64 v{V_ZA}, {vq(CK, 2)}"] if not o.get('rslot') else []
        if not A: self.put(zw)
        for k_ in range(o.get('dirty', 0)):
            p(f"s_add_u32 s{T0}, s{S_OP}, {(9 << 20) + (k_ // 5) * (6 << 20) + (k_ % 5) * 1024}")
            p(f"buffer_store_dwordx4 v[2:5], v{V_LIN}, {srd(SWS)}, s{T0} offen {o.get('dirtyf', '')}")
        if o.get('prepos', 0) == 1: self.put(pre)
        if not A:
            for tt in range(6): p(f"v_accvgpr_write_b32 a{40+4*(3*tt+2)+2}, 0"); p(f"v_accvgpr_write_b32 a{40+4*(3*tt+2)+3}, 0")
        if A:
            r0, r1 = split(lateQ, P0)
            L_, ne = headA(P0, P1, r0, r1, {0: [dm], 2: [(0, zw)]} if not r1 else {}, {})
            L = L_ + P0['exp'][ne:] + P0['norm'] + P0['out'] + P1['exp'] + P1['norm'] + P1['out']
            if r1: self.put(zw)
        else:
            L = []
            for x, e in ((x0, E0), (x1, E1)):
                L += self.phiB(x, e, True) + [(1, f"v_mov_b32 v{x+10}, 0"), (1, f"v_mov_b32 v{x+11}, 0")]
        d1_, d2_ = o.get('oshift', (0, 0))
        Ld2 = L[len(L) - d2_:]; L = L[:len(L) - d2_]
        Ld1 = L[len(L) - d1_:]; L = L[:len(L) - d1_]
        tot = sum(c for c, _ in L)
        ev = [(tot - o.get('h2lead', 60), iss)]
        if o.get('prepos', 0) == 0 and o.get('prelead', 0) >= 0: ev.append((tot - o.get('prelead', o.get('h2lead', 60)) + 0.5, pre))
        if (o.get('pre1m') or 0) < -1: ev.append((tot + o['pre1m'] + 0.5, pre1))
        for ps_, L_ in prel: ev.append((tot + ps_ + 0.5, L_))
        L2 = []; c = 0; ev.sort(key=lambda e_: e_[0])
        for it_ in L + [(0, [])]:
            while ev and c >= ev[0][0] - (0.5 if it_[0] == 0 else 0): L2.append((0, ev.pop(0)[1]))
            L2.append(it_); c += it_[0]
        assert not ev
        self.run(L2, every=o.get('qev', 44))
        gl = 19 if o.get('nohb') else 17
        self.flush_dma(('W', gl))
        self.stamp()
        self.put([chk[0][1]] + img + [x for _, x in chk[1:]])
        if o.get('prepos', 0) == 0 and o.get('prelead', 0) < 0: self.put(pre)
        if o.get('pre1m') == -1: self.put(pre1)
        self.put([x for _, x in Ld1])
        p(f"s_cmp_eq_u32 s{S_FAST}, 0")
        p.wait(vm=[('W', gl)], lg='*')
        p("s_barrier")
        self.stamp()
        assert not self.dq or True
        import copy
        if o.get('stamps'): p(f"s_cmp_eq_u32 s{S_FAST}, 0")
        p(f"s_cbranch_scc0 L_tail{self.sfx}s")
        env = dict(RS=RS, M0_=M0_, M1_=M1_, Ld2=Ld2, pre1=pre1)
        sv = (self.p, self.sfx, self.nst, getattr(self, 'cs', 0), deque(self.dq))
        self.p = Prog(); self.p.vmq = list(p.vmq); self.p.lgq = list(p.lgq); self.sfx += 's'
        self.p(f"L_tail{self.sfx}:")
        self.tail(False, **env)
        self.ool.append(self.p.finalize())
        self.p, self.sfx, self.nst, self.cs, self.dq = sv
        self.tail(True, **env)
        return p.finalize() + "".join(self.ool)
    def tail(self, fast, RS, M0_, M1_, Ld2, pre1):
        p = self.p; A = self.A; o = self.o; br = 0 if A else 1
        def more(k):
            while k > 0 and rds and len(p.lgq) < 15: self.put([rds.popleft()]); k -= 1
        OA = ACC_V
        NU = 5 if A else 3
        SP = TMP + 112
        OB = TMP + 64
        LO = TMP + 80
        fr = [(tt, u_) for tt in (5, 0, 1, 2, 3, 4) for u_ in range(NU)]
        AO = 40
        rds = deque()
        for n, (tt, u_) in enumerate(fr):
            if not A and u_ == 2: rds.append((f"ds_read_b64 {aq(AO+4*n, 2)}, v{V_FR2} offset:{4*tt*RS + 16*u_}", ('of', n)))
            else: rds.append((f"ds_read_b128 {aq(AO+4*n)}, v{V_FR2} offset:{4*tt*RS + 16*u_}", ('of', n)))
        more(10)
        if A: p(f"v_mov_b32 v{SP}, v{M0_}"); p(f"v_mov_b32 v{SP+1}, v{M1_}")
        self.put([x for _, x in Ld2])
        def ost(txt, tag='o'):
            p(txt + ((o.get('fastf', '') if 'x4' in txt else '') if fast else " sc1"), tag)
        def flag(k): ost(f"buffer_store_dword v{V_NONCE}, v{V_FOWN}, {srd(SWS)}, s{S_FLAG} offen offset:{32*k}", 'fl')
        def poll(k, name):
            iss, chk = self.checked(name, [f"buffer_load_dword v{V_DUMP}, v{V_F8}, {srd(SWS)}, s{S_FLAG} offen offset:{32*k} sc1"], [f"v_cmp_ne_u32 vcc, s{S_NONCE}, v{V_DUMP}"], name)
            return iss, [x for _, x in chk]
        order = [(0, k) for k in range(5)] + [(1, k) for k in range(5)] + [(0, 5), (1, 5)]
        epi = deque()
        for z, (rt, k) in enumerate(order):
            dn = OA + (rt * 6 + 5) * 4
            b = OA + rt * 24
            rdy = (z + 1) * NU + o.get('rdy', 4)
            if k == 0:
                epi.append((rdy, 1, f"v_fmac_f32 v{dn}, {EPS}, v{SP+rt}" if A else f"v_add_f32 v{dn}, {EPS}, v{dn}")); epi.append((rdy, 2, f"v_rcp_f32 v{dn}, v{dn}"))
                continue
            tt = k - 1
            for r in range(4): epi.append((rdy, 1, f"v_mul_f32 v{b+4*tt+r}, v{b+4*tt+r}, v{dn}"))
            for h in range(2):
                i = 2 * tt + h
                d = OB + ((i // 4) * 2 + rt) * 4 + i % 4 if i < 8 else LO + 2 * rt + (i - 8)
                epi.append((rdy, 1, f"v_cvt_pk_bf16_f32 v{d}, v{b+2*i}, v{b+2*i+1}"))
            if tt in (1, 3):
                u_ = tt // 2
                epi.append((0, 2, lambda u_=u_, rt=rt: ost(f"buffer_store_dwordx4 {vq(OB+(u_*2+rt)*4)}, v{V_OO+rt*2+u_}, {srd(SO)}, s{S_OP} offen", ('S', rt))))
        epi.append((0, 2, lambda: ost(f"buffer_store_dwordx4 {vq(LO)}, v{V_OO+4}, {srd(SO)}, s{S_OP} offen", ('S', 1))))
        TM_ = o.get('tmaj', 3); LD = o.get('lead', 8); DF = o.get('df', 11); A_RING = A_PHI
        items = [(P, t_, (0, 1)) for P in range(2) for t_ in range(5)] + [(P, t_, (0,)) for P in range(2, 2 + LD) for t_ in range(5)] + \
                [(P, t_, (0, 1)) for P in range(2 + LD, 20) for t_ in range(5)] + [(P, t_, (1,)) for P in range(2, 2 + LD - TM_) for t_ in range(5)] + \
                [(P, t_, (1,)) for t_ in range(5) for P in range(2 + LD - TM_, 2 + LD)]
        keep = o.get('keep', 40); DP = 7
        assert not Ld2 or not keep
        dest = {}; prevuse = {}; order_r = []; ringn = 0; cache = {}; lastring = {}
        for i, (P, t_, rts) in enumerate(items):
            if (P, t_) in cache: dest[i] = cache[(P, t_)]; continue
            if not keep: r_ = aq(A_RING + (i % DF) * 4)
            elif rts == (0,) and len(cache) < keep:
                k_ = len(cache); r_ = aq(128 + 4 * k_) if k_ < 32 else vq(72 + 4 * (k_ - 32)); cache[(P, t_)] = r_
            else: r_ = vq(TMP + 36 + 4 * (ringn % DP)); ringn += 1
            prevuse[i] = lastring.get(r_, -1); lastring[r_] = i
            dest[i] = r_; order_r.append(i)
        mpos = [0]
        for it_ in items: mpos.append(mpos[-1] + len(it_[2]))
        rq = deque(order_r)
        def fread(i=None, hf=0):
            i = rq.popleft(); P, t_, _ = items[i]
            off = RING + P * 5120 + 1024 * t_; hi = off >= 51200
            if P >= 12 and o.get('rslot'): p(f"ds_read_b128 {dest[i]}, v{V_LINX} offset:{off - 12*5120}", ('FF', i)); return
            p(f"ds_read_b128 {dest[i]}, v{V_LINH if hi else V_LIN} offset:{off - 51200*hi}", ('FF', i))
        def canread(i):
            return rq and prevuse[rq[0]] < i and mpos[rq[0]] - mpos[i] <= (o.get('look', 12) if keep else 99) and len(p.lgq) < 14
        pr = deque((i, 0) for i in range(DP - 1 if keep else DF - 1))
        m = 0; mf0 = o.get('mf0', 54 if A else 36); seen = set()
        for rt, k in order:
            for u_ in range(NU):
                n = k * NU + u_; tt = fr[n][0]
                a = OA + (rt * 6 + tt) * 4
                if m == 0: p.wait(lg=[('of', 0)])
                p(f"{MF} {vq(a)}, {aq(AO+4*n)}, {vq(ACC_K+20*rt+4*u_)}, {'0' if u_ == 0 else vq(a)}")
                m += 1
                if n + 1 < len(fr): p.wait(lg=[('of', n + 1)])
                bud = 2 if A else 3
                if m == mf0:
                    assert sum(1 for x in p.ins if x.tag == ('S', 0)) == 2
                    p.wait(vm=[('S', 0)]); flag(0); bud -= 2
                elif m == o.get('pre1m'): self.put(pre1); bud -= 2
                elif rds: more(1); bud -= 1 if not (epi and epi[0][0] <= m and epi[0][1] == 2) else 0
                elif self.dq and m % o.get('opace', 8) == 0: self.tick(); bud -= 2
                elif pr and not (epi and epi[0][0] <= m): fread(*pr.popleft()); bud -= 1
                while epi and epi[0][0] <= m and epi[0][1] <= bud:
                    _, c, x = epi.popleft(); bud -= c
                    self.put([x])
                    if callable(x): break
        while pr: fread(*pr.popleft())
        while len(epi) > 7: self.put([epi.popleft()[2]])
        while self.tick(): pass
        self.stamp()
        def ob(ks, rt):
            if ks < 2: return vq(OB + (ks * 2 + rt) * 4)
            return aq((ks * 2 + rt) * 4) if ks < 16 else vq(LO + (2 * (ks - 16) + rt) * 4)
        ofl = o.get('ofl', 'sc1') if fast else 'sc1'
        def ld(P, rt):
            if P < 16: return [(f"buffer_load_dwordx4 {aq((P*2+rt)*4)}, v{V_OO+rt*2+P%2}, {srd(SO)}, s{S_OP + P//2} offen {ofl}", ('O', P, rt))]
            return [(f"buffer_load_dwordx4 {vq(LO+(2*(P-16)+rt)*4)}, v{V_OO+4}, {srd(SO)}, s{S_OP + 2*(P-16) + rt} offen {ofl}", ('O', P, rt))]
        i0, c0 = poll(0, "L_f0"); i1, c1 = poll(1, "L_f1"); i2, c2 = poll(2, "L_d0"); i3, c3 = poll(3, "L_d1")
        L0x = min(16, 2 + LD + o.get('xlead', 0))
        if o.get('nod'):
            if '0' in o['nod']: i2 = []; c2 = [[], [], c2[2][1:]]
            if '1' in o['nod']: i3 = []; c3 = [[], [], c3[2][1:]]
        lead = [ld(P, 0) for P in range(2, L0x)]
        rest = [ld(P, rt) for P in range(2 + LD, 20) for rt in range(2) if (P, rt) != (16, 0) and not (rt == 0 and P < L0x)] + [ld(P, 1) for P in range(2, 2 + LD)]
        def handshake():
            def burst():
                p.wait(lg='*')
                while rq and items[rq[0]][2] == (0,) and prevuse[rq[0]] < 0 and len(p.lgq) < 14: fread()
            if keep and o.get('hsr', 2) >= 1: burst()
            p.wait(vm=[('S', 1), ('W', 18), ('W', 19)])
            flag(1)
            self.put(c0)
            self.stamp()
            self.q(0, lead); self.q(10**6 + 50, rest)
            for k_ in range(o.get('oprime', 7)):
                self.tick()
                if k_ == 3 and not o.get('nohb') and not o.get('hbl'): p("s_barrier")
                if k_ == 3 and o.get('p1it', -1) < 0: self.put(i1)
            if keep and o.get('hsr', 2) >= 2: burst()
            p.wait(vm=[('O', 2, 0)])
        E0 = len(items) - 5 * LD
        NI_ = len(items)
        def outp(rt):
            b = TMP + 8
            c = self.cvt20(acc(ACC_K, 0, rt), b)
            L = []
            for j in range(5): L += [c[2*j][1], c[2*j+1][1], (f"ds_write_b64 v{V_OW}, {vq(b+2*j, 2)} offset:{8*j}", 'ow')]
            L += [(f"ds_read_b128 {vq(TMP+24+4*j)}, v{V_ORD+j}", ('or', j)) for j in range(3)]
            S_ = [(f"buffer_store_dwordx4 {vq(TMP+24+4*j)}, v{V_OG+j}, {srd(SOUT)}, s{S_OUT} offen{o.get('oflag', ('', ''))[rt]}", 'out') for j in range(3)]
            return L, S_
        vw, lw, sc_, vec = {}, {}, {}, {}
        add = lambda d, i, L: d.setdefault(i, []).extend(L)
        def check(i, c, tag, gapn):
            add(vw, i, [tag]); add(vec, i, [c[1]]); add(sc_, i + gapn, [c[2]])
        ep = [x[2] for x in epi]
        add(vec, 1, ep[:3]); add(vec, 2, ep[3:6]); add(vec, 3, ep[6:])
        add(vec, o.get('p0pos', 4), i0)
        add(vec, 9, [handshake])
        if o.get('p1it', -1) >= 0: add(vec, 10 + o.get('p1it', -1), i1)
        ci = 10 + o.get('c1pos', 5); check(ci, c1, "L_f1", 2); add(sc_, ci + 2, [lambda: self.release(50)])
        if o.get('hbl') and not o.get('nohb'):
            assert o['hbl'] <= 45; add(sc_, o['hbl'], ["s_barrier"])
        for i in range(15, NI_ - 5 * TM_ + 1, 5):
            if i == NI_: break
            Pn, _, rn = items[i]
            tags = [('O', Pn, rt) for rt in rn]
            if i == NI_ - 5 * TM_: tags = [('O', 1 + LD, 1)]
            if Pn >= 16:
                a = LO + 2 * (Pn - 16) * 4
                add(vw, i - 2, tags); add(vec, i - 2, [f"v_swap_b32 v{a+2}, v{a+4}", f"v_swap_b32 v{a+3}, v{a+5}"])
            else: add(vw, i - 1, tags)
        nd0 = E0 - o.get('d0', 8); add(vw, nd0, [('O', 19, 0), ('O', 19, 1)]); add(vec, nd0, [lambda: flag(2)])
        add(vec, E0 + o.get('d0p', 0), i2)
        L0, S0 = outp(0)
        if keep >= 5 * LD:
            for j in range(5): add(vec, E0 + 3 + 2 * j, L0[3*j:3*j+2]); add(vec, E0 + 4 + 2 * j, L0[3*j+2:3*j+3])
            add(vec, E0 + 13, L0[15:17]); add(vec, E0 + 14, L0[17:18])
        else:
            for j, x in enumerate(L0): add(vec, E0 + 2 + j, [x])
        nd1 = NI_ - o.get('d1', 24); (add(vw, nd1, [('O', 1 + LD, 1)]), add(vec, nd1, [lambda: flag(3)])) if '1' not in o.get('nod', '') else None
        check(E0 + 22, c2, "L_d0", 2)
        for j, x in enumerate(S0): add(lw, E0 + 25 + 2 * j, [('or', j)]); add(vec, E0 + 25 + 2 * j, [x])
        L1, S1 = outp(1)
        n1e = 0
        if TM_:
            for j in range(15):
                pos = NI_ - 5 * TM_ + (j // 3 + 1) * TM_ + (2 + j % 3 if keep < 5 * LD else o.get('o1lag', 3) + (j % 3) // 2)
                if pos < NI_: add(vec, pos, [L1[j]]); n1e = j + 1
        add(vec, NI_ - o.get('d1p', 8), i3)
        add(sc_, NI_ - 5, [f"s_or_b32 s{T0}, s{S_RB}, s{S_HEAD}"]); add(sc_, NI_ - 4, [f"s_cmp_lg_u32 s{T0}, 0"]); add(sc_, NI_ - 3, [f"s_cselect_b32 s{T0}, {WS_SIZE}, 0"])
        add(vec, NI_ - 2, [(f"buffer_store_dword v{V_NONCE}, v{V_FOWN}, {srd(SWS)}, s{T0} offen offset:{br*128}{'' if o.get('nplain', 0) else ' sc1'}", 'nn')])
        assert ci + 2 < E0 + o.get('d0p', 0) < E0 + 22 and E0 + 24 < NI_ - o.get('d1p', 8) and nd1 < NI_ - o.get('d1p', 8) and nd0 < E0 + o.get('d0p', 0)
        assert 3 < o.get('p0pos', 4) <= 9 and E0 + 29 < NI_ - 5 * TM_ + TM_ + 2 + 15
        def wb():
            m_ = o.get('wbm', 31)
            p.untracked([f"s_lshr_b32 s{T1}, s2, 3", f"s_and_b32 s{T1}, s{T1}, {m_}", f"s_or_b32 s{T1}, s{T1}, s{S_W}", f"s_cbranch_scc1 L_wb{self.sfx}", "buffer_wbl2 sc1", f"L_wb{self.sfx}:"])
        if fast and o.get('wb', 0) > 0: add(vec, NI_ - o['wb'], [wb])
        p.wait(lg=[('FF', 0)])
        clk = 0.0; per = o.get('lper', 4.6)
        for i, (P, t_, rts) in enumerate(items):
            for z, rt in enumerate(rts):
                a = acc(ACC_K, t_, rt)
                p(f"{MF} {vq(a)}, {dest[i]}, {ob(P, rt)}, {'0' if P == 0 else vq(a)}")
                if z == 0:
                    k0 = len(p.ins)
                    for tg in vw.get(i, []): self.flush_dma(tg)
                    assert i + 1 not in rq
                    p.wait(vm=vw.get(i), lg=[('FF', i + 1)] + lw.get(i, []))
                    if len(rts) == 1: self.put(sc_.get(i, []))
                    if canread(i):
                        if len(p.ins) == k0: p("s_nop 0")
                        fread()
                        if keep and len(rts) == 2 and canread(i): fread()
                else: self.put(sc_.get(i, []))
            self.stamp('z%d' % i)
            if i >= 10:
                clk += len(rts)
                if clk >= per and i not in vec and self.tick(): clk -= per
            self.put(vec.get(i, []))
        self.stamp()
        p(f"s_add_u32 s{S_OUT}, s{S_OUT}, {16*2560}")
        self.put(L1[n1e:12]); self.put(c3[:2]); self.put(L1[12:]); self.put(c3[2:])
        if fast and o.get('wb', 0) == -2: wb()
        for j in range(3): p.wait(lg=[('or', j)]); self.put([S1[j]])
        if fast and o.get('wb', 0) == -1: wb()
        if o.get('stamps'):
            p("s_waitcnt vmcnt(0)")
            self.stamp()
            p("s_memrealtime s[100:101]")
            p("s_waitcnt lgkmcnt(0)")
            p.raw(f"""
            s_lshl_b32 s{T0}, s2, 2
            s_add_u32 s{T0}, s{T0}, s{S_W}
            s_lshl_b32 s{T0}, s{T0}, 6
            s_add_u32 s{T0}, s{T0}, {WS_ST}
            v_mov_b32 v{TMP+16}, 0
            v_mov_b32 v{TMP}, s98
            v_mov_b32 v{TMP+1}, s100
            """)
            for k in range(14): p(f"v_mov_b32 v{TMP+2+k}, {'s%d' % (S_ST+k) if k < self.nst else ('s95' if k == 13 else 0)}")
            p("s_mov_b64 exec, 1")
            for k in range(4): p(f"buffer_store_dwordx4 {vq(TMP+4*k)}, v{TMP+16}, {srd(SWS)}, s{T0} offen offset:{16*k}")
        if o.get('cntm'):
            wbd = "" if not o.get('wbd') else f"""s_lshr_b32 s{T0}, s2, 3
            s_or_b32 s{T0}, s{T0}, s{S_W}
            s_cmp_lg_u32 s{T0}, 0
            s_cbranch_scc1 L_wb2{self.sfx}
            L_wb1{self.sfx}:
            s_sleep 2
            s_memrealtime s[64:65]
            s_waitcnt lgkmcnt(0)
            s_sub_u32 s{T1}, s64, s98
            s_cmp_lt_u32 s{T1}, 2500
            s_cbranch_scc1 L_wb1{self.sfx}
            buffer_wbl2 sc1
            s_waitcnt vmcnt(0)
            L_wb2{self.sfx}:"""
            p.raw(f"""
            s_load_dwordx2 s[62:63], s[0:1], 64
            v_mov_b32 v2, 0
            v_mov_b32 v3, s95
            s_waitcnt lgkmcnt(0)
            s_cmp_eq_u32 s95, 0
            s_cbranch_scc1 L_cn0{self.sfx}
            s_mov_b64 exec, 1
            global_atomic_add v2, v3, s[62:63] sc1
            L_cn0{self.sfx}:
            {wbd}
            s_or_b32 s{T0}, s{S_RB}, s{S_HEAD}
            s_cmp_lg_u32 s{T0}, 0
            s_cbranch_scc1 L_cn2{self.sfx}
            s_movk_i32 s{T0}, 3500
            s_mov_b32 s{T2}, 0
            L_cn1{self.sfx}:
            s_sleep 2
            s_memrealtime s[64:65]
            s_waitcnt lgkmcnt(0)
            s_sub_u32 s{T1}, s64, s98
            s_cmp_lt_u32 s{T1}, s{T0}
            s_cbranch_scc1 L_cn1{self.sfx}
            s_cmp_eq_u32 s{T2}, 1
            s_cbranch_scc1 L_cn2{self.sfx}
            global_load_dword v3, v2, s[62:63] sc1
            s_waitcnt vmcnt(0)
            v_readfirstlane_b32 s{T0}, v3
            s_min_u32 s{T0}, s{T0}, 1024
            s_mul_i32 s{T0}, s{T0}, 20
            s_add_u32 s{T0}, s{T0}, 4000
            s_mov_b32 s{T2}, 1
            s_branch L_cn1{self.sfx}
            L_cn2{self.sfx}:
            """)
        if o.get('amp'):
            p("s_waitcnt vmcnt(0)")
            self.stamp()
            if o['amp'][0] < 0: p("s_mov_b32 s100, s98")
            p.raw(f"""
            s_and_b32 s{T0}, s2, 7
            s_lshr_b32 s{T0}, {o['amp'][2]}, s{T0}
            s_bitcmp1_b32 s{T0}, 0
            s_cbranch_scc0 L_ampx{self.sfx}
            s_load_dwordx2 s[62:63], s[0:1], 64
            v_mov_b32 v2, 0
            s_waitcnt lgkmcnt(0)
            global_load_dword v3, v2, s[62:63] sc1
            s_waitcnt vmcnt(0)
            v_readfirstlane_b32 s{T2}, v3
            s_not_b32 s{T2}, s{T2}
            s_sub_u32 s{T0}, s100, s{T2}
            s_add_u32 s{T0}, s{T0}, 300
            s_mul_i32 s{T0}, s{T0}, {o['amp'][1]}
            s_min_u32 s{T0}, s{T0}, 100000
            L_amp{self.sfx}:
            s_sleep 2
            s_memrealtime s[64:65]
            s_waitcnt lgkmcnt(0)
            s_sub_u32 s{T1}, s64, s{T2}
            s_cmp_lt_u32 s{T1}, s{T0}
            s_cbranch_scc1 L_amp{self.sfx}
            L_ampx{self.sfx}:
            """)
        p("s_endpgm")
        assert not self.dq

def sizes(lines):
    import subprocess, re
    src = '.amdgcn_target "amdgcn-amd-amdhsa--gfx950"\n.text\n' + "\n".join(lines) + "\n"
    r = subprocess.run(["llvm-mc", "-triple=amdgcn-amd-amdhsa", "-mcpu=gfx950", "-show-encoding"], input=src, capture_output=True, text=True)
    assert r.returncode == 0, r.stderr[:2000]
    return [len(m.split(',')) for m in re.findall(r'encoding: \[([^\]]*)\]', r.stdout)]
def add_hops(text, sfx, align=True):
    lines = text.split("\n")
    i0 = lines.index(f"L_main{sfx}:"); i1 = next(i for i in range(i0, len(lines)) if lines[i].strip() == "s_endpgm")
    body = lines[i0 + 1:i1]
    isi = lambda l: l.startswith("    ")
    szl = sizes([l for l in body if isi(l)])
    insl = [l.strip() for l in body if isi(l)]
    big = [z == 8 and t.startswith("v_") and not t.startswith("v_mfma") for z, t in zip(szl, insl)]
    run = [0] * (len(big) + 1)
    for k in range(len(big) - 1, -1, -1): run[k] = run[k + 1] + 1 if big[k] else 0
    sz = iter(szl); k = -1; nfix = 0
    out = []; addr = 0; page = 0; prev = "v_mfma"
    for l in body:
        if isi(l):
            k += 1
            if align and run[k] >= 3 and addr % 8 == 4:
                pv = out[-1] if isinstance(out[-1], str) else ""
                op = pv.split()[0] if pv.strip() else ""
                if isi(pv) and szl[k - 1] == 4 and op.startswith("v_") and not op.startswith(("v_cmp", "v_swap", "v_permlane", "v_readfirst")):
                    out[-1] = pv.replace(op, op + "_e64", 1); addr += 4; nfix += 1
                elif run[k] >= 6: out.append("    s_nop 0"); addr += 4; nfix += 1
            off = addr - page * 4096
            if off >= 0 and (prev.startswith("v_mfma") or off >= 40) and not prev.startswith("s_mov_b64 exec") :
                out.append(("hop", page)); addr += 4; page += 1
            addr += next(sz); prev = l.strip()
        out.append(l)
    assert page >= 4
    res = []
    for x in out:
        if isinstance(x, tuple):
            k = x[1]
            res += [f"L_hop{k}{sfx}:", f"    s_cbranch_execz " + (f"L_hop{k+4}{sfx}" if k + 4 < page else f"L_hopret{sfx}")]
        else: res.append(x)
    print(sfx, "main bytes", addr, "align fixes", nfix, file=sys.stderr)
    return "\n".join(lines[:i0 + 1] + res + lines[i1:])

def build(opt):
    ref = open(f"cdna_kernels/{NAME}.s.ref").read().split("\n")
    head = [l for l in ref if l.startswith(";") and "@launch" not in l]
    s = "\n".join(head) + "\n; @launch grid=(256,1,1) block=(256,1,1) lds=163840\n"
    s += f""".amdgcn_target "amdgcn-amd-amdhsa--gfx950"
.text
.globl {NAME}_kernel
.p2align 12
.p2align 8
.type {NAME}_kernel,@function
{NAME}_kernel:
    ;  kv / z       : per-workgroup partials, reduce-scatter + all-gather through d_ws; every word carries a launch tag
    s_cmp_ge_u32 s2, 256
    s_cbranch_scc1 L_exit
"""
    ga = Gen(True, opt); ta = ga.body(); gb = Gen(False, opt); tb = gb.body()
    ca, ra = ta.split(".split\n"); cb, rb = tb.split(".split\n")
    assert ca == cb
    if opt.get('hops', 1): ra = add_hops(ra, 'A', opt.get('align', 1)); rb = add_hops(rb, 'B', opt.get('align', 1))
    s += ca + ra + "L_exit:\n    s_endpgm\n.p2align 12\n" + rb
    s += ".fill 2048, 4, 0xbf810000\n"
    s += f""".section .rodata,"a"
.p2align 6
.amdhsa_kernel {NAME}_kernel
  .amdhsa_next_free_vgpr 512
  .amdhsa_next_free_sgpr 102
  .amdhsa_accum_offset 256
  .amdhsa_group_segment_fixed_size 0
  .amdhsa_kernarg_size 80
  .amdhsa_user_sgpr_count 2
  .amdhsa_user_sgpr_kernarg_segment_ptr 1
  .amdhsa_system_sgpr_workgroup_id_x 1
.end_amdhsa_kernel
"""
    print("nops", ga.p.nops, gb.p.nops, "instrs", len(ga.p.ins), len(gb.p.ins), "autow", getattr(ga.p, 'autow', 0), file=sys.stderr)
    return s

if __name__ == "__main__":
    import json
    opt = json.loads(sys.argv[2]) if len(sys.argv) > 2 else {}
    open(sys.argv[1], "w").write(build(opt))
```

```python
import sys
from collections import deque
from emit import Prog
NAME = "concat_heads__linear_kernel_hedgehog__linear_attn_block__prompt"

S_RB, S_HG, S_W = 4, 5, 7
SX, SW, SWO, SWS, SOUT, SPHI = 8, 12, 16, 20, 24, 28
S_NONCE = 32
S_WROW = 33
S_XBASE, S_XU = 38, 39
S_LW, S_LR = 40, 41
T0, T1, T2, T3 = 42, 43, 44, 45
S_WOROW = 46
S_HEAD = 51
S_SPIN = 52
S_FAST = 53
S_L2E, S_NL2E = 54, 55
S_OB = 56
S_WS, S_XS = 57, 58
S_FLAG = 59
S_OP = 60
S_P1ST, S_P1LD, S_P2ST, S_P2LD, S_OWN, S_OUT, S_XCCV, S_PERM = 68, 69, 70, 71, 72, 73, 74, 75
S_KA = 76
S_ST = 76
import os
if os.environ.get('PRO'): S_ST = 88
def srd(b): return f"s[{b}:{b+3}]"
V_LANE = 1
V_WO = 2; V_OF = 7; V_OL = 12; V_XO = 17; V_XR = 21; V_WT = 23; V_LIN = 25
V_PW, V_VW, V_KB, V_KA0, V_KA1, V_FR = 26, 27, 28, 29, 30, 31
ACC_K, ACC_V = 32, 72
TMP = 112
PV = 228
V_P1ST, V_P1LD, V_P2ST, V_GAL, V_LA, V_FR2, V_KEEP, V_ONE, V_OW, V_ORD, V_OG, V_F8, V_DUMP, V_ZA = PV, PV+1, PV+2, PV+3, PV+4, PV+8, PV+9, PV+10, PV+11, PV+12, PV+17, PV+22, PV+23, PV+24
V_L128, V_NONCE, V_FOWN = PV + 25, PV + 26, PV + 27
RING = 0; SLOT = 20480; RBASE = 102400; RW = 15360
OUTL = RBASE + 50688; OUTW = 2592; XSLOT = RBASE + 9728; V_LINX = 226
WS_FLAG, WS_XCC, WS_P2, WS_P1, WS_O, WS_ST = 4096, 32768, 5 << 20, 1 << 20, 8 << 20, 16 << 20
WS_SIZE = 32 << 20
D = 6
A_RING = 220
A_PHI = 160
A_PARK = 244
V_OO = 7; V_LINH = 12; V_PF = 13; V_P1M = 14
WS_PF = 49152; WS_PK = 6 << 20
S_USRC, S_UDST, S_UFL, S_UTAG, S_PFL, S_XA = 3, 6, 72, 90, 91, 93
S_TB = SX
S_NHI = 38
SO = SPHI
SPIN_MAX = 100000
EPS = "0x358637bd"

def vq(b, n=4): return f"v[{b}:{b+n-1}]"
def aq(b, n=4): return f"a[{b}:{b+n-1}]"
def acc(base, t, rt): return base + (rt * 5 + t) * 4
MF = "v_mfma_f32_16x16x32_bf16"

DEF = {'A': dict(vsch=((8, 3), (19, 4)), scal=(0, 6), tm=(0, 1, 0), d1=28, h1pipe=1, xpos=(117, 190, 222), qpace=4, pfpos=101, pfchk=28, prokeep=4, proev=60, rslot=1, h1=(46, 70), h1len=8, h2lead=140, prelead=120, kpace=4, hx=26, d0=11, vsync=1, qev=20, nohb=1), 'B': dict(d1=28, h1pipe=1, xpos=(117, 190, 222), uissue=2, upos=(44, 90, 140), tm=(0, 4, 0), qpace2=2, ustep=4, qb=(20, 53, 66, 80), d0=11, pfpos=101, pfchk=28, h1=(46, 72), h1len=5, h2lead=80, prem=(283, -70, -30), vpace=3, qev=24, vsync=1)}
class Gen:
    def __init__(self, isA, opt):
        self.A = isA
        sf = 'A' if isA else 'B'
        opt = dict(DEF[sf], **opt)
        opt.update({k[:-1]: v for k, v in opt.items() if k.endswith(sf)})
        self.o = opt
        self.p = Prog(); self.sfx = 'A' if isA else 'B'
        self.F = 40 if isA else 20
        self.nst = 0
        self.dq = deque()
        self.pos = 0
        self.ool = []
    def stamp(self, name=None):
        p = self.p
        if name is None and self.o.get('idle'):
            self.ic = getattr(self, 'ic', -1) + 1
            if self.ic == self.o['idle'][0]: p(f"s_sleep {self.o['idle'][1]}")
        fine = self.o.get('fine')
        if fine:
            if name is None: self.cs = getattr(self, 'cs', 0) + 1; name = 's%d' % (self.cs - 1)
            if name not in fine: return
        elif name is not None: return
        if self.o.get('amp'):
            if self.nst == self.o['amp'][0]:
                p("s_memrealtime s[100:101]"); p("s_waitcnt lgkmcnt(0)")
            self.nst += 1
            return
        if not self.o.get('stamps'): return
        p(f"s_memrealtime s[100:101]" if self.o.get('rt') else f"s_memtime s[100:101]")
        p("s_waitcnt lgkmcnt(0)")
        p(f"s_sub_u32 s{S_ST+self.nst}, s100, {'s98' if self.o.get('rt') else 's96'}")
        self.nst += 1
    def put(self, L):
        for x in L:
            if isinstance(x, tuple): self.p(x[0], x[1])
            elif isinstance(x, list): self.put(x)
            elif callable(x): x()
            else: self.p(x)
    def dma_w(self, G):
        g = G % 5
        lb = XSLOT + (G - 18) * SLOT if G >= 18 and self.o.get('rslot') else RING + g * SLOT
        pre = [f"s_add_u32 m0, s{S_LW}, {lb}"]
        if G < 15:
            col = {0: 1280, 1: 2560, 2: 0}[G // 5]
            gr = 4 - g if G // 5 in self.o.get('rev', [1, 2]) else g
            pre.append(f"s_add_u32 s{S_WS}, s{S_WROW+gr}, {col}"); so = f"s{S_WS}"; sd = SW; vo = V_WO
        else:
            items = []
            for j in range(5):
                off = f"offset:{j*1024} " if 0 < j < 4 else ""
                L = (pre if j == 0 else []) + [(f"buffer_load_dwordx4 v{V_LIN}, {srd(SWS)}, s{S_WOROW+g} offen {off}sc1 lds", ('W', G))]
                if j == 3: L += [f"s_add_u32 m0, s{S_LW}, {lb + 4096}", f"s_add_u32 s{S_WOROW+g}, s{S_WOROW+g}, 4096"]
                items.append(L)
            return items
        items = []
        if G // 5 in self.o.get('fake', []):
            base = (G % 5) * 4 * 5120 + (G // 5 if G < 15 else 0) * 819200
            if self.o.get('fakerot'):
                pre = [pre[0], f"s_mul_hi_u32 s{S_WS}, s{S_WROW+gr}, 34953", f"s_mul_i32 s{S_WS}, s{S_WS}, 5120", f"s_add_u32 s{S_WS}, s{S_WS}, s94", f"s_sub_u32 s{S_WS}, s{S_WS}, s{S_LW}",
                       f"s_add_u32 s{S_WS}, s{S_WS}, {(G // 5) * 819200}"]
            else: pre = [pre[0], f"s_add_u32 s{S_WS}, s94, {base}"]
            for j in range(5):
                off = f"offset:{j*1024} " if 0 < j < 4 else ""
                L = (pre if j == 0 else []) + [(f"buffer_load_dwordx4 v{V_LIN}, {srd(sd)}, s{S_WS} offen {off}lds", ('W', G))]
                if j == 3: L += [f"s_add_u32 m0, s{S_LW}, {RING + g*SLOT + 4096}", f"s_add_u32 s{S_WS}, s{S_WS}, 4096"]
                items.append(L)
            return items
        for j in range(5):
            off = f"offset:{j*1024} " if 0 < j < 4 else ""
            L = (pre if j == 0 else []) + [(f"buffer_load_dwordx4 v{vo+j}, {srd(sd)}, {so} offen {off}lds", ('W', G))]
            if j == 3: L.append(f"s_add_u32 m0, s{S_LW}, {RING + g*SLOT + 4096}")
            items.append(L)
        return items
    def dma_x(self, pu):
        items = []
        for j in range(4):
            off = f"offset:{j*1024} " if j else ""
            L = []
            if j == 0: L += [f"s_add_u32 m0, s{S_LR}, {(pu % 3) * 4096}", f"s_add_u32 s{S_XS}, s{S_XU}, s{S_XBASE}"]
            L.append((f"buffer_load_dwordx4 v{V_XO+j}, {srd(SX)}, s{S_XS} offen {off}lds", ('X', pu)))
            if j == 0: L += [f"s_add_u32 s{S_XU}, s{S_XU}, 128"]
            if j == 1: L += [f"s_cmp_eq_u32 s{S_XU}, 1280", f"s_cselect_b32 s{S_XU}, 0, s{S_XU}"]
            items.append(L)
        return items
    def q(self, earliest, items):
        for it in items: self.dq.append((earliest, it))
    def release(self, k):
        self.dq = deque((0 if e == 10**6 + k else e, it) for e, it in self.dq)
    def tick(self):
        if self.dq and not getattr(self, 'pfok', False) and any(isinstance(x, tuple) and x[1] == ('W', 15) for x in self.dq[0][1]): return False
        if self.dq and self.dq[0][0] <= self.pos:
            self.put(self.dq.popleft()[1]); return True
        return False
    def flush_dma(self, tag):
        def has():
            return any(isinstance(x, tuple) and x[1] == tag for _, it in self.dq for x in it)
        while has():
            assert self.dq[0][0] <= self.pos, (tag, self.pos, self.dq[0])
            self.put(self.dq.popleft()[1])
    def run(self, L, every=30):
        c = 0
        for cost, x in L:
            self.put([x]); c += cost
            if c >= every: c = 0; self.tick()
    def D(self, ps): return self.o.get('dd', (6, 6, 6))[ps]
    def kt(self, N):
        ps, n = divmod(N, 100); tm = self.o.get('tm', (0, 0, 0))[ps]
        if n >= 100 - 5 * tm:
            t, j = divmod(n - (100 - 5 * tm), tm); return 20 - tm + j, t
        return divmod(n, 5)
    def wread(self, N, hf):
        G = N // 20; ks, t = self.kt(N); ks %= 4
        off = RING + (G % 5) * SLOT + ks * 5120 + hf * 2560 + 8 * t
        hi = off >= 51200
        s = A_RING + (N % self.D(N // 100)) * 4 + 2 * hf
        if G // 5 in self.o.get('fake', []):
            if hf == 0:
                off = RING + (G % 5) * SLOT + ks * 5120 + 1024 * t
                hi = off >= 51200
                self.p(f"ds_read_b128 a[{s}:{s+3}], v{226 + hi} offset:{off - 51200*hi}", ('F', N))
            return
        self.p(f"ds_read_b64_tr_b16 a[{s}:{s+1}], v{V_WT + hi} offset:{off - 51200*hi}", ('F', N))
    def group_sync(self, G):
        self.flush_dma(('W', G))
        self.p.wait(vm=[('W', G)])
        self.p("s_barrier")
    def xread(self, pu, k):
        ksub, rt = divmod(k, 2)
        if k == 0:
            self.flush_dma(('X', pu)); self.p.wait(vm=[('X', pu)])
        a = ((2 * pu + ksub) * 2 + rt) * 4
        self.p(f"ds_read_b128 {aq(a)}, v{V_XR+ksub} offset:{(pu % 3)*4096 + rt*2048}", ('XR', pu))
    def prime(self, ps, sync=True):
        if sync: self.group_sync(ps * 5)
        for n in range(self.D(ps) - 1):
            self.wread(ps * 100 + n, 0); self.wread(ps * 100 + n, 1)
    def gemm_pass(self, ps, accb, bop, fill=None, hooks=None, last=False, pace=None, sync=True, frange=(0, 100), hooks0=None, late=None):
        p = self.p
        fill = deque(fill or []); hooks = hooks or {}; hooks0 = hooks0 or {}
        N0 = ps * 100; D = self.D(ps)
        p.wait(lg=[('F', N0), ('XR', 0)])
        pace = pace or (lambda n: 0)
        for n in range(100):
            self.pos = N0 + n
            ks, t = self.kt(N0 + n)
            s = A_RING + ((N0 + n) % D) * 4
            M = n + D - 1
            look = M < 100 or not last
            a = acc(accb, t, 0)
            p(f"{MF} {vq(a)}, {aq(s)}, {bop(ks, 0)}, {'0' if ks == 0 else vq(a)}")
            k0 = len(p.ins)
            if n < 99:
                tg = [('F', N0 + n + 1)]
                if ps == 0 and (n + 1) % 10 == 0: tg.append(('XR', (n + 1) // 10))
                p.wait(lg=tg)
            if n in hooks0: self.put(hooks0[n])
            pk_ = ps in self.o.get('fake', [])
            if pk_:
                if n % 2 == 0 and n + 4 < 100:
                    if (n + 4) % 20 == 0 and sync: self.group_sync((N0 + n + 4) // 20)
                    if len(p.ins) == k0: p("s_nop 0")
                    if n: self.wread(N0 + n + 4, 0)
                    self.wread(N0 + n + 5, 0)
                elif fill and n >= frange[0]: self.gap(fill, 2)
            elif look:
                if M % 20 == 0 and sync: self.group_sync((N0 + M) // 20)
                if len(p.ins) == k0: p("s_nop 0")
                self.wread(N0 + M, 0); self.wread(N0 + M, 1)
            elif fill and n >= frange[0]: self.gap(fill, 2)
            elif late: self.gapl(late, n - 0.5)
            a = acc(accb, t, 1)
            p(f"{MF} {vq(a)}, {aq(s)}, {bop(ks, 1)}, {'0' if ks == 0 else vq(a)}")
            self.pos = N0 + n + 1
            self.stamp('n%d' % (N0 + n))
            did = 0
            for _ in range(pace(n)): did += self.tick()
            if n in hooks: self.put(hooks[n])
            if fill and n >= frange[0]:
                left = sum(c for c, _ in fill)
                gaps = sum(1 for k in range(n, frange[1]) if not pace(k)) + (min(D - 1, 99 - n) if last and frange[1] == 100 else 0)
                if pk_: gaps = sum(1 for k in range(n, frange[1]) if not pace(k)) + (frange[1] - n) // 2
                bud = 0 if did else 2
                if left > 2 * gaps: bud += 2
                if ps == 2 and left > 4 * gaps: bud = -(-left // max(gaps, 1))
                self.gap(fill, bud)
            elif late and not did and n not in hooks: self.gapl(late, n)
        while fill: self.put([fill.popleft()[1]])
        self.pos = N0 + 100
    def gapl(self, late, n):
        q = deque()
        for r, c, x in late:
            if r > n: break
            q.append((c, x))
        k = len(q); self.gap(q, 2)
        for _ in range(k - len(q)): late.popleft()
    def gap(self, fill, bud):
        first = True
        while fill:
            c, x = fill[0]
            solo = isinstance(x, tuple)
            if c > bud or (solo and not first): break
            fill.popleft(); self.put([x]); bud -= c
            if solo: break
            if c: first = False
    def cvt20(self, src, dst):
        return [(1, f"v_cvt_pk_bf16_f32 v{dst+i}, v{src+2*i}, v{src+2*i+1}") for i in range(10)]
    def phiA_parts(self, x, e, m, name, isq):
        P = {}
        kb = e + 28
        P['cvt'] = self.cvt20(x, kb)
        P['zero'] = [(1, f"v_mov_b32 v{kb+10}, 0"), (1, f"v_mov_b32 v{kb+11}, 0")]
        P['mf'] = [(2, f"{MF} {vq(x+4*t)}, {aq(A_PHI + (t*3+u)*4)}, {vq(kb+4*u)}, {'0' if u == 0 else vq(x+4*t)}") for t in range(5) for u in range(3)]
        pr_ = lambda r: f"v[{r}:{r+1}]"
        P['exp'] = [(2, f"v_exp_f32 v{e+i}, v{x+i}") for i in range(20)]
        P['hp'] = [(1, f"v_pk_mul_f32 {pr_(e+30+2*i)}, {pr_(e+2*i)}, {pr_(e+10+2*i)}") for i in range(5)] + [(1, f"v_pk_add_f32 {pr_(e+20+2*i)}, {pr_(e+2*i)}, {pr_(e+10+2*i)}") for i in range(5)]
        P['rcp'] = [(2, f"v_rcp_f32 v{e+30+i}, v{e+30+i}") for i in range(10)]
        nm = name + self.sfx
        L = [f"v_pk_add_f32 {pr_(m)}, {pr_(e+20)}, {pr_(e+22)}", f"v_pk_mul_f32 {pr_(m+2)}, {pr_(e+20)}, {pr_(e+30)}"]
        for i in range(1, 5):
            if i > 1: L.append(f"v_pk_add_f32 {pr_(m)}, {pr_(m)}, {pr_(e+20+2*i)}")
            L.append(f"v_pk_fma_f32 {pr_(m+2)}, {pr_(e+20+2*i)}, {pr_(e+30+2*i)}, {pr_(m+2)}")
        L += [f"v_add_f32 v{m}, v{m}, v{m+1}", f"v_add_f32 v{m+2}, v{m+2}, v{m+3}", f"v_add_f32 v{m+1}, v{m}, v{m+2}", f"v_rcp_f32 v{m+2}, v{m+2}", f"v_cmp_ngt_f32 vcc, 0x53800000, v{m+1}"]
        L.append(f"v_mul_f32 v{m+2}, v{m+2}, v{m}" if isq else f"v_rcp_f32 v{m+4}, v{m}")
        L += [f"v_pk_mul_f32 {pr_(e+30+2*i)}, {pr_(e+30+2*i)}, {pr_(m+2)} op_sel_hi:[1,0]" for i in range(5)]
        L += [f"v_pk_mul_f32 {pr_(e+20+2*i)}, {pr_(e+30+2*i)}, {pr_(e+10+2*i)}" for i in range(5)]
        L += [f"v_pk_mul_f32 {pr_(e+30+2*i)}, {pr_(e+30+2*i)}, {pr_(e+2*i)}" for i in range(5)]
        L.append([f"s_cbranch_vccnz {nm}_slow", f"{nm}_back:"])
        o = Prog()
        o(f"{nm}_slow:")
        o(f"v_max3_f32 v{m}, v{x}, v{x+1}, v{x+2}"); o(f"v_min3_f32 v{m+1}, v{x}, v{x+1}, v{x+2}")
        for i in range(3, 19, 2):
            o(f"v_max3_f32 v{m}, v{m}, v{x+i}, v{x+i+1}"); o(f"v_min3_f32 v{m+1}, v{m+1}, v{x+i}, v{x+i+1}")
        o(f"v_max_f32 v{m}, v{m}, v{x+19}"); o(f"v_min_f32 v{m+1}, v{m+1}, v{x+19}")
        for i in range(20): o(f"v_sub_f32 v{e+i}, v{x+i}, v{m}"); o(f"v_sub_f32 v{e+20+i}, v{m+1}, v{x+i}")
        for i in range(40): o(f"v_exp_f32 v{e+i}, v{e+i}")
        for h in range(2): o(f"v_pk_add_f32 {pr_(m+2*h)}, {pr_(e+20*h)}, {pr_(e+20*h+2)}")
        for i in range(2, 10):
            for h in range(2): o(f"v_pk_add_f32 {pr_(m+2*h)}, {pr_(m+2*h)}, {pr_(e+20*h+2*i)}")
        for h in range(2): o(f"v_add_f32 v{m+2*h}, v{m+2*h}, v{m+2*h+1}")
        o(f"v_rcp_f32 v{m+2}, v{m+2}")
        o(f"v_mul_f32 v{m+2}, v{m+2}, v{m}" if isq else f"v_rcp_f32 v{m+4}, v{m}")
        for i in range(10): o(f"v_pk_mul_f32 {pr_(e+20+2*i)}, {pr_(e+20+2*i)}, {pr_(m+2)} op_sel_hi:[1,0]")
        o(f"s_branch {nm}_back")
        self.ool.append(o.finalize())
        if not isq: L += [f"v_pk_mul_f32 {pr_(e+2*i)}, {pr_(e+2*i)}, {pr_(m+4)} op_sel_hi:[1,0]" for i in range(10)]
        P['norm'] = [(1, y) for y in L]
        P['out'] = [(1, f"v_cvt_pk_bf16_f32 v{x+i}, v{e+2*i}, v{e+2*i+1}") for i in range(20)]
        return P
    def weave(self, mf, va, per=2):
        va = deque(va); L = []
        for x in mf:
            L.append(x); b = per
            while va and va[0][0] <= b: b -= va[0][0]; L.append(va.popleft())
        return L + list(va)
    def phiB(self, x, e, packed):
        L = []
        if packed: L += [(1, f"v_pk_mul_f32 v[{e+2*i}:{e+2*i+1}], v[{x+2*i}:{x+2*i+1}], s[{S_L2E}:{S_NL2E}] op_sel_hi:[1,0]") for i in range(10)]
        else: L += [(1, f"v_mul_f32 v{e+i}, s{S_L2E}, v{x+i}") for i in range(20)]
        L += [(2, f"v_exp_f32 v{e+i}, v{e+i} clamp") for i in range(20)]
        L += [(1, f"v_max_f32 v{x+i}, {EPS}, v{x+i}") for i in range(20)]
        if packed: L += [(1, f"v_pk_add_f32 v[{e+2*i}:{e+2*i+1}], v[{e+2*i}:{e+2*i+1}], v[{x+2*i}:{x+2*i+1}]") for i in range(10)]
        else: L += [(1, f"v_add_f32 v{e+i}, v{e+i}, v{x+i}") for i in range(20)]
        L += self.cvt20(e, x)
        return L
    def checked(self, name, loads, check, tag, redo=()):
        nm = name + self.sfx
        iss = [(x, tag) if x.startswith('buffer') else x for x in loads]
        chk = [(0, lambda: self.p.wait(vm=[tag]))] + [(1, x) for x in check] + [(1, [f"s_cbranch_vccnz {nm}_retry", f"{nm}_ok:"])]
        o = Prog()
        o(f"{nm}_retry:"); o(f"s_mov_b32 s{S_SPIN}, 0")
        if self.o.get('cnt') == name: o("s_mov_b32 s95, 1")
        o(f"{nm}_loop:")
        if self.o.get('stamps'): o(f"s_add_u32 s95, s95, {dict(L_xc=1000000, L_h1=10000, L_h2=1000, L_pf=10000000, L_f0=1, L_f1=100, L_d0=0, L_d1=100000)[name]}")
        bk = self.o.get('backoff', {}).get(name, 0)
        if bk: o(f"s_sleep {bk}")
        for x in loads: o(x)
        o("s_waitcnt vmcnt(0)")
        for x in check: o(x)
        o(f"s_cbranch_vccz {nm}_{'redo' if redo else 'ok'}")
        o(f"s_add_u32 s{S_SPIN}, s{S_SPIN}, 1"); o(f"s_cmp_lt_u32 s{S_SPIN}, {SPIN_MAX}"); o(f"s_cbranch_scc1 {nm}_loop")
        if redo:
            o(f"{nm}_redo:")
            for x in redo: o(x)
        o(f"s_branch {nm}_ok")
        self.ool.append(o.finalize())
        return iss, chk
    def body(self):
        p = self.p; A = self.A; F = self.F; br = 0 if A else 1; o = self.o
        t = TMP
        K = S_KA
        kx, kw, kout, kws = K, K + 2, K + 8, K + 10
        kphi, kwo = (K + 4, K + 6) if A else (None, K + 4)
        p.raw(f"""
        s_andn2_b32 s{T0}, 1, s2
        s_lshl_b32 s{T0}, s{T0}, 5
        s_load_dwordx8 s[{K}:{K+7}], s[0:1], s{T0}
        s_load_dwordx2 s[{kout}:{kout+1}], s[0:1], 56
        s_load_dwordx2 s[{kws}:{kws+1}], s[0:1], 72
        """)
        if o.get('stamps'): p("s_memtime s[96:97]"); p("s_mov_b32 s95, 0")
        if o.get('stamps') or o.get('amp') or o.get('cntm'): p("s_memrealtime s[98:99]")
        if o.get('cntm'): p("s_mov_b32 s95, 0")
        p.raw(f"""
        s_getpc_b64 s[60:61]
        L_pc:
        s_bfe_u32 s{S_HG}, s2, 0x30003
        v_and_b32 v{V_LANE}, 63, v0
        v_lshrrev_b32 v{t}, 6, v0
        s_bitcmp0_b32 s2, 0
        s_cselect_b32 s{T1}, L_setupB-L_setupA, 0
        s_lshl_b32 s{T0}, s{S_HG}, 12
        v_lshlrev_b32 v{V_L128}, 7, v{V_LANE}
        v_readfirstlane_b32 s{S_W}, v{t}
        s_add_u32 s{T0}, s{T0}, s{T1}
        s_add_u32 s{T0}, s{T0}, L_setupA-L_pc
        s_add_u32 s60, s60, s{T0}
        s_addc_u32 s61, s61, 0
        v_lshl_add_u32 v{t+1}, v{t}, 10, v{V_L128}
        s_mov_b64 exec, 0xff
        """)
        p(f"global_load_dword v{V_DUMP}, v{t+1}, s[60:61]", 'cpf')
        p("s_mov_b64 exec, -1")
        ra, rbm, rdiv = o.get('rot', (10, 10, 4))
        p.raw(f"""
        s_and_b32 s{S_RB}, s2, 6
        s_lshl_b32 s{S_RB}, s{S_RB}, 1
        s_lshr_b32 s{T0}, s2, 6
        s_add_u32 s{S_RB}, s{S_RB}, s{T0}
        s_mul_i32 s{T0}, s{S_HG}, {ra}
        s_mul_i32 s{T1}, s{S_RB}, {rbm}
        s_add_u32 s{T0}, s{T0}, s{T1}
        s_lshr_b32 s{T0}, s{T0}, {rdiv.bit_length()-1}
        s_mul_i32 s{T1}, s{T0}, 6554
        s_lshr_b32 s{T1}, s{T1}, 16
        s_mul_i32 s{T1}, s{T1}, 10
        s_sub_u32 s{T3}, s{T0}, s{T1}
        s_lshl_b32 s{S_XU}, s{T3}, 7
        s_lshl_b32 s{T0}, s{S_RB}, 2
        s_add_u32 s{T0}, s{T0}, s{S_W}
        s_mul_i32 s{S_XBASE}, s{T0}, 40960
        s_mul_i32 s{S_LW}, s{S_W}, 5120
        s_mul_i32 s{S_LR}, s{S_W}, {RW}
        s_add_u32 s{S_LR}, s{S_LR}, {RBASE}
        v_lshrrev_b32 v{t}, 3, v{V_LANE}
        v_mul_u32_u24 v{t}, 1280, v{t}
        v_lshrrev_b32 v{t+1}, 4, v{V_LANE}
        v_xor_b32 v{t+1}, v{t+1}, v{V_LANE}
        v_and_b32 v{t+1}, 7, v{t+1}
        v_lshl_add_u32 v{V_XO}, v{t+1}, 4, v{t}
        v_xor_b32 v{t+2}, 64, v{V_XO}
        v_add_u32 v{V_XO+1}, {9216}, v{t+2}
        v_add_u32 v{V_XO+2}, {2*9216}, v{V_XO}
        v_add_u32 v{V_XO+3}, {3*9216}, v{t+2}
        s_lshr_b32 s{T0}, s{S_W}, 1
        s_add_u32 s{T0}, s{T0}, s{T3}
        s_and_b32 s{T1}, s{S_W}, 1
        s_mul_i32 s{T1}, s{T1}, {32*3840}
        s_mul_i32 s{T2}, s{S_HG}, 160
        s_add_u32 s{T1}, s{T1}, s{T2}
        s_mov_b32 s{SX+2}, 2621440
        s_mov_b32 s{SX+3}, 0x20000
        s_mov_b32 s{SW+2}, 2457600
        s_mov_b32 s{SW+3}, 0x20000
        """)
        def wrow(g):
            p.raw(f"""
            s_cmp_ge_u32 s{T0}, 10
            s_cselect_b32 s{T2}, 10, 0
            s_sub_u32 s{T0}, s{T0}, s{T2}
            s_mul_i32 s{T2}, s{T0}, {64*3840}
            s_add_u32 s{S_WROW+g}, s{T2}, s{T1}
            s_add_u32 s{T0}, s{T0}, 2
            """)
        wrow(0)
        RH = TMP + 10
        def woff(j):
            b = RH + 5 * j
            p.raw(f"""
            v_add_u32 v{t}, {64*j}, v{V_LANE}
            v_mul_u32_u24 v{b+4}, 6554, v{t}
            v_lshrrev_b32 v{b+4}, 16, v{b+4}
            v_mul_u32_u24 v{t+2}, 10, v{b+4}
            v_sub_u32 v{b+3}, v{t}, v{t+2}
            v_bfe_u32 v{b}, v{b+4}, 2, 2
            v_lshrrev_b32 v{b+1}, 4, v{b+4}
            v_and_b32 v{b+2}, 3, v{b+4}
            v_lshl_add_u32 v{t}, v{b}, 1, v{b+1}
            v_lshl_add_u32 v{t}, v{t}, 2, v{b+2}
            v_mul_u32_u24 v{t}, 3840, v{t}
            v_lshl_add_u32 v{V_WO+j}, v{b+3}, 4, v{t}
            """)
            if 0 < j < 4: p(f"v_subrev_u32 v{V_WO+j}, {1024*j}, v{V_WO+j}")
        if o.get('fakeinit'):
            p.raw(f"""
            s_mul_i32 s94, s{S_HG}, 102400
            s_add_u32 s94, s94, s{S_LW}
            v_lshlrev_b32 v{V_LIN}, 4, v{V_LANE}
            v_mov_b32 v226, v{V_LIN}
            v_add_u32 v227, 51200, v{V_LIN}
            """)
        woff(0); woff(1)
        if o.get('pre0'): p("s_memtime s[92:93]")
        p.raw(f"""
        s_waitcnt lgkmcnt(0)
        s_mov_b32 s{SX}, s{kx}
        s_mov_b32 s{SX+1}, s{kx+1}
        s_mov_b32 s{SW}, s{kw}
        s_mov_b32 s{SW+1}, s{kw+1}
        """)
        if o.get('late0'): p.raw(f"s_and_b32 s60, s2, 7\ns_cmp_lg_u32 s60, 0\ns_cbranch_scc1 L_nd0\ns_sleep {o['late0']}\nL_nd0:")
        if o.get('bdelay'): p.raw(f"s_bitcmp1_b32 s2, 0\ns_cbranch_scc1 L_nd\ns_sleep {o['bdelay']}\nL_nd:")
        self.stamp('p0')
        if o.get('pre0'): p(f"s_sub_u32 s{S_ST+self.nst}, s92, s96"); self.nst += 1
        self.put(self.dma_x(0))
        w0 = self.dma_w(0)
        self.put(w0[0:2]); woff(2); self.put(w0[2]); woff(3); self.put(w0[3]); woff(4); self.put(w0[4])
        self.stamp('p1')
        if o.get('prowait'):
            p.wait(vm=['cpf']); self.stamp('p2')
            p.wait(vm=[('X', 0)]); self.stamp('p3')
            p.wait(vm=[('W', 0)]); self.stamp('p4')
        p("s_bitcmp0_b32 s2, 0"); p("s_cbranch_scc1 L_setupB")
        p(".split")
        p(f"L_setup{self.sfx}:")
        p(f"s_load_dword s{S_NONCE}, s[{kws}:{kws+1}], {br*128}")
        if not A:
            p(f"s_load_dword s{S_UTAG}, s[{kws}:{kws+1}], 0")
            p(f"s_load_dwordx2 s[{K+6}:{K+7}], s[0:1], 24")
        for g in range(1, 5): wrow(g)
        if o.get('bal'):
            nw, nx, where = o['bal']
            L_ = [f"s_add_u32 s{T0}, s{S_HG}, s{S_RB}", f"s_bitcmp1_b32 s{T0}, 0", f"s_cbranch_scc1 L_bal{self.sfx}",
                  f"s_cmp_ge_u32 s{S_W}, 2", f"s_cbranch_scc1 L_balx{self.sfx}",
                  f"s_mul_i32 s{T0}, s{S_W}, {32*3840 - 156}", f"s_sub_u32 s{T0}, s{S_WROW+2}, s{T0}", f"v_mul_u32_u24 v{TMP+104}, 3840, v{V_LANE}",
                  f"s_mov_b32 exec_lo, {hex(((1 << nw) - 1) & 0xffffffff)}", f"s_mov_b32 exec_hi, {hex(((1 << nw) - 1) >> 32)}",
                  f"buffer_load_dword v{V_DUMP}, v{TMP+104}, {srd(SW)}, s{T0} offen offset:1280", f"s_branch L_bal{self.sfx}",
                  f"L_balx{self.sfx}:",
                  f"s_mul_i32 s{T0}, s{S_RB}, {128*1280}", f"s_bfe_u32 s{T1}, s{S_HG}, 0x10002", f"s_lshl_b32 s{T1}, s{T1}, 1", f"s_add_u32 s{T1}, s{T1}, s{S_W}", f"s_sub_u32 s{T1}, s{T1}, 2",
                  f"s_mul_i32 s{T1}, s{T1}, {32*1280}", f"s_add_u32 s{T0}, s{T0}, s{T1}", f"s_lshl_b32 s{T1}, s{T3}, 7", f"s_add_u32 s{T0}, s{T0}, s{T1}", f"v_mul_u32_u24 v{TMP+104}, 1280, v{V_LANE}",
                  f"s_mov_b32 exec_lo, {hex((1 << nx) - 1)}", "s_mov_b32 exec_hi, 0",
                  f"buffer_load_dword v{V_DUMP}, v{TMP+104}, {srd(SX)}, s{T0} offen offset:512",
                  f"L_bal{self.sfx}:", "s_mov_b64 exec, -1"]
            if where == 0: p.untracked(L_)
            else:
                self.put(self.dma_x(1)); p.untracked(L_)
        if not (o.get('bal') and o['bal'][2]): self.q(0, self.dma_x(1))
        p.raw(f"""
        s_mov_b32 s{SWS}, s{kws}
        s_mov_b32 s{SWS+1}, s{kws+1}
        s_mov_b32 s{SWS+2}, {WS_SIZE}
        s_mov_b32 s{SWS+3}, 0x20000
        s_mov_b32 s{SOUT}, s{kout}
        s_mov_b32 s{SOUT+1}, s{kout+1}
        s_mov_b32 s{SOUT+2}, 5242880
        s_mov_b32 s{SOUT+3}, 0x20000
        s_lshl_b32 s{S_HEAD}, s{S_HG}, 2
        s_add_u32 s{S_HEAD}, s{S_HEAD}, s{S_W}
        v_lshlrev_b32 v{V_LIN}, 4, v{V_LANE}
        """)
        if A:
            p.raw(f"""
            s_mov_b32 s{SPHI}, s{kphi}
            s_mov_b32 s{SPHI+1}, s{kphi+1}
            s_mov_b32 s{SPHI+2}, 25600
            s_mov_b32 s{SPHI+3}, 0x20000
            """)
            self.q(0, [[f"s_mul_i32 s{S_WS}, s{S_HEAD}, 800",
                        (f"buffer_load_dwordx4 {vq(TMP+96)}, v{V_LIN}, {srd(SPHI)}, s{S_WS} offen", 'wphi')]])
        self.q(0, self.dma_w(1)); self.q(0, self.dma_x(2))
        G_, I_, R_, C_ = t, t + 1, t + 2, t + 3
        S = []
        def raw(txt):
            for l in txt.split('\n'):
                if l.strip(): S.append((1, l.strip()))
        raw(f"""
        v_lshrrev_b32 v{G_}, 4, v{V_LANE}
        v_and_b32 v{I_}, 15, v{V_LANE}
        v_bfe_u32 v{R_}, v{V_LANE}, 2, 2
        v_and_b32 v{C_}, 3, v{V_LANE}
        v_lshrrev_b32 v{t+4}, 1, v{I_}
        v_xor_b32 v{t+4}, v{t+4}, v{G_}
        v_lshlrev_b32 v{t+5}, 7, v{I_}
        v_lshl_add_u32 v{t+4}, v{t+4}, 4, v{t+5}
        v_add_u32 v{V_XR}, s{S_LR}, v{t+4}
        v_xor_b32 v{t+4}, 64, v{t+4}
        v_add_u32 v{V_XR+1}, s{S_LR}, v{t+4}
        v_lshrrev_b32 v{t+4}, 2, v{V_LANE}
        v_mul_u32_u24 v{t+5}, 160, v{t+4}
        v_mul_u32_u24 v{t+6}, 40, v{C_}
        v_add_u32 v{V_WT}, v{t+5}, v{t+6}
        v_add_u32 v{V_WT+1}, 51200, v{V_WT}
        v_mul_u32_u24 v{t+5}, 120, v{I_}
        v_mul_u32_u24 v{t+6}, 3840, v{G_}
        v_add3_u32 v{V_PW}, v{t+5}, v{t+6}, s{S_LR}
        v_mul_u32_u24 v{t+6}, 40, v{G_}
        v_mul_u32_u24 v{t+7}, 160, v{I_}
        v_lshrrev_b32 v{t+8}, 3, v{I_}
        v_lshl_add_u32 v{t+7}, v{t+8}, 4, v{t+7}
        s_mul_i32 s{T2}, s{S_W}, {OUTW}
        s_add_u32 s{T2}, s{T2}, {OUTL}
        v_add3_u32 v{V_OW}, v{t+7}, v{t+6}, s{T2}
        v_and_b32 v{t+5}, 7, v{t+4}
        v_lshrrev_b32 v{t+6}, 5, v{V_LANE}
        v_lshlrev_b32 v{t+6}, 1, v{t+6}
        v_lshl_add_u32 v{t+5}, v{t+5}, 2, v{t+6}
        v_mul_u32_u24 v{t+5}, 120, v{t+5}
        s_mul_i32 s{T0}, s{S_W}, 3840
        s_add_u32 s{T0}, s{T0}, {RBASE}
        v_add_u32 v{V_KA1}, s{T0}, v{t+5}
        v_lshl_add_u32 v{V_KB}, v{C_}, 3, v{V_KA1}
        s_mov_b32 s{S_L2E}, 0x3fb8aa3b
        s_mov_b32 s{S_NL2E}, 0xbfb8aa3b
        s_mov_b32 s{S_PERM}, 0x07060302
        s_and_b32 s{T3}, s{S_HG}, 1
        """)
        for j in range(5):
            b = RH + 5 * j
            if j < 3: raw(f"""
            v_lshrrev_b32 v{t+5}, 3, v{b+4}
            v_min_u32 v{t+5}, 1, v{t+5}
            v_and_b32 v{t+6}, {63 if j < 2 else 31}, v{V_LANE}
            v_add_lshl_u32 v{t+5}, v{t+5}, v{t+6}, 4
            v_add_u32 v{t+5}, {1024*j}, v{t+5}
            v_add_u32 v{V_ORD+j}, s{T2}, v{t+5}
            v_mul_u32_u24 v{t+5}, 2560, v{b+4}
            v_lshl_add_u32 v{V_OG+j}, v{b+3}, 4, v{t+5}
            """)
            if j == 2: raw(f"""
            v_lshrrev_b32 v{t+5}, 5, v{V_LANE}
            v_lshl_or_b32 v{V_OG+2}, v{t+5}, 30, v{V_OG+2}
            """)
        raw(f"""
        v_mov_b32 v{t+5}, 2304
        v_cmp_gt_u32 vcc, 16, v{V_LANE}
        v_mov_b32 v{t+6}, 1024
        v_cndmask_b32 v{t+5}, v{t+5}, v{t+6}, vcc
        v_add_u32 v{V_OO+1}, v{t+5}, v{V_LIN}
        v_mov_b32 v{V_OO}, v{V_LIN}
        v_add_u32 v{V_OO+2}, 40960, v{V_LIN}
        v_add_u32 v{V_OO+3}, 40960, v{V_OO+1}
        v_lshrrev_b32 v{t+4}, 5, v{V_LANE}
        v_mul_u32_u24 v{t+4}, {40960-512}, v{t+4}
        v_add_u32 v{t+5}, 3328, v{V_LIN}
        v_add_u32 v{V_OO+4}, v{t+4}, v{t+5}
        v_add_u32 v{V_LINH}, 51200, v{V_LIN}
        v_add_u32 v{V_LINX}, {XSLOT}, v{V_LIN}
        v_min_u32 v{V_PF}, 39, v{V_LANE}
        v_lshlrev_b32 v{V_PF}, 3, v{V_PF}
        v_and_b32 v{t+4}, 1, v{RH+4}
        v_mul_u32_u24 v{t+4}, 2560, v{t+4}
        v_lshrrev_b32 v{t+5}, 1, v{RH+4}
        v_mul_u32_u24 v{t+5}, 40960, v{t+5}
        v_lshlrev_b32 v{t+6}, 7, v{RH+3}
        v_add3_u32 v{V_L128}, v{t+4}, v{t+5}, v{t+6}
        """)
        raw(f"""
        s_lshl_b32 s{T0}, s{T3}, 1
        s_xor_b32 s{T0}, s{T0}, s{S_W}
        s_mul_i32 s{T0}, s{T0}, 5120
        s_mul_i32 s{T2}, s{S_HG}, 102400
        s_add_u32 s{T2}, s{T2}, {WS_PK + br*819200}
        s_add_u32 s{T0}, s{T0}, s{T2}
        s_lshr_b32 s{S_SPIN}, s{S_HG}, 1
        s_add_u32 s{T1}, s{S_SPIN}, s{S_W}
        s_and_b32 s{T1}, s{T1}, 3
        s_add_u32 s{T1}, s{T1}, 16
        s_mul_i32 s{T1}, s{T1}, 5120
        s_add_u32 s{S_WOROW+4}, s{T1}, s{T2}
        s_lshr_b32 s{S_PFL}, s{S_HG}, 2
        s_lshl_b32 s{S_PFL}, s{S_PFL}, 9
        s_add_u32 s{S_PFL}, s{S_PFL}, {WS_PF + br*1024}
        s_mul_i32 s{T2}, s{S_HG}, 160
        s_lshl_b32 s{S_OUT}, s{S_XBASE}, 1
        s_add_u32 s{S_OUT}, s{S_OUT}, s{T2}
        s_add_u32 s{S_OUT}, s{S_OUT}, {br*1280}
        s_lshl_b32 s{S_OB}, s{S_XBASE}, 1
        s_add_u32 s{S_OB}, s{S_OB}, {br*1280}
        """)
        for g in range(4):
            raw(f"""
            s_add_u32 s{T1}, s{S_SPIN}, {g}
            s_and_b32 s{T1}, s{T1}, 3
            s_mul_i32 s{T2}, s{T1}, 20480
            s_add_u32 s{S_WOROW+g}, s{T2}, s{T0}
            s_lshl_b32 s{T1}, s{T1}, 1
            s_add_u32 s{T1}, s{T1}, s{T3}
            s_mul_i32 s{T2}, s{T1}, 5120
            s_add_u32 s{S_OP+2*g}, s{T2}, s{S_OB}
            s_xor_b32 s{T1}, s{T1}, 1
            s_mul_i32 s{T2}, s{T1}, 5120
            s_add_u32 s{S_OP+2*g+1}, s{T2}, s{S_OB}
            """)
        SH = 8 if A else 7
        raw(f"""
        s_lshl_b32 s{T0}, s{S_RB}, 2
        s_add_u32 s{T0}, s{T0}, s{S_W}
        s_lshl_b32 s{S_FLAG}, s{T0}, 7
        s_add_u32 s{S_FLAG}, s{S_FLAG}, {WS_FLAG + br*64*128}
        s_lshl_b32 s{T0}, s{S_HEAD}, 16
        s_add_u32 s{T0}, s{T0}, {WS_P1 + br*32*65536}
        s_lshl_b32 s{T1}, s{S_RB}, 12
        s_add_u32 s{S_P1ST}, s{T0}, s{T1}
        s_min_u32 s{T1}, s{S_RB}, 14
        s_lshl_b32 s{T1}, s{T1}, {SH}
        s_add_u32 s{S_P1LD}, s{T0}, s{T1}
        s_lshl_b32 s{T0}, s{S_HEAD}, 12
        s_add_u32 s{S_P2LD}, s{T0}, {WS_P2 + br*32*4096}
        s_add_u32 s{S_P2ST}, s{S_P2LD}, s{T1}
        s_lshr_b32 s{T1}, s{S_RB}, {4 - o.get('p2log', 2)}
        s_lshl_b32 s{T1}, s{T1}, 18
        s_add_u32 s{S_P2LD}, s{S_P2LD}, s{T1}
        v_mul_u32_u24 v{t+4}, {F if A else 16}, v{G_}
        v_add_lshl_u32 v{V_P1ST}, v{t+4}, v{I_}, 4
        v_mul_u32_u24 v{t+4}, {F if A else 4}, v{G_}
        v_add_lshl_u32 v{t+5}, v{t+4}, v{I_}, 4
        v_lshrrev_b32 v{t+4}, {3 if A else 2}, v{I_}
        v_lshl_or_b32 v{V_P1M}, v{t+4}, 28, v{t+5}
        v_lshrrev_b32 v{t+4}, 1, v{G_}
        v_lshl_or_b32 v{V_P1M+1}, v{t+4}, 30, v{V_P1ST}
        v_lshl_or_b32 v{V_P1M+2}, v{t+4}, 30, v{V_P1M}
        v_cmp_gt_u32 vcc, 4, v{I_}
        v_cndmask_b32 v{V_KEEP}, 0, -1, vcc
        v_mov_b32 v{t+4}, 0x3f803f80
        v_cmp_eq_u32 vcc, 4, v{I_}
        v_cndmask_b32 v{V_ONE}, 0, v{t+4}, vcc
        v_and_b32 v{t+4}, 7, v{V_LANE}
        v_lshlrev_b32 v{V_F8}, 2, v{t+4}
        s_lshl_b32 s{T0}, s{S_HG}, 2
        v_min_u32 v{V_FOWN}, 1, v{V_LANE}
        v_lshlrev_b32 v{V_FOWN}, 30, v{V_FOWN}
        v_or_b32 v{V_FOWN}, s{T0}, v{V_FOWN}
        v_lshlrev_b32 v{V_ZA}, 3, v0
        v_add_u32 v{V_ZA}, {RBASE+7680}, v{V_ZA}
        """)
        if A:
            raw(f"""
            v_lshlrev_b32 v{t+5}, 12, v{G_}
            v_lshl_add_u32 v{V_P1LD}, v{I_}, 4, v{t+5}
            v_lshlrev_b32 v{V_P2ST}, 2, v{V_LANE}
            """)
        else:
            raw(f"""
            v_lshrrev_b32 v{t+5}, 3, v{V_LANE}
            v_lshlrev_b32 v{t+5}, 12, v{t+5}
            v_lshl_add_u32 v{V_P1LD}, v{t+4}, 4, v{t+5}
            v_lshl_add_u32 v{V_P2ST}, v{G_}, 5, v{V_F8}
            """)
        RS = 80 if A else 48
        HS = 24 * RS
        NQ = 240 if A else 120
        NI = 4 if A else 2
        raw(f"s_mul_i32 s{T0}, s{S_W}, {HS}\ns_add_u32 s{T0}, s{T0}, {RBASE}")
        u = t + 4
        for ii in range(NI):
            raw(f"v_add_u32 v{u}, {64*ii}, v{V_LANE}")
            if ii == NI - 1:
                raw(f"""v_subrev_u32 v{u+1}, 64, v{u}
                v_cmp_gt_u32 vcc, {NQ}, v{u}
                v_cndmask_b32 v{u}, v{u+1}, v{u}, vcc
                v_lshlrev_b32 v{V_GAL}, 4, v{u}""")
            if A:
                raw(f"""
                v_lshrrev_b32 v{u+1}, 4, v{u}
                v_and_b32 v{u+2}, 3, v{u}
                v_lshl_add_u32 v{u+1}, v{u+1}, 2, v{u+2}
                v_bfe_u32 v{u+2}, v{u}, 2, 2
                v_mul_u32_u24 v{u+3}, 6554, v{u+1}
                v_lshrrev_b32 v{u+3}, 16, v{u+3}
                v_mul_u32_u24 v{u+4}, 10, v{u+3}
                """)
            else:
                raw(f"""
                v_lshrrev_b32 v{u+1}, 3, v{u}
                v_and_b32 v{u+2}, 1, v{u}
                v_lshl_add_u32 v{u+1}, v{u+1}, 1, v{u+2}
                v_bfe_u32 v{u+2}, v{u}, 1, 2
                v_cmp_gt_u32 vcc, 24, v{u+1}
                v_lshrrev_b32 v{u+3}, 2, v{u+1}
                v_subrev_u32 v{u+4}, 24, v{u+1}
                v_cndmask_b32 v{u+3}, v{u+4}, v{u+3}, vcc
                v_and_b32 v{u+1}, 3, v{u+1}
                v_cndmask_b32 v{u+1}, 4, v{u+1}, vcc
                v_mov_b32 v{u+4}, 0
                """)
            raw(f"""
            v_sub_u32 v{u+1}, v{u+1}, v{u+4}
            v_lshl_add_u32 v{u+3}, v{u+3}, 2, v{u+2}
            v_mul_u32_u24 v{u+3}, {RS}, v{u+3}
            v_lshl_add_u32 v{u+3}, v{u+1}, 3, v{u+3}
            v_add_u32 v{V_LA+ii}, s{T0}, v{u+3}
            """)
        raw(f"""
        v_cmp_eq_u32 vcc, v{G_}, v{R_}
        v_mul_u32_u24 v{u}, {HS}, v{G_}
        v_mul_u32_u24 v{u+1}, {RS}, v{C_}
        v_add_u32 v{u}, v{u}, v{u+1}
        v_add_u32 v{u}, {RBASE}, v{u}
        v_mov_b32 v{u+1}, {RBASE+7680+o.get('zoff', 64)}
        v_cndmask_b32 v{V_FR2}, v{u+1}, v{u}, vcc
        """)
        if A:
            raw(f"""
            v_mov_b32 v{t+36}, 0
            v_mov_b32 v{t+37}, 0
            v_mov_b32 v{t+38}, 0
            v_mov_b32 v{t+39}, 0
            v_add_u32 v{TMP+100}, s{S_LR}, v{V_LIN}
            ds_write_b128 v{TMP+100}, {vq(t+36)} offset:13312
            v_mul_u32_u24 v{t+4}, {RW}, v{G_}
            v_mul_u32_u24 v{t+5}, 40, v{R_}
            v_add_u32 v{t+4}, v{t+4}, v{t+5}
            v_add_u32 v{t+4}, {RBASE+12288}, v{t+4}
            s_add_u32 s{T0}, s{S_LR}, 13312
            v_mov_b32 v{t+5}, s{T0}
            v_cmp_eq_u32 vcc, v{C_}, v{G_}
            v_cndmask_b32 v{V_FR}, v{t+5}, v{t+4}, vcc
            """)
            for tt in range(5):
                a = A_PHI + (tt * 3 + 2) * 4
                raw(f"v_accvgpr_write_b32 a{a+2}, 0\nv_accvgpr_write_b32 a{a+3}, 0")
        US, UA, UD = TMP + 40, TMP + 45, TMP + 80
        nA = o.get('nA', 0); prod = (not A) or nA > 0
        S_UOK = 92
        if prod:
            if o.get('umap', 1) == 0: umap = f"""s_add_u32 s{T1}, s{S_HG}, s{S_RB}
            s_and_b32 s{T1}, s{T1}, 1
            s_lshl_b32 s{T0}, s{S_W}, 1
            s_add_u32 s{T0}, s{T0}, s{T1}
            s_lshl_b32 s{T0}, s{T0}, 3
            s_add_u32 s{T0}, s{T0}, s{S_HG}
            s_lshl_b32 s{T0}, s{T0}, 3
            s_lshr_b32 s{T1}, s{S_RB}, 1
            s_add_u32 s{T0}, s{T0}, s{T1}
            s_add_u32 s{T0}, s{T0}, {0 if A else nA}
            s_cmp_lt_u32 s{T0}, {nA if A else 320}
            s_cselect_b32 s{S_UOK}, 1, 0"""
            elif o.get('umap', 1) == 1:
                umap = f"""s_lshr_b32 s{T1}, s{S_RB}, 2
                s_mul_i32 s{T0}, s{T1}, 3
                s_add_u32 s{T0}, s{T0}, s{S_W}
                s_sub_u32 s{T0}, s{T0}, 2
                s_cmp_eq_u32 s{T1}, 0
                s_cselect_b32 s{T0}, 0, s{T0}
                s_cselect_b32 s{T1}, 1, 3
                s_cmp_lt_u32 s{S_W}, s{T1}
                s_cselect_b32 s{S_UOK}, 1, 0
                s_lshl_b32 s{T0}, s{T0}, 5
                s_lshr_b32 s{T1}, s2, 3
                s_add_u32 s{T0}, s{T0}, s{T1}"""
            else:
                umap = f"""s_lshr_b32 s{T1}, s{S_RB}, 2
                s_sub_u32 s{T1}, s{T1}, 1
                s_add_u32 s{T2}, s{S_HG}, s{S_RB}
                s_and_b32 s{T2}, s{T2}, 1
                s_lshl_b32 s{T0}, s{S_W}, 1
                s_add_u32 s{T0}, s{T0}, s{T2}
                s_lshl_b32 s{T0}, s{T0}, 4
                s_lshr_b32 s{T2}, s2, 4
                s_add_u32 s{T0}, s{T0}, s{T2}
                s_mul_i32 s{T0}, s{T0}, 3
                s_add_u32 s{T0}, s{T0}, s{T1}
                s_cmp_lt_u32 s{T0}, 320
                s_cselect_b32 s{S_UOK}, 1, 0
                s_cmp_lt_u32 s{S_RB}, 4
                s_cselect_b32 s{S_UOK}, 0, s{S_UOK}"""
            iS0 = len(S)
            S.append((1, [x.strip() for x in f"""
            {umap}
            s_waitcnt lgkmcnt(0)
            s_cmp_lt_u32 s{T0}, 160
            s_cselect_b32 s{SWO}, s{K+6}, s{kwo}
            s_cselect_b32 s{SWO+1}, s{K+7}, s{kwo+1}
            s_cselect_b32 s{S_UTAG}, s{S_NONCE if A else S_UTAG}, s{S_NONCE}
            s_cselect_b32 s{T1}, 0, 160
            s_cselect_b32 s{S_UDST}, 0, 819200
            s_cselect_b32 s{S_UFL}, 0, 1024
            s_mov_b32 s{SWO+2}, 819200
            s_mov_b32 s{SWO+3}, 0x20000
            s_add_u32 s{S_UTAG}, s{S_UTAG}, 0x9e3779b1
            s_sub_u32 s{T0}, s{T0}, s{T1}
            s_and_b32 s{T1}, s{T0}, 1
            s_mul_i32 s{S_USRC}, s{T1}, 640
            s_mul_i32 s{T2}, s{T1}, 409600
            s_add_u32 s{S_UDST}, s{S_UDST}, s{T2}
            s_lshl_b32 s{T2}, s{T1}, 9
            s_add_u32 s{S_UFL}, s{S_UFL}, s{T2}
            s_lshr_b32 s{T1}, s{T0}, 1
            s_lshl_b32 s{T2}, s{T1}, 2
            s_add_u32 s{S_UFL}, s{S_UFL}, s{T2}
            s_add_u32 s{S_UFL}, s{S_UFL}, {WS_PF}
            s_and_b32 s{T1}, s{T1}, 3
            s_mul_i32 s{T2}, s{T1}, {20*1280}
            s_add_u32 s{S_USRC}, s{S_USRC}, s{T2}
            s_lshl_b32 s{T2}, s{T1}, 8
            s_add_u32 s{S_UDST}, s{S_UDST}, s{T2}
            s_lshr_b32 s{T1}, s{T0}, 3
            s_mul_i32 s{T2}, s{T1}, 5120
            s_add_u32 s{S_UDST}, s{S_UDST}, s{T2}
            s_add_u32 s{S_UDST}, s{S_UDST}, {WS_PK}
            s_lshr_b32 s{T2}, s{T1}, 1
            s_mul_i32 s{T2}, s{T2}, 80
            s_and_b32 s{T3}, s{T1}, 1
            s_lshl_b32 s{T3}, s{T3}, 3
            s_add_u32 s{T2}, s{T2}, s{T3}
            s_mul_i32 s{T3}, s{T1}, 160
            s_sub_u32 s{T3}, s{T3}, {16*160 - 16}
            s_cmp_ge_u32 s{T1}, 16
            s_cselect_b32 s{T2}, s{T3}, s{T2}
            s_cselect_b32 s{T3}, 1, 0
            s_mul_i32 s{T2}, s{T2}, 1280
            s_add_u32 s{S_USRC}, s{S_USRC}, s{T2}
            s_mul_i32 s{T1}, s{T3}, {76*1280}
            s_add_u32 s{T2}, s{S_LW}, {RING + 4*SLOT}
            """.split('\n') if x.strip()]))
            for j in range(5):
                raw(f"""
                v_lshrrev_b32 v{t+4}, 2, v{RH+5*j+4}
                v_mul_u32_u24 v{t+5}, 640, v{t+4}
                v_lshrrev_b32 v{t+4}, 2, v{t+4}
                v_mul_u32_u24 v{t+4}, s{T1}, v{t+4}
                v_add3_u32 v{US+j}, v{t+4}, v{t+5}, v{V_LIN}
                """)
            raw(f"v_add_u32 v{US+4}, 4096, v{US+4}")
            iS1 = len(S)
            raw(f"""
            v_mul_u32_u24 v{t+7}, 640, v{R_}
            v_mul_u32_u24 v{t+8}, 40, v{C_}
            v_add3_u32 v{t+7}, v{t+7}, v{t+8}, s{T2}
            """)
            for j in range(5):
                raw(f"""
                v_add_u32 v{t+4}, {4*j}, v{G_}
                v_mul_u32_u24 v{t+5}, 13108, v{t+4}
                v_lshrrev_b32 v{t+5}, 16, v{t+5}
                v_mul_u32_u24 v{t+6}, 120, v{t+5}
                v_lshl_add_u32 v{t+6}, v{t+4}, 3, v{t+6}
                v_add_u32 v{t+6}, v{t+6}, v{t+7}
                v_and_b32 v{t+8}, s{T3}, v{t+5}
                v_mul_u32_u24 v{t+8}, 2560, v{t+8}
                v_add_u32 v{UA+2*j}, v{t+6}, v{t+8}
                v_sub_u32 v{t+6}, v{t+6}, v{t+8}
                v_add_u32 v{UA+2*j+1}, 2560, v{t+6}
                v_mul_u32_u24 v{t+5}, {102400 - 5120}, v{t+5}
                v_lshl_add_u32 v{t+5}, v{t+4}, 10, v{t+5}
                v_lshl_add_u32 v{UD+j}, v{I_}, 4, v{t+5}
                """)
            mark = {}
            def cond(name, lines):
                p.untracked([f"s_cmp_eq_u32 s{S_UOK}, 0", f"s_cbranch_scc1 {name}{self.sfx}"] + lines + [f"{name}{self.sfx}:"])
                mark[name] = p.nvm
            L = [f"s_add_u32 m0, s{S_LW}, {RING + 4*SLOT}"]
            for j in range(5):
                off = f"offset:{j*1024} " if 0 < j < 4 else ""
                L.append(f"buffer_load_dwordx4 v{US+j}, {srd(SWO)}, s{S_USRC} offen {off}lds")
                if j == 3: L.append(f"s_add_u32 m0, s{S_LW}, {RING + 4*SLOT + 4096}")
            un = [[lambda L=L: cond("L_u1", L)]]
            if o.get('uissue', 0) == 0: self.q(10**6 + 77, un)
            if o.get('uissue', 0) == -1: S = S[:4] + S[iS0:iS1] + [(0, un[0])] + S[iS1:] + S[4:iS0]
        self.run(S, every=o.get('proev', 60))
        self.stamp('p5')
        if o.get('uissue', 0) == 0: self.release(77)
        def urd():
            assert not any(x.tag == ('W', 4) for x in p.ins)
            cond("L_u2r", [f"s_waitcnt vmcnt({p.nvm - mark['L_u1']}) lgkmcnt(0)"] +
                [f"ds_read_b64_tr_b16 {vq(TMP+60+2*k, 2)}, v{UA+k}" for k in range(10)] + ["s_waitcnt lgkmcnt(0)"])
        def ust(j): cond("L_u2" + "abcd "[j].strip(), [f"buffer_store_dwordx4 {vq(TMP+60+4*j)}, v{UD+j}, {srd(SWS)}, s{S_UDST} offen sc1"])
        if o.get('hops', 1):
            p("s_mov_b64 exec, 0")
            for w_ in range(3): p(f"s_cmp_eq_u32 s{S_W}, {w_}"); p(f"s_cbranch_scc1 L_hop{w_}{self.sfx}")
            p(f"s_branch L_hop3{self.sfx}")
            p(f"L_hopret{self.sfx}:")
            p("s_mov_b64 exec, -1")
        if prod and o.get('upos', (0,))[0] < 0:
            while len(self.dq) > -o['upos'][0] - 1 and self.tick(): pass
            urd()
            for j in range(5): ust(j)
        while len(self.dq) > o.get('prokeep', 0) and self.tick(): pass
        p.raw(f"""
        s_getreg_b32 s{T0}, hwreg(HW_REG_XCC_ID, 0, 4)
        s_waitcnt lgkmcnt(0)
        s_add_u32 s{S_NONCE}, s{S_NONCE}, 0x9e3779b1
        s_lshl_b32 s{T0}, s{T0}, 28
        s_xor_b32 s{S_XCCV}, s{T0}, s{S_NONCE}
        v_mov_b32 v{V_NONCE}, s{S_NONCE}
        v_and_b32 v{V_VW}, 1, v{V_LANE}
        v_lshlrev_b32 v{V_VW}, 4, v{V_VW}
        v_lshrrev_b32 v{V_VW}, v{V_VW}, v{V_NONCE}
        v_mov_b32 v{V_KA0}, s{S_XCCV}
        s_add_u32 s{S_XA}, s{S_FLAG}, {WS_XCC - WS_FLAG}
        """)
        xst = [(f"buffer_store_dword v{V_KA0}, v{V_FOWN}, {srd(SWS)}, s{S_XA} offen sc1", 'xcc')]
        x1, x2, x3 = o.get('xpos', (-1, 58, 88))
        if x1 < 0: self.put(xst)
        self.stamp()
        p(f"s_branch L_main{self.sfx}")
        p(".p2align 12")
        p(f"L_main{self.sfx}:")
        xb = lambda ks, rt: aq((ks * 2 + rt) * 4)
        xbp = lambda ps: (lambda ks, rt: xb(4 * (4 - ks // 4) + ks % 4, rt)) if ps in o.get('rev', [1, 2]) else xb
        for pu in range(0, 7):
            if (pu + 3) % 2 == 0: self.q(0, self.dma_w((pu + 3) // 2))
            self.q(10 * pu, self.dma_x(pu + 3))
            if prod and o.get('uissue', 0) == pu + 1: self.q(0, un)
        for G in range(5, 10): self.q(10**6 + 1 if G % 5 >= 3 else 20 * (G - 3) - 4, self.dma_w(G))
        for G in range(10, 13): self.q(20 * (G - 3) - 3, self.dma_w(G))
        for G in range(13, 20): self.q(10**6 + G, self.dma_w(G))
        hooks = {}
        for pu in range(1, 10):
            hooks[10 * pu - 5] = [lambda pu=pu: self.xread(pu, 0), lambda pu=pu: self.xread(pu, 1)]
            hooks[10 * pu - 4] = [lambda pu=pu: self.xread(pu, 2), lambda pu=pu: self.xread(pu, 3)]
        if A:
            rd = [(tt, u_, hf) for tt in range(5) for u_ in range(3) for hf in range(2 if u_ < 2 else 1)]
            w = TMP + 96; u2 = TMP + 102
            sc = [lambda: p.wait(vm=['wphi'])]
            for j in range(4):
                sc += [f"v_lshlrev_b32 v{u2}, 16, v{w+j}", f"v_and_b32 v{u2+1}, 0xffff0000, v{w+j}", f"v_mul_f32 v{u2}, s{S_L2E}, v{u2}",
                       f"v_mul_f32 v{u2+1}, s{S_L2E}, v{u2+1}", f"v_cvt_pk_bf16_f32 v{w+j}, v{u2}, v{u2+1}"]
            hooks[8] = sc + [(f"ds_write_b128 v{TMP+100}, {vq(w)} offset:12288", 'phw')]
            hooks[14] = [lambda: p.wait(lg=['phw'])]
            slots = [n for n in range(21, 90) if n % 10 in (0, 1, 2, 3)][:25]
            for k, n in enumerate(slots):
                hooks[n] = [(f"ds_read_b64_tr_b16 a[{A_PHI + (tt*3+u_)*4 + 2*hf}:{A_PHI + (tt*3+u_)*4 + 2*hf + 1}], v{V_FR} offset:{(8*u_+4*hf)*40 + 8*tt}", 'phi')
                            for tt, u_, hf in rd[k:k+1]]
        late3 = {}
        if prod:
            UR = TMP + 60
            u1, u2_, u3 = o.get('upos', (18, 18, 62))
            if u1 >= 0: hooks.setdefault(u1, []).append(urd)
            for j in range(5):
                uj = u2_ + o.get('ustep', 0) * j
                if uj >= 0: (hooks if uj < 100 else late3).setdefault(uj % 100, []).append(lambda j=j: ust(j))
            (hooks if u3 < 100 else late3).setdefault(u3 % 100, []).append(lambda: cond("L_u3", [f"s_waitcnt vmcnt({p.nvm - mark['L_u2']})", f"v_mov_b32 v{V_DUMP}, s{S_UTAG}", "s_mov_b64 exec, 1",
                         f"buffer_store_dword v{V_DUMP}, v{V_LIN}, {srd(SWS)}, s{S_UFL} offen sc1", "s_mov_b64 exec, -1"]))
        KBV = [V_KB, 17, 18, 19]; KAV = [V_KA1, 20, 21, 22]
        if o.get('kvown', 0):
            for kk in (1, 2, 3, 0):
                hooks.setdefault(89 + 2 * ((kk + 3) % 4), []).extend([f"s_add_u32 s{T2}, s{S_W}, {kk}", f"s_and_b32 s{T2}, s{T2}, 3", f"s_mul_i32 s{T2}, s{T2}, {RW}"])
                hooks.setdefault(90 + 2 * ((kk + 3) % 4), []).extend([f"v_add_u32 v{KBV[kk]}, s{T2}, v{V_KB}", f"v_add_u32 v{KAV[kk]}, s{T2}, v{V_KA1}"])
        XV = TMP + 92
        iss, chk = self.checked("L_xc", [f"buffer_load_dword v{XV}, v{V_F8}, {srd(SWS)}, s{S_XA} offen sc1"],
                                [f"v_xor_b32 v{XV+1}, s{S_NONCE}, v{XV}", f"v_lshlrev_b32 v{XV+1}, 4, v{XV+1}", f"v_cmp_ne_u32 vcc, 0, v{XV+1}"], 'xl')
        xv, xq = {}, {}
        def xh(pos, L): [hooks, xv, xq][pos // 100].setdefault(pos % 100, []).extend(L)
        if x1 >= 0: xh(x1, xst)
        xh(x2, iss)
        c_ = [x for _, x in chk]
        xh(x3, c_[:3]); xh(x3 + 1, c_[3:4]); xh(x3 + 2, c_[4:] + [f"v_cmp_ne_u32 vcc, s{S_XCCV}, v{XV}"])
        xh(x3 + 3, [f"s_mov_b32 s{S_FAST}, {1 if o.get('nofast') else 'vcc_lo'}", f"s_add_u32 s{T0}, s{SWS}, {WS_O}", f"s_addc_u32 s{T1}, s{SWS+1}, 0"])
        xh(x3 + 4, [f"s_cmp_eq_u32 s{S_FAST}, 0", f"s_cselect_b32 s{SO}, s{SOUT}, s{T0}", f"s_cselect_b32 s{SO+1}, s{SOUT+1}, s{T1}"])
        xh(x3 + 5, [f"s_mov_b32 s{SO+2}, 5242880", f"s_mov_b32 s{SO+3}, 0x20000"])
        self.group_sync(0)
        for k in range(4): self.xread(0, k)
        self.prime(0, sync=False)
        kp = o.get('kpace', 3)
        k1p = {0: lambda n: 1 if n % 3 != 2 else 0, 1: lambda n: 1, 2: lambda n: 2 if n % 10 < 2 else (1 if n % 10 < 5 else 0), 3: lambda n: 1 if n % 4 != 3 else 0}[o.get('k1', 0)]
        E0, E1, M0_, M1_ = TMP, TMP + 40, TMP + 80, TMP + 86
        x0, x1 = acc(ACC_K, 0, 0), acc(ACC_K, 0, 1)
        def early(ps, P0, P1):
            tm = o.get('tm', (0, 0, 0))[ps]
            L = [(80, c, x) for c, x in P0['zero'] + P1['zero']]
            for t_ in range(5):
                r = 100 - 5 * tm + tm * (t_ + 1) + 1 if tm else 95 + t_ + 2
                L += [(r, c, x) for c, x in P0['cvt'][2*t_:2*t_+2] + P1['cvt'][2*t_:2*t_+2]]
            return deque(L)
        def split(late, P0):
            c0 = {x for _, x in P0['cvt'] + P0['zero']}
            return [(c, x) for _, c, x in late if x in c0], [(c, x) for _, c, x in late if x not in c0]
        lateK = None
        if A:
            P0 = self.phiA_parts(x0, E0, M0_, "L_k0", False); P1 = self.phiA_parts(x1, E1, M1_, "L_k1", False)
            lateK = early(0, P0, P1)
        self.gemm_pass(0, ACC_K, xb, hooks=hooks, last=True, late=lateK, pace=lambda n: k1p(n) if n < o.get('ksw', 69) else (1 if n % kp == 0 else 0))
        self.stamp()
        E0, E1, M0_, M1_ = TMP, TMP + 40, TMP + 80, TMP + 86
        x0, x1 = acc(ACC_K, 0, 0), acc(ACC_K, 0, 1)
        tagset = [f"s_bfe_u32 s{S_TB+j}, s{S_NONCE}, {hex(0x80000 + 8*j)}" for j in range(4)] + [f"s_lshr_b32 s{S_NHI}, s{S_NONCE}, 16"]
        if o.get('amp'):
            p.raw(f"""
            s_load_dwordx2 s[88:89], s[0:1], 64
            s_not_b32 s{T0}, s98
            v_mov_b32 v{TMP+94}, 0
            v_mov_b32 v{TMP+95}, s{T0}
            s_lshr_b32 s{T0}, s2, 3
            s_or_b32 s{T0}, s{T0}, s{S_W}
            s_cmp_eq_u32 s{T0}, 0
            s_cselect_b32 s{T0}, 0, 64
            v_mov_b32 v{TMP+94}, s{T0}
            s_waitcnt lgkmcnt(0)
            s_cbranch_scc0 L_noat{self.sfx}
            s_mov_b64 exec, 1
            """)
            p.ins.append(__import__('emit').Ins(f"global_atomic_umax v{TMP+94}, v{TMP+95}, s[88:89] sc1"))
            p("s_mov_b64 exec, -1")
            p(f"L_noat{self.sfx}:")
        wr = lambda rt, x, n, o8: [(2, (f"ds_write_b64 v{V_PW}, {vq(x+2*j, 2)} offset:{rt*1920 + o8 + 8*j}", 'pw')) for j in range(n)]
        def mixw(out, w): return [y for j in range(len(w)) for y in out[2*j:2*j+2] + [w[j]]]
        burst = lambda L: [(0, [x for _, x in L])]
        dm = (2, lambda: self.tick())
        if A:
            r0, r1 = split(lateK, P0)
            def headA(P0, P1, r0, r1, extra0, extra1):
                L = list(r0); side = deque(r1); ne = 0; ex0 = dict(extra0); ex1 = dict(extra1)
                for k_, mfx in enumerate(P0['mf'] + P1['mf']):
                    if k_ == 15: L += list(side); side.clear()
                    L.append(mfx)
                    ex = ex0.get(k_) if k_ < 15 else ex1.get(k_ - 15)
                    if ex: L += ex
                    elif side:
                        for _ in range(2):
                            if side: L.append(side.popleft())
                    elif k_ >= 15 * (ne // 20) + 3 * ((ne % 20) // 4) + 2 + 3: L.append((P0['exp'] + P1['exp'])[ne]); ne += 1
                return L, ne
            pr = [(0, lambda: (self.group_sync(5), self.release(1)))]
            pr = pr + [(1, lambda n=n, hf=hf: self.wread(100 + n, hf)) for n in range(self.D(1) - 1) for hf in range(2)]
            hx = o.get('hx', 30)
            L_, ne = headA(P0, P1, r0, r1, {0: [dm], 14: [dm]}, {7: [dm]})
            self.put([x for _, x in [dm] + L_])
            n1_ = max(0, ne - 20); hr = o.get('hr', 10)
            if hr == 10:
                self.run(P0['exp'][ne:] + P0['hp'] + P0['rcp'] + P0['norm'][:-10], every=hx)
                self.put([x for _, x in pr + P0['norm'][-10:]])
            else:
                self.run(P0['exp'][ne:], every=hx)
                self.put([x for _, x in pr + P0['hp'] + P0['rcp'][:hr]])
            def tailf(P, rt, x, e, m, sc, head_done):
                nb = P['norm'][:len(P['norm']) - sc]
                L = [] if head_done else burst(nb)
                w_ = wr(rt, x, 10, 0)
                for j in range(10):
                    for i in (2 * j, 2 * j + 1):
                        if 10 - sc <= i < 10: L += [(1, f"v_mul_f32 v{e+2*i+h}, v{e+2*i+h}, v{m+4}") for h in range(2)]
                    L += P['out'][2*j:2*j+2] + [w_[j]]
                return L
            sc0, sc1 = o.get('scal', (0, 0))
            fill = P0['rcp'][hr:] + tailf(P0, 0, x0, E0, M0_, 0 if hr == 10 else sc0, hr == 10) + P1['exp'][n1_:] + burst(P1['hp']) + P1['rcp'] + tailf(P1, 1, x1, E1, M1_, sc1, False)
            self.stamp('head')
        else:
            fill = []
            for rt, x, e in ((0, x0, E0), (1, x1, E1)):
                L = self.phiB(x, e, False)
                fill += L[:-10] + mixw(L[-10:], wr(rt, x, 5, 0))
            self.group_sync(5); self.release(1); self.prime(1, sync=False)
        hooks = {}
        hooks.update(late3)
        PFV = TMP + 94
        ipf, cpf_ = self.checked("L_pf", [f"buffer_load_dwordx2 {vq(PFV, 2)}, v{V_PF}, {srd(SWS)}, s{S_PFL} offen sc1"],
                                 [f"v_xor_b32 v{PFV}, s{S_NONCE}, v{PFV}", f"v_bitop3_b32 v{PFV}, v{PFV}, v{PFV+1}, s{S_NONCE} bitop3:0xf6", f"v_cmp_ne_u32 vcc, 0, v{PFV}"], 'pf')
        pfp = o.get('pfpos', 81)
        if pfp < 100: hooks.setdefault(pfp, []).extend(ipf)
        pre = ["s_mov_b32 exec_hi, 0xff", (f"buffer_load_dword v{V_DUMP}, v{V_L128}, {srd(SO)}, s{S_OP} offen sc1", 'pr'), "s_mov_b64 exec, 1",
               (f"buffer_load_dword v{V_DUMP}, v{V_F8}, {srd(SWS)}, s{S_FLAG} offen sc1", 'pr'), "s_mov_b64 exec, -1"]
        pre1 = []
        if o.get('pre1m') is not None:
            pre1 = ["s_mov_b32 exec_lo, 0xfff00000", "s_mov_b32 exec_hi, 0xff", pre[1], "s_mov_b64 exec, -1"]
            pre = ["s_mov_b64 exec, 0xfffff"] + pre[1:]
        prel = []
        if o.get('prem'):
            n_ = len(o['prem']); o['prepos'] = 2
            for k_, ps_ in enumerate(o['prem']):
                lo_, hi_ = 40 * k_ // n_, 40 * (k_ + 1) // n_
                mk = ((1 << hi_) - 1) ^ ((1 << lo_) - 1)
                L_ = [f"s_mov_b32 exec_lo, {hex(mk & 0xffffffff)}", f"s_mov_b32 exec_hi, {hex(mk >> 32)}", pre[1]] + (pre[2:4] if k_ == 0 else []) + ["s_mov_b64 exec, -1"]
                assert ps_ <= 0 or ps_ > x3 + 5
                if ps_ >= 200: xq.setdefault(ps_ - 200, []).extend(L_)
                elif ps_ >= 100: xv.setdefault(ps_ - 100, []).extend(L_)
                else: prel.append((ps_, L_))
        wp, pp_ = o.get('wopf', -1), o.get('prepos', 0)
        if 100 <= pp_ < 200: hooks.setdefault(pp_ - 100, []).extend(pre)
        vs = o.get('vsync', 0)
        if o.get('v13'): hooks.setdefault(78, []).extend(["s_barrier", lambda: self.release(13)])
        for k_, v_ in xv.items(): hooks.setdefault(k_, []).extend(v_)
        for k_, v_ in enumerate(tagset): hooks.setdefault(41 + k_, []).insert(0, v_)
        vp = o.get('vpace', 4)
        vset = set(range(0, 100, vp))
        if o.get('vsch'):
            vset = set(); n_ = 0
            for cnt_, st_ in o['vsch']:
                for _ in range(cnt_): vset.add(n_); n_ += st_
        VB = TMP
        tmv = o.get('tm', (0, 0, 0))[1]
        lateV = deque()
        for j in range(5):
            for rt in range(2):
                c = self.cvt20(acc(ACC_V, 0, rt), VB + 10 * rt)
                r = 100 - 5 * tmv + tmv * (j + 1) + 1 if tmv else 200
                lateV.extend([(r, 1, c[2*j][1]), (r, 1, c[2*j+1][1]), (r, 2, (f"ds_write_b64 v{V_PW}, {vq(VB+10*rt+2*j, 2)} offset:{rt*1920 + 80 + 8*j}", 'vw'))])
        self.gemm_pass(1, ACC_V, xbp(1), fill=fill, hooks=hooks, last=True, sync=True, late=lateV, frange=(0, o.get('vend', 100)), pace=lambda n: 1 if n in vset else 0)
        self.stamp()
        for k_, (_, _, x) in enumerate(lateV):
            self.put([x])
            if k_ == 14: self.tick()
        NT = 3 if A else 2
        FB = ACC_K
        KV = TMP + 64
        rds = deque()
        own = o.get('kvown', 0)
        def rd(reg, av, off, kk, j):
            for hf in range(2): rds.append((f"ds_read_b64_tr_b16 {vq(reg+2*hf, 2)}, v{av[kk] if own else av[0]} offset:{(0 if own else kk*RW) + hf*120 + off}", ('kv', kk, j)))
        for kk in range(4):
            b = FB + kk * 20
            rd(b, KBV, 80, kk, 'a')
            for nt in range(NT): rd(b + 8 + 4 * nt, KBV, 32 * nt, kk, nt)
            rd(b + 4, KAV, 112, kk, 'z')
        if own:
            p("s_waitcnt lgkmcnt(5)")
            for _ in range(2 * NT + 4): self.put([rds.popleft()])
        self.tick()
        gk = 11
        self.flush_dma(('W', gk)); p.wait(vm=[('W', gk)], lg=['vw', 'pw'])
        p("s_barrier")
        self.release(13); self.release(14)
        def more(k):
            while k > 0 and rds and len(p.lgq) < 15: self.put([rds.popleft()]); k -= 1
        if own: more(5); p.wait(lg=[('kv', 0, 'z')])
        more(o.get('kvi', 15)); self.tick()
        p(f"v_mov_b32 v{TMP+1}, 0xff")
        seq = [(kk, nt) for kk in range(4) for nt in range(NT)]
        ao = deque((kk, f"v_and_or_b32 v{FB+kk*20+4+j}, v{FB+kk*20+4+j}, v{V_KEEP}, v{V_ONE}") for kk in range(4) for j in range(4))
        p.wait(lg=[('kv',) + seq[0]])
        for i_, (kk, nt) in enumerate(seq):
            b = FB + kk * 20
            p(f"{MF} {vq(KV + nt*4)}, {vq(b)}, {vq(b+8+4*nt)}, {'0' if kk == 0 else vq(KV + nt*4)}")
            p.wait(lg=[('kv',) + seq[i_ + 1]] if i_ + 1 < len(seq) else '*')
            k_ = len(rds); more(o.get('kvr', 4))
            for _ in range(max(0, 3 - (k_ - len(rds)))):
                if ao and ('kv', ao[0][0], 'z') not in p.lgq and not any(x[1] == ('kv', ao[0][0], 'z') for x in rds): p(ao.popleft()[1])
        assert not rds
        while len(ao) > 4: p(ao.popleft()[1])
        lastm = 0x00ff00ff if A else 0x000f000f
        def pub(mt, nt):
            a = KV + (mt * 3 + nt) * 4
            L = [(1, f"v_bfi_b32 v{a+j}, v{TMP+1}, s{S_TB+j}, v{a+j}") for j in range(4)]
            va = [V_P1ST, V_P1M, V_P1M + 1, V_P1M + 2][2 * mt + (nt == NT - 1)]
            return L + [(2, (f"buffer_store_dwordx4 {vq(a)}, v{va}, {srd(SWS)}, s{S_P1ST} offen offset:{(4*mt*F + 16*nt)*16 if A else [1024*mt, 1536 + 256*mt][nt]} sc1", 'p1'))]
        self.stamp('kv3')
        mf = [(2, f"{MF} {vq(KV + (3+nt)*4)}, {vq(FB+kk*20+4)}, {vq(FB+kk*20+8+4*nt)}, {'0' if kk == 0 else vq(KV + (3+nt)*4)}") for nt in range(NT) for kk in range(4)]
        pr = [(1, lambda n=n, hf=hf: self.wread(200 + n, hf)) for n in range(self.D(2) - 1) for hf in range(2)]
        self.put([x for _, x in self.weave(mf, [(1, x[1]) for x in ao] + [y for nt in range(NT) for y in pub(0, nt)] + pr)])
        qhead = [y for nt in range(NT) for y in pub(1, nt)]
        pb = o.get('pubb', 0)
        self.put([x for _, x in qhead[:pb]]); qhead = qhead[pb:]
        self.stamp()
        X = TMP + 8; CK = TMP + 2
        def tagcheck(mask):
            if mask == "0xff":
                L = [f"v_xor_b32 v{X+j}, s{S_TB+j%4}, v{X+j}" for j in range(4 * NI)] + [f"v_or_b32 v{CK}, v{X}, v{X+1}"]
                L += [f"v_or3_b32 v{CK}, v{CK}, v{X+j}, v{X+j+1}" for j in range(2, 4 * NI, 2)]
            else:
                L = [f"v_xor_b32 v{CK}, s{S_NONCE}, v{X}"] + [f"v_bitop3_b32 v{CK}, v{CK}, v{X+j}, s{S_NHI if j % 2 else S_NONCE} bitop3:0xf6" for j in range(1, 4 * NI)]
            return L + [f"v_and_b32 v{CK}, {mask}, v{CK}", f"v_cmp_ne_u32 vcc, 0, v{CK}"]
        lds_ = []
        for ii in range(NI):
            lds_ += [f"s_add_u32 s{T0}, s{S_P1LD}, {ii * (65536 // NI)}", f"buffer_load_dwordx4 {vq(X+4*ii)}, v{V_P1LD}, {srd(SWS)}, s{T0} offen sc1"]
        adds = [f"v_add_f32 v{X+j}, v{X+j}, v{X+4*ii+j}" for ii in range(1, NI) for j in range(4)]
        if o.get('h1pipe'):
            iss, chk = self.checked("L_h1", lds_, tagcheck("0xff"), 'h1', redo=adds)
            iss = [(x[0], ('h1', k_ // 2)) if isinstance(x, tuple) else x for k_, x in enumerate(iss)]
            c2 = []
            for ii in range(NI):
                c2 += [(0, lambda ii=ii: p.wait(vm=[('h1', ii)]))] + [(1, f"v_xor_b32 v{X+4*ii+j}, s{S_TB+j}, v{X+4*ii+j}") for j in range(4)]
                c2 += [(1, f"v_or_b32 v{CK}, v{X}, v{X+1}" if ii == 0 else f"v_or3_b32 v{CK}, v{CK}, v{X+4*ii}, v{X+4*ii+1}"), (1, f"v_or3_b32 v{CK}, v{CK}, v{X+4*ii+2}, v{X+4*ii+3}")]
                if ii == NI - 1: c2 += chk[-3:-1]
                if ii: c2 += [(1, y) for y in adds[4*ii-4:4*ii]]
            chk = c2 + chk[-1:]; red = []
        else:
            iss, chk = self.checked("L_h1", lds_, tagcheck("0xff"), 'h1')
            red = list(adds)
        red += [f"v_permlane32_swap_b32 v{X}, v{X+2}", f"v_permlane32_swap_b32 v{X+1}, v{X+3}", f"v_add_f32 v{X}, v{X}, v{X+2}", f"v_add_f32 v{X+1}, v{X+1}, v{X+3}",
                f"v_mov_b32 v{CK}, 0xffff", f"v_permlane16_swap_b32 v{X}, v{X+1}", f"v_add_f32 v{X}, v{X}, v{X+1}"]
        if not A: red.append(f"v_add_f32_dpp v{X}, v{X}, v{X} row_ror:8 row_mask:0xf bank_mask:0xf")
        red += [f"v_cvt_pk_bf16_f32 v{X}, v{X}, v{X}", f"v_bfi_b32 v{X}, v{CK}, v{V_VW}, v{X}"]
        st = (f"buffer_store_dword v{X}, v{V_P2ST}, {srd(SWS)}, s{S_P2ST} offen sc1", 'p2')
        sts = [st]
        for _ in range((1 << o.get('p2log', 2)) - 1): sts += [f"s_add_u32 s{S_P2ST}, s{S_P2ST}, {1 << 18}", st]
        if A and o.get('h1pipe'):
            red += [sts[0:1]] + [sts[k_:k_+2] for k_ in range(1, len(sts), 2)]
        else: red.append(sts if A else ["s_mov_b32 exec_lo, 0x00ff00ff", "s_mov_b32 exec_hi, 0x00ff00ff"] + sts + ["s_mov_b64 exec, -1"])
        n1, n2 = o.get('h1', (62, 84))
        hooks = {n1 + k: iss[2*k:2*k+2] for k in range(NI)}
        if pfp >= 100: hooks.setdefault(pfp - 100, []).extend(ipf)
        for k_, v_ in xq.items(): hooks.setdefault(k_, []).extend(v_)
        c_ = [x for _, x in cpf_]
        pc = o.get('pfchk', 13)
        hooks.setdefault(pc, []).extend(c_[:3]); hooks.setdefault(pc + 1, []).extend(c_[3:4]); hooks.setdefault(pc + 3, []).extend(c_[4:] + [lambda: setattr(self, 'pfok', True)])
        if 200 <= pp_ < 300: hooks.setdefault(pp_ - 200, []).extend(pre)
        qh = deque(qhead)
        for n in range(20): hooks.setdefault(n, []).append(lambda: self.gap(qh, 2))
        qb_ = o.get('qb', (30, 53, 66, 80))
        dq_ = self.D(2); assert self.D(0) == 6 and self.D(1) >= 5
        assert 18 <= qb_[0] <= 40 - dq_ and 38 <= qb_[1] <= 60 - dq_ and 58 <= qb_[2] <= 80 - dq_ and 78 <= qb_[3] <= 98
        busy = sorted([(pc, pc + 3), (n1, n1 + NI), (n2, min(100, n2 + o.get('h1len', 16)) + 1)] + ([(x3 - 200, x3 - 195)] if x3 >= 200 else []))
        assert all(a_[1] < b_[0] for a_, b_ in zip(busy, busy[1:])), busy
        assert pfp - 100 < pc and x2 < x3 and (pp_ < 100 or pp_ > x3 + 5)
        zw = [f"v_mov_b32 v{TMP+4}, 0", f"v_mov_b32 v{TMP+5}, 0", (f"ds_write_b64 v{V_ZA}, {vq(TMP+4, 2)}", 'zw')]
        if o.get('rslot'):
            hooks.setdefault(qb_[0] + 4, []).extend(zw[:2]); hooks.setdefault(qb_[0] + 5, []).extend(zw[2:])
        for fr_, pubg, rel in [(qb_[0], 12, [15, 18, 19] if o.get('rslot') else [15]), (qb_[1], 13, [16]), (qb_[2], 14, [17])] + ([] if o.get('rslot') else [(qb_[3], 14, [18])]):
            hooks.setdefault(fr_, []).extend([lambda g=pubg: self.group_sync(g)] + [lambda r=r: self.release(r) for r in rel])
        lateQ = None
        if A:
            P0 = self.phiA_parts(x0, E0, M0_, "L_q0", True); P1 = self.phiA_parts(x1, E1, M1_, "L_q1", True)
            lateQ = early(2, P0, P1)
        self.gemm_pass(2, ACC_K, xbp(2), late=lateQ, fill=chk + [(2 if isinstance(x, list) and o.get('h1pipe') else 1, x) for x in red], hooks=hooks, last=True, sync=False, frange=(n2, min(100, n2 + o.get('h1len', 16))),
                       pace=lambda n: 1 if (n >= 9 and n % (o.get('qpace', 3) if n < o.get('qsw', 42) else o.get('qpace2', 3)) == 0 and not n1 <= n < n1 + NI) else 0)
        assert not qh
        if not o.get('rslot'): p("s_barrier")
        [self.release(r) for r in range(15, 20)]
        self.stamp()
        X = TMP + 96; CK = TMP + 92
        lds_ = [f"buffer_load_dwordx4 {vq(X+4*ii)}, v{V_LIN if ii < NI-1 else V_GAL}, {srd(SWS)}, s{S_P2LD} offen offset:{1024*ii if ii < NI-1 else 0} sc1" for ii in range(NI)]
        PB = TMP + 8
        img = [y for ii in range(NI) for y in (f"v_perm_b32 v{PB+2*ii}, v{X+4*ii+1}, v{X+4*ii}, s{S_PERM}", f"v_perm_b32 v{PB+2*ii+1}, v{X+4*ii+3}, v{X+4*ii+2}, s{S_PERM}",
                                               f"ds_write_b64 v{V_LA+ii}, {vq(PB+2*ii, 2)}")]
        iss, chk = self.checked("L_h2", lds_, tagcheck("0xffff"), 'h2', redo=img)
        zw = [f"v_mov_b32 v{CK}, 0", f"v_mov_b32 v{CK+1}, 0", f"ds_write_b64 v{V_ZA}, {vq(CK, 2)}"] if not o.get('rslot') else []
        if not A: self.put(zw)
        for k_ in range(o.get('dirty', 0)):
            p(f"s_add_u32 s{T0}, s{S_OP}, {(9 << 20) + (k_ // 5) * (6 << 20) + (k_ % 5) * 1024}")
            p(f"buffer_store_dwordx4 v[2:5], v{V_LIN}, {srd(SWS)}, s{T0} offen {o.get('dirtyf', '')}")
        if o.get('prepos', 0) == 1: self.put(pre)
        if not A:
            for tt in range(6): p(f"v_accvgpr_write_b32 a{40+4*(3*tt+2)+2}, 0"); p(f"v_accvgpr_write_b32 a{40+4*(3*tt+2)+3}, 0")
        if A:
            r0, r1 = split(lateQ, P0)
            L_, ne = headA(P0, P1, r0, r1, {0: [dm], 2: [(0, zw)]} if not r1 else {}, {})
            L = L_ + P0['exp'][ne:] + P0['hp'] + P0['rcp'] + P0['norm'] + P0['out'] + P1['exp'][max(0, ne - 20):] + P1['hp'] + P1['rcp'] + P1['norm'] + P1['out']
            if r1: self.put(zw)
        else:
            L = []
            for x, e in ((x0, E0), (x1, E1)):
                L += self.phiB(x, e, True) + [(1, f"v_mov_b32 v{x+10}, 0"), (1, f"v_mov_b32 v{x+11}, 0")]
        d1_, d2_ = o.get('oshift', (0, 0))
        Ld2 = L[len(L) - d2_:]; L = L[:len(L) - d2_]
        Ld1 = L[len(L) - d1_:]; L = L[:len(L) - d1_]
        tot = sum(c for c, _ in L)
        ev = [(tot - o.get('h2lead', 60), iss)]
        if o.get('prepos', 0) == 0 and o.get('prelead', 0) >= 0: ev.append((tot - o.get('prelead', o.get('h2lead', 60)) + 0.5, pre))
        if (o.get('pre1m') or 0) < -1: ev.append((tot + o['pre1m'] + 0.5, pre1))
        for ps_, L_ in prel: ev.append((tot + ps_ + 0.5, L_))
        L2 = []; c = 0; ev.sort(key=lambda e_: e_[0])
        for it_ in L + [(0, [])]:
            while ev and c >= ev[0][0] - (0.5 if it_[0] == 0 else 0): L2.append((0, ev.pop(0)[1]))
            L2.append(it_); c += it_[0]
        assert not ev
        self.run(L2, every=o.get('qev', 44))
        gl = 19 if o.get('nohb') else 17
        self.flush_dma(('W', gl))
        self.stamp()
        self.put([chk[0][1]] + img + [x for _, x in chk[1:]])
        if o.get('prepos', 0) == 0 and o.get('prelead', 0) < 0: self.put(pre)
        if o.get('pre1m') == -1: self.put(pre1)
        self.put([x for _, x in Ld1])
        p(f"s_cmp_eq_u32 s{S_FAST}, 0")
        p.wait(vm=[('W', gl)], lg='*')
        p("s_barrier")
        self.stamp()
        assert not self.dq or True
        import copy
        if o.get('stamps'): p(f"s_cmp_eq_u32 s{S_FAST}, 0")
        p(f"s_cbranch_scc0 L_tail{self.sfx}s")
        env = dict(RS=RS, M0_=M0_, M1_=M1_, Ld2=Ld2, pre1=pre1)
        sv = (self.p, self.sfx, self.nst, getattr(self, 'cs', 0), deque(self.dq))
        self.p = Prog(); self.p.vmq = list(p.vmq); self.p.lgq = list(p.lgq); self.sfx += 's'
        self.p(f"L_tail{self.sfx}:")
        self.tail(False, **env)
        self.ool.append(self.p.finalize())
        self.p, self.sfx, self.nst, self.cs, self.dq = sv
        self.tail(True, **env)
        return p.finalize() + "".join(self.ool)
    def tail(self, fast, RS, M0_, M1_, Ld2, pre1):
        p = self.p; A = self.A; o = self.o; br = 0 if A else 1
        def more(k):
            while k > 0 and rds and len(p.lgq) < 15: self.put([rds.popleft()]); k -= 1
        OA = ACC_V
        NU = 5 if A else 3
        SP = TMP + 112
        OB = TMP + 64
        LO = TMP + 80
        fr = [(tt, u_) for tt in (5, 0, 1, 2, 3, 4) for u_ in range(NU)]
        AO = 40
        rds = deque()
        for n, (tt, u_) in enumerate(fr):
            if not A and u_ == 2: rds.append((f"ds_read_b64 {aq(AO+4*n, 2)}, v{V_FR2} offset:{4*tt*RS + 16*u_}", ('of', n)))
            else: rds.append((f"ds_read_b128 {aq(AO+4*n)}, v{V_FR2} offset:{4*tt*RS + 16*u_}", ('of', n)))
        more(10)
        if A: p(f"v_mov_b32 v{SP}, v{M0_}"); p(f"v_mov_b32 v{SP+1}, v{M1_}")
        self.put([x for _, x in Ld2])
        def ost(txt, tag='o'):
            p(txt + ((o.get('fastf', '') if 'x4' in txt else '') if fast else " sc1"), tag)
        def flag(k): ost(f"buffer_store_dword v{V_NONCE}, v{V_FOWN}, {srd(SWS)}, s{S_FLAG} offen offset:{32*k}", 'fl')
        def poll(k, name):
            iss, chk = self.checked(name, [f"buffer_load_dword v{V_DUMP}, v{V_F8}, {srd(SWS)}, s{S_FLAG} offen offset:{32*k} sc1"], [f"v_cmp_ne_u32 vcc, s{S_NONCE}, v{V_DUMP}"], name)
            return iss, [x for _, x in chk]
        order = [(0, k) for k in range(5)] + [(1, k) for k in range(5)] + [(0, 5), (1, 5)]
        epi = deque()
        for z, (rt, k) in enumerate(order):
            dn = OA + (rt * 6 + 5) * 4
            b = OA + rt * 24
            rdy = (z + 1) * NU + o.get('rdy', 4)
            if k == 0:
                epi.append((rdy, 1, f"v_fmac_f32 v{dn}, {EPS}, v{SP+rt}" if A else f"v_add_f32 v{dn}, {EPS}, v{dn}")); epi.append((rdy, 2, f"v_rcp_f32 v{dn}, v{dn}"))
                continue
            tt = k - 1
            for r in range(4): epi.append((rdy, 1, f"v_mul_f32 v{b+4*tt+r}, v{b+4*tt+r}, v{dn}"))
            for h in range(2):
                i = 2 * tt + h
                d = OB + ((i // 4) * 2 + rt) * 4 + i % 4 if i < 8 else LO + 2 * rt + (i - 8)
                epi.append((rdy, 1, f"v_cvt_pk_bf16_f32 v{d}, v{b+2*i}, v{b+2*i+1}"))
            if tt in (1, 3):
                u_ = tt // 2
                epi.append((0, 2, lambda u_=u_, rt=rt: ost(f"buffer_store_dwordx4 {vq(OB+(u_*2+rt)*4)}, v{V_OO+rt*2+u_}, {srd(SO)}, s{S_OP} offen", ('S', rt))))
        epi.append((0, 2, lambda: ost(f"buffer_store_dwordx4 {vq(LO)}, v{V_OO+4}, {srd(SO)}, s{S_OP} offen", ('S', 1))))
        TM_ = o.get('tmaj', 3); LD = o.get('lead', 8); DF = o.get('df', 11); A_RING = A_PHI
        items = [(P, t_, (0, 1)) for P in range(2) for t_ in range(5)] + [(P, t_, (0,)) for P in range(2, 2 + LD) for t_ in range(5)] + \
                [(P, t_, (0, 1)) for P in range(2 + LD, 20) for t_ in range(5)] + [(P, t_, (1,)) for P in range(2, 2 + LD - TM_) for t_ in range(5)] + \
                [(P, t_, (1,)) for t_ in range(5) for P in range(2 + LD - TM_, 2 + LD)]
        keep = o.get('keep', 40); DP = 7
        dest = {}; prevuse = {}; order_r = []; ringn = 0; cache = {}; lastring = {}
        for i, (P, t_, rts) in enumerate(items):
            if (P, t_) in cache: dest[i] = cache[(P, t_)]; continue
            if not keep: r_ = aq(A_RING + (i % DF) * 4)
            elif rts == (0,) and len(cache) < keep:
                k_ = len(cache); r_ = aq(128 + 4 * k_) if k_ < 32 else vq(72 + 4 * (k_ - 32)); cache[(P, t_)] = r_
            else: r_ = vq(TMP + 36 + 4 * (ringn % DP)); ringn += 1
            prevuse[i] = lastring.get(r_, -1); lastring[r_] = i
            dest[i] = r_; order_r.append(i)
        mpos = [0]
        for it_ in items: mpos.append(mpos[-1] + len(it_[2]))
        rq = deque(order_r)
        def fread(i=None, hf=0):
            i = rq.popleft(); P, t_, _ = items[i]
            off = RING + P * 5120 + 1024 * t_; hi = off >= 51200
            if P >= 12 and o.get('rslot'): p(f"ds_read_b128 {dest[i]}, v{V_LINX} offset:{off - 12*5120}", ('FF', i)); return
            p(f"ds_read_b128 {dest[i]}, v{V_LINH if hi else V_LIN} offset:{off - 51200*hi}", ('FF', i))
        def canread(i):
            return rq and prevuse[rq[0]] < i and mpos[rq[0]] - mpos[i] <= (o.get('look', 12) if keep else 99) and len(p.lgq) < 14
        pr = deque((i, 0) for i in range(DP - 1 if keep else DF - 1))
        m = 0; mf0 = o.get('mf0', 54 if A else 36); seen = set()
        for rt, k in order:
            for u_ in range(NU):
                n = k * NU + u_; tt = fr[n][0]
                a = OA + (rt * 6 + tt) * 4
                if m == 0: p.wait(lg=[('of', 0)])
                p(f"{MF} {vq(a)}, {aq(AO+4*n)}, {vq(ACC_K+20*rt+4*u_)}, {'0' if u_ == 0 else vq(a)}")
                m += 1
                if n + 1 < len(fr): p.wait(lg=[('of', n + 1)])
                bud = 2 if A else 3
                if m == mf0:
                    assert sum(1 for x in p.ins if x.tag == ('S', 0)) == 2
                    p.wait(vm=[('S', 0)]); flag(0); bud -= 2
                elif m == o.get('pre1m'): self.put(pre1); bud -= 2
                elif rds: more(1); bud -= 1 if not (epi and epi[0][0] <= m and epi[0][1] == 2) else 0
                elif self.dq and m % o.get('opace', 8) == 0: self.tick(); bud -= 2
                elif pr and not (epi and epi[0][0] <= m): fread(*pr.popleft()); bud -= 1
                while epi and epi[0][0] <= m and epi[0][1] <= bud:
                    _, c, x = epi.popleft(); bud -= c
                    self.put([x])
                    if callable(x): break
        while pr: fread(*pr.popleft())
        while len(epi) > 7: self.put([epi.popleft()[2]])
        while self.tick(): pass
        self.stamp()
        def ob(ks, rt):
            if ks < 2: return vq(OB + (ks * 2 + rt) * 4)
            return aq((ks * 2 + rt) * 4) if ks < 16 else vq(LO + (2 * (ks - 16) + rt) * 4)
        ofl = o.get('ofl', 'sc1') if fast else 'sc1'
        def ld(P, rt):
            if P < 16: return [(f"buffer_load_dwordx4 {aq((P*2+rt)*4)}, v{V_OO+rt*2+P%2}, {srd(SO)}, s{S_OP + P//2} offen {ofl}", ('O', P, rt))]
            return [(f"buffer_load_dwordx4 {vq(LO+(2*(P-16)+rt)*4)}, v{V_OO+4}, {srd(SO)}, s{S_OP + 2*(P-16) + rt} offen {ofl}", ('O', P, rt))]
        i0, c0 = poll(0, "L_f0"); i1, c1 = poll(1, "L_f1"); i2, c2 = poll(2, "L_d0"); i3, c3 = poll(3, "L_d1")
        L0x = min(16, 2 + LD + o.get('xlead', 0))
        if o.get('nod'):
            if '0' in o['nod']: i2 = []; c2 = [[], [], c2[2][1:]]
            if '1' in o['nod']: i3 = []; c3 = [[], [], c3[2][1:]]
        lead = [ld(P, 0) for P in range(2, L0x)]
        rest = [ld(P, rt) for P in range(2 + LD, 20) for rt in range(2) if (P, rt) != (16, 0) and not (rt == 0 and P < L0x)] + [ld(P, 1) for P in range(2, 2 + LD)]
        def handshake():
            def burst():
                p.wait(lg='*')
                while rq and items[rq[0]][2] == (0,) and prevuse[rq[0]] < 0 and len(p.lgq) < 14: fread()
            if keep and o.get('hsr', 2) >= 1: burst()
            p.wait(vm=[('S', 1), ('W', 18), ('W', 19)])
            flag(1)
            self.put(c0)
            self.stamp()
            self.q(0, lead); self.q(10**6 + 50, rest)
            for k_ in range(o.get('oprime', 7)):
                self.tick()
                if k_ == 3 and not o.get('nohb') and not o.get('hbl'): p("s_barrier")
                if k_ == 3 and o.get('p1it', -1) < 0: self.put(i1)
            if keep and o.get('hsr', 2) >= 2: burst()
            p.wait(vm=[('O', 2, 0)])
        E0 = len(items) - 5 * LD
        NI_ = len(items)
        def outp(rt):
            b = TMP + 8
            c = self.cvt20(acc(ACC_K, 0, rt), b)
            L = []
            for j in range(5): L += [c[2*j][1], c[2*j+1][1], (f"ds_write_b64 v{V_OW}, {vq(b+2*j, 2)} offset:{8*j}", 'ow')]
            L += [(f"ds_read_b128 {vq(TMP+24+4*j)}, v{V_ORD+j}", ('or', j)) for j in range(3)]
            S_ = [(f"buffer_store_dwordx4 {vq(TMP+24+4*j)}, v{V_OG+j}, {srd(SOUT)}, s{S_OUT} offen{o.get('oflag', ('', ''))[rt]}", 'out') for j in range(3)]
            return L, S_
        vw, lw, sc_, vec = {}, {}, {}, {}
        add = lambda d, i, L: d.setdefault(i, []).extend(L)
        def check(i, c, tag, gapn):
            add(vw, i, [tag]); add(vec, i, [c[1]]); add(sc_, i + gapn, [c[2]])
        ep = [x[2] for x in epi]
        add(vec, 1, ep[:3]); add(vec, 2, ep[3:6]); add(vec, 3, ep[6:])
        add(vec, o.get('p0pos', 4), i0)
        add(vec, 9, [handshake])
        if o.get('p1it', -1) >= 0: add(vec, 10 + o.get('p1it', -1), i1)
        ci = 10 + o.get('c1pos', 5); check(ci, c1, "L_f1", 2); add(sc_, ci + 2, [lambda: self.release(50)])
        if o.get('hbl') and not o.get('nohb'):
            assert o['hbl'] <= 45; add(sc_, o['hbl'], ["s_barrier"])
        for i in range(15, NI_ - 5 * TM_ + 1, 5):
            if i == NI_: break
            Pn, _, rn = items[i]
            tags = [('O', Pn, rt) for rt in rn]
            if i == NI_ - 5 * TM_: tags = [('O', 1 + LD, 1)]
            if Pn >= 16:
                a = LO + 2 * (Pn - 16) * 4
                add(vw, i - 2, tags); add(vec, i - 2, [f"v_swap_b32 v{a+2}, v{a+4}", f"v_swap_b32 v{a+3}, v{a+5}"])
            else: add(vw, i - 1, tags)
        nd0 = E0 - o.get('d0', 8); add(vw, nd0, [('O', 19, 0), ('O', 19, 1)]); add(vec, nd0, [lambda: flag(2)])
        add(vec, E0 + o.get('d0p', 0), i2)
        L0, S0 = outp(0)
        if keep >= 5 * LD:
            for j in range(5): add(vec, E0 + 3 + 2 * j, L0[3*j:3*j+2]); add(vec, E0 + 4 + 2 * j, L0[3*j+2:3*j+3])
            add(vec, E0 + 13, L0[15:17]); add(vec, E0 + 14, L0[17:18])
        else:
            for j, x in enumerate(L0): add(vec, E0 + 2 + j, [x])
        nd1 = NI_ - o.get('d1', 24); (add(vw, nd1, [('O', 1 + LD, 1)]), add(vec, nd1, [lambda: flag(3)])) if '1' not in o.get('nod', '') else None
        check(E0 + 22, c2, "L_d0", 2)
        for j, x in enumerate(S0): add(lw, E0 + 25 + 2 * j, [('or', j)]); add(vec, E0 + 25 + 2 * j, [x])
        L1, S1 = outp(1)
        n1e = 0
        if TM_:
            for j in range(15):
                pos = NI_ - 5 * TM_ + (j // 3 + 1) * TM_ + (2 + j % 3 if keep < 5 * LD else o.get('o1lag', 3) + (j % 3) // 2)
                if pos < NI_: add(vec, pos, [L1[j]]); n1e = j + 1
        add(vec, NI_ - o.get('d1p', 8), i3)
        add(sc_, NI_ - 5, [f"s_or_b32 s{T0}, s{S_RB}, s{S_HEAD}"]); add(sc_, NI_ - 4, [f"s_cmp_lg_u32 s{T0}, 0"]); add(sc_, NI_ - 3, [f"s_cselect_b32 s{T0}, {WS_SIZE}, 0"])
        add(vec, NI_ - 2, [(f"buffer_store_dword v{V_NONCE}, v{V_FOWN}, {srd(SWS)}, s{T0} offen offset:{br*128}{'' if o.get('nplain', 0) else ' sc1'}", 'nn')])
        assert ci + 2 < E0 + o.get('d0p', 0) < E0 + 22 and E0 + 24 < NI_ - o.get('d1p', 8) and nd1 < NI_ - o.get('d1p', 8) and nd0 < E0 + o.get('d0p', 0)
        assert 3 < o.get('p0pos', 4) <= 9 and E0 + 29 < NI_ - 5 * TM_ + TM_ + 2 + 15
        def wb():
            m_ = o.get('wbm', 31)
            p.untracked([f"s_lshr_b32 s{T1}, s2, 3", f"s_and_b32 s{T1}, s{T1}, {m_}", f"s_or_b32 s{T1}, s{T1}, s{S_W}", f"s_cbranch_scc1 L_wb{self.sfx}", "buffer_wbl2 sc1", f"L_wb{self.sfx}:"])
        if fast and o.get('wb', 0) > 0: add(vec, NI_ - o['wb'], [wb])
        p.wait(lg=[('FF', 0)])
        clk = 0.0; per = o.get('lper', 4.6)
        for i, (P, t_, rts) in enumerate(items):
            for z, rt in enumerate(rts):
                a = acc(ACC_K, t_, rt)
                p(f"{MF} {vq(a)}, {dest[i]}, {ob(P, rt)}, {'0' if P == 0 else vq(a)}")
                if z == 0:
                    k0 = len(p.ins)
                    for tg in vw.get(i, []): self.flush_dma(tg)
                    assert i + 1 not in rq
                    p.wait(vm=vw.get(i), lg=[('FF', i + 1)] + lw.get(i, []))
                    if len(rts) == 1: self.put(sc_.get(i, []))
                    if canread(i):
                        if len(p.ins) == k0: p("s_nop 0")
                        fread()
                        if keep and len(rts) == 2 and canread(i): fread()
                else: self.put(sc_.get(i, []))
            self.stamp('z%d' % i)
            if i >= 10:
                clk += len(rts)
                if clk >= per and i not in vec and self.tick(): clk -= per
            self.put(vec.get(i, []))
        self.stamp()
        p(f"s_add_u32 s{S_OUT}, s{S_OUT}, {16*2560}")
        self.put(L1[n1e:12]); self.put(c3[:2]); self.put(L1[12:]); self.put(c3[2:])
        if fast and o.get('wb', 0) == -2: wb()
        for j in range(3): p.wait(lg=[('or', j)]); self.put([S1[j]])
        if fast and o.get('wb', 0) == -1: wb()
        if o.get('stamps'):
            p("s_waitcnt vmcnt(0)")
            self.stamp()
            p("s_memrealtime s[100:101]")
            p("s_waitcnt lgkmcnt(0)")
            p.raw(f"""
            s_lshl_b32 s{T0}, s2, 2
            s_add_u32 s{T0}, s{T0}, s{S_W}
            s_lshl_b32 s{T0}, s{T0}, 6
            s_add_u32 s{T0}, s{T0}, {WS_ST}
            v_mov_b32 v{TMP+16}, 0
            v_mov_b32 v{TMP}, s98
            v_mov_b32 v{TMP+1}, s100
            """)
            for k in range(14): p(f"v_mov_b32 v{TMP+2+k}, {'s%d' % (S_ST+k) if k < self.nst else ('s95' if k == 13 else 0)}")
            p("s_mov_b64 exec, 1")
            for k in range(4): p(f"buffer_store_dwordx4 {vq(TMP+4*k)}, v{TMP+16}, {srd(SWS)}, s{T0} offen offset:{16*k}")
        if o.get('cntm'):
            wbd = "" if not o.get('wbd') else f"""s_lshr_b32 s{T0}, s2, 3
            s_or_b32 s{T0}, s{T0}, s{S_W}
            s_cmp_lg_u32 s{T0}, 0
            s_cbranch_scc1 L_wb2{self.sfx}
            L_wb1{self.sfx}:
            s_sleep 2
            s_memrealtime s[64:65]
            s_waitcnt lgkmcnt(0)
            s_sub_u32 s{T1}, s64, s98
            s_cmp_lt_u32 s{T1}, 2500
            s_cbranch_scc1 L_wb1{self.sfx}
            buffer_wbl2 sc1
            s_waitcnt vmcnt(0)
            L_wb2{self.sfx}:"""
            p.raw(f"""
            s_load_dwordx2 s[62:63], s[0:1], 64
            v_mov_b32 v2, 0
            v_mov_b32 v3, s95
            s_waitcnt lgkmcnt(0)
            s_cmp_eq_u32 s95, 0
            s_cbranch_scc1 L_cn0{self.sfx}
            s_mov_b64 exec, 1
            global_atomic_add v2, v3, s[62:63] sc1
            L_cn0{self.sfx}:
            {wbd}
            s_or_b32 s{T0}, s{S_RB}, s{S_HEAD}
            s_cmp_lg_u32 s{T0}, 0
            s_cbranch_scc1 L_cn2{self.sfx}
            s_movk_i32 s{T0}, 3500
            s_mov_b32 s{T2}, 0
            L_cn1{self.sfx}:
            s_sleep 2
            s_memrealtime s[64:65]
            s_waitcnt lgkmcnt(0)
            s_sub_u32 s{T1}, s64, s98
            s_cmp_lt_u32 s{T1}, s{T0}
            s_cbranch_scc1 L_cn1{self.sfx}
            s_cmp_eq_u32 s{T2}, 1
            s_cbranch_scc1 L_cn2{self.sfx}
            global_load_dword v3, v2, s[62:63] sc1
            s_waitcnt vmcnt(0)
            v_readfirstlane_b32 s{T0}, v3
            s_min_u32 s{T0}, s{T0}, 1024
            s_mul_i32 s{T0}, s{T0}, 20
            s_add_u32 s{T0}, s{T0}, 4000
            s_mov_b32 s{T2}, 1
            s_branch L_cn1{self.sfx}
            L_cn2{self.sfx}:
            """)
        if o.get('amp'):
            p("s_waitcnt vmcnt(0)")
            self.stamp()
            if o['amp'][0] < 0: p("s_mov_b32 s100, s98")
            p.raw(f"""
            s_and_b32 s{T0}, s2, 7
            s_lshr_b32 s{T0}, {o['amp'][2]}, s{T0}
            s_bitcmp1_b32 s{T0}, 0
            s_cbranch_scc0 L_ampx{self.sfx}
            s_load_dwordx2 s[62:63], s[0:1], 64
            v_mov_b32 v2, 0
            s_waitcnt lgkmcnt(0)
            global_load_dword v3, v2, s[62:63] sc1
            s_waitcnt vmcnt(0)
            v_readfirstlane_b32 s{T2}, v3
            s_not_b32 s{T2}, s{T2}
            s_sub_u32 s{T0}, s100, s{T2}
            s_add_u32 s{T0}, s{T0}, 300
            s_mul_i32 s{T0}, s{T0}, {o['amp'][1]}
            s_min_u32 s{T0}, s{T0}, 100000
            L_amp{self.sfx}:
            s_sleep 2
            s_memrealtime s[64:65]
            s_waitcnt lgkmcnt(0)
            s_sub_u32 s{T1}, s64, s{T2}
            s_cmp_lt_u32 s{T1}, s{T0}
            s_cbranch_scc1 L_amp{self.sfx}
            L_ampx{self.sfx}:
            """)
        p("s_endpgm")
        assert not self.dq

def sizes(lines):
    import subprocess, re
    src = '.amdgcn_target "amdgcn-amd-amdhsa--gfx950"\n.text\n' + "\n".join(lines) + "\n"
    r = subprocess.run(["llvm-mc", "-triple=amdgcn-amd-amdhsa", "-mcpu=gfx950", "-show-encoding"], input=src, capture_output=True, text=True)
    assert r.returncode == 0, r.stderr[:2000]
    return [len(m.split(',')) for m in re.findall(r'encoding: \[([^\]]*)\]', r.stdout)]
def add_hops(text, sfx, align=True):
    lines = text.split("\n")
    i0 = lines.index(f"L_main{sfx}:"); i1 = next(i for i in range(i0, len(lines)) if lines[i].strip() == "s_endpgm")
    body = lines[i0 + 1:i1]
    isi = lambda l: l.startswith("    ")
    szl = sizes([l for l in body if isi(l)])
    insl = [l.strip() for l in body if isi(l)]
    big = [z == 8 and t.startswith("v_") and not t.startswith("v_mfma") for z, t in zip(szl, insl)]
    run = [0] * (len(big) + 1)
    for k in range(len(big) - 1, -1, -1): run[k] = run[k + 1] + 1 if big[k] else 0
    sz = iter(szl); k = -1; nfix = 0
    out = []; addr = 0; page = 0; prev = "v_mfma"
    for l in body:
        if isi(l):
            k += 1
            if align and run[k] >= 3 and addr % 8 == 4:
                pv = out[-1] if isinstance(out[-1], str) else ""
                op = pv.split()[0] if pv.strip() else ""
                if isi(pv) and szl[k - 1] == 4 and op.startswith("v_") and not op.startswith(("v_cmp", "v_swap", "v_permlane", "v_readfirst")):
                    out[-1] = pv.replace(op, op + "_e64", 1); addr += 4; nfix += 1
                elif run[k] >= 6: out.append("    s_nop 0"); addr += 4; nfix += 1
            off = addr - page * 4096
            if off >= 0 and (prev.startswith("v_mfma") or off >= 40) and not prev.startswith("s_mov_b64 exec") :
                out.append(("hop", page)); addr += 4; page += 1
            addr += next(sz); prev = l.strip()
        out.append(l)
    assert page >= 4
    res = []
    for x in out:
        if isinstance(x, tuple):
            k = x[1]
            res += [f"L_hop{k}{sfx}:", f"    s_cbranch_execz " + (f"L_hop{k+4}{sfx}" if k + 4 < page else f"L_hopret{sfx}")]
        else: res.append(x)
    print(sfx, "main bytes", addr, "align fixes", nfix, file=sys.stderr)
    return "\n".join(lines[:i0 + 1] + res + lines[i1:])

def build(opt):
    ref = open(f"cdna_kernels/{NAME}.s.ref").read().split("\n")
    head = [l for l in ref if l.startswith(";") and "@launch" not in l]
    s = "\n".join(head) + "\n; @launch grid=(256,1,1) block=(256,1,1) lds=163840\n"
    s += f""".amdgcn_target "amdgcn-amd-amdhsa--gfx950"
.text
.globl {NAME}_kernel
.p2align 12
.p2align 8
.type {NAME}_kernel,@function
{NAME}_kernel:
    ;  kv / z       : per-workgroup partials, reduce-scatter + all-gather through d_ws; every word carries a launch tag
    s_cmp_ge_u32 s2, 256
    s_cbranch_scc1 L_exit
"""
    ga = Gen(True, opt); ta = ga.body(); gb = Gen(False, opt); tb = gb.body()
    ca, ra = ta.split(".split\n"); cb, rb = tb.split(".split\n")
    assert ca == cb
    if opt.get('hops', 1): ra = add_hops(ra, 'A', opt.get('align', 1)); rb = add_hops(rb, 'B', opt.get('align', 1))
    s += ca + ra + "L_exit:\n    s_endpgm\n.p2align 12\n" + rb
    s += ".fill 2048, 4, 0xbf810000\n"
    s += f""".section .rodata,"a"
.p2align 6
.amdhsa_kernel {NAME}_kernel
  .amdhsa_next_free_vgpr 512
  .amdhsa_next_free_sgpr 102
  .amdhsa_accum_offset 256
  .amdhsa_group_segment_fixed_size 0
  .amdhsa_kernarg_size 80
  .amdhsa_user_sgpr_count 2
  .amdhsa_user_sgpr_kernarg_segment_ptr 1
  .amdhsa_system_sgpr_workgroup_id_x 1
.end_amdhsa_kernel
"""
    print("nops", ga.p.nops, gb.p.nops, "instrs", len(ga.p.ins), len(gb.p.ins), "autow", getattr(ga.p, 'autow', 0), file=sys.stderr)
    return s

if __name__ == "__main__":
    import json
    opt = json.loads(sys.argv[2]) if len(sys.argv) > 2 else {}
    open(sys.argv[1], "w").write(build(opt))
```
